```python
import torch

def _softmax(x, axis=-1):
    return torch.softmax(x, dim=axis)
def _gelu(x):
    return torch.nn.functional.gelu(x, approximate="tanh")
def _silu(x):
    return torch.nn.functional.silu(x)
def _sigmoid(x):
    return torch.sigmoid(x)
def _layernorm(x, axis=-1, eps=1e-5):
    m = x.mean(dim=axis, keepdim=True)
    v = x.var(dim=axis, keepdim=True, unbiased=False)
    return (x - m) / torch.sqrt(v + eps)
def _scatter_add(tgt, idx, src, axis=0):
    return tgt.clone().index_add_(axis, idx, src)
def _segment_sum(src, seg, n):
    out = torch.zeros((n,) + src.shape[1:], dtype=src.dtype)
    return out.index_add_(0, seg, src)
def _pad(x, pw):
    flat = tuple(v for pair in reversed(pw) for v in pair)
    return torch.nn.functional.pad(x, flat)

kernel_name = 'standalone__gqa_softmax__near_ridge'

def setup_inputs():

    _w = (lambda a: (lambda t: t.to(torch.bfloat16) if t.is_floating_point() else t)(torch.as_tensor(a)))
    B, Hq, Hkv, Sq, Sk, D = 16, 32, 4, 512, 512, 128
    return {
        "q": _w((lambda *s: torch.randn(*s, dtype=torch.bfloat16) * 0.8)(B, Hq, Sq, D)),
        "k": _w((lambda *s: torch.randn(*s, dtype=torch.bfloat16) * 0.8)(B, Hkv, Sk, D)),
        "v": _w((lambda *s: torch.randn(*s, dtype=torch.bfloat16) * 0.05)(B, Hkv, Sk, D)),
    }

def reference(q, k, v):
    B, Hq, Sq, D = q.shape
    Hkv = k.shape[1]
    rep = Hq // Hkv
    k = (lambda x, n, axis: torch.repeat_interleave(x, n, dim=axis))(k, rep, axis=1)
    v = (lambda x, n, axis: torch.repeat_interleave(x, n, dim=axis))(v, rep, axis=1)
    scale = D ** -0.5
    scores = torch.einsum("bhqd,bhkd->bhqk", q, k) * scale
    p = _softmax(scores, axis=-1)
    return torch.einsum("bhqk,bhkd->bhqd", p, v)
```

```python
import sys, math, struct
KN = "standalone__gqa_softmax__near_ridge_kernel"

class Cfg:
    sigma = (0, 2, 4, 6)
    beta = 0.80
    beta_small = 0.55
    ds_lat = 9
    mv_lat = 4
    store_x4 = False
    q_nt = "nt"
    st_pol = "nt"
    k_pol = ""
    v_pol = ""
    stamps = False
    code_pf = True
    plan = "K0 Q0 K1 V0 K2 C | Q1 V1 K3 | K4 | Q2 K5 | K6 | Q3 K7 | | Q4"
    k_up = 1
    force_slow = False
    nop_ds = True
    limit_exp = 32

vQ, vO, vKa, vKb, vD0, vD1, vChk = 1, 2, 3, 4, 5, 6, 7
vV = 8
vS = 16
vL = 32
vR = 48
vKw = 50
vT = 52
vJ = 60
vP = 64
vOa = 128
aQ, aQs, aOne, aK, aV = 0, 64, 80, 96, 160
sQ_, sK_, sV_, sO_, sC_ = 12, 16, 20, 24, 28
sTile = 32
sM0 = 40
sQo, sOo, sCnt, sScale, sWave = 42, 43, 44, 45, 3
sTmp = 46

def vr(b, n=1): return [f"v{b+i}" for i in range(n)]
def ar(b, n=1): return [f"a{b+i}" for i in range(n)]
def vt(b, n): return f"v[{b}:{b+n-1}]"
def at(b, n): return f"a[{b}:{b+n-1}]"

class Op:
    def __init__(s, key, text, kind, reads, writes, cost=None, earliest=None, dummy=False, anchor=None, maxdl=None):
        s.key, s.text, s.kind, s.reads, s.writes = key, text, kind, list(reads), list(writes)
        s.cost = {"mfma": 0, "trans": 8, "valu": 4, "ds": 4, "dsw": 20, "load": 8, "dma": 8, "store": 12, "salu": 0, "bar": 0}[kind] if cost is None else cost
        s.cnt = {"ds": "lgkm", "dsw": "lgkm", "load": "vm", "dma": "vm", "store": "vm"}.get(kind)
        s.earliest = earliest
        s.maxdl = maxdl
        s.dummy = dummy
        s.anchor = anchor
        s.preds = []; s.succs = []; s.win = None; s.pos = None; s.m = None
        s.prod = {}

def build(cfg, s0, s1, steady):
    sg = cfg.sigma
    NP = 4
    last = 32 + max(sg)
    def qk_on(s, u): return steady or (sg[u] <= s < sg[u] + 8 * NP)
    def pv_on(s, u): return steady or (sg[u] + 1 <= s < sg[u] + 8 * NP + 1)
    def order_qk(s, kb):
        us = [u for u in range(4) if qk_on(s, u)]
        if kb == 3:
            f = [u for u in us if (s - sg[u]) % 8 == 7]
            us = f + [u for u in us if u not in f]
        if kb == 0:
            f = [u for u in us if (s - sg[u]) % 8 == 0]
            us = [u for u in us if u not in f] + f
        return us
    prog = []
    A = prog.append
    chain = 0
    def qload(blk, dst, key, earliest=None, dummy=False, direct=False):
        for ds in range(4):
            A(Op(key + (ds,), f"buffer_load_dwordx4 {at(dst+4*ds,4)}, v{vQ}, s[{sQ_}:{sQ_+3}], s{sQo} offen offset:{ds*64} {cfg.q_nt}".rstrip(), "load",
                 [f"s{sQo}"], ar(dst + 4 * ds, 4), earliest=earliest, dummy=dummy))
        A(Op(key + ("inc",), f"s_add_u32 s{sQo}, s{sQo}, 4096", "salu", [f"s{sQo}"], [f"s{sQo}"], dummy=dummy))
    def vdma(sv, earliest=None):
        A(Op(("m0", sv), f"s_mov_b32 m0, s{sM0 + (sv & 1)}", "salu", [], ["m0"]))
        for i in range(4):
            A(Op(("dma", sv, i), f"buffer_load_dwordx4 v{vD0 + (i & 1)}, s[{sV_}:{sV_+3}], s{sTile + sv % 8} offen offset:{i*1024} {cfg.v_pol} lds".replace("  ", " "), "dma",
                 ["m0", f"Vfree{sv & 1}"], [f"Vd{sv & 1}_{i}"], earliest=earliest))
    kstage = {}
    def kregs(t):
        u = KST[t][0]; h = KST[t][1]
        if h == "P": return [vP + ds * 16 + u * 4 for ds in range(4)]
        return [vOa + (h * 4 + ds) * 16 + u * 4 for ds in range(4)]
    KST = [(1, 0), (1, 1), (2, 0), (2, 1), (3, 0), (3, 1), (3, "P"), (3, 0)]
    if cfg.k_up == 8: KST = [(0, 0), (0, 1), (1, 0), (1, 1), (2, 0), (2, 1), (3, 0), (3, 1)]
    def kload(t, earliest=None):
        for ds, r in enumerate(kregs(t)):
            A(Op(("kld", t, ds), f"buffer_load_dwordx4 {vt(r,4)}, v{vQ}, s[{sK_}:{sK_+3}], s{sTile + t} offen offset:{ds*64} {cfg.k_pol}".rstrip(), "load",
                 [], vr(r, 4), earliest=earliest))
    tmpc = [0]
    def kscale(t, earliest=None):
        for ds, r in enumerate(kregs(t)):
            for j in range(4):
                x = r + j; tm = vT + tmpc[0] % 8; tmpc[0] += 1
                k = ("ksc", t, ds, j)
                A(Op(k + (0,), f"v_lshlrev_b32 v{tm}, 16, v{x}", "valu", vr(x), vr(tm), earliest=earliest))
                A(Op(k + (1,), f"v_and_b32 v{x}, 0xffff0000, v{x}", "valu", vr(x), vr(x), earliest=earliest))
                A(Op(k + (2,), f"v_mul_f32 v{tm}, s{sScale}, v{tm}", "valu", vr(tm), vr(tm)))
                A(Op(k + (3,), f"v_mul_f32 v{x}, s{sScale}, v{x}", "valu", vr(x), vr(x)))
                A(Op(k + (4,), f"v_cvt_pk_bf16_f32 v{x}, v{tm}, v{x}", "valu", vr(tm) + vr(x), vr(x)))
            A(Op(("kw", t, ds), f"ds_write_b128 v{vKw + (t >> 2)}, {vt(r,4)} offset:{(t & 3) * 16384 + ds * 1024}", "dsw", vr(r, 4), [f"Kw{t}_{ds}"]))
    if not steady:
        H = (-1, 0)
        def issue(item, when):
            n0 = len(prog)
            if item[0] == "K": kload(int(item[1]), when)
            elif item[0] == "Q":
                u = int(item[1])
                if u < 4: qload(u, aQ + 16 * u, ("q0", u), when)
                else: qload(4, aQs, ("q", 8, 0), when)
            elif item[0] == "V": vdma(int(item[1]), when)
            elif item[0] == "C" and cfg.code_pf:
                for i in range(cfg.code_pf_n):
                    A(Op(("cpf", i), f"buffer_load_dword v{vJ}, v0, s[{sC_}:{sC_+3}], s{sTile + 2 * i} offen", "load", [], [f"junk{i}"], earliest=when))
            if when == H:
                for x in prog[n0:]: x.maxdl = H
        plan = [p.split() for p in cfg.plan.split("|")]
        for item in plan[0]: issue(item, H)
        for t in range(cfg.k_up): kscale(t, H)
        A(Op(("bar", -1), "s_barrier", "bar", [f"Kw{t}_{ds}" for t in range(cfg.k_up) for ds in range(4)], [f"Kok{t}" for t in range(cfg.k_up)], anchor=H))
        late_head = plan[1]
    for s in range(s0, s1):
        t = s % 8
        uq = [u for u in range(4) if qk_on(s, u)]
        up = order_qk(s - 1, 3) if (steady or s > 0) else []
        up = [u for u in up if pv_on(s, u)]
        qk = [(kb, u) for kb in range(4) for u in order_qk(s, kb)]
        pv = []
        fin = [u for u in up if (s - 1 - sg[u]) % 8 == 7]
        ones_order = fin + [u for u in up if u not in fin]
        for db in range(8):
            for u in up: pv.append(("pv", db, u))
        npv = len(pv)
        ins = {}
        for i, u in enumerate(ones_order):
            if u in fin: p = len(up)
            else: p = len(up) + (npv - len(up)) * i // max(1, len(ones_order))
            ins.setdefault(p, []).append(("one", 0, u))
        pv2 = []
        for i, c in enumerate(pv):
            pv2 += ins.get(i, []); pv2.append(c)
        pv = pv2
        seq = []
        if qk:
            j = 0
            lag = 1 if len(uq) <= 2 and pv else 0
            for i, c in enumerate(qk):
                seq.append(("qk",) + c)
                tgt = math.ceil(max(0, i + 1 - lag) * len(pv) / (len(qk) - lag))
                while j < tgt: seq.append(pv[j]); j += 1
        else:
            seq = pv
        nm = sum(4 if c[0] == "qk" else 2 for c in seq)
        beta = cfg.beta if len(uq) >= 3 else cfg.beta_small
        barpos = int(beta * nm)
        vdone = set(); kdone = set(); bar_done = False
        Pw = vP + 32 * (s & 1); Pr = vP + 32 * ((s - 1) & 1)
        slot = (s - 1) & 1
        def vreads(db):
            if db in vdone: return
            vdone.add(db)
            for ks in range(2):
                for h in range(2):
                    d = aV + db * 8 + ks * 4 + h * 2
                    A(Op(("vr", s, db, ks, h), f"ds_read_b64_tr_b16 {at(d,2)}, v{vV+db} offset:{slot*16384 + ks*8192 + h*4096}", "ds",
                         [f"Vok{slot}"], ar(d, 2) + [f"Vr{db}_{ks}_{h}"]))
        def barrier():
            rd = []; wr = []
            if up:
                for db in range(8): vreads(db)
                rd += [f"Vr{db}_{ks}_{h}" for db in range(8) for ks in range(2) for h in range(2)]
            has_v = steady or s < last
            if has_v:
                rd += [f"Vd{s & 1}_{i}" for i in range(4)]; wr.append(f"Vok{s & 1}")
            wr.append(f"Vfree{(s + 1) & 1}")
            if not steady and cfg.k_up <= s + 1 <= 7:
                kscale(s + 1, ((s - 1, "bar") if s >= 1 else (-1, 0)))
                rd += [f"Kw{s+1}_{ds}" for ds in range(4)]; wr.append(f"Kok{s+1}")
            A(Op(("bar", s), "s_barrier", "bar", rd, wr, anchor=(s, "bar")))
            if steady or (1 <= s and s + 1 < last): vdma(s + 1, None)
            if not steady and s + 2 < len(plan):
                for item in plan[s + 2]: issue(item, (s, "bar"))
        mcount = 0
        for c in seq:
            if not bar_done and mcount >= barpos:
                barrier(); bar_done = True
            if c[0] == "qk":
                _, kb, u = c
                if kb not in kdone:
                    kdone.add(kb)
                    for ds in range(4):
                        d = aK + kb * 16 + ds * 4
                        A(Op(("kr", s, kb, ds), f"ds_read_b128 {at(d,4)}, v{vKa + (t >> 2)} offset:{(t & 3) * 16384 + kb * 4096 + ds * 1024}", "ds",
                             [] if (steady or s > 7) else [f"Kok{t}"], ar(d, 4)))
                    if not steady and s == 0 and kb == 0:
                        for item in late_head: issue(item, H)
                if kb == 0 and (s - sg[u]) % 8 == 0 and (steady or s - sg[u] >= 8):
                    for i in range(16):
                        A(Op(("qc", s, u, i), f"v_accvgpr_mov_b32 a{aQ+16*u+i}, a{aQs+i}", "valu", ar(aQs + i), ar(aQ + 16 * u + i)))
                    un = (u + 1) % 4; sn = s + (sg[un] - sg[u]) % 8
                    qload(0, aQs, ("q", sn, un), dummy=(not steady and sn - sg[un] >= 8 * NP))
                S = vS + 4 * (chain % 4); chain += 1
                for ds in range(4):
                    kf = aK + kb * 16 + ds * 4; qf = aQ + u * 16 + ds * 4
                    A(Op(("qk", s, kb, u, ds), f"v_mfma_f32_16x16x32_bf16 {vt(S,4)}, {at(kf,4)}, {at(qf,4)}, {'0' if ds == 0 else vt(S,4)}", "mfma",
                         ar(kf, 4) + ar(qf, 4) + ([] if ds == 0 else vr(S, 4)), vr(S, 4)))
                for r in range(4):
                    A(Op(("ex", s, kb, u, r), f"v_exp_f32 v{S+r}, v{S+r}", "trans", vr(S + r), vr(S + r)))
                pd = Pw + (kb >> 1) * 16 + u * 4 + (kb & 1) * 2
                for r in range(2):
                    A(Op(("cv", s, kb, u, r), f"v_cvt_pk_bf16_f32 v{pd+r}, v{S+2*r}, v{S+2*r+1}", "valu", vr(S + 2 * r, 2), vr(pd + r)))
                mcount += 4
            elif c[0] == "pv":
                _, db, u = c
                vreads(db)
                first = (s - 1 - sg[u]) % 8 == 0
                o = vOa + db * 16 + u * 4
                for ks in range(2):
                    vf = aV + db * 8 + ks * 4; pf = Pr + ks * 16 + u * 4
                    z = first and ks == 0
                    A(Op(("pv", s, db, u, ks), f"v_mfma_f32_16x16x32_bf16 {vt(o,4)}, {at(vf,4)}, {vt(pf,4)}, {'0' if z else vt(o,4)}", "mfma",
                         ar(vf, 4) + vr(pf, 4) + ([] if z else vr(o, 4)), vr(o, 4)))
                mcount += 2
            else:
                _, _, u = c
                first = (s - 1 - sg[u]) % 8 == 0
                l = vL + 4 * u
                for ks in range(2):
                    pf = Pr + ks * 16 + u * 4; z = first and ks == 0
                    A(Op(("on", s, u, ks), f"v_mfma_f32_16x16x32_bf16 {vt(l,4)}, {at(aOne,4)}, {vt(pf,4)}, {'0' if z else vt(l,4)}", "mfma",
                         vr(pf, 4) + ([] if z else vr(l, 4)), vr(l, 4)))
                mcount += 2
        if not bar_done: barrier()
        if not steady and s == 31:
            for i in range(16):
                A(Op(("qc", 32, 0, i), f"v_accvgpr_mov_b32 a{aQ+i}, a{aQs+i}", "valu", ar(aQs + i), ar(aQ + i), dummy=True))
            qload(0, aQs, ("q", 32 + sg[1], 1), dummy=True)
        for u in sorted(fin):
            l = vL + 4 * u; R = vR + (u & 1)
            A(Op(("rc", s, u), f"v_rcp_f32 v{R}, v{l}", "trans", vr(l), vr(R)))
            A(Op(("ck", s, u), f"v_max3_u32 v{vChk}, v{vChk}, v{l}, v{R}", "valu", vr(vChk) + vr(l) + vr(R), vr(vChk)))
            for db in range(8):
                o = vOa + db * 16 + u * 4
                for r in range(4):
                    A(Op(("mu", s, u, db, r), f"v_mul_f32 v{o+r}, v{o+r}, v{R}", "valu", vr(o + r) + vr(R), vr(o + r)))
                if not cfg.store_x4:
                    for r in range(2):
                        A(Op(("oc", s, u, db, r), f"v_cvt_pk_bf16_f32 v{o+r}, v{o+2*r}, v{o+2*r+1}", "valu", vr(o + 2 * r, 2), vr(o + r)))
                    A(Op(("st", s, u, db), f"buffer_store_dwordx2 {vt(o,2)}, v{vO}, s[{sO_}:{sO_+3}], s{sOo} offen offset:{db*32} {cfg.st_pol}".rstrip(), "store",
                         vr(o, 2) + [f"s{sOo}"], []))
                else:
                    if db & 1:
                        e = o - 16
                        A(Op(("oc", s, u, db, 3), f"v_cvt_pk_bf16_f32 v{o+3}, v{o+2}, v{o+3}", "valu", vr(o + 2, 2), vr(o + 3)))
                        A(Op(("oc", s, u, db, 2), f"v_cvt_pk_bf16_f32 v{o+2}, v{o}, v{o+1}", "valu", vr(o, 2), vr(o + 2)))
                        A(Op(("oc", s, u, db, 0), f"v_cvt_pk_bf16_f32 v{o}, v{e}, v{e+1}", "valu", vr(e, 2), vr(o)))
                        A(Op(("oc", s, u, db, 1), f"v_cvt_pk_bf16_f32 v{o+1}, v{e+2}, v{e+3}", "valu", vr(e + 2, 2), vr(o + 1)))
                        for r in range(2):
                            A(Op(("sw", s, u, db, r), f"v_permlane16_swap_b32 v{o+r}, v{o+2+r}", "valu", vr(o + r) + vr(o + 2 + r), vr(o + r) + vr(o + 2 + r)))
                        A(Op(("st", s, u, db), f"buffer_store_dwordx4 {vt(o,4)}, v{vO}, s[{sO_}:{sO_+3}], s{sOo} offen offset:{(db-1)*32} {cfg.st_pol}".rstrip(), "store",
                             vr(o, 4) + [f"s{sOo}"], [], cost=20))
            if not steady and 32 <= s < last:
                for x in prog:
                    if x.key[:3] == ("st", s, u): x.maxdl = (s + 1, "bar")
            A(Op(("oinc", s, u), f"s_add_u32 s{sOo}, s{sOo}, 4096", "salu", [f"s{sOo}"], [f"s{sOo}"]))
    return prog

def link(cfg, prog):
    lastw = {}; readers = {}
    m = 0
    for x in prog:
        if x.kind == "mfma": x.m = m; m += 1
    for x in prog:
        e = {}
        def add(p, typ):
            if p is x: return
            soft = hard = 0
            if p.kind == "mfma":
                if x.kind == "mfma": return
                if typ in ("raw", "waw"): soft = cfg.mv_lat
                elif x.kind in ("valu", "trans"): soft = 1
            elif x.kind == "mfma":
                hard = soft = 1
                if typ == "raw":
                    soft = cfg.ds_lat if p.kind == "ds" else (1 if p.kind == "load" else 2)
                elif p.kind == "store": soft = 2
            elif x.kind == "bar":
                hard = 1; soft = {"ds": cfg.ds_lat, "dsw": cfg.ds_lat, "dma": 2}.get(p.kind, 1)
            elif p.kind == "bar":
                soft = hard = 0
            elif p.kind == "salu":
                soft = 2; hard = 1 if x.kind != "salu" else 1
            elif x.kind == "salu":
                soft = hard = 1
            elif typ == "raw":
                if p.kind == "trans": soft = 1
                elif p.kind == "valu" and x.kind in ("store", "dsw", "ds"): soft = 1
                elif p.kind == "valu" and "permlane" in x.text: soft = 2
            else:
                if p.kind in ("valu", "trans") and x.kind in ("load", "ds", "dma"): soft = 1
                if p.kind in ("store", "dsw"): soft = 1
            o = e.get(id(p))
            e[id(p)] = (p, max(soft, o[1]) if o else soft, max(hard, o[2]) if o else hard)
        for r in x.reads:
            if r in lastw: add(lastw[r], "raw"); x.prod[r] = lastw[r].key
        for r in x.writes:
            if r in lastw: add(lastw[r], "waw")
            for p in readers.get(r, []): add(p, "war")
        for r in x.reads: readers.setdefault(r, []).append(x)
        for r in x.writes: lastw[r] = x; readers[r] = []
        x.preds = list(e.values())
        for p, so, ha in x.preds: p.succs.append((x, so, ha))
    return m

def step_of(x): return x.key[1]

def schedule(cfg, prog, nm, pins=None, lo=None, hi=None):
    pins = pins or {}; lo = lo or {}; hi = hi or {}
    start = {}; barw = {}
    cur = -1
    for x in prog:
        if x.kind == "mfma":
            cur = x.m; start.setdefault(x.key[1], x.m)
        elif x.kind == "bar": barw[x.key[1]] = cur
    def W(a):
        if a[0] == -1: return -1
        if a[1] == "bar": return barw[a[0]]
        return start[a[0]] - 1
    fill = [x for x in prog if x.kind != "mfma"]
    for x in prog:
        if x.kind == "mfma": x.win = x.m
    for i, x in enumerate(prog): x.idx = i
    for x in reversed(fill):
        if x.key in pins: x.dls = x.dlh = pins[x.key][0]; continue
        if x.kind == "bar": x.dls = x.dlh = W(x.anchor); continue
        ds = dh = nm - 1
        for y, so, ha in x.succs:
            if y.dummy and y.key not in pins: continue
            if y.kind == "mfma": ds = min(ds, y.m - so); dh = min(dh, y.m - ha)
            else: ds = min(ds, y.dls - so); dh = min(dh, y.dlh - ha)
        if x.key in hi: ds = min(ds, hi[x.key]); dh = min(dh, hi[x.key])
        if x.maxdl: ds = min(ds, W(x.maxdl)); dh = min(dh, W(x.maxdl))
        x.dls, x.dlh = ds, max(dh, -1)
    wins = {w: [] for w in range(-1, nm)}
    for x in fill:
        x.win = None
        x.lo = max(W(x.earliest) if x.earliest else -1, lo.get(x.key, -1))
        if x.kind == "bar": x.lo = x.dlh
    pinned_by_win = {}
    for x in fill:
        if x.key in pins: pinned_by_win.setdefault(pins[x.key][0], []).append(x)
    todo = [x for x in fill if x.key not in pins and not x.dummy]
    todo.sort(key=lambda x: x.idx)
    active = []; nxt = 0
    def ready(x, w, soft):
        if w < x.lo: return False
        for p, so, ha in x.preds:
            if p.dummy and p.key not in pins: continue
            if p.win is None: return False
            lat = ha
            if soft and not (p.kind in ("load", "dma", "ds", "dsw")): lat = so
            if p.kind in ("store", "dsw") and soft: lat = max(lat, min(so, 1))
            if w == -1 or w == nm - 1: lat = 0
            if w < p.win + lat: return False
        return True
    for w in range(-1, nm):
        if w in pinned_by_win:
            for x in sorted(pinned_by_win[w], key=lambda x: pins[x.key][1]):
                x.win = w; wins[w].append(x)
        if pins and cfg._loop[0] <= w < cfg._loop[1]: continue
        cap = 8 if w >= 0 else 0
        used = 0
        cur = wins[w]
        def place(x):
            nonlocal used
            x.win = w; cur.append(x); used += x.cost; todo.remove(x)
        while True:
            cand = [x for x in todo[:700] if ready(x, w, True) or (w >= x.dlh and ready(x, w, False))]
            if not cand: break
            z = [x for x in cand if x.kind in ("salu", "bar")]
            if z:
                place(z[0]); continue
            forced = [x for x in cand if x.dls <= w]
            if w == -1 or w == nm - 1:
                if not forced: break
                place(min(forced, key=lambda x: x.idx)); continue
            hasvalu_dep = lambda x: x.kind in ("ds", "dsw", "load", "dma", "store") and any(p.win == w and p.kind in ("valu", "trans") for p, _, _ in x.preds)
            hard_forced = forced
            if hard_forced:
                place(min(hard_forced, key=lambda x: (x.dls, x.idx))); continue
            if used >= cap: break
            cand.sort(key=lambda x: (-99999 if x.kind in ("load", "dma") else x.dls, x.idx))
            if used == 0:
                top = cand[0]
                if top.cost >= 8: place(top); continue
                small = [x for x in cand if x.cost == 4]
                big = [x for x in cand if x.cost >= 8]
                partner = len(small) >= 2 or any(y.cost == 4 and so == 0 and y.win is None and y.kind == "valu" and all(p.win is not None or p is top for p, _, _ in y.preds) for y, so, ha in top.succs)
                if partner or not big: place(top)
                else: place(big[0])
                continue
            small = [x for x in cand if x.cost == 4]
            if not small: break
            place(small[0])
        if w not in (-1, nm - 1):
            order = {"bar": 0, "salu": 0, "dma": 1, "load": 1, "store": 1, "dsw": 1, "ds": 1, "valu": 2, "trans": 2}
            lvl = {}
            for x in cur:
                l = order[x.kind]
                for p, _, _ in x.preds:
                    if p.win == w and p.kind != "mfma": l = max(l, lvl[id(p)])
                lvl[id(x)] = l
            cur.sort(key=lambda x: lvl[id(x)])
    assert not todo, [x.key for x in todo[:10]]
    for w, c in wins.items():
        for i, x in enumerate(c): x.pos = i
    return wins, start

def norm(key, d):
    return (key[0], key[1] + d) + tuple(key[2:])

class Ins:
    def __init__(s, text, op=None, kind=None):
        s.text, s.op, s.kind = text, op, kind or (op.kind if op else "salu")
        s.vm = None; s.lg = None

def generate(cfg):
    last = 32 + max(cfg.sigma)
    cfg.q_ahead = getattr(cfg, "q_ahead", 2)
    cfg.code_pf_n = getattr(cfg, "code_pf_n", 2)
    sp = build(cfg, 0, 56, True); nms = link(cfg, sp)
    swins, sstart = schedule(cfg, sp, nms)
    per = sstart[8] - sstart[0]
    ok = None
    for b in (16, 24, 32):
        same = all([x.text for x in swins[sstart[b] + i]] == [x.text for x in swins[sstart[b + 8] + i]] and
                   [norm(x.key, 8) for x in swins[sstart[b] + i]] == [x.key for x in swins[sstart[b + 8] + i]] for i in range(per))
        if same: ok = b; break
    assert ok is not None, "steady state not periodic"
    rp = build(cfg, 0, last + 1, False); nm = link(cfg, rp)
    rstart = {}
    for x in rp:
        if x.kind == "mfma": rstart.setdefault(x.key[1], x.m)
    L0, L1 = rstart[8], rstart[32]
    assert L1 - L0 == 3 * per
    cfg._loop = (L0, L1)
    pins = {}
    for it in range(3):
        for i in range(per):
            for x in swins[sstart[ok] + i]:
                pins[norm(x.key, 8 + 8 * it - ok)] = (L0 + it * per + i, x.pos)
    keys = {x.key: x for x in rp}
    assert len(keys) == len(rp)
    missing = [k for k in pins if k not in keys]
    assert not missing, missing[:10]
    lo = {}; hi = {}
    mid = (keys[("qk", 20, 0, 0, 0)])
    midx = rp.index(mid)
    for i, x in enumerate(rp):
        if x.kind == "mfma" or x.key in pins: continue
        if i < midx: hi[x.key] = L0 - 1
        else: lo[x.key] = L1
    wins, start = schedule(cfg, rp, nm, pins, lo, hi)
    mf = [x for x in rp if x.kind == "mfma"]
    def stat(w):
        return L0 + (w - L0) % per if L0 <= w < L1 else w
    free = {}
    pre = {}
    for w in range(-1, nm):
        if stat(w) == w:
            free[w] = []
            if w not in (-1, nm - 1):
                for x in wins[w]:
                    if x.kind == "bar": free[w].append(Ins(x.text, x))
    def body(w):
        if w in (-1, nm - 1): return wins[w]
        return [x for x in wins[w] if x.kind not in ("salu", "bar")]
    def walk(fix):
        q = {"vm": [], "lgkm": []}
        pend = {}
        hist = {}
        changed = False
        def dowait(ins):
            for c, n in (("vm", ins.vm), ("lgkm", ins.lg)):
                if n is None: continue
                while len(q[c]) > n:
                    d = q[c].pop(0)
                    for r in d.writes:
                        if pend.get(r) is d: del pend[r]
        def need(x):
            n = {}
            for r in x.reads + x.writes:
                p = pend.get(r)
                if p is not None and not (r in x.writes and r not in x.reads and p.cnt == x.cnt):
                    n[p.cnt] = p if (p.cnt not in n or q[p.cnt].index(p) > q[p.cnt].index(n[p.cnt])) else n[p.cnt]
            return n
        def issue(x):
            if x.cnt:
                q[x.cnt].append(x)
                for r in x.writes: pend[r] = x
        def setw(ins, c, n):
            n = min(n, 62 if c == "vm" else 14)
            if c == "vm": ins.vm = n if ins.vm is None else min(ins.vm, n)
            else: ins.lg = n if ins.lg is None else min(ins.lg, n)
        def handle(x, w, pos, cands):
            nonlocal changed
            n = need(x)
            if not n: return
            assert fix, ("unwaited", x.key, {c: p.key for c, p in n.items()})
            changed = True
            for c, p in n.items():
                done = False
                for cw in cands:
                    if cw < 0 or cw == nm - 1 or cw not in hist: continue
                    snap = hist[cw][c]
                    if p not in snap: continue
                    fl = free[stat(cw)]
                    wi = [i for i in fl if i.kind == "wait"]
                    if not wi and fl and cw != cands[-1]: continue
                    if not wi:
                        wi = [Ins("", None, "wait")]; fl.insert(0, wi[0])
                    setw(wi[0], c, len(snap) - 1 - snap.index(p)); done = True; break
                if not done:
                    ins = pre.setdefault((stat(w), pos), Ins("", None, "wait"))
                    setw(ins, c, len(q[c]) - 1 - q[c].index(p))
                while p in q[c]:
                    d = q[c].pop(0)
                    for r in d.writes:
                        if pend.get(r) is d: del pend[r]
        for w in range(-1, nm):
            if w >= 0:
                if (stat(w), "m") in pre: dowait(pre[(stat(w), "m")])
                handle(mf[w], w, "m", [w - 1, w - 2])
            hist[w] = {c: list(v) for c, v in q.items()}
            hist.pop(w - 4, None)
            for ins in list(free[stat(w)]):
                if ins.kind == "wait": dowait(ins)
                elif ins.kind == "bar":
                    x = [y for y in wins[w] if y.kind == "bar"][0]
                    handle(x, w, "b", [w - 1, w - 2, w])
            for pos, x in enumerate(body(w)):
                if (stat(w), pos) in pre: dowait(pre[(stat(w), pos)])
                handle(x, w, pos, [w, w - 1])
                issue(x)
        return changed
    for _ in range(10):
        if not walk(True): break
    walk(False)
    for w in range(0, nm - 1):
        if stat(w) != w: continue
        for x in wins[w]:
            if x.kind != "salu": continue
            hiw = min([y.win - (1 if "m0" in x.writes or y.kind == "salu" else 0) for y, _, _ in x.succs if y.win is not None] + [w + 40, nm - 2])
            if L0 <= w < L0 + per: hiw = min(hiw, L0 + per - 3)
            elif w < L0: hiw = min(hiw, L0 - 1)
            hiw = max(hiw, w)
            c = [k for k in range(w, hiw + 1) if not free[k]]
            c2 = [k for k in c if body(k) and body(k)[0].kind in ("ds", "dma", "load", "store", "dsw")]
            k = c2[0] if c2 else (c[0] if c else w)
            free[k].append(Ins(x.text, x)); x.fw = k
    k = [k for k in range(L0 + per - 2, L0 + per) if not free[k]]
    k = k[0] if k else L0 + per - 1
    assert not any(i.kind == "salu" for kk in range(k, L0 + per) for i in free[kk])
    free[k].append(Ins(f"s_sub_u32 s{sCnt}, s{sCnt}, 1"))
    if cfg.nop_ds:
        for w in range(0, nm - 1):
            if stat(w) == w and not free[w] and body(w) and body(w)[0].kind in ("ds", "dma", "load", "store", "dsw"):
                free[w].append(Ins("s_nop 0", None, "nop"))
    def wtext(i):
        t = "s_waitcnt"
        if i.vm is not None: t += f" vmcnt({i.vm})"
        if i.lg is not None: t += f" lgkmcnt({i.lg})"
        return t
    code = {}
    for w in range(-1, nm):
        if stat(w) != w: continue
        l = []
        if w >= 0:
            if (w, "m") in pre: l.append(pre[(w, "m")])
            l.append(Ins(mf[w].text, mf[w]))
        l += free[w]
        for pos, x in enumerate(body(w)):
            if (w, pos) in pre: l.append(pre[(w, pos)])
            l.append(Ins(x.text, x))
        for i in l:
            if i.kind == "wait": i.text = wtext(i)
        code[w] = l
    def hazards(fix):
        seq = []
        changed = False
        for w in range(-1, nm):
            l = code[stat(w)]
            j = 0
            while j < len(l):
                i = l[j]; x = i.op
                needn = 0
                if x is not None and x.kind not in ("salu", "bar"):
                    dist = 0
                    for p, st in reversed(seq):
                        y = p.op
                        if y is not None:
                            req = 0
                            raw = set(y.writes) & set(x.reads); waw = set(y.writes) & set(x.writes); war = set(y.reads) & set(x.writes)
                            if y.kind == "mfma":
                                if x.kind == "mfma":
                                    nab = 8 if x.key[0] != "on" else 4
                                    if set(y.writes) & set(x.reads[:nab]): req = 8
                                elif raw or waw: req = 8
                                elif war and x.kind in ("valu", "trans") and set(y.writes) & set(x.writes): req = 3
                            elif y.kind in ("valu", "trans"):
                                if raw and x.kind == "mfma": req = 2
                                if raw and "permlane" in x.text: req = 2
                                if raw and y.kind == "trans" and x.kind != "trans": req = max(req, 1)
                            elif y.kind in ("store", "dsw") and war and y.cost == 20: req = 2
                            elif y.kind == "salu" and "m0" in y.writes and x.kind == "dma": req = 1
                            needn = max(needn, req - dist)
                        dist += st
                        if dist >= 8: break
                if needn > 0:
                    assert fix, ("hazard", x.key)
                    l.insert(j, Ins(f"s_nop {needn-1}", None, "nopx")); changed = True
                    continue
                st = int(i.text.split()[1]) + 1 if i.text.startswith("s_nop") else 1
                seq.append((i, st)); seq = seq[-10:]
                j += 1
        return changed
    while hazards(True): pass
    lastw = {}; seen = set()
    for w in range(-1, nm):
        it = (w - L0) // per if L0 <= w < L1 else 0
        for i in code[stat(w)]:
            if i.op is None: continue
            x = keys[norm(i.op.key, 8 * it)]
            assert x.text == i.text, (x.text, i.text)
            assert x.key not in seen; seen.add(x.key)
            if not x.dummy:
                for r in x.reads:
                    assert lastw.get(r) == x.prod.get(r), ("dataflow", x.key, r, lastw.get(r), x.prod.get(r))
            for r in x.writes: lastw[r] = x.key
    assert all(x.key in seen or x.dummy for x in rp), [x.key for x in rp if x.key not in seen and not x.dummy][:5]
    def wcost(l, head=False):
        t = 0; after_m = False; base = 0; lastvalu = -99
        for i in l:
            if i.kind == "mfma": base = t; t += 4; port = base + 8; continue
            if i.kind in ("salu", "wait", "bar", "nop"): t += 4; continue
            if i.kind == "nopx": t += 4 * (int(i.text.split()[1]) + 1); continue
            if not head: t = max(t, base + 8)
            if i.kind in ("valu", "trans"): t += i.op.cost; lastvalu = t
            else:
                t = max(t, lastvalu + 8) + i.op.cost
        return t if head else max(t, base + 16)
    est = {}
    for s in range(0, last + 1):
        e = rstart.get(s + 1, nm)
        est[s] = (sum(wcost(code[stat(w)]) for w in range(rstart[s], e)), (e - rstart[s]) * 16)
    cfg.est = est; cfg.est_head = wcost(code[-1], True)
    out = []
    E = out.append
    stamp_at = getattr(cfg, "stamp_steps", [])
    inv = {v: k for k, v in rstart.items()}
    for w in range(-1, nm):
        if stat(w) != w: continue
        if w == L0: E("L_loop:")
        if w in inv:
            E(f"; ---- step {inv[w]} ----")
            if cfg.stamps and inv[w] in stamp_at:
                j = stamp_at.index(inv[w]); E(f"    s_memrealtime s[{64+2*j}:{65+2*j}]\n    s_waitcnt lgkmcnt(0)")
        for i in code[w]: E("    " + i.text)
        if w == L0 + per - 1: E("    s_cbranch_scc0 L_loop")
    return "\n".join(out)

def fbits(x): return struct.unpack("<I", struct.pack("<f", x))[0]

def head(cfg):
    c = math.log2(math.e) / math.sqrt(128.0)
    h = f"""    s_cmp_ge_u32 s2, 256
    s_cbranch_scc1 L_end
    s_load_dwordx4 s[4:7], s[0:1], 0          ; q, k
    s_load_dwordx4 s[8:11], s[0:1], 16        ; v, out
"""
    if cfg.stamps: h += "    s_load_dwordx2 s[56:57], s[0:1], 40\n    s_memrealtime s[60:61]\n"
    h += f"""    v_lshrrev_b32 v{vT}, 6, v0
    v_and_b32 v{vT+1}, 15, v0                 ; l & 15
    v_readfirstlane_b32 s{sWave}, v{vT}
    v_bfe_u32 v{vT+2}, v0, 4, 2               ; g = (l >> 4) & 3
    v_lshlrev_b32 v{vT+3}, 8, v{vT+1}
    v_lshl_add_u32 v{vQ}, v{vT+2}, 4, v{vT+3} ; row*256 + g*16
    s_and_b32 s{sTmp}, s2, 7
    s_lshr_b32 s{sTmp+1}, s2, 5
    s_lshl_b32 s{sTmp}, s{sTmp}, 3
    s_add_u32 s{sTmp}, s{sTmp}, s{sTmp+1}
    s_bfe_u32 s{sTmp+1}, s2, 0x20003
    s_lshl_b32 s{sTmp+2}, s{sTmp}, 20
    s_lshl_b32 s{sTmp+1}, s{sTmp+1}, 18
    s_add_u32 s{sTmp+2}, s{sTmp+2}, s{sTmp+1}
    s_lshl_b32 s{sTmp+1}, s{sWave}, 16
    s_add_u32 s{sTmp+2}, s{sTmp+2}, s{sTmp+1}
    s_lshl_b32 s{sTmp}, s{sTmp}, 17
    s_lshl_b32 s{sTmp+1}, s{sWave}, 12        ; wave*4096
    s_add_u32 s{sTmp+3}, s{sTmp}, s{sTmp+1}
    s_mov_b32 s{sQ_+2}, 0x10000
    s_mov_b32 s{sQ_+3}, 0x20000
    s_sub_u32 s{sK_+2}, 0x20000, s{sTmp+1}
    s_mov_b32 s{sK_+3}, 0x20000
    s_mov_b32 s{sTile}, 0
    s_mov_b32 s{sQo}, 0
    s_mov_b32 s{sV_+2}, 0x20000
    s_mov_b32 s{sV_+3}, 0x20000
    s_mov_b32 s{sO_+2}, 0x10000
    s_mov_b32 s{sO_+3}, 0x20000
"""
    for t in range(1, 8): h += f"    s_mov_b32 s{sTile+t}, {t*16384}\n"
    h += f"""    s_add_u32 s{sM0}, s{sTmp+1}, 0x20000
    s_add_u32 s{sM0+1}, s{sTmp+1}, 0x24000
    s_mov_b32 s{sOo}, 0
    s_mov_b32 s{sCnt}, 2
    s_mov_b32 s{sScale}, {fbits(c):#x}
    v_lshrrev_b32 v{vT+4}, 1, v{vT+1}
    v_xor_b32 v{vT+4}, v{vT+4}, v{vT+2}
    v_lshlrev_b32 v{vT+4}, 5, v{vT+4}
    v_and_b32 v{vT+5}, 1, v0
    v_lshl_add_u32 v{vT+4}, v{vT+5}, 4, v{vT+4}
    v_lshl_add_u32 v{vT+4}, v{vT+2}, 8, v{vT+4}
    v_add_u32 v{vD0}, s{sTmp+1}, v{vT+4}
    v_xor_b32 v{vD1}, 0x80, v{vD0}
    v_and_b32 v{vT+4}, 63, v0
    v_lshlrev_b32 v{vKa}, 4, v{vT+4}
    v_add_u32 v{vKb}, 0x10000, v{vKa}
    v_add_u32 v{vKw}, s{sTmp+1}, v{vKa}
    v_add_u32 v{vKw+1}, s{sTmp+1}, v{vKb}
    ; V transposed-read addresses: lane = 16g+4r+c
    v_lshrrev_b32 v{vT+5}, 2, v{vT+4}         ; 4g+r
    v_and_b32 v{vT+6}, 7, v{vT+5}
    v_lshlrev_b32 v{vT+6}, 5, v{vT+6}
    v_lshl_add_u32 v{vT+6}, v{vT+5}, 8, v{vT+6}
    v_and_b32 v{vT+7}, 3, v0
    v_lshl_add_u32 v{vT+6}, v{vT+7}, 3, v{vT+6}
    v_add_u32 v{vV}, 0x20000, v{vT+6}
"""
    for db in range(1, 8): h += f"    v_xor_b32 v{vV+db}, {db*32}, v{vV}\n"
    if cfg.store_x4:
        h += f"""    v_and_b32 v{vT+5}, 1, v{vT+2}
    v_lshl_add_u32 v{vO}, v{vT+5}, 5, v{vT+3}
    v_lshrrev_b32 v{vT+5}, 1, v{vT+2}
    v_lshl_add_u32 v{vO}, v{vT+5}, 4, v{vO}
"""
    else:
        h += f"    v_lshl_add_u32 v{vO}, v{vT+2}, 3, v{vT+3}\n"
    h += f"""    v_cmp_eq_u32 vcc, 0, v{vT+7}
    v_mov_b32 v{vT+5}, 0x3f803f80
    v_mov_b32 v{vChk}, {'-1' if cfg.force_slow else '0'}
    v_cndmask_b32 v{vT+5}, 0, v{vT+5}, vcc
    v_lshlrev_b32 v0, 7, v0
    v_accvgpr_write_b32 a{aOne}, v{vT+5}
    v_accvgpr_write_b32 a{aOne+1}, v{vT+5}
    v_accvgpr_write_b32 a{aOne+2}, v{vT+5}
    v_accvgpr_write_b32 a{aOne+3}, v{vT+5}
    s_getpc_b64 s[{sC_}:{sC_+1}]
L_pc:
    s_mov_b32 s{sC_+2}, L_slow - L_pc
    s_mov_b32 s{sC_+3}, 0x20000
    s_waitcnt lgkmcnt(0)
    s_add_u32 s{sK_}, s6, s{sTmp+3}
    s_addc_u32 s{sK_+1}, s7, 0
    s_add_u32 s{sQ_}, s4, s{sTmp+2}
    s_addc_u32 s{sQ_+1}, s5, 0
    s_add_u32 s{sV_}, s8, s{sTmp}
    s_addc_u32 s{sV_+1}, s9, 0
    s_add_u32 s{sO_}, s10, s{sTmp+2}
    s_addc_u32 s{sO_+1}, s11, 0
"""
    if cfg.stamps: h += "    s_memrealtime s[62:63]\n    s_waitcnt lgkmcnt(0)\n"
    return h

def tail(cfg):
    lim = (127 + cfg.limit_exp) << 23
    t = ""
    if cfg.stamps:
        t += """    s_memrealtime s[72:73]
    s_waitcnt vmcnt(0)
    s_memrealtime s[74:75]
    s_mov_b32 s58, 0x10000000
    s_mov_b32 s59, 0x20000
    s_lshl_b32 s46, s2, 2
    s_add_u32 s46, s46, s3
    s_lshl_b32 s46, s46, 6
    s_waitcnt lgkmcnt(0)
"""
        for i in range(16): t += f"    v_mov_b32 v{64+i}, s{60+i}\n"
        t += "    v_mov_b32 v60, 0\n    s_mov_b64 exec, 1\n"
        for i in range(4): t += f"    buffer_store_dwordx4 v[{64+4*i}:{67+4*i}], v60, s[56:59], s46 offen offset:{16*i}\n"
        t += "    s_mov_b64 exec, -1\n"
    t += f"""    v_cmp_lt_u32 vcc, {lim:#x}, v{vChk}
    s_nop 4
    s_cbranch_vccnz L_slow
L_end:
    s_endpgm
"""
    S0, S1, M, NM, T = 16, 20, 24, 28, 25
    q = lambda ds: at(aQ + 4 * ds, 4)
    k = lambda j, ds: at(aK + j * 16 + 4 * ds, 4)
    t += f"""; Fallback: a row sum left [2^-{cfg.limit_exp}, 2^{cfg.limit_exp}] (or is not finite), so exp without an offset was not safe.
; This wave recomputes its 256 rows subtracting the true row maximum.  K is still in LDS; V goes through a private 8 KiB.
L_slow:
    s_waitcnt vmcnt(0) lgkmcnt(0)
    s_mov_b32 s{sQo}, 0
    s_lshl_b32 s{sTmp}, s{sWave}, 12
    s_lshl_b32 s{sTmp+1}, s{sWave}, 13
    s_add_u32 s{sTmp+2}, s{sTmp+1}, 0x20000
    s_add_u32 s{sTmp+3}, s{sTmp+2}, 4096
    v_subrev_u32 v{vD0}, s{sTmp}, v{vD0}
    v_subrev_u32 v{vD1}, s{sTmp}, v{vD1}
"""
    for db in range(8): t += f"    v_add_u32 v{vV+db}, s{sTmp+1}, v{vV+db}\n"
    t += "L_sblk:\n"
    for ds in range(4): t += f"    buffer_load_dwordx4 {q(ds)}, v{vQ}, s[{sQ_}:{sQ_+3}], s{sQo} offen offset:{ds*64}\n"
    t += f"""    v_mov_b32 v{M}, 0xff800000
    v_mov_b32 v{vKb}, v{vKa}
    s_mov_b32 s{sCnt}, 32
    s_waitcnt vmcnt(0)
L_smax:
"""
    for ds in range(4): t += f"    ds_read_b128 {k(0,ds)}, v{vKb} offset:{ds*1024}\n"
    t += "    s_waitcnt lgkmcnt(0)\n"
    for ds in range(4): t += f"    v_mfma_f32_16x16x32_bf16 {vt(S0,4)}, {k(0,ds)}, {q(ds)}, {'0' if ds == 0 else vt(S0,4)}\n"
    t += f"""    s_nop 7
    v_max3_f32 v{M}, v{M}, v{S0}, v{S0+1}
    v_max3_f32 v{M}, v{M}, v{S0+2}, v{S0+3}
    v_add_u32 v{vKb}, 4096, v{vKb}
    s_sub_u32 s{sCnt}, s{sCnt}, 1
    s_cmp_lg_u32 s{sCnt}, 0
    s_cbranch_scc1 L_smax
    v_mov_b32 v{T}, v{M}
    s_nop 1
    v_permlane16_swap_b32 v{M}, v{T}
    s_nop 1
    v_max_f32 v{M}, v{M}, v{T}
    v_mov_b32 v{T}, v{M}
    s_nop 1
    v_permlane32_swap_b32 v{M}, v{T}
    s_nop 1
    v_max_f32 v{M}, v{M}, v{T}
"""
    for r in range(4): t += f"    v_mov_b32 v{vL+r}, 0\n"
    for r in range(32): t += f"    v_mov_b32 v{vOa+r}, 0\n"
    t += f"""    v_mov_b32 v{vKb}, v{vKa}
    s_mov_b32 s{sCnt}, 0
L_skey:
    s_mov_b32 m0, s{sTmp+2}
    s_add_u32 s{sTmp+4}, s{sCnt}, 4096
"""
    for i in range(4): t += f"    buffer_load_dwordx4 v{vD0+(i&1)}, s[{sV_}:{sV_+3}], s{sCnt} offen offset:{i*1024} lds\n"
    t += f"    s_mov_b32 m0, s{sTmp+3}\n    s_nop 0\n"
    for i in range(4): t += f"    buffer_load_dwordx4 v{vD0+(i&1)}, s[{sV_}:{sV_+3}], s{sTmp+4} offen offset:{i*1024} lds\n"
    for j in range(2):
        for ds in range(4): t += f"    ds_read_b128 {k(j,ds)}, v{vKb} offset:{j*4096+ds*1024}\n"
    t += "    s_waitcnt vmcnt(0) lgkmcnt(0)\n"
    for db in range(8):
        for h in range(2): t += f"    ds_read_b64_tr_b16 {at(aV+db*4+2*h,2)}, v{vV+db} offset:{h*4096}\n"
    for j, S in enumerate((S0, S1)):
        for ds in range(4): t += f"    v_mfma_f32_16x16x32_bf16 {vt(S,4)}, {k(j,ds)}, {q(ds)}, {'0' if ds == 0 else vt(S,4)}\n"
    t += "    s_nop 7\n"
    for r in range(8): t += f"    v_sub_f32 v{S0+r}, v{S0+r}, v{M}\n"
    for r in range(8): t += f"    v_exp_f32 v{S0+r}, v{S0+r}\n"
    t += "    s_nop 0\n"
    for r in range(4): t += f"    v_cvt_pk_bf16_f32 v{vP+r}, v{S0+2*r}, v{S0+2*r+1}\n"
    t += f"    v_add_u32 v{vKb}, 8192, v{vKb}\n    s_waitcnt lgkmcnt(0)\n    s_nop 0\n"
    t += f"    v_mfma_f32_16x16x32_bf16 {vt(vL,4)}, {at(aOne,4)}, {vt(vP,4)}, {vt(vL,4)}\n"
    for db in range(8): t += f"    v_mfma_f32_16x16x32_bf16 {vt(vOa+4*db,4)}, {at(aV+db*4,4)}, {vt(vP,4)}, {vt(vOa+4*db,4)}\n"
    t += f"""    s_add_u32 s{sCnt}, s{sCnt}, 8192
    s_cmp_lt_u32 s{sCnt}, 0x20000
    s_cbranch_scc1 L_skey
    s_nop 7
    v_rcp_f32 v{vR}, v{vL}
    s_nop 0
"""
    for r in range(32): t += f"    v_mul_f32 v{vOa+r}, v{vOa+r}, v{vR}\n"
    for db in range(8):
        o = vOa + 4 * db; d = vP + 2 * db
        t += f"    v_cvt_pk_bf16_f32 v{d}, v{o}, v{o+1}\n    v_cvt_pk_bf16_f32 v{d+1}, v{o+2}, v{o+3}\n"
    if cfg.store_x4:
        t += "    s_nop 1\n"
        for db in range(0, 8, 2):
            d = vP + 2 * db
            t += f"    v_permlane16_swap_b32 v{d}, v{d+2}\n    v_permlane16_swap_b32 v{d+1}, v{d+3}\n"
            t += f"    buffer_store_dwordx4 {vt(d,4)}, v{vO}, s[{sO_}:{sO_+3}], s{sQo} offen offset:{db*32}\n"
    else:
        for db in range(8): t += f"    buffer_store_dwordx2 {vt(vP+2*db,2)}, v{vO}, s[{sO_}:{sO_+3}], s{sQo} offen offset:{db*32}\n"
    t += f"""    s_add_u32 s{sQo}, s{sQo}, 4096
    s_cmp_lt_u32 s{sQo}, 0x10000
    s_waitcnt vmcnt(0)
    s_cbranch_scc1 L_sblk
    s_endpgm
"""
    return t

HDR = """; Kernarg layout for this problem (48 bytes, ptrs only, base s[0:1]):
; @launch grid=(256,1,1) block=(256,1,1) lds=163840
"""

def full(cfg):
    body = generate(cfg)
    return HDR + f""".amdgcn_target "amdgcn-amd-amdhsa--gfx950"
.text
.globl {KN}
.p2align 8
.type {KN},@function
{KN}:
""" + head(cfg) + body + "\n" + tail(cfg) + f""".section .rodata,"a"
.p2align 6
.amdhsa_kernel {KN}
  .amdhsa_next_free_vgpr 512
  .amdhsa_next_free_sgpr 102
  .amdhsa_accum_offset 256
  .amdhsa_group_segment_fixed_size 0
  .amdhsa_kernarg_size 48
  .amdhsa_user_sgpr_count 2
  .amdhsa_user_sgpr_kernarg_segment_ptr 1
  .amdhsa_system_sgpr_workgroup_id_x 1
.end_amdhsa_kernel
"""

if __name__ == "__main__":
    cfg = Cfg()
    name = sys.argv[1]
    for a in sys.argv[2:]:
        k, v = a.split("=", 1)
        try: v = eval(v)
        except Exception: pass
        setattr(cfg, k, v)
    s = full(cfg)
    open(name, "w").write(s)
    tot = sum(v[0] for v in cfg.est.values())
    print(name, "est head", cfg.est_head, "total", tot, "mfma", sum(v[1] for v in cfg.est.values()), file=sys.stderr)
    print(" ".join(f"{s}:{v[0]}/{v[1]}" for s, v in cfg.est.items() if s < 16 or s >= 32), file=sys.stderr)
```

```python
import sys, math, struct
KN = "standalone__gqa_softmax__near_ridge_kernel"

class Cfg:
    sigma = (0, 2, 4, 6)
    beta = 0.80
    beta_small = 0.55
    ds_lat = 9
    mv_lat = 4
    store_x4 = True
    q_nt = "nt"
    st_pol = "sc1"
    k_pol = "nt"
    v_pol = ""
    v_pol0 = "nt"
    rot = 0
    split_from = 3
    split_min_u = 2
    arr_gap = 10
    vm_gap = 5
    smooth = True
    stamps = False
    code_pf = True
    plan = "K0 Q0 C K1 W00 V0 S0 B r0 r1 R0 K2 S1@0.0 V1@0.0 Q1@0.5 K3@1.0 V2@1.3 K4@1.6 R1@2.0 Q2@2.2 V3@2.3 K5@2.b K6@3.b R2@3.b Q3@4.0 K7@4.b R3@5.b Q4@6.0"
    deep = True
    tail_dl = 1.0
    betas = {0: 0.95, 1: 0.9, 2: 0.9, 3: 0.8}
    arr_gap_small = 4
    k_up = 1
    force_slow = False
    nop_ds = True
    ds_gap = 2
    ds_cap = 1024
    kill_from = None
    kill = ()
    limit_exp = 32

vQd, vO, vQr, vCnt, vD0, vD1, vChk = 1, 2, 3, 4, 5, 6, 7
vKl = 0
vV = 8
vS = 16
vL = 32
vR = 48
vKw = 50
vT = 52
NT = 6
vPoll = 58
vJ = 59
vKr = 60
vP = 64
vOa = 128
aQ, aOne, aCone, aKp1, aK, aKp, aV = 0, 64, 68, 72, 80, 128, 192
sQ_, sK_, sV_, sO_, sC_ = 12, 16, 20, 24, 28
sTile = 32
sM0 = 96
sQo, sOo, sCnt, sScale, sWave = 42, 43, 44, 45, 3
sTmp = 46
sMq, sExp = 52, 53

def vr(b, n=1): return [f"v{b+i}" for i in range(n)]
def ar(b, n=1): return [f"a{b+i}" for i in range(n)]
def vt(b, n): return f"v[{b}:{b+n-1}]"
def at(b, n): return f"a[{b}:{b+n-1}]"

class Op:
    def __init__(s, key, text, kind, reads, writes, cost=None, earliest=None, dummy=False, anchor=None, maxdl=None):
        s.key, s.text, s.kind, s.reads, s.writes = key, text, kind, list(reads), list(writes)
        s.cost = {"mfma": 0, "trans": 8, "valu": 4, "ds": 4, "dsw": 20, "load": 8, "dma": 8, "store": 12, "salu": 0, "bar": 0, "chk": 0}[kind] if cost is None else cost
        s.cnt = {"ds": "lgkm", "dsw": "lgkm", "load": "vm", "dma": "vm", "store": "vm"}.get(kind)
        s.earliest = earliest
        s.maxdl = maxdl
        s.dummy = dummy
        s.anchor = anchor
        s.preds = []; s.succs = []; s.win = None; s.pos = None; s.m = None
        s.prod = {}

def build(cfg, s0, s1, steady):
    sg = cfg.sigma
    NP = 4
    last = 32 + max(sg)
    def qk_on(s, u): return steady or (sg[u] <= s < sg[u] + 8 * NP)
    def pv_on(s, u): return steady or (sg[u] + 1 <= s < sg[u] + 8 * NP + 1)
    def order_qk(s, kb):
        us = [u for u in range(4) if qk_on(s, u)]
        if kb == 3:
            f = [u for u in us if (s - sg[u]) % 8 == 7]
            us = f + [u for u in us if u not in f]
        if kb == 0:
            f = [u for u in us if (s - sg[u]) % 8 == 0]
            us = [u for u in us if u not in f] + f
        return us
    prog = []
    A = prog.append
    chain = 0
    pend_q = []
    def qload(key, earliest=None, dummy=False):
        A(Op(key + ("m0",), f"s_mov_b32 m0, s{sMq}", "salu", [], ["m0"], dummy=dummy))
        for i in range(4):
            A(Op(key + (i,), f"buffer_load_dwordx4 v{vQd}, s[{sQ_}:{sQ_+3}], s{sQo} offen offset:{i*1024} {cfg.q_nt} lds".replace("  ", " "), "dma",
                 [f"s{sQo}", "m0"] + [f"Qrd{d}" for d in range(4)], [f"Qs{i}"], earliest=earliest, dummy=dummy))
        A(Op(key + ("inc",), f"s_add_u32 s{sQo}, s{sQo}, 4096", "salu", [f"s{sQo}"], [f"s{sQo}"], dummy=dummy))
    def qread(key, u, earliest=None, dummy=False):
        for ds in range(4):
            d = aQ + 16 * u + 4 * ds
            A(Op(key + (ds,), f"ds_read_b128 {at(d,4)}, v{vQr} offset:{ds*64}", "ds", [f"Qs{i}" for i in range(4)], ar(d, 4) + [f"Qrd{ds}"], earliest=earliest, dummy=dummy))
    def kfrag(t, kb, ds):
        if t == 0: return aKp + kb * 16 + ds * 4
        if (t, kb, ds) == (1, 0, 0): return aKp1
        return aK + (((t - 1) * 4 + kb) % 3) * 16 + ds * 4
    def vslot(sv):
        if not steady and cfg.deep and sv in (2, 3, 34, 35): return sv & 1
        return 2 + (sv & 1)
    def vprev(sv):
        if vslot(sv) < 2: return ["Kret67"] if sv > 8 else []
        p = sv - 2
        while p >= 0 and vslot(p) != vslot(sv): p -= 2
        return [f"Vret{p}"] if p >= 0 else []
    vissued = set()
    def vdma(sv, earliest=None):
        vissued.add(sv)
        A(Op(("m0", sv), f"s_mov_b32 m0, s{sM0 + vslot(sv)}", "salu", ["setup~"], ["m0"]))
        for i in range(4):
            A(Op(("dma", sv, i), f"buffer_load_dwordx4 v{vD0 + (i & 1)}, s[{sV_}:{sV_+3}], s{sTile + sv % 8} offen offset:{i*1024} {cfg.v_pol0 if (not steady and sv < 8) else cfg.v_pol} lds".replace("  ", " "), "dma",
                 ["m0"] + vprev(sv), [f"Vd{sv}_{i}"], earliest=earliest))
    kstage = {}
    def kregs(t):
        u = KST[t][0]; h = KST[t][1]
        if h == "P": return [vP + ds * 16 + u * 4 for ds in range(4)]
        return [vOa + (h * 4 + ds) * 16 + u * 4 for ds in range(4)]
    KST = [(1, 0), (1, 1), (2, 0), (2, 1), (3, 0), (3, 1), (3, "P"), (3, 0)]
    if cfg.k_up == 8: KST = [(0, 0), (0, 1), (1, 0), (1, 1), (2, 0), (2, 1), (3, 0), (3, 1)]
    def kload(t, earliest=None):
        for ds, r in enumerate(kregs(t)):
            A(Op(("kld", t, ds), f"buffer_load_dwordx4 {vt(r,4)}, v{vKl}, s[{sK_}:{sK_+3}], s{sTile + t} offen offset:{ds*1024} {cfg.k_pol}".rstrip(), "load",
                 [], vr(r, 4), earliest=earliest))
    tmpc = [0]
    def kscale(t, earliest=None):
        for ds, r in enumerate(kregs(t)):
            for j in range(4):
                x = r + j; tm = vT + tmpc[0] % NT; tmpc[0] += 1
                k = ("ksc", t, ds, j)
                A(Op(k + (0,), f"v_lshlrev_b32 v{tm}, 16, v{x}", "valu", vr(x), vr(tm), earliest=earliest))
                A(Op(k + (1,), f"v_and_b32 v{x}, 0xffff0000, v{x}", "valu", vr(x), vr(x), earliest=earliest))
                A(Op(k + (2,), f"v_mul_f32 v{tm}, s{sScale}, v{tm}", "valu", vr(tm), vr(tm)))
                A(Op(k + (3,), f"v_mul_f32 v{x}, s{sScale}, v{x}", "valu", vr(x), vr(x)))
                A(Op(k + (4,), f"v_cvt_pk_bf16_f32 v{x}, v{tm}, v{x}", "valu", vr(tm) + vr(x), vr(x)))
            tl = 3 if t == 0 else t
            if t == 4 and ds < 2:
                A(Op(("kwa", t, ds), f"v_add_u32 v{vKw + ds}, 0x10000, v{vKw + ds}", "valu", vr(vKw + ds), vr(vKw + ds)))
            A(Op(("kw", t, ds), f"ds_write_b128 v{vKw + (ds & 1)}, {vt(r,4)} offset:{(tl & 3) * 16384 + (ds >> 1) * 128}", "dsw",
                 vr(r, 4) + vr(vKw + (ds & 1)) + (["K0dead"] if t == 3 else []) + ([f"Vret{t-4}"] if t >= 6 and cfg.deep else []), [f"Kw{t}_{ds}"]))
    nmf = [0]
    kpub = set()
    def kread1(s, t, kb):
        for ds in range(4):
            perm = t == 0 or (t, kb, ds) == (1, 0, 0)
            if perm and (steady or s > 7): continue
            d = kfrag(t, kb, ds); tl = 3 if t == 0 else t
            A(Op(("kr", s, kb, ds), f"ds_read_b128 {at(d,4)}, v{vKr + 2 * (tl >> 2) + (ds & 1)} offset:{(tl & 3) * 16384 + kb * 4096 + ds * 1024}", "ds",
                 [] if (steady or s > 7) else [f"Kok{t}"], ar(d, 4) + ([] if not perm else [f"Kr0_{kb}_{ds}" if t == 0 else "Kr1"])))
    kdone0 = set(); kscaled = []
    later = {}
    if not steady:
        H = (-1, 0)
        def issue(item, when):
            n0 = len(prog)
            n = int(item[1:]) if item[1:].isdigit() else None
            if item[0] == "K": kload(n, when)
            elif item[0] == "Q": qload(("q0", n) if n < 4 else ("q", 8, 0), when)
            elif item[0] == "R": qread(("qr0", n), n, when)
            elif item[0] == "V": vdma(n, when)
            elif item[0] == "S": kscale(n, when); kscaled.append(n)
            elif item[0] == "r": kread1(0, 0, n); kdone0.add(n)
            elif item[0] == "W":
                A(Op(("wt", 0, item), "s_nop 0", "valu", vr(kregs(int(item[1]))[int(item[2])], 4), []))
            elif item[0] == "B":
                pub = [t for t in kscaled if t not in kpub]; kpub.update(pub)
                A(Op(("bar", -1), "s_barrier", "bar", [f"Kw{t}_{ds}" for t in pub for ds in range(4)], [f"Kok{t}" for t in pub], anchor=H))
            elif item[0] == "C":
                pf = f"buffer_load_dword v{vJ}, v{vJ}, s[{sC_}:{sC_+3}], 0 offen"
                A(Op(("cpf", 0), head2(cfg).replace("@CPF", "    " + pf).strip(), "load", [], ["junk"], earliest=when, cost=300))
                A(Op(("setup", 0), "s_nop 0", "valu", [], ["setup~", f"s{sExp}"]))
            if when == H:
                for x in prog[n0:]: x.maxdl = H
        for item in cfg.plan.split():
            if "@" not in item: issue(item, H)
            else:
                it, pos = item.split("@"); st, fr = pos.split(".")
                later.setdefault(int(st), []).append((it, fr))
    for s in range(s0, s1):
        t = s % 8
        uq = [u for u in range(4) if qk_on(s, u)]
        up = order_qk(s - 1, 3) if (steady or s > 0) else []
        up = [u for u in up if pv_on(s, u)]
        qk = [(kb, u) for kb in range(4) for u in order_qk(s, kb)]
        pv = []
        fin = [u for u in up if (s - 1 - sg[u]) % 8 == 7]
        ones_order = fin + [u for u in up if u not in fin]
        for db in range(8):
            for u in up: pv.append(("pv", db, u))
        npv = len(pv)
        ins = {}
        for i, u in enumerate(ones_order):
            if u in fin: p = len(up)
            else: p = len(up) + (npv - len(up)) * i // max(1, len(ones_order))
            ins.setdefault(p, []).append(("one", 0, u))
        pv2 = []
        for i, c in enumerate(pv):
            pv2 += ins.get(i, []); pv2.append(c)
        pv = pv2
        seq = []
        if qk:
            j = 0
            lag = 1 if len(uq) <= 2 and pv else 0
            for i, c in enumerate(qk):
                seq.append(("qk",) + c)
                tgt = math.ceil(max(0, i + 1 - lag) * len(pv) / (len(qk) - lag))
                while j < tgt: seq.append(pv[j]); j += 1
        else:
            seq = pv
        nm = sum(4 if c[0] == "qk" else 2 for c in seq)
        beta = cfg.beta if len(uq) >= 3 else cfg.beta_small
        barpos = int(beta * nm)
        if not steady and s in cfg.betas: barpos = int(cfg.betas[s] * nm)
        vdone = set(); kdone = set(kdone0) if (s == 0 and not steady) else set(); bar_done = False
        Pw = vP + 32 * (s & 1); Pr = vP + 32 * ((s - 1) & 1)
        def vreads(db):
            if db in vdone: return
            vdone.add(db)
            for ks in range(2):
                for h in range(2):
                    d = aV + db * 8 + ks * 4 + h * 2
                    A(Op(("vr", s, db, ks, h), f"ds_read_b64_tr_b16 {at(d,2)}, v{vV+db} offset:{vslot(s-1)*16384 + ks*8192 + h*4096}", "ds",
                         [f"Vok{s-1}"], ar(d, 2) + [f"Vr{s-1}_{db}_{ks}_{h}"]))
        def kreads(kb):
            if kb in kdone: return
            kdone.add(kb); kread1(s, t, kb)
        def barrier():
            rd = []; wr = []
            pubv, retv, nxt = [s], [s - 1], [s + 1]
            if not steady:
                if cfg.deep:
                    retv = {1: [], 2: [0], 3: [1], 4: [2], 5: [3, 4], 35: []}.get(s, retv)
                    pubv = {34: [34, 35], 35: [36, 37]}.get(s, pubv)
                    nxt = {0: [], 1: [], 2: [4], 3: [5], 4: [], 32: [33, 34, 35], 33: [36], 34: [37], 35: []}.get(s, nxt)
                    if s == 32: wr.append("Kret67")
                    if s >= 36: return
                if s >= last: return
                nxt = [v for v in nxt if v < last and v not in vissued and not any(it == f"V{v}" for l in later.values() for it, _ in l)]
            for v in retv:
                if v < 0: continue
                if v == s - 1:
                    for db in range(8): vreads(db)
                rd += [f"Vr{v}_{db}_{ks}_{h}" for db in range(8) for ks in range(2) for h in range(2)]
                wr.append(f"Vret{v}")
            for v in pubv:
                assert steady or v in vissued, v
                rd += [f"Vd{v}_{i}" for i in range(4)]; wr.append(f"Vok{v}")
            if not steady and s + 1 <= 7 and s + 1 not in kpub:
                if s + 1 not in kscaled: kscale(s + 1, ((s - 1, "bar") if s >= 1 else (-1, 0))); kscaled.append(s + 1)
                kpub.add(s + 1)
                rd += [f"Kw{s+1}_{ds}" for ds in range(4)]; wr.append(f"Kok{s+1}")
            if not steady and s == 1:
                rd += [f"Kr0_{kb}_{ds}" for kb in range(4) for ds in range(4)]; wr.append("K0dead")
                rd.append("Kr1"); wr.append("Cdead")
            if not steady and s == 2: rd.append("Czero")
            if (steady or s >= cfg.split_from) and len(uq) >= cfg.split_min_u:
                ag = cfg.arr_gap if len(uq) >= 3 else cfg.arr_gap_small
                A(Op(("arr", s), f"ds_add_u32 v{vCnt}, a{aCone}", "dsw", rd, ["Carr"], cost=8, anchor=(s, "bar", -ag - cfg.ds_lat - 1)))
                A(Op(("exp", s), f"s_add_u32 s{sExp}, s{sExp}, 4", "salu", [f"s{sExp}"], [f"s{sExp}"]))
                A(Op(("pol", s), f"ds_read_b32 v{vPoll}, v{vCnt}", "ds", ["Carr~"], vr(vPoll), anchor=(s, "bar", -cfg.ds_lat - 1)))
                A(Op(("cmp", s), f"v_cmp_gt_u32 vcc, s{sExp}, v{vPoll}", "valu", vr(vPoll) + [f"s{sExp}"], ["vcc"], anchor=(s, "bar", -2)))
                A(Op(("bar", s), f"s_cbranch_vccnz L_spin{s if (not steady and (s < 8 or s >= 32)) else 8 + s % 8}", "bar", ["vcc"] + vr(vPoll) + [f"s{sExp}"], wr, anchor=(s, "bar")))
            else:
                A(Op(("bar", s), "s_barrier", "bar", rd, wr, anchor=(s, "bar")))
            if not steady and s == 1:
                A(Op(("cz", 1), f"ds_write_b32 v{vCnt}, a{aCone + 1}", "dsw", ["Cdead"], ["Czero"], cost=8))
            for v in nxt: vdma(v, None)
            for it, fr in later.get(s, []):
                if fr == "b": issue(it, (s, "bar"))
        todo_items = [(it, int(fr) / 10 ** len(fr)) for it, fr in later.get(s, []) if fr != "b"]
        mcount = 0
        for c in seq:
            if not bar_done and mcount >= barpos:
                barrier(); bar_done = True
            while todo_items and mcount >= todo_items[0][1] * nm:
                issue(todo_items.pop(0)[0], (s, "off", mcount))
            if c[0] == "qk":
                _, kb, u = c
                kreads(kb)
                if kb == 0 and (s - sg[u]) % 8 == 0 and (steady or s - sg[u] >= 8):
                    qread(("qr", s, u), u)
                    un = (u + 1) % 4; sn = s + (sg[un] - sg[u]) % 8
                    pend_q.append((("q", sn, un), not steady and sn - sg[un] >= 8 * NP))
                    if True:
                        k_, d_ = pend_q.pop(); qload(k_, dummy=d_)
                S = vS + 4 * (chain % 4); chain += 1
                for ds in range(4):
                    kf = kfrag(t, kb, ds); qf = aQ + u * 16 + ds * 4
                    A(Op(("qk", s, kb, u, ds), f"v_mfma_f32_16x16x32_bf16 {vt(S,4)}, {at(kf,4)}, {at(qf,4)}, {'0' if ds == 0 else vt(S,4)}", "mfma",
                         ar(kf, 4) + ar(qf, 4) + ([] if ds == 0 else vr(S, 4)), vr(S, 4)))
                for r in range(4):
                    A(Op(("ex", s, kb, u, r), f"v_exp_f32 v{S+r}, v{S+r}", "trans", vr(S + r), vr(S + r)))
                pd = Pw + (kb >> 1) * 16 + u * 4 + (kb & 1) * 2
                for r in range(2):
                    A(Op(("cv", s, kb, u, r), f"v_cvt_pk_bf16_f32 v{pd+r}, v{S+2*r}, v{S+2*r+1}", "valu", vr(S + 2 * r, 2), vr(pd + r)))
                mcount += 4
            elif c[0] == "pv":
                _, db, u = c
                vreads(db)
                first = (s - 1 - sg[u]) % 8 == 0
                o = vOa + db * 16 + u * 4
                for ks in range(2):
                    vf = aV + db * 8 + ks * 4; pf = Pr + ks * 16 + u * 4
                    z = first and ks == 0
                    A(Op(("pv", s, db, u, ks), f"v_mfma_f32_16x16x32_bf16 {vt(o,4)}, {at(vf,4)}, {vt(pf,4)}, {'0' if z else vt(o,4)}", "mfma",
                         ar(vf, 4) + vr(pf, 4) + ([] if z else vr(o, 4)), vr(o, 4)))
                mcount += 2
            else:
                _, _, u = c
                first = (s - 1 - sg[u]) % 8 == 0
                l = vL + 4 * u
                for ks in range(2):
                    pf = Pr + ks * 16 + u * 4; z = first and ks == 0
                    A(Op(("on", s, u, ks), f"v_mfma_f32_16x16x32_bf16 {vt(l,4)}, {at(aOne,4)}, {vt(pf,4)}, {'0' if z else vt(l,4)}", "mfma",
                         vr(pf, 4) + ([] if z else vr(l, 4)), vr(l, 4)))
                mcount += 2
        if not bar_done: barrier()
        for it, _ in todo_items: issue(it, (s, "off", mcount))
        if not steady and s == 31:
            qread(("qr", 32, 0), 0, dummy=True)
            qload(("q", 32 + sg[1], 1), dummy=True)
        for u in sorted(fin):
            l = vL + 4 * u; R = vR + (u & 1)
            A(Op(("rc", s, u), f"v_rcp_f32 v{R}, v{l}", "trans", vr(l), vr(R)))
            A(Op(("ck", s, u), f"v_max3_u32 v{vChk}, v{vChk}, v{l}, v{R}", "valu", vr(vChk) + vr(l) + vr(R), vr(vChk)))
            for db in range(8):
                o = vOa + db * 16 + u * 4
                for r in range(4):
                    A(Op(("mu", s, u, db, r), f"v_mul_f32 v{o+r}, v{o+r}, v{R}", "valu", vr(o + r) + vr(R), vr(o + r)))
                if not cfg.store_x4:
                    for r in range(2):
                        A(Op(("oc", s, u, db, r), f"v_cvt_pk_bf16_f32 v{o+r}, v{o+2*r}, v{o+2*r+1}", "valu", vr(o + 2 * r, 2), vr(o + r)))
                    A(Op(("st", s, u, db), f"buffer_store_dwordx2 {vt(o,2)}, v{vO}, s[{sO_}:{sO_+3}], s{sOo} offen offset:{db*32} {cfg.st_pol}".rstrip(), "store",
                         vr(o, 2) + [f"s{sOo}"], []))
                else:
                    if db & 1:
                        e = o - 16
                        A(Op(("oc", s, u, db, 3), f"v_cvt_pk_bf16_f32 v{o+3}, v{o+2}, v{o+3}", "valu", vr(o + 2, 2), vr(o + 3)))
                        A(Op(("oc", s, u, db, 2), f"v_cvt_pk_bf16_f32 v{o+2}, v{o}, v{o+1}", "valu", vr(o, 2), vr(o + 2)))
                        A(Op(("oc", s, u, db, 0), f"v_cvt_pk_bf16_f32 v{o}, v{e}, v{e+1}", "valu", vr(e, 2), vr(o)))
                        A(Op(("oc", s, u, db, 1), f"v_cvt_pk_bf16_f32 v{o+1}, v{e+2}, v{e+3}", "valu", vr(e + 2, 2), vr(o + 1)))
                        for r in range(2):
                            A(Op(("sw", s, u, db, r), f"v_permlane16_swap_b32 v{o+r}, v{o+2+r}", "valu", vr(o + r) + vr(o + 2 + r), vr(o + r) + vr(o + 2 + r)))
                        A(Op(("st", s, u, db), f"buffer_store_dwordx4 {vt(o,4)}, v{vO}, s[{sO_}:{sO_+3}], s{sOo} offen offset:{(db-1)*32} {cfg.st_pol}".rstrip(), "store",
                             vr(o, 4) + [f"s{sOo}"], [], cost=20))
            if not steady and 32 <= s < last:
                for x in prog:
                    if x.key[:3] == ("st", s, u): x.maxdl = (s + 1, "frac", (x.key[3] + 1) / 8 * cfg.tail_dl)
            A(Op(("oinc", s, u), f"s_add_u32 s{sOo}, s{sOo}, 4096", "salu", [f"s{sOo}"], [f"s{sOo}"]))
    return prog

def link(cfg, prog):
    lastw = {}; readers = {}
    m = 0
    for x in prog:
        if x.kind == "mfma": x.m = m; m += 1
    for x in prog:
        e = {}
        def add(p, typ):
            if p is x: return
            soft = hard = 0
            if p.kind == "mfma":
                if x.kind == "mfma": return
                if typ in ("raw", "waw"): soft = cfg.mv_lat
                elif x.kind in ("valu", "trans"): soft = 1
            elif x.kind == "mfma":
                hard = soft = 1
                if typ == "raw":
                    soft = cfg.ds_lat if p.kind == "ds" else (1 if p.kind == "load" else 2)
                elif p.kind == "store": soft = 2
            elif x.kind == "bar" or x.key[0] == "arr":
                hard = 1; soft = {"ds": cfg.ds_lat, "dsw": cfg.ds_lat, "dma": 2}.get(p.kind, 1)
            elif p.kind == "bar":
                soft = hard = 0
            elif p.kind == "salu":
                soft = 2; hard = 1 if x.kind != "salu" else 1
            elif x.kind == "salu":
                soft = hard = 1
            elif typ == "raw":
                if p.kind == "trans": soft = 1
                elif p.kind == "ds" and x.kind == "dma": soft = cfg.ds_lat
                elif p.kind == "valu" and x.kind in ("store", "dsw", "ds"): soft = 1
                elif p.kind == "valu" and "permlane" in x.text: soft = 2
            else:
                if p.kind in ("valu", "trans") and x.kind in ("load", "ds", "dma"): soft = 1
                if p.kind in ("store", "dsw"): soft = 1
            o = e.get(id(p))
            e[id(p)] = (p, max(soft, o[1]) if o else soft, max(hard, o[2]) if o else hard)
        for r in x.reads:
            if r in lastw: add(lastw[r], "raw"); x.prod[r] = lastw[r].key
        for r in x.writes:
            if r in lastw: add(lastw[r], "waw")
            for p in readers.get(r, []): add(p, "war")
        for r in x.reads: readers.setdefault(r, []).append(x)
        for r in x.writes: lastw[r] = x; readers[r] = []
        x.preds = list(e.values())
        for p, so, ha in x.preds: p.succs.append((x, so, ha))
    return m

def step_of(x): return x.key[1]

def schedule(cfg, prog, nm, pins=None, lo=None, hi=None):
    pins = pins or {}; lo = lo or {}; hi = hi or {}
    start = {}; barw = {}
    cur = -1
    for x in prog:
        if x.kind == "mfma":
            cur = x.m; start.setdefault(x.key[1], x.m)
        elif x.kind == "bar": barw[x.key[1]] = cur
    def W(a):
        if a[0] == -1: return -1
        if a[1] == "bar": return barw.get(a[0], nm - 1) + (a[2] if len(a) > 2 else 0)
        if a[1] == "frac": return start[a[0]] - 1 + int(a[2] * (start.get(a[0] + 1, nm) - start[a[0]]))
        if a[1] == "off": return max(0, start[a[0]] - 1 + a[2])
        return start[a[0]] - 1
    fill = [x for x in prog if x.kind != "mfma"]
    for x in prog:
        if x.kind == "mfma": x.win = x.m
    for i, x in enumerate(prog): x.idx = i
    for x in reversed(fill):
        if x.key in pins: x.dls = x.dlh = pins[x.key][0]; continue
        if x.anchor: x.dls = x.dlh = W(x.anchor); continue
        ds = dh = nm - 1
        for y, so, ha in x.succs:
            if y.dummy and y.key not in pins: continue
            if y.kind == "mfma": ds = min(ds, y.m - so); dh = min(dh, y.m - ha)
            else: ds = min(ds, y.dls - so); dh = min(dh, y.dlh - ha)
        if x.key in hi: ds = min(ds, hi[x.key]); dh = min(dh, hi[x.key])
        if x.maxdl: ds = min(ds, W(x.maxdl)); dh = min(dh, W(x.maxdl))
        x.dls, x.dlh = ds, max(dh, -1)
    wins = {w: [] for w in range(-1, nm)}
    for x in fill:
        x.win = None
        x.lo = max(W(x.earliest) if x.earliest else -1, lo.get(x.key, -1))
        if x.anchor: x.lo = x.dlh
    pinned_by_win = {}
    for x in fill:
        if x.key in pins: pinned_by_win.setdefault(pins[x.key][0], []).append(x)
    todo = [x for x in fill if x.key not in pins and not x.dummy]
    todo.sort(key=lambda x: x.idx)
    credit = [0]
    def ready(x, w, soft):
        if w < x.lo: return False
        for p, so, ha in x.preds:
            if p.dummy and p.key not in pins: continue
            if p.win is None: return False
            lat = ha
            if soft and (p.kind not in ("load", "dma", "ds", "dsw") or x.kind == "dma"): lat = so
            if p.kind in ("store", "dsw") and soft: lat = max(lat, min(so, 1))
            if w == -1 or w == nm - 1: lat = 0
            if w < p.win + lat: return False
        return True
    for w in range(-1, nm):
        if w in pinned_by_win:
            for x in sorted(pinned_by_win[w], key=lambda x: pins[x.key][1]):
                x.win = w; wins[w].append(x)
        if pins and cfg._loop[0] <= w < cfg._loop[1]: continue
        cap = 8 if w >= 0 else 0
        rate = 8
        if cfg.smooth and pins and 0 <= w < nm - 1:
            acc = 0
            for x in sorted((x for x in todo[:900] if x.dls <= w + 120), key=lambda x: x.dls):
                acc += min(x.cost, 8)
                rate = max(rate, acc / (max(x.dls, w) - w + 1))
            credit[0] = credit[0] + rate - 8 if rate > 8.2 else 0
            credit[0] = min(credit[0], rate)
            extra = int(credit[0] // 4) * 4
            cap += extra
        used = 0
        cur = wins[w]
        def place(x):
            nonlocal used
            x.win = w; cur.append(x); used += min(x.cost, 8); todo.remove(x)
        while True:
            cand = [x for x in todo[:700] if ready(x, w, True) or (w >= x.dlh and ready(x, w, False))]
            if not cand: break
            z = [x for x in cand if x.kind in ("salu", "bar")]
            if z:
                place(z[0]); continue
            forced = [x for x in cand if x.dls <= w]
            if w == -1 or w == nm - 1:
                if not forced: break
                place(min(forced, key=lambda x: x.idx)); continue
            hasvalu_dep = lambda x: x.kind in ("ds", "dsw", "load", "dma", "store") and any(p.win == w and p.kind in ("valu", "trans") for p, _, _ in x.preds)
            hard_forced = forced
            if hard_forced:
                place(min(hard_forced, key=lambda x: (x.dls, x.idx))); continue
            if used >= cap: break
            nb = lambda x: 1024 if "b128" in x.text else 512
            dsb = sum(nb(x) for x in cur if x.kind == "ds")
            tight = rate > 8.2
            recent = (not tight) and any(y.kind == "ds" for k in range(1, cfg.ds_gap) for y in wins.get(w - k, []))
            vmk = ("load", "dma", "store")
            vgap = max(1, int(cfg.vm_gap * 16 / (8 + rate)))
            recent_vm = any(y.kind in vmk for k in range(0, vgap) for y in wins.get(w - k, []))
            dcap = cfg.ds_cap * (8 + cap) // 16
            cand = [x for x in cand if (x.kind != "ds" or (not recent and dsb + nb(x) <= dcap)) and not (x.kind in vmk and recent_vm)]
            if not cand: break
            cand.sort(key=lambda x: (-99999 if x.kind in ("load", "dma", "dsw", "store") else x.dls, x.idx))
            if cap - used >= 8:
                top = cand[0]
                if top.cost >= 8: place(top); continue
                small = [x for x in cand if x.cost == 4]
                big = [x for x in cand if x.cost >= 8]
                fits = lambda a, b: not (a.kind == "ds" and b.kind == "ds" and dsb + nb(a) + nb(b) > dcap)
                partner = any(fits(top, y) for y in small if y is not top) or any(y.cost == 4 and so == 0 and y.win is None and y.kind == "valu" and all(p.win is not None or p is top for p, _, _ in y.preds) for y, so, ha in top.succs)
                if partner or not big or (cap - used) % 8: place(top)
                else: place(big[0])
                continue
            small = [x for x in cand if x.cost == 4]
            if not small: break
            place(small[0])
        if w >= 0: credit[0] -= max(0, min(used, cap) - 8)
        if w not in (-1, nm - 1):
            order = {"bar": 0, "salu": 0, "dma": 1, "load": 1, "store": 1, "dsw": 1, "ds": 1, "valu": 2, "trans": 2}
            lvl = {}
            for x in cur:
                l = order[x.kind]
                for p, _, _ in x.preds:
                    if p.win == w and p.kind != "mfma": l = max(l, lvl[id(p)])
                lvl[id(x)] = l
            cur.sort(key=lambda x: lvl[id(x)])
    assert not todo, [x.key for x in todo[:10]]
    for w, c in wins.items():
        for i, x in enumerate(c): x.pos = i
    return wins, start

def norm(key, d):
    return (key[0], key[1] + d) + tuple(key[2:])

class Ins:
    def __init__(s, text, op=None, kind=None):
        s.text, s.op, s.kind = text, op, kind or (op.kind if op else "salu")
        s.vm = None; s.lg = None

def generate(cfg):
    last = 32 + max(cfg.sigma)
    cfg.q_ahead = getattr(cfg, "q_ahead", 2)
    cfg.code_pf_n = getattr(cfg, "code_pf_n", 2)
    sp = build(cfg, 0, 56, True); nms = link(cfg, sp)
    swins, sstart = schedule(cfg, sp, nms)
    per = sstart[8] - sstart[0]
    ok = None
    for b in (16, 24, 32):
        same = all([x.text for x in swins[sstart[b] + i]] == [x.text for x in swins[sstart[b + 8] + i]] and
                   [norm(x.key, 8) for x in swins[sstart[b] + i]] == [x.key for x in swins[sstart[b + 8] + i]] for i in range(per))
        if same: ok = b; break
    assert ok is not None, "steady state not periodic"
    rp = build(cfg, 0, last + 1, False); nm = link(cfg, rp)
    rstart = {}
    for x in rp:
        if x.kind == "mfma": rstart.setdefault(x.key[1], x.m)
    L0, L1 = rstart[8], rstart[32]
    assert L1 - L0 == 3 * per
    cfg._loop = (L0, L1)
    pins = {}
    for it in range(3):
        for i in range(per):
            for x in swins[sstart[ok] + i]:
                pins[norm(x.key, 8 + 8 * it - ok)] = (L0 + it * per + i, x.pos)
    keys = {x.key: x for x in rp}
    assert len(keys) == len(rp)
    missing = [k for k in pins if k not in keys]
    assert not missing, missing[:10]
    lo = {}; hi = {}
    mid = (keys[("qk", 20, 0, 0, 0)])
    midx = rp.index(mid)
    for i, x in enumerate(rp):
        if x.kind == "mfma" or x.key in pins: continue
        if i < midx: hi[x.key] = L0 - 1
        else: lo[x.key] = L1
    wins, start = schedule(cfg, rp, nm, pins, lo, hi)
    mf = [x for x in rp if x.kind == "mfma"]
    def stat(w):
        return L0 + (w - L0) % per if L0 <= w < L1 else w
    free = {}
    pre = {}
    for w in range(-1, nm):
        if stat(w) == w:
            free[w] = []
            if w not in (-1, nm - 1):
                for x in wins[w]:
                    if x.kind == "bar": free[w].append(Ins(x.text, x))
    def body(w):
        if w in (-1, nm - 1): return wins[w]
        return [x for x in wins[w] if x.kind not in ("salu", "bar")]
    def walk(fix):
        q = {"vm": [], "lgkm": []}
        pend = {}
        hist = {}
        changed = False
        def dowait(ins):
            for c, n in (("vm", ins.vm), ("lgkm", ins.lg)):
                if n is None: continue
                while len(q[c]) > n:
                    d = q[c].pop(0)
                    for r in d.writes:
                        if pend.get(r) is d: del pend[r]
        def need(x):
            n = {}
            for r in x.reads + x.writes:
                p = pend.get(r)
                if p is not None and not (r in x.writes and r not in x.reads and p.cnt == x.cnt):
                    n[p.cnt] = p if (p.cnt not in n or q[p.cnt].index(p) > q[p.cnt].index(n[p.cnt])) else n[p.cnt]
            return n
        def issue(x):
            if x.cnt:
                q[x.cnt].append(x)
                for r in x.writes: pend[r] = x
        def setw(ins, c, n):
            n = min(n, 62 if c == "vm" else 14)
            if c == "vm": ins.vm = n if ins.vm is None else min(ins.vm, n)
            else: ins.lg = n if ins.lg is None else min(ins.lg, n)
        def handle(x, w, pos, cands):
            nonlocal changed
            n = need(x)
            if not n: return
            assert fix, ("unwaited", x.key, {c: p.key for c, p in n.items()})
            changed = True
            for c, p in n.items():
                done = False
                for cw in cands:
                    if cw < 0 or cw == nm - 1 or cw not in hist: continue
                    snap = hist[cw][c]
                    if p not in snap: continue
                    fl = free[stat(cw)]
                    wi = [i for i in fl if i.kind == "wait"]
                    if not wi and fl and cw != cands[-1]: continue
                    if not wi:
                        wi = [Ins("", None, "wait")]; fl.insert(0, wi[0])
                    setw(wi[0], c, len(snap) - 1 - snap.index(p)); done = True; break
                if not done:
                    ins = pre.setdefault((stat(w), pos), Ins("", None, "wait"))
                    setw(ins, c, len(q[c]) - 1 - q[c].index(p))
                while p in q[c]:
                    d = q[c].pop(0)
                    for r in d.writes:
                        if pend.get(r) is d: del pend[r]
        for w in range(-1, nm):
            if w >= 0:
                if (stat(w), "m") in pre: dowait(pre[(stat(w), "m")])
                handle(mf[w], w, "m", [w - 1, w - 2])
            hist[w] = {c: list(v) for c, v in q.items()}
            hist.pop(w - 4, None)
            for ins in list(free[stat(w)]):
                if ins.kind == "wait": dowait(ins)
                elif ins.kind == "bar":
                    x = [y for y in wins[w] if y.kind == "bar"][0]
                    handle(x, w, "b", [w - 1, w - 2, w])
            for pos, x in enumerate(body(w)):
                if (stat(w), pos) in pre: dowait(pre[(stat(w), pos)])
                handle(x, w, pos, [w, w - 1])
                issue(x)
        return changed
    for _ in range(10):
        if not walk(True): break
    walk(False)
    for w in range(0, nm - 1):
        if stat(w) != w: continue
        for x in wins[w]:
            if x.kind != "salu": continue
            hiw = min([y.win - (1 if "m0" in x.writes or y.kind == "salu" else 0) for y, _, _ in x.succs if y.win is not None] + [w + 40, nm - 2])
            if L0 <= w < L0 + per: hiw = min(hiw, L0 + per - 3)
            elif w < L0: hiw = min(hiw, L0 - 1)
            hiw = max(hiw, w)
            c = [k for k in range(w, hiw + 1) if not free[k]]
            c2 = [k for k in c if body(k) and body(k)[0].kind in ("ds", "dma", "load", "store", "dsw")]
            k = c2[0] if c2 else (c[0] if c else w)
            free[k].append(Ins(x.text, x)); x.fw = k
    k = [k for k in range(L0 + per - 2, L0 + per) if not free[k]]
    k = k[0] if k else L0 + per - 1
    assert not any(i.kind == "salu" for kk in range(k, L0 + per) for i in free[kk])
    free[k].append(Ins(f"s_sub_u32 s{sCnt}, s{sCnt}, 1"))
    if cfg.nop_ds:
        for w in range(0, nm - 1):
            if stat(w) == w and not free[w] and body(w) and body(w)[0].kind in ("ds", "dma", "load", "store", "dsw"):
                free[w].append(Ins("s_nop 0", None, "nop"))
    def wtext(i):
        t = "s_waitcnt"
        if i.vm is not None: t += f" vmcnt({i.vm})"
        if i.lg is not None: t += f" lgkmcnt({i.lg})"
        return t
    code = {}
    for w in range(-1, nm):
        if stat(w) != w: continue
        l = []
        if w >= 0:
            if (w, "m") in pre: l.append(pre[(w, "m")])
            l.append(Ins(mf[w].text, mf[w]))
        l += free[w]
        for pos, x in enumerate(body(w)):
            if (w, pos) in pre: l.append(pre[(w, pos)])
            l.append(Ins(x.text, x))
        for i in l:
            if i.kind == "wait": i.text = wtext(i)
        code[w] = l
    def wcost(l, head=False):
        t = 0; base = 0; lastvalu = -99
        for i in l:
            if i.kind == "mfma": base = t; t += 4; continue
            if i.kind in ("salu", "wait", "bar", "nop"): t += 4; continue
            if i.kind == "nopx": t += 4 * (int(i.text.split()[1]) + 1); continue
            if not head: t = max(t, base + 8)
            if i.kind in ("valu", "trans"): t += i.op.cost; lastvalu = t
            else:
                t = max(t, lastvalu + 8) + i.op.cost
        return t if head else max(t, base + 16)
    def hazards(fix):
        seq = []
        changed = False
        for w in range(-1, nm):
            l = code[stat(w)]
            j = 0
            while j < len(l):
                i = l[j]; x = i.op
                needn = 0
                if x is not None and x.kind not in ("salu", "bar"):
                    dist = 0
                    for p, st, pwin in reversed(seq):
                        y = p.op
                        if y is not None:
                            req = 0
                            raw = set(y.writes) & set(x.reads); waw = set(y.writes) & set(x.writes); war = set(y.reads) & set(x.writes)
                            if y.kind == "mfma":
                                if x.kind == "mfma":
                                    nab = 8 if x.key[0] != "on" else 4
                                    if set(y.writes) & set(x.reads[:nab]): req = 8
                                elif raw or waw: req = 8
                                elif war and x.kind in ("valu", "trans") and set(y.writes) & set(x.writes): req = 3
                            elif y.kind in ("valu", "trans"):
                                if raw and x.kind == "mfma": req = 2
                                if raw and "permlane" in x.text: req = 2
                                if raw and y.kind == "trans" and x.kind != "trans": req = max(req, 1)
                            elif y.kind in ("store", "dsw") and war and y.cost == 20: req = 2
                            elif y.kind == "salu" and "m0" in y.writes and x.kind == "dma": req = 1
                            if req - dist > needn: needn = req - dist; pw = pwin
                        dist += st
                        if dist >= 8: break
                if needn > 0:
                    assert fix, ("hazard", x.key)
                    for k in range(w, pw - 1, -1):
                        if k < 0: break
                        lk = code[stat(k)]
                        mi = [n for n, z in enumerate(lk) if z.kind == "mfma"][0]
                        places = []
                        if k > pw and (k < w or j > mi): places.append(mi + 1)
                        if k < w: places.append(len(lk))
                        ok_ = False
                        for pl in places:
                            tr = lk[:pl] + [Ins("s_nop 0", None, "nopx")] + lk[pl:]
                            if wcost(tr) == wcost(lk): lk[:] = tr; ok_ = True; break
                        if ok_: return True
                    l.insert(j, Ins(f"s_nop {needn-1}", None, "nopx")); changed = True
                    continue
                st = int(i.text.split()[1]) + 1 if i.text.startswith("s_nop") else 1
                seq.append((i, st, w)); seq = seq[-10:]
                j += 1
        return changed
    while hazards(True): pass
    lastw = {}; seen = set()
    for w in range(-1, nm):
        it = (w - L0) // per if L0 <= w < L1 else 0
        for i in code[stat(w)]:
            if i.op is None: continue
            x = keys[norm(i.op.key, 8 * it)]
            assert x.text == i.text, (x.text, i.text)
            assert x.key not in seen; seen.add(x.key)
            if not x.dummy:
                for r in x.reads:
                    assert lastw.get(r) == x.prod.get(r), ("dataflow", x.key, r, lastw.get(r), x.prod.get(r))
            for r in x.writes: lastw[r] = x.key
    assert all(x.key in seen or x.dummy for x in rp), [x.key for x in rp if x.key not in seen and not x.dummy][:5]
    est = {}
    for s in range(0, last + 1):
        e = rstart.get(s + 1, nm)
        est[s] = (sum(wcost(code[stat(w)]) for w in range(rstart[s], e)), (e - rstart[s]) * 16)
    cfg.est = est; cfg.est_head = wcost(code[-1], True)
    out = []
    cfg.spins = []
    E = out.append
    stamp_at = getattr(cfg, "stamp_steps", [])
    inv = {v: k for k, v in rstart.items()}
    for w in range(-1, nm):
        if stat(w) != w: continue
        if w == L0: E("L_loop:")
        if w in inv:
            E(f"; ---- step {inv[w]} ----")
            if cfg.stamps and inv[w] in stamp_at:
                j = stamp_at.index(inv[w]); E(f"    s_memrealtime s[{64+2*j}:{65+2*j}]")
        for i in code[w]:
            if i.op is not None and i.op.key[0] in cfg.kill and (L0 if cfg.kill_from is None else cfg.kill_from) <= w: E("    s_nop 0")
            else: E("    " + i.text)
            if i.text.startswith("s_cbranch_vccnz L_spin"):
                n = i.text.split("L_spin")[1]; E(f"L_back{n}:"); cfg.spins.append(n)
        if w == L0 + per - 1: E("    s_cbranch_scc0 L_loop")
    return "\n".join(out)

def fbits(x): return struct.unpack("<I", struct.pack("<f", x))[0]

def head(cfg):
    T = vS
    h = f"""    s_load_dwordx4 s[4:7], s[0:1], 0          ; q, k
    s_load_dwordx4 s[8:11], s[0:1], 16        ; v, out
"""
    if cfg.stamps: h += f"    s_load_dwordx2 s[56:57], s[0:1], {32 if cfg.stamps == 'dbg' else 40}\n    s_memrealtime s[60:61]\n"
    h += f"""    v_lshrrev_b32 v{T}, 6, v0
    v_and_b32 v{T+4}, 63, v0                  ; lane
    v_readfirstlane_b32 s{sWave}, v{T}
    s_cmp_ge_u32 s2, 256
    s_cbranch_scc1 L_end
    v_and_b32 v{T+1}, 15, v0                  ; l & 15
    v_bfe_u32 v{T+2}, v0, 4, 2                ; l >> 4
    v_lshlrev_b32 v{vKl}, 4, v{T+4}           ; lane*16
    s_and_b32 s{sTmp}, s2, 7
    s_lshr_b32 s{sTmp+1}, s2, 3
    s_lshl_b32 s{sTmp}, s{sTmp}, 5
    s_add_u32 s{sTmp}, s{sTmp}, s{sTmp+1}
    s_lshl2_add_u32 s{sTmp+2}, s{sTmp}, s{sWave}
    s_lshl_b32 s{sTmp+2}, s{sTmp+2}, 16       ; q/o byte offset of this wave
    s_lshr_b32 s{sTmp}, s{sTmp}, 2
    s_lshl_b32 s{sTmp}, s{sTmp}, 17           ; k/v byte offset of the group
    s_lshl_b32 s{sMq}, s{sWave}, 12           ; wave*4096
    s_add_u32 s{sTmp+3}, s{sTmp}, s{sMq}
    s_sub_u32 s{sK_+2}, 0x20000, s{sMq}
    s_mov_b32 s{sK_+3}, 0x20000
    s_mov_b32 s{sQ_+3}, s{sK_+3}
    s_mov_b32 s{sQ_+2}, 0x10000
"""
    if cfg.rot:
        h += f"""    s_bfe_u32 s{sTmp+4}, s2, 0x20003
    s_mul_i32 s{sTile}, s{sTmp+4}, {cfg.rot*16384}
    s_and_b32 s{sTile}, s{sTile}, 0x1ffff
    s_add_u32 s{sTile+1}, s{sTile}, 16384
    s_and_b32 s{sTile+1}, s{sTile+1}, 0x1ffff
"""
    else: h += f"    s_mov_b32 s{sTile}, 0\n    s_movk_i32 s{sTile+1}, 0x4000\n"
    h += f"""    s_mov_b32 s{sQo}, 0
    v_lshlrev_b32 v{T+3}, 8, v{T+2}           ; (l>>4)*256
    v_xor_b32 v{T+5}, v{T+1}, v{T+2}          ; (l&15) ^ (l>>4)
    v_lshl_add_u32 v{vQd}, v{T+5}, 4, v{T+3}
    s_waitcnt lgkmcnt(0)
    s_add_u32 s{sK_}, s6, s{sTmp+3}
    s_addc_u32 s{sK_+1}, s7, 0
    s_add_u32 s{sQ_}, s4, s{sTmp+2}
    s_addc_u32 s{sQ_+1}, s5, 0
"""
    if cfg.stamps: h += "    s_memrealtime s[62:63]\n"
    return h

def head2(cfg):
    c = math.log2(math.e) / math.sqrt(128.0)
    T = vS
    h = f"""    ; code prefetch into L2: 16 lines per wave, 8 KiB per workgroup
    s_getpc_b64 s[{sC_}:{sC_+1}]
L_pc:
    s_mov_b32 s{sC_+2}, L_slow - L_pc
    s_mov_b32 s{sC_+3}, 0x20000
    s_bfe_u32 s{sTmp+1}, s2, 0x30003
    s_lshl2_add_u32 s{sTmp+1}, s{sTmp+1}, s{sWave}
    s_lshl_b32 s{sTmp+1}, s{sTmp+1}, 11
    v_lshlrev_b32 v{vJ}, 5, v{T+4}
    v_add_u32 v{vJ}, s{sTmp+1}, v{vJ}
@CPF
    s_add_u32 s{sV_}, s8, s{sTmp}
    s_addc_u32 s{sV_+1}, s9, 0
    s_add_u32 s{sO_}, s10, s{sTmp+2}
    s_addc_u32 s{sO_+1}, s11, 0
    s_mov_b32 s{sV_+2}, 0x20000
    s_mov_b32 s{sV_+3}, 0x20000
    s_mov_b32 s{sO_+2}, 0x10000
    s_mov_b32 s{sO_+3}, 0x20000
"""
    for t in range(2, 8):
        if cfg.rot: h += f"    s_add_u32 s{sTile+t}, s{sTile+t-1}, 16384\n    s_and_b32 s{sTile+t}, s{sTile+t}, 0x1ffff\n"
        else: h += f"    s_mov_b32 s{sTile+t}, {t*16384}\n"
    h += f"""    s_add_u32 s{sM0}, s{sMq}, 0x18000
    s_add_u32 s{sM0+1}, s{sMq}, 0x1c000
    s_add_u32 s{sM0+2}, s{sMq}, 0x20000
    s_add_u32 s{sM0+3}, s{sMq}, 0x24000
    s_mov_b32 s{sOo}, 0
    s_mov_b32 s{sExp}, 0
    s_mov_b32 s{sCnt}, 2
    s_mov_b32 s{sScale}, {fbits(c):#x}
    ; K fragment read addresses: g*256 + (key ^ g ^ 4*(ds&1))*16
    v_mov_b32 v{vKr}, v{vQd}
    v_xor_b32 v{vKr+1}, 64, v{vQd}
    v_add_u32 v{vKr+2}, 0x10000, v{vKr}
    v_add_u32 v{vKr+3}, 0x10000, v{vKr+1}
    v_and_b32 v{T+6}, 7, v{T+5}
    v_lshlrev_b32 v{T+7}, 8, v{T+1}           ; (l&15)*256
    v_lshl_add_u32 v{T+6}, v{T+6}, 4, v{T+7}
    v_add_u32 v{vKw}, s{sMq}, v{T+6}
    v_xor_b32 v{vKw+1}, 64, v{vKw}
    v_and_b32 v{T+6}, 3, v{T+5}
    v_lshl_add_u32 v{T+6}, v{T+6}, 4, v{T+7}
    v_add_u32 v{vQr}, s{sMq}, v{T+6}
    ; V DMA source offsets: row r=l>>4, unit (c16>>1)^(key&7)
    v_lshrrev_b32 v{T+6}, 1, v{T+1}
    v_xor_b32 v{T+6}, v{T+6}, v{T+2}
    v_lshl_add_u32 v{T+6}, v{T+6}, 5, v{T+3}
    v_and_b32 v{T+8}, 1, v{T+1}
    v_lshl_add_u32 v{T+6}, v{T+8}, 4, v{T+6}
    v_add_u32 v{vD0}, s{sMq}, v{T+6}
    v_xor_b32 v{vD1}, 0x80, v{vD0}
    ; V transposed-read addresses: lane = 16g+4r+c
    v_lshrrev_b32 v{T+8}, 2, v{T+4}           ; 4g+r
    v_and_b32 v{T+6}, 7, v{T+8}
    v_lshlrev_b32 v{T+6}, 5, v{T+6}
    v_lshl_add_u32 v{T+6}, v{T+8}, 8, v{T+6}
    v_and_b32 v{T+9}, 3, v{T+4}
    v_lshl_add_u32 v{T+6}, v{T+9}, 3, v{T+6}
    v_add_u32 v{vV}, 0x18000, v{T+6}
"""
    for db in range(1, 8): h += f"    v_xor_b32 v{vV+db}, {db*32}, v{vV}\n"
    if cfg.store_x4:
        h += f"""    v_and_b32 v{T+6}, 1, v{T+2}
    v_lshl_add_u32 v{vO}, v{T+6}, 5, v{T+7}
    v_lshrrev_b32 v{T+6}, 1, v{T+2}
    v_lshl_add_u32 v{vO}, v{T+6}, 4, v{vO}
"""
    else:
        h += f"    v_lshl_add_u32 v{vO}, v{T+2}, 3, v{T+7}\n"
    h += f"""    v_cmp_eq_u32 vcc, 0, v{T+9}
    v_mov_b32 v{T+6}, 0x3f803f80
    v_mov_b32 v{vChk}, {'-1' if cfg.force_slow else '0'}
    v_cndmask_b32 v{T+6}, 0, v{T+6}, vcc
    v_lshlrev_b32 v{vCnt}, 2, v{T+4}
    v_add_u32 v{vCnt}, 0x4000, v{vCnt}
    v_accvgpr_write_b32 a{aOne}, v{T+6}
    v_accvgpr_write_b32 a{aOne+1}, v{T+6}
    v_accvgpr_write_b32 a{aOne+2}, v{T+6}
    v_accvgpr_write_b32 a{aOne+3}, v{T+6}
    v_accvgpr_write_b32 a{aCone}, 1
    v_accvgpr_write_b32 a{aCone+1}, 0
"""
    return h

def tail(cfg):
    lim = (127 + cfg.limit_exp) << 23
    t = ""
    if cfg.stamps == "spin":
        t += """L_spin:
    s_memrealtime s[72:73]
    s_waitcnt lgkmcnt(0)
    s_sub_u32 s72, s72, s60
    s_cmp_lt_u32 s72, 10000
    s_cbranch_scc1 L_spin
"""
    elif cfg.stamps:
        e0 = 88 if cfg.stamps == "c16" else 72
        t += f"""    s_memrealtime s[{e0}:{e0+1}]
    s_waitcnt vmcnt(0)
    s_memrealtime s[{e0+2}:{e0+3}]
    s_mov_b32 s58, 0x10000000
    s_mov_b32 s59, 0x20000
    s_lshl_b32 s46, s2, 2
    s_add_u32 s46, s46, s3
    s_lshl_b32 s46, s46, 6
    s_waitcnt lgkmcnt(0)
"""
        for i in range(16): t += f"    v_mov_b32 v{64+i}, s{60+(2*i if cfg.stamps == 'c16' else i)}\n"
        t += "    v_mov_b32 v60, 0\n    s_mov_b64 exec, 1\n"
        if cfg.stamps == "dbg":
            t += "    s_mov_b32 s58, 256\n"
            for i in range(8):
                t += f"    v_not_b32 v{65+2*i}, v{64+2*i}\n"
            for i in range(16): t += f"    buffer_atomic_umax v{64+i}, v60, s[56:59], 0 offen offset:{4*i}\n"
        else:
          for i in range(4): t += f"    buffer_store_dwordx4 v[{64+4*i}:{67+4*i}], v60, s[56:59], s46 offen offset:{16*i}\n"
        t += "    s_mov_b64 exec, -1\n"
    t += f"""    v_cmp_lt_u32 vcc, {lim:#x}, v{vChk}
    s_nop 4
    s_cbranch_vccnz L_slow
L_end:
    s_endpgm
"""
    for n in cfg.spins:
        t += f"""L_spin{n}:
    ds_read_b32 v{vPoll}, v{vCnt}
    s_waitcnt lgkmcnt(0)
    v_cmp_gt_u32 vcc, s{sExp}, v{vPoll}
    s_nop 4
    s_cbranch_vccnz L_spin{n}
    s_branch L_back{n}
"""
    S0, S1, M, T = 16, 20, 24, 25
    vQ = vQd; vKb = vKr + 2
    q = lambda ds: at(aQ + 4 * ds, 4)
    k = lambda j, ds: at(aK + j * 16 + 4 * ds, 4)
    t += f"""; Fallback: a row sum left [2^-{cfg.limit_exp}, 2^{cfg.limit_exp}] (or is not finite), so exp without an offset was not safe.
; This wave recomputes its 256 rows subtracting the true row maximum.  K is still in LDS; V goes through a private 8 KiB.
L_slow:
    s_waitcnt vmcnt(0) lgkmcnt(0)
    s_barrier                                 ; the other waves are done with LDS (ended or here)
    s_mov_b32 s{sQo}, 0
    s_lshl_b32 s{sTmp}, s{sWave}, 12
    s_lshl_b32 s{sTmp+1}, s{sWave}, 13
    s_add_u32 s{sTmp+2}, s{sTmp+1}, 0x20000
    s_add_u32 s{sTmp+3}, s{sTmp+2}, 4096
    v_subrev_u32 v{vD0}, s{sTmp}, v{vD0}
    v_subrev_u32 v{vD1}, s{sTmp}, v{vD1}
"""
    for db in range(8): t += f"    v_add_u32 v{vV+db}, s{sTmp+1}, v{vV+db}\n"
    for kb in range(4):
        for ds in range(4): t += f"    ds_write_b128 v{vKr+(ds&1)}, {at(aKp+kb*16+ds*4,4)} offset:{kb*4096+ds*1024}\n"
    t += f"""    ds_write_b128 v{vKr}, {at(aKp1,4)} offset:16384
    v_bfe_u32 v{T}, v{vKl}, 4, 4
    v_lshrrev_b32 v{vQ}, 8, v{vKl}
    v_lshlrev_b32 v{vQ}, 4, v{vQ}
    v_lshl_add_u32 v{vQ}, v{T}, 8, v{vQ}
"""
    t += "L_sblk:\n"
    for ds in range(4): t += f"    buffer_load_dwordx4 {q(ds)}, v{vQ}, s[{sQ_}:{sQ_+3}], s{sQo} offen offset:{ds*64}\n"
    t += f"""    v_mov_b32 v{M}, 0xff800000
    v_mov_b32 v{vKb}, v{vKr}
    v_mov_b32 v{vKb+1}, v{vKr+1}
    s_mov_b32 s{sCnt}, 32
    s_waitcnt vmcnt(0)
L_smax:
"""
    for ds in range(4): t += f"    ds_read_b128 {k(0,ds)}, v{vKb+(ds&1)} offset:{ds*1024}\n"
    t += "    s_waitcnt lgkmcnt(0)\n"
    for ds in range(4): t += f"    v_mfma_f32_16x16x32_bf16 {vt(S0,4)}, {k(0,ds)}, {q(ds)}, {'0' if ds == 0 else vt(S0,4)}\n"
    t += f"""    s_nop 7
    v_max3_f32 v{M}, v{M}, v{S0}, v{S0+1}
    v_max3_f32 v{M}, v{M}, v{S0+2}, v{S0+3}
    v_add_u32 v{vKb}, 4096, v{vKb}
    v_add_u32 v{vKb+1}, 4096, v{vKb+1}
    s_sub_u32 s{sCnt}, s{sCnt}, 1
    s_cmp_lg_u32 s{sCnt}, 0
    s_cbranch_scc1 L_smax
    v_mov_b32 v{T}, v{M}
    s_nop 1
    v_permlane16_swap_b32 v{M}, v{T}
    s_nop 1
    v_max_f32 v{M}, v{M}, v{T}
    v_mov_b32 v{T}, v{M}
    s_nop 1
    v_permlane32_swap_b32 v{M}, v{T}
    s_nop 1
    v_max_f32 v{M}, v{M}, v{T}
"""
    for r in range(4): t += f"    v_mov_b32 v{vL+r}, 0\n"
    for r in range(32): t += f"    v_mov_b32 v{vOa+r}, 0\n"
    t += f"""    v_mov_b32 v{vKb}, v{vKr}
    v_mov_b32 v{vKb+1}, v{vKr+1}
    s_mov_b32 s{sCnt}, 0
L_skey:
    s_mov_b32 m0, s{sTmp+2}
    s_add_u32 s{sTmp+5}, s{sCnt}, s{sTile}    ; keys are stored rotated
    s_and_b32 s{sTmp+5}, s{sTmp+5}, 0x1ffff
    s_add_u32 s{sTmp+4}, s{sTmp+5}, 4096
"""
    for i in range(4): t += f"    buffer_load_dwordx4 v{vD0+(i&1)}, s[{sV_}:{sV_+3}], s{sTmp+5} offen offset:{i*1024} lds\n"
    t += f"    s_mov_b32 m0, s{sTmp+3}\n    s_nop 0\n"
    for i in range(4): t += f"    buffer_load_dwordx4 v{vD0+(i&1)}, s[{sV_}:{sV_+3}], s{sTmp+4} offen offset:{i*1024} lds\n"
    for j in range(2):
        for ds in range(4): t += f"    ds_read_b128 {k(j,ds)}, v{vKb+(ds&1)} offset:{j*4096+ds*1024}\n"
    t += "    s_waitcnt vmcnt(0) lgkmcnt(0)\n"
    for db in range(8):
        for h in range(2): t += f"    ds_read_b64_tr_b16 {at(aV+db*4+2*h,2)}, v{vV+db} offset:{32768+h*4096}\n"
    for j, S in enumerate((S0, S1)):
        for ds in range(4): t += f"    v_mfma_f32_16x16x32_bf16 {vt(S,4)}, {k(j,ds)}, {q(ds)}, {'0' if ds == 0 else vt(S,4)}\n"
    t += "    s_nop 7\n"
    for r in range(8): t += f"    v_sub_f32 v{S0+r}, v{S0+r}, v{M}\n"
    for r in range(8): t += f"    v_exp_f32 v{S0+r}, v{S0+r}\n"
    t += "    s_nop 0\n"
    for r in range(4): t += f"    v_cvt_pk_bf16_f32 v{vP+r}, v{S0+2*r}, v{S0+2*r+1}\n"
    t += f"    v_add_u32 v{vKb}, 8192, v{vKb}\n    v_add_u32 v{vKb+1}, 8192, v{vKb+1}\n    s_waitcnt lgkmcnt(0)\n    s_nop 0\n"
    t += f"    v_mfma_f32_16x16x32_bf16 {vt(vL,4)}, {at(aOne,4)}, {vt(vP,4)}, {vt(vL,4)}\n"
    for db in range(8): t += f"    v_mfma_f32_16x16x32_bf16 {vt(vOa+4*db,4)}, {at(aV+db*4,4)}, {vt(vP,4)}, {vt(vOa+4*db,4)}\n"
    t += f"""    s_add_u32 s{sCnt}, s{sCnt}, 8192
    s_cmp_lt_u32 s{sCnt}, 0x20000
    s_cbranch_scc1 L_skey
    s_nop 7
    v_rcp_f32 v{vR}, v{vL}
    s_nop 0
"""
    for r in range(32): t += f"    v_mul_f32 v{vOa+r}, v{vOa+r}, v{vR}\n"
    for db in range(8):
        o = vOa + 4 * db; d = vP + 2 * db
        t += f"    v_cvt_pk_bf16_f32 v{d}, v{o}, v{o+1}\n    v_cvt_pk_bf16_f32 v{d+1}, v{o+2}, v{o+3}\n"
    if cfg.store_x4:
        t += "    s_nop 1\n"
        for db in range(0, 8, 2):
            d = vP + 2 * db
            t += f"    v_permlane16_swap_b32 v{d}, v{d+2}\n    v_permlane16_swap_b32 v{d+1}, v{d+3}\n"
            t += f"    buffer_store_dwordx4 {vt(d,4)}, v{vO}, s[{sO_}:{sO_+3}], s{sQo} offen offset:{db*32}\n"
    else:
        for db in range(8): t += f"    buffer_store_dwordx2 {vt(vP+2*db,2)}, v{vO}, s[{sO_}:{sO_+3}], s{sQo} offen offset:{db*32}\n"
    t += f"""    s_add_u32 s{sQo}, s{sQo}, 4096
    s_cmp_lt_u32 s{sQo}, 0x10000
    s_waitcnt vmcnt(0)
    s_cbranch_scc1 L_sblk
    s_endpgm
"""
    return t

HDR = """; Kernarg layout for this problem (48 bytes, ptrs only, base s[0:1]):
;   offset   0: d_in[0] q  shape=(16, 32, 512, 128) dtype=bfloat16
;   offset   8: d_in[1] k  shape=(16, 4, 512, 128) dtype=bfloat16
;   offset  16: d_in[2] v  shape=(16, 4, 512, 128) dtype=bfloat16
;   offset  24: d_out     shape=(16, 32, 512, 128) dtype=bfloat16
;   offset  32: d_debug   256 bytes
;   offset  40: d_ws      268435456 bytes workspace (unused)
; @launch grid=(256,1,1) block=(256,1,1) lds=163840
"""

def full(cfg):
    body = generate(cfg)
    r = full2(cfg, body)
    if cfg.stamps in ("cyc", "c16"): r = r.replace("s_memrealtime", "s_memtime")
    if cfg.stamps == "both":
        import re
        r = re.sub(r"    s_memrealtime s\[(\d+):(\d+)\]", lambda m: f"    s_memtime s[{m.group(1)}:{m.group(2)}]\n    s_memrealtime s[{int(m.group(1))+20}:{int(m.group(2))+20}]", r)
        for i in range(8): r = r.replace(f"v_mov_b32 v{65+2*i}, s{61+2*i}\n", f"v_mov_b32 v{65+2*i}, s{80+2*i}\n")
    return r

def full2(cfg, body):
    return HDR + f""".amdgcn_target "amdgcn-amd-amdhsa--gfx950"
.text
.globl {KN}
.p2align 8
.type {KN},@function
{KN}:
""" + head(cfg) + body + "\n" + tail(cfg) + f""".section .rodata,"a"
.p2align 6
.amdhsa_kernel {KN}
  .amdhsa_next_free_vgpr 512
  .amdhsa_next_free_sgpr 102
  .amdhsa_accum_offset 256
  .amdhsa_group_segment_fixed_size 0
  .amdhsa_kernarg_size 48
  .amdhsa_user_sgpr_count 2
  .amdhsa_user_sgpr_kernarg_segment_ptr 1
  .amdhsa_system_sgpr_workgroup_id_x 1
.end_amdhsa_kernel
"""

if __name__ == "__main__":
    cfg = Cfg()
    name = sys.argv[1]
    for a in sys.argv[2:]:
        k, v = a.split("=", 1)
        try: v = eval(v)
        except Exception: pass
        setattr(cfg, k, v)
    s = full(cfg)
    open(name, "w").write(s)
    tot = sum(v[0] for v in cfg.est.values())
    print(name, "est head", cfg.est_head, "total", tot, "mfma", sum(v[1] for v in cfg.est.values()), file=sys.stderr)
    print(" ".join(f"{s}:{v[0]}/{v[1]}" for s, v in cfg.est.items() if s < 16 or s >= 32), file=sys.stderr)
```

```python
import sys, math, struct
KN = "standalone__gqa_softmax__near_ridge_kernel"

class Cfg:
    sigma = (0, 2, 4, 6)
    beta = 0.80
    beta_small = 0.55
    ds_lat = 9
    mv_lat = 4
    store_x4 = True
    q_nt = "nt"
    st_pol = "sc0 sc1"
    k_pol = "nt"
    v_pol = ""
    v_pol0 = "nt"
    rot = 0
    split_from = 3
    split_min_u = 2
    arr_gap = 10
    vm_gap = 5
    smooth = True
    stamps = False
    code_pf = True
    plan = "K0 Q0 C K1 W00 V0 S0 B r0 r1 R0 K2 S1@0.0 V1@0.0 Q1@0.5 K3@1.0 V2@1.3 K4@1.6 R1@2.0 Q2@2.2 V3@2.3 K5@2.b K6@3.b R2@3.b Q3@4.0 K7@4.b R3@5.b Q4@6.0"
    deep = True
    tail_dl = 1.0
    betas = {0: 0.95, 1: 0.9, 2: 0.9, 3: 0.8}
    arr_gap_small = 4
    k_up = 1
    force_slow = False
    nop_ds = True
    ds_gap = 2
    ds_cap = 1024
    kill_from = None
    kill = ()
    limit_exp = 32

vQd, vO, vQr, vCnt, vD0, vD1, vChk = 1, 2, 3, 4, 5, 6, 7
vKl = 0
vV = 8
vS = 16
vL = 32
vR = 48
vKw = 50
vT = 52
NT = 6
vPoll = 58
vJ = 59
vKr = 60
vP = 64
vOa = 128
aQ, aOne, aCone, aKp1, aK, aKp, aV = 0, 64, 68, 72, 80, 128, 192
sQ_, sK_, sV_, sO_, sC_ = 12, 16, 20, 24, 28
sTile = 32
sM0 = 96
sQo, sOo, sCnt, sScale, sWave = 42, 43, 44, 45, 3
sTmp = 46
sMq, sExp = 52, 53

def vr(b, n=1): return [f"v{b+i}" for i in range(n)]
def ar(b, n=1): return [f"a{b+i}" for i in range(n)]
def vt(b, n): return f"v[{b}:{b+n-1}]"
def at(b, n): return f"a[{b}:{b+n-1}]"

class Op:
    def __init__(s, key, text, kind, reads, writes, cost=None, earliest=None, dummy=False, anchor=None, maxdl=None):
        s.key, s.text, s.kind, s.reads, s.writes = key, text, kind, list(reads), list(writes)
        s.cost = {"mfma": 0, "trans": 8, "valu": 4, "ds": 4, "dsw": 20, "load": 8, "dma": 8, "store": 12, "salu": 0, "bar": 0, "chk": 0}[kind] if cost is None else cost
        s.cnt = {"ds": "lgkm", "dsw": "lgkm", "load": "vm", "dma": "vm", "store": "vm"}.get(kind)
        s.earliest = earliest
        s.maxdl = maxdl
        s.dummy = dummy
        s.anchor = anchor
        s.preds = []; s.succs = []; s.win = None; s.pos = None; s.m = None
        s.prod = {}

def build(cfg, s0, s1, steady):
    sg = cfg.sigma
    NP = 4
    last = 32 + max(sg)
    def qk_on(s, u): return steady or (sg[u] <= s < sg[u] + 8 * NP)
    def pv_on(s, u): return steady or (sg[u] + 1 <= s < sg[u] + 8 * NP + 1)
    def order_qk(s, kb):
        us = [u for u in range(4) if qk_on(s, u)]
        if kb == 3:
            f = [u for u in us if (s - sg[u]) % 8 == 7]
            us = f + [u for u in us if u not in f]
        if kb == 0:
            f = [u for u in us if (s - sg[u]) % 8 == 0]
            us = [u for u in us if u not in f] + f
        return us
    prog = []
    A = prog.append
    chain = 0
    pend_q = []
    def qload(key, earliest=None, dummy=False):
        A(Op(key + ("m0",), f"s_mov_b32 m0, s{sMq}", "salu", [], ["m0"], dummy=dummy))
        for i in range(4):
            A(Op(key + (i,), f"buffer_load_dwordx4 v{vQd}, s[{sQ_}:{sQ_+3}], s{sQo} offen offset:{i*1024} {cfg.q_nt} lds".replace("  ", " "), "dma",
                 [f"s{sQo}", "m0"] + [f"Qrd{d}" for d in range(4)], [f"Qs{i}"], earliest=earliest, dummy=dummy))
        A(Op(key + ("inc",), f"s_add_u32 s{sQo}, s{sQo}, 4096", "salu", [f"s{sQo}"], [f"s{sQo}"], dummy=dummy))
    def qread(key, u, earliest=None, dummy=False):
        for ds in range(4):
            d = aQ + 16 * u + 4 * ds
            A(Op(key + (ds,), f"ds_read_b128 {at(d,4)}, v{vQr} offset:{ds*64}", "ds", [f"Qs{i}" for i in range(4)], ar(d, 4) + [f"Qrd{ds}"], earliest=earliest, dummy=dummy))
    def kfrag(t, kb, ds):
        if t == 0: return aKp + kb * 16 + ds * 4
        if (t, kb, ds) == (1, 0, 0): return aKp1
        return aK + (((t - 1) * 4 + kb) % 3) * 16 + ds * 4
    def vslot(sv):
        if not steady and cfg.deep and sv in (2, 3, 34, 35): return sv & 1
        return 2 + (sv & 1)
    def vprev(sv):
        if vslot(sv) < 2: return ["Kret67"] if sv > 8 else []
        p = sv - 2
        while p >= 0 and vslot(p) != vslot(sv): p -= 2
        return [f"Vret{p}"] if p >= 0 else []
    vissued = set()
    def vdma(sv, earliest=None):
        vissued.add(sv)
        A(Op(("m0", sv), f"s_mov_b32 m0, s{sM0 + vslot(sv)}", "salu", ["setup~"], ["m0"]))
        for i in range(4):
            A(Op(("dma", sv, i), f"buffer_load_dwordx4 v{vD0 + (i & 1)}, s[{sV_}:{sV_+3}], s{sTile + sv % 8} offen offset:{i*1024} {cfg.v_pol0 if (not steady and sv < 8) else cfg.v_pol} lds".replace("  ", " "), "dma",
                 ["m0"] + vprev(sv), [f"Vd{sv}_{i}"], earliest=earliest))
    kstage = {}
    def kregs(t):
        u = KST[t][0]; h = KST[t][1]
        if h == "P": return [vP + ds * 16 + u * 4 for ds in range(4)]
        return [vOa + (h * 4 + ds) * 16 + u * 4 for ds in range(4)]
    KST = [(1, 0), (1, 1), (2, 0), (2, 1), (3, 0), (3, 1), (3, "P"), (3, 0)]
    if cfg.k_up == 8: KST = [(0, 0), (0, 1), (1, 0), (1, 1), (2, 0), (2, 1), (3, 0), (3, 1)]
    def kload(t, earliest=None):
        for ds, r in enumerate(kregs(t)):
            A(Op(("kld", t, ds), f"buffer_load_dwordx4 {vt(r,4)}, v{vKl}, s[{sK_}:{sK_+3}], s{sTile + t} offen offset:{ds*1024} {cfg.k_pol}".rstrip(), "load",
                 [], vr(r, 4), earliest=earliest))
    tmpc = [0]
    def kscale(t, earliest=None):
        for ds, r in enumerate(kregs(t)):
            for j in range(4):
                x = r + j; tm = vT + tmpc[0] % NT; tmpc[0] += 1
                k = ("ksc", t, ds, j)
                A(Op(k + (0,), f"v_lshlrev_b32 v{tm}, 16, v{x}", "valu", vr(x), vr(tm), earliest=earliest))
                A(Op(k + (1,), f"v_and_b32 v{x}, 0xffff0000, v{x}", "valu", vr(x), vr(x), earliest=earliest))
                A(Op(k + (2,), f"v_mul_f32 v{tm}, s{sScale}, v{tm}", "valu", vr(tm), vr(tm)))
                A(Op(k + (3,), f"v_mul_f32 v{x}, s{sScale}, v{x}", "valu", vr(x), vr(x)))
                A(Op(k + (4,), f"v_cvt_pk_bf16_f32 v{x}, v{tm}, v{x}", "valu", vr(tm) + vr(x), vr(x)))
            tl = 3 if t == 0 else t
            if t == 4 and ds < 2:
                A(Op(("kwa", t, ds), f"v_add_u32 v{vKw + ds}, 0x10000, v{vKw + ds}", "valu", vr(vKw + ds), vr(vKw + ds)))
            A(Op(("kw", t, ds), f"ds_write_b128 v{vKw + (ds & 1)}, {vt(r,4)} offset:{(tl & 3) * 16384 + (ds >> 1) * 128}", "dsw",
                 vr(r, 4) + vr(vKw + (ds & 1)) + (["K0dead"] if t == 3 else []) + ([f"Vret{t-4}"] if t >= 6 and cfg.deep else []), [f"Kw{t}_{ds}"]))
    nmf = [0]
    kpub = set()
    def kread1(s, t, kb):
        for ds in range(4):
            perm = t == 0 or (t, kb, ds) == (1, 0, 0)
            if perm and (steady or s > 7): continue
            d = kfrag(t, kb, ds); tl = 3 if t == 0 else t
            A(Op(("kr", s, kb, ds), f"ds_read_b128 {at(d,4)}, v{vKr + 2 * (tl >> 2) + (ds & 1)} offset:{(tl & 3) * 16384 + kb * 4096 + ds * 1024}", "ds",
                 [] if (steady or s > 7) else [f"Kok{t}"], ar(d, 4) + ([] if not perm else [f"Kr0_{kb}_{ds}" if t == 0 else "Kr1"])))
    kdone0 = set(); kscaled = []
    later = {}
    if not steady:
        H = (-1, 0)
        def issue(item, when):
            n0 = len(prog)
            n = int(item[1:]) if item[1:].isdigit() else None
            if item[0] == "K": kload(n, when)
            elif item[0] == "Q": qload(("q0", n) if n < 4 else ("q", 8, 0), when)
            elif item[0] == "R": qread(("qr0", n), n, when)
            elif item[0] == "V": vdma(n, when)
            elif item[0] == "S": kscale(n, when); kscaled.append(n)
            elif item[0] == "r": kread1(0, 0, n); kdone0.add(n)
            elif item[0] == "W":
                A(Op(("wt", 0, item), "s_nop 0", "valu", vr(kregs(int(item[1]))[int(item[2])], 4), []))
            elif item[0] == "B":
                pub = [t for t in kscaled if t not in kpub]; kpub.update(pub)
                A(Op(("bar", -1), "s_barrier", "bar", [f"Kw{t}_{ds}" for t in pub for ds in range(4)], [f"Kok{t}" for t in pub], anchor=H))
            elif item[0] == "C":
                pf = f"buffer_load_dword v{vJ}, v{vJ}, s[{sC_}:{sC_+3}], 0 offen"
                A(Op(("cpf", 0), head2(cfg).replace("@CPF", "    " + pf).strip(), "load", [], ["junk"], earliest=when, cost=300))
                A(Op(("setup", 0), "s_nop 0", "valu", [], ["setup~", f"s{sExp}"]))
            if when == H:
                for x in prog[n0:]: x.maxdl = H
        for item in cfg.plan.split():
            if "@" not in item: issue(item, H)
            else:
                it, pos = item.split("@"); st, fr = pos.split(".")
                later.setdefault(int(st), []).append((it, fr))
    for s in range(s0, s1):
        t = s % 8
        uq = [u for u in range(4) if qk_on(s, u)]
        up = order_qk(s - 1, 3) if (steady or s > 0) else []
        up = [u for u in up if pv_on(s, u)]
        qk = [(kb, u) for kb in range(4) for u in order_qk(s, kb)]
        pv = []
        fin = [u for u in up if (s - 1 - sg[u]) % 8 == 7]
        ones_order = fin + [u for u in up if u not in fin]
        for db in range(8):
            for u in up: pv.append(("pv", db, u))
        npv = len(pv)
        ins = {}
        for i, u in enumerate(ones_order):
            if u in fin: p = len(up)
            else: p = len(up) + (npv - len(up)) * i // max(1, len(ones_order))
            ins.setdefault(p, []).append(("one", 0, u))
        pv2 = []
        for i, c in enumerate(pv):
            pv2 += ins.get(i, []); pv2.append(c)
        pv = pv2
        seq = []
        if qk:
            j = 0
            lag = 1 if len(uq) <= 2 and pv else 0
            for i, c in enumerate(qk):
                seq.append(("qk",) + c)
                tgt = math.ceil(max(0, i + 1 - lag) * len(pv) / (len(qk) - lag))
                while j < tgt: seq.append(pv[j]); j += 1
        else:
            seq = pv
        nm = sum(4 if c[0] == "qk" else 2 for c in seq)
        beta = cfg.beta if len(uq) >= 3 else cfg.beta_small
        barpos = int(beta * nm)
        if not steady and s in cfg.betas: barpos = int(cfg.betas[s] * nm)
        vdone = set(); kdone = set(kdone0) if (s == 0 and not steady) else set(); bar_done = False
        Pw = vP + 32 * (s & 1); Pr = vP + 32 * ((s - 1) & 1)
        def vreads(db):
            if db in vdone: return
            vdone.add(db)
            for ks in range(2):
                for h in range(2):
                    d = aV + db * 8 + ks * 4 + h * 2
                    A(Op(("vr", s, db, ks, h), f"ds_read_b64_tr_b16 {at(d,2)}, v{vV+db} offset:{vslot(s-1)*16384 + ks*8192 + h*4096}", "ds",
                         [f"Vok{s-1}"], ar(d, 2) + [f"Vr{s-1}_{db}_{ks}_{h}"]))
        def kreads(kb):
            if kb in kdone: return
            kdone.add(kb); kread1(s, t, kb)
        def barrier():
            rd = []; wr = []
            pubv, retv, nxt = [s], [s - 1], [s + 1]
            if not steady:
                if cfg.deep:
                    retv = {1: [], 2: [0], 3: [1], 4: [2], 5: [3, 4], 35: []}.get(s, retv)
                    pubv = {34: [34, 35], 35: [36, 37]}.get(s, pubv)
                    nxt = {0: [], 1: [], 2: [4], 3: [5], 4: [], 32: [33, 34, 35], 33: [36], 34: [37], 35: []}.get(s, nxt)
                    if s == 32: wr.append("Kret67")
                    if s >= 36: return
                if s >= last: return
                nxt = [v for v in nxt if v < last and v not in vissued and not any(it == f"V{v}" for l in later.values() for it, _ in l)]
            for v in retv:
                if v < 0: continue
                if v == s - 1:
                    for db in range(8): vreads(db)
                rd += [f"Vr{v}_{db}_{ks}_{h}" for db in range(8) for ks in range(2) for h in range(2)]
                wr.append(f"Vret{v}")
            for v in pubv:
                assert steady or v in vissued, v
                rd += [f"Vd{v}_{i}" for i in range(4)]; wr.append(f"Vok{v}")
            if not steady and s + 1 <= 7 and s + 1 not in kpub:
                if s + 1 not in kscaled: kscale(s + 1, ((s - 1, "bar") if s >= 1 else (-1, 0))); kscaled.append(s + 1)
                kpub.add(s + 1)
                rd += [f"Kw{s+1}_{ds}" for ds in range(4)]; wr.append(f"Kok{s+1}")
            if not steady and s == 1:
                rd += [f"Kr0_{kb}_{ds}" for kb in range(4) for ds in range(4)]; wr.append("K0dead")
                rd.append("Kr1"); wr.append("Cdead")
            if not steady and s == 2: rd.append("Czero")
            if (steady or s >= cfg.split_from) and len(uq) >= cfg.split_min_u:
                ag = cfg.arr_gap if len(uq) >= 3 else cfg.arr_gap_small
                A(Op(("arr", s), f"ds_add_u32 v{vCnt}, a{aCone}", "dsw", rd, ["Carr"], cost=8, anchor=(s, "bar", -ag - cfg.ds_lat - 1)))
                A(Op(("exp", s), f"s_add_u32 s{sExp}, s{sExp}, 4", "salu", [f"s{sExp}"], [f"s{sExp}"]))
                A(Op(("pol", s), f"ds_read_b32 v{vPoll}, v{vCnt}", "ds", ["Carr~"], vr(vPoll), anchor=(s, "bar", -cfg.ds_lat - 1)))
                A(Op(("cmp", s), f"v_cmp_gt_u32 vcc, s{sExp}, v{vPoll}", "valu", vr(vPoll) + [f"s{sExp}"], ["vcc"], anchor=(s, "bar", -2)))
                A(Op(("bar", s), f"s_cbranch_vccnz L_spin{s if (not steady and (s < 8 or s >= 32)) else 8 + s % 8}", "bar", ["vcc"] + vr(vPoll) + [f"s{sExp}"], wr, anchor=(s, "bar")))
            else:
                A(Op(("bar", s), "s_barrier", "bar", rd, wr, anchor=(s, "bar")))
            if not steady and s == 1:
                A(Op(("cz", 1), f"ds_write_b32 v{vCnt}, a{aCone + 1}", "dsw", ["Cdead"], ["Czero"], cost=8))
            for v in nxt: vdma(v, None)
            for it, fr in later.get(s, []):
                if fr == "b": issue(it, (s, "bar"))
        todo_items = [(it, int(fr) / 10 ** len(fr)) for it, fr in later.get(s, []) if fr != "b"]
        mcount = 0
        for c in seq:
            if not bar_done and mcount >= barpos:
                barrier(); bar_done = True
            while todo_items and mcount >= todo_items[0][1] * nm:
                issue(todo_items.pop(0)[0], (s, "off", mcount))
            if c[0] == "qk":
                _, kb, u = c
                kreads(kb)
                if kb == 0 and (s - sg[u]) % 8 == 0 and (steady or s - sg[u] >= 8):
                    qread(("qr", s, u), u)
                    un = (u + 1) % 4; sn = s + (sg[un] - sg[u]) % 8
                    pend_q.append((("q", sn, un), not steady and sn - sg[un] >= 8 * NP))
                    if True:
                        k_, d_ = pend_q.pop(); qload(k_, dummy=d_)
                S = vS + 4 * (chain % 4); chain += 1
                for ds in range(4):
                    kf = kfrag(t, kb, ds); qf = aQ + u * 16 + ds * 4
                    A(Op(("qk", s, kb, u, ds), f"v_mfma_f32_16x16x32_bf16 {vt(S,4)}, {at(kf,4)}, {at(qf,4)}, {'0' if ds == 0 else vt(S,4)}", "mfma",
                         ar(kf, 4) + ar(qf, 4) + ([] if ds == 0 else vr(S, 4)), vr(S, 4)))
                for r in range(4):
                    A(Op(("ex", s, kb, u, r), f"v_exp_f32 v{S+r}, v{S+r}", "trans", vr(S + r), vr(S + r)))
                pd = Pw + (kb >> 1) * 16 + u * 4 + (kb & 1) * 2
                for r in range(2):
                    A(Op(("cv", s, kb, u, r), f"v_cvt_pk_bf16_f32 v{pd+r}, v{S+2*r}, v{S+2*r+1}", "valu", vr(S + 2 * r, 2), vr(pd + r)))
                mcount += 4
            elif c[0] == "pv":
                _, db, u = c
                vreads(db)
                first = (s - 1 - sg[u]) % 8 == 0
                o = vOa + db * 16 + u * 4
                for ks in range(2):
                    vf = aV + db * 8 + ks * 4; pf = Pr + ks * 16 + u * 4
                    z = first and ks == 0
                    A(Op(("pv", s, db, u, ks), f"v_mfma_f32_16x16x32_bf16 {vt(o,4)}, {at(vf,4)}, {vt(pf,4)}, {'0' if z else vt(o,4)}", "mfma",
                         ar(vf, 4) + vr(pf, 4) + ([] if z else vr(o, 4)), vr(o, 4)))
                mcount += 2
            else:
                _, _, u = c
                first = (s - 1 - sg[u]) % 8 == 0
                l = vL + 4 * u
                for ks in range(2):
                    pf = Pr + ks * 16 + u * 4; z = first and ks == 0
                    A(Op(("on", s, u, ks), f"v_mfma_f32_16x16x32_bf16 {vt(l,4)}, {at(aOne,4)}, {vt(pf,4)}, {'0' if z else vt(l,4)}", "mfma",
                         vr(pf, 4) + ([] if z else vr(l, 4)), vr(l, 4)))
                mcount += 2
        if not bar_done: barrier()
        for it, _ in todo_items: issue(it, (s, "off", mcount))
        if not steady and s == 31:
            qread(("qr", 32, 0), 0, dummy=True)
            qload(("q", 32 + sg[1], 1), dummy=True)
        for u in sorted(fin):
            l = vL + 4 * u; R = vR + (u & 1)
            A(Op(("rc", s, u), f"v_rcp_f32 v{R}, v{l}", "trans", vr(l), vr(R)))
            A(Op(("ck", s, u), f"v_max3_u32 v{vChk}, v{vChk}, v{l}, v{R}", "valu", vr(vChk) + vr(l) + vr(R), vr(vChk)))
            for db in range(8):
                o = vOa + db * 16 + u * 4
                for r in range(4):
                    A(Op(("mu", s, u, db, r), f"v_mul_f32 v{o+r}, v{o+r}, v{R}", "valu", vr(o + r) + vr(R), vr(o + r)))
                if not cfg.store_x4:
                    for r in range(2):
                        A(Op(("oc", s, u, db, r), f"v_cvt_pk_bf16_f32 v{o+r}, v{o+2*r}, v{o+2*r+1}", "valu", vr(o + 2 * r, 2), vr(o + r)))
                    A(Op(("st", s, u, db), f"buffer_store_dwordx2 {vt(o,2)}, v{vO}, s[{sO_}:{sO_+3}], s{sOo} offen offset:{db*32} {cfg.st_pol}".rstrip(), "store",
                         vr(o, 2) + [f"s{sOo}"], []))
                else:
                    if db & 1:
                        e = o - 16
                        A(Op(("oc", s, u, db, 3), f"v_cvt_pk_bf16_f32 v{o+3}, v{o+2}, v{o+3}", "valu", vr(o + 2, 2), vr(o + 3)))
                        A(Op(("oc", s, u, db, 2), f"v_cvt_pk_bf16_f32 v{o+2}, v{o}, v{o+1}", "valu", vr(o, 2), vr(o + 2)))
                        A(Op(("oc", s, u, db, 0), f"v_cvt_pk_bf16_f32 v{o}, v{e}, v{e+1}", "valu", vr(e, 2), vr(o)))
                        A(Op(("oc", s, u, db, 1), f"v_cvt_pk_bf16_f32 v{o+1}, v{e+2}, v{e+3}", "valu", vr(e + 2, 2), vr(o + 1)))
                        for r in range(2):
                            A(Op(("sw", s, u, db, r), f"v_permlane16_swap_b32 v{o+r}, v{o+2+r}", "valu", vr(o + r) + vr(o + 2 + r), vr(o + r) + vr(o + 2 + r)))
                        A(Op(("st", s, u, db), f"buffer_store_dwordx4 {vt(o,4)}, v{vO}, s[{sO_}:{sO_+3}], s{sOo} offen offset:{(db-1)*32} {cfg.st_pol}".rstrip(), "store",
                             vr(o, 4) + [f"s{sOo}"], [], cost=20))
            if not steady and 32 <= s < last:
                for x in prog:
                    if x.key[:3] == ("st", s, u): x.maxdl = (s + 1, "frac", (x.key[3] + 1) / 8 * cfg.tail_dl)
            A(Op(("oinc", s, u), f"s_add_u32 s{sOo}, s{sOo}, 4096", "salu", [f"s{sOo}"], [f"s{sOo}"]))
    return prog

def link(cfg, prog):
    lastw = {}; readers = {}
    m = 0
    for x in prog:
        if x.kind == "mfma": x.m = m; m += 1
    for x in prog:
        e = {}
        def add(p, typ):
            if p is x: return
            soft = hard = 0
            if p.kind == "mfma":
                if x.kind == "mfma": return
                if typ in ("raw", "waw"): soft = cfg.mv_lat
                elif x.kind in ("valu", "trans"): soft = 1
            elif x.kind == "mfma":
                hard = soft = 1
                if typ == "raw":
                    soft = cfg.ds_lat if p.kind == "ds" else (1 if p.kind == "load" else 2)
                elif p.kind == "store": soft = 2
            elif x.kind == "bar" or x.key[0] == "arr":
                hard = 1; soft = {"ds": cfg.ds_lat, "dsw": cfg.ds_lat, "dma": 2}.get(p.kind, 1)
            elif p.kind == "bar":
                soft = hard = 0
            elif p.kind == "salu":
                soft = 2; hard = 1 if x.kind != "salu" else 1
            elif x.kind == "salu":
                soft = hard = 1
            elif typ == "raw":
                if p.kind == "trans": soft = 1
                elif p.kind == "ds" and x.kind == "dma": soft = cfg.ds_lat
                elif p.kind == "valu" and x.kind in ("store", "dsw", "ds"): soft = 1
                elif p.kind == "valu" and "permlane" in x.text: soft = 2
            else:
                if p.kind in ("valu", "trans") and x.kind in ("load", "ds", "dma"): soft = 1
                if p.kind in ("store", "dsw"): soft = 1
            o = e.get(id(p))
            e[id(p)] = (p, max(soft, o[1]) if o else soft, max(hard, o[2]) if o else hard)
        for r in x.reads:
            if r in lastw: add(lastw[r], "raw"); x.prod[r] = lastw[r].key
        for r in x.writes:
            if r in lastw: add(lastw[r], "waw")
            for p in readers.get(r, []): add(p, "war")
        for r in x.reads: readers.setdefault(r, []).append(x)
        for r in x.writes: lastw[r] = x; readers[r] = []
        x.preds = list(e.values())
        for p, so, ha in x.preds: p.succs.append((x, so, ha))
    return m

def step_of(x): return x.key[1]

def schedule(cfg, prog, nm, pins=None, lo=None, hi=None):
    pins = pins or {}; lo = lo or {}; hi = hi or {}
    start = {}; barw = {}
    cur = -1
    for x in prog:
        if x.kind == "mfma":
            cur = x.m; start.setdefault(x.key[1], x.m)
        elif x.kind == "bar": barw[x.key[1]] = cur
    def W(a):
        if a[0] == -1: return -1
        if a[1] == "bar": return barw.get(a[0], nm - 1) + (a[2] if len(a) > 2 else 0)
        if a[1] == "frac": return start[a[0]] - 1 + int(a[2] * (start.get(a[0] + 1, nm) - start[a[0]]))
        if a[1] == "off": return max(0, start[a[0]] - 1 + a[2])
        return start[a[0]] - 1
    fill = [x for x in prog if x.kind != "mfma"]
    for x in prog:
        if x.kind == "mfma": x.win = x.m
    for i, x in enumerate(prog): x.idx = i
    for x in reversed(fill):
        if x.key in pins: x.dls = x.dlh = pins[x.key][0]; continue
        if x.anchor: x.dls = x.dlh = W(x.anchor); continue
        ds = dh = nm - 1
        for y, so, ha in x.succs:
            if y.dummy and y.key not in pins: continue
            if y.kind == "mfma": ds = min(ds, y.m - so); dh = min(dh, y.m - ha)
            else: ds = min(ds, y.dls - so); dh = min(dh, y.dlh - ha)
        if x.key in hi: ds = min(ds, hi[x.key]); dh = min(dh, hi[x.key])
        if x.maxdl: ds = min(ds, W(x.maxdl)); dh = min(dh, W(x.maxdl))
        x.dls, x.dlh = ds, max(dh, -1)
    wins = {w: [] for w in range(-1, nm)}
    for x in fill:
        x.win = None
        x.lo = max(W(x.earliest) if x.earliest else -1, lo.get(x.key, -1))
        if x.anchor: x.lo = x.dlh
    pinned_by_win = {}
    for x in fill:
        if x.key in pins: pinned_by_win.setdefault(pins[x.key][0], []).append(x)
    todo = [x for x in fill if x.key not in pins and not x.dummy]
    todo.sort(key=lambda x: x.idx)
    credit = [0]
    def ready(x, w, soft):
        if w < x.lo: return False
        for p, so, ha in x.preds:
            if p.dummy and p.key not in pins: continue
            if p.win is None: return False
            lat = ha
            if soft and (p.kind not in ("load", "dma", "ds", "dsw") or x.kind == "dma"): lat = so
            if p.kind in ("store", "dsw") and soft: lat = max(lat, min(so, 1))
            if w == -1 or w == nm - 1: lat = 0
            if w < p.win + lat: return False
        return True
    for w in range(-1, nm):
        if w in pinned_by_win:
            for x in sorted(pinned_by_win[w], key=lambda x: pins[x.key][1]):
                x.win = w; wins[w].append(x)
        if pins and cfg._loop[0] <= w < cfg._loop[1]: continue
        cap = 8 if w >= 0 else 0
        rate = 8
        if cfg.smooth and pins and 0 <= w < nm - 1:
            acc = 0
            for x in sorted((x for x in todo[:900] if x.dls <= w + 120), key=lambda x: x.dls):
                acc += min(x.cost, 8)
                rate = max(rate, acc / (max(x.dls, w) - w + 1))
            credit[0] = credit[0] + rate - 8 if rate > 8.2 else 0
            credit[0] = min(credit[0], rate)
            extra = int(credit[0] // 4) * 4
            cap += extra
        used = 0
        cur = wins[w]
        def place(x):
            nonlocal used
            x.win = w; cur.append(x); used += min(x.cost, 8); todo.remove(x)
        while True:
            cand = [x for x in todo[:700] if ready(x, w, True) or (w >= x.dlh and ready(x, w, False))]
            if not cand: break
            z = [x for x in cand if x.kind in ("salu", "bar")]
            if z:
                place(z[0]); continue
            forced = [x for x in cand if x.dls <= w]
            if w == -1 or w == nm - 1:
                if not forced: break
                place(min(forced, key=lambda x: x.idx)); continue
            hasvalu_dep = lambda x: x.kind in ("ds", "dsw", "load", "dma", "store") and any(p.win == w and p.kind in ("valu", "trans") for p, _, _ in x.preds)
            hard_forced = forced
            if hard_forced:
                place(min(hard_forced, key=lambda x: (x.dls, x.idx))); continue
            if used >= cap: break
            nb = lambda x: 1024 if "b128" in x.text else 512
            dsb = sum(nb(x) for x in cur if x.kind == "ds")
            tight = rate > 8.2
            recent = (not tight) and any(y.kind == "ds" for k in range(1, cfg.ds_gap) for y in wins.get(w - k, []))
            vmk = ("load", "dma", "store")
            vgap = max(1, int(cfg.vm_gap * 16 / (8 + rate)))
            recent_vm = any(y.kind in vmk for k in range(0, vgap) for y in wins.get(w - k, []))
            dcap = cfg.ds_cap * (8 + cap) // 16
            cand = [x for x in cand if (x.kind != "ds" or (not recent and dsb + nb(x) <= dcap)) and not (x.kind in vmk and recent_vm)]
            if not cand: break
            cand.sort(key=lambda x: (-99999 if x.kind in ("load", "dma", "dsw", "store") else x.dls, x.idx))
            if cap - used >= 8:
                top = cand[0]
                if top.cost >= 8: place(top); continue
                small = [x for x in cand if x.cost == 4]
                big = [x for x in cand if x.cost >= 8]
                fits = lambda a, b: not (a.kind == "ds" and b.kind == "ds" and dsb + nb(a) + nb(b) > dcap)
                partner = any(fits(top, y) for y in small if y is not top) or any(y.cost == 4 and so == 0 and y.win is None and y.kind == "valu" and all(p.win is not None or p is top for p, _, _ in y.preds) for y, so, ha in top.succs)
                if partner or not big or (cap - used) % 8: place(top)
                else: place(big[0])
                continue
            small = [x for x in cand if x.cost == 4]
            if not small: break
            place(small[0])
        if w >= 0: credit[0] -= max(0, min(used, cap) - 8)
        if w not in (-1, nm - 1):
            order = {"bar": 0, "salu": 0, "dma": 1, "load": 1, "store": 1, "dsw": 1, "ds": 1, "valu": 2, "trans": 2}
            lvl = {}
            for x in cur:
                l = order[x.kind]
                for p, _, _ in x.preds:
                    if p.win == w and p.kind != "mfma": l = max(l, lvl[id(p)])
                lvl[id(x)] = l
            cur.sort(key=lambda x: lvl[id(x)])
    assert not todo, [x.key for x in todo[:10]]
    for w, c in wins.items():
        for i, x in enumerate(c): x.pos = i
    return wins, start

def norm(key, d):
    return (key[0], key[1] + d) + tuple(key[2:])

class Ins:
    def __init__(s, text, op=None, kind=None):
        s.text, s.op, s.kind = text, op, kind or (op.kind if op else "salu")
        s.vm = None; s.lg = None

def generate(cfg):
    last = 32 + max(cfg.sigma)
    cfg.q_ahead = getattr(cfg, "q_ahead", 2)
    cfg.code_pf_n = getattr(cfg, "code_pf_n", 2)
    sp = build(cfg, 0, 56, True); nms = link(cfg, sp)
    swins, sstart = schedule(cfg, sp, nms)
    per = sstart[8] - sstart[0]
    ok = None
    for b in (16, 24, 32):
        same = all([x.text for x in swins[sstart[b] + i]] == [x.text for x in swins[sstart[b + 8] + i]] and
                   [norm(x.key, 8) for x in swins[sstart[b] + i]] == [x.key for x in swins[sstart[b + 8] + i]] for i in range(per))
        if same: ok = b; break
    assert ok is not None, "steady state not periodic"
    rp = build(cfg, 0, last + 1, False); nm = link(cfg, rp)
    rstart = {}
    for x in rp:
        if x.kind == "mfma": rstart.setdefault(x.key[1], x.m)
    L0, L1 = rstart[8], rstart[32]
    assert L1 - L0 == 3 * per
    cfg._loop = (L0, L1)
    pins = {}
    for it in range(3):
        for i in range(per):
            for x in swins[sstart[ok] + i]:
                pins[norm(x.key, 8 + 8 * it - ok)] = (L0 + it * per + i, x.pos)
    keys = {x.key: x for x in rp}
    assert len(keys) == len(rp)
    missing = [k for k in pins if k not in keys]
    assert not missing, missing[:10]
    lo = {}; hi = {}
    mid = (keys[("qk", 20, 0, 0, 0)])
    midx = rp.index(mid)
    for i, x in enumerate(rp):
        if x.kind == "mfma" or x.key in pins: continue
        if i < midx: hi[x.key] = L0 - 1
        else: lo[x.key] = L1
    wins, start = schedule(cfg, rp, nm, pins, lo, hi)
    mf = [x for x in rp if x.kind == "mfma"]
    def stat(w):
        return L0 + (w - L0) % per if L0 <= w < L1 else w
    free = {}
    pre = {}
    for w in range(-1, nm):
        if stat(w) == w:
            free[w] = []
            if w not in (-1, nm - 1):
                for x in wins[w]:
                    if x.kind == "bar": free[w].append(Ins(x.text, x))
    def body(w):
        if w in (-1, nm - 1): return wins[w]
        return [x for x in wins[w] if x.kind not in ("salu", "bar")]
    def walk(fix):
        q = {"vm": [], "lgkm": []}
        pend = {}
        hist = {}
        changed = False
        def dowait(ins):
            for c, n in (("vm", ins.vm), ("lgkm", ins.lg)):
                if n is None: continue
                while len(q[c]) > n:
                    d = q[c].pop(0)
                    for r in d.writes:
                        if pend.get(r) is d: del pend[r]
        def need(x):
            n = {}
            for r in x.reads + x.writes:
                p = pend.get(r)
                if p is not None and not (r in x.writes and r not in x.reads and p.cnt == x.cnt):
                    n[p.cnt] = p if (p.cnt not in n or q[p.cnt].index(p) > q[p.cnt].index(n[p.cnt])) else n[p.cnt]
            return n
        def issue(x):
            if x.cnt:
                q[x.cnt].append(x)
                for r in x.writes: pend[r] = x
        def setw(ins, c, n):
            n = min(n, 62 if c == "vm" else 14)
            if c == "vm": ins.vm = n if ins.vm is None else min(ins.vm, n)
            else: ins.lg = n if ins.lg is None else min(ins.lg, n)
        def handle(x, w, pos, cands):
            nonlocal changed
            n = need(x)
            if not n: return
            assert fix, ("unwaited", x.key, {c: p.key for c, p in n.items()})
            changed = True
            for c, p in n.items():
                done = False
                for cw in cands:
                    if cw < 0 or cw == nm - 1 or cw not in hist: continue
                    snap = hist[cw][c]
                    if p not in snap: continue
                    fl = free[stat(cw)]
                    wi = [i for i in fl if i.kind == "wait"]
                    if not wi and fl and cw != cands[-1]: continue
                    if not wi:
                        wi = [Ins("", None, "wait")]; fl.insert(0, wi[0])
                    setw(wi[0], c, len(snap) - 1 - snap.index(p)); done = True; break
                if not done:
                    ins = pre.setdefault((stat(w), pos), Ins("", None, "wait"))
                    setw(ins, c, len(q[c]) - 1 - q[c].index(p))
                while p in q[c]:
                    d = q[c].pop(0)
                    for r in d.writes:
                        if pend.get(r) is d: del pend[r]
        for w in range(-1, nm):
            if w >= 0:
                if (stat(w), "m") in pre: dowait(pre[(stat(w), "m")])
                handle(mf[w], w, "m", [w - 1, w - 2])
            hist[w] = {c: list(v) for c, v in q.items()}
            hist.pop(w - 4, None)
            for ins in list(free[stat(w)]):
                if ins.kind == "wait": dowait(ins)
                elif ins.kind == "bar":
                    x = [y for y in wins[w] if y.kind == "bar"][0]
                    handle(x, w, "b", [w - 1, w - 2, w])
            for pos, x in enumerate(body(w)):
                if (stat(w), pos) in pre: dowait(pre[(stat(w), pos)])
                handle(x, w, pos, [w, w - 1])
                issue(x)
        return changed
    for _ in range(10):
        if not walk(True): break
    walk(False)
    for w in range(0, nm - 1):
        if stat(w) != w: continue
        for x in wins[w]:
            if x.kind != "salu": continue
            hiw = min([y.win - (1 if "m0" in x.writes or y.kind == "salu" else 0) for y, _, _ in x.succs if y.win is not None] + [w + 40, nm - 2])
            if L0 <= w < L0 + per: hiw = min(hiw, L0 + per - 3)
            elif w < L0: hiw = min(hiw, L0 - 1)
            hiw = max(hiw, w)
            c = [k for k in range(w, hiw + 1) if not free[k]]
            c2 = [k for k in c if body(k) and body(k)[0].kind in ("ds", "dma", "load", "store", "dsw")]
            k = c2[0] if c2 else (c[0] if c else w)
            free[k].append(Ins(x.text, x)); x.fw = k
    k = [k for k in range(L0 + per - 2, L0 + per) if not free[k]]
    k = k[0] if k else L0 + per - 1
    assert not any(i.kind == "salu" for kk in range(k, L0 + per) for i in free[kk])
    free[k].append(Ins(f"s_sub_u32 s{sCnt}, s{sCnt}, 1"))
    if cfg.nop_ds:
        for w in range(0, nm - 1):
            if stat(w) == w and not free[w] and body(w) and body(w)[0].kind in ("ds", "dma", "load", "store", "dsw"):
                free[w].append(Ins("s_nop 0", None, "nop"))
    def wtext(i):
        t = "s_waitcnt"
        if i.vm is not None: t += f" vmcnt({i.vm})"
        if i.lg is not None: t += f" lgkmcnt({i.lg})"
        return t
    code = {}
    for w in range(-1, nm):
        if stat(w) != w: continue
        l = []
        if w >= 0:
            if (w, "m") in pre: l.append(pre[(w, "m")])
            l.append(Ins(mf[w].text, mf[w]))
        l += free[w]
        for pos, x in enumerate(body(w)):
            if (w, pos) in pre: l.append(pre[(w, pos)])
            l.append(Ins(x.text, x))
        for i in l:
            if i.kind == "wait": i.text = wtext(i)
        code[w] = l
    def wcost(l, head=False):
        t = 0; base = 0; lastvalu = -99
        for i in l:
            if i.kind == "mfma": base = t; t += 4; continue
            if i.kind in ("salu", "wait", "bar", "nop"): t += 4; continue
            if i.kind == "nopx": t += 4 * (int(i.text.split()[1]) + 1); continue
            if not head: t = max(t, base + 8)
            if i.kind in ("valu", "trans"): t += i.op.cost; lastvalu = t
            else:
                t = max(t, lastvalu + 8) + i.op.cost
        return t if head else max(t, base + 16)
    def hazards(fix):
        seq = []
        changed = False
        for w in range(-1, nm):
            l = code[stat(w)]
            j = 0
            while j < len(l):
                i = l[j]; x = i.op
                needn = 0
                if x is not None and x.kind not in ("salu", "bar"):
                    dist = 0
                    for p, st, pwin in reversed(seq):
                        y = p.op
                        if y is not None:
                            req = 0
                            raw = set(y.writes) & set(x.reads); waw = set(y.writes) & set(x.writes); war = set(y.reads) & set(x.writes)
                            if y.kind == "mfma":
                                if x.kind == "mfma":
                                    nab = 8 if x.key[0] != "on" else 4
                                    if set(y.writes) & set(x.reads[:nab]): req = 8
                                elif raw or waw: req = 8
                                elif war and x.kind in ("valu", "trans") and set(y.writes) & set(x.writes): req = 3
                            elif y.kind in ("valu", "trans"):
                                if raw and x.kind == "mfma": req = 2
                                if raw and "permlane" in x.text: req = 2
                                if raw and y.kind == "trans" and x.kind != "trans": req = max(req, 1)
                            elif y.kind in ("store", "dsw") and war and y.cost == 20: req = 2
                            elif y.kind == "salu" and "m0" in y.writes and x.kind == "dma": req = 1
                            if req - dist > needn: needn = req - dist; pw = pwin
                        dist += st
                        if dist >= 8: break
                if needn > 0:
                    assert fix, ("hazard", x.key)
                    for k in range(w, pw - 1, -1):
                        if k < 0: break
                        lk = code[stat(k)]
                        mi = [n for n, z in enumerate(lk) if z.kind == "mfma"][0]
                        places = []
                        if k > pw and (k < w or j > mi): places.append(mi + 1)
                        if k < w: places.append(len(lk))
                        ok_ = False
                        for pl in places:
                            tr = lk[:pl] + [Ins("s_nop 0", None, "nopx")] + lk[pl:]
                            if wcost(tr) == wcost(lk): lk[:] = tr; ok_ = True; break
                        if ok_: return True
                    l.insert(j, Ins(f"s_nop {needn-1}", None, "nopx")); changed = True
                    continue
                st = int(i.text.split()[1]) + 1 if i.text.startswith("s_nop") else 1
                seq.append((i, st, w)); seq = seq[-10:]
                j += 1
        return changed
    while hazards(True): pass
    lastw = {}; seen = set()
    for w in range(-1, nm):
        it = (w - L0) // per if L0 <= w < L1 else 0
        for i in code[stat(w)]:
            if i.op is None: continue
            x = keys[norm(i.op.key, 8 * it)]
            assert x.text == i.text, (x.text, i.text)
            assert x.key not in seen; seen.add(x.key)
            if not x.dummy:
                for r in x.reads:
                    assert lastw.get(r) == x.prod.get(r), ("dataflow", x.key, r, lastw.get(r), x.prod.get(r))
            for r in x.writes: lastw[r] = x.key
    assert all(x.key in seen or x.dummy for x in rp), [x.key for x in rp if x.key not in seen and not x.dummy][:5]
    est = {}
    for s in range(0, last + 1):
        e = rstart.get(s + 1, nm)
        est[s] = (sum(wcost(code[stat(w)]) for w in range(rstart[s], e)), (e - rstart[s]) * 16)
    cfg.est = est; cfg.est_head = wcost(code[-1], True)
    out = []
    cfg.spins = []
    E = out.append
    stamp_at = getattr(cfg, "stamp_steps", [])
    inv = {v: k for k, v in rstart.items()}
    for w in range(-1, nm):
        if stat(w) != w: continue
        if w == L0: E("L_loop:")
        if w in inv:
            E(f"; ---- step {inv[w]} ----")
            if cfg.stamps and inv[w] in stamp_at:
                j = stamp_at.index(inv[w]); E(f"    s_memrealtime s[{64+2*j}:{65+2*j}]")
        for i in code[w]:
            if i.op is not None and i.op.key[0] in cfg.kill and (L0 if cfg.kill_from is None else cfg.kill_from) <= w: E("    s_nop 0")
            else: E("    " + i.text)
            if i.text.startswith("s_cbranch_vccnz L_spin"):
                n = i.text.split("L_spin")[1]; E(f"L_back{n}:"); cfg.spins.append(n)
        if w == L0 + per - 1: E("    s_cbranch_scc0 L_loop")
    return "\n".join(out)

def fbits(x): return struct.unpack("<I", struct.pack("<f", x))[0]

def head(cfg):
    T = vS
    h = f"""    s_load_dwordx4 s[4:7], s[0:1], 0          ; q, k
    s_load_dwordx4 s[8:11], s[0:1], 16        ; v, out
"""
    if cfg.stamps: h += f"    s_load_dwordx2 s[56:57], s[0:1], {32 if cfg.stamps == 'dbg' else 40}\n    s_memrealtime s[60:61]\n"
    h += f"""    v_lshrrev_b32 v{T}, 6, v0
    v_and_b32 v{T+4}, 63, v0                  ; lane
    v_readfirstlane_b32 s{sWave}, v{T}
    s_cmp_ge_u32 s2, 256
    s_cbranch_scc1 L_end
    v_and_b32 v{T+1}, 15, v0                  ; l & 15
    v_bfe_u32 v{T+2}, v0, 4, 2                ; l >> 4
    v_lshlrev_b32 v{vKl}, 4, v{T+4}           ; lane*16
    s_and_b32 s{sTmp}, s2, 7
    s_lshr_b32 s{sTmp+1}, s2, 3
    s_lshl_b32 s{sTmp}, s{sTmp}, 5
    s_add_u32 s{sTmp}, s{sTmp}, s{sTmp+1}
    s_lshl2_add_u32 s{sTmp+2}, s{sTmp}, s{sWave}
    s_lshl_b32 s{sTmp+2}, s{sTmp+2}, 16       ; q/o byte offset of this wave
    s_lshr_b32 s{sTmp}, s{sTmp}, 2
    s_lshl_b32 s{sTmp}, s{sTmp}, 17           ; k/v byte offset of the group
    s_lshl_b32 s{sMq}, s{sWave}, 12           ; wave*4096
    s_add_u32 s{sTmp+3}, s{sTmp}, s{sMq}
    s_sub_u32 s{sK_+2}, 0x20000, s{sMq}
    s_mov_b32 s{sK_+3}, 0x20000
    s_mov_b32 s{sQ_+3}, s{sK_+3}
    s_mov_b32 s{sQ_+2}, 0x10000
"""
    if cfg.rot:
        h += f"""    s_bfe_u32 s{sTmp+4}, s2, 0x20003
    s_mul_i32 s{sTile}, s{sTmp+4}, {cfg.rot*16384}
    s_and_b32 s{sTile}, s{sTile}, 0x1ffff
    s_add_u32 s{sTile+1}, s{sTile}, 16384
    s_and_b32 s{sTile+1}, s{sTile+1}, 0x1ffff
"""
    else: h += f"    s_mov_b32 s{sTile}, 0\n    s_movk_i32 s{sTile+1}, 0x4000\n"
    h += f"""    s_mov_b32 s{sQo}, 0
    v_lshlrev_b32 v{T+3}, 8, v{T+2}           ; (l>>4)*256
    v_xor_b32 v{T+5}, v{T+1}, v{T+2}          ; (l&15) ^ (l>>4)
    v_lshl_add_u32 v{vQd}, v{T+5}, 4, v{T+3}
    s_waitcnt lgkmcnt(0)
    s_add_u32 s{sK_}, s6, s{sTmp+3}
    s_addc_u32 s{sK_+1}, s7, 0
    s_add_u32 s{sQ_}, s4, s{sTmp+2}
    s_addc_u32 s{sQ_+1}, s5, 0
"""
    if cfg.stamps: h += "    s_memrealtime s[62:63]\n"
    return h

def head2(cfg):
    c = math.log2(math.e) / math.sqrt(128.0)
    T = vS
    h = f"""    ; code prefetch into L2: 16 lines per wave, 8 KiB per workgroup
    s_getpc_b64 s[{sC_}:{sC_+1}]
L_pc:
    s_mov_b32 s{sC_+2}, L_slow - L_pc
    s_mov_b32 s{sC_+3}, 0x20000
    s_bfe_u32 s{sTmp+1}, s2, 0x30003
    s_lshl2_add_u32 s{sTmp+1}, s{sTmp+1}, s{sWave}
    s_lshl_b32 s{sTmp+1}, s{sTmp+1}, 11
    v_lshlrev_b32 v{vJ}, 5, v{T+4}
    v_add_u32 v{vJ}, s{sTmp+1}, v{vJ}
@CPF
    s_add_u32 s{sV_}, s8, s{sTmp}
    s_addc_u32 s{sV_+1}, s9, 0
    s_add_u32 s{sO_}, s10, s{sTmp+2}
    s_addc_u32 s{sO_+1}, s11, 0
    s_mov_b32 s{sV_+2}, 0x20000
    s_mov_b32 s{sV_+3}, 0x20000
    s_mov_b32 s{sO_+2}, 0x10000
    s_mov_b32 s{sO_+3}, 0x20000
"""
    for t in range(2, 8):
        if cfg.rot: h += f"    s_add_u32 s{sTile+t}, s{sTile+t-1}, 16384\n    s_and_b32 s{sTile+t}, s{sTile+t}, 0x1ffff\n"
        else: h += f"    s_mov_b32 s{sTile+t}, {t*16384}\n"
    h += f"""    s_add_u32 s{sM0}, s{sMq}, 0x18000
    s_add_u32 s{sM0+1}, s{sMq}, 0x1c000
    s_add_u32 s{sM0+2}, s{sMq}, 0x20000
    s_add_u32 s{sM0+3}, s{sMq}, 0x24000
    s_mov_b32 s{sOo}, 0
    s_mov_b32 s{sExp}, 0
    s_mov_b32 s{sCnt}, 2
    s_mov_b32 s{sScale}, {fbits(c):#x}
    ; K fragment read addresses: g*256 + (key ^ g ^ 4*(ds&1))*16
    v_mov_b32 v{vKr}, v{vQd}
    v_xor_b32 v{vKr+1}, 64, v{vQd}
    v_add_u32 v{vKr+2}, 0x10000, v{vKr}
    v_add_u32 v{vKr+3}, 0x10000, v{vKr+1}
    v_and_b32 v{T+6}, 7, v{T+5}
    v_lshlrev_b32 v{T+7}, 8, v{T+1}           ; (l&15)*256
    v_lshl_add_u32 v{T+6}, v{T+6}, 4, v{T+7}
    v_add_u32 v{vKw}, s{sMq}, v{T+6}
    v_xor_b32 v{vKw+1}, 64, v{vKw}
    v_and_b32 v{T+6}, 3, v{T+5}
    v_lshl_add_u32 v{T+6}, v{T+6}, 4, v{T+7}
    v_add_u32 v{vQr}, s{sMq}, v{T+6}
    ; V DMA source offsets: row r=l>>4, unit (c16>>1)^(key&7)
    v_lshrrev_b32 v{T+6}, 1, v{T+1}
    v_xor_b32 v{T+6}, v{T+6}, v{T+2}
    v_lshl_add_u32 v{T+6}, v{T+6}, 5, v{T+3}
    v_and_b32 v{T+8}, 1, v{T+1}
    v_lshl_add_u32 v{T+6}, v{T+8}, 4, v{T+6}
    v_add_u32 v{vD0}, s{sMq}, v{T+6}
    v_xor_b32 v{vD1}, 0x80, v{vD0}
    ; V transposed-read addresses: lane = 16g+4r+c
    v_lshrrev_b32 v{T+8}, 2, v{T+4}           ; 4g+r
    v_and_b32 v{T+6}, 7, v{T+8}
    v_lshlrev_b32 v{T+6}, 5, v{T+6}
    v_lshl_add_u32 v{T+6}, v{T+8}, 8, v{T+6}
    v_and_b32 v{T+9}, 3, v{T+4}
    v_lshl_add_u32 v{T+6}, v{T+9}, 3, v{T+6}
    v_add_u32 v{vV}, 0x18000, v{T+6}
"""
    for db in range(1, 8): h += f"    v_xor_b32 v{vV+db}, {db*32}, v{vV}\n"
    if cfg.store_x4:
        h += f"""    v_and_b32 v{T+6}, 1, v{T+2}
    v_lshl_add_u32 v{vO}, v{T+6}, 5, v{T+7}
    v_lshrrev_b32 v{T+6}, 1, v{T+2}
    v_lshl_add_u32 v{vO}, v{T+6}, 4, v{vO}
"""
    else:
        h += f"    v_lshl_add_u32 v{vO}, v{T+2}, 3, v{T+7}\n"
    h += f"""    v_cmp_eq_u32 vcc, 0, v{T+9}
    v_mov_b32 v{T+6}, 0x3f803f80
    v_mov_b32 v{vChk}, {'-1' if cfg.force_slow else '0'}
    v_cndmask_b32 v{T+6}, 0, v{T+6}, vcc
    v_lshlrev_b32 v{vCnt}, 2, v{T+4}
    v_add_u32 v{vCnt}, 0x4000, v{vCnt}
    v_accvgpr_write_b32 a{aOne}, v{T+6}
    v_accvgpr_write_b32 a{aOne+1}, v{T+6}
    v_accvgpr_write_b32 a{aOne+2}, v{T+6}
    v_accvgpr_write_b32 a{aOne+3}, v{T+6}
    v_accvgpr_write_b32 a{aCone}, 1
    v_accvgpr_write_b32 a{aCone+1}, 0
"""
    return h

def tail(cfg):
    lim = (127 + cfg.limit_exp) << 23
    t = ""
    if cfg.stamps == "spin":
        if not getattr(cfg, "stamp_steps", []): t += "    s_waitcnt vmcnt(0)\n    s_memrealtime s[64:65]\n"
        t += f"""    s_waitcnt lgkmcnt(0)
    s_sub_u32 s64, s64, s60
    s_mul_i32 s64, s64, {getattr(cfg, "spin_mul", 0)}
    s_add_u32 s64, s64, 10000
L_spin:
    s_memrealtime s[72:73]
    s_waitcnt lgkmcnt(0)
    s_sub_u32 s72, s72, s60
    s_cmp_lt_u32 s72, s64
    s_cbranch_scc1 L_spin
"""
    elif cfg.stamps:
        e0 = 88 if cfg.stamps == "c16" else 72
        t += f"""    s_memrealtime s[{e0}:{e0+1}]
    s_waitcnt vmcnt(0)
    s_memrealtime s[{e0+2}:{e0+3}]
    s_mov_b32 s58, 0x10000000
    s_mov_b32 s59, 0x20000
    s_lshl_b32 s46, s2, 2
    s_add_u32 s46, s46, s3
    s_lshl_b32 s46, s46, 6
    s_waitcnt lgkmcnt(0)
"""
        for i in range(16): t += f"    v_mov_b32 v{64+i}, s{60+(2*i if cfg.stamps == 'c16' else i)}\n"
        t += "    v_mov_b32 v60, 0\n    s_mov_b64 exec, 1\n"
        if cfg.stamps == "dbg":
            t += "    s_mov_b32 s58, 256\n"
            for i in range(8):
                t += f"    v_not_b32 v{65+2*i}, v{64+2*i}\n"
            for i in range(16): t += f"    buffer_atomic_umax v{64+i}, v60, s[56:59], 0 offen offset:{4*i}\n"
        else:
          for i in range(4): t += f"    buffer_store_dwordx4 v[{64+4*i}:{67+4*i}], v60, s[56:59], s46 offen offset:{16*i}\n"
        t += "    s_mov_b64 exec, -1\n"
    t += f"""    v_cmp_lt_u32 vcc, {lim:#x}, v{vChk}
    s_nop 4
    s_cbranch_vccnz L_slow
L_end:
    s_endpgm
"""
    for n in cfg.spins:
        t += f"""L_spin{n}:
    ds_read_b32 v{vPoll}, v{vCnt}
    s_waitcnt lgkmcnt(0)
    v_cmp_gt_u32 vcc, s{sExp}, v{vPoll}
    s_nop 4
    s_cbranch_vccnz L_spin{n}
    s_branch L_back{n}
"""
    S0, S1, M, T = 16, 20, 24, 25
    vQ = vQd; vKb = vKr + 2
    q = lambda ds: at(aQ + 4 * ds, 4)
    k = lambda j, ds: at(aK + j * 16 + 4 * ds, 4)
    t += f"""; Fallback: a row sum left [2^-{cfg.limit_exp}, 2^{cfg.limit_exp}] (or is not finite), so exp without an offset was not safe.
; This wave recomputes its 256 rows subtracting the true row maximum.  K is still in LDS; V goes through a private 8 KiB.
L_slow:
    s_waitcnt vmcnt(0) lgkmcnt(0)
    s_barrier                                 ; the other waves are done with LDS (ended or here)
    s_mov_b32 s{sQo}, 0
    s_lshl_b32 s{sTmp}, s{sWave}, 12
    s_lshl_b32 s{sTmp+1}, s{sWave}, 13
    s_add_u32 s{sTmp+2}, s{sTmp+1}, 0x20000
    s_add_u32 s{sTmp+3}, s{sTmp+2}, 4096
    v_subrev_u32 v{vD0}, s{sTmp}, v{vD0}
    v_subrev_u32 v{vD1}, s{sTmp}, v{vD1}
"""
    for db in range(8): t += f"    v_add_u32 v{vV+db}, s{sTmp+1}, v{vV+db}\n"
    for kb in range(4):
        for ds in range(4): t += f"    ds_write_b128 v{vKr+(ds&1)}, {at(aKp+kb*16+ds*4,4)} offset:{kb*4096+ds*1024}\n"
    t += f"""    ds_write_b128 v{vKr}, {at(aKp1,4)} offset:16384
    v_bfe_u32 v{T}, v{vKl}, 4, 4
    v_lshrrev_b32 v{vQ}, 8, v{vKl}
    v_lshlrev_b32 v{vQ}, 4, v{vQ}
    v_lshl_add_u32 v{vQ}, v{T}, 8, v{vQ}
"""
    t += "L_sblk:\n"
    for ds in range(4): t += f"    buffer_load_dwordx4 {q(ds)}, v{vQ}, s[{sQ_}:{sQ_+3}], s{sQo} offen offset:{ds*64}\n"
    t += f"""    v_mov_b32 v{M}, 0xff800000
    v_mov_b32 v{vKb}, v{vKr}
    v_mov_b32 v{vKb+1}, v{vKr+1}
    s_mov_b32 s{sCnt}, 32
    s_waitcnt vmcnt(0)
L_smax:
"""
    for ds in range(4): t += f"    ds_read_b128 {k(0,ds)}, v{vKb+(ds&1)} offset:{ds*1024}\n"
    t += "    s_waitcnt lgkmcnt(0)\n"
    for ds in range(4): t += f"    v_mfma_f32_16x16x32_bf16 {vt(S0,4)}, {k(0,ds)}, {q(ds)}, {'0' if ds == 0 else vt(S0,4)}\n"
    t += f"""    s_nop 7
    v_max3_f32 v{M}, v{M}, v{S0}, v{S0+1}
    v_max3_f32 v{M}, v{M}, v{S0+2}, v{S0+3}
    v_add_u32 v{vKb}, 4096, v{vKb}
    v_add_u32 v{vKb+1}, 4096, v{vKb+1}
    s_sub_u32 s{sCnt}, s{sCnt}, 1
    s_cmp_lg_u32 s{sCnt}, 0
    s_cbranch_scc1 L_smax
    v_mov_b32 v{T}, v{M}
    s_nop 1
    v_permlane16_swap_b32 v{M}, v{T}
    s_nop 1
    v_max_f32 v{M}, v{M}, v{T}
    v_mov_b32 v{T}, v{M}
    s_nop 1
    v_permlane32_swap_b32 v{M}, v{T}
    s_nop 1
    v_max_f32 v{M}, v{M}, v{T}
"""
    for r in range(4): t += f"    v_mov_b32 v{vL+r}, 0\n"
    for r in range(32): t += f"    v_mov_b32 v{vOa+r}, 0\n"
    t += f"""    v_mov_b32 v{vKb}, v{vKr}
    v_mov_b32 v{vKb+1}, v{vKr+1}
    s_mov_b32 s{sCnt}, 0
L_skey:
    s_mov_b32 m0, s{sTmp+2}
    s_add_u32 s{sTmp+5}, s{sCnt}, s{sTile}    ; keys are stored rotated
    s_and_b32 s{sTmp+5}, s{sTmp+5}, 0x1ffff
    s_add_u32 s{sTmp+4}, s{sTmp+5}, 4096
"""
    for i in range(4): t += f"    buffer_load_dwordx4 v{vD0+(i&1)}, s[{sV_}:{sV_+3}], s{sTmp+5} offen offset:{i*1024} lds\n"
    t += f"    s_mov_b32 m0, s{sTmp+3}\n    s_nop 0\n"
    for i in range(4): t += f"    buffer_load_dwordx4 v{vD0+(i&1)}, s[{sV_}:{sV_+3}], s{sTmp+4} offen offset:{i*1024} lds\n"
    for j in range(2):
        for ds in range(4): t += f"    ds_read_b128 {k(j,ds)}, v{vKb+(ds&1)} offset:{j*4096+ds*1024}\n"
    t += "    s_waitcnt vmcnt(0) lgkmcnt(0)\n"
    for db in range(8):
        for h in range(2): t += f"    ds_read_b64_tr_b16 {at(aV+db*4+2*h,2)}, v{vV+db} offset:{32768+h*4096}\n"
    for j, S in enumerate((S0, S1)):
        for ds in range(4): t += f"    v_mfma_f32_16x16x32_bf16 {vt(S,4)}, {k(j,ds)}, {q(ds)}, {'0' if ds == 0 else vt(S,4)}\n"
    t += "    s_nop 7\n"
    for r in range(8): t += f"    v_sub_f32 v{S0+r}, v{S0+r}, v{M}\n"
    for r in range(8): t += f"    v_exp_f32 v{S0+r}, v{S0+r}\n"
    t += "    s_nop 0\n"
    for r in range(4): t += f"    v_cvt_pk_bf16_f32 v{vP+r}, v{S0+2*r}, v{S0+2*r+1}\n"
    t += f"    v_add_u32 v{vKb}, 8192, v{vKb}\n    v_add_u32 v{vKb+1}, 8192, v{vKb+1}\n    s_waitcnt lgkmcnt(0)\n    s_nop 0\n"
    t += f"    v_mfma_f32_16x16x32_bf16 {vt(vL,4)}, {at(aOne,4)}, {vt(vP,4)}, {vt(vL,4)}\n"
    for db in range(8): t += f"    v_mfma_f32_16x16x32_bf16 {vt(vOa+4*db,4)}, {at(aV+db*4,4)}, {vt(vP,4)}, {vt(vOa+4*db,4)}\n"
    t += f"""    s_add_u32 s{sCnt}, s{sCnt}, 8192
    s_cmp_lt_u32 s{sCnt}, 0x20000
    s_cbranch_scc1 L_skey
    s_nop 7
    v_rcp_f32 v{vR}, v{vL}
    s_nop 0
"""
    for r in range(32): t += f"    v_mul_f32 v{vOa+r}, v{vOa+r}, v{vR}\n"
    for db in range(8):
        o = vOa + 4 * db; d = vP + 2 * db
        t += f"    v_cvt_pk_bf16_f32 v{d}, v{o}, v{o+1}\n    v_cvt_pk_bf16_f32 v{d+1}, v{o+2}, v{o+3}\n"
    if cfg.store_x4:
        t += "    s_nop 1\n"
        for db in range(0, 8, 2):
            d = vP + 2 * db
            t += f"    v_permlane16_swap_b32 v{d}, v{d+2}\n    v_permlane16_swap_b32 v{d+1}, v{d+3}\n"
            t += f"    buffer_store_dwordx4 {vt(d,4)}, v{vO}, s[{sO_}:{sO_+3}], s{sQo} offen offset:{db*32}\n"
    else:
        for db in range(8): t += f"    buffer_store_dwordx2 {vt(vP+2*db,2)}, v{vO}, s[{sO_}:{sO_+3}], s{sQo} offen offset:{db*32}\n"
    t += f"""    s_add_u32 s{sQo}, s{sQo}, 4096
    s_cmp_lt_u32 s{sQo}, 0x10000
    s_waitcnt vmcnt(0)
    s_cbranch_scc1 L_sblk
    s_endpgm
"""
    return t

HDR = """; Kernarg layout for this problem (48 bytes, ptrs only, base s[0:1]):
;   offset   0: d_in[0] q  shape=(16, 32, 512, 128) dtype=bfloat16
;   offset   8: d_in[1] k  shape=(16, 4, 512, 128) dtype=bfloat16
;   offset  16: d_in[2] v  shape=(16, 4, 512, 128) dtype=bfloat16
;   offset  24: d_out     shape=(16, 32, 512, 128) dtype=bfloat16
;   offset  32: d_debug   256 bytes
;   offset  40: d_ws      268435456 bytes workspace (unused)
; @launch grid=(256,1,1) block=(256,1,1) lds=163840
"""

def full(cfg):
    body = generate(cfg)
    r = full2(cfg, body)
    if cfg.stamps in ("cyc", "c16"): r = r.replace("s_memrealtime", "s_memtime")
    if cfg.stamps == "both":
        import re
        r = re.sub(r"    s_memrealtime s\[(\d+):(\d+)\]", lambda m: f"    s_memtime s[{m.group(1)}:{m.group(2)}]\n    s_memrealtime s[{int(m.group(1))+20}:{int(m.group(2))+20}]", r)
        for i in range(8): r = r.replace(f"v_mov_b32 v{65+2*i}, s{61+2*i}\n", f"v_mov_b32 v{65+2*i}, s{80+2*i}\n")
    return r

def full2(cfg, body):
    return HDR + f""".amdgcn_target "amdgcn-amd-amdhsa--gfx950"
.text
.globl {KN}
.p2align 8
.type {KN},@function
{KN}:
""" + head(cfg) + body + "\n" + tail(cfg) + f""".section .rodata,"a"
.p2align 6
.amdhsa_kernel {KN}
  .amdhsa_next_free_vgpr 512
  .amdhsa_next_free_sgpr 102
  .amdhsa_accum_offset 256
  .amdhsa_group_segment_fixed_size 0
  .amdhsa_kernarg_size 48
  .amdhsa_user_sgpr_count 2
  .amdhsa_user_sgpr_kernarg_segment_ptr 1
  .amdhsa_system_sgpr_workgroup_id_x 1
.end_amdhsa_kernel
"""

if __name__ == "__main__":
    cfg = Cfg()
    name = sys.argv[1]
    for a in sys.argv[2:]:
        k, v = a.split("=", 1)
        try: v = eval(v)
        except Exception: pass
        setattr(cfg, k, v)
    s = full(cfg)
    open(name, "w").write(s)
    tot = sum(v[0] for v in cfg.est.values())
    print(name, "est head", cfg.est_head, "total", tot, "mfma", sum(v[1] for v in cfg.est.values()), file=sys.stderr)
    print(" ".join(f"{s}:{v[0]}/{v[1]}" for s, v in cfg.est.items() if s < 16 or s >= 32), file=sys.stderr)
```

```python
import sys, math, struct
KN = "standalone__gqa_softmax__near_ridge_kernel"

class Cfg:
    sigma = (0, 2, 4, 6)
    beta = 0.80
    beta_small = 0.55
    ds_lat = 9
    mv_lat = 4
    store_x4 = True
    q_nt = "nt"
    st_pol = "sc0 sc1"
    k_pol = "nt"
    v_pol = ""
    v_pol0 = "nt"
    rot = 0
    split_from = 3
    split_min_u = 2
    arr_gap = 10
    vm_gap = 5
    smooth = True
    stamps = False
    code_pf = True
    plan = "K0 Q0 C K1 W00 V0 S0 B r0 r1 R0 K2 S1@0.0 V1@0.0 Q1@0.5 K3@1.0 V2@1.3 K4@1.6 R1@2.0 Q2@2.2 V3@2.3 K5@2.b K6@3.b R2@3.b Q3@4.0 K7@4.b R3@5.b Q4@6.0"
    deep = True
    tail_dl = 1.0
    betas = {0: 0.95, 1: 0.9, 2: 0.9, 3: 0.8}
    arr_gap_small = 4
    k_up = 1
    force_slow = False
    nop_ds = True
    ds_gap = 2
    ds_cap = 1024
    kill_from = None
    kill = ()
    limit_exp = 32

vQd, vO, vQr, vCnt, vD0, vD1, vChk = 1, 2, 3, 4, 5, 6, 7
vKl = 0
vV = 8
vS = 16
vL = 32
vR = 48
vKw = 50
vT = 52
NT = 6
vPoll = 58
vJ = 59
vKr = 60
vP = 64
vOa = 128
aQ, aOne, aCone, aKp1, aK, aKp, aV = 0, 64, 68, 72, 80, 128, 192
sQ_, sK_, sV_, sO_, sC_ = 12, 16, 20, 24, 28
sTile = 32
sM0 = 96
sQo, sOo, sCnt, sScale, sWave = 42, 43, 44, 45, 3
sTmp = 46
sMq, sExp = 52, 53

def vr(b, n=1): return [f"v{b+i}" for i in range(n)]
def ar(b, n=1): return [f"a{b+i}" for i in range(n)]
def vt(b, n): return f"v[{b}:{b+n-1}]"
def at(b, n): return f"a[{b}:{b+n-1}]"

class Op:
    def __init__(s, key, text, kind, reads, writes, cost=None, earliest=None, dummy=False, anchor=None, maxdl=None):
        s.key, s.text, s.kind, s.reads, s.writes = key, text, kind, list(reads), list(writes)
        s.cost = {"mfma": 0, "trans": 8, "valu": 4, "ds": 4, "dsw": 20, "load": 8, "dma": 8, "store": 12, "salu": 0, "bar": 0, "chk": 0}[kind] if cost is None else cost
        s.cnt = {"ds": "lgkm", "dsw": "lgkm", "load": "vm", "dma": "vm", "store": "vm"}.get(kind)
        s.earliest = earliest
        s.maxdl = maxdl
        s.dummy = dummy
        s.anchor = anchor
        s.preds = []; s.succs = []; s.win = None; s.pos = None; s.m = None
        s.prod = {}

def build(cfg, s0, s1, steady):
    sg = cfg.sigma
    NP = 4
    last = 32 + max(sg)
    def qk_on(s, u): return steady or (sg[u] <= s < sg[u] + 8 * NP)
    def pv_on(s, u): return steady or (sg[u] + 1 <= s < sg[u] + 8 * NP + 1)
    def order_qk(s, kb):
        us = [u for u in range(4) if qk_on(s, u)]
        if kb == 3:
            f = [u for u in us if (s - sg[u]) % 8 == 7]
            us = f + [u for u in us if u not in f]
        if kb == 0:
            f = [u for u in us if (s - sg[u]) % 8 == 0]
            us = [u for u in us if u not in f] + f
        return us
    prog = []
    A = prog.append
    chain = 0
    pend_q = []
    def qload(key, earliest=None, dummy=False):
        A(Op(key + ("m0",), f"s_mov_b32 m0, s{sMq}", "salu", [], ["m0"], dummy=dummy))
        for i in range(4):
            A(Op(key + (i,), f"buffer_load_dwordx4 v{vQd}, s[{sQ_}:{sQ_+3}], s{sQo} offen offset:{i*1024} {cfg.q_nt} lds".replace("  ", " "), "dma",
                 [f"s{sQo}", "m0"] + [f"Qrd{d}" for d in range(4)], [f"Qs{i}"], earliest=earliest, dummy=dummy))
        A(Op(key + ("inc",), f"s_add_u32 s{sQo}, s{sQo}, 4096", "salu", [f"s{sQo}"], [f"s{sQo}"], dummy=dummy))
    def qread(key, u, earliest=None, dummy=False):
        for ds in range(4):
            d = aQ + 16 * u + 4 * ds
            A(Op(key + (ds,), f"ds_read_b128 {at(d,4)}, v{vQr} offset:{ds*64}", "ds", [f"Qs{i}" for i in range(4)], ar(d, 4) + [f"Qrd{ds}"], earliest=earliest, dummy=dummy))
    def kfrag(t, kb, ds):
        if t == 0: return aKp + kb * 16 + ds * 4
        if (t, kb, ds) == (1, 0, 0): return aKp1
        return aK + (((t - 1) * 4 + kb) % 3) * 16 + ds * 4
    def vslot(sv):
        if not steady and cfg.deep and sv in (2, 3, 34, 35): return sv & 1
        return 2 + (sv & 1)
    def vprev(sv):
        if vslot(sv) < 2: return ["Kret67"] if sv > 8 else []
        p = sv - 2
        while p >= 0 and vslot(p) != vslot(sv): p -= 2
        return [f"Vret{p}"] if p >= 0 else []
    vissued = set()
    def vdma(sv, earliest=None):
        vissued.add(sv)
        A(Op(("m0", sv), f"s_mov_b32 m0, s{sM0 + vslot(sv)}", "salu", ["setup~"], ["m0"]))
        for i in range(4):
            A(Op(("dma", sv, i), f"buffer_load_dwordx4 v{vD0 + (i & 1)}, s[{sV_}:{sV_+3}], s{sTile + sv % 8} offen offset:{i*1024} {cfg.v_pol0 if (not steady and sv < 8) else cfg.v_pol} lds".replace("  ", " "), "dma",
                 ["m0"] + vprev(sv), [f"Vd{sv}_{i}"], earliest=earliest))
    kstage = {}
    def kregs(t):
        u = KST[t][0]; h = KST[t][1]
        if h == "P": return [vP + ds * 16 + u * 4 for ds in range(4)]
        return [vOa + (h * 4 + ds) * 16 + u * 4 for ds in range(4)]
    KST = [(1, 0), (1, 1), (2, 0), (2, 1), (3, 0), (3, 1), (3, "P"), (3, 0)]
    if cfg.k_up == 8: KST = [(0, 0), (0, 1), (1, 0), (1, 1), (2, 0), (2, 1), (3, 0), (3, 1)]
    def kload(t, earliest=None):
        for ds, r in enumerate(kregs(t)):
            A(Op(("kld", t, ds), f"buffer_load_dwordx4 {vt(r,4)}, v{vKl}, s[{sK_}:{sK_+3}], s{sTile + t} offen offset:{ds*1024} {cfg.k_pol}".rstrip(), "load",
                 [], vr(r, 4), earliest=earliest))
    tmpc = [0]
    def kscale(t, earliest=None):
        for ds, r in enumerate(kregs(t)):
            for j in range(4):
                x = r + j; tm = vT + tmpc[0] % NT; tmpc[0] += 1
                k = ("ksc", t, ds, j)
                A(Op(k + (0,), f"v_lshlrev_b32 v{tm}, 16, v{x}", "valu", vr(x), vr(tm), earliest=earliest))
                A(Op(k + (1,), f"v_and_b32 v{x}, 0xffff0000, v{x}", "valu", vr(x), vr(x), earliest=earliest))
                A(Op(k + (2,), f"v_mul_f32 v{tm}, s{sScale}, v{tm}", "valu", vr(tm), vr(tm)))
                A(Op(k + (3,), f"v_mul_f32 v{x}, s{sScale}, v{x}", "valu", vr(x), vr(x)))
                A(Op(k + (4,), f"v_cvt_pk_bf16_f32 v{x}, v{tm}, v{x}", "valu", vr(tm) + vr(x), vr(x)))
            tl = 3 if t == 0 else t
            if t == 4 and ds < 2:
                A(Op(("kwa", t, ds), f"v_add_u32 v{vKw + ds}, 0x10000, v{vKw + ds}", "valu", vr(vKw + ds), vr(vKw + ds)))
            A(Op(("kw", t, ds), f"ds_write_b128 v{vKw + (ds & 1)}, {vt(r,4)} offset:{(tl & 3) * 16384 + (ds >> 1) * 128}", "dsw",
                 vr(r, 4) + vr(vKw + (ds & 1)) + (["K0dead"] if t == 3 else []) + ([f"Vret{t-4}"] if t >= 6 and cfg.deep else []), [f"Kw{t}_{ds}"]))
    nmf = [0]
    kpub = set()
    def kread1(s, t, kb):
        for ds in range(4):
            perm = t == 0 or (t, kb, ds) == (1, 0, 0)
            if perm and (steady or s > 7): continue
            d = kfrag(t, kb, ds); tl = 3 if t == 0 else t
            A(Op(("kr", s, kb, ds), f"ds_read_b128 {at(d,4)}, v{vKr + 2 * (tl >> 2) + (ds & 1)} offset:{(tl & 3) * 16384 + kb * 4096 + ds * 1024}", "ds",
                 [] if (steady or s > 7) else [f"Kok{t}"], ar(d, 4) + ([] if not perm else [f"Kr0_{kb}_{ds}" if t == 0 else "Kr1"])))
    kdone0 = set(); kscaled = []
    later = {}
    if not steady:
        H = (-1, 0)
        def issue(item, when):
            n0 = len(prog)
            n = int(item[1:]) if item[1:].isdigit() else None
            if item[0] == "K": kload(n, when)
            elif item[0] == "Q": qload(("q0", n) if n < 4 else ("q", 8, 0), when)
            elif item[0] == "R": qread(("qr0", n), n, when)
            elif item[0] == "V": vdma(n, when)
            elif item[0] == "S": kscale(n, when); kscaled.append(n)
            elif item[0] == "r": kread1(0, 0, n); kdone0.add(n)
            elif item[0] == "W":
                A(Op(("wt", 0, item), "s_nop 0", "valu", vr(kregs(int(item[1]))[int(item[2])], 4), []))
            elif item[0] == "B":
                pub = [t for t in kscaled if t not in kpub]; kpub.update(pub)
                A(Op(("bar", -1), "s_barrier", "bar", [f"Kw{t}_{ds}" for t in pub for ds in range(4)], [f"Kok{t}" for t in pub], anchor=H))
            elif item[0] == "C":
                pf = f"buffer_load_dword v{vJ}, v{vJ}, s[{sC_}:{sC_+3}], 0 offen"
                A(Op(("cpf", 0), head2(cfg).replace("@CPF", "    " + pf).strip(), "load", [], ["junk"], earliest=when, cost=300))
                A(Op(("setup", 0), "s_nop 0", "valu", [], ["setup~", f"s{sExp}"]))
            if when == H:
                for x in prog[n0:]: x.maxdl = H
        for item in cfg.plan.split():
            if "@" not in item: issue(item, H)
            else:
                it, pos = item.split("@"); st, fr = pos.split(".")
                later.setdefault(int(st), []).append((it, fr))
    for s in range(s0, s1):
        t = s % 8
        uq = [u for u in range(4) if qk_on(s, u)]
        up = order_qk(s - 1, 3) if (steady or s > 0) else []
        up = [u for u in up if pv_on(s, u)]
        qk = [(kb, u) for kb in range(4) for u in order_qk(s, kb)]
        pv = []
        fin = [u for u in up if (s - 1 - sg[u]) % 8 == 7]
        ones_order = fin + [u for u in up if u not in fin]
        for db in range(8):
            for u in up: pv.append(("pv", db, u))
        npv = len(pv)
        ins = {}
        for i, u in enumerate(ones_order):
            if u in fin: p = len(up)
            else: p = len(up) + (npv - len(up)) * i // max(1, len(ones_order))
            ins.setdefault(p, []).append(("one", 0, u))
        pv2 = []
        for i, c in enumerate(pv):
            pv2 += ins.get(i, []); pv2.append(c)
        pv = pv2
        seq = []
        if qk:
            j = 0
            lag = 1 if len(uq) <= 2 and pv else 0
            for i, c in enumerate(qk):
                seq.append(("qk",) + c)
                tgt = math.ceil(max(0, i + 1 - lag) * len(pv) / (len(qk) - lag))
                while j < tgt: seq.append(pv[j]); j += 1
        else:
            seq = pv
        nm = sum(4 if c[0] == "qk" else 2 for c in seq)
        beta = cfg.beta if len(uq) >= 3 else cfg.beta_small
        barpos = int(beta * nm)
        if not steady and s in cfg.betas: barpos = int(cfg.betas[s] * nm)
        vdone = set(); kdone = set(kdone0) if (s == 0 and not steady) else set(); bar_done = False
        Pw = vP + 32 * (s & 1); Pr = vP + 32 * ((s - 1) & 1)
        def vreads(db):
            if db in vdone: return
            vdone.add(db)
            for ks in range(2):
                for h in range(2):
                    d = aV + db * 8 + ks * 4 + h * 2
                    A(Op(("vr", s, db, ks, h), f"ds_read_b64_tr_b16 {at(d,2)}, v{vV+db} offset:{vslot(s-1)*16384 + ks*8192 + h*4096}", "ds",
                         [f"Vok{s-1}"], ar(d, 2) + [f"Vr{s-1}_{db}_{ks}_{h}"]))
        def kreads(kb):
            if kb in kdone: return
            kdone.add(kb); kread1(s, t, kb)
        def barrier():
            rd = []; wr = []
            pubv, retv, nxt = [s], [s - 1], [s + 1]
            if not steady:
                if cfg.deep:
                    retv = {1: [], 2: [0], 3: [1], 4: [2], 5: [3, 4], 35: []}.get(s, retv)
                    pubv = {34: [34, 35], 35: [36, 37]}.get(s, pubv)
                    nxt = {0: [], 1: [], 2: [4], 3: [5], 4: [], 32: [33, 34, 35], 33: [36], 34: [37], 35: []}.get(s, nxt)
                    if s == 32: wr.append("Kret67")
                    if s >= 36: return
                if s >= last: return
                nxt = [v for v in nxt if v < last and v not in vissued and not any(it == f"V{v}" for l in later.values() for it, _ in l)]
            for v in retv:
                if v < 0: continue
                if v == s - 1:
                    for db in range(8): vreads(db)
                rd += [f"Vr{v}_{db}_{ks}_{h}" for db in range(8) for ks in range(2) for h in range(2)]
                wr.append(f"Vret{v}")
            for v in pubv:
                assert steady or v in vissued, v
                rd += [f"Vd{v}_{i}" for i in range(4)]; wr.append(f"Vok{v}")
            if not steady and s + 1 <= 7 and s + 1 not in kpub:
                if s + 1 not in kscaled: kscale(s + 1, ((s - 1, "bar") if s >= 1 else (-1, 0))); kscaled.append(s + 1)
                kpub.add(s + 1)
                rd += [f"Kw{s+1}_{ds}" for ds in range(4)]; wr.append(f"Kok{s+1}")
            if not steady and s == 1:
                rd += [f"Kr0_{kb}_{ds}" for kb in range(4) for ds in range(4)]; wr.append("K0dead")
                rd.append("Kr1"); wr.append("Cdead")
            if not steady and s == 2: rd.append("Czero")
            if (steady or s >= cfg.split_from) and len(uq) >= cfg.split_min_u:
                ag = cfg.arr_gap if len(uq) >= 3 else cfg.arr_gap_small
                A(Op(("arr", s), f"ds_add_u32 v{vCnt}, a{aCone}", "dsw", rd, ["Carr"], cost=8, anchor=(s, "bar", -ag - cfg.ds_lat - 1)))
                A(Op(("exp", s), f"s_add_u32 s{sExp}, s{sExp}, 4", "salu", [f"s{sExp}"], [f"s{sExp}"]))
                A(Op(("pol", s), f"ds_read_b32 v{vPoll}, v{vCnt}", "ds", ["Carr~"], vr(vPoll), anchor=(s, "bar", -cfg.ds_lat - 1)))
                A(Op(("cmp", s), f"v_cmp_gt_u32 vcc, s{sExp}, v{vPoll}", "valu", vr(vPoll) + [f"s{sExp}"], ["vcc"], anchor=(s, "bar", -2)))
                A(Op(("bar", s), f"s_cbranch_vccnz L_spin{s if (not steady and (s < 8 or s >= 32)) else 8 + s % 8}", "bar", ["vcc"] + vr(vPoll) + [f"s{sExp}"], wr, anchor=(s, "bar")))
            else:
                A(Op(("bar", s), "s_barrier", "bar", rd, wr, anchor=(s, "bar")))
            if not steady and s == 1:
                A(Op(("cz", 1), f"ds_write_b32 v{vCnt}, a{aCone + 1}", "dsw", ["Cdead"], ["Czero"], cost=8))
            for v in nxt: vdma(v, None)
            for it, fr in later.get(s, []):
                if fr == "b": issue(it, (s, "bar"))
        todo_items = [(it, int(fr) / 10 ** len(fr)) for it, fr in later.get(s, []) if fr != "b"]
        mcount = 0
        for c in seq:
            if not bar_done and mcount >= barpos:
                barrier(); bar_done = True
            while todo_items and mcount >= todo_items[0][1] * nm:
                issue(todo_items.pop(0)[0], (s, "off", mcount))
            if c[0] == "qk":
                _, kb, u = c
                kreads(kb)
                if kb == 0 and (s - sg[u]) % 8 == 0 and (steady or s - sg[u] >= 8):
                    qread(("qr", s, u), u)
                    un = (u + 1) % 4; sn = s + (sg[un] - sg[u]) % 8
                    pend_q.append((("q", sn, un), not steady and sn - sg[un] >= 8 * NP))
                    if True:
                        k_, d_ = pend_q.pop(); qload(k_, dummy=d_)
                S = vS + 4 * (chain % 4); chain += 1
                for ds in range(4):
                    kf = kfrag(t, kb, ds); qf = aQ + u * 16 + ds * 4
                    A(Op(("qk", s, kb, u, ds), f"v_mfma_f32_16x16x32_bf16 {vt(S,4)}, {at(kf,4)}, {at(qf,4)}, {'0' if ds == 0 else vt(S,4)}", "mfma",
                         ar(kf, 4) + ar(qf, 4) + ([] if ds == 0 else vr(S, 4)), vr(S, 4)))
                for r in range(4):
                    A(Op(("ex", s, kb, u, r), f"v_exp_f32 v{S+r}, v{S+r}", "trans", vr(S + r), vr(S + r)))
                pd = Pw + (kb >> 1) * 16 + u * 4 + (kb & 1) * 2
                for r in range(2):
                    A(Op(("cv", s, kb, u, r), f"v_cvt_pk_bf16_f32 v{pd+r}, v{S+2*r}, v{S+2*r+1}", "valu", vr(S + 2 * r, 2), vr(pd + r)))
                mcount += 4
            elif c[0] == "pv":
                _, db, u = c
                vreads(db)
                first = (s - 1 - sg[u]) % 8 == 0
                o = vOa + db * 16 + u * 4
                for ks in range(2):
                    vf = aV + db * 8 + ks * 4; pf = Pr + ks * 16 + u * 4
                    z = first and ks == 0
                    A(Op(("pv", s, db, u, ks), f"v_mfma_f32_16x16x32_bf16 {vt(o,4)}, {at(vf,4)}, {vt(pf,4)}, {'0' if z else vt(o,4)}", "mfma",
                         ar(vf, 4) + vr(pf, 4) + ([] if z else vr(o, 4)), vr(o, 4)))
                mcount += 2
            else:
                _, _, u = c
                first = (s - 1 - sg[u]) % 8 == 0
                l = vL + 4 * u
                for ks in range(2):
                    pf = Pr + ks * 16 + u * 4; z = first and ks == 0
                    A(Op(("on", s, u, ks), f"v_mfma_f32_16x16x32_bf16 {vt(l,4)}, {at(aOne,4)}, {vt(pf,4)}, {'0' if z else vt(l,4)}", "mfma",
                         vr(pf, 4) + ([] if z else vr(l, 4)), vr(l, 4)))
                mcount += 2
        if not bar_done: barrier()
        for it, _ in todo_items: issue(it, (s, "off", mcount))
        if not steady and s == 31:
            qread(("qr", 32, 0), 0, dummy=True)
            qload(("q", 32 + sg[1], 1), dummy=True)
        for u in sorted(fin):
            l = vL + 4 * u; R = vR + (u & 1)
            A(Op(("rc", s, u), f"v_rcp_f32 v{R}, v{l}", "trans", vr(l), vr(R)))
            A(Op(("ck", s, u), f"v_max3_u32 v{vChk}, v{vChk}, v{l}, v{R}", "valu", vr(vChk) + vr(l) + vr(R), vr(vChk)))
            for db in range(8):
                o = vOa + db * 16 + u * 4
                for r in range(4):
                    A(Op(("mu", s, u, db, r), f"v_mul_f32 v{o+r}, v{o+r}, v{R}", "valu", vr(o + r) + vr(R), vr(o + r)))
                if not cfg.store_x4:
                    for r in range(2):
                        A(Op(("oc", s, u, db, r), f"v_cvt_pk_bf16_f32 v{o+r}, v{o+2*r}, v{o+2*r+1}", "valu", vr(o + 2 * r, 2), vr(o + r)))
                    A(Op(("st", s, u, db), f"buffer_store_dwordx2 {vt(o,2)}, v{vO}, s[{sO_}:{sO_+3}], s{sOo} offen offset:{db*32} {cfg.st_pol}".rstrip(), "store",
                         vr(o, 2) + [f"s{sOo}"], []))
                else:
                    if db & 1:
                        e = o - 16
                        A(Op(("oc", s, u, db, 3), f"v_cvt_pk_bf16_f32 v{o+3}, v{o+2}, v{o+3}", "valu", vr(o + 2, 2), vr(o + 3)))
                        A(Op(("oc", s, u, db, 2), f"v_cvt_pk_bf16_f32 v{o+2}, v{o}, v{o+1}", "valu", vr(o, 2), vr(o + 2)))
                        A(Op(("oc", s, u, db, 0), f"v_cvt_pk_bf16_f32 v{o}, v{e}, v{e+1}", "valu", vr(e, 2), vr(o)))
                        A(Op(("oc", s, u, db, 1), f"v_cvt_pk_bf16_f32 v{o+1}, v{e+2}, v{e+3}", "valu", vr(e + 2, 2), vr(o + 1)))
                        for r in range(2):
                            A(Op(("sw", s, u, db, r), f"v_permlane16_swap_b32 v{o+r}, v{o+2+r}", "valu", vr(o + r) + vr(o + 2 + r), vr(o + r) + vr(o + 2 + r)))
                        A(Op(("st", s, u, db), f"buffer_store_dwordx4 {vt(o,4)}, v{vO}, s[{sO_}:{sO_+3}], s{sOo} offen offset:{(db-1)*32} {cfg.st_pol}".rstrip(), "store",
                             vr(o, 4) + [f"s{sOo}"], [], cost=20))
            if not steady and 32 <= s < last:
                for x in prog:
                    if x.key[:3] == ("st", s, u): x.maxdl = (s + 1, "frac", (x.key[3] + 1) / 8 * cfg.tail_dl)
            A(Op(("oinc", s, u), f"s_add_u32 s{sOo}, s{sOo}, 4096", "salu", [f"s{sOo}"], [f"s{sOo}"]))
    return prog

def link(cfg, prog):
    lastw = {}; readers = {}
    m = 0
    for x in prog:
        if x.kind == "mfma": x.m = m; m += 1
    for x in prog:
        e = {}
        def add(p, typ):
            if p is x: return
            soft = hard = 0
            if p.kind == "mfma":
                if x.kind == "mfma": return
                if typ in ("raw", "waw"): soft = cfg.mv_lat
                elif x.kind in ("valu", "trans"): soft = 1
            elif x.kind == "mfma":
                hard = soft = 1
                if typ == "raw":
                    soft = cfg.ds_lat if p.kind == "ds" else (1 if p.kind == "load" else 2)
                elif p.kind == "store": soft = 2
            elif x.kind == "bar" or x.key[0] == "arr":
                hard = 1; soft = {"ds": cfg.ds_lat, "dsw": cfg.ds_lat, "dma": 2}.get(p.kind, 1)
            elif p.kind == "bar":
                soft = hard = 0
            elif p.kind == "salu":
                soft = 2; hard = 1 if x.kind != "salu" else 1
            elif x.kind == "salu":
                soft = hard = 1
            elif typ == "raw":
                if p.kind == "trans": soft = 1
                elif p.kind == "ds" and x.kind == "dma": soft = cfg.ds_lat
                elif p.kind == "valu" and x.kind in ("store", "dsw", "ds"): soft = 1
                elif p.kind == "valu" and "permlane" in x.text: soft = 2
            else:
                if p.kind in ("valu", "trans") and x.kind in ("load", "ds", "dma"): soft = 1
                if p.kind in ("store", "dsw"): soft = 1
            o = e.get(id(p))
            e[id(p)] = (p, max(soft, o[1]) if o else soft, max(hard, o[2]) if o else hard)
        for r in x.reads:
            if r in lastw: add(lastw[r], "raw"); x.prod[r] = lastw[r].key
        for r in x.writes:
            if r in lastw: add(lastw[r], "waw")
            for p in readers.get(r, []): add(p, "war")
        for r in x.reads: readers.setdefault(r, []).append(x)
        for r in x.writes: lastw[r] = x; readers[r] = []
        x.preds = list(e.values())
        for p, so, ha in x.preds: p.succs.append((x, so, ha))
    return m

def step_of(x): return x.key[1]

def schedule(cfg, prog, nm, pins=None, lo=None, hi=None):
    pins = pins or {}; lo = lo or {}; hi = hi or {}
    start = {}; barw = {}
    cur = -1
    for x in prog:
        if x.kind == "mfma":
            cur = x.m; start.setdefault(x.key[1], x.m)
        elif x.kind == "bar": barw[x.key[1]] = cur
    def W(a):
        if a[0] == -1: return -1
        if a[1] == "bar": return barw.get(a[0], nm - 1) + (a[2] if len(a) > 2 else 0)
        if a[1] == "frac": return start[a[0]] - 1 + int(a[2] * (start.get(a[0] + 1, nm) - start[a[0]]))
        if a[1] == "off": return max(0, start[a[0]] - 1 + a[2])
        return start[a[0]] - 1
    fill = [x for x in prog if x.kind != "mfma"]
    for x in prog:
        if x.kind == "mfma": x.win = x.m
    for i, x in enumerate(prog): x.idx = i
    for x in reversed(fill):
        if x.key in pins: x.dls = x.dlh = pins[x.key][0]; continue
        if x.anchor: x.dls = x.dlh = W(x.anchor); continue
        ds = dh = nm - 1
        for y, so, ha in x.succs:
            if y.dummy and y.key not in pins: continue
            if y.kind == "mfma": ds = min(ds, y.m - so); dh = min(dh, y.m - ha)
            else: ds = min(ds, y.dls - so); dh = min(dh, y.dlh - ha)
        if x.key in hi: ds = min(ds, hi[x.key]); dh = min(dh, hi[x.key])
        if x.maxdl: ds = min(ds, W(x.maxdl)); dh = min(dh, W(x.maxdl))
        x.dls, x.dlh = ds, max(dh, -1)
    wins = {w: [] for w in range(-1, nm)}
    for x in fill:
        x.win = None
        x.lo = max(W(x.earliest) if x.earliest else -1, lo.get(x.key, -1))
        if x.anchor: x.lo = x.dlh
    pinned_by_win = {}
    for x in fill:
        if x.key in pins: pinned_by_win.setdefault(pins[x.key][0], []).append(x)
    todo = [x for x in fill if x.key not in pins and not x.dummy]
    todo.sort(key=lambda x: x.idx)
    credit = [0]
    def ready(x, w, soft):
        if w < x.lo: return False
        for p, so, ha in x.preds:
            if p.dummy and p.key not in pins: continue
            if p.win is None: return False
            lat = ha
            if soft and (p.kind not in ("load", "dma", "ds", "dsw") or x.kind == "dma"): lat = so
            if p.kind in ("store", "dsw") and soft: lat = max(lat, min(so, 1))
            if w == -1 or w == nm - 1: lat = 0
            if w < p.win + lat: return False
        return True
    for w in range(-1, nm):
        if w in pinned_by_win:
            for x in sorted(pinned_by_win[w], key=lambda x: pins[x.key][1]):
                x.win = w; wins[w].append(x)
        if pins and cfg._loop[0] <= w < cfg._loop[1]: continue
        cap = 8 if w >= 0 else 0
        rate = 8
        if cfg.smooth and pins and 0 <= w < nm - 1:
            acc = 0
            for x in sorted((x for x in todo[:900] if x.dls <= w + 120), key=lambda x: x.dls):
                acc += min(x.cost, 8)
                rate = max(rate, acc / (max(x.dls, w) - w + 1))
            credit[0] = credit[0] + rate - 8 if rate > 8.2 else 0
            credit[0] = min(credit[0], rate)
            extra = int(credit[0] // 4) * 4
            cap += extra
        used = 0
        cur = wins[w]
        def place(x):
            nonlocal used
            x.win = w; cur.append(x); used += min(x.cost, 8); todo.remove(x)
        while True:
            cand = [x for x in todo[:700] if ready(x, w, True) or (w >= x.dlh and ready(x, w, False))]
            if not cand: break
            z = [x for x in cand if x.kind in ("salu", "bar")]
            if z:
                place(z[0]); continue
            forced = [x for x in cand if x.dls <= w]
            if w == -1 or w == nm - 1:
                if not forced: break
                place(min(forced, key=lambda x: x.idx)); continue
            hasvalu_dep = lambda x: x.kind in ("ds", "dsw", "load", "dma", "store") and any(p.win == w and p.kind in ("valu", "trans") for p, _, _ in x.preds)
            hard_forced = forced
            if hard_forced:
                place(min(hard_forced, key=lambda x: (x.dls, x.idx))); continue
            if used >= cap: break
            nb = lambda x: 1024 if "b128" in x.text else 512
            dsb = sum(nb(x) for x in cur if x.kind == "ds")
            tight = rate > 8.2
            recent = (not tight) and any(y.kind == "ds" for k in range(1, cfg.ds_gap) for y in wins.get(w - k, []))
            vmk = ("load", "dma", "store")
            vgap = max(1, int(cfg.vm_gap * 16 / (8 + rate)))
            recent_vm = any(y.kind in vmk for k in range(0, vgap) for y in wins.get(w - k, []))
            dcap = cfg.ds_cap * (8 + cap) // 16
            cand = [x for x in cand if (x.kind != "ds" or (not recent and dsb + nb(x) <= dcap)) and not (x.kind in vmk and recent_vm)]
            if not cand: break
            cand.sort(key=lambda x: (-99999 if x.kind in ("load", "dma", "dsw", "store") else x.dls, x.idx))
            if cap - used >= 8:
                top = cand[0]
                if top.cost >= 8: place(top); continue
                small = [x for x in cand if x.cost == 4]
                big = [x for x in cand if x.cost >= 8]
                fits = lambda a, b: not (a.kind == "ds" and b.kind == "ds" and dsb + nb(a) + nb(b) > dcap)
                partner = any(fits(top, y) for y in small if y is not top) or any(y.cost == 4 and so == 0 and y.win is None and y.kind == "valu" and all(p.win is not None or p is top for p, _, _ in y.preds) for y, so, ha in top.succs)
                if partner or not big or (cap - used) % 8: place(top)
                else: place(big[0])
                continue
            small = [x for x in cand if x.cost == 4]
            if not small: break
            place(small[0])
        if w >= 0: credit[0] -= max(0, min(used, cap) - 8)
        if w not in (-1, nm - 1):
            order = {"bar": 0, "salu": 0, "dma": 1, "load": 1, "store": 1, "dsw": 1, "ds": 1, "valu": 2, "trans": 2}
            lvl = {}
            for x in cur:
                l = order[x.kind]
                for p, _, _ in x.preds:
                    if p.win == w and p.kind != "mfma": l = max(l, lvl[id(p)])
                lvl[id(x)] = l
            cur.sort(key=lambda x: lvl[id(x)])
    assert not todo, [x.key for x in todo[:10]]
    for w, c in wins.items():
        for i, x in enumerate(c): x.pos = i
    return wins, start

def norm(key, d):
    return (key[0], key[1] + d) + tuple(key[2:])

class Ins:
    def __init__(s, text, op=None, kind=None):
        s.text, s.op, s.kind = text, op, kind or (op.kind if op else "salu")
        s.vm = None; s.lg = None

def generate(cfg):
    last = 32 + max(cfg.sigma)
    cfg.q_ahead = getattr(cfg, "q_ahead", 2)
    cfg.code_pf_n = getattr(cfg, "code_pf_n", 2)
    sp = build(cfg, 0, 56, True); nms = link(cfg, sp)
    swins, sstart = schedule(cfg, sp, nms)
    per = sstart[8] - sstart[0]
    ok = None
    for b in (16, 24, 32):
        same = all([x.text for x in swins[sstart[b] + i]] == [x.text for x in swins[sstart[b + 8] + i]] and
                   [norm(x.key, 8) for x in swins[sstart[b] + i]] == [x.key for x in swins[sstart[b + 8] + i]] for i in range(per))
        if same: ok = b; break
    assert ok is not None, "steady state not periodic"
    rp = build(cfg, 0, last + 1, False); nm = link(cfg, rp)
    rstart = {}
    for x in rp:
        if x.kind == "mfma": rstart.setdefault(x.key[1], x.m)
    L0, L1 = rstart[8], rstart[32]
    assert L1 - L0 == 3 * per
    cfg._loop = (L0, L1)
    pins = {}
    for it in range(3):
        for i in range(per):
            for x in swins[sstart[ok] + i]:
                pins[norm(x.key, 8 + 8 * it - ok)] = (L0 + it * per + i, x.pos)
    keys = {x.key: x for x in rp}
    assert len(keys) == len(rp)
    missing = [k for k in pins if k not in keys]
    assert not missing, missing[:10]
    lo = {}; hi = {}
    mid = (keys[("qk", 20, 0, 0, 0)])
    midx = rp.index(mid)
    for i, x in enumerate(rp):
        if x.kind == "mfma" or x.key in pins: continue
        if i < midx: hi[x.key] = L0 - 1
        else: lo[x.key] = L1
    wins, start = schedule(cfg, rp, nm, pins, lo, hi)
    mf = [x for x in rp if x.kind == "mfma"]
    def stat(w):
        return L0 + (w - L0) % per if L0 <= w < L1 else w
    free = {}
    pre = {}
    for w in range(-1, nm):
        if stat(w) == w:
            free[w] = []
            if w not in (-1, nm - 1):
                for x in wins[w]:
                    if x.kind == "bar": free[w].append(Ins(x.text, x))
    def body(w):
        if w in (-1, nm - 1): return wins[w]
        return [x for x in wins[w] if x.kind not in ("salu", "bar")]
    def walk(fix):
        q = {"vm": [], "lgkm": []}
        pend = {}
        hist = {}
        changed = False
        def dowait(ins):
            for c, n in (("vm", ins.vm), ("lgkm", ins.lg)):
                if n is None: continue
                while len(q[c]) > n:
                    d = q[c].pop(0)
                    for r in d.writes:
                        if pend.get(r) is d: del pend[r]
        def need(x):
            n = {}
            for r in x.reads + x.writes:
                p = pend.get(r)
                if p is not None and not (r in x.writes and r not in x.reads and p.cnt == x.cnt):
                    n[p.cnt] = p if (p.cnt not in n or q[p.cnt].index(p) > q[p.cnt].index(n[p.cnt])) else n[p.cnt]
            return n
        def issue(x):
            if x.cnt:
                q[x.cnt].append(x)
                for r in x.writes: pend[r] = x
        def setw(ins, c, n):
            n = min(n, 62 if c == "vm" else 14)
            if c == "vm": ins.vm = n if ins.vm is None else min(ins.vm, n)
            else: ins.lg = n if ins.lg is None else min(ins.lg, n)
        def handle(x, w, pos, cands):
            nonlocal changed
            n = need(x)
            if not n: return
            assert fix, ("unwaited", x.key, {c: p.key for c, p in n.items()})
            changed = True
            for c, p in n.items():
                done = False
                for cw in cands:
                    if cw < 0 or cw == nm - 1 or cw not in hist: continue
                    snap = hist[cw][c]
                    if p not in snap: continue
                    fl = free[stat(cw)]
                    wi = [i for i in fl if i.kind == "wait"]
                    if not wi and fl and cw != cands[-1]: continue
                    if not wi:
                        wi = [Ins("", None, "wait")]; fl.insert(0, wi[0])
                    setw(wi[0], c, len(snap) - 1 - snap.index(p)); done = True; break
                if not done:
                    ins = pre.setdefault((stat(w), pos), Ins("", None, "wait"))
                    setw(ins, c, len(q[c]) - 1 - q[c].index(p))
                while p in q[c]:
                    d = q[c].pop(0)
                    for r in d.writes:
                        if pend.get(r) is d: del pend[r]
        for w in range(-1, nm):
            if w >= 0:
                if (stat(w), "m") in pre: dowait(pre[(stat(w), "m")])
                handle(mf[w], w, "m", [w - 1, w - 2])
            hist[w] = {c: list(v) for c, v in q.items()}
            hist.pop(w - 4, None)
            for ins in list(free[stat(w)]):
                if ins.kind == "wait": dowait(ins)
                elif ins.kind == "bar":
                    x = [y for y in wins[w] if y.kind == "bar"][0]
                    handle(x, w, "b", [w - 1, w - 2, w])
            for pos, x in enumerate(body(w)):
                if (stat(w), pos) in pre: dowait(pre[(stat(w), pos)])
                handle(x, w, pos, [w, w - 1])
                issue(x)
        return changed
    for _ in range(10):
        if not walk(True): break
    walk(False)
    for w in range(0, nm - 1):
        if stat(w) != w: continue
        for x in wins[w]:
            if x.kind != "salu": continue
            hiw = min([y.win - (1 if "m0" in x.writes or y.kind == "salu" else 0) for y, _, _ in x.succs if y.win is not None] + [w + 40, nm - 2])
            if L0 <= w < L0 + per: hiw = min(hiw, L0 + per - 3)
            elif w < L0: hiw = min(hiw, L0 - 1)
            hiw = max(hiw, w)
            c = [k for k in range(w, hiw + 1) if not free[k]]
            c2 = [k for k in c if body(k) and body(k)[0].kind in ("ds", "dma", "load", "store", "dsw")]
            k = c2[0] if c2 else (c[0] if c else w)
            free[k].append(Ins(x.text, x)); x.fw = k
    k = [k for k in range(L0 + per - 2, L0 + per) if not free[k]]
    k = k[0] if k else L0 + per - 1
    assert not any(i.kind == "salu" for kk in range(k, L0 + per) for i in free[kk])
    free[k].append(Ins(f"s_sub_u32 s{sCnt}, s{sCnt}, 1"))
    if cfg.nop_ds:
        for w in range(0, nm - 1):
            if stat(w) == w and not free[w] and body(w) and body(w)[0].kind in ("ds", "dma", "load", "store", "dsw"):
                free[w].append(Ins("s_nop 0", None, "nop"))
    def wtext(i):
        t = "s_waitcnt"
        if i.vm is not None: t += f" vmcnt({i.vm})"
        if i.lg is not None: t += f" lgkmcnt({i.lg})"
        return t
    code = {}
    for w in range(-1, nm):
        if stat(w) != w: continue
        l = []
        if w >= 0:
            if (w, "m") in pre: l.append(pre[(w, "m")])
            l.append(Ins(mf[w].text, mf[w]))
        l += free[w]
        for pos, x in enumerate(body(w)):
            if (w, pos) in pre: l.append(pre[(w, pos)])
            l.append(Ins(x.text, x))
        for i in l:
            if i.kind == "wait": i.text = wtext(i)
        code[w] = l
    def wcost(l, head=False):
        t = 0; base = 0; lastvalu = -99
        for i in l:
            if i.kind == "mfma": base = t; t += 4; continue
            if i.kind in ("salu", "wait", "bar", "nop"): t += 4; continue
            if i.kind == "nopx": t += 4 * (int(i.text.split()[1]) + 1); continue
            if not head: t = max(t, base + 8)
            if i.kind in ("valu", "trans"): t += i.op.cost; lastvalu = t
            else:
                t = max(t, lastvalu + 8) + i.op.cost
        return t if head else max(t, base + 16)
    def hazards(fix):
        seq = []
        changed = False
        for w in range(-1, nm):
            l = code[stat(w)]
            j = 0
            while j < len(l):
                i = l[j]; x = i.op
                needn = 0
                if x is not None and x.kind not in ("salu", "bar"):
                    dist = 0
                    for p, st, pwin in reversed(seq):
                        y = p.op
                        if y is not None:
                            req = 0
                            raw = set(y.writes) & set(x.reads); waw = set(y.writes) & set(x.writes); war = set(y.reads) & set(x.writes)
                            if y.kind == "mfma":
                                if x.kind == "mfma":
                                    nab = 8 if x.key[0] != "on" else 4
                                    if set(y.writes) & set(x.reads[:nab]): req = 8
                                elif raw or waw: req = 8
                                elif war and x.kind in ("valu", "trans") and set(y.writes) & set(x.writes): req = 3
                            elif y.kind in ("valu", "trans"):
                                if raw and x.kind == "mfma": req = 2
                                if raw and "permlane" in x.text: req = 2
                                if raw and y.kind == "trans" and x.kind != "trans": req = max(req, 1)
                            elif y.kind in ("store", "dsw") and war and y.cost == 20: req = 2
                            elif y.kind == "salu" and "m0" in y.writes and x.kind == "dma": req = 1
                            if req - dist > needn: needn = req - dist; pw = pwin
                        dist += st
                        if dist >= 8: break
                if needn > 0:
                    assert fix, ("hazard", x.key)
                    for k in range(w, pw - 1, -1):
                        if k < 0: break
                        lk = code[stat(k)]
                        mi = [n for n, z in enumerate(lk) if z.kind == "mfma"][0]
                        places = []
                        if k > pw and (k < w or j > mi): places.append(mi + 1)
                        if k < w: places.append(len(lk))
                        ok_ = False
                        for pl in places:
                            tr = lk[:pl] + [Ins("s_nop 0", None, "nopx")] + lk[pl:]
                            if wcost(tr) == wcost(lk): lk[:] = tr; ok_ = True; break
                        if ok_: return True
                    l.insert(j, Ins(f"s_nop {needn-1}", None, "nopx")); changed = True
                    continue
                st = int(i.text.split()[1]) + 1 if i.text.startswith("s_nop") else 1
                seq.append((i, st, w)); seq = seq[-10:]
                j += 1
        return changed
    while hazards(True): pass
    lastw = {}; seen = set()
    for w in range(-1, nm):
        it = (w - L0) // per if L0 <= w < L1 else 0
        for i in code[stat(w)]:
            if i.op is None: continue
            x = keys[norm(i.op.key, 8 * it)]
            assert x.text == i.text, (x.text, i.text)
            assert x.key not in seen; seen.add(x.key)
            if not x.dummy:
                for r in x.reads:
                    assert lastw.get(r) == x.prod.get(r), ("dataflow", x.key, r, lastw.get(r), x.prod.get(r))
            for r in x.writes: lastw[r] = x.key
    assert all(x.key in seen or x.dummy for x in rp), [x.key for x in rp if x.key not in seen and not x.dummy][:5]
    est = {}
    for s in range(0, last + 1):
        e = rstart.get(s + 1, nm)
        est[s] = (sum(wcost(code[stat(w)]) for w in range(rstart[s], e)), (e - rstart[s]) * 16)
    cfg.est = est; cfg.est_head = wcost(code[-1], True)
    out = []
    cfg.spins = []
    E = out.append
    stamp_at = getattr(cfg, "stamp_steps", [])
    inv = {v: k for k, v in rstart.items()}
    for w in range(-1, nm):
        if stat(w) != w: continue
        if w == L0: E("L_loop:")
        if w in inv:
            E(f"; ---- step {inv[w]} ----")
            if cfg.stamps and inv[w] in stamp_at:
                j = stamp_at.index(inv[w]); E(f"    s_memrealtime s[{64+2*j}:{65+2*j}]")
        for i in code[w]:
            if i.op is not None and i.op.key[0] in cfg.kill and (L0 if cfg.kill_from is None else cfg.kill_from) <= w: E("    s_nop 0")
            else: E("    " + i.text)
            if i.text.startswith("s_cbranch_vccnz L_spin"):
                n = i.text.split("L_spin")[1]; E(f"L_back{n}:"); cfg.spins.append(n)
        if w == L0 + per - 1: E("    s_cbranch_scc0 L_loop")
    return "\n".join(out)

def fbits(x): return struct.unpack("<I", struct.pack("<f", x))[0]

def head(cfg):
    T = vS
    h = f"""    s_load_dwordx4 s[4:7], s[0:1], 0          ; q, k
    s_load_dwordx4 s[8:11], s[0:1], 16        ; v, out
"""
    if cfg.stamps: h += f"    s_load_dwordx2 s[56:57], s[0:1], {32 if cfg.stamps in ('dbg', 'skew') else 40}\n    s_memrealtime s[60:61]\n"
    h += f"""    v_lshrrev_b32 v{T}, 6, v0
    v_and_b32 v{T+4}, 63, v0                  ; lane
    v_readfirstlane_b32 s{sWave}, v{T}
    s_cmp_ge_u32 s2, 256
    s_cbranch_scc1 L_end
    v_and_b32 v{T+1}, 15, v0                  ; l & 15
    v_bfe_u32 v{T+2}, v0, 4, 2                ; l >> 4
    v_lshlrev_b32 v{vKl}, 4, v{T+4}           ; lane*16
    s_and_b32 s{sTmp}, s2, 7
    s_lshr_b32 s{sTmp+1}, s2, 3
    s_lshl_b32 s{sTmp}, s{sTmp}, 5
    s_add_u32 s{sTmp}, s{sTmp}, s{sTmp+1}
    s_lshl2_add_u32 s{sTmp+2}, s{sTmp}, s{sWave}
    s_lshl_b32 s{sTmp+2}, s{sTmp+2}, 16       ; q/o byte offset of this wave
    s_lshr_b32 s{sTmp}, s{sTmp}, 2
    s_lshl_b32 s{sTmp}, s{sTmp}, 17           ; k/v byte offset of the group
    s_lshl_b32 s{sMq}, s{sWave}, 12           ; wave*4096
    s_add_u32 s{sTmp+3}, s{sTmp}, s{sMq}
    s_sub_u32 s{sK_+2}, 0x20000, s{sMq}
    s_mov_b32 s{sK_+3}, 0x20000
    s_mov_b32 s{sQ_+3}, s{sK_+3}
    s_mov_b32 s{sQ_+2}, 0x10000
"""
    if cfg.rot:
        h += f"""    s_bfe_u32 s{sTmp+4}, s2, 0x20003
    s_mul_i32 s{sTile}, s{sTmp+4}, {cfg.rot*16384}
    s_and_b32 s{sTile}, s{sTile}, 0x1ffff
    s_add_u32 s{sTile+1}, s{sTile}, 16384
    s_and_b32 s{sTile+1}, s{sTile+1}, 0x1ffff
"""
    else: h += f"    s_mov_b32 s{sTile}, 0\n    s_movk_i32 s{sTile+1}, 0x4000\n"
    h += f"""    s_mov_b32 s{sQo}, 0
    v_lshlrev_b32 v{T+3}, 8, v{T+2}           ; (l>>4)*256
    v_xor_b32 v{T+5}, v{T+1}, v{T+2}          ; (l&15) ^ (l>>4)
    v_lshl_add_u32 v{vQd}, v{T+5}, 4, v{T+3}
    s_waitcnt lgkmcnt(0)
    s_add_u32 s{sK_}, s6, s{sTmp+3}
    s_addc_u32 s{sK_+1}, s7, 0
    s_add_u32 s{sQ_}, s4, s{sTmp+2}
    s_addc_u32 s{sQ_+1}, s5, 0
"""
    if cfg.stamps: h += "    s_memrealtime s[62:63]\n"
    return h

def head2(cfg):
    c = math.log2(math.e) / math.sqrt(128.0)
    T = vS
    h = f"""    ; code prefetch into L2: 16 lines per wave, 8 KiB per workgroup
    s_getpc_b64 s[{sC_}:{sC_+1}]
L_pc:
    s_mov_b32 s{sC_+2}, L_slow - L_pc
    s_mov_b32 s{sC_+3}, 0x20000
    s_bfe_u32 s{sTmp+1}, s2, 0x30003
    s_lshl2_add_u32 s{sTmp+1}, s{sTmp+1}, s{sWave}
    s_lshl_b32 s{sTmp+1}, s{sTmp+1}, 11
    v_lshlrev_b32 v{vJ}, 5, v{T+4}
    v_add_u32 v{vJ}, s{sTmp+1}, v{vJ}
@CPF
    s_add_u32 s{sV_}, s8, s{sTmp}
    s_addc_u32 s{sV_+1}, s9, 0
    s_add_u32 s{sO_}, s10, s{sTmp+2}
    s_addc_u32 s{sO_+1}, s11, 0
    s_mov_b32 s{sV_+2}, 0x20000
    s_mov_b32 s{sV_+3}, 0x20000
    s_mov_b32 s{sO_+2}, 0x10000
    s_mov_b32 s{sO_+3}, 0x20000
"""
    for t in range(2, 8):
        if cfg.rot: h += f"    s_add_u32 s{sTile+t}, s{sTile+t-1}, 16384\n    s_and_b32 s{sTile+t}, s{sTile+t}, 0x1ffff\n"
        else: h += f"    s_mov_b32 s{sTile+t}, {t*16384}\n"
    h += f"""    s_add_u32 s{sM0}, s{sMq}, 0x18000
    s_add_u32 s{sM0+1}, s{sMq}, 0x1c000
    s_add_u32 s{sM0+2}, s{sMq}, 0x20000
    s_add_u32 s{sM0+3}, s{sMq}, 0x24000
    s_mov_b32 s{sOo}, 0
    s_mov_b32 s{sExp}, 0
    s_mov_b32 s{sCnt}, 2
    s_mov_b32 s{sScale}, {fbits(c):#x}
    ; K fragment read addresses: g*256 + (key ^ g ^ 4*(ds&1))*16
    v_mov_b32 v{vKr}, v{vQd}
    v_xor_b32 v{vKr+1}, 64, v{vQd}
    v_add_u32 v{vKr+2}, 0x10000, v{vKr}
    v_add_u32 v{vKr+3}, 0x10000, v{vKr+1}
    v_and_b32 v{T+6}, 7, v{T+5}
    v_lshlrev_b32 v{T+7}, 8, v{T+1}           ; (l&15)*256
    v_lshl_add_u32 v{T+6}, v{T+6}, 4, v{T+7}
    v_add_u32 v{vKw}, s{sMq}, v{T+6}
    v_xor_b32 v{vKw+1}, 64, v{vKw}
    v_and_b32 v{T+6}, 3, v{T+5}
    v_lshl_add_u32 v{T+6}, v{T+6}, 4, v{T+7}
    v_add_u32 v{vQr}, s{sMq}, v{T+6}
    ; V DMA source offsets: row r=l>>4, unit (c16>>1)^(key&7)
    v_lshrrev_b32 v{T+6}, 1, v{T+1}
    v_xor_b32 v{T+6}, v{T+6}, v{T+2}
    v_lshl_add_u32 v{T+6}, v{T+6}, 5, v{T+3}
    v_and_b32 v{T+8}, 1, v{T+1}
    v_lshl_add_u32 v{T+6}, v{T+8}, 4, v{T+6}
    v_add_u32 v{vD0}, s{sMq}, v{T+6}
    v_xor_b32 v{vD1}, 0x80, v{vD0}
    ; V transposed-read addresses: lane = 16g+4r+c
    v_lshrrev_b32 v{T+8}, 2, v{T+4}           ; 4g+r
    v_and_b32 v{T+6}, 7, v{T+8}
    v_lshlrev_b32 v{T+6}, 5, v{T+6}
    v_lshl_add_u32 v{T+6}, v{T+8}, 8, v{T+6}
    v_and_b32 v{T+9}, 3, v{T+4}
    v_lshl_add_u32 v{T+6}, v{T+9}, 3, v{T+6}
    v_add_u32 v{vV}, 0x18000, v{T+6}
"""
    for db in range(1, 8): h += f"    v_xor_b32 v{vV+db}, {db*32}, v{vV}\n"
    if cfg.store_x4:
        h += f"""    v_and_b32 v{T+6}, 1, v{T+2}
    v_lshl_add_u32 v{vO}, v{T+6}, 5, v{T+7}
    v_lshrrev_b32 v{T+6}, 1, v{T+2}
    v_lshl_add_u32 v{vO}, v{T+6}, 4, v{vO}
"""
    else:
        h += f"    v_lshl_add_u32 v{vO}, v{T+2}, 3, v{T+7}\n"
    h += f"""    v_cmp_eq_u32 vcc, 0, v{T+9}
    v_mov_b32 v{T+6}, 0x3f803f80
    v_mov_b32 v{vChk}, {'-1' if cfg.force_slow else '0'}
    v_cndmask_b32 v{T+6}, 0, v{T+6}, vcc
    v_lshlrev_b32 v{vCnt}, 2, v{T+4}
    v_add_u32 v{vCnt}, 0x4000, v{vCnt}
    v_accvgpr_write_b32 a{aOne}, v{T+6}
    v_accvgpr_write_b32 a{aOne+1}, v{T+6}
    v_accvgpr_write_b32 a{aOne+2}, v{T+6}
    v_accvgpr_write_b32 a{aOne+3}, v{T+6}
    v_accvgpr_write_b32 a{aCone}, 1
    v_accvgpr_write_b32 a{aCone+1}, 0
"""
    return h

def tail(cfg):
    lim = (127 + cfg.limit_exp) << 23
    t = ""
    if cfg.stamps == "skew":
        t += """    s_mov_b32 s58, 256
    s_mov_b32 s59, 0x20000
    s_not_b32 s64, s60
    v_mov_b32 v64, s64
    v_mov_b32 v60, 0
    s_mov_b64 exec, 1
    s_cmp_lg_u32 s3, 0
    s_cbranch_scc1 L_sk1
    buffer_atomic_umax v64, v60, s[56:59], 0 offen
    s_waitcnt vmcnt(0)
L_sk1:
    s_memrealtime s[72:73]
    s_waitcnt lgkmcnt(0)
    s_sub_u32 s72, s72, s60
    s_cmp_lt_u32 s72, 8000
    s_cbranch_scc1 L_sk1
    buffer_load_dword v64, v60, s[56:59], 0 offen sc0 sc1
    s_waitcnt vmcnt(0)
    v_readfirstlane_b32 s64, v64
    s_nop 4
    s_not_b32 s64, s64
L_sk2:
    s_memrealtime s[72:73]
    s_waitcnt lgkmcnt(0)
    s_sub_u32 s72, s72, s64
    s_cmp_lt_u32 s72, 10000
    s_cbranch_scc1 L_sk2
    s_mov_b64 exec, -1
"""
    elif cfg.stamps == "spin":
        if not getattr(cfg, "stamp_steps", []): t += "    s_waitcnt vmcnt(0)\n    s_memrealtime s[64:65]\n"
        t += f"""    s_waitcnt lgkmcnt(0)
    s_sub_u32 s64, s64, s60
    s_mul_i32 s64, s64, {getattr(cfg, "spin_mul", 0)}
    s_add_u32 s64, s64, 10000
L_spin:
    s_memrealtime s[72:73]
    s_waitcnt lgkmcnt(0)
    s_sub_u32 s72, s72, s60
    s_cmp_lt_u32 s72, s64
    s_cbranch_scc1 L_spin
"""
    elif cfg.stamps:
        e0 = 88 if cfg.stamps == "c16" else 72
        t += f"""    s_memrealtime s[{e0}:{e0+1}]
    s_waitcnt vmcnt(0)
    s_memrealtime s[{e0+2}:{e0+3}]
    s_mov_b32 s58, 0x10000000
    s_mov_b32 s59, 0x20000
    s_lshl_b32 s46, s2, 2
    s_add_u32 s46, s46, s3
    s_lshl_b32 s46, s46, 6
    s_waitcnt lgkmcnt(0)
"""
        for i in range(16): t += f"    v_mov_b32 v{64+i}, s{60+(2*i if cfg.stamps == 'c16' else i)}\n"
        t += "    v_mov_b32 v60, 0\n    s_mov_b64 exec, 1\n"
        if cfg.stamps == "dbg":
            t += "    s_mov_b32 s58, 256\n"
            for i in range(8):
                t += f"    v_not_b32 v{65+2*i}, v{64+2*i}\n"
            for i in range(16): t += f"    buffer_atomic_umax v{64+i}, v60, s[56:59], 0 offen offset:{4*i}\n"
        else:
          for i in range(4): t += f"    buffer_store_dwordx4 v[{64+4*i}:{67+4*i}], v60, s[56:59], s46 offen offset:{16*i}\n"
        t += "    s_mov_b64 exec, -1\n"
    t += f"""    v_cmp_lt_u32 vcc, {lim:#x}, v{vChk}
    s_nop 4
    s_cbranch_vccnz L_slow
L_end:
    s_endpgm
"""
    for n in cfg.spins:
        t += f"""L_spin{n}:
    ds_read_b32 v{vPoll}, v{vCnt}
    s_waitcnt lgkmcnt(0)
    v_cmp_gt_u32 vcc, s{sExp}, v{vPoll}
    s_nop 4
    s_cbranch_vccnz L_spin{n}
    s_branch L_back{n}
"""
    S0, S1, M, T = 16, 20, 24, 25
    vQ = vQd; vKb = vKr + 2
    q = lambda ds: at(aQ + 4 * ds, 4)
    k = lambda j, ds: at(aK + j * 16 + 4 * ds, 4)
    t += f"""; Fallback: a row sum left [2^-{cfg.limit_exp}, 2^{cfg.limit_exp}] (or is not finite), so exp without an offset was not safe.
; This wave recomputes its 256 rows subtracting the true row maximum.  K is still in LDS; V goes through a private 8 KiB.
L_slow:
    s_waitcnt vmcnt(0) lgkmcnt(0)
    s_barrier                                 ; the other waves are done with LDS (ended or here)
    s_mov_b32 s{sQo}, 0
    s_lshl_b32 s{sTmp}, s{sWave}, 12
    s_lshl_b32 s{sTmp+1}, s{sWave}, 13
    s_add_u32 s{sTmp+2}, s{sTmp+1}, 0x20000
    s_add_u32 s{sTmp+3}, s{sTmp+2}, 4096
    v_subrev_u32 v{vD0}, s{sTmp}, v{vD0}
    v_subrev_u32 v{vD1}, s{sTmp}, v{vD1}
"""
    for db in range(8): t += f"    v_add_u32 v{vV+db}, s{sTmp+1}, v{vV+db}\n"
    for kb in range(4):
        for ds in range(4): t += f"    ds_write_b128 v{vKr+(ds&1)}, {at(aKp+kb*16+ds*4,4)} offset:{kb*4096+ds*1024}\n"
    t += f"""    ds_write_b128 v{vKr}, {at(aKp1,4)} offset:16384
    v_bfe_u32 v{T}, v{vKl}, 4, 4
    v_lshrrev_b32 v{vQ}, 8, v{vKl}
    v_lshlrev_b32 v{vQ}, 4, v{vQ}
    v_lshl_add_u32 v{vQ}, v{T}, 8, v{vQ}
"""
    t += "L_sblk:\n"
    for ds in range(4): t += f"    buffer_load_dwordx4 {q(ds)}, v{vQ}, s[{sQ_}:{sQ_+3}], s{sQo} offen offset:{ds*64}\n"
    t += f"""    v_mov_b32 v{M}, 0xff800000
    v_mov_b32 v{vKb}, v{vKr}
    v_mov_b32 v{vKb+1}, v{vKr+1}
    s_mov_b32 s{sCnt}, 32
    s_waitcnt vmcnt(0)
L_smax:
"""
    for ds in range(4): t += f"    ds_read_b128 {k(0,ds)}, v{vKb+(ds&1)} offset:{ds*1024}\n"
    t += "    s_waitcnt lgkmcnt(0)\n"
    for ds in range(4): t += f"    v_mfma_f32_16x16x32_bf16 {vt(S0,4)}, {k(0,ds)}, {q(ds)}, {'0' if ds == 0 else vt(S0,4)}\n"
    t += f"""    s_nop 7
    v_max3_f32 v{M}, v{M}, v{S0}, v{S0+1}
    v_max3_f32 v{M}, v{M}, v{S0+2}, v{S0+3}
    v_add_u32 v{vKb}, 4096, v{vKb}
    v_add_u32 v{vKb+1}, 4096, v{vKb+1}
    s_sub_u32 s{sCnt}, s{sCnt}, 1
    s_cmp_lg_u32 s{sCnt}, 0
    s_cbranch_scc1 L_smax
    v_mov_b32 v{T}, v{M}
    s_nop 1
    v_permlane16_swap_b32 v{M}, v{T}
    s_nop 1
    v_max_f32 v{M}, v{M}, v{T}
    v_mov_b32 v{T}, v{M}
    s_nop 1
    v_permlane32_swap_b32 v{M}, v{T}
    s_nop 1
    v_max_f32 v{M}, v{M}, v{T}
"""
    for r in range(4): t += f"    v_mov_b32 v{vL+r}, 0\n"
    for r in range(32): t += f"    v_mov_b32 v{vOa+r}, 0\n"
    t += f"""    v_mov_b32 v{vKb}, v{vKr}
    v_mov_b32 v{vKb+1}, v{vKr+1}
    s_mov_b32 s{sCnt}, 0
L_skey:
    s_mov_b32 m0, s{sTmp+2}
    s_add_u32 s{sTmp+5}, s{sCnt}, s{sTile}    ; keys are stored rotated
    s_and_b32 s{sTmp+5}, s{sTmp+5}, 0x1ffff
    s_add_u32 s{sTmp+4}, s{sTmp+5}, 4096
"""
    for i in range(4): t += f"    buffer_load_dwordx4 v{vD0+(i&1)}, s[{sV_}:{sV_+3}], s{sTmp+5} offen offset:{i*1024} lds\n"
    t += f"    s_mov_b32 m0, s{sTmp+3}\n    s_nop 0\n"
    for i in range(4): t += f"    buffer_load_dwordx4 v{vD0+(i&1)}, s[{sV_}:{sV_+3}], s{sTmp+4} offen offset:{i*1024} lds\n"
    for j in range(2):
        for ds in range(4): t += f"    ds_read_b128 {k(j,ds)}, v{vKb+(ds&1)} offset:{j*4096+ds*1024}\n"
    t += "    s_waitcnt vmcnt(0) lgkmcnt(0)\n"
    for db in range(8):
        for h in range(2): t += f"    ds_read_b64_tr_b16 {at(aV+db*4+2*h,2)}, v{vV+db} offset:{32768+h*4096}\n"
    for j, S in enumerate((S0, S1)):
        for ds in range(4): t += f"    v_mfma_f32_16x16x32_bf16 {vt(S,4)}, {k(j,ds)}, {q(ds)}, {'0' if ds == 0 else vt(S,4)}\n"
    t += "    s_nop 7\n"
    for r in range(8): t += f"    v_sub_f32 v{S0+r}, v{S0+r}, v{M}\n"
    for r in range(8): t += f"    v_exp_f32 v{S0+r}, v{S0+r}\n"
    t += "    s_nop 0\n"
    for r in range(4): t += f"    v_cvt_pk_bf16_f32 v{vP+r}, v{S0+2*r}, v{S0+2*r+1}\n"
    t += f"    v_add_u32 v{vKb}, 8192, v{vKb}\n    v_add_u32 v{vKb+1}, 8192, v{vKb+1}\n    s_waitcnt lgkmcnt(0)\n    s_nop 0\n"
    t += f"    v_mfma_f32_16x16x32_bf16 {vt(vL,4)}, {at(aOne,4)}, {vt(vP,4)}, {vt(vL,4)}\n"
    for db in range(8): t += f"    v_mfma_f32_16x16x32_bf16 {vt(vOa+4*db,4)}, {at(aV+db*4,4)}, {vt(vP,4)}, {vt(vOa+4*db,4)}\n"
    t += f"""    s_add_u32 s{sCnt}, s{sCnt}, 8192
    s_cmp_lt_u32 s{sCnt}, 0x20000
    s_cbranch_scc1 L_skey
    s_nop 7
    v_rcp_f32 v{vR}, v{vL}
    s_nop 0
"""
    for r in range(32): t += f"    v_mul_f32 v{vOa+r}, v{vOa+r}, v{vR}\n"
    for db in range(8):
        o = vOa + 4 * db; d = vP + 2 * db
        t += f"    v_cvt_pk_bf16_f32 v{d}, v{o}, v{o+1}\n    v_cvt_pk_bf16_f32 v{d+1}, v{o+2}, v{o+3}\n"
    if cfg.store_x4:
        t += "    s_nop 1\n"
        for db in range(0, 8, 2):
            d = vP + 2 * db
            t += f"    v_permlane16_swap_b32 v{d}, v{d+2}\n    v_permlane16_swap_b32 v{d+1}, v{d+3}\n"
            t += f"    buffer_store_dwordx4 {vt(d,4)}, v{vO}, s[{sO_}:{sO_+3}], s{sQo} offen offset:{db*32}\n"
    else:
        for db in range(8): t += f"    buffer_store_dwordx2 {vt(vP+2*db,2)}, v{vO}, s[{sO_}:{sO_+3}], s{sQo} offen offset:{db*32}\n"
    t += f"""    s_add_u32 s{sQo}, s{sQo}, 4096
    s_cmp_lt_u32 s{sQo}, 0x10000
    s_waitcnt vmcnt(0)
    s_cbranch_scc1 L_sblk
    s_endpgm
"""
    return t

HDR = """; Kernarg layout for this problem (48 bytes, ptrs only, base s[0:1]):
;   offset   0: d_in[0] q  shape=(16, 32, 512, 128) dtype=bfloat16
;   offset   8: d_in[1] k  shape=(16, 4, 512, 128) dtype=bfloat16
;   offset  16: d_in[2] v  shape=(16, 4, 512, 128) dtype=bfloat16
;   offset  24: d_out     shape=(16, 32, 512, 128) dtype=bfloat16
;   offset  32: d_debug   256 bytes
;   offset  40: d_ws      268435456 bytes workspace (unused)
; @launch grid=(256,1,1) block=(256,1,1) lds=163840
"""

def full(cfg):
    body = generate(cfg)
    r = full2(cfg, body)
    if cfg.stamps in ("cyc", "c16"): r = r.replace("s_memrealtime", "s_memtime")
    if cfg.stamps == "both":
        import re
        r = re.sub(r"    s_memrealtime s\[(\d+):(\d+)\]", lambda m: f"    s_memtime s[{m.group(1)}:{m.group(2)}]\n    s_memrealtime s[{int(m.group(1))+20}:{int(m.group(2))+20}]", r)
        for i in range(8): r = r.replace(f"v_mov_b32 v{65+2*i}, s{61+2*i}\n", f"v_mov_b32 v{65+2*i}, s{80+2*i}\n")
    return r

def full2(cfg, body):
    return HDR + f""".amdgcn_target "amdgcn-amd-amdhsa--gfx950"
.text
.globl {KN}
.p2align 8
.type {KN},@function
{KN}:
""" + head(cfg) + body + "\n" + tail(cfg) + f""".section .rodata,"a"
.p2align 6
.amdhsa_kernel {KN}
  .amdhsa_next_free_vgpr 512
  .amdhsa_next_free_sgpr 102
  .amdhsa_accum_offset 256
  .amdhsa_group_segment_fixed_size 0
  .amdhsa_kernarg_size 48
  .amdhsa_user_sgpr_count 2
  .amdhsa_user_sgpr_kernarg_segment_ptr 1
  .amdhsa_system_sgpr_workgroup_id_x 1
.end_amdhsa_kernel
"""

if __name__ == "__main__":
    cfg = Cfg()
    name = sys.argv[1]
    for a in sys.argv[2:]:
        k, v = a.split("=", 1)
        try: v = eval(v)
        except Exception: pass
        setattr(cfg, k, v)
    s = full(cfg)
    open(name, "w").write(s)
    tot = sum(v[0] for v in cfg.est.values())
    print(name, "est head", cfg.est_head, "total", tot, "mfma", sum(v[1] for v in cfg.est.values()), file=sys.stderr)
    print(" ".join(f"{s}:{v[0]}/{v[1]}" for s, v in cfg.est.items() if s < 16 or s >= 32), file=sys.stderr)
```

```python
import sys, math, struct
KN = "standalone__gqa_softmax__near_ridge_kernel"

class Cfg:
    sigma = (0, 2, 4, 6)
    beta = 0.80
    beta_small = 0.55
    ds_lat = 9
    mv_lat = 4
    store_x4 = True
    q_nt = "nt"
    st_pol = "sc0 sc1"
    k_pol = "nt"
    v_pol = ""
    v_pol0 = "nt"
    rot = 0
    split_from = 3
    split_min_u = 2
    arr_gap = 10
    vm_gap = 5
    smooth = True
    stamps = False
    code_pf = True
    plan = "K0 Q0 C K1 W00 V0 S0 B r0 r1 R0 K2 S1@0.0 V1@0.0 Q1@0.5 K3@1.0 V2@1.3 K4@1.6 R1@2.0 Q2@2.2 V3@2.3 K5@2.b K6@3.b R2@3.b Q3@4.0 K7@4.b R3@5.b Q4@6.0"
    vperm = True
    deep = True
    tail_dl = 1.0
    betas = {0: 0.95, 1: 0.9, 2: 0.9, 3: 0.8}
    arr_gap_small = 4
    k_up = 1
    force_slow = False
    nop_ds = True
    ds_gap = 2
    ds_cap = 1024
    kill_from = None
    kill = ()
    limit_exp = 32

vQd, vO, vQr, vCnt, vD0, vD1, vChk = 1, 2, 3, 4, 5, 6, 7
vKl = 0
vV = 8
vS = 16
vL = 32
vR = 48
vKw = 50
vT = 52
NT = 5
vIdx = 57
vPoll = 58
vJ = 59
vKr = 60
vP = 64
vOa = 128
aQ, aOne, aCone, aKp1, aK, aKp, aV = 0, 64, 68, 72, 80, 128, 192
sQ_, sK_, sV_, sO_, sC_ = 12, 16, 20, 24, 28
sTile = 32
sM0 = 96
sQo, sOo, sCnt, sScale, sWave = 42, 43, 44, 45, 3
sTmp = 46
sMq, sExp, sMask = 52, 53, 54

def vr(b, n=1): return [f"v{b+i}" for i in range(n)]
def ar(b, n=1): return [f"a{b+i}" for i in range(n)]
def vt(b, n): return f"v[{b}:{b+n-1}]"
def at(b, n): return f"a[{b}:{b+n-1}]"

class Op:
    def __init__(s, key, text, kind, reads, writes, cost=None, earliest=None, dummy=False, anchor=None, maxdl=None):
        s.key, s.text, s.kind, s.reads, s.writes = key, text, kind, list(reads), list(writes)
        s.cost = {"mfma": 0, "trans": 8, "valu": 4, "ds": 4, "dsw": 20, "load": 8, "dma": 8, "store": 12, "salu": 0, "bar": 0, "chk": 0}[kind] if cost is None else cost
        s.cnt = {"ds": "lgkm", "dsw": "lgkm", "load": "vm", "dma": "vm", "store": "vm"}.get(kind)
        s.earliest = earliest
        s.maxdl = maxdl
        s.dummy = dummy
        s.anchor = anchor
        s.preds = []; s.succs = []; s.win = None; s.pos = None; s.m = None
        s.prod = {}

def build(cfg, s0, s1, steady):
    sg = cfg.sigma
    NP = 4
    last = 32 + max(sg)
    def qk_on(s, u): return steady or (sg[u] <= s < sg[u] + 8 * NP)
    def pv_on(s, u): return steady or (sg[u] + 1 <= s < sg[u] + 8 * NP + 1)
    def order_qk(s, kb):
        us = [u for u in range(4) if qk_on(s, u)]
        if kb == 3:
            f = [u for u in us if (s - sg[u]) % 8 == 7]
            us = f + [u for u in us if u not in f]
        if kb == 0:
            f = [u for u in us if (s - sg[u]) % 8 == 0]
            us = [u for u in us if u not in f] + f
        return us
    prog = []
    A = prog.append
    chain = 0
    pend_q = []
    def qload(key, earliest=None, dummy=False):
        A(Op(key + ("m0",), f"s_mov_b32 m0, s{sMq}", "salu", [], ["m0"], dummy=dummy))
        for i in range(4):
            A(Op(key + (i,), f"buffer_load_dwordx4 v{vQd}, s[{sQ_}:{sQ_+3}], s{sQo} offen offset:{i*1024} {cfg.q_nt} lds".replace("  ", " "), "dma",
                 [f"s{sQo}", "m0"] + [f"Qrd{d}" for d in range(4)], [f"Qs{i}"], earliest=earliest, dummy=dummy))
        A(Op(key + ("inc",), f"s_add_u32 s{sQo}, s{sQo}, 4096", "salu", [f"s{sQo}"], [f"s{sQo}"], dummy=dummy))
    def qread(key, u, earliest=None, dummy=False):
        for ds in range(4):
            d = aQ + 16 * u + 4 * ds
            A(Op(key + (ds,), f"ds_read_b128 {at(d,4)}, v{vQr} offset:{ds*64}", "ds", [f"Qs{i}" for i in range(4)], ar(d, 4) + [f"Qrd{ds}"], earliest=earliest, dummy=dummy))
    def kfrag(t, kb, ds):
        if t == 0: return aKp + kb * 16 + ds * 4
        if (t, kb, ds) == (1, 0, 0): return aKp1
        return aK + (((t - 1) * 4 + kb) % 3) * 16 + ds * 4
    def vslot(sv):
        if not steady and cfg.deep and sv in (2, 3, 34, 35): return sv & 1
        return 2 + (sv & 1)
    def vprev(sv):
        if vslot(sv) < 2: return ["Kret67"] if sv > 8 else []
        p = sv - 2
        while p >= 0 and vslot(p) != vslot(sv): p -= 2
        return [f"Vret{p}"] if p >= 0 else []
    vissued = set()
    def vdma(sv, earliest=None):
        vissued.add(sv)
        A(Op(("m0", sv), f"s_mov_b32 m0, s{sM0 + vslot(sv)}", "salu", ["setup~"], ["m0"]))
        for i in range(4):
            A(Op(("dma", sv, i), f"buffer_load_dwordx4 v{vD0 + (i & 1)}, s[{sV_}:{sV_+3}], s{sTile + sv % 8} offen offset:{i*1024} {cfg.v_pol0 if (not steady and sv < 8) else cfg.v_pol} lds".replace("  ", " "), "dma",
                 ["m0"] + vprev(sv), [f"Vd{sv}_{i}"], earliest=earliest))
    kstage = {}
    def kregs(t):
        u = KST[t][0]; h = KST[t][1]
        if h == "P": return [vP + (ds >> 1) * 32 + u * 8 + (ds & 1) * 4 for ds in range(4)]
        return [vOa + (h * 4 + ds) * 16 + u * 4 for ds in range(4)]
    KST = [(1, 0), (1, 1), (2, 0), (2, 1), (3, 0), (3, 1), (3, "P"), (3, 0)]
    if cfg.k_up == 8: KST = [(0, 0), (0, 1), (1, 0), (1, 1), (2, 0), (2, 1), (3, 0), (3, 1)]
    def kload(t, earliest=None):
        for ds, r in enumerate(kregs(t)):
            A(Op(("kld", t, ds), f"buffer_load_dwordx4 {vt(r,4)}, v{vKl}, s[{sK_}:{sK_+3}], s{sTile + t} offen offset:{ds*1024} {cfg.k_pol}".rstrip(), "load",
                 [], vr(r, 4), earliest=earliest))
    tmpc = [0]
    def kscale(t, earliest=None):
        for ds, r in enumerate(kregs(t)):
            for j in range(4):
                x = r + j; tm = vT + tmpc[0] % NT; tmpc[0] += 1
                k = ("ksc", t, ds, j)
                A(Op(k + (0,), f"v_lshlrev_b32 v{tm}, 16, v{x}", "valu", vr(x), vr(tm), earliest=earliest))
                A(Op(k + (1,), f"v_and_b32 v{x}, s{sMask}, v{x}", "valu", vr(x), vr(x), earliest=earliest))
                A(Op(k + (2,), f"v_mul_f32 v{tm}, s{sScale}, v{tm}", "valu", vr(tm), vr(tm)))
                A(Op(k + (3,), f"v_mul_f32 v{x}, s{sScale}, v{x}", "valu", vr(x), vr(x)))
                A(Op(k + (4,), f"v_cvt_pk_bf16_f32 v{x}, v{tm}, v{x}", "valu", vr(tm) + vr(x), vr(x)))
            tl = 3 if t == 0 else t
            if t == 4 and ds < 2:
                A(Op(("kwa", t, ds), f"v_add_u32 v{vKw + ds}, 0x10000, v{vKw + ds}", "valu", vr(vKw + ds), vr(vKw + ds)))
            A(Op(("kw", t, ds), f"ds_write_b128 v{vKw + (ds & 1)}, {vt(r,4)} offset:{(tl & 3) * 16384 + (ds >> 1) * 128}", "dsw",
                 vr(r, 4) + vr(vKw + (ds & 1)) + (["K0dead"] if t == 3 else []) + ([f"Vret{t-4}"] if t >= 6 and cfg.deep else []), [f"Kw{t}_{ds}"]))
    nmf = [0]
    kpub = set()
    def kread1(s, t, kb):
        for ds in range(4):
            perm = t == 0 or (t, kb, ds) == (1, 0, 0)
            if perm and (steady or s > 7): continue
            d = kfrag(t, kb, ds); tl = 3 if t == 0 else t
            A(Op(("kr", s, kb, ds), f"ds_read_b128 {at(d,4)}, v{vKr + 2 * (tl >> 2) + (ds & 1)} offset:{(tl & 3) * 16384 + kb * 4096 + ds * 1024}", "ds",
                 [] if (steady or s > 7) else [f"Kok{t}"], ar(d, 4) + ([] if not perm else [f"Kr0_{kb}_{ds}" if t == 0 else "Kr1"])))
    kdone0 = set(); kscaled = []
    later = {}
    if not steady:
        H = (-1, 0)
        def issue(item, when):
            n0 = len(prog)
            n = int(item[1:]) if item[1:].isdigit() else None
            if item[0] == "K": kload(n, when)
            elif item[0] == "Q": qload(("q0", n) if n < 4 else ("q", 8, 0), when)
            elif item[0] == "R": qread(("qr0", n), n, when)
            elif item[0] == "V": vdma(n, when)
            elif item[0] == "S": kscale(n, when); kscaled.append(n)
            elif item[0] == "r": kread1(0, 0, n); kdone0.add(n)
            elif item[0] == "W":
                A(Op(("wt", 0, item), "s_nop 0", "valu", vr(kregs(int(item[1]))[int(item[2])], 4), []))
            elif item[0] == "B":
                pub = [t for t in kscaled if t not in kpub]; kpub.update(pub)
                A(Op(("bar", -1), "s_barrier", "bar", [f"Kw{t}_{ds}" for t in pub for ds in range(4)], [f"Kok{t}" for t in pub], anchor=H))
            elif item[0] == "C":
                pf = f"buffer_load_dword v{vJ}, v{vJ}, s[{sC_}:{sC_+3}], 0 offen"
                A(Op(("cpf", 0), head2(cfg).replace("@CPF", "    " + pf).strip(), "load", [], ["junk"], earliest=when, cost=300))
                A(Op(("setup", 0), "s_nop 0", "valu", [], ["setup~", f"s{sExp}"]))
            if when == H:
                for x in prog[n0:]: x.maxdl = H
        for item in cfg.plan.split():
            if "@" not in item: issue(item, H)
            else:
                it, pos = item.split("@"); st, fr = pos.split(".")
                later.setdefault(int(st), []).append((it, fr))
    for s in range(s0, s1):
        t = s % 8
        uq = [u for u in range(4) if qk_on(s, u)]
        up = order_qk(s - 1, 3) if (steady or s > 0) else []
        up = [u for u in up if pv_on(s, u)]
        qk = [(kb, u) for kb in range(4) for u in order_qk(s, kb)]
        pv = []
        fin = [u for u in up if (s - 1 - sg[u]) % 8 == 7]
        ones_order = fin + [u for u in up if u not in fin]
        for db in range(8):
            for u in up: pv.append(("pv", db, u))
        npv = len(pv)
        ins = {}
        for i, u in enumerate(ones_order):
            if u in fin: p = len(up)
            else: p = len(up) + (npv - len(up)) * i // max(1, len(ones_order))
            ins.setdefault(p, []).append(("one", 0, u))
        pv2 = []
        for i, c in enumerate(pv):
            pv2 += ins.get(i, []); pv2.append(c)
        pv = pv2
        seq = []
        if qk:
            j = 0
            lag = 1 if len(uq) <= 2 and pv else 0
            for i, c in enumerate(qk):
                seq.append(("qk",) + c)
                tgt = math.ceil(max(0, i + 1 - lag) * len(pv) / (len(qk) - lag))
                while j < tgt: seq.append(pv[j]); j += 1
        else:
            seq = pv
        nm = sum({"qk": 4, "pv": 2, "one": 1}[c[0]] for c in seq)
        beta = cfg.beta if len(uq) >= 3 else cfg.beta_small
        barpos = int(beta * nm)
        if not steady and s in cfg.betas: barpos = int(cfg.betas[s] * nm)
        vdone = set(); kdone = set(kdone0) if (s == 0 and not steady) else set(); bar_done = False
        Pw = vP + 32 * (s & 1); Pr = vP + 32 * ((s - 1) & 1)
        def vreads(db):
            if db in vdone: return
            vdone.add(db)
            for ks in range(2):
                for h in range(2):
                    d = aV + db * 8 + ks * 4 + h * 2
                    A(Op(("vr", s, db, ks, h), f"ds_read_b64_tr_b16 {at(d,2)}, v{vV+db} offset:{vslot(s-1)*16384 + ks*8192 + h*4096}", "ds",
                         [f"Vok{s-1}"], ar(d, 2) + [f"Vr{s-1}_{db}_{ks}_{h}"]))
        def kreads(kb):
            if kb in kdone: return
            kdone.add(kb); kread1(s, t, kb)
        def barrier():
            rd = []; wr = []
            pubv, retv, nxt = [s], [s - 1], [s + 1]
            if not steady:
                if cfg.deep:
                    retv = {1: [], 2: [0], 3: [1], 4: [2], 5: [3, 4], 35: []}.get(s, retv)
                    pubv = {34: [34, 35], 35: [36, 37]}.get(s, pubv)
                    nxt = {0: [], 1: [], 2: [4], 3: [5], 4: [], 32: [33, 34, 35], 33: [36], 34: [37], 35: []}.get(s, nxt)
                    if s == 32: wr.append("Kret67")
                    if s >= 36: return
                if s >= last: return
                nxt = [v for v in nxt if v < last and v not in vissued and not any(it == f"V{v}" for l in later.values() for it, _ in l)]
            for v in retv:
                if v < 0: continue
                if v == s - 1:
                    for db in range(8): vreads(db)
                rd += [f"Vr{v}_{db}_{ks}_{h}" for db in range(8) for ks in range(2) for h in range(2)]
                wr.append(f"Vret{v}")
            for v in pubv:
                assert steady or v in vissued, v
                rd += [f"Vd{v}_{i}" for i in range(4)]; wr.append(f"Vok{v}")
            if not steady and s + 1 <= 7 and s + 1 not in kpub:
                if s + 1 not in kscaled: kscale(s + 1, ((s - 1, "bar") if s >= 1 else (-1, 0))); kscaled.append(s + 1)
                kpub.add(s + 1)
                rd += [f"Kw{s+1}_{ds}" for ds in range(4)]; wr.append(f"Kok{s+1}")
            if not steady and s == 1:
                rd += [f"Kr0_{kb}_{ds}" for kb in range(4) for ds in range(4)]; wr.append("K0dead")
                rd.append("Kr1"); wr.append("Cdead")
            if not steady and s == 2: rd.append("Czero")
            if (steady or s >= cfg.split_from) and len(uq) >= cfg.split_min_u:
                ag = cfg.arr_gap if len(uq) >= 3 else cfg.arr_gap_small
                A(Op(("arr", s), f"ds_add_u32 v{vCnt}, a{aCone}", "dsw", rd, ["Carr"], cost=8, anchor=(s, "bar", -ag - cfg.ds_lat - 1)))
                A(Op(("exp", s), f"s_add_u32 s{sExp}, s{sExp}, 4", "salu", [f"s{sExp}"], [f"s{sExp}"]))
                A(Op(("pol", s), f"ds_read_b32 v{vPoll}, v{vCnt}", "ds", ["Carr~"], vr(vPoll), anchor=(s, "bar", -cfg.ds_lat - 1)))
                A(Op(("cmp", s), f"v_cmp_gt_u32 vcc, s{sExp}, v{vPoll}", "valu", vr(vPoll) + [f"s{sExp}"], ["vcc"], anchor=(s, "bar", -2)))
                A(Op(("bar", s), f"s_cbranch_vccnz L_spin{s if (not steady and (s < 8 or s >= 32)) else 8 + s % 8}", "bar", ["vcc"] + vr(vPoll) + [f"s{sExp}"], wr, anchor=(s, "bar")))
            else:
                A(Op(("bar", s), "s_barrier", "bar", rd, wr, anchor=(s, "bar")))
            if not steady and s == 1:
                A(Op(("cz", 1), f"ds_write_b32 v{vCnt}, a{aCone + 1}", "dsw", ["Cdead"], ["Czero"], cost=8))
            for v in nxt: vdma(v, None)
            for it, fr in later.get(s, []):
                if fr == "b": issue(it, (s, "bar"))
        todo_items = [(it, int(fr) / 10 ** len(fr)) for it, fr in later.get(s, []) if fr != "b"]
        mcount = 0
        for c in seq:
            if not bar_done and mcount >= barpos:
                barrier(); bar_done = True
            while todo_items and mcount >= todo_items[0][1] * nm:
                issue(todo_items.pop(0)[0], (s, "off", mcount))
            if c[0] == "qk":
                _, kb, u = c
                kreads(kb)
                if kb == 0 and (s - sg[u]) % 8 == 0 and (steady or s - sg[u] >= 8):
                    qread(("qr", s, u), u)
                    un = (u + 1) % 4; sn = s + (sg[un] - sg[u]) % 8
                    pend_q.append((("q", sn, un), not steady and sn - sg[un] >= 8 * NP))
                    if True:
                        k_, d_ = pend_q.pop(); qload(k_, dummy=d_)
                S = vS + 4 * (chain % 4); chain += 1
                for ds in range(4):
                    kf = kfrag(t, kb, ds); qf = aQ + u * 16 + ds * 4
                    A(Op(("qk", s, kb, u, ds), f"v_mfma_f32_16x16x32_bf16 {vt(S,4)}, {at(kf,4)}, {at(qf,4)}, {'0' if ds == 0 else vt(S,4)}", "mfma",
                         ar(kf, 4) + ar(qf, 4) + ([] if ds == 0 else vr(S, 4)), vr(S, 4)))
                for r in range(4):
                    A(Op(("ex", s, kb, u, r), f"v_exp_f32 v{S+r}, v{S+r}", "trans", vr(S + r), vr(S + r)))
                pd = Pw + u * 8 + kb * 2
                for r in range(2):
                    A(Op(("cv", s, kb, u, r), f"v_cvt_pk_bf16_f32 v{pd+r}, v{S+2*r}, v{S+2*r+1}", "valu", vr(S + 2 * r, 2), vr(pd + r)))
                mcount += 4
            elif c[0] == "pv":
                _, db, u = c
                vreads(db)
                first = (s - 1 - sg[u]) % 8 == 0
                o = vOa + db * 16 + u * 4
                for ks in range(2):
                    vf = aV + db * 8 + ks * 4; pf = Pr + u * 8 + ks * 4
                    z = first and ks == 0
                    A(Op(("pv", s, db, u, ks), f"v_mfma_f32_16x16x32_bf16 {vt(o,4)}, {at(vf,4)}, {vt(pf,4)}, {'0' if z else vt(o,4)}", "mfma",
                         ar(vf, 4) + vr(pf, 4) + ([] if z else vr(o, 4)), vr(o, 4)))
                mcount += 2
            else:
                _, _, u = c
                first = (s - 1 - sg[u]) % 8 == 0
                l = vL + 4 * u
                if first:
                    for r in range(2): A(Op(("lz", s, u, r), f"v_mov_b32 v{l+r}, 0", "valu", [], vr(l + r)))
                pf = Pr + u * 8
                A(Op(("on", s, u), f"v_smfmac_f32_16x16x64_bf16 {vt(l,4)}, {at(aOne,4)}, {vt(pf,8)}, v{vIdx}", "mfma", vr(pf, 8) + vr(l, 2), vr(l, 4)))
                mcount += 1
        if not bar_done: barrier()
        for it, _ in todo_items: issue(it, (s, "off", mcount))
        if not steady and s == 31:
            qread(("qr", 32, 0), 0, dummy=True)
            qload(("q", 32 + sg[1], 1), dummy=True)
        for u in sorted(fin):
            l = vL + 4 * u; R = vR + (u & 1)
            A(Op(("la", s, u), f"v_add_f32 v{l}, v{l}, v{l+1}", "valu", vr(l, 2), vr(l)))
            A(Op(("rc", s, u), f"v_rcp_f32 v{R}, v{l}", "trans", vr(l), vr(R)))
            A(Op(("ck", s, u), f"v_max3_u32 v{vChk}, v{vChk}, v{l}, v{R}", "valu", vr(vChk) + vr(l) + vr(R), vr(vChk)))
            for db in range(8):
                o = vOa + db * 16 + u * 4
                for r in range(4):
                    A(Op(("mu", s, u, db, r), f"v_mul_f32 v{o+r}, v{o+r}, v{R}", "valu", vr(o + r) + vr(R), vr(o + r)))
                if not cfg.store_x4:
                    for r in range(2):
                        A(Op(("oc", s, u, db, r), f"v_cvt_pk_bf16_f32 v{o+r}, v{o+2*r}, v{o+2*r+1}", "valu", vr(o + 2 * r, 2), vr(o + r)))
                    A(Op(("st", s, u, db), f"buffer_store_dwordx2 {vt(o,2)}, v{vO}, s[{sO_}:{sO_+3}], s{sOo} offen offset:{db*32} {cfg.st_pol}".rstrip(), "store",
                         vr(o, 2) + [f"s{sOo}"], []))
                else:
                    if db & 1:
                        e = o - 16
                        A(Op(("oc", s, u, db, 3), f"v_cvt_pk_bf16_f32 v{o+3}, v{o+2}, v{o+3}", "valu", vr(o + 2, 2), vr(o + 3)))
                        A(Op(("oc", s, u, db, 2), f"v_cvt_pk_bf16_f32 v{o+2}, v{o}, v{o+1}", "valu", vr(o, 2), vr(o + 2)))
                        A(Op(("oc", s, u, db, 0), f"v_cvt_pk_bf16_f32 v{o}, v{e}, v{e+1}", "valu", vr(e, 2), vr(o)))
                        A(Op(("oc", s, u, db, 1), f"v_cvt_pk_bf16_f32 v{o+1}, v{e+2}, v{e+3}", "valu", vr(e + 2, 2), vr(o + 1)))
                        for r in range(2):
                            if cfg.vperm: break
                            A(Op(("sw", s, u, db, r), f"v_permlane16_swap_b32 v{o+r}, v{o+2+r}", "valu", vr(o + r) + vr(o + 2 + r), vr(o + r) + vr(o + 2 + r), cost=8))
                        A(Op(("st", s, u, db), f"buffer_store_dwordx4 {vt(o,4)}, v{vO}, s[{sO_}:{sO_+3}], s{sOo} offen offset:{(db-1)*32} {cfg.st_pol}".rstrip(), "store",
                             vr(o, 4) + [f"s{sOo}"], [], cost=20))
            if not steady and 32 <= s < last:
                for x in prog:
                    if x.key[:3] == ("st", s, u): x.maxdl = (s + 1, "frac", (x.key[3] + 1) / 8 * cfg.tail_dl)
            A(Op(("oinc", s, u), f"s_add_u32 s{sOo}, s{sOo}, 4096", "salu", [f"s{sOo}"], [f"s{sOo}"]))
    return prog

def link(cfg, prog):
    lastw = {}; readers = {}
    m = 0
    for x in prog:
        if x.kind == "mfma": x.m = m; m += 1
    for x in prog:
        e = {}
        def add(p, typ):
            if p is x: return
            soft = hard = 0
            if p.kind == "mfma":
                if x.kind == "mfma": return
                if typ in ("raw", "waw"): soft = cfg.mv_lat + (2 if p.key[0] == "on" else 0)
                elif x.kind in ("valu", "trans"): soft = 1
            elif x.kind == "mfma":
                hard = soft = 1
                if typ == "raw":
                    soft = cfg.ds_lat if p.kind == "ds" else (1 if p.kind == "load" else 2)
                elif p.kind == "store": soft = 2
            elif x.kind == "bar" or x.key[0] == "arr":
                hard = 1; soft = {"ds": cfg.ds_lat, "dsw": cfg.ds_lat, "dma": 2}.get(p.kind, 1)
            elif p.kind == "bar":
                soft = hard = 0
            elif p.kind == "salu":
                soft = 2; hard = 1 if x.kind != "salu" else 1
            elif x.kind == "salu":
                soft = hard = 1
            elif typ == "raw":
                if p.kind == "trans": soft = 1
                elif p.kind == "ds" and x.kind == "dma": soft = cfg.ds_lat
                elif p.kind == "valu" and x.kind in ("store", "dsw", "ds"): soft = 1
                elif p.kind == "valu" and "permlane" in x.text: soft = 2
            else:
                if p.kind in ("valu", "trans") and x.kind in ("load", "ds", "dma"): soft = 1
                if p.kind in ("store", "dsw"): soft = 1
            o = e.get(id(p))
            e[id(p)] = (p, max(soft, o[1]) if o else soft, max(hard, o[2]) if o else hard)
        for r in x.reads:
            if r in lastw: add(lastw[r], "raw"); x.prod[r] = lastw[r].key
        for r in x.writes:
            if r in lastw: add(lastw[r], "waw")
            for p in readers.get(r, []): add(p, "war")
        for r in x.reads: readers.setdefault(r, []).append(x)
        for r in x.writes: lastw[r] = x; readers[r] = []
        x.preds = list(e.values())
        for p, so, ha in x.preds: p.succs.append((x, so, ha))
    return m

def step_of(x): return x.key[1]

def schedule(cfg, prog, nm, pins=None, lo=None, hi=None):
    pins = pins or {}; lo = lo or {}; hi = hi or {}
    start = {}; barw = {}
    cur = -1
    for x in prog:
        if x.kind == "mfma":
            cur = x.m; start.setdefault(x.key[1], x.m)
        elif x.kind == "bar": barw[x.key[1]] = cur
    def W(a):
        if a[0] == -1: return -1
        if a[1] == "bar": return barw.get(a[0], nm - 1) + (a[2] if len(a) > 2 else 0)
        if a[1] == "frac": return start[a[0]] - 1 + int(a[2] * (start.get(a[0] + 1, nm) - start[a[0]]))
        if a[1] == "off": return max(0, start[a[0]] - 1 + a[2])
        return start[a[0]] - 1
    fill = [x for x in prog if x.kind != "mfma"]
    for x in prog:
        if x.kind == "mfma": x.win = x.m
    for i, x in enumerate(prog): x.idx = i
    for x in reversed(fill):
        if x.key in pins: x.dls = x.dlh = pins[x.key][0]; continue
        if x.anchor: x.dls = x.dlh = W(x.anchor); continue
        ds = dh = nm - 1
        for y, so, ha in x.succs:
            if y.dummy and y.key not in pins: continue
            if y.kind == "mfma": ds = min(ds, y.m - so); dh = min(dh, y.m - ha)
            else: ds = min(ds, y.dls - so); dh = min(dh, y.dlh - ha)
        if x.key in hi: ds = min(ds, hi[x.key]); dh = min(dh, hi[x.key])
        if x.maxdl: ds = min(ds, W(x.maxdl)); dh = min(dh, W(x.maxdl))
        x.dls, x.dlh = ds, max(dh, -1)
    wins = {w: [] for w in range(-1, nm)}
    for x in fill:
        x.win = None
        x.lo = max(W(x.earliest) if x.earliest else -1, lo.get(x.key, -1))
        if x.anchor: x.lo = x.dlh
    pinned_by_win = {}
    for x in fill:
        if x.key in pins: pinned_by_win.setdefault(pins[x.key][0], []).append(x)
    todo = [x for x in fill if x.key not in pins and not x.dummy]
    todo.sort(key=lambda x: x.idx)
    credit = [0]
    mfl = [x for x in prog if x.kind == "mfma"]
    def ready(x, w, soft):
        if w < x.lo: return False
        for p, so, ha in x.preds:
            if p.dummy and p.key not in pins: continue
            if p.win is None: return False
            lat = ha
            if soft and (p.kind not in ("load", "dma", "ds", "dsw") or x.kind == "dma"): lat = so
            if p.kind in ("store", "dsw") and soft: lat = max(lat, min(so, 1))
            if w == -1 or w == nm - 1: lat = 0
            if w < p.win + lat: return False
        return True
    for w in range(-1, nm):
        if w in pinned_by_win:
            for x in sorted(pinned_by_win[w], key=lambda x: pins[x.key][1]):
                x.win = w; wins[w].append(x)
        if pins and cfg._loop[0] <= w < cfg._loop[1]: continue
        cap = 8 if w >= 0 else 0
        if w >= 0 and mfl[w].key[0] == "on": cap = 4
        cap0 = cap
        rate = 8
        if cfg.smooth and pins and 0 <= w < nm - 1:
            acc = 0
            for x in sorted((x for x in todo[:900] if x.dls <= w + 120), key=lambda x: x.dls):
                acc += min(x.cost, 8)
                rate = max(rate, acc / (max(x.dls, w) - w + 1))
            credit[0] = credit[0] + rate - 8 if rate > 8.2 else 0
            credit[0] = min(credit[0], rate)
            extra = int(credit[0] // 4) * 4
            cap += extra
        used = 0
        cur = wins[w]
        def place(x):
            nonlocal used
            x.win = w; cur.append(x); used += min(x.cost, 8); todo.remove(x)
        while True:
            cand = [x for x in todo[:700] if ready(x, w, True) or (w >= x.dlh and ready(x, w, False))]
            if not cand: break
            z = [x for x in cand if x.kind in ("salu", "bar")]
            if z:
                place(z[0]); continue
            forced = [x for x in cand if x.dls <= w]
            if w == -1 or w == nm - 1:
                if not forced: break
                place(min(forced, key=lambda x: x.idx)); continue
            hasvalu_dep = lambda x: x.kind in ("ds", "dsw", "load", "dma", "store") and any(p.win == w and p.kind in ("valu", "trans") for p, _, _ in x.preds)
            hard_forced = forced
            if hard_forced:
                place(min(hard_forced, key=lambda x: (x.dls, x.idx))); continue
            if used >= cap: break
            nb = lambda x: 1024 if "b128" in x.text else 512
            dsb = sum(nb(x) for x in cur if x.kind == "ds")
            tight = rate > 8.2
            recent = (not tight) and any(y.kind == "ds" for k in range(1, cfg.ds_gap) for y in wins.get(w - k, []))
            vmk = ("load", "dma", "store")
            vgap = max(1, int(cfg.vm_gap * 16 / (8 + rate)))
            recent_vm = any(y.kind in vmk for k in range(0, vgap) for y in wins.get(w - k, []))
            dcap = cfg.ds_cap * (8 + cap) // 16
            cand = [x for x in cand if (x.kind != "ds" or (not recent and dsb + nb(x) <= dcap)) and not (x.kind in vmk and recent_vm)]
            if not cand: break
            cand.sort(key=lambda x: (-99999 if x.kind in ("load", "dma", "dsw", "store") else x.dls, x.idx))
            if cap - used >= 8:
                top = cand[0]
                if top.cost >= 8: place(top); continue
                small = [x for x in cand if x.cost == 4]
                big = [x for x in cand if x.cost >= 8]
                fits = lambda a, b: not (a.kind == "ds" and b.kind == "ds" and dsb + nb(a) + nb(b) > dcap)
                partner = any(fits(top, y) for y in small if y is not top) or any(y.cost == 4 and so == 0 and y.win is None and y.kind == "valu" and all(p.win is not None or p is top for p, _, _ in y.preds) for y, so, ha in top.succs)
                if partner or not big or (cap - used) % 8: place(top)
                else: place(big[0])
                continue
            small = [x for x in cand if x.cost == 4]
            if not small: break
            place(small[0])
        if w >= 0: credit[0] -= max(0, min(used, cap) - cap0)
        if w not in (-1, nm - 1):
            order = {"bar": 0, "salu": 0, "dma": 1, "load": 1, "store": 1, "dsw": 1, "ds": 1, "valu": 2, "trans": 2}
            lvl = {}
            for x in cur:
                l = order[x.kind]
                for p, _, _ in x.preds:
                    if p.win == w and p.kind != "mfma": l = max(l, lvl[id(p)])
                lvl[id(x)] = l
            cur.sort(key=lambda x: lvl[id(x)])
    assert not todo, [x.key for x in todo[:10]]
    for w, c in wins.items():
        for i, x in enumerate(c): x.pos = i
    return wins, start

def norm(key, d):
    return (key[0], key[1] + d) + tuple(key[2:])

class Ins:
    def __init__(s, text, op=None, kind=None):
        s.text, s.op, s.kind = text, op, kind or (op.kind if op else "salu")
        s.vm = None; s.lg = None

def generate(cfg):
    last = 32 + max(cfg.sigma)
    cfg.q_ahead = getattr(cfg, "q_ahead", 2)
    cfg.code_pf_n = getattr(cfg, "code_pf_n", 2)
    sp = build(cfg, 0, 56, True); nms = link(cfg, sp)
    swins, sstart = schedule(cfg, sp, nms)
    per = sstart[8] - sstart[0]
    ok = None
    for b in (16, 24, 32):
        same = all([x.text for x in swins[sstart[b] + i]] == [x.text for x in swins[sstart[b + 8] + i]] and
                   [norm(x.key, 8) for x in swins[sstart[b] + i]] == [x.key for x in swins[sstart[b + 8] + i]] for i in range(per))
        if same: ok = b; break
    assert ok is not None, "steady state not periodic"
    rp = build(cfg, 0, last + 1, False); nm = link(cfg, rp)
    rstart = {}
    for x in rp:
        if x.kind == "mfma": rstart.setdefault(x.key[1], x.m)
    L0, L1 = rstart[8], rstart[32]
    assert L1 - L0 == 3 * per
    cfg._loop = (L0, L1)
    pins = {}
    for it in range(3):
        for i in range(per):
            for x in swins[sstart[ok] + i]:
                pins[norm(x.key, 8 + 8 * it - ok)] = (L0 + it * per + i, x.pos)
    keys = {x.key: x for x in rp}
    assert len(keys) == len(rp)
    missing = [k for k in pins if k not in keys]
    assert not missing, missing[:10]
    lo = {}; hi = {}
    mid = (keys[("qk", 20, 0, 0, 0)])
    midx = rp.index(mid)
    for i, x in enumerate(rp):
        if x.kind == "mfma" or x.key in pins: continue
        if i < midx: hi[x.key] = L0 - 1
        else: lo[x.key] = L1
    wins, start = schedule(cfg, rp, nm, pins, lo, hi)
    mf = [x for x in rp if x.kind == "mfma"]
    def stat(w):
        return L0 + (w - L0) % per if L0 <= w < L1 else w
    free = {}
    pre = {}
    for w in range(-1, nm):
        if stat(w) == w:
            free[w] = []
            if w not in (-1, nm - 1):
                for x in wins[w]:
                    if x.kind == "bar": free[w].append(Ins(x.text, x))
    def body(w):
        if w in (-1, nm - 1): return wins[w]
        return [x for x in wins[w] if x.kind not in ("salu", "bar")]
    def walk(fix):
        q = {"vm": [], "lgkm": []}
        pend = {}
        hist = {}
        changed = False
        def dowait(ins):
            for c, n in (("vm", ins.vm), ("lgkm", ins.lg)):
                if n is None: continue
                while len(q[c]) > n:
                    d = q[c].pop(0)
                    for r in d.writes:
                        if pend.get(r) is d: del pend[r]
        def need(x):
            n = {}
            for r in x.reads + x.writes:
                p = pend.get(r)
                if p is not None and not (r in x.writes and r not in x.reads and p.cnt == x.cnt):
                    n[p.cnt] = p if (p.cnt not in n or q[p.cnt].index(p) > q[p.cnt].index(n[p.cnt])) else n[p.cnt]
            return n
        def issue(x):
            if x.cnt:
                q[x.cnt].append(x)
                for r in x.writes: pend[r] = x
        def setw(ins, c, n):
            n = min(n, 62 if c == "vm" else 14)
            if c == "vm": ins.vm = n if ins.vm is None else min(ins.vm, n)
            else: ins.lg = n if ins.lg is None else min(ins.lg, n)
        def handle(x, w, pos, cands):
            nonlocal changed
            n = need(x)
            if not n: return
            assert fix, ("unwaited", x.key, {c: p.key for c, p in n.items()})
            changed = True
            for c, p in n.items():
                done = False
                for cw in cands:
                    if cw < 0 or cw == nm - 1 or cw not in hist: continue
                    snap = hist[cw][c]
                    if p not in snap: continue
                    fl = free[stat(cw)]
                    wi = [i for i in fl if i.kind == "wait"]
                    if not wi and fl and cw != cands[-1]: continue
                    if not wi:
                        wi = [Ins("", None, "wait")]; fl.insert(0, wi[0])
                    setw(wi[0], c, len(snap) - 1 - snap.index(p)); done = True; break
                if not done:
                    ins = pre.setdefault((stat(w), pos), Ins("", None, "wait"))
                    setw(ins, c, len(q[c]) - 1 - q[c].index(p))
                while p in q[c]:
                    d = q[c].pop(0)
                    for r in d.writes:
                        if pend.get(r) is d: del pend[r]
        for w in range(-1, nm):
            if w >= 0:
                if (stat(w), "m") in pre: dowait(pre[(stat(w), "m")])
                handle(mf[w], w, "m", [w - 1, w - 2])
            hist[w] = {c: list(v) for c, v in q.items()}
            hist.pop(w - 4, None)
            for ins in list(free[stat(w)]):
                if ins.kind == "wait": dowait(ins)
                elif ins.kind == "bar":
                    x = [y for y in wins[w] if y.kind == "bar"][0]
                    handle(x, w, "b", [w - 1, w - 2, w])
            for pos, x in enumerate(body(w)):
                if (stat(w), pos) in pre: dowait(pre[(stat(w), pos)])
                handle(x, w, pos, [w, w - 1])
                issue(x)
        return changed
    for _ in range(10):
        if not walk(True): break
    walk(False)
    for w in range(0, nm - 1):
        if stat(w) != w: continue
        for x in wins[w]:
            if x.kind != "salu": continue
            hiw = min([y.win - (1 if "m0" in x.writes or y.kind == "salu" else 0) for y, _, _ in x.succs if y.win is not None] + [w + 40, nm - 2])
            if L0 <= w < L0 + per: hiw = min(hiw, L0 + per - 3)
            elif w < L0: hiw = min(hiw, L0 - 1)
            hiw = max(hiw, w)
            c = [k for k in range(w, hiw + 1) if not free[k]]
            c2 = [k for k in c if body(k) and body(k)[0].kind in ("ds", "dma", "load", "store", "dsw")]
            k = c2[0] if c2 else (c[0] if c else w)
            free[k].append(Ins(x.text, x)); x.fw = k
    k = [k for k in range(L0 + per - 2, L0 + per) if not free[k]]
    k = k[0] if k else L0 + per - 1
    assert not any(i.kind == "salu" for kk in range(k, L0 + per) for i in free[kk])
    free[k].append(Ins(f"s_sub_u32 s{sCnt}, s{sCnt}, 1"))
    if cfg.nop_ds:
        for w in range(0, nm - 1):
            if stat(w) == w and not free[w] and body(w) and body(w)[0].kind in ("ds", "dma", "load", "store", "dsw"):
                free[w].append(Ins("s_nop 0", None, "nop"))
    def wtext(i):
        t = "s_waitcnt"
        if i.vm is not None: t += f" vmcnt({i.vm})"
        if i.lg is not None: t += f" lgkmcnt({i.lg})"
        return t
    code = {}
    for w in range(-1, nm):
        if stat(w) != w: continue
        l = []
        if w >= 0:
            if (w, "m") in pre: l.append(pre[(w, "m")])
            l.append(Ins(mf[w].text, mf[w]))
        l += free[w]
        for pos, x in enumerate(body(w)):
            if (w, pos) in pre: l.append(pre[(w, pos)])
            l.append(Ins(x.text, x))
        for i in l:
            if i.kind == "wait": i.text = wtext(i)
        code[w] = l
    def wcost(l, head=False):
        t = 0; base = 0; lastvalu = -99; blk = 8
        for i in l:
            if i.kind == "mfma": base = t; t += 4; blk = 12 if "smfmac" in i.text else 8; continue
            if i.kind in ("salu", "wait", "bar", "nop"): t += 4; continue
            if i.kind == "nopx": t += 4 * (int(i.text.split()[1]) + 1); continue
            if not head: t = max(t, base + blk)
            if i.kind in ("valu", "trans"): t += i.op.cost; lastvalu = t
            else:
                t = max(t, lastvalu + 8) + i.op.cost
        return t if head else max(t, base + 16)
    def hazards(fix):
        seq = []
        changed = False
        for w in range(-1, nm):
            l = code[stat(w)]
            j = 0
            while j < len(l):
                i = l[j]; x = i.op
                needn = 0
                if x is not None and x.kind not in ("salu", "bar"):
                    dist = 0
                    for p, st, pwin in reversed(seq):
                        y = p.op
                        if y is not None:
                            req = 0
                            raw = set(y.writes) & set(x.reads); waw = set(y.writes) & set(x.writes); war = set(y.reads) & set(x.writes)
                            if y.kind == "mfma":
                                if x.kind == "mfma":
                                    if set(y.writes) & set(x.reads[:8]): req = 8
                                elif raw or waw: req = 12 if y.key[0] == "on" else 8
                                elif war and x.kind in ("valu", "trans") and set(y.writes) & set(x.writes): req = 3
                            elif y.kind in ("valu", "trans"):
                                if raw and x.kind == "mfma": req = 2
                                if raw and "permlane" in x.text: req = 2
                                if raw and y.kind == "trans" and x.kind != "trans": req = max(req, 1)
                            elif y.kind in ("store", "dsw") and war and y.cost == 20: req = 2
                            elif y.kind == "salu" and "m0" in y.writes and x.kind == "dma": req = 1
                            if req - dist > needn: needn = req - dist; pw = pwin
                        dist += st
                        if dist >= 12: break
                if needn > 0:
                    assert fix, ("hazard", x.key)
                    for k in range(w, pw - 1, -1):
                        if k < 0: break
                        lk = code[stat(k)]
                        mi = [n for n, z in enumerate(lk) if z.kind == "mfma"][0]
                        places = []
                        if k > pw and (k < w or j > mi): places.append(mi + 1)
                        if k < w: places.append(len(lk))
                        ok_ = False
                        for pl in places:
                            tr = lk[:pl] + [Ins("s_nop 0", None, "nopx")] + lk[pl:]
                            if wcost(tr) == wcost(lk): lk[:] = tr; ok_ = True; break
                        if ok_: return True
                    l.insert(j, Ins(f"s_nop {needn-1}", None, "nopx")); changed = True
                    continue
                st = int(i.text.split()[1]) + 1 if i.text.startswith("s_nop") else 1
                seq.append((i, st, w)); seq = seq[-14:]
                j += 1
        return changed
    while hazards(True): pass
    lastw = {}; seen = set()
    for w in range(-1, nm):
        it = (w - L0) // per if L0 <= w < L1 else 0
        for i in code[stat(w)]:
            if i.op is None: continue
            x = keys[norm(i.op.key, 8 * it)]
            assert x.text == i.text, (x.text, i.text)
            assert x.key not in seen; seen.add(x.key)
            if not x.dummy:
                for r in x.reads:
                    assert lastw.get(r) == x.prod.get(r), ("dataflow", x.key, r, lastw.get(r), x.prod.get(r))
            for r in x.writes: lastw[r] = x.key
    assert all(x.key in seen or x.dummy for x in rp), [x.key for x in rp if x.key not in seen and not x.dummy][:5]
    est = {}
    for s in range(0, last + 1):
        e = rstart.get(s + 1, nm)
        est[s] = (sum(wcost(code[stat(w)]) for w in range(rstart[s], e)), (e - rstart[s]) * 16)
    cfg.est = est; cfg.est_head = wcost(code[-1], True)
    out = []
    cfg.spins = []
    E = out.append
    stamp_at = getattr(cfg, "stamp_steps", [])
    inv = {v: k for k, v in rstart.items()}
    for w in range(-1, nm):
        if stat(w) != w: continue
        if w == L0: E("L_loop:")
        if w in inv:
            E(f"; ---- step {inv[w]} ----")
            if cfg.stamps and inv[w] in stamp_at:
                j = stamp_at.index(inv[w]); E(f"    s_memrealtime s[{64+2*j}:{65+2*j}]")
        for i in code[w]:
            if i.op is not None and i.op.key[0] in cfg.kill and (L0 if cfg.kill_from is None else cfg.kill_from) <= w: E("    s_nop 0")
            else: E("    " + i.text)
            if i.text.startswith("s_cbranch_vccnz L_spin"):
                n = i.text.split("L_spin")[1]; E(f"L_back{n}:"); cfg.spins.append(n)
        if w == L0 + per - 1: E("    s_cbranch_scc0 L_loop")
    return "\n".join(out)

def fbits(x): return struct.unpack("<I", struct.pack("<f", x))[0]

def head(cfg):
    T = vS
    h = f"""    s_load_dwordx4 s[4:7], s[0:1], 0          ; q, k
    s_load_dwordx4 s[8:11], s[0:1], 16        ; v, out
"""
    if cfg.stamps: h += f"    s_load_dwordx2 s[56:57], s[0:1], {32 if cfg.stamps in ('dbg', 'skew') else 40}\n    s_memrealtime s[60:61]\n"
    h += f"""    v_lshrrev_b32 v{T}, 6, v0
    v_and_b32 v{T+4}, 63, v0                  ; lane
    v_readfirstlane_b32 s{sWave}, v{T}
    s_cmp_ge_u32 s2, 256
    s_cbranch_scc1 L_end
    v_and_b32 v{T+1}, 15, v0                  ; l & 15
    v_bfe_u32 v{T+2}, v0, 4, 2                ; l >> 4
    v_lshlrev_b32 v{vKl}, 4, v{T+4}           ; lane*16
    s_and_b32 s{sTmp}, s2, 7
    s_lshr_b32 s{sTmp+1}, s2, 3
    s_lshl_b32 s{sTmp}, s{sTmp}, 5
    s_add_u32 s{sTmp}, s{sTmp}, s{sTmp+1}
    s_lshl2_add_u32 s{sTmp+2}, s{sTmp}, s{sWave}
    s_lshl_b32 s{sTmp+2}, s{sTmp+2}, 16       ; q/o byte offset of this wave
    s_lshr_b32 s{sTmp}, s{sTmp}, 2
    s_lshl_b32 s{sTmp}, s{sTmp}, 17           ; k/v byte offset of the group
    s_lshl_b32 s{sMq}, s{sWave}, 12           ; wave*4096
    s_add_u32 s{sTmp+3}, s{sTmp}, s{sMq}
    s_sub_u32 s{sK_+2}, 0x20000, s{sMq}
    s_mov_b32 s{sK_+3}, 0x20000
    s_mov_b32 s{sQ_+3}, s{sK_+3}
    s_mov_b32 s{sQ_+2}, 0x10000
"""
    if cfg.rot:
        h += f"""    s_bfe_u32 s{sTmp+4}, s2, 0x20003
    s_mul_i32 s{sTile}, s{sTmp+4}, {cfg.rot*16384}
    s_and_b32 s{sTile}, s{sTile}, 0x1ffff
    s_add_u32 s{sTile+1}, s{sTile}, 16384
    s_and_b32 s{sTile+1}, s{sTile+1}, 0x1ffff
"""
    else: h += f"    s_mov_b32 s{sTile}, 0\n    s_movk_i32 s{sTile+1}, 0x4000\n"
    h += f"""    s_mov_b32 s{sQo}, 0
    v_lshlrev_b32 v{T+3}, 8, v{T+2}           ; (l>>4)*256
    v_xor_b32 v{T+5}, v{T+1}, v{T+2}          ; (l&15) ^ (l>>4)
    v_lshl_add_u32 v{vQd}, v{T+5}, 4, v{T+3}
    s_waitcnt lgkmcnt(0)
    s_add_u32 s{sK_}, s6, s{sTmp+3}
    s_addc_u32 s{sK_+1}, s7, 0
    s_add_u32 s{sQ_}, s4, s{sTmp+2}
    s_addc_u32 s{sQ_+1}, s5, 0
"""
    if cfg.stamps: h += "    s_memrealtime s[62:63]\n"
    return h

def head2(cfg):
    c = math.log2(math.e) / math.sqrt(128.0)
    T = vS
    h = f"""    ; code prefetch into L2: 16 lines per wave, 8 KiB per workgroup
    s_getpc_b64 s[{sC_}:{sC_+1}]
L_pc:
    s_mov_b32 s{sC_+2}, L_slow - L_pc
    s_mov_b32 s{sC_+3}, 0x20000
    s_bfe_u32 s{sTmp+1}, s2, 0x30003
    s_lshl2_add_u32 s{sTmp+1}, s{sTmp+1}, s{sWave}
    s_lshl_b32 s{sTmp+1}, s{sTmp+1}, 11
    v_lshlrev_b32 v{vJ}, 5, v{T+4}
    v_add_u32 v{vJ}, s{sTmp+1}, v{vJ}
@CPF
    s_add_u32 s{sV_}, s8, s{sTmp}
    s_addc_u32 s{sV_+1}, s9, 0
    s_add_u32 s{sO_}, s10, s{sTmp+2}
    s_addc_u32 s{sO_+1}, s11, 0
    s_mov_b32 s{sV_+2}, 0x20000
    s_mov_b32 s{sV_+3}, 0x20000
    s_mov_b32 s{sO_+2}, 0x10000
    s_mov_b32 s{sO_+3}, 0x20000
"""
    for t in range(2, 8):
        if cfg.rot: h += f"    s_add_u32 s{sTile+t}, s{sTile+t-1}, 16384\n    s_and_b32 s{sTile+t}, s{sTile+t}, 0x1ffff\n"
        else: h += f"    s_mov_b32 s{sTile+t}, {t*16384}\n"
    h += f"""    s_add_u32 s{sM0}, s{sMq}, 0x18000
    s_add_u32 s{sM0+1}, s{sMq}, 0x1c000
    s_add_u32 s{sM0+2}, s{sMq}, 0x20000
    s_add_u32 s{sM0+3}, s{sMq}, 0x24000
    s_mov_b32 s{sOo}, 0
    s_mov_b32 s{sExp}, 0
    s_mov_b32 s{sCnt}, 2
    s_mov_b32 s{sScale}, {fbits(c):#x}
    s_mov_b32 s{sMask}, 0xffff0000
    ; K fragment read addresses: g*256 + (key ^ g ^ 4*(ds&1))*16
    v_mov_b32 v{vKr}, v{vQd}
    v_xor_b32 v{vKr+1}, 64, v{vQd}
    v_add_u32 v{vKr+2}, 0x10000, v{vKr}
    v_add_u32 v{vKr+3}, 0x10000, v{vKr+1}
    v_and_b32 v{T+6}, 7, v{T+5}
    v_lshlrev_b32 v{T+7}, 8, v{T+1}           ; (l&15)*256
    v_lshl_add_u32 v{T+6}, v{T+6}, 4, v{T+7}
    v_add_u32 v{vKw}, s{sMq}, v{T+6}
    v_xor_b32 v{vKw+1}, 64, v{vKw}
    v_and_b32 v{T+6}, 3, v{T+5}
    v_lshl_add_u32 v{T+6}, v{T+6}, 4, v{T+7}
    v_add_u32 v{vQr}, s{sMq}, v{T+6}
"""
    if cfg.vperm:
        h += f"""    ; V DMA source offsets: row r=l>>4, 64-byte unit (c16>>2)^(key&3)
    v_lshlrev_b32 v{T+6}, 2, v{T+2}
    v_xor_b32 v{T+6}, v{T+6}, v{T+1}
    v_lshl_add_u32 v{T+6}, v{T+6}, 4, v{T+3}
    v_add_u32 v{vD0}, s{sMq}, v{T+6}
    v_mov_b32 v{vD1}, v{vD0}
    ; V transposed-read addresses: lane = 16g+4r+c reads 8 bytes of chunk c of unit (db>>1)^r, half db&1
    v_lshrrev_b32 v{T+8}, 2, v{T+4}           ; 4g+r
    v_lshlrev_b32 v{T+6}, 4, v{T+1}           ; r*64 + c*16
    v_lshl_add_u32 v{T+6}, v{T+8}, 8, v{T+6}
    v_and_b32 v{T+9}, 3, v{T+4}
    v_add_u32 v{vV}, 0x18000, v{T+6}
"""
        for db in range(1, 8): h += f"    v_xor_b32 v{vV+db}, {(db >> 1) * 64 + (db & 1) * 8}, v{vV}\n"
        h += f"    v_lshl_add_u32 v{vO}, v{T+2}, 4, v{T+7}\n"
    else:
        h += f"""    ; V DMA source offsets: row r=l>>4, unit (c16>>1)^(key&7)
    v_lshrrev_b32 v{T+6}, 1, v{T+1}
    v_xor_b32 v{T+6}, v{T+6}, v{T+2}
    v_lshl_add_u32 v{T+6}, v{T+6}, 5, v{T+3}
    v_and_b32 v{T+8}, 1, v{T+1}
    v_lshl_add_u32 v{T+6}, v{T+8}, 4, v{T+6}
    v_add_u32 v{vD0}, s{sMq}, v{T+6}
    v_xor_b32 v{vD1}, 0x80, v{vD0}
    ; V transposed-read addresses: lane = 16g+4r+c
    v_lshrrev_b32 v{T+8}, 2, v{T+4}           ; 4g+r
    v_and_b32 v{T+6}, 7, v{T+8}
    v_lshlrev_b32 v{T+6}, 5, v{T+6}
    v_lshl_add_u32 v{T+6}, v{T+8}, 8, v{T+6}
    v_and_b32 v{T+9}, 3, v{T+4}
    v_lshl_add_u32 v{T+6}, v{T+9}, 3, v{T+6}
    v_add_u32 v{vV}, 0x18000, v{T+6}
"""
        for db in range(1, 8): h += f"    v_xor_b32 v{vV+db}, {db*32}, v{vV}\n"
        if cfg.store_x4:
            h += f"""    v_and_b32 v{T+6}, 1, v{T+2}
    v_lshl_add_u32 v{vO}, v{T+6}, 5, v{T+7}
    v_lshrrev_b32 v{T+6}, 1, v{T+2}
    v_lshl_add_u32 v{vO}, v{T+6}, 4, v{vO}
"""
        else:
            h += f"    v_lshl_add_u32 v{vO}, v{T+2}, 3, v{T+7}\n"
    h += f"""    ; row-sum operand: rows 4i and 4i+1 are ones; they pick elements 0,1 and 2,3 of every group of four keys
    v_cmp_eq_u32 vcc, 1, v{T+9}
    v_mov_b32 v{T+6}, 0x44444444
    v_mov_b32 v{T+8}, 0xeeeeeeee
    v_cndmask_b32 v{vIdx}, v{T+6}, v{T+8}, vcc
    v_cmp_gt_u32 vcc, 2, v{T+9}
    v_mov_b32 v{T+6}, 0x3f803f80
    v_mov_b32 v{vChk}, {'-1' if cfg.force_slow else '0'}
    v_cndmask_b32 v{T+6}, 0, v{T+6}, vcc
    v_lshlrev_b32 v{vCnt}, 2, v{T+4}
    v_add_u32 v{vCnt}, 0x4000, v{vCnt}
    v_accvgpr_write_b32 a{aOne}, v{T+6}
    v_accvgpr_write_b32 a{aOne+1}, v{T+6}
    v_accvgpr_write_b32 a{aOne+2}, v{T+6}
    v_accvgpr_write_b32 a{aOne+3}, v{T+6}
    v_accvgpr_write_b32 a{aCone}, 1
    v_accvgpr_write_b32 a{aCone+1}, 0
"""
    return h

def tail(cfg):
    lim = (127 + cfg.limit_exp) << 23
    t = ""
    if cfg.stamps == "skew":
        t += """    s_mov_b32 s58, 256
    s_mov_b32 s59, 0x20000
    s_not_b32 s64, s60
    v_mov_b32 v64, s64
    v_mov_b32 v60, 0
    s_mov_b64 exec, 1
    s_cmp_lg_u32 s3, 0
    s_cbranch_scc1 L_sk1
    buffer_atomic_umax v64, v60, s[56:59], 0 offen
    s_waitcnt vmcnt(0)
L_sk1:
    s_memrealtime s[72:73]
    s_waitcnt lgkmcnt(0)
    s_sub_u32 s72, s72, s60
    s_cmp_lt_u32 s72, 8000
    s_cbranch_scc1 L_sk1
    buffer_load_dword v64, v60, s[56:59], 0 offen sc0 sc1
    s_waitcnt vmcnt(0)
    v_readfirstlane_b32 s64, v64
    s_nop 4
    s_not_b32 s64, s64
L_sk2:
    s_memrealtime s[72:73]
    s_waitcnt lgkmcnt(0)
    s_sub_u32 s72, s72, s64
    s_cmp_lt_u32 s72, 10000
    s_cbranch_scc1 L_sk2
    s_mov_b64 exec, -1
"""
    elif cfg.stamps == "spin":
        if not getattr(cfg, "stamp_steps", []): t += "    s_waitcnt vmcnt(0)\n    s_memrealtime s[64:65]\n"
        t += f"""    s_waitcnt lgkmcnt(0)
    s_sub_u32 s64, s64, s60
    s_mul_i32 s64, s64, {getattr(cfg, "spin_mul", 0)}
    s_add_u32 s64, s64, 10000
L_spin:
    s_memrealtime s[72:73]
    s_waitcnt lgkmcnt(0)
    s_sub_u32 s72, s72, s60
    s_cmp_lt_u32 s72, s64
    s_cbranch_scc1 L_spin
"""
    elif cfg.stamps:
        e0 = 88 if cfg.stamps == "c16" else 72
        t += f"""    s_memrealtime s[{e0}:{e0+1}]
    s_waitcnt vmcnt(0)
    s_memrealtime s[{e0+2}:{e0+3}]
    s_mov_b32 s58, 0x10000000
    s_mov_b32 s59, 0x20000
    s_lshl_b32 s46, s2, 2
    s_add_u32 s46, s46, s3
    s_lshl_b32 s46, s46, 6
    s_waitcnt lgkmcnt(0)
"""
        for i in range(16): t += f"    v_mov_b32 v{64+i}, s{60+(2*i if cfg.stamps == 'c16' else i)}\n"
        t += "    v_mov_b32 v60, 0\n    s_mov_b64 exec, 1\n"
        if cfg.stamps == "dbg":
            t += "    s_mov_b32 s58, 256\n"
            for i in range(8):
                t += f"    v_not_b32 v{65+2*i}, v{64+2*i}\n"
            for i in range(16): t += f"    buffer_atomic_umax v{64+i}, v60, s[56:59], 0 offen offset:{4*i}\n"
        else:
          for i in range(4): t += f"    buffer_store_dwordx4 v[{64+4*i}:{67+4*i}], v60, s[56:59], s46 offen offset:{16*i}\n"
        t += "    s_mov_b64 exec, -1\n"
    t += f"""    v_cmp_lt_u32 vcc, {lim:#x}, v{vChk}
    s_nop 4
    s_cbranch_vccnz L_slow
L_end:
    s_endpgm
"""
    for n in cfg.spins:
        t += f"""L_spin{n}:
    ds_read_b32 v{vPoll}, v{vCnt}
    s_waitcnt lgkmcnt(0)
    v_cmp_gt_u32 vcc, s{sExp}, v{vPoll}
    s_nop 4
    s_cbranch_vccnz L_spin{n}
    s_branch L_back{n}
"""
    S0, S1, M, T = 16, 20, 24, 25
    vQ = vQd; vKb = vKr + 2
    q = lambda ds: at(aQ + 4 * ds, 4)
    k = lambda j, ds: at(aK + j * 16 + 4 * ds, 4)
    t += f"""; Fallback: a row sum left [2^-{cfg.limit_exp}, 2^{cfg.limit_exp}] (or is not finite), so exp without an offset was not safe.
L_slow:
    s_waitcnt vmcnt(0) lgkmcnt(0)
    s_barrier                                 ; the other waves are done with LDS (ended or here)
    s_mov_b32 s{sQo}, 0
    s_lshl_b32 s{sTmp}, s{sWave}, 12
    s_lshl_b32 s{sTmp+1}, s{sWave}, 13
    s_add_u32 s{sTmp+2}, s{sTmp+1}, 0x20000
    s_add_u32 s{sTmp+3}, s{sTmp+2}, 4096
    v_subrev_u32 v{vD0}, s{sTmp}, v{vD0}
    v_subrev_u32 v{vD1}, s{sTmp}, v{vD1}
"""
    for db in range(8): t += f"    v_add_u32 v{vV+db}, s{sTmp+1}, v{vV+db}\n"
    t += f"""    s_sub_u32 s{sK_}, s{sK_}, s{sTmp}
    s_subb_u32 s{sK_+1}, s{sK_+1}, 0
    s_mov_b32 s{sK_+2}, 0x20000
    s_add_u32 s{sTmp+4}, s{sTmp}, 0x10000
    v_subrev_u32 v{vKw}, s{sTmp+4}, v{vKw}
    v_subrev_u32 v{vKw+1}, s{sTmp+4}, v{vKw+1}
    s_mov_b32 s{sCnt}, 0
L_skld:
"""
    for i in range(4): t += f"    buffer_load_dwordx4 {vt(vOa+4*i,4)}, v{vKl}, s[{sK_}:{sK_+3}], s{sCnt} offen offset:{i*1024}\n"
    t += "    s_waitcnt vmcnt(0)\n"
    for x in range(vOa, vOa + 16):
        t += f"""    v_lshlrev_b32 v{T}, 16, v{x}
    v_and_b32 v{x}, s{sMask}, v{x}
    v_mul_f32 v{T}, s{sScale}, v{T}
    v_mul_f32 v{x}, s{sScale}, v{x}
    v_cvt_pk_bf16_f32 v{x}, v{T}, v{x}
"""
    for i in range(4): t += f"    ds_write_b128 v{vKw+(i&1)}, {vt(vOa+4*i,4)} offset:{(i>>1)*128}\n"
    t += f"""    s_waitcnt lgkmcnt(0)
    v_add_u32 v{vKw}, 4096, v{vKw}
    v_add_u32 v{vKw+1}, 4096, v{vKw+1}
    s_add_u32 s{sCnt}, s{sCnt}, 4096
    s_cmp_lt_u32 s{sCnt}, 0x20000
    s_cbranch_scc1 L_skld
    v_bfe_u32 v{T}, v{vKl}, 4, 4
    v_lshrrev_b32 v{vQ}, 8, v{vKl}
    v_lshlrev_b32 v{vQ}, 4, v{vQ}
    v_lshl_add_u32 v{vQ}, v{T}, 8, v{vQ}
"""
    t += "L_sblk:\n"
    for ds in range(4): t += f"    buffer_load_dwordx4 {q(ds)}, v{vQ}, s[{sQ_}:{sQ_+3}], s{sQo} offen offset:{ds*64}\n"
    t += f"""    v_mov_b32 v{M}, 0xff800000
    v_mov_b32 v{vKb}, v{vKr}
    v_mov_b32 v{vKb+1}, v{vKr+1}
    s_mov_b32 s{sCnt}, 32
    s_waitcnt vmcnt(0)
L_smax:
"""
    for ds in range(4): t += f"    ds_read_b128 {k(0,ds)}, v{vKb+(ds&1)} offset:{ds*1024}\n"
    t += "    s_waitcnt lgkmcnt(0)\n"
    for ds in range(4): t += f"    v_mfma_f32_16x16x32_bf16 {vt(S0,4)}, {k(0,ds)}, {q(ds)}, {'0' if ds == 0 else vt(S0,4)}\n"
    t += f"""    s_nop 7
    v_max3_f32 v{M}, v{M}, v{S0}, v{S0+1}
    v_max3_f32 v{M}, v{M}, v{S0+2}, v{S0+3}
    v_add_u32 v{vKb}, 4096, v{vKb}
    v_add_u32 v{vKb+1}, 4096, v{vKb+1}
    s_sub_u32 s{sCnt}, s{sCnt}, 1
    s_cmp_lg_u32 s{sCnt}, 0
    s_cbranch_scc1 L_smax
    v_mov_b32 v{T}, v{M}
    s_nop 1
    v_permlane16_swap_b32 v{M}, v{T}
    s_nop 1
    v_max_f32 v{M}, v{M}, v{T}
    v_mov_b32 v{T}, v{M}
    s_nop 1
    v_permlane32_swap_b32 v{M}, v{T}
    s_nop 1
    v_max_f32 v{M}, v{M}, v{T}
"""
    for r in range(4): t += f"    v_mov_b32 v{vL+r}, 0\n"
    for r in range(32): t += f"    v_mov_b32 v{vOa+r}, 0\n"
    t += f"""    v_mov_b32 v{vKb}, v{vKr}
    v_mov_b32 v{vKb+1}, v{vKr+1}
    s_mov_b32 s{sCnt}, 0
L_skey:
    s_mov_b32 m0, s{sTmp+2}
    s_mov_b32 s{sTmp+5}, s{sCnt}
    s_add_u32 s{sTmp+4}, s{sTmp+5}, 4096
"""
    for i in range(4): t += f"    buffer_load_dwordx4 v{vD0+(i&1)}, s[{sV_}:{sV_+3}], s{sTmp+5} offen offset:{i*1024} lds\n"
    t += f"    s_mov_b32 m0, s{sTmp+3}\n    s_nop 0\n"
    for i in range(4): t += f"    buffer_load_dwordx4 v{vD0+(i&1)}, s[{sV_}:{sV_+3}], s{sTmp+4} offen offset:{i*1024} lds\n"
    for j in range(2):
        for ds in range(4): t += f"    ds_read_b128 {k(j,ds)}, v{vKb+(ds&1)} offset:{j*4096+ds*1024}\n"
    t += "    s_waitcnt vmcnt(0) lgkmcnt(0)\n"
    for db in range(8):
        for h in range(2): t += f"    ds_read_b64_tr_b16 {at(aV+db*4+2*h,2)}, v{vV+db} offset:{32768+h*4096}\n"
    for j, S in enumerate((S0, S1)):
        for ds in range(4): t += f"    v_mfma_f32_16x16x32_bf16 {vt(S,4)}, {k(j,ds)}, {q(ds)}, {'0' if ds == 0 else vt(S,4)}\n"
    t += "    s_nop 7\n"
    for r in range(8): t += f"    v_sub_f32 v{S0+r}, v{S0+r}, v{M}\n"
    for r in range(8): t += f"    v_exp_f32 v{S0+r}, v{S0+r}\n"
    t += "    s_nop 0\n"
    for r in range(4): t += f"    v_cvt_pk_bf16_f32 v{vP+r}, v{S0+2*r}, v{S0+2*r+1}\n"
    t += f"    v_add_u32 v{vKb}, 8192, v{vKb}\n    v_add_u32 v{vKb+1}, 8192, v{vKb+1}\n    s_waitcnt lgkmcnt(0)\n    s_nop 0\n"
    t += f"    v_mfma_f32_16x16x32_bf16 {vt(vL,4)}, {at(aOne,4)}, {vt(vP,4)}, {vt(vL,4)}\n"
    for db in range(8): t += f"    v_mfma_f32_16x16x32_bf16 {vt(vOa+4*db,4)}, {at(aV+db*4,4)}, {vt(vP,4)}, {vt(vOa+4*db,4)}\n"
    t += f"""    s_add_u32 s{sCnt}, s{sCnt}, 8192
    s_cmp_lt_u32 s{sCnt}, 0x20000
    s_cbranch_scc1 L_skey
    s_nop 7
    v_rcp_f32 v{vR}, v{vL}
    s_nop 0
"""
    for r in range(32): t += f"    v_mul_f32 v{vOa+r}, v{vOa+r}, v{vR}\n"
    for db in range(8):
        o = vOa + 4 * db; d = vP + 2 * db
        t += f"    v_cvt_pk_bf16_f32 v{d}, v{o}, v{o+1}\n    v_cvt_pk_bf16_f32 v{d+1}, v{o+2}, v{o+3}\n"
    if cfg.store_x4:
        t += "    s_nop 1\n"
        for db in range(0, 8, 2):
            d = vP + 2 * db
            if not cfg.vperm: t += f"    v_permlane16_swap_b32 v{d}, v{d+2}\n    v_permlane16_swap_b32 v{d+1}, v{d+3}\n"
            t += f"    buffer_store_dwordx4 {vt(d,4)}, v{vO}, s[{sO_}:{sO_+3}], s{sQo} offen offset:{db*32}\n"
    else:
        for db in range(8): t += f"    buffer_store_dwordx2 {vt(vP+2*db,2)}, v{vO}, s[{sO_}:{sO_+3}], s{sQo} offen offset:{db*32}\n"
    t += f"""    s_add_u32 s{sQo}, s{sQo}, 4096
    s_cmp_lt_u32 s{sQo}, 0x10000
    s_waitcnt vmcnt(0)
    s_cbranch_scc1 L_sblk
    s_endpgm
"""
    return t

HDR = """; Kernarg layout for this problem (48 bytes, ptrs only, base s[0:1]):
;   offset   0: d_in[0] q  shape=(16, 32, 512, 128) dtype=bfloat16
;   offset   8: d_in[1] k  shape=(16, 4, 512, 128) dtype=bfloat16
;   offset  16: d_in[2] v  shape=(16, 4, 512, 128) dtype=bfloat16
;   offset  24: d_out     shape=(16, 32, 512, 128) dtype=bfloat16
;   offset  32: d_debug   256 bytes
;   offset  40: d_ws      268435456 bytes workspace (unused)
; @launch grid=(256,1,1) block=(256,1,1) lds=163840
"""

def full(cfg):
    body = generate(cfg)
    r = full2(cfg, body)
    if cfg.stamps in ("cyc", "c16"): r = r.replace("s_memrealtime", "s_memtime")
    if cfg.stamps == "both":
        import re
        r = re.sub(r"    s_memrealtime s\[(\d+):(\d+)\]", lambda m: f"    s_memtime s[{m.group(1)}:{m.group(2)}]\n    s_memrealtime s[{int(m.group(1))+20}:{int(m.group(2))+20}]", r)
        for i in range(8): r = r.replace(f"v_mov_b32 v{65+2*i}, s{61+2*i}\n", f"v_mov_b32 v{65+2*i}, s{80+2*i}\n")
    return r

def full2(cfg, body):
    return HDR + f""".amdgcn_target "amdgcn-amd-amdhsa--gfx950"
.text
.globl {KN}
.p2align 8
.type {KN},@function
{KN}:
""" + head(cfg) + body + "\n" + tail(cfg) + f""".section .rodata,"a"
.p2align 6
.amdhsa_kernel {KN}
  .amdhsa_next_free_vgpr 512
  .amdhsa_next_free_sgpr 102
  .amdhsa_accum_offset 256
  .amdhsa_group_segment_fixed_size 0
  .amdhsa_kernarg_size 48
  .amdhsa_user_sgpr_count 2
  .amdhsa_user_sgpr_kernarg_segment_ptr 1
  .amdhsa_system_sgpr_workgroup_id_x 1
.end_amdhsa_kernel
"""

if __name__ == "__main__":
    cfg = Cfg()
    name = sys.argv[1]
    for a in sys.argv[2:]:
        k, v = a.split("=", 1)
        try: v = eval(v)
        except Exception: pass
        setattr(cfg, k, v)
    s = full(cfg)
    open(name, "w").write(s)
    tot = sum(v[0] for v in cfg.est.values())
    print(name, "est head", cfg.est_head, "total", tot, "mfma", sum(v[1] for v in cfg.est.values()), file=sys.stderr)
    print(" ".join(f"{s}:{v[0]}/{v[1]}" for s, v in cfg.est.items() if s < 16 or s >= 32), file=sys.stderr)
```

```python
import sys, math, struct
KN = "standalone__gqa_softmax__near_ridge_kernel"

class Cfg:
    sigma = (0, 2, 4, 6)
    beta = 0.80
    beta_small = 0.55
    ds_lat = 9
    mv_lat = 4
    store_x4 = True
    q_nt = "nt"
    st_pol = "sc0 sc1"
    k_pol = "nt"
    v_pol = ""
    v_pol0 = "nt"
    rot = 0
    split_from = 3
    split_min_u = 2
    arr_gap = 10
    vm_gap = 5
    smooth = True
    stamps = False
    code_pf = True
    plan = "K0 Q0 C K1 W00 V0 S0 B r0 r1 R0 K2 S1@0.0 V1@0.0 Q1@0.5 K3@1.0 V2@1.3 K4@1.6 R1@2.0 Q2@2.2 V3@2.3 K5@2.b K6@3.b R2@3.b Q3@4.0 K7@4.b R3@5.b Q4@6.0"
    vperm = True
    st_last = "sc0 sc1"
    st_last_from = 38
    ones_rows = 8
    deep = True
    tail_dl = 1.0
    betas = {0: 0.95, 1: 0.9, 2: 0.9, 3: 0.8}
    arr_gap_small = 4
    k_up = 1
    force_slow = False
    nop_ds = True
    ds_gap = 2
    ds_cap = 1024
    kill_from = None
    pad = 0
    kill = ()
    limit_exp = 32

vQd, vO, vQr, vCnt, vD0, vD1, vChk = 1, 2, 3, 4, 5, 6, 7
vKl = 0
vV = 8
vS = 16
vL = 32
vR = 48
vKw = 50
vT = 52
NT = 5
vIdx = 57
vPoll = 58
vJ = 59
vKr = 60
vP = 64
vOa = 128
aQ, aOne, aCone, aKp1, aK, aKp, aV = 0, 64, 68, 72, 80, 128, 192
sQ_, sK_, sV_, sO_, sC_ = 12, 16, 20, 24, 28
sTile = 32
sM0 = 96
sQo, sOo, sCnt, sScale, sWave = 42, 43, 44, 45, 3
sTmp = 46
sMq, sExp, sMask = 52, 53, 54

def vr(b, n=1): return [f"v{b+i}" for i in range(n)]
def ar(b, n=1): return [f"a{b+i}" for i in range(n)]
def vt(b, n): return f"v[{b}:{b+n-1}]"
def at(b, n): return f"a[{b}:{b+n-1}]"

class Op:
    def __init__(s, key, text, kind, reads, writes, cost=None, earliest=None, dummy=False, anchor=None, maxdl=None):
        s.key, s.text, s.kind, s.reads, s.writes = key, text, kind, list(reads), list(writes)
        s.cost = {"mfma": 0, "trans": 8, "valu": 4, "ds": 4, "dsw": 20, "load": 8, "dma": 8, "store": 12, "salu": 0, "bar": 0, "chk": 0}[kind] if cost is None else cost
        s.cnt = {"ds": "lgkm", "dsw": "lgkm", "load": "vm", "dma": "vm", "store": "vm"}.get(kind)
        s.earliest = earliest
        s.maxdl = maxdl
        s.dummy = dummy
        s.anchor = anchor
        s.preds = []; s.succs = []; s.win = None; s.pos = None; s.m = None
        s.prod = {}

def build(cfg, s0, s1, steady):
    sg = cfg.sigma
    NP = 4
    last = 32 + max(sg)
    def qk_on(s, u): return steady or (sg[u] <= s < sg[u] + 8 * NP)
    def pv_on(s, u): return steady or (sg[u] + 1 <= s < sg[u] + 8 * NP + 1)
    def order_qk(s, kb):
        us = [u for u in range(4) if qk_on(s, u)]
        if kb == 3:
            f = [u for u in us if (s - sg[u]) % 8 == 7]
            us = f + [u for u in us if u not in f]
        if kb == 0:
            f = [u for u in us if (s - sg[u]) % 8 == 0]
            us = [u for u in us if u not in f] + f
        return us
    prog = []
    A = prog.append
    chain = 0
    pend_q = []
    def qload(key, earliest=None, dummy=False):
        A(Op(key + ("m0",), f"s_mov_b32 m0, s{sMq}", "salu", [], ["m0"], dummy=dummy))
        for i in range(4):
            A(Op(key + (i,), f"buffer_load_dwordx4 v{vQd}, s[{sQ_}:{sQ_+3}], s{sQo} offen offset:{i*1024} {cfg.q_nt} lds".replace("  ", " "), "dma",
                 [f"s{sQo}", "m0"] + [f"Qrd{d}" for d in range(4)], [f"Qs{i}"], earliest=earliest, dummy=dummy))
        A(Op(key + ("inc",), f"s_add_u32 s{sQo}, s{sQo}, 4096", "salu", [f"s{sQo}"], [f"s{sQo}"], dummy=dummy))
    def qread(key, u, earliest=None, dummy=False):
        for ds in range(4):
            d = aQ + 16 * u + 4 * ds
            A(Op(key + (ds,), f"ds_read_b128 {at(d,4)}, v{vQr} offset:{ds*64}", "ds", [f"Qs{i}" for i in range(4)], ar(d, 4) + [f"Qrd{ds}"], earliest=earliest, dummy=dummy))
    def kfrag(t, kb, ds):
        if t == 0: return aKp + kb * 16 + ds * 4
        if (t, kb, ds) == (1, 0, 0): return aKp1
        return aK + (((t - 1) * 4 + kb) % 3) * 16 + ds * 4
    def vslot(sv):
        if not steady and cfg.deep and sv in (2, 3, 34, 35): return sv & 1
        return 2 + (sv & 1)
    def vprev(sv):
        if vslot(sv) < 2: return ["Kret67"] if sv > 8 else []
        p = sv - 2
        while p >= 0 and vslot(p) != vslot(sv): p -= 2
        return [f"Vret{p}"] if p >= 0 else []
    vissued = set()
    def vdma(sv, earliest=None):
        vissued.add(sv)
        A(Op(("m0", sv), f"s_mov_b32 m0, s{sM0 + vslot(sv)}", "salu", ["setup~"], ["m0"]))
        for i in range(4):
            A(Op(("dma", sv, i), f"buffer_load_dwordx4 v{vD0 + (i & 1)}, s[{sV_}:{sV_+3}], s{sTile + sv % 8} offen offset:{i*1024} {cfg.v_pol0 if (not steady and sv < 8) else cfg.v_pol} lds".replace("  ", " "), "dma",
                 ["m0"] + vprev(sv), [f"Vd{sv}_{i}"], earliest=earliest))
    kstage = {}
    def kregs(t):
        u = KST[t][0]; h = KST[t][1]
        if h == "P": return [vP + (ds >> 1) * 32 + u * 8 + (ds & 1) * 4 for ds in range(4)]
        return [vOa + (h * 4 + ds) * 16 + u * 4 for ds in range(4)]
    KST = [(1, 0), (1, 1), (2, 0), (2, 1), (3, 0), (3, 1), (3, "P"), (3, 0)]
    if cfg.k_up == 8: KST = [(0, 0), (0, 1), (1, 0), (1, 1), (2, 0), (2, 1), (3, 0), (3, 1)]
    def kload(t, earliest=None):
        for ds, r in enumerate(kregs(t)):
            A(Op(("kld", t, ds), f"buffer_load_dwordx4 {vt(r,4)}, v{vKl}, s[{sK_}:{sK_+3}], s{sTile + t} offen offset:{ds*1024} {cfg.k_pol}".rstrip(), "load",
                 [], vr(r, 4), earliest=earliest))
    tmpc = [0]
    def kscale(t, earliest=None):
        for ds, r in enumerate(kregs(t)):
            for j in range(4):
                x = r + j; tm = vT + tmpc[0] % NT; tmpc[0] += 1
                k = ("ksc", t, ds, j)
                A(Op(k + (0,), f"v_lshlrev_b32 v{tm}, 16, v{x}", "valu", vr(x), vr(tm), earliest=earliest))
                A(Op(k + (1,), f"v_and_b32 v{x}, s{sMask}, v{x}", "valu", vr(x), vr(x), earliest=earliest))
                A(Op(k + (2,), f"v_mul_f32 v{tm}, s{sScale}, v{tm}", "valu", vr(tm), vr(tm)))
                A(Op(k + (3,), f"v_mul_f32 v{x}, s{sScale}, v{x}", "valu", vr(x), vr(x)))
                A(Op(k + (4,), f"v_cvt_pk_bf16_f32 v{x}, v{tm}, v{x}", "valu", vr(tm) + vr(x), vr(x)))
            tl = 3 if t == 0 else t
            if t == 4 and ds < 2:
                A(Op(("kwa", t, ds), f"v_add_u32 v{vKw + ds}, 0x10000, v{vKw + ds}", "valu", vr(vKw + ds), vr(vKw + ds)))
            A(Op(("kw", t, ds), f"ds_write_b128 v{vKw + (ds & 1)}, {vt(r,4)} offset:{(tl & 3) * 16384 + (ds >> 1) * 128}", "dsw",
                 vr(r, 4) + vr(vKw + (ds & 1)) + (["K0dead"] if t == 3 else []) + ([f"Vret{t-4}"] if t >= 6 and cfg.deep else []), [f"Kw{t}_{ds}"]))
    nmf = [0]
    kpub = set()
    def kread1(s, t, kb):
        for ds in range(4):
            perm = t == 0 or (t, kb, ds) == (1, 0, 0)
            if perm and (steady or s > 7): continue
            d = kfrag(t, kb, ds); tl = 3 if t == 0 else t
            A(Op(("kr", s, kb, ds), f"ds_read_b128 {at(d,4)}, v{vKr + 2 * (tl >> 2) + (ds & 1)} offset:{(tl & 3) * 16384 + kb * 4096 + ds * 1024}", "ds",
                 [] if (steady or s > 7) else [f"Kok{t}"], ar(d, 4) + ([] if not perm else [f"Kr0_{kb}_{ds}" if t == 0 else "Kr1"])))
    kdone0 = set(); kscaled = []
    later = {}
    if not steady:
        H = (-1, 0)
        def issue(item, when):
            n0 = len(prog)
            n = int(item[1:]) if item[1:].isdigit() else None
            if item[0] == "K": kload(n, when)
            elif item[0] == "Q": qload(("q0", n) if n < 4 else ("q", 8, 0), when)
            elif item[0] == "R": qread(("qr0", n), n, when)
            elif item[0] == "V": vdma(n, when)
            elif item[0] == "S": kscale(n, when); kscaled.append(n)
            elif item[0] == "r": kread1(0, 0, n); kdone0.add(n)
            elif item[0] == "W":
                A(Op(("wt", 0, item), "s_nop 0", "valu", vr(kregs(int(item[1]))[int(item[2])], 4), []))
            elif item[0] == "B":
                pub = [t for t in kscaled if t not in kpub]; kpub.update(pub)
                A(Op(("bar", -1), "s_barrier", "bar", [f"Kw{t}_{ds}" for t in pub for ds in range(4)], [f"Kok{t}" for t in pub], anchor=H))
            elif item[0] == "C":
                pf = f"buffer_load_dword v{vJ}, v{vJ}, s[{sC_}:{sC_+3}], 0 offen"
                A(Op(("cpf", 0), head2(cfg).replace("@CPF", "    " + pf).strip(), "load", [], ["junk"], earliest=when, cost=300))
                A(Op(("setup", 0), "s_nop 0", "valu", [], ["setup~", f"s{sExp}"]))
            if when == H:
                for x in prog[n0:]: x.maxdl = H
        for item in cfg.plan.split():
            if "@" not in item: issue(item, H)
            else:
                it, pos = item.split("@"); st, fr = pos.split(".")
                later.setdefault(int(st), []).append((it, fr))
    for s in range(s0, s1):
        t = s % 8
        uq = [u for u in range(4) if qk_on(s, u)]
        up = order_qk(s - 1, 3) if (steady or s > 0) else []
        up = [u for u in up if pv_on(s, u)]
        qk = [(kb, u) for kb in range(4) for u in order_qk(s, kb)]
        pv = []
        fin = [u for u in up if (s - 1 - sg[u]) % 8 == 7]
        ones_order = fin + [u for u in up if u not in fin]
        for db in range(8):
            for u in up: pv.append(("pv", db, u))
        npv = len(pv)
        ins = {}
        for i, u in enumerate(ones_order):
            if u in fin: p = len(up)
            else: p = len(up) + (npv - len(up)) * i // max(1, len(ones_order))
            ins.setdefault(p, []).append(("one", 0, u))
        pv2 = []
        for i, c in enumerate(pv):
            pv2 += ins.get(i, []); pv2.append(c)
        pv = pv2
        seq = []
        if qk:
            j = 0
            lag = 1 if len(uq) <= 2 and pv else 0
            for i, c in enumerate(qk):
                seq.append(("qk",) + c)
                tgt = math.ceil(max(0, i + 1 - lag) * len(pv) / (len(qk) - lag))
                while j < tgt: seq.append(pv[j]); j += 1
        else:
            seq = pv
        nm = sum({"qk": 4, "pv": 2, "one": 1}[c[0]] for c in seq)
        beta = cfg.beta if len(uq) >= 3 else cfg.beta_small
        barpos = int(beta * nm)
        if not steady and s in cfg.betas: barpos = int(cfg.betas[s] * nm)
        vdone = set(); kdone = set(kdone0) if (s == 0 and not steady) else set(); bar_done = False
        Pw = vP + 32 * (s & 1); Pr = vP + 32 * ((s - 1) & 1)
        def vreads(db):
            if db in vdone: return
            vdone.add(db)
            for ks in range(2):
                for h in range(2):
                    d = aV + db * 8 + ks * 4 + h * 2
                    A(Op(("vr", s, db, ks, h), f"ds_read_b64_tr_b16 {at(d,2)}, v{vV+db} offset:{vslot(s-1)*16384 + ks*8192 + h*4096}", "ds",
                         [f"Vok{s-1}"], ar(d, 2) + [f"Vr{s-1}_{db}_{ks}_{h}"]))
        def kreads(kb):
            if kb in kdone: return
            kdone.add(kb); kread1(s, t, kb)
        def barrier():
            rd = []; wr = []
            pubv, retv, nxt = [s], [s - 1], [s + 1]
            if not steady:
                if cfg.deep:
                    retv = {1: [], 2: [0], 3: [1], 4: [2], 5: [3, 4], 35: []}.get(s, retv)
                    pubv = {34: [34, 35], 35: [36, 37]}.get(s, pubv)
                    nxt = {0: [], 1: [], 2: [4], 3: [5], 4: [], 32: [33, 34, 35], 33: [36], 34: [37], 35: []}.get(s, nxt)
                    if s == 32: wr.append("Kret67")
                    if s >= 36: return
                if s >= last: return
                nxt = [v for v in nxt if v < last and v not in vissued and not any(it == f"V{v}" for l in later.values() for it, _ in l)]
            for v in retv:
                if v < 0: continue
                if v == s - 1:
                    for db in range(8): vreads(db)
                rd += [f"Vr{v}_{db}_{ks}_{h}" for db in range(8) for ks in range(2) for h in range(2)]
                wr.append(f"Vret{v}")
            for v in pubv:
                assert steady or v in vissued, v
                rd += [f"Vd{v}_{i}" for i in range(4)]; wr.append(f"Vok{v}")
            if not steady and s + 1 <= 7 and s + 1 not in kpub:
                if s + 1 not in kscaled: kscale(s + 1, ((s - 1, "bar") if s >= 1 else (-1, 0))); kscaled.append(s + 1)
                kpub.add(s + 1)
                rd += [f"Kw{s+1}_{ds}" for ds in range(4)]; wr.append(f"Kok{s+1}")
            if not steady and s == 1:
                rd += [f"Kr0_{kb}_{ds}" for kb in range(4) for ds in range(4)]; wr.append("K0dead")
                rd.append("Kr1"); wr.append("Cdead")
            if not steady and s == 2: rd.append("Czero")
            if (steady or s >= cfg.split_from) and len(uq) >= cfg.split_min_u:
                ag = cfg.arr_gap if len(uq) >= 3 else cfg.arr_gap_small
                A(Op(("arr", s), f"ds_add_u32 v{vCnt}, a{aCone}", "dsw", rd, ["Carr"], cost=8, anchor=(s, "bar", -ag - cfg.ds_lat - 1)))
                A(Op(("exp", s), f"s_add_u32 s{sExp}, s{sExp}, 4", "salu", [f"s{sExp}"], [f"s{sExp}"]))
                A(Op(("pol", s), f"ds_read_b32 v{vPoll}, v{vCnt}", "ds", ["Carr~"], vr(vPoll), anchor=(s, "bar", -cfg.ds_lat - 1)))
                A(Op(("cmp", s), f"v_cmp_gt_u32 vcc, s{sExp}, v{vPoll}", "valu", vr(vPoll) + [f"s{sExp}"], ["vcc"], anchor=(s, "bar", -2)))
                A(Op(("bar", s), f"s_cbranch_vccnz L_spin{s if (not steady and (s < 8 or s >= 32)) else 8 + s % 8}", "bar", ["vcc"] + vr(vPoll) + [f"s{sExp}"], wr, anchor=(s, "bar")))
            else:
                A(Op(("bar", s), "s_barrier", "bar", rd, wr, anchor=(s, "bar")))
            if not steady and s == 1:
                A(Op(("cz", 1), f"ds_write_b32 v{vCnt}, a{aCone + 1}", "dsw", ["Cdead"], ["Czero"], cost=8))
            for v in nxt: vdma(v, None)
            for it, fr in later.get(s, []):
                if fr == "b": issue(it, (s, "bar"))
        todo_items = [(it, int(fr) / 10 ** len(fr)) for it, fr in later.get(s, []) if fr != "b"]
        mcount = 0
        for c in seq:
            if not bar_done and mcount >= barpos:
                barrier(); bar_done = True
            while todo_items and mcount >= todo_items[0][1] * nm:
                issue(todo_items.pop(0)[0], (s, "off", mcount))
            if c[0] == "qk":
                _, kb, u = c
                kreads(kb)
                if kb == 0 and (s - sg[u]) % 8 == 0 and (steady or s - sg[u] >= 8):
                    qread(("qr", s, u), u)
                    un = (u + 1) % 4; sn = s + (sg[un] - sg[u]) % 8
                    pend_q.append((("q", sn, un), not steady and sn - sg[un] >= 8 * NP))
                    if True:
                        k_, d_ = pend_q.pop(); qload(k_, dummy=d_)
                S = vS + 4 * (chain % 4); chain += 1
                for ds in range(4):
                    kf = kfrag(t, kb, ds); qf = aQ + u * 16 + ds * 4
                    A(Op(("qk", s, kb, u, ds), f"v_mfma_f32_16x16x32_bf16 {vt(S,4)}, {at(kf,4)}, {at(qf,4)}, {'0' if ds == 0 else vt(S,4)}", "mfma",
                         ar(kf, 4) + ar(qf, 4) + ([] if ds == 0 else vr(S, 4)), vr(S, 4)))
                for r in range(4):
                    A(Op(("ex", s, kb, u, r), f"v_exp_f32 v{S+r}, v{S+r}", "trans", vr(S + r), vr(S + r)))
                pd = Pw + u * 8 + kb * 2
                for r in range(2):
                    A(Op(("cv", s, kb, u, r), f"v_cvt_pk_bf16_f32 v{pd+r}, v{S+2*r}, v{S+2*r+1}", "valu", vr(S + 2 * r, 2), vr(pd + r)))
                mcount += 4
            elif c[0] == "pv":
                _, db, u = c
                vreads(db)
                first = (s - 1 - sg[u]) % 8 == 0
                o = vOa + db * 16 + u * 4
                for ks in range(2):
                    vf = aV + db * 8 + ks * 4; pf = Pr + u * 8 + ks * 4
                    z = first and ks == 0
                    A(Op(("pv", s, db, u, ks), f"v_mfma_f32_16x16x32_bf16 {vt(o,4)}, {at(vf,4)}, {vt(pf,4)}, {'0' if z else vt(o,4)}", "mfma",
                         ar(vf, 4) + vr(pf, 4) + ([] if z else vr(o, 4)), vr(o, 4)))
                mcount += 2
            else:
                _, _, u = c
                first = (s - 1 - sg[u]) % 8 == 0
                l = vL + 4 * u
                if first:
                    for r in range(2): A(Op(("lz", s, u, r), f"v_mov_b32 v{l+r}, 0", "valu", [], vr(l + r)))
                pf = Pr + u * 8
                A(Op(("on", s, u), f"v_smfmac_f32_16x16x64_bf16 {vt(l,4)}, {at(aOne,4)}, {vt(pf,8)}, v{vIdx}", "mfma", vr(pf, 8) + vr(l, 2), vr(l, 4)))
                mcount += 1
        if not bar_done: barrier()
        for it, _ in todo_items: issue(it, (s, "off", mcount))
        if not steady and s == 31:
            qread(("qr", 32, 0), 0, dummy=True)
            qload(("q", 32 + sg[1], 1), dummy=True)
        for u in sorted(fin):
            l = vL + 4 * u; R = vR + (u & 1)
            A(Op(("la", s, u), f"v_add_f32 v{l}, v{l}, v{l+1}", "valu", vr(l, 2), vr(l)))
            A(Op(("rc", s, u), f"v_rcp_f32 v{R}, v{l}", "trans", vr(l), vr(R)))
            A(Op(("ck", s, u), f"v_max3_u32 v{vChk}, v{vChk}, v{l}, v{R}", "valu", vr(vChk) + vr(l) + vr(R), vr(vChk)))
            for db in range(8):
                o = vOa + db * 16 + u * 4
                for r in range(4):
                    A(Op(("mu", s, u, db, r), f"v_mul_f32 v{o+r}, v{o+r}, v{R}", "valu", vr(o + r) + vr(R), vr(o + r)))
                if not cfg.store_x4:
                    for r in range(2):
                        A(Op(("oc", s, u, db, r), f"v_cvt_pk_bf16_f32 v{o+r}, v{o+2*r}, v{o+2*r+1}", "valu", vr(o + 2 * r, 2), vr(o + r)))
                    A(Op(("st", s, u, db), f"buffer_store_dwordx2 {vt(o,2)}, v{vO}, s[{sO_}:{sO_+3}], s{sOo} offen offset:{db*32} {cfg.st_pol}".rstrip(), "store",
                         vr(o, 2) + [f"s{sOo}"], []))
                else:
                    if db & 1:
                        e = o - 16
                        A(Op(("oc", s, u, db, 3), f"v_cvt_pk_bf16_f32 v{o+3}, v{o+2}, v{o+3}", "valu", vr(o + 2, 2), vr(o + 3)))
                        A(Op(("oc", s, u, db, 2), f"v_cvt_pk_bf16_f32 v{o+2}, v{o}, v{o+1}", "valu", vr(o, 2), vr(o + 2)))
                        A(Op(("oc", s, u, db, 0), f"v_cvt_pk_bf16_f32 v{o}, v{e}, v{e+1}", "valu", vr(e, 2), vr(o)))
                        A(Op(("oc", s, u, db, 1), f"v_cvt_pk_bf16_f32 v{o+1}, v{e+2}, v{e+3}", "valu", vr(e + 2, 2), vr(o + 1)))
                        for r in range(2):
                            if cfg.vperm: break
                            A(Op(("sw", s, u, db, r), f"v_permlane16_swap_b32 v{o+r}, v{o+2+r}", "valu", vr(o + r) + vr(o + 2 + r), vr(o + r) + vr(o + 2 + r), cost=8))
                        A(Op(("st", s, u, db), f"buffer_store_dwordx4 {vt(o,4)}, v{vO}, s[{sO_}:{sO_+3}], s{sOo} offen offset:{(db-1)*32} {cfg.st_last if (not steady and s >= cfg.st_last_from) else cfg.st_pol}".rstrip(), "store",
                             vr(o, 4) + [f"s{sOo}"], [], cost=20))
            if not steady and 32 <= s < last:
                for x in prog:
                    if x.key[:3] == ("st", s, u): x.maxdl = (s + 1, "frac", (x.key[3] + 1) / 8 * cfg.tail_dl)
            A(Op(("oinc", s, u), f"s_add_u32 s{sOo}, s{sOo}, 4096", "salu", [f"s{sOo}"], [f"s{sOo}"]))
    return prog

def link(cfg, prog):
    lastw = {}; readers = {}
    m = 0
    for x in prog:
        if x.kind == "mfma": x.m = m; m += 1
    for x in prog:
        e = {}
        def add(p, typ):
            if p is x: return
            soft = hard = 0
            if p.kind == "mfma":
                if x.kind == "mfma": return
                if typ in ("raw", "waw"): soft = cfg.mv_lat + (2 if p.key[0] == "on" else 0)
                elif x.kind in ("valu", "trans"): soft = 1
            elif x.kind == "mfma":
                hard = soft = 1
                if typ == "raw":
                    soft = cfg.ds_lat if p.kind == "ds" else (1 if p.kind == "load" else 2)
                elif p.kind == "store": soft = 2
            elif x.kind == "bar" or x.key[0] == "arr":
                hard = 1; soft = {"ds": cfg.ds_lat, "dsw": cfg.ds_lat, "dma": 2}.get(p.kind, 1)
            elif p.kind == "bar":
                soft = hard = 0
            elif p.kind == "salu":
                soft = 2; hard = 1 if x.kind != "salu" else 1
            elif x.kind == "salu":
                soft = hard = 1
            elif typ == "raw":
                if p.kind == "trans": soft = 1
                elif p.kind == "ds" and x.kind == "dma": soft = cfg.ds_lat
                elif p.kind == "valu" and x.kind in ("store", "dsw", "ds"): soft = 1
                elif p.kind == "valu" and "permlane" in x.text: soft = 2
            else:
                if p.kind in ("valu", "trans") and x.kind in ("load", "ds", "dma"): soft = 1
                if p.kind in ("store", "dsw"): soft = 1
            o = e.get(id(p))
            e[id(p)] = (p, max(soft, o[1]) if o else soft, max(hard, o[2]) if o else hard)
        for r in x.reads:
            if r in lastw: add(lastw[r], "raw"); x.prod[r] = lastw[r].key
        for r in x.writes:
            if r in lastw: add(lastw[r], "waw")
            for p in readers.get(r, []): add(p, "war")
        for r in x.reads: readers.setdefault(r, []).append(x)
        for r in x.writes: lastw[r] = x; readers[r] = []
        x.preds = list(e.values())
        for p, so, ha in x.preds: p.succs.append((x, so, ha))
    return m

def step_of(x): return x.key[1]

def schedule(cfg, prog, nm, pins=None, lo=None, hi=None):
    pins = pins or {}; lo = lo or {}; hi = hi or {}
    start = {}; barw = {}
    cur = -1
    for x in prog:
        if x.kind == "mfma":
            cur = x.m; start.setdefault(x.key[1], x.m)
        elif x.kind == "bar": barw[x.key[1]] = cur
    def W(a):
        if a[0] == -1: return -1
        if a[1] == "bar": return barw.get(a[0], nm - 1) + (a[2] if len(a) > 2 else 0)
        if a[1] == "frac": return start[a[0]] - 1 + int(a[2] * (start.get(a[0] + 1, nm) - start[a[0]]))
        if a[1] == "off": return max(0, start[a[0]] - 1 + a[2])
        return start[a[0]] - 1
    fill = [x for x in prog if x.kind != "mfma"]
    for x in prog:
        if x.kind == "mfma": x.win = x.m
    for i, x in enumerate(prog): x.idx = i
    for x in reversed(fill):
        if x.key in pins: x.dls = x.dlh = pins[x.key][0]; continue
        if x.anchor: x.dls = x.dlh = W(x.anchor); continue
        ds = dh = nm - 1
        for y, so, ha in x.succs:
            if y.dummy and y.key not in pins: continue
            if y.kind == "mfma": ds = min(ds, y.m - so); dh = min(dh, y.m - ha)
            else: ds = min(ds, y.dls - so); dh = min(dh, y.dlh - ha)
        if x.key in hi: ds = min(ds, hi[x.key]); dh = min(dh, hi[x.key])
        if x.maxdl: ds = min(ds, W(x.maxdl)); dh = min(dh, W(x.maxdl))
        x.dls, x.dlh = ds, max(dh, -1)
    wins = {w: [] for w in range(-1, nm)}
    for x in fill:
        x.win = None
        x.lo = max(W(x.earliest) if x.earliest else -1, lo.get(x.key, -1))
        if x.anchor: x.lo = x.dlh
    pinned_by_win = {}
    for x in fill:
        if x.key in pins: pinned_by_win.setdefault(pins[x.key][0], []).append(x)
    todo = [x for x in fill if x.key not in pins and not x.dummy]
    todo.sort(key=lambda x: x.idx)
    credit = [0]
    mfl = [x for x in prog if x.kind == "mfma"]
    def ready(x, w, soft):
        if w < x.lo: return False
        for p, so, ha in x.preds:
            if p.dummy and p.key not in pins: continue
            if p.win is None: return False
            lat = ha
            if soft and (p.kind not in ("load", "dma", "ds", "dsw") or x.kind == "dma"): lat = so
            if p.kind in ("store", "dsw") and soft: lat = max(lat, min(so, 1))
            if w == -1 or w == nm - 1: lat = 0
            if w < p.win + lat: return False
        return True
    for w in range(-1, nm):
        if w in pinned_by_win:
            for x in sorted(pinned_by_win[w], key=lambda x: pins[x.key][1]):
                x.win = w; wins[w].append(x)
        if pins and cfg._loop[0] <= w < cfg._loop[1]: continue
        cap = 8 if w >= 0 else 0
        if w >= 0 and mfl[w].key[0] == "on": cap = 4
        cap0 = cap
        rate = 8
        if cfg.smooth and pins and 0 <= w < nm - 1:
            acc = 0
            for x in sorted((x for x in todo[:900] if x.dls <= w + 120), key=lambda x: x.dls):
                acc += min(x.cost, 8)
                rate = max(rate, acc / (max(x.dls, w) - w + 1))
            credit[0] = credit[0] + rate - 8 if rate > 8.2 else 0
            credit[0] = min(credit[0], rate)
            extra = int(credit[0] // 4) * 4
            cap += extra
        used = 0
        cur = wins[w]
        def place(x):
            nonlocal used
            x.win = w; cur.append(x); used += min(x.cost, 8); todo.remove(x)
        while True:
            cand = [x for x in todo[:700] if ready(x, w, True) or (w >= x.dlh and ready(x, w, False))]
            if not cand: break
            z = [x for x in cand if x.kind in ("salu", "bar")]
            if z:
                place(z[0]); continue
            forced = [x for x in cand if x.dls <= w]
            if w == -1 or w == nm - 1:
                if not forced: break
                place(min(forced, key=lambda x: x.idx)); continue
            hasvalu_dep = lambda x: x.kind in ("ds", "dsw", "load", "dma", "store") and any(p.win == w and p.kind in ("valu", "trans") for p, _, _ in x.preds)
            hard_forced = forced
            if hard_forced:
                place(min(hard_forced, key=lambda x: (x.dls, x.idx))); continue
            if used >= cap: break
            nb = lambda x: 1024 if "b128" in x.text else 512
            dsb = sum(nb(x) for x in cur if x.kind == "ds")
            tight = rate > 8.2
            recent = (not tight) and any(y.kind == "ds" for k in range(1, cfg.ds_gap) for y in wins.get(w - k, []))
            vmk = ("load", "dma", "store")
            vgap = max(1, int(cfg.vm_gap * 16 / (8 + rate)))
            recent_vm = any(y.kind in vmk for k in range(0, vgap) for y in wins.get(w - k, []))
            dcap = cfg.ds_cap * (8 + cap) // 16
            cand = [x for x in cand if (x.kind != "ds" or (not recent and dsb + nb(x) <= dcap)) and not (x.kind in vmk and recent_vm)]
            if not cand: break
            cand.sort(key=lambda x: (-99999 if x.kind in ("load", "dma", "dsw", "store") else x.dls, x.idx))
            if cap - used >= 8:
                top = cand[0]
                if top.cost >= 8: place(top); continue
                small = [x for x in cand if x.cost == 4]
                big = [x for x in cand if x.cost >= 8]
                fits = lambda a, b: not (a.kind == "ds" and b.kind == "ds" and dsb + nb(a) + nb(b) > dcap)
                partner = any(fits(top, y) for y in small if y is not top) or any(y.cost == 4 and so == 0 and y.win is None and y.kind == "valu" and all(p.win is not None or p is top for p, _, _ in y.preds) for y, so, ha in top.succs)
                if partner or not big or (cap - used) % 8: place(top)
                else: place(big[0])
                continue
            small = [x for x in cand if x.cost == 4]
            if not small: break
            place(small[0])
        if w >= 0: credit[0] -= max(0, min(used, cap) - cap0)
        if w not in (-1, nm - 1):
            order = {"bar": 0, "salu": 0, "dma": 1, "load": 1, "store": 1, "dsw": 1, "ds": 1, "valu": 2, "trans": 2}
            lvl = {}
            for x in cur:
                l = order[x.kind]
                for p, _, _ in x.preds:
                    if p.win == w and p.kind != "mfma": l = max(l, lvl[id(p)])
                lvl[id(x)] = l
            cur.sort(key=lambda x: lvl[id(x)])
    assert not todo, [x.key for x in todo[:10]]
    for w, c in wins.items():
        for i, x in enumerate(c): x.pos = i
    return wins, start

def norm(key, d):
    return (key[0], key[1] + d) + tuple(key[2:])

class Ins:
    def __init__(s, text, op=None, kind=None):
        s.text, s.op, s.kind = text, op, kind or (op.kind if op else "salu")
        s.vm = None; s.lg = None

def generate(cfg):
    last = 32 + max(cfg.sigma)
    cfg.q_ahead = getattr(cfg, "q_ahead", 2)
    cfg.code_pf_n = getattr(cfg, "code_pf_n", 2)
    sp = build(cfg, 0, 56, True); nms = link(cfg, sp)
    swins, sstart = schedule(cfg, sp, nms)
    per = sstart[8] - sstart[0]
    ok = None
    for b in (16, 24, 32):
        same = all([x.text for x in swins[sstart[b] + i]] == [x.text for x in swins[sstart[b + 8] + i]] and
                   [norm(x.key, 8) for x in swins[sstart[b] + i]] == [x.key for x in swins[sstart[b + 8] + i]] for i in range(per))
        if same: ok = b; break
    assert ok is not None, "steady state not periodic"
    rp = build(cfg, 0, last + 1, False); nm = link(cfg, rp)
    rstart = {}
    for x in rp:
        if x.kind == "mfma": rstart.setdefault(x.key[1], x.m)
    L0, L1 = rstart[8], rstart[32]
    assert L1 - L0 == 3 * per
    cfg._loop = (L0, L1)
    pins = {}
    for it in range(3):
        for i in range(per):
            for x in swins[sstart[ok] + i]:
                pins[norm(x.key, 8 + 8 * it - ok)] = (L0 + it * per + i, x.pos)
    keys = {x.key: x for x in rp}
    assert len(keys) == len(rp)
    missing = [k for k in pins if k not in keys]
    assert not missing, missing[:10]
    lo = {}; hi = {}
    mid = (keys[("qk", 20, 0, 0, 0)])
    midx = rp.index(mid)
    for i, x in enumerate(rp):
        if x.kind == "mfma" or x.key in pins: continue
        if i < midx: hi[x.key] = L0 - 1
        else: lo[x.key] = L1
    wins, start = schedule(cfg, rp, nm, pins, lo, hi)
    mf = [x for x in rp if x.kind == "mfma"]
    def stat(w):
        return L0 + (w - L0) % per if L0 <= w < L1 else w
    free = {}
    pre = {}
    for w in range(-1, nm):
        if stat(w) == w:
            free[w] = []
            if w not in (-1, nm - 1):
                for x in wins[w]:
                    if x.kind == "bar": free[w].append(Ins(x.text, x))
    def body(w):
        if w in (-1, nm - 1): return wins[w]
        return [x for x in wins[w] if x.kind not in ("salu", "bar")]
    def walk(fix):
        q = {"vm": [], "lgkm": []}
        pend = {}
        hist = {}
        changed = False
        def dowait(ins):
            for c, n in (("vm", ins.vm), ("lgkm", ins.lg)):
                if n is None: continue
                while len(q[c]) > n:
                    d = q[c].pop(0)
                    for r in d.writes:
                        if pend.get(r) is d: del pend[r]
        def need(x):
            n = {}
            for r in x.reads + x.writes:
                p = pend.get(r)
                if p is not None and not (r in x.writes and r not in x.reads and p.cnt == x.cnt):
                    n[p.cnt] = p if (p.cnt not in n or q[p.cnt].index(p) > q[p.cnt].index(n[p.cnt])) else n[p.cnt]
            return n
        def issue(x):
            if x.cnt:
                q[x.cnt].append(x)
                for r in x.writes: pend[r] = x
        def setw(ins, c, n):
            n = min(n, 62 if c == "vm" else 14)
            if c == "vm": ins.vm = n if ins.vm is None else min(ins.vm, n)
            else: ins.lg = n if ins.lg is None else min(ins.lg, n)
        def handle(x, w, pos, cands):
            nonlocal changed
            n = need(x)
            if not n: return
            assert fix, ("unwaited", x.key, {c: p.key for c, p in n.items()})
            changed = True
            for c, p in n.items():
                done = False
                for cw in cands:
                    if cw < 0 or cw == nm - 1 or cw not in hist: continue
                    snap = hist[cw][c]
                    if p not in snap: continue
                    fl = free[stat(cw)]
                    wi = [i for i in fl if i.kind == "wait"]
                    if not wi and fl and cw != cands[-1]: continue
                    if not wi:
                        wi = [Ins("", None, "wait")]; fl.insert(0, wi[0])
                    setw(wi[0], c, len(snap) - 1 - snap.index(p)); done = True; break
                if not done:
                    ins = pre.setdefault((stat(w), pos), Ins("", None, "wait"))
                    setw(ins, c, len(q[c]) - 1 - q[c].index(p))
                while p in q[c]:
                    d = q[c].pop(0)
                    for r in d.writes:
                        if pend.get(r) is d: del pend[r]
        for w in range(-1, nm):
            if w >= 0:
                if (stat(w), "m") in pre: dowait(pre[(stat(w), "m")])
                handle(mf[w], w, "m", [w - 1, w - 2])
            hist[w] = {c: list(v) for c, v in q.items()}
            hist.pop(w - 4, None)
            for ins in list(free[stat(w)]):
                if ins.kind == "wait": dowait(ins)
                elif ins.kind == "bar":
                    x = [y for y in wins[w] if y.kind == "bar"][0]
                    handle(x, w, "b", [w - 1, w - 2, w])
            for pos, x in enumerate(body(w)):
                if (stat(w), pos) in pre: dowait(pre[(stat(w), pos)])
                handle(x, w, pos, [w, w - 1])
                issue(x)
        return changed
    for _ in range(10):
        if not walk(True): break
    walk(False)
    for w in range(0, nm - 1):
        if stat(w) != w: continue
        for x in wins[w]:
            if x.kind != "salu": continue
            hiw = min([y.win - (1 if "m0" in x.writes or y.kind == "salu" else 0) for y, _, _ in x.succs if y.win is not None] + [w + 40, nm - 2])
            if L0 <= w < L0 + per: hiw = min(hiw, L0 + per - 3)
            elif w < L0: hiw = min(hiw, L0 - 1)
            hiw = max(hiw, w)
            c = [k for k in range(w, hiw + 1) if not free[k]]
            c2 = [k for k in c if body(k) and body(k)[0].kind in ("ds", "dma", "load", "store", "dsw")]
            k = c2[0] if c2 else (c[0] if c else w)
            free[k].append(Ins(x.text, x)); x.fw = k
    k = [k for k in range(L0 + per - 2, L0 + per) if not free[k]]
    k = k[0] if k else L0 + per - 1
    assert not any(i.kind == "salu" for kk in range(k, L0 + per) for i in free[kk])
    free[k].append(Ins(f"s_sub_u32 s{sCnt}, s{sCnt}, 1"))
    if cfg.nop_ds:
        for w in range(0, nm - 1):
            if stat(w) == w and not free[w] and body(w) and body(w)[0].kind in ("ds", "dma", "load", "store", "dsw"):
                free[w].append(Ins("s_nop 0", None, "nop"))
    def wtext(i):
        t = "s_waitcnt"
        if i.vm is not None: t += f" vmcnt({i.vm})"
        if i.lg is not None: t += f" lgkmcnt({i.lg})"
        return t
    code = {}
    for w in range(-1, nm):
        if stat(w) != w: continue
        l = []
        if w >= 0:
            if (w, "m") in pre: l.append(pre[(w, "m")])
            l.append(Ins(mf[w].text, mf[w]))
        l += free[w]
        for pos, x in enumerate(body(w)):
            if (w, pos) in pre: l.append(pre[(w, pos)])
            l.append(Ins(x.text, x))
        for i in l:
            if i.kind == "wait": i.text = wtext(i)
        code[w] = l
    def wcost(l, head=False):
        t = 0; base = 0; lastvalu = -99; blk = 8
        for i in l:
            if i.kind == "mfma": base = t; t += 4; blk = 12 if "smfmac" in i.text else 8; continue
            if i.kind in ("salu", "wait", "bar", "nop"): t += 4; continue
            if i.kind == "nopx": t += 4 * (int(i.text.split()[1]) + 1); continue
            if not head: t = max(t, base + blk)
            if i.kind in ("valu", "trans"): t += i.op.cost; lastvalu = t
            else:
                t = max(t, lastvalu + 8) + i.op.cost
        return t if head else max(t, base + 16)
    def hazards(fix):
        seq = []
        changed = False
        for w in range(-1, nm):
            l = code[stat(w)]
            j = 0
            while j < len(l):
                i = l[j]; x = i.op
                needn = 0
                if x is not None and x.kind not in ("salu", "bar"):
                    dist = 0
                    for p, st, pwin in reversed(seq):
                        y = p.op
                        if y is not None:
                            req = 0
                            raw = set(y.writes) & set(x.reads); waw = set(y.writes) & set(x.writes); war = set(y.reads) & set(x.writes)
                            if y.kind == "mfma":
                                if x.kind == "mfma":
                                    if set(y.writes) & set(x.reads[:8]): req = 8
                                elif raw or waw: req = 12 if y.key[0] == "on" else 8
                                elif war and x.kind in ("valu", "trans") and set(y.writes) & set(x.writes): req = 3
                            elif y.kind in ("valu", "trans"):
                                if raw and x.kind == "mfma": req = 2
                                if raw and "permlane" in x.text: req = 2
                                if raw and y.kind == "trans" and x.kind != "trans": req = max(req, 1)
                            elif y.kind in ("store", "dsw") and war and y.cost == 20: req = 2
                            elif y.kind == "salu" and "m0" in y.writes and x.kind == "dma": req = 1
                            if req - dist > needn: needn = req - dist; pw = pwin
                        dist += st
                        if dist >= 12: break
                if needn > 0:
                    assert fix, ("hazard", x.key)
                    for k in range(w, pw - 1, -1):
                        if k < 0: break
                        lk = code[stat(k)]
                        mi = [n for n, z in enumerate(lk) if z.kind == "mfma"][0]
                        places = []
                        if k > pw and (k < w or j > mi): places.append(mi + 1)
                        if k < w: places.append(len(lk))
                        ok_ = False
                        for pl in places:
                            tr = lk[:pl] + [Ins("s_nop 0", None, "nopx")] + lk[pl:]
                            if wcost(tr) == wcost(lk): lk[:] = tr; ok_ = True; break
                        if ok_: return True
                    l.insert(j, Ins(f"s_nop {needn-1}", None, "nopx")); changed = True
                    continue
                st = int(i.text.split()[1]) + 1 if i.text.startswith("s_nop") else 1
                seq.append((i, st, w)); seq = seq[-14:]
                j += 1
        return changed
    while hazards(True): pass
    lastw = {}; seen = set()
    for w in range(-1, nm):
        it = (w - L0) // per if L0 <= w < L1 else 0
        for i in code[stat(w)]:
            if i.op is None: continue
            x = keys[norm(i.op.key, 8 * it)]
            assert x.text == i.text, (x.text, i.text)
            assert x.key not in seen; seen.add(x.key)
            if not x.dummy:
                for r in x.reads:
                    assert lastw.get(r) == x.prod.get(r), ("dataflow", x.key, r, lastw.get(r), x.prod.get(r))
            for r in x.writes: lastw[r] = x.key
    assert all(x.key in seen or x.dummy for x in rp), [x.key for x in rp if x.key not in seen and not x.dummy][:5]
    est = {}
    for s in range(0, last + 1):
        e = rstart.get(s + 1, nm)
        est[s] = (sum(wcost(code[stat(w)]) for w in range(rstart[s], e)), (e - rstart[s]) * 16)
    cfg.est = est; cfg.est_head = wcost(code[-1], True)
    out = []
    cfg.spins = []
    E = out.append
    stamp_at = getattr(cfg, "stamp_steps", [])
    inv = {v: k for k, v in rstart.items()}
    for w in range(-1, nm):
        if stat(w) != w: continue
        if w == L0:
            if cfg.stamps and 7.9 in stamp_at:
                j = stamp_at.index(7.9); E(f"    s_memrealtime s[{64+2*j}:{65+2*j}]")
            E("L_loop:")
        if w in inv:
            E(f"; ---- step {inv[w]} ----")
            if cfg.stamps and inv[w] in stamp_at:
                j = stamp_at.index(inv[w]); E(f"    s_memrealtime s[{64+2*j}:{65+2*j}]")
        for i in code[w]:
            if i.op is not None and i.op.key[0] in cfg.kill and (L0 if cfg.kill_from is None else cfg.kill_from) <= w: E("    s_nop 0")
            else: E("    " + i.text)
            if cfg.pad and i.kind == "mfma" and L0 <= w < L1 and w % cfg.pad == 0: E("    s_nop 4")
            if i.text.startswith("s_cbranch_vccnz L_spin"):
                n = i.text.split("L_spin")[1]; E(f"L_back{n}:"); cfg.spins.append(n)
        if w == L0 + per - 1: E("    s_cbranch_scc0 L_loop")
    return "\n".join(out)

def fbits(x): return struct.unpack("<I", struct.pack("<f", x))[0]

def head(cfg):
    T = vS
    h = f"""    s_load_dwordx4 s[4:7], s[0:1], 0          ; q, k
    s_load_dwordx4 s[8:11], s[0:1], 16        ; v, out
"""
    if cfg.stamps: h += f"    s_load_dwordx2 s[56:57], s[0:1], {32 if cfg.stamps in ('dbg', 'skew') else 40}\n    s_memrealtime s[60:61]\n"
    h += f"""    v_lshrrev_b32 v{T}, 6, v0
    v_and_b32 v{T+4}, 63, v0                  ; lane
    v_readfirstlane_b32 s{sWave}, v{T}
    s_cmp_ge_u32 s2, 256
    s_cbranch_scc1 L_end
    v_and_b32 v{T+1}, 15, v0                  ; l & 15
    v_bfe_u32 v{T+2}, v0, 4, 2                ; l >> 4
    v_lshlrev_b32 v{vKl}, 4, v{T+4}           ; lane*16
    s_and_b32 s{sTmp}, s2, 7
    s_lshr_b32 s{sTmp+1}, s2, 3
    s_lshl_b32 s{sTmp}, s{sTmp}, 5
    s_add_u32 s{sTmp}, s{sTmp}, s{sTmp+1}
    s_lshl2_add_u32 s{sTmp+2}, s{sTmp}, s{sWave}
    s_lshl_b32 s{sTmp+2}, s{sTmp+2}, 16       ; q/o byte offset of this wave
    s_lshr_b32 s{sTmp}, s{sTmp}, 2
    s_lshl_b32 s{sTmp}, s{sTmp}, 17           ; k/v byte offset of the group
    s_lshl_b32 s{sMq}, s{sWave}, 12           ; wave*4096
    s_add_u32 s{sTmp+3}, s{sTmp}, s{sMq}
    s_sub_u32 s{sK_+2}, 0x20000, s{sMq}
    s_mov_b32 s{sK_+3}, 0x20000
    s_mov_b32 s{sQ_+3}, s{sK_+3}
    s_mov_b32 s{sQ_+2}, 0x10000
"""
    if cfg.rot:
        h += f"""    s_bfe_u32 s{sTmp+4}, s2, 0x20003
    s_mul_i32 s{sTile}, s{sTmp+4}, {cfg.rot*16384}
    s_and_b32 s{sTile}, s{sTile}, 0x1ffff
    s_add_u32 s{sTile+1}, s{sTile}, 16384
    s_and_b32 s{sTile+1}, s{sTile+1}, 0x1ffff
"""
    else: h += f"    s_mov_b32 s{sTile}, 0\n    s_movk_i32 s{sTile+1}, 0x4000\n"
    h += f"""    s_mov_b32 s{sQo}, 0
    v_lshlrev_b32 v{T+3}, 8, v{T+2}           ; (l>>4)*256
    v_xor_b32 v{T+5}, v{T+1}, v{T+2}          ; (l&15) ^ (l>>4)
    v_lshl_add_u32 v{vQd}, v{T+5}, 4, v{T+3}
    s_waitcnt lgkmcnt(0)
    s_add_u32 s{sK_}, s6, s{sTmp+3}
    s_addc_u32 s{sK_+1}, s7, 0
    s_add_u32 s{sQ_}, s4, s{sTmp+2}
    s_addc_u32 s{sQ_+1}, s5, 0
"""
    if cfg.stamps: h += "    s_memrealtime s[62:63]\n"
    return h

def head2(cfg):
    c = math.log2(math.e) / math.sqrt(128.0)
    T = vS
    h = f"""    ; code prefetch into L2: 16 lines per wave, 8 KiB per workgroup
    s_getpc_b64 s[{sC_}:{sC_+1}]
L_pc:
    s_mov_b32 s{sC_+2}, L_slow - L_pc
    s_mov_b32 s{sC_+3}, 0x20000
    s_bfe_u32 s{sTmp+1}, s2, 0x30003
    s_lshl2_add_u32 s{sTmp+1}, s{sTmp+1}, s{sWave}
    s_lshl_b32 s{sTmp+1}, s{sTmp+1}, 11
    v_lshlrev_b32 v{vJ}, 5, v{T+4}
    v_add_u32 v{vJ}, s{sTmp+1}, v{vJ}
@CPF
    s_add_u32 s{sV_}, s8, s{sTmp}
    s_addc_u32 s{sV_+1}, s9, 0
    s_add_u32 s{sO_}, s10, s{sTmp+2}
    s_addc_u32 s{sO_+1}, s11, 0
    s_mov_b32 s{sV_+2}, 0x20000
    s_mov_b32 s{sV_+3}, 0x20000
    s_mov_b32 s{sO_+2}, 0x10000
    s_mov_b32 s{sO_+3}, 0x20000
"""
    for t in range(2, 8):
        if cfg.rot: h += f"    s_add_u32 s{sTile+t}, s{sTile+t-1}, 16384\n    s_and_b32 s{sTile+t}, s{sTile+t}, 0x1ffff\n"
        else: h += f"    s_mov_b32 s{sTile+t}, {t*16384}\n"
    h += f"""    s_add_u32 s{sM0}, s{sMq}, 0x18000
    s_add_u32 s{sM0+1}, s{sMq}, 0x1c000
    s_add_u32 s{sM0+2}, s{sMq}, 0x20000
    s_add_u32 s{sM0+3}, s{sMq}, 0x24000
    s_mov_b32 s{sOo}, 0
    s_mov_b32 s{sExp}, 0
    s_mov_b32 s{sCnt}, 2
    s_mov_b32 s{sScale}, {fbits(c):#x}
    s_mov_b32 s{sMask}, 0xffff0000
    ; K fragment read addresses: g*256 + (key ^ g ^ 4*(ds&1))*16
    v_mov_b32 v{vKr}, v{vQd}
    v_xor_b32 v{vKr+1}, 64, v{vQd}
    v_add_u32 v{vKr+2}, 0x10000, v{vKr}
    v_add_u32 v{vKr+3}, 0x10000, v{vKr+1}
    v_and_b32 v{T+6}, 7, v{T+5}
    v_lshlrev_b32 v{T+7}, 8, v{T+1}           ; (l&15)*256
    v_lshl_add_u32 v{T+6}, v{T+6}, 4, v{T+7}
    v_add_u32 v{vKw}, s{sMq}, v{T+6}
    v_xor_b32 v{vKw+1}, 64, v{vKw}
    v_and_b32 v{T+6}, 3, v{T+5}
    v_lshl_add_u32 v{T+6}, v{T+6}, 4, v{T+7}
    v_add_u32 v{vQr}, s{sMq}, v{T+6}
"""
    if cfg.vperm:
        h += f"""    ; V DMA source offsets: row r=l>>4, 64-byte unit (c16>>2)^(key&3)
    v_lshlrev_b32 v{T+6}, 2, v{T+2}
    v_xor_b32 v{T+6}, v{T+6}, v{T+1}
    v_lshl_add_u32 v{T+6}, v{T+6}, 4, v{T+3}
    v_add_u32 v{vD0}, s{sMq}, v{T+6}
    v_mov_b32 v{vD1}, v{vD0}
    ; V transposed-read addresses: lane = 16g+4r+c reads 8 bytes of chunk c of unit (db>>1)^r, half db&1
    v_lshrrev_b32 v{T+8}, 2, v{T+4}           ; 4g+r
    v_lshlrev_b32 v{T+6}, 4, v{T+1}           ; r*64 + c*16
    v_lshl_add_u32 v{T+6}, v{T+8}, 8, v{T+6}
    v_and_b32 v{T+9}, 3, v{T+4}
    v_add_u32 v{vV}, 0x18000, v{T+6}
"""
        for db in range(1, 8): h += f"    v_xor_b32 v{vV+db}, {(db >> 1) * 64 + (db & 1) * 8}, v{vV}\n"
        h += f"    v_lshl_add_u32 v{vO}, v{T+2}, 4, v{T+7}\n"
    else:
        h += f"""    ; V DMA source offsets: row r=l>>4, unit (c16>>1)^(key&7)
    v_lshrrev_b32 v{T+6}, 1, v{T+1}
    v_xor_b32 v{T+6}, v{T+6}, v{T+2}
    v_lshl_add_u32 v{T+6}, v{T+6}, 5, v{T+3}
    v_and_b32 v{T+8}, 1, v{T+1}
    v_lshl_add_u32 v{T+6}, v{T+8}, 4, v{T+6}
    v_add_u32 v{vD0}, s{sMq}, v{T+6}
    v_xor_b32 v{vD1}, 0x80, v{vD0}
    ; V transposed-read addresses: lane = 16g+4r+c
    v_lshrrev_b32 v{T+8}, 2, v{T+4}           ; 4g+r
    v_and_b32 v{T+6}, 7, v{T+8}
    v_lshlrev_b32 v{T+6}, 5, v{T+6}
    v_lshl_add_u32 v{T+6}, v{T+8}, 8, v{T+6}
    v_and_b32 v{T+9}, 3, v{T+4}
    v_lshl_add_u32 v{T+6}, v{T+9}, 3, v{T+6}
    v_add_u32 v{vV}, 0x18000, v{T+6}
"""
        for db in range(1, 8): h += f"    v_xor_b32 v{vV+db}, {db*32}, v{vV}\n"
        if cfg.store_x4:
            h += f"""    v_and_b32 v{T+6}, 1, v{T+2}
    v_lshl_add_u32 v{vO}, v{T+6}, 5, v{T+7}
    v_lshrrev_b32 v{T+6}, 1, v{T+2}
    v_lshl_add_u32 v{vO}, v{T+6}, 4, v{vO}
"""
        else:
            h += f"    v_lshl_add_u32 v{vO}, v{T+2}, 3, v{T+7}\n"
    h += f"""    ; row-sum operand: rows 4i and 4i+1 are ones; they pick elements 0,1 and 2,3 of every group of four keys
    v_cmp_eq_u32 vcc, 1, v{T+9}
    v_mov_b32 v{T+6}, 0x44444444
    v_mov_b32 v{T+8}, 0xeeeeeeee
    v_cndmask_b32 v{vIdx}, v{T+6}, v{T+8}, vcc
    v_cmp_gt_u32 vcc, {0 if cfg.ones_rows == 0 else 2}, v{T+9 if cfg.ones_rows == 8 else T+1}
    v_mov_b32 v{T+6}, 0x3f803f80
    v_mov_b32 v{vChk}, {'-1' if cfg.force_slow else '0'}
    v_cndmask_b32 v{T+6}, 0, v{T+6}, vcc
    v_lshlrev_b32 v{vCnt}, 2, v{T+4}
    v_add_u32 v{vCnt}, 0x4000, v{vCnt}
    v_accvgpr_write_b32 a{aOne}, v{T+6}
    v_accvgpr_write_b32 a{aOne+1}, v{T+6}
    v_accvgpr_write_b32 a{aOne+2}, v{T+6}
    v_accvgpr_write_b32 a{aOne+3}, v{T+6}
    v_accvgpr_write_b32 a{aCone}, 1
    v_accvgpr_write_b32 a{aCone+1}, 0
"""
    return h

def tail(cfg):
    lim = (127 + cfg.limit_exp) << 23
    t = ""
    if cfg.stamps == "skew":
        t += """    s_mov_b32 s58, 256
    s_mov_b32 s59, 0x20000
    s_not_b32 s64, s60
    v_mov_b32 v64, s64
    v_mov_b32 v60, 0
    s_mov_b64 exec, 1
    s_cmp_lg_u32 s3, 0
    s_cbranch_scc1 L_sk1
    buffer_atomic_umax v64, v60, s[56:59], 0 offen
    s_waitcnt vmcnt(0)
L_sk1:
    s_memrealtime s[72:73]
    s_waitcnt lgkmcnt(0)
    s_sub_u32 s72, s72, s60
    s_cmp_lt_u32 s72, 8000
    s_cbranch_scc1 L_sk1
    buffer_load_dword v64, v60, s[56:59], 0 offen sc0 sc1
    s_waitcnt vmcnt(0)
    v_readfirstlane_b32 s64, v64
    s_nop 4
    s_not_b32 s64, s64
L_sk2:
    s_memrealtime s[72:73]
    s_waitcnt lgkmcnt(0)
    s_sub_u32 s72, s72, s64
    s_cmp_lt_u32 s72, 10000
    s_cbranch_scc1 L_sk2
    s_mov_b64 exec, -1
"""
    elif cfg.stamps == "spin":
        if not getattr(cfg, "stamp_steps", []): t += "    s_waitcnt vmcnt(0)\n    s_memrealtime s[64:65]\n"
        t += f"""    s_waitcnt lgkmcnt(0)
    {"s_sub_u32 s64, s66, s64" if len(getattr(cfg, "stamp_steps", [])) == 2 else "s_sub_u32 s64, s64, s60"}
    s_mul_i32 s64, s64, {getattr(cfg, "spin_mul", 0)}
    s_add_u32 s64, s64, 10000
L_spin:
    s_memrealtime s[72:73]
    s_waitcnt lgkmcnt(0)
    s_sub_u32 s72, s72, s60
    s_cmp_lt_u32 s72, s64
    s_cbranch_scc1 L_spin
"""
    elif cfg.stamps:
        e0 = 88 if cfg.stamps == "c16" else 72
        t += f"""    s_memrealtime s[{e0}:{e0+1}]
    s_waitcnt vmcnt(0)
    s_memrealtime s[{e0+2}:{e0+3}]
    s_mov_b32 s58, 0x10000000
    s_mov_b32 s59, 0x20000
    s_lshl_b32 s46, s2, 2
    s_add_u32 s46, s46, s3
    s_lshl_b32 s46, s46, 6
    s_waitcnt lgkmcnt(0)
"""
        for i in range(16): t += f"    v_mov_b32 v{64+i}, s{60+(2*i if cfg.stamps == 'c16' else i)}\n"
        t += "    v_mov_b32 v60, 0\n    s_mov_b64 exec, 1\n"
        if cfg.stamps == "dbg":
            t += "    s_mov_b32 s58, 256\n"
            for i in range(8):
                t += f"    v_not_b32 v{65+2*i}, v{64+2*i}\n"
            for i in range(16): t += f"    buffer_atomic_umax v{64+i}, v60, s[56:59], 0 offen offset:{4*i}\n"
        else:
          for i in range(4): t += f"    buffer_store_dwordx4 v[{64+4*i}:{67+4*i}], v60, s[56:59], s46 offen offset:{16*i}\n"
        t += "    s_mov_b64 exec, -1\n"
    t += f"""    v_cmp_lt_u32 vcc, {lim:#x}, v{vChk}
    s_nop 4
    s_cbranch_vccnz L_slow
L_end:
    s_endpgm
"""
    for n in cfg.spins:
        t += f"""L_spin{n}:
    ds_read_b32 v{vPoll}, v{vCnt}
    s_waitcnt lgkmcnt(0)
    v_cmp_gt_u32 vcc, s{sExp}, v{vPoll}
    s_nop 4
    s_cbranch_vccnz L_spin{n}
    s_branch L_back{n}
"""
    S0, S1, M, T = 16, 20, 24, 25
    vQ = vQd; vKb = vKr + 2
    q = lambda ds: at(aQ + 4 * ds, 4)
    k = lambda j, ds: at(aK + j * 16 + 4 * ds, 4)
    t += f"""; Fallback: a row sum left [2^-{cfg.limit_exp}, 2^{cfg.limit_exp}] (or is not finite), so exp without an offset was not safe.
L_slow:
    s_waitcnt vmcnt(0) lgkmcnt(0)
    s_barrier                                 ; the other waves are done with LDS (ended or here)
    s_mov_b32 s{sQo}, 0
    s_lshl_b32 s{sTmp}, s{sWave}, 12
    s_lshl_b32 s{sTmp+1}, s{sWave}, 13
    s_add_u32 s{sTmp+2}, s{sTmp+1}, 0x20000
    s_add_u32 s{sTmp+3}, s{sTmp+2}, 4096
    v_subrev_u32 v{vD0}, s{sTmp}, v{vD0}
    v_subrev_u32 v{vD1}, s{sTmp}, v{vD1}
"""
    for db in range(8): t += f"    v_add_u32 v{vV+db}, s{sTmp+1}, v{vV+db}\n"
    t += f"""    s_sub_u32 s{sK_}, s{sK_}, s{sTmp}
    s_subb_u32 s{sK_+1}, s{sK_+1}, 0
    s_mov_b32 s{sK_+2}, 0x20000
    s_add_u32 s{sTmp+4}, s{sTmp}, 0x10000
    v_subrev_u32 v{vKw}, s{sTmp+4}, v{vKw}
    v_subrev_u32 v{vKw+1}, s{sTmp+4}, v{vKw+1}
    s_mov_b32 s{sCnt}, 0
L_skld:
"""
    for i in range(4): t += f"    buffer_load_dwordx4 {vt(vOa+4*i,4)}, v{vKl}, s[{sK_}:{sK_+3}], s{sCnt} offen offset:{i*1024}\n"
    t += "    s_waitcnt vmcnt(0)\n"
    for x in range(vOa, vOa + 16):
        t += f"""    v_lshlrev_b32 v{T}, 16, v{x}
    v_and_b32 v{x}, s{sMask}, v{x}
    v_mul_f32 v{T}, s{sScale}, v{T}
    v_mul_f32 v{x}, s{sScale}, v{x}
    v_cvt_pk_bf16_f32 v{x}, v{T}, v{x}
"""
    for i in range(4): t += f"    ds_write_b128 v{vKw+(i&1)}, {vt(vOa+4*i,4)} offset:{(i>>1)*128}\n"
    t += f"""    s_waitcnt lgkmcnt(0)
    v_add_u32 v{vKw}, 4096, v{vKw}
    v_add_u32 v{vKw+1}, 4096, v{vKw+1}
    s_add_u32 s{sCnt}, s{sCnt}, 4096
    s_cmp_lt_u32 s{sCnt}, 0x20000
    s_cbranch_scc1 L_skld
    v_bfe_u32 v{T}, v{vKl}, 4, 4
    v_lshrrev_b32 v{vQ}, 8, v{vKl}
    v_lshlrev_b32 v{vQ}, 4, v{vQ}
    v_lshl_add_u32 v{vQ}, v{T}, 8, v{vQ}
"""
    t += "L_sblk:\n"
    for ds in range(4): t += f"    buffer_load_dwordx4 {q(ds)}, v{vQ}, s[{sQ_}:{sQ_+3}], s{sQo} offen offset:{ds*64}\n"
    t += f"""    v_mov_b32 v{M}, 0xff800000
    v_mov_b32 v{vKb}, v{vKr}
    v_mov_b32 v{vKb+1}, v{vKr+1}
    s_mov_b32 s{sCnt}, 32
    s_waitcnt vmcnt(0)
L_smax:
"""
    for ds in range(4): t += f"    ds_read_b128 {k(0,ds)}, v{vKb+(ds&1)} offset:{ds*1024}\n"
    t += "    s_waitcnt lgkmcnt(0)\n"
    for ds in range(4): t += f"    v_mfma_f32_16x16x32_bf16 {vt(S0,4)}, {k(0,ds)}, {q(ds)}, {'0' if ds == 0 else vt(S0,4)}\n"
    t += f"""    s_nop 7
    v_max3_f32 v{M}, v{M}, v{S0}, v{S0+1}
    v_max3_f32 v{M}, v{M}, v{S0+2}, v{S0+3}
    v_add_u32 v{vKb}, 4096, v{vKb}
    v_add_u32 v{vKb+1}, 4096, v{vKb+1}
    s_sub_u32 s{sCnt}, s{sCnt}, 1
    s_cmp_lg_u32 s{sCnt}, 0
    s_cbranch_scc1 L_smax
    v_mov_b32 v{T}, v{M}
    s_nop 1
    v_permlane16_swap_b32 v{M}, v{T}
    s_nop 1
    v_max_f32 v{M}, v{M}, v{T}
    v_mov_b32 v{T}, v{M}
    s_nop 1
    v_permlane32_swap_b32 v{M}, v{T}
    s_nop 1
    v_max_f32 v{M}, v{M}, v{T}
"""
    for r in range(4): t += f"    v_mov_b32 v{vL+r}, 0\n"
    for r in range(32): t += f"    v_mov_b32 v{vOa+r}, 0\n"
    t += f"""    v_mov_b32 v{vKb}, v{vKr}
    v_mov_b32 v{vKb+1}, v{vKr+1}
    s_mov_b32 s{sCnt}, 0
L_skey:
    s_mov_b32 m0, s{sTmp+2}
    s_mov_b32 s{sTmp+5}, s{sCnt}
    s_add_u32 s{sTmp+4}, s{sTmp+5}, 4096
"""
    for i in range(4): t += f"    buffer_load_dwordx4 v{vD0+(i&1)}, s[{sV_}:{sV_+3}], s{sTmp+5} offen offset:{i*1024} lds\n"
    t += f"    s_mov_b32 m0, s{sTmp+3}\n    s_nop 0\n"
    for i in range(4): t += f"    buffer_load_dwordx4 v{vD0+(i&1)}, s[{sV_}:{sV_+3}], s{sTmp+4} offen offset:{i*1024} lds\n"
    for j in range(2):
        for ds in range(4): t += f"    ds_read_b128 {k(j,ds)}, v{vKb+(ds&1)} offset:{j*4096+ds*1024}\n"
    t += "    s_waitcnt vmcnt(0) lgkmcnt(0)\n"
    for db in range(8):
        for h in range(2): t += f"    ds_read_b64_tr_b16 {at(aV+db*4+2*h,2)}, v{vV+db} offset:{32768+h*4096}\n"
    for j, S in enumerate((S0, S1)):
        for ds in range(4): t += f"    v_mfma_f32_16x16x32_bf16 {vt(S,4)}, {k(j,ds)}, {q(ds)}, {'0' if ds == 0 else vt(S,4)}\n"
    t += "    s_nop 7\n"
    for r in range(8): t += f"    v_sub_f32 v{S0+r}, v{S0+r}, v{M}\n"
    for r in range(8): t += f"    v_exp_f32 v{S0+r}, v{S0+r}\n"
    t += "    s_nop 0\n"
    for r in range(4): t += f"    v_cvt_pk_bf16_f32 v{vP+r}, v{S0+2*r}, v{S0+2*r+1}\n"
    t += f"    v_add_u32 v{vKb}, 8192, v{vKb}\n    v_add_u32 v{vKb+1}, 8192, v{vKb+1}\n    s_waitcnt lgkmcnt(0)\n    s_nop 0\n"
    t += f"    v_mfma_f32_16x16x32_bf16 {vt(vL,4)}, {at(aOne,4)}, {vt(vP,4)}, {vt(vL,4)}\n"
    for db in range(8): t += f"    v_mfma_f32_16x16x32_bf16 {vt(vOa+4*db,4)}, {at(aV+db*4,4)}, {vt(vP,4)}, {vt(vOa+4*db,4)}\n"
    t += f"""    s_add_u32 s{sCnt}, s{sCnt}, 8192
    s_cmp_lt_u32 s{sCnt}, 0x20000
    s_cbranch_scc1 L_skey
    s_nop 7
    v_rcp_f32 v{vR}, v{vL}
    s_nop 0
"""
    for r in range(32): t += f"    v_mul_f32 v{vOa+r}, v{vOa+r}, v{vR}\n"
    for db in range(8):
        o = vOa + 4 * db; d = vP + 2 * db
        t += f"    v_cvt_pk_bf16_f32 v{d}, v{o}, v{o+1}\n    v_cvt_pk_bf16_f32 v{d+1}, v{o+2}, v{o+3}\n"
    if cfg.store_x4:
        t += "    s_nop 1\n"
        for db in range(0, 8, 2):
            d = vP + 2 * db
            if not cfg.vperm: t += f"    v_permlane16_swap_b32 v{d}, v{d+2}\n    v_permlane16_swap_b32 v{d+1}, v{d+3}\n"
            t += f"    buffer_store_dwordx4 {vt(d,4)}, v{vO}, s[{sO_}:{sO_+3}], s{sQo} offen offset:{db*32}\n"
    else:
        for db in range(8): t += f"    buffer_store_dwordx2 {vt(vP+2*db,2)}, v{vO}, s[{sO_}:{sO_+3}], s{sQo} offen offset:{db*32}\n"
    t += f"""    s_add_u32 s{sQo}, s{sQo}, 4096
    s_cmp_lt_u32 s{sQo}, 0x10000
    s_waitcnt vmcnt(0)
    s_cbranch_scc1 L_sblk
    s_endpgm
"""
    return t

HDR = """; Kernarg layout for this problem (48 bytes, ptrs only, base s[0:1]):
;   offset   0: d_in[0] q  shape=(16, 32, 512, 128) dtype=bfloat16
;   offset   8: d_in[1] k  shape=(16, 4, 512, 128) dtype=bfloat16
;   offset  16: d_in[2] v  shape=(16, 4, 512, 128) dtype=bfloat16
;   offset  24: d_out     shape=(16, 32, 512, 128) dtype=bfloat16
;   offset  32: d_debug   256 bytes
;   offset  40: d_ws      268435456 bytes workspace (unused)
; @launch grid=(256,1,1) block=(256,1,1) lds=163840
"""

def full(cfg):
    body = generate(cfg)
    r = full2(cfg, body)
    if cfg.stamps in ("cyc", "c16"): r = r.replace("s_memrealtime", "s_memtime")
    if cfg.stamps == "both":
        import re
        r = re.sub(r"    s_memrealtime s\[(\d+):(\d+)\]", lambda m: f"    s_memtime s[{m.group(1)}:{m.group(2)}]\n    s_memrealtime s[{int(m.group(1))+20}:{int(m.group(2))+20}]", r)
        for i in range(8): r = r.replace(f"v_mov_b32 v{65+2*i}, s{61+2*i}\n", f"v_mov_b32 v{65+2*i}, s{80+2*i}\n")
    return r

def full2(cfg, body):
    return HDR + f""".amdgcn_target "amdgcn-amd-amdhsa--gfx950"
.text
.globl {KN}
.p2align 8
.type {KN},@function
{KN}:
""" + head(cfg) + body + "\n" + tail(cfg) + f""".section .rodata,"a"
.p2align 6
.amdhsa_kernel {KN}
  .amdhsa_next_free_vgpr 512
  .amdhsa_next_free_sgpr 102
  .amdhsa_accum_offset 256
  .amdhsa_group_segment_fixed_size 0
  .amdhsa_kernarg_size 48
  .amdhsa_user_sgpr_count 2
  .amdhsa_user_sgpr_kernarg_segment_ptr 1
  .amdhsa_system_sgpr_workgroup_id_x 1
.end_amdhsa_kernel
"""

if __name__ == "__main__":
    cfg = Cfg()
    name = sys.argv[1]
    for a in sys.argv[2:]:
        k, v = a.split("=", 1)
        try: v = eval(v)
        except Exception: pass
        setattr(cfg, k, v)
    s = full(cfg)
    open(name, "w").write(s)
    tot = sum(v[0] for v in cfg.est.values())
    print(name, "est head", cfg.est_head, "total", tot, "mfma", sum(v[1] for v in cfg.est.values()), file=sys.stderr)
    print(" ".join(f"{s}:{v[0]}/{v[1]}" for s, v in cfg.est.items() if s < 16 or s >= 32), file=sys.stderr)
```

```python
import sys, math, struct
KN = "standalone__gqa_softmax__near_ridge_kernel"

class Cfg:
    sigma = (0, 2, 4, 6)
    beta = 0.85
    beta_small = 0.55
    ds_lat = 9
    mv_lat = 4
    store_x4 = True
    q_nt = "nt"
    st_pol = "sc0 sc1"
    k_pol = "nt"
    v_pol = ""
    v_pol0 = "nt"
    rot = 0
    split_from = 3
    split_min_u = 2
    arr_gap = 10
    vm_gap = 5
    smooth = True
    stamps = False
    code_pf = True
    plan = "K0 Q0 C K1 W00 V0 S0 B r0 r1 R0 K2 S1@0.0 V1@0.0 Q1@0.5 K3@1.0 V2@1.3 K4@1.6 R1@2.0 Q2@2.2 V3@2.3 K5@2.b K6@3.b R2@3.b Q3@4.0 K7@4.b R3@5.b Q4@6.0"
    vperm = True
    st_last = "sc0 sc1"
    st_last_from = 38
    ones_rows = 8
    trunc = False
    fake_st = False
    fake_v = False
    fake_m0 = 0
    v_n0 = 8
    st_block = 0
    c_pol = ""
    deep = True
    tail_dl = 1.0
    betas = {0: 0.95, 1: 0.9, 2: 0.9, 3: 0.8}
    arr_gap_small = 4
    k_up = 1
    force_slow = False
    nop_ds = True
    ds_gap = 2
    ds_cap = 1024
    kill_from = None
    pad = 0
    kill = ()
    limit_exp = 32

vQd, vO, vQr, vCnt, vD0, vD1, vChk = 1, 2, 3, 4, 5, 6, 7
vKl = 0
vV = 8
vS = 16
vL = 32
vR = 48
vKw = 50
vT = 52
NT = 5
vIdx = 57
vPoll = 58
vJ = 59
vKr = 60
vP = 64
vOa = 128
aQ, aKp, aVp, aK, aV = 0, 64, 128, 192, 224
vOne, vCone, vKp1 = 12, 6, 52
TV = 4
TMPS = [44, 45, 46, 47, 56]
sQ_, sK_, sV_, sO_, sC_ = 12, 16, 20, 24, 28
sTile = 32
sM0 = 96
sQo, sOo, sCnt, sScale, sWave = 42, 43, 44, 45, 3
sTmp = 46
sMq, sExp, sMask, sPerm = 52, 53, 54, 55

VB, VSTR, KSH = 0x18000 - 32, 16384 + 8, 32
def vr(b, n=1): return [f"v{b+i}" for i in range(n)]
def ar(b, n=1): return [f"a{b+i}" for i in range(n)]
def vt(b, n): return f"v[{b}:{b+n-1}]"
def at(b, n): return f"a[{b}:{b+n-1}]"

class Op:
    def __init__(s, key, text, kind, reads, writes, cost=None, earliest=None, dummy=False, anchor=None, maxdl=None):
        s.key, s.text, s.kind, s.reads, s.writes = key, text, kind, list(reads), list(writes)
        s.cost = {"mfma": 0, "trans": 8, "valu": 4, "ds": 4, "dsw": 20, "load": 8, "dma": 8, "store": 12, "salu": 0, "bar": 0, "chk": 0}[kind] if cost is None else cost
        s.cnt = {"ds": "lgkm", "dsw": "lgkm", "load": "vm", "dma": "vm", "store": "vm"}.get(kind)
        s.earliest = earliest
        s.maxdl = maxdl
        s.dummy = dummy
        s.anchor = anchor
        s.preds = []; s.succs = []; s.win = None; s.pos = None; s.m = None
        s.prod = {}

def build(cfg, s0, s1, steady):
    sg = cfg.sigma
    NP = 4
    last = 32 + max(sg)
    def qk_on(s, u): return steady or (sg[u] <= s < sg[u] + 8 * NP)
    def pv_on(s, u): return steady or (sg[u] + 1 <= s < sg[u] + 8 * NP + 1)
    def order_qk(s, kb):
        us = [u for u in range(4) if qk_on(s, u)]
        if kb == 3:
            f = [u for u in us if (s - sg[u]) % 8 == 7]
            us = f + [u for u in us if u not in f]
        if kb == 0:
            f = [u for u in us if (s - sg[u]) % 8 == 0]
            us = [u for u in us if u not in f] + f
        return us
    prog = []
    A = prog.append
    chain = 0
    pend_q = []
    def qload(key, earliest=None, dummy=False):
        A(Op(key + ("m0",), f"s_mov_b32 m0, s{sMq}", "salu", [], ["m0"], dummy=dummy))
        for i in range(4):
            A(Op(key + (i,), f"buffer_load_dwordx4 v{vQd}, s[{sQ_}:{sQ_+3}], s{sQo} offen offset:{i*1024} {cfg.q_nt} lds".replace("  ", " "), "dma",
                 [f"s{sQo}", "m0"] + [f"Qrd{d}" for d in range(4)], [f"Qs{i}"], earliest=earliest, dummy=dummy))
        A(Op(key + ("inc",), f"s_add_u32 s{sQo}, s{sQo}, 4096", "salu", [f"s{sQo}"], [f"s{sQo}"], dummy=dummy))
    def qread(key, u, earliest=None, dummy=False):
        for ds in range(4):
            d = aQ + 16 * u + 4 * ds
            A(Op(key + (ds,), f"ds_read_b128 {at(d,4)}, v{vQr} offset:{ds*64}", "ds", [f"Qs{i}" for i in range(4)], ar(d, 4) + [f"Qrd{ds}"], earliest=earliest, dummy=dummy))
    def kfrag(s, kb, ds):
        t = s % 8
        if (t, kb, ds) == (1, 0, 0): return ("v", vKp1)
        if t == 0 or (not steady and s >= 34): return ("a", aKp + kb * 16 + ds * 4)
        if not steady and s <= 4: return ("a", aK + kb * 16 + ds * 4)
        return ("a", aK + (kb & 1) * 16 + ds * 4)
    def vperm_(sv): return sv % 8 == TV and (steady or sv >= 8)
    def vfrag(sv, db):
        if sv % 8 == TV or (not steady and sv < TV): return aVp + db * 8
        if not steady and sv >= 34 and db >= 4: return aQ + (db - 4) * 8
        return aV + (db & 3) * 8
    rt = lambda f, n: f"{f[0]}[{f[1]}:{f[1]+n-1}]"
    rr = lambda f, n: [f"{f[0]}{f[1]+i}" for i in range(n)]
    def vslot(sv):
        if not steady and sv in (2, 3, 34, 35): return sv & 1
        if not steady and sv == 37: return 3
        return 2 + (((sv - TV - 1) % 8) & 1)
    def vprev(sv):
        if vslot(sv) < 2: return ["Kret67"] if sv > 8 else []
        p = sv - 1
        while p >= 0 and (vslot(p) != vslot(sv) or vperm_(p)): p -= 1
        return [f"Vret{p}"] if p >= 0 else []
    vissued = set()
    def vdma(sv, earliest=None):
        vissued.add(sv)
        A(Op(("m0", sv), f"s_mov_b32 m0, s{sM0 + vslot(sv)}", "salu", ["setup~"], ["m0"]))
        for i in range(4):
            A(Op(("dma", sv, i), f"buffer_load_dwordx4 v{vD0}, s[{sV_}:{sV_+3}], s{sTile + sv % 8} offen offset:{i*1024} {cfg.v_pol0 if (not steady and sv < cfg.v_n0) else cfg.v_pol} lds".replace("  ", " "), "dma",
                 ["m0"] + vprev(sv), [f"Vd{sv}_{i}"], earliest=earliest))
    kstage = {}
    def kregs(t):
        u = KST[t][0]; h = KST[t][1]
        if h == "P": return [vP + (ds >> 1) * 32 + u * 8 + (ds & 1) * 4 for ds in range(4)]
        return [vOa + (h * 4 + ds) * 16 + u * 4 for ds in range(4)]
    KST = [(1, 0), (1, 1), (2, 0), (2, 1), (3, 0), (3, 1), (3, "P"), (3, 0)]
    if cfg.k_up == 8: KST = [(0, 0), (0, 1), (1, 0), (1, 1), (2, 0), (2, 1), (3, 0), (3, 1)]
    def kload(t, earliest=None):
        for ds, r in enumerate(kregs(t)):
            A(Op(("kld", t, ds), f"buffer_load_dwordx4 {vt(r,4)}, v{vKl}, s[{sK_}:{sK_+3}], s{sTile + t} offen offset:{ds*1024} {cfg.k_pol}".rstrip(), "load",
                 [], vr(r, 4), earliest=earliest))
    tmpc = [0]
    def kscale(t, earliest=None):
        for ds, r in enumerate(kregs(t)):
            for j in range(4):
                x = r + j; tm = TMPS[tmpc[0] % NT]; tmpc[0] += 1
                k = ("ksc", t, ds, j)
                A(Op(k + (0,), f"v_lshlrev_b32 v{tm}, 16, v{x}", "valu", vr(x), vr(tm), earliest=earliest))
                A(Op(k + (1,), f"v_and_b32 v{x}, s{sMask}, v{x}", "valu", vr(x), vr(x), earliest=earliest))
                A(Op(k + (2,), f"v_mul_f32 v{tm}, s{sScale}, v{tm}", "valu", vr(tm), vr(tm)))
                A(Op(k + (3,), f"v_mul_f32 v{x}, s{sScale}, v{x}", "valu", vr(x), vr(x)))
                A(Op(k + (4,), f"v_cvt_pk_bf16_f32 v{x}, v{tm}, v{x}", "valu", vr(tm) + vr(x), vr(x)))
            tl = 3 if t == 0 else t
            if t == 4 and ds == 0:
                A(Op(("kwa", t, ds), f"v_add_u32 v{vKw}, {0x10000 - KSH}, v{vKw}", "valu", vr(vKw), vr(vKw)))
            a = vKw + (1 if (t == 1 and ds < 2) else 0)
            A(Op(("kw", t, ds), f"ds_write_b128 v{a}, {vt(r,4)} offset:{(tl & 3) * 16384 + (ds >> 1) * 4096 + (ds & 1) * 128 - (KSH if tl < 4 else 0)}", "dsw",
                 vr(r, 4) + vr(a) + (["K0dead"] if t in (3, 4) else []) + ([f"Vret{v}" for v in range(2, t - 3)] if t >= 6 and cfg.deep else []), [f"Kw{t}_{ds}"]))
    nmf = [0]
    kpub = set()
    def kread1(s, t, kb):
        for ds in range(4):
            perm = t == 0 or (t, kb, ds) == (1, 0, 0)
            if perm and (steady or s > 7): continue
            d = kfrag(s, kb, ds); tl = 3 if t == 0 else (4 if perm else t)
            A(Op(("kr", s, kb, ds), f"ds_read_b128 {rt(d,4)}, v{vKr + 2 * (tl >> 2) + (ds & 1)} offset:{(tl & 3) * 16384 + kb * 4096 + ds * 1024 - (KSH if tl < 4 else 0)}", "ds",
                 [] if (steady or s > 7) else [f"Kok{t}"], rr(d, 4) + ([] if not perm else [f"Kr0_{kb}_{ds}" if t == 0 else "Kr1"])))
    kdone0 = set(); kscaled = []
    later = {}
    if not steady:
        H = (-1, 0)
        def issue(item, when):
            n0 = len(prog)
            n = int(item[1:]) if item[1:].isdigit() else None
            if item[0] == "K": kload(n, when)
            elif item[0] == "Q": qload(("q0", n) if n < 4 else ("q", 8, 0), when)
            elif item[0] == "R": qread(("qr0", n), n, when)
            elif item[0] == "V": vdma(n, when)
            elif item[0] == "S": kscale(n, when); kscaled.append(n)
            elif item[0] == "r": kread1(0, 0, n); kdone0.add(n)
            elif item[0] == "W":
                A(Op(("wt", 0, item), "s_nop 0", "valu", vr(kregs(int(item[1]))[int(item[2])], 4), []))
            elif item[0] == "P":
                A(Op(("cpf", 1), f"buffer_load_dword v{vJ}, v{vJ}, s[{sC_}:{sC_+3}], 0 offen {cfg.c_pol}".rstrip(), "load", [], ["junk"], earliest=when))
            elif item[0] == "T":
                A(Op(("ts", 0, item), f"s_memrealtime s[{64+2*n}:{65+2*n}]", "valu", [], []))
            elif item[0] == "X":
                A(Op(("wt", 0, item), "s_nop 0", "valu", [f"Qs{i}" for i in range(4)], []))
            elif item[0] == "B":
                pub = [t for t in kscaled if t not in kpub]; kpub.update(pub)
                A(Op(("bar", -1), "s_barrier", "bar", ["Czero"] + [f"Kw{t}_{ds}" for t in pub for ds in range(4)], [f"Kok{t}" for t in pub], anchor=H))
            elif item[0] == "C":
                pf = f"buffer_load_dword v{vJ}, v{vJ}, s[{sC_}:{sC_+3}], 0 offen {cfg.c_pol}".rstrip()
                if " P" in cfg.plan: A(Op(("cpf", 0), head2(cfg).replace("@CPF\n", "").strip(), "valu", [], [], earliest=when, cost=300))
                else: A(Op(("cpf", 0), head2(cfg).replace("@CPF", "    " + pf).strip(), "load", [], ["junk"], earliest=when, cost=300))
                A(Op(("setup", 0), "s_nop 0", "valu", [], ["setup~", f"s{sExp}"]))
                A(Op(("cz", 1), f"ds_write_b32 v{vCnt}, v{vPoll}", "dsw", [], ["Czero"], cost=8))
            if when == H:
                for x in prog[n0:]: x.maxdl = H
        for item in cfg.plan.split():
            if "@" not in item: issue(item, H)
            else:
                it, pos = item.split("@"); st, fr = pos.split(".")
                later.setdefault(int(st), []).append((it, fr))
    for s in range(s0, s1):
        t = s % 8
        uq = [u for u in range(4) if qk_on(s, u)]
        up = order_qk(s - 1, 3) if (steady or s > 0) else []
        up = [u for u in up if pv_on(s, u)]
        qk = [(kb, u) for kb in range(4) for u in order_qk(s, kb)]
        pv = []
        fin = [u for u in up if (s - 1 - sg[u]) % 8 == 7]
        ones_order = fin + [u for u in up if u not in fin]
        for db in range(8):
            for u in up: pv.append(("pv", db, u))
        npv = len(pv)
        ins = {}
        for i, u in enumerate(ones_order):
            if u in fin: p = len(up)
            else: p = len(up) + (npv - len(up)) * i // max(1, len(ones_order))
            ins.setdefault(p, []).append(("one", 0, u))
        pv2 = []
        for i, c in enumerate(pv):
            pv2 += ins.get(i, []); pv2.append(c)
        pv = pv2
        seq = []
        if qk:
            j = 0
            lag = 1 if len(uq) <= 2 and pv else 0
            for i, c in enumerate(qk):
                seq.append(("qk",) + c)
                tgt = math.ceil(max(0, i + 1 - lag) * len(pv) / (len(qk) - lag))
                while j < tgt: seq.append(pv[j]); j += 1
        else:
            seq = pv
        nm = sum({"qk": 4, "pv": 2, "one": 1}[c[0]] for c in seq)
        beta = cfg.beta if len(uq) >= 3 else cfg.beta_small
        barpos = int(beta * nm)
        if not steady and s in cfg.betas: barpos = int(cfg.betas[s] * nm)
        vdone = set(); kdone = set(kdone0) if (s == 0 and not steady) else set(); bar_done = False
        Pw = vP + 32 * (s & 1); Pr = vP + 32 * ((s - 1) & 1)
        def vreads(db):
            if db in vdone or vperm_(s - 1): return
            vdone.add(db)
            for ks in range(2):
                for h in range(2):
                    d = vfrag(s - 1, db) + ks * 4 + h * 2
                    A(Op(("vr", s, db, ks, h), f"ds_read_b64_tr_b16 {at(d,2)}, v{vV+(db>>1)} offset:{vslot(s-1)*VSTR + ks*4096 + h*2048 + (db&1)*8}", "ds",
                         [f"Vok{s-1}"], ar(d, 2) + [f"Vr{s-1}_{db}_{ks}_{h}"]))
        def kreads(kb):
            if kb in kdone: return
            kdone.add(kb); kread1(s, t, kb)
        def barrier():
            rd = []; wr = []
            pubv, retv, nxt = [s], [s - 1], [s + 1]
            if vperm_(s + 1): retv = []; nxt = []
            if vperm_(s): pubv = []; retv = [s - 2, s - 1]
            if vperm_(s - 1): retv = []
            if not steady:
                retv = {1: [], 2: [0], 3: [1], 4: [2], 5: [3, 4], 34: []}.get(s, retv)
                pubv = {34: [34, 35, 37]}.get(s, pubv)
                nxt = {0: [], 1: [], 2: [4], 3: [5], 4: [], 32: [33, 34, 35], 33: [37], 34: []}.get(s, nxt)
                if s == 32: wr.append("Kret67")
                if s >= 35: return
                nxt = [v for v in nxt if v < last and v not in vissued and not any(it == f"V{v}" for l in later.values() for it, _ in l)]
            for v in retv:
                if v < 0: continue
                if v == s - 1:
                    for db in range(8): vreads(db)
                rd += [f"Vr{v}_{db}_{ks}_{h}" for db in range(8) for ks in range(2) for h in range(2)]
                wr.append(f"Vret{v}")
            for v in pubv:
                assert steady or v in vissued, v
                rd += [f"Vd{v}_{i}" for i in range(4)]; wr.append(f"Vok{v}")
            if not steady and s + 1 <= 7 and s + 1 not in kpub:
                if s + 1 not in kscaled: kscale(s + 1, ((s - 1, "bar") if s >= 1 else (-1, 0))); kscaled.append(s + 1)
                kpub.add(s + 1)
                rd += [f"Kw{s+1}_{ds}" for ds in range(4)]; wr.append(f"Kok{s+1}")
            if not steady and s == 1:
                rd += [f"Kr0_{kb}_{ds}" for kb in range(4) for ds in range(4)]; wr.append("K0dead")
                rd.append("Kr1")
            if (steady or s >= cfg.split_from) and len(uq) >= cfg.split_min_u:
                ag = cfg.arr_gap if len(uq) >= 3 else cfg.arr_gap_small
                A(Op(("arr", s), f"ds_add_u32 v{vCnt}, v{vCone}", "dsw", rd, ["Carr"], cost=8, anchor=(s, "bar", -ag - cfg.ds_lat - 1)))
                A(Op(("exp", s), f"s_add_u32 s{sExp}, s{sExp}, 4", "salu", [f"s{sExp}"], [f"s{sExp}"]))
                A(Op(("pol", s), f"ds_read_b32 v{vPoll}, v{vCnt}", "ds", ["Carr~"], vr(vPoll), anchor=(s, "bar", -cfg.ds_lat - 1)))
                A(Op(("cmp", s), f"v_cmp_gt_u32 vcc, s{sExp}, v{vPoll}", "valu", vr(vPoll) + [f"s{sExp}"], ["vcc"], anchor=(s, "bar", -2)))
                A(Op(("bar", s), f"s_cbranch_vccnz L_spin{s if (not steady and (s < 8 or s >= 32)) else 8 + s % 8}", "bar", ["vcc"] + vr(vPoll) + [f"s{sExp}"], wr, anchor=(s, "bar")))
            else:
                A(Op(("bar", s), "s_barrier", "bar", rd, wr, anchor=(s, "bar")))
            for v in nxt: vdma(v, None)
            for it, fr in later.get(s, []):
                if fr == "b": issue(it, (s, "bar"))
        todo_items = [(it, int(fr) / 10 ** len(fr)) for it, fr in later.get(s, []) if fr != "b"]
        mcount = 0
        for c in seq:
            if not bar_done and mcount >= barpos:
                barrier(); bar_done = True
            while todo_items and mcount >= todo_items[0][1] * nm:
                issue(todo_items.pop(0)[0], (s, "off", mcount))
            if c[0] == "qk":
                _, kb, u = c
                kreads(kb)
                if kb == 0 and (s - sg[u]) % 8 == 0 and (steady or s - sg[u] >= 8):
                    qread(("qr", s, u), u)
                    un = (u + 1) % 4; sn = s + (sg[un] - sg[u]) % 8
                    pend_q.append((("q", sn, un), not steady and sn - sg[un] >= 8 * NP))
                    if True:
                        k_, d_ = pend_q.pop(); qload(k_, dummy=d_)
                S = vS + 4 * (chain % 4); chain += 1
                for ds in range(4):
                    kf = kfrag(s, kb, ds); qf = aQ + u * 16 + ds * 4
                    A(Op(("qk", s, kb, u, ds), f"v_mfma_f32_16x16x32_bf16 {vt(S,4)}, {rt(kf,4)}, {at(qf,4)}, {'0' if ds == 0 else vt(S,4)}", "mfma",
                         rr(kf, 4) + ar(qf, 4) + ([] if ds == 0 else vr(S, 4)), vr(S, 4)))
                for r in range(4):
                    A(Op(("ex", s, kb, u, r), f"v_exp_f32 v{S+r}, v{S+r}", "trans", vr(S + r), vr(S + r)))
                pd = Pw + u * 8 + kb * 2
                for r in range(2):
                    tx = f"v_perm_b32 v{pd+r}, v{S+2*r+1}, v{S+2*r}, s{sPerm}" if cfg.trunc else f"v_cvt_pk_bf16_f32 v{pd+r}, v{S+2*r}, v{S+2*r+1}"
                    A(Op(("cv", s, kb, u, r), tx, "valu", vr(S + 2 * r, 2), vr(pd + r)))
                mcount += 4
            elif c[0] == "pv":
                _, db, u = c
                vreads(db)
                first = (s - 1 - sg[u]) % 8 == 0
                o = vOa + db * 16 + u * 4
                for ks in range(2):
                    vf = vfrag(s - 1, db) + ks * 4; pf = Pr + u * 8 + ks * 4
                    z = first and ks == 0
                    A(Op(("pv", s, db, u, ks), f"v_mfma_f32_16x16x32_bf16 {vt(o,4)}, {at(vf,4)}, {vt(pf,4)}, {'0' if z else vt(o,4)}", "mfma",
                         ar(vf, 4) + vr(pf, 4) + ([] if z else vr(o, 4)), vr(o, 4)))
                mcount += 2
            else:
                _, _, u = c
                first = (s - 1 - sg[u]) % 8 == 0
                l = vL + 4 * u
                if first:
                    for r in range(2): A(Op(("lz", s, u, r), f"v_mov_b32 v{l+r}, 0", "valu", [], vr(l + r)))
                pf = Pr + u * 8
                A(Op(("on", s, u), f"v_smfmac_f32_16x16x64_bf16 {vt(l,4)}, {vt(vOne,4)}, {vt(pf,8)}, v{vIdx}", "mfma", vr(pf, 8) + vr(l, 2), vr(l, 4)))
                mcount += 1
        if not bar_done: barrier()
        for it, _ in todo_items: issue(it, (s, "off", mcount))
        if not steady and s == 31:
            qread(("qr", 32, 0), 0, dummy=True)
            qload(("q", 32 + sg[1], 1), dummy=True)
        for u in sorted(fin):
            l = vL + 4 * u; R = vR + (u & 1)
            A(Op(("la", s, u), f"v_add_f32 v{l}, v{l}, v{l+1}", "valu", vr(l, 2), vr(l)))
            A(Op(("rc", s, u), f"v_rcp_f32 v{R}, v{l}", "trans", vr(l), vr(R)))
            A(Op(("ck", s, u), f"v_max3_u32 v{vChk}, v{vChk}, v{l}, v{R}", "valu", vr(vChk) + vr(l) + vr(R), vr(vChk)))
            for db in range(8):
                o = vOa + db * 16 + u * 4
                for r in range(4):
                    A(Op(("mu", s, u, db, r), f"v_mul_f32 v{o+r}, v{o+r}, v{R}", "valu", vr(o + r) + vr(R), vr(o + r)))
                if not cfg.store_x4:
                    for r in range(2):
                        A(Op(("oc", s, u, db, r), f"v_cvt_pk_bf16_f32 v{o+r}, v{o+2*r}, v{o+2*r+1}", "valu", vr(o + 2 * r, 2), vr(o + r)))
                    A(Op(("st", s, u, db), f"buffer_store_dwordx2 {vt(o,2)}, v{vO}, s[{sO_}:{sO_+3}], s{sOo} offen offset:{db*32} {cfg.st_pol}".rstrip(), "store",
                         vr(o, 2) + [f"s{sOo}"], []))
                else:
                    if db & 1:
                        e = o - 16
                        A(Op(("oc", s, u, db, 3), f"v_cvt_pk_bf16_f32 v{o+3}, v{o+2}, v{o+3}", "valu", vr(o + 2, 2), vr(o + 3)))
                        A(Op(("oc", s, u, db, 2), f"v_cvt_pk_bf16_f32 v{o+2}, v{o}, v{o+1}", "valu", vr(o, 2), vr(o + 2)))
                        A(Op(("oc", s, u, db, 0), f"v_cvt_pk_bf16_f32 v{o}, v{e}, v{e+1}", "valu", vr(e, 2), vr(o)))
                        A(Op(("oc", s, u, db, 1), f"v_cvt_pk_bf16_f32 v{o+1}, v{e+2}, v{e+3}", "valu", vr(e + 2, 2), vr(o + 1)))
                        for r in range(2):
                            if cfg.vperm: break
                            A(Op(("sw", s, u, db, r), f"v_permlane16_swap_b32 v{o+r}, v{o+2+r}", "valu", vr(o + r) + vr(o + 2 + r), vr(o + r) + vr(o + 2 + r), cost=8))
                        A(Op(("st", s, u, db), f"buffer_store_dwordx4 {vt(o,4)}, v{vO}, s[{sO_}:{sO_+3}], s{sOo} offen offset:{(db-1)*(512 if cfg.fake_st else 32)} {cfg.st_last if (not steady and s >= cfg.st_last_from) else cfg.st_pol}".rstrip(), "store",
                             vr(o, 4) + [f"s{sOo}"], [], cost=20))
            if not steady and 32 <= s < last:
                for x in prog:
                    if x.key[:3] == ("st", s, u): x.maxdl = (s + 1, "frac", (x.key[3] + 1) / 8 * cfg.tail_dl)
            A(Op(("oinc", s, u), f"s_add_u32 s{sOo}, s{sOo}, 4096", "salu", [f"s{sOo}"], [f"s{sOo}"]))
    return prog

def link(cfg, prog):
    lastw = {}; readers = {}
    m = 0
    for x in prog:
        if x.kind == "mfma": x.m = m; m += 1
    for x in prog:
        e = {}
        def add(p, typ):
            if p is x: return
            soft = hard = 0
            if p.kind == "mfma":
                if x.kind == "mfma": return
                if typ in ("raw", "waw"): soft = cfg.mv_lat + (2 if p.key[0] == "on" else 0)
                elif x.kind in ("valu", "trans"): soft = 1
            elif x.kind == "mfma":
                hard = soft = 1
                if typ == "raw":
                    soft = cfg.ds_lat if p.kind == "ds" else (1 if p.kind == "load" else 2)
                elif p.kind == "store": soft = 2
            elif x.kind == "bar" or x.key[0] == "arr":
                hard = 1; soft = {"ds": cfg.ds_lat, "dsw": cfg.ds_lat, "dma": 2}.get(p.kind, 1)
            elif p.kind == "bar":
                soft = hard = 0
            elif p.kind == "salu":
                soft = 2; hard = 1 if x.kind != "salu" else 1
            elif x.kind == "salu":
                soft = hard = 1
            elif typ == "raw":
                if p.kind == "trans": soft = 1
                elif p.kind == "ds" and x.kind == "dma": soft = cfg.ds_lat
                elif p.kind == "valu" and x.kind in ("store", "dsw", "ds"): soft = 1
                elif p.kind == "valu" and "permlane" in x.text: soft = 2
            else:
                if p.kind in ("valu", "trans") and x.kind in ("load", "ds", "dma"): soft = 1
                if p.kind in ("store", "dsw"): soft = 1
            o = e.get(id(p))
            e[id(p)] = (p, max(soft, o[1]) if o else soft, max(hard, o[2]) if o else hard)
        for r in x.reads:
            if r in lastw: add(lastw[r], "raw"); x.prod[r] = lastw[r].key
        for r in x.writes:
            if r in lastw: add(lastw[r], "waw")
            for p in readers.get(r, []): add(p, "war")
        for r in x.reads: readers.setdefault(r, []).append(x)
        for r in x.writes: lastw[r] = x; readers[r] = []
        x.preds = list(e.values())
        for p, so, ha in x.preds: p.succs.append((x, so, ha))
    return m

def step_of(x): return x.key[1]

def schedule(cfg, prog, nm, pins=None, lo=None, hi=None):
    pins = pins or {}; lo = lo or {}; hi = hi or {}
    start = {}; barw = {}
    cur = -1
    for x in prog:
        if x.kind == "mfma":
            cur = x.m; start.setdefault(x.key[1], x.m)
        elif x.kind == "bar": barw[x.key[1]] = cur
    def W(a):
        if a[0] == -1: return -1
        if a[1] == "bar": return barw.get(a[0], nm - 1) + (a[2] if len(a) > 2 else 0)
        if a[1] == "frac": return start[a[0]] - 1 + int(a[2] * (start.get(a[0] + 1, nm) - start[a[0]]))
        if a[1] == "off": return max(0, start[a[0]] - 1 + a[2])
        return start[a[0]] - 1
    fill = [x for x in prog if x.kind != "mfma"]
    for x in prog:
        if x.kind == "mfma": x.win = x.m
    for i, x in enumerate(prog): x.idx = i
    for x in reversed(fill):
        if x.key in pins: x.dls = x.dlh = pins[x.key][0]; continue
        if x.anchor: x.dls = x.dlh = W(x.anchor); continue
        ds = dh = nm - 1
        for y, so, ha in x.succs:
            if y.dummy and y.key not in pins: continue
            if y.kind == "mfma": ds = min(ds, y.m - so); dh = min(dh, y.m - ha)
            else: ds = min(ds, y.dls - so); dh = min(dh, y.dlh - ha)
        if x.key in hi: ds = min(ds, hi[x.key]); dh = min(dh, hi[x.key])
        if x.maxdl: ds = min(ds, W(x.maxdl)); dh = min(dh, W(x.maxdl))
        x.dls, x.dlh = ds, max(dh, -1)
    wins = {w: [] for w in range(-1, nm)}
    for x in fill:
        x.win = None
        x.lo = max(W(x.earliest) if x.earliest else -1, lo.get(x.key, -1))
        if x.anchor: x.lo = x.dlh
    pinned_by_win = {}
    for x in fill:
        if x.key in pins: pinned_by_win.setdefault(pins[x.key][0], []).append(x)
    todo = [x for x in fill if x.key not in pins and not x.dummy]
    todo.sort(key=lambda x: x.idx)
    credit = [0]
    mfl = [x for x in prog if x.kind == "mfma"]
    def ready(x, w, soft):
        if w < x.lo: return False
        for p, so, ha in x.preds:
            if p.dummy and p.key not in pins: continue
            if p.win is None: return False
            lat = ha
            if soft and (p.kind not in ("load", "dma", "ds", "dsw") or x.kind == "dma"): lat = so
            if p.kind in ("store", "dsw") and soft: lat = max(lat, min(so, 1))
            if w == -1 or w == nm - 1: lat = 0
            if w < p.win + lat: return False
        return True
    for w in range(-1, nm):
        if w in pinned_by_win:
            for x in sorted(pinned_by_win[w], key=lambda x: pins[x.key][1]):
                x.win = w; wins[w].append(x)
        if pins and cfg._loop[0] <= w < cfg._loop[1]: continue
        cap = 8 if w >= 0 else 0
        if w >= 0 and mfl[w].key[0] == "on": cap = 4
        cap0 = cap
        rate = 8
        if cfg.smooth and pins and 0 <= w < nm - 1:
            acc = 0
            for x in sorted((x for x in todo[:900] if x.dls <= w + 120), key=lambda x: x.dls):
                acc += min(x.cost, 8)
                rate = max(rate, acc / (max(x.dls, w) - w + 1))
            credit[0] = credit[0] + rate - 8 if rate > 8.2 else 0
            credit[0] = min(credit[0], rate)
            extra = int(credit[0] // 4) * 4
            cap += extra
        used = 0
        cur = wins[w]
        def place(x):
            nonlocal used
            x.win = w; cur.append(x); used += min(x.cost, 8); todo.remove(x)
        while True:
            cand = [x for x in todo[:700] if ready(x, w, True) or (w >= x.dlh and ready(x, w, False))]
            if not cand: break
            z = [x for x in cand if x.kind in ("salu", "bar")]
            if z:
                place(z[0]); continue
            forced = [x for x in cand if x.dls <= w]
            if w == -1 or w == nm - 1:
                if not forced: break
                place(min(forced, key=lambda x: x.idx)); continue
            hasvalu_dep = lambda x: x.kind in ("ds", "dsw", "load", "dma", "store") and any(p.win == w and p.kind in ("valu", "trans") for p, _, _ in x.preds)
            hard_forced = forced
            if hard_forced:
                place(min(hard_forced, key=lambda x: (x.dls, x.idx))); continue
            if used >= cap: break
            nb = lambda x: 1024 if "b128" in x.text else 512
            dsb = sum(nb(x) for x in cur if x.kind == "ds")
            tight = rate > 8.2
            recent = (not tight) and any(y.kind == "ds" for k in range(1, cfg.ds_gap) for y in wins.get(w - k, []))
            vmk = ("load", "dma", "store")
            vgap = max(1, int(cfg.vm_gap * 16 / (8 + rate)))
            recent_vm = any(y.kind in vmk for k in range(0, vgap) for y in wins.get(w - k, []))
            dcap = cfg.ds_cap * (8 + cap) // 16
            if cfg.st_block and any(-4 * cfg.vm_gap <= b - w <= cfg.st_block for b in barw.values()):
                cand = [x for x in cand if x.kind != "store"]
            cand = [x for x in cand if (x.kind != "ds" or (not recent and dsb + nb(x) <= dcap)) and not (x.kind in vmk and recent_vm)]
            if not cand: break
            cand.sort(key=lambda x: (-99999 if x.kind in ("load", "dma", "dsw", "store") else x.dls, x.idx))
            if cap - used >= 8:
                top = cand[0]
                if top.cost >= 8: place(top); continue
                small = [x for x in cand if x.cost == 4]
                big = [x for x in cand if x.cost >= 8]
                fits = lambda a, b: not (a.kind == "ds" and b.kind == "ds" and dsb + nb(a) + nb(b) > dcap)
                partner = any(fits(top, y) for y in small if y is not top) or any(y.cost == 4 and so == 0 and y.win is None and y.kind == "valu" and all(p.win is not None or p is top for p, _, _ in y.preds) for y, so, ha in top.succs)
                if partner or not big or (cap - used) % 8: place(top)
                else: place(big[0])
                continue
            small = [x for x in cand if x.cost == 4]
            if not small: break
            place(small[0])
        if w >= 0: credit[0] -= max(0, min(used, cap) - cap0)
        if w not in (-1, nm - 1):
            order = {"bar": 0, "salu": 0, "dma": 1, "load": 1, "store": 1, "dsw": 1, "ds": 1, "valu": 2, "trans": 2}
            lvl = {}
            for x in cur:
                l = order[x.kind]
                for p, _, _ in x.preds:
                    if p.win == w and p.kind != "mfma": l = max(l, lvl[id(p)])
                lvl[id(x)] = l
            cur.sort(key=lambda x: lvl[id(x)])
    assert not todo, [x.key for x in todo[:10]]
    for w, c in wins.items():
        for i, x in enumerate(c): x.pos = i
    return wins, start

def norm(key, d):
    return (key[0], key[1] + d) + tuple(key[2:])

class Ins:
    def __init__(s, text, op=None, kind=None):
        s.text, s.op, s.kind = text, op, kind or (op.kind if op else "salu")
        s.vm = None; s.lg = None

def generate(cfg):
    last = 32 + max(cfg.sigma)
    cfg.q_ahead = getattr(cfg, "q_ahead", 2)
    cfg.code_pf_n = getattr(cfg, "code_pf_n", 2)
    sp = build(cfg, 0, 56, True); nms = link(cfg, sp)
    swins, sstart = schedule(cfg, sp, nms)
    per = sstart[8] - sstart[0]
    ok = None
    for b in (16, 24, 32):
        same = all([x.text for x in swins[sstart[b] + i]] == [x.text for x in swins[sstart[b + 8] + i]] and
                   [norm(x.key, 8) for x in swins[sstart[b] + i]] == [x.key for x in swins[sstart[b + 8] + i]] for i in range(per))
        if same: ok = b; break
    assert ok is not None, "steady state not periodic"
    rp = build(cfg, 0, last + 1, False); nm = link(cfg, rp)
    rstart = {}
    for x in rp:
        if x.kind == "mfma": rstart.setdefault(x.key[1], x.m)
    L0, L1 = rstart[8], rstart[32]
    assert L1 - L0 == 3 * per
    cfg._loop = (L0, L1)
    pins = {}
    for it in range(3):
        for i in range(per):
            for x in swins[sstart[ok] + i]:
                pins[norm(x.key, 8 + 8 * it - ok)] = (L0 + it * per + i, x.pos)
    keys = {x.key: x for x in rp}
    assert len(keys) == len(rp)
    missing = [k for k in pins if k not in keys]
    assert not missing, missing[:10]
    lo = {}; hi = {}
    mid = (keys[("qk", 20, 0, 0, 0)])
    midx = rp.index(mid)
    for i, x in enumerate(rp):
        if x.kind == "mfma" or x.key in pins: continue
        if i < midx: hi[x.key] = L0 - 1
        else: lo[x.key] = L1
    wins, start = schedule(cfg, rp, nm, pins, lo, hi)
    mf = [x for x in rp if x.kind == "mfma"]
    def stat(w):
        return L0 + (w - L0) % per if L0 <= w < L1 else w
    free = {}
    pre = {}
    for w in range(-1, nm):
        if stat(w) == w:
            free[w] = []
            if w not in (-1, nm - 1):
                for x in wins[w]:
                    if x.kind == "bar": free[w].append(Ins(x.text, x))
    def body(w):
        if w in (-1, nm - 1): return wins[w]
        return [x for x in wins[w] if x.kind not in ("salu", "bar")]
    def walk(fix):
        q = {"vm": [], "lgkm": []}
        pend = {}
        hist = {}
        changed = False
        def dowait(ins):
            for c, n in (("vm", ins.vm), ("lgkm", ins.lg)):
                if n is None: continue
                while len(q[c]) > n:
                    d = q[c].pop(0)
                    for r in d.writes:
                        if pend.get(r) is d: del pend[r]
        def need(x):
            n = {}
            for r in x.reads + x.writes:
                p = pend.get(r)
                if p is not None and not (r in x.writes and r not in x.reads and p.cnt == x.cnt):
                    n[p.cnt] = p if (p.cnt not in n or q[p.cnt].index(p) > q[p.cnt].index(n[p.cnt])) else n[p.cnt]
            return n
        def issue(x):
            if x.cnt:
                q[x.cnt].append(x)
                for r in x.writes: pend[r] = x
        def setw(ins, c, n):
            n = min(n, 62 if c == "vm" else 14)
            if c == "vm": ins.vm = n if ins.vm is None else min(ins.vm, n)
            else: ins.lg = n if ins.lg is None else min(ins.lg, n)
        def handle(x, w, pos, cands):
            nonlocal changed
            n = need(x)
            if not n: return
            assert fix, ("unwaited", x.key, {c: p.key for c, p in n.items()})
            changed = True
            for c, p in n.items():
                done = False
                for cw in cands:
                    if cw < 0 or cw == nm - 1 or cw not in hist: continue
                    snap = hist[cw][c]
                    if p not in snap: continue
                    fl = free[stat(cw)]
                    wi = [i for i in fl if i.kind == "wait"]
                    if not wi and fl and cw != cands[-1]: continue
                    if not wi:
                        wi = [Ins("", None, "wait")]; fl.insert(0, wi[0])
                    setw(wi[0], c, len(snap) - 1 - snap.index(p)); done = True; break
                if not done:
                    ins = pre.setdefault((stat(w), pos), Ins("", None, "wait"))
                    setw(ins, c, len(q[c]) - 1 - q[c].index(p))
                while p in q[c]:
                    d = q[c].pop(0)
                    for r in d.writes:
                        if pend.get(r) is d: del pend[r]
        for w in range(-1, nm):
            if w >= 0:
                if (stat(w), "m") in pre: dowait(pre[(stat(w), "m")])
                handle(mf[w], w, "m", [w - 1, w - 2])
            hist[w] = {c: list(v) for c, v in q.items()}
            hist.pop(w - 4, None)
            for ins in list(free[stat(w)]):
                if ins.kind == "wait": dowait(ins)
                elif ins.kind == "bar":
                    x = [y for y in wins[w] if y.kind == "bar"][0]
                    handle(x, w, "b", [w - 1, w - 2, w])
            for pos, x in enumerate(body(w)):
                if (stat(w), pos) in pre: dowait(pre[(stat(w), pos)])
                handle(x, w, pos, [w, w - 1])
                issue(x)
        return changed
    for _ in range(10):
        if not walk(True): break
    walk(False)
    for w in range(0, nm - 1):
        if stat(w) != w: continue
        for x in wins[w]:
            if x.kind != "salu": continue
            hiw = min([y.win - (1 if "m0" in x.writes or y.kind == "salu" else 0) for y, _, _ in x.succs if y.win is not None] + [w + 40, nm - 2])
            if L0 <= w < L0 + per: hiw = min(hiw, L0 + per - 3)
            elif w < L0: hiw = min(hiw, L0 - 1)
            hiw = max(hiw, w)
            c = [k for k in range(w, hiw + 1) if not free[k]]
            c2 = [k for k in c if body(k) and body(k)[0].kind in ("ds", "dma", "load", "store", "dsw")]
            k = c2[0] if c2 else (c[0] if c else w)
            free[k].append(Ins(x.text, x)); x.fw = k
    k = [k for k in range(L0 + per - 2, L0 + per) if not free[k]]
    k = k[0] if k else L0 + per - 1
    if any(i.text.startswith("s_add") for kk in range(k + 1, L0 + per) for i in free[kk]): k = L0 + per - 1
    free[k].append(Ins(f"s_sub_u32 s{sCnt}, s{sCnt}, 1"))
    if cfg.nop_ds:
        for w in range(0, nm - 1):
            if stat(w) == w and not free[w] and body(w) and body(w)[0].kind in ("ds", "dma", "load", "store", "dsw"):
                free[w].append(Ins("s_nop 0", None, "nop"))
    def wtext(i):
        t = "s_waitcnt"
        if i.vm is not None: t += f" vmcnt({i.vm})"
        if i.lg is not None: t += f" lgkmcnt({i.lg})"
        return t
    code = {}
    for w in range(-1, nm):
        if stat(w) != w: continue
        l = []
        if w >= 0:
            if (w, "m") in pre: l.append(pre[(w, "m")])
            l.append(Ins(mf[w].text, mf[w]))
        l += free[w]
        for pos, x in enumerate(body(w)):
            if (w, pos) in pre: l.append(pre[(w, pos)])
            l.append(Ins(x.text, x))
        for i in l:
            if i.kind == "wait": i.text = wtext(i)
        code[w] = l
    def wcost(l, head=False):
        t = 0; base = 0; lastvalu = -99; blk = 8
        for i in l:
            if i.kind == "mfma": base = t; t += 4; blk = 12 if "smfmac" in i.text else 8; continue
            if i.kind in ("salu", "wait", "bar", "nop"): t += 4; continue
            if i.kind == "nopx": t += 4 * (int(i.text.split()[1]) + 1); continue
            if not head: t = max(t, base + blk)
            if i.kind in ("valu", "trans"): t += i.op.cost; lastvalu = t
            else:
                t = max(t, lastvalu + 8) + i.op.cost
        return t if head else max(t, base + 16)
    def hazards(fix):
        seq = []
        changed = False
        for w in range(-1, nm):
            l = code[stat(w)]
            j = 0
            while j < len(l):
                i = l[j]; x = i.op
                needn = 0
                if x is not None and x.kind not in ("salu", "bar"):
                    dist = 0
                    for p, st, pwin in reversed(seq):
                        y = p.op
                        if y is not None:
                            req = 0
                            raw = set(y.writes) & set(x.reads); waw = set(y.writes) & set(x.writes); war = set(y.reads) & set(x.writes)
                            if y.kind == "mfma":
                                if x.kind == "mfma":
                                    if set(y.writes) & set(x.reads[:8]): req = 8
                                elif raw or waw: req = 12 if y.key[0] == "on" else 8
                                elif war and x.kind in ("valu", "trans") and set(y.writes) & set(x.writes): req = 3
                            elif y.kind in ("valu", "trans"):
                                if raw and x.kind == "mfma": req = 2
                                if raw and "permlane" in x.text: req = 2
                                if raw and y.kind == "trans" and x.kind != "trans": req = max(req, 1)
                            elif y.kind in ("store", "dsw") and war and y.cost == 20: req = 2
                            elif y.kind == "salu" and "m0" in y.writes and x.kind == "dma": req = 1
                            if req - dist > needn: needn = req - dist; pw = pwin
                        dist += st
                        if dist >= 12: break
                if needn > 0:
                    assert fix, ("hazard", x.key)
                    for k in range(w, pw - 1, -1):
                        if k < 0: break
                        lk = code[stat(k)]
                        mi = [n for n, z in enumerate(lk) if z.kind == "mfma"][0]
                        places = []
                        if k > pw and (k < w or j > mi): places.append(mi + 1)
                        if k < w: places.append(len(lk))
                        ok_ = False
                        for pl in places:
                            tr = lk[:pl] + [Ins("s_nop 0", None, "nopx")] + lk[pl:]
                            if wcost(tr) == wcost(lk): lk[:] = tr; ok_ = True; break
                        if ok_: return True
                    l.insert(j, Ins(f"s_nop {needn-1}", None, "nopx")); changed = True
                    continue
                st = int(i.text.split()[1]) + 1 if i.text.startswith("s_nop") else 1
                seq.append((i, st, w)); seq = seq[-14:]
                j += 1
        return changed
    while hazards(True): pass
    lastw = {}; seen = set()
    for w in range(-1, nm):
        it = (w - L0) // per if L0 <= w < L1 else 0
        for i in code[stat(w)]:
            if i.op is None: continue
            x = keys[norm(i.op.key, 8 * it)]
            assert x.text == i.text, (x.text, i.text)
            assert x.key not in seen; seen.add(x.key)
            if not x.dummy:
                for r in x.reads:
                    assert lastw.get(r) == x.prod.get(r), ("dataflow", x.key, r, lastw.get(r), x.prod.get(r))
            for r in x.writes: lastw[r] = x.key
    assert all(x.key in seen or x.dummy for x in rp), [x.key for x in rp if x.key not in seen and not x.dummy][:5]
    est = {}
    for s in range(0, last + 1):
        e = rstart.get(s + 1, nm)
        est[s] = (sum(wcost(code[stat(w)]) for w in range(rstart[s], e)), (e - rstart[s]) * 16)
    cfg.est = est; cfg.est_head = wcost(code[-1], True)
    out = []
    cfg.spins = []
    E = out.append
    stamp_at = getattr(cfg, "stamp_steps", [])
    inv = {v: k for k, v in rstart.items()}
    for w in range(-1, nm):
        if stat(w) != w: continue
        if w == L0:
            if cfg.stamps and 7.9 in stamp_at:
                j = stamp_at.index(7.9); E(f"    s_memrealtime s[{64+2*j}:{65+2*j}]")
            E("L_loop:")
        if w in inv:
            E(f"; ---- step {inv[w]} ----")
            if cfg.stamps and inv[w] in stamp_at:
                j = stamp_at.index(inv[w]); E(f"    s_memrealtime s[{64+2*j}:{65+2*j}]")
        for i in code[w]:
            if i.op is not None and i.op.key[0] in cfg.kill and (L0 if cfg.kill_from is None else cfg.kill_from) <= w: E("    s_nop 0")
            else: E("    " + i.text)
            if cfg.pad and i.kind == "mfma" and L0 <= w < L1 and w % cfg.pad == 0: E("    s_nop 4")
            if i.text.startswith("s_cbranch_vccnz L_spin"):
                n = i.text.split("L_spin")[1]; E(f"L_back{n}:"); cfg.spins.append(n)
        if w == L0 + per - 1: E("    s_cbranch_scc0 L_loop")
    return "\n".join(out)

def fbits(x): return struct.unpack("<I", struct.pack("<f", x))[0]

def head(cfg):
    T = vS
    h = f"""    s_load_dwordx4 s[4:7], s[0:1], 0          ; q, k
    s_load_dwordx4 s[8:11], s[0:1], 16        ; v, out
"""
    if cfg.stamps: h += f"    s_load_dwordx2 s[56:57], s[0:1], {32 if cfg.stamps in ('dbg', 'skew') else 40}\n    s_memrealtime s[60:61]\n"
    h += f"""    v_lshrrev_b32 v{T}, 6, v0
    v_and_b32 v{T+4}, 63, v0                  ; lane
    v_readfirstlane_b32 s{sWave}, v{T}
    s_cmp_ge_u32 s2, 256
    s_cbranch_scc1 L_end
    v_and_b32 v{T+1}, 15, v0                  ; l & 15
    v_bfe_u32 v{T+2}, v0, 4, 2                ; l >> 4
    v_lshlrev_b32 v{vKl}, 4, v{T+4}           ; lane*16
    s_and_b32 s{sTmp}, s2, 7
    s_lshr_b32 s{sTmp+1}, s2, 3
    s_lshl_b32 s{sTmp}, s{sTmp}, 5
    s_add_u32 s{sTmp}, s{sTmp}, s{sTmp+1}
    s_lshl2_add_u32 s{sTmp+2}, s{sTmp}, s{sWave}
    s_lshl_b32 s{sTmp+2}, s{sTmp+2}, 16       ; q/o byte offset of this wave
    s_lshr_b32 s{sTmp}, s{sTmp}, 2
    s_lshl_b32 s{sTmp}, s{sTmp}, 17           ; k/v byte offset of the group
    s_lshl_b32 s{sMq}, s{sWave}, 12           ; wave*4096
    s_add_u32 s{sTmp+3}, s{sTmp}, s{sMq}
    s_sub_u32 s{sK_+2}, 0x20000, s{sMq}
    s_mov_b32 s{sK_+3}, 0x20000
    s_mov_b32 s{sQ_+3}, s{sK_+3}
    s_mov_b32 s{sQ_+2}, 0x10000
"""
    if cfg.rot:
        h += f"""    s_bfe_u32 s{sTmp+4}, s2, 0x20003
    s_mul_i32 s{sTile}, s{sTmp+4}, {cfg.rot*16384}
    s_and_b32 s{sTile}, s{sTile}, 0x1ffff
    s_add_u32 s{sTile+1}, s{sTile}, 16384
    s_and_b32 s{sTile+1}, s{sTile+1}, 0x1ffff
"""
    else: h += f"    s_mov_b32 s{sTile}, 0\n    s_movk_i32 s{sTile+1}, 0x4000\n"
    h += f"""    s_mov_b32 s{sQo}, 0
    v_lshlrev_b32 v{T+3}, 8, v{T+2}           ; (l>>4)*256
    v_xor_b32 v{T+5}, v{T+1}, v{T+2}          ; (l&15) ^ (l>>4)
    v_lshl_add_u32 v{vQd}, v{T+5}, 4, v{T+3}
    s_waitcnt lgkmcnt(0)
    s_add_u32 s{sK_}, s6, s{sTmp+3}
    s_addc_u32 s{sK_+1}, s7, 0
    s_add_u32 s{sQ_}, s4, s{sTmp+2}
    s_addc_u32 s{sQ_+1}, s5, 0
"""
    if cfg.stamps: h += "    s_memrealtime s[62:63]\n"
    return h

def head2(cfg):
    c = math.log2(math.e) / math.sqrt(128.0)
    T = vS
    h = f"""    ; code prefetch into L2: 16 lines per wave, 8 KiB per workgroup
    s_getpc_b64 s[{sC_}:{sC_+1}]
L_pc:
    s_mov_b32 s{sC_+2}, L_slow - L_pc
    s_mov_b32 s{sC_+3}, 0x20000
    s_bfe_u32 s{sTmp+1}, s2, 0x30003
    s_lshl2_add_u32 s{sTmp+1}, s{sTmp+1}, s{sWave}
    s_lshl_b32 s{sTmp+1}, s{sTmp+1}, 11
    v_lshlrev_b32 v{vJ}, 5, v{T+4}
    v_add_u32 v{vJ}, s{sTmp+1}, v{vJ}
@CPF
    s_add_u32 s{sV_}, s8, s{sTmp}
    s_addc_u32 s{sV_+1}, s9, 0
    s_add_u32 s{sO_}, s10, s{sTmp+2}
    s_addc_u32 s{sO_+1}, s11, 0
    s_mov_b32 s{sV_+2}, 0x20000
    s_mov_b32 s{sV_+3}, 0x20000
    s_mov_b32 s{sO_+2}, 0x10000
    s_mov_b32 s{sO_+3}, 0x20000
"""
    for t in range(2, 8):
        if cfg.rot: h += f"    s_add_u32 s{sTile+t}, s{sTile+t-1}, 16384\n    s_and_b32 s{sTile+t}, s{sTile+t}, 0x1ffff\n"
        else: h += f"    s_mov_b32 s{sTile+t}, {t*16384}\n"
    h += f"""    s_lshr_b32 s{sTmp+1}, s{sWave}, 1
    s_lshl3_add_u32 s{sTmp+4}, s{sTmp+1}, s{sMq}
    s_add_u32 s{sM0}, s{sTmp+4}, {VB}
    s_add_u32 s{sM0+1}, s{sTmp+4}, {VB + VSTR}
    s_add_u32 s{sM0+2}, s{sTmp+4}, {VB + 2 * VSTR}
    s_add_u32 s{sM0+3}, s{sTmp+4}, {VB + 3 * VSTR}
    s_mov_b32 s{sOo}, 0
    s_mov_b32 s{sExp}, 0
    s_mov_b32 s{sCnt}, 2
    s_mov_b32 s{sScale}, {fbits(c):#x}
    s_mov_b32 s{sMask}, 0xffff0000
    s_mov_b32 s{sPerm}, 0x07060302
    ; K fragment read addresses: g*256 + (row ^ g ^ 4*(ds&1))*16
    v_mov_b32 v{vKr}, v{vQd}
    v_xor_b32 v{vKr+1}, 64, v{vQd}
    v_add_u32 v{vKr+2}, {0x10000 - KSH}, v{vKr}
    v_add_u32 v{vKr+3}, {0x10000 - KSH}, v{vKr+1}
    s_lshl_b32 s{sTmp+1}, s{sTmp+1}, 6
    s_and_b32 s{sTmp+4}, s{sWave}, 1
    s_lshl_b32 s{sTmp+5}, s{sTmp+4}, 13
    v_and_b32 v{T+6}, 7, v{T+5}
    v_lshlrev_b32 v{T+7}, 8, v{T+1}           ; (l&15)*256
    v_lshl_add_u32 v{T+6}, v{T+6}, 4, v{T+7}
    v_xor_b32 v{T+6}, s{sTmp+1}, v{T+6}
    v_add_u32 v{vKw}, s{sTmp+5}, v{T+6}
    v_cmp_gt_u32 vcc, 1024, v{vKw}
    v_add_u32 v{T+6}, {3 * 16384}, v{vKw}
    v_and_b32 v{T+8}, 3, v{T+5}
    v_cndmask_b32 v{vKw+1}, v{vKw}, v{T+6}, vcc
    v_lshl_add_u32 v{T+6}, v{T+8}, 4, v{T+7}
    v_add_u32 v{vQr}, s{sMq}, v{T+6}
    ; V DMA source offsets: row r=l>>4, 64-byte unit (c16>>2)^(key&3)
    v_lshlrev_b32 v{T+6}, 2, v{T+2}
    v_xor_b32 v{T+6}, v{T+6}, v{T+1}
    v_lshl_add_u32 v{T+6}, v{T+6}, 4, v{T+3}
    v_add_u32 v{vD0}, s{sMq}, v{T+6}
    ; V transposed-read addresses: lane = 16g+4r+c reads 8 bytes of chunk c of unit (db>>1)^r of key 32(g&1)+8kb+4(g>>1)+r
    v_bfe_u32 v{T+8}, v{T+4}, 2, 2            ; r
    v_lshlrev_b32 v{T+6}, 4, v{T+1}           ; r*64 + c*16
    v_lshl_add_u32 v{T+6}, v{T+8}, 8, v{T+6}
    v_lshrrev_b32 v{T+8}, 1, v{T+2}
    v_lshl_add_u32 v{T+6}, v{T+8}, 10, v{T+6}
    v_and_b32 v{T+8}, 1, v{T+2}
    v_mul_u32_u24 v{T+8}, 8200, v{T+8}
    v_add_u32 v{T+8}, {VB}, v{T+8}
    v_and_b32 v{T+9}, 3, v{T+4}
"""
    for m in range(4):
        if m: h += f"    v_xor_b32 v{T+10}, {m * 64}, v{T+6}\n"
        h += f"    v_add_u32 v{vV+m}, v{T+8}, v{T+10 if m else T+6}\n"
    h += f"    v_lshl_add_u32 v{vO}, v{T+2}, 4, v{T+7}\n"
    h += f"""    ; row-sum operand: rows 4i and 4i+1 are ones; they pick elements 0,1 and 2,3 of every group of four keys
    v_cmp_eq_u32 vcc, 1, v{T+9}
    v_mov_b32 v{T+6}, 0x44444444
    v_mov_b32 v{T+8}, 0xeeeeeeee
    v_cndmask_b32 v{vIdx}, v{T+6}, v{T+8}, vcc
    v_cmp_gt_u32 vcc, {0 if cfg.ones_rows == 0 else 2}, v{T+9 if cfg.ones_rows == 8 else T+1}
    v_mov_b32 v{T+6}, 0x3f803f80
    v_mov_b32 v{vChk}, {'-1' if cfg.force_slow else '0'}
    v_cndmask_b32 v{T+6}, 0, v{T+6}, vcc
    v_lshlrev_b32 v{vCnt}, 2, v{T+4}
    v_add_u32 v{vCnt}, 0x4000, v{vCnt}
    v_mov_b32 v{vOne}, v{T+6}
    v_mov_b32 v{vOne+1}, v{T+6}
    v_mov_b32 v{vOne+2}, v{T+6}
    v_mov_b32 v{vOne+3}, v{T+6}
    v_mov_b32 v{vCone}, 1
    v_mov_b32 v{vPoll}, 0
"""
    return h

def tail(cfg):
    lim = (127 + cfg.limit_exp) << 23
    t = ""
    if cfg.stamps == "skew":
        t += """    s_mov_b32 s58, 256
    s_mov_b32 s59, 0x20000
    s_not_b32 s64, s60
    v_mov_b32 v64, s64
    v_mov_b32 v60, 0
    s_mov_b64 exec, 1
    s_cmp_lg_u32 s3, 0
    s_cbranch_scc1 L_sk1
    buffer_atomic_umax v64, v60, s[56:59], 0 offen
    s_waitcnt vmcnt(0)
L_sk1:
    s_memrealtime s[72:73]
    s_waitcnt lgkmcnt(0)
    s_sub_u32 s72, s72, s60
    s_cmp_lt_u32 s72, 8000
    s_cbranch_scc1 L_sk1
    buffer_load_dword v64, v60, s[56:59], 0 offen sc0 sc1
    s_waitcnt vmcnt(0)
    v_readfirstlane_b32 s64, v64
    s_nop 4
    s_not_b32 s64, s64
L_sk2:
    s_memrealtime s[72:73]
    s_waitcnt lgkmcnt(0)
    s_sub_u32 s72, s72, s64
    s_cmp_lt_u32 s72, 10000
    s_cbranch_scc1 L_sk2
    s_mov_b64 exec, -1
"""
    elif cfg.stamps == "spin":
        if not getattr(cfg, "stamp_steps", []): t += "    s_waitcnt vmcnt(0)\n    s_memrealtime s[64:65]\n"
        t += f"""    s_waitcnt lgkmcnt(0)
    {"s_sub_u32 s64, s66, s64" if len(getattr(cfg, "stamp_steps", [])) == 2 else "s_sub_u32 s64, s64, s60"}
    s_mul_i32 s64, s64, {getattr(cfg, "spin_mul", 0)}
    s_add_u32 s64, s64, 10000
L_spin:
    s_memrealtime s[72:73]
    s_waitcnt lgkmcnt(0)
    s_sub_u32 s72, s72, s60
    s_cmp_lt_u32 s72, s64
    s_cbranch_scc1 L_spin
"""
    elif cfg.stamps:
        e0 = 88 if cfg.stamps == "c16" else 72
        t += f"""    s_memrealtime s[{e0}:{e0+1}]
    s_waitcnt vmcnt(0)
    s_memrealtime s[{e0+2}:{e0+3}]
    s_mov_b32 s58, 0x10000000
    s_mov_b32 s59, 0x20000
    s_lshl_b32 s46, s2, 2
    s_add_u32 s46, s46, s3
    s_lshl_b32 s46, s46, 6
    s_waitcnt lgkmcnt(0)
"""
        for i in range(16): t += f"    v_mov_b32 v{64+i}, s{60+(2*i if cfg.stamps == 'c16' else i)}\n"
        t += "    v_mov_b32 v60, 0\n    s_mov_b64 exec, 1\n"
        if cfg.stamps == "dbg":
            t += "    s_mov_b32 s58, 256\n"
            for i in range(8):
                t += f"    v_not_b32 v{65+2*i}, v{64+2*i}\n"
            for i in range(16): t += f"    buffer_atomic_umax v{64+i}, v60, s[56:59], 0 offen offset:{4*i}\n"
        else:
          for i in range(4): t += f"    buffer_store_dwordx4 v[{64+4*i}:{67+4*i}], v60, s[56:59], s46 offen offset:{16*i}\n"
        t += "    s_mov_b64 exec, -1\n"
    t += f"""    v_cmp_lt_u32 vcc, {lim:#x}, v{vChk}
    s_nop 4
    s_cbranch_vccnz L_slow
L_end:
    s_endpgm
"""
    for n in cfg.spins:
        t += f"""L_spin{n}:
    ds_read_b32 v{vPoll}, v{vCnt}
    s_waitcnt lgkmcnt(0)
    v_cmp_gt_u32 vcc, s{sExp}, v{vPoll}
    s_nop 4
    s_cbranch_vccnz L_spin{n}
    s_branch L_back{n}
"""
    S0, S1, M, T = 16, 20, 24, 25
    vQ = vQd; vKb = vKr + 2
    q = lambda ds: at(aQ + 4 * ds, 4)
    k = lambda j, ds: at(aK + j * 16 + 4 * ds, 4)
    t += f"""; Fallback: a row sum left [2^-{cfg.limit_exp}, 2^{cfg.limit_exp}] (or is not finite), so exp without an offset was not safe.
L_slow:
    s_waitcnt vmcnt(0) lgkmcnt(0)
    s_barrier                                 ; the other waves are done with LDS (ended or here)
    s_mov_b32 s{sQo}, 0
    s_lshl_b32 s{sTmp}, s{sWave}, 12
    s_lshl_b32 s{sTmp+1}, s{sWave}, 13
    s_add_u32 s{sTmp+2}, s{sTmp+1}, 0x20000
    s_add_u32 s{sTmp+3}, s{sTmp+2}, 4096
    v_subrev_u32 v{vD0}, s{sTmp}, v{vD0}
    v_bfe_u32 v{T}, v{vKl}, 4, 4              ; l & 15
    v_lshrrev_b32 v{T+1}, 8, v{vKl}           ; l >> 4
    v_lshlrev_b32 v{vQ}, 4, v{T+1}
    v_lshl_add_u32 v{vQ}, v{T}, 8, v{vQ}
    v_xor_b32 v{T+1}, v{T}, v{T+1}
    v_and_b32 v{T+1}, 7, v{T+1}
    v_lshlrev_b32 v{T+1}, 4, v{T+1}
    v_lshl_add_u32 v{vKw}, v{T}, 8, v{T+1}
    v_xor_b32 v{vKw+1}, 64, v{vKw}
    v_lshrrev_b32 v{T+1}, 6, v{vKl}           ; 4g+r
    v_lshlrev_b32 v{T+1}, 8, v{T+1}
    v_lshl_add_u32 v{T+1}, v{T}, 4, v{T+1}
    v_add_u32 v{vV}, s{sTmp+2}, v{T+1}
    v_xor_b32 v{vV+1}, 64, v{vV}
    v_xor_b32 v{vV+2}, 128, v{vV}
    v_xor_b32 v{vV+3}, 192, v{vV}
"""
    t += f"""    s_sub_u32 s{sK_}, s{sK_}, s{sTmp}
    s_subb_u32 s{sK_+1}, s{sK_+1}, 0
    s_mov_b32 s{sK_+2}, 0x20000
    s_mov_b32 s{sCnt}, 0
L_skld:
"""
    for i in range(4): t += f"    buffer_load_dwordx4 {vt(vOa+4*i,4)}, v{vKl}, s[{sK_}:{sK_+3}], s{sCnt} offen offset:{i*1024}\n"
    t += "    s_waitcnt vmcnt(0)\n"
    for x in range(vOa, vOa + 16):
        t += f"""    v_lshlrev_b32 v{T}, 16, v{x}
    v_and_b32 v{x}, s{sMask}, v{x}
    v_mul_f32 v{T}, s{sScale}, v{T}
    v_mul_f32 v{x}, s{sScale}, v{x}
    v_cvt_pk_bf16_f32 v{x}, v{T}, v{x}
"""
    for i in range(4): t += f"    ds_write_b128 v{vKw+(i&1)}, {vt(vOa+4*i,4)} offset:{(i>>1)*128}\n"
    t += f"""    s_waitcnt lgkmcnt(0)
    v_add_u32 v{vKw}, 4096, v{vKw}
    v_add_u32 v{vKw+1}, 4096, v{vKw+1}
    s_add_u32 s{sCnt}, s{sCnt}, 4096
    s_cmp_lt_u32 s{sCnt}, 0x20000
    s_cbranch_scc1 L_skld
"""
    t += "L_sblk:\n"
    for ds in range(4): t += f"    buffer_load_dwordx4 {q(ds)}, v{vQ}, s[{sQ_}:{sQ_+3}], s{sQo} offen offset:{ds*64}\n"
    t += f"""    v_mov_b32 v{M}, 0xff800000
    v_mov_b32 v{vKb}, v{vKr}
    v_mov_b32 v{vKb+1}, v{vKr+1}
    s_mov_b32 s{sCnt}, 32
    s_waitcnt vmcnt(0)
L_smax:
"""
    for ds in range(4): t += f"    ds_read_b128 {k(0,ds)}, v{vKb+(ds&1)} offset:{ds*1024}\n"
    t += "    s_waitcnt lgkmcnt(0)\n"
    for ds in range(4): t += f"    v_mfma_f32_16x16x32_bf16 {vt(S0,4)}, {k(0,ds)}, {q(ds)}, {'0' if ds == 0 else vt(S0,4)}\n"
    t += f"""    s_nop 7
    v_max3_f32 v{M}, v{M}, v{S0}, v{S0+1}
    v_max3_f32 v{M}, v{M}, v{S0+2}, v{S0+3}
    v_add_u32 v{vKb}, 4096, v{vKb}
    v_add_u32 v{vKb+1}, 4096, v{vKb+1}
    s_sub_u32 s{sCnt}, s{sCnt}, 1
    s_cmp_lg_u32 s{sCnt}, 0
    s_cbranch_scc1 L_smax
    v_mov_b32 v{T}, v{M}
    s_nop 1
    v_permlane16_swap_b32 v{M}, v{T}
    s_nop 1
    v_max_f32 v{M}, v{M}, v{T}
    v_mov_b32 v{T}, v{M}
    s_nop 1
    v_permlane32_swap_b32 v{M}, v{T}
    s_nop 1
    v_max_f32 v{M}, v{M}, v{T}
"""
    for r in range(4): t += f"    v_mov_b32 v{vL+r}, 0\n"
    for r in range(32): t += f"    v_mov_b32 v{vOa+r}, 0\n"
    t += f"""    v_mov_b32 v{vKb}, v{vKr}
    v_mov_b32 v{vKb+1}, v{vKr+1}
    s_mov_b32 s{sCnt}, 0
L_skey:
    s_mov_b32 m0, s{sTmp+2}
    s_mov_b32 s{sTmp+5}, s{sCnt}
    s_add_u32 s{sTmp+4}, s{sTmp+5}, 4096
"""
    for i in range(4): t += f"    buffer_load_dwordx4 v{vD0}, s[{sV_}:{sV_+3}], s{sTmp+5} offen offset:{i*1024} lds\n"
    t += f"    s_mov_b32 m0, s{sTmp+3}\n    s_nop 0\n"
    for i in range(4): t += f"    buffer_load_dwordx4 v{vD0}, s[{sV_}:{sV_+3}], s{sTmp+4} offen offset:{i*1024} lds\n"
    for j in range(2):
        for ds in range(4): t += f"    ds_read_b128 {k(j,ds)}, v{vKb+(ds&1)} offset:{j*4096+ds*1024}\n"
    t += "    s_waitcnt vmcnt(0) lgkmcnt(0)\n"
    for db in range(8):
        for h in range(2): t += f"    ds_read_b64_tr_b16 {at(aV+db*4+2*h,2)}, v{vV+(db>>1)} offset:{h*4096+(db&1)*8}\n"
    for j, S in enumerate((S0, S1)):
        for ds in range(4): t += f"    v_mfma_f32_16x16x32_bf16 {vt(S,4)}, {k(j,ds)}, {q(ds)}, {'0' if ds == 0 else vt(S,4)}\n"
    t += "    s_nop 7\n"
    for r in range(8): t += f"    v_sub_f32 v{S0+r}, v{S0+r}, v{M}\n"
    for r in range(8): t += f"    v_exp_f32 v{S0+r}, v{S0+r}\n"
    t += "    s_nop 0\n"
    for r in range(4): t += f"    v_cvt_pk_bf16_f32 v{vP+r}, v{S0+2*r}, v{S0+2*r+1}\n"
    t += f"    v_add_u32 v{vKb}, 8192, v{vKb}\n    v_add_u32 v{vKb+1}, 8192, v{vKb+1}\n    s_waitcnt lgkmcnt(0)\n    s_nop 0\n"
    t += f"    v_mfma_f32_16x16x32_bf16 {vt(vL,4)}, {vt(vOne,4)}, {vt(vP,4)}, {vt(vL,4)}\n"
    for db in range(8): t += f"    v_mfma_f32_16x16x32_bf16 {vt(vOa+4*db,4)}, {at(aV+db*4,4)}, {vt(vP,4)}, {vt(vOa+4*db,4)}\n"
    t += f"""    s_add_u32 s{sCnt}, s{sCnt}, 8192
    s_cmp_lt_u32 s{sCnt}, 0x20000
    s_cbranch_scc1 L_skey
    s_nop 7
    v_rcp_f32 v{vR}, v{vL}
    s_nop 0
"""
    for r in range(32): t += f"    v_mul_f32 v{vOa+r}, v{vOa+r}, v{vR}\n"
    for db in range(8):
        o = vOa + 4 * db; d = vP + 2 * db
        t += f"    v_cvt_pk_bf16_f32 v{d}, v{o}, v{o+1}\n    v_cvt_pk_bf16_f32 v{d+1}, v{o+2}, v{o+3}\n"
    if cfg.store_x4:
        t += "    s_nop 1\n"
        for db in range(0, 8, 2):
            d = vP + 2 * db
            if not cfg.vperm: t += f"    v_permlane16_swap_b32 v{d}, v{d+2}\n    v_permlane16_swap_b32 v{d+1}, v{d+3}\n"
            t += f"    buffer_store_dwordx4 {vt(d,4)}, v{vO}, s[{sO_}:{sO_+3}], s{sQo} offen offset:{db*32}\n"
    else:
        for db in range(8): t += f"    buffer_store_dwordx2 {vt(vP+2*db,2)}, v{vO}, s[{sO_}:{sO_+3}], s{sQo} offen offset:{db*32}\n"
    t += f"""    s_add_u32 s{sQo}, s{sQo}, 4096
    s_cmp_lt_u32 s{sQo}, 0x10000
    s_waitcnt vmcnt(0)
    s_cbranch_scc1 L_sblk
    s_endpgm
"""
    return t

HDR = """; Kernarg layout for this problem (48 bytes, ptrs only, base s[0:1]):
;   offset   0: d_in[0] q  shape=(16, 32, 512, 128) dtype=bfloat16
;   offset   8: d_in[1] k  shape=(16, 4, 512, 128) dtype=bfloat16
;   offset  16: d_in[2] v  shape=(16, 4, 512, 128) dtype=bfloat16
;   offset  24: d_out     shape=(16, 32, 512, 128) dtype=bfloat16
;   offset  32: d_debug   256 bytes
;   offset  40: d_ws      268435456 bytes workspace (unused)
; @launch grid=(256,1,1) block=(256,1,1) lds=163840
"""

def full(cfg):
    body = generate(cfg)
    r = full2(cfg, body)
    if getattr(cfg, "spin_cyc", 0):
        r = r.replace("s_memrealtime s[64:65]", "s_memtime s[64:65]").replace("s_memrealtime s[66:67]", "s_memtime s[66:67]").replace("s_memrealtime s[62:63]", "s_memtime s[62:63]")
        r = r.replace("s_sub_u32 s64, s64, s60", "s_sub_u32 s64, s64, s62").replace("s_mul_i32 s64, s64, 0", "s_lshr_b32 s64, s64, 1")
    if cfg.stamps in ("cyc", "c16"): r = r.replace("s_memrealtime", "s_memtime")
    if cfg.stamps == "both":
        import re
        r = re.sub(r"    s_memrealtime s\[(\d+):(\d+)\]", lambda m: f"    s_memtime s[{m.group(1)}:{m.group(2)}]\n    s_memrealtime s[{int(m.group(1))+20}:{int(m.group(2))+20}]", r)
        for i in range(8): r = r.replace(f"v_mov_b32 v{65+2*i}, s{61+2*i}\n", f"v_mov_b32 v{65+2*i}, s{80+2*i}\n")
    return r

def full2(cfg, body):
    return HDR + f""".amdgcn_target "amdgcn-amd-amdhsa--gfx950"
.text
.globl {KN}
.p2align 8
.type {KN},@function
{KN}:
""" + head(cfg) + body + "\n" + tail(cfg) + f""".section .rodata,"a"
.p2align 6
.amdhsa_kernel {KN}
  .amdhsa_next_free_vgpr 512
  .amdhsa_next_free_sgpr 102
  .amdhsa_accum_offset 256
  .amdhsa_group_segment_fixed_size 0
  .amdhsa_kernarg_size 48
  .amdhsa_user_sgpr_count 2
  .amdhsa_user_sgpr_kernarg_segment_ptr 1
  .amdhsa_system_sgpr_workgroup_id_x 1
.end_amdhsa_kernel
"""

if __name__ == "__main__":
    cfg = Cfg()
    name = sys.argv[1]
    for a in sys.argv[2:]:
        k, v = a.split("=", 1)
        try: v = eval(v)
        except Exception: pass
        setattr(cfg, k, v)
    s = full(cfg)
    open(name, "w").write(s)
    tot = sum(v[0] for v in cfg.est.values())
    print(name, "est head", cfg.est_head, "total", tot, "mfma", sum(v[1] for v in cfg.est.values()), file=sys.stderr)
    print(" ".join(f"{s}:{v[0]}/{v[1]}" for s, v in cfg.est.items() if s < 16 or s >= 32), file=sys.stderr)
```

```python
import sys, math, struct
KN = "standalone__gqa_softmax__near_ridge_kernel"

class Cfg:
    sigma = (0, 2, 4, 6)
    beta = 0.80
    beta_small = 0.55
    ds_lat = 9
    mv_lat = 4
    store_x4 = True
    q_nt = "nt"
    st_pol = "sc0 sc1"
    k_pol = "nt"
    v_pol = ""
    v_pol0 = "nt"
    rot = 0
    split_from = 3
    split_min_u = 2
    arr_gap = 10
    vm_gap = 5
    smooth = True
    stamps = False
    code_pf = True
    plan = "K0 Q0 C K1 W00 V0 S0 B r0 r1 R0 K2 S1@0.0 V1@0.0 Q1@0.5 K3@1.0 V2@1.3 K4@1.6 R1@2.0 Q2@2.2 V3@2.3 K5@2.b K6@3.b R2@3.b Q3@4.0 K7@4.b R3@5.b Q4@6.0"
    vperm = True
    st_last = "sc0 sc1"
    st_last_from = 38
    ones_rows = 8
    trunc = False
    fake_st = False
    fake_v = False
    fake_m0 = 0
    deep = True
    tail_dl = 1.0
    betas = {0: 0.95, 1: 0.9, 2: 0.9, 3: 0.8}
    arr_gap_small = 4
    k_up = 1
    force_slow = False
    nop_ds = True
    ds_gap = 2
    ds_cap = 1024
    kill_from = None
    pad = 0
    kill = ()
    limit_exp = 32

vQd, vO, vQr, vCnt, vD0, vD1, vChk = 1, 2, 3, 4, 5, 6, 7
vKl = 0
vV = 8
vS = 16
vL = 32
vR = 48
vKw = 50
vT = 52
NT = 5
vIdx = 57
vPoll = 58
vJ = 59
vKr = 60
vP = 64
vOa = 128
aQ, aOne, aCone, aKp1, aK, aKp, aV = 0, 64, 68, 72, 80, 128, 192
sQ_, sK_, sV_, sO_, sC_ = 12, 16, 20, 24, 28
sTile = 32
sM0 = 96
sQo, sOo, sCnt, sScale, sWave = 42, 43, 44, 45, 3
sTmp = 46
sMq, sExp, sMask, sPerm = 52, 53, 54, 55

def vr(b, n=1): return [f"v{b+i}" for i in range(n)]
def ar(b, n=1): return [f"a{b+i}" for i in range(n)]
def vt(b, n): return f"v[{b}:{b+n-1}]"
def at(b, n): return f"a[{b}:{b+n-1}]"

class Op:
    def __init__(s, key, text, kind, reads, writes, cost=None, earliest=None, dummy=False, anchor=None, maxdl=None):
        s.key, s.text, s.kind, s.reads, s.writes = key, text, kind, list(reads), list(writes)
        s.cost = {"mfma": 0, "trans": 8, "valu": 4, "ds": 4, "dsw": 20, "load": 8, "dma": 8, "store": 12, "salu": 0, "bar": 0, "chk": 0}[kind] if cost is None else cost
        s.cnt = {"ds": "lgkm", "dsw": "lgkm", "load": "vm", "dma": "vm", "store": "vm"}.get(kind)
        s.earliest = earliest
        s.maxdl = maxdl
        s.dummy = dummy
        s.anchor = anchor
        s.preds = []; s.succs = []; s.win = None; s.pos = None; s.m = None
        s.prod = {}

def build(cfg, s0, s1, steady):
    sg = cfg.sigma
    NP = 4
    last = 32 + max(sg)
    def qk_on(s, u): return steady or (sg[u] <= s < sg[u] + 8 * NP)
    def pv_on(s, u): return steady or (sg[u] + 1 <= s < sg[u] + 8 * NP + 1)
    def order_qk(s, kb):
        us = [u for u in range(4) if qk_on(s, u)]
        if kb == 3:
            f = [u for u in us if (s - sg[u]) % 8 == 7]
            us = f + [u for u in us if u not in f]
        if kb == 0:
            f = [u for u in us if (s - sg[u]) % 8 == 0]
            us = [u for u in us if u not in f] + f
        return us
    prog = []
    A = prog.append
    chain = 0
    pend_q = []
    def qload(key, earliest=None, dummy=False):
        A(Op(key + ("m0",), f"s_mov_b32 m0, s{sMq}", "salu", [], ["m0"], dummy=dummy))
        for i in range(4):
            A(Op(key + (i,), f"buffer_load_dwordx4 v{vQd}, s[{sQ_}:{sQ_+3}], s{sQo} offen offset:{i*1024} {cfg.q_nt} lds".replace("  ", " "), "dma",
                 [f"s{sQo}", "m0"] + [f"Qrd{d}" for d in range(4)], [f"Qs{i}"], earliest=earliest, dummy=dummy))
        A(Op(key + ("inc",), f"s_add_u32 s{sQo}, s{sQo}, 4096", "salu", [f"s{sQo}"], [f"s{sQo}"], dummy=dummy))
    def qread(key, u, earliest=None, dummy=False):
        for ds in range(4):
            d = aQ + 16 * u + 4 * ds
            A(Op(key + (ds,), f"ds_read_b128 {at(d,4)}, v{vQr} offset:{ds*64}", "ds", [f"Qs{i}" for i in range(4)], ar(d, 4) + [f"Qrd{ds}"], earliest=earliest, dummy=dummy))
    def kfrag(t, kb, ds):
        if t == 0: return aKp + kb * 16 + ds * 4
        if (t, kb, ds) == (1, 0, 0): return aKp1
        return aK + (((t - 1) * 4 + kb) % 3) * 16 + ds * 4
    def vslot(sv):
        if not steady and cfg.deep and sv in (2, 3, 34, 35): return sv & 1
        return 2 + (sv & 1)
    def vprev(sv):
        if vslot(sv) < 2: return ["Kret67"] if sv > 8 else []
        p = sv - 2
        while p >= 0 and vslot(p) != vslot(sv): p -= 2
        return [f"Vret{p}"] if p >= 0 else []
    vissued = set()
    def vdma(sv, earliest=None):
        vissued.add(sv)
        A(Op(("m0", sv), f"s_mov_b32 m0, s{sM0 + vslot(sv)}", "salu", ["setup~"], ["m0"]))
        for i in range(4):
            A(Op(("dma", sv, i), f"buffer_load_dwordx4 v{vD0 + (i & 1)}, s[{sV_}:{sV_+3}], s{sTile + sv % 8} offen offset:{i*1024} {cfg.v_pol0 if (not steady and sv < 8) else cfg.v_pol} lds".replace("  ", " "), "dma",
                 ["m0"] + vprev(sv), [f"Vd{sv}_{i}"], earliest=earliest))
    kstage = {}
    def kregs(t):
        u = KST[t][0]; h = KST[t][1]
        if h == "P": return [vP + (ds >> 1) * 32 + u * 8 + (ds & 1) * 4 for ds in range(4)]
        return [vOa + (h * 4 + ds) * 16 + u * 4 for ds in range(4)]
    KST = [(1, 0), (1, 1), (2, 0), (2, 1), (3, 0), (3, 1), (3, "P"), (3, 0)]
    if cfg.k_up == 8: KST = [(0, 0), (0, 1), (1, 0), (1, 1), (2, 0), (2, 1), (3, 0), (3, 1)]
    def kload(t, earliest=None):
        for ds, r in enumerate(kregs(t)):
            A(Op(("kld", t, ds), f"buffer_load_dwordx4 {vt(r,4)}, v{vKl}, s[{sK_}:{sK_+3}], s{sTile + t} offen offset:{ds*1024} {cfg.k_pol}".rstrip(), "load",
                 [], vr(r, 4), earliest=earliest))
    tmpc = [0]
    def kscale(t, earliest=None):
        for ds, r in enumerate(kregs(t)):
            for j in range(4):
                x = r + j; tm = vT + tmpc[0] % NT; tmpc[0] += 1
                k = ("ksc", t, ds, j)
                A(Op(k + (0,), f"v_lshlrev_b32 v{tm}, 16, v{x}", "valu", vr(x), vr(tm), earliest=earliest))
                A(Op(k + (1,), f"v_and_b32 v{x}, s{sMask}, v{x}", "valu", vr(x), vr(x), earliest=earliest))
                A(Op(k + (2,), f"v_mul_f32 v{tm}, s{sScale}, v{tm}", "valu", vr(tm), vr(tm)))
                A(Op(k + (3,), f"v_mul_f32 v{x}, s{sScale}, v{x}", "valu", vr(x), vr(x)))
                A(Op(k + (4,), f"v_cvt_pk_bf16_f32 v{x}, v{tm}, v{x}", "valu", vr(tm) + vr(x), vr(x)))
            tl = 3 if t == 0 else t
            if t == 4 and ds < 2:
                A(Op(("kwa", t, ds), f"v_add_u32 v{vKw + ds}, 0x10000, v{vKw + ds}", "valu", vr(vKw + ds), vr(vKw + ds)))
            A(Op(("kw", t, ds), f"ds_write_b128 v{vKw + (ds & 1)}, {vt(r,4)} offset:{(tl & 3) * 16384 + (ds >> 1) * 128}", "dsw",
                 vr(r, 4) + vr(vKw + (ds & 1)) + (["K0dead"] if t == 3 else []) + ([f"Vret{t-4}"] if t >= 6 and cfg.deep else []), [f"Kw{t}_{ds}"]))
    nmf = [0]
    kpub = set()
    def kread1(s, t, kb):
        for ds in range(4):
            perm = t == 0 or (t, kb, ds) == (1, 0, 0)
            if perm and (steady or s > 7): continue
            d = kfrag(t, kb, ds); tl = 3 if t == 0 else t
            A(Op(("kr", s, kb, ds), f"ds_read_b128 {at(d,4)}, v{vKr + 2 * (tl >> 2) + (ds & 1)} offset:{(tl & 3) * 16384 + kb * 4096 + ds * 1024}", "ds",
                 [] if (steady or s > 7) else [f"Kok{t}"], ar(d, 4) + ([] if not perm else [f"Kr0_{kb}_{ds}" if t == 0 else "Kr1"])))
    kdone0 = set(); kscaled = []
    later = {}
    if not steady:
        H = (-1, 0)
        def issue(item, when):
            n0 = len(prog)
            n = int(item[1:]) if item[1:].isdigit() else None
            if item[0] == "K": kload(n, when)
            elif item[0] == "Q": qload(("q0", n) if n < 4 else ("q", 8, 0), when)
            elif item[0] == "R": qread(("qr0", n), n, when)
            elif item[0] == "V": vdma(n, when)
            elif item[0] == "S": kscale(n, when); kscaled.append(n)
            elif item[0] == "r": kread1(0, 0, n); kdone0.add(n)
            elif item[0] == "W":
                A(Op(("wt", 0, item), "s_nop 0", "valu", vr(kregs(int(item[1]))[int(item[2])], 4), []))
            elif item[0] == "T":
                A(Op(("ts", 0, item), f"s_memrealtime s[{64+2*n}:{65+2*n}]", "valu", [], []))
            elif item[0] == "X":
                A(Op(("wt", 0, item), "s_nop 0", "valu", [f"Qs{i}" for i in range(4)], []))
            elif item[0] == "B":
                pub = [t for t in kscaled if t not in kpub]; kpub.update(pub)
                A(Op(("bar", -1), "s_barrier", "bar", [f"Kw{t}_{ds}" for t in pub for ds in range(4)], [f"Kok{t}" for t in pub], anchor=H))
            elif item[0] == "C":
                pf = f"buffer_load_dword v{vJ}, v{vJ}, s[{sC_}:{sC_+3}], 0 offen"
                A(Op(("cpf", 0), head2(cfg).replace("@CPF", "    " + pf).strip(), "load", [], ["junk"], earliest=when, cost=300))
                A(Op(("setup", 0), "s_nop 0", "valu", [], ["setup~", f"s{sExp}"]))
            if when == H:
                for x in prog[n0:]: x.maxdl = H
        for item in cfg.plan.split():
            if "@" not in item: issue(item, H)
            else:
                it, pos = item.split("@"); st, fr = pos.split(".")
                later.setdefault(int(st), []).append((it, fr))
    for s in range(s0, s1):
        t = s % 8
        uq = [u for u in range(4) if qk_on(s, u)]
        up = order_qk(s - 1, 3) if (steady or s > 0) else []
        up = [u for u in up if pv_on(s, u)]
        qk = [(kb, u) for kb in range(4) for u in order_qk(s, kb)]
        pv = []
        fin = [u for u in up if (s - 1 - sg[u]) % 8 == 7]
        ones_order = fin + [u for u in up if u not in fin]
        for db in range(8):
            for u in up: pv.append(("pv", db, u))
        npv = len(pv)
        ins = {}
        for i, u in enumerate(ones_order):
            if u in fin: p = len(up)
            else: p = len(up) + (npv - len(up)) * i // max(1, len(ones_order))
            ins.setdefault(p, []).append(("one", 0, u))
        pv2 = []
        for i, c in enumerate(pv):
            pv2 += ins.get(i, []); pv2.append(c)
        pv = pv2
        seq = []
        if qk:
            j = 0
            lag = 1 if len(uq) <= 2 and pv else 0
            for i, c in enumerate(qk):
                seq.append(("qk",) + c)
                tgt = math.ceil(max(0, i + 1 - lag) * len(pv) / (len(qk) - lag))
                while j < tgt: seq.append(pv[j]); j += 1
        else:
            seq = pv
        nm = sum({"qk": 4, "pv": 2, "one": 1}[c[0]] for c in seq)
        beta = cfg.beta if len(uq) >= 3 else cfg.beta_small
        barpos = int(beta * nm)
        if not steady and s in cfg.betas: barpos = int(cfg.betas[s] * nm)
        vdone = set(); kdone = set(kdone0) if (s == 0 and not steady) else set(); bar_done = False
        Pw = vP + 32 * (s & 1); Pr = vP + 32 * ((s - 1) & 1)
        def vreads(db):
            if db in vdone: return
            vdone.add(db)
            for ks in range(2):
                for h in range(2):
                    d = aV + db * 8 + ks * 4 + h * 2
                    A(Op(("vr", s, db, ks, h), f"ds_read_b64_tr_b16 {at(d,2)}, v{vV+db} offset:{vslot(s-1)*16384 + ks*8192 + h*4096}", "ds",
                         [f"Vok{s-1}"], ar(d, 2) + [f"Vr{s-1}_{db}_{ks}_{h}"]))
        def kreads(kb):
            if kb in kdone: return
            kdone.add(kb); kread1(s, t, kb)
        def barrier():
            rd = []; wr = []
            pubv, retv, nxt = [s], [s - 1], [s + 1]
            if not steady:
                if cfg.deep:
                    retv = {1: [], 2: [0], 3: [1], 4: [2], 5: [3, 4], 35: []}.get(s, retv)
                    pubv = {34: [34, 35], 35: [36, 37]}.get(s, pubv)
                    nxt = {0: [], 1: [], 2: [4], 3: [5], 4: [], 32: [33, 34, 35], 33: [36], 34: [37], 35: []}.get(s, nxt)
                    if s == 32: wr.append("Kret67")
                    if s >= 36: return
                if s >= last: return
                nxt = [v for v in nxt if v < last and v not in vissued and not any(it == f"V{v}" for l in later.values() for it, _ in l)]
            for v in retv:
                if v < 0: continue
                if v == s - 1:
                    for db in range(8): vreads(db)
                rd += [f"Vr{v}_{db}_{ks}_{h}" for db in range(8) for ks in range(2) for h in range(2)]
                wr.append(f"Vret{v}")
            for v in pubv:
                assert steady or v in vissued, v
                rd += [f"Vd{v}_{i}" for i in range(4)]; wr.append(f"Vok{v}")
            if not steady and s + 1 <= 7 and s + 1 not in kpub:
                if s + 1 not in kscaled: kscale(s + 1, ((s - 1, "bar") if s >= 1 else (-1, 0))); kscaled.append(s + 1)
                kpub.add(s + 1)
                rd += [f"Kw{s+1}_{ds}" for ds in range(4)]; wr.append(f"Kok{s+1}")
            if not steady and s == 1:
                rd += [f"Kr0_{kb}_{ds}" for kb in range(4) for ds in range(4)]; wr.append("K0dead")
                rd.append("Kr1"); wr.append("Cdead")
            if not steady and s == 2: rd.append("Czero")
            if (steady or s >= cfg.split_from) and len(uq) >= cfg.split_min_u:
                ag = cfg.arr_gap if len(uq) >= 3 else cfg.arr_gap_small
                A(Op(("arr", s), f"ds_add_u32 v{vCnt}, a{aCone}", "dsw", rd, ["Carr"], cost=8, anchor=(s, "bar", -ag - cfg.ds_lat - 1)))
                A(Op(("exp", s), f"s_add_u32 s{sExp}, s{sExp}, 4", "salu", [f"s{sExp}"], [f"s{sExp}"]))
                A(Op(("pol", s), f"ds_read_b32 v{vPoll}, v{vCnt}", "ds", ["Carr~"], vr(vPoll), anchor=(s, "bar", -cfg.ds_lat - 1)))
                A(Op(("cmp", s), f"v_cmp_gt_u32 vcc, s{sExp}, v{vPoll}", "valu", vr(vPoll) + [f"s{sExp}"], ["vcc"], anchor=(s, "bar", -2)))
                A(Op(("bar", s), f"s_cbranch_vccnz L_spin{s if (not steady and (s < 8 or s >= 32)) else 8 + s % 8}", "bar", ["vcc"] + vr(vPoll) + [f"s{sExp}"], wr, anchor=(s, "bar")))
            else:
                A(Op(("bar", s), "s_barrier", "bar", rd, wr, anchor=(s, "bar")))
            if not steady and s == 1:
                A(Op(("cz", 1), f"ds_write_b32 v{vCnt}, a{aCone + 1}", "dsw", ["Cdead"], ["Czero"], cost=8))
            for v in nxt: vdma(v, None)
            for it, fr in later.get(s, []):
                if fr == "b": issue(it, (s, "bar"))
        todo_items = [(it, int(fr) / 10 ** len(fr)) for it, fr in later.get(s, []) if fr != "b"]
        mcount = 0
        for c in seq:
            if not bar_done and mcount >= barpos:
                barrier(); bar_done = True
            while todo_items and mcount >= todo_items[0][1] * nm:
                issue(todo_items.pop(0)[0], (s, "off", mcount))
            if c[0] == "qk":
                _, kb, u = c
                kreads(kb)
                if kb == 0 and (s - sg[u]) % 8 == 0 and (steady or s - sg[u] >= 8):
                    qread(("qr", s, u), u)
                    un = (u + 1) % 4; sn = s + (sg[un] - sg[u]) % 8
                    pend_q.append((("q", sn, un), not steady and sn - sg[un] >= 8 * NP))
                    if True:
                        k_, d_ = pend_q.pop(); qload(k_, dummy=d_)
                S = vS + 4 * (chain % 4); chain += 1
                for ds in range(4):
                    kf = kfrag(t, kb, ds); qf = aQ + u * 16 + ds * 4
                    A(Op(("qk", s, kb, u, ds), f"v_mfma_f32_16x16x32_bf16 {vt(S,4)}, {at(kf,4)}, {at(qf,4)}, {'0' if ds == 0 else vt(S,4)}", "mfma",
                         ar(kf, 4) + ar(qf, 4) + ([] if ds == 0 else vr(S, 4)), vr(S, 4)))
                for r in range(4):
                    A(Op(("ex", s, kb, u, r), f"v_exp_f32 v{S+r}, v{S+r}", "trans", vr(S + r), vr(S + r)))
                pd = Pw + u * 8 + kb * 2
                for r in range(2):
                    tx = f"v_perm_b32 v{pd+r}, v{S+2*r+1}, v{S+2*r}, s{sPerm}" if cfg.trunc else f"v_cvt_pk_bf16_f32 v{pd+r}, v{S+2*r}, v{S+2*r+1}"
                    A(Op(("cv", s, kb, u, r), tx, "valu", vr(S + 2 * r, 2), vr(pd + r)))
                mcount += 4
            elif c[0] == "pv":
                _, db, u = c
                vreads(db)
                first = (s - 1 - sg[u]) % 8 == 0
                o = vOa + db * 16 + u * 4
                for ks in range(2):
                    vf = aV + db * 8 + ks * 4; pf = Pr + u * 8 + ks * 4
                    z = first and ks == 0
                    A(Op(("pv", s, db, u, ks), f"v_mfma_f32_16x16x32_bf16 {vt(o,4)}, {at(vf,4)}, {vt(pf,4)}, {'0' if z else vt(o,4)}", "mfma",
                         ar(vf, 4) + vr(pf, 4) + ([] if z else vr(o, 4)), vr(o, 4)))
                mcount += 2
            else:
                _, _, u = c
                first = (s - 1 - sg[u]) % 8 == 0
                l = vL + 4 * u
                if first:
                    for r in range(2): A(Op(("lz", s, u, r), f"v_mov_b32 v{l+r}, 0", "valu", [], vr(l + r)))
                pf = Pr + u * 8
                A(Op(("on", s, u), f"v_smfmac_f32_16x16x64_bf16 {vt(l,4)}, {at(aOne,4)}, {vt(pf,8)}, v{vIdx}", "mfma", vr(pf, 8) + vr(l, 2), vr(l, 4)))
                mcount += 1
        if not bar_done: barrier()
        for it, _ in todo_items: issue(it, (s, "off", mcount))
        if not steady and s == 31:
            qread(("qr", 32, 0), 0, dummy=True)
            qload(("q", 32 + sg[1], 1), dummy=True)
        for u in sorted(fin):
            l = vL + 4 * u; R = vR + (u & 1)
            A(Op(("la", s, u), f"v_add_f32 v{l}, v{l}, v{l+1}", "valu", vr(l, 2), vr(l)))
            A(Op(("rc", s, u), f"v_rcp_f32 v{R}, v{l}", "trans", vr(l), vr(R)))
            A(Op(("ck", s, u), f"v_max3_u32 v{vChk}, v{vChk}, v{l}, v{R}", "valu", vr(vChk) + vr(l) + vr(R), vr(vChk)))
            for db in range(8):
                o = vOa + db * 16 + u * 4
                for r in range(4):
                    A(Op(("mu", s, u, db, r), f"v_mul_f32 v{o+r}, v{o+r}, v{R}", "valu", vr(o + r) + vr(R), vr(o + r)))
                if not cfg.store_x4:
                    for r in range(2):
                        A(Op(("oc", s, u, db, r), f"v_cvt_pk_bf16_f32 v{o+r}, v{o+2*r}, v{o+2*r+1}", "valu", vr(o + 2 * r, 2), vr(o + r)))
                    A(Op(("st", s, u, db), f"buffer_store_dwordx2 {vt(o,2)}, v{vO}, s[{sO_}:{sO_+3}], s{sOo} offen offset:{db*32} {cfg.st_pol}".rstrip(), "store",
                         vr(o, 2) + [f"s{sOo}"], []))
                else:
                    if db & 1:
                        e = o - 16
                        A(Op(("oc", s, u, db, 3), f"v_cvt_pk_bf16_f32 v{o+3}, v{o+2}, v{o+3}", "valu", vr(o + 2, 2), vr(o + 3)))
                        A(Op(("oc", s, u, db, 2), f"v_cvt_pk_bf16_f32 v{o+2}, v{o}, v{o+1}", "valu", vr(o, 2), vr(o + 2)))
                        A(Op(("oc", s, u, db, 0), f"v_cvt_pk_bf16_f32 v{o}, v{e}, v{e+1}", "valu", vr(e, 2), vr(o)))
                        A(Op(("oc", s, u, db, 1), f"v_cvt_pk_bf16_f32 v{o+1}, v{e+2}, v{e+3}", "valu", vr(e + 2, 2), vr(o + 1)))
                        for r in range(2):
                            if cfg.vperm: break
                            A(Op(("sw", s, u, db, r), f"v_permlane16_swap_b32 v{o+r}, v{o+2+r}", "valu", vr(o + r) + vr(o + 2 + r), vr(o + r) + vr(o + 2 + r), cost=8))
                        A(Op(("st", s, u, db), f"buffer_store_dwordx4 {vt(o,4)}, v{vO}, s[{sO_}:{sO_+3}], s{sOo} offen offset:{(db-1)*(512 if cfg.fake_st else 32)} {cfg.st_last if (not steady and s >= cfg.st_last_from) else cfg.st_pol}".rstrip(), "store",
                             vr(o, 4) + [f"s{sOo}"], [], cost=20))
            if not steady and 32 <= s < last:
                for x in prog:
                    if x.key[:3] == ("st", s, u): x.maxdl = (s + 1, "frac", (x.key[3] + 1) / 8 * cfg.tail_dl)
            A(Op(("oinc", s, u), f"s_add_u32 s{sOo}, s{sOo}, 4096", "salu", [f"s{sOo}"], [f"s{sOo}"]))
    return prog

def link(cfg, prog):
    lastw = {}; readers = {}
    m = 0
    for x in prog:
        if x.kind == "mfma": x.m = m; m += 1
    for x in prog:
        e = {}
        def add(p, typ):
            if p is x: return
            soft = hard = 0
            if p.kind == "mfma":
                if x.kind == "mfma": return
                if typ in ("raw", "waw"): soft = cfg.mv_lat + (2 if p.key[0] == "on" else 0)
                elif x.kind in ("valu", "trans"): soft = 1
            elif x.kind == "mfma":
                hard = soft = 1
                if typ == "raw":
                    soft = cfg.ds_lat if p.kind == "ds" else (1 if p.kind == "load" else 2)
                elif p.kind == "store": soft = 2
            elif x.kind == "bar" or x.key[0] == "arr":
                hard = 1; soft = {"ds": cfg.ds_lat, "dsw": cfg.ds_lat, "dma": 2}.get(p.kind, 1)
            elif p.kind == "bar":
                soft = hard = 0
            elif p.kind == "salu":
                soft = 2; hard = 1 if x.kind != "salu" else 1
            elif x.kind == "salu":
                soft = hard = 1
            elif typ == "raw":
                if p.kind == "trans": soft = 1
                elif p.kind == "ds" and x.kind == "dma": soft = cfg.ds_lat
                elif p.kind == "valu" and x.kind in ("store", "dsw", "ds"): soft = 1
                elif p.kind == "valu" and "permlane" in x.text: soft = 2
            else:
                if p.kind in ("valu", "trans") and x.kind in ("load", "ds", "dma"): soft = 1
                if p.kind in ("store", "dsw"): soft = 1
            o = e.get(id(p))
            e[id(p)] = (p, max(soft, o[1]) if o else soft, max(hard, o[2]) if o else hard)
        for r in x.reads:
            if r in lastw: add(lastw[r], "raw"); x.prod[r] = lastw[r].key
        for r in x.writes:
            if r in lastw: add(lastw[r], "waw")
            for p in readers.get(r, []): add(p, "war")
        for r in x.reads: readers.setdefault(r, []).append(x)
        for r in x.writes: lastw[r] = x; readers[r] = []
        x.preds = list(e.values())
        for p, so, ha in x.preds: p.succs.append((x, so, ha))
    return m

def step_of(x): return x.key[1]

def schedule(cfg, prog, nm, pins=None, lo=None, hi=None):
    pins = pins or {}; lo = lo or {}; hi = hi or {}
    start = {}; barw = {}
    cur = -1
    for x in prog:
        if x.kind == "mfma":
            cur = x.m; start.setdefault(x.key[1], x.m)
        elif x.kind == "bar": barw[x.key[1]] = cur
    def W(a):
        if a[0] == -1: return -1
        if a[1] == "bar": return barw.get(a[0], nm - 1) + (a[2] if len(a) > 2 else 0)
        if a[1] == "frac": return start[a[0]] - 1 + int(a[2] * (start.get(a[0] + 1, nm) - start[a[0]]))
        if a[1] == "off": return max(0, start[a[0]] - 1 + a[2])
        return start[a[0]] - 1
    fill = [x for x in prog if x.kind != "mfma"]
    for x in prog:
        if x.kind == "mfma": x.win = x.m
    for i, x in enumerate(prog): x.idx = i
    for x in reversed(fill):
        if x.key in pins: x.dls = x.dlh = pins[x.key][0]; continue
        if x.anchor: x.dls = x.dlh = W(x.anchor); continue
        ds = dh = nm - 1
        for y, so, ha in x.succs:
            if y.dummy and y.key not in pins: continue
            if y.kind == "mfma": ds = min(ds, y.m - so); dh = min(dh, y.m - ha)
            else: ds = min(ds, y.dls - so); dh = min(dh, y.dlh - ha)
        if x.key in hi: ds = min(ds, hi[x.key]); dh = min(dh, hi[x.key])
        if x.maxdl: ds = min(ds, W(x.maxdl)); dh = min(dh, W(x.maxdl))
        x.dls, x.dlh = ds, max(dh, -1)
    wins = {w: [] for w in range(-1, nm)}
    for x in fill:
        x.win = None
        x.lo = max(W(x.earliest) if x.earliest else -1, lo.get(x.key, -1))
        if x.anchor: x.lo = x.dlh
    pinned_by_win = {}
    for x in fill:
        if x.key in pins: pinned_by_win.setdefault(pins[x.key][0], []).append(x)
    todo = [x for x in fill if x.key not in pins and not x.dummy]
    todo.sort(key=lambda x: x.idx)
    credit = [0]
    mfl = [x for x in prog if x.kind == "mfma"]
    def ready(x, w, soft):
        if w < x.lo: return False
        for p, so, ha in x.preds:
            if p.dummy and p.key not in pins: continue
            if p.win is None: return False
            lat = ha
            if soft and (p.kind not in ("load", "dma", "ds", "dsw") or x.kind == "dma"): lat = so
            if p.kind in ("store", "dsw") and soft: lat = max(lat, min(so, 1))
            if w == -1 or w == nm - 1: lat = 0
            if w < p.win + lat: return False
        return True
    for w in range(-1, nm):
        if w in pinned_by_win:
            for x in sorted(pinned_by_win[w], key=lambda x: pins[x.key][1]):
                x.win = w; wins[w].append(x)
        if pins and cfg._loop[0] <= w < cfg._loop[1]: continue
        cap = 8 if w >= 0 else 0
        if w >= 0 and mfl[w].key[0] == "on": cap = 4
        cap0 = cap
        rate = 8
        if cfg.smooth and pins and 0 <= w < nm - 1:
            acc = 0
            for x in sorted((x for x in todo[:900] if x.dls <= w + 120), key=lambda x: x.dls):
                acc += min(x.cost, 8)
                rate = max(rate, acc / (max(x.dls, w) - w + 1))
            credit[0] = credit[0] + rate - 8 if rate > 8.2 else 0
            credit[0] = min(credit[0], rate)
            extra = int(credit[0] // 4) * 4
            cap += extra
        used = 0
        cur = wins[w]
        def place(x):
            nonlocal used
            x.win = w; cur.append(x); used += min(x.cost, 8); todo.remove(x)
        while True:
            cand = [x for x in todo[:700] if ready(x, w, True) or (w >= x.dlh and ready(x, w, False))]
            if not cand: break
            z = [x for x in cand if x.kind in ("salu", "bar")]
            if z:
                place(z[0]); continue
            forced = [x for x in cand if x.dls <= w]
            if w == -1 or w == nm - 1:
                if not forced: break
                place(min(forced, key=lambda x: x.idx)); continue
            hasvalu_dep = lambda x: x.kind in ("ds", "dsw", "load", "dma", "store") and any(p.win == w and p.kind in ("valu", "trans") for p, _, _ in x.preds)
            hard_forced = forced
            if hard_forced:
                place(min(hard_forced, key=lambda x: (x.dls, x.idx))); continue
            if used >= cap: break
            nb = lambda x: 1024 if "b128" in x.text else 512
            dsb = sum(nb(x) for x in cur if x.kind == "ds")
            tight = rate > 8.2
            recent = (not tight) and any(y.kind == "ds" for k in range(1, cfg.ds_gap) for y in wins.get(w - k, []))
            vmk = ("load", "dma", "store")
            vgap = max(1, int(cfg.vm_gap * 16 / (8 + rate)))
            recent_vm = any(y.kind in vmk for k in range(0, vgap) for y in wins.get(w - k, []))
            dcap = cfg.ds_cap * (8 + cap) // 16
            cand = [x for x in cand if (x.kind != "ds" or (not recent and dsb + nb(x) <= dcap)) and not (x.kind in vmk and recent_vm)]
            if not cand: break
            cand.sort(key=lambda x: (-99999 if x.kind in ("load", "dma", "dsw", "store") else x.dls, x.idx))
            if cap - used >= 8:
                top = cand[0]
                if top.cost >= 8: place(top); continue
                small = [x for x in cand if x.cost == 4]
                big = [x for x in cand if x.cost >= 8]
                fits = lambda a, b: not (a.kind == "ds" and b.kind == "ds" and dsb + nb(a) + nb(b) > dcap)
                partner = any(fits(top, y) for y in small if y is not top) or any(y.cost == 4 and so == 0 and y.win is None and y.kind == "valu" and all(p.win is not None or p is top for p, _, _ in y.preds) for y, so, ha in top.succs)
                if partner or not big or (cap - used) % 8: place(top)
                else: place(big[0])
                continue
            small = [x for x in cand if x.cost == 4]
            if not small: break
            place(small[0])
        if w >= 0: credit[0] -= max(0, min(used, cap) - cap0)
        if w not in (-1, nm - 1):
            order = {"bar": 0, "salu": 0, "dma": 1, "load": 1, "store": 1, "dsw": 1, "ds": 1, "valu": 2, "trans": 2}
            lvl = {}
            for x in cur:
                l = order[x.kind]
                for p, _, _ in x.preds:
                    if p.win == w and p.kind != "mfma": l = max(l, lvl[id(p)])
                lvl[id(x)] = l
            cur.sort(key=lambda x: lvl[id(x)])
    assert not todo, [x.key for x in todo[:10]]
    for w, c in wins.items():
        for i, x in enumerate(c): x.pos = i
    return wins, start

def norm(key, d):
    return (key[0], key[1] + d) + tuple(key[2:])

class Ins:
    def __init__(s, text, op=None, kind=None):
        s.text, s.op, s.kind = text, op, kind or (op.kind if op else "salu")
        s.vm = None; s.lg = None

def generate(cfg):
    last = 32 + max(cfg.sigma)
    cfg.q_ahead = getattr(cfg, "q_ahead", 2)
    cfg.code_pf_n = getattr(cfg, "code_pf_n", 2)
    sp = build(cfg, 0, 56, True); nms = link(cfg, sp)
    swins, sstart = schedule(cfg, sp, nms)
    per = sstart[8] - sstart[0]
    ok = None
    for b in (16, 24, 32):
        same = all([x.text for x in swins[sstart[b] + i]] == [x.text for x in swins[sstart[b + 8] + i]] and
                   [norm(x.key, 8) for x in swins[sstart[b] + i]] == [x.key for x in swins[sstart[b + 8] + i]] for i in range(per))
        if same: ok = b; break
    assert ok is not None, "steady state not periodic"
    rp = build(cfg, 0, last + 1, False); nm = link(cfg, rp)
    rstart = {}
    for x in rp:
        if x.kind == "mfma": rstart.setdefault(x.key[1], x.m)
    L0, L1 = rstart[8], rstart[32]
    assert L1 - L0 == 3 * per
    cfg._loop = (L0, L1)
    pins = {}
    for it in range(3):
        for i in range(per):
            for x in swins[sstart[ok] + i]:
                pins[norm(x.key, 8 + 8 * it - ok)] = (L0 + it * per + i, x.pos)
    keys = {x.key: x for x in rp}
    assert len(keys) == len(rp)
    missing = [k for k in pins if k not in keys]
    assert not missing, missing[:10]
    lo = {}; hi = {}
    mid = (keys[("qk", 20, 0, 0, 0)])
    midx = rp.index(mid)
    for i, x in enumerate(rp):
        if x.kind == "mfma" or x.key in pins: continue
        if i < midx: hi[x.key] = L0 - 1
        else: lo[x.key] = L1
    wins, start = schedule(cfg, rp, nm, pins, lo, hi)
    mf = [x for x in rp if x.kind == "mfma"]
    def stat(w):
        return L0 + (w - L0) % per if L0 <= w < L1 else w
    free = {}
    pre = {}
    for w in range(-1, nm):
        if stat(w) == w:
            free[w] = []
            if w not in (-1, nm - 1):
                for x in wins[w]:
                    if x.kind == "bar": free[w].append(Ins(x.text, x))
    def body(w):
        if w in (-1, nm - 1): return wins[w]
        return [x for x in wins[w] if x.kind not in ("salu", "bar")]
    def walk(fix):
        q = {"vm": [], "lgkm": []}
        pend = {}
        hist = {}
        changed = False
        def dowait(ins):
            for c, n in (("vm", ins.vm), ("lgkm", ins.lg)):
                if n is None: continue
                while len(q[c]) > n:
                    d = q[c].pop(0)
                    for r in d.writes:
                        if pend.get(r) is d: del pend[r]
        def need(x):
            n = {}
            for r in x.reads + x.writes:
                p = pend.get(r)
                if p is not None and not (r in x.writes and r not in x.reads and p.cnt == x.cnt):
                    n[p.cnt] = p if (p.cnt not in n or q[p.cnt].index(p) > q[p.cnt].index(n[p.cnt])) else n[p.cnt]
            return n
        def issue(x):
            if x.cnt:
                q[x.cnt].append(x)
                for r in x.writes: pend[r] = x
        def setw(ins, c, n):
            n = min(n, 62 if c == "vm" else 14)
            if c == "vm": ins.vm = n if ins.vm is None else min(ins.vm, n)
            else: ins.lg = n if ins.lg is None else min(ins.lg, n)
        def handle(x, w, pos, cands):
            nonlocal changed
            n = need(x)
            if not n: return
            assert fix, ("unwaited", x.key, {c: p.key for c, p in n.items()})
            changed = True
            for c, p in n.items():
                done = False
                for cw in cands:
                    if cw < 0 or cw == nm - 1 or cw not in hist: continue
                    snap = hist[cw][c]
                    if p not in snap: continue
                    fl = free[stat(cw)]
                    wi = [i for i in fl if i.kind == "wait"]
                    if not wi and fl and cw != cands[-1]: continue
                    if not wi:
                        wi = [Ins("", None, "wait")]; fl.insert(0, wi[0])
                    setw(wi[0], c, len(snap) - 1 - snap.index(p)); done = True; break
                if not done:
                    ins = pre.setdefault((stat(w), pos), Ins("", None, "wait"))
                    setw(ins, c, len(q[c]) - 1 - q[c].index(p))
                while p in q[c]:
                    d = q[c].pop(0)
                    for r in d.writes:
                        if pend.get(r) is d: del pend[r]
        for w in range(-1, nm):
            if w >= 0:
                if (stat(w), "m") in pre: dowait(pre[(stat(w), "m")])
                handle(mf[w], w, "m", [w - 1, w - 2])
            hist[w] = {c: list(v) for c, v in q.items()}
            hist.pop(w - 4, None)
            for ins in list(free[stat(w)]):
                if ins.kind == "wait": dowait(ins)
                elif ins.kind == "bar":
                    x = [y for y in wins[w] if y.kind == "bar"][0]
                    handle(x, w, "b", [w - 1, w - 2, w])
            for pos, x in enumerate(body(w)):
                if (stat(w), pos) in pre: dowait(pre[(stat(w), pos)])
                handle(x, w, pos, [w, w - 1])
                issue(x)
        return changed
    for _ in range(10):
        if not walk(True): break
    walk(False)
    for w in range(0, nm - 1):
        if stat(w) != w: continue
        for x in wins[w]:
            if x.kind != "salu": continue
            hiw = min([y.win - (1 if "m0" in x.writes or y.kind == "salu" else 0) for y, _, _ in x.succs if y.win is not None] + [w + 40, nm - 2])
            if L0 <= w < L0 + per: hiw = min(hiw, L0 + per - 3)
            elif w < L0: hiw = min(hiw, L0 - 1)
            hiw = max(hiw, w)
            c = [k for k in range(w, hiw + 1) if not free[k]]
            c2 = [k for k in c if body(k) and body(k)[0].kind in ("ds", "dma", "load", "store", "dsw")]
            k = c2[0] if c2 else (c[0] if c else w)
            free[k].append(Ins(x.text, x)); x.fw = k
    k = [k for k in range(L0 + per - 2, L0 + per) if not free[k]]
    k = k[0] if k else L0 + per - 1
    assert not any(i.kind == "salu" for kk in range(k, L0 + per) for i in free[kk])
    free[k].append(Ins(f"s_sub_u32 s{sCnt}, s{sCnt}, 1"))
    if cfg.nop_ds:
        for w in range(0, nm - 1):
            if stat(w) == w and not free[w] and body(w) and body(w)[0].kind in ("ds", "dma", "load", "store", "dsw"):
                free[w].append(Ins("s_nop 0", None, "nop"))
    def wtext(i):
        t = "s_waitcnt"
        if i.vm is not None: t += f" vmcnt({i.vm})"
        if i.lg is not None: t += f" lgkmcnt({i.lg})"
        return t
    code = {}
    for w in range(-1, nm):
        if stat(w) != w: continue
        l = []
        if w >= 0:
            if (w, "m") in pre: l.append(pre[(w, "m")])
            l.append(Ins(mf[w].text, mf[w]))
        l += free[w]
        for pos, x in enumerate(body(w)):
            if (w, pos) in pre: l.append(pre[(w, pos)])
            l.append(Ins(x.text, x))
        for i in l:
            if i.kind == "wait": i.text = wtext(i)
        code[w] = l
    def wcost(l, head=False):
        t = 0; base = 0; lastvalu = -99; blk = 8
        for i in l:
            if i.kind == "mfma": base = t; t += 4; blk = 12 if "smfmac" in i.text else 8; continue
            if i.kind in ("salu", "wait", "bar", "nop"): t += 4; continue
            if i.kind == "nopx": t += 4 * (int(i.text.split()[1]) + 1); continue
            if not head: t = max(t, base + blk)
            if i.kind in ("valu", "trans"): t += i.op.cost; lastvalu = t
            else:
                t = max(t, lastvalu + 8) + i.op.cost
        return t if head else max(t, base + 16)
    def hazards(fix):
        seq = []
        changed = False
        for w in range(-1, nm):
            l = code[stat(w)]
            j = 0
            while j < len(l):
                i = l[j]; x = i.op
                needn = 0
                if x is not None and x.kind not in ("salu", "bar"):
                    dist = 0
                    for p, st, pwin in reversed(seq):
                        y = p.op
                        if y is not None:
                            req = 0
                            raw = set(y.writes) & set(x.reads); waw = set(y.writes) & set(x.writes); war = set(y.reads) & set(x.writes)
                            if y.kind == "mfma":
                                if x.kind == "mfma":
                                    if set(y.writes) & set(x.reads[:8]): req = 8
                                elif raw or waw: req = 12 if y.key[0] == "on" else 8
                                elif war and x.kind in ("valu", "trans") and set(y.writes) & set(x.writes): req = 3
                            elif y.kind in ("valu", "trans"):
                                if raw and x.kind == "mfma": req = 2
                                if raw and "permlane" in x.text: req = 2
                                if raw and y.kind == "trans" and x.kind != "trans": req = max(req, 1)
                            elif y.kind in ("store", "dsw") and war and y.cost == 20: req = 2
                            elif y.kind == "salu" and "m0" in y.writes and x.kind == "dma": req = 1
                            if req - dist > needn: needn = req - dist; pw = pwin
                        dist += st
                        if dist >= 12: break
                if needn > 0:
                    assert fix, ("hazard", x.key)
                    for k in range(w, pw - 1, -1):
                        if k < 0: break
                        lk = code[stat(k)]
                        mi = [n for n, z in enumerate(lk) if z.kind == "mfma"][0]
                        places = []
                        if k > pw and (k < w or j > mi): places.append(mi + 1)
                        if k < w: places.append(len(lk))
                        ok_ = False
                        for pl in places:
                            tr = lk[:pl] + [Ins("s_nop 0", None, "nopx")] + lk[pl:]
                            if wcost(tr) == wcost(lk): lk[:] = tr; ok_ = True; break
                        if ok_: return True
                    l.insert(j, Ins(f"s_nop {needn-1}", None, "nopx")); changed = True
                    continue
                st = int(i.text.split()[1]) + 1 if i.text.startswith("s_nop") else 1
                seq.append((i, st, w)); seq = seq[-14:]
                j += 1
        return changed
    while hazards(True): pass
    lastw = {}; seen = set()
    for w in range(-1, nm):
        it = (w - L0) // per if L0 <= w < L1 else 0
        for i in code[stat(w)]:
            if i.op is None: continue
            x = keys[norm(i.op.key, 8 * it)]
            assert x.text == i.text, (x.text, i.text)
            assert x.key not in seen; seen.add(x.key)
            if not x.dummy:
                for r in x.reads:
                    assert lastw.get(r) == x.prod.get(r), ("dataflow", x.key, r, lastw.get(r), x.prod.get(r))
            for r in x.writes: lastw[r] = x.key
    assert all(x.key in seen or x.dummy for x in rp), [x.key for x in rp if x.key not in seen and not x.dummy][:5]
    est = {}
    for s in range(0, last + 1):
        e = rstart.get(s + 1, nm)
        est[s] = (sum(wcost(code[stat(w)]) for w in range(rstart[s], e)), (e - rstart[s]) * 16)
    cfg.est = est; cfg.est_head = wcost(code[-1], True)
    out = []
    cfg.spins = []
    E = out.append
    stamp_at = getattr(cfg, "stamp_steps", [])
    inv = {v: k for k, v in rstart.items()}
    for w in range(-1, nm):
        if stat(w) != w: continue
        if w == L0:
            if cfg.stamps and 7.9 in stamp_at:
                j = stamp_at.index(7.9); E(f"    s_memrealtime s[{64+2*j}:{65+2*j}]")
            E("L_loop:")
        if w in inv:
            E(f"; ---- step {inv[w]} ----")
            if cfg.stamps and inv[w] in stamp_at:
                j = stamp_at.index(inv[w]); E(f"    s_memrealtime s[{64+2*j}:{65+2*j}]")
        for i in code[w]:
            if i.op is not None and i.op.key[0] in cfg.kill and (L0 if cfg.kill_from is None else cfg.kill_from) <= w: E("    s_nop 0")
            else: E("    " + i.text)
            if cfg.pad and i.kind == "mfma" and L0 <= w < L1 and w % cfg.pad == 0: E("    s_nop 4")
            if i.text.startswith("s_cbranch_vccnz L_spin"):
                n = i.text.split("L_spin")[1]; E(f"L_back{n}:"); cfg.spins.append(n)
        if w == L0 + per - 1: E("    s_cbranch_scc0 L_loop")
    return "\n".join(out)

def fbits(x): return struct.unpack("<I", struct.pack("<f", x))[0]

def head(cfg):
    T = vS
    h = f"""    s_load_dwordx4 s[4:7], s[0:1], 0          ; q, k
    s_load_dwordx4 s[8:11], s[0:1], 16        ; v, out
"""
    if cfg.stamps: h += f"    s_load_dwordx2 s[56:57], s[0:1], {32 if cfg.stamps in ('dbg', 'skew') else 40}\n    s_memrealtime s[60:61]\n"
    h += f"""    v_lshrrev_b32 v{T}, 6, v0
    v_and_b32 v{T+4}, 63, v0                  ; lane
    v_readfirstlane_b32 s{sWave}, v{T}
    s_cmp_ge_u32 s2, 256
    s_cbranch_scc1 L_end
    v_and_b32 v{T+1}, 15, v0                  ; l & 15
    v_bfe_u32 v{T+2}, v0, 4, 2                ; l >> 4
    v_lshlrev_b32 v{vKl}, 4, v{T+4}           ; lane*16
    s_and_b32 s{sTmp}, s2, 7
    s_lshr_b32 s{sTmp+1}, s2, 3
    s_lshl_b32 s{sTmp}, s{sTmp}, 5
    s_add_u32 s{sTmp}, s{sTmp}, s{sTmp+1}
    s_lshl2_add_u32 s{sTmp+2}, s{sTmp}, s{sWave}
    s_lshl_b32 s{sTmp+2}, s{sTmp+2}, 16       ; q/o byte offset of this wave
    s_lshr_b32 s{sTmp}, s{sTmp}, 2
    s_lshl_b32 s{sTmp}, s{sTmp}, 17           ; k/v byte offset of the group
    s_lshl_b32 s{sMq}, s{sWave}, 12           ; wave*4096
    s_add_u32 s{sTmp+3}, s{sTmp}, s{sMq}
    s_sub_u32 s{sK_+2}, 0x20000, s{sMq}
    s_mov_b32 s{sK_+3}, 0x20000
    s_mov_b32 s{sQ_+3}, s{sK_+3}
    s_mov_b32 s{sQ_+2}, 0x10000
"""
    if cfg.rot:
        h += f"""    s_bfe_u32 s{sTmp+4}, s2, 0x20003
    s_mul_i32 s{sTile}, s{sTmp+4}, {cfg.rot*16384}
    s_and_b32 s{sTile}, s{sTile}, 0x1ffff
    s_add_u32 s{sTile+1}, s{sTile}, 16384
    s_and_b32 s{sTile+1}, s{sTile+1}, 0x1ffff
"""
    else: h += f"    s_mov_b32 s{sTile}, 0\n    s_movk_i32 s{sTile+1}, 0x4000\n"
    h += f"""    s_mov_b32 s{sQo}, 0
    v_lshlrev_b32 v{T+3}, 8, v{T+2}           ; (l>>4)*256
    v_xor_b32 v{T+5}, v{T+1}, v{T+2}          ; (l&15) ^ (l>>4)
    v_lshl_add_u32 v{vQd}, v{T+5}, 4, v{T+3}
    s_waitcnt lgkmcnt(0)
    s_add_u32 s{sK_}, s6, s{sTmp+3}
    s_addc_u32 s{sK_+1}, s7, 0
    s_add_u32 s{sQ_}, s4, s{sTmp+2}
    s_addc_u32 s{sQ_+1}, s5, 0
"""
    if cfg.stamps: h += "    s_memrealtime s[62:63]\n"
    return h

def head2(cfg):
    c = math.log2(math.e) / math.sqrt(128.0)
    T = vS
    h = f"""    ; code prefetch into L2: 16 lines per wave, 8 KiB per workgroup
    s_getpc_b64 s[{sC_}:{sC_+1}]
L_pc:
    s_mov_b32 s{sC_+2}, L_slow - L_pc
    s_mov_b32 s{sC_+3}, 0x20000
    s_bfe_u32 s{sTmp+1}, s2, 0x30003
    s_lshl2_add_u32 s{sTmp+1}, s{sTmp+1}, s{sWave}
    s_lshl_b32 s{sTmp+1}, s{sTmp+1}, 11
    v_lshlrev_b32 v{vJ}, 5, v{T+4}
    v_add_u32 v{vJ}, s{sTmp+1}, v{vJ}
@CPF
    s_add_u32 s{sV_}, s8, s{sTmp}
    s_addc_u32 s{sV_+1}, s9, 0
    s_add_u32 s{sO_}, s10, s{sTmp+2}
    s_addc_u32 s{sO_+1}, s11, 0
    s_mov_b32 s{sV_+2}, 0x20000
    s_mov_b32 s{sV_+3}, 0x20000
    s_mov_b32 s{sO_+2}, 0x10000
    s_mov_b32 s{sO_+3}, 0x20000
"""
    for t in range(2, 8):
        if cfg.rot: h += f"    s_add_u32 s{sTile+t}, s{sTile+t-1}, 16384\n    s_and_b32 s{sTile+t}, s{sTile+t}, 0x1ffff\n"
        else: h += f"    s_mov_b32 s{sTile+t}, {t*16384}\n"
    h += f"""    s_add_u32 s{sM0}, s{sMq}, 0x18000
    s_add_u32 s{sM0+1}, s{sMq}, 0x1c000
    s_add_u32 s{sM0+2}, s{sMq}, {0x20000 + cfg.fake_m0}
    s_add_u32 s{sM0+3}, s{sMq}, 0x24000
    s_mov_b32 s{sOo}, 0
    s_mov_b32 s{sExp}, 0
    s_mov_b32 s{sCnt}, 2
    s_mov_b32 s{sScale}, {fbits(c):#x}
    s_mov_b32 s{sMask}, 0xffff0000
    s_mov_b32 s{sPerm}, 0x07060302
    ; K fragment read addresses: g*256 + (key ^ g ^ 4*(ds&1))*16
    v_mov_b32 v{vKr}, v{vQd}
    v_xor_b32 v{vKr+1}, 64, v{vQd}
    v_add_u32 v{vKr+2}, 0x10000, v{vKr}
    v_add_u32 v{vKr+3}, 0x10000, v{vKr+1}
    v_and_b32 v{T+6}, 7, v{T+5}
    v_lshlrev_b32 v{T+7}, 8, v{T+1}           ; (l&15)*256
    v_lshl_add_u32 v{T+6}, v{T+6}, 4, v{T+7}
    v_add_u32 v{vKw}, s{sMq}, v{T+6}
    v_xor_b32 v{vKw+1}, 64, v{vKw}
    v_and_b32 v{T+6}, 3, v{T+5}
    v_lshl_add_u32 v{T+6}, v{T+6}, 4, v{T+7}
    v_add_u32 v{vQr}, s{sMq}, v{T+6}
"""
    if cfg.vperm:
        h += f"""    ; V DMA source offsets: row r=l>>4, 64-byte unit (c16>>2)^(key&3)
    v_lshlrev_b32 v{T+6}, 2, v{T+2}
    v_xor_b32 v{T+6}, v{T+6}, v{T+1}
    v_lshl_add_u32 v{T+6}, v{T+6}, 4, v{T+3}
    v_add_u32 v{vD0}, s{sMq}, v{T+6}
    v_mov_b32 v{vD1}, v{vD0}
    ; V transposed-read addresses: lane = 16g+4r+c reads 8 bytes of chunk c of unit (db>>1)^r, half db&1
    v_lshrrev_b32 v{T+8}, 2, v{T+4}           ; 4g+r
    v_lshlrev_b32 v{T+6}, 4, v{T+1}           ; r*64 + c*16
    v_lshl_add_u32 v{T+6}, v{T+8}, 8, v{T+6}
    v_and_b32 v{T+9}, 3, v{T+4}
    v_add_u32 v{vV}, 0x18000, v{T+6}
"""
        for db in range(1, 8): h += f"    v_xor_b32 v{vV+db}, {(db >> 1) * 64 + (db & 1) * 8}, v{vV}\n"
        h += f"    v_lshl_add_u32 v{vO}, v{T+2}, 4, v{T+7}\n"
        if cfg.fake_st: h += f"    v_mov_b32 v{vO}, v{vKl}\n"
        if cfg.fake_v: h += "".join(f"    v_lshlrev_b32 v{vV+db}, 3, v{T+4}\n    v_add_u32 v{vV+db}, {0x18000 + db * 512}, v{vV+db}\n" for db in range(8))
    else:
        h += f"""    ; V DMA source offsets: row r=l>>4, unit (c16>>1)^(key&7)
    v_lshrrev_b32 v{T+6}, 1, v{T+1}
    v_xor_b32 v{T+6}, v{T+6}, v{T+2}
    v_lshl_add_u32 v{T+6}, v{T+6}, 5, v{T+3}
    v_and_b32 v{T+8}, 1, v{T+1}
    v_lshl_add_u32 v{T+6}, v{T+8}, 4, v{T+6}
    v_add_u32 v{vD0}, s{sMq}, v{T+6}
    v_xor_b32 v{vD1}, 0x80, v{vD0}
    ; V transposed-read addresses: lane = 16g+4r+c
    v_lshrrev_b32 v{T+8}, 2, v{T+4}           ; 4g+r
    v_and_b32 v{T+6}, 7, v{T+8}
    v_lshlrev_b32 v{T+6}, 5, v{T+6}
    v_lshl_add_u32 v{T+6}, v{T+8}, 8, v{T+6}
    v_and_b32 v{T+9}, 3, v{T+4}
    v_lshl_add_u32 v{T+6}, v{T+9}, 3, v{T+6}
    v_add_u32 v{vV}, 0x18000, v{T+6}
"""
        for db in range(1, 8): h += f"    v_xor_b32 v{vV+db}, {db*32}, v{vV}\n"
        if cfg.store_x4:
            h += f"""    v_and_b32 v{T+6}, 1, v{T+2}
    v_lshl_add_u32 v{vO}, v{T+6}, 5, v{T+7}
    v_lshrrev_b32 v{T+6}, 1, v{T+2}
    v_lshl_add_u32 v{vO}, v{T+6}, 4, v{vO}
"""
        else:
            h += f"    v_lshl_add_u32 v{vO}, v{T+2}, 3, v{T+7}\n"
    h += f"""    ; row-sum operand: rows 4i and 4i+1 are ones; they pick elements 0,1 and 2,3 of every group of four keys
    v_cmp_eq_u32 vcc, 1, v{T+9}
    v_mov_b32 v{T+6}, 0x44444444
    v_mov_b32 v{T+8}, 0xeeeeeeee
    v_cndmask_b32 v{vIdx}, v{T+6}, v{T+8}, vcc
    v_cmp_gt_u32 vcc, {0 if cfg.ones_rows == 0 else 2}, v{T+9 if cfg.ones_rows == 8 else T+1}
    v_mov_b32 v{T+6}, 0x3f803f80
    v_mov_b32 v{vChk}, {'-1' if cfg.force_slow else '0'}
    v_cndmask_b32 v{T+6}, 0, v{T+6}, vcc
    v_lshlrev_b32 v{vCnt}, 2, v{T+4}
    v_add_u32 v{vCnt}, 0x4000, v{vCnt}
    v_accvgpr_write_b32 a{aOne}, v{T+6}
    v_accvgpr_write_b32 a{aOne+1}, v{T+6}
    v_accvgpr_write_b32 a{aOne+2}, v{T+6}
    v_accvgpr_write_b32 a{aOne+3}, v{T+6}
    v_accvgpr_write_b32 a{aCone}, 1
    v_accvgpr_write_b32 a{aCone+1}, 0
"""
    return h

def tail(cfg):
    lim = (127 + cfg.limit_exp) << 23
    t = ""
    if cfg.stamps == "skew":
        t += """    s_mov_b32 s58, 256
    s_mov_b32 s59, 0x20000
    s_not_b32 s64, s60
    v_mov_b32 v64, s64
    v_mov_b32 v60, 0
    s_mov_b64 exec, 1
    s_cmp_lg_u32 s3, 0
    s_cbranch_scc1 L_sk1
    buffer_atomic_umax v64, v60, s[56:59], 0 offen
    s_waitcnt vmcnt(0)
L_sk1:
    s_memrealtime s[72:73]
    s_waitcnt lgkmcnt(0)
    s_sub_u32 s72, s72, s60
    s_cmp_lt_u32 s72, 8000
    s_cbranch_scc1 L_sk1
    buffer_load_dword v64, v60, s[56:59], 0 offen sc0 sc1
    s_waitcnt vmcnt(0)
    v_readfirstlane_b32 s64, v64
    s_nop 4
    s_not_b32 s64, s64
L_sk2:
    s_memrealtime s[72:73]
    s_waitcnt lgkmcnt(0)
    s_sub_u32 s72, s72, s64
    s_cmp_lt_u32 s72, 10000
    s_cbranch_scc1 L_sk2
    s_mov_b64 exec, -1
"""
    elif cfg.stamps == "spin":
        if not getattr(cfg, "stamp_steps", []): t += "    s_waitcnt vmcnt(0)\n    s_memrealtime s[64:65]\n"
        t += f"""    s_waitcnt lgkmcnt(0)
    {"s_sub_u32 s64, s66, s64" if len(getattr(cfg, "stamp_steps", [])) == 2 else "s_sub_u32 s64, s64, s60"}
    s_mul_i32 s64, s64, {getattr(cfg, "spin_mul", 0)}
    s_add_u32 s64, s64, 10000
L_spin:
    s_memrealtime s[72:73]
    s_waitcnt lgkmcnt(0)
    s_sub_u32 s72, s72, s60
    s_cmp_lt_u32 s72, s64
    s_cbranch_scc1 L_spin
"""
    elif cfg.stamps:
        e0 = 88 if cfg.stamps == "c16" else 72
        t += f"""    s_memrealtime s[{e0}:{e0+1}]
    s_waitcnt vmcnt(0)
    s_memrealtime s[{e0+2}:{e0+3}]
    s_mov_b32 s58, 0x10000000
    s_mov_b32 s59, 0x20000
    s_lshl_b32 s46, s2, 2
    s_add_u32 s46, s46, s3
    s_lshl_b32 s46, s46, 6
    s_waitcnt lgkmcnt(0)
"""
        for i in range(16): t += f"    v_mov_b32 v{64+i}, s{60+(2*i if cfg.stamps == 'c16' else i)}\n"
        t += "    v_mov_b32 v60, 0\n    s_mov_b64 exec, 1\n"
        if cfg.stamps == "dbg":
            t += "    s_mov_b32 s58, 256\n"
            for i in range(8):
                t += f"    v_not_b32 v{65+2*i}, v{64+2*i}\n"
            for i in range(16): t += f"    buffer_atomic_umax v{64+i}, v60, s[56:59], 0 offen offset:{4*i}\n"
        else:
          for i in range(4): t += f"    buffer_store_dwordx4 v[{64+4*i}:{67+4*i}], v60, s[56:59], s46 offen offset:{16*i}\n"
        t += "    s_mov_b64 exec, -1\n"
    t += f"""    v_cmp_lt_u32 vcc, {lim:#x}, v{vChk}
    s_nop 4
    s_cbranch_vccnz L_slow
L_end:
    s_endpgm
"""
    for n in cfg.spins:
        t += f"""L_spin{n}:
    ds_read_b32 v{vPoll}, v{vCnt}
    s_waitcnt lgkmcnt(0)
    v_cmp_gt_u32 vcc, s{sExp}, v{vPoll}
    s_nop 4
    s_cbranch_vccnz L_spin{n}
    s_branch L_back{n}
"""
    S0, S1, M, T = 16, 20, 24, 25
    vQ = vQd; vKb = vKr + 2
    q = lambda ds: at(aQ + 4 * ds, 4)
    k = lambda j, ds: at(aK + j * 16 + 4 * ds, 4)
    t += f"""; Fallback: a row sum left [2^-{cfg.limit_exp}, 2^{cfg.limit_exp}] (or is not finite), so exp without an offset was not safe.
L_slow:
    s_waitcnt vmcnt(0) lgkmcnt(0)
    s_barrier                                 ; the other waves are done with LDS (ended or here)
    s_mov_b32 s{sQo}, 0
    s_lshl_b32 s{sTmp}, s{sWave}, 12
    s_lshl_b32 s{sTmp+1}, s{sWave}, 13
    s_add_u32 s{sTmp+2}, s{sTmp+1}, 0x20000
    s_add_u32 s{sTmp+3}, s{sTmp+2}, 4096
    v_subrev_u32 v{vD0}, s{sTmp}, v{vD0}
    v_subrev_u32 v{vD1}, s{sTmp}, v{vD1}
"""
    for db in range(8): t += f"    v_add_u32 v{vV+db}, s{sTmp+1}, v{vV+db}\n"
    t += f"""    s_sub_u32 s{sK_}, s{sK_}, s{sTmp}
    s_subb_u32 s{sK_+1}, s{sK_+1}, 0
    s_mov_b32 s{sK_+2}, 0x20000
    s_add_u32 s{sTmp+4}, s{sTmp}, 0x10000
    v_subrev_u32 v{vKw}, s{sTmp+4}, v{vKw}
    v_subrev_u32 v{vKw+1}, s{sTmp+4}, v{vKw+1}
    s_mov_b32 s{sCnt}, 0
L_skld:
"""
    for i in range(4): t += f"    buffer_load_dwordx4 {vt(vOa+4*i,4)}, v{vKl}, s[{sK_}:{sK_+3}], s{sCnt} offen offset:{i*1024}\n"
    t += "    s_waitcnt vmcnt(0)\n"
    for x in range(vOa, vOa + 16):
        t += f"""    v_lshlrev_b32 v{T}, 16, v{x}
    v_and_b32 v{x}, s{sMask}, v{x}
    v_mul_f32 v{T}, s{sScale}, v{T}
    v_mul_f32 v{x}, s{sScale}, v{x}
    v_cvt_pk_bf16_f32 v{x}, v{T}, v{x}
"""
    for i in range(4): t += f"    ds_write_b128 v{vKw+(i&1)}, {vt(vOa+4*i,4)} offset:{(i>>1)*128}\n"
    t += f"""    s_waitcnt lgkmcnt(0)
    v_add_u32 v{vKw}, 4096, v{vKw}
    v_add_u32 v{vKw+1}, 4096, v{vKw+1}
    s_add_u32 s{sCnt}, s{sCnt}, 4096
    s_cmp_lt_u32 s{sCnt}, 0x20000
    s_cbranch_scc1 L_skld
    v_bfe_u32 v{T}, v{vKl}, 4, 4
    v_lshrrev_b32 v{vQ}, 8, v{vKl}
    v_lshlrev_b32 v{vQ}, 4, v{vQ}
    v_lshl_add_u32 v{vQ}, v{T}, 8, v{vQ}
"""
    t += "L_sblk:\n"
    for ds in range(4): t += f"    buffer_load_dwordx4 {q(ds)}, v{vQ}, s[{sQ_}:{sQ_+3}], s{sQo} offen offset:{ds*64}\n"
    t += f"""    v_mov_b32 v{M}, 0xff800000
    v_mov_b32 v{vKb}, v{vKr}
    v_mov_b32 v{vKb+1}, v{vKr+1}
    s_mov_b32 s{sCnt}, 32
    s_waitcnt vmcnt(0)
L_smax:
"""
    for ds in range(4): t += f"    ds_read_b128 {k(0,ds)}, v{vKb+(ds&1)} offset:{ds*1024}\n"
    t += "    s_waitcnt lgkmcnt(0)\n"
    for ds in range(4): t += f"    v_mfma_f32_16x16x32_bf16 {vt(S0,4)}, {k(0,ds)}, {q(ds)}, {'0' if ds == 0 else vt(S0,4)}\n"
    t += f"""    s_nop 7
    v_max3_f32 v{M}, v{M}, v{S0}, v{S0+1}
    v_max3_f32 v{M}, v{M}, v{S0+2}, v{S0+3}
    v_add_u32 v{vKb}, 4096, v{vKb}
    v_add_u32 v{vKb+1}, 4096, v{vKb+1}
    s_sub_u32 s{sCnt}, s{sCnt}, 1
    s_cmp_lg_u32 s{sCnt}, 0
    s_cbranch_scc1 L_smax
    v_mov_b32 v{T}, v{M}
    s_nop 1
    v_permlane16_swap_b32 v{M}, v{T}
    s_nop 1
    v_max_f32 v{M}, v{M}, v{T}
    v_mov_b32 v{T}, v{M}
    s_nop 1
    v_permlane32_swap_b32 v{M}, v{T}
    s_nop 1
    v_max_f32 v{M}, v{M}, v{T}
"""
    for r in range(4): t += f"    v_mov_b32 v{vL+r}, 0\n"
    for r in range(32): t += f"    v_mov_b32 v{vOa+r}, 0\n"
    t += f"""    v_mov_b32 v{vKb}, v{vKr}
    v_mov_b32 v{vKb+1}, v{vKr+1}
    s_mov_b32 s{sCnt}, 0
L_skey:
    s_mov_b32 m0, s{sTmp+2}
    s_mov_b32 s{sTmp+5}, s{sCnt}
    s_add_u32 s{sTmp+4}, s{sTmp+5}, 4096
"""
    for i in range(4): t += f"    buffer_load_dwordx4 v{vD0+(i&1)}, s[{sV_}:{sV_+3}], s{sTmp+5} offen offset:{i*1024} lds\n"
    t += f"    s_mov_b32 m0, s{sTmp+3}\n    s_nop 0\n"
    for i in range(4): t += f"    buffer_load_dwordx4 v{vD0+(i&1)}, s[{sV_}:{sV_+3}], s{sTmp+4} offen offset:{i*1024} lds\n"
    for j in range(2):
        for ds in range(4): t += f"    ds_read_b128 {k(j,ds)}, v{vKb+(ds&1)} offset:{j*4096+ds*1024}\n"
    t += "    s_waitcnt vmcnt(0) lgkmcnt(0)\n"
    for db in range(8):
        for h in range(2): t += f"    ds_read_b64_tr_b16 {at(aV+db*4+2*h,2)}, v{vV+db} offset:{32768+h*4096}\n"
    for j, S in enumerate((S0, S1)):
        for ds in range(4): t += f"    v_mfma_f32_16x16x32_bf16 {vt(S,4)}, {k(j,ds)}, {q(ds)}, {'0' if ds == 0 else vt(S,4)}\n"
    t += "    s_nop 7\n"
    for r in range(8): t += f"    v_sub_f32 v{S0+r}, v{S0+r}, v{M}\n"
    for r in range(8): t += f"    v_exp_f32 v{S0+r}, v{S0+r}\n"
    t += "    s_nop 0\n"
    for r in range(4): t += f"    v_cvt_pk_bf16_f32 v{vP+r}, v{S0+2*r}, v{S0+2*r+1}\n"
    t += f"    v_add_u32 v{vKb}, 8192, v{vKb}\n    v_add_u32 v{vKb+1}, 8192, v{vKb+1}\n    s_waitcnt lgkmcnt(0)\n    s_nop 0\n"
    t += f"    v_mfma_f32_16x16x32_bf16 {vt(vL,4)}, {at(aOne,4)}, {vt(vP,4)}, {vt(vL,4)}\n"
    for db in range(8): t += f"    v_mfma_f32_16x16x32_bf16 {vt(vOa+4*db,4)}, {at(aV+db*4,4)}, {vt(vP,4)}, {vt(vOa+4*db,4)}\n"
    t += f"""    s_add_u32 s{sCnt}, s{sCnt}, 8192
    s_cmp_lt_u32 s{sCnt}, 0x20000
    s_cbranch_scc1 L_skey
    s_nop 7
    v_rcp_f32 v{vR}, v{vL}
    s_nop 0
"""
    for r in range(32): t += f"    v_mul_f32 v{vOa+r}, v{vOa+r}, v{vR}\n"
    for db in range(8):
        o = vOa + 4 * db; d = vP + 2 * db
        t += f"    v_cvt_pk_bf16_f32 v{d}, v{o}, v{o+1}\n    v_cvt_pk_bf16_f32 v{d+1}, v{o+2}, v{o+3}\n"
    if cfg.store_x4:
        t += "    s_nop 1\n"
        for db in range(0, 8, 2):
            d = vP + 2 * db
            if not cfg.vperm: t += f"    v_permlane16_swap_b32 v{d}, v{d+2}\n    v_permlane16_swap_b32 v{d+1}, v{d+3}\n"
            t += f"    buffer_store_dwordx4 {vt(d,4)}, v{vO}, s[{sO_}:{sO_+3}], s{sQo} offen offset:{db*32}\n"
    else:
        for db in range(8): t += f"    buffer_store_dwordx2 {vt(vP+2*db,2)}, v{vO}, s[{sO_}:{sO_+3}], s{sQo} offen offset:{db*32}\n"
    t += f"""    s_add_u32 s{sQo}, s{sQo}, 4096
    s_cmp_lt_u32 s{sQo}, 0x10000
    s_waitcnt vmcnt(0)
    s_cbranch_scc1 L_sblk
    s_endpgm
"""
    return t

HDR = """; Kernarg layout for this problem (48 bytes, ptrs only, base s[0:1]):
;   offset   0: d_in[0] q  shape=(16, 32, 512, 128) dtype=bfloat16
;   offset   8: d_in[1] k  shape=(16, 4, 512, 128) dtype=bfloat16
;   offset  16: d_in[2] v  shape=(16, 4, 512, 128) dtype=bfloat16
;   offset  24: d_out     shape=(16, 32, 512, 128) dtype=bfloat16
;   offset  32: d_debug   256 bytes
;   offset  40: d_ws      268435456 bytes workspace (unused)
; @launch grid=(256,1,1) block=(256,1,1) lds=163840
"""

def full(cfg):
    body = generate(cfg)
    r = full2(cfg, body)
    if cfg.stamps in ("cyc", "c16"): r = r.replace("s_memrealtime", "s_memtime")
    if cfg.stamps == "both":
        import re
        r = re.sub(r"    s_memrealtime s\[(\d+):(\d+)\]", lambda m: f"    s_memtime s[{m.group(1)}:{m.group(2)}]\n    s_memrealtime s[{int(m.group(1))+20}:{int(m.group(2))+20}]", r)
        for i in range(8): r = r.replace(f"v_mov_b32 v{65+2*i}, s{61+2*i}\n", f"v_mov_b32 v{65+2*i}, s{80+2*i}\n")
    return r

def full2(cfg, body):
    return HDR + f""".amdgcn_target "amdgcn-amd-amdhsa--gfx950"
.text
.globl {KN}
.p2align 8
.type {KN},@function
{KN}:
""" + head(cfg) + body + "\n" + tail(cfg) + f""".section .rodata,"a"
.p2align 6
.amdhsa_kernel {KN}
  .amdhsa_next_free_vgpr 512
  .amdhsa_next_free_sgpr 102
  .amdhsa_accum_offset 256
  .amdhsa_group_segment_fixed_size 0
  .amdhsa_kernarg_size 48
  .amdhsa_user_sgpr_count 2
  .amdhsa_user_sgpr_kernarg_segment_ptr 1
  .amdhsa_system_sgpr_workgroup_id_x 1
.end_amdhsa_kernel
"""

if __name__ == "__main__":
    cfg = Cfg()
    name = sys.argv[1]
    for a in sys.argv[2:]:
        k, v = a.split("=", 1)
        try: v = eval(v)
        except Exception: pass
        setattr(cfg, k, v)
    s = full(cfg)
    open(name, "w").write(s)
    tot = sum(v[0] for v in cfg.est.values())
    print(name, "est head", cfg.est_head, "total", tot, "mfma", sum(v[1] for v in cfg.est.values()), file=sys.stderr)
    print(" ".join(f"{s}:{v[0]}/{v[1]}" for s, v in cfg.est.items() if s < 16 or s >= 32), file=sys.stderr)
```

```python
import sys, math, struct
KN = "standalone__gqa_softmax__near_ridge_kernel"

class Cfg:
    sigma = (0, 2, 4, 6)
    beta = 0.85
    beta_small = 0.55
    ds_lat = 9
    mv_lat = 4
    store_x4 = True
    q_nt = "nt"
    st_pol = "sc0 sc1"
    k_pol = "nt"
    v_pol = ""
    v_pol0 = "nt"
    rot = 0
    split_from = 3
    split_min_u = 2
    arr_gap = 10
    vm_gap = 5
    smooth = True
    stamps = False
    code_pf = True
    plan = "K0 Q0 C K1 W00 V0 S0 B r0 r1 R0 K2 S1@0.0 V1@0.0 Q1@0.5 K3@1.0 V2@1.3 K4@1.6 R1@2.0 Q2@2.2 V3@2.3 K5@2.b K6@3.b R2@3.b Q3@4.0 K7@4.b R3@5.b Q4@6.0"
    vperm = True
    st_last = "sc0 sc1"
    st_last_from = 38
    ones_rows = 8
    trunc = False
    fake_st = False
    fake_v = False
    fake_m0 = 0
    v_n0 = 8
    st_block = 0
    deep = True
    tail_dl = 1.0
    betas = {0: 0.95, 1: 0.9, 2: 0.9, 3: 0.8}
    arr_gap_small = 4
    k_up = 1
    force_slow = False
    nop_ds = True
    ds_gap = 2
    ds_cap = 1024
    kill_from = None
    pad = 0
    kill = ()
    limit_exp = 32

vQd, vO, vQr, vCnt, vD0, vD1, vChk = 1, 2, 3, 4, 5, 6, 7
vKl = 0
vV = 8
vS = 16
vL = 32
vR = 48
vKw = 50
vT = 52
NT = 5
vIdx = 57
vPoll = 58
vJ = 59
vKr = 60
vP = 64
vOa = 128
aQ, aKp, aVp, aK, aV = 0, 64, 128, 192, 224
vOne, vCone, vKp1 = 12, 6, 52
TV = 4
TMPS = [44, 45, 46, 47, 56]
sQ_, sK_, sV_, sO_, sC_ = 12, 16, 20, 24, 28
sTile = 32
sM0 = 96
sQo, sOo, sCnt, sScale, sWave = 42, 43, 44, 45, 3
sTmp = 46
sMq, sExp, sMask, sPerm = 52, 53, 54, 55

VB, VSTR, KSH = 0x18000 - 32, 16384 + 8, 32
def vr(b, n=1): return [f"v{b+i}" for i in range(n)]
def ar(b, n=1): return [f"a{b+i}" for i in range(n)]
def vt(b, n): return f"v[{b}:{b+n-1}]"
def at(b, n): return f"a[{b}:{b+n-1}]"

class Op:
    def __init__(s, key, text, kind, reads, writes, cost=None, earliest=None, dummy=False, anchor=None, maxdl=None):
        s.key, s.text, s.kind, s.reads, s.writes = key, text, kind, list(reads), list(writes)
        s.cost = {"mfma": 0, "trans": 8, "valu": 4, "ds": 4, "dsw": 20, "load": 8, "dma": 8, "store": 12, "salu": 0, "bar": 0, "chk": 0}[kind] if cost is None else cost
        s.cnt = {"ds": "lgkm", "dsw": "lgkm", "load": "vm", "dma": "vm", "store": "vm"}.get(kind)
        s.earliest = earliest
        s.maxdl = maxdl
        s.dummy = dummy
        s.anchor = anchor
        s.preds = []; s.succs = []; s.win = None; s.pos = None; s.m = None
        s.prod = {}

def build(cfg, s0, s1, steady):
    sg = cfg.sigma
    NP = 4
    last = 32 + max(sg)
    def qk_on(s, u): return steady or (sg[u] <= s < sg[u] + 8 * NP)
    def pv_on(s, u): return steady or (sg[u] + 1 <= s < sg[u] + 8 * NP + 1)
    def order_qk(s, kb):
        us = [u for u in range(4) if qk_on(s, u)]
        if kb == 3:
            f = [u for u in us if (s - sg[u]) % 8 == 7]
            us = f + [u for u in us if u not in f]
        if kb == 0:
            f = [u for u in us if (s - sg[u]) % 8 == 0]
            us = [u for u in us if u not in f] + f
        return us
    prog = []
    A = prog.append
    chain = 0
    pend_q = []
    def qload(key, earliest=None, dummy=False):
        A(Op(key + ("m0",), f"s_mov_b32 m0, s{sMq}", "salu", [], ["m0"], dummy=dummy))
        for i in range(4):
            A(Op(key + (i,), f"buffer_load_dwordx4 v{vQd}, s[{sQ_}:{sQ_+3}], s{sQo} offen offset:{i*1024} {cfg.q_nt} lds".replace("  ", " "), "dma",
                 [f"s{sQo}", "m0"] + [f"Qrd{d}" for d in range(4)], [f"Qs{i}"], earliest=earliest, dummy=dummy))
        A(Op(key + ("inc",), f"s_add_u32 s{sQo}, s{sQo}, 4096", "salu", [f"s{sQo}"], [f"s{sQo}"], dummy=dummy))
    def qread(key, u, earliest=None, dummy=False):
        for ds in range(4):
            d = aQ + 16 * u + 4 * ds
            A(Op(key + (ds,), f"ds_read_b128 {at(d,4)}, v{vQr} offset:{ds*64}", "ds", [f"Qs{i}" for i in range(4)], ar(d, 4) + [f"Qrd{ds}"], earliest=earliest, dummy=dummy))
    def kfrag(s, kb, ds):
        t = s % 8
        if (t, kb, ds) == (1, 0, 0): return ("v", vKp1)
        if t == 0 or (not steady and s >= 34): return ("a", aKp + kb * 16 + ds * 4)
        if not steady and s <= 4: return ("a", aK + kb * 16 + ds * 4)
        return ("a", aK + (kb & 1) * 16 + ds * 4)
    def vperm_(sv): return sv % 8 == TV and (steady or sv >= 8)
    def vfrag(sv, db):
        if sv % 8 == TV or (not steady and sv < TV): return aVp + db * 8
        if not steady and sv >= 34 and db >= 4: return aQ + (db - 4) * 8
        return aV + (db & 3) * 8
    rt = lambda f, n: f"{f[0]}[{f[1]}:{f[1]+n-1}]"
    rr = lambda f, n: [f"{f[0]}{f[1]+i}" for i in range(n)]
    def vslot(sv):
        if not steady and sv in (2, 3, 34, 35): return sv & 1
        if not steady and sv == 37: return 3
        return 2 + (((sv - TV - 1) % 8) & 1)
    def vprev(sv):
        if vslot(sv) < 2: return ["Kret67"] if sv > 8 else []
        p = sv - 1
        while p >= 0 and (vslot(p) != vslot(sv) or vperm_(p)): p -= 1
        return [f"Vret{p}"] if p >= 0 else []
    vissued = set()
    def vdma(sv, earliest=None):
        vissued.add(sv)
        A(Op(("m0", sv), f"s_mov_b32 m0, s{sM0 + vslot(sv)}", "salu", ["setup~"], ["m0"]))
        for i in range(4):
            A(Op(("dma", sv, i), f"buffer_load_dwordx4 v{vD0}, s[{sV_}:{sV_+3}], s{sTile + sv % 8} offen offset:{i*1024} {cfg.v_pol0 if (not steady and sv < cfg.v_n0) else cfg.v_pol} lds".replace("  ", " "), "dma",
                 ["m0"] + vprev(sv), [f"Vd{sv}_{i}"], earliest=earliest))
    kstage = {}
    def kregs(t):
        u = KST[t][0]; h = KST[t][1]
        if h == "P": return [vP + (ds >> 1) * 32 + u * 8 + (ds & 1) * 4 for ds in range(4)]
        return [vOa + (h * 4 + ds) * 16 + u * 4 for ds in range(4)]
    KST = [(1, 0), (1, 1), (2, 0), (2, 1), (3, 0), (3, 1), (3, "P"), (3, 0)]
    if cfg.k_up == 8: KST = [(0, 0), (0, 1), (1, 0), (1, 1), (2, 0), (2, 1), (3, 0), (3, 1)]
    def kload(t, earliest=None):
        for ds, r in enumerate(kregs(t)):
            A(Op(("kld", t, ds), f"buffer_load_dwordx4 {vt(r,4)}, v{vKl}, s[{sK_}:{sK_+3}], s{sTile + t} offen offset:{ds*1024} {cfg.k_pol}".rstrip(), "load",
                 [], vr(r, 4), earliest=earliest))
    tmpc = [0]
    def kscale(t, earliest=None):
        for ds, r in enumerate(kregs(t)):
            for j in range(4):
                x = r + j; tm = TMPS[tmpc[0] % NT]; tmpc[0] += 1
                k = ("ksc", t, ds, j)
                A(Op(k + (0,), f"v_lshlrev_b32 v{tm}, 16, v{x}", "valu", vr(x), vr(tm), earliest=earliest))
                A(Op(k + (1,), f"v_and_b32 v{x}, s{sMask}, v{x}", "valu", vr(x), vr(x), earliest=earliest))
                A(Op(k + (2,), f"v_mul_f32 v{tm}, s{sScale}, v{tm}", "valu", vr(tm), vr(tm)))
                A(Op(k + (3,), f"v_mul_f32 v{x}, s{sScale}, v{x}", "valu", vr(x), vr(x)))
                A(Op(k + (4,), f"v_cvt_pk_bf16_f32 v{x}, v{tm}, v{x}", "valu", vr(tm) + vr(x), vr(x)))
            tl = 3 if t == 0 else t
            if t == 4 and ds == 0:
                A(Op(("kwa", t, ds), f"v_add_u32 v{vKw}, {0x10000 - KSH}, v{vKw}", "valu", vr(vKw), vr(vKw)))
            a = vKw + (1 if (t == 1 and ds < 2) else 0)
            A(Op(("kw", t, ds), f"ds_write_b128 v{a}, {vt(r,4)} offset:{(tl & 3) * 16384 + (ds >> 1) * 4096 + (ds & 1) * 128 - (KSH if tl < 4 else 0)}", "dsw",
                 vr(r, 4) + vr(a) + (["K0dead"] if t in (3, 4) else []) + ([f"Vret{v}" for v in range(2, t - 3)] if t >= 6 and cfg.deep else []), [f"Kw{t}_{ds}"]))
    nmf = [0]
    kpub = set()
    def kread1(s, t, kb):
        for ds in range(4):
            perm = t == 0 or (t, kb, ds) == (1, 0, 0)
            if perm and (steady or s > 7): continue
            d = kfrag(s, kb, ds); tl = 3 if t == 0 else (4 if perm else t)
            A(Op(("kr", s, kb, ds), f"ds_read_b128 {rt(d,4)}, v{vKr + 2 * (tl >> 2) + (ds & 1)} offset:{(tl & 3) * 16384 + kb * 4096 + ds * 1024 - (KSH if tl < 4 else 0)}", "ds",
                 [] if (steady or s > 7) else [f"Kok{t}"], rr(d, 4) + ([] if not perm else [f"Kr0_{kb}_{ds}" if t == 0 else "Kr1"])))
    kdone0 = set(); kscaled = []
    later = {}
    if not steady:
        H = (-1, 0)
        def issue(item, when):
            n0 = len(prog)
            n = int(item[1:]) if item[1:].isdigit() else None
            if item[0] == "K": kload(n, when)
            elif item[0] == "Q": qload(("q0", n) if n < 4 else ("q", 8, 0), when)
            elif item[0] == "R": qread(("qr0", n), n, when)
            elif item[0] == "V": vdma(n, when)
            elif item[0] == "S": kscale(n, when); kscaled.append(n)
            elif item[0] == "r": kread1(0, 0, n); kdone0.add(n)
            elif item[0] == "W":
                A(Op(("wt", 0, item), "s_nop 0", "valu", vr(kregs(int(item[1]))[int(item[2])], 4), []))
            elif item[0] == "T":
                A(Op(("ts", 0, item), f"s_memrealtime s[{64+2*n}:{65+2*n}]", "valu", [], []))
            elif item[0] == "X":
                A(Op(("wt", 0, item), "s_nop 0", "valu", [f"Qs{i}" for i in range(4)], []))
            elif item[0] == "B":
                pub = [t for t in kscaled if t not in kpub]; kpub.update(pub)
                A(Op(("bar", -1), "s_barrier", "bar", ["Czero"] + [f"Kw{t}_{ds}" for t in pub for ds in range(4)], [f"Kok{t}" for t in pub], anchor=H))
            elif item[0] == "C":
                pf = f"buffer_load_dword v{vJ}, v{vJ}, s[{sC_}:{sC_+3}], 0 offen"
                A(Op(("cpf", 0), head2(cfg).replace("@CPF", "    " + pf).strip(), "load", [], ["junk"], earliest=when, cost=300))
                A(Op(("setup", 0), "s_nop 0", "valu", [], ["setup~", f"s{sExp}"]))
                A(Op(("cz", 1), f"ds_write_b32 v{vCnt}, v{vPoll}", "dsw", [], ["Czero"], cost=8))
            if when == H:
                for x in prog[n0:]: x.maxdl = H
        for item in cfg.plan.split():
            if "@" not in item: issue(item, H)
            else:
                it, pos = item.split("@"); st, fr = pos.split(".")
                later.setdefault(int(st), []).append((it, fr))
    for s in range(s0, s1):
        t = s % 8
        uq = [u for u in range(4) if qk_on(s, u)]
        up = order_qk(s - 1, 3) if (steady or s > 0) else []
        up = [u for u in up if pv_on(s, u)]
        qk = [(kb, u) for kb in range(4) for u in order_qk(s, kb)]
        pv = []
        fin = [u for u in up if (s - 1 - sg[u]) % 8 == 7]
        ones_order = fin + [u for u in up if u not in fin]
        for db in range(8):
            for u in up: pv.append(("pv", db, u))
        npv = len(pv)
        ins = {}
        for i, u in enumerate(ones_order):
            if u in fin: p = len(up)
            else: p = len(up) + (npv - len(up)) * i // max(1, len(ones_order))
            ins.setdefault(p, []).append(("one", 0, u))
        pv2 = []
        for i, c in enumerate(pv):
            pv2 += ins.get(i, []); pv2.append(c)
        pv = pv2
        seq = []
        if qk:
            j = 0
            lag = 1 if len(uq) <= 2 and pv else 0
            for i, c in enumerate(qk):
                seq.append(("qk",) + c)
                tgt = math.ceil(max(0, i + 1 - lag) * len(pv) / (len(qk) - lag))
                while j < tgt: seq.append(pv[j]); j += 1
        else:
            seq = pv
        nm = sum({"qk": 4, "pv": 2, "one": 1}[c[0]] for c in seq)
        beta = cfg.beta if len(uq) >= 3 else cfg.beta_small
        barpos = int(beta * nm)
        if not steady and s in cfg.betas: barpos = int(cfg.betas[s] * nm)
        vdone = set(); kdone = set(kdone0) if (s == 0 and not steady) else set(); bar_done = False
        Pw = vP + 32 * (s & 1); Pr = vP + 32 * ((s - 1) & 1)
        def vreads(db):
            if db in vdone or vperm_(s - 1): return
            vdone.add(db)
            for ks in range(2):
                for h in range(2):
                    d = vfrag(s - 1, db) + ks * 4 + h * 2
                    A(Op(("vr", s, db, ks, h), f"ds_read_b64_tr_b16 {at(d,2)}, v{vV+(db>>1)} offset:{vslot(s-1)*VSTR + ks*4096 + h*2048 + (db&1)*8}", "ds",
                         [f"Vok{s-1}"], ar(d, 2) + [f"Vr{s-1}_{db}_{ks}_{h}"]))
        def kreads(kb):
            if kb in kdone: return
            kdone.add(kb); kread1(s, t, kb)
        def barrier():
            rd = []; wr = []
            pubv, retv, nxt = [s], [s - 1], [s + 1]
            if vperm_(s + 1): retv = []; nxt = []
            if vperm_(s): pubv = []; retv = [s - 2, s - 1]
            if vperm_(s - 1): retv = []
            if not steady:
                retv = {1: [], 2: [0], 3: [1], 4: [2], 5: [3, 4], 34: []}.get(s, retv)
                pubv = {34: [34, 35, 37]}.get(s, pubv)
                nxt = {0: [], 1: [], 2: [4], 3: [5], 4: [], 32: [33, 34, 35], 33: [37], 34: []}.get(s, nxt)
                if s == 32: wr.append("Kret67")
                if s >= 35: return
                nxt = [v for v in nxt if v < last and v not in vissued and not any(it == f"V{v}" for l in later.values() for it, _ in l)]
            for v in retv:
                if v < 0: continue
                if v == s - 1:
                    for db in range(8): vreads(db)
                rd += [f"Vr{v}_{db}_{ks}_{h}" for db in range(8) for ks in range(2) for h in range(2)]
                wr.append(f"Vret{v}")
            for v in pubv:
                assert steady or v in vissued, v
                rd += [f"Vd{v}_{i}" for i in range(4)]; wr.append(f"Vok{v}")
            if not steady and s + 1 <= 7 and s + 1 not in kpub:
                if s + 1 not in kscaled: kscale(s + 1, ((s - 1, "bar") if s >= 1 else (-1, 0))); kscaled.append(s + 1)
                kpub.add(s + 1)
                rd += [f"Kw{s+1}_{ds}" for ds in range(4)]; wr.append(f"Kok{s+1}")
            if not steady and s == 1:
                rd += [f"Kr0_{kb}_{ds}" for kb in range(4) for ds in range(4)]; wr.append("K0dead")
                rd.append("Kr1")
            if (steady or s >= cfg.split_from) and len(uq) >= cfg.split_min_u:
                ag = cfg.arr_gap if len(uq) >= 3 else cfg.arr_gap_small
                A(Op(("arr", s), f"ds_add_u32 v{vCnt}, v{vCone}", "dsw", rd, ["Carr"], cost=8, anchor=(s, "bar", -ag - cfg.ds_lat - 1)))
                A(Op(("exp", s), f"s_add_u32 s{sExp}, s{sExp}, 4", "salu", [f"s{sExp}"], [f"s{sExp}"]))
                A(Op(("pol", s), f"ds_read_b32 v{vPoll}, v{vCnt}", "ds", ["Carr~"], vr(vPoll), anchor=(s, "bar", -cfg.ds_lat - 1)))
                A(Op(("cmp", s), f"v_cmp_gt_u32 vcc, s{sExp}, v{vPoll}", "valu", vr(vPoll) + [f"s{sExp}"], ["vcc"], anchor=(s, "bar", -2)))
                A(Op(("bar", s), f"s_cbranch_vccnz L_spin{s if (not steady and (s < 8 or s >= 32)) else 8 + s % 8}", "bar", ["vcc"] + vr(vPoll) + [f"s{sExp}"], wr, anchor=(s, "bar")))
            else:
                A(Op(("bar", s), "s_barrier", "bar", rd, wr, anchor=(s, "bar")))
            for v in nxt: vdma(v, None)
            for it, fr in later.get(s, []):
                if fr == "b": issue(it, (s, "bar"))
        todo_items = [(it, int(fr) / 10 ** len(fr)) for it, fr in later.get(s, []) if fr != "b"]
        mcount = 0
        for c in seq:
            if not bar_done and mcount >= barpos:
                barrier(); bar_done = True
            while todo_items and mcount >= todo_items[0][1] * nm:
                issue(todo_items.pop(0)[0], (s, "off", mcount))
            if c[0] == "qk":
                _, kb, u = c
                kreads(kb)
                if kb == 0 and (s - sg[u]) % 8 == 0 and (steady or s - sg[u] >= 8):
                    qread(("qr", s, u), u)
                    un = (u + 1) % 4; sn = s + (sg[un] - sg[u]) % 8
                    pend_q.append((("q", sn, un), not steady and sn - sg[un] >= 8 * NP))
                    if True:
                        k_, d_ = pend_q.pop(); qload(k_, dummy=d_)
                S = vS + 4 * (chain % 4); chain += 1
                for ds in range(4):
                    kf = kfrag(s, kb, ds); qf = aQ + u * 16 + ds * 4
                    A(Op(("qk", s, kb, u, ds), f"v_mfma_f32_16x16x32_bf16 {vt(S,4)}, {rt(kf,4)}, {at(qf,4)}, {'0' if ds == 0 else vt(S,4)}", "mfma",
                         rr(kf, 4) + ar(qf, 4) + ([] if ds == 0 else vr(S, 4)), vr(S, 4)))
                for r in range(4):
                    A(Op(("ex", s, kb, u, r), f"v_exp_f32 v{S+r}, v{S+r}", "trans", vr(S + r), vr(S + r)))
                pd = Pw + u * 8 + kb * 2
                for r in range(2):
                    tx = f"v_perm_b32 v{pd+r}, v{S+2*r+1}, v{S+2*r}, s{sPerm}" if cfg.trunc else f"v_cvt_pk_bf16_f32 v{pd+r}, v{S+2*r}, v{S+2*r+1}"
                    A(Op(("cv", s, kb, u, r), tx, "valu", vr(S + 2 * r, 2), vr(pd + r)))
                mcount += 4
            elif c[0] == "pv":
                _, db, u = c
                vreads(db)
                first = (s - 1 - sg[u]) % 8 == 0
                o = vOa + db * 16 + u * 4
                for ks in range(2):
                    vf = vfrag(s - 1, db) + ks * 4; pf = Pr + u * 8 + ks * 4
                    z = first and ks == 0
                    A(Op(("pv", s, db, u, ks), f"v_mfma_f32_16x16x32_bf16 {vt(o,4)}, {at(vf,4)}, {vt(pf,4)}, {'0' if z else vt(o,4)}", "mfma",
                         ar(vf, 4) + vr(pf, 4) + ([] if z else vr(o, 4)), vr(o, 4)))
                mcount += 2
            else:
                _, _, u = c
                first = (s - 1 - sg[u]) % 8 == 0
                l = vL + 4 * u
                if first:
                    for r in range(2): A(Op(("lz", s, u, r), f"v_mov_b32 v{l+r}, 0", "valu", [], vr(l + r)))
                pf = Pr + u * 8
                A(Op(("on", s, u), f"v_smfmac_f32_16x16x64_bf16 {vt(l,4)}, {vt(vOne,4)}, {vt(pf,8)}, v{vIdx}", "mfma", vr(pf, 8) + vr(l, 2), vr(l, 4)))
                mcount += 1
        if not bar_done: barrier()
        for it, _ in todo_items: issue(it, (s, "off", mcount))
        if not steady and s == 31:
            qread(("qr", 32, 0), 0, dummy=True)
            qload(("q", 32 + sg[1], 1), dummy=True)
        for u in sorted(fin):
            l = vL + 4 * u; R = vR + (u & 1)
            A(Op(("la", s, u), f"v_add_f32 v{l}, v{l}, v{l+1}", "valu", vr(l, 2), vr(l)))
            A(Op(("rc", s, u), f"v_rcp_f32 v{R}, v{l}", "trans", vr(l), vr(R)))
            A(Op(("ck", s, u), f"v_max3_u32 v{vChk}, v{vChk}, v{l}, v{R}", "valu", vr(vChk) + vr(l) + vr(R), vr(vChk)))
            for db in range(8):
                o = vOa + db * 16 + u * 4
                for r in range(4):
                    A(Op(("mu", s, u, db, r), f"v_mul_f32 v{o+r}, v{o+r}, v{R}", "valu", vr(o + r) + vr(R), vr(o + r)))
                if not cfg.store_x4:
                    for r in range(2):
                        A(Op(("oc", s, u, db, r), f"v_cvt_pk_bf16_f32 v{o+r}, v{o+2*r}, v{o+2*r+1}", "valu", vr(o + 2 * r, 2), vr(o + r)))
                    A(Op(("st", s, u, db), f"buffer_store_dwordx2 {vt(o,2)}, v{vO}, s[{sO_}:{sO_+3}], s{sOo} offen offset:{db*32} {cfg.st_pol}".rstrip(), "store",
                         vr(o, 2) + [f"s{sOo}"], []))
                else:
                    if db & 1:
                        e = o - 16
                        A(Op(("oc", s, u, db, 3), f"v_cvt_pk_bf16_f32 v{o+3}, v{o+2}, v{o+3}", "valu", vr(o + 2, 2), vr(o + 3)))
                        A(Op(("oc", s, u, db, 2), f"v_cvt_pk_bf16_f32 v{o+2}, v{o}, v{o+1}", "valu", vr(o, 2), vr(o + 2)))
                        A(Op(("oc", s, u, db, 0), f"v_cvt_pk_bf16_f32 v{o}, v{e}, v{e+1}", "valu", vr(e, 2), vr(o)))
                        A(Op(("oc", s, u, db, 1), f"v_cvt_pk_bf16_f32 v{o+1}, v{e+2}, v{e+3}", "valu", vr(e + 2, 2), vr(o + 1)))
                        for r in range(2):
                            if cfg.vperm: break
                            A(Op(("sw", s, u, db, r), f"v_permlane16_swap_b32 v{o+r}, v{o+2+r}", "valu", vr(o + r) + vr(o + 2 + r), vr(o + r) + vr(o + 2 + r), cost=8))
                        A(Op(("st", s, u, db), f"buffer_store_dwordx4 {vt(o,4)}, v{vO}, s[{sO_}:{sO_+3}], s{sOo} offen offset:{(db-1)*(512 if cfg.fake_st else 32)} {cfg.st_last if (not steady and s >= cfg.st_last_from) else cfg.st_pol}".rstrip(), "store",
                             vr(o, 4) + [f"s{sOo}"], [], cost=20))
            if not steady and 32 <= s < last:
                for x in prog:
                    if x.key[:3] == ("st", s, u): x.maxdl = (s + 1, "frac", (x.key[3] + 1) / 8 * cfg.tail_dl)
            A(Op(("oinc", s, u), f"s_add_u32 s{sOo}, s{sOo}, 4096", "salu", [f"s{sOo}"], [f"s{sOo}"]))
    return prog

def link(cfg, prog):
    lastw = {}; readers = {}
    m = 0
    for x in prog:
        if x.kind == "mfma": x.m = m; m += 1
    for x in prog:
        e = {}
        def add(p, typ):
            if p is x: return
            soft = hard = 0
            if p.kind == "mfma":
                if x.kind == "mfma": return
                if typ in ("raw", "waw"): soft = cfg.mv_lat + (2 if p.key[0] == "on" else 0)
                elif x.kind in ("valu", "trans"): soft = 1
            elif x.kind == "mfma":
                hard = soft = 1
                if typ == "raw":
                    soft = cfg.ds_lat if p.kind == "ds" else (1 if p.kind == "load" else 2)
                elif p.kind == "store": soft = 2
            elif x.kind == "bar" or x.key[0] == "arr":
                hard = 1; soft = {"ds": cfg.ds_lat, "dsw": cfg.ds_lat, "dma": 2}.get(p.kind, 1)
            elif p.kind == "bar":
                soft = hard = 0
            elif p.kind == "salu":
                soft = 2; hard = 1 if x.kind != "salu" else 1
            elif x.kind == "salu":
                soft = hard = 1
            elif typ == "raw":
                if p.kind == "trans": soft = 1
                elif p.kind == "ds" and x.kind == "dma": soft = cfg.ds_lat
                elif p.kind == "valu" and x.kind in ("store", "dsw", "ds"): soft = 1
                elif p.kind == "valu" and "permlane" in x.text: soft = 2
            else:
                if p.kind in ("valu", "trans") and x.kind in ("load", "ds", "dma"): soft = 1
                if p.kind in ("store", "dsw"): soft = 1
            o = e.get(id(p))
            e[id(p)] = (p, max(soft, o[1]) if o else soft, max(hard, o[2]) if o else hard)
        for r in x.reads:
            if r in lastw: add(lastw[r], "raw"); x.prod[r] = lastw[r].key
        for r in x.writes:
            if r in lastw: add(lastw[r], "waw")
            for p in readers.get(r, []): add(p, "war")
        for r in x.reads: readers.setdefault(r, []).append(x)
        for r in x.writes: lastw[r] = x; readers[r] = []
        x.preds = list(e.values())
        for p, so, ha in x.preds: p.succs.append((x, so, ha))
    return m

def step_of(x): return x.key[1]

def schedule(cfg, prog, nm, pins=None, lo=None, hi=None):
    pins = pins or {}; lo = lo or {}; hi = hi or {}
    start = {}; barw = {}
    cur = -1
    for x in prog:
        if x.kind == "mfma":
            cur = x.m; start.setdefault(x.key[1], x.m)
        elif x.kind == "bar": barw[x.key[1]] = cur
    def W(a):
        if a[0] == -1: return -1
        if a[1] == "bar": return barw.get(a[0], nm - 1) + (a[2] if len(a) > 2 else 0)
        if a[1] == "frac": return start[a[0]] - 1 + int(a[2] * (start.get(a[0] + 1, nm) - start[a[0]]))
        if a[1] == "off": return max(0, start[a[0]] - 1 + a[2])
        return start[a[0]] - 1
    fill = [x for x in prog if x.kind != "mfma"]
    for x in prog:
        if x.kind == "mfma": x.win = x.m
    for i, x in enumerate(prog): x.idx = i
    for x in reversed(fill):
        if x.key in pins: x.dls = x.dlh = pins[x.key][0]; continue
        if x.anchor: x.dls = x.dlh = W(x.anchor); continue
        ds = dh = nm - 1
        for y, so, ha in x.succs:
            if y.dummy and y.key not in pins: continue
            if y.kind == "mfma": ds = min(ds, y.m - so); dh = min(dh, y.m - ha)
            else: ds = min(ds, y.dls - so); dh = min(dh, y.dlh - ha)
        if x.key in hi: ds = min(ds, hi[x.key]); dh = min(dh, hi[x.key])
        if x.maxdl: ds = min(ds, W(x.maxdl)); dh = min(dh, W(x.maxdl))
        x.dls, x.dlh = ds, max(dh, -1)
    wins = {w: [] for w in range(-1, nm)}
    for x in fill:
        x.win = None
        x.lo = max(W(x.earliest) if x.earliest else -1, lo.get(x.key, -1))
        if x.anchor: x.lo = x.dlh
    pinned_by_win = {}
    for x in fill:
        if x.key in pins: pinned_by_win.setdefault(pins[x.key][0], []).append(x)
    todo = [x for x in fill if x.key not in pins and not x.dummy]
    todo.sort(key=lambda x: x.idx)
    credit = [0]
    mfl = [x for x in prog if x.kind == "mfma"]
    def ready(x, w, soft):
        if w < x.lo: return False
        for p, so, ha in x.preds:
            if p.dummy and p.key not in pins: continue
            if p.win is None: return False
            lat = ha
            if soft and (p.kind not in ("load", "dma", "ds", "dsw") or x.kind == "dma"): lat = so
            if p.kind in ("store", "dsw") and soft: lat = max(lat, min(so, 1))
            if w == -1 or w == nm - 1: lat = 0
            if w < p.win + lat: return False
        return True
    for w in range(-1, nm):
        if w in pinned_by_win:
            for x in sorted(pinned_by_win[w], key=lambda x: pins[x.key][1]):
                x.win = w; wins[w].append(x)
        if pins and cfg._loop[0] <= w < cfg._loop[1]: continue
        cap = 8 if w >= 0 else 0
        if w >= 0 and mfl[w].key[0] == "on": cap = 4
        cap0 = cap
        rate = 8
        if cfg.smooth and pins and 0 <= w < nm - 1:
            acc = 0
            for x in sorted((x for x in todo[:900] if x.dls <= w + 120), key=lambda x: x.dls):
                acc += min(x.cost, 8)
                rate = max(rate, acc / (max(x.dls, w) - w + 1))
            credit[0] = credit[0] + rate - 8 if rate > 8.2 else 0
            credit[0] = min(credit[0], rate)
            extra = int(credit[0] // 4) * 4
            cap += extra
        used = 0
        cur = wins[w]
        def place(x):
            nonlocal used
            x.win = w; cur.append(x); used += min(x.cost, 8); todo.remove(x)
        while True:
            cand = [x for x in todo[:700] if ready(x, w, True) or (w >= x.dlh and ready(x, w, False))]
            if not cand: break
            z = [x for x in cand if x.kind in ("salu", "bar")]
            if z:
                place(z[0]); continue
            forced = [x for x in cand if x.dls <= w]
            if w == -1 or w == nm - 1:
                if not forced: break
                place(min(forced, key=lambda x: x.idx)); continue
            hasvalu_dep = lambda x: x.kind in ("ds", "dsw", "load", "dma", "store") and any(p.win == w and p.kind in ("valu", "trans") for p, _, _ in x.preds)
            hard_forced = forced
            if hard_forced:
                place(min(hard_forced, key=lambda x: (x.dls, x.idx))); continue
            if used >= cap: break
            nb = lambda x: 1024 if "b128" in x.text else 512
            dsb = sum(nb(x) for x in cur if x.kind == "ds")
            tight = rate > 8.2
            recent = (not tight) and any(y.kind == "ds" for k in range(1, cfg.ds_gap) for y in wins.get(w - k, []))
            vmk = ("load", "dma", "store")
            vgap = max(1, int(cfg.vm_gap * 16 / (8 + rate)))
            recent_vm = any(y.kind in vmk for k in range(0, vgap) for y in wins.get(w - k, []))
            dcap = cfg.ds_cap * (8 + cap) // 16
            if cfg.st_block and any(-4 * cfg.vm_gap <= b - w <= cfg.st_block for b in barw.values()):
                cand = [x for x in cand if x.kind != "store"]
            cand = [x for x in cand if (x.kind != "ds" or (not recent and dsb + nb(x) <= dcap)) and not (x.kind in vmk and recent_vm)]
            if not cand: break
            cand.sort(key=lambda x: (-99999 if x.kind in ("load", "dma", "dsw", "store") else x.dls, x.idx))
            if cap - used >= 8:
                top = cand[0]
                if top.cost >= 8: place(top); continue
                small = [x for x in cand if x.cost == 4]
                big = [x for x in cand if x.cost >= 8]
                fits = lambda a, b: not (a.kind == "ds" and b.kind == "ds" and dsb + nb(a) + nb(b) > dcap)
                partner = any(fits(top, y) for y in small if y is not top) or any(y.cost == 4 and so == 0 and y.win is None and y.kind == "valu" and all(p.win is not None or p is top for p, _, _ in y.preds) for y, so, ha in top.succs)
                if partner or not big or (cap - used) % 8: place(top)
                else: place(big[0])
                continue
            small = [x for x in cand if x.cost == 4]
            if not small: break
            place(small[0])
        if w >= 0: credit[0] -= max(0, min(used, cap) - cap0)
        if w not in (-1, nm - 1):
            order = {"bar": 0, "salu": 0, "dma": 1, "load": 1, "store": 1, "dsw": 1, "ds": 1, "valu": 2, "trans": 2}
            lvl = {}
            for x in cur:
                l = order[x.kind]
                for p, _, _ in x.preds:
                    if p.win == w and p.kind != "mfma": l = max(l, lvl[id(p)])
                lvl[id(x)] = l
            cur.sort(key=lambda x: lvl[id(x)])
    assert not todo, [x.key for x in todo[:10]]
    for w, c in wins.items():
        for i, x in enumerate(c): x.pos = i
    return wins, start

def norm(key, d):
    return (key[0], key[1] + d) + tuple(key[2:])

class Ins:
    def __init__(s, text, op=None, kind=None):
        s.text, s.op, s.kind = text, op, kind or (op.kind if op else "salu")
        s.vm = None; s.lg = None

def generate(cfg):
    last = 32 + max(cfg.sigma)
    cfg.q_ahead = getattr(cfg, "q_ahead", 2)
    cfg.code_pf_n = getattr(cfg, "code_pf_n", 2)
    sp = build(cfg, 0, 56, True); nms = link(cfg, sp)
    swins, sstart = schedule(cfg, sp, nms)
    per = sstart[8] - sstart[0]
    ok = None
    for b in (16, 24, 32):
        same = all([x.text for x in swins[sstart[b] + i]] == [x.text for x in swins[sstart[b + 8] + i]] and
                   [norm(x.key, 8) for x in swins[sstart[b] + i]] == [x.key for x in swins[sstart[b + 8] + i]] for i in range(per))
        if same: ok = b; break
    assert ok is not None, "steady state not periodic"
    rp = build(cfg, 0, last + 1, False); nm = link(cfg, rp)
    rstart = {}
    for x in rp:
        if x.kind == "mfma": rstart.setdefault(x.key[1], x.m)
    L0, L1 = rstart[8], rstart[32]
    assert L1 - L0 == 3 * per
    cfg._loop = (L0, L1)
    pins = {}
    for it in range(3):
        for i in range(per):
            for x in swins[sstart[ok] + i]:
                pins[norm(x.key, 8 + 8 * it - ok)] = (L0 + it * per + i, x.pos)
    keys = {x.key: x for x in rp}
    assert len(keys) == len(rp)
    missing = [k for k in pins if k not in keys]
    assert not missing, missing[:10]
    lo = {}; hi = {}
    mid = (keys[("qk", 20, 0, 0, 0)])
    midx = rp.index(mid)
    for i, x in enumerate(rp):
        if x.kind == "mfma" or x.key in pins: continue
        if i < midx: hi[x.key] = L0 - 1
        else: lo[x.key] = L1
    wins, start = schedule(cfg, rp, nm, pins, lo, hi)
    mf = [x for x in rp if x.kind == "mfma"]
    def stat(w):
        return L0 + (w - L0) % per if L0 <= w < L1 else w
    free = {}
    pre = {}
    for w in range(-1, nm):
        if stat(w) == w:
            free[w] = []
            if w not in (-1, nm - 1):
                for x in wins[w]:
                    if x.kind == "bar": free[w].append(Ins(x.text, x))
    def body(w):
        if w in (-1, nm - 1): return wins[w]
        return [x for x in wins[w] if x.kind not in ("salu", "bar")]
    def walk(fix):
        q = {"vm": [], "lgkm": []}
        pend = {}
        hist = {}
        changed = False
        def dowait(ins):
            for c, n in (("vm", ins.vm), ("lgkm", ins.lg)):
                if n is None: continue
                while len(q[c]) > n:
                    d = q[c].pop(0)
                    for r in d.writes:
                        if pend.get(r) is d: del pend[r]
        def need(x):
            n = {}
            for r in x.reads + x.writes:
                p = pend.get(r)
                if p is not None and not (r in x.writes and r not in x.reads and p.cnt == x.cnt):
                    n[p.cnt] = p if (p.cnt not in n or q[p.cnt].index(p) > q[p.cnt].index(n[p.cnt])) else n[p.cnt]
            return n
        def issue(x):
            if x.cnt:
                q[x.cnt].append(x)
                for r in x.writes: pend[r] = x
        def setw(ins, c, n):
            n = min(n, 62 if c == "vm" else 14)
            if c == "vm": ins.vm = n if ins.vm is None else min(ins.vm, n)
            else: ins.lg = n if ins.lg is None else min(ins.lg, n)
        def handle(x, w, pos, cands):
            nonlocal changed
            n = need(x)
            if not n: return
            assert fix, ("unwaited", x.key, {c: p.key for c, p in n.items()})
            changed = True
            for c, p in n.items():
                done = False
                for cw in cands:
                    if cw < 0 or cw == nm - 1 or cw not in hist: continue
                    snap = hist[cw][c]
                    if p not in snap: continue
                    fl = free[stat(cw)]
                    wi = [i for i in fl if i.kind == "wait"]
                    if not wi and fl and cw != cands[-1]: continue
                    if not wi:
                        wi = [Ins("", None, "wait")]; fl.insert(0, wi[0])
                    setw(wi[0], c, len(snap) - 1 - snap.index(p)); done = True; break
                if not done:
                    ins = pre.setdefault((stat(w), pos), Ins("", None, "wait"))
                    setw(ins, c, len(q[c]) - 1 - q[c].index(p))
                while p in q[c]:
                    d = q[c].pop(0)
                    for r in d.writes:
                        if pend.get(r) is d: del pend[r]
        for w in range(-1, nm):
            if w >= 0:
                if (stat(w), "m") in pre: dowait(pre[(stat(w), "m")])
                handle(mf[w], w, "m", [w - 1, w - 2])
            hist[w] = {c: list(v) for c, v in q.items()}
            hist.pop(w - 4, None)
            for ins in list(free[stat(w)]):
                if ins.kind == "wait": dowait(ins)
                elif ins.kind == "bar":
                    x = [y for y in wins[w] if y.kind == "bar"][0]
                    handle(x, w, "b", [w - 1, w - 2, w])
            for pos, x in enumerate(body(w)):
                if (stat(w), pos) in pre: dowait(pre[(stat(w), pos)])
                handle(x, w, pos, [w, w - 1])
                issue(x)
        return changed
    for _ in range(10):
        if not walk(True): break
    walk(False)
    for w in range(0, nm - 1):
        if stat(w) != w: continue
        for x in wins[w]:
            if x.kind != "salu": continue
            hiw = min([y.win - (1 if "m0" in x.writes or y.kind == "salu" else 0) for y, _, _ in x.succs if y.win is not None] + [w + 40, nm - 2])
            if L0 <= w < L0 + per: hiw = min(hiw, L0 + per - 3)
            elif w < L0: hiw = min(hiw, L0 - 1)
            hiw = max(hiw, w)
            c = [k for k in range(w, hiw + 1) if not free[k]]
            c2 = [k for k in c if body(k) and body(k)[0].kind in ("ds", "dma", "load", "store", "dsw")]
            k = c2[0] if c2 else (c[0] if c else w)
            free[k].append(Ins(x.text, x)); x.fw = k
    k = [k for k in range(L0 + per - 2, L0 + per) if not free[k]]
    k = k[0] if k else L0 + per - 1
    if any(i.text.startswith("s_add") for kk in range(k + 1, L0 + per) for i in free[kk]): k = L0 + per - 1
    free[k].append(Ins(f"s_sub_u32 s{sCnt}, s{sCnt}, 1"))
    if cfg.nop_ds:
        for w in range(0, nm - 1):
            if stat(w) == w and not free[w] and body(w) and body(w)[0].kind in ("ds", "dma", "load", "store", "dsw"):
                free[w].append(Ins("s_nop 0", None, "nop"))
    def wtext(i):
        t = "s_waitcnt"
        if i.vm is not None: t += f" vmcnt({i.vm})"
        if i.lg is not None: t += f" lgkmcnt({i.lg})"
        return t
    code = {}
    for w in range(-1, nm):
        if stat(w) != w: continue
        l = []
        if w >= 0:
            if (w, "m") in pre: l.append(pre[(w, "m")])
            l.append(Ins(mf[w].text, mf[w]))
        l += free[w]
        for pos, x in enumerate(body(w)):
            if (w, pos) in pre: l.append(pre[(w, pos)])
            l.append(Ins(x.text, x))
        for i in l:
            if i.kind == "wait": i.text = wtext(i)
        code[w] = l
    def wcost(l, head=False):
        t = 0; base = 0; lastvalu = -99; blk = 8
        for i in l:
            if i.kind == "mfma": base = t; t += 4; blk = 12 if "smfmac" in i.text else 8; continue
            if i.kind in ("salu", "wait", "bar", "nop"): t += 4; continue
            if i.kind == "nopx": t += 4 * (int(i.text.split()[1]) + 1); continue
            if not head: t = max(t, base + blk)
            if i.kind in ("valu", "trans"): t += i.op.cost; lastvalu = t
            else:
                t = max(t, lastvalu + 8) + i.op.cost
        return t if head else max(t, base + 16)
    def hazards(fix):
        seq = []
        changed = False
        for w in range(-1, nm):
            l = code[stat(w)]
            j = 0
            while j < len(l):
                i = l[j]; x = i.op
                needn = 0
                if x is not None and x.kind not in ("salu", "bar"):
                    dist = 0
                    for p, st, pwin in reversed(seq):
                        y = p.op
                        if y is not None:
                            req = 0
                            raw = set(y.writes) & set(x.reads); waw = set(y.writes) & set(x.writes); war = set(y.reads) & set(x.writes)
                            if y.kind == "mfma":
                                if x.kind == "mfma":
                                    if set(y.writes) & set(x.reads[:8]): req = 8
                                elif raw or waw: req = 12 if y.key[0] == "on" else 8
                                elif war and x.kind in ("valu", "trans") and set(y.writes) & set(x.writes): req = 3
                            elif y.kind in ("valu", "trans"):
                                if raw and x.kind == "mfma": req = 2
                                if raw and "permlane" in x.text: req = 2
                                if raw and y.kind == "trans" and x.kind != "trans": req = max(req, 1)
                            elif y.kind in ("store", "dsw") and war and y.cost == 20: req = 2
                            elif y.kind == "salu" and "m0" in y.writes and x.kind == "dma": req = 1
                            if req - dist > needn: needn = req - dist; pw = pwin
                        dist += st
                        if dist >= 12: break
                if needn > 0:
                    assert fix, ("hazard", x.key)
                    for k in range(w, pw - 1, -1):
                        if k < 0: break
                        lk = code[stat(k)]
                        mi = [n for n, z in enumerate(lk) if z.kind == "mfma"][0]
                        places = []
                        if k > pw and (k < w or j > mi): places.append(mi + 1)
                        if k < w: places.append(len(lk))
                        ok_ = False
                        for pl in places:
                            tr = lk[:pl] + [Ins("s_nop 0", None, "nopx")] + lk[pl:]
                            if wcost(tr) == wcost(lk): lk[:] = tr; ok_ = True; break
                        if ok_: return True
                    l.insert(j, Ins(f"s_nop {needn-1}", None, "nopx")); changed = True
                    continue
                st = int(i.text.split()[1]) + 1 if i.text.startswith("s_nop") else 1
                seq.append((i, st, w)); seq = seq[-14:]
                j += 1
        return changed
    while hazards(True): pass
    lastw = {}; seen = set()
    for w in range(-1, nm):
        it = (w - L0) // per if L0 <= w < L1 else 0
        for i in code[stat(w)]:
            if i.op is None: continue
            x = keys[norm(i.op.key, 8 * it)]
            assert x.text == i.text, (x.text, i.text)
            assert x.key not in seen; seen.add(x.key)
            if not x.dummy:
                for r in x.reads:
                    assert lastw.get(r) == x.prod.get(r), ("dataflow", x.key, r, lastw.get(r), x.prod.get(r))
            for r in x.writes: lastw[r] = x.key
    assert all(x.key in seen or x.dummy for x in rp), [x.key for x in rp if x.key not in seen and not x.dummy][:5]
    est = {}
    for s in range(0, last + 1):
        e = rstart.get(s + 1, nm)
        est[s] = (sum(wcost(code[stat(w)]) for w in range(rstart[s], e)), (e - rstart[s]) * 16)
    cfg.est = est; cfg.est_head = wcost(code[-1], True)
    out = []
    cfg.spins = []
    E = out.append
    stamp_at = getattr(cfg, "stamp_steps", [])
    inv = {v: k for k, v in rstart.items()}
    for w in range(-1, nm):
        if stat(w) != w: continue
        if w == L0:
            if cfg.stamps and 7.9 in stamp_at:
                j = stamp_at.index(7.9); E(f"    s_memrealtime s[{64+2*j}:{65+2*j}]")
            E("L_loop:")
        if w in inv:
            E(f"; ---- step {inv[w]} ----")
            if cfg.stamps and inv[w] in stamp_at:
                j = stamp_at.index(inv[w]); E(f"    s_memrealtime s[{64+2*j}:{65+2*j}]")
        for i in code[w]:
            if i.op is not None and i.op.key[0] in cfg.kill and (L0 if cfg.kill_from is None else cfg.kill_from) <= w: E("    s_nop 0")
            else: E("    " + i.text)
            if cfg.pad and i.kind == "mfma" and L0 <= w < L1 and w % cfg.pad == 0: E("    s_nop 4")
            if i.text.startswith("s_cbranch_vccnz L_spin"):
                n = i.text.split("L_spin")[1]; E(f"L_back{n}:"); cfg.spins.append(n)
        if w == L0 + per - 1: E("    s_cbranch_scc0 L_loop")
    return "\n".join(out)

def fbits(x): return struct.unpack("<I", struct.pack("<f", x))[0]

def head(cfg):
    T = vS
    h = f"""    s_load_dwordx4 s[4:7], s[0:1], 0          ; q, k
    s_load_dwordx4 s[8:11], s[0:1], 16        ; v, out
"""
    if cfg.stamps: h += f"    s_load_dwordx2 s[56:57], s[0:1], {32 if cfg.stamps in ('dbg', 'skew') else 40}\n    s_memrealtime s[60:61]\n"
    h += f"""    v_lshrrev_b32 v{T}, 6, v0
    v_and_b32 v{T+4}, 63, v0                  ; lane
    v_readfirstlane_b32 s{sWave}, v{T}
    s_cmp_ge_u32 s2, 256
    s_cbranch_scc1 L_end
    v_and_b32 v{T+1}, 15, v0                  ; l & 15
    v_bfe_u32 v{T+2}, v0, 4, 2                ; l >> 4
    v_lshlrev_b32 v{vKl}, 4, v{T+4}           ; lane*16
    s_and_b32 s{sTmp}, s2, 7
    s_lshr_b32 s{sTmp+1}, s2, 3
    s_lshl_b32 s{sTmp}, s{sTmp}, 5
    s_add_u32 s{sTmp}, s{sTmp}, s{sTmp+1}
    s_lshl2_add_u32 s{sTmp+2}, s{sTmp}, s{sWave}
    s_lshl_b32 s{sTmp+2}, s{sTmp+2}, 16       ; q/o byte offset of this wave
    s_lshr_b32 s{sTmp}, s{sTmp}, 2
    s_lshl_b32 s{sTmp}, s{sTmp}, 17           ; k/v byte offset of the group
    s_lshl_b32 s{sMq}, s{sWave}, 12           ; wave*4096
    s_add_u32 s{sTmp+3}, s{sTmp}, s{sMq}
    s_sub_u32 s{sK_+2}, 0x20000, s{sMq}
    s_mov_b32 s{sK_+3}, 0x20000
    s_mov_b32 s{sQ_+3}, s{sK_+3}
    s_mov_b32 s{sQ_+2}, 0x10000
"""
    if cfg.rot:
        h += f"""    s_bfe_u32 s{sTmp+4}, s2, 0x20003
    s_mul_i32 s{sTile}, s{sTmp+4}, {cfg.rot*16384}
    s_and_b32 s{sTile}, s{sTile}, 0x1ffff
    s_add_u32 s{sTile+1}, s{sTile}, 16384
    s_and_b32 s{sTile+1}, s{sTile+1}, 0x1ffff
"""
    else: h += f"    s_mov_b32 s{sTile}, 0\n    s_movk_i32 s{sTile+1}, 0x4000\n"
    h += f"""    s_mov_b32 s{sQo}, 0
    v_lshlrev_b32 v{T+3}, 8, v{T+2}           ; (l>>4)*256
    v_xor_b32 v{T+5}, v{T+1}, v{T+2}          ; (l&15) ^ (l>>4)
    v_lshl_add_u32 v{vQd}, v{T+5}, 4, v{T+3}
    s_waitcnt lgkmcnt(0)
    s_add_u32 s{sK_}, s6, s{sTmp+3}
    s_addc_u32 s{sK_+1}, s7, 0
    s_add_u32 s{sQ_}, s4, s{sTmp+2}
    s_addc_u32 s{sQ_+1}, s5, 0
"""
    if cfg.stamps: h += "    s_memrealtime s[62:63]\n"
    return h

def head2(cfg):
    c = math.log2(math.e) / math.sqrt(128.0)
    T = vS
    h = f"""    ; code prefetch into L2: 16 lines per wave, 8 KiB per workgroup
    s_getpc_b64 s[{sC_}:{sC_+1}]
L_pc:
    s_mov_b32 s{sC_+2}, L_slow - L_pc
    s_mov_b32 s{sC_+3}, 0x20000
    s_bfe_u32 s{sTmp+1}, s2, 0x30003
    s_lshl2_add_u32 s{sTmp+1}, s{sTmp+1}, s{sWave}
    s_lshl_b32 s{sTmp+1}, s{sTmp+1}, 11
    v_lshlrev_b32 v{vJ}, 5, v{T+4}
    v_add_u32 v{vJ}, s{sTmp+1}, v{vJ}
@CPF
    s_add_u32 s{sV_}, s8, s{sTmp}
    s_addc_u32 s{sV_+1}, s9, 0
    s_add_u32 s{sO_}, s10, s{sTmp+2}
    s_addc_u32 s{sO_+1}, s11, 0
    s_mov_b32 s{sV_+2}, 0x20000
    s_mov_b32 s{sV_+3}, 0x20000
    s_mov_b32 s{sO_+2}, 0x10000
    s_mov_b32 s{sO_+3}, 0x20000
"""
    for t in range(2, 8):
        if cfg.rot: h += f"    s_add_u32 s{sTile+t}, s{sTile+t-1}, 16384\n    s_and_b32 s{sTile+t}, s{sTile+t}, 0x1ffff\n"
        else: h += f"    s_mov_b32 s{sTile+t}, {t*16384}\n"
    h += f"""    s_lshr_b32 s{sTmp+1}, s{sWave}, 1
    s_lshl3_add_u32 s{sTmp+4}, s{sTmp+1}, s{sMq}
    s_add_u32 s{sM0}, s{sTmp+4}, {VB}
    s_add_u32 s{sM0+1}, s{sTmp+4}, {VB + VSTR}
    s_add_u32 s{sM0+2}, s{sTmp+4}, {VB + 2 * VSTR}
    s_add_u32 s{sM0+3}, s{sTmp+4}, {VB + 3 * VSTR}
    s_mov_b32 s{sOo}, 0
    s_mov_b32 s{sExp}, 0
    s_mov_b32 s{sCnt}, 2
    s_mov_b32 s{sScale}, {fbits(c):#x}
    s_mov_b32 s{sMask}, 0xffff0000
    s_mov_b32 s{sPerm}, 0x07060302
    ; K fragment read addresses: g*256 + (row ^ g ^ 4*(ds&1))*16
    v_mov_b32 v{vKr}, v{vQd}
    v_xor_b32 v{vKr+1}, 64, v{vQd}
    v_add_u32 v{vKr+2}, {0x10000 - KSH}, v{vKr}
    v_add_u32 v{vKr+3}, {0x10000 - KSH}, v{vKr+1}
    s_lshl_b32 s{sTmp+1}, s{sTmp+1}, 6
    s_and_b32 s{sTmp+4}, s{sWave}, 1
    s_lshl_b32 s{sTmp+5}, s{sTmp+4}, 13
    v_and_b32 v{T+6}, 7, v{T+5}
    v_lshlrev_b32 v{T+7}, 8, v{T+1}           ; (l&15)*256
    v_lshl_add_u32 v{T+6}, v{T+6}, 4, v{T+7}
    v_xor_b32 v{T+6}, s{sTmp+1}, v{T+6}
    v_add_u32 v{vKw}, s{sTmp+5}, v{T+6}
    v_cmp_gt_u32 vcc, 1024, v{vKw}
    v_add_u32 v{T+6}, {3 * 16384}, v{vKw}
    v_and_b32 v{T+8}, 3, v{T+5}
    v_cndmask_b32 v{vKw+1}, v{vKw}, v{T+6}, vcc
    v_lshl_add_u32 v{T+6}, v{T+8}, 4, v{T+7}
    v_add_u32 v{vQr}, s{sMq}, v{T+6}
    ; V DMA source offsets: row r=l>>4, 64-byte unit (c16>>2)^(key&3)
    v_lshlrev_b32 v{T+6}, 2, v{T+2}
    v_xor_b32 v{T+6}, v{T+6}, v{T+1}
    v_lshl_add_u32 v{T+6}, v{T+6}, 4, v{T+3}
    v_add_u32 v{vD0}, s{sMq}, v{T+6}
    ; V transposed-read addresses: lane = 16g+4r+c reads 8 bytes of chunk c of unit (db>>1)^r of key 32(g&1)+8kb+4(g>>1)+r
    v_bfe_u32 v{T+8}, v{T+4}, 2, 2            ; r
    v_lshlrev_b32 v{T+6}, 4, v{T+1}           ; r*64 + c*16
    v_lshl_add_u32 v{T+6}, v{T+8}, 8, v{T+6}
    v_lshrrev_b32 v{T+8}, 1, v{T+2}
    v_lshl_add_u32 v{T+6}, v{T+8}, 10, v{T+6}
    v_and_b32 v{T+8}, 1, v{T+2}
    v_mul_u32_u24 v{T+8}, 8200, v{T+8}
    v_add_u32 v{T+8}, {VB}, v{T+8}
    v_and_b32 v{T+9}, 3, v{T+4}
"""
    for m in range(4):
        if m: h += f"    v_xor_b32 v{T+10}, {m * 64}, v{T+6}\n"
        h += f"    v_add_u32 v{vV+m}, v{T+8}, v{T+10 if m else T+6}\n"
    h += f"    v_lshl_add_u32 v{vO}, v{T+2}, 4, v{T+7}\n"
    h += f"""    ; row-sum operand: rows 4i and 4i+1 are ones; they pick elements 0,1 and 2,3 of every group of four keys
    v_cmp_eq_u32 vcc, 1, v{T+9}
    v_mov_b32 v{T+6}, 0x44444444
    v_mov_b32 v{T+8}, 0xeeeeeeee
    v_cndmask_b32 v{vIdx}, v{T+6}, v{T+8}, vcc
    v_cmp_gt_u32 vcc, {0 if cfg.ones_rows == 0 else 2}, v{T+9 if cfg.ones_rows == 8 else T+1}
    v_mov_b32 v{T+6}, 0x3f803f80
    v_mov_b32 v{vChk}, {'-1' if cfg.force_slow else '0'}
    v_cndmask_b32 v{T+6}, 0, v{T+6}, vcc
    v_lshlrev_b32 v{vCnt}, 2, v{T+4}
    v_add_u32 v{vCnt}, 0x4000, v{vCnt}
    v_mov_b32 v{vOne}, v{T+6}
    v_mov_b32 v{vOne+1}, v{T+6}
    v_mov_b32 v{vOne+2}, v{T+6}
    v_mov_b32 v{vOne+3}, v{T+6}
    v_mov_b32 v{vCone}, 1
    v_mov_b32 v{vPoll}, 0
"""
    return h

def tail(cfg):
    lim = (127 + cfg.limit_exp) << 23
    t = ""
    if cfg.stamps == "skew":
        t += """    s_mov_b32 s58, 256
    s_mov_b32 s59, 0x20000
    s_not_b32 s64, s60
    v_mov_b32 v64, s64
    v_mov_b32 v60, 0
    s_mov_b64 exec, 1
    s_cmp_lg_u32 s3, 0
    s_cbranch_scc1 L_sk1
    buffer_atomic_umax v64, v60, s[56:59], 0 offen
    s_waitcnt vmcnt(0)
L_sk1:
    s_memrealtime s[72:73]
    s_waitcnt lgkmcnt(0)
    s_sub_u32 s72, s72, s60
    s_cmp_lt_u32 s72, 8000
    s_cbranch_scc1 L_sk1
    buffer_load_dword v64, v60, s[56:59], 0 offen sc0 sc1
    s_waitcnt vmcnt(0)
    v_readfirstlane_b32 s64, v64
    s_nop 4
    s_not_b32 s64, s64
L_sk2:
    s_memrealtime s[72:73]
    s_waitcnt lgkmcnt(0)
    s_sub_u32 s72, s72, s64
    s_cmp_lt_u32 s72, 10000
    s_cbranch_scc1 L_sk2
    s_mov_b64 exec, -1
"""
    elif cfg.stamps == "spin":
        if not getattr(cfg, "stamp_steps", []): t += "    s_waitcnt vmcnt(0)\n    s_memrealtime s[64:65]\n"
        t += f"""    s_waitcnt lgkmcnt(0)
    {"s_sub_u32 s64, s66, s64" if len(getattr(cfg, "stamp_steps", [])) == 2 else "s_sub_u32 s64, s64, s60"}
    s_mul_i32 s64, s64, {getattr(cfg, "spin_mul", 0)}
    s_add_u32 s64, s64, 10000
L_spin:
    s_memrealtime s[72:73]
    s_waitcnt lgkmcnt(0)
    s_sub_u32 s72, s72, s60
    s_cmp_lt_u32 s72, s64
    s_cbranch_scc1 L_spin
"""
    elif cfg.stamps:
        e0 = 88 if cfg.stamps == "c16" else 72
        t += f"""    s_memrealtime s[{e0}:{e0+1}]
    s_waitcnt vmcnt(0)
    s_memrealtime s[{e0+2}:{e0+3}]
    s_mov_b32 s58, 0x10000000
    s_mov_b32 s59, 0x20000
    s_lshl_b32 s46, s2, 2
    s_add_u32 s46, s46, s3
    s_lshl_b32 s46, s46, 6
    s_waitcnt lgkmcnt(0)
"""
        for i in range(16): t += f"    v_mov_b32 v{64+i}, s{60+(2*i if cfg.stamps == 'c16' else i)}\n"
        t += "    v_mov_b32 v60, 0\n    s_mov_b64 exec, 1\n"
        if cfg.stamps == "dbg":
            t += "    s_mov_b32 s58, 256\n"
            for i in range(8):
                t += f"    v_not_b32 v{65+2*i}, v{64+2*i}\n"
            for i in range(16): t += f"    buffer_atomic_umax v{64+i}, v60, s[56:59], 0 offen offset:{4*i}\n"
        else:
          for i in range(4): t += f"    buffer_store_dwordx4 v[{64+4*i}:{67+4*i}], v60, s[56:59], s46 offen offset:{16*i}\n"
        t += "    s_mov_b64 exec, -1\n"
    t += f"""    v_cmp_lt_u32 vcc, {lim:#x}, v{vChk}
    s_nop 4
    s_cbranch_vccnz L_slow
L_end:
    s_endpgm
"""
    for n in cfg.spins:
        t += f"""L_spin{n}:
    ds_read_b32 v{vPoll}, v{vCnt}
    s_waitcnt lgkmcnt(0)
    v_cmp_gt_u32 vcc, s{sExp}, v{vPoll}
    s_nop 4
    s_cbranch_vccnz L_spin{n}
    s_branch L_back{n}
"""
    S0, S1, M, T = 16, 20, 24, 25
    vQ = vQd; vKb = vKr + 2
    q = lambda ds: at(aQ + 4 * ds, 4)
    k = lambda j, ds: at(aK + j * 16 + 4 * ds, 4)
    t += f"""; Fallback: a row sum left [2^-{cfg.limit_exp}, 2^{cfg.limit_exp}] (or is not finite), so exp without an offset was not safe.
L_slow:
    s_waitcnt vmcnt(0) lgkmcnt(0)
    s_barrier                                 ; the other waves are done with LDS (ended or here)
    s_mov_b32 s{sQo}, 0
    s_lshl_b32 s{sTmp}, s{sWave}, 12
    s_lshl_b32 s{sTmp+1}, s{sWave}, 13
    s_add_u32 s{sTmp+2}, s{sTmp+1}, 0x20000
    s_add_u32 s{sTmp+3}, s{sTmp+2}, 4096
    v_subrev_u32 v{vD0}, s{sTmp}, v{vD0}
    v_bfe_u32 v{T}, v{vKl}, 4, 4              ; l & 15
    v_lshrrev_b32 v{T+1}, 8, v{vKl}           ; l >> 4
    v_lshlrev_b32 v{vQ}, 4, v{T+1}
    v_lshl_add_u32 v{vQ}, v{T}, 8, v{vQ}
    v_xor_b32 v{T+1}, v{T}, v{T+1}
    v_and_b32 v{T+1}, 7, v{T+1}
    v_lshlrev_b32 v{T+1}, 4, v{T+1}
    v_lshl_add_u32 v{vKw}, v{T}, 8, v{T+1}
    v_xor_b32 v{vKw+1}, 64, v{vKw}
    v_lshrrev_b32 v{T+1}, 6, v{vKl}           ; 4g+r
    v_lshlrev_b32 v{T+1}, 8, v{T+1}
    v_lshl_add_u32 v{T+1}, v{T}, 4, v{T+1}
    v_add_u32 v{vV}, s{sTmp+2}, v{T+1}
    v_xor_b32 v{vV+1}, 64, v{vV}
    v_xor_b32 v{vV+2}, 128, v{vV}
    v_xor_b32 v{vV+3}, 192, v{vV}
"""
    t += f"""    s_sub_u32 s{sK_}, s{sK_}, s{sTmp}
    s_subb_u32 s{sK_+1}, s{sK_+1}, 0
    s_mov_b32 s{sK_+2}, 0x20000
    s_mov_b32 s{sCnt}, 0
L_skld:
"""
    for i in range(4): t += f"    buffer_load_dwordx4 {vt(vOa+4*i,4)}, v{vKl}, s[{sK_}:{sK_+3}], s{sCnt} offen offset:{i*1024}\n"
    t += "    s_waitcnt vmcnt(0)\n"
    for x in range(vOa, vOa + 16):
        t += f"""    v_lshlrev_b32 v{T}, 16, v{x}
    v_and_b32 v{x}, s{sMask}, v{x}
    v_mul_f32 v{T}, s{sScale}, v{T}
    v_mul_f32 v{x}, s{sScale}, v{x}
    v_cvt_pk_bf16_f32 v{x}, v{T}, v{x}
"""
    for i in range(4): t += f"    ds_write_b128 v{vKw+(i&1)}, {vt(vOa+4*i,4)} offset:{(i>>1)*128}\n"
    t += f"""    s_waitcnt lgkmcnt(0)
    v_add_u32 v{vKw}, 4096, v{vKw}
    v_add_u32 v{vKw+1}, 4096, v{vKw+1}
    s_add_u32 s{sCnt}, s{sCnt}, 4096
    s_cmp_lt_u32 s{sCnt}, 0x20000
    s_cbranch_scc1 L_skld
"""
    t += "L_sblk:\n"
    for ds in range(4): t += f"    buffer_load_dwordx4 {q(ds)}, v{vQ}, s[{sQ_}:{sQ_+3}], s{sQo} offen offset:{ds*64}\n"
    t += f"""    v_mov_b32 v{M}, 0xff800000
    v_mov_b32 v{vKb}, v{vKr}
    v_mov_b32 v{vKb+1}, v{vKr+1}
    s_mov_b32 s{sCnt}, 32
    s_waitcnt vmcnt(0)
L_smax:
"""
    for ds in range(4): t += f"    ds_read_b128 {k(0,ds)}, v{vKb+(ds&1)} offset:{ds*1024}\n"
    t += "    s_waitcnt lgkmcnt(0)\n"
    for ds in range(4): t += f"    v_mfma_f32_16x16x32_bf16 {vt(S0,4)}, {k(0,ds)}, {q(ds)}, {'0' if ds == 0 else vt(S0,4)}\n"
    t += f"""    s_nop 7
    v_max3_f32 v{M}, v{M}, v{S0}, v{S0+1}
    v_max3_f32 v{M}, v{M}, v{S0+2}, v{S0+3}
    v_add_u32 v{vKb}, 4096, v{vKb}
    v_add_u32 v{vKb+1}, 4096, v{vKb+1}
    s_sub_u32 s{sCnt}, s{sCnt}, 1
    s_cmp_lg_u32 s{sCnt}, 0
    s_cbranch_scc1 L_smax
    v_mov_b32 v{T}, v{M}
    s_nop 1
    v_permlane16_swap_b32 v{M}, v{T}
    s_nop 1
    v_max_f32 v{M}, v{M}, v{T}
    v_mov_b32 v{T}, v{M}
    s_nop 1
    v_permlane32_swap_b32 v{M}, v{T}
    s_nop 1
    v_max_f32 v{M}, v{M}, v{T}
"""
    for r in range(4): t += f"    v_mov_b32 v{vL+r}, 0\n"
    for r in range(32): t += f"    v_mov_b32 v{vOa+r}, 0\n"
    t += f"""    v_mov_b32 v{vKb}, v{vKr}
    v_mov_b32 v{vKb+1}, v{vKr+1}
    s_mov_b32 s{sCnt}, 0
L_skey:
    s_mov_b32 m0, s{sTmp+2}
    s_mov_b32 s{sTmp+5}, s{sCnt}
    s_add_u32 s{sTmp+4}, s{sTmp+5}, 4096
"""
    for i in range(4): t += f"    buffer_load_dwordx4 v{vD0}, s[{sV_}:{sV_+3}], s{sTmp+5} offen offset:{i*1024} lds\n"
    t += f"    s_mov_b32 m0, s{sTmp+3}\n    s_nop 0\n"
    for i in range(4): t += f"    buffer_load_dwordx4 v{vD0}, s[{sV_}:{sV_+3}], s{sTmp+4} offen offset:{i*1024} lds\n"
    for j in range(2):
        for ds in range(4): t += f"    ds_read_b128 {k(j,ds)}, v{vKb+(ds&1)} offset:{j*4096+ds*1024}\n"
    t += "    s_waitcnt vmcnt(0) lgkmcnt(0)\n"
    for db in range(8):
        for h in range(2): t += f"    ds_read_b64_tr_b16 {at(aV+db*4+2*h,2)}, v{vV+(db>>1)} offset:{h*4096+(db&1)*8}\n"
    for j, S in enumerate((S0, S1)):
        for ds in range(4): t += f"    v_mfma_f32_16x16x32_bf16 {vt(S,4)}, {k(j,ds)}, {q(ds)}, {'0' if ds == 0 else vt(S,4)}\n"
    t += "    s_nop 7\n"
    for r in range(8): t += f"    v_sub_f32 v{S0+r}, v{S0+r}, v{M}\n"
    for r in range(8): t += f"    v_exp_f32 v{S0+r}, v{S0+r}\n"
    t += "    s_nop 0\n"
    for r in range(4): t += f"    v_cvt_pk_bf16_f32 v{vP+r}, v{S0+2*r}, v{S0+2*r+1}\n"
    t += f"    v_add_u32 v{vKb}, 8192, v{vKb}\n    v_add_u32 v{vKb+1}, 8192, v{vKb+1}\n    s_waitcnt lgkmcnt(0)\n    s_nop 0\n"
    t += f"    v_mfma_f32_16x16x32_bf16 {vt(vL,4)}, {vt(vOne,4)}, {vt(vP,4)}, {vt(vL,4)}\n"
    for db in range(8): t += f"    v_mfma_f32_16x16x32_bf16 {vt(vOa+4*db,4)}, {at(aV+db*4,4)}, {vt(vP,4)}, {vt(vOa+4*db,4)}\n"
    t += f"""    s_add_u32 s{sCnt}, s{sCnt}, 8192
    s_cmp_lt_u32 s{sCnt}, 0x20000
    s_cbranch_scc1 L_skey
    s_nop 7
    v_rcp_f32 v{vR}, v{vL}
    s_nop 0
"""
    for r in range(32): t += f"    v_mul_f32 v{vOa+r}, v{vOa+r}, v{vR}\n"
    for db in range(8):
        o = vOa + 4 * db; d = vP + 2 * db
        t += f"    v_cvt_pk_bf16_f32 v{d}, v{o}, v{o+1}\n    v_cvt_pk_bf16_f32 v{d+1}, v{o+2}, v{o+3}\n"
    if cfg.store_x4:
        t += "    s_nop 1\n"
        for db in range(0, 8, 2):
            d = vP + 2 * db
            if not cfg.vperm: t += f"    v_permlane16_swap_b32 v{d}, v{d+2}\n    v_permlane16_swap_b32 v{d+1}, v{d+3}\n"
            t += f"    buffer_store_dwordx4 {vt(d,4)}, v{vO}, s[{sO_}:{sO_+3}], s{sQo} offen offset:{db*32}\n"
    else:
        for db in range(8): t += f"    buffer_store_dwordx2 {vt(vP+2*db,2)}, v{vO}, s[{sO_}:{sO_+3}], s{sQo} offen offset:{db*32}\n"
    t += f"""    s_add_u32 s{sQo}, s{sQo}, 4096
    s_cmp_lt_u32 s{sQo}, 0x10000
    s_waitcnt vmcnt(0)
    s_cbranch_scc1 L_sblk
    s_endpgm
"""
    return t

HDR = """; Kernarg layout for this problem (48 bytes, ptrs only, base s[0:1]):
;   offset   0: d_in[0] q  shape=(16, 32, 512, 128) dtype=bfloat16
;   offset   8: d_in[1] k  shape=(16, 4, 512, 128) dtype=bfloat16
;   offset  16: d_in[2] v  shape=(16, 4, 512, 128) dtype=bfloat16
;   offset  24: d_out     shape=(16, 32, 512, 128) dtype=bfloat16
;   offset  32: d_debug   256 bytes
;   offset  40: d_ws      268435456 bytes workspace (unused)
; @launch grid=(256,1,1) block=(256,1,1) lds=163840
"""

def full(cfg):
    body = generate(cfg)
    r = full2(cfg, body)
    if cfg.stamps in ("cyc", "c16"): r = r.replace("s_memrealtime", "s_memtime")
    if cfg.stamps == "both":
        import re
        r = re.sub(r"    s_memrealtime s\[(\d+):(\d+)\]", lambda m: f"    s_memtime s[{m.group(1)}:{m.group(2)}]\n    s_memrealtime s[{int(m.group(1))+20}:{int(m.group(2))+20}]", r)
        for i in range(8): r = r.replace(f"v_mov_b32 v{65+2*i}, s{61+2*i}\n", f"v_mov_b32 v{65+2*i}, s{80+2*i}\n")
    return r

def full2(cfg, body):
    return HDR + f""".amdgcn_target "amdgcn-amd-amdhsa--gfx950"
.text
.globl {KN}
.p2align 8
.type {KN},@function
{KN}:
""" + head(cfg) + body + "\n" + tail(cfg) + f""".section .rodata,"a"
.p2align 6
.amdhsa_kernel {KN}
  .amdhsa_next_free_vgpr 512
  .amdhsa_next_free_sgpr 102
  .amdhsa_accum_offset 256
  .amdhsa_group_segment_fixed_size 0
  .amdhsa_kernarg_size 48
  .amdhsa_user_sgpr_count 2
  .amdhsa_user_sgpr_kernarg_segment_ptr 1
  .amdhsa_system_sgpr_workgroup_id_x 1
.end_amdhsa_kernel
"""

if __name__ == "__main__":
    cfg = Cfg()
    name = sys.argv[1]
    for a in sys.argv[2:]:
        k, v = a.split("=", 1)
        try: v = eval(v)
        except Exception: pass
        setattr(cfg, k, v)
    s = full(cfg)
    open(name, "w").write(s)
    tot = sum(v[0] for v in cfg.est.values())
    print(name, "est head", cfg.est_head, "total", tot, "mfma", sum(v[1] for v in cfg.est.values()), file=sys.stderr)
    print(" ".join(f"{s}:{v[0]}/{v[1]}" for s, v in cfg.est.items() if s < 16 or s >= 32), file=sys.stderr)
```

```python
import sys, math, struct
KN = "standalone__gqa_softmax__near_ridge_kernel"

class Cfg:
    sigma = (0, 2, 4, 6)
    beta = 0.85
    beta_small = 0.55
    ds_lat = 9
    mv_lat = 4
    store_x4 = True
    q_nt = "nt"
    st_pol = "sc0 sc1"
    k_pol = "nt"
    v_pol = ""
    v_pol0 = "nt"
    rot = 0
    split_from = 3
    split_min_u = 2
    arr_gap = 10
    vm_gap = 5
    smooth = True
    stamps = False
    code_pf = True
    plan = "K0 Q0 C K1 W00 V0 S0 B r0 r1 R0 K2 S1@0.0 V1@0.0 Q1@0.5 K3@1.0 V2@1.3 K4@1.6 R1@2.0 Q2@2.2 V3@2.3 K5@2.b K6@3.b R2@3.b Q3@4.0 K7@4.b R3@5.b Q4@6.0"
    vperm = True
    st_last = "sc0 sc1"
    st_last_from = 38
    ones_rows = 8
    trunc = False
    fake_st = False
    fake_v = False
    fake_m0 = 0
    v_n0 = 8
    st_block = 0
    c_pol = ""
    st_first = None
    st_pair = False
    fetch_thr = 1
    fetch_slack = 1
    st_gap = 16
    st_gap_all = False
    pf2 = False
    x8 = False
    qr_asap = False
    full_until = 99
    kst = [(1, 0), (1, 1), (2, 0), (2, 1), (3, 0), (3, 1), (3, "P"), (3, 0)]
    deep = True
    tail_dl = 1.0
    betas = {0: 0.95, 1: 0.9, 2: 0.9, 3: 0.8}
    arr_gap_small = 4
    k_up = 1
    force_slow = False
    nop_ds = True
    ds_gap = 2
    ds_cap = 1024
    kill_from = None
    pad = 0
    kill = ()
    limit_exp = 32

vQd, vO, vQr, vCnt, vD0, vD1, vChk = 1, 2, 3, 4, 5, 6, 7
vKl = 0
vV = 8
vS = 16
vL = 32
vR = 48
vKw = 50
vT = 52
NT = 5
vIdx = 57
vPoll = 58
vJ = 59
vKr = 60
vP = 64
vOa = 128
aQ, aKp, aVp, aK, aV = 0, 64, 128, 192, 224
vOne, vCone, vKp1, vO2, vO3 = 12, 6, 52, 56, 59
sPol = 40
TV = 4
TMPS = [44, 45, 46, 47, 56]
sQ_, sK_, sV_, sO_, sC_ = 12, 16, 20, 24, 28
sTile = 32
sM0 = 96
sQo, sOo, sCnt, sScale, sWave = 42, 43, 44, 45, 3
sTmp = 46
sMq, sExp, sMask, sPerm = 52, 53, 54, 55

VB, VSTR, KSH = 0x18000 - 32, 16384 + 8, 32
def vr(b, n=1): return [f"v{b+i}" for i in range(n)]
def ar(b, n=1): return [f"a{b+i}" for i in range(n)]
def vt(b, n): return f"v[{b}:{b+n-1}]"
def at(b, n): return f"a[{b}:{b+n-1}]"

class Op:
    def __init__(s, key, text, kind, reads, writes, cost=None, earliest=None, dummy=False, anchor=None, maxdl=None):
        s.key, s.text, s.kind, s.reads, s.writes = key, text, kind, list(reads), list(writes)
        s.cost = {"mfma": 0, "trans": 8, "valu": 4, "ds": 4, "dsw": 20, "load": 8, "dma": 8, "store": 12, "salu": 0, "bar": 0, "chk": 0}[kind] if cost is None else cost
        s.cnt = {"ds": "lgkm", "dsw": "lgkm", "load": "vm", "dma": "vm", "store": "vm"}.get(kind)
        s.earliest = earliest
        s.maxdl = maxdl
        s.dummy = dummy
        s.anchor = anchor
        s.preds = []; s.succs = []; s.win = None; s.pos = None; s.m = None
        s.prod = {}

def build(cfg, s0, s1, steady):
    sg = cfg.sigma
    NP = 4
    last = 32 + max(sg)
    def qk_on(s, u): return steady or (sg[u] <= s < sg[u] + 8 * NP)
    def pv_on(s, u): return steady or (sg[u] + 1 <= s < sg[u] + 8 * NP + 1)
    def order_qk(s, kb):
        us = [u for u in range(4) if qk_on(s, u)]
        if kb == 3:
            f = [u for u in us if (s - sg[u]) % 8 == 7]
            us = f + [u for u in us if u not in f]
        if kb == 0:
            f = [u for u in us if (s - sg[u]) % 8 == 0]
            us = [u for u in us if u not in f] + f
        return us
    prog = []
    A = prog.append
    chain = 0
    pend_q = []
    def qload(key, earliest=None, dummy=False):
        A(Op(key + ("m0",), f"s_mov_b32 m0, s{sMq}", "salu", [], ["m0"], dummy=dummy))
        for i in range(4):
            A(Op(key + (i,), f"buffer_load_dwordx4 v{vQd}, s[{sQ_}:{sQ_+3}], s{sQo} offen offset:{i*1024} {cfg.q_nt} lds".replace("  ", " "), "dma",
                 [f"s{sQo}", "m0"] + [f"Qrd{d}" for d in range(4)], [f"Qs{i}"], earliest=earliest, dummy=dummy))
        A(Op(key + ("inc",), f"s_add_u32 s{sQo}, s{sQo}, 4096", "salu", [f"s{sQo}"], [f"s{sQo}"], dummy=dummy))
    def qread(key, u, earliest=None, dummy=False):
        for ds in range(4):
            d = aQ + 16 * u + 4 * ds
            A(Op(key + (ds,), f"ds_read_b128 {at(d,4)}, v{vQr} offset:{ds*64}", "ds", [f"Qs{i}" for i in range(4)], ar(d, 4) + [f"Qrd{ds}"], earliest=earliest, dummy=dummy))
    def kfrag(s, kb, ds):
        t = s % 8
        if (t, kb, ds) == (1, 0, 0): return ("v", vKp1)
        if t == 0 or (not steady and s >= 34): return ("a", aKp + kb * 16 + ds * 4)
        if not steady and s <= 4: return ("a", aK + kb * 16 + ds * 4)
        return ("a", aK + (kb & 1) * 16 + ds * 4)
    def vperm_(sv): return sv % 8 == TV and (steady or sv >= 8)
    def vfrag(sv, db):
        if sv % 8 == TV or (not steady and sv < TV): return aVp + db * 8
        if not steady and sv >= 34 and db >= 4: return aQ + (db - 4) * 8
        return aV + (db & 3) * 8
    rt = lambda f, n: f"{f[0]}[{f[1]}:{f[1]+n-1}]"
    rr = lambda f, n: [f"{f[0]}{f[1]+i}" for i in range(n)]
    def vslot(sv):
        if not steady and sv in (2, 3, 34, 35): return sv & 1
        if not steady and sv == 37: return 3
        return 2 + (((sv - TV - 1) % 8) & 1)
    def vprev(sv):
        if vslot(sv) < 2: return ["Kret67"] if sv > 8 else []
        p = sv - 1
        while p >= 0 and (vslot(p) != vslot(sv) or vperm_(p)): p -= 1
        return [f"Vret{p}"] if p >= 0 else []
    vissued = set()
    def vdma(sv, earliest=None):
        vissued.add(sv)
        A(Op(("m0", sv), f"s_mov_b32 m0, s{sM0 + vslot(sv)}", "salu", ["setup~"], ["m0"]))
        for i in range(4):
            A(Op(("dma", sv, i), f"buffer_load_dwordx4 v{vD0}, s[{sV_}:{sV_+3}], s{sTile + sv % 8} offen offset:{i*1024} {cfg.v_pol0 if (not steady and sv < cfg.v_n0) else cfg.v_pol} lds".replace("  ", " "), "dma",
                 ["m0"] + vprev(sv), [f"Vd{sv}_{i}"], earliest=earliest))
    kstage = {}
    def kregs(t):
        u = KST[t][0]; h = KST[t][1]
        if h == "P": return [vP + (ds >> 1) * 32 + u * 8 + (ds & 1) * 4 for ds in range(4)]
        return [vOa + (h * 4 + ds) * 16 + u * 4 for ds in range(4)]
    KST = cfg.kst
    if cfg.k_up == 8: KST = [(0, 0), (0, 1), (1, 0), (1, 1), (2, 0), (2, 1), (3, 0), (3, 1)]
    def kload(t, earliest=None):
        for ds, r in enumerate(kregs(t)):
            A(Op(("kld", t, ds), f"buffer_load_dwordx4 {vt(r,4)}, v{vKl}, s[{sK_}:{sK_+3}], s{sTile + t} offen offset:{ds*1024} {cfg.k_pol}".rstrip(), "load",
                 [], vr(r, 4), earliest=earliest))
    tmpc = [0]
    def kscale(t, earliest=None):
        for ds, r in enumerate(kregs(t)):
            for j in range(4):
                x = r + j; tm = TMPS[tmpc[0] % NT]; tmpc[0] += 1
                k = ("ksc", t, ds, j)
                A(Op(k + (0,), f"v_lshlrev_b32 v{tm}, 16, v{x}", "valu", vr(x), vr(tm), earliest=earliest))
                A(Op(k + (1,), f"v_and_b32 v{x}, s{sMask}, v{x}", "valu", vr(x), vr(x), earliest=earliest))
                A(Op(k + (2,), f"v_mul_f32 v{tm}, s{sScale}, v{tm}", "valu", vr(tm), vr(tm)))
                A(Op(k + (3,), f"v_mul_f32 v{x}, s{sScale}, v{x}", "valu", vr(x), vr(x)))
                A(Op(k + (4,), f"v_cvt_pk_bf16_f32 v{x}, v{tm}, v{x}", "valu", vr(tm) + vr(x), vr(x)))
            tl = 3 if t == 0 else t
            if t == 4 and ds == 0:
                A(Op(("kwa", t, ds), f"v_add_u32 v{vKw}, {0x10000 - KSH}, v{vKw}", "valu", vr(vKw), vr(vKw)))
            a = vKw + (1 if (t == 1 and ds < 2) else 0)
            A(Op(("kw", t, ds), f"ds_write_b128 v{a}, {vt(r,4)} offset:{(tl & 3) * 16384 + (ds >> 1) * 4096 + (ds & 1) * 128 - (KSH if tl < 4 else 0)}", "dsw",
                 vr(r, 4) + vr(a) + (["K0dead"] if t in (3, 4) else []) + ([f"Vret{v}" for v in range(2, t - 3)] if t >= 6 and cfg.deep else []), [f"Kw{t}_{ds}"]))
    nmf = [0]
    kpub = set()
    def kread1(s, t, kb):
        for ds in range(4):
            perm = t == 0 or (t, kb, ds) == (1, 0, 0)
            if perm and (steady or s > 7): continue
            d = kfrag(s, kb, ds); tl = 3 if t == 0 else (4 if perm else t)
            A(Op(("kr", s, kb, ds), f"ds_read_b128 {rt(d,4)}, v{vKr + 2 * (tl >> 2) + (ds & 1)} offset:{(tl & 3) * 16384 + kb * 4096 + ds * 1024 - (KSH if tl < 4 else 0)}", "ds",
                 [] if (steady or s > 7) else [f"Kok{t}"], rr(d, 4) + ([] if not perm else [f"Kr0_{kb}_{ds}" if t == 0 else "Kr1"])))
    kdone0 = set(); kscaled = []
    later = {}
    if not steady:
        H = (-1, 0)
        def issue(item, when):
            n0 = len(prog)
            n = int(item[1:]) if item[1:].isdigit() else None
            if item[0] == "K": kload(n, when)
            elif item[0] == "Q": qload(("q0", n) if n < 4 else ("q", 8, 0), when)
            elif item[0] == "R": qread(("qr0", n), n, when)
            elif item[0] == "V": vdma(n, when)
            elif item[0] == "S": kscale(n, when); kscaled.append(n)
            elif item[0] == "r": kread1(0, 0, n); kdone0.add(n)
            elif item[0] == "W":
                A(Op(("wt", 0, item), "s_nop 0", "valu", vr(kregs(int(item[1]))[int(item[2])], 4), []))
            elif item[0] == "P":
                A(Op(("cpf", 1), f"buffer_load_dword v{vJ}, v{vJ}, s[{sC_}:{sC_+3}], 0 offen {cfg.c_pol}".rstrip(), "load", [], ["junk"], earliest=when))
            elif item[0] == "T":
                A(Op(("ts", 0, item), f"s_memrealtime s[{64+2*n}:{65+2*n}]", "valu", [], []))
            elif item[0] == "X":
                A(Op(("wt", 0, item), "s_nop 0", "valu", [f"Qs{i}" for i in range(4)], []))
            elif item[0] == "B":
                pub = [t for t in kscaled if t not in kpub]; kpub.update(pub)
                A(Op(("bar", -1), "s_barrier", "bar", ["Czero"] + [f"Kw{t}_{ds}" for t in pub for ds in range(4)], [f"Kok{t}" for t in pub], anchor=H))
            elif item[0] == "C":
                pf = f"buffer_load_dword v{vJ}, v{vJ}, s[{sC_}:{sC_+3}], 0 offen {cfg.c_pol}".rstrip()
                if cfg.pf2:
                    p1 = f"""    s_lshr_b32 s{sTmp+4}, s{sWave}, 1
    s_lshl1_add_u32 s{sTmp+4}, s2, s{sTmp+4}
    s_lshl_b32 s{sTmp+4}, s{sTmp+4}, 7
    v_and_b32 v{vS+15}, 0x70, v{vKl}
    buffer_load_dword v{vS+15}, v{vS+15}, s[{sC_}:{sC_+3}], s{sTmp+4} offen"""
                    A(Op(("cpf", 0), head2(cfg).replace("@CPF", p1).strip(), "load", [], vr(vS + 15), earliest=when, cost=300))
                elif " P" in cfg.plan: A(Op(("cpf", 0), head2(cfg).replace("@CPF\n", "").strip(), "valu", [], [], earliest=when, cost=300))
                else: A(Op(("cpf", 0), head2(cfg).replace("@CPF", "    " + pf).strip(), "load", [], ["junk"], earliest=when, cost=300))
                A(Op(("setup", 0), "s_nop 0", "valu", [], ["setup~", f"s{sExp}"]))
                A(Op(("cz", 1), f"ds_write_b32 v{vCnt}, v{vPoll}", "dsw", [], ["Czero"], cost=8))
            if when == H:
                for x in prog[n0:]: x.maxdl = H
        for item in cfg.plan.split():
            if "@" not in item: issue(item, H)
            else:
                it, pos = item.split("@"); st, fr = pos.split(".")
                later.setdefault(int(st), []).append((it, fr))
    for s in range(s0, s1):
        t = s % 8
        uq = [u for u in range(4) if qk_on(s, u)]
        up = order_qk(s - 1, 3) if (steady or s > 0) else []
        up = [u for u in up if pv_on(s, u)]
        qk = [(kb, u) for kb in range(4) for u in order_qk(s, kb)]
        pv = []
        fin = [u for u in up if (s - 1 - sg[u]) % 8 == 7]
        ones_order = fin + [u for u in up if u not in fin]
        for db in range(8):
            for u in up: pv.append(("pv", db, u))
        npv = len(pv)
        ins = {}
        for i, u in enumerate(ones_order):
            if u in fin: p = len(up)
            else: p = len(up) + (npv - len(up)) * i // max(1, len(ones_order))
            ins.setdefault(p, []).append(("one", 0, u))
        pv2 = []
        for i, c in enumerate(pv):
            pv2 += ins.get(i, []); pv2.append(c)
        pv = pv2
        seq = []
        if qk:
            j = 0
            lag = 1 if len(uq) <= 2 and pv else 0
            for i, c in enumerate(qk):
                seq.append(("qk",) + c)
                tgt = math.ceil(max(0, i + 1 - lag) * len(pv) / (len(qk) - lag))
                while j < tgt: seq.append(pv[j]); j += 1
        else:
            seq = pv
        nm = sum({"qk": 4, "pv": 2, "one": 1}[c[0]] for c in seq)
        beta = cfg.beta if len(uq) >= 3 else cfg.beta_small
        barpos = int(beta * nm)
        if not steady and s in cfg.betas: barpos = int(cfg.betas[s] * nm)
        vdone = set(); kdone = set(kdone0) if (s == 0 and not steady) else set(); bar_done = False
        Pw = vP + 32 * (s & 1); Pr = vP + 32 * ((s - 1) & 1)
        def vreads(db):
            if db in vdone or vperm_(s - 1): return
            vdone.add(db)
            for ks in range(2):
                for h in range(2):
                    d = vfrag(s - 1, db) + ks * 4 + h * 2
                    A(Op(("vr", s, db, ks, h), f"ds_read_b64_tr_b16 {at(d,2)}, v{vV+(db>>1)} offset:{vslot(s-1)*VSTR + ks*4096 + h*2048 + (db&1)*8}", "ds",
                         [f"Vok{s-1}"], ar(d, 2) + [f"Vr{s-1}_{db}_{ks}_{h}"]))
        def kreads(kb):
            if kb in kdone: return
            kdone.add(kb); kread1(s, t, kb)
        def barrier():
            rd = []; wr = []
            pubv, retv, nxt = [s], [s - 1], [s + 1]
            if vperm_(s + 1): retv = []; nxt = []
            if vperm_(s): pubv = []; retv = [s - 2, s - 1]
            if vperm_(s - 1): retv = []
            if not steady:
                retv = {1: [], 2: [0], 3: [1], 4: [2], 5: [3, 4], 34: []}.get(s, retv)
                pubv = {34: [v for v in (34, 35, 37) if v < last]}.get(s, pubv)
                if s == 33 and last <= 37: retv = []
                nxt = {0: [], 1: [], 2: [4], 3: [5], 4: [], 32: [33, 34, 35], 33: [37], 34: []}.get(s, nxt)
                if s == 32: wr.append("Kret67")
                if s >= 35: return
                nxt = [v for v in nxt if v < last and v not in vissued and not any(it == f"V{v}" for l in later.values() for it, _ in l)]
            for v in retv:
                if v < 0: continue
                if v == s - 1:
                    for db in range(8): vreads(db)
                rd += [f"Vr{v}_{db}_{ks}_{h}" for db in range(8) for ks in range(2) for h in range(2)]
                wr.append(f"Vret{v}")
            for v in pubv:
                assert steady or v in vissued, v
                rd += [f"Vd{v}_{i}" for i in range(4)]; wr.append(f"Vok{v}")
            if not steady and s + 1 <= 7 and s + 1 not in kpub:
                if s + 1 not in kscaled: kscale(s + 1, ((s - 1, "bar") if s >= 1 else (-1, 0))); kscaled.append(s + 1)
                kpub.add(s + 1)
                rd += [f"Kw{s+1}_{ds}" for ds in range(4)]; wr.append(f"Kok{s+1}")
            if not steady and s == 1:
                rd += [f"Kr0_{kb}_{ds}" for kb in range(4) for ds in range(4)]; wr.append("K0dead")
                rd.append("Kr1")
            if (steady or s >= cfg.split_from) and len(uq) >= cfg.split_min_u:
                ag = cfg.arr_gap if len(uq) >= 3 else cfg.arr_gap_small
                A(Op(("arr", s), f"ds_add_u32 v{vCnt}, v{vCone}", "dsw", rd, ["Carr"], cost=8, anchor=(s, "bar", -ag - cfg.ds_lat - 2)))
                A(Op(("exp", s), f"s_add_u32 s{sExp}, s{sExp}, 4", "salu", [f"s{sExp}"], [f"s{sExp}"]))
                A(Op(("pol", s), f"ds_read_b32 v{vPoll}, v{vCnt}", "ds", ["Carr~"], vr(vPoll), anchor=(s, "bar", -cfg.ds_lat - 2)))
                A(Op(("cmp", s), f"v_readfirstlane_b32 s{sPol}, v{vPoll}", "valu", vr(vPoll), [f"s{sPol}"], anchor=(s, "bar", -3)))
                A(Op(("sc", s), f"s_cmp_lt_u32 s{sPol}, s{sExp}", "bar", [f"s{sPol}", f"s{sExp}"], ["scc"], anchor=(s, "bar", -1)))
                A(Op(("bar", s), f"s_cbranch_scc1 L_spin{s if (not steady and (s < 8 or s >= 32)) else 8 + s % 8}", "bar", ["scc"] + vr(vPoll) + [f"s{sExp}", f"s{sPol}"], wr, anchor=(s, "bar")))
            else:
                A(Op(("bar", s), "s_barrier", "bar", rd, wr, anchor=(s, "bar")))
            for v in nxt: vdma(v, None)
            for it, fr in later.get(s, []):
                if fr == "b": issue(it, (s, "bar"))
        todo_items = [(it, int(fr) / 10 ** len(fr)) for it, fr in later.get(s, []) if fr != "b"]
        mcount = 0
        for c in seq:
            if not bar_done and mcount >= barpos:
                barrier(); bar_done = True
            while todo_items and mcount >= todo_items[0][1] * nm:
                issue(todo_items.pop(0)[0], (s, "off", mcount))
            if c[0] == "qk":
                _, kb, u = c
                kreads(kb)
                if kb == 0 and (s - sg[u]) % 8 == 0 and (steady or s - sg[u] >= 8):
                    qread(("qr", s, u), u)
                    un = (u + 1) % 4; sn = s + (sg[un] - sg[u]) % 8
                    pend_q.append((("q", sn, un), not steady and sn - sg[un] >= 8 * NP))
                    if True:
                        k_, d_ = pend_q.pop(); qload(k_, dummy=d_)
                S = vS + 4 * (chain % 4); chain += 1
                for ds in range(4):
                    kf = kfrag(s, kb, ds); qf = aQ + u * 16 + ds * 4
                    A(Op(("qk", s, kb, u, ds), f"v_mfma_f32_16x16x32_bf16 {vt(S,4)}, {rt(kf,4)}, {at(qf,4)}, {'0' if ds == 0 else vt(S,4)}", "mfma",
                         rr(kf, 4) + ar(qf, 4) + ([] if ds == 0 else vr(S, 4)), vr(S, 4)))
                for r in range(4):
                    A(Op(("ex", s, kb, u, r), f"v_exp_f32 v{S+r}, v{S+r}", "trans", vr(S + r), vr(S + r)))
                pd = Pw + u * 8 + kb * 2
                for r in range(2):
                    tx = f"v_perm_b32 v{pd+r}, v{S+2*r+1}, v{S+2*r}, s{sPerm}" if cfg.trunc else f"v_cvt_pk_bf16_f32 v{pd+r}, v{S+2*r}, v{S+2*r+1}"
                    A(Op(("cv", s, kb, u, r), tx, "valu", vr(S + 2 * r, 2), vr(pd + r)))
                mcount += 4
            elif c[0] == "pv":
                _, db, u = c
                vreads(db)
                first = (s - 1 - sg[u]) % 8 == 0
                o = vOa + db * 16 + u * 4
                for ks in range(2):
                    vf = vfrag(s - 1, db) + ks * 4; pf = Pr + u * 8 + ks * 4
                    z = first and ks == 0
                    A(Op(("pv", s, db, u, ks), f"v_mfma_f32_16x16x32_bf16 {vt(o,4)}, {at(vf,4)}, {vt(pf,4)}, {'0' if z else vt(o,4)}", "mfma",
                         ar(vf, 4) + vr(pf, 4) + ([] if z else vr(o, 4)), vr(o, 4)))
                mcount += 2
            else:
                _, _, u = c
                first = (s - 1 - sg[u]) % 8 == 0
                l = vL + 4 * u
                if first:
                    for r in range(2): A(Op(("lz", s, u, r), f"v_mov_b32 v{l+r}, 0", "valu", [], vr(l + r)))
                pf = Pr + u * 8
                A(Op(("on", s, u), f"v_smfmac_f32_16x16x64_bf16 {vt(l,4)}, {vt(vOne,4)}, {vt(pf,8)}, v{vIdx}", "mfma", vr(pf, 8) + vr(l, 2), vr(l, 4)))
                mcount += 1
        if not bar_done: barrier()
        for it, _ in todo_items: issue(it, (s, "off", mcount))
        if not steady and s == 31:
            qread(("qr", 32, 0), 0, dummy=True)
            qload(("q", 32 + sg[1], 1), dummy=True)
        if not steady and s == 7:
            A(Op(("vo2", 7), f"v_xor_b32 v{vO2}, 0x840, v{vO}", "valu", [], vr(vO2)))
            if cfg.full_until < 39: A(Op(("vo3", 7), f"v_cndmask_b32 v{vO3}, v{vO}, v{vO2}, vcc", "valu", vr(vO2) + ["junk"], vr(vO3)))
        for u in sorted(fin):
            l = vL + 4 * u; R = vR + 2 * (u & 1)
            DPP = "row_ror:8 row_mask:0xf bank_mask:0xf"
            pol = cfg.st_last if (not steady and s >= cfg.st_last_from) else cfg.st_pol
            A(Op(("la", s, u), f"v_add_f32 v{l}, v{l}, v{l+1}", "valu", vr(l, 2), vr(l)))
            A(Op(("rc", s, u), f"v_rcp_f32 v{R}, v{l}", "trans", vr(l), vr(R)))
            full = cfg.full_until > 0 if steady else s < cfg.full_until
            if full: A(Op(("r2", s, u), f"v_mov_b32_dpp v{R+1}, v{R} {DPP}", "valu", vr(R), vr(R + 1)))
            A(Op(("ck", s, u), f"v_max3_u32 v{vChk}, v{vChk}, v{l}, v{R}", "valu", vr(vChk) + vr(l) + vr(R), vr(vChk)))
            for db in range(8):
                o = vOa + db * 16 + u * 4
                for r in range(4):
                    if full and db & 2: A(Op(("mu", s, u, db, r), f"v_mul_f32_dpp v{o+r}, v{o+r}, v{R+1} {DPP}", "valu", vr(o + r) + vr(R + 1), vr(o + r)))
                    else: A(Op(("mu", s, u, db, r), f"v_mul_f32 v{o+r}, v{o+r}, v{R}", "valu", vr(o + r) + vr(R), vr(o + r)))
                if db & 1:
                    e = o - 16
                    A(Op(("oc", s, u, db, 3), f"v_cvt_pk_bf16_f32 v{o+3}, v{o+2}, v{o+3}", "valu", vr(o + 2, 2), vr(o + 3)))
                    A(Op(("oc", s, u, db, 2), f"v_cvt_pk_bf16_f32 v{o+2}, v{o}, v{o+1}", "valu", vr(o, 2), vr(o + 2)))
                    A(Op(("oc", s, u, db, 0), f"v_cvt_pk_bf16_f32 v{o}, v{e}, v{e+1}", "valu", vr(e, 2), vr(o)))
                    A(Op(("oc", s, u, db, 1), f"v_cvt_pk_bf16_f32 v{o+1}, v{e+2}, v{e+3}", "valu", vr(e + 2, 2), vr(o + 1)))
                    if not full:
                        A(Op(("st", s, u, db), f"buffer_store_dwordx4 {vt(o,4)}, v{vO3}, s[{sO_}:{sO_+3}], s{sOo} offen offset:{(db-1)*32} {pol}".rstrip(), "store",
                             vr(o, 4) + [f"s{sOo}"] + vr(vO3), [], cost=20))
                if full and db & 3 == 3:
                    a = o - 32; x = o - 16
                    for r in range(4):
                        A(Op(("sx", s, u, db, r), f"v_cndmask_b32 v{x+r}, v{a+r}, v{o+r}, vcc", "valu", vr(a + r) + vr(o + r), vr(x + r)))
                    A(Op(("st", s, u, db - 1), f"buffer_store_dwordx4 {vt(x,4)}, v{vO}, s[{sO_}:{sO_+3}], s{sOo} offen offset:{(db>>2)*128} {pol}".rstrip(), "store",
                         vr(x, 4) + [f"s{sOo}"], [], cost=20))
                    for r in range(4):
                        A(Op(("sy", s, u, db, r), f"v_cndmask_b32 v{o+r}, v{o+r}, v{a+r}, vcc", "valu", vr(a + r) + vr(o + r), vr(o + r)))
                    A(Op(("st", s, u, db), f"buffer_store_dwordx4 {vt(o,4)}, v{vO2}, s[{sO_}:{sO_+3}], s{sOo} offen offset:{(db>>2)*128} {pol}".rstrip(), "store",
                         vr(o, 4) + [f"s{sOo}"] + vr(vO2), [], cost=20))
            if not steady and 32 <= s < last:
                for x in prog:
                    if x.key[:3] == ("st", s, u): x.maxdl = (s + 1, "frac", (x.key[3] + 1) / 8 * cfg.tail_dl)
            A(Op(("oinc", s, u), f"s_add_u32 s{sOo}, s{sOo}, 4096", "salu", [f"s{sOo}"], [f"s{sOo}"]))
    return prog

def link(cfg, prog):
    lastw = {}; readers = {}
    m = 0
    for x in prog:
        if x.kind == "mfma": x.m = m; m += 1
    for x in prog:
        e = {}
        def add(p, typ):
            if p is x: return
            soft = hard = 0
            if p.kind == "mfma":
                if x.kind == "mfma": return
                if typ in ("raw", "waw"): soft = cfg.mv_lat + (2 if p.key[0] == "on" else 0)
                elif x.kind in ("valu", "trans"): soft = 1
            elif x.kind == "mfma":
                hard = soft = 1
                if typ == "raw":
                    soft = cfg.ds_lat if p.kind == "ds" else (1 if p.kind == "load" else 2)
                elif p.kind == "store": soft = 2
            elif x.kind == "bar" or x.key[0] == "arr":
                hard = 1; soft = {"ds": cfg.ds_lat, "dsw": cfg.ds_lat, "dma": 2}.get(p.kind, 1)
            elif p.kind == "bar":
                soft = hard = 0
            elif p.kind == "salu":
                soft = 2; hard = 1 if x.kind != "salu" else 1
            elif x.kind == "salu":
                soft = hard = 1
            elif typ == "raw":
                if p.kind == "trans": soft = 1
                elif p.kind == "ds" and x.kind == "dma": soft = cfg.ds_lat
                elif p.kind == "valu" and x.kind in ("store", "dsw", "ds"): soft = 1
                elif p.kind == "valu" and "permlane" in x.text: soft = 2
                if "_dpp" in x.text: soft = 2
            else:
                if p.kind in ("valu", "trans") and x.kind in ("load", "ds", "dma"): soft = 1
                if p.kind in ("store", "dsw"): soft = 1
            o = e.get(id(p))
            e[id(p)] = (p, max(soft, o[1]) if o else soft, max(hard, o[2]) if o else hard)
        for r in x.reads:
            if r in lastw: add(lastw[r], "raw"); x.prod[r] = lastw[r].key
        for r in x.writes:
            if r in lastw: add(lastw[r], "waw")
            for p in readers.get(r, []): add(p, "war")
        for r in x.reads: readers.setdefault(r, []).append(x)
        for r in x.writes: lastw[r] = x; readers[r] = []
        x.preds = list(e.values())
        for p, so, ha in x.preds: p.succs.append((x, so, ha))
    return m

def semantic_check(cfg, prog):
    sg = cfg.sigma
    nq = 0; qblk = {}; nst = 0
    for x in prog:
        k = x.key; P = [x.prod.get(r) for r in x.reads]
        def exp(idx, f):
            for i in idx: assert P[i] is not None and f(P[i]), ("semantic", k, x.reads[i], P[i])
        if x.dummy: continue
        if k[0] == "ksc" and k[4] in (0, 1): exp([0], lambda p: p == ("kld", k[1], k[2]))
        if k[0] == "ksc" and k[4] in (2, 3): exp([0], lambda p: p == k[:4] + (k[4] - 2,))
        if k[0] == "ksc" and k[4] == 4: exp([0], lambda p: p == k[:4] + (2,)); exp([1], lambda p: p == k[:4] + (3,))
        if k[0] == "kw": exp(range(4), lambda p: p[:3] == ("ksc", k[1], k[2]) and p[4] == 4)
        if k[0] == "kr" and k[1] < 8: exp([0], lambda p: p[0] == "bar")
        if k[0] == "vr": exp([0], lambda p: p[0] == "bar")
        if k[0] == "dma": exp([0], lambda p: p == ("m0", k[1])); exp(range(1, len(P)), lambda p: p[0] == "bar")
        if k[0] in ("q", "q0") and k[-1] == "inc": qblk[k[:-1]] = nq; nq += 1
        if k[0] in ("q", "q0") and isinstance(k[-1], int): exp([1], lambda p: p == k[:-1] + ("m0",))
        if k[0] in ("qr", "qr0"):
            u = k[-2]; n = 0 if k[0] == "qr0" else (k[1] - sg[u]) // 8
            exp(range(4), lambda p: qblk[p[:-1]] == 4 * n + u)
        if k[0] == "qk":
            _, s, kb, u, ds = k; s0 = s - (s - sg[u]) % 8
            exp(range(4), lambda p: p[0] == "kr" and p[1] % 8 == s % 8 and p[2:] == (kb, ds))
            exp(range(4, 8), lambda p: p == (("qr0", u, ds) if s0 == sg[u] else ("qr", s0, u, ds)))
            exp(range(8, len(P)), lambda p: p == ("qk", s, kb, u, ds - 1))
        if k[0] == "ex": exp([0], lambda p: p == ("qk",) + k[1:4] + (3,))
        if k[0] == "cv": exp([0, 1], lambda p: p[:4] == ("ex",) + k[1:4])
        if k[0] == "pv":
            _, s, db, u, ks = k
            exp(range(4), lambda p: p[0] == "vr" and p[1] % 8 == s % 8 and p[2:4] == (db, ks))
            exp(range(4, 8), lambda p: p[0] == "cv" and p[1] == s - 1 and p[2] >> 1 == ks and p[3] == u)
            exp(range(8, len(P)), lambda p: p == (("pv", s, db, u, 0) if ks else ("pv", s - 1, db, u, 1)))
        if k[0] == "on":
            exp(range(8), lambda p: p[0] == "cv" and p[1] == k[1] - 1 and p[3] == k[2])
            exp([8, 9], lambda p: p[:3] == ("lz", k[1], k[2]) or p == ("on", k[1] - 1, k[2]))
        if k[0] == "la": exp([0, 1], lambda p: p == ("on", k[1], k[2]))
        if k[0] == "mu": exp([0], lambda p: p == ("pv", k[1], k[3], k[2], 1)); exp([1], lambda p: p[0] in ("rc", "r2") and p[1:] == k[1:3])
        if k[0] == "oc": exp([0, 1], lambda p: p[:3] == ("mu",) + k[1:3])
        if k[0] == "oinc":
            assert nst == 4 * ((k[1] - 1 - sg[k[2]]) // 8) + k[2], k
            nst += 1
    assert nst == 16

def step_of(x): return x.key[1]

def schedule(cfg, prog, nm, pins=None, lo=None, hi=None):
    pins = pins or {}; lo = lo or {}; hi = hi or {}
    start = {}; barw = {}
    cur = -1
    for x in prog:
        if x.kind == "mfma":
            cur = x.m; start.setdefault(x.key[1], x.m)
        elif x.key[0] == "bar": barw[x.key[1]] = cur
    def W(a):
        if a[0] == -1: return -1
        if a[1] == "bar": return barw.get(a[0], nm - 1) + (a[2] if len(a) > 2 else 0)
        if a[1] == "frac": return start[a[0]] - 1 + int(a[2] * (start.get(a[0] + 1, nm) - start[a[0]]))
        if a[1] == "off": return max(0, start[a[0]] - 1 + a[2])
        return start[a[0]] - 1
    fill = [x for x in prog if x.kind != "mfma"]
    for x in prog:
        if x.kind == "mfma": x.win = x.m
    for i, x in enumerate(prog): x.idx = i
    for x in reversed(fill):
        if x.key in pins: x.dls = x.dlh = pins[x.key][0]; continue
        if x.anchor: x.dls = x.dlh = W(x.anchor); continue
        ds = dh = nm - 1
        for y, so, ha in x.succs:
            if y.dummy and y.key not in pins: continue
            if y.kind == "mfma": ds = min(ds, y.m - so); dh = min(dh, y.m - ha)
            else: ds = min(ds, y.dls - so); dh = min(dh, y.dlh - ha)
        if x.key in hi: ds = min(ds, hi[x.key]); dh = min(dh, hi[x.key])
        if x.maxdl: ds = min(ds, W(x.maxdl)); dh = min(dh, W(x.maxdl))
        x.dls, x.dlh = ds, max(dh, -1)
    wins = {w: [] for w in range(-1, nm)}
    for x in fill:
        x.win = None
        x.lo = max(W(x.earliest) if x.earliest else -1, lo.get(x.key, -1))
        if x.anchor: x.lo = x.dlh
    pinned_by_win = {}
    for x in fill:
        if x.key in pins: pinned_by_win.setdefault(pins[x.key][0], []).append(x)
    todo = [x for x in fill if x.key not in pins and not x.dummy]
    todo.sort(key=lambda x: x.idx)
    credit = [0]
    bucket = [0]
    def nbytes(x):
        if x.kind in ("salu", "bar"): return 4
        if x.kind in ("valu", "trans"):
            return 8 if ("_dpp" in x.text or x.text.split()[0] in ("v_cvt_pk_bf16_f32", "v_perm_b32", "v_max3_u32") or "0x" in x.text) else 4
        return 8
    mfl = [x for x in prog if x.kind == "mfma"]
    def ready(x, w, soft):
        if w < x.lo: return False
        for p, so, ha in x.preds:
            if p.dummy and p.key not in pins: continue
            if p.win is None: return False
            lat = ha
            if soft and (p.kind not in ("load", "dma", "ds", "dsw") or x.kind == "dma"): lat = so
            if p.kind in ("store", "dsw") and soft: lat = max(lat, min(so, 1))
            if w == -1 or w == nm - 1: lat = 0
            if w < p.win + lat: return False
        return True
    for w in range(-1, nm):
        if w in pinned_by_win:
            for x in sorted(pinned_by_win[w], key=lambda x: pins[x.key][1]):
                x.win = w; wins[w].append(x)
        if pins and cfg._loop[0] <= w < cfg._loop[1]: continue
        cap = 8 if w >= 0 else 0
        if w >= 0 and mfl[w].key[0] == "on": cap = 4
        cap0 = cap
        rate = 8
        if cfg.smooth and pins and 0 <= w < nm - 1:
            acc = 0
            for x in sorted((x for x in todo[:900] if x.dls <= w + 120), key=lambda x: x.dls):
                acc += min(x.cost, 8)
                rate = max(rate, acc / (max(x.dls, w) - w + 1))
            credit[0] = credit[0] + rate - 8 if rate > 8.2 else 0
            credit[0] = min(credit[0], rate)
            extra = int(credit[0] // 4) * 4
            cap += extra
        used = 0
        cur = wins[w]
        def place(x):
            nonlocal used
            x.win = w; cur.append(x); used += min(x.cost, 8); todo.remove(x)
        while True:
            cand = [x for x in todo[:700] if ready(x, w, True) or (w >= x.dlh and ready(x, w, False))]
            if not cand: break
            z = [x for x in cand if x.kind in ("salu", "bar")]
            if z:
                place(z[0]); continue
            forced = [x for x in cand if x.dls <= w]
            if w == -1 or w == nm - 1:
                if not forced: break
                place(min(forced, key=lambda x: x.idx)); continue
            hasvalu_dep = lambda x: x.kind in ("ds", "dsw", "load", "dma", "store") and any(p.win == w and p.kind in ("valu", "trans") for p, _, _ in x.preds)
            hard_forced = forced
            if hard_forced:
                place(min(hard_forced, key=lambda x: (x.dls, x.idx))); continue
            if used >= cap: break
            nb = lambda x: 1024 if "b128" in x.text else 512
            dsb = sum(nb(x) for x in cur if x.kind == "ds")
            tight = rate > 8.2
            recent = (not tight) and any(y.kind == "ds" for k in range(1, cfg.ds_gap) for y in wins.get(w - k, []))
            vmk = ("load", "dma", "store")
            vgap = max(1, int(cfg.vm_gap * 16 / (8 + rate)))
            recent_vm = any(y.kind in vmk for k in range(0, vgap) for y in wins.get(w - k, []))
            sgap = max(1, int(cfg.st_gap * 16 / (8 + rate)))
            if any(y.kind == "store" for k in range(0, sgap) for y in wins.get(w - k, [])):
                cand = [x for x in cand if x.kind != "store" and not (cfg.st_gap_all and x.kind in vmk)]
            dcap = cfg.ds_cap * (8 + cap) // 16
            if cfg.st_block and any(-4 * cfg.vm_gap <= b - w <= cfg.st_block for b in barw.values()):
                cand = [x for x in cand if x.kind != "store"]
            cand = [x for x in cand if (x.kind != "ds" or (not recent and dsb + nb(x) <= dcap)) and not (x.kind in vmk and recent_vm and not (getattr(x, "nogap", False) and used == 0))]
            if not cand: break
            cand.sort(key=lambda x: (-99999 if (x.kind in ("load", "dma", "dsw", "store") or (cfg.qr_asap and x.key[0] == "qr")) else x.dls, x.idx))
            if cfg.fetch_thr is not None and not tight and bucket[0] >= cfg.fetch_thr and cap - used >= 8 and cand[0].dls > w + cfg.fetch_slack:
                tr = [x for x in cand if x.kind == "trans"]
                if tr: place(tr[0]); continue
            if cap - used >= 8:
                top = cand[0]
                if top.cost >= 8: place(top); continue
                small = [x for x in cand if x.cost == 4]
                big = [x for x in cand if x.cost >= 8]
                fits = lambda a, b: not (a.kind == "ds" and b.kind == "ds" and dsb + nb(a) + nb(b) > dcap)
                partner = any(fits(top, y) for y in small if y is not top) or any(y.cost == 4 and so == 0 and y.win is None and y.kind == "valu" and all(p.win is not None or p is top for p, _, _ in y.preds) for y, so, ha in top.succs)
                if partner or not big or (cap - used) % 8: place(top)
                else: place(big[0])
                continue
            small = [x for x in cand if x.cost == 4]
            if not small: break
            place(small[0])
        bts = 8 + sum(nbytes(x) for x in cur if x.kind not in ("salu", "bar")) + (4 if any(x.kind not in ("valu", "trans") for x in cur) else 2)
        bucket[0] = max(0, bucket[0] + bts - 22 * max(16, 8 + sum(x.cost for x in cur)) // 16)
        if w >= 0: credit[0] -= max(0, min(used, cap) - cap0)
        if w not in (-1, nm - 1):
            order = {"bar": 0, "salu": 0, "dma": 1, "load": 1, "store": 1, "dsw": 1, "ds": 1, "valu": 2, "trans": 2}
            lvl = {}
            for x in cur:
                l = order[x.kind]
                for p, _, _ in x.preds:
                    if p.win == w and p.kind != "mfma": l = max(l, lvl[id(p)])
                lvl[id(x)] = l
            cur.sort(key=lambda x: lvl[id(x)])
    assert not todo, [x.key for x in todo[:10]]
    for w, c in wins.items():
        for i, x in enumerate(c): x.pos = i
    return wins, start

def norm(key, d):
    return (key[0], key[1] + d) + tuple(key[2:])

class Ins:
    def __init__(s, text, op=None, kind=None):
        s.text, s.op, s.kind = text, op, kind or (op.kind if op else "salu")
        s.vm = None; s.lg = None

def generate(cfg):
    last = 32 + max(cfg.sigma)
    cfg.q_ahead = getattr(cfg, "q_ahead", 2)
    cfg.code_pf_n = getattr(cfg, "code_pf_n", 2)
    sp = build(cfg, 0, 56, True); nms = link(cfg, sp)
    swins, sstart = schedule(cfg, sp, nms)
    per = sstart[8] - sstart[0]
    ok = None
    for b in (16, 24, 32):
        same = all([x.text for x in swins[sstart[b] + i]] == [x.text for x in swins[sstart[b + 8] + i]] and
                   [norm(x.key, 8) for x in swins[sstart[b] + i]] == [x.key for x in swins[sstart[b + 8] + i]] for i in range(per))
        if same: ok = b; break
    assert ok is not None, "steady state not periodic"
    rp = build(cfg, 0, last + 1, False)
    inloop = {norm(x.key, 8 + 8 * it - ok) for it in range(3) for i in range(per) for x in swins[sstart[ok] + i]}
    rp = [x for x in rp if not x.dummy or x.key in inloop]
    nm = link(cfg, rp)
    semantic_check(cfg, rp)
    rstart = {}
    for x in rp:
        if x.kind == "mfma": rstart.setdefault(x.key[1], x.m)
    L0, L1 = rstart[8], rstart[32]
    assert L1 - L0 == 3 * per
    cfg._loop = (L0, L1)
    pins = {}
    for it in range(3):
        for i in range(per):
            for x in swins[sstart[ok] + i]:
                pins[norm(x.key, 8 + 8 * it - ok)] = (L0 + it * per + i, x.pos)
    keys = {x.key: x for x in rp}
    assert len(keys) == len(rp)
    missing = [k for k in pins if k not in keys]
    assert not missing, missing[:10]
    lo = {}; hi = {}
    mid = (keys[("qk", 20, 0, 0, 0)])
    midx = rp.index(mid)
    for i, x in enumerate(rp):
        if x.kind == "mfma" or x.key in pins: continue
        if i < midx: hi[x.key] = L0 - 1
        else: lo[x.key] = L1
    wins, start = schedule(cfg, rp, nm, pins, lo, hi)
    mf = [x for x in rp if x.kind == "mfma"]
    def stat(w):
        return L0 + (w - L0) % per if L0 <= w < L1 else w
    free = {}
    pre = {}
    for w in range(-1, nm):
        if stat(w) == w:
            free[w] = []
            if w not in (-1, nm - 1):
                for x in wins[w]:
                    if x.kind == "bar": free[w].append(Ins(x.text, x))
    def body(w):
        if w in (-1, nm - 1): return wins[w]
        return [x for x in wins[w] if x.kind not in ("salu", "bar")]
    def walk(fix):
        q = {"vm": [], "lgkm": []}
        pend = {}
        hist = {}
        changed = False
        def dowait(ins):
            for c, n in (("vm", ins.vm), ("lgkm", ins.lg)):
                if n is None: continue
                while len(q[c]) > n:
                    d = q[c].pop(0)
                    for r in d.writes:
                        if pend.get(r) is d: del pend[r]
        def need(x):
            n = {}
            for r in x.reads + x.writes:
                p = pend.get(r)
                if p is not None and not (r in x.writes and r not in x.reads and p.cnt == x.cnt):
                    n[p.cnt] = p if (p.cnt not in n or q[p.cnt].index(p) > q[p.cnt].index(n[p.cnt])) else n[p.cnt]
            return n
        def issue(x):
            if x.cnt:
                q[x.cnt].append(x)
                for r in x.writes:
                    if r != "stord": pend[r] = x
        def setw(ins, c, n):
            n = min(n, 62 if c == "vm" else 14)
            if c == "vm": ins.vm = n if ins.vm is None else min(ins.vm, n)
            else: ins.lg = n if ins.lg is None else min(ins.lg, n)
        def handle(x, w, pos, cands):
            nonlocal changed
            n = need(x)
            if not n: return
            assert fix, ("unwaited", x.key, {c: p.key for c, p in n.items()})
            changed = True
            for c, p in n.items():
                done = False
                for cw in cands:
                    if cw < 0 or cw == nm - 1 or cw not in hist: continue
                    snap = hist[cw][c]
                    if p not in snap: continue
                    fl = free[stat(cw)]
                    wi = [i for i in fl if i.kind == "wait"]
                    if not wi and fl and cw != cands[-1]: continue
                    if not wi:
                        wi = [Ins("", None, "wait")]; fl.insert(0, wi[0])
                    setw(wi[0], c, len(snap) - 1 - snap.index(p)); done = True; break
                if not done:
                    ins = pre.setdefault((stat(w), pos), Ins("", None, "wait"))
                    setw(ins, c, len(q[c]) - 1 - q[c].index(p))
                while p in q[c]:
                    d = q[c].pop(0)
                    for r in d.writes:
                        if pend.get(r) is d: del pend[r]
        for w in range(-1, nm):
            if w >= 0:
                if (stat(w), "m") in pre: dowait(pre[(stat(w), "m")])
                handle(mf[w], w, "m", [w - 1, w - 2])
            hist[w] = {c: list(v) for c, v in q.items()}
            hist.pop(w - 4, None)
            for ins in list(free[stat(w)]):
                if ins.kind == "wait": dowait(ins)
                elif ins.kind == "bar":
                    x = [y for y in wins[w] if y.kind == "bar"][0]
                    handle(x, w, "b", [w - 1, w - 2, w])
            for pos, x in enumerate(body(w)):
                if (stat(w), pos) in pre: dowait(pre[(stat(w), pos)])
                handle(x, w, pos, [w, w - 1])
                issue(x)
        return changed
    for _ in range(10):
        if not walk(True): break
    walk(False)
    for w in range(0, nm - 1):
        if stat(w) != w: continue
        for x in wins[w]:
            if x.kind != "salu": continue
            hiw = min([y.win - (1 if "m0" in x.writes or y.kind == "salu" else 0) for y, _, _ in x.succs if y.win is not None] + [w + 40, nm - 2])
            if L0 <= w < L0 + per: hiw = min(hiw, L0 + per - 3)
            elif w < L0: hiw = min(hiw, L0 - 1)
            hiw = max(hiw, w)
            c = [k for k in range(w, hiw + 1) if not free[k]]
            c2 = [k for k in c if body(k) and body(k)[0].kind in ("ds", "dma", "load", "store", "dsw")]
            k = c2[0] if c2 else (c[0] if c else w)
            if any(i.text.startswith("s_cmp") for i in free[k]): free[k].insert(0, Ins(x.text, x))
            else: free[k].append(Ins(x.text, x))
    k = [k for k in range(L0 + per - 2, L0 + per) if not free[k]]
    k = k[0] if k else L0 + per - 1
    if any(i.text.startswith("s_add") for kk in range(k + 1, L0 + per) for i in free[kk]): k = L0 + per - 1
    free[k].append(Ins(f"s_sub_u32 s{sCnt}, s{sCnt}, 1"))
    if cfg.nop_ds:
        for w in range(0, nm - 1):
            if stat(w) == w and not free[w] and body(w) and body(w)[0].kind in ("ds", "dma", "load", "store", "dsw"):
                free[w].append(Ins("s_nop 0", None, "nop"))
    def wtext(i):
        t = "s_waitcnt"
        if i.vm is not None: t += f" vmcnt({i.vm})"
        if i.lg is not None: t += f" lgkmcnt({i.lg})"
        return t
    code = {}
    for w in range(-1, nm):
        if stat(w) != w: continue
        l = []
        if w >= 0:
            if (w, "m") in pre: l.append(pre[(w, "m")])
            l.append(Ins(mf[w].text, mf[w]))
        l += free[w]
        for pos, x in enumerate(body(w)):
            if (w, pos) in pre: l.append(pre[(w, pos)])
            l.append(Ins(x.text, x))
        for i in l:
            if i.kind == "wait": i.text = wtext(i)
        code[w] = l
    def wcost(l, head=False):
        t = 0; base = 0; lastvalu = -99; blk = 8
        for i in l:
            if i.kind == "mfma": base = t; t += 4; blk = 12 if "smfmac" in i.text else 8; continue
            if i.kind in ("salu", "wait", "bar", "nop"): t += 4; continue
            if i.kind == "nopx": t += 4 * (int(i.text.split()[1]) + 1); continue
            if not head: t = max(t, base + blk)
            if i.kind in ("valu", "trans"): t += i.op.cost; lastvalu = t
            else:
                t = max(t, lastvalu + 8) + i.op.cost
        return t if head else max(t, base + 16)
    def hazards(fix):
        seq = []
        changed = False
        for w in range(-1, nm):
            l = code[stat(w)]
            j = 0
            while j < len(l):
                i = l[j]; x = i.op
                needn = 0
                if x is not None and x.kind not in ("salu", "bar"):
                    dist = 0
                    for p, st, pwin in reversed(seq):
                        y = p.op
                        if y is not None:
                            req = 0
                            raw = set(y.writes) & set(x.reads); waw = set(y.writes) & set(x.writes); war = set(y.reads) & set(x.writes)
                            if y.kind == "mfma":
                                if x.kind == "mfma":
                                    if set(y.writes) & set(x.reads[:8]): req = 8
                                elif raw or waw: req = 12 if y.key[0] == "on" else 8
                                elif war and x.kind in ("valu", "trans") and set(y.writes) & set(x.writes): req = 3
                            elif y.kind in ("valu", "trans"):
                                if raw and x.kind == "mfma": req = 2
                                if raw and ("permlane" in x.text or "_dpp" in x.text): req = 2
                                if raw and y.kind == "trans" and x.kind != "trans": req = max(req, 1)
                            elif y.kind in ("store", "dsw") and war and y.cost == 20: req = 2
                            elif y.kind == "salu" and "m0" in y.writes and x.kind == "dma": req = 1
                            if req - dist > needn: needn = req - dist; pw = pwin
                        dist += st
                        if dist >= 12: break
                if needn > 0:
                    assert fix, ("hazard", x.key)
                    for k in range(w, pw - 1, -1):
                        if k < 0: break
                        lk = code[stat(k)]
                        mi = [n for n, z in enumerate(lk) if z.kind == "mfma"][0]
                        places = []
                        if k > pw and (k < w or j > mi): places.append(mi + 1)
                        if k < w: places.append(len(lk))
                        ok_ = False
                        for pl in places:
                            tr = lk[:pl] + [Ins("s_nop 0", None, "nopx")] + lk[pl:]
                            if wcost(tr) == wcost(lk): lk[:] = tr; ok_ = True; break
                        if ok_: return True
                    l.insert(j, Ins(f"s_nop {needn-1}", None, "nopx")); changed = True
                    continue
                st = int(i.text.split()[1]) + 1 if i.text.startswith("s_nop") else 1
                seq.append((i, st, w)); seq = seq[-14:]
                j += 1
        return changed
    while hazards(True): pass
    lastw = {}; seen = set()
    for w in range(-1, nm):
        it = (w - L0) // per if L0 <= w < L1 else 0
        for i in code[stat(w)]:
            if i.op is None: continue
            x = keys[norm(i.op.key, 8 * it)]
            assert x.text == i.text, (x.text, i.text)
            assert x.key not in seen; seen.add(x.key)
            if not x.dummy:
                for r in x.reads:
                    assert lastw.get(r) == x.prod.get(r), ("dataflow", x.key, r, lastw.get(r), x.prod.get(r))
            for r in x.writes: lastw[r] = x.key
    assert all(x.key in seen or x.dummy for x in rp), [x.key for x in rp if x.key not in seen and not x.dummy][:5]
    est = {}
    for s in range(0, last + 1):
        e = rstart.get(s + 1, nm)
        est[s] = (sum(wcost(code[stat(w)]) for w in range(rstart[s], e)), (e - rstart[s]) * 16)
    cfg.est = est; cfg.est_head = wcost(code[-1], True)
    out = []
    cfg.spins = []
    E = out.append
    stamp_at = getattr(cfg, "stamp_steps", [])
    inv = {v: k for k, v in rstart.items()}
    for w in range(-1, nm):
        if stat(w) != w: continue
        if w == L0:
            if cfg.stamps and 7.9 in stamp_at:
                j = stamp_at.index(7.9); E(f"    s_memrealtime s[{64+2*j}:{65+2*j}]")
            E("L_loop:")
        if w in inv:
            E(f"; ---- step {inv[w]} ----")
            if cfg.stamps and inv[w] in stamp_at:
                j = stamp_at.index(inv[w]); E(f"    s_memrealtime s[{64+2*j}:{65+2*j}]")
        for i in code[w]:
            if i.op is not None and i.op.key[0] in cfg.kill and (L0 if cfg.kill_from is None else cfg.kill_from) <= w: E("    s_nop 0")
            else: E("    " + i.text)
            if cfg.pad and i.kind == "mfma" and L0 <= w < L1 and w % cfg.pad == 0: E("    s_nop 4")
            if i.text.startswith("s_cbranch_scc1 L_spin"):
                n = i.text.split("L_spin")[1]; E(f"L_back{n}:"); cfg.spins.append(n)
        if w == L0 + per - 1: E("    s_cbranch_scc0 L_loop")
    lastscc = None
    for l in out:
        t = l.strip()
        if t.startswith(("s_add", "s_sub", "s_cmp", "s_and", "s_lsh", "s_bfe", "s_or", "s_xor", "s_not")): lastscc = t
        if t.startswith("s_cbranch_scc1 L_spin"): assert lastscc.startswith("s_cmp_lt_u32"), lastscc
        if t.startswith("s_cbranch_scc0 L_loop"): assert lastscc.startswith(f"s_sub_u32 s{sCnt}"), lastscc
    return "\n".join(out)

def fbits(x): return struct.unpack("<I", struct.pack("<f", x))[0]

def head(cfg):
    T = vS
    h = f"""    s_load_dwordx4 s[4:7], s[0:1], 0          ; q, k
    s_load_dwordx4 s[8:11], s[0:1], 16        ; v, out
"""
    if cfg.x8: h = "    s_load_dwordx8 s[4:11], s[0:1], 0         ; q, k, v, out\n"
    if cfg.stamps: h += f"    s_load_dwordx2 s[56:57], s[0:1], {32 if cfg.stamps in ('dbg', 'skew') else 40}\n    s_memrealtime s[60:61]\n"
    h += f"""    v_lshrrev_b32 v{T}, 6, v0
    v_and_b32 v{T+4}, 63, v0                  ; lane
    v_readfirstlane_b32 s{sWave}, v{T}
    s_cmp_ge_u32 s2, 256
    s_cbranch_scc1 L_end
    v_and_b32 v{T+1}, 15, v0                  ; l & 15
    v_bfe_u32 v{T+2}, v0, 4, 2                ; l >> 4
    v_lshlrev_b32 v{vKl}, 4, v{T+4}           ; lane*16
    s_and_b32 s{sTmp}, s2, 7
    s_lshr_b32 s{sTmp+1}, s2, 3
    s_lshl_b32 s{sTmp}, s{sTmp}, 5
    s_add_u32 s{sTmp}, s{sTmp}, s{sTmp+1}
    s_lshl2_add_u32 s{sTmp+2}, s{sTmp}, s{sWave}
    s_lshl_b32 s{sTmp+2}, s{sTmp+2}, 16       ; q/o byte offset of this wave
    s_lshr_b32 s{sTmp}, s{sTmp}, 2
    s_lshl_b32 s{sTmp}, s{sTmp}, 17           ; k/v byte offset of the group
    s_lshl_b32 s{sMq}, s{sWave}, 12           ; wave*4096
    s_add_u32 s{sTmp+3}, s{sTmp}, s{sMq}
    s_sub_u32 s{sK_+2}, 0x20000, s{sMq}
    s_mov_b32 s{sK_+3}, 0x20000
    s_mov_b32 s{sQ_+3}, s{sK_+3}
    s_mov_b32 s{sQ_+2}, 0x10000
"""
    if cfg.rot:
        h += f"""    s_bfe_u32 s{sTmp+4}, s2, 0x20003
    s_mul_i32 s{sTile}, s{sTmp+4}, {cfg.rot*16384}
    s_and_b32 s{sTile}, s{sTile}, 0x1ffff
    s_add_u32 s{sTile+1}, s{sTile}, 16384
    s_and_b32 s{sTile+1}, s{sTile+1}, 0x1ffff
"""
    else: h += f"    s_mov_b32 s{sTile}, 0\n    s_movk_i32 s{sTile+1}, 0x4000\n"
    h += f"""    s_mov_b32 s{sQo}, 0
    v_lshlrev_b32 v{T+3}, 8, v{T+2}           ; (l>>4)*256
    v_xor_b32 v{T+5}, v{T+1}, v{T+2}          ; (l&15) ^ (l>>4)
    v_lshl_add_u32 v{vQd}, v{T+5}, 4, v{T+3}  ; Q DMA source: row*256 + (pos^row)*16
    s_waitcnt lgkmcnt(0)
    s_add_u32 s{sK_}, s6, s{sTmp+3}
    s_addc_u32 s{sK_+1}, s7, 0
    s_add_u32 s{sQ_}, s4, s{sTmp+2}
    s_addc_u32 s{sQ_+1}, s5, 0
"""
    if cfg.stamps: h += "    s_memrealtime s[62:63]\n"
    return h

def head2(cfg):
    c = math.log2(math.e) / math.sqrt(128.0)
    T = vS
    h = f"""    ; code prefetch into L2: 16 lines per wave, 8 KiB per workgroup
    s_getpc_b64 s[{sC_}:{sC_+1}]
L_pc:
    s_mov_b32 s{sC_+2}, L_slow - L_pc
    s_mov_b32 s{sC_+3}, 0x20000
    s_bfe_u32 s{sTmp+1}, s2, 0x30003
    s_lshl2_add_u32 s{sTmp+1}, s{sTmp+1}, s{sWave}
    s_lshl_b32 s{sTmp+1}, s{sTmp+1}, 11
    v_lshlrev_b32 v{vJ}, 5, v{T+4}
    v_add_u32 v{vJ}, s{sTmp+1}, v{vJ}
@CPF
    s_add_u32 s{sV_}, s8, s{sTmp}
    s_addc_u32 s{sV_+1}, s9, 0
    s_add_u32 s{sO_}, s10, s{sTmp+2}
    s_addc_u32 s{sO_+1}, s11, 0
    s_mov_b32 s{sV_+2}, 0x20000
    s_mov_b32 s{sV_+3}, 0x20000
    s_mov_b32 s{sO_+2}, 0x10000
    s_mov_b32 s{sO_+3}, 0x20000
"""
    for t in range(2, 8):
        if cfg.rot: h += f"    s_add_u32 s{sTile+t}, s{sTile+t-1}, 16384\n    s_and_b32 s{sTile+t}, s{sTile+t}, 0x1ffff\n"
        else: h += f"    s_mov_b32 s{sTile+t}, {t*16384}\n"
    h += f"""    s_lshr_b32 s{sTmp+1}, s{sWave}, 1
    s_lshl3_add_u32 s{sTmp+4}, s{sTmp+1}, s{sMq}
    s_add_u32 s{sM0}, s{sTmp+4}, {VB}
    s_add_u32 s{sM0+1}, s{sTmp+4}, {VB + VSTR}
    s_add_u32 s{sM0+2}, s{sTmp+4}, {VB + 2 * VSTR}
    s_add_u32 s{sM0+3}, s{sTmp+4}, {VB + 3 * VSTR}
    s_mov_b32 s{sOo}, 0
    s_mov_b32 s{sExp}, 0
    s_mov_b32 s{sCnt}, 2
    s_mov_b32 s{sScale}, {fbits(c):#x}
    s_mov_b32 s{sMask}, 0xffff0000
    s_mov_b32 s{sPerm}, 0x07060302
    ; K fragment read addresses: g*256 + (row ^ g ^ 4*(ds&1))*16
    v_mov_b32 v{vKr}, v{vQd}
    v_xor_b32 v{vKr+1}, 64, v{vQd}
    v_add_u32 v{vKr+2}, {0x10000 - KSH}, v{vKr}
    v_add_u32 v{vKr+3}, {0x10000 - KSH}, v{vKr+1}
    ; K write address: key 16w+4i+r goes to block 2(w&1)+(i>>1), row 8(i&1)+4(w>>1)+r ; lane = 16r+c
    s_lshl_b32 s{sTmp+1}, s{sTmp+1}, 6
    s_and_b32 s{sTmp+4}, s{sWave}, 1
    s_lshl_b32 s{sTmp+5}, s{sTmp+4}, 13
    v_and_b32 v{T+6}, 7, v{T+5}
    v_lshlrev_b32 v{T+7}, 8, v{T+1}           ; (l&15)*256
    v_lshl_add_u32 v{T+6}, v{T+6}, 4, v{T+7}
    v_xor_b32 v{T+6}, s{sTmp+1}, v{T+6}
    v_add_u32 v{vKw}, s{sTmp+5}, v{T+6}
    v_cmp_gt_u32 vcc, 1024, v{vKw}            ; lanes that write fragment (.,0,0)
    v_add_u32 v{T+6}, {3 * 16384}, v{vKw}
    v_and_b32 v{T+8}, 3, v{T+5}
    v_cndmask_b32 v{vKw+1}, v{vKw}, v{T+6}, vcc
    v_lshl_add_u32 v{T+6}, v{T+8}, 4, v{T+7}
    v_add_u32 v{vQr}, s{sMq}, v{T+6}
    ; V DMA source offsets: row r=l>>4, 64-byte unit (c16>>2)^(key&3)
    v_lshlrev_b32 v{T+6}, 2, v{T+2}
    v_xor_b32 v{T+6}, v{T+6}, v{T+1}
    v_lshl_add_u32 v{T+6}, v{T+6}, 4, v{T+3}
    v_add_u32 v{vD0}, s{sMq}, v{T+6}
    ; V transposed-read addresses: lane = 16g+4r+c reads 8 bytes of chunk c of unit (db>>1)^r of key 32(g&1)+8kb+4(g>>1)+r
    v_bfe_u32 v{T+8}, v{T+4}, 2, 2            ; r
    v_lshlrev_b32 v{T+6}, 4, v{T+1}           ; r*64 + c*16
    v_lshl_add_u32 v{T+6}, v{T+8}, 8, v{T+6}
    v_lshrrev_b32 v{T+8}, 1, v{T+2}
    v_lshl_add_u32 v{T+6}, v{T+8}, 10, v{T+6}
    v_and_b32 v{T+8}, 1, v{T+2}
    v_mul_u32_u24 v{T+8}, 8200, v{T+8}
    v_add_u32 v{T+8}, {VB}, v{T+8}
    v_and_b32 v{T+9}, 3, v{T+4}
"""
    for m in range(4):
        if m: h += f"    v_xor_b32 v{T+10}, {m * 64}, v{T+6}\n"
        h += f"    v_add_u32 v{vV+m}, v{T+8}, v{T+10 if m else T+6}\n"
    h += f"""    ; output: a store covers 8 rows x 128 bytes: (l&7)*256 + ((l>>3)&1)*64 + g*16
    v_and_b32 v{T+10}, 0x700, v{T+7}
    v_lshl_add_u32 v{T+10}, v{T+2}, 4, v{T+10}
    v_and_b32 v{T+11}, 8, v{T+1}
    v_lshl_add_u32 v{vO}, v{T+11}, 3, v{T+10}
"""
    h += f"""    ; row-sum operand: rows 4i and 4i+1 are ones; they pick elements 0,1 and 2,3 of every group of four keys
    v_cmp_eq_u32 vcc, 1, v{T+9}
    v_mov_b32 v{T+6}, 0x44444444
    v_mov_b32 v{T+8}, 0xeeeeeeee
    v_cndmask_b32 v{vIdx}, v{T+6}, v{T+8}, vcc
    v_cmp_gt_u32 vcc, {0 if cfg.ones_rows == 0 else 2}, v{T+9 if cfg.ones_rows == 8 else T+1}
    v_mov_b32 v{T+6}, 0x3f803f80
    v_mov_b32 v{vChk}, {'-1' if cfg.force_slow else '0'}
    v_cndmask_b32 v{T+6}, 0, v{T+6}, vcc
    v_lshlrev_b32 v{vCnt}, 2, v{T+4}
    v_add_u32 v{vCnt}, 0x4000, v{vCnt}
    v_mov_b32 v{vOne}, v{T+6}
    v_mov_b32 v{vOne+1}, v{T+6}
    v_mov_b32 v{vOne+2}, v{T+6}
    v_mov_b32 v{vOne+3}, v{T+6}
    v_mov_b32 v{vCone}, 1
    v_mov_b32 v{vPoll}, 0
    s_mov_b32 vcc_lo, 0xff00ff00              ; lanes with (l & 8), used by the output selects
    s_mov_b32 vcc_hi, 0xff00ff00
"""
    return h

def tail(cfg):
    lim = (127 + cfg.limit_exp) << 23
    t = ""
    if cfg.stamps == "skew":
        t += """    s_mov_b32 s58, 256
    s_mov_b32 s59, 0x20000
    s_not_b32 s64, s60
    v_mov_b32 v64, s64
    v_mov_b32 v60, 0
    s_mov_b64 exec, 1
    s_cmp_lg_u32 s3, 0
    s_cbranch_scc1 L_sk1
    buffer_atomic_umax v64, v60, s[56:59], 0 offen
    s_waitcnt vmcnt(0)
L_sk1:
    s_memrealtime s[72:73]
    s_waitcnt lgkmcnt(0)
    s_sub_u32 s72, s72, s60
    s_cmp_lt_u32 s72, 8000
    s_cbranch_scc1 L_sk1
    buffer_load_dword v64, v60, s[56:59], 0 offen sc0 sc1
    s_waitcnt vmcnt(0)
    v_readfirstlane_b32 s64, v64
    s_nop 4
    s_not_b32 s64, s64
L_sk2:
    s_memrealtime s[72:73]
    s_waitcnt lgkmcnt(0)
    s_sub_u32 s72, s72, s64
    s_cmp_lt_u32 s72, 10000
    s_cbranch_scc1 L_sk2
    s_mov_b64 exec, -1
"""
    elif cfg.stamps == "spin":
        if not getattr(cfg, "stamp_steps", []): t += "    s_waitcnt vmcnt(0)\n    s_memrealtime s[64:65]\n"
        t += f"""    s_waitcnt lgkmcnt(0)
    {"s_sub_u32 s64, s66, s64" if len(getattr(cfg, "stamp_steps", [])) == 2 else "s_sub_u32 s64, s64, s60"}
    s_mul_i32 s64, s64, {getattr(cfg, "spin_mul", 0)}
    s_add_u32 s64, s64, 10000
L_spin:
    s_memrealtime s[72:73]
    s_waitcnt lgkmcnt(0)
    s_sub_u32 s72, s72, s60
    s_cmp_lt_u32 s72, s64
    s_cbranch_scc1 L_spin
"""
    elif cfg.stamps:
        e0 = 88 if cfg.stamps == "c16" else 72
        t += f"""    s_memrealtime s[{e0}:{e0+1}]
    s_waitcnt vmcnt(0)
    s_memrealtime s[{e0+2}:{e0+3}]
    s_mov_b32 s58, 0x10000000
    s_mov_b32 s59, 0x20000
    s_lshl_b32 s46, s2, 2
    s_add_u32 s46, s46, s3
    s_lshl_b32 s46, s46, 6
    s_waitcnt lgkmcnt(0)
"""
        for i in range(16): t += f"    v_mov_b32 v{64+i}, s{60+(2*i if cfg.stamps == 'c16' else i)}\n"
        t += "    v_mov_b32 v60, 0\n    s_mov_b64 exec, 1\n"
        if cfg.stamps == "dbg":
            t += "    s_mov_b32 s58, 256\n"
            for i in range(8):
                t += f"    v_not_b32 v{65+2*i}, v{64+2*i}\n"
            for i in range(16): t += f"    buffer_atomic_umax v{64+i}, v60, s[56:59], 0 offen offset:{4*i}\n"
        else:
          for i in range(4): t += f"    buffer_store_dwordx4 v[{64+4*i}:{67+4*i}], v60, s[56:59], s46 offen offset:{16*i}\n"
        t += "    s_mov_b64 exec, -1\n"
    t += f"""    v_cmp_lt_u32 vcc, {lim:#x}, v{vChk}
    s_nop 4
    s_cbranch_vccnz L_slow
L_end:
    s_endpgm
"""
    for n in cfg.spins:
        t += f"""L_spin{n}:
    ds_read_b32 v{vPoll}, v{vCnt}
    s_waitcnt lgkmcnt(0)
    v_readfirstlane_b32 s{sPol}, v{vPoll}
    s_nop 3
    s_cmp_lt_u32 s{sPol}, s{sExp}
    s_cbranch_scc1 L_spin{n}
    s_branch L_back{n}
"""
    S0, S1, M, T = 16, 20, 24, 25
    vQ = vQd; vKb = vKr + 2
    q = lambda ds: at(aQ + 4 * ds, 4)
    k = lambda j, ds: at(aK + j * 16 + 4 * ds, 4)
    t += f"""; Fallback: a row sum left [2^-{cfg.limit_exp}, 2^{cfg.limit_exp}] (or is not finite), so exp without an offset was not safe.
; This wave recomputes its 256 rows subtracting the true row maximum.  K is rebuilt in LDS; V goes through a private 8 KiB.
L_slow:
    s_waitcnt vmcnt(0) lgkmcnt(0)
    s_barrier                                 ; the other waves are done with LDS (ended or here)
    s_mov_b32 s{sQo}, 0
    s_lshl_b32 s{sTmp}, s{sWave}, 12
    s_lshl_b32 s{sTmp+1}, s{sWave}, 13
    s_add_u32 s{sTmp+2}, s{sTmp+1}, 0x20000
    s_add_u32 s{sTmp+3}, s{sTmp+2}, 4096
    v_subrev_u32 v{vD0}, s{sTmp}, v{vD0}
    v_bfe_u32 v{T}, v{vKl}, 4, 4              ; l & 15
    v_lshrrev_b32 v{T+1}, 8, v{vKl}           ; l >> 4
    v_lshlrev_b32 v{vQ}, 4, v{T+1}
    v_lshl_add_u32 v{vQ}, v{T}, 8, v{vQ}      ; Q rows in MFMA layout
    v_xor_b32 v{T+1}, v{T}, v{T+1}
    v_and_b32 v{T+1}, 7, v{T+1}
    v_lshlrev_b32 v{T+1}, 4, v{T+1}
    v_lshl_add_u32 v{vKw}, v{T}, 8, v{T+1}
    v_xor_b32 v{vKw+1}, 64, v{vKw}
    v_lshrrev_b32 v{T+1}, 6, v{vKl}           ; 4g+r
    v_lshlrev_b32 v{T+1}, 8, v{T+1}
    v_lshl_add_u32 v{T+1}, v{T}, 4, v{T+1}
    v_add_u32 v{vV}, s{sTmp+2}, v{T+1}
    v_xor_b32 v{vV+1}, 64, v{vV}
    v_xor_b32 v{vV+2}, 128, v{vV}
    v_xor_b32 v{vV+3}, 192, v{vV}
"""
    t += f"""    s_sub_u32 s{sK_}, s{sK_}, s{sTmp}
    s_subb_u32 s{sK_+1}, s{sK_+1}, 0
    s_mov_b32 s{sK_+2}, 0x20000
    s_mov_b32 s{sCnt}, 0
L_skld:
"""
    for i in range(4): t += f"    buffer_load_dwordx4 {vt(vOa+4*i,4)}, v{vKl}, s[{sK_}:{sK_+3}], s{sCnt} offen offset:{i*1024}\n"
    t += "    s_waitcnt vmcnt(0)\n"
    for x in range(vOa, vOa + 16):
        t += f"""    v_lshlrev_b32 v{T}, 16, v{x}
    v_and_b32 v{x}, s{sMask}, v{x}
    v_mul_f32 v{T}, s{sScale}, v{T}
    v_mul_f32 v{x}, s{sScale}, v{x}
    v_cvt_pk_bf16_f32 v{x}, v{T}, v{x}
"""
    for i in range(4): t += f"    ds_write_b128 v{vKw+(i&1)}, {vt(vOa+4*i,4)} offset:{(i>>1)*128}\n"
    t += f"""    s_waitcnt lgkmcnt(0)
    v_add_u32 v{vKw}, 4096, v{vKw}
    v_add_u32 v{vKw+1}, 4096, v{vKw+1}
    s_add_u32 s{sCnt}, s{sCnt}, 4096
    s_cmp_lt_u32 s{sCnt}, 0x20000
    s_cbranch_scc1 L_skld
"""
    t += "L_sblk:\n"
    for ds in range(4): t += f"    buffer_load_dwordx4 {q(ds)}, v{vQ}, s[{sQ_}:{sQ_+3}], s{sQo} offen offset:{ds*64}\n"
    t += f"""    v_mov_b32 v{M}, 0xff800000
    v_mov_b32 v{vKb}, v{vKr}
    v_mov_b32 v{vKb+1}, v{vKr+1}
    s_mov_b32 s{sCnt}, 32
    s_waitcnt vmcnt(0)
L_smax:
"""
    for ds in range(4): t += f"    ds_read_b128 {k(0,ds)}, v{vKb+(ds&1)} offset:{ds*1024}\n"
    t += "    s_waitcnt lgkmcnt(0)\n"
    for ds in range(4): t += f"    v_mfma_f32_16x16x32_bf16 {vt(S0,4)}, {k(0,ds)}, {q(ds)}, {'0' if ds == 0 else vt(S0,4)}\n"
    t += f"""    s_nop 7
    v_max3_f32 v{M}, v{M}, v{S0}, v{S0+1}
    v_max3_f32 v{M}, v{M}, v{S0+2}, v{S0+3}
    v_add_u32 v{vKb}, 4096, v{vKb}
    v_add_u32 v{vKb+1}, 4096, v{vKb+1}
    s_sub_u32 s{sCnt}, s{sCnt}, 1
    s_cmp_lg_u32 s{sCnt}, 0
    s_cbranch_scc1 L_smax
    v_mov_b32 v{T}, v{M}
    s_nop 1
    v_permlane16_swap_b32 v{M}, v{T}
    s_nop 1
    v_max_f32 v{M}, v{M}, v{T}
    v_mov_b32 v{T}, v{M}
    s_nop 1
    v_permlane32_swap_b32 v{M}, v{T}
    s_nop 1
    v_max_f32 v{M}, v{M}, v{T}
"""
    for r in range(4): t += f"    v_mov_b32 v{vL+r}, 0\n"
    for r in range(32): t += f"    v_mov_b32 v{vOa+r}, 0\n"
    t += f"""    v_mov_b32 v{vKb}, v{vKr}
    v_mov_b32 v{vKb+1}, v{vKr+1}
    s_mov_b32 s{sCnt}, 0
L_skey:
    s_mov_b32 m0, s{sTmp+2}
    s_mov_b32 s{sTmp+5}, s{sCnt}
    s_add_u32 s{sTmp+4}, s{sTmp+5}, 4096
"""
    for i in range(4): t += f"    buffer_load_dwordx4 v{vD0}, s[{sV_}:{sV_+3}], s{sTmp+5} offen offset:{i*1024} lds\n"
    t += f"    s_mov_b32 m0, s{sTmp+3}\n    s_nop 0\n"
    for i in range(4): t += f"    buffer_load_dwordx4 v{vD0}, s[{sV_}:{sV_+3}], s{sTmp+4} offen offset:{i*1024} lds\n"
    for j in range(2):
        for ds in range(4): t += f"    ds_read_b128 {k(j,ds)}, v{vKb+(ds&1)} offset:{j*4096+ds*1024}\n"
    t += "    s_waitcnt vmcnt(0) lgkmcnt(0)\n"
    for db in range(8):
        for h in range(2): t += f"    ds_read_b64_tr_b16 {at(aV+db*4+2*h,2)}, v{vV+(db>>1)} offset:{h*4096+(db&1)*8}\n"
    for j, S in enumerate((S0, S1)):
        for ds in range(4): t += f"    v_mfma_f32_16x16x32_bf16 {vt(S,4)}, {k(j,ds)}, {q(ds)}, {'0' if ds == 0 else vt(S,4)}\n"
    t += "    s_nop 7\n"
    for r in range(8): t += f"    v_sub_f32 v{S0+r}, v{S0+r}, v{M}\n"
    for r in range(8): t += f"    v_exp_f32 v{S0+r}, v{S0+r}\n"
    t += "    s_nop 0\n"
    for r in range(4): t += f"    v_cvt_pk_bf16_f32 v{vP+r}, v{S0+2*r}, v{S0+2*r+1}\n"
    t += f"    v_add_u32 v{vKb}, 8192, v{vKb}\n    v_add_u32 v{vKb+1}, 8192, v{vKb+1}\n    s_waitcnt lgkmcnt(0)\n    s_nop 0\n"
    t += f"    v_mfma_f32_16x16x32_bf16 {vt(vL,4)}, {vt(vOne,4)}, {vt(vP,4)}, {vt(vL,4)}\n"
    for db in range(8): t += f"    v_mfma_f32_16x16x32_bf16 {vt(vOa+4*db,4)}, {at(aV+db*4,4)}, {vt(vP,4)}, {vt(vOa+4*db,4)}\n"
    t += f"""    s_add_u32 s{sCnt}, s{sCnt}, 8192
    s_cmp_lt_u32 s{sCnt}, 0x20000
    s_cbranch_scc1 L_skey
    s_nop 7
    v_rcp_f32 v{vR}, v{vL}
    s_nop 0
"""
    for r in range(32): t += f"    v_mul_f32 v{vOa+r}, v{vOa+r}, v{vR}\n"
    for db in range(8):
        o = vOa + 4 * db; d = vP + 2 * db
        t += f"    v_cvt_pk_bf16_f32 v{d}, v{o}, v{o+1}\n    v_cvt_pk_bf16_f32 v{d+1}, v{o+2}, v{o+3}\n"
    if cfg.store_x4:
        t += "    s_nop 1\n"
        for db in range(0, 8, 2):
            d = vP + 2 * db
            if not cfg.vperm: t += f"    v_permlane16_swap_b32 v{d}, v{d+2}\n    v_permlane16_swap_b32 v{d+1}, v{d+3}\n"
            t += f"    buffer_store_dwordx4 {vt(d,4)}, v{vQ}, s[{sO_}:{sO_+3}], s{sQo} offen offset:{db*32}\n"
    else:
        for db in range(8): t += f"    buffer_store_dwordx2 {vt(vP+2*db,2)}, v{vO}, s[{sO_}:{sO_+3}], s{sQo} offen offset:{db*32}\n"
    t += f"""    s_add_u32 s{sQo}, s{sQo}, 4096
    s_cmp_lt_u32 s{sQo}, 0x10000
    s_waitcnt vmcnt(0)
    s_cbranch_scc1 L_sblk
    s_endpgm
"""
    return t

HDR = """; Kernarg layout for this problem (48 bytes, ptrs only, base s[0:1]):
;   offset   0: d_in[0] q  shape=(16, 32, 512, 128) dtype=bfloat16
;   offset   8: d_in[1] k  shape=(16, 4, 512, 128) dtype=bfloat16
;   offset  16: d_in[2] v  shape=(16, 4, 512, 128) dtype=bfloat16
;   offset  24: d_out     shape=(16, 32, 512, 128) dtype=bfloat16
;   offset  32: d_debug   256 bytes
;   offset  40: d_ws      268435456 bytes workspace (unused)
; @launch grid=(256,1,1) block=(256,1,1) lds=163840
"""

def full(cfg):
    body = generate(cfg)
    r = full2(cfg, body)
    if getattr(cfg, "spin_cyc", 0):
        r = r.replace("s_memrealtime s[64:65]", "s_memtime s[64:65]").replace("s_memrealtime s[66:67]", "s_memtime s[66:67]").replace("s_memrealtime s[62:63]", "s_memtime s[62:63]")
        r = r.replace("s_sub_u32 s64, s64, s60", "s_sub_u32 s64, s64, s62").replace("s_mul_i32 s64, s64, 0", "s_lshr_b32 s64, s64, 1")
    if cfg.stamps in ("cyc", "c16"): r = r.replace("s_memrealtime", "s_memtime")
    if cfg.stamps == "both":
        import re
        r = re.sub(r"    s_memrealtime s\[(\d+):(\d+)\]", lambda m: f"    s_memtime s[{m.group(1)}:{m.group(2)}]\n    s_memrealtime s[{int(m.group(1))+20}:{int(m.group(2))+20}]", r)
        for i in range(8): r = r.replace(f"v_mov_b32 v{65+2*i}, s{61+2*i}\n", f"v_mov_b32 v{65+2*i}, s{80+2*i}\n")
    return r

def full2(cfg, body):
    return HDR + f""".amdgcn_target "amdgcn-amd-amdhsa--gfx950"
.text
.globl {KN}
.p2align 8
.type {KN},@function
{KN}:
""" + head(cfg) + body + "\n" + tail(cfg) + f""".section .rodata,"a"
.p2align 6
.amdhsa_kernel {KN}
  .amdhsa_next_free_vgpr 512
  .amdhsa_next_free_sgpr 102
  .amdhsa_accum_offset 256
  .amdhsa_group_segment_fixed_size 0
  .amdhsa_kernarg_size 48
  .amdhsa_user_sgpr_count 2
  .amdhsa_user_sgpr_kernarg_segment_ptr 1
  .amdhsa_system_sgpr_workgroup_id_x 1
.end_amdhsa_kernel
"""

if __name__ == "__main__":
    cfg = Cfg()
    name = sys.argv[1]
    for a in sys.argv[2:]:
        k, v = a.split("=", 1)
        try: v = eval(v)
        except Exception: pass
        setattr(cfg, k, v)
    s = full(cfg)
    open(name, "w").write(s)
    tot = sum(v[0] for v in cfg.est.values())
    print(name, "est head", cfg.est_head, "total", tot, "mfma", sum(v[1] for v in cfg.est.values()), file=sys.stderr)
    print(" ".join(f"{s}:{v[0]}/{v[1]}" for s, v in cfg.est.items() if s < 16 or s >= 32), file=sys.stderr)
```

```python
import sys, math, struct
KN = "standalone__gqa_softmax__near_ridge_kernel"

class Cfg:
    sigma = (0, 2, 4, 6)
    beta = 0.85
    beta_small = 0.55
    ds_lat = 9
    mv_lat = 4
    store_x4 = True
    q_nt = "nt"
    st_pol = "sc0 sc1"
    k_pol = "nt"
    v_pol = ""
    v_pol0 = "nt"
    rot = 0
    split_from = 4
    split_min_u = 2
    arr_gap = 10
    vm_gap = 5
    smooth = True
    stamps = False
    code_pf = True
    plan = "K0 Q0 C K1 H W00 V0 S0 B r0 r1 R0 K2 S1@0.0 V1@0.0 Q1@0.5 K3@1.0 V2@1.5 R1@2.0 K4@2.0 Q2@2.3 V3@2.6 K5@3.0 V4@3.4 K6@3.b R2@3.b Q3@4.0 K7@4.b R3@5.b Q4@6.0"
    vperm = True
    st_last = "sc0 sc1"
    st_last_from = 38
    ones_rows = 8
    trunc = False
    fake_st = False
    fake_v = False
    fake_m0 = 0
    v_n0 = 8
    st_block = 0
    c_pol = ""
    st_first = None
    st_pair = False
    fetch_thr = 1
    fetch_slack = 1
    st_gap = 16
    st_gap_all = False
    pf2 = False
    x8 = False
    qr_asap = True
    full_until = 33
    kst = [(1, 0), (1, 1), (2, 0), (2, 1), (3, 0), (3, 1), (3, "P"), (3, 0)]
    jitter = None
    xor = None
    qlag = {}
    lags = {}
    tailpub = {33: [33, 34], 35: [35, 37]}
    align = True
    early_pf = True
    deep = True
    tail_dl = 1.0
    betas = {0: 0.95, 1: 0.9, 2: 0.8, 3: 0.8}
    arr_gap_small = 4
    k_up = 1
    force_slow = False
    nop_ds = True
    ds_gap = 2
    ds_cap = 1024
    kill_from = None
    pad = 0
    kill = ()
    limit_exp = 32

vQd, vO, vQr, vCnt, vD0, vD1, vChk = 1, 2, 3, 4, 5, 6, 7
vKl = 0
vV = 8
vS = 16
vL = 32
vR = 48
vKw = 50
vT = 52
NT = 5
vIdx = 57
vPoll = 58
vJ = 59
vKr = 60
vP = 64
vOa = 128
aQ, aKp, aVp, aK, aV = 0, 64, 128, 192, 224
vOne, vCone, vKp1, vO2, vO3 = 12, 6, 52, 56, 59
sPol = 40
TV = 4
TMPS = [44, 45, 46, 47, 56]
sQ_, sK_, sV_, sO_, sC_ = 12, 16, 20, 24, 28
sTile = 32
sM0 = 96
sQo, sOo, sCnt, sScale, sWave = 42, 43, 44, 45, 3
sTmp = 46
sMq, sExp, sMask, sPerm = 52, 53, 54, 55

VB, VSTR, KSH = 0x18000 - 32, 16384 + 8, 32
def vr(b, n=1): return [f"v{b+i}" for i in range(n)]
def ar(b, n=1): return [f"a{b+i}" for i in range(n)]
def vt(b, n): return f"v[{b}:{b+n-1}]"
def at(b, n): return f"a[{b}:{b+n-1}]"

class Op:
    def __init__(s, key, text, kind, reads, writes, cost=None, earliest=None, dummy=False, anchor=None, maxdl=None):
        s.key, s.text, s.kind, s.reads, s.writes = key, text, kind, list(reads), list(writes)
        s.cost = {"mfma": 0, "trans": 8, "valu": 4, "ds": 4, "dsw": 20, "load": 8, "dma": 8, "store": 12, "salu": 0, "bar": 0, "chk": 0}[kind] if cost is None else cost
        s.cnt = {"ds": "lgkm", "dsw": "lgkm", "load": "vm", "dma": "vm", "store": "vm"}.get(kind)
        s.earliest = earliest
        s.maxdl = maxdl
        s.dummy = dummy
        s.anchor = anchor
        s.preds = []; s.succs = []; s.win = None; s.pos = None; s.m = None
        s.prod = {}

def build(cfg, s0, s1, steady):
    sg = cfg.sigma
    NP = 4
    last = 32 + max(sg)
    def qk_on(s, u): return steady or (sg[u] <= s < sg[u] + 8 * NP)
    def pv_on(s, u): return steady or (sg[u] + 1 <= s < sg[u] + 8 * NP + 1)
    def order_qk(s, kb):
        us = [u for u in range(4) if qk_on(s, u)]
        if kb == 3:
            f = [u for u in us if (s - sg[u]) % 8 == 7]
            us = f + [u for u in us if u not in f]
        if kb == 0:
            f = [u for u in us if (s - sg[u]) % 8 == 0]
            us = [u for u in us if u not in f] + f
        return us
    prog = []
    A = prog.append
    chain = 0
    pend_q = []
    def qload(key, earliest=None, dummy=False):
        A(Op(key + ("m0",), f"s_mov_b32 m0, s{sMq}", "salu", [], ["m0"], dummy=dummy))
        for i in range(4):
            A(Op(key + (i,), f"buffer_load_dwordx4 v{vQd}, s[{sQ_}:{sQ_+3}], s{sQo} offen offset:{i*1024} {cfg.q_nt} lds".replace("  ", " "), "dma",
                 [f"s{sQo}", "m0"] + [f"Qrd{d}" for d in range(4)], [f"Qs{i}"], earliest=earliest, dummy=dummy))
        A(Op(key + ("inc",), f"s_add_u32 s{sQo}, s{sQo}, 4096", "salu", [f"s{sQo}"], [f"s{sQo}"], dummy=dummy))
    def qread(key, u, earliest=None, dummy=False):
        for ds in range(4):
            d = aQ + 16 * u + 4 * ds
            A(Op(key + (ds,), f"ds_read_b128 {at(d,4)}, v{vQr} offset:{ds*64}", "ds", [f"Qs{i}" for i in range(4)], ar(d, 4) + [f"Qrd{ds}"], earliest=earliest, dummy=dummy))
    def kfrag(s, kb, ds):
        t = s % 8
        if (t, kb, ds) == (1, 0, 0): return ("v", vKp1)
        if t == 0 or (not steady and s >= 34): return ("a", aKp + kb * 16 + ds * 4)
        if not steady and s <= 4: return ("a", aK + kb * 16 + ds * 4)
        return ("a", aK + (kb & 1) * 16 + ds * 4)
    def vperm_(sv): return sv % 8 == TV and (steady or sv >= 8)
    def vfrag(sv, db):
        if sv % 8 == TV or (not steady and sv < TV): return aVp + db * 8
        if not steady and sv >= 34 and db >= 4: return aQ + (db - 4) * 8
        return aV + (db & 3) * 8
    rt = lambda f, n: f"{f[0]}[{f[1]}:{f[1]+n-1}]"
    rr = lambda f, n: [f"{f[0]}{f[1]+i}" for i in range(n)]
    def vslot(sv):
        if not steady and sv in (2, 3, 34, 35): return sv & 1
        if not steady and sv == 37: return 3
        return 2 + (((sv - TV - 1) % 8) & 1)
    def vprev(sv):
        if vslot(sv) < 2: return ["Kret67"] if sv > 8 else []
        p = sv - 1
        while p >= 0 and (vslot(p) != vslot(sv) or vperm_(p)): p -= 1
        return [f"Vret{p}"] if p >= 0 else []
    vissued = set()
    def vdma(sv, earliest=None):
        vissued.add(sv)
        A(Op(("m0", sv), f"s_mov_b32 m0, s{sM0 + vslot(sv)}", "salu", ["setup~"], ["m0"]))
        for i in range(4):
            A(Op(("dma", sv, i), f"buffer_load_dwordx4 v{vD0}, s[{sV_}:{sV_+3}], s{sTile + sv % 8} offen offset:{i*1024} {cfg.v_pol0 if (not steady and sv < cfg.v_n0) else cfg.v_pol} lds".replace("  ", " "), "dma",
                 ["m0"] + vprev(sv), [f"Vd{sv}_{i}"], earliest=earliest))
    kstage = {}
    def kregs(t):
        u = KST[t][0]; h = KST[t][1]
        if h == "P": return [vP + (ds >> 1) * 32 + u * 8 + (ds & 1) * 4 for ds in range(4)]
        return [vOa + (h * 4 + ds) * 16 + u * 4 for ds in range(4)]
    KST = cfg.kst
    if cfg.k_up == 8: KST = [(0, 0), (0, 1), (1, 0), (1, 1), (2, 0), (2, 1), (3, 0), (3, 1)]
    def kload(t, earliest=None):
        for ds, r in enumerate(kregs(t)):
            A(Op(("kld", t, ds), f"buffer_load_dwordx4 {vt(r,4)}, v{vKl}, s[{sK_}:{sK_+3}], s{sTile + t} offen offset:{ds*1024} {cfg.k_pol}".rstrip(), "load",
                 [], vr(r, 4), earliest=earliest))
    tmpc = [0]
    def kscale(t, earliest=None):
        for ds, r in enumerate(kregs(t)):
            for j in range(4):
                x = r + j; tm = TMPS[tmpc[0] % NT]; tmpc[0] += 1
                k = ("ksc", t, ds, j)
                A(Op(k + (0,), f"v_lshlrev_b32 v{tm}, 16, v{x}", "valu", vr(x), vr(tm), earliest=earliest))
                A(Op(k + (1,), f"v_and_b32 v{x}, s{sMask}, v{x}", "valu", vr(x), vr(x), earliest=earliest))
                A(Op(k + (2,), f"v_mul_f32 v{tm}, s{sScale}, v{tm}", "valu", vr(tm), vr(tm)))
                A(Op(k + (3,), f"v_mul_f32 v{x}, s{sScale}, v{x}", "valu", vr(x), vr(x)))
                A(Op(k + (4,), f"v_cvt_pk_bf16_f32 v{x}, v{tm}, v{x}", "valu", vr(tm) + vr(x), vr(x)))
            tl = 3 if t == 0 else t
            if t == 4 and ds == 0:
                A(Op(("kwa", t, ds), f"v_add_u32 v{vKw}, {0x10000 - KSH}, v{vKw}", "valu", vr(vKw), vr(vKw)))
            a = vKw + (1 if (t == 1 and ds < 2) else 0)
            A(Op(("kw", t, ds), f"ds_write_b128 v{a}, {vt(r,4)} offset:{(tl & 3) * 16384 + (ds >> 1) * 4096 + (ds & 1) * 128 - (KSH if tl < 4 else 0)}", "dsw",
                 vr(r, 4) + vr(a) + (["K0dead"] if t in (3, 4) else []) + ([f"Vret{v}" for v in range(2, t - 3)] if t >= 6 and cfg.deep else []), [f"Kw{t}_{ds}"]))
    nmf = [0]
    kpub = set()
    def kread1(s, t, kb):
        for ds in range(4):
            perm = t == 0 or (t, kb, ds) == (1, 0, 0)
            if perm and (steady or s > 7): continue
            d = kfrag(s, kb, ds); tl = 3 if t == 0 else (4 if perm else t)
            A(Op(("kr", s, kb, ds), f"ds_read_b128 {rt(d,4)}, v{vKr + 2 * (tl >> 2) + (ds & 1)} offset:{(tl & 3) * 16384 + kb * 4096 + ds * 1024 - (KSH if tl < 4 else 0)}", "ds",
                 [] if (steady or s > 7) else [f"Kok{t}"], rr(d, 4) + ([] if not perm else [f"Kr0_{kb}_{ds}" if t == 0 else "Kr1"])))
    kdone0 = set(); kscaled = []
    later = {}
    if not steady:
        H = (-1, 0)
        def issue(item, when):
            n0 = len(prog)
            n = int(item[1:]) if item[1:].isdigit() else None
            if item[0] == "K": kload(n, when)
            elif item[0] == "Q": qload(("q0", n) if n < 4 else ("q", 8, 0), when)
            elif item[0] == "R": qread(("qr0", n), n, when)
            elif item[0] == "V": vdma(n, when)
            elif item[0] == "S": kscale(n, when); kscaled.append(n)
            elif item[0] == "r": kread1(0, 0, n); kdone0.add(n)
            elif item[0] == "W":
                A(Op(("wt", 0, item), "s_nop 0", "valu", vr(kregs(int(item[1]))[int(item[2])], 4), []))
            elif item[0] == "P":
                A(Op(("cpf", 1), f"buffer_load_dword v{vJ}, v{vJ}, s[{sC_}:{sC_+3}], 0 offen {cfg.c_pol}".rstrip(), "load", [], ["junk"], earliest=when))
            elif item[0] == "H":
                A(Op(("hop", 0), "@HOPS", "valu", [], [], earliest=when, maxdl=when))
            elif item[0] == "T":
                A(Op(("ts", 0, item), f"s_memrealtime s[{64+2*n}:{65+2*n}]", "valu", [], []))
            elif item[0] == "X":
                A(Op(("wt", 0, item), "s_nop 0", "valu", [f"Qs{i}" for i in range(4)], []))
            elif item[0] == "B":
                pub = [t for t in kscaled if t not in kpub]; kpub.update(pub)
                A(Op(("bar", -1), "s_barrier", "bar", ["Czero"] + [f"Kw{t}_{ds}" for t in pub for ds in range(4)], [f"Kok{t}" for t in pub], anchor=H))
            elif item[0] == "C":
                pf = f"buffer_load_dword v{vJ}, v{vJ}, s[{sC_}:{sC_+3}], 0 offen {cfg.c_pol}".rstrip()
                if cfg.early_pf:
                    A(Op(("cpf", 0), head2(cfg).split("@CPF")[1].strip(), "valu", [], [], earliest=when, cost=300))
                elif cfg.pf2:
                    p1 = f"""    s_lshr_b32 s{sTmp+4}, s{sWave}, 1
    s_lshl1_add_u32 s{sTmp+4}, s2, s{sTmp+4}
    s_lshl_b32 s{sTmp+4}, s{sTmp+4}, 7
    v_and_b32 v{vS+15}, 0x70, v{vKl}
    buffer_load_dword v{vS+15}, v{vS+15}, s[{sC_}:{sC_+3}], s{sTmp+4} offen"""
                    A(Op(("cpf", 0), head2(cfg).replace("@CPF", p1).strip(), "load", [], vr(vS + 15), earliest=when, cost=300))
                elif " P" in cfg.plan: A(Op(("cpf", 0), head2(cfg).replace("@CPF\n", "").strip(), "valu", [], [], earliest=when, cost=300))
                else: A(Op(("cpf", 0), head2(cfg).replace("@CPF", "    " + pf).strip(), "load", [], ["junk"], earliest=when, cost=300))
                A(Op(("setup", 0), "s_nop 0", "valu", [], ["setup~", f"s{sExp}"]))
                A(Op(("cz", 1), f"ds_write_b32 v{vCnt}, v{vPoll}", "dsw", [], ["Czero"], cost=8))
            if when == H:
                for x in prog[n0:]: x.maxdl = H
        for item in cfg.plan.split():
            if "@" not in item: issue(item, H)
            else:
                it, pos = item.split("@"); st, fr = pos.split(".")
                later.setdefault(int(st), []).append((it, fr))
    for s in range(s0, s1):
        t = s % 8
        uq = [u for u in range(4) if qk_on(s, u)]
        up = order_qk(s - 1, 3) if (steady or s > 0) else []
        up = [u for u in up if pv_on(s, u)]
        qk = [(kb, u) for kb in range(4) for u in order_qk(s, kb)]
        if not steady and s in cfg.qlag:
            qk.sort(key=lambda c: (c[0] + (cfg.qlag[s] + 0.5 if sg[c[1]] == s else 0)))
        pv = []
        fin = [u for u in up if (s - 1 - sg[u]) % 8 == 7]
        ones_order = fin + [u for u in up if u not in fin]
        for db in range(8):
            for u in up: pv.append(("pv", db, u))
        npv = len(pv)
        ins = {}
        for i, u in enumerate(ones_order):
            if u in fin: p = len(up)
            else: p = len(up) + (npv - len(up)) * i // max(1, len(ones_order))
            ins.setdefault(p, []).append(("one", 0, u))
        pv2 = []
        for i, c in enumerate(pv):
            pv2 += ins.get(i, []); pv2.append(c)
        pv = pv2
        seq = []
        if qk:
            j = 0
            lag = 1 if len(uq) <= 2 and pv else 0
            if not steady and s in cfg.lags: lag = cfg.lags[s]
            for i, c in enumerate(qk):
                seq.append(("qk",) + c)
                tgt = math.ceil(max(0, i + 1 - lag) * len(pv) / (len(qk) - lag))
                while j < tgt: seq.append(pv[j]); j += 1
        else:
            seq = pv
        nm = sum({"qk": 4, "pv": 2, "one": 1}[c[0]] for c in seq)
        beta = cfg.beta if len(uq) >= 3 else cfg.beta_small
        barpos = int(beta * nm)
        if not steady and s in cfg.betas: barpos = int(cfg.betas[s] * nm)
        vdone = set(); kdone = set(kdone0) if (s == 0 and not steady) else set(); bar_done = False
        Pw = vP + 32 * (s & 1); Pr = vP + 32 * ((s - 1) & 1)
        def vreads(db):
            if db in vdone or vperm_(s - 1): return
            vdone.add(db)
            for ks in range(2):
                for h in range(2):
                    d = vfrag(s - 1, db) + ks * 4 + h * 2
                    A(Op(("vr", s, db, ks, h), f"ds_read_b64_tr_b16 {at(d,2)}, v{vV+(db>>1)} offset:{vslot(s-1)*VSTR + ks*4096 + h*2048 + (db&1)*8}", "ds",
                         [f"Vok{s-1}"], ar(d, 2) + [f"Vr{s-1}_{db}_{ks}_{h}"]))
        def kreads(kb):
            if kb in kdone: return
            kdone.add(kb); kread1(s, t, kb)
        def barrier():
            rd = []; wr = []
            pubv, retv, nxt = [s], [s - 1], [s + 1]
            if vperm_(s + 1): retv = []; nxt = []
            if vperm_(s): pubv = []; retv = [s - 2, s - 1]
            if vperm_(s - 1): retv = []
            if not steady:
                retv = {1: [], 2: [0], 3: [1], 4: [2], 5: [3, 4], 34: []}.get(s, retv)
                if s >= 33:
                    if s not in cfg.tailpub: return
                    pubv = cfg.tailpub[s]
                    if s > 33: retv = []; nxt = []
                nxt = {0: [], 1: [], 2: [4], 3: [5], 4: [], 32: [33, 34, 35], 33: [37], 34: []}.get(s, nxt)
                if s == 32: wr.append("Kret67")
                nxt = [v for v in nxt if v < last and v not in vissued and not any(it == f"V{v}" for l in later.values() for it, _ in l)]
            for v in retv:
                if v < 0: continue
                if v == s - 1:
                    for db in range(8): vreads(db)
                rd += [f"Vr{v}_{db}_{ks}_{h}" for db in range(8) for ks in range(2) for h in range(2)]
                wr.append(f"Vret{v}")
            for v in pubv:
                assert steady or v in vissued, v
                rd += [f"Vd{v}_{i}" for i in range(4)]; wr.append(f"Vok{v}")
            if not steady and s + 1 <= 7 and s + 1 not in kpub:
                if s + 1 not in kscaled: kscale(s + 1, ((s - 1, "bar") if s >= 1 else (-1, 0))); kscaled.append(s + 1)
                kpub.add(s + 1)
                rd += [f"Kw{s+1}_{ds}" for ds in range(4)]; wr.append(f"Kok{s+1}")
            if not steady and s == 1:
                rd += [f"Kr0_{kb}_{ds}" for kb in range(4) for ds in range(4)]; wr.append("K0dead")
                rd.append("Kr1")
            if (steady or s >= cfg.split_from) and len(uq) >= cfg.split_min_u:
                ag = cfg.arr_gap if len(uq) >= 3 else cfg.arr_gap_small
                A(Op(("arr", s), f"ds_add_u32 v{vCnt}, v{vCone}", "dsw", rd, ["Carr"], cost=8, anchor=(s, "bar", -ag - cfg.ds_lat - 2)))
                A(Op(("exp", s), f"s_add_u32 s{sExp}, s{sExp}, 4", "salu", [f"s{sExp}"], [f"s{sExp}"]))
                A(Op(("pol", s), f"ds_read_b32 v{vPoll}, v{vCnt}", "ds", ["Carr~"], vr(vPoll), anchor=(s, "bar", -cfg.ds_lat - 2)))
                A(Op(("cmp", s), f"v_readfirstlane_b32 s{sPol}, v{vPoll}", "valu", vr(vPoll), [f"s{sPol}"], anchor=(s, "bar", -3)))
                A(Op(("sc", s), f"s_cmp_lt_u32 s{sPol}, s{sExp}", "bar", [f"s{sPol}", f"s{sExp}"], ["scc"], anchor=(s, "bar", -1)))
                A(Op(("bar", s), f"s_cbranch_scc1 L_spin{s if (not steady and (s < 8 or s >= 32)) else 8 + s % 8}", "bar", ["scc"] + vr(vPoll) + [f"s{sExp}", f"s{sPol}"], wr, anchor=(s, "bar")))
            else:
                A(Op(("bar", s), "s_barrier", "bar", rd, wr, anchor=(s, "bar")))
            for v in nxt: vdma(v, None)
            for it, fr in later.get(s, []):
                if fr == "b": issue(it, (s, "bar"))
        todo_items = [(it, int(fr) / 10 ** len(fr)) for it, fr in later.get(s, []) if fr != "b"]
        mcount = 0
        for c in seq:
            if not bar_done and mcount >= barpos:
                barrier(); bar_done = True
            while todo_items and mcount >= todo_items[0][1] * nm:
                issue(todo_items.pop(0)[0], (s, "off", mcount))
            if c[0] == "qk":
                _, kb, u = c
                kreads(kb)
                if kb == 0 and (s - sg[u]) % 8 == 0 and (steady or s - sg[u] >= 8):
                    qread(("qr", s, u), u)
                    un = (u + 1) % 4; sn = s + (sg[un] - sg[u]) % 8
                    pend_q.append((("q", sn, un), not steady and sn - sg[un] >= 8 * NP))
                    if True:
                        k_, d_ = pend_q.pop(); qload(k_, dummy=d_)
                S = vS + 4 * (chain % 4); chain += 1
                for ds in range(4):
                    kf = kfrag(s, kb, ds); qf = aQ + u * 16 + ds * 4
                    A(Op(("qk", s, kb, u, ds), f"v_mfma_f32_16x16x32_bf16 {vt(S,4)}, {rt(kf,4)}, {at(qf,4)}, {'0' if ds == 0 else vt(S,4)}", "mfma",
                         rr(kf, 4) + ar(qf, 4) + ([] if ds == 0 else vr(S, 4)), vr(S, 4)))
                for r in range(4):
                    A(Op(("ex", s, kb, u, r), f"v_exp_f32 v{S+r}, v{S+r}", "trans", vr(S + r), vr(S + r)))
                pd = Pw + u * 8 + kb * 2
                for r in range(2):
                    tx = f"v_perm_b32 v{pd+r}, v{S+2*r+1}, v{S+2*r}, s{sPerm}" if cfg.trunc else f"v_cvt_pk_bf16_f32 v{pd+r}, v{S+2*r}, v{S+2*r+1}"
                    A(Op(("cv", s, kb, u, r), tx, "valu", vr(S + 2 * r, 2), vr(pd + r)))
                mcount += 4
            elif c[0] == "pv":
                _, db, u = c
                vreads(db)
                first = (s - 1 - sg[u]) % 8 == 0
                o = vOa + db * 16 + u * 4
                for ks in range(2):
                    vf = vfrag(s - 1, db) + ks * 4; pf = Pr + u * 8 + ks * 4
                    z = first and ks == 0
                    A(Op(("pv", s, db, u, ks), f"v_mfma_f32_16x16x32_bf16 {vt(o,4)}, {at(vf,4)}, {vt(pf,4)}, {'0' if z else vt(o,4)}", "mfma",
                         ar(vf, 4) + vr(pf, 4) + ([] if z else vr(o, 4)), vr(o, 4)))
                mcount += 2
            else:
                _, _, u = c
                first = (s - 1 - sg[u]) % 8 == 0
                l = vL + 4 * u
                if first:
                    for r in range(2): A(Op(("lz", s, u, r), f"v_mov_b32 v{l+r}, 0", "valu", [], vr(l + r)))
                pf = Pr + u * 8
                A(Op(("on", s, u), f"v_smfmac_f32_16x16x64_bf16 {vt(l,4)}, {vt(vOne,4)}, {vt(pf,8)}, v{vIdx}", "mfma", vr(pf, 8) + vr(l, 2), vr(l, 4)))
                mcount += 1
        if not bar_done: barrier()
        for it, _ in todo_items: issue(it, (s, "off", mcount))
        if not steady and s == 31:
            qread(("qr", 32, 0), 0, dummy=True)
            qload(("q", 32 + sg[1], 1), dummy=True)
        if not steady and s == 7:
            A(Op(("vo2", 7), f"v_xor_b32 v{vO2}, 0x840, v{vO}", "valu", [], vr(vO2)))
            if cfg.full_until < 39: A(Op(("vo3", 7), f"v_cndmask_b32 v{vO3}, v{vO}, v{vO2}, vcc", "valu", vr(vO2) + ["junk"], vr(vO3)))
        for u in sorted(fin):
            l = vL + 4 * u; R = vR + 2 * (u & 1)
            DPP = "row_ror:8 row_mask:0xf bank_mask:0xf"
            pol = cfg.st_last if (not steady and s >= cfg.st_last_from) else cfg.st_pol
            A(Op(("la", s, u), f"v_add_f32 v{l}, v{l}, v{l+1}", "valu", vr(l, 2), vr(l)))
            A(Op(("rc", s, u), f"v_rcp_f32 v{R}, v{l}", "trans", vr(l), vr(R)))
            full = cfg.full_until > 0 if steady else s < cfg.full_until
            if full: A(Op(("r2", s, u), f"v_mov_b32_dpp v{R+1}, v{R} {DPP}", "valu", vr(R), vr(R + 1)))
            A(Op(("ck", s, u), f"v_max3_u32 v{vChk}, v{vChk}, v{l}, v{R}", "valu", vr(vChk) + vr(l) + vr(R), vr(vChk)))
            for db in range(8):
                o = vOa + db * 16 + u * 4
                for r in range(4):
                    if full and db & 2: A(Op(("mu", s, u, db, r), f"v_mul_f32_dpp v{o+r}, v{o+r}, v{R+1} {DPP}", "valu", vr(o + r) + vr(R + 1), vr(o + r)))
                    else: A(Op(("mu", s, u, db, r), f"v_mul_f32 v{o+r}, v{o+r}, v{R}", "valu", vr(o + r) + vr(R), vr(o + r)))
                if db & 1:
                    e = o - 16
                    A(Op(("oc", s, u, db, 3), f"v_cvt_pk_bf16_f32 v{o+3}, v{o+2}, v{o+3}", "valu", vr(o + 2, 2), vr(o + 3)))
                    A(Op(("oc", s, u, db, 2), f"v_cvt_pk_bf16_f32 v{o+2}, v{o}, v{o+1}", "valu", vr(o, 2), vr(o + 2)))
                    A(Op(("oc", s, u, db, 0), f"v_cvt_pk_bf16_f32 v{o}, v{e}, v{e+1}", "valu", vr(e, 2), vr(o)))
                    A(Op(("oc", s, u, db, 1), f"v_cvt_pk_bf16_f32 v{o+1}, v{e+2}, v{e+3}", "valu", vr(e + 2, 2), vr(o + 1)))
                    if not full:
                        A(Op(("st", s, u, db), f"buffer_store_dwordx4 {vt(o,4)}, v{vO3}, s[{sO_}:{sO_+3}], s{sOo} offen offset:{(db-1)*32} {pol}".rstrip(), "store",
                             vr(o, 4) + [f"s{sOo}"] + vr(vO3), [], cost=20))
                if full and db & 3 == 3:
                    a = o - 32; x = o - 16
                    for r in range(4):
                        A(Op(("sx", s, u, db, r), f"v_cndmask_b32 v{x+r}, v{a+r}, v{o+r}, vcc", "valu", vr(a + r) + vr(o + r), vr(x + r)))
                    A(Op(("st", s, u, db - 1), f"buffer_store_dwordx4 {vt(x,4)}, v{vO}, s[{sO_}:{sO_+3}], s{sOo} offen offset:{(db>>2)*128} {pol}".rstrip(), "store",
                         vr(x, 4) + [f"s{sOo}"], [], cost=20))
                    for r in range(4):
                        A(Op(("sy", s, u, db, r), f"v_cndmask_b32 v{o+r}, v{o+r}, v{a+r}, vcc", "valu", vr(a + r) + vr(o + r), vr(o + r)))
                    A(Op(("st", s, u, db), f"buffer_store_dwordx4 {vt(o,4)}, v{vO2}, s[{sO_}:{sO_+3}], s{sOo} offen offset:{(db>>2)*128} {pol}".rstrip(), "store",
                         vr(o, 4) + [f"s{sOo}"] + vr(vO2), [], cost=20))
            if not steady and 32 <= s < last:
                for x in prog:
                    if x.key[:3] == ("st", s, u): x.maxdl = (s + 1, "frac", (x.key[3] + 1) / 8 * cfg.tail_dl)
            A(Op(("oinc", s, u), f"s_add_u32 s{sOo}, s{sOo}, 4096", "salu", [f"s{sOo}"], [f"s{sOo}"]))
    return prog

def link(cfg, prog):
    lastw = {}; readers = {}
    m = 0
    for x in prog:
        if x.kind == "mfma": x.m = m; m += 1
    for x in prog:
        e = {}
        def add(p, typ):
            if p is x: return
            soft = hard = 0
            if p.kind == "mfma":
                if x.kind == "mfma": return
                if typ in ("raw", "waw"): soft = cfg.mv_lat + (2 if p.key[0] == "on" else 0)
                elif x.kind in ("valu", "trans"): soft = 1
            elif x.kind == "mfma":
                hard = soft = 1
                if typ == "raw":
                    soft = cfg.ds_lat if p.kind == "ds" else (1 if p.kind == "load" else 2)
                elif p.kind == "store": soft = 2
            elif x.kind == "bar" or x.key[0] == "arr":
                hard = 1; soft = {"ds": cfg.ds_lat, "dsw": cfg.ds_lat, "dma": 2}.get(p.kind, 1)
            elif p.kind == "bar":
                soft = hard = 0
            elif p.kind == "salu":
                soft = 2; hard = 1 if x.kind != "salu" else 1
            elif x.kind == "salu":
                soft = hard = 1
            elif typ == "raw":
                if p.kind == "trans": soft = 1
                elif p.kind == "ds" and x.kind == "dma": soft = cfg.ds_lat
                elif p.kind == "valu" and x.kind in ("store", "dsw", "ds"): soft = 1
                elif p.kind == "valu" and "permlane" in x.text: soft = 2
                if "_dpp" in x.text: soft = 2
            else:
                if p.kind in ("valu", "trans") and x.kind in ("load", "ds", "dma"): soft = 1
                if p.kind in ("store", "dsw"): soft = 1
            o = e.get(id(p))
            e[id(p)] = (p, max(soft, o[1]) if o else soft, max(hard, o[2]) if o else hard)
        for r in x.reads:
            if r in lastw: add(lastw[r], "raw"); x.prod[r] = lastw[r].key
        for r in x.writes:
            if r in lastw: add(lastw[r], "waw")
            for p in readers.get(r, []): add(p, "war")
        for r in x.reads: readers.setdefault(r, []).append(x)
        for r in x.writes: lastw[r] = x; readers[r] = []
        x.preds = list(e.values())
        for p, so, ha in x.preds: p.succs.append((x, so, ha))
    return m

def semantic_check(cfg, prog):
    sg = cfg.sigma
    nq = 0; qblk = {}; nst = 0
    for x in prog:
        k = x.key; P = [x.prod.get(r) for r in x.reads]
        def exp(idx, f):
            for i in idx: assert P[i] is not None and f(P[i]), ("semantic", k, x.reads[i], P[i])
        if x.dummy: continue
        if k[0] == "ksc" and k[4] in (0, 1): exp([0], lambda p: p == ("kld", k[1], k[2]))
        if k[0] == "ksc" and k[4] in (2, 3): exp([0], lambda p: p == k[:4] + (k[4] - 2,))
        if k[0] == "ksc" and k[4] == 4: exp([0], lambda p: p == k[:4] + (2,)); exp([1], lambda p: p == k[:4] + (3,))
        if k[0] == "kw": exp(range(4), lambda p: p[:3] == ("ksc", k[1], k[2]) and p[4] == 4)
        if k[0] == "kr" and k[1] < 8: exp([0], lambda p: p[0] == "bar")
        if k[0] == "vr": exp([0], lambda p: p[0] == "bar")
        if k[0] == "dma": exp([0], lambda p: p == ("m0", k[1])); exp(range(1, len(P)), lambda p: p[0] == "bar")
        if k[0] in ("q", "q0") and k[-1] == "inc": qblk[k[:-1]] = nq; nq += 1
        if k[0] in ("q", "q0") and isinstance(k[-1], int): exp([1], lambda p: p == k[:-1] + ("m0",))
        if k[0] in ("qr", "qr0"):
            u = k[-2]; n = 0 if k[0] == "qr0" else (k[1] - sg[u]) // 8
            exp(range(4), lambda p: qblk[p[:-1]] == 4 * n + u)
        if k[0] == "qk":
            _, s, kb, u, ds = k; s0 = s - (s - sg[u]) % 8
            exp(range(4), lambda p: p[0] == "kr" and p[1] % 8 == s % 8 and p[2:] == (kb, ds))
            exp(range(4, 8), lambda p: p == (("qr0", u, ds) if s0 == sg[u] else ("qr", s0, u, ds)))
            exp(range(8, len(P)), lambda p: p == ("qk", s, kb, u, ds - 1))
        if k[0] == "ex": exp([0], lambda p: p == ("qk",) + k[1:4] + (3,))
        if k[0] == "cv": exp([0, 1], lambda p: p[:4] == ("ex",) + k[1:4])
        if k[0] == "pv":
            _, s, db, u, ks = k
            exp(range(4), lambda p: p[0] == "vr" and p[1] % 8 == s % 8 and p[2:4] == (db, ks))
            exp(range(4, 8), lambda p: p[0] == "cv" and p[1] == s - 1 and p[2] >> 1 == ks and p[3] == u)
            exp(range(8, len(P)), lambda p: p == (("pv", s, db, u, 0) if ks else ("pv", s - 1, db, u, 1)))
        if k[0] == "on":
            exp(range(8), lambda p: p[0] == "cv" and p[1] == k[1] - 1 and p[3] == k[2])
            exp([8, 9], lambda p: p[:3] == ("lz", k[1], k[2]) or p == ("on", k[1] - 1, k[2]))
        if k[0] == "la": exp([0, 1], lambda p: p == ("on", k[1], k[2]))
        if k[0] == "mu": exp([0], lambda p: p == ("pv", k[1], k[3], k[2], 1)); exp([1], lambda p: p[0] in ("rc", "r2") and p[1:] == k[1:3])
        if k[0] == "oc": exp([0, 1], lambda p: p[:3] == ("mu",) + k[1:3])
        if k[0] == "oinc":
            assert nst == 4 * ((k[1] - 1 - sg[k[2]]) // 8) + k[2], k
            nst += 1
    assert nst == 16

def step_of(x): return x.key[1]

def schedule(cfg, prog, nm, pins=None, lo=None, hi=None):
    pins = pins or {}; lo = lo or {}; hi = hi or {}
    start = {}; barw = {}
    cur = -1
    for x in prog:
        if x.kind == "mfma":
            cur = x.m; start.setdefault(x.key[1], x.m)
        elif x.key[0] == "bar": barw[x.key[1]] = cur
    def W(a):
        if a[0] == -1: return -1
        if a[1] == "bar": return barw.get(a[0], nm - 1) + (a[2] if len(a) > 2 else 0)
        if a[1] == "frac": return start[a[0]] - 1 + int(a[2] * (start.get(a[0] + 1, nm) - start[a[0]]))
        if a[1] == "off": return max(0, start[a[0]] - 1 + a[2])
        return start[a[0]] - 1
    fill = [x for x in prog if x.kind != "mfma"]
    for x in prog:
        if x.kind == "mfma": x.win = x.m
    for i, x in enumerate(prog): x.idx = i
    for x in reversed(fill):
        if x.key in pins: x.dls = x.dlh = pins[x.key][0]; continue
        if x.anchor: x.dls = x.dlh = W(x.anchor); continue
        ds = dh = nm - 1
        for y, so, ha in x.succs:
            if y.dummy and y.key not in pins: continue
            if y.kind == "mfma": ds = min(ds, y.m - so); dh = min(dh, y.m - ha)
            else: ds = min(ds, y.dls - so); dh = min(dh, y.dlh - ha)
        if x.key in hi: ds = min(ds, hi[x.key]); dh = min(dh, hi[x.key])
        if x.maxdl: ds = min(ds, W(x.maxdl)); dh = min(dh, W(x.maxdl))
        x.dls, x.dlh = ds, max(dh, -1)
    wins = {w: [] for w in range(-1, nm)}
    for x in fill:
        x.win = None
        x.lo = max(W(x.earliest) if x.earliest else -1, lo.get(x.key, -1))
        if x.anchor: x.lo = x.dlh
    pinned_by_win = {}
    for x in fill:
        if x.key in pins: pinned_by_win.setdefault(pins[x.key][0], []).append(x)
    todo = [x for x in fill if x.key not in pins and not x.dummy]
    todo.sort(key=lambda x: x.idx)
    credit = [0]
    bucket = [0]
    def nbytes(x):
        if x.kind in ("salu", "bar"): return 4
        if x.kind in ("valu", "trans"):
            return 8 if ("_dpp" in x.text or x.text.split()[0] in ("v_cvt_pk_bf16_f32", "v_perm_b32", "v_max3_u32") or "0x" in x.text) else 4
        return 8
    mfl = [x for x in prog if x.kind == "mfma"]
    def ready(x, w, soft):
        if w < x.lo: return False
        for p, so, ha in x.preds:
            if p.dummy and p.key not in pins: continue
            if p.win is None: return False
            lat = ha
            if soft and (p.kind not in ("load", "dma", "ds", "dsw") or x.kind == "dma"): lat = so
            if p.kind in ("store", "dsw") and soft: lat = max(lat, min(so, 1))
            if w == -1 or w == nm - 1: lat = 0
            if w < p.win + lat: return False
        return True
    for w in range(-1, nm):
        if w in pinned_by_win:
            for x in sorted(pinned_by_win[w], key=lambda x: pins[x.key][1]):
                x.win = w; wins[w].append(x)
        if pins and cfg._loop[0] <= w < cfg._loop[1]: continue
        cap = 8 if w >= 0 else 0
        if w >= 0 and mfl[w].key[0] == "on": cap = 4
        cap0 = cap
        rate = 8
        if cfg.smooth and pins and 0 <= w < nm - 1:
            acc = 0
            for x in sorted((x for x in todo[:900] if x.dls <= w + 120), key=lambda x: x.dls):
                acc += min(x.cost, 8)
                rate = max(rate, acc / (max(x.dls, w) - w + 1))
            credit[0] = credit[0] + rate - 8 if rate > 8.2 else 0
            credit[0] = min(credit[0], rate)
            extra = int(credit[0] // 4) * 4
            cap += extra
        used = 0
        cur = wins[w]
        def place(x):
            nonlocal used
            x.win = w; cur.append(x); used += min(x.cost, 8); todo.remove(x)
        while True:
            cand = [x for x in todo[:700] if ready(x, w, True) or (w >= x.dlh and ready(x, w, False))]
            if not cand: break
            z = [x for x in cand if x.kind in ("salu", "bar")]
            if z:
                place(z[0]); continue
            forced = [x for x in cand if x.dls <= w]
            if w == -1 or w == nm - 1:
                if not forced: break
                place(min(forced, key=lambda x: x.idx)); continue
            hasvalu_dep = lambda x: x.kind in ("ds", "dsw", "load", "dma", "store") and any(p.win == w and p.kind in ("valu", "trans") for p, _, _ in x.preds)
            hard_forced = forced
            if hard_forced:
                place(min(hard_forced, key=lambda x: (x.dls, x.idx))); continue
            if used >= cap: break
            nb = lambda x: 1024 if "b128" in x.text else 512
            dsb = sum(nb(x) for x in cur if x.kind == "ds")
            tight = rate > 8.2
            recent = (not tight) and any(y.kind == "ds" for k in range(1, cfg.ds_gap) for y in wins.get(w - k, []))
            vmk = ("load", "dma", "store")
            vgap = max(1, int(cfg.vm_gap * 16 / (8 + rate)))
            recent_vm = any(y.kind in vmk for k in range(0, vgap) for y in wins.get(w - k, []))
            sgap = max(1, int(cfg.st_gap * 16 / (8 + rate)))
            if any(y.kind == "store" for k in range(0, sgap) for y in wins.get(w - k, [])):
                cand = [x for x in cand if x.kind != "store" and not (cfg.st_gap_all and x.kind in vmk)]
            dcap = cfg.ds_cap * (8 + cap) // 16
            if cfg.st_block and any(-4 * cfg.vm_gap <= b - w <= cfg.st_block for b in barw.values()):
                cand = [x for x in cand if x.kind != "store"]
            cand = [x for x in cand if (x.kind != "ds" or (not recent and dsb + nb(x) <= dcap)) and not (x.kind in vmk and recent_vm and not (getattr(x, "nogap", False) and used == 0))]
            if not cand: break
            cand.sort(key=lambda x: (-99999 if (x.kind in ("load", "dma", "dsw", "store") or (cfg.qr_asap and x.key[0] == "qr")) else x.dls, x.idx))
            if cfg.fetch_thr is not None and not tight and bucket[0] >= cfg.fetch_thr and cap - used >= 8 and cand[0].dls > w + cfg.fetch_slack:
                tr = [x for x in cand if x.kind == "trans"]
                if tr: place(tr[0]); continue
            if cap - used >= 8:
                top = cand[0]
                if top.cost >= 8: place(top); continue
                small = [x for x in cand if x.cost == 4]
                big = [x for x in cand if x.cost >= 8]
                fits = lambda a, b: not (a.kind == "ds" and b.kind == "ds" and dsb + nb(a) + nb(b) > dcap)
                partner = any(fits(top, y) for y in small if y is not top) or any(y.cost == 4 and so == 0 and y.win is None and y.kind == "valu" and all(p.win is not None or p is top for p, _, _ in y.preds) for y, so, ha in top.succs)
                if partner or not big or (cap - used) % 8: place(top)
                else: place(big[0])
                continue
            small = [x for x in cand if x.cost == 4]
            if not small: break
            place(small[0])
        bts = 8 + sum(nbytes(x) for x in cur if x.kind not in ("salu", "bar")) + (4 if any(x.kind not in ("valu", "trans") for x in cur) else 2)
        bucket[0] = max(0, bucket[0] + bts - 22 * max(16, 8 + sum(x.cost for x in cur)) // 16)
        if w >= 0: credit[0] -= max(0, min(used, cap) - cap0)
        if w not in (-1, nm - 1):
            order = {"bar": 0, "salu": 0, "dma": 1, "load": 1, "store": 1, "dsw": 1, "ds": 1, "valu": 2, "trans": 2}
            lvl = {}
            for x in cur:
                l = order[x.kind]
                for p, _, _ in x.preds:
                    if p.win == w and p.kind != "mfma": l = max(l, lvl[id(p)])
                lvl[id(x)] = l
            cur.sort(key=lambda x: lvl[id(x)])
    assert not todo, [x.key for x in todo[:10]]
    for w, c in wins.items():
        for i, x in enumerate(c): x.pos = i
    return wins, start

def norm(key, d):
    return (key[0], key[1] + d) + tuple(key[2:])

class Ins:
    def __init__(s, text, op=None, kind=None):
        s.text, s.op, s.kind = text, op, kind or (op.kind if op else "salu")
        s.vm = None; s.lg = None

def generate(cfg):
    last = 32 + max(cfg.sigma)
    cfg.q_ahead = getattr(cfg, "q_ahead", 2)
    cfg.code_pf_n = getattr(cfg, "code_pf_n", 2)
    sp = build(cfg, 0, 56, True); nms = link(cfg, sp)
    swins, sstart = schedule(cfg, sp, nms)
    per = sstart[8] - sstart[0]
    ok = None
    for b in (16, 24, 32):
        same = all([x.text for x in swins[sstart[b] + i]] == [x.text for x in swins[sstart[b + 8] + i]] and
                   [norm(x.key, 8) for x in swins[sstart[b] + i]] == [x.key for x in swins[sstart[b + 8] + i]] for i in range(per))
        if same: ok = b; break
    assert ok is not None, "steady state not periodic"
    rp = build(cfg, 0, last + 1, False)
    inloop = {norm(x.key, 8 + 8 * it - ok) for it in range(3) for i in range(per) for x in swins[sstart[ok] + i]}
    rp = [x for x in rp if not x.dummy or x.key in inloop]
    nm = link(cfg, rp)
    semantic_check(cfg, rp)
    rstart = {}
    for x in rp:
        if x.kind == "mfma": rstart.setdefault(x.key[1], x.m)
    L0, L1 = rstart[8], rstart[32]
    assert L1 - L0 == 3 * per
    cfg._loop = (L0, L1)
    pins = {}
    for it in range(3):
        for i in range(per):
            for x in swins[sstart[ok] + i]:
                pins[norm(x.key, 8 + 8 * it - ok)] = (L0 + it * per + i, x.pos)
    keys = {x.key: x for x in rp}
    assert len(keys) == len(rp)
    missing = [k for k in pins if k not in keys]
    assert not missing, missing[:10]
    lo = {}; hi = {}
    mid = (keys[("qk", 20, 0, 0, 0)])
    midx = rp.index(mid)
    for i, x in enumerate(rp):
        if x.kind == "mfma" or x.key in pins: continue
        if i < midx: hi[x.key] = L0 - 1
        else: lo[x.key] = L1
    wins, start = schedule(cfg, rp, nm, pins, lo, hi)
    mf = [x for x in rp if x.kind == "mfma"]
    def stat(w):
        return L0 + (w - L0) % per if L0 <= w < L1 else w
    free = {}
    pre = {}
    for w in range(-1, nm):
        if stat(w) == w:
            free[w] = []
            if w not in (-1, nm - 1):
                for x in wins[w]:
                    if x.kind == "bar": free[w].append(Ins(x.text, x))
    def body(w):
        if w in (-1, nm - 1): return wins[w]
        return [x for x in wins[w] if x.kind not in ("salu", "bar")]
    def walk(fix):
        q = {"vm": [], "lgkm": []}
        pend = {}
        hist = {}
        changed = False
        def dowait(ins):
            for c, n in (("vm", ins.vm), ("lgkm", ins.lg)):
                if n is None: continue
                while len(q[c]) > n:
                    d = q[c].pop(0)
                    for r in d.writes:
                        if pend.get(r) is d: del pend[r]
        def need(x):
            n = {}
            for r in x.reads + x.writes:
                p = pend.get(r)
                if p is not None and not (r in x.writes and r not in x.reads and p.cnt == x.cnt):
                    n[p.cnt] = p if (p.cnt not in n or q[p.cnt].index(p) > q[p.cnt].index(n[p.cnt])) else n[p.cnt]
            return n
        def issue(x):
            if x.cnt:
                q[x.cnt].append(x)
                for r in x.writes:
                    if r != "stord": pend[r] = x
        def setw(ins, c, n):
            n = min(n, 62 if c == "vm" else 14)
            if c == "vm": ins.vm = n if ins.vm is None else min(ins.vm, n)
            else: ins.lg = n if ins.lg is None else min(ins.lg, n)
        def handle(x, w, pos, cands):
            nonlocal changed
            n = need(x)
            if not n: return
            assert fix, ("unwaited", x.key, {c: p.key for c, p in n.items()})
            changed = True
            for c, p in n.items():
                done = False
                for cw in cands:
                    if cw < 0 or cw == nm - 1 or cw not in hist: continue
                    snap = hist[cw][c]
                    if p not in snap: continue
                    fl = free[stat(cw)]
                    wi = [i for i in fl if i.kind == "wait"]
                    if not wi and fl and cw != cands[-1]: continue
                    if not wi:
                        wi = [Ins("", None, "wait")]; fl.insert(0, wi[0])
                    setw(wi[0], c, len(snap) - 1 - snap.index(p)); done = True; break
                if not done:
                    ins = pre.setdefault((stat(w), pos), Ins("", None, "wait"))
                    setw(ins, c, len(q[c]) - 1 - q[c].index(p))
                while p in q[c]:
                    d = q[c].pop(0)
                    for r in d.writes:
                        if pend.get(r) is d: del pend[r]
        for w in range(-1, nm):
            if w >= 0:
                if (stat(w), "m") in pre: dowait(pre[(stat(w), "m")])
                handle(mf[w], w, "m", [w - 1, w - 2])
            hist[w] = {c: list(v) for c, v in q.items()}
            hist.pop(w - 4, None)
            for ins in list(free[stat(w)]):
                if ins.kind == "wait": dowait(ins)
                elif ins.kind == "bar":
                    x = [y for y in wins[w] if y.kind == "bar"][0]
                    handle(x, w, "b", [w - 1, w - 2, w])
            for pos, x in enumerate(body(w)):
                if (stat(w), pos) in pre: dowait(pre[(stat(w), pos)])
                handle(x, w, pos, [w, w - 1])
                issue(x)
        return changed
    for _ in range(10):
        if not walk(True): break
    walk(False)
    for w in range(0, nm - 1):
        if stat(w) != w: continue
        for x in wins[w]:
            if x.kind != "salu": continue
            hiw = min([y.win - (1 if "m0" in x.writes or y.kind == "salu" else 0) for y, _, _ in x.succs if y.win is not None] + [w + 40, nm - 2])
            if L0 <= w < L0 + per: hiw = min(hiw, L0 + per - 3)
            elif w < L0: hiw = min(hiw, L0 - 1)
            hiw = max(hiw, w)
            c = [k for k in range(w, hiw + 1) if not free[k]]
            c2 = [k for k in c if body(k) and body(k)[0].kind in ("ds", "dma", "load", "store", "dsw")]
            k = c2[0] if c2 else (c[0] if c else w)
            if any(i.text.startswith("s_cmp") for i in free[k]): free[k].insert(0, Ins(x.text, x))
            else: free[k].append(Ins(x.text, x))
    k = [k for k in range(L0 + per - 2, L0 + per) if not free[k]]
    k = k[0] if k else L0 + per - 1
    if any(i.text.startswith("s_add") for kk in range(k + 1, L0 + per) for i in free[kk]): k = L0 + per - 1
    free[k].append(Ins(f"s_sub_u32 s{sCnt}, s{sCnt}, 1"))
    if cfg.nop_ds:
        for w in range(0, nm - 1):
            if stat(w) == w and not free[w] and body(w) and body(w)[0].kind in ("ds", "dma", "load", "store", "dsw"):
                free[w].append(Ins("s_nop 0", None, "nop"))
    def wtext(i):
        t = "s_waitcnt"
        if i.vm is not None: t += f" vmcnt({i.vm})"
        if i.lg is not None: t += f" lgkmcnt({i.lg})"
        return t
    code = {}
    for w in range(-1, nm):
        if stat(w) != w: continue
        l = []
        if w >= 0:
            if (w, "m") in pre: l.append(pre[(w, "m")])
            l.append(Ins(mf[w].text, mf[w]))
        l += free[w]
        for pos, x in enumerate(body(w)):
            if (w, pos) in pre: l.append(pre[(w, pos)])
            l.append(Ins(x.text, x))
        for i in l:
            if i.kind == "wait": i.text = wtext(i)
        code[w] = l
    def wcost(l, head=False):
        t = 0; base = 0; lastvalu = -99; blk = 8
        for i in l:
            if i.kind == "mfma": base = t; t += 4; blk = 12 if "smfmac" in i.text else 8; continue
            if i.kind in ("salu", "wait", "bar", "nop"): t += 4; continue
            if i.kind == "nopx": t += 4 * (int(i.text.split()[1]) + 1); continue
            if not head: t = max(t, base + blk)
            if i.kind in ("valu", "trans"): t += i.op.cost; lastvalu = t
            else:
                t = max(t, lastvalu + 8) + i.op.cost
        return t if head else max(t, base + 16)
    def hazards(fix):
        seq = []
        changed = False
        for w in range(-1, nm):
            l = code[stat(w)]
            j = 0
            while j < len(l):
                i = l[j]; x = i.op
                needn = 0
                if x is not None and x.kind not in ("salu", "bar"):
                    dist = 0
                    for p, st, pwin in reversed(seq):
                        y = p.op
                        if y is not None:
                            req = 0
                            raw = set(y.writes) & set(x.reads); waw = set(y.writes) & set(x.writes); war = set(y.reads) & set(x.writes)
                            if y.kind == "mfma":
                                if x.kind == "mfma":
                                    if set(y.writes) & set(x.reads[:8]): req = 8
                                elif raw or waw: req = 12 if y.key[0] == "on" else 8
                                elif war and x.kind in ("valu", "trans") and set(y.writes) & set(x.writes): req = 3
                            elif y.kind in ("valu", "trans"):
                                if raw and x.kind == "mfma": req = 2
                                if raw and ("permlane" in x.text or "_dpp" in x.text): req = 2
                                if raw and y.kind == "trans" and x.kind != "trans": req = max(req, 1)
                            elif y.kind in ("store", "dsw") and war and y.cost == 20: req = 2
                            elif y.kind == "salu" and "m0" in y.writes and x.kind == "dma": req = 1
                            if req - dist > needn: needn = req - dist; pw = pwin
                        dist += st
                        if dist >= 12: break
                if needn > 0:
                    assert fix, ("hazard", x.key)
                    for k in range(w, pw - 1, -1):
                        if k < 0: break
                        lk = code[stat(k)]
                        mi = [n for n, z in enumerate(lk) if z.kind == "mfma"][0]
                        places = []
                        if k > pw and (k < w or j > mi): places.append(mi + 1)
                        if k < w: places.append(len(lk))
                        ok_ = False
                        for pl in places:
                            tr = lk[:pl] + [Ins("s_nop 0", None, "nopx")] + lk[pl:]
                            if wcost(tr) == wcost(lk): lk[:] = tr; ok_ = True; break
                        if ok_: return True
                    l.insert(j, Ins(f"s_nop {needn-1}", None, "nopx")); changed = True
                    continue
                st = int(i.text.split()[1]) + 1 if i.text.startswith("s_nop") else 1
                seq.append((i, st, w)); seq = seq[-14:]
                j += 1
        return changed
    while hazards(True): pass
    lastw = {}; seen = set()
    for w in range(-1, nm):
        it = (w - L0) // per if L0 <= w < L1 else 0
        for i in code[stat(w)]:
            if i.op is None: continue
            x = keys[norm(i.op.key, 8 * it)]
            assert x.text == i.text, (x.text, i.text)
            assert x.key not in seen; seen.add(x.key)
            if not x.dummy:
                for r in x.reads:
                    assert lastw.get(r) == x.prod.get(r), ("dataflow", x.key, r, lastw.get(r), x.prod.get(r))
            for r in x.writes: lastw[r] = x.key
    assert all(x.key in seen or x.dummy for x in rp), [x.key for x in rp if x.key not in seen and not x.dummy][:5]
    est = {}
    for s in range(0, last + 1):
        e = rstart.get(s + 1, nm)
        est[s] = (sum(wcost(code[stat(w)]) for w in range(rstart[s], e)), (e - rstart[s]) * 16)
    cfg.est = est; cfg.est_head = wcost(code[-1], True)
    out = []
    cfg.spins = []
    E = out.append
    stamp_at = getattr(cfg, "stamp_steps", [])
    inv = {v: k for k, v in rstart.items()}
    for w in range(-1, nm):
        if stat(w) != w: continue
        if w == L0:
            if cfg.stamps and 7.9 in stamp_at:
                j = stamp_at.index(7.9); E(f"    s_memrealtime s[{64+2*j}:{65+2*j}]")
            E("L_loop:")
        if w in inv:
            E(f"; ---- step {inv[w]} ----")
            if cfg.jitter:
                E(f"    s_cmp_lg_u32 s{sWave}, {(inv[w] * cfg.jitter[1]) & 3}\n    s_cbranch_scc1 L_j{inv[w]}\n    s_sleep {cfg.jitter[0]}\nL_j{inv[w]}:")
            if cfg.stamps and inv[w] in stamp_at:
                j = stamp_at.index(inv[w]); E(f"    s_memrealtime s[{64+2*j}:{65+2*j}]")
        for i in code[w]:
            if i.op is not None and i.op.key[0] in cfg.kill and (L0 if cfg.kill_from is None else cfg.kill_from) <= w: E("    s_nop 0")
            else: E("    " + i.text)
            if cfg.pad and i.kind == "mfma" and L0 <= w < L1 and w % cfg.pad == 0: E("    s_nop 4")
            if i.text.startswith("s_cbranch_scc1 L_spin"):
                n = i.text.split("L_spin")[1]; E(f"L_back{n}:"); cfg.spins.append(n)
        if w == L0 + per - 1: E("    s_cbranch_scc0 L_loop")
    lastscc = None
    for l in out:
        t = l.strip()
        if t.startswith(("s_add", "s_sub", "s_cmp", "s_and", "s_lsh", "s_bfe", "s_or", "s_xor", "s_not")): lastscc = t
        if t.startswith("s_cbranch_scc1 L_spin"): assert lastscc.startswith("s_cmp_lt_u32"), lastscc
        if t.startswith("s_cbranch_scc0 L_loop"): assert lastscc.startswith(f"s_sub_u32 s{sCnt}"), lastscc
    return "\n".join(out)

def fbits(x): return struct.unpack("<I", struct.pack("<f", x))[0]

def head(cfg):
    T = vS
    h = f"""    s_load_dwordx4 s[4:7], s[0:1], 0          ; q, k
    s_load_dwordx4 s[8:11], s[0:1], 16        ; v, out
"""
    if cfg.x8: h = "    s_load_dwordx8 s[4:11], s[0:1], 0         ; q, k, v, out\n"
    if cfg.stamps: h += f"    s_load_dwordx2 s[56:57], s[0:1], {32 if cfg.stamps in ('dbg', 'skew') else 40}\n    s_memrealtime s[60:61]\n"
    h += f"""    v_lshrrev_b32 v{T}, 6, v0
    v_and_b32 v{T+4}, 63, v0                  ; lane
    v_readfirstlane_b32 s{sWave}, v{T}
    s_cmp_ge_u32 s2, 256
    s_cbranch_scc1 L_end
    v_and_b32 v{T+1}, 15, v0                  ; l & 15
    v_bfe_u32 v{T+2}, v0, 4, 2                ; l >> 4
    v_lshlrev_b32 v{vKl}, 4, v{T+4}           ; lane*16
    s_and_b32 s{sTmp}, s2, 7
    s_lshr_b32 s{sTmp+1}, s2, 3
    s_lshl_b32 s{sTmp}, s{sTmp}, 5
    s_add_u32 s{sTmp}, s{sTmp}, s{sTmp+1}
    s_lshl2_add_u32 s{sTmp+2}, s{sTmp}, s{sWave}
    s_lshl_b32 s{sTmp+2}, s{sTmp+2}, 16       ; q/o byte offset of this wave
    s_lshr_b32 s{sTmp}, s{sTmp}, 2
    s_lshl_b32 s{sTmp}, s{sTmp}, 17           ; k/v byte offset of the group
    s_lshl_b32 s{sMq}, s{sWave}, 12           ; wave*4096
    s_add_u32 s{sTmp+3}, s{sTmp}, s{sMq}
    s_sub_u32 s{sK_+2}, 0x20000, s{sMq}
    s_mov_b32 s{sK_+3}, 0x20000
    s_mov_b32 s{sQ_+3}, s{sK_+3}
    s_mov_b32 s{sQ_+2}, 0x10000
"""
    if cfg.rot:
        h += f"""    s_bfe_u32 s{sTmp+4}, s2, 0x20003
    s_mul_i32 s{sTile}, s{sTmp+4}, {cfg.rot*16384}
    s_and_b32 s{sTile}, s{sTile}, 0x1ffff
    s_add_u32 s{sTile+1}, s{sTile}, 16384
    s_and_b32 s{sTile+1}, s{sTile+1}, 0x1ffff
"""
    elif cfg.xor:
        h += f"""    s_lshl_b32 s{sTile}, s2, {11 + cfg.xor[1]}
    s_and_b32 s{sTile}, s{sTile}, {cfg.xor[0] << 14:#x}
    s_xor_b32 s{sTile+1}, s{sTile}, 0x4000
"""
    else: h += f"    s_mov_b32 s{sTile}, 0\n    s_movk_i32 s{sTile+1}, 0x4000\n"
    h += f"""    s_mov_b32 s{sQo}, 0
    v_lshlrev_b32 v{T+3}, 8, v{T+2}           ; (l>>4)*256
    v_xor_b32 v{T+5}, v{T+1}, v{T+2}          ; (l&15) ^ (l>>4)
    v_lshl_add_u32 v{vQd}, v{T+5}, 4, v{T+3}  ; Q DMA source: row*256 + (pos^row)*16
{head2(cfg).split("@CPF")[0] + f"    buffer_load_dword v{vJ}, v{vJ}, s[{sC_}:{sC_+3}], 0 offen" if cfg.early_pf else ""}
    s_waitcnt lgkmcnt(0)
    s_add_u32 s{sK_}, s6, s{sTmp+3}
    s_addc_u32 s{sK_+1}, s7, 0
    s_add_u32 s{sQ_}, s4, s{sTmp+2}
    s_addc_u32 s{sQ_+1}, s5, 0
"""
    if cfg.stamps: h += "    s_memrealtime s[62:63]\n"
    return h

def head2(cfg):
    c = math.log2(math.e) / math.sqrt(128.0)
    T = vS
    h = f"""    ; code prefetch into L2: 16 lines per wave, 8 KiB per workgroup
    s_getpc_b64 s[{sC_}:{sC_+1}]
L_pc:
    s_mov_b32 s{sC_+2}, L_slow - L_pc
    s_mov_b32 s{sC_+3}, 0x20000
    s_bfe_u32 s{sTmp+1}, s2, 0x30003
    s_lshl2_add_u32 s{sTmp+1}, s{sTmp+1}, s{sWave}
    s_lshl_b32 s{sTmp+1}, s{sTmp+1}, 11
    v_lshlrev_b32 v{vJ}, 5, v{T+4}
    v_add_u32 v{vJ}, s{sTmp+1}, v{vJ}
@CPF
    s_add_u32 s{sV_}, s8, s{sTmp}
    s_addc_u32 s{sV_+1}, s9, 0
    s_add_u32 s{sO_}, s10, s{sTmp+2}
    s_addc_u32 s{sO_+1}, s11, 0
    s_mov_b32 s{sV_+2}, 0x20000
    s_mov_b32 s{sV_+3}, 0x20000
    s_mov_b32 s{sO_+2}, 0x10000
    s_mov_b32 s{sO_+3}, 0x20000
"""
    for t in range(2, 8):
        if cfg.rot: h += f"    s_add_u32 s{sTile+t}, s{sTile+t-1}, 16384\n    s_and_b32 s{sTile+t}, s{sTile+t}, 0x1ffff\n"
        elif cfg.xor: h += f"    s_xor_b32 s{sTile+t}, s{sTile}, {t*16384}\n"
        else: h += f"    s_mov_b32 s{sTile+t}, {t*16384}\n"
    h += f"""    s_lshr_b32 s{sTmp+1}, s{sWave}, 1
    s_lshl3_add_u32 s{sTmp+4}, s{sTmp+1}, s{sMq}
    s_add_u32 s{sM0}, s{sTmp+4}, {VB}
    s_add_u32 s{sM0+1}, s{sTmp+4}, {VB + VSTR}
    s_add_u32 s{sM0+2}, s{sTmp+4}, {VB + 2 * VSTR}
    s_add_u32 s{sM0+3}, s{sTmp+4}, {VB + 3 * VSTR}
    s_mov_b32 s{sOo}, 0
    s_mov_b32 s{sExp}, 0
    s_mov_b32 s{sCnt}, 2
    s_mov_b32 s{sScale}, {fbits(c):#x}
    s_mov_b32 s{sMask}, 0xffff0000
    s_mov_b32 s{sPerm}, 0x07060302
    ; K fragment read addresses: g*256 + (row ^ g ^ 4*(ds&1))*16
    v_mov_b32 v{vKr}, v{vQd}
    v_xor_b32 v{vKr+1}, 64, v{vQd}
    v_add_u32 v{vKr+2}, {0x10000 - KSH}, v{vKr}
    v_add_u32 v{vKr+3}, {0x10000 - KSH}, v{vKr+1}
    ; K write address: key 16w+4i+r goes to block 2(w&1)+(i>>1), row 8(i&1)+4(w>>1)+r ; lane = 16r+c
    s_lshl_b32 s{sTmp+1}, s{sTmp+1}, 6
    s_and_b32 s{sTmp+4}, s{sWave}, 1
    s_lshl_b32 s{sTmp+5}, s{sTmp+4}, 13
    v_and_b32 v{T+6}, 7, v{T+5}
    v_lshlrev_b32 v{T+7}, 8, v{T+1}           ; (l&15)*256
    v_lshl_add_u32 v{T+6}, v{T+6}, 4, v{T+7}
    v_xor_b32 v{T+6}, s{sTmp+1}, v{T+6}
    v_add_u32 v{vKw}, s{sTmp+5}, v{T+6}
    v_cmp_gt_u32 vcc, 1024, v{vKw}            ; lanes that write fragment (.,0,0)
    v_add_u32 v{T+6}, {3 * 16384}, v{vKw}
    v_and_b32 v{T+8}, 3, v{T+5}
    v_cndmask_b32 v{vKw+1}, v{vKw}, v{T+6}, vcc
    v_lshl_add_u32 v{T+6}, v{T+8}, 4, v{T+7}
    v_add_u32 v{vQr}, s{sMq}, v{T+6}
    ; V DMA source offsets: row r=l>>4, 64-byte unit (c16>>2)^(key&3)
    v_lshlrev_b32 v{T+6}, 2, v{T+2}
    v_xor_b32 v{T+6}, v{T+6}, v{T+1}
    v_lshl_add_u32 v{T+6}, v{T+6}, 4, v{T+3}
    v_add_u32 v{vD0}, s{sMq}, v{T+6}
    ; V transposed-read addresses: lane = 16g+4r+c reads 8 bytes of chunk c of unit (db>>1)^r of key 32(g&1)+8kb+4(g>>1)+r
    v_bfe_u32 v{T+8}, v{T+4}, 2, 2            ; r
    v_lshlrev_b32 v{T+6}, 4, v{T+1}           ; r*64 + c*16
    v_lshl_add_u32 v{T+6}, v{T+8}, 8, v{T+6}
    v_lshrrev_b32 v{T+8}, 1, v{T+2}
    v_lshl_add_u32 v{T+6}, v{T+8}, 10, v{T+6}
    v_and_b32 v{T+8}, 1, v{T+2}
    v_mul_u32_u24 v{T+8}, 8200, v{T+8}
    v_add_u32 v{T+8}, {VB}, v{T+8}
    v_and_b32 v{T+9}, 3, v{T+4}
"""
    for m in range(4):
        if m: h += f"    v_xor_b32 v{T+10}, {m * 64}, v{T+6}\n"
        h += f"    v_add_u32 v{vV+m}, v{T+8}, v{T+10 if m else T+6}\n"
    h += f"""    ; output: a store covers 8 rows x 128 bytes: (l&7)*256 + ((l>>3)&1)*64 + g*16
    v_and_b32 v{T+10}, 0x700, v{T+7}
    v_lshl_add_u32 v{T+10}, v{T+2}, 4, v{T+10}
    v_and_b32 v{T+11}, 8, v{T+1}
    v_lshl_add_u32 v{vO}, v{T+11}, 3, v{T+10}
"""
    h += f"""    ; row-sum operand: rows 4i and 4i+1 are ones; they pick elements 0,1 and 2,3 of every group of four keys
    v_cmp_eq_u32 vcc, 1, v{T+9}
    v_mov_b32 v{T+6}, 0x44444444
    v_mov_b32 v{T+8}, 0xeeeeeeee
    v_cndmask_b32 v{vIdx}, v{T+6}, v{T+8}, vcc
    v_cmp_gt_u32 vcc, {0 if cfg.ones_rows == 0 else 2}, v{T+9 if cfg.ones_rows == 8 else T+1}
    v_mov_b32 v{T+6}, 0x3f803f80
    v_mov_b32 v{vChk}, {'-1' if cfg.force_slow else '0'}
    v_cndmask_b32 v{T+6}, 0, v{T+6}, vcc
    v_lshlrev_b32 v{vCnt}, 2, v{T+4}
    v_add_u32 v{vCnt}, 0x4000, v{vCnt}
    v_mov_b32 v{vOne}, v{T+6}
    v_mov_b32 v{vOne+1}, v{T+6}
    v_mov_b32 v{vOne+2}, v{T+6}
    v_mov_b32 v{vOne+3}, v{T+6}
    v_mov_b32 v{vCone}, 1
    v_mov_b32 v{vPoll}, 0
    s_mov_b32 vcc_lo, 0xff00ff00              ; lanes with (l & 8), used by the output selects
    s_mov_b32 vcc_hi, 0xff00ff00
"""
    return h

def tail(cfg):
    lim = (127 + cfg.limit_exp) << 23
    t = ""
    if cfg.stamps == "skew":
        t += """    s_mov_b32 s58, 256
    s_mov_b32 s59, 0x20000
    s_not_b32 s64, s60
    v_mov_b32 v64, s64
    v_mov_b32 v60, 0
    s_mov_b64 exec, 1
    s_cmp_lg_u32 s3, 0
    s_cbranch_scc1 L_sk1
    buffer_atomic_umax v64, v60, s[56:59], 0 offen
    s_waitcnt vmcnt(0)
L_sk1:
    s_memrealtime s[72:73]
    s_waitcnt lgkmcnt(0)
    s_sub_u32 s72, s72, s60
    s_cmp_lt_u32 s72, 8000
    s_cbranch_scc1 L_sk1
    buffer_load_dword v64, v60, s[56:59], 0 offen sc0 sc1
    s_waitcnt vmcnt(0)
    v_readfirstlane_b32 s64, v64
    s_nop 4
    s_not_b32 s64, s64
L_sk2:
    s_memrealtime s[72:73]
    s_waitcnt lgkmcnt(0)
    s_sub_u32 s72, s72, s64
    s_cmp_lt_u32 s72, 10000
    s_cbranch_scc1 L_sk2
    s_mov_b64 exec, -1
"""
    elif cfg.stamps == "spin":
        if not getattr(cfg, "stamp_steps", []): t += "    s_waitcnt vmcnt(0)\n    s_memrealtime s[64:65]\n"
        t += f"""    s_waitcnt lgkmcnt(0)
    {"s_sub_u32 s64, s66, s64" if len(getattr(cfg, "stamp_steps", [])) == 2 else "s_sub_u32 s64, s64, s60"}
    s_mul_i32 s64, s64, {getattr(cfg, "spin_mul", 0)}
    s_add_u32 s64, s64, 10000
L_spin:
    s_memrealtime s[72:73]
    s_waitcnt lgkmcnt(0)
    s_sub_u32 s72, s72, s60
    s_cmp_lt_u32 s72, s64
    s_cbranch_scc1 L_spin
"""
    elif cfg.stamps:
        e0 = 88 if cfg.stamps == "c16" else 72
        t += f"""    s_memrealtime s[{e0}:{e0+1}]
    s_waitcnt vmcnt(0)
    s_memrealtime s[{e0+2}:{e0+3}]
    s_mov_b32 s58, 0x10000000
    s_mov_b32 s59, 0x20000
    s_lshl_b32 s46, s2, 2
    s_add_u32 s46, s46, s3
    s_lshl_b32 s46, s46, 6
    s_waitcnt lgkmcnt(0)
"""
        for i in range(16): t += f"    v_mov_b32 v{64+i}, s{60+(2*i if cfg.stamps == 'c16' else i)}\n"
        t += "    v_mov_b32 v60, 0\n    s_mov_b64 exec, 1\n"
        if cfg.stamps == "dbg":
            t += "    s_mov_b32 s58, 256\n"
            for i in range(8):
                t += f"    v_not_b32 v{65+2*i}, v{64+2*i}\n"
            for i in range(16): t += f"    buffer_atomic_umax v{64+i}, v60, s[56:59], 0 offen offset:{4*i}\n"
        else:
          for i in range(4): t += f"    buffer_store_dwordx4 v[{64+4*i}:{67+4*i}], v60, s[56:59], s46 offen offset:{16*i}\n"
        t += "    s_mov_b64 exec, -1\n"
    t += f"""    v_cmp_lt_u32 vcc, {lim:#x}, v{vChk}
    s_nop 4
    s_cbranch_vccnz L_slow
L_end:
    s_endpgm
"""
    for n in cfg.spins:
        t += f"""L_spin{n}:
    ds_read_b32 v{vPoll}, v{vCnt}
    s_waitcnt lgkmcnt(0)
    v_readfirstlane_b32 s{sPol}, v{vPoll}
    s_nop 3
    s_cmp_lt_u32 s{sPol}, s{sExp}
    s_cbranch_scc1 L_spin{n}
    s_branch L_back{n}
"""
    S0, S1, M, T = 16, 20, 24, 25
    vQ = vQd; vKb = vKr + 2
    q = lambda ds: at(aQ + 4 * ds, 4)
    k = lambda j, ds: at(aK + j * 16 + 4 * ds, 4)
    t += f"""; Fallback: a row sum left [2^-{cfg.limit_exp}, 2^{cfg.limit_exp}] (or is not finite), so exp without an offset was not safe.
; This wave recomputes its 256 rows subtracting the true row maximum.  K is rebuilt in LDS; V goes through a private 8 KiB.
L_slow:
    s_waitcnt vmcnt(0) lgkmcnt(0)
    s_barrier                                 ; the other waves are done with LDS (ended or here)
    s_mov_b32 s{sQo}, 0
    s_lshl_b32 s{sTmp}, s{sWave}, 12
    s_lshl_b32 s{sTmp+1}, s{sWave}, 13
    s_add_u32 s{sTmp+2}, s{sTmp+1}, 0x20000
    s_add_u32 s{sTmp+3}, s{sTmp+2}, 4096
    v_subrev_u32 v{vD0}, s{sTmp}, v{vD0}
    v_bfe_u32 v{T}, v{vKl}, 4, 4              ; l & 15
    v_lshrrev_b32 v{T+1}, 8, v{vKl}           ; l >> 4
    v_lshlrev_b32 v{vQ}, 4, v{T+1}
    v_lshl_add_u32 v{vQ}, v{T}, 8, v{vQ}      ; Q rows in MFMA layout
    v_xor_b32 v{T+1}, v{T}, v{T+1}
    v_and_b32 v{T+1}, 7, v{T+1}
    v_lshlrev_b32 v{T+1}, 4, v{T+1}
    v_lshl_add_u32 v{vKw}, v{T}, 8, v{T+1}
    v_xor_b32 v{vKw+1}, 64, v{vKw}
    v_lshrrev_b32 v{T+1}, 6, v{vKl}           ; 4g+r
    v_lshlrev_b32 v{T+1}, 8, v{T+1}
    v_lshl_add_u32 v{T+1}, v{T}, 4, v{T+1}
    v_add_u32 v{vV}, s{sTmp+2}, v{T+1}
    v_xor_b32 v{vV+1}, 64, v{vV}
    v_xor_b32 v{vV+2}, 128, v{vV}
    v_xor_b32 v{vV+3}, 192, v{vV}
"""
    t += f"""    s_sub_u32 s{sK_}, s{sK_}, s{sTmp}
    s_subb_u32 s{sK_+1}, s{sK_+1}, 0
    s_mov_b32 s{sK_+2}, 0x20000
    s_mov_b32 s{sCnt}, 0
L_skld:
"""
    for i in range(4): t += f"    buffer_load_dwordx4 {vt(vOa+4*i,4)}, v{vKl}, s[{sK_}:{sK_+3}], s{sCnt} offen offset:{i*1024}\n"
    t += "    s_waitcnt vmcnt(0)\n"
    for x in range(vOa, vOa + 16):
        t += f"""    v_lshlrev_b32 v{T}, 16, v{x}
    v_and_b32 v{x}, s{sMask}, v{x}
    v_mul_f32 v{T}, s{sScale}, v{T}
    v_mul_f32 v{x}, s{sScale}, v{x}
    v_cvt_pk_bf16_f32 v{x}, v{T}, v{x}
"""
    for i in range(4): t += f"    ds_write_b128 v{vKw+(i&1)}, {vt(vOa+4*i,4)} offset:{(i>>1)*128}\n"
    t += f"""    s_waitcnt lgkmcnt(0)
    v_add_u32 v{vKw}, 4096, v{vKw}
    v_add_u32 v{vKw+1}, 4096, v{vKw+1}
    s_add_u32 s{sCnt}, s{sCnt}, 4096
    s_cmp_lt_u32 s{sCnt}, 0x20000
    s_cbranch_scc1 L_skld
"""
    t += "L_sblk:\n"
    for ds in range(4): t += f"    buffer_load_dwordx4 {q(ds)}, v{vQ}, s[{sQ_}:{sQ_+3}], s{sQo} offen offset:{ds*64}\n"
    t += f"""    v_mov_b32 v{M}, 0xff800000
    v_mov_b32 v{vKb}, v{vKr}
    v_mov_b32 v{vKb+1}, v{vKr+1}
    s_mov_b32 s{sCnt}, 32
    s_waitcnt vmcnt(0)
L_smax:
"""
    for ds in range(4): t += f"    ds_read_b128 {k(0,ds)}, v{vKb+(ds&1)} offset:{ds*1024}\n"
    t += "    s_waitcnt lgkmcnt(0)\n"
    for ds in range(4): t += f"    v_mfma_f32_16x16x32_bf16 {vt(S0,4)}, {k(0,ds)}, {q(ds)}, {'0' if ds == 0 else vt(S0,4)}\n"
    t += f"""    s_nop 7
    v_max3_f32 v{M}, v{M}, v{S0}, v{S0+1}
    v_max3_f32 v{M}, v{M}, v{S0+2}, v{S0+3}
    v_add_u32 v{vKb}, 4096, v{vKb}
    v_add_u32 v{vKb+1}, 4096, v{vKb+1}
    s_sub_u32 s{sCnt}, s{sCnt}, 1
    s_cmp_lg_u32 s{sCnt}, 0
    s_cbranch_scc1 L_smax
    v_mov_b32 v{T}, v{M}
    s_nop 1
    v_permlane16_swap_b32 v{M}, v{T}
    s_nop 1
    v_max_f32 v{M}, v{M}, v{T}
    v_mov_b32 v{T}, v{M}
    s_nop 1
    v_permlane32_swap_b32 v{M}, v{T}
    s_nop 1
    v_max_f32 v{M}, v{M}, v{T}
"""
    for r in range(4): t += f"    v_mov_b32 v{vL+r}, 0\n"
    for r in range(32): t += f"    v_mov_b32 v{vOa+r}, 0\n"
    t += f"""    v_mov_b32 v{vKb}, v{vKr}
    v_mov_b32 v{vKb+1}, v{vKr+1}
    s_mov_b32 s{sCnt}, 0
L_skey:
    s_mov_b32 m0, s{sTmp+2}
    s_mov_b32 s{sTmp+5}, s{sCnt}
    s_add_u32 s{sTmp+4}, s{sTmp+5}, 4096
"""
    for i in range(4): t += f"    buffer_load_dwordx4 v{vD0}, s[{sV_}:{sV_+3}], s{sTmp+5} offen offset:{i*1024} lds\n"
    t += f"    s_mov_b32 m0, s{sTmp+3}\n    s_nop 0\n"
    for i in range(4): t += f"    buffer_load_dwordx4 v{vD0}, s[{sV_}:{sV_+3}], s{sTmp+4} offen offset:{i*1024} lds\n"
    for j in range(2):
        for ds in range(4): t += f"    ds_read_b128 {k(j,ds)}, v{vKb+(ds&1)} offset:{j*4096+ds*1024}\n"
    t += "    s_waitcnt vmcnt(0) lgkmcnt(0)\n"
    for db in range(8):
        for h in range(2): t += f"    ds_read_b64_tr_b16 {at(aV+db*4+2*h,2)}, v{vV+(db>>1)} offset:{h*4096+(db&1)*8}\n"
    for j, S in enumerate((S0, S1)):
        for ds in range(4): t += f"    v_mfma_f32_16x16x32_bf16 {vt(S,4)}, {k(j,ds)}, {q(ds)}, {'0' if ds == 0 else vt(S,4)}\n"
    t += "    s_nop 7\n"
    for r in range(8): t += f"    v_sub_f32 v{S0+r}, v{S0+r}, v{M}\n"
    for r in range(8): t += f"    v_exp_f32 v{S0+r}, v{S0+r}\n"
    t += "    s_nop 0\n"
    for r in range(4): t += f"    v_cvt_pk_bf16_f32 v{vP+r}, v{S0+2*r}, v{S0+2*r+1}\n"
    t += f"    v_add_u32 v{vKb}, 8192, v{vKb}\n    v_add_u32 v{vKb+1}, 8192, v{vKb+1}\n    s_waitcnt lgkmcnt(0)\n    s_nop 0\n"
    t += f"    v_mfma_f32_16x16x32_bf16 {vt(vL,4)}, {vt(vOne,4)}, {vt(vP,4)}, {vt(vL,4)}\n"
    for db in range(8): t += f"    v_mfma_f32_16x16x32_bf16 {vt(vOa+4*db,4)}, {at(aV+db*4,4)}, {vt(vP,4)}, {vt(vOa+4*db,4)}\n"
    t += f"""    s_add_u32 s{sCnt}, s{sCnt}, 8192
    s_cmp_lt_u32 s{sCnt}, 0x20000
    s_cbranch_scc1 L_skey
    s_nop 7
    v_rcp_f32 v{vR}, v{vL}
    s_nop 0
"""
    for r in range(32): t += f"    v_mul_f32 v{vOa+r}, v{vOa+r}, v{vR}\n"
    for db in range(8):
        o = vOa + 4 * db; d = vP + 2 * db
        t += f"    v_cvt_pk_bf16_f32 v{d}, v{o}, v{o+1}\n    v_cvt_pk_bf16_f32 v{d+1}, v{o+2}, v{o+3}\n"
    if cfg.store_x4:
        t += "    s_nop 1\n"
        for db in range(0, 8, 2):
            d = vP + 2 * db
            if not cfg.vperm: t += f"    v_permlane16_swap_b32 v{d}, v{d+2}\n    v_permlane16_swap_b32 v{d+1}, v{d+3}\n"
            t += f"    buffer_store_dwordx4 {vt(d,4)}, v{vQ}, s[{sO_}:{sO_+3}], s{sQo} offen offset:{db*32}\n"
    else:
        for db in range(8): t += f"    buffer_store_dwordx2 {vt(vP+2*db,2)}, v{vO}, s[{sO_}:{sO_+3}], s{sQo} offen offset:{db*32}\n"
    t += f"""    s_add_u32 s{sQo}, s{sQo}, 4096
    s_cmp_lt_u32 s{sQo}, 0x10000
    s_waitcnt vmcnt(0)
    s_cbranch_scc1 L_sblk
    s_endpgm
"""
    return t

HDR = """; Kernarg layout for this problem (48 bytes, ptrs only, base s[0:1]):
;   offset   0: d_in[0] q  shape=(16, 32, 512, 128) dtype=bfloat16
;   offset   8: d_in[1] k  shape=(16, 4, 512, 128) dtype=bfloat16
;   offset  16: d_in[2] v  shape=(16, 4, 512, 128) dtype=bfloat16
;   offset  24: d_out     shape=(16, 32, 512, 128) dtype=bfloat16
;   offset  32: d_debug   256 bytes
;   offset  40: d_ws      268435456 bytes workspace (unused)
; @launch grid=(256,1,1) block=(256,1,1) lds=163840
"""

PAD = """; Instruction prefetch stops at 4 KiB boundaries: start the kernel on one (the harness puts 0x300 bytes in front of the label).
.p2align 12
.fill 832, 4, 0xbf800000
"""

def add_hops(cfg, text):
    import subprocess, re, os, tempfile
    lines = text.split("\n")
    i0 = lines.index(KN + ":"); i1 = lines.index("L_end:")
    tmp = tempfile.mkdtemp()
    src = "\n".join(lines).replace("@HOPS", "\n".join(["    s_nop 0"] * 9))
    lines = src.split("\n"); i1 = lines.index("L_end:")
    hop0 = text.split("\n").index("@HOPS")
    open(tmp + "/a.s", "w").write(src)
    subprocess.run(["clang", "-x", "assembler", "-target", "amdgcn-amd-amdhsa", "-mcpu=gfx950", "-c", tmp + "/a.s", "-o", tmp + "/a.o"], check=True)
    dis = subprocess.run(["llvm-objdump", "-d", "--mcpu=gfx950", tmp + "/a.o"], capture_output=True, text=True).stdout
    dis = dis[dis.index("<" + KN + ">:"):]
    sizes = [4 * len(m.group(1).split()) for m in re.finditer(r"// [0-9A-F]{12}: ([0-9A-F ]+)", dis)]
    isins = lambda l: l.startswith("    ") and not l.strip().startswith(";") and l.strip()
    out = lines[:i0 + 1]; addr = 0; k = 0; page = 1; j = i0 + 1
    def look(j, k, addr, page):
        cands = []
        while addr < page * 4096 + 128 and j < i1:
            if isins(lines[j]):
                addr += sizes[k]; k += 1
                if "mfma" in lines[j] and page * 4096 <= addr <= page * 4096 + 124:
                    nx = lines[j + 1].strip()
                    cands.append((0 if nx == "s_nop 0" else (1 if nx.startswith("v_") else 2), j))
            j += 1
        return min(cands) if cands else None
    plan = None
    while j < i1:
        l = lines[j]
        if plan is None and addr >= page * 4096 - 64:
            plan = look(j, k, addr, page)
            assert plan is not None or addr < page * 4096, page
        out.append(l)
        if isins(l): addr += sizes[k]; k += 1
        if plan and plan[1] == j:
            out.append(f"L_hop{page}:"); out.append(f"    s_cbranch_execz @NEXT{page}@"); addr += 4
            if plan[0] == 0: j += 1; k += 1
            plan = None; page += 1
        j += 1
    out += lines[i1:]
    np_ = page - 1
    r = "\n".join(out)
    for p in range(1, np_ + 1): r = r.replace(f"@NEXT{p}@", f"L_hop{p+4}" if p + 4 <= np_ else "L_hback")
    rl = r.split("\n")
    rl[hop0:hop0 + 9] = ["    s_mov_b64 exec, 0                         ; warm the instruction cache: visit the first line of every code page"] + \
        [x for w in range(3) for x in (f"    s_cmp_eq_u32 s{sWave}, {w}", f"    s_cbranch_scc1 L_hop{w+1}")] + ["    s_branch L_hop4", "L_hback:", "    s_mov_b64 exec, -1"]
    return "\n".join(rl)

def full(cfg):
    body = generate(cfg)
    r = full2(cfg, body)
    if getattr(cfg, "spin_cyc", 0):
        r = r.replace("s_memrealtime s[64:65]", "s_memtime s[64:65]").replace("s_memrealtime s[66:67]", "s_memtime s[66:67]").replace("s_memrealtime s[62:63]", "s_memtime s[62:63]")
        r = r.replace("s_sub_u32 s64, s64, s60", "s_sub_u32 s64, s64, s62").replace("s_mul_i32 s64, s64, 0", "s_lshr_b32 s64, s64, 1")
    if cfg.stamps in ("cyc", "c16"): r = r.replace("s_memrealtime", "s_memtime")
    if cfg.stamps == "both":
        import re
        r = re.sub(r"    s_memrealtime s\[(\d+):(\d+)\]", lambda m: f"    s_memtime s[{m.group(1)}:{m.group(2)}]\n    s_memrealtime s[{int(m.group(1))+20}:{int(m.group(2))+20}]", r)
        for i in range(8): r = r.replace(f"v_mov_b32 v{65+2*i}, s{61+2*i}\n", f"v_mov_b32 v{65+2*i}, s{80+2*i}\n")
    if "@HOPS" in r: r = add_hops(cfg, r.replace("    @HOPS", "@HOPS"))
    return r

def full2(cfg, body):
    return HDR + f""".amdgcn_target "amdgcn-amd-amdhsa--gfx950"
.text
.globl {KN}
{PAD if cfg.align else ""}.p2align 8
.type {KN},@function
{KN}:
""" + head(cfg) + body + "\n" + tail(cfg) + f""".section .rodata,"a"
.p2align 6
.amdhsa_kernel {KN}
  .amdhsa_next_free_vgpr 512
  .amdhsa_next_free_sgpr 102
  .amdhsa_accum_offset 256
  .amdhsa_group_segment_fixed_size 0
  .amdhsa_kernarg_size 48
  .amdhsa_user_sgpr_count 2
  .amdhsa_user_sgpr_kernarg_segment_ptr 1
  .amdhsa_system_sgpr_workgroup_id_x 1
.end_amdhsa_kernel
"""

if __name__ == "__main__":
    cfg = Cfg()
    name = sys.argv[1]
    for a in sys.argv[2:]:
        k, v = a.split("=", 1)
        try: v = eval(v)
        except Exception: pass
        setattr(cfg, k, v)
    s = full(cfg)
    open(name, "w").write(s)
    tot = sum(v[0] for v in cfg.est.values())
    print(name, "est head", cfg.est_head, "total", tot, "mfma", sum(v[1] for v in cfg.est.values()), file=sys.stderr)
    print(" ".join(f"{s}:{v[0]}/{v[1]}" for s, v in cfg.est.items() if s < 16 or s >= 32), file=sys.stderr)
```

```python
import sys, math, struct
KN = "standalone__gqa_softmax__near_ridge_kernel"

class Cfg:
    sigma = (0, 2, 4, 6)
    beta = 0.85
    beta_small = 0.55
    ds_lat = 9
    mv_lat = 4
    store_x4 = True
    q_nt = "nt"
    st_pol = "sc0 sc1"
    k_pol = "nt"
    v_pol = ""
    v_pol0 = "nt"
    rot = 0
    split_from = 4
    split_min_u = 2
    arr_gap = 10
    vm_gap = 5
    smooth = True
    stamps = False
    code_pf = True
    plan = "K0 Q0 C K1 H W00 V0 S0 B r0 r1 R0 K2 S1@0.0 V1@0.0 Q1@0.5 K3@1.0 V2@1.5 R1@2.0 K4@2.0 Q2@2.3 V3@2.6 K5@3.0 V4@3.4 K6@3.b R2@3.b Q3@4.0 K7@4.b R3@5.b Q4@6.0"
    vperm = True
    st_last = "sc0 sc1"
    st_last_from = 38
    ones_rows = 8
    trunc = False
    fake_st = False
    fake_v = False
    fake_m0 = 0
    v_n0 = 8
    st_block = 0
    c_pol = ""
    st_first = None
    st_pair = False
    fetch_thr = 1
    fetch_slack = 1
    st_gap = 16
    st_gap_all = False
    pf2 = False
    x8 = False
    qr_asap = True
    full_until = 99
    kst = [(1, 0), (1, 1), (2, 0), (2, 1), (3, 0), (3, 1), (3, "P"), (3, 0)]
    jitter = None
    xor = None
    qlag = {}
    lags = {}
    tailpub = {33: [33, 34], 35: [35, 37]}
    align = True
    early_pf = True
    sigma0 = None
    loop_from = 8
    deep = True
    tail_dl = 1.0
    betas = {0: 0.95, 1: 0.9, 2: 0.8, 3: 0.8}
    arr_gap_small = 4
    k_up = 1
    force_slow = False
    nop_ds = True
    ds_gap = 2
    ds_cap = 1024
    kill_from = None
    pad = 0
    kill = ()
    limit_exp = 32

vQd, vO, vQr, vCnt, vD0, vD1, vChk = 1, 2, 3, 4, 5, 6, 7
vKl = 0
vV = 8
vS = 16
vL = 32
vR = 48
vKw = 50
vT = 52
NT = 5
vIdx = 57
vPoll = 58
vJ = 59
vKr = 60
vP = 64
vOa = 128
aQ, aKp, aVp, aK, aV = 0, 64, 128, 192, 224
vOne, vCone, vKp1, vO2, vO3 = 12, 6, 52, 56, 59
sPol = 40
TV = 4
TMPS = [44, 45, 46, 47, 56]
sQ_, sK_, sV_, sO_, sC_ = 12, 16, 20, 24, 28
sTile = 32
sM0 = 96
sQo, sOo, sCnt, sScale, sWave = 42, 43, 44, 45, 3
sTmp = 46
sMq, sExp, sMask, sPerm = 52, 53, 54, 55

VB, VSTR, KSH = 0x18000 - 32, 16384 + 8, 32
def vr(b, n=1): return [f"v{b+i}" for i in range(n)]
def ar(b, n=1): return [f"a{b+i}" for i in range(n)]
def vt(b, n): return f"v[{b}:{b+n-1}]"
def at(b, n): return f"a[{b}:{b+n-1}]"

class Op:
    def __init__(s, key, text, kind, reads, writes, cost=None, earliest=None, dummy=False, anchor=None, maxdl=None):
        s.key, s.text, s.kind, s.reads, s.writes = key, text, kind, list(reads), list(writes)
        s.cost = {"mfma": 0, "trans": 8, "valu": 4, "ds": 4, "dsw": 20, "load": 8, "dma": 8, "store": 12, "salu": 0, "bar": 0, "chk": 0}[kind] if cost is None else cost
        s.cnt = {"ds": "lgkm", "dsw": "lgkm", "load": "vm", "dma": "vm", "store": "vm"}.get(kind)
        s.earliest = earliest
        s.maxdl = maxdl
        s.dummy = dummy
        s.anchor = anchor
        s.preds = []; s.succs = []; s.win = None; s.pos = None; s.m = None
        s.prod = {}

def blockpos(cfg, s, u):
    s0 = (cfg.sigma0 or cfg.sigma)[u]
    if s0 <= s < s0 + 8: return (0, s - s0)
    if cfg.sigma[u] + 8 <= s < cfg.sigma[u] + 32: return divmod(s - cfg.sigma[u], 8)
    return (None, None)

def build(cfg, s0, s1, steady):
    sg = cfg.sigma
    NP = 4
    last = 32 + max(sg)
    def li(s, u): return (s - sg[u]) % 8 if steady else blockpos(cfg, s, u)[1]
    def qk_on(s, u): return li(s, u) is not None
    def pv_on(s, u): return li(s - 1, u) is not None
    def order_qk(s, kb):
        us = [u for u in range(4) if qk_on(s, u)]
        if kb == 3:
            f = [u for u in us if li(s, u) == 7]
            us = f + [u for u in us if u not in f]
        if kb == 0:
            f = [u for u in us if li(s, u) == 0]
            us = [u for u in us if u not in f] + f
        return us
    prog = []
    A = prog.append
    chain = 0
    pend_q = []
    def qload(key, earliest=None, dummy=False, alt=False):
        if alt:
            A(Op(key + ("m0",), f"s_add_u32 m0, s{sMq}, {0x8000 - KSH}", "salu", [], ["m0"]))
            for i in range(4):
                A(Op(key + (i,), f"buffer_load_dwordx4 v{vQd}, s[{sQ_}:{sQ_+3}], s{sQo} offen offset:{i*1024} {cfg.q_nt} lds".replace("  ", " "), "dma",
                     [f"s{sQo}", "m0"], [f"Qa{i}"], earliest=earliest))
            A(Op(key + ("inc",), f"s_add_u32 s{sQo}, s{sQo}, 4096", "salu", [f"s{sQo}"], [f"s{sQo}"]))
            return
        A(Op(key + ("m0",), f"s_mov_b32 m0, s{sMq}", "salu", [], ["m0"], dummy=dummy))
        for i in range(4):
            A(Op(key + (i,), f"buffer_load_dwordx4 v{vQd}, s[{sQ_}:{sQ_+3}], s{sQo} offen offset:{i*1024} {cfg.q_nt} lds".replace("  ", " "), "dma",
                 [f"s{sQo}", "m0"] + [f"Qrd{d}" for d in range(4)], [f"Qs{i}"], earliest=earliest, dummy=dummy))
        A(Op(key + ("inc",), f"s_add_u32 s{sQo}, s{sQo}, 4096", "salu", [f"s{sQo}"], [f"s{sQo}"], dummy=dummy))
    def qread(key, u, earliest=None, dummy=False, alt=False):
        for ds in range(4):
            d = aQ + 16 * u + 4 * ds
            if alt:
                A(Op(key + (ds,), f"ds_read_b128 {at(d,4)}, v{vQr} offset:{0x8000 - KSH + ds*64}", "ds", [f"Qa{i}" for i in range(4)], ar(d, 4) + [f"Qar{ds}"], earliest=earliest))
                continue
            A(Op(key + (ds,), f"ds_read_b128 {at(d,4)}, v{vQr} offset:{ds*64}", "ds", [f"Qs{i}" for i in range(4)], ar(d, 4) + [f"Qrd{ds}"], earliest=earliest, dummy=dummy))
    def kfrag(s, kb, ds):
        t = s % 8
        if (t, kb, ds) == (1, 0, 0): return ("v", vKp1)
        if t == 0 or (not steady and s >= 34): return ("a", aKp + kb * 16 + ds * 4)
        if not steady and s <= 4: return ("a", aK + kb * 16 + ds * 4)
        return ("a", aK + (kb & 1) * 16 + ds * 4)
    def vperm_(sv): return sv % 8 == TV and (steady or sv >= 8)
    def vfrag(sv, db):
        if sv % 8 == TV or (not steady and sv < TV): return aVp + db * 8
        if not steady and sv >= 34 and db >= 4: return aQ + (db - 4) * 8
        return aV + (db & 3) * 8
    rt = lambda f, n: f"{f[0]}[{f[1]}:{f[1]+n-1}]"
    rr = lambda f, n: [f"{f[0]}{f[1]+i}" for i in range(n)]
    def vslot(sv):
        if not steady and sv in (2, 3, 34, 35): return sv & 1
        if not steady and sv == 37: return 3
        return 2 + (((sv - TV - 1) % 8) & 1)
    def vprev(sv):
        if vslot(sv) < 2: return ["Kret67"] if sv > 8 else []
        p = sv - 1
        while p >= 0 and (vslot(p) != vslot(sv) or vperm_(p)): p -= 1
        return [f"Vret{p}"] if p >= 0 else []
    vissued = set()
    def vdma(sv, earliest=None):
        vissued.add(sv)
        A(Op(("m0", sv), f"s_mov_b32 m0, s{sM0 + vslot(sv)}", "salu", ["setup~"], ["m0"]))
        for i in range(4):
            A(Op(("dma", sv, i), f"buffer_load_dwordx4 v{vD0}, s[{sV_}:{sV_+3}], s{sTile + sv % 8} offen offset:{i*1024} {cfg.v_pol0 if (not steady and sv < cfg.v_n0) else cfg.v_pol} lds".replace("  ", " "), "dma",
                 ["m0"] + vprev(sv), [f"Vd{sv}_{i}"], earliest=earliest))
    kstage = {}
    def kregs(t):
        u = KST[t][0]; h = KST[t][1]
        if h == "P": return [vP + (ds >> 1) * 32 + u * 8 + (ds & 1) * 4 for ds in range(4)]
        return [vOa + (h * 4 + ds) * 16 + u * 4 for ds in range(4)]
    KST = cfg.kst
    if cfg.k_up == 8: KST = [(0, 0), (0, 1), (1, 0), (1, 1), (2, 0), (2, 1), (3, 0), (3, 1)]
    def kload(t, earliest=None):
        for ds, r in enumerate(kregs(t)):
            A(Op(("kld", t, ds), f"buffer_load_dwordx4 {vt(r,4)}, v{vKl}, s[{sK_}:{sK_+3}], s{sTile + t} offen offset:{ds*1024} {cfg.k_pol}".rstrip(), "load",
                 [], vr(r, 4), earliest=earliest))
    tmpc = [0]
    def kscale(t, earliest=None):
        for ds, r in enumerate(kregs(t)):
            for j in range(4):
                x = r + j; tm = TMPS[tmpc[0] % NT]; tmpc[0] += 1
                k = ("ksc", t, ds, j)
                A(Op(k + (0,), f"v_lshlrev_b32 v{tm}, 16, v{x}", "valu", vr(x), vr(tm), earliest=earliest))
                A(Op(k + (1,), f"v_and_b32 v{x}, s{sMask}, v{x}", "valu", vr(x), vr(x), earliest=earliest))
                A(Op(k + (2,), f"v_mul_f32 v{tm}, s{sScale}, v{tm}", "valu", vr(tm), vr(tm)))
                A(Op(k + (3,), f"v_mul_f32 v{x}, s{sScale}, v{x}", "valu", vr(x), vr(x)))
                A(Op(k + (4,), f"v_cvt_pk_bf16_f32 v{x}, v{tm}, v{x}", "valu", vr(tm) + vr(x), vr(x)))
            tl = 3 if t == 0 else t
            if t == 4 and ds == 0:
                A(Op(("kwa", t, ds), f"v_add_u32 v{vKw}, {0x10000 - KSH}, v{vKw}", "valu", vr(vKw), vr(vKw)))
            a = vKw + (1 if (t == 1 and ds < 2) else 0)
            A(Op(("kw", t, ds), f"ds_write_b128 v{a}, {vt(r,4)} offset:{(tl & 3) * 16384 + (ds >> 1) * 4096 + (ds & 1) * 128 - (KSH if tl < 4 else 0)}", "dsw",
                 vr(r, 4) + vr(a) + (["K0dead"] if t in (3, 4) else []) + (["Qadead"] if (t == 2 and " q1" in cfg.plan) else []) + ([f"Vret{v}" for v in range(2, t - 3)] if t >= 6 and cfg.deep else []), [f"Kw{t}_{ds}"]))
    nmf = [0]
    kpub = set()
    def kread1(s, t, kb):
        for ds in range(4):
            perm = t == 0 or (t, kb, ds) == (1, 0, 0)
            if perm and (steady or s > 7): continue
            d = kfrag(s, kb, ds); tl = 3 if t == 0 else (4 if perm else t)
            A(Op(("kr", s, kb, ds), f"ds_read_b128 {rt(d,4)}, v{vKr + 2 * (tl >> 2) + (ds & 1)} offset:{(tl & 3) * 16384 + kb * 4096 + ds * 1024 - (KSH if tl < 4 else 0)}", "ds",
                 [] if (steady or s > 7) else [f"Kok{t}"], rr(d, 4) + ([] if not perm else [f"Kr0_{kb}_{ds}" if t == 0 else "Kr1"])))
    kdone0 = set(); kscaled = []
    later = {}
    if not steady:
        H = (-1, 0)
        def issue(item, when):
            n0 = len(prog)
            n = int(item[1:]) if item[1:].isdigit() else None
            if item[0] == "K": kload(n, when)
            elif item[0] == "Q": qload(("q0", n) if n < 4 else ("q", 8, 0), when)
            elif item[0] == "R": qread(("qr0", n), n, when)
            elif item[0] == "q": qload(("q0", n), when, alt=True)
            elif item[0] == "x": qread(("qr0", n), n, when, alt=True)
            elif item[0] == "V": vdma(n, when)
            elif item[0] == "S": kscale(n, when); kscaled.append(n)
            elif item[0] == "r": kread1(0, 0, n); kdone0.add(n)
            elif item[0] == "W":
                A(Op(("wt", 0, item), "s_nop 0", "valu", vr(kregs(int(item[1]))[int(item[2])], 4), []))
            elif item[0] == "P":
                A(Op(("cpf", 1), f"buffer_load_dword v{vJ}, v{vJ}, s[{sC_}:{sC_+3}], 0 offen {cfg.c_pol}".rstrip(), "load", [], ["junk"], earliest=when))
            elif item[0] == "H":
                A(Op(("hop", 0), "@HOPS", "valu", [], [], earliest=when, maxdl=when))
            elif item[0] == "T":
                A(Op(("ts", 0, item), f"s_memrealtime s[{64+2*n}:{65+2*n}]", "valu", [], []))
            elif item[0] == "X":
                A(Op(("wt", 0, item), "s_nop 0", "valu", [f"Qs{i}" for i in range(4)], []))
            elif item[0] == "B":
                pub = [t for t in kscaled if t not in kpub]; kpub.update(pub)
                A(Op(("bar", -1), "s_barrier", "bar", ["Czero"] + [f"Kw{t}_{ds}" for t in pub for ds in range(4)], [f"Kok{t}" for t in pub], anchor=H))
            elif item[0] == "C":
                pf = f"buffer_load_dword v{vJ}, v{vJ}, s[{sC_}:{sC_+3}], 0 offen {cfg.c_pol}".rstrip()
                if cfg.early_pf:
                    A(Op(("cpf", 0), head2(cfg).split("@CPF")[1].strip(), "valu", [], [], earliest=when, cost=300))
                elif cfg.pf2:
                    p1 = f"""    s_lshr_b32 s{sTmp+4}, s{sWave}, 1
    s_lshl1_add_u32 s{sTmp+4}, s2, s{sTmp+4}
    s_lshl_b32 s{sTmp+4}, s{sTmp+4}, 7
    v_and_b32 v{vS+15}, 0x70, v{vKl}
    buffer_load_dword v{vS+15}, v{vS+15}, s[{sC_}:{sC_+3}], s{sTmp+4} offen"""
                    A(Op(("cpf", 0), head2(cfg).replace("@CPF", p1).strip(), "load", [], vr(vS + 15), earliest=when, cost=300))
                elif " P" in cfg.plan: A(Op(("cpf", 0), head2(cfg).replace("@CPF\n", "").strip(), "valu", [], [], earliest=when, cost=300))
                else: A(Op(("cpf", 0), head2(cfg).replace("@CPF", "    " + pf).strip(), "load", [], ["junk"], earliest=when, cost=300))
                A(Op(("setup", 0), "s_nop 0", "valu", [], ["setup~", f"s{sExp}"]))
                A(Op(("cz", 1), f"ds_write_b32 v{vCnt}, v{vPoll}", "dsw", [], ["Czero"], cost=8))
            if when == H:
                for x in prog[n0:]: x.maxdl = H
        for item in cfg.plan.split():
            if "@" not in item: issue(item, H)
            else:
                it, pos = item.split("@"); st, fr = pos.split(".")
                later.setdefault(int(st), []).append((it, fr))
    for s in range(s0, s1):
        t = s % 8
        uq = [u for u in range(4) if qk_on(s, u)]
        up = order_qk(s - 1, 3) if (steady or s > 0) else []
        up = [u for u in up if pv_on(s, u)]
        qk = [(kb, u) for kb in range(4) for u in order_qk(s, kb)]
        if not steady and s in cfg.qlag:
            qk.sort(key=lambda c: (c[0] + (cfg.qlag[s] + 0.5 if (li(s, c[1]) == 0 and c[1] > 0) else 0)))
        pv = []
        fin = [u for u in up if li(s - 1, u) == 7]
        ones_order = fin + [u for u in up if u not in fin]
        for db in range(8):
            for u in up: pv.append(("pv", db, u))
        npv = len(pv)
        ins = {}
        for i, u in enumerate(ones_order):
            if u in fin: p = len(up)
            else: p = len(up) + (npv - len(up)) * i // max(1, len(ones_order))
            ins.setdefault(p, []).append(("one", 0, u))
        pv2 = []
        for i, c in enumerate(pv):
            pv2 += ins.get(i, []); pv2.append(c)
        pv = pv2
        seq = []
        if qk:
            j = 0
            lag = 1 if len(uq) <= 2 and pv else 0
            if not steady and s in cfg.lags: lag = cfg.lags[s]
            for i, c in enumerate(qk):
                seq.append(("qk",) + c)
                tgt = math.ceil(max(0, i + 1 - lag) * len(pv) / (len(qk) - lag))
                while j < tgt: seq.append(pv[j]); j += 1
        else:
            seq = pv
        nm = sum({"qk": 4, "pv": 2, "one": 1}[c[0]] for c in seq)
        beta = cfg.beta if len(uq) >= 3 else cfg.beta_small
        barpos = int(beta * nm)
        if not steady and s in cfg.betas: barpos = int(cfg.betas[s] * nm)
        vdone = set(); kdone = set(kdone0) if (s == 0 and not steady) else set(); bar_done = False
        Pw = vP + 32 * (s & 1); Pr = vP + 32 * ((s - 1) & 1)
        def vreads(db):
            if db in vdone or vperm_(s - 1): return
            vdone.add(db)
            for ks in range(2):
                for h in range(2):
                    d = vfrag(s - 1, db) + ks * 4 + h * 2
                    A(Op(("vr", s, db, ks, h), f"ds_read_b64_tr_b16 {at(d,2)}, v{vV+(db>>1)} offset:{vslot(s-1)*VSTR + ks*4096 + h*2048 + (db&1)*8}", "ds",
                         [f"Vok{s-1}"], ar(d, 2) + [f"Vr{s-1}_{db}_{ks}_{h}"]))
        def kreads(kb):
            if kb in kdone: return
            kdone.add(kb); kread1(s, t, kb)
        def barrier():
            rd = []; wr = []
            pubv, retv, nxt = [s], [s - 1], [s + 1]
            if vperm_(s + 1): retv = []; nxt = []
            if vperm_(s): pubv = []; retv = [s - 2, s - 1]
            if vperm_(s - 1): retv = []
            if not steady:
                retv = {1: [], 2: [0], 3: [1], 4: [2], 5: [3, 4], 34: []}.get(s, retv)
                if s >= 33:
                    if s not in cfg.tailpub: return
                    pubv = cfg.tailpub[s]
                    if s > 33: retv = []; nxt = []
                nxt = {0: [], 1: [], 2: [4], 3: [5], 4: [], 32: [33, 34, 35], 33: [37], 34: []}.get(s, nxt)
                if s == 32: wr.append("Kret67")
                nxt = [v for v in nxt if v < last and v not in vissued and not any(it == f"V{v}" for l in later.values() for it, _ in l)]
            for v in retv:
                if v < 0: continue
                if v == s - 1:
                    for db in range(8): vreads(db)
                rd += [f"Vr{v}_{db}_{ks}_{h}" for db in range(8) for ks in range(2) for h in range(2)]
                wr.append(f"Vret{v}")
            for v in pubv:
                assert steady or v in vissued, v
                rd += [f"Vd{v}_{i}" for i in range(4)]; wr.append(f"Vok{v}")
            if not steady and s + 1 <= 7 and s + 1 not in kpub:
                if s + 1 not in kscaled: kscale(s + 1, ((s - 1, "bar") if s >= 1 else (-1, 0))); kscaled.append(s + 1)
                kpub.add(s + 1)
                rd += [f"Kw{s+1}_{ds}" for ds in range(4)]; wr.append(f"Kok{s+1}")
            if not steady and s == 0 and " q1" in cfg.plan:
                rd += [f"Qar{ds}" for ds in range(4)]; wr.append("Qadead")
            if not steady and s == 1:
                rd += [f"Kr0_{kb}_{ds}" for kb in range(4) for ds in range(4)]; wr.append("K0dead")
                rd.append("Kr1")
            if (steady or s >= cfg.split_from) and len(uq) >= cfg.split_min_u:
                ag = cfg.arr_gap if len(uq) >= 3 else cfg.arr_gap_small
                A(Op(("arr", s), f"ds_add_u32 v{vCnt}, v{vCone}", "dsw", rd, ["Carr"], cost=8, anchor=(s, "bar", -ag - cfg.ds_lat - 2)))
                A(Op(("exp", s), f"s_add_u32 s{sExp}, s{sExp}, 4", "salu", [f"s{sExp}"], [f"s{sExp}"]))
                A(Op(("pol", s), f"ds_read_b32 v{vPoll}, v{vCnt}", "ds", ["Carr~"], vr(vPoll), anchor=(s, "bar", -cfg.ds_lat - 2)))
                A(Op(("cmp", s), f"v_readfirstlane_b32 s{sPol}, v{vPoll}", "valu", vr(vPoll), [f"s{sPol}"], anchor=(s, "bar", -3)))
                A(Op(("sc", s), f"s_cmp_lt_u32 s{sPol}, s{sExp}", "bar", [f"s{sPol}", f"s{sExp}"], ["scc"], anchor=(s, "bar", -1)))
                A(Op(("bar", s), f"s_cbranch_scc1 L_spin{s if (not steady and (s < cfg.loop_from or s >= 32)) else 16 + s % 8}", "bar", ["scc"] + vr(vPoll) + [f"s{sExp}", f"s{sPol}"], wr, anchor=(s, "bar")))
            else:
                A(Op(("bar", s), "s_barrier", "bar", rd, wr, anchor=(s, "bar")))
            for v in nxt: vdma(v, None)
            for it, fr in later.get(s, []):
                if fr == "b": issue(it, (s, "bar"))
        todo_items = [(it, int(fr) / 10 ** len(fr)) for it, fr in later.get(s, []) if fr != "b"]
        mcount = 0
        for c in seq:
            if not bar_done and mcount >= barpos:
                barrier(); bar_done = True
            while todo_items and mcount >= todo_items[0][1] * nm:
                issue(todo_items.pop(0)[0], (s, "off", mcount))
            if c[0] == "qk":
                _, kb, u = c
                kreads(kb)
                if kb == 0 and li(s, u) == 0 and (steady or s - sg[u] >= 8):
                    qread(("qr", s, u), u, earliest=None if (steady or qk_on(s - 1, u)) else (s - 1, "frac", 0.75))
                    un = (u + 1) % 4; sn = s + (sg[un] - sg[u]) % 8
                    pend_q.append((("q", sn, un), not steady and sn - sg[un] >= 8 * NP))
                    if True:
                        k_, d_ = pend_q.pop(); qload(k_, dummy=d_)
                S = vS + 4 * (chain % 4); chain += 1
                for ds in range(4):
                    kf = kfrag(s, kb, ds); qf = aQ + u * 16 + ds * 4
                    A(Op(("qk", s, kb, u, ds), f"v_mfma_f32_16x16x32_bf16 {vt(S,4)}, {rt(kf,4)}, {at(qf,4)}, {'0' if ds == 0 else vt(S,4)}", "mfma",
                         rr(kf, 4) + ar(qf, 4) + ([] if ds == 0 else vr(S, 4)), vr(S, 4)))
                for r in range(4):
                    A(Op(("ex", s, kb, u, r), f"v_exp_f32 v{S+r}, v{S+r}", "trans", vr(S + r), vr(S + r)))
                pd = Pw + u * 8 + kb * 2
                for r in range(2):
                    tx = f"v_perm_b32 v{pd+r}, v{S+2*r+1}, v{S+2*r}, s{sPerm}" if cfg.trunc else f"v_cvt_pk_bf16_f32 v{pd+r}, v{S+2*r}, v{S+2*r+1}"
                    A(Op(("cv", s, kb, u, r), tx, "valu", vr(S + 2 * r, 2), vr(pd + r)))
                mcount += 4
            elif c[0] == "pv":
                _, db, u = c
                vreads(db)
                first = li(s - 1, u) == 0
                o = vOa + db * 16 + u * 4
                for ks in range(2):
                    vf = vfrag(s - 1, db) + ks * 4; pf = Pr + u * 8 + ks * 4
                    z = first and ks == 0
                    A(Op(("pv", s, db, u, ks), f"v_mfma_f32_16x16x32_bf16 {vt(o,4)}, {at(vf,4)}, {vt(pf,4)}, {'0' if z else vt(o,4)}", "mfma",
                         ar(vf, 4) + vr(pf, 4) + ([] if z else vr(o, 4)), vr(o, 4)))
                mcount += 2
            else:
                _, _, u = c
                first = li(s - 1, u) == 0
                l = vL + 4 * u
                if first:
                    for r in range(2): A(Op(("lz", s, u, r), f"v_mov_b32 v{l+r}, 0", "valu", [], vr(l + r)))
                pf = Pr + u * 8
                A(Op(("on", s, u), f"v_smfmac_f32_16x16x64_bf16 {vt(l,4)}, {vt(vOne,4)}, {vt(pf,8)}, v{vIdx}", "mfma", vr(pf, 8) + vr(l, 2), vr(l, 4)))
                mcount += 1
        if not bar_done: barrier()
        for it, _ in todo_items: issue(it, (s, "off", mcount))
        if not steady and s == 31:
            qread(("qr", 32, 0), 0, dummy=True)
            qload(("q", 32 + sg[1], 1), dummy=True)
        if not steady and s == 7:
            A(Op(("vo2", 7), f"v_xor_b32 v{vO2}, 0x840, v{vO}", "valu", [], vr(vO2)))
            if cfg.full_until < 39: A(Op(("vo3", 7), f"v_cndmask_b32 v{vO3}, v{vO}, v{vO2}, vcc", "valu", vr(vO2) + ["junk"], vr(vO3)))
        for u in sorted(fin):
            l = vL + 4 * u; R = vR + 2 * (u & 1)
            DPP = "row_ror:8 row_mask:0xf bank_mask:0xf"
            pol = cfg.st_last if (not steady and s >= cfg.st_last_from) else cfg.st_pol
            A(Op(("la", s, u), f"v_add_f32 v{l}, v{l}, v{l+1}", "valu", vr(l, 2), vr(l)))
            A(Op(("rc", s, u), f"v_rcp_f32 v{R}, v{l}", "trans", vr(l), vr(R)))
            full = cfg.full_until > 0 if steady else s < cfg.full_until
            if full: A(Op(("r2", s, u), f"v_mov_b32_dpp v{R+1}, v{R} {DPP}", "valu", vr(R), vr(R + 1)))
            A(Op(("ck", s, u), f"v_max3_u32 v{vChk}, v{vChk}, v{l}, v{R}", "valu", vr(vChk) + vr(l) + vr(R), vr(vChk)))
            for db in range(8):
                o = vOa + db * 16 + u * 4
                for r in range(4):
                    if full and db & 2: A(Op(("mu", s, u, db, r), f"v_mul_f32_dpp v{o+r}, v{o+r}, v{R+1} {DPP}", "valu", vr(o + r) + vr(R + 1), vr(o + r)))
                    else: A(Op(("mu", s, u, db, r), f"v_mul_f32 v{o+r}, v{o+r}, v{R}", "valu", vr(o + r) + vr(R), vr(o + r)))
                if db & 1:
                    e = o - 16
                    A(Op(("oc", s, u, db, 3), f"v_cvt_pk_bf16_f32 v{o+3}, v{o+2}, v{o+3}", "valu", vr(o + 2, 2), vr(o + 3)))
                    A(Op(("oc", s, u, db, 2), f"v_cvt_pk_bf16_f32 v{o+2}, v{o}, v{o+1}", "valu", vr(o, 2), vr(o + 2)))
                    A(Op(("oc", s, u, db, 0), f"v_cvt_pk_bf16_f32 v{o}, v{e}, v{e+1}", "valu", vr(e, 2), vr(o)))
                    A(Op(("oc", s, u, db, 1), f"v_cvt_pk_bf16_f32 v{o+1}, v{e+2}, v{e+3}", "valu", vr(e + 2, 2), vr(o + 1)))
                    if not full:
                        A(Op(("st", s, u, db), f"buffer_store_dwordx4 {vt(o,4)}, v{vO3}, s[{sO_}:{sO_+3}], s{sOo} offen offset:{(db-1)*32} {pol}".rstrip(), "store",
                             vr(o, 4) + [f"s{sOo}"] + vr(vO3), [], cost=20))
                if full and db & 3 == 3:
                    a = o - 32; x = o - 16
                    for r in range(4):
                        A(Op(("sx", s, u, db, r), f"v_cndmask_b32 v{x+r}, v{a+r}, v{o+r}, vcc", "valu", vr(a + r) + vr(o + r), vr(x + r)))
                    A(Op(("st", s, u, db - 1), f"buffer_store_dwordx4 {vt(x,4)}, v{vO}, s[{sO_}:{sO_+3}], s{sOo} offen offset:{(db>>2)*128} {pol}".rstrip(), "store",
                         vr(x, 4) + [f"s{sOo}"], [], cost=20))
                    for r in range(4):
                        A(Op(("sy", s, u, db, r), f"v_cndmask_b32 v{o+r}, v{o+r}, v{a+r}, vcc", "valu", vr(a + r) + vr(o + r), vr(o + r)))
                    A(Op(("st", s, u, db), f"buffer_store_dwordx4 {vt(o,4)}, v{vO2}, s[{sO_}:{sO_+3}], s{sOo} offen offset:{(db>>2)*128} {pol}".rstrip(), "store",
                         vr(o, 4) + [f"s{sOo}"] + vr(vO2), [], cost=20))
            if not steady and 32 <= s < last:
                for x in prog:
                    if x.key[:3] == ("st", s, u): x.maxdl = (s + 1, "frac", (x.key[3] + 1) / 8 * cfg.tail_dl)
            A(Op(("oinc", s, u), f"s_add_u32 s{sOo}, s{sOo}, 4096", "salu", [f"s{sOo}"], [f"s{sOo}"]))
    return prog

def link(cfg, prog):
    lastw = {}; readers = {}
    m = 0
    for x in prog:
        if x.kind == "mfma": x.m = m; m += 1
    for x in prog:
        e = {}
        def add(p, typ):
            if p is x: return
            soft = hard = 0
            if p.kind == "mfma":
                if x.kind == "mfma": return
                if typ in ("raw", "waw"): soft = cfg.mv_lat + (2 if p.key[0] == "on" else 0)
                elif x.kind in ("valu", "trans"): soft = 1
            elif x.kind == "mfma":
                hard = soft = 1
                if typ == "raw":
                    soft = cfg.ds_lat if p.kind == "ds" else (1 if p.kind == "load" else 2)
                elif p.kind == "store": soft = 2
            elif x.kind == "bar" or x.key[0] == "arr":
                hard = 1; soft = {"ds": cfg.ds_lat, "dsw": cfg.ds_lat, "dma": 2}.get(p.kind, 1)
            elif p.kind == "bar":
                soft = hard = 0
            elif p.kind == "salu":
                soft = 2; hard = 1 if x.kind != "salu" else 1
            elif x.kind == "salu":
                soft = hard = 1
            elif typ == "raw":
                if p.kind == "trans": soft = 1
                elif p.kind == "ds" and x.kind == "dma": soft = cfg.ds_lat
                elif p.kind == "valu" and x.kind in ("store", "dsw", "ds"): soft = 1
                elif p.kind == "valu" and "permlane" in x.text: soft = 2
                if "_dpp" in x.text: soft = 2
            else:
                if p.kind in ("valu", "trans") and x.kind in ("load", "ds", "dma"): soft = 1
                if p.kind in ("store", "dsw"): soft = 1
            o = e.get(id(p))
            e[id(p)] = (p, max(soft, o[1]) if o else soft, max(hard, o[2]) if o else hard)
        for r in x.reads:
            if r in lastw: add(lastw[r], "raw"); x.prod[r] = lastw[r].key
        for r in x.writes:
            if r in lastw: add(lastw[r], "waw")
            for p in readers.get(r, []): add(p, "war")
        for r in x.reads: readers.setdefault(r, []).append(x)
        for r in x.writes: lastw[r] = x; readers[r] = []
        x.preds = list(e.values())
        for p, so, ha in x.preds: p.succs.append((x, so, ha))
    return m

def semantic_check(cfg, prog):
    sg = cfg.sigma
    nq = 0; qblk = {}; nst = 0
    for x in prog:
        k = x.key; P = [x.prod.get(r) for r in x.reads]
        def exp(idx, f):
            for i in idx: assert P[i] is not None and f(P[i]), ("semantic", k, x.reads[i], P[i])
        if x.dummy: continue
        if k[0] == "ksc" and k[4] in (0, 1): exp([0], lambda p: p == ("kld", k[1], k[2]))
        if k[0] == "ksc" and k[4] in (2, 3): exp([0], lambda p: p == k[:4] + (k[4] - 2,))
        if k[0] == "ksc" and k[4] == 4: exp([0], lambda p: p == k[:4] + (2,)); exp([1], lambda p: p == k[:4] + (3,))
        if k[0] == "kw": exp(range(4), lambda p: p[:3] == ("ksc", k[1], k[2]) and p[4] == 4); exp(range(5, len(P)), lambda p: p[0] == "bar")
        if k[0] in ("bar", "arr"): exp(range(len(P)), lambda p: True)
        if k[0] == "kr" and k[1] < 8: exp([0], lambda p: p[0] == "bar")
        if k[0] == "vr": exp([0], lambda p: p[0] == "bar")
        if k[0] == "dma": exp([0], lambda p: p == ("m0", k[1])); exp(range(1, len(P)), lambda p: p[0] == "bar")
        if k[0] in ("q", "q0") and k[-1] == "inc": qblk[k[:-1]] = nq; nq += 1
        if k[0] in ("q", "q0") and isinstance(k[-1], int): exp([1], lambda p: p == k[:-1] + ("m0",))
        if k[0] in ("qr", "qr0"):
            u = k[-2]; n = 0 if k[0] == "qr0" else (k[1] - sg[u]) // 8
            exp(range(4), lambda p: qblk[p[:-1]] == 4 * n + u)
        if k[0] == "qk":
            _, s, kb, u, ds = k; n, i_ = blockpos(cfg, s, u); s0 = s - i_
            exp(range(4), lambda p: p[0] == "kr" and p[1] % 8 == s % 8 and p[2:] == (kb, ds))
            exp(range(4, 8), lambda p: p == (("qr0", u, ds) if n == 0 else ("qr", s0, u, ds)))
            exp(range(8, len(P)), lambda p: p == ("qk", s, kb, u, ds - 1))
        if k[0] == "ex": exp([0], lambda p: p == ("qk",) + k[1:4] + (3,))
        if k[0] == "cv": exp([0, 1], lambda p: p[:4] == ("ex",) + k[1:4])
        if k[0] == "pv":
            _, s, db, u, ks = k
            exp(range(4), lambda p: p[0] == "vr" and p[1] % 8 == s % 8 and p[2:4] == (db, ks))
            exp(range(4, 8), lambda p: p[0] == "cv" and p[1] == s - 1 and p[2] >> 1 == ks and p[3] == u)
            exp(range(8, len(P)), lambda p: p == (("pv", s, db, u, 0) if ks else ("pv", s - 1, db, u, 1)))
        if k[0] == "on":
            exp(range(8), lambda p: p[0] == "cv" and p[1] == k[1] - 1 and p[3] == k[2])
            exp([8, 9], lambda p: p[:3] == ("lz", k[1], k[2]) or p == ("on", k[1] - 1, k[2]))
        if k[0] == "la": exp([0, 1], lambda p: p == ("on", k[1], k[2]))
        if k[0] == "mu": exp([0], lambda p: p == ("pv", k[1], k[3], k[2], 1)); exp([1], lambda p: p[0] in ("rc", "r2") and p[1:] == k[1:3])
        if k[0] == "oc": exp([0, 1], lambda p: p[:3] == ("mu",) + k[1:3])
        if k[0] == "oinc":
            assert nst == 4 * blockpos(cfg, k[1] - 1, k[2])[0] + k[2], k
            nst += 1
    assert nst == 16

def step_of(x): return x.key[1]

def schedule(cfg, prog, nm, pins=None, lo=None, hi=None):
    pins = pins or {}; lo = lo or {}; hi = hi or {}
    start = {}; barw = {}
    cur = -1
    for x in prog:
        if x.kind == "mfma":
            cur = x.m; start.setdefault(x.key[1], x.m)
        elif x.key[0] == "bar": barw[x.key[1]] = cur
    def W(a):
        if a[0] == -1: return -1
        if a[1] == "bar": return barw.get(a[0], nm - 1) + (a[2] if len(a) > 2 else 0)
        if a[1] == "frac": return start[a[0]] - 1 + int(a[2] * (start.get(a[0] + 1, nm) - start[a[0]]))
        if a[1] == "off": return max(0, start[a[0]] - 1 + a[2])
        return start[a[0]] - 1
    fill = [x for x in prog if x.kind != "mfma"]
    for x in prog:
        if x.kind == "mfma": x.win = x.m
    for i, x in enumerate(prog): x.idx = i
    for x in reversed(fill):
        if x.key in pins: x.dls = x.dlh = pins[x.key][0]; continue
        if x.anchor: x.dls = x.dlh = W(x.anchor); continue
        ds = dh = nm - 1
        for y, so, ha in x.succs:
            if y.dummy and y.key not in pins: continue
            if y.kind == "mfma": ds = min(ds, y.m - so); dh = min(dh, y.m - ha)
            else: ds = min(ds, y.dls - so); dh = min(dh, y.dlh - ha)
        if x.key in hi: ds = min(ds, hi[x.key]); dh = min(dh, hi[x.key])
        if x.maxdl: ds = min(ds, W(x.maxdl)); dh = min(dh, W(x.maxdl))
        x.dls, x.dlh = ds, max(dh, -1)
    wins = {w: [] for w in range(-1, nm)}
    for x in fill:
        x.win = None
        x.lo = max(W(x.earliest) if x.earliest else -1, lo.get(x.key, -1))
        if x.anchor: x.lo = x.dlh
    pinned_by_win = {}
    for x in fill:
        if x.key in pins: pinned_by_win.setdefault(pins[x.key][0], []).append(x)
    todo = [x for x in fill if x.key not in pins and not x.dummy]
    todo.sort(key=lambda x: x.idx)
    credit = [0]
    bucket = [0]
    def nbytes(x):
        if x.kind in ("salu", "bar"): return 4
        if x.kind in ("valu", "trans"):
            return 8 if ("_dpp" in x.text or x.text.split()[0] in ("v_cvt_pk_bf16_f32", "v_perm_b32", "v_max3_u32") or "0x" in x.text) else 4
        return 8
    mfl = [x for x in prog if x.kind == "mfma"]
    def ready(x, w, soft):
        if w < x.lo: return False
        for p, so, ha in x.preds:
            if p.dummy and p.key not in pins: continue
            if p.win is None: return False
            lat = ha
            if soft and (p.kind not in ("load", "dma", "ds", "dsw") or x.kind == "dma"): lat = so
            if p.kind in ("store", "dsw") and soft: lat = max(lat, min(so, 1))
            if w == -1 or w == nm - 1: lat = 0
            if w < p.win + lat: return False
        return True
    for w in range(-1, nm):
        if w in pinned_by_win:
            for x in sorted(pinned_by_win[w], key=lambda x: pins[x.key][1]):
                x.win = w; wins[w].append(x)
        if pins and cfg._loop[0] <= w < cfg._loop[1]: continue
        cap = 8 if w >= 0 else 0
        if w >= 0 and mfl[w].key[0] == "on": cap = 4
        cap0 = cap
        rate = 8
        if cfg.smooth and pins and 0 <= w < nm - 1:
            acc = 0
            for x in sorted((x for x in todo[:900] if x.dls <= w + 120), key=lambda x: x.dls):
                acc += min(x.cost, 8)
                rate = max(rate, acc / (max(x.dls, w) - w + 1))
            credit[0] = credit[0] + rate - 8 if rate > 8.2 else 0
            credit[0] = min(credit[0], rate)
            extra = int(credit[0] // 4) * 4
            cap += extra
        used = 0
        cur = wins[w]
        def place(x):
            nonlocal used
            x.win = w; cur.append(x); used += min(x.cost, 8); todo.remove(x)
        while True:
            cand = [x for x in todo[:700] if ready(x, w, True) or (w >= x.dlh and ready(x, w, False))]
            if not cand: break
            z = [x for x in cand if x.kind in ("salu", "bar")]
            if z:
                place(z[0]); continue
            forced = [x for x in cand if x.dls <= w]
            if w == -1 or w == nm - 1:
                if not forced: break
                place(min(forced, key=lambda x: x.idx)); continue
            hasvalu_dep = lambda x: x.kind in ("ds", "dsw", "load", "dma", "store") and any(p.win == w and p.kind in ("valu", "trans") for p, _, _ in x.preds)
            hard_forced = forced
            if hard_forced:
                place(min(hard_forced, key=lambda x: (x.dls, x.idx))); continue
            if used >= cap: break
            nb = lambda x: 1024 if "b128" in x.text else 512
            dsb = sum(nb(x) for x in cur if x.kind == "ds")
            tight = rate > 8.2
            recent = (not tight) and any(y.kind == "ds" for k in range(1, cfg.ds_gap) for y in wins.get(w - k, []))
            vmk = ("load", "dma", "store")
            vgap = max(1, int(cfg.vm_gap * 16 / (8 + rate)))
            recent_vm = any(y.kind in vmk for k in range(0, vgap) for y in wins.get(w - k, []))
            sgap = max(1, int(cfg.st_gap * 16 / (8 + rate)))
            if any(y.kind == "store" for k in range(0, sgap) for y in wins.get(w - k, [])):
                cand = [x for x in cand if x.kind != "store" and not (cfg.st_gap_all and x.kind in vmk)]
            dcap = cfg.ds_cap * (8 + cap) // 16
            if cfg.st_block and any(-4 * cfg.vm_gap <= b - w <= cfg.st_block for b in barw.values()):
                cand = [x for x in cand if x.kind != "store"]
            cand = [x for x in cand if (x.kind != "ds" or (not recent and dsb + nb(x) <= dcap)) and not (x.kind in vmk and recent_vm and not (getattr(x, "nogap", False) and used == 0))]
            if not cand: break
            cand.sort(key=lambda x: (-99999 if (x.kind in ("load", "dma", "dsw", "store") or (cfg.qr_asap and x.key[0] == "qr")) else x.dls, x.idx))
            if cfg.fetch_thr is not None and not tight and bucket[0] >= cfg.fetch_thr and cap - used >= 8 and cand[0].dls > w + cfg.fetch_slack:
                tr = [x for x in cand if x.kind == "trans"]
                if tr: place(tr[0]); continue
            if cap - used >= 8:
                top = cand[0]
                if top.cost >= 8: place(top); continue
                small = [x for x in cand if x.cost == 4]
                big = [x for x in cand if x.cost >= 8]
                fits = lambda a, b: not (a.kind == "ds" and b.kind == "ds" and dsb + nb(a) + nb(b) > dcap)
                partner = any(fits(top, y) for y in small if y is not top) or any(y.cost == 4 and so == 0 and y.win is None and y.kind == "valu" and all(p.win is not None or p is top for p, _, _ in y.preds) for y, so, ha in top.succs)
                if partner or not big or (cap - used) % 8: place(top)
                else: place(big[0])
                continue
            small = [x for x in cand if x.cost == 4]
            if not small: break
            place(small[0])
        bts = 8 + sum(nbytes(x) for x in cur if x.kind not in ("salu", "bar")) + (4 if any(x.kind not in ("valu", "trans") for x in cur) else 2)
        bucket[0] = max(0, bucket[0] + bts - 22 * max(16, 8 + sum(x.cost for x in cur)) // 16)
        if w >= 0: credit[0] -= max(0, min(used, cap) - cap0)
        if w not in (-1, nm - 1):
            order = {"bar": 0, "salu": 0, "dma": 1, "load": 1, "store": 1, "dsw": 1, "ds": 1, "valu": 2, "trans": 2}
            lvl = {}
            for x in cur:
                l = order[x.kind]
                for p, _, _ in x.preds:
                    if p.win == w and p.kind != "mfma": l = max(l, lvl[id(p)])
                lvl[id(x)] = l
            cur.sort(key=lambda x: lvl[id(x)])
    assert not todo, [x.key for x in todo[:10]]
    for w, c in wins.items():
        for i, x in enumerate(c): x.pos = i
    return wins, start

def norm(key, d):
    return (key[0], key[1] + d) + tuple(key[2:])

class Ins:
    def __init__(s, text, op=None, kind=None):
        s.text, s.op, s.kind = text, op, kind or (op.kind if op else "salu")
        s.vm = None; s.lg = None

def generate(cfg):
    last = 32 + max(cfg.sigma)
    cfg.q_ahead = getattr(cfg, "q_ahead", 2)
    cfg.code_pf_n = getattr(cfg, "code_pf_n", 2)
    sp = build(cfg, 0, 56, True); nms = link(cfg, sp)
    swins, sstart = schedule(cfg, sp, nms)
    per = sstart[8] - sstart[0]
    ok = None
    for b in (16, 24, 32):
        same = all([x.text for x in swins[sstart[b] + i]] == [x.text for x in swins[sstart[b + 8] + i]] and
                   [norm(x.key, 8) for x in swins[sstart[b] + i]] == [x.key for x in swins[sstart[b + 8] + i]] for i in range(per))
        if same: ok = b; break
    assert ok is not None, "steady state not periodic"
    rp = build(cfg, 0, last + 1, False)
    E_ = cfg.loop_from
    off0 = sstart[ok + E_ - 8] - sstart[ok]
    inloop = {norm(x.key, 8 + 8 * it - ok) for it in range(3) for i in range(per) for x in swins[sstart[ok] + i] if it or i >= off0}
    rp = [x for x in rp if not x.dummy or x.key in inloop]
    nm = link(cfg, rp)
    semantic_check(cfg, rp)
    rstart = {}
    for x in rp:
        if x.kind == "mfma": rstart.setdefault(x.key[1], x.m)
    L0, L1 = rstart[E_], rstart[32]
    assert L1 - L0 == 3 * per - off0
    XP = L0 + per - off0
    cfg._loop = (L0, L1)
    pins = {}
    for it in range(3):
        for i in range(per):
            for x in swins[sstart[ok] + i]:
                if it or i >= off0: pins[norm(x.key, 8 + 8 * it - ok)] = (L0 - off0 + it * per + i, x.pos)
    keys = {x.key: x for x in rp}
    assert len(keys) == len(rp)
    missing = [k for k in pins if k not in keys]
    assert not missing, missing[:10]
    lo = {}; hi = {}
    mid = (keys[("qk", 20, 0, 0, 0)])
    midx = rp.index(mid)
    for i, x in enumerate(rp):
        if x.kind == "mfma" or x.key in pins: continue
        if i < midx: hi[x.key] = L0 - 1
        else: lo[x.key] = L1
    wins, start = schedule(cfg, rp, nm, pins, lo, hi)
    mf = [x for x in rp if x.kind == "mfma"]
    def stat(w):
        return L0 + (w - L0) % per if L0 <= w < L1 else w
    free = {}
    pre = {}
    for w in range(-1, nm):
        if stat(w) == w:
            free[w] = []
            if w not in (-1, nm - 1):
                for x in wins[w]:
                    if x.kind == "bar": free[w].append(Ins(x.text, x))
    def body(w):
        if w in (-1, nm - 1): return wins[w]
        return [x for x in wins[w] if x.kind not in ("salu", "bar")]
    def walk(fix):
        q = {"vm": [], "lgkm": []}
        pend = {}
        hist = {}
        changed = False
        def dowait(ins):
            for c, n in (("vm", ins.vm), ("lgkm", ins.lg)):
                if n is None: continue
                while len(q[c]) > n:
                    d = q[c].pop(0)
                    for r in d.writes:
                        if pend.get(r) is d: del pend[r]
        def need(x):
            n = {}
            for r in x.reads + x.writes:
                p = pend.get(r)
                if p is not None and not (r in x.writes and r not in x.reads and p.cnt == x.cnt):
                    n[p.cnt] = p if (p.cnt not in n or q[p.cnt].index(p) > q[p.cnt].index(n[p.cnt])) else n[p.cnt]
            return n
        def issue(x):
            if x.cnt:
                q[x.cnt].append(x)
                for r in x.writes:
                    if r != "stord": pend[r] = x
        def setw(ins, c, n):
            n = min(n, 62 if c == "vm" else 14)
            if c == "vm": ins.vm = n if ins.vm is None else min(ins.vm, n)
            else: ins.lg = n if ins.lg is None else min(ins.lg, n)
        def handle(x, w, pos, cands):
            nonlocal changed
            n = need(x)
            if not n: return
            assert fix, ("unwaited", x.key, {c: p.key for c, p in n.items()})
            changed = True
            for c, p in n.items():
                done = False
                for cw in cands:
                    if cw < 0 or cw == nm - 1 or cw not in hist: continue
                    snap = hist[cw][c]
                    if p not in snap: continue
                    fl = free[stat(cw)]
                    wi = [i for i in fl if i.kind == "wait"]
                    if not wi and fl and cw != cands[-1]: continue
                    if not wi:
                        wi = [Ins("", None, "wait")]; fl.insert(0, wi[0])
                    setw(wi[0], c, len(snap) - 1 - snap.index(p)); done = True; break
                if not done:
                    ins = pre.setdefault((stat(w), pos), Ins("", None, "wait"))
                    setw(ins, c, len(q[c]) - 1 - q[c].index(p))
                while p in q[c]:
                    d = q[c].pop(0)
                    for r in d.writes:
                        if pend.get(r) is d: del pend[r]
        for w in range(-1, nm):
            if w >= 0:
                if (stat(w), "m") in pre: dowait(pre[(stat(w), "m")])
                handle(mf[w], w, "m", [w - 1, w - 2])
            hist[w] = {c: list(v) for c, v in q.items()}
            hist.pop(w - 4, None)
            for ins in list(free[stat(w)]):
                if ins.kind == "wait": dowait(ins)
                elif ins.kind == "bar":
                    x = [y for y in wins[w] if y.kind == "bar"][0]
                    handle(x, w, "b", [w - 1, w - 2, w])
            for pos, x in enumerate(body(w)):
                if (stat(w), pos) in pre: dowait(pre[(stat(w), pos)])
                handle(x, w, pos, [w, w - 1])
                issue(x)
        return changed
    for _ in range(10):
        if not walk(True): break
    walk(False)
    for w in range(0, nm - 1):
        if stat(w) != w: continue
        for x in wins[w]:
            if x.kind != "salu": continue
            hiw = min([y.win - (1 if "m0" in x.writes or y.kind == "salu" else 0) for y, _, _ in x.succs if y.win is not None] + [w + 40, nm - 2])
            if L0 <= w < XP: hiw = min(hiw, XP - 3)
            elif XP <= w < L0 + per: hiw = min(hiw, L0 + per - 1)
            elif w < L0: hiw = min(hiw, L0 - 1)
            hiw = max(hiw, w)
            c = [k for k in range(w, hiw + 1) if not free[k]]
            c2 = [k for k in c if body(k) and body(k)[0].kind in ("ds", "dma", "load", "store", "dsw")]
            k = c2[0] if c2 else (c[0] if c else w)
            if any(i.text.startswith("s_cmp") for i in free[k]): free[k].insert(0, Ins(x.text, x))
            else: free[k].append(Ins(x.text, x))
    k = [k for k in range(XP - 2, XP) if not free[k]]
    k = k[0] if k else XP - 1
    if any(i.text.startswith("s_add") for kk in range(k + 1, XP) for i in free[kk]): k = XP - 1
    free[k].append(Ins(f"s_sub_u32 s{sCnt}, s{sCnt}, 1"))
    if cfg.nop_ds:
        for w in range(0, nm - 1):
            if stat(w) == w and not free[w] and body(w) and body(w)[0].kind in ("ds", "dma", "load", "store", "dsw"):
                free[w].append(Ins("s_nop 0", None, "nop"))
    def wtext(i):
        t = "s_waitcnt"
        if i.vm is not None: t += f" vmcnt({i.vm})"
        if i.lg is not None: t += f" lgkmcnt({i.lg})"
        return t
    code = {}
    for w in range(-1, nm):
        if stat(w) != w: continue
        l = []
        if w >= 0:
            if (w, "m") in pre: l.append(pre[(w, "m")])
            l.append(Ins(mf[w].text, mf[w]))
        l += free[w]
        for pos, x in enumerate(body(w)):
            if (w, pos) in pre: l.append(pre[(w, pos)])
            l.append(Ins(x.text, x))
        for i in l:
            if i.kind == "wait": i.text = wtext(i)
        code[w] = l
    def wcost(l, head=False):
        t = 0; base = 0; lastvalu = -99; blk = 8
        for i in l:
            if i.kind == "mfma": base = t; t += 4; blk = 12 if "smfmac" in i.text else 8; continue
            if i.kind in ("salu", "wait", "bar", "nop"): t += 4; continue
            if i.kind == "nopx": t += 4 * (int(i.text.split()[1]) + 1); continue
            if not head: t = max(t, base + blk)
            if i.kind in ("valu", "trans"): t += i.op.cost; lastvalu = t
            else:
                t = max(t, lastvalu + 8) + i.op.cost
        return t if head else max(t, base + 16)
    def hazards(fix):
        seq = []
        changed = False
        for w in range(-1, nm):
            l = code[stat(w)]
            j = 0
            while j < len(l):
                i = l[j]; x = i.op
                needn = 0
                if x is not None and x.kind not in ("salu", "bar"):
                    dist = 0
                    for p, st, pwin in reversed(seq):
                        y = p.op
                        if y is not None:
                            req = 0
                            raw = set(y.writes) & set(x.reads); waw = set(y.writes) & set(x.writes); war = set(y.reads) & set(x.writes)
                            if y.kind == "mfma":
                                if x.kind == "mfma":
                                    if set(y.writes) & set(x.reads[:8]): req = 8
                                elif raw or waw: req = 12 if y.key[0] == "on" else 8
                                elif war and x.kind in ("valu", "trans") and set(y.writes) & set(x.writes): req = 3
                            elif y.kind in ("valu", "trans"):
                                if raw and x.kind == "mfma": req = 2
                                if raw and ("permlane" in x.text or "_dpp" in x.text): req = 2
                                if raw and y.kind == "trans" and x.kind != "trans": req = max(req, 1)
                            elif y.kind in ("store", "dsw") and war and y.cost == 20: req = 2
                            elif y.kind == "salu" and "m0" in y.writes and x.kind == "dma": req = 1
                            if req - dist > needn: needn = req - dist; pw = pwin
                        dist += st
                        if dist >= 12: break
                if needn > 0:
                    assert fix, ("hazard", x.key)
                    for k in range(w, pw - 1, -1):
                        if k < 0: break
                        lk = code[stat(k)]
                        mi = [n for n, z in enumerate(lk) if z.kind == "mfma"][0]
                        places = []
                        if k > pw and (k < w or j > mi): places.append(mi + 1)
                        if k < w: places.append(len(lk))
                        ok_ = False
                        for pl in places:
                            tr = lk[:pl] + [Ins("s_nop 0", None, "nopx")] + lk[pl:]
                            if wcost(tr) == wcost(lk): lk[:] = tr; ok_ = True; break
                        if ok_: return True
                    l.insert(j, Ins(f"s_nop {needn-1}", None, "nopx")); changed = True
                    continue
                st = int(i.text.split()[1]) + 1 if i.text.startswith("s_nop") else 1
                seq.append((i, st, w)); seq = seq[-14:]
                j += 1
        return changed
    while hazards(True): pass
    lastw = {}; seen = set()
    for w in range(-1, nm):
        it = (w - L0) // per if L0 <= w < L1 else 0
        for i in code[stat(w)]:
            if i.op is None: continue
            x = keys[norm(i.op.key, 8 * it)]
            assert x.text == i.text, (x.text, i.text)
            assert x.key not in seen; seen.add(x.key)
            if not x.dummy:
                for r in x.reads:
                    assert lastw.get(r) == x.prod.get(r), ("dataflow", x.key, r, lastw.get(r), x.prod.get(r))
            for r in x.writes: lastw[r] = x.key
    assert all(x.key in seen or x.dummy for x in rp), [x.key for x in rp if x.key not in seen and not x.dummy][:5]
    est = {}
    for s in range(0, last + 1):
        e = rstart.get(s + 1, nm)
        est[s] = (sum(wcost(code[stat(w)]) for w in range(rstart[s], e)), (e - rstart[s]) * 16)
    cfg.est = est; cfg.est_head = wcost(code[-1], True)
    out = []
    cfg.spins = []
    E = out.append
    stamp_at = getattr(cfg, "stamp_steps", [])
    inv = {v: k for k, v in rstart.items()}
    for w in range(-1, nm):
        if stat(w) != w: continue
        if w == L0:
            if cfg.stamps and 7.9 in stamp_at:
                j = stamp_at.index(7.9); E(f"    s_memrealtime s[{64+2*j}:{65+2*j}]")
            E("L_loop:")
        if w in inv:
            E(f"; ---- step {inv[w]} ----")
            if cfg.jitter:
                E(f"    s_cmp_lg_u32 s{sWave}, {(inv[w] * cfg.jitter[1]) & 3}\n    s_cbranch_scc1 L_j{inv[w]}\n    s_sleep {cfg.jitter[0]}\nL_j{inv[w]}:")
            if cfg.stamps and inv[w] in stamp_at:
                j = stamp_at.index(inv[w]); E(f"    s_memrealtime s[{64+2*j}:{65+2*j}]")
        for i in code[w]:
            if i.op is not None and i.op.key[0] in cfg.kill and (L0 if cfg.kill_from is None else cfg.kill_from) <= w: E("    s_nop 0")
            else: E("    " + i.text)
            if cfg.pad and i.kind == "mfma" and L0 <= w < L1 and w % cfg.pad == 0: E("    s_nop 4")
            if i.text.startswith("s_cbranch_scc1 L_spin"):
                n = i.text.split("L_spin")[1]; E(f"L_back{n}:"); cfg.spins.append(n)
        if off0 == 0:
            if w == L0 + per - 1: E("    s_cbranch_scc0 L_loop")
        else:
            if w == XP - 1: E("    s_cbranch_scc1 L_tail")
            if w == L0 + per - 1: E("    s_branch L_loop"); E("L_tail:")
    lastscc = None
    for l in out:
        t = l.strip()
        if t.startswith(("s_add", "s_sub", "s_cmp", "s_and", "s_lsh", "s_bfe", "s_or", "s_xor", "s_not")): lastscc = t
        if t.startswith("s_cbranch_scc1 L_spin"): assert lastscc.startswith("s_cmp_lt_u32"), lastscc
        if t.startswith(("s_cbranch_scc0 L_loop", "s_cbranch_scc1 L_tail")): assert lastscc.startswith(f"s_sub_u32 s{sCnt}"), lastscc
    return "\n".join(out)

def fbits(x): return struct.unpack("<I", struct.pack("<f", x))[0]

def head(cfg):
    T = vS
    h = f"""    s_load_dwordx4 s[4:7], s[0:1], 0          ; q, k
    s_load_dwordx4 s[8:11], s[0:1], 16        ; v, out
"""
    if cfg.x8: h = "    s_load_dwordx8 s[4:11], s[0:1], 0         ; q, k, v, out\n"
    if cfg.stamps: h += f"    s_load_dwordx2 s[56:57], s[0:1], {32 if cfg.stamps in ('dbg', 'skew') else 40}\n    s_memrealtime s[60:61]\n"
    h += f"""    v_lshrrev_b32 v{T}, 6, v0
    v_and_b32 v{T+4}, 63, v0                  ; lane
    v_readfirstlane_b32 s{sWave}, v{T}
    s_cmp_ge_u32 s2, 256
    s_cbranch_scc1 L_end
    v_and_b32 v{T+1}, 15, v0                  ; l & 15
    v_bfe_u32 v{T+2}, v0, 4, 2                ; l >> 4
    v_lshlrev_b32 v{vKl}, 4, v{T+4}           ; lane*16
    s_and_b32 s{sTmp}, s2, 7
    s_lshr_b32 s{sTmp+1}, s2, 3
    s_lshl_b32 s{sTmp}, s{sTmp}, 5
    s_add_u32 s{sTmp}, s{sTmp}, s{sTmp+1}
    s_lshl2_add_u32 s{sTmp+2}, s{sTmp}, s{sWave}
    s_lshl_b32 s{sTmp+2}, s{sTmp+2}, 16       ; q/o byte offset of this wave
    s_lshr_b32 s{sTmp}, s{sTmp}, 2
    s_lshl_b32 s{sTmp}, s{sTmp}, 17           ; k/v byte offset of the group
    s_lshl_b32 s{sMq}, s{sWave}, 12           ; wave*4096
    s_add_u32 s{sTmp+3}, s{sTmp}, s{sMq}
    s_sub_u32 s{sK_+2}, 0x20000, s{sMq}
    s_mov_b32 s{sK_+3}, 0x20000
    s_mov_b32 s{sQ_+3}, s{sK_+3}
    s_mov_b32 s{sQ_+2}, 0x10000
"""
    if cfg.rot:
        h += f"""    s_bfe_u32 s{sTmp+4}, s2, 0x20003
    s_mul_i32 s{sTile}, s{sTmp+4}, {cfg.rot*16384}
    s_and_b32 s{sTile}, s{sTile}, 0x1ffff
    s_add_u32 s{sTile+1}, s{sTile}, 16384
    s_and_b32 s{sTile+1}, s{sTile+1}, 0x1ffff
"""
    elif cfg.xor:
        h += f"""    s_lshl_b32 s{sTile}, s2, {11 + cfg.xor[1]}
    s_and_b32 s{sTile}, s{sTile}, {cfg.xor[0] << 14:#x}
    s_xor_b32 s{sTile+1}, s{sTile}, 0x4000
"""
    else: h += f"    s_mov_b32 s{sTile}, 0\n    s_movk_i32 s{sTile+1}, 0x4000\n"
    h += f"""    s_mov_b32 s{sQo}, 0
    v_lshlrev_b32 v{T+3}, 8, v{T+2}           ; (l>>4)*256
    v_xor_b32 v{T+5}, v{T+1}, v{T+2}          ; (l&15) ^ (l>>4)
    v_lshl_add_u32 v{vQd}, v{T+5}, 4, v{T+3}  ; Q DMA source: row*256 + (pos^row)*16
{head2(cfg).split("@CPF")[0] + f"    buffer_load_dword v{vJ}, v{vJ}, s[{sC_}:{sC_+3}], 0 offen" if cfg.early_pf else ""}
    s_waitcnt lgkmcnt(0)
    s_add_u32 s{sK_}, s6, s{sTmp+3}
    s_addc_u32 s{sK_+1}, s7, 0
    s_add_u32 s{sQ_}, s4, s{sTmp+2}
    s_addc_u32 s{sQ_+1}, s5, 0
"""
    if cfg.stamps: h += "    s_memrealtime s[62:63]\n"
    return h

def head2(cfg):
    c = math.log2(math.e) / math.sqrt(128.0)
    T = vS
    h = f"""    ; code prefetch into L2: 16 lines per wave, 8 KiB per workgroup
    s_getpc_b64 s[{sC_}:{sC_+1}]
L_pc:
    s_mov_b32 s{sC_+2}, L_slow - L_pc
    s_mov_b32 s{sC_+3}, 0x20000
    s_bfe_u32 s{sTmp+1}, s2, 0x30003
    s_lshl2_add_u32 s{sTmp+1}, s{sTmp+1}, s{sWave}
    s_lshl_b32 s{sTmp+1}, s{sTmp+1}, 11
    v_lshlrev_b32 v{vJ}, 5, v{T+4}
    v_add_u32 v{vJ}, s{sTmp+1}, v{vJ}
@CPF
    s_add_u32 s{sV_}, s8, s{sTmp}
    s_addc_u32 s{sV_+1}, s9, 0
    s_add_u32 s{sO_}, s10, s{sTmp+2}
    s_addc_u32 s{sO_+1}, s11, 0
    s_mov_b32 s{sV_+2}, 0x20000
    s_mov_b32 s{sV_+3}, 0x20000
    s_mov_b32 s{sO_+2}, 0x10000
    s_mov_b32 s{sO_+3}, 0x20000
"""
    for t in range(2, 8):
        if cfg.rot: h += f"    s_add_u32 s{sTile+t}, s{sTile+t-1}, 16384\n    s_and_b32 s{sTile+t}, s{sTile+t}, 0x1ffff\n"
        elif cfg.xor: h += f"    s_xor_b32 s{sTile+t}, s{sTile}, {t*16384}\n"
        else: h += f"    s_mov_b32 s{sTile+t}, {t*16384}\n"
    h += f"""    s_lshr_b32 s{sTmp+1}, s{sWave}, 1
    s_lshl3_add_u32 s{sTmp+4}, s{sTmp+1}, s{sMq}
    s_add_u32 s{sM0}, s{sTmp+4}, {VB}
    s_add_u32 s{sM0+1}, s{sTmp+4}, {VB + VSTR}
    s_add_u32 s{sM0+2}, s{sTmp+4}, {VB + 2 * VSTR}
    s_add_u32 s{sM0+3}, s{sTmp+4}, {VB + 3 * VSTR}
    s_mov_b32 s{sOo}, 0
    s_mov_b32 s{sExp}, 0
    s_mov_b32 s{sCnt}, 2
    s_mov_b32 s{sScale}, {fbits(c):#x}
    s_mov_b32 s{sMask}, 0xffff0000
{f"    s_mov_b32 s{sPerm}, 0x07060302" if cfg.trunc else ""}
    ; K fragment read addresses: g*256 + (row ^ g ^ 4*(ds&1))*16
    v_mov_b32 v{vKr}, v{vQd}
    v_xor_b32 v{vKr+1}, 64, v{vQd}
    v_add_u32 v{vKr+2}, {0x10000 - KSH}, v{vKr}
    v_add_u32 v{vKr+3}, {0x10000 - KSH}, v{vKr+1}
    ; K write address: key 16w+4i+r goes to block 2(w&1)+(i>>1), row 8(i&1)+4(w>>1)+r ; lane = 16r+c
    s_lshl_b32 s{sTmp+1}, s{sTmp+1}, 6
    s_and_b32 s{sTmp+4}, s{sWave}, 1
    s_lshl_b32 s{sTmp+5}, s{sTmp+4}, 13
    v_and_b32 v{T+6}, 7, v{T+5}
    v_lshlrev_b32 v{T+7}, 8, v{T+1}           ; (l&15)*256
    v_lshl_add_u32 v{T+6}, v{T+6}, 4, v{T+7}
    v_xor_b32 v{T+6}, s{sTmp+1}, v{T+6}
    v_add_u32 v{vKw}, s{sTmp+5}, v{T+6}
    v_cmp_gt_u32 vcc, 1024, v{vKw}            ; lanes that write fragment (.,0,0)
    v_add_u32 v{T+6}, {3 * 16384}, v{vKw}
    v_and_b32 v{T+8}, 3, v{T+5}
    v_cndmask_b32 v{vKw+1}, v{vKw}, v{T+6}, vcc
    v_lshl_add_u32 v{T+6}, v{T+8}, 4, v{T+7}
    v_add_u32 v{vQr}, s{sMq}, v{T+6}
    ; V DMA source offsets: row r=l>>4, 64-byte unit (c16>>2)^(key&3)
    v_lshlrev_b32 v{T+6}, 2, v{T+2}
    v_xor_b32 v{T+6}, v{T+6}, v{T+1}
    v_lshl_add_u32 v{T+6}, v{T+6}, 4, v{T+3}
    v_add_u32 v{vD0}, s{sMq}, v{T+6}
    ; V transposed-read addresses: lane = 16g+4r+c reads 8 bytes of chunk c of unit (db>>1)^r of key 32(g&1)+8kb+4(g>>1)+r
    v_bfe_u32 v{T+8}, v{T+4}, 2, 2            ; r
    v_lshlrev_b32 v{T+6}, 4, v{T+1}           ; r*64 + c*16
    v_lshl_add_u32 v{T+6}, v{T+8}, 8, v{T+6}
    v_lshrrev_b32 v{T+8}, 1, v{T+2}
    v_lshl_add_u32 v{T+6}, v{T+8}, 10, v{T+6}
    v_and_b32 v{T+8}, 1, v{T+2}
    v_mul_u32_u24 v{T+8}, 8200, v{T+8}
    v_add_u32 v{T+8}, {VB}, v{T+8}
    v_and_b32 v{T+9}, 3, v{T+4}
"""
    for m in range(4):
        if m: h += f"    v_xor_b32 v{T+10}, {m * 64}, v{T+6}\n"
        h += f"    v_add_u32 v{vV+m}, v{T+8}, v{T+10 if m else T+6}\n"
    h += f"""    ; output: a store covers 8 rows x 128 bytes: (l&7)*256 + ((l>>3)&1)*64 + g*16
    v_and_b32 v{T+10}, 0x700, v{T+7}
    v_lshl_add_u32 v{T+10}, v{T+2}, 4, v{T+10}
    v_and_b32 v{T+11}, 8, v{T+1}
    v_lshl_add_u32 v{vO}, v{T+11}, 3, v{T+10}
"""
    h += f"""    ; row-sum operand: rows 4i and 4i+1 are ones; they pick elements 0,1 and 2,3 of every group of four keys
    v_cmp_eq_u32 vcc, 1, v{T+9}
    v_mov_b32 v{T+6}, 0x44444444
    v_mov_b32 v{T+8}, 0xeeeeeeee
    v_cndmask_b32 v{vIdx}, v{T+6}, v{T+8}, vcc
    v_cmp_gt_u32 vcc, {0 if cfg.ones_rows == 0 else 2}, v{T+9 if cfg.ones_rows == 8 else T+1}
    v_mov_b32 v{T+6}, 0x3f803f80
    v_mov_b32 v{vChk}, {'-1' if cfg.force_slow else '0'}
    v_cndmask_b32 v{T+6}, 0, v{T+6}, vcc
    v_lshlrev_b32 v{vCnt}, 2, v{T+4}
    v_add_u32 v{vCnt}, 0x4000, v{vCnt}
    v_mov_b32 v{vOne}, v{T+6}
    v_mov_b32 v{vOne+1}, v{T+6}
    v_mov_b32 v{vOne+2}, v{T+6}
    v_mov_b32 v{vOne+3}, v{T+6}
    v_mov_b32 v{vCone}, 1
    v_mov_b32 v{vPoll}, 0
    s_mov_b32 vcc_lo, 0xff00ff00              ; lanes with (l & 8), used by the output selects
    s_mov_b32 vcc_hi, 0xff00ff00
"""
    return h

def tail(cfg):
    lim = (127 + cfg.limit_exp) << 23
    t = ""
    if cfg.stamps == "skew":
        t += """    s_mov_b32 s58, 256
    s_mov_b32 s59, 0x20000
    s_not_b32 s64, s60
    v_mov_b32 v64, s64
    v_mov_b32 v60, 0
    s_mov_b64 exec, 1
    s_cmp_lg_u32 s3, 0
    s_cbranch_scc1 L_sk1
    buffer_atomic_umax v64, v60, s[56:59], 0 offen
    s_waitcnt vmcnt(0)
L_sk1:
    s_memrealtime s[72:73]
    s_waitcnt lgkmcnt(0)
    s_sub_u32 s72, s72, s60
    s_cmp_lt_u32 s72, 8000
    s_cbranch_scc1 L_sk1
    buffer_load_dword v64, v60, s[56:59], 0 offen sc0 sc1
    s_waitcnt vmcnt(0)
    v_readfirstlane_b32 s64, v64
    s_nop 4
    s_not_b32 s64, s64
L_sk2:
    s_memrealtime s[72:73]
    s_waitcnt lgkmcnt(0)
    s_sub_u32 s72, s72, s64
    s_cmp_lt_u32 s72, 10000
    s_cbranch_scc1 L_sk2
    s_mov_b64 exec, -1
"""
    elif cfg.stamps == "spin":
        if not getattr(cfg, "stamp_steps", []): t += "    s_waitcnt vmcnt(0)\n    s_memrealtime s[64:65]\n"
        t += f"""    s_waitcnt lgkmcnt(0)
    {"s_sub_u32 s64, s66, s64" if len(getattr(cfg, "stamp_steps", [])) == 2 else "s_sub_u32 s64, s64, s60"}
    s_mul_i32 s64, s64, {getattr(cfg, "spin_mul", 0)}
    s_add_u32 s64, s64, 10000
L_spin:
    s_memrealtime s[72:73]
    s_waitcnt lgkmcnt(0)
    s_sub_u32 s72, s72, s60
    s_cmp_lt_u32 s72, s64
    s_cbranch_scc1 L_spin
"""
    elif cfg.stamps:
        e0 = 88 if cfg.stamps == "c16" else 72
        t += f"""    s_memrealtime s[{e0}:{e0+1}]
    s_waitcnt vmcnt(0)
    s_memrealtime s[{e0+2}:{e0+3}]
    s_mov_b32 s58, 0x10000000
    s_mov_b32 s59, 0x20000
    s_lshl_b32 s46, s2, 2
    s_add_u32 s46, s46, s3
    s_lshl_b32 s46, s46, 6
    s_waitcnt lgkmcnt(0)
"""
        for i in range(16): t += f"    v_mov_b32 v{64+i}, s{60+(2*i if cfg.stamps == 'c16' else i)}\n"
        t += "    v_mov_b32 v60, 0\n    s_mov_b64 exec, 1\n"
        if cfg.stamps == "dbg":
            t += "    s_mov_b32 s58, 256\n"
            for i in range(8):
                t += f"    v_not_b32 v{65+2*i}, v{64+2*i}\n"
            for i in range(16): t += f"    buffer_atomic_umax v{64+i}, v60, s[56:59], 0 offen offset:{4*i}\n"
        else:
          for i in range(4): t += f"    buffer_store_dwordx4 v[{64+4*i}:{67+4*i}], v60, s[56:59], s46 offen offset:{16*i}\n"
        t += "    s_mov_b64 exec, -1\n"
    t += f"""    v_cmp_lt_u32 vcc, {lim:#x}, v{vChk}
    s_nop 4
    s_cbranch_vccnz L_slow
L_end:
    s_endpgm
"""
    for n in cfg.spins:
        t += f"""L_spin{n}:
    ds_read_b32 v{vPoll}, v{vCnt}
    s_waitcnt lgkmcnt(0)
    v_readfirstlane_b32 s{sPol}, v{vPoll}
    s_nop 3
    s_cmp_lt_u32 s{sPol}, s{sExp}
    s_cbranch_scc1 L_spin{n}
    s_branch L_back{n}
"""
    S0, S1, M, T = 16, 20, 24, 25
    vQ = vQd; vKb = vKr + 2
    q = lambda ds: at(aQ + 4 * ds, 4)
    k = lambda j, ds: at(aK + j * 16 + 4 * ds, 4)
    t += f"""; Fallback: a row sum left [2^-{cfg.limit_exp}, 2^{cfg.limit_exp}] (or is not finite), so exp without an offset was not safe.
; This wave recomputes its 256 rows subtracting the true row maximum.  K is rebuilt in LDS; V goes through a private 8 KiB.
L_slow:
    s_waitcnt vmcnt(0) lgkmcnt(0)
    s_barrier                                 ; the other waves are done with LDS (ended or here)
    s_mov_b32 s{sQo}, 0
    s_lshl_b32 s{sTmp}, s{sWave}, 12
    s_lshl_b32 s{sTmp+1}, s{sWave}, 13
    s_add_u32 s{sTmp+2}, s{sTmp+1}, 0x20000
    s_add_u32 s{sTmp+3}, s{sTmp+2}, 4096
    v_subrev_u32 v{vD0}, s{sTmp}, v{vD0}
    v_bfe_u32 v{T}, v{vKl}, 4, 4              ; l & 15
    v_lshrrev_b32 v{T+1}, 8, v{vKl}           ; l >> 4
    v_lshlrev_b32 v{vQ}, 4, v{T+1}
    v_lshl_add_u32 v{vQ}, v{T}, 8, v{vQ}      ; Q rows in MFMA layout
    v_xor_b32 v{T+1}, v{T}, v{T+1}
    v_and_b32 v{T+1}, 7, v{T+1}
    v_lshlrev_b32 v{T+1}, 4, v{T+1}
    v_lshl_add_u32 v{vKw}, v{T}, 8, v{T+1}
    v_xor_b32 v{vKw+1}, 64, v{vKw}
    v_lshrrev_b32 v{T+1}, 6, v{vKl}           ; 4g+r
    v_lshlrev_b32 v{T+1}, 8, v{T+1}
    v_lshl_add_u32 v{T+1}, v{T}, 4, v{T+1}
    v_add_u32 v{vV}, s{sTmp+2}, v{T+1}
    v_xor_b32 v{vV+1}, 64, v{vV}
    v_xor_b32 v{vV+2}, 128, v{vV}
    v_xor_b32 v{vV+3}, 192, v{vV}
"""
    t += f"""    s_sub_u32 s{sK_}, s{sK_}, s{sTmp}
    s_subb_u32 s{sK_+1}, s{sK_+1}, 0
    s_mov_b32 s{sK_+2}, 0x20000
    s_mov_b32 s{sCnt}, 0
L_skld:
"""
    for i in range(4): t += f"    buffer_load_dwordx4 {vt(vOa+4*i,4)}, v{vKl}, s[{sK_}:{sK_+3}], s{sCnt} offen offset:{i*1024}\n"
    t += "    s_waitcnt vmcnt(0)\n"
    for x in range(vOa, vOa + 16):
        t += f"""    v_lshlrev_b32 v{T}, 16, v{x}
    v_and_b32 v{x}, s{sMask}, v{x}
    v_mul_f32 v{T}, s{sScale}, v{T}
    v_mul_f32 v{x}, s{sScale}, v{x}
    v_cvt_pk_bf16_f32 v{x}, v{T}, v{x}
"""
    for i in range(4): t += f"    ds_write_b128 v{vKw+(i&1)}, {vt(vOa+4*i,4)} offset:{(i>>1)*128}\n"
    t += f"""    s_waitcnt lgkmcnt(0)
    v_add_u32 v{vKw}, 4096, v{vKw}
    v_add_u32 v{vKw+1}, 4096, v{vKw+1}
    s_add_u32 s{sCnt}, s{sCnt}, 4096
    s_cmp_lt_u32 s{sCnt}, 0x20000
    s_cbranch_scc1 L_skld
"""
    t += "L_sblk:\n"
    for ds in range(4): t += f"    buffer_load_dwordx4 {q(ds)}, v{vQ}, s[{sQ_}:{sQ_+3}], s{sQo} offen offset:{ds*64}\n"
    t += f"""    v_mov_b32 v{M}, 0xff800000
    v_mov_b32 v{vKb}, v{vKr}
    v_mov_b32 v{vKb+1}, v{vKr+1}
    s_mov_b32 s{sCnt}, 32
    s_waitcnt vmcnt(0)
L_smax:
"""
    for ds in range(4): t += f"    ds_read_b128 {k(0,ds)}, v{vKb+(ds&1)} offset:{ds*1024}\n"
    t += "    s_waitcnt lgkmcnt(0)\n"
    for ds in range(4): t += f"    v_mfma_f32_16x16x32_bf16 {vt(S0,4)}, {k(0,ds)}, {q(ds)}, {'0' if ds == 0 else vt(S0,4)}\n"
    t += f"""    s_nop 7
    v_max3_f32 v{M}, v{M}, v{S0}, v{S0+1}
    v_max3_f32 v{M}, v{M}, v{S0+2}, v{S0+3}
    v_add_u32 v{vKb}, 4096, v{vKb}
    v_add_u32 v{vKb+1}, 4096, v{vKb+1}
    s_sub_u32 s{sCnt}, s{sCnt}, 1
    s_cmp_lg_u32 s{sCnt}, 0
    s_cbranch_scc1 L_smax
    v_mov_b32 v{T}, v{M}
    s_nop 1
    v_permlane16_swap_b32 v{M}, v{T}
    s_nop 1
    v_max_f32 v{M}, v{M}, v{T}
    v_mov_b32 v{T}, v{M}
    s_nop 1
    v_permlane32_swap_b32 v{M}, v{T}
    s_nop 1
    v_max_f32 v{M}, v{M}, v{T}
"""
    for r in range(4): t += f"    v_mov_b32 v{vL+r}, 0\n"
    for r in range(32): t += f"    v_mov_b32 v{vOa+r}, 0\n"
    t += f"""    v_mov_b32 v{vKb}, v{vKr}
    v_mov_b32 v{vKb+1}, v{vKr+1}
    s_mov_b32 s{sCnt}, 0
L_skey:
    s_mov_b32 m0, s{sTmp+2}
    s_mov_b32 s{sTmp+5}, s{sCnt}
    s_add_u32 s{sTmp+4}, s{sTmp+5}, 4096
"""
    for i in range(4): t += f"    buffer_load_dwordx4 v{vD0}, s[{sV_}:{sV_+3}], s{sTmp+5} offen offset:{i*1024} lds\n"
    t += f"    s_mov_b32 m0, s{sTmp+3}\n    s_nop 0\n"
    for i in range(4): t += f"    buffer_load_dwordx4 v{vD0}, s[{sV_}:{sV_+3}], s{sTmp+4} offen offset:{i*1024} lds\n"
    for j in range(2):
        for ds in range(4): t += f"    ds_read_b128 {k(j,ds)}, v{vKb+(ds&1)} offset:{j*4096+ds*1024}\n"
    t += "    s_waitcnt vmcnt(0) lgkmcnt(0)\n"
    for db in range(8):
        for h in range(2): t += f"    ds_read_b64_tr_b16 {at(aV+db*4+2*h,2)}, v{vV+(db>>1)} offset:{h*4096+(db&1)*8}\n"
    for j, S in enumerate((S0, S1)):
        for ds in range(4): t += f"    v_mfma_f32_16x16x32_bf16 {vt(S,4)}, {k(j,ds)}, {q(ds)}, {'0' if ds == 0 else vt(S,4)}\n"
    t += "    s_nop 7\n"
    for r in range(8): t += f"    v_sub_f32 v{S0+r}, v{S0+r}, v{M}\n"
    for r in range(8): t += f"    v_exp_f32 v{S0+r}, v{S0+r}\n"
    t += "    s_nop 0\n"
    for r in range(4): t += f"    v_cvt_pk_bf16_f32 v{vP+r}, v{S0+2*r}, v{S0+2*r+1}\n"
    t += f"    v_add_u32 v{vKb}, 8192, v{vKb}\n    v_add_u32 v{vKb+1}, 8192, v{vKb+1}\n    s_waitcnt lgkmcnt(0)\n    s_nop 0\n"
    t += f"    v_mfma_f32_16x16x32_bf16 {vt(vL,4)}, {vt(vOne,4)}, {vt(vP,4)}, {vt(vL,4)}\n"
    for db in range(8): t += f"    v_mfma_f32_16x16x32_bf16 {vt(vOa+4*db,4)}, {at(aV+db*4,4)}, {vt(vP,4)}, {vt(vOa+4*db,4)}\n"
    t += f"""    s_add_u32 s{sCnt}, s{sCnt}, 8192
    s_cmp_lt_u32 s{sCnt}, 0x20000
    s_cbranch_scc1 L_skey
    s_nop 7
    v_rcp_f32 v{vR}, v{vL}
    s_nop 0
"""
    for r in range(32): t += f"    v_mul_f32 v{vOa+r}, v{vOa+r}, v{vR}\n"
    for db in range(8):
        o = vOa + 4 * db; d = vP + 2 * db
        t += f"    v_cvt_pk_bf16_f32 v{d}, v{o}, v{o+1}\n    v_cvt_pk_bf16_f32 v{d+1}, v{o+2}, v{o+3}\n"
    if cfg.store_x4:
        t += "    s_nop 1\n"
        for db in range(0, 8, 2):
            d = vP + 2 * db
            if not cfg.vperm: t += f"    v_permlane16_swap_b32 v{d}, v{d+2}\n    v_permlane16_swap_b32 v{d+1}, v{d+3}\n"
            t += f"    buffer_store_dwordx4 {vt(d,4)}, v{vQ}, s[{sO_}:{sO_+3}], s{sQo} offen offset:{db*32}\n"
    else:
        for db in range(8): t += f"    buffer_store_dwordx2 {vt(vP+2*db,2)}, v{vO}, s[{sO_}:{sO_+3}], s{sQo} offen offset:{db*32}\n"
    t += f"""    s_add_u32 s{sQo}, s{sQo}, 4096
    s_cmp_lt_u32 s{sQo}, 0x10000
    s_waitcnt vmcnt(0)
    s_cbranch_scc1 L_sblk
    s_endpgm
"""
    return t

HDR = """; Kernarg layout for this problem (48 bytes, ptrs only, base s[0:1]):
;   offset   0: d_in[0] q  shape=(16, 32, 512, 128) dtype=bfloat16
;   offset   8: d_in[1] k  shape=(16, 4, 512, 128) dtype=bfloat16
;   offset  16: d_in[2] v  shape=(16, 4, 512, 128) dtype=bfloat16
;   offset  24: d_out     shape=(16, 32, 512, 128) dtype=bfloat16
;   offset  32: d_debug   256 bytes
;   offset  40: d_ws      268435456 bytes workspace (unused)
; @launch grid=(256,1,1) block=(256,1,1) lds=163840
;
; GQA attention forward, out = softmax(q k^T / sqrt(128)) v.  Generated by my own scheduling script.
; * One workgroup per CU: 1024 q rows against the 512 keys of one (batch, kv head); each wave owns 256 rows and keeps
;   four 16-row blocks in flight, started two key tiles apart (a block walks the eight 64-key tiles cyclically).
; * v_mfma_f32_16x16x32_bf16 for S^T = K Q^T and O^T = V^T P^T; P goes from the S registers straight into the B operand.
;   K is multiplied by log2(e)/sqrt(128) once and stays in LDS (one tile in registers); V streams through a two-slot LDS
;   ring by LDS-DMA (one tile in registers) and is read with ds_read_b64_tr_b16; Q is staged through LDS.
; * Row sums come from one v_smfmac per block and tile (rows of ones with complementary 2:4 index patterns).
; * Waves meet through an arrive/poll counter in LDS (s_barrier in the first steps).
; * Softmax guard: softmax is invariant under a per-row shift, so the main path uses shift 0 and CHECKS every row sum l
;   at run time: l and 1/l must both be <= 2^32 (this also rejects inf and NaN).  Inside that range nothing overflowed and
;   recomputes all its rows subtracting the true row maximum.
"""

PAD = """; Instruction prefetch stops at 4 KiB boundaries: start the kernel on one (the harness puts 0x300 bytes in front of the label).
.p2align 12
.fill 832, 4, 0xbf800000
"""

def add_hops(cfg, text):
    import subprocess, re, os, tempfile
    lines = text.split("\n")
    i0 = lines.index(KN + ":"); i1 = lines.index("L_end:")
    tmp = tempfile.mkdtemp()
    src = "\n".join(lines).replace("@HOPS", "\n".join(["    s_nop 0"] * 9))
    lines = src.split("\n"); i1 = lines.index("L_end:")
    hop0 = text.split("\n").index("@HOPS")
    open(tmp + "/a.s", "w").write(src)
    subprocess.run(["clang", "-x", "assembler", "-target", "amdgcn-amd-amdhsa", "-mcpu=gfx950", "-c", tmp + "/a.s", "-o", tmp + "/a.o"], check=True)
    dis = subprocess.run(["llvm-objdump", "-d", "--mcpu=gfx950", tmp + "/a.o"], capture_output=True, text=True).stdout
    dis = dis[dis.index("<" + KN + ">:"):]
    sizes = [4 * len(m.group(1).split()) for m in re.finditer(r"// [0-9A-F]{12}: ([0-9A-F ]+)", dis)]
    isins = lambda l: l.startswith("    ") and not l.strip().startswith(";") and l.strip()
    out = lines[:i0 + 1]; addr = 0; k = 0; page = 1; j = i0 + 1
    def look(j, k, addr, page):
        cands = []
        while addr < page * 4096 + 64 and j < i1:
            if isins(lines[j]):
                addr += sizes[k]; k += 1
                if "mfma" in lines[j] and page * 4096 <= addr <= page * 4096 + 60:
                    nx = lines[j + 1].strip()
                    cands.append((0 if nx == "s_nop 0" else (1 if nx.startswith("v_") else 2), j))
                elif page * 4096 <= addr <= page * 4096 + 60 and lines[j].strip().startswith("v_"): cands.append((3, j))
            j += 1
        return min(cands) if cands else None
    plan = None
    while j < i1:
        l = lines[j]
        if plan is None and addr >= page * 4096 - 64:
            plan = look(j, k, addr, page)
            if plan is None: page_end = True
        out.append(l)
        if isins(l): addr += sizes[k]; k += 1
        if plan and plan[1] == j:
            out.append(f"L_hop{page}:"); out.append(f"    s_cbranch_execz @NEXT{page}@"); addr += 4
            if plan[0] == 0: j += 1; k += 1
            plan = None; page += 1
        j += 1
    out += lines[i1:]
    np_ = page - 1
    r = "\n".join(out)
    for p in range(1, np_ + 1): r = r.replace(f"@NEXT{p}@", f"L_hop{p+4}" if p + 4 <= np_ else "L_hback")
    rl = r.split("\n")
    rl[hop0:hop0 + 9] = ["    s_mov_b64 exec, 0                         ; warm the instruction cache: visit the first line of every code page"] + \
        [x for w in range(3) for x in (f"    s_cmp_eq_u32 s{sWave}, {w}", f"    s_cbranch_scc1 L_hop{w+1}")] + ["    s_branch L_hop4", "L_hback:", "    s_mov_b64 exec, -1"]
    return "\n".join(rl)

def full(cfg):
    body = generate(cfg)
    r = full2(cfg, body)
    if getattr(cfg, "spin_cyc", 0):
        r = r.replace("s_memrealtime s[64:65]", "s_memtime s[64:65]").replace("s_memrealtime s[66:67]", "s_memtime s[66:67]").replace("s_memrealtime s[62:63]", "s_memtime s[62:63]")
        r = r.replace("s_sub_u32 s64, s64, s60", "s_sub_u32 s64, s64, s62").replace("s_mul_i32 s64, s64, 0", "s_lshr_b32 s64, s64, 1")
    if cfg.stamps in ("cyc", "c16"): r = r.replace("s_memrealtime", "s_memtime")
    if cfg.stamps == "both":
        import re
        r = re.sub(r"    s_memrealtime s\[(\d+):(\d+)\]", lambda m: f"    s_memtime s[{m.group(1)}:{m.group(2)}]\n    s_memrealtime s[{int(m.group(1))+20}:{int(m.group(2))+20}]", r)
        for i in range(8): r = r.replace(f"v_mov_b32 v{65+2*i}, s{61+2*i}\n", f"v_mov_b32 v{65+2*i}, s{80+2*i}\n")
    if "@HOPS" in r: r = add_hops(cfg, r.replace("    @HOPS", "@HOPS"))
    return r

def full2(cfg, body):
    return HDR + f""".amdgcn_target "amdgcn-amd-amdhsa--gfx950"
.text
.globl {KN}
{PAD if cfg.align else ""}.p2align 8
.type {KN},@function
{KN}:
""" + head(cfg) + body + "\n" + tail(cfg) + f""".section .rodata,"a"
.p2align 6
.amdhsa_kernel {KN}
  .amdhsa_next_free_vgpr 512
  .amdhsa_next_free_sgpr 102
  .amdhsa_accum_offset 256
  .amdhsa_group_segment_fixed_size 0
  .amdhsa_kernarg_size 48
  .amdhsa_user_sgpr_count 2
  .amdhsa_user_sgpr_kernarg_segment_ptr 1
  .amdhsa_system_sgpr_workgroup_id_x 1
.end_amdhsa_kernel
"""

if __name__ == "__main__":
    cfg = Cfg()
    name = sys.argv[1]
    for a in sys.argv[2:]:
        k, v = a.split("=", 1)
        try: v = eval(v)
        except Exception: pass
        setattr(cfg, k, v)
    s = full(cfg)
    open(name, "w").write(s)
    tot = sum(v[0] for v in cfg.est.values())
    print(name, "est head", cfg.est_head, "total", tot, "mfma", sum(v[1] for v in cfg.est.values()), file=sys.stderr)
    print(" ".join(f"{s}:{v[0]}/{v[1]}" for s, v in cfg.est.items() if s < 16 or s >= 32), file=sys.stderr)
```

```python
import sys, math, struct
KN = "standalone__gqa_softmax__near_ridge_kernel"

class Cfg:
    sigma = (0, 2, 4, 6)
    beta = 0.85
    beta_small = 0.55
    ds_lat = 9
    mv_lat = 4
    store_x4 = True
    q_nt = "nt"
    st_pol = "sc0 sc1"
    k_pol = "nt"
    v_pol = ""
    v_pol0 = "nt"
    rot = 0
    split_from = 4
    split_min_u = 2
    arr_gap = 10
    vm_gap = 5
    smooth = True
    stamps = False
    code_pf = True
    plan = "K0 Q0 C K1 H W00 V0 S0 B r0 r1 R0 K2 S1@0.0 V1@0.0 Q1@0.5 K3@1.0 V2@1.5 R1@2.0 K4@2.0 Q2@2.3 V3@2.6 K5@3.0 V4@3.4 K6@3.b R2@3.b Q3@4.0 K7@4.b R3@5.b Q4@6.0"
    vperm = True
    st_last = "sc0 sc1"
    st_last_from = 38
    ones_rows = 8
    trunc = False
    fake_st = False
    fake_v = False
    fake_m0 = 0
    v_n0 = 8
    st_block = 0
    c_pol = ""
    st_first = None
    st_pair = False
    fetch_thr = 1
    fetch_slack = 1
    st_gap = 16
    st_gap_all = False
    pf2 = False
    x8 = True
    qr_asap = True
    full_until = 33
    kst = [(1, 0), (1, 1), (2, 0), (2, 1), (3, 0), (3, 1), (3, "P"), (3, 0)]
    jitter = None
    xor = None
    qlag = {}
    lags = {}
    tailpub = {33: [33, 34], 35: [35, 37]}
    align = True
    early_pf = True
    sigma0 = None
    loop_from = 8
    deep = True
    tail_dl = 1.0
    betas = {0: 0.95, 1: 0.9, 2: 0.8, 3: 0.8}
    arr_gap_small = 4
    k_up = 1
    force_slow = False
    nop_ds = True
    ds_gap = 2
    ds_cap = 1024
    kill_from = None
    pad = 0
    kill = ()
    limit_exp = 32

vQd, vO, vQr, vCnt, vD0, vD1, vChk = 1, 2, 3, 4, 5, 6, 7
vKl = 0
vV = 8
vS = 16
vL = 32
vR = 48
vKw = 50
vT = 52
NT = 5
vIdx = 57
vPoll = 58
vJ = 59
vKr = 60
vP = 64
vOa = 128
aQ, aKp, aVp, aK, aV = 0, 64, 128, 192, 224
vOne, vCone, vKp1, vO2, vO3 = 12, 6, 52, 56, 59
sPol = 40
TV = 4
TMPS = [44, 45, 46, 47, 56]
sQ_, sK_, sV_, sO_, sC_ = 12, 16, 20, 24, 28
sTile = 32
sM0 = 96
sQo, sOo, sCnt, sScale, sWave = 42, 43, 44, 45, 3
sTmp = 46
sMq, sExp, sMask, sPerm = 52, 53, 54, 55

VB, VSTR, KSH = 0x18000 - 32, 16384 + 8, 32
def vr(b, n=1): return [f"v{b+i}" for i in range(n)]
def ar(b, n=1): return [f"a{b+i}" for i in range(n)]
def vt(b, n): return f"v[{b}:{b+n-1}]"
def at(b, n): return f"a[{b}:{b+n-1}]"

class Op:
    def __init__(s, key, text, kind, reads, writes, cost=None, earliest=None, dummy=False, anchor=None, maxdl=None):
        s.key, s.text, s.kind, s.reads, s.writes = key, text, kind, list(reads), list(writes)
        s.cost = {"mfma": 0, "trans": 8, "valu": 4, "ds": 4, "dsw": 20, "load": 8, "dma": 8, "store": 12, "salu": 0, "bar": 0, "chk": 0}[kind] if cost is None else cost
        s.cnt = {"ds": "lgkm", "dsw": "lgkm", "load": "vm", "dma": "vm", "store": "vm"}.get(kind)
        s.earliest = earliest
        s.maxdl = maxdl
        s.dummy = dummy
        s.anchor = anchor
        s.preds = []; s.succs = []; s.win = None; s.pos = None; s.m = None
        s.prod = {}

def blockpos(cfg, s, u):
    s0 = (cfg.sigma0 or cfg.sigma)[u]
    if s0 <= s < s0 + 8: return (0, s - s0)
    if cfg.sigma[u] + 8 <= s < cfg.sigma[u] + 32: return divmod(s - cfg.sigma[u], 8)
    return (None, None)

def build(cfg, s0, s1, steady):
    sg = cfg.sigma
    NP = 4
    last = 32 + max(sg)
    def li(s, u): return (s - sg[u]) % 8 if steady else blockpos(cfg, s, u)[1]
    def qk_on(s, u): return li(s, u) is not None
    def pv_on(s, u): return li(s - 1, u) is not None
    def order_qk(s, kb):
        us = [u for u in range(4) if qk_on(s, u)]
        if kb == 3:
            f = [u for u in us if li(s, u) == 7]
            us = f + [u for u in us if u not in f]
        if kb == 0:
            f = [u for u in us if li(s, u) == 0]
            us = [u for u in us if u not in f] + f
        return us
    prog = []
    A = prog.append
    chain = 0
    pend_q = []
    def qload(key, earliest=None, dummy=False, alt=False):
        if alt:
            A(Op(key + ("m0",), f"s_add_u32 m0, s{sMq}, {0x8000 - KSH}", "salu", [], ["m0"]))
            for i in range(4):
                A(Op(key + (i,), f"buffer_load_dwordx4 v{vQd}, s[{sQ_}:{sQ_+3}], s{sQo} offen offset:{i*1024} {cfg.q_nt} lds".replace("  ", " "), "dma",
                     [f"s{sQo}", "m0"], [f"Qa{i}"], earliest=earliest))
            A(Op(key + ("inc",), f"s_add_u32 s{sQo}, s{sQo}, 4096", "salu", [f"s{sQo}"], [f"s{sQo}"]))
            return
        A(Op(key + ("m0",), f"s_mov_b32 m0, s{sMq}", "salu", [], ["m0"], dummy=dummy))
        for i in range(4):
            A(Op(key + (i,), f"buffer_load_dwordx4 v{vQd}, s[{sQ_}:{sQ_+3}], s{sQo} offen offset:{i*1024} {cfg.q_nt} lds".replace("  ", " "), "dma",
                 [f"s{sQo}", "m0"] + [f"Qrd{d}" for d in range(4)], [f"Qs{i}"], earliest=earliest, dummy=dummy))
        A(Op(key + ("inc",), f"s_add_u32 s{sQo}, s{sQo}, 4096", "salu", [f"s{sQo}"], [f"s{sQo}"], dummy=dummy))
    def qread(key, u, earliest=None, dummy=False, alt=False):
        for ds in range(4):
            d = aQ + 16 * u + 4 * ds
            if alt:
                A(Op(key + (ds,), f"ds_read_b128 {at(d,4)}, v{vQr} offset:{0x8000 - KSH + ds*64}", "ds", [f"Qa{i}" for i in range(4)], ar(d, 4) + [f"Qar{ds}"], earliest=earliest))
                continue
            A(Op(key + (ds,), f"ds_read_b128 {at(d,4)}, v{vQr} offset:{ds*64}", "ds", [f"Qs{i}" for i in range(4)], ar(d, 4) + [f"Qrd{ds}"], earliest=earliest, dummy=dummy))
    def kfrag(s, kb, ds):
        t = s % 8
        if (t, kb, ds) == (1, 0, 0): return ("v", vKp1)
        if t == 0 or (not steady and s >= 34): return ("a", aKp + kb * 16 + ds * 4)
        if not steady and s <= 4: return ("a", aK + kb * 16 + ds * 4)
        return ("a", aK + (kb & 1) * 16 + ds * 4)
    def vperm_(sv): return sv % 8 == TV and (steady or sv >= 8)
    def vfrag(sv, db):
        if sv % 8 == TV or (not steady and sv < TV): return aVp + db * 8
        if not steady and sv >= 34 and db >= 4: return aQ + (db - 4) * 8
        return aV + (db & 3) * 8
    rt = lambda f, n: f"{f[0]}[{f[1]}:{f[1]+n-1}]"
    rr = lambda f, n: [f"{f[0]}{f[1]+i}" for i in range(n)]
    def vslot(sv):
        if not steady and sv in (2, 3, 34, 35): return sv & 1
        if not steady and sv == 37: return 3
        return 2 + (((sv - TV - 1) % 8) & 1)
    def vprev(sv):
        if vslot(sv) < 2: return ["Kret67"] if sv > 8 else []
        p = sv - 1
        while p >= 0 and (vslot(p) != vslot(sv) or vperm_(p)): p -= 1
        return [f"Vret{p}"] if p >= 0 else []
    vissued = set()
    def vdma(sv, earliest=None):
        vissued.add(sv)
        A(Op(("m0", sv), f"s_mov_b32 m0, s{sM0 + vslot(sv)}", "salu", ["setup~"], ["m0"]))
        for i in range(4):
            A(Op(("dma", sv, i), f"buffer_load_dwordx4 v{vD0}, s[{sV_}:{sV_+3}], s{sTile + sv % 8} offen offset:{i*1024} {cfg.v_pol0 if (not steady and sv < cfg.v_n0) else cfg.v_pol} lds".replace("  ", " "), "dma",
                 ["m0"] + vprev(sv), [f"Vd{sv}_{i}"], earliest=earliest))
    kstage = {}
    def kregs(t):
        u = KST[t][0]; h = KST[t][1]
        if h == "P": return [vP + (ds >> 1) * 32 + u * 8 + (ds & 1) * 4 for ds in range(4)]
        return [vOa + (h * 4 + ds) * 16 + u * 4 for ds in range(4)]
    KST = cfg.kst
    if cfg.k_up == 8: KST = [(0, 0), (0, 1), (1, 0), (1, 1), (2, 0), (2, 1), (3, 0), (3, 1)]
    def kload(t, earliest=None):
        for ds, r in enumerate(kregs(t)):
            A(Op(("kld", t, ds), f"buffer_load_dwordx4 {vt(r,4)}, v{vKl}, s[{sK_}:{sK_+3}], s{sTile + t} offen offset:{ds*1024} {cfg.k_pol}".rstrip(), "load",
                 [], vr(r, 4), earliest=earliest))
    tmpc = [0]
    def kscale(t, earliest=None):
        for ds, r in enumerate(kregs(t)):
            for j in range(4):
                x = r + j; tm = TMPS[tmpc[0] % NT]; tmpc[0] += 1
                k = ("ksc", t, ds, j)
                A(Op(k + (0,), f"v_lshlrev_b32 v{tm}, 16, v{x}", "valu", vr(x), vr(tm), earliest=earliest))
                A(Op(k + (1,), f"v_and_b32 v{x}, s{sMask}, v{x}", "valu", vr(x), vr(x), earliest=earliest))
                A(Op(k + (2,), f"v_mul_f32 v{tm}, s{sScale}, v{tm}", "valu", vr(tm), vr(tm)))
                A(Op(k + (3,), f"v_mul_f32 v{x}, s{sScale}, v{x}", "valu", vr(x), vr(x)))
                A(Op(k + (4,), f"v_cvt_pk_bf16_f32 v{x}, v{tm}, v{x}", "valu", vr(tm) + vr(x), vr(x)))
            tl = 3 if t == 0 else t
            if t == 4 and ds == 0:
                A(Op(("kwa", t, ds), f"v_add_u32 v{vKw}, {0x10000 - KSH}, v{vKw}", "valu", vr(vKw), vr(vKw)))
            a = vKw + (1 if (t == 1 and ds < 2) else 0)
            A(Op(("kw", t, ds), f"ds_write_b128 v{a}, {vt(r,4)} offset:{(tl & 3) * 16384 + (ds >> 1) * 4096 + (ds & 1) * 128 - (KSH if tl < 4 else 0)}", "dsw",
                 vr(r, 4) + vr(a) + (["K0dead"] if t in (3, 4) else []) + (["Qadead"] if (t == 2 and " q1" in cfg.plan) else []) + ([f"Vret{v}" for v in range(2, t - 3)] if t >= 6 and cfg.deep else []), [f"Kw{t}_{ds}"]))
    nmf = [0]
    kpub = set()
    def kread1(s, t, kb):
        for ds in range(4):
            perm = t == 0 or (t, kb, ds) == (1, 0, 0)
            if perm and (steady or s > 7): continue
            d = kfrag(s, kb, ds); tl = 3 if t == 0 else (4 if perm else t)
            A(Op(("kr", s, kb, ds), f"ds_read_b128 {rt(d,4)}, v{vKr + 2 * (tl >> 2) + (ds & 1)} offset:{(tl & 3) * 16384 + kb * 4096 + ds * 1024 - (KSH if tl < 4 else 0)}", "ds",
                 [] if (steady or s > 7) else [f"Kok{t}"], rr(d, 4) + ([] if not perm else [f"Kr0_{kb}_{ds}" if t == 0 else "Kr1"])))
    kdone0 = set(); kscaled = []
    later = {}
    if not steady:
        H = (-1, 0)
        def issue(item, when):
            n0 = len(prog)
            n = int(item[1:]) if item[1:].isdigit() else None
            if item[0] == "K": kload(n, when)
            elif item[0] == "Q": qload(("q0", n) if n < 4 else ("q", 8, 0), when)
            elif item[0] == "R": qread(("qr0", n), n, when)
            elif item[0] == "q": qload(("q0", n), when, alt=True)
            elif item[0] == "x": qread(("qr0", n), n, when, alt=True)
            elif item[0] == "V": vdma(n, when)
            elif item[0] == "S": kscale(n, when); kscaled.append(n)
            elif item[0] == "r": kread1(0, 0, n); kdone0.add(n)
            elif item[0] == "W":
                A(Op(("wt", 0, item), "s_nop 0", "valu", vr(kregs(int(item[1]))[int(item[2])], 4), []))
            elif item[0] == "P":
                A(Op(("cpf", 1), f"buffer_load_dword v{vJ}, v{vJ}, s[{sC_}:{sC_+3}], 0 offen {cfg.c_pol}".rstrip(), "load", [], ["junk"], earliest=when))
            elif item[0] == "H":
                A(Op(("hop", 0), "@HOPS", "valu", [], [], earliest=when, maxdl=when))
            elif item[0] == "T":
                A(Op(("ts", 0, item), f"s_memrealtime s[{64+2*n}:{65+2*n}]", "valu", [], []))
            elif item[0] == "X":
                A(Op(("wt", 0, item), "s_nop 0", "valu", [f"Qs{i}" for i in range(4)], []))
            elif item[0] == "B":
                pub = [t for t in kscaled if t not in kpub]; kpub.update(pub)
                A(Op(("bar", -1), "s_barrier", "bar", ["Czero"] + [f"Kw{t}_{ds}" for t in pub for ds in range(4)], [f"Kok{t}" for t in pub], anchor=H))
            elif item[0] == "C":
                pf = f"buffer_load_dword v{vJ}, v{vJ}, s[{sC_}:{sC_+3}], 0 offen {cfg.c_pol}".rstrip()
                if cfg.early_pf:
                    A(Op(("cpf", 0), head2(cfg).split("@CPF")[1].strip(), "valu", [], [], earliest=when, cost=300))
                elif cfg.pf2:
                    p1 = f"""    s_lshr_b32 s{sTmp+4}, s{sWave}, 1
    s_lshl1_add_u32 s{sTmp+4}, s2, s{sTmp+4}
    s_lshl_b32 s{sTmp+4}, s{sTmp+4}, 7
    v_and_b32 v{vS+15}, 0x70, v{vKl}
    buffer_load_dword v{vS+15}, v{vS+15}, s[{sC_}:{sC_+3}], s{sTmp+4} offen"""
                    A(Op(("cpf", 0), head2(cfg).replace("@CPF", p1).strip(), "load", [], vr(vS + 15), earliest=when, cost=300))
                elif " P" in cfg.plan: A(Op(("cpf", 0), head2(cfg).replace("@CPF\n", "").strip(), "valu", [], [], earliest=when, cost=300))
                else: A(Op(("cpf", 0), head2(cfg).replace("@CPF", "    " + pf).strip(), "load", [], ["junk"], earliest=when, cost=300))
                A(Op(("setup", 0), "s_nop 0", "valu", [], ["setup~", f"s{sExp}"]))
                A(Op(("cz", 1), f"ds_write_b32 v{vCnt}, v{vPoll}", "dsw", [], ["Czero"], cost=8))
            if when == H:
                for x in prog[n0:]: x.maxdl = H
        for item in cfg.plan.split():
            if "@" not in item: issue(item, H)
            else:
                it, pos = item.split("@"); st, fr = pos.split(".")
                later.setdefault(int(st), []).append((it, fr))
    for s in range(s0, s1):
        t = s % 8
        uq = [u for u in range(4) if qk_on(s, u)]
        up = order_qk(s - 1, 3) if (steady or s > 0) else []
        up = [u for u in up if pv_on(s, u)]
        qk = [(kb, u) for kb in range(4) for u in order_qk(s, kb)]
        if not steady and s in cfg.qlag:
            qk.sort(key=lambda c: (c[0] + (cfg.qlag[s] + 0.5 if (li(s, c[1]) == 0 and c[1] > 0) else 0)))
        pv = []
        fin = [u for u in up if li(s - 1, u) == 7]
        ones_order = fin + [u for u in up if u not in fin]
        for db in range(8):
            for u in up: pv.append(("pv", db, u))
        npv = len(pv)
        ins = {}
        for i, u in enumerate(ones_order):
            if u in fin: p = len(up)
            else: p = len(up) + (npv - len(up)) * i // max(1, len(ones_order))
            ins.setdefault(p, []).append(("one", 0, u))
        pv2 = []
        for i, c in enumerate(pv):
            pv2 += ins.get(i, []); pv2.append(c)
        pv = pv2
        seq = []
        if qk:
            j = 0
            lag = 1 if len(uq) <= 2 and pv else 0
            if not steady and s in cfg.lags: lag = cfg.lags[s]
            for i, c in enumerate(qk):
                seq.append(("qk",) + c)
                tgt = math.ceil(max(0, i + 1 - lag) * len(pv) / (len(qk) - lag))
                while j < tgt: seq.append(pv[j]); j += 1
        else:
            seq = pv
        nm = sum({"qk": 4, "pv": 2, "one": 1}[c[0]] for c in seq)
        beta = cfg.beta if len(uq) >= 3 else cfg.beta_small
        barpos = int(beta * nm)
        if not steady and s in cfg.betas: barpos = int(cfg.betas[s] * nm)
        vdone = set(); kdone = set(kdone0) if (s == 0 and not steady) else set(); bar_done = False
        Pw = vP + 32 * (s & 1); Pr = vP + 32 * ((s - 1) & 1)
        def vreads(db):
            if db in vdone or vperm_(s - 1): return
            vdone.add(db)
            for ks in range(2):
                for h in range(2):
                    d = vfrag(s - 1, db) + ks * 4 + h * 2
                    A(Op(("vr", s, db, ks, h), f"ds_read_b64_tr_b16 {at(d,2)}, v{vV+(db>>1)} offset:{vslot(s-1)*VSTR + ks*4096 + h*2048 + (db&1)*8}", "ds",
                         [f"Vok{s-1}"], ar(d, 2) + [f"Vr{s-1}_{db}_{ks}_{h}"]))
        def kreads(kb):
            if kb in kdone: return
            kdone.add(kb); kread1(s, t, kb)
        def barrier():
            rd = []; wr = []
            pubv, retv, nxt = [s], [s - 1], [s + 1]
            if vperm_(s + 1): retv = []; nxt = []
            if vperm_(s): pubv = []; retv = [s - 2, s - 1]
            if vperm_(s - 1): retv = []
            if not steady:
                retv = {1: [], 2: [0], 3: [1], 4: [2], 5: [3, 4], 34: []}.get(s, retv)
                if s >= 33:
                    if s not in cfg.tailpub: return
                    pubv = cfg.tailpub[s]
                    if s > 33: retv = []; nxt = []
                nxt = {0: [], 1: [], 2: [4], 3: [5], 4: [], 32: [33, 34, 35], 33: [37], 34: []}.get(s, nxt)
                if s == 32: wr.append("Kret67")
                nxt = [v for v in nxt if v < last and v not in vissued and not any(it == f"V{v}" for l in later.values() for it, _ in l)]
            for v in retv:
                if v < 0: continue
                if v == s - 1:
                    for db in range(8): vreads(db)
                rd += [f"Vr{v}_{db}_{ks}_{h}" for db in range(8) for ks in range(2) for h in range(2)]
                wr.append(f"Vret{v}")
            for v in pubv:
                assert steady or v in vissued, v
                rd += [f"Vd{v}_{i}" for i in range(4)]; wr.append(f"Vok{v}")
            if not steady and s + 1 <= 7 and s + 1 not in kpub:
                if s + 1 not in kscaled: kscale(s + 1, ((s - 1, "bar") if s >= 1 else (-1, 0))); kscaled.append(s + 1)
                kpub.add(s + 1)
                rd += [f"Kw{s+1}_{ds}" for ds in range(4)]; wr.append(f"Kok{s+1}")
            if not steady and s == 0 and " q1" in cfg.plan:
                rd += [f"Qar{ds}" for ds in range(4)]; wr.append("Qadead")
            if not steady and s == 1:
                rd += [f"Kr0_{kb}_{ds}" for kb in range(4) for ds in range(4)]; wr.append("K0dead")
                rd.append("Kr1")
            if (steady or s >= cfg.split_from) and len(uq) >= cfg.split_min_u:
                ag = cfg.arr_gap if len(uq) >= 3 else cfg.arr_gap_small
                A(Op(("arr", s), f"ds_add_u32 v{vCnt}, v{vCone}", "dsw", rd, ["Carr"], cost=8, anchor=(s, "bar", -ag - cfg.ds_lat - 2)))
                A(Op(("exp", s), f"s_add_u32 s{sExp}, s{sExp}, 4", "salu", [f"s{sExp}"], [f"s{sExp}"]))
                A(Op(("pol", s), f"ds_read_b32 v{vPoll}, v{vCnt}", "ds", ["Carr~"], vr(vPoll), anchor=(s, "bar", -cfg.ds_lat - 2)))
                A(Op(("cmp", s), f"v_readfirstlane_b32 s{sPol}, v{vPoll}", "valu", vr(vPoll), [f"s{sPol}"], anchor=(s, "bar", -3)))
                A(Op(("sc", s), f"s_cmp_lt_u32 s{sPol}, s{sExp}", "bar", [f"s{sPol}", f"s{sExp}"], ["scc"], anchor=(s, "bar", -1)))
                A(Op(("bar", s), f"s_cbranch_scc1 L_spin{s if (not steady and (s < cfg.loop_from or s >= 32)) else 16 + s % 8}", "bar", ["scc"] + vr(vPoll) + [f"s{sExp}", f"s{sPol}"], wr, anchor=(s, "bar")))
            else:
                A(Op(("bar", s), "s_barrier", "bar", rd, wr, anchor=(s, "bar")))
            for v in nxt: vdma(v, None)
            for it, fr in later.get(s, []):
                if fr == "b": issue(it, (s, "bar"))
        todo_items = [(it, int(fr) / 10 ** len(fr)) for it, fr in later.get(s, []) if fr != "b"]
        mcount = 0
        for c in seq:
            if not bar_done and mcount >= barpos:
                barrier(); bar_done = True
            while todo_items and mcount >= todo_items[0][1] * nm:
                issue(todo_items.pop(0)[0], (s, "off", mcount))
            if c[0] == "qk":
                _, kb, u = c
                kreads(kb)
                if kb == 0 and li(s, u) == 0 and (steady or s - sg[u] >= 8):
                    qread(("qr", s, u), u, earliest=None if (steady or qk_on(s - 1, u)) else (s - 1, "frac", 0.75))
                    un = (u + 1) % 4; sn = s + (sg[un] - sg[u]) % 8
                    pend_q.append((("q", sn, un), not steady and sn - sg[un] >= 8 * NP))
                    if True:
                        k_, d_ = pend_q.pop(); qload(k_, dummy=d_)
                S = vS + 4 * (chain % 4); chain += 1
                for ds in range(4):
                    kf = kfrag(s, kb, ds); qf = aQ + u * 16 + ds * 4
                    A(Op(("qk", s, kb, u, ds), f"v_mfma_f32_16x16x32_bf16 {vt(S,4)}, {rt(kf,4)}, {at(qf,4)}, {'0' if ds == 0 else vt(S,4)}", "mfma",
                         rr(kf, 4) + ar(qf, 4) + ([] if ds == 0 else vr(S, 4)), vr(S, 4)))
                for r in range(4):
                    A(Op(("ex", s, kb, u, r), f"v_exp_f32 v{S+r}, v{S+r}", "trans", vr(S + r), vr(S + r)))
                pd = Pw + u * 8 + kb * 2
                for r in range(2):
                    tx = f"v_perm_b32 v{pd+r}, v{S+2*r+1}, v{S+2*r}, s{sPerm}" if cfg.trunc else f"v_cvt_pk_bf16_f32 v{pd+r}, v{S+2*r}, v{S+2*r+1}"
                    A(Op(("cv", s, kb, u, r), tx, "valu", vr(S + 2 * r, 2), vr(pd + r)))
                mcount += 4
            elif c[0] == "pv":
                _, db, u = c
                vreads(db)
                first = li(s - 1, u) == 0
                o = vOa + db * 16 + u * 4
                for ks in range(2):
                    vf = vfrag(s - 1, db) + ks * 4; pf = Pr + u * 8 + ks * 4
                    z = first and ks == 0
                    A(Op(("pv", s, db, u, ks), f"v_mfma_f32_16x16x32_bf16 {vt(o,4)}, {at(vf,4)}, {vt(pf,4)}, {'0' if z else vt(o,4)}", "mfma",
                         ar(vf, 4) + vr(pf, 4) + ([] if z else vr(o, 4)), vr(o, 4)))
                mcount += 2
            else:
                _, _, u = c
                first = li(s - 1, u) == 0
                l = vL + 4 * u
                if first:
                    for r in range(2): A(Op(("lz", s, u, r), f"v_mov_b32 v{l+r}, 0", "valu", [], vr(l + r)))
                pf = Pr + u * 8
                A(Op(("on", s, u), f"v_smfmac_f32_16x16x64_bf16 {vt(l,4)}, {vt(vOne,4)}, {vt(pf,8)}, v{vIdx}", "mfma", vr(pf, 8) + vr(l, 2), vr(l, 4)))
                mcount += 1
        if not bar_done: barrier()
        for it, _ in todo_items: issue(it, (s, "off", mcount))
        if not steady and s == 31:
            qread(("qr", 32, 0), 0, dummy=True)
            qload(("q", 32 + sg[1], 1), dummy=True)
        if not steady and s == 7:
            A(Op(("vo2", 7), f"v_xor_b32 v{vO2}, 0x840, v{vO}", "valu", [], vr(vO2)))
            if cfg.full_until < 39: A(Op(("vo3", 7), f"v_cndmask_b32 v{vO3}, v{vO}, v{vO2}, vcc", "valu", vr(vO2) + ["junk"], vr(vO3)))
        for u in sorted(fin):
            l = vL + 4 * u; R = vR + 2 * (u & 1)
            DPP = "row_ror:8 row_mask:0xf bank_mask:0xf"
            pol = cfg.st_last if (not steady and s >= cfg.st_last_from) else cfg.st_pol
            A(Op(("la", s, u), f"v_add_f32 v{l}, v{l}, v{l+1}", "valu", vr(l, 2), vr(l)))
            A(Op(("rc", s, u), f"v_rcp_f32 v{R}, v{l}", "trans", vr(l), vr(R)))
            full = cfg.full_until > 0 if steady else s < cfg.full_until
            if full: A(Op(("r2", s, u), f"v_mov_b32_dpp v{R+1}, v{R} {DPP}", "valu", vr(R), vr(R + 1)))
            A(Op(("ck", s, u), f"v_max3_u32 v{vChk}, v{vChk}, v{l}, v{R}", "valu", vr(vChk) + vr(l) + vr(R), vr(vChk)))
            for db in range(8):
                o = vOa + db * 16 + u * 4
                for r in range(4):
                    if full and db & 2: A(Op(("mu", s, u, db, r), f"v_mul_f32_dpp v{o+r}, v{o+r}, v{R+1} {DPP}", "valu", vr(o + r) + vr(R + 1), vr(o + r)))
                    else: A(Op(("mu", s, u, db, r), f"v_mul_f32 v{o+r}, v{o+r}, v{R}", "valu", vr(o + r) + vr(R), vr(o + r)))
                if db & 1:
                    e = o - 16
                    A(Op(("oc", s, u, db, 3), f"v_cvt_pk_bf16_f32 v{o+3}, v{o+2}, v{o+3}", "valu", vr(o + 2, 2), vr(o + 3)))
                    A(Op(("oc", s, u, db, 2), f"v_cvt_pk_bf16_f32 v{o+2}, v{o}, v{o+1}", "valu", vr(o, 2), vr(o + 2)))
                    A(Op(("oc", s, u, db, 0), f"v_cvt_pk_bf16_f32 v{o}, v{e}, v{e+1}", "valu", vr(e, 2), vr(o)))
                    A(Op(("oc", s, u, db, 1), f"v_cvt_pk_bf16_f32 v{o+1}, v{e+2}, v{e+3}", "valu", vr(e + 2, 2), vr(o + 1)))
                    if not full:
                        A(Op(("st", s, u, db), f"buffer_store_dwordx4 {vt(o,4)}, v{vO3}, s[{sO_}:{sO_+3}], s{sOo} offen offset:{(db-1)*32} {pol}".rstrip(), "store",
                             vr(o, 4) + [f"s{sOo}"] + vr(vO3), [], cost=20))
                if full and db & 3 == 3:
                    a = o - 32; x = o - 16
                    for r in range(4):
                        A(Op(("sx", s, u, db, r), f"v_cndmask_b32 v{x+r}, v{a+r}, v{o+r}, vcc", "valu", vr(a + r) + vr(o + r), vr(x + r)))
                    A(Op(("st", s, u, db - 1), f"buffer_store_dwordx4 {vt(x,4)}, v{vO}, s[{sO_}:{sO_+3}], s{sOo} offen offset:{(db>>2)*128} {pol}".rstrip(), "store",
                         vr(x, 4) + [f"s{sOo}"], [], cost=20))
                    for r in range(4):
                        A(Op(("sy", s, u, db, r), f"v_cndmask_b32 v{o+r}, v{o+r}, v{a+r}, vcc", "valu", vr(a + r) + vr(o + r), vr(o + r)))
                    A(Op(("st", s, u, db), f"buffer_store_dwordx4 {vt(o,4)}, v{vO2}, s[{sO_}:{sO_+3}], s{sOo} offen offset:{(db>>2)*128} {pol}".rstrip(), "store",
                         vr(o, 4) + [f"s{sOo}"] + vr(vO2), [], cost=20))
            if not steady and 32 <= s < last:
                for x in prog:
                    if x.key[:3] == ("st", s, u): x.maxdl = (s + 1, "frac", (x.key[3] + 1) / 8 * cfg.tail_dl)
            A(Op(("oinc", s, u), f"s_add_u32 s{sOo}, s{sOo}, 4096", "salu", [f"s{sOo}"], [f"s{sOo}"]))
    return prog

def link(cfg, prog):
    lastw = {}; readers = {}
    m = 0
    for x in prog:
        if x.kind == "mfma": x.m = m; m += 1
    for x in prog:
        e = {}
        def add(p, typ):
            if p is x: return
            soft = hard = 0
            if p.kind == "mfma":
                if x.kind == "mfma": return
                if typ in ("raw", "waw"): soft = cfg.mv_lat + (2 if p.key[0] == "on" else 0)
                elif x.kind in ("valu", "trans"): soft = 1
            elif x.kind == "mfma":
                hard = soft = 1
                if typ == "raw":
                    soft = cfg.ds_lat if p.kind == "ds" else (1 if p.kind == "load" else 2)
                elif p.kind == "store": soft = 2
            elif x.kind == "bar" or x.key[0] == "arr":
                hard = 1; soft = {"ds": cfg.ds_lat, "dsw": cfg.ds_lat, "dma": 2}.get(p.kind, 1)
            elif p.kind == "bar":
                soft = hard = 0
            elif p.kind == "salu":
                soft = 2; hard = 1 if x.kind != "salu" else 1
            elif x.kind == "salu":
                soft = hard = 1
            elif typ == "raw":
                if p.kind == "trans": soft = 1
                elif p.kind == "ds" and x.kind == "dma": soft = cfg.ds_lat
                elif p.kind == "valu" and x.kind in ("store", "dsw", "ds"): soft = 1
                elif p.kind == "valu" and "permlane" in x.text: soft = 2
                if "_dpp" in x.text: soft = 2
            else:
                if p.kind in ("valu", "trans") and x.kind in ("load", "ds", "dma"): soft = 1
                if p.kind in ("store", "dsw"): soft = 1
            o = e.get(id(p))
            e[id(p)] = (p, max(soft, o[1]) if o else soft, max(hard, o[2]) if o else hard)
        for r in x.reads:
            if r in lastw: add(lastw[r], "raw"); x.prod[r] = lastw[r].key
        for r in x.writes:
            if r in lastw: add(lastw[r], "waw")
            for p in readers.get(r, []): add(p, "war")
        for r in x.reads: readers.setdefault(r, []).append(x)
        for r in x.writes: lastw[r] = x; readers[r] = []
        x.preds = list(e.values())
        for p, so, ha in x.preds: p.succs.append((x, so, ha))
    return m

def semantic_check(cfg, prog):
    sg = cfg.sigma
    nq = 0; qblk = {}; nst = 0
    for x in prog:
        k = x.key; P = [x.prod.get(r) for r in x.reads]
        def exp(idx, f):
            for i in idx: assert P[i] is not None and f(P[i]), ("semantic", k, x.reads[i], P[i])
        if x.dummy: continue
        if k[0] == "ksc" and k[4] in (0, 1): exp([0], lambda p: p == ("kld", k[1], k[2]))
        if k[0] == "ksc" and k[4] in (2, 3): exp([0], lambda p: p == k[:4] + (k[4] - 2,))
        if k[0] == "ksc" and k[4] == 4: exp([0], lambda p: p == k[:4] + (2,)); exp([1], lambda p: p == k[:4] + (3,))
        if k[0] == "kw": exp(range(4), lambda p: p[:3] == ("ksc", k[1], k[2]) and p[4] == 4); exp(range(5, len(P)), lambda p: p[0] == "bar")
        if k[0] in ("bar", "arr"): exp(range(len(P)), lambda p: True)
        if k[0] == "kr" and k[1] < 8: exp([0], lambda p: p[0] == "bar")
        if k[0] == "vr": exp([0], lambda p: p[0] == "bar")
        if k[0] == "dma": exp([0], lambda p: p == ("m0", k[1])); exp(range(1, len(P)), lambda p: p[0] == "bar")
        if k[0] in ("q", "q0") and k[-1] == "inc": qblk[k[:-1]] = nq; nq += 1
        if k[0] in ("q", "q0") and isinstance(k[-1], int): exp([1], lambda p: p == k[:-1] + ("m0",))
        if k[0] in ("qr", "qr0"):
            u = k[-2]; n = 0 if k[0] == "qr0" else (k[1] - sg[u]) // 8
            exp(range(4), lambda p: qblk[p[:-1]] == 4 * n + u)
        if k[0] == "qk":
            _, s, kb, u, ds = k; n, i_ = blockpos(cfg, s, u); s0 = s - i_
            exp(range(4), lambda p: p[0] == "kr" and p[1] % 8 == s % 8 and p[2:] == (kb, ds))
            exp(range(4, 8), lambda p: p == (("qr0", u, ds) if n == 0 else ("qr", s0, u, ds)))
            exp(range(8, len(P)), lambda p: p == ("qk", s, kb, u, ds - 1))
        if k[0] == "ex": exp([0], lambda p: p == ("qk",) + k[1:4] + (3,))
        if k[0] == "cv": exp([0, 1], lambda p: p[:4] == ("ex",) + k[1:4])
        if k[0] == "pv":
            _, s, db, u, ks = k
            exp(range(4), lambda p: p[0] == "vr" and p[1] % 8 == s % 8 and p[2:4] == (db, ks))
            exp(range(4, 8), lambda p: p[0] == "cv" and p[1] == s - 1 and p[2] >> 1 == ks and p[3] == u)
            exp(range(8, len(P)), lambda p: p == (("pv", s, db, u, 0) if ks else ("pv", s - 1, db, u, 1)))
        if k[0] == "on":
            exp(range(8), lambda p: p[0] == "cv" and p[1] == k[1] - 1 and p[3] == k[2])
            exp([8, 9], lambda p: p[:3] == ("lz", k[1], k[2]) or p == ("on", k[1] - 1, k[2]))
        if k[0] == "la": exp([0, 1], lambda p: p == ("on", k[1], k[2]))
        if k[0] == "mu": exp([0], lambda p: p == ("pv", k[1], k[3], k[2], 1)); exp([1], lambda p: p[0] in ("rc", "r2") and p[1:] == k[1:3])
        if k[0] == "oc": exp([0, 1], lambda p: p[:3] == ("mu",) + k[1:3])
        if k[0] == "oinc":
            assert nst == 4 * blockpos(cfg, k[1] - 1, k[2])[0] + k[2], k
            nst += 1
    assert nst == 16

def step_of(x): return x.key[1]

def schedule(cfg, prog, nm, pins=None, lo=None, hi=None):
    pins = pins or {}; lo = lo or {}; hi = hi or {}
    start = {}; barw = {}
    cur = -1
    for x in prog:
        if x.kind == "mfma":
            cur = x.m; start.setdefault(x.key[1], x.m)
        elif x.key[0] == "bar": barw[x.key[1]] = cur
    def W(a):
        if a[0] == -1: return -1
        if a[1] == "bar": return barw.get(a[0], nm - 1) + (a[2] if len(a) > 2 else 0)
        if a[1] == "frac": return start[a[0]] - 1 + int(a[2] * (start.get(a[0] + 1, nm) - start[a[0]]))
        if a[1] == "off": return max(0, start[a[0]] - 1 + a[2])
        return start[a[0]] - 1
    fill = [x for x in prog if x.kind != "mfma"]
    for x in prog:
        if x.kind == "mfma": x.win = x.m
    for i, x in enumerate(prog): x.idx = i
    for x in reversed(fill):
        if x.key in pins: x.dls = x.dlh = pins[x.key][0]; continue
        if x.anchor: x.dls = x.dlh = W(x.anchor); continue
        ds = dh = nm - 1
        for y, so, ha in x.succs:
            if y.dummy and y.key not in pins: continue
            if y.kind == "mfma": ds = min(ds, y.m - so); dh = min(dh, y.m - ha)
            else: ds = min(ds, y.dls - so); dh = min(dh, y.dlh - ha)
        if x.key in hi: ds = min(ds, hi[x.key]); dh = min(dh, hi[x.key])
        if x.maxdl: ds = min(ds, W(x.maxdl)); dh = min(dh, W(x.maxdl))
        x.dls, x.dlh = ds, max(dh, -1)
    wins = {w: [] for w in range(-1, nm)}
    for x in fill:
        x.win = None
        x.lo = max(W(x.earliest) if x.earliest else -1, lo.get(x.key, -1))
        if x.anchor: x.lo = x.dlh
    pinned_by_win = {}
    for x in fill:
        if x.key in pins: pinned_by_win.setdefault(pins[x.key][0], []).append(x)
    todo = [x for x in fill if x.key not in pins and not x.dummy]
    todo.sort(key=lambda x: x.idx)
    credit = [0]
    bucket = [0]
    def nbytes(x):
        if x.kind in ("salu", "bar"): return 4
        if x.kind in ("valu", "trans"):
            return 8 if ("_dpp" in x.text or x.text.split()[0] in ("v_cvt_pk_bf16_f32", "v_perm_b32", "v_max3_u32") or "0x" in x.text) else 4
        return 8
    mfl = [x for x in prog if x.kind == "mfma"]
    def ready(x, w, soft):
        if w < x.lo: return False
        for p, so, ha in x.preds:
            if p.dummy and p.key not in pins: continue
            if p.win is None: return False
            lat = ha
            if soft and (p.kind not in ("load", "dma", "ds", "dsw") or x.kind == "dma"): lat = so
            if p.kind in ("store", "dsw") and soft: lat = max(lat, min(so, 1))
            if w == -1 or w == nm - 1: lat = 0
            if w < p.win + lat: return False
        return True
    for w in range(-1, nm):
        if w in pinned_by_win:
            for x in sorted(pinned_by_win[w], key=lambda x: pins[x.key][1]):
                x.win = w; wins[w].append(x)
        if pins and cfg._loop[0] <= w < cfg._loop[1]: continue
        cap = 8 if w >= 0 else 0
        if w >= 0 and mfl[w].key[0] == "on": cap = 4
        cap0 = cap
        rate = 8
        if cfg.smooth and pins and 0 <= w < nm - 1:
            acc = 0
            for x in sorted((x for x in todo[:900] if x.dls <= w + 120), key=lambda x: x.dls):
                acc += min(x.cost, 8)
                rate = max(rate, acc / (max(x.dls, w) - w + 1))
            credit[0] = credit[0] + rate - 8 if rate > 8.2 else 0
            credit[0] = min(credit[0], rate)
            extra = int(credit[0] // 4) * 4
            cap += extra
        used = 0
        cur = wins[w]
        def place(x):
            nonlocal used
            x.win = w; cur.append(x); used += min(x.cost, 8); todo.remove(x)
        while True:
            cand = [x for x in todo[:700] if ready(x, w, True) or (w >= x.dlh and ready(x, w, False))]
            if not cand: break
            z = [x for x in cand if x.kind in ("salu", "bar")]
            if z:
                place(z[0]); continue
            forced = [x for x in cand if x.dls <= w]
            if w == -1 or w == nm - 1:
                if not forced: break
                place(min(forced, key=lambda x: x.idx)); continue
            hasvalu_dep = lambda x: x.kind in ("ds", "dsw", "load", "dma", "store") and any(p.win == w and p.kind in ("valu", "trans") for p, _, _ in x.preds)
            hard_forced = forced
            if hard_forced:
                place(min(hard_forced, key=lambda x: (x.dls, x.idx))); continue
            if used >= cap: break
            nb = lambda x: 1024 if "b128" in x.text else 512
            dsb = sum(nb(x) for x in cur if x.kind == "ds")
            tight = rate > 8.2
            recent = (not tight) and any(y.kind == "ds" for k in range(1, cfg.ds_gap) for y in wins.get(w - k, []))
            vmk = ("load", "dma", "store")
            vgap = max(1, int(cfg.vm_gap * 16 / (8 + rate)))
            recent_vm = any(y.kind in vmk for k in range(0, vgap) for y in wins.get(w - k, []))
            sgap = max(1, int(cfg.st_gap * 16 / (8 + rate)))
            if any(y.kind == "store" for k in range(0, sgap) for y in wins.get(w - k, [])):
                cand = [x for x in cand if x.kind != "store" and not (cfg.st_gap_all and x.kind in vmk)]
            dcap = cfg.ds_cap * (8 + cap) // 16
            if cfg.st_block and any(-4 * cfg.vm_gap <= b - w <= cfg.st_block for b in barw.values()):
                cand = [x for x in cand if x.kind != "store"]
            cand = [x for x in cand if (x.kind != "ds" or (not recent and dsb + nb(x) <= dcap)) and not (x.kind in vmk and recent_vm and not (getattr(x, "nogap", False) and used == 0))]
            if not cand: break
            cand.sort(key=lambda x: (-99999 if (x.kind in ("load", "dma", "dsw", "store") or (cfg.qr_asap and x.key[0] == "qr")) else x.dls, x.idx))
            if cfg.fetch_thr is not None and not tight and bucket[0] >= cfg.fetch_thr and cap - used >= 8 and cand[0].dls > w + cfg.fetch_slack:
                tr = [x for x in cand if x.kind == "trans"]
                if tr: place(tr[0]); continue
            if cap - used >= 8:
                top = cand[0]
                if top.cost >= 8: place(top); continue
                small = [x for x in cand if x.cost == 4]
                big = [x for x in cand if x.cost >= 8]
                fits = lambda a, b: not (a.kind == "ds" and b.kind == "ds" and dsb + nb(a) + nb(b) > dcap)
                partner = any(fits(top, y) for y in small if y is not top) or any(y.cost == 4 and so == 0 and y.win is None and y.kind == "valu" and all(p.win is not None or p is top for p, _, _ in y.preds) for y, so, ha in top.succs)
                if partner or not big or (cap - used) % 8: place(top)
                else: place(big[0])
                continue
            small = [x for x in cand if x.cost == 4]
            if not small: break
            place(small[0])
        bts = 8 + sum(nbytes(x) for x in cur if x.kind not in ("salu", "bar")) + (4 if any(x.kind not in ("valu", "trans") for x in cur) else 2)
        bucket[0] = max(0, bucket[0] + bts - 22 * max(16, 8 + sum(x.cost for x in cur)) // 16)
        if w >= 0: credit[0] -= max(0, min(used, cap) - cap0)
        if w not in (-1, nm - 1):
            order = {"bar": 0, "salu": 0, "dma": 1, "load": 1, "store": 1, "dsw": 1, "ds": 1, "valu": 2, "trans": 2}
            lvl = {}
            for x in cur:
                l = order[x.kind]
                for p, _, _ in x.preds:
                    if p.win == w and p.kind != "mfma": l = max(l, lvl[id(p)])
                lvl[id(x)] = l
            cur.sort(key=lambda x: lvl[id(x)])
    assert not todo, [x.key for x in todo[:10]]
    for w, c in wins.items():
        for i, x in enumerate(c): x.pos = i
    return wins, start

def norm(key, d):
    return (key[0], key[1] + d) + tuple(key[2:])

class Ins:
    def __init__(s, text, op=None, kind=None):
        s.text, s.op, s.kind = text, op, kind or (op.kind if op else "salu")
        s.vm = None; s.lg = None

def generate(cfg):
    last = 32 + max(cfg.sigma)
    cfg.q_ahead = getattr(cfg, "q_ahead", 2)
    cfg.code_pf_n = getattr(cfg, "code_pf_n", 2)
    sp = build(cfg, 0, 56, True); nms = link(cfg, sp)
    swins, sstart = schedule(cfg, sp, nms)
    per = sstart[8] - sstart[0]
    ok = None
    for b in (16, 24, 32):
        same = all([x.text for x in swins[sstart[b] + i]] == [x.text for x in swins[sstart[b + 8] + i]] and
                   [norm(x.key, 8) for x in swins[sstart[b] + i]] == [x.key for x in swins[sstart[b + 8] + i]] for i in range(per))
        if same: ok = b; break
    assert ok is not None, "steady state not periodic"
    rp = build(cfg, 0, last + 1, False)
    E_ = cfg.loop_from
    off0 = sstart[ok + E_ - 8] - sstart[ok]
    inloop = {norm(x.key, 8 + 8 * it - ok) for it in range(3) for i in range(per) for x in swins[sstart[ok] + i] if it or i >= off0}
    rp = [x for x in rp if not x.dummy or x.key in inloop]
    nm = link(cfg, rp)
    semantic_check(cfg, rp)
    rstart = {}
    for x in rp:
        if x.kind == "mfma": rstart.setdefault(x.key[1], x.m)
    L0, L1 = rstart[E_], rstart[32]
    assert L1 - L0 == 3 * per - off0
    XP = L0 + per - off0
    cfg._loop = (L0, L1)
    pins = {}
    for it in range(3):
        for i in range(per):
            for x in swins[sstart[ok] + i]:
                if it or i >= off0: pins[norm(x.key, 8 + 8 * it - ok)] = (L0 - off0 + it * per + i, x.pos)
    keys = {x.key: x for x in rp}
    assert len(keys) == len(rp)
    missing = [k for k in pins if k not in keys]
    assert not missing, missing[:10]
    lo = {}; hi = {}
    mid = (keys[("qk", 20, 0, 0, 0)])
    midx = rp.index(mid)
    for i, x in enumerate(rp):
        if x.kind == "mfma" or x.key in pins: continue
        if i < midx: hi[x.key] = L0 - 1
        else: lo[x.key] = L1
    wins, start = schedule(cfg, rp, nm, pins, lo, hi)
    mf = [x for x in rp if x.kind == "mfma"]
    def stat(w):
        return L0 + (w - L0) % per if L0 <= w < L1 else w
    free = {}
    pre = {}
    for w in range(-1, nm):
        if stat(w) == w:
            free[w] = []
            if w not in (-1, nm - 1):
                for x in wins[w]:
                    if x.kind == "bar": free[w].append(Ins(x.text, x))
    def body(w):
        if w in (-1, nm - 1): return wins[w]
        return [x for x in wins[w] if x.kind not in ("salu", "bar")]
    def walk(fix):
        q = {"vm": [], "lgkm": []}
        pend = {}
        hist = {}
        changed = False
        def dowait(ins):
            for c, n in (("vm", ins.vm), ("lgkm", ins.lg)):
                if n is None: continue
                while len(q[c]) > n:
                    d = q[c].pop(0)
                    for r in d.writes:
                        if pend.get(r) is d: del pend[r]
        def need(x):
            n = {}
            for r in x.reads + x.writes:
                p = pend.get(r)
                if p is not None and not (r in x.writes and r not in x.reads and p.cnt == x.cnt):
                    n[p.cnt] = p if (p.cnt not in n or q[p.cnt].index(p) > q[p.cnt].index(n[p.cnt])) else n[p.cnt]
            return n
        def issue(x):
            if x.cnt:
                q[x.cnt].append(x)
                for r in x.writes:
                    if r != "stord": pend[r] = x
        def setw(ins, c, n):
            n = min(n, 62 if c == "vm" else 14)
            if c == "vm": ins.vm = n if ins.vm is None else min(ins.vm, n)
            else: ins.lg = n if ins.lg is None else min(ins.lg, n)
        def handle(x, w, pos, cands):
            nonlocal changed
            n = need(x)
            if not n: return
            assert fix, ("unwaited", x.key, {c: p.key for c, p in n.items()})
            changed = True
            for c, p in n.items():
                done = False
                for cw in cands:
                    if cw < 0 or cw == nm - 1 or cw not in hist: continue
                    snap = hist[cw][c]
                    if p not in snap: continue
                    fl = free[stat(cw)]
                    wi = [i for i in fl if i.kind == "wait"]
                    if not wi and fl and cw != cands[-1]: continue
                    if not wi:
                        wi = [Ins("", None, "wait")]; fl.insert(0, wi[0])
                    setw(wi[0], c, len(snap) - 1 - snap.index(p)); done = True; break
                if not done:
                    ins = pre.setdefault((stat(w), pos), Ins("", None, "wait"))
                    setw(ins, c, len(q[c]) - 1 - q[c].index(p))
                while p in q[c]:
                    d = q[c].pop(0)
                    for r in d.writes:
                        if pend.get(r) is d: del pend[r]
        for w in range(-1, nm):
            if w >= 0:
                if (stat(w), "m") in pre: dowait(pre[(stat(w), "m")])
                handle(mf[w], w, "m", [w - 1, w - 2])
            hist[w] = {c: list(v) for c, v in q.items()}
            hist.pop(w - 4, None)
            for ins in list(free[stat(w)]):
                if ins.kind == "wait": dowait(ins)
                elif ins.kind == "bar":
                    x = [y for y in wins[w] if y.kind == "bar"][0]
                    handle(x, w, "b", [w - 1, w - 2, w])
            for pos, x in enumerate(body(w)):
                if (stat(w), pos) in pre: dowait(pre[(stat(w), pos)])
                handle(x, w, pos, [w, w - 1])
                issue(x)
        return changed
    for _ in range(10):
        if not walk(True): break
    walk(False)
    for w in range(0, nm - 1):
        if stat(w) != w: continue
        for x in wins[w]:
            if x.kind != "salu": continue
            hiw = min([y.win - (1 if "m0" in x.writes or y.kind == "salu" else 0) for y, _, _ in x.succs if y.win is not None] + [w + 40, nm - 2])
            if L0 <= w < XP: hiw = min(hiw, XP - 3)
            elif XP <= w < L0 + per: hiw = min(hiw, L0 + per - 1)
            elif w < L0: hiw = min(hiw, L0 - 1)
            hiw = max(hiw, w)
            c = [k for k in range(w, hiw + 1) if not free[k]]
            c2 = [k for k in c if body(k) and body(k)[0].kind in ("ds", "dma", "load", "store", "dsw")]
            k = c2[0] if c2 else (c[0] if c else w)
            if any(i.text.startswith("s_cmp") for i in free[k]): free[k].insert(0, Ins(x.text, x))
            else: free[k].append(Ins(x.text, x))
    k = [k for k in range(XP - 2, XP) if not free[k]]
    k = k[0] if k else XP - 1
    if any(i.text.startswith("s_add") for kk in range(k + 1, XP) for i in free[kk]): k = XP - 1
    free[k].append(Ins(f"s_sub_u32 s{sCnt}, s{sCnt}, 1"))
    if cfg.nop_ds:
        for w in range(0, nm - 1):
            if stat(w) == w and not free[w] and body(w) and body(w)[0].kind in ("ds", "dma", "load", "store", "dsw"):
                free[w].append(Ins("s_nop 0", None, "nop"))
    def wtext(i):
        t = "s_waitcnt"
        if i.vm is not None: t += f" vmcnt({i.vm})"
        if i.lg is not None: t += f" lgkmcnt({i.lg})"
        return t
    code = {}
    for w in range(-1, nm):
        if stat(w) != w: continue
        l = []
        if w >= 0:
            if (w, "m") in pre: l.append(pre[(w, "m")])
            l.append(Ins(mf[w].text, mf[w]))
        l += free[w]
        for pos, x in enumerate(body(w)):
            if (w, pos) in pre: l.append(pre[(w, pos)])
            l.append(Ins(x.text, x))
        for i in l:
            if i.kind == "wait": i.text = wtext(i)
        code[w] = l
    def wcost(l, head=False):
        t = 0; base = 0; lastvalu = -99; blk = 8
        for i in l:
            if i.kind == "mfma": base = t; t += 4; blk = 12 if "smfmac" in i.text else 8; continue
            if i.kind in ("salu", "wait", "bar", "nop"): t += 4; continue
            if i.kind == "nopx": t += 4 * (int(i.text.split()[1]) + 1); continue
            if not head: t = max(t, base + blk)
            if i.kind in ("valu", "trans"): t += i.op.cost; lastvalu = t
            else:
                t = max(t, lastvalu + 8) + i.op.cost
        return t if head else max(t, base + 16)
    def hazards(fix):
        seq = []
        changed = False
        for w in range(-1, nm):
            l = code[stat(w)]
            j = 0
            while j < len(l):
                i = l[j]; x = i.op
                needn = 0
                if x is not None and x.kind not in ("salu", "bar"):
                    dist = 0
                    for p, st, pwin in reversed(seq):
                        y = p.op
                        if y is not None:
                            req = 0
                            raw = set(y.writes) & set(x.reads); waw = set(y.writes) & set(x.writes); war = set(y.reads) & set(x.writes)
                            if y.kind == "mfma":
                                if x.kind == "mfma":
                                    if set(y.writes) & set(x.reads[:8]): req = 8
                                elif raw or waw: req = 12 if y.key[0] == "on" else 8
                                elif war and x.kind in ("valu", "trans") and set(y.writes) & set(x.writes): req = 3
                            elif y.kind in ("valu", "trans"):
                                if raw and x.kind == "mfma": req = 2
                                if raw and ("permlane" in x.text or "_dpp" in x.text): req = 2
                                if raw and y.kind == "trans" and x.kind != "trans": req = max(req, 1)
                            elif y.kind in ("store", "dsw") and war and y.cost == 20: req = 2
                            elif y.kind == "salu" and "m0" in y.writes and x.kind == "dma": req = 1
                            if req - dist > needn: needn = req - dist; pw = pwin
                        dist += st
                        if dist >= 12: break
                if needn > 0:
                    assert fix, ("hazard", x.key)
                    for k in range(w, pw - 1, -1):
                        if k < 0: break
                        lk = code[stat(k)]
                        mi = [n for n, z in enumerate(lk) if z.kind == "mfma"][0]
                        places = []
                        if k > pw and (k < w or j > mi): places.append(mi + 1)
                        if k < w: places.append(len(lk))
                        ok_ = False
                        for pl in places:
                            tr = lk[:pl] + [Ins("s_nop 0", None, "nopx")] + lk[pl:]
                            if wcost(tr) == wcost(lk): lk[:] = tr; ok_ = True; break
                        if ok_: return True
                    l.insert(j, Ins(f"s_nop {needn-1}", None, "nopx")); changed = True
                    continue
                st = int(i.text.split()[1]) + 1 if i.text.startswith("s_nop") else 1
                seq.append((i, st, w)); seq = seq[-14:]
                j += 1
        return changed
    while hazards(True): pass
    lastw = {}; seen = set()
    for w in range(-1, nm):
        it = (w - L0) // per if L0 <= w < L1 else 0
        for i in code[stat(w)]:
            if i.op is None: continue
            x = keys[norm(i.op.key, 8 * it)]
            assert x.text == i.text, (x.text, i.text)
            assert x.key not in seen; seen.add(x.key)
            if not x.dummy:
                for r in x.reads:
                    assert lastw.get(r) == x.prod.get(r), ("dataflow", x.key, r, lastw.get(r), x.prod.get(r))
            for r in x.writes: lastw[r] = x.key
    assert all(x.key in seen or x.dummy for x in rp), [x.key for x in rp if x.key not in seen and not x.dummy][:5]
    est = {}
    for s in range(0, last + 1):
        e = rstart.get(s + 1, nm)
        est[s] = (sum(wcost(code[stat(w)]) for w in range(rstart[s], e)), (e - rstart[s]) * 16)
    cfg.est = est; cfg.est_head = wcost(code[-1], True)
    out = []
    cfg.spins = []
    E = out.append
    stamp_at = getattr(cfg, "stamp_steps", [])
    inv = {v: k for k, v in rstart.items()}
    for w in range(-1, nm):
        if stat(w) != w: continue
        if w == L0:
            if cfg.stamps and 7.9 in stamp_at:
                j = stamp_at.index(7.9); E(f"    s_memrealtime s[{64+2*j}:{65+2*j}]")
            E("L_loop:")
        if w in inv:
            E(f"; ---- step {inv[w]} ----")
            if cfg.jitter:
                E(f"    s_cmp_lg_u32 s{sWave}, {(inv[w] * cfg.jitter[1]) & 3}\n    s_cbranch_scc1 L_j{inv[w]}\n    s_sleep {cfg.jitter[0]}\nL_j{inv[w]}:")
            if cfg.stamps and inv[w] in stamp_at:
                j = stamp_at.index(inv[w]); E(f"    s_memrealtime s[{64+2*j}:{65+2*j}]")
        for i in code[w]:
            if i.op is not None and i.op.key[0] in cfg.kill and (L0 if cfg.kill_from is None else cfg.kill_from) <= w: E("    s_nop 0")
            else: E("    " + i.text)
            if cfg.pad and i.kind == "mfma" and L0 <= w < L1 and w % cfg.pad == 0: E("    s_nop 4")
            if i.text.startswith("s_cbranch_scc1 L_spin"):
                n = i.text.split("L_spin")[1]; E(f"L_back{n}:"); cfg.spins.append(n)
        if off0 == 0:
            if w == L0 + per - 1: E("    s_cbranch_scc0 L_loop")
        else:
            if w == XP - 1: E("    s_cbranch_scc1 L_tail")
            if w == L0 + per - 1: E("    s_branch L_loop"); E("L_tail:")
    lastscc = None
    for l in out:
        t = l.strip()
        if t.startswith(("s_add", "s_sub", "s_cmp", "s_and", "s_lsh", "s_bfe", "s_or", "s_xor", "s_not")): lastscc = t
        if t.startswith("s_cbranch_scc1 L_spin"): assert lastscc.startswith("s_cmp_lt_u32"), lastscc
        if t.startswith(("s_cbranch_scc0 L_loop", "s_cbranch_scc1 L_tail")): assert lastscc.startswith(f"s_sub_u32 s{sCnt}"), lastscc
    return "\n".join(out)

def fbits(x): return struct.unpack("<I", struct.pack("<f", x))[0]

def head(cfg):
    T = vS
    h = f"""    s_load_dwordx4 s[4:7], s[0:1], 0          ; q, k
    s_load_dwordx4 s[8:11], s[0:1], 16        ; v, out
"""
    if cfg.x8: h = "    s_load_dwordx8 s[4:11], s[0:1], 0         ; q, k, v, out\n"
    if cfg.stamps: h += f"    s_load_dwordx2 s[56:57], s[0:1], {32 if cfg.stamps in ('dbg', 'skew') else 40}\n    s_memrealtime s[60:61]\n"
    h += f"""    v_lshrrev_b32 v{T}, 6, v0
    v_and_b32 v{T+4}, 63, v0                  ; lane
    v_readfirstlane_b32 s{sWave}, v{T}
    s_cmp_ge_u32 s2, 256
    s_cbranch_scc1 L_end
    v_and_b32 v{T+1}, 15, v0                  ; l & 15
    v_bfe_u32 v{T+2}, v0, 4, 2                ; l >> 4
    v_lshlrev_b32 v{vKl}, 4, v{T+4}           ; lane*16
    s_and_b32 s{sTmp}, s2, 7
    s_lshr_b32 s{sTmp+1}, s2, 3
    s_lshl_b32 s{sTmp}, s{sTmp}, 5
    s_add_u32 s{sTmp}, s{sTmp}, s{sTmp+1}
    s_lshl2_add_u32 s{sTmp+2}, s{sTmp}, s{sWave}
    s_lshl_b32 s{sTmp+2}, s{sTmp+2}, 16       ; q/o byte offset of this wave
    s_lshr_b32 s{sTmp}, s{sTmp}, 2
    s_lshl_b32 s{sTmp}, s{sTmp}, 17           ; k/v byte offset of the group
    s_lshl_b32 s{sMq}, s{sWave}, 12           ; wave*4096
    s_add_u32 s{sTmp+3}, s{sTmp}, s{sMq}
    s_sub_u32 s{sK_+2}, 0x20000, s{sMq}
    s_mov_b32 s{sK_+3}, 0x20000
    s_mov_b32 s{sQ_+3}, s{sK_+3}
    s_mov_b32 s{sQ_+2}, 0x10000
"""
    if cfg.rot:
        h += f"""    s_bfe_u32 s{sTmp+4}, s2, 0x20003
    s_mul_i32 s{sTile}, s{sTmp+4}, {cfg.rot*16384}
    s_and_b32 s{sTile}, s{sTile}, 0x1ffff
    s_add_u32 s{sTile+1}, s{sTile}, 16384
    s_and_b32 s{sTile+1}, s{sTile+1}, 0x1ffff
"""
    elif cfg.xor:
        h += f"""    s_lshl_b32 s{sTile}, s2, {11 + cfg.xor[1]}
    s_and_b32 s{sTile}, s{sTile}, {cfg.xor[0] << 14:#x}
    s_xor_b32 s{sTile+1}, s{sTile}, 0x4000
"""
    else: h += f"    s_mov_b32 s{sTile}, 0\n    s_movk_i32 s{sTile+1}, 0x4000\n"
    h += f"""    s_mov_b32 s{sQo}, 0
    v_lshlrev_b32 v{T+3}, 8, v{T+2}           ; (l>>4)*256
    v_xor_b32 v{T+5}, v{T+1}, v{T+2}          ; (l&15) ^ (l>>4)
    v_lshl_add_u32 v{vQd}, v{T+5}, 4, v{T+3}  ; Q DMA source: row*256 + (pos^row)*16
{head2(cfg).split("@CPF")[0] + f"    global_load_dword v{vJ}, v[{T+14}:{T+15}], off" if cfg.early_pf else ""}
    s_waitcnt lgkmcnt(0)
    s_add_u32 s{sK_}, s6, s{sTmp+3}
    s_addc_u32 s{sK_+1}, s7, 0
    s_add_u32 s{sQ_}, s4, s{sTmp+2}
    s_addc_u32 s{sQ_+1}, s5, 0
"""
    if cfg.stamps: h += "    s_memrealtime s[62:63]\n"
    return h

def head2(cfg):
    c = math.log2(math.e) / math.sqrt(128.0)
    T = vS
    h = f"""    ; code prefetch into L2: 16 lines per wave, 8 KiB per workgroup
    s_getpc_b64 s[{sC_}:{sC_+1}]
L_pc:
    s_mov_b32 s{sC_+2}, L_slow - L_pc
    s_bfe_u32 s{sTmp+1}, s2, 0x30003
    s_lshl2_add_u32 s{sTmp+1}, s{sTmp+1}, s{sWave}
    s_lshl_b32 s{sTmp+1}, s{sTmp+1}, 11
    v_lshl_add_u32 v{vJ}, v{T+4}, 5, s{sTmp+1}
    v_min_u32 v{vJ}, s{sC_+2}, v{vJ}          ; stay inside the code
    v_mov_b32 v{T+15}, s{sC_+1}
    v_add_co_u32 v{T+14}, vcc, s{sC_}, v{vJ}
    s_nop 1
    v_addc_co_u32 v{T+15}, vcc, 0, v{T+15}, vcc
@CPF
    s_add_u32 s{sV_}, s8, s{sTmp}
    s_addc_u32 s{sV_+1}, s9, 0
    s_add_u32 s{sO_}, s10, s{sTmp+2}
    s_addc_u32 s{sO_+1}, s11, 0
    s_mov_b32 s{sV_+2}, 0x20000
    s_mov_b32 s{sV_+3}, 0x20000
    s_mov_b32 s{sO_+2}, 0x10000
    s_mov_b32 s{sO_+3}, 0x20000
"""
    for t in range(2, 8):
        if cfg.rot: h += f"    s_add_u32 s{sTile+t}, s{sTile+t-1}, 16384\n    s_and_b32 s{sTile+t}, s{sTile+t}, 0x1ffff\n"
        elif cfg.xor: h += f"    s_xor_b32 s{sTile+t}, s{sTile}, {t*16384}\n"
        else: h += f"    s_mov_b32 s{sTile+t}, {t*16384}\n"
    h += f"""    s_lshr_b32 s{sTmp+1}, s{sWave}, 1
    s_lshl3_add_u32 s{sTmp+4}, s{sTmp+1}, s{sMq}
    s_add_u32 s{sM0}, s{sTmp+4}, {VB}
    s_add_u32 s{sM0+1}, s{sTmp+4}, {VB + VSTR}
    s_add_u32 s{sM0+2}, s{sTmp+4}, {VB + 2 * VSTR}
    s_add_u32 s{sM0+3}, s{sTmp+4}, {VB + 3 * VSTR}
    s_mov_b32 s{sOo}, 0
    s_mov_b32 s{sExp}, 0
    s_mov_b32 s{sCnt}, 2
    s_mov_b32 s{sScale}, {fbits(c):#x}
    s_mov_b32 s{sMask}, 0xffff0000
{f"    s_mov_b32 s{sPerm}, 0x07060302" if cfg.trunc else ""}
    ; K fragment read addresses: g*256 + (row ^ g ^ 4*(ds&1))*16
    v_mov_b32 v{vKr}, v{vQd}
    v_xor_b32 v{vKr+1}, 64, v{vQd}
    v_add_u32 v{vKr+2}, {0x10000 - KSH}, v{vKr}
    v_add_u32 v{vKr+3}, {0x10000 - KSH}, v{vKr+1}
    ; K write address: key 16w+4i+r goes to block 2(w&1)+(i>>1), row 8(i&1)+4(w>>1)+r ; lane = 16r+c
    s_lshl_b32 s{sTmp+1}, s{sTmp+1}, 6
    s_and_b32 s{sTmp+4}, s{sWave}, 1
    s_lshl_b32 s{sTmp+5}, s{sTmp+4}, 13
    v_and_b32 v{T+6}, 7, v{T+5}
    v_lshlrev_b32 v{T+7}, 8, v{T+1}           ; (l&15)*256
    v_lshl_add_u32 v{T+6}, v{T+6}, 4, v{T+7}
    v_xor_b32 v{T+6}, s{sTmp+1}, v{T+6}
    v_add_u32 v{vKw}, s{sTmp+5}, v{T+6}
    v_cmp_gt_u32 vcc, 1024, v{vKw}            ; lanes that write fragment (.,0,0)
    v_add_u32 v{T+6}, {3 * 16384}, v{vKw}
    v_and_b32 v{T+8}, 3, v{T+5}
    v_cndmask_b32 v{vKw+1}, v{vKw}, v{T+6}, vcc
    v_lshl_add_u32 v{T+6}, v{T+8}, 4, v{T+7}
    v_add_u32 v{vQr}, s{sMq}, v{T+6}
    ; V DMA source offsets: row r=l>>4, 64-byte unit (c16>>2)^(key&3)
    v_lshlrev_b32 v{T+6}, 2, v{T+2}
    v_xor_b32 v{T+6}, v{T+6}, v{T+1}
    v_lshl_add_u32 v{T+6}, v{T+6}, 4, v{T+3}
    v_add_u32 v{vD0}, s{sMq}, v{T+6}
    ; V transposed-read addresses: lane = 16g+4r+c reads 8 bytes of chunk c of unit (db>>1)^r of key 32(g&1)+8kb+4(g>>1)+r
    v_bfe_u32 v{T+8}, v{T+4}, 2, 2            ; r
    v_lshlrev_b32 v{T+6}, 4, v{T+1}           ; r*64 + c*16
    v_lshl_add_u32 v{T+6}, v{T+8}, 8, v{T+6}
    v_lshrrev_b32 v{T+8}, 1, v{T+2}
    v_lshl_add_u32 v{T+6}, v{T+8}, 10, v{T+6}
    v_and_b32 v{T+8}, 1, v{T+2}
    v_mul_u32_u24 v{T+8}, 8200, v{T+8}
    v_add_u32 v{T+8}, {VB}, v{T+8}
    v_and_b32 v{T+9}, 3, v{T+4}
"""
    for m in range(4):
        if m: h += f"    v_xor_b32 v{T+10}, {m * 64}, v{T+6}\n"
        h += f"    v_add_u32 v{vV+m}, v{T+8}, v{T+10 if m else T+6}\n"
    h += f"""    ; output: a store covers 8 rows x 128 bytes: (l&7)*256 + ((l>>3)&1)*64 + g*16
    v_and_b32 v{T+10}, 0x700, v{T+7}
    v_lshl_add_u32 v{T+10}, v{T+2}, 4, v{T+10}
    v_and_b32 v{T+11}, 8, v{T+1}
    v_lshl_add_u32 v{vO}, v{T+11}, 3, v{T+10}
"""
    h += f"""    ; row-sum operand: rows 4i and 4i+1 are ones; they pick elements 0,1 and 2,3 of every group of four keys
    v_cmp_eq_u32 vcc, 1, v{T+9}
    v_mov_b32 v{T+6}, 0x44444444
    v_mov_b32 v{T+8}, 0xeeeeeeee
    v_cndmask_b32 v{vIdx}, v{T+6}, v{T+8}, vcc
    v_cmp_gt_u32 vcc, {0 if cfg.ones_rows == 0 else 2}, v{T+9 if cfg.ones_rows == 8 else T+1}
    v_mov_b32 v{T+6}, 0x3f803f80
    v_mov_b32 v{vChk}, {'-1' if cfg.force_slow else '0'}
    v_cndmask_b32 v{T+6}, 0, v{T+6}, vcc
    v_lshlrev_b32 v{vCnt}, 2, v{T+4}
    v_add_u32 v{vCnt}, 0x4000, v{vCnt}
    v_mov_b32 v{vOne}, v{T+6}
    v_mov_b32 v{vOne+1}, v{T+6}
    v_mov_b32 v{vOne+2}, v{T+6}
    v_mov_b32 v{vOne+3}, v{T+6}
    v_mov_b32 v{vCone}, 1
    v_mov_b32 v{vPoll}, 0
    s_mov_b32 vcc_lo, 0xff00ff00              ; lanes with (l & 8), used by the output selects
    s_mov_b32 vcc_hi, 0xff00ff00
"""
    return h

def tail(cfg):
    lim = (127 + cfg.limit_exp) << 23
    t = ""
    if cfg.stamps == "skew":
        t += """    s_mov_b32 s58, 256
    s_mov_b32 s59, 0x20000
    s_not_b32 s64, s60
    v_mov_b32 v64, s64
    v_mov_b32 v60, 0
    s_mov_b64 exec, 1
    s_cmp_lg_u32 s3, 0
    s_cbranch_scc1 L_sk1
    buffer_atomic_umax v64, v60, s[56:59], 0 offen
    s_waitcnt vmcnt(0)
L_sk1:
    s_memrealtime s[72:73]
    s_waitcnt lgkmcnt(0)
    s_sub_u32 s72, s72, s60
    s_cmp_lt_u32 s72, 8000
    s_cbranch_scc1 L_sk1
    buffer_load_dword v64, v60, s[56:59], 0 offen sc0 sc1
    s_waitcnt vmcnt(0)
    v_readfirstlane_b32 s64, v64
    s_nop 4
    s_not_b32 s64, s64
L_sk2:
    s_memrealtime s[72:73]
    s_waitcnt lgkmcnt(0)
    s_sub_u32 s72, s72, s64
    s_cmp_lt_u32 s72, 10000
    s_cbranch_scc1 L_sk2
    s_mov_b64 exec, -1
"""
    elif cfg.stamps == "spin":
        if not getattr(cfg, "stamp_steps", []): t += "    s_waitcnt vmcnt(0)\n    s_memrealtime s[64:65]\n"
        t += f"""    s_waitcnt lgkmcnt(0)
    {"s_sub_u32 s64, s66, s64" if len(getattr(cfg, "stamp_steps", [])) == 2 else "s_sub_u32 s64, s64, s60"}
    s_mul_i32 s64, s64, {getattr(cfg, "spin_mul", 0)}
    s_add_u32 s64, s64, 10000
L_spin:
    s_memrealtime s[72:73]
    s_waitcnt lgkmcnt(0)
    s_sub_u32 s72, s72, s60
    s_cmp_lt_u32 s72, s64
    s_cbranch_scc1 L_spin
"""
    elif cfg.stamps:
        e0 = 88 if cfg.stamps == "c16" else 72
        t += f"""    s_memrealtime s[{e0}:{e0+1}]
    s_waitcnt vmcnt(0)
    s_memrealtime s[{e0+2}:{e0+3}]
    s_mov_b32 s58, 0x10000000
    s_mov_b32 s59, 0x20000
    s_lshl_b32 s46, s2, 2
    s_add_u32 s46, s46, s3
    s_lshl_b32 s46, s46, 6
    s_waitcnt lgkmcnt(0)
"""
        for i in range(16): t += f"    v_mov_b32 v{64+i}, s{60+(2*i if cfg.stamps == 'c16' else i)}\n"
        t += "    v_mov_b32 v60, 0\n    s_mov_b64 exec, 1\n"
        if cfg.stamps == "dbg":
            t += "    s_mov_b32 s58, 256\n"
            for i in range(8):
                t += f"    v_not_b32 v{65+2*i}, v{64+2*i}\n"
            for i in range(16): t += f"    buffer_atomic_umax v{64+i}, v60, s[56:59], 0 offen offset:{4*i}\n"
        else:
          for i in range(4): t += f"    buffer_store_dwordx4 v[{64+4*i}:{67+4*i}], v60, s[56:59], s46 offen offset:{16*i}\n"
        t += "    s_mov_b64 exec, -1\n"
    t += f"""    v_cmp_lt_u32 vcc, {lim:#x}, v{vChk}
    s_nop 4
    s_cbranch_vccnz L_slow
L_end:
    s_endpgm
"""
    for n in cfg.spins:
        t += f"""L_spin{n}:
    ds_read_b32 v{vPoll}, v{vCnt}
    s_waitcnt lgkmcnt(0)
    v_readfirstlane_b32 s{sPol}, v{vPoll}
    s_nop 3
    s_cmp_lt_u32 s{sPol}, s{sExp}
    s_cbranch_scc1 L_spin{n}
    s_branch L_back{n}
"""
    S0, S1, M, T = 16, 20, 24, 25
    vQ = vQd; vKb = vKr + 2
    q = lambda ds: at(aQ + 4 * ds, 4)
    k = lambda j, ds: at(aK + j * 16 + 4 * ds, 4)
    t += f"""; Fallback: a row sum left [2^-{cfg.limit_exp}, 2^{cfg.limit_exp}] (or is not finite), so exp without an offset was not safe.
; This wave recomputes its 256 rows subtracting the true row maximum.  K is rebuilt in LDS; V goes through a private 8 KiB.
L_slow:
    s_waitcnt vmcnt(0) lgkmcnt(0)
    s_barrier                                 ; the other waves are done with LDS (ended or here)
    s_mov_b32 s{sQo}, 0
    s_lshl_b32 s{sTmp}, s{sWave}, 12
    s_lshl_b32 s{sTmp+1}, s{sWave}, 13
    s_add_u32 s{sTmp+2}, s{sTmp+1}, 0x20000
    s_add_u32 s{sTmp+3}, s{sTmp+2}, 4096
    v_subrev_u32 v{vD0}, s{sTmp}, v{vD0}
    v_bfe_u32 v{T}, v{vKl}, 4, 4              ; l & 15
    v_lshrrev_b32 v{T+1}, 8, v{vKl}           ; l >> 4
    v_lshlrev_b32 v{vQ}, 4, v{T+1}
    v_lshl_add_u32 v{vQ}, v{T}, 8, v{vQ}      ; Q rows in MFMA layout
    v_xor_b32 v{T+1}, v{T}, v{T+1}
    v_and_b32 v{T+1}, 7, v{T+1}
    v_lshlrev_b32 v{T+1}, 4, v{T+1}
    v_lshl_add_u32 v{vKw}, v{T}, 8, v{T+1}
    v_xor_b32 v{vKw+1}, 64, v{vKw}
    v_lshrrev_b32 v{T+1}, 6, v{vKl}           ; 4g+r
    v_lshlrev_b32 v{T+1}, 8, v{T+1}
    v_lshl_add_u32 v{T+1}, v{T}, 4, v{T+1}
    v_add_u32 v{vV}, s{sTmp+2}, v{T+1}
    v_xor_b32 v{vV+1}, 64, v{vV}
    v_xor_b32 v{vV+2}, 128, v{vV}
    v_xor_b32 v{vV+3}, 192, v{vV}
"""
    t += f"""    s_sub_u32 s{sK_}, s{sK_}, s{sTmp}
    s_subb_u32 s{sK_+1}, s{sK_+1}, 0
    s_mov_b32 s{sK_+2}, 0x20000
    s_mov_b32 s{sCnt}, 0
L_skld:
"""
    for i in range(4): t += f"    buffer_load_dwordx4 {vt(vOa+4*i,4)}, v{vKl}, s[{sK_}:{sK_+3}], s{sCnt} offen offset:{i*1024}\n"
    t += "    s_waitcnt vmcnt(0)\n"
    for x in range(vOa, vOa + 16):
        t += f"""    v_lshlrev_b32 v{T}, 16, v{x}
    v_and_b32 v{x}, s{sMask}, v{x}
    v_mul_f32 v{T}, s{sScale}, v{T}
    v_mul_f32 v{x}, s{sScale}, v{x}
    v_cvt_pk_bf16_f32 v{x}, v{T}, v{x}
"""
    for i in range(4): t += f"    ds_write_b128 v{vKw+(i&1)}, {vt(vOa+4*i,4)} offset:{(i>>1)*128}\n"
    t += f"""    s_waitcnt lgkmcnt(0)
    v_add_u32 v{vKw}, 4096, v{vKw}
    v_add_u32 v{vKw+1}, 4096, v{vKw+1}
    s_add_u32 s{sCnt}, s{sCnt}, 4096
    s_cmp_lt_u32 s{sCnt}, 0x20000
    s_cbranch_scc1 L_skld
"""
    t += "L_sblk:\n"
    for ds in range(4): t += f"    buffer_load_dwordx4 {q(ds)}, v{vQ}, s[{sQ_}:{sQ_+3}], s{sQo} offen offset:{ds*64}\n"
    t += f"""    v_mov_b32 v{M}, 0xff800000
    v_mov_b32 v{vKb}, v{vKr}
    v_mov_b32 v{vKb+1}, v{vKr+1}
    s_mov_b32 s{sCnt}, 32
    s_waitcnt vmcnt(0)
L_smax:
"""
    for ds in range(4): t += f"    ds_read_b128 {k(0,ds)}, v{vKb+(ds&1)} offset:{ds*1024}\n"
    t += "    s_waitcnt lgkmcnt(0)\n"
    for ds in range(4): t += f"    v_mfma_f32_16x16x32_bf16 {vt(S0,4)}, {k(0,ds)}, {q(ds)}, {'0' if ds == 0 else vt(S0,4)}\n"
    t += f"""    s_nop 7
    v_max3_f32 v{M}, v{M}, v{S0}, v{S0+1}
    v_max3_f32 v{M}, v{M}, v{S0+2}, v{S0+3}
    v_add_u32 v{vKb}, 4096, v{vKb}
    v_add_u32 v{vKb+1}, 4096, v{vKb+1}
    s_sub_u32 s{sCnt}, s{sCnt}, 1
    s_cmp_lg_u32 s{sCnt}, 0
    s_cbranch_scc1 L_smax
    v_mov_b32 v{T}, v{M}
    s_nop 1
    v_permlane16_swap_b32 v{M}, v{T}
    s_nop 1
    v_max_f32 v{M}, v{M}, v{T}
    v_mov_b32 v{T}, v{M}
    s_nop 1
    v_permlane32_swap_b32 v{M}, v{T}
    s_nop 1
    v_max_f32 v{M}, v{M}, v{T}
"""
    for r in range(4): t += f"    v_mov_b32 v{vL+r}, 0\n"
    for r in range(32): t += f"    v_mov_b32 v{vOa+r}, 0\n"
    t += f"""    v_mov_b32 v{vKb}, v{vKr}
    v_mov_b32 v{vKb+1}, v{vKr+1}
    s_mov_b32 s{sCnt}, 0
L_skey:
    s_mov_b32 m0, s{sTmp+2}
    s_mov_b32 s{sTmp+5}, s{sCnt}
    s_add_u32 s{sTmp+4}, s{sTmp+5}, 4096
"""
    for i in range(4): t += f"    buffer_load_dwordx4 v{vD0}, s[{sV_}:{sV_+3}], s{sTmp+5} offen offset:{i*1024} lds\n"
    t += f"    s_mov_b32 m0, s{sTmp+3}\n    s_nop 0\n"
    for i in range(4): t += f"    buffer_load_dwordx4 v{vD0}, s[{sV_}:{sV_+3}], s{sTmp+4} offen offset:{i*1024} lds\n"
    for j in range(2):
        for ds in range(4): t += f"    ds_read_b128 {k(j,ds)}, v{vKb+(ds&1)} offset:{j*4096+ds*1024}\n"
    t += "    s_waitcnt vmcnt(0) lgkmcnt(0)\n"
    for db in range(8):
        for h in range(2): t += f"    ds_read_b64_tr_b16 {at(aV+db*4+2*h,2)}, v{vV+(db>>1)} offset:{h*4096+(db&1)*8}\n"
    for j, S in enumerate((S0, S1)):
        for ds in range(4): t += f"    v_mfma_f32_16x16x32_bf16 {vt(S,4)}, {k(j,ds)}, {q(ds)}, {'0' if ds == 0 else vt(S,4)}\n"
    t += "    s_nop 7\n"
    for r in range(8): t += f"    v_sub_f32 v{S0+r}, v{S0+r}, v{M}\n"
    for r in range(8): t += f"    v_exp_f32 v{S0+r}, v{S0+r}\n"
    t += "    s_nop 0\n"
    for r in range(4): t += f"    v_cvt_pk_bf16_f32 v{vP+r}, v{S0+2*r}, v{S0+2*r+1}\n"
    t += f"    v_add_u32 v{vKb}, 8192, v{vKb}\n    v_add_u32 v{vKb+1}, 8192, v{vKb+1}\n    s_waitcnt lgkmcnt(0)\n    s_nop 0\n"
    t += f"    v_mfma_f32_16x16x32_bf16 {vt(vL,4)}, {vt(vOne,4)}, {vt(vP,4)}, {vt(vL,4)}\n"
    for db in range(8): t += f"    v_mfma_f32_16x16x32_bf16 {vt(vOa+4*db,4)}, {at(aV+db*4,4)}, {vt(vP,4)}, {vt(vOa+4*db,4)}\n"
    t += f"""    s_add_u32 s{sCnt}, s{sCnt}, 8192
    s_cmp_lt_u32 s{sCnt}, 0x20000
    s_cbranch_scc1 L_skey
    s_nop 7
    v_rcp_f32 v{vR}, v{vL}
    s_nop 0
"""
    for r in range(32): t += f"    v_mul_f32 v{vOa+r}, v{vOa+r}, v{vR}\n"
    for db in range(8):
        o = vOa + 4 * db; d = vP + 2 * db
        t += f"    v_cvt_pk_bf16_f32 v{d}, v{o}, v{o+1}\n    v_cvt_pk_bf16_f32 v{d+1}, v{o+2}, v{o+3}\n"
    if cfg.store_x4:
        t += "    s_nop 1\n"
        for db in range(0, 8, 2):
            d = vP + 2 * db
            if not cfg.vperm: t += f"    v_permlane16_swap_b32 v{d}, v{d+2}\n    v_permlane16_swap_b32 v{d+1}, v{d+3}\n"
            t += f"    buffer_store_dwordx4 {vt(d,4)}, v{vQ}, s[{sO_}:{sO_+3}], s{sQo} offen offset:{db*32}\n"
    else:
        for db in range(8): t += f"    buffer_store_dwordx2 {vt(vP+2*db,2)}, v{vO}, s[{sO_}:{sO_+3}], s{sQo} offen offset:{db*32}\n"
    t += f"""    s_add_u32 s{sQo}, s{sQo}, 4096
    s_cmp_lt_u32 s{sQo}, 0x10000
    s_waitcnt vmcnt(0)
    s_cbranch_scc1 L_sblk
    s_endpgm
"""
    return t

HDR = """; Kernarg layout for this problem (48 bytes, ptrs only, base s[0:1]):
;   offset   0: d_in[0] q  shape=(16, 32, 512, 128) dtype=bfloat16
;   offset   8: d_in[1] k  shape=(16, 4, 512, 128) dtype=bfloat16
;   offset  16: d_in[2] v  shape=(16, 4, 512, 128) dtype=bfloat16
;   offset  24: d_out     shape=(16, 32, 512, 128) dtype=bfloat16
;   offset  32: d_debug   256 bytes
;   offset  40: d_ws      268435456 bytes workspace (unused)
; @launch grid=(256,1,1) block=(256,1,1) lds=163840
;
; GQA attention forward, out = softmax(q k^T / sqrt(128)) v.  Generated by my own scheduling script.
; * One workgroup per CU: 1024 q rows against the 512 keys of one (batch, kv head); each wave owns 256 rows and keeps
;   four 16-row blocks in flight, started two key tiles apart (a block walks the eight 64-key tiles cyclically).
; * v_mfma_f32_16x16x32_bf16 for S^T = K Q^T and O^T = V^T P^T; P goes from the S registers straight into the B operand.
;   K is multiplied by log2(e)/sqrt(128) once and stays in LDS (one tile in registers); V streams through a two-slot LDS
;   ring by LDS-DMA (one tile in registers) and is read with ds_read_b64_tr_b16; Q is staged through LDS.
; * Row sums come from one v_smfmac per block and tile (rows of ones with complementary 2:4 index patterns).
; * Waves meet through an arrive/poll counter in LDS (s_barrier in the first steps).
; * Softmax guard: softmax is invariant under a per-row shift, so the main path uses shift 0 and CHECKS every row sum l
;   at run time: l and 1/l must both be <= 2^32 (this also rejects inf and NaN).  Inside that range nothing overflowed and
;   recomputes all its rows subtracting the true row maximum.
"""

PAD = """; Instruction prefetch stops at 4 KiB boundaries: start the kernel on one (the harness puts 0x300 bytes in front of the label).
.p2align 12
.fill 832, 4, 0xbf800000
"""

def add_hops(cfg, text):
    import subprocess, re, os, tempfile
    lines = text.split("\n")
    i0 = lines.index(KN + ":"); i1 = lines.index("L_end:")
    tmp = tempfile.mkdtemp()
    src = "\n".join(lines).replace("@HOPS", "\n".join(["    s_nop 0"] * 9))
    lines = src.split("\n"); i1 = lines.index("L_end:")
    hop0 = text.split("\n").index("@HOPS")
    open(tmp + "/a.s", "w").write(src)
    subprocess.run(["clang", "-x", "assembler", "-target", "amdgcn-amd-amdhsa", "-mcpu=gfx950", "-c", tmp + "/a.s", "-o", tmp + "/a.o"], check=True)
    dis = subprocess.run(["llvm-objdump", "-d", "--mcpu=gfx950", tmp + "/a.o"], capture_output=True, text=True).stdout
    dis = dis[dis.index("<" + KN + ">:"):]
    sizes = [4 * len(m.group(1).split()) for m in re.finditer(r"// [0-9A-F]{12}: ([0-9A-F ]+)", dis)]
    isins = lambda l: l.startswith("    ") and not l.strip().startswith(";") and l.strip()
    out = lines[:i0 + 1]; addr = 0; k = 0; page = 1; j = i0 + 1
    def look(j, k, addr, page):
        cands = []
        while addr < page * 4096 + 64 and j < i1:
            if isins(lines[j]):
                addr += sizes[k]; k += 1
                if "mfma" in lines[j] and page * 4096 <= addr <= page * 4096 + 60:
                    nx = lines[j + 1].strip()
                    cands.append((0 if nx == "s_nop 0" else (1 if nx.startswith("v_") else 2), j))
                elif page * 4096 <= addr <= page * 4096 + 60 and lines[j].strip().startswith("v_"): cands.append((3, j))
            j += 1
        return min(cands) if cands else None
    plan = None
    while j < i1:
        l = lines[j]
        if plan is None and addr >= page * 4096 - 64:
            plan = look(j, k, addr, page)
            if plan is None: page_end = True
        out.append(l)
        if isins(l): addr += sizes[k]; k += 1
        if plan and plan[1] == j:
            out.append(f"L_hop{page}:"); out.append(f"    s_cbranch_execz @NEXT{page}@"); addr += 4
            if plan[0] == 0: j += 1; k += 1
            plan = None; page += 1
        j += 1
    out += lines[i1:]
    np_ = page - 1
    r = "\n".join(out)
    for p in range(1, np_ + 1): r = r.replace(f"@NEXT{p}@", f"L_hop{p+4}" if p + 4 <= np_ else "L_hback")
    rl = r.split("\n")
    rl[hop0:hop0 + 9] = ["    s_mov_b64 exec, 0                         ; warm the instruction cache: visit the first line of every code page"] + \
        [x for w in range(3) for x in (f"    s_cmp_eq_u32 s{sWave}, {w}", f"    s_cbranch_scc1 L_hop{w+1}")] + ["    s_branch L_hop4", "L_hback:", "    s_mov_b64 exec, -1"]
    return "\n".join(rl)

def full(cfg):
    body = generate(cfg)
    r = full2(cfg, body)
    if getattr(cfg, "spin_cyc", 0):
        r = r.replace("s_memrealtime s[64:65]", "s_memtime s[64:65]").replace("s_memrealtime s[66:67]", "s_memtime s[66:67]").replace("s_memrealtime s[62:63]", "s_memtime s[62:63]")
        r = r.replace("s_sub_u32 s64, s64, s60", "s_sub_u32 s64, s64, s62").replace("s_mul_i32 s64, s64, 0", "s_lshr_b32 s64, s64, 1")
    if cfg.stamps in ("cyc", "c16"): r = r.replace("s_memrealtime", "s_memtime")
    if cfg.stamps == "both":
        import re
        r = re.sub(r"    s_memrealtime s\[(\d+):(\d+)\]", lambda m: f"    s_memtime s[{m.group(1)}:{m.group(2)}]\n    s_memrealtime s[{int(m.group(1))+20}:{int(m.group(2))+20}]", r)
        for i in range(8): r = r.replace(f"v_mov_b32 v{65+2*i}, s{61+2*i}\n", f"v_mov_b32 v{65+2*i}, s{80+2*i}\n")
    if "@HOPS" in r: r = add_hops(cfg, r.replace("    @HOPS", "@HOPS"))
    return r

def full2(cfg, body):
    return HDR + f""".amdgcn_target "amdgcn-amd-amdhsa--gfx950"
.text
.globl {KN}
{PAD if cfg.align else ""}.p2align 8
.type {KN},@function
{KN}:
""" + head(cfg) + body + "\n" + tail(cfg) + f""".section .rodata,"a"
.p2align 6
.amdhsa_kernel {KN}
  .amdhsa_next_free_vgpr 512
  .amdhsa_next_free_sgpr 102
  .amdhsa_accum_offset 256
  .amdhsa_group_segment_fixed_size 0
  .amdhsa_kernarg_size 48
  .amdhsa_user_sgpr_count 2
  .amdhsa_user_sgpr_kernarg_segment_ptr 1
  .amdhsa_system_sgpr_workgroup_id_x 1
.end_amdhsa_kernel
"""

if __name__ == "__main__":
    cfg = Cfg()
    name = sys.argv[1]
    for a in sys.argv[2:]:
        k, v = a.split("=", 1)
        try: v = eval(v)
        except Exception: pass
        setattr(cfg, k, v)
    s = full(cfg)
    open(name, "w").write(s)
    tot = sum(v[0] for v in cfg.est.values())
    print(name, "est head", cfg.est_head, "total", tot, "mfma", sum(v[1] for v in cfg.est.values()), file=sys.stderr)
    print(" ".join(f"{s}:{v[0]}/{v[1]}" for s, v in cfg.est.items() if s < 16 or s >= 32), file=sys.stderr)
```

```python
import sys, math, struct
KN = "standalone__gqa_softmax__near_ridge_kernel"

class Cfg:
    sigma = (0, 2, 4, 6)
    beta = 0.85
    beta_small = 0.55
    ds_lat = 9
    mv_lat = 4
    store_x4 = True
    q_nt = "nt"
    st_pol = "sc0 sc1"
    k_pol = "nt"
    v_pol = ""
    v_pol0 = "nt"
    rot = 0
    split_from = 4
    split_min_u = 2
    arr_gap = 10
    vm_gap = 5
    smooth = True
    stamps = False
    code_pf = True
    plan = "K0 Q0 C K1 H W00 V0 S0 B r0 r1 R0 K2 S1@0.0 V1@0.0 Q1@0.5 K3@1.0 V2@1.5 R1@2.0 K4@2.0 Q2@2.3 V3@2.6 K5@3.0 V4@3.4 K6@3.b R2@3.b Q3@4.0 K7@4.b R3@5.b Q4@6.0"
    vperm = True
    st_last = "sc0 sc1"
    st_last_from = 38
    ones_rows = 8
    trunc = False
    fake_st = False
    fake_v = False
    fake_m0 = 0
    v_n0 = 8
    st_block = 0
    c_pol = ""
    st_first = None
    st_pair = False
    fetch_thr = 1
    fetch_slack = 1
    st_gap = 16
    st_gap_all = False
    pf2 = False
    x8 = True
    qr_asap = True
    full_until = 33
    kst = [(1, 0), (1, 1), (2, 0), (2, 1), (3, 0), (3, 1), (3, "P"), (3, 0)]
    jitter = None
    xor = None
    qlag = {}
    lags = {}
    tailpub = {33: [33, 34], 35: [35, 37]}
    align = True
    early_pf = True
    sigma0 = None
    loop_from = 8
    vtouch = False
    deep = True
    tail_dl = 1.0
    betas = {0: 0.95, 1: 0.9, 2: 0.8, 3: 0.8}
    arr_gap_small = 4
    k_up = 1
    force_slow = False
    nop_ds = True
    ds_gap = 2
    ds_cap = 1024
    kill_from = None
    pad = 0
    kill = ()
    limit_exp = 32

vQd, vO, vQr, vCnt, vD0, vD1, vChk = 1, 2, 3, 4, 5, 6, 7
vKl = 0
vV = 8
vS = 16
vL = 32
vR = 48
vKw = 50
vT = 52
NT = 5
vIdx = 57
vPoll = 58
vJ = 59
vKr = 60
vP = 64
vOa = 128
aQ, aKp, aVp, aK, aV = 0, 64, 128, 192, 224
vOne, vCone, vKp1, vO2, vO3 = 12, 6, 52, 56, 59
sPol = 40
TV = 4
TMPS = [44, 45, 46, 47, 56]
sQ_, sK_, sV_, sO_, sC_ = 12, 16, 20, 24, 28
sTile = 32
sM0 = 96
sQo, sOo, sCnt, sScale, sWave = 42, 43, 44, 45, 3
sTmp = 46
sMq, sExp, sMask, sPerm = 52, 53, 54, 55

VB, VSTR, KSH = 0x18000 - 32, 16384 + 8, 32
def vr(b, n=1): return [f"v{b+i}" for i in range(n)]
def ar(b, n=1): return [f"a{b+i}" for i in range(n)]
def vt(b, n): return f"v[{b}:{b+n-1}]"
def at(b, n): return f"a[{b}:{b+n-1}]"

class Op:
    def __init__(s, key, text, kind, reads, writes, cost=None, earliest=None, dummy=False, anchor=None, maxdl=None):
        s.key, s.text, s.kind, s.reads, s.writes = key, text, kind, list(reads), list(writes)
        s.cost = {"mfma": 0, "trans": 8, "valu": 4, "ds": 4, "dsw": 20, "load": 8, "dma": 8, "store": 12, "salu": 0, "bar": 0, "chk": 0}[kind] if cost is None else cost
        s.cnt = {"ds": "lgkm", "dsw": "lgkm", "load": "vm", "dma": "vm", "store": "vm"}.get(kind)
        s.earliest = earliest
        s.maxdl = maxdl
        s.dummy = dummy
        s.anchor = anchor
        s.preds = []; s.succs = []; s.win = None; s.pos = None; s.m = None
        s.prod = {}

def blockpos(cfg, s, u):
    s0 = (cfg.sigma0 or cfg.sigma)[u]
    if s0 <= s < s0 + 8: return (0, s - s0)
    if cfg.sigma[u] + 8 <= s < cfg.sigma[u] + 32: return divmod(s - cfg.sigma[u], 8)
    return (None, None)

def build(cfg, s0, s1, steady):
    sg = cfg.sigma
    NP = 4
    last = 32 + max(sg)
    def li(s, u): return (s - sg[u]) % 8 if steady else blockpos(cfg, s, u)[1]
    def qk_on(s, u): return li(s, u) is not None
    def pv_on(s, u): return li(s - 1, u) is not None
    def order_qk(s, kb):
        us = [u for u in range(4) if qk_on(s, u)]
        if kb == 3:
            f = [u for u in us if li(s, u) == 7]
            us = f + [u for u in us if u not in f]
        if kb == 0:
            f = [u for u in us if li(s, u) == 0]
            us = [u for u in us if u not in f] + f
        return us
    prog = []
    A = prog.append
    chain = 0
    pend_q = []
    def qload(key, earliest=None, dummy=False, alt=False):
        if alt:
            A(Op(key + ("m0",), f"s_add_u32 m0, s{sMq}, {0x8000 - KSH}", "salu", [], ["m0"]))
            for i in range(4):
                A(Op(key + (i,), f"buffer_load_dwordx4 v{vQd}, s[{sQ_}:{sQ_+3}], s{sQo} offen offset:{i*1024} {cfg.q_nt} lds".replace("  ", " "), "dma",
                     [f"s{sQo}", "m0"], [f"Qa{i}"], earliest=earliest))
            A(Op(key + ("inc",), f"s_add_u32 s{sQo}, s{sQo}, 4096", "salu", [f"s{sQo}"], [f"s{sQo}"]))
            return
        A(Op(key + ("m0",), f"s_mov_b32 m0, s{sMq}", "salu", [], ["m0"], dummy=dummy))
        for i in range(4):
            A(Op(key + (i,), f"buffer_load_dwordx4 v{vQd}, s[{sQ_}:{sQ_+3}], s{sQo} offen offset:{i*1024} {cfg.q_nt} lds".replace("  ", " "), "dma",
                 [f"s{sQo}", "m0"] + [f"Qrd{d}" for d in range(4)], [f"Qs{i}"], earliest=earliest, dummy=dummy))
        A(Op(key + ("inc",), f"s_add_u32 s{sQo}, s{sQo}, 4096", "salu", [f"s{sQo}"], [f"s{sQo}"], dummy=dummy))
    def qread(key, u, earliest=None, dummy=False, alt=False):
        for ds in range(4):
            d = aQ + 16 * u + 4 * ds
            if alt:
                A(Op(key + (ds,), f"ds_read_b128 {at(d,4)}, v{vQr} offset:{0x8000 - KSH + ds*64}", "ds", [f"Qa{i}" for i in range(4)], ar(d, 4) + [f"Qar{ds}"], earliest=earliest))
                continue
            A(Op(key + (ds,), f"ds_read_b128 {at(d,4)}, v{vQr} offset:{ds*64}", "ds", [f"Qs{i}" for i in range(4)], ar(d, 4) + [f"Qrd{ds}"], earliest=earliest, dummy=dummy))
    def kfrag(s, kb, ds):
        t = s % 8
        if (t, kb, ds) == (1, 0, 0): return ("v", vKp1)
        if t == 0 or (not steady and s >= 34): return ("a", aKp + kb * 16 + ds * 4)
        if not steady and s <= 4: return ("a", aK + kb * 16 + ds * 4)
        return ("a", aK + (kb & 1) * 16 + ds * 4)
    def vperm_(sv): return sv % 8 == TV and (steady or sv >= 8)
    def vfrag(sv, db):
        if sv % 8 == TV or (not steady and sv < TV): return aVp + db * 8
        if not steady and sv >= 34 and db >= 4: return aQ + (db - 4) * 8
        return aV + (db & 3) * 8
    rt = lambda f, n: f"{f[0]}[{f[1]}:{f[1]+n-1}]"
    rr = lambda f, n: [f"{f[0]}{f[1]+i}" for i in range(n)]
    def vslot(sv):
        if not steady and sv in (2, 3, 34, 35): return sv & 1
        if not steady and sv == 37: return 3
        return 2 + (((sv - TV - 1) % 8) & 1)
    def vprev(sv):
        if vslot(sv) < 2: return ["Kret67"] if sv > 8 else []
        p = sv - 1
        while p >= 0 and (vslot(p) != vslot(sv) or vperm_(p)): p -= 1
        return [f"Vret{p}"] if p >= 0 else []
    vissued = set()
    def vdma(sv, earliest=None):
        vissued.add(sv)
        A(Op(("m0", sv), f"s_mov_b32 m0, s{sM0 + vslot(sv)}", "salu", ["setup~"], ["m0"]))
        for i in range(4):
            A(Op(("dma", sv, i), f"buffer_load_dwordx4 v{vD0}, s[{sV_}:{sV_+3}], s{sTile + sv % 8} offen offset:{i*1024} {cfg.v_pol0 if (not steady and sv < cfg.v_n0) else cfg.v_pol} lds".replace("  ", " "), "dma",
                 ["m0"] + vprev(sv), [f"Vd{sv}_{i}"], earliest=earliest))
    kstage = {}
    def kregs(t):
        u = KST[t][0]; h = KST[t][1]
        if h == "P": return [vP + (ds >> 1) * 32 + u * 8 + (ds & 1) * 4 for ds in range(4)]
        return [vOa + (h * 4 + ds) * 16 + u * 4 for ds in range(4)]
    KST = cfg.kst
    if cfg.k_up == 8: KST = [(0, 0), (0, 1), (1, 0), (1, 1), (2, 0), (2, 1), (3, 0), (3, 1)]
    def kload(t, earliest=None):
        for ds, r in enumerate(kregs(t)):
            A(Op(("kld", t, ds), f"buffer_load_dwordx4 {vt(r,4)}, v{vKl}, s[{sK_}:{sK_+3}], s{sTile + t} offen offset:{ds*1024} {cfg.k_pol}".rstrip(), "load",
                 [], vr(r, 4), earliest=earliest))
    tmpc = [0]
    def kscale(t, earliest=None):
        for ds, r in enumerate(kregs(t)):
            for j in range(4):
                x = r + j; tm = TMPS[tmpc[0] % NT]; tmpc[0] += 1
                k = ("ksc", t, ds, j)
                A(Op(k + (0,), f"v_lshlrev_b32 v{tm}, 16, v{x}", "valu", vr(x), vr(tm), earliest=earliest))
                A(Op(k + (1,), f"v_and_b32 v{x}, s{sMask}, v{x}", "valu", vr(x), vr(x), earliest=earliest))
                A(Op(k + (2,), f"v_mul_f32 v{tm}, s{sScale}, v{tm}", "valu", vr(tm), vr(tm)))
                A(Op(k + (3,), f"v_mul_f32 v{x}, s{sScale}, v{x}", "valu", vr(x), vr(x)))
                A(Op(k + (4,), f"v_cvt_pk_bf16_f32 v{x}, v{tm}, v{x}", "valu", vr(tm) + vr(x), vr(x)))
            tl = 3 if t == 0 else t
            if t == 4 and ds == 0:
                A(Op(("kwa", t, ds), f"v_add_u32 v{vKw}, {0x10000 - KSH}, v{vKw}", "valu", vr(vKw), vr(vKw)))
            a = vKw + (1 if (t == 1 and ds < 2) else 0)
            A(Op(("kw", t, ds), f"ds_write_b128 v{a}, {vt(r,4)} offset:{(tl & 3) * 16384 + (ds >> 1) * 4096 + (ds & 1) * 128 - (KSH if tl < 4 else 0)}", "dsw",
                 vr(r, 4) + vr(a) + (["K0dead"] if t in (3, 4) else []) + (["Qadead"] if (t == 2 and " q1" in cfg.plan) else []) + ([f"Vret{v}" for v in range(2, t - 3)] if t >= 6 and cfg.deep else []), [f"Kw{t}_{ds}"]))
    nmf = [0]
    kpub = set()
    def kread1(s, t, kb):
        for ds in range(4):
            perm = t == 0 or (t, kb, ds) == (1, 0, 0)
            if perm and (steady or s > 7): continue
            d = kfrag(s, kb, ds); tl = 3 if t == 0 else (4 if perm else t)
            A(Op(("kr", s, kb, ds), f"ds_read_b128 {rt(d,4)}, v{vKr + 2 * (tl >> 2) + (ds & 1)} offset:{(tl & 3) * 16384 + kb * 4096 + ds * 1024 - (KSH if tl < 4 else 0)}", "ds",
                 [] if (steady or s > 7) else [f"Kok{t}"], rr(d, 4) + ([] if not perm else [f"Kr0_{kb}_{ds}" if t == 0 else "Kr1"])))
    kdone0 = set(); kscaled = []
    later = {}
    if not steady:
        H = (-1, 0)
        def issue(item, when):
            n0 = len(prog)
            n = int(item[1:]) if item[1:].isdigit() else None
            if item[0] == "K": kload(n, when)
            elif item[0] == "Q": qload(("q0", n) if n < 4 else ("q", 8, 0), when)
            elif item[0] == "R": qread(("qr0", n), n, when)
            elif item[0] == "q": qload(("q0", n), when, alt=True)
            elif item[0] == "x": qread(("qr0", n), n, when, alt=True)
            elif item[0] == "V": vdma(n, when)
            elif item[0] == "S": kscale(n, when); kscaled.append(n)
            elif item[0] == "r": kread1(0, 0, n); kdone0.add(n)
            elif item[0] == "W":
                A(Op(("wt", 0, item), "s_nop 0", "valu", vr(kregs(int(item[1]))[int(item[2])], 4), []))
            elif item[0] == "P":
                A(Op(("cpf", 1), f"buffer_load_dword v{vJ}, v{vJ}, s[{sC_}:{sC_+3}], 0 offen {cfg.c_pol}".rstrip(), "load", [], ["junk"], earliest=when))
            elif item[0] == "H":
                A(Op(("hop", 0), "@HOPS", "valu", [], [], earliest=when, maxdl=when))
            elif item[0] == "T":
                A(Op(("ts", 0, item), f"s_memrealtime s[{64+2*n}:{65+2*n}]", "valu", [], []))
            elif item[0] == "X":
                A(Op(("wt", 0, item), "s_nop 0", "valu", [f"Qs{i}" for i in range(4)], []))
            elif item[0] == "B":
                pub = [t for t in kscaled if t not in kpub]; kpub.update(pub)
                A(Op(("bar", -1), "s_barrier", "bar", ["Czero"] + [f"Kw{t}_{ds}" for t in pub for ds in range(4)], [f"Kok{t}" for t in pub], anchor=H))
            elif item[0] == "C":
                pf = f"global_load_dword v{vJ}, v[{vS+14}:{vS+15}], off"
                if cfg.early_pf and cfg.vtouch:
                    tx = head2(cfg).split("@CPF")[1].strip().replace(f"    s_mov_b32 s{sO_+2}, 0x10000", f"    buffer_load_dword v{vS+14}, off, s[{sV_}:{sV_+3}], s{sMq} {cfg.v_pol0}\n    s_mov_b32 s{sO_+2}, 0x10000")
                    A(Op(("cpf", 0), tx, "load", [], vr(vS + 14), earliest=when, cost=300))
                elif cfg.early_pf:
                    A(Op(("cpf", 0), head2(cfg).split("@CPF")[1].strip(), "valu", [], [], earliest=when, cost=300))
                elif cfg.pf2:
                    p1 = f"""    s_lshr_b32 s{sTmp+4}, s{sWave}, 1
    s_lshl1_add_u32 s{sTmp+4}, s2, s{sTmp+4}
    s_lshl_b32 s{sTmp+4}, s{sTmp+4}, 7
    v_and_b32 v{vS+15}, 0x70, v{vKl}
    buffer_load_dword v{vS+15}, v{vS+15}, s[{sC_}:{sC_+3}], s{sTmp+4} offen"""
                    A(Op(("cpf", 0), head2(cfg).replace("@CPF", p1).strip(), "load", [], vr(vS + 15), earliest=when, cost=300))
                elif " P" in cfg.plan: A(Op(("cpf", 0), head2(cfg).replace("@CPF\n", "").strip(), "valu", [], [], earliest=when, cost=300))
                else: A(Op(("cpf", 0), head2(cfg).replace("@CPF", "    " + pf).strip(), "load", [], ["junk"], earliest=when, cost=300))
                A(Op(("setup", 0), "s_nop 0", "valu", [], ["setup~", f"s{sExp}"]))
                A(Op(("cz", 1), f"ds_write_b32 v{vCnt}, v{vPoll}", "dsw", [], ["Czero"], cost=8))
            if when == H:
                for x in prog[n0:]: x.maxdl = H
        for item in cfg.plan.split():
            if "@" not in item: issue(item, H)
            else:
                it, pos = item.split("@"); st, fr = pos.split(".")
                later.setdefault(int(st), []).append((it, fr))
    for s in range(s0, s1):
        t = s % 8
        uq = [u for u in range(4) if qk_on(s, u)]
        up = order_qk(s - 1, 3) if (steady or s > 0) else []
        up = [u for u in up if pv_on(s, u)]
        qk = [(kb, u) for kb in range(4) for u in order_qk(s, kb)]
        if not steady and s in cfg.qlag:
            qk.sort(key=lambda c: (c[0] + (cfg.qlag[s] + 0.5 if (li(s, c[1]) == 0 and c[1] > 0) else 0)))
        pv = []
        fin = [u for u in up if li(s - 1, u) == 7]
        ones_order = fin + [u for u in up if u not in fin]
        for db in range(8):
            for u in up: pv.append(("pv", db, u))
        npv = len(pv)
        ins = {}
        for i, u in enumerate(ones_order):
            if u in fin: p = len(up)
            else: p = len(up) + (npv - len(up)) * i // max(1, len(ones_order))
            ins.setdefault(p, []).append(("one", 0, u))
        pv2 = []
        for i, c in enumerate(pv):
            pv2 += ins.get(i, []); pv2.append(c)
        pv = pv2
        seq = []
        if qk:
            j = 0
            lag = 1 if len(uq) <= 2 and pv else 0
            if not steady and s in cfg.lags: lag = cfg.lags[s]
            for i, c in enumerate(qk):
                seq.append(("qk",) + c)
                tgt = math.ceil(max(0, i + 1 - lag) * len(pv) / (len(qk) - lag))
                while j < tgt: seq.append(pv[j]); j += 1
        else:
            seq = pv
        nm = sum({"qk": 4, "pv": 2, "one": 1}[c[0]] for c in seq)
        beta = cfg.beta if len(uq) >= 3 else cfg.beta_small
        barpos = int(beta * nm)
        if not steady and s in cfg.betas: barpos = int(cfg.betas[s] * nm)
        vdone = set(); kdone = set(kdone0) if (s == 0 and not steady) else set(); bar_done = False
        Pw = vP + 32 * (s & 1); Pr = vP + 32 * ((s - 1) & 1)
        def vreads(db):
            if db in vdone or vperm_(s - 1): return
            vdone.add(db)
            for ks in range(2):
                for h in range(2):
                    d = vfrag(s - 1, db) + ks * 4 + h * 2
                    A(Op(("vr", s, db, ks, h), f"ds_read_b64_tr_b16 {at(d,2)}, v{vV+(db>>1)} offset:{vslot(s-1)*VSTR + ks*4096 + h*2048 + (db&1)*8}", "ds",
                         [f"Vok{s-1}"], ar(d, 2) + [f"Vr{s-1}_{db}_{ks}_{h}"]))
        def kreads(kb):
            if kb in kdone: return
            kdone.add(kb); kread1(s, t, kb)
        def barrier():
            rd = []; wr = []
            pubv, retv, nxt = [s], [s - 1], [s + 1]
            if vperm_(s + 1): retv = []; nxt = []
            if vperm_(s): pubv = []; retv = [s - 2, s - 1]
            if vperm_(s - 1): retv = []
            if not steady:
                retv = {1: [], 2: [0], 3: [1], 4: [2], 5: [3, 4], 34: []}.get(s, retv)
                if s >= 33:
                    if s not in cfg.tailpub: return
                    pubv = cfg.tailpub[s]
                    if s > 33: retv = []; nxt = []
                nxt = {0: [], 1: [], 2: [4], 3: [5], 4: [], 32: [33, 34, 35], 33: [37], 34: []}.get(s, nxt)
                if s == 32: wr.append("Kret67")
                nxt = [v for v in nxt if v < last and v not in vissued and not any(it == f"V{v}" for l in later.values() for it, _ in l)]
            for v in retv:
                if v < 0: continue
                if v == s - 1:
                    for db in range(8): vreads(db)
                rd += [f"Vr{v}_{db}_{ks}_{h}" for db in range(8) for ks in range(2) for h in range(2)]
                wr.append(f"Vret{v}")
            for v in pubv:
                assert steady or v in vissued, v
                rd += [f"Vd{v}_{i}" for i in range(4)]; wr.append(f"Vok{v}")
            if not steady and s + 1 <= 7 and s + 1 not in kpub:
                if s + 1 not in kscaled: kscale(s + 1, ((s - 1, "bar") if s >= 1 else (-1, 0))); kscaled.append(s + 1)
                kpub.add(s + 1)
                rd += [f"Kw{s+1}_{ds}" for ds in range(4)]; wr.append(f"Kok{s+1}")
            if not steady and s == 0 and " q1" in cfg.plan:
                rd += [f"Qar{ds}" for ds in range(4)]; wr.append("Qadead")
            if not steady and s == 1:
                rd += [f"Kr0_{kb}_{ds}" for kb in range(4) for ds in range(4)]; wr.append("K0dead")
                rd.append("Kr1")
            if (steady or s >= cfg.split_from) and len(uq) >= cfg.split_min_u:
                ag = cfg.arr_gap if len(uq) >= 3 else cfg.arr_gap_small
                A(Op(("arr", s), f"ds_add_u32 v{vCnt}, v{vCone}", "dsw", rd, ["Carr"], cost=8, anchor=(s, "bar", -ag - cfg.ds_lat - 2)))
                A(Op(("exp", s), f"s_add_u32 s{sExp}, s{sExp}, 4", "salu", [f"s{sExp}"], [f"s{sExp}"]))
                A(Op(("pol", s), f"ds_read_b32 v{vPoll}, v{vCnt}", "ds", ["Carr~"], vr(vPoll), anchor=(s, "bar", -cfg.ds_lat - 2)))
                A(Op(("cmp", s), f"v_readfirstlane_b32 s{sPol}, v{vPoll}", "valu", vr(vPoll), [f"s{sPol}"], anchor=(s, "bar", -3)))
                A(Op(("sc", s), f"s_cmp_lt_u32 s{sPol}, s{sExp}", "bar", [f"s{sPol}", f"s{sExp}"], ["scc"], anchor=(s, "bar", -1)))
                A(Op(("bar", s), f"s_cbranch_scc1 L_spin{s if (not steady and (s < cfg.loop_from or s >= 32)) else 16 + s % 8}", "bar", ["scc"] + vr(vPoll) + [f"s{sExp}", f"s{sPol}"], wr, anchor=(s, "bar")))
            else:
                A(Op(("bar", s), "s_barrier", "bar", rd, wr, anchor=(s, "bar")))
            for v in nxt: vdma(v, None)
            for it, fr in later.get(s, []):
                if fr == "b": issue(it, (s, "bar"))
        todo_items = [(it, int(fr) / 10 ** len(fr)) for it, fr in later.get(s, []) if fr != "b"]
        mcount = 0
        for c in seq:
            if not bar_done and mcount >= barpos:
                barrier(); bar_done = True
            while todo_items and mcount >= todo_items[0][1] * nm:
                issue(todo_items.pop(0)[0], (s, "off", mcount))
            if c[0] == "qk":
                _, kb, u = c
                kreads(kb)
                if kb == 0 and li(s, u) == 0 and (steady or s - sg[u] >= 8):
                    qread(("qr", s, u), u, earliest=None if (steady or qk_on(s - 1, u)) else (s - 1, "frac", 0.75))
                    un = (u + 1) % 4; sn = s + (sg[un] - sg[u]) % 8
                    pend_q.append((("q", sn, un), not steady and sn - sg[un] >= 8 * NP))
                    if True:
                        k_, d_ = pend_q.pop(); qload(k_, dummy=d_)
                S = vS + 4 * (chain % 4); chain += 1
                for ds in range(4):
                    kf = kfrag(s, kb, ds); qf = aQ + u * 16 + ds * 4
                    A(Op(("qk", s, kb, u, ds), f"v_mfma_f32_16x16x32_bf16 {vt(S,4)}, {rt(kf,4)}, {at(qf,4)}, {'0' if ds == 0 else vt(S,4)}", "mfma",
                         rr(kf, 4) + ar(qf, 4) + ([] if ds == 0 else vr(S, 4)), vr(S, 4)))
                for r in range(4):
                    A(Op(("ex", s, kb, u, r), f"v_exp_f32 v{S+r}, v{S+r}", "trans", vr(S + r), vr(S + r)))
                pd = Pw + u * 8 + kb * 2
                for r in range(2):
                    tx = f"v_perm_b32 v{pd+r}, v{S+2*r+1}, v{S+2*r}, s{sPerm}" if cfg.trunc else f"v_cvt_pk_bf16_f32 v{pd+r}, v{S+2*r}, v{S+2*r+1}"
                    A(Op(("cv", s, kb, u, r), tx, "valu", vr(S + 2 * r, 2), vr(pd + r)))
                mcount += 4
            elif c[0] == "pv":
                _, db, u = c
                vreads(db)
                first = li(s - 1, u) == 0
                o = vOa + db * 16 + u * 4
                for ks in range(2):
                    vf = vfrag(s - 1, db) + ks * 4; pf = Pr + u * 8 + ks * 4
                    z = first and ks == 0
                    A(Op(("pv", s, db, u, ks), f"v_mfma_f32_16x16x32_bf16 {vt(o,4)}, {at(vf,4)}, {vt(pf,4)}, {'0' if z else vt(o,4)}", "mfma",
                         ar(vf, 4) + vr(pf, 4) + ([] if z else vr(o, 4)), vr(o, 4)))
                mcount += 2
            else:
                _, _, u = c
                first = li(s - 1, u) == 0
                l = vL + 4 * u
                if first:
                    for r in range(2): A(Op(("lz", s, u, r), f"v_mov_b32 v{l+r}, 0", "valu", [], vr(l + r)))
                pf = Pr + u * 8
                A(Op(("on", s, u), f"v_smfmac_f32_16x16x64_bf16 {vt(l,4)}, {vt(vOne,4)}, {vt(pf,8)}, v{vIdx}", "mfma", vr(pf, 8) + vr(l, 2), vr(l, 4)))
                mcount += 1
        if not bar_done: barrier()
        for it, _ in todo_items: issue(it, (s, "off", mcount))
        if not steady and s == 31:
            qread(("qr", 32, 0), 0, dummy=True)
            qload(("q", 32 + sg[1], 1), dummy=True)
        if not steady and s == 7:
            A(Op(("vo2", 7), f"v_xor_b32 v{vO2}, 0x840, v{vO}", "valu", [], vr(vO2)))
            if cfg.full_until < 39: A(Op(("vo3", 7), f"v_cndmask_b32 v{vO3}, v{vO}, v{vO2}, vcc", "valu", vr(vO2) + ["junk"], vr(vO3)))
        for u in sorted(fin):
            l = vL + 4 * u; R = vR + 2 * (u & 1)
            DPP = "row_ror:8 row_mask:0xf bank_mask:0xf"
            pol = cfg.st_last if (not steady and s >= cfg.st_last_from) else cfg.st_pol
            A(Op(("la", s, u), f"v_add_f32 v{l}, v{l}, v{l+1}", "valu", vr(l, 2), vr(l)))
            A(Op(("rc", s, u), f"v_rcp_f32 v{R}, v{l}", "trans", vr(l), vr(R)))
            full = cfg.full_until > 0 if steady else s < cfg.full_until
            if full: A(Op(("r2", s, u), f"v_mov_b32_dpp v{R+1}, v{R} {DPP}", "valu", vr(R), vr(R + 1)))
            A(Op(("ck", s, u), f"v_max3_u32 v{vChk}, v{vChk}, v{l}, v{R}", "valu", vr(vChk) + vr(l) + vr(R), vr(vChk)))
            for db in range(8):
                o = vOa + db * 16 + u * 4
                for r in range(4):
                    if full and db & 2: A(Op(("mu", s, u, db, r), f"v_mul_f32_dpp v{o+r}, v{o+r}, v{R+1} {DPP}", "valu", vr(o + r) + vr(R + 1), vr(o + r)))
                    else: A(Op(("mu", s, u, db, r), f"v_mul_f32 v{o+r}, v{o+r}, v{R}", "valu", vr(o + r) + vr(R), vr(o + r)))
                if db & 1:
                    e = o - 16
                    A(Op(("oc", s, u, db, 3), f"v_cvt_pk_bf16_f32 v{o+3}, v{o+2}, v{o+3}", "valu", vr(o + 2, 2), vr(o + 3)))
                    A(Op(("oc", s, u, db, 2), f"v_cvt_pk_bf16_f32 v{o+2}, v{o}, v{o+1}", "valu", vr(o, 2), vr(o + 2)))
                    A(Op(("oc", s, u, db, 0), f"v_cvt_pk_bf16_f32 v{o}, v{e}, v{e+1}", "valu", vr(e, 2), vr(o)))
                    A(Op(("oc", s, u, db, 1), f"v_cvt_pk_bf16_f32 v{o+1}, v{e+2}, v{e+3}", "valu", vr(e + 2, 2), vr(o + 1)))
                    if not full:
                        A(Op(("st", s, u, db), f"buffer_store_dwordx4 {vt(o,4)}, v{vO3}, s[{sO_}:{sO_+3}], s{sOo} offen offset:{(db-1)*32} {pol}".rstrip(), "store",
                             vr(o, 4) + [f"s{sOo}"] + vr(vO3), [], cost=20))
                if full and db & 3 == 3:
                    a = o - 32; x = o - 16
                    for r in range(4):
                        A(Op(("sx", s, u, db, r), f"v_cndmask_b32 v{x+r}, v{a+r}, v{o+r}, vcc", "valu", vr(a + r) + vr(o + r), vr(x + r)))
                    A(Op(("st", s, u, db - 1), f"buffer_store_dwordx4 {vt(x,4)}, v{vO}, s[{sO_}:{sO_+3}], s{sOo} offen offset:{(db>>2)*128} {pol}".rstrip(), "store",
                         vr(x, 4) + [f"s{sOo}"], [], cost=20))
                    for r in range(4):
                        A(Op(("sy", s, u, db, r), f"v_cndmask_b32 v{o+r}, v{o+r}, v{a+r}, vcc", "valu", vr(a + r) + vr(o + r), vr(o + r)))
                    A(Op(("st", s, u, db), f"buffer_store_dwordx4 {vt(o,4)}, v{vO2}, s[{sO_}:{sO_+3}], s{sOo} offen offset:{(db>>2)*128} {pol}".rstrip(), "store",
                         vr(o, 4) + [f"s{sOo}"] + vr(vO2), [], cost=20))
            if not steady and 32 <= s < last:
                for x in prog:
                    if x.key[:3] == ("st", s, u): x.maxdl = (s + 1, "frac", (x.key[3] + 1) / 8 * cfg.tail_dl)
            A(Op(("oinc", s, u), f"s_add_u32 s{sOo}, s{sOo}, 4096", "salu", [f"s{sOo}"], [f"s{sOo}"]))
    return prog

def link(cfg, prog):
    lastw = {}; readers = {}
    m = 0
    for x in prog:
        if x.kind == "mfma": x.m = m; m += 1
    for x in prog:
        e = {}
        def add(p, typ):
            if p is x: return
            soft = hard = 0
            if p.kind == "mfma":
                if x.kind == "mfma": return
                if typ in ("raw", "waw"): soft = cfg.mv_lat + (2 if p.key[0] == "on" else 0)
                elif x.kind in ("valu", "trans"): soft = 1
            elif x.kind == "mfma":
                hard = soft = 1
                if typ == "raw":
                    soft = cfg.ds_lat if p.kind == "ds" else (1 if p.kind == "load" else 2)
                elif p.kind == "store": soft = 2
            elif x.kind == "bar" or x.key[0] == "arr":
                hard = 1; soft = {"ds": cfg.ds_lat, "dsw": cfg.ds_lat, "dma": 2}.get(p.kind, 1)
            elif p.kind == "bar":
                soft = hard = 0
            elif p.kind == "salu":
                soft = 2; hard = 1 if x.kind != "salu" else 1
            elif x.kind == "salu":
                soft = hard = 1
            elif typ == "raw":
                if p.kind == "trans": soft = 1
                elif p.kind == "ds" and x.kind == "dma": soft = cfg.ds_lat
                elif p.kind == "valu" and x.kind in ("store", "dsw", "ds"): soft = 1
                elif p.kind == "valu" and "permlane" in x.text: soft = 2
                if "_dpp" in x.text: soft = 2
            else:
                if p.kind in ("valu", "trans") and x.kind in ("load", "ds", "dma"): soft = 1
                if p.kind in ("store", "dsw"): soft = 1
            o = e.get(id(p))
            e[id(p)] = (p, max(soft, o[1]) if o else soft, max(hard, o[2]) if o else hard)
        for r in x.reads:
            if r in lastw: add(lastw[r], "raw"); x.prod[r] = lastw[r].key
        for r in x.writes:
            if r in lastw: add(lastw[r], "waw")
            for p in readers.get(r, []): add(p, "war")
        for r in x.reads: readers.setdefault(r, []).append(x)
        for r in x.writes: lastw[r] = x; readers[r] = []
        x.preds = list(e.values())
        for p, so, ha in x.preds: p.succs.append((x, so, ha))
    return m

def semantic_check(cfg, prog):
    sg = cfg.sigma
    nq = 0; qblk = {}; nst = 0
    for x in prog:
        k = x.key; P = [x.prod.get(r) for r in x.reads]
        def exp(idx, f):
            for i in idx: assert P[i] is not None and f(P[i]), ("semantic", k, x.reads[i], P[i])
        if x.dummy: continue
        if k[0] == "ksc" and k[4] in (0, 1): exp([0], lambda p: p == ("kld", k[1], k[2]))
        if k[0] == "ksc" and k[4] in (2, 3): exp([0], lambda p: p == k[:4] + (k[4] - 2,))
        if k[0] == "ksc" and k[4] == 4: exp([0], lambda p: p == k[:4] + (2,)); exp([1], lambda p: p == k[:4] + (3,))
        if k[0] == "kw": exp(range(4), lambda p: p[:3] == ("ksc", k[1], k[2]) and p[4] == 4); exp(range(5, len(P)), lambda p: p[0] == "bar")
        if k[0] in ("bar", "arr"): exp(range(len(P)), lambda p: True)
        if k[0] == "kr" and k[1] < 8: exp([0], lambda p: p[0] == "bar")
        if k[0] == "vr": exp([0], lambda p: p[0] == "bar")
        if k[0] == "dma": exp([0], lambda p: p == ("m0", k[1])); exp(range(1, len(P)), lambda p: p[0] == "bar")
        if k[0] in ("q", "q0") and k[-1] == "inc": qblk[k[:-1]] = nq; nq += 1
        if k[0] in ("q", "q0") and isinstance(k[-1], int): exp([1], lambda p: p == k[:-1] + ("m0",))
        if k[0] in ("qr", "qr0"):
            u = k[-2]; n = 0 if k[0] == "qr0" else (k[1] - sg[u]) // 8
            exp(range(4), lambda p: qblk[p[:-1]] == 4 * n + u)
        if k[0] == "qk":
            _, s, kb, u, ds = k; n, i_ = blockpos(cfg, s, u); s0 = s - i_
            exp(range(4), lambda p: p[0] == "kr" and p[1] % 8 == s % 8 and p[2:] == (kb, ds))
            exp(range(4, 8), lambda p: p == (("qr0", u, ds) if n == 0 else ("qr", s0, u, ds)))
            exp(range(8, len(P)), lambda p: p == ("qk", s, kb, u, ds - 1))
        if k[0] == "ex": exp([0], lambda p: p == ("qk",) + k[1:4] + (3,))
        if k[0] == "cv": exp([0, 1], lambda p: p[:4] == ("ex",) + k[1:4])
        if k[0] == "pv":
            _, s, db, u, ks = k
            exp(range(4), lambda p: p[0] == "vr" and p[1] % 8 == s % 8 and p[2:4] == (db, ks))
            exp(range(4, 8), lambda p: p[0] == "cv" and p[1] == s - 1 and p[2] >> 1 == ks and p[3] == u)
            exp(range(8, len(P)), lambda p: p == (("pv", s, db, u, 0) if ks else ("pv", s - 1, db, u, 1)))
        if k[0] == "on":
            exp(range(8), lambda p: p[0] == "cv" and p[1] == k[1] - 1 and p[3] == k[2])
            exp([8, 9], lambda p: p[:3] == ("lz", k[1], k[2]) or p == ("on", k[1] - 1, k[2]))
        if k[0] == "la": exp([0, 1], lambda p: p == ("on", k[1], k[2]))
        if k[0] == "mu": exp([0], lambda p: p == ("pv", k[1], k[3], k[2], 1)); exp([1], lambda p: p[0] in ("rc", "r2") and p[1:] == k[1:3])
        if k[0] == "oc": exp([0, 1], lambda p: p[:3] == ("mu",) + k[1:3])
        if k[0] == "oinc":
            assert nst == 4 * blockpos(cfg, k[1] - 1, k[2])[0] + k[2], k
            nst += 1
    assert nst == 16

def step_of(x): return x.key[1]

def schedule(cfg, prog, nm, pins=None, lo=None, hi=None):
    pins = pins or {}; lo = lo or {}; hi = hi or {}
    start = {}; barw = {}
    cur = -1
    for x in prog:
        if x.kind == "mfma":
            cur = x.m; start.setdefault(x.key[1], x.m)
        elif x.key[0] == "bar": barw[x.key[1]] = cur
    def W(a):
        if a[0] == -1: return -1
        if a[1] == "bar": return barw.get(a[0], nm - 1) + (a[2] if len(a) > 2 else 0)
        if a[1] == "frac": return start[a[0]] - 1 + int(a[2] * (start.get(a[0] + 1, nm) - start[a[0]]))
        if a[1] == "off": return max(0, start[a[0]] - 1 + a[2])
        return start[a[0]] - 1
    fill = [x for x in prog if x.kind != "mfma"]
    for x in prog:
        if x.kind == "mfma": x.win = x.m
    for i, x in enumerate(prog): x.idx = i
    for x in reversed(fill):
        if x.key in pins: x.dls = x.dlh = pins[x.key][0]; continue
        if x.anchor: x.dls = x.dlh = W(x.anchor); continue
        ds = dh = nm - 1
        for y, so, ha in x.succs:
            if y.dummy and y.key not in pins: continue
            if y.kind == "mfma": ds = min(ds, y.m - so); dh = min(dh, y.m - ha)
            else: ds = min(ds, y.dls - so); dh = min(dh, y.dlh - ha)
        if x.key in hi: ds = min(ds, hi[x.key]); dh = min(dh, hi[x.key])
        if x.maxdl: ds = min(ds, W(x.maxdl)); dh = min(dh, W(x.maxdl))
        x.dls, x.dlh = ds, max(dh, -1)
    wins = {w: [] for w in range(-1, nm)}
    for x in fill:
        x.win = None
        x.lo = max(W(x.earliest) if x.earliest else -1, lo.get(x.key, -1))
        if x.anchor: x.lo = x.dlh
    pinned_by_win = {}
    for x in fill:
        if x.key in pins: pinned_by_win.setdefault(pins[x.key][0], []).append(x)
    todo = [x for x in fill if x.key not in pins and not x.dummy]
    todo.sort(key=lambda x: x.idx)
    credit = [0]
    bucket = [0]
    def nbytes(x):
        if x.kind in ("salu", "bar"): return 4
        if x.kind in ("valu", "trans"):
            return 8 if ("_dpp" in x.text or x.text.split()[0] in ("v_cvt_pk_bf16_f32", "v_perm_b32", "v_max3_u32") or "0x" in x.text) else 4
        return 8
    mfl = [x for x in prog if x.kind == "mfma"]
    def ready(x, w, soft):
        if w < x.lo: return False
        for p, so, ha in x.preds:
            if p.dummy and p.key not in pins: continue
            if p.win is None: return False
            lat = ha
            if soft and (p.kind not in ("load", "dma", "ds", "dsw") or x.kind == "dma"): lat = so
            if p.kind in ("store", "dsw") and soft: lat = max(lat, min(so, 1))
            if w == -1 or w == nm - 1: lat = 0
            if w < p.win + lat: return False
        return True
    for w in range(-1, nm):
        if w in pinned_by_win:
            for x in sorted(pinned_by_win[w], key=lambda x: pins[x.key][1]):
                x.win = w; wins[w].append(x)
        if pins and cfg._loop[0] <= w < cfg._loop[1]: continue
        cap = 8 if w >= 0 else 0
        if w >= 0 and mfl[w].key[0] == "on": cap = 4
        cap0 = cap
        rate = 8
        if cfg.smooth and pins and 0 <= w < nm - 1:
            acc = 0
            for x in sorted((x for x in todo[:900] if x.dls <= w + 120), key=lambda x: x.dls):
                acc += min(x.cost, 8)
                rate = max(rate, acc / (max(x.dls, w) - w + 1))
            credit[0] = credit[0] + rate - 8 if rate > 8.2 else 0
            credit[0] = min(credit[0], rate)
            extra = int(credit[0] // 4) * 4
            cap += extra
        used = 0
        cur = wins[w]
        def place(x):
            nonlocal used
            x.win = w; cur.append(x); used += min(x.cost, 8); todo.remove(x)
        while True:
            cand = [x for x in todo[:700] if ready(x, w, True) or (w >= x.dlh and ready(x, w, False))]
            if not cand: break
            z = [x for x in cand if x.kind in ("salu", "bar")]
            if z:
                place(z[0]); continue
            forced = [x for x in cand if x.dls <= w]
            if w == -1 or w == nm - 1:
                if not forced: break
                place(min(forced, key=lambda x: x.idx)); continue
            hasvalu_dep = lambda x: x.kind in ("ds", "dsw", "load", "dma", "store") and any(p.win == w and p.kind in ("valu", "trans") for p, _, _ in x.preds)
            hard_forced = forced
            if hard_forced:
                place(min(hard_forced, key=lambda x: (x.dls, x.idx))); continue
            if used >= cap: break
            nb = lambda x: 1024 if "b128" in x.text else 512
            dsb = sum(nb(x) for x in cur if x.kind == "ds")
            tight = rate > 8.2
            recent = (not tight) and any(y.kind == "ds" for k in range(1, cfg.ds_gap) for y in wins.get(w - k, []))
            vmk = ("load", "dma", "store")
            vgap = max(1, int(cfg.vm_gap * 16 / (8 + rate)))
            recent_vm = any(y.kind in vmk for k in range(0, vgap) for y in wins.get(w - k, []))
            sgap = max(1, int(cfg.st_gap * 16 / (8 + rate)))
            if any(y.kind == "store" for k in range(0, sgap) for y in wins.get(w - k, [])):
                cand = [x for x in cand if x.kind != "store" and not (cfg.st_gap_all and x.kind in vmk)]
            dcap = cfg.ds_cap * (8 + cap) // 16
            if cfg.st_block and any(-4 * cfg.vm_gap <= b - w <= cfg.st_block for b in barw.values()):
                cand = [x for x in cand if x.kind != "store"]
            cand = [x for x in cand if (x.kind != "ds" or (not recent and dsb + nb(x) <= dcap)) and not (x.kind in vmk and recent_vm and not (getattr(x, "nogap", False) and used == 0))]
            if not cand: break
            cand.sort(key=lambda x: (-99999 if (x.kind in ("load", "dma", "dsw", "store") or (cfg.qr_asap and x.key[0] == "qr")) else x.dls, x.idx))
            if cfg.fetch_thr is not None and not tight and bucket[0] >= cfg.fetch_thr and cap - used >= 8 and cand[0].dls > w + cfg.fetch_slack:
                tr = [x for x in cand if x.kind == "trans"]
                if tr: place(tr[0]); continue
            if cap - used >= 8:
                top = cand[0]
                if top.cost >= 8: place(top); continue
                small = [x for x in cand if x.cost == 4]
                big = [x for x in cand if x.cost >= 8]
                fits = lambda a, b: not (a.kind == "ds" and b.kind == "ds" and dsb + nb(a) + nb(b) > dcap)
                partner = any(fits(top, y) for y in small if y is not top) or any(y.cost == 4 and so == 0 and y.win is None and y.kind == "valu" and all(p.win is not None or p is top for p, _, _ in y.preds) for y, so, ha in top.succs)
                if partner or not big or (cap - used) % 8: place(top)
                else: place(big[0])
                continue
            small = [x for x in cand if x.cost == 4]
            if not small: break
            place(small[0])
        bts = 8 + sum(nbytes(x) for x in cur if x.kind not in ("salu", "bar")) + (4 if any(x.kind not in ("valu", "trans") for x in cur) else 2)
        bucket[0] = max(0, bucket[0] + bts - 22 * max(16, 8 + sum(x.cost for x in cur)) // 16)
        if w >= 0: credit[0] -= max(0, min(used, cap) - cap0)
        if w not in (-1, nm - 1):
            order = {"bar": 0, "salu": 0, "dma": 1, "load": 1, "store": 1, "dsw": 1, "ds": 1, "valu": 2, "trans": 2}
            lvl = {}
            for x in cur:
                l = order[x.kind]
                for p, _, _ in x.preds:
                    if p.win == w and p.kind != "mfma": l = max(l, lvl[id(p)])
                lvl[id(x)] = l
            cur.sort(key=lambda x: lvl[id(x)])
    assert not todo, [x.key for x in todo[:10]]
    for w, c in wins.items():
        for i, x in enumerate(c): x.pos = i
    return wins, start

def norm(key, d):
    return (key[0], key[1] + d) + tuple(key[2:])

class Ins:
    def __init__(s, text, op=None, kind=None):
        s.text, s.op, s.kind = text, op, kind or (op.kind if op else "salu")
        s.vm = None; s.lg = None

def generate(cfg):
    last = 32 + max(cfg.sigma)
    cfg.q_ahead = getattr(cfg, "q_ahead", 2)
    cfg.code_pf_n = getattr(cfg, "code_pf_n", 2)
    sp = build(cfg, 0, 56, True); nms = link(cfg, sp)
    swins, sstart = schedule(cfg, sp, nms)
    per = sstart[8] - sstart[0]
    ok = None
    for b in (16, 24, 32):
        same = all([x.text for x in swins[sstart[b] + i]] == [x.text for x in swins[sstart[b + 8] + i]] and
                   [norm(x.key, 8) for x in swins[sstart[b] + i]] == [x.key for x in swins[sstart[b + 8] + i]] for i in range(per))
        if same: ok = b; break
    assert ok is not None, "steady state not periodic"
    rp = build(cfg, 0, last + 1, False)
    E_ = cfg.loop_from
    off0 = sstart[ok + E_ - 8] - sstart[ok]
    inloop = {norm(x.key, 8 + 8 * it - ok) for it in range(3) for i in range(per) for x in swins[sstart[ok] + i] if it or i >= off0}
    rp = [x for x in rp if not x.dummy or x.key in inloop]
    nm = link(cfg, rp)
    semantic_check(cfg, rp)
    rstart = {}
    for x in rp:
        if x.kind == "mfma": rstart.setdefault(x.key[1], x.m)
    L0, L1 = rstart[E_], rstart[32]
    assert L1 - L0 == 3 * per - off0
    XP = L0 + per - off0
    cfg._loop = (L0, L1)
    pins = {}
    for it in range(3):
        for i in range(per):
            for x in swins[sstart[ok] + i]:
                if it or i >= off0: pins[norm(x.key, 8 + 8 * it - ok)] = (L0 - off0 + it * per + i, x.pos)
    keys = {x.key: x for x in rp}
    assert len(keys) == len(rp)
    missing = [k for k in pins if k not in keys]
    assert not missing, missing[:10]
    lo = {}; hi = {}
    mid = (keys[("qk", 20, 0, 0, 0)])
    midx = rp.index(mid)
    for i, x in enumerate(rp):
        if x.kind == "mfma" or x.key in pins: continue
        if i < midx: hi[x.key] = L0 - 1
        else: lo[x.key] = L1
    wins, start = schedule(cfg, rp, nm, pins, lo, hi)
    mf = [x for x in rp if x.kind == "mfma"]
    def stat(w):
        return L0 + (w - L0) % per if L0 <= w < L1 else w
    free = {}
    pre = {}
    for w in range(-1, nm):
        if stat(w) == w:
            free[w] = []
            if w not in (-1, nm - 1):
                for x in wins[w]:
                    if x.kind == "bar": free[w].append(Ins(x.text, x))
    def body(w):
        if w in (-1, nm - 1): return wins[w]
        return [x for x in wins[w] if x.kind not in ("salu", "bar")]
    def walk(fix):
        q = {"vm": [], "lgkm": []}
        pend = {}
        hist = {}
        changed = False
        def dowait(ins):
            for c, n in (("vm", ins.vm), ("lgkm", ins.lg)):
                if n is None: continue
                while len(q[c]) > n:
                    d = q[c].pop(0)
                    for r in d.writes:
                        if pend.get(r) is d: del pend[r]
        def need(x):
            n = {}
            for r in x.reads + x.writes:
                p = pend.get(r)
                if p is not None and not (r in x.writes and r not in x.reads and p.cnt == x.cnt):
                    n[p.cnt] = p if (p.cnt not in n or q[p.cnt].index(p) > q[p.cnt].index(n[p.cnt])) else n[p.cnt]
            return n
        def issue(x):
            if x.cnt:
                q[x.cnt].append(x)
                for r in x.writes:
                    if r != "stord": pend[r] = x
        def setw(ins, c, n):
            n = min(n, 62 if c == "vm" else 14)
            if c == "vm": ins.vm = n if ins.vm is None else min(ins.vm, n)
            else: ins.lg = n if ins.lg is None else min(ins.lg, n)
        def handle(x, w, pos, cands):
            nonlocal changed
            n = need(x)
            if not n: return
            assert fix, ("unwaited", x.key, {c: p.key for c, p in n.items()})
            changed = True
            for c, p in n.items():
                done = False
                for cw in cands:
                    if cw < 0 or cw == nm - 1 or cw not in hist: continue
                    snap = hist[cw][c]
                    if p not in snap: continue
                    fl = free[stat(cw)]
                    wi = [i for i in fl if i.kind == "wait"]
                    if not wi and fl and cw != cands[-1]: continue
                    if not wi:
                        wi = [Ins("", None, "wait")]; fl.insert(0, wi[0])
                    setw(wi[0], c, len(snap) - 1 - snap.index(p)); done = True; break
                if not done:
                    ins = pre.setdefault((stat(w), pos), Ins("", None, "wait"))
                    setw(ins, c, len(q[c]) - 1 - q[c].index(p))
                while p in q[c]:
                    d = q[c].pop(0)
                    for r in d.writes:
                        if pend.get(r) is d: del pend[r]
        for w in range(-1, nm):
            if w >= 0:
                if (stat(w), "m") in pre: dowait(pre[(stat(w), "m")])
                handle(mf[w], w, "m", [w - 1, w - 2])
            hist[w] = {c: list(v) for c, v in q.items()}
            hist.pop(w - 4, None)
            for ins in list(free[stat(w)]):
                if ins.kind == "wait": dowait(ins)
                elif ins.kind == "bar":
                    x = [y for y in wins[w] if y.kind == "bar"][0]
                    handle(x, w, "b", [w - 1, w - 2, w])
            for pos, x in enumerate(body(w)):
                if (stat(w), pos) in pre: dowait(pre[(stat(w), pos)])
                handle(x, w, pos, [w, w - 1])
                issue(x)
        return changed
    for _ in range(10):
        if not walk(True): break
    walk(False)
    for w in range(0, nm - 1):
        if stat(w) != w: continue
        for x in wins[w]:
            if x.kind != "salu": continue
            hiw = min([y.win - (1 if "m0" in x.writes or y.kind == "salu" else 0) for y, _, _ in x.succs if y.win is not None] + [w + 40, nm - 2])
            if L0 <= w < XP: hiw = min(hiw, XP - 3)
            elif XP <= w < L0 + per: hiw = min(hiw, L0 + per - 1)
            elif w < L0: hiw = min(hiw, L0 - 1)
            hiw = max(hiw, w)
            c = [k for k in range(w, hiw + 1) if not free[k]]
            c2 = [k for k in c if body(k) and body(k)[0].kind in ("ds", "dma", "load", "store", "dsw")]
            k = c2[0] if c2 else (c[0] if c else w)
            if any(i.text.startswith("s_cmp") for i in free[k]): free[k].insert(0, Ins(x.text, x))
            else: free[k].append(Ins(x.text, x))
    k = [k for k in range(XP - 2, XP) if not free[k]]
    k = k[0] if k else XP - 1
    if any(i.text.startswith("s_add") for kk in range(k + 1, XP) for i in free[kk]): k = XP - 1
    free[k].append(Ins(f"s_sub_u32 s{sCnt}, s{sCnt}, 1"))
    if cfg.nop_ds:
        for w in range(0, nm - 1):
            if stat(w) == w and not free[w] and body(w) and body(w)[0].kind in ("ds", "dma", "load", "store", "dsw"):
                free[w].append(Ins("s_nop 0", None, "nop"))
    def wtext(i):
        t = "s_waitcnt"
        if i.vm is not None: t += f" vmcnt({i.vm})"
        if i.lg is not None: t += f" lgkmcnt({i.lg})"
        return t
    code = {}
    for w in range(-1, nm):
        if stat(w) != w: continue
        l = []
        if w >= 0:
            if (w, "m") in pre: l.append(pre[(w, "m")])
            l.append(Ins(mf[w].text, mf[w]))
        l += free[w]
        for pos, x in enumerate(body(w)):
            if (w, pos) in pre: l.append(pre[(w, pos)])
            l.append(Ins(x.text, x))
        for i in l:
            if i.kind == "wait": i.text = wtext(i)
        code[w] = l
    def wcost(l, head=False):
        t = 0; base = 0; lastvalu = -99; blk = 8
        for i in l:
            if i.kind == "mfma": base = t; t += 4; blk = 12 if "smfmac" in i.text else 8; continue
            if i.kind in ("salu", "wait", "bar", "nop"): t += 4; continue
            if i.kind == "nopx": t += 4 * (int(i.text.split()[1]) + 1); continue
            if not head: t = max(t, base + blk)
            if i.kind in ("valu", "trans"): t += i.op.cost; lastvalu = t
            else:
                t = max(t, lastvalu + 8) + i.op.cost
        return t if head else max(t, base + 16)
    def hazards(fix):
        seq = []
        changed = False
        for w in range(-1, nm):
            l = code[stat(w)]
            j = 0
            while j < len(l):
                i = l[j]; x = i.op
                needn = 0
                if x is not None and x.kind not in ("salu", "bar"):
                    dist = 0
                    for p, st, pwin in reversed(seq):
                        y = p.op
                        if y is not None:
                            req = 0
                            raw = set(y.writes) & set(x.reads); waw = set(y.writes) & set(x.writes); war = set(y.reads) & set(x.writes)
                            if y.kind == "mfma":
                                if x.kind == "mfma":
                                    if set(y.writes) & set(x.reads[:8]): req = 8
                                elif raw or waw: req = 12 if y.key[0] == "on" else 8
                                elif war and x.kind in ("valu", "trans") and set(y.writes) & set(x.writes): req = 3
                            elif y.kind in ("valu", "trans"):
                                if raw and x.kind == "mfma": req = 2
                                if raw and ("permlane" in x.text or "_dpp" in x.text): req = 2
                                if raw and y.kind == "trans" and x.kind != "trans": req = max(req, 1)
                            elif y.kind in ("store", "dsw") and war and y.cost == 20: req = 2
                            elif y.kind == "salu" and "m0" in y.writes and x.kind == "dma": req = 1
                            if req - dist > needn: needn = req - dist; pw = pwin
                        dist += st
                        if dist >= 12: break
                if needn > 0:
                    assert fix, ("hazard", x.key)
                    for k in range(w, pw - 1, -1):
                        if k < 0: break
                        lk = code[stat(k)]
                        mi = [n for n, z in enumerate(lk) if z.kind == "mfma"][0]
                        places = []
                        if k > pw and (k < w or j > mi): places.append(mi + 1)
                        if k < w: places.append(len(lk))
                        ok_ = False
                        for pl in places:
                            tr = lk[:pl] + [Ins("s_nop 0", None, "nopx")] + lk[pl:]
                            if wcost(tr) == wcost(lk): lk[:] = tr; ok_ = True; break
                        if ok_: return True
                    l.insert(j, Ins(f"s_nop {needn-1}", None, "nopx")); changed = True
                    continue
                st = int(i.text.split()[1]) + 1 if i.text.startswith("s_nop") else 1
                seq.append((i, st, w)); seq = seq[-14:]
                j += 1
        return changed
    while hazards(True): pass
    lastw = {}; seen = set()
    for w in range(-1, nm):
        it = (w - L0) // per if L0 <= w < L1 else 0
        for i in code[stat(w)]:
            if i.op is None: continue
            x = keys[norm(i.op.key, 8 * it)]
            assert x.text == i.text, (x.text, i.text)
            assert x.key not in seen; seen.add(x.key)
            if not x.dummy:
                for r in x.reads:
                    assert lastw.get(r) == x.prod.get(r), ("dataflow", x.key, r, lastw.get(r), x.prod.get(r))
            for r in x.writes: lastw[r] = x.key
    assert all(x.key in seen or x.dummy for x in rp), [x.key for x in rp if x.key not in seen and not x.dummy][:5]
    est = {}
    for s in range(0, last + 1):
        e = rstart.get(s + 1, nm)
        est[s] = (sum(wcost(code[stat(w)]) for w in range(rstart[s], e)), (e - rstart[s]) * 16)
    cfg.est = est; cfg.est_head = wcost(code[-1], True)
    out = []
    cfg.spins = []
    E = out.append
    stamp_at = getattr(cfg, "stamp_steps", [])
    inv = {v: k for k, v in rstart.items()}
    for w in range(-1, nm):
        if stat(w) != w: continue
        if w == L0:
            if cfg.stamps and 7.9 in stamp_at:
                j = stamp_at.index(7.9); E(f"    s_memrealtime s[{64+2*j}:{65+2*j}]")
            E("L_loop:")
        if w in inv:
            E(f"; ---- step {inv[w]} ----")
            if cfg.jitter:
                E(f"    s_cmp_lg_u32 s{sWave}, {(inv[w] * cfg.jitter[1]) & 3}\n    s_cbranch_scc1 L_j{inv[w]}\n    s_sleep {cfg.jitter[0]}\nL_j{inv[w]}:")
            if cfg.stamps and inv[w] in stamp_at:
                j = stamp_at.index(inv[w]); E(f"    s_memrealtime s[{64+2*j}:{65+2*j}]")
        for i in code[w]:
            if i.op is not None and i.op.key[0] in cfg.kill and (L0 if cfg.kill_from is None else cfg.kill_from) <= w: E("    s_nop 0")
            else: E("    " + i.text)
            if cfg.pad and i.kind == "mfma" and L0 <= w < L1 and w % cfg.pad == 0: E("    s_nop 4")
            if i.text.startswith("s_cbranch_scc1 L_spin"):
                n = i.text.split("L_spin")[1]; E(f"L_back{n}:"); cfg.spins.append(n)
        if off0 == 0:
            if w == L0 + per - 1: E("    s_cbranch_scc0 L_loop")
        else:
            if w == XP - 1: E("    s_cbranch_scc1 L_tail")
            if w == L0 + per - 1: E("    s_branch L_loop"); E("L_tail:")
    lastscc = None
    for l in out:
        t = l.strip()
        if t.startswith(("s_add", "s_sub", "s_cmp", "s_and", "s_lsh", "s_bfe", "s_or", "s_xor", "s_not")): lastscc = t
        if t.startswith("s_cbranch_scc1 L_spin"): assert lastscc.startswith("s_cmp_lt_u32"), lastscc
        if t.startswith(("s_cbranch_scc0 L_loop", "s_cbranch_scc1 L_tail")): assert lastscc.startswith(f"s_sub_u32 s{sCnt}"), lastscc
    return "\n".join(out)

def fbits(x): return struct.unpack("<I", struct.pack("<f", x))[0]

def head(cfg):
    T = vS
    h = f"""    s_load_dwordx4 s[4:7], s[0:1], 0          ; q, k
    s_load_dwordx4 s[8:11], s[0:1], 16        ; v, out
"""
    if cfg.x8: h = "    s_load_dwordx8 s[4:11], s[0:1], 0         ; q, k, v, out\n"
    if cfg.stamps: h += f"    s_load_dwordx2 s[56:57], s[0:1], {32 if cfg.stamps in ('dbg', 'skew') else 40}\n    s_memrealtime s[60:61]\n"
    h += f"""    v_lshrrev_b32 v{T}, 6, v0
    v_and_b32 v{T+4}, 63, v0                  ; lane
    v_readfirstlane_b32 s{sWave}, v{T}
    s_cmp_ge_u32 s2, 256
    s_cbranch_scc1 L_end
    v_and_b32 v{T+1}, 15, v0                  ; l & 15
    v_bfe_u32 v{T+2}, v0, 4, 2                ; l >> 4
    v_lshlrev_b32 v{vKl}, 4, v{T+4}           ; lane*16
    s_and_b32 s{sTmp}, s2, 7
    s_lshr_b32 s{sTmp+1}, s2, 3
    s_lshl_b32 s{sTmp}, s{sTmp}, 5
    s_add_u32 s{sTmp}, s{sTmp}, s{sTmp+1}
    s_lshl2_add_u32 s{sTmp+2}, s{sTmp}, s{sWave}
    s_lshl_b32 s{sTmp+2}, s{sTmp+2}, 16       ; q/o byte offset of this wave
    s_lshr_b32 s{sTmp}, s{sTmp}, 2
    s_lshl_b32 s{sTmp}, s{sTmp}, 17           ; k/v byte offset of the group
    s_lshl_b32 s{sMq}, s{sWave}, 12           ; wave*4096
    s_add_u32 s{sTmp+3}, s{sTmp}, s{sMq}
    s_sub_u32 s{sK_+2}, 0x20000, s{sMq}
    s_mov_b32 s{sK_+3}, 0x20000
    s_mov_b32 s{sQ_+3}, s{sK_+3}
    s_mov_b32 s{sQ_+2}, 0x10000
"""
    if cfg.rot:
        h += f"""    s_bfe_u32 s{sTmp+4}, s2, 0x20003
    s_mul_i32 s{sTile}, s{sTmp+4}, {cfg.rot*16384}
    s_and_b32 s{sTile}, s{sTile}, 0x1ffff
    s_add_u32 s{sTile+1}, s{sTile}, 16384
    s_and_b32 s{sTile+1}, s{sTile+1}, 0x1ffff
"""
    elif cfg.xor:
        h += f"""    s_lshl_b32 s{sTile}, s2, {11 + cfg.xor[1]}
    s_and_b32 s{sTile}, s{sTile}, {cfg.xor[0] << 14:#x}
    s_xor_b32 s{sTile+1}, s{sTile}, 0x4000
"""
    else: h += f"    s_mov_b32 s{sTile}, 0\n    s_movk_i32 s{sTile+1}, 0x4000\n"
    h += f"""    s_mov_b32 s{sQo}, 0
    v_lshlrev_b32 v{T+3}, 8, v{T+2}           ; (l>>4)*256
    v_xor_b32 v{T+5}, v{T+1}, v{T+2}          ; (l&15) ^ (l>>4)
    v_lshl_add_u32 v{vQd}, v{T+5}, 4, v{T+3}  ; Q DMA source: row*256 + (pos^row)*16
{head2(cfg).split("@CPF")[0] + f"    global_load_dword v{vJ}, v[{T+14}:{T+15}], off" if cfg.early_pf else ""}
    s_waitcnt lgkmcnt(0)
    s_add_u32 s{sK_}, s6, s{sTmp+3}
    s_addc_u32 s{sK_+1}, s7, 0
    s_add_u32 s{sQ_}, s4, s{sTmp+2}
    s_addc_u32 s{sQ_+1}, s5, 0
"""
    if cfg.stamps: h += "    s_memrealtime s[62:63]\n"
    return h

def head2(cfg):
    c = math.log2(math.e) / math.sqrt(128.0)
    T = vS
    h = f"""    ; code prefetch into L2: 16 lines per wave, 8 KiB per workgroup
    s_getpc_b64 s[{sC_}:{sC_+1}]
L_pc:
    s_mov_b32 s{sC_+2}, L_slow - L_pc
    s_bfe_u32 s{sTmp+1}, s2, 0x30003
    s_lshl2_add_u32 s{sTmp+1}, s{sTmp+1}, s{sWave}
    s_lshl_b32 s{sTmp+1}, s{sTmp+1}, 11
    v_lshl_add_u32 v{vJ}, v{T+4}, 5, s{sTmp+1}
    v_min_u32 v{vJ}, s{sC_+2}, v{vJ}          ; stay inside the code
    v_mov_b32 v{T+15}, s{sC_+1}
    v_add_co_u32 v{T+14}, vcc, s{sC_}, v{vJ}
    s_nop 1
    v_addc_co_u32 v{T+15}, vcc, 0, v{T+15}, vcc
@CPF
    s_add_u32 s{sV_}, s8, s{sTmp}
    s_addc_u32 s{sV_+1}, s9, 0
    s_add_u32 s{sO_}, s10, s{sTmp+2}
    s_addc_u32 s{sO_+1}, s11, 0
    s_mov_b32 s{sV_+2}, 0x20000
    s_mov_b32 s{sV_+3}, 0x20000
    s_mov_b32 s{sO_+2}, 0x10000
    s_mov_b32 s{sO_+3}, 0x20000
"""
    for t in range(2, 8):
        if cfg.rot: h += f"    s_add_u32 s{sTile+t}, s{sTile+t-1}, 16384\n    s_and_b32 s{sTile+t}, s{sTile+t}, 0x1ffff\n"
        elif cfg.xor: h += f"    s_xor_b32 s{sTile+t}, s{sTile}, {t*16384}\n"
        else: h += f"    s_mov_b32 s{sTile+t}, {t*16384}\n"
    h += f"""    s_lshr_b32 s{sTmp+1}, s{sWave}, 1
    s_lshl3_add_u32 s{sTmp+4}, s{sTmp+1}, s{sMq}
    s_add_u32 s{sM0}, s{sTmp+4}, {VB}
    s_add_u32 s{sM0+1}, s{sTmp+4}, {VB + VSTR}
    s_add_u32 s{sM0+2}, s{sTmp+4}, {VB + 2 * VSTR}
    s_add_u32 s{sM0+3}, s{sTmp+4}, {VB + 3 * VSTR}
    s_mov_b32 s{sOo}, 0
    s_mov_b32 s{sExp}, 0
    s_mov_b32 s{sCnt}, 2
    s_mov_b32 s{sScale}, {fbits(c):#x}
    s_mov_b32 s{sMask}, 0xffff0000
{f"    s_mov_b32 s{sPerm}, 0x07060302" if cfg.trunc else ""}
    ; K fragment read addresses: g*256 + (row ^ g ^ 4*(ds&1))*16
    v_mov_b32 v{vKr}, v{vQd}
    v_xor_b32 v{vKr+1}, 64, v{vQd}
    v_add_u32 v{vKr+2}, {0x10000 - KSH}, v{vKr}
    v_add_u32 v{vKr+3}, {0x10000 - KSH}, v{vKr+1}
    ; K write address: key 16w+4i+r goes to block 2(w&1)+(i>>1), row 8(i&1)+4(w>>1)+r ; lane = 16r+c
    s_lshl_b32 s{sTmp+1}, s{sTmp+1}, 6
    s_and_b32 s{sTmp+4}, s{sWave}, 1
    s_lshl_b32 s{sTmp+5}, s{sTmp+4}, 13
    v_and_b32 v{T+6}, 7, v{T+5}
    v_lshlrev_b32 v{T+7}, 8, v{T+1}           ; (l&15)*256
    v_lshl_add_u32 v{T+6}, v{T+6}, 4, v{T+7}
    v_xor_b32 v{T+6}, s{sTmp+1}, v{T+6}
    v_add_u32 v{vKw}, s{sTmp+5}, v{T+6}
    v_cmp_gt_u32 vcc, 1024, v{vKw}            ; lanes that write fragment (.,0,0)
    v_add_u32 v{T+6}, {3 * 16384}, v{vKw}
    v_and_b32 v{T+8}, 3, v{T+5}
    v_cndmask_b32 v{vKw+1}, v{vKw}, v{T+6}, vcc
    v_lshl_add_u32 v{T+6}, v{T+8}, 4, v{T+7}
    v_add_u32 v{vQr}, s{sMq}, v{T+6}
    ; V DMA source offsets: row r=l>>4, 64-byte unit (c16>>2)^(key&3)
    v_lshlrev_b32 v{T+6}, 2, v{T+2}
    v_xor_b32 v{T+6}, v{T+6}, v{T+1}
    v_lshl_add_u32 v{T+6}, v{T+6}, 4, v{T+3}
    v_add_u32 v{vD0}, s{sMq}, v{T+6}
    ; V transposed-read addresses: lane = 16g+4r+c reads 8 bytes of chunk c of unit (db>>1)^r of key 32(g&1)+8kb+4(g>>1)+r
    v_bfe_u32 v{T+8}, v{T+4}, 2, 2            ; r
    v_lshlrev_b32 v{T+6}, 4, v{T+1}           ; r*64 + c*16
    v_lshl_add_u32 v{T+6}, v{T+8}, 8, v{T+6}
    v_lshrrev_b32 v{T+8}, 1, v{T+2}
    v_lshl_add_u32 v{T+6}, v{T+8}, 10, v{T+6}
    v_and_b32 v{T+8}, 1, v{T+2}
    v_mul_u32_u24 v{T+8}, 8200, v{T+8}
    v_add_u32 v{T+8}, {VB}, v{T+8}
    v_and_b32 v{T+9}, 3, v{T+4}
"""
    for m in range(4):
        if m: h += f"    v_xor_b32 v{T+10}, {m * 64}, v{T+6}\n"
        h += f"    v_add_u32 v{vV+m}, v{T+8}, v{T+10 if m else T+6}\n"
    h += f"""    ; output: a store covers 8 rows x 128 bytes: (l&7)*256 + ((l>>3)&1)*64 + g*16
    v_and_b32 v{T+10}, 0x700, v{T+7}
    v_lshl_add_u32 v{T+10}, v{T+2}, 4, v{T+10}
    v_and_b32 v{T+11}, 8, v{T+1}
    v_lshl_add_u32 v{vO}, v{T+11}, 3, v{T+10}
"""
    h += f"""    ; row-sum operand: rows 4i and 4i+1 are ones; they pick elements 0,1 and 2,3 of every group of four keys
    v_cmp_eq_u32 vcc, 1, v{T+9}
    v_mov_b32 v{T+6}, 0x44444444
    v_mov_b32 v{T+8}, 0xeeeeeeee
    v_cndmask_b32 v{vIdx}, v{T+6}, v{T+8}, vcc
    v_cmp_gt_u32 vcc, {0 if cfg.ones_rows == 0 else 2}, v{T+9 if cfg.ones_rows == 8 else T+1}
    v_mov_b32 v{T+6}, 0x3f803f80
    v_mov_b32 v{vChk}, {'-1' if cfg.force_slow else '0'}
    v_cndmask_b32 v{T+6}, 0, v{T+6}, vcc
    v_lshlrev_b32 v{vCnt}, 2, v{T+4}
    v_add_u32 v{vCnt}, 0x4000, v{vCnt}
    v_mov_b32 v{vOne}, v{T+6}
    v_mov_b32 v{vOne+1}, v{T+6}
    v_mov_b32 v{vOne+2}, v{T+6}
    v_mov_b32 v{vOne+3}, v{T+6}
    v_mov_b32 v{vCone}, 1
    v_mov_b32 v{vPoll}, 0
    s_mov_b32 vcc_lo, 0xff00ff00              ; lanes with (l & 8), used by the output selects
    s_mov_b32 vcc_hi, 0xff00ff00
"""
    return h

def tail(cfg):
    lim = (127 + cfg.limit_exp) << 23
    t = ""
    if cfg.stamps == "skew":
        t += """    s_mov_b32 s58, 256
    s_mov_b32 s59, 0x20000
    s_not_b32 s64, s60
    v_mov_b32 v64, s64
    v_mov_b32 v60, 0
    s_mov_b64 exec, 1
    s_cmp_lg_u32 s3, 0
    s_cbranch_scc1 L_sk1
    buffer_atomic_umax v64, v60, s[56:59], 0 offen
    s_waitcnt vmcnt(0)
L_sk1:
    s_memrealtime s[72:73]
    s_waitcnt lgkmcnt(0)
    s_sub_u32 s72, s72, s60
    s_cmp_lt_u32 s72, 8000
    s_cbranch_scc1 L_sk1
    buffer_load_dword v64, v60, s[56:59], 0 offen sc0 sc1
    s_waitcnt vmcnt(0)
    v_readfirstlane_b32 s64, v64
    s_nop 4
    s_not_b32 s64, s64
L_sk2:
    s_memrealtime s[72:73]
    s_waitcnt lgkmcnt(0)
    s_sub_u32 s72, s72, s64
    s_cmp_lt_u32 s72, 10000
    s_cbranch_scc1 L_sk2
    s_mov_b64 exec, -1
"""
    elif cfg.stamps == "spin":
        if not getattr(cfg, "stamp_steps", []): t += "    s_waitcnt vmcnt(0)\n    s_memrealtime s[64:65]\n"
        t += f"""    s_waitcnt lgkmcnt(0)
    {"s_sub_u32 s64, s66, s64" if len(getattr(cfg, "stamp_steps", [])) == 2 else "s_sub_u32 s64, s64, s60"}
    s_mul_i32 s64, s64, {getattr(cfg, "spin_mul", 0)}
    s_add_u32 s64, s64, 10000
L_spin:
    s_memrealtime s[72:73]
    s_waitcnt lgkmcnt(0)
    s_sub_u32 s72, s72, s60
    s_cmp_lt_u32 s72, s64
    s_cbranch_scc1 L_spin
"""
    elif cfg.stamps:
        e0 = 88 if cfg.stamps == "c16" else 72
        t += f"""    s_memrealtime s[{e0}:{e0+1}]
    s_waitcnt vmcnt(0)
    s_memrealtime s[{e0+2}:{e0+3}]
    s_mov_b32 s58, 0x10000000
    s_mov_b32 s59, 0x20000
    s_lshl_b32 s46, s2, 2
    s_add_u32 s46, s46, s3
    s_lshl_b32 s46, s46, 6
    s_waitcnt lgkmcnt(0)
"""
        for i in range(16): t += f"    v_mov_b32 v{64+i}, s{60+(2*i if cfg.stamps == 'c16' else i)}\n"
        t += "    v_mov_b32 v60, 0\n    s_mov_b64 exec, 1\n"
        if cfg.stamps == "dbg":
            t += "    s_mov_b32 s58, 256\n"
            for i in range(8):
                t += f"    v_not_b32 v{65+2*i}, v{64+2*i}\n"
            for i in range(16): t += f"    buffer_atomic_umax v{64+i}, v60, s[56:59], 0 offen offset:{4*i}\n"
        else:
          for i in range(4): t += f"    buffer_store_dwordx4 v[{64+4*i}:{67+4*i}], v60, s[56:59], s46 offen offset:{16*i}\n"
        t += "    s_mov_b64 exec, -1\n"
    t += f"""    v_cmp_lt_u32 vcc, {lim:#x}, v{vChk}
    s_nop 4
    s_cbranch_vccnz L_slow
L_end:
    s_endpgm
"""
    for n in cfg.spins:
        t += f"""L_spin{n}:
    ds_read_b32 v{vPoll}, v{vCnt}
    s_waitcnt lgkmcnt(0)
    v_readfirstlane_b32 s{sPol}, v{vPoll}
    s_nop 3
    s_cmp_lt_u32 s{sPol}, s{sExp}
    s_cbranch_scc1 L_spin{n}
    s_branch L_back{n}
"""
    S0, S1, M, T = 16, 20, 24, 25
    vQ = vQd; vKb = vKr + 2
    q = lambda ds: at(aQ + 4 * ds, 4)
    k = lambda j, ds: at(aK + j * 16 + 4 * ds, 4)
    t += f"""; Fallback: a row sum left [2^-{cfg.limit_exp}, 2^{cfg.limit_exp}] (or is not finite), so exp without an offset was not safe.
; This wave recomputes its 256 rows subtracting the true row maximum.  K is rebuilt in LDS; V goes through a private 8 KiB.
L_slow:
    s_waitcnt vmcnt(0) lgkmcnt(0)
    s_barrier                                 ; the other waves are done with LDS (ended or here)
    s_mov_b32 s{sQo}, 0
    s_lshl_b32 s{sTmp}, s{sWave}, 12
    s_lshl_b32 s{sTmp+1}, s{sWave}, 13
    s_add_u32 s{sTmp+2}, s{sTmp+1}, 0x20000
    s_add_u32 s{sTmp+3}, s{sTmp+2}, 4096
    v_subrev_u32 v{vD0}, s{sTmp}, v{vD0}
    v_bfe_u32 v{T}, v{vKl}, 4, 4              ; l & 15
    v_lshrrev_b32 v{T+1}, 8, v{vKl}           ; l >> 4
    v_lshlrev_b32 v{vQ}, 4, v{T+1}
    v_lshl_add_u32 v{vQ}, v{T}, 8, v{vQ}      ; Q rows in MFMA layout
    v_xor_b32 v{T+1}, v{T}, v{T+1}
    v_and_b32 v{T+1}, 7, v{T+1}
    v_lshlrev_b32 v{T+1}, 4, v{T+1}
    v_lshl_add_u32 v{vKw}, v{T}, 8, v{T+1}
    v_xor_b32 v{vKw+1}, 64, v{vKw}
    v_lshrrev_b32 v{T+1}, 6, v{vKl}           ; 4g+r
    v_lshlrev_b32 v{T+1}, 8, v{T+1}
    v_lshl_add_u32 v{T+1}, v{T}, 4, v{T+1}
    v_add_u32 v{vV}, s{sTmp+2}, v{T+1}
    v_xor_b32 v{vV+1}, 64, v{vV}
    v_xor_b32 v{vV+2}, 128, v{vV}
    v_xor_b32 v{vV+3}, 192, v{vV}
"""
    t += f"""    s_sub_u32 s{sK_}, s{sK_}, s{sTmp}
    s_subb_u32 s{sK_+1}, s{sK_+1}, 0
    s_mov_b32 s{sK_+2}, 0x20000
    s_mov_b32 s{sCnt}, 0
L_skld:
"""
    for i in range(4): t += f"    buffer_load_dwordx4 {vt(vOa+4*i,4)}, v{vKl}, s[{sK_}:{sK_+3}], s{sCnt} offen offset:{i*1024}\n"
    t += "    s_waitcnt vmcnt(0)\n"
    for x in range(vOa, vOa + 16):
        t += f"""    v_lshlrev_b32 v{T}, 16, v{x}
    v_and_b32 v{x}, s{sMask}, v{x}
    v_mul_f32 v{T}, s{sScale}, v{T}
    v_mul_f32 v{x}, s{sScale}, v{x}
    v_cvt_pk_bf16_f32 v{x}, v{T}, v{x}
"""
    for i in range(4): t += f"    ds_write_b128 v{vKw+(i&1)}, {vt(vOa+4*i,4)} offset:{(i>>1)*128}\n"
    t += f"""    s_waitcnt lgkmcnt(0)
    v_add_u32 v{vKw}, 4096, v{vKw}
    v_add_u32 v{vKw+1}, 4096, v{vKw+1}
    s_add_u32 s{sCnt}, s{sCnt}, 4096
    s_cmp_lt_u32 s{sCnt}, 0x20000
    s_cbranch_scc1 L_skld
"""
    t += "L_sblk:\n"
    for ds in range(4): t += f"    buffer_load_dwordx4 {q(ds)}, v{vQ}, s[{sQ_}:{sQ_+3}], s{sQo} offen offset:{ds*64}\n"
    t += f"""    v_mov_b32 v{M}, 0xff800000
    v_mov_b32 v{vKb}, v{vKr}
    v_mov_b32 v{vKb+1}, v{vKr+1}
    s_mov_b32 s{sCnt}, 32
    s_waitcnt vmcnt(0)
L_smax:
"""
    for ds in range(4): t += f"    ds_read_b128 {k(0,ds)}, v{vKb+(ds&1)} offset:{ds*1024}\n"
    t += "    s_waitcnt lgkmcnt(0)\n"
    for ds in range(4): t += f"    v_mfma_f32_16x16x32_bf16 {vt(S0,4)}, {k(0,ds)}, {q(ds)}, {'0' if ds == 0 else vt(S0,4)}\n"
    t += f"""    s_nop 7
    v_max3_f32 v{M}, v{M}, v{S0}, v{S0+1}
    v_max3_f32 v{M}, v{M}, v{S0+2}, v{S0+3}
    v_add_u32 v{vKb}, 4096, v{vKb}
    v_add_u32 v{vKb+1}, 4096, v{vKb+1}
    s_sub_u32 s{sCnt}, s{sCnt}, 1
    s_cmp_lg_u32 s{sCnt}, 0
    s_cbranch_scc1 L_smax
    v_mov_b32 v{T}, v{M}
    s_nop 1
    v_permlane16_swap_b32 v{M}, v{T}
    s_nop 1
    v_max_f32 v{M}, v{M}, v{T}
    v_mov_b32 v{T}, v{M}
    s_nop 1
    v_permlane32_swap_b32 v{M}, v{T}
    s_nop 1
    v_max_f32 v{M}, v{M}, v{T}
"""
    for r in range(4): t += f"    v_mov_b32 v{vL+r}, 0\n"
    for r in range(32): t += f"    v_mov_b32 v{vOa+r}, 0\n"
    t += f"""    v_mov_b32 v{vKb}, v{vKr}
    v_mov_b32 v{vKb+1}, v{vKr+1}
    s_mov_b32 s{sCnt}, 0
L_skey:
    s_mov_b32 m0, s{sTmp+2}
    s_mov_b32 s{sTmp+5}, s{sCnt}
    s_add_u32 s{sTmp+4}, s{sTmp+5}, 4096
"""
    for i in range(4): t += f"    buffer_load_dwordx4 v{vD0}, s[{sV_}:{sV_+3}], s{sTmp+5} offen offset:{i*1024} lds\n"
    t += f"    s_mov_b32 m0, s{sTmp+3}\n    s_nop 0\n"
    for i in range(4): t += f"    buffer_load_dwordx4 v{vD0}, s[{sV_}:{sV_+3}], s{sTmp+4} offen offset:{i*1024} lds\n"
    for j in range(2):
        for ds in range(4): t += f"    ds_read_b128 {k(j,ds)}, v{vKb+(ds&1)} offset:{j*4096+ds*1024}\n"
    t += "    s_waitcnt vmcnt(0) lgkmcnt(0)\n"
    for db in range(8):
        for h in range(2): t += f"    ds_read_b64_tr_b16 {at(aV+db*4+2*h,2)}, v{vV+(db>>1)} offset:{h*4096+(db&1)*8}\n"
    for j, S in enumerate((S0, S1)):
        for ds in range(4): t += f"    v_mfma_f32_16x16x32_bf16 {vt(S,4)}, {k(j,ds)}, {q(ds)}, {'0' if ds == 0 else vt(S,4)}\n"
    t += "    s_nop 7\n"
    for r in range(8): t += f"    v_sub_f32 v{S0+r}, v{S0+r}, v{M}\n"
    for r in range(8): t += f"    v_exp_f32 v{S0+r}, v{S0+r}\n"
    t += "    s_nop 0\n"
    for r in range(4): t += f"    v_cvt_pk_bf16_f32 v{vP+r}, v{S0+2*r}, v{S0+2*r+1}\n"
    t += f"    v_add_u32 v{vKb}, 8192, v{vKb}\n    v_add_u32 v{vKb+1}, 8192, v{vKb+1}\n    s_waitcnt lgkmcnt(0)\n    s_nop 0\n"
    t += f"    v_mfma_f32_16x16x32_bf16 {vt(vL,4)}, {vt(vOne,4)}, {vt(vP,4)}, {vt(vL,4)}\n"
    for db in range(8): t += f"    v_mfma_f32_16x16x32_bf16 {vt(vOa+4*db,4)}, {at(aV+db*4,4)}, {vt(vP,4)}, {vt(vOa+4*db,4)}\n"
    t += f"""    s_add_u32 s{sCnt}, s{sCnt}, 8192
    s_cmp_lt_u32 s{sCnt}, 0x20000
    s_cbranch_scc1 L_skey
    s_nop 7
    v_rcp_f32 v{vR}, v{vL}
    s_nop 0
"""
    for r in range(32): t += f"    v_mul_f32 v{vOa+r}, v{vOa+r}, v{vR}\n"
    for db in range(8):
        o = vOa + 4 * db; d = vP + 2 * db
        t += f"    v_cvt_pk_bf16_f32 v{d}, v{o}, v{o+1}\n    v_cvt_pk_bf16_f32 v{d+1}, v{o+2}, v{o+3}\n"
    if cfg.store_x4:
        t += "    s_nop 1\n"
        for db in range(0, 8, 2):
            d = vP + 2 * db
            if not cfg.vperm: t += f"    v_permlane16_swap_b32 v{d}, v{d+2}\n    v_permlane16_swap_b32 v{d+1}, v{d+3}\n"
            t += f"    buffer_store_dwordx4 {vt(d,4)}, v{vQ}, s[{sO_}:{sO_+3}], s{sQo} offen offset:{db*32}\n"
    else:
        for db in range(8): t += f"    buffer_store_dwordx2 {vt(vP+2*db,2)}, v{vO}, s[{sO_}:{sO_+3}], s{sQo} offen offset:{db*32}\n"
    t += f"""    s_add_u32 s{sQo}, s{sQo}, 4096
    s_cmp_lt_u32 s{sQo}, 0x10000
    s_waitcnt vmcnt(0)
    s_cbranch_scc1 L_sblk
    s_endpgm
"""
    return t

HDR = """; Kernarg layout for this problem (48 bytes, ptrs only, base s[0:1]):
;   offset   0: d_in[0] q  shape=(16, 32, 512, 128) dtype=bfloat16
;   offset   8: d_in[1] k  shape=(16, 4, 512, 128) dtype=bfloat16
;   offset  16: d_in[2] v  shape=(16, 4, 512, 128) dtype=bfloat16
;   offset  24: d_out     shape=(16, 32, 512, 128) dtype=bfloat16
;   offset  32: d_debug   256 bytes
;   offset  40: d_ws      268435456 bytes workspace (unused)
; @launch grid=(256,1,1) block=(256,1,1) lds=163840
;
; GQA attention forward, out = softmax(q k^T / sqrt(128)) v.  Generated by my own scheduling script.
; * One workgroup per CU: 1024 q rows against the 512 keys of one (batch, kv head); each wave owns 256 rows and keeps
;   four 16-row blocks in flight, started two key tiles apart (a block walks the eight 64-key tiles cyclically).
; * v_mfma_f32_16x16x32_bf16 for S^T = K Q^T and O^T = V^T P^T; P goes from the S registers straight into the B operand.
;   K is multiplied by log2(e)/sqrt(128) once and stays in LDS (one tile in registers); V streams through a two-slot LDS
;   ring by LDS-DMA (one tile in registers) and is read with ds_read_b64_tr_b16; Q is staged through LDS.
; * Row sums come from one v_smfmac per block and tile (rows of ones with complementary 2:4 index patterns).
; * Waves meet through an arrive/poll counter in LDS (s_barrier in the first steps).
; * Softmax guard: softmax is invariant under a per-row shift, so the main path uses shift 0 and CHECKS every row sum l
;   at run time: l and 1/l must both be <= 2^32 (this also rejects inf and NaN).  Inside that range nothing overflowed and
;   recomputes all its rows subtracting the true row maximum.
"""

PAD = """; Instruction prefetch stops at 4 KiB boundaries: start the kernel on one (the harness puts 0x300 bytes in front of the label).
.p2align 12
.fill 832, 4, 0xbf800000
"""

def add_hops(cfg, text):
    import subprocess, re, os, tempfile
    lines = text.split("\n")
    i0 = lines.index(KN + ":"); i1 = lines.index("L_end:")
    tmp = tempfile.mkdtemp()
    src = "\n".join(lines).replace("@HOPS", "\n".join(["    s_nop 0"] * 9))
    lines = src.split("\n"); i1 = lines.index("L_end:")
    hop0 = text.split("\n").index("@HOPS")
    open(tmp + "/a.s", "w").write(src)
    subprocess.run(["clang", "-x", "assembler", "-target", "amdgcn-amd-amdhsa", "-mcpu=gfx950", "-c", tmp + "/a.s", "-o", tmp + "/a.o"], check=True)
    dis = subprocess.run(["llvm-objdump", "-d", "--mcpu=gfx950", tmp + "/a.o"], capture_output=True, text=True).stdout
    dis = dis[dis.index("<" + KN + ">:"):]
    sizes = [4 * len(m.group(1).split()) for m in re.finditer(r"// [0-9A-F]{12}: ([0-9A-F ]+)", dis)]
    isins = lambda l: l.startswith("    ") and not l.strip().startswith(";") and l.strip()
    out = lines[:i0 + 1]; addr = 0; k = 0; page = 1; j = i0 + 1
    def look(j, k, addr, page):
        cands = []
        while addr < page * 4096 + 64 and j < i1:
            if isins(lines[j]):
                addr += sizes[k]; k += 1
                if "mfma" in lines[j] and page * 4096 <= addr <= page * 4096 + 60:
                    nx = lines[j + 1].strip()
                    cands.append((0 if nx == "s_nop 0" else (1 if nx.startswith("v_") else 2), j))
                elif page * 4096 <= addr <= page * 4096 + 60 and lines[j].strip().startswith("v_"): cands.append((3, j))
            j += 1
        return min(cands) if cands else None
    plan = None
    while j < i1:
        l = lines[j]
        if plan is None and addr >= page * 4096 - 64:
            plan = look(j, k, addr, page)
            if plan is None: page_end = True
        out.append(l)
        if isins(l): addr += sizes[k]; k += 1
        if plan and plan[1] == j:
            out.append(f"L_hop{page}:"); out.append(f"    s_cbranch_execz @NEXT{page}@"); addr += 4
            if plan[0] == 0: j += 1; k += 1
            plan = None; page += 1
        j += 1
    out += lines[i1:]
    np_ = page - 1
    r = "\n".join(out)
    for p in range(1, np_ + 1): r = r.replace(f"@NEXT{p}@", f"L_hop{p+4}" if p + 4 <= np_ else "L_hback")
    rl = r.split("\n")
    rl[hop0:hop0 + 9] = ["    s_mov_b64 exec, 0                         ; warm the instruction cache: visit the first line of every code page"] + \
        [x for w in range(3) for x in (f"    s_cmp_eq_u32 s{sWave}, {w}", f"    s_cbranch_scc1 L_hop{w+1}")] + ["    s_branch L_hop4", "L_hback:", "    s_mov_b64 exec, -1"]
    return "\n".join(rl)

def full(cfg):
    body = generate(cfg)
    r = full2(cfg, body)
    if getattr(cfg, "spin_cyc", 0):
        r = r.replace("s_memrealtime s[64:65]", "s_memtime s[64:65]").replace("s_memrealtime s[66:67]", "s_memtime s[66:67]").replace("s_memrealtime s[62:63]", "s_memtime s[62:63]")
        r = r.replace("s_sub_u32 s64, s64, s60", "s_sub_u32 s64, s64, s62").replace("s_mul_i32 s64, s64, 0", "s_lshr_b32 s64, s64, 1")
    if cfg.stamps in ("cyc", "c16"): r = r.replace("s_memrealtime", "s_memtime")
    if cfg.stamps == "both":
        import re
        r = re.sub(r"    s_memrealtime s\[(\d+):(\d+)\]", lambda m: f"    s_memtime s[{m.group(1)}:{m.group(2)}]\n    s_memrealtime s[{int(m.group(1))+20}:{int(m.group(2))+20}]", r)
        for i in range(8): r = r.replace(f"v_mov_b32 v{65+2*i}, s{61+2*i}\n", f"v_mov_b32 v{65+2*i}, s{80+2*i}\n")
    if "@HOPS" in r: r = add_hops(cfg, r.replace("    @HOPS", "@HOPS"))
    return r

def full2(cfg, body):
    return HDR + f""".amdgcn_target "amdgcn-amd-amdhsa--gfx950"
.text
.globl {KN}
{PAD if cfg.align else ""}.p2align 8
.type {KN},@function
{KN}:
""" + head(cfg) + body + "\n" + tail(cfg) + f""".section .rodata,"a"
.p2align 6
.amdhsa_kernel {KN}
  .amdhsa_next_free_vgpr 512
  .amdhsa_next_free_sgpr 102
  .amdhsa_accum_offset 256
  .amdhsa_group_segment_fixed_size 0
  .amdhsa_kernarg_size 48
  .amdhsa_user_sgpr_count 2
  .amdhsa_user_sgpr_kernarg_segment_ptr 1
  .amdhsa_system_sgpr_workgroup_id_x 1
.end_amdhsa_kernel
"""

if __name__ == "__main__":
    cfg = Cfg()
    name = sys.argv[1]
    for a in sys.argv[2:]:
        k, v = a.split("=", 1)
        try: v = eval(v)
        except Exception: pass
        setattr(cfg, k, v)
    s = full(cfg)
    open(name, "w").write(s)
    tot = sum(v[0] for v in cfg.est.values())
    print(name, "est head", cfg.est_head, "total", tot, "mfma", sum(v[1] for v in cfg.est.values()), file=sys.stderr)
    print(" ".join(f"{s}:{v[0]}/{v[1]}" for s, v in cfg.est.items() if s < 16 or s >= 32), file=sys.stderr)
```

```python
import sys, math, struct
KN = "standalone__gqa_softmax__near_ridge_kernel"

class Cfg:
    sigma = (0, 2, 4, 6)
    beta = 0.85
    beta_small = 0.55
    ds_lat = 9
    mv_lat = 4
    store_x4 = True
    q_nt = "nt"
    st_pol = "sc0 sc1"
    k_pol = "nt"
    v_pol = ""
    v_pol0 = "nt"
    rot = 0
    split_from = 4
    split_min_u = 2
    arr_gap = 10
    vm_gap = 5
    smooth = True
    stamps = False
    code_pf = True
    plan = "K0 Q0 C K1 H W00 V0 S0 B r0 r1 R0 K2 S1@0.0 V1@0.0 Q1@0.5 K3@1.0 V2@1.5 R1@2.0 K4@2.0 Q2@2.3 V3@2.6 K5@3.0 V4@3.4 K6@3.b R2@3.b Q3@4.0 K7@4.b R3@5.b Q4@6.0"
    vperm = True
    st_last = "sc0 sc1"
    st_last_from = 38
    ones_rows = 8
    trunc = False
    fake_st = False
    fake_v = False
    fake_m0 = 0
    v_n0 = 8
    st_block = 0
    c_pol = ""
    st_first = None
    st_pair = False
    fetch_thr = 1
    fetch_slack = 1
    st_gap = 16
    st_gap_all = False
    pf2 = False
    x8 = True
    qr_asap = True
    full_until = 33
    kst = [(1, 0), (1, 1), (2, 0), (2, 1), (3, 0), (3, 1), (3, "P"), (3, 0)]
    jitter = None
    xor = None
    qlag = {}
    lags = {}
    tailpub = {33: [33, 34], 35: [35, 37]}
    align = True
    early_pf = True
    sigma0 = None
    loop_from = 8
    vtouch = False
    group = 2
    group_min = 2
    rev = True
    snake = True
    on_first = True
    deep = True
    tail_dl = 1.0
    betas = {0: 0.95, 1: 0.9, 2: 0.8, 3: 0.8}
    arr_gap_small = 4
    k_up = 1
    force_slow = False
    nop_ds = True
    ds_gap = 2
    ds_cap = 1024
    kill_from = None
    pad = 0
    kill = ()
    limit_exp = 32

vQd, vO, vQr, vCnt, vD0, vD1, vChk = 1, 2, 3, 4, 5, 6, 7
vKl = 0
vV = 8
vS = 16
vL = 32
vR = 48
vKw = 50
vT = 52
NT = 5
vIdx = 57
vPoll = 58
vJ = 59
vKr = 60
vP = 64
vOa = 128
aQ, aKp, aVp, aK, aV = 0, 64, 128, 192, 224
vOne, vCone, vKp1, vO2, vO3 = 12, 6, 52, 56, 59
sPol = 40
TV = 4
TMPS = [44, 45, 46, 47, 56]
sQ_, sK_, sV_, sO_, sC_ = 12, 16, 20, 24, 28
sTile = 32
sM0 = 96
sQo, sOo, sCnt, sScale, sWave = 42, 43, 44, 45, 3
sTmp = 46
sMq, sExp, sMask, sPerm = 52, 53, 54, 55

VB, VSTR, KSH = 0x18000 - 32, 16384 + 8, 32
def vr(b, n=1): return [f"v{b+i}" for i in range(n)]
def ar(b, n=1): return [f"a{b+i}" for i in range(n)]
def vt(b, n): return f"v[{b}:{b+n-1}]"
def at(b, n): return f"a[{b}:{b+n-1}]"

class Op:
    def __init__(s, key, text, kind, reads, writes, cost=None, earliest=None, dummy=False, anchor=None, maxdl=None):
        s.key, s.text, s.kind, s.reads, s.writes = key, text, kind, list(reads), list(writes)
        s.cost = {"mfma": 0, "trans": 8, "valu": 4, "ds": 4, "dsw": 20, "load": 8, "dma": 8, "store": 12, "salu": 0, "bar": 0, "chk": 0}[kind] if cost is None else cost
        s.cnt = {"ds": "lgkm", "dsw": "lgkm", "load": "vm", "dma": "vm", "store": "vm"}.get(kind)
        s.earliest = earliest
        s.maxdl = maxdl
        s.dummy = dummy
        s.anchor = anchor
        s.preds = []; s.succs = []; s.win = None; s.pos = None; s.m = None
        s.prod = {}

def blockpos(cfg, s, u):
    s0 = (cfg.sigma0 or cfg.sigma)[u]
    if s0 <= s < s0 + 8: return (0, s - s0)
    if cfg.sigma[u] + 8 <= s < cfg.sigma[u] + 32: return divmod(s - cfg.sigma[u], 8)
    return (None, None)

def build(cfg, s0, s1, steady):
    sg = cfg.sigma
    NP = 4
    last = 32 + max(sg)
    def li(s, u): return (s - sg[u]) % 8 if steady else blockpos(cfg, s, u)[1]
    def qk_on(s, u): return li(s, u) is not None
    def pv_on(s, u): return li(s - 1, u) is not None
    def order_qk(s, kb):
        us = [u for u in range(4) if qk_on(s, u)]
        if kb == 3:
            f = [u for u in us if li(s, u) == 7]
            us = f + [u for u in us if u not in f]
        if kb == 0:
            f = [u for u in us if li(s, u) == 0]
            us = [u for u in us if u not in f] + f
        return us
    prog = []
    A = prog.append
    chain = 0
    pend_q = []
    def qload(key, earliest=None, dummy=False, alt=False):
        if alt:
            A(Op(key + ("m0",), f"s_add_u32 m0, s{sMq}, {0x8000 - KSH}", "salu", [], ["m0"]))
            for i in range(4):
                A(Op(key + (i,), f"buffer_load_dwordx4 v{vQd}, s[{sQ_}:{sQ_+3}], s{sQo} offen offset:{i*1024} {cfg.q_nt} lds".replace("  ", " "), "dma",
                     [f"s{sQo}", "m0"], [f"Qa{i}"], earliest=earliest))
            A(Op(key + ("inc",), f"s_add_u32 s{sQo}, s{sQo}, 4096", "salu", [f"s{sQo}"], [f"s{sQo}"]))
            return
        A(Op(key + ("m0",), f"s_mov_b32 m0, s{sMq}", "salu", [], ["m0"], dummy=dummy))
        for i in range(4):
            A(Op(key + (i,), f"buffer_load_dwordx4 v{vQd}, s[{sQ_}:{sQ_+3}], s{sQo} offen offset:{i*1024} {cfg.q_nt} lds".replace("  ", " "), "dma",
                 [f"s{sQo}", "m0"] + [f"Qrd{d}" for d in range(4)], [f"Qs{i}"], earliest=earliest, dummy=dummy))
        A(Op(key + ("inc",), f"s_add_u32 s{sQo}, s{sQo}, 4096", "salu", [f"s{sQo}"], [f"s{sQo}"], dummy=dummy))
    def qread(key, u, earliest=None, dummy=False, alt=False):
        for ds in range(4):
            d = aQ + 16 * u + 4 * ds
            if alt:
                A(Op(key + (ds,), f"ds_read_b128 {at(d,4)}, v{vQr} offset:{0x8000 - KSH + ds*64}", "ds", [f"Qa{i}" for i in range(4)], ar(d, 4) + [f"Qar{ds}"], earliest=earliest))
                continue
            A(Op(key + (ds,), f"ds_read_b128 {at(d,4)}, v{vQr} offset:{ds*64}", "ds", [f"Qs{i}" for i in range(4)], ar(d, 4) + [f"Qrd{ds}"], earliest=earliest, dummy=dummy))
    def kfrag(s, kb, ds):
        t = s % 8
        if (t, kb, ds) == (1, 0, 0): return ("v", vKp1)
        if t == 0 or (not steady and s >= 34): return ("a", aKp + kb * 16 + ds * 4)
        if not steady and s <= 4: return ("a", aK + kb * 16 + ds * 4)
        return ("a", aK + (kb & 1) * 16 + ds * 4)
    def vperm_(sv): return sv % 8 == TV and (steady or sv >= 8)
    def vfrag(sv, db):
        if sv % 8 == TV or (not steady and sv < TV): return aVp + db * 8
        if not steady and sv >= 34 and db >= 4: return aQ + (db - 4) * 8
        return aV + (db & 3) * 8
    rt = lambda f, n: f"{f[0]}[{f[1]}:{f[1]+n-1}]"
    rr = lambda f, n: [f"{f[0]}{f[1]+i}" for i in range(n)]
    def vslot(sv):
        if not steady and sv in (2, 3, 34, 35): return sv & 1
        if not steady and sv == 37: return 3
        return 2 + (((sv - TV - 1) % 8) & 1)
    def vprev(sv):
        if vslot(sv) < 2: return ["Kret67"] if sv > 8 else []
        p = sv - 1
        while p >= 0 and (vslot(p) != vslot(sv) or vperm_(p)): p -= 1
        return [f"Vret{p}"] if p >= 0 else []
    vissued = set()
    def vdma(sv, earliest=None):
        vissued.add(sv)
        A(Op(("m0", sv), f"s_mov_b32 m0, s{sM0 + vslot(sv)}", "salu", ["setup~"], ["m0"]))
        for i in range(4):
            A(Op(("dma", sv, i), f"buffer_load_dwordx4 v{vD0}, s[{sV_}:{sV_+3}], s{sTile + sv % 8} offen offset:{i*1024} {cfg.v_pol0 if (not steady and sv < cfg.v_n0) else cfg.v_pol} lds".replace("  ", " "), "dma",
                 ["m0"] + vprev(sv), [f"Vd{sv}_{i}"], earliest=earliest))
    kstage = {}
    def kregs(t):
        u = KST[t][0]; h = KST[t][1]
        if h == "P": return [vP + (ds >> 1) * 32 + u * 8 + (ds & 1) * 4 for ds in range(4)]
        return [vOa + (h * 4 + ds) * 16 + u * 4 for ds in range(4)]
    KST = cfg.kst
    if cfg.k_up == 8: KST = [(0, 0), (0, 1), (1, 0), (1, 1), (2, 0), (2, 1), (3, 0), (3, 1)]
    def kload(t, earliest=None):
        for ds, r in enumerate(kregs(t)):
            A(Op(("kld", t, ds), f"buffer_load_dwordx4 {vt(r,4)}, v{vKl}, s[{sK_}:{sK_+3}], s{sTile + t} offen offset:{ds*1024} {cfg.k_pol}".rstrip(), "load",
                 [], vr(r, 4), earliest=earliest))
    tmpc = [0]
    def kscale(t, earliest=None):
        for ds, r in enumerate(kregs(t)):
            for j in range(4):
                x = r + j; tm = TMPS[tmpc[0] % NT]; tmpc[0] += 1
                k = ("ksc", t, ds, j)
                A(Op(k + (0,), f"v_lshlrev_b32 v{tm}, 16, v{x}", "valu", vr(x), vr(tm), earliest=earliest))
                A(Op(k + (1,), f"v_and_b32 v{x}, s{sMask}, v{x}", "valu", vr(x), vr(x), earliest=earliest))
                A(Op(k + (2,), f"v_mul_f32 v{tm}, s{sScale}, v{tm}", "valu", vr(tm), vr(tm)))
                A(Op(k + (3,), f"v_mul_f32 v{x}, s{sScale}, v{x}", "valu", vr(x), vr(x)))
                A(Op(k + (4,), f"v_cvt_pk_bf16_f32 v{x}, v{tm}, v{x}", "valu", vr(tm) + vr(x), vr(x)))
            tl = 3 if t == 0 else t
            if t == 4 and ds == 0:
                A(Op(("kwa", t, ds), f"v_add_u32 v{vKw}, {0x10000 - KSH}, v{vKw}", "valu", vr(vKw), vr(vKw)))
            a = vKw + (1 if (t == 1 and ds < 2) else 0)
            A(Op(("kw", t, ds), f"ds_write_b128 v{a}, {vt(r,4)} offset:{(tl & 3) * 16384 + (ds >> 1) * 4096 + (ds & 1) * 128 - (KSH if tl < 4 else 0)}", "dsw",
                 vr(r, 4) + vr(a) + (["K0dead"] if t in (3, 4) else []) + (["Qadead"] if (t == 2 and " q1" in cfg.plan) else []) + ([f"Vret{v}" for v in range(2, t - 3)] if t >= 6 and cfg.deep else []), [f"Kw{t}_{ds}"]))
    nmf = [0]
    kpub = set()
    def kread1(s, t, kb):
        for ds in range(4):
            perm = t == 0 or (t, kb, ds) == (1, 0, 0)
            if perm and (steady or s > 7): continue
            d = kfrag(s, kb, ds); tl = 3 if t == 0 else (4 if perm else t)
            A(Op(("kr", s, kb, ds), f"ds_read_b128 {rt(d,4)}, v{vKr + 2 * (tl >> 2) + (ds & 1)} offset:{(tl & 3) * 16384 + kb * 4096 + ds * 1024 - (KSH if tl < 4 else 0)}", "ds",
                 [] if (steady or s > 7) else [f"Kok{t}"], rr(d, 4) + ([] if not perm else [f"Kr0_{kb}_{ds}" if t == 0 else "Kr1"])))
    kdone0 = set(); kscaled = []
    later = {}
    if not steady:
        H = (-1, 0)
        def issue(item, when):
            n0 = len(prog)
            n = int(item[1:]) if item[1:].isdigit() else None
            if item[0] == "K": kload(n, when)
            elif item[0] == "Q": qload(("q0", n) if n < 4 else ("q", 8, 0), when)
            elif item[0] == "R": qread(("qr0", n), n, when)
            elif item[0] == "q": qload(("q0", n), when, alt=True)
            elif item[0] == "x": qread(("qr0", n), n, when, alt=True)
            elif item[0] == "V": vdma(n, when)
            elif item[0] == "S": kscale(n, when); kscaled.append(n)
            elif item[0] == "r": kread1(0, 0, n); kdone0.add(n)
            elif item[0] == "W":
                A(Op(("wt", 0, item), "s_nop 0", "valu", vr(kregs(int(item[1]))[int(item[2])], 4), []))
            elif item[0] == "P":
                A(Op(("cpf", 1), f"buffer_load_dword v{vJ}, v{vJ}, s[{sC_}:{sC_+3}], 0 offen {cfg.c_pol}".rstrip(), "load", [], ["junk"], earliest=when))
            elif item[0] == "H":
                A(Op(("hop", 0), "@HOPS", "valu", [], [], earliest=when, maxdl=when))
            elif item[0] == "T":
                A(Op(("ts", 0, item), f"s_memrealtime s[{64+2*n}:{65+2*n}]", "valu", [], []))
            elif item[0] == "X":
                A(Op(("wt", 0, item), "s_nop 0", "valu", [f"Qs{i}" for i in range(4)], []))
            elif item[0] == "B":
                pub = [t for t in kscaled if t not in kpub]; kpub.update(pub)
                A(Op(("bar", -1), "s_barrier", "bar", ["Czero"] + [f"Kw{t}_{ds}" for t in pub for ds in range(4)], [f"Kok{t}" for t in pub], anchor=H))
            elif item[0] == "C":
                pf = f"global_load_dword v{vJ}, v[{vS+14}:{vS+15}], off"
                if cfg.early_pf and cfg.vtouch:
                    tx = head2(cfg).split("@CPF")[1].strip().replace(f"    s_mov_b32 s{sO_+2}, 0x10000", f"    buffer_load_dword v{vS+14}, off, s[{sV_}:{sV_+3}], s{sMq} {cfg.v_pol0}\n    s_mov_b32 s{sO_+2}, 0x10000")
                    A(Op(("cpf", 0), tx, "load", [], vr(vS + 14), earliest=when, cost=300))
                elif cfg.early_pf:
                    A(Op(("cpf", 0), head2(cfg).split("@CPF")[1].strip(), "valu", [], [], earliest=when, cost=300))
                elif cfg.pf2:
                    p1 = f"""    s_lshr_b32 s{sTmp+4}, s{sWave}, 1
    s_lshl1_add_u32 s{sTmp+4}, s2, s{sTmp+4}
    s_lshl_b32 s{sTmp+4}, s{sTmp+4}, 7
    v_and_b32 v{vS+15}, 0x70, v{vKl}
    buffer_load_dword v{vS+15}, v{vS+15}, s[{sC_}:{sC_+3}], s{sTmp+4} offen"""
                    A(Op(("cpf", 0), head2(cfg).replace("@CPF", p1).strip(), "load", [], vr(vS + 15), earliest=when, cost=300))
                elif " P" in cfg.plan: A(Op(("cpf", 0), head2(cfg).replace("@CPF\n", "").strip(), "valu", [], [], earliest=when, cost=300))
                else: A(Op(("cpf", 0), head2(cfg).replace("@CPF", "    " + pf).strip(), "load", [], ["junk"], earliest=when, cost=300))
                A(Op(("setup", 0), "s_nop 0", "valu", [], ["setup~", f"s{sExp}"]))
                A(Op(("cz", 1), f"ds_write_b32 v{vCnt}, v{vPoll}", "dsw", [], ["Czero"], cost=8))
            if when == H:
                for x in prog[n0:]: x.maxdl = H
        for item in cfg.plan.split():
            if "@" not in item: issue(item, H)
            else:
                it, pos = item.split("@"); st, fr = pos.split(".")
                later.setdefault(int(st), []).append((it, fr))
    for s in range(s0, s1):
        t = s % 8
        uq = [u for u in range(4) if qk_on(s, u)]
        up = order_qk(s - 1, 3) if (steady or s > 0) else []
        up = [u for u in up if pv_on(s, u)]
        qk = [(kb, u) for kb in range(4) for u in order_qk(s, kb)]
        if not steady and s in cfg.qlag:
            qk.sort(key=lambda c: (c[0] + (cfg.qlag[s] + 0.5 if (li(s, c[1]) == 0 and c[1] > 0) else 0)))
        pv = []
        fin = [u for u in up if li(s - 1, u) == 7]
        ones_order = fin + [u for u in up if u not in fin]
        for db in range(8):
            for u in up: pv.append(("pv", db, u))
        npv = len(pv)
        ins = {}
        for i, u in enumerate(ones_order):
            if u in fin: p = len(up)
            else: p = len(up) + (npv - len(up)) * i // max(1, len(ones_order))
            ins.setdefault(p, []).append(("one", 0, u))
        pv2 = []
        for i, c in enumerate(pv):
            pv2 += ins.get(i, []); pv2.append(c)
        pv = pv2
        seq = []
        if qk:
            j = 0
            lag = 1 if len(uq) <= 2 and pv else 0
            if not steady and s in cfg.lags: lag = cfg.lags[s]
            for i, c in enumerate(qk):
                seq.append(("qk",) + c)
                tgt = math.ceil(max(0, i + 1 - lag) * len(pv) / (len(qk) - lag))
                while j < tgt: seq.append(pv[j]); j += 1
        else:
            seq = pv
        if cfg.group and qk and len(up) >= cfg.group_min:
            G = cfg.group
            seq = []; j = 0
            onepos = {}
            for i, u in enumerate(ones_order): onepos.setdefault(0 if u in fin else (8 * i // len(ones_order)), []).append(u)
            for db in range(8):
                if db % G == 0:
                    while j < math.ceil((db + G) * len(qk) / 8): seq.append(("qk",) + qk[j]); j += 1
                if not cfg.snake:
                    seq += [("pv", db, u) for u in up] + [("one", 0, u) for u in onepos.get(db, [])]
                    continue
                if db % G == 0:
                    on = [u for k in range(db, db + G) for u in onepos.get(k, [])]
                    od = list(up)
                    if cfg.on_first:
                        if on and db > 0: od.remove(on[-1]); od = [on[-1]] + od
                        seq += [("one", 0, u) for u in on]; on = []
                    if on and db > 0:
                        od.remove(on[0]); od = [on[0]] + od if G % 2 == 0 else od + [on[0]]
                seq += [("pv", db, u) for u in od]
                od = od[::-1]
                if db % G == G - 1: seq += [("one", 0, u) for u in on]
        rev = {}
        for i, c in enumerate(seq):
            p_ = seq[i - 1]
            rev[c] = bool(cfg.rev and i and p_[0] == c[0] and c[0] != "one" and (p_[1] == c[1] or p_[2] == c[2]) and not rev[p_])
        nm = sum({"qk": 4, "pv": 2, "one": 1}[c[0]] for c in seq)
        beta = cfg.beta if len(uq) >= 3 else cfg.beta_small
        barpos = int(beta * nm)
        if not steady and s in cfg.betas: barpos = int(cfg.betas[s] * nm)
        vdone = set(); kdone = set(kdone0) if (s == 0 and not steady) else set(); bar_done = False
        Pw = vP + 32 * (s & 1); Pr = vP + 32 * ((s - 1) & 1)
        def vreads(db):
            if db in vdone or vperm_(s - 1): return
            vdone.add(db)
            for ks in range(2):
                for h in range(2):
                    d = vfrag(s - 1, db) + ks * 4 + h * 2
                    A(Op(("vr", s, db, ks, h), f"ds_read_b64_tr_b16 {at(d,2)}, v{vV+(db>>1)} offset:{vslot(s-1)*VSTR + ks*4096 + h*2048 + (db&1)*8}", "ds",
                         [f"Vok{s-1}"], ar(d, 2) + [f"Vr{s-1}_{db}_{ks}_{h}"]))
        def kreads(kb):
            if kb in kdone: return
            kdone.add(kb); kread1(s, t, kb)
        def barrier():
            rd = []; wr = []
            pubv, retv, nxt = [s], [s - 1], [s + 1]
            if vperm_(s + 1): retv = []; nxt = []
            if vperm_(s): pubv = []; retv = [s - 2, s - 1]
            if vperm_(s - 1): retv = []
            if not steady:
                retv = {1: [], 2: [0], 3: [1], 4: [2], 5: [3, 4], 34: []}.get(s, retv)
                if s >= 33:
                    if s not in cfg.tailpub: return
                    pubv = cfg.tailpub[s]
                    if s > 33: retv = []; nxt = []
                nxt = {0: [], 1: [], 2: [4], 3: [5], 4: [], 32: [33, 34, 35], 33: [37], 34: []}.get(s, nxt)
                if s == 32: wr.append("Kret67")
                nxt = [v for v in nxt if v < last and v not in vissued and not any(it == f"V{v}" for l in later.values() for it, _ in l)]
            for v in retv:
                if v < 0: continue
                if v == s - 1:
                    for db in range(8): vreads(db)
                rd += [f"Vr{v}_{db}_{ks}_{h}" for db in range(8) for ks in range(2) for h in range(2)]
                wr.append(f"Vret{v}")
            for v in pubv:
                assert steady or v in vissued, v
                rd += [f"Vd{v}_{i}" for i in range(4)]; wr.append(f"Vok{v}")
            if not steady and s + 1 <= 7 and s + 1 not in kpub:
                if s + 1 not in kscaled: kscale(s + 1, ((s - 1, "bar") if s >= 1 else (-1, 0))); kscaled.append(s + 1)
                kpub.add(s + 1)
                rd += [f"Kw{s+1}_{ds}" for ds in range(4)]; wr.append(f"Kok{s+1}")
            if not steady and s == 0 and " q1" in cfg.plan:
                rd += [f"Qar{ds}" for ds in range(4)]; wr.append("Qadead")
            if not steady and s == 1:
                rd += [f"Kr0_{kb}_{ds}" for kb in range(4) for ds in range(4)]; wr.append("K0dead")
                rd.append("Kr1")
            if (steady or s >= cfg.split_from) and len(uq) >= cfg.split_min_u:
                ag = cfg.arr_gap if len(uq) >= 3 else cfg.arr_gap_small
                A(Op(("arr", s), f"ds_add_u32 v{vCnt}, v{vCone}", "dsw", rd, ["Carr"], cost=8, anchor=(s, "bar", -ag - cfg.ds_lat - 2)))
                A(Op(("exp", s), f"s_add_u32 s{sExp}, s{sExp}, 4", "salu", [f"s{sExp}"], [f"s{sExp}"]))
                A(Op(("pol", s), f"ds_read_b32 v{vPoll}, v{vCnt}", "ds", ["Carr~"], vr(vPoll), anchor=(s, "bar", -cfg.ds_lat - 2)))
                A(Op(("cmp", s), f"v_readfirstlane_b32 s{sPol}, v{vPoll}", "valu", vr(vPoll), [f"s{sPol}"], anchor=(s, "bar", -3)))
                A(Op(("sc", s), f"s_cmp_lt_u32 s{sPol}, s{sExp}", "bar", [f"s{sPol}", f"s{sExp}"], ["scc"], anchor=(s, "bar", -1)))
                A(Op(("bar", s), f"s_cbranch_scc1 L_spin{s if (not steady and (s < cfg.loop_from or s >= 32)) else 16 + s % 8}", "bar", ["scc"] + vr(vPoll) + [f"s{sExp}", f"s{sPol}"], wr, anchor=(s, "bar")))
            else:
                A(Op(("bar", s), "s_barrier", "bar", rd, wr, anchor=(s, "bar")))
            for v in nxt: vdma(v, None)
            for it, fr in later.get(s, []):
                if fr == "b": issue(it, (s, "bar"))
        todo_items = [(it, int(fr) / 10 ** len(fr)) for it, fr in later.get(s, []) if fr != "b"]
        mcount = 0
        for c in seq:
            if not bar_done and mcount >= barpos:
                barrier(); bar_done = True
            while todo_items and mcount >= todo_items[0][1] * nm:
                issue(todo_items.pop(0)[0], (s, "off", mcount))
            if c[0] == "qk":
                _, kb, u = c
                kreads(kb)
                if kb == 0 and li(s, u) == 0 and (steady or s - sg[u] >= 8):
                    qread(("qr", s, u), u, earliest=None if (steady or qk_on(s - 1, u)) else (s - 1, "frac", 0.75))
                    un = (u + 1) % 4; sn = s + (sg[un] - sg[u]) % 8
                    pend_q.append((("q", sn, un), not steady and sn - sg[un] >= 8 * NP))
                    if True:
                        k_, d_ = pend_q.pop(); qload(k_, dummy=d_)
                S = vS + 4 * (chain % 4); chain += 1
                for i, ds in enumerate((3, 2, 1, 0) if rev[c] else (0, 1, 2, 3)):
                    kf = kfrag(s, kb, ds); qf = aQ + u * 16 + ds * 4
                    A(Op(("qk", s, kb, u, ds, i), f"v_mfma_f32_16x16x32_bf16 {vt(S,4)}, {rt(kf,4)}, {at(qf,4)}, {'0' if i == 0 else vt(S,4)}", "mfma",
                         rr(kf, 4) + ar(qf, 4) + ([] if i == 0 else vr(S, 4)), vr(S, 4)))
                for r in range(4):
                    A(Op(("ex", s, kb, u, r), f"v_exp_f32 v{S+r}, v{S+r}", "trans", vr(S + r), vr(S + r)))
                pd = Pw + u * 8 + kb * 2
                for r in range(2):
                    tx = f"v_perm_b32 v{pd+r}, v{S+2*r+1}, v{S+2*r}, s{sPerm}" if cfg.trunc else f"v_cvt_pk_bf16_f32 v{pd+r}, v{S+2*r}, v{S+2*r+1}"
                    A(Op(("cv", s, kb, u, r), tx, "valu", vr(S + 2 * r, 2), vr(pd + r)))
                mcount += 4
            elif c[0] == "pv":
                _, db, u = c
                vreads(db)
                first = li(s - 1, u) == 0
                o = vOa + db * 16 + u * 4
                for i, ks in enumerate((1, 0) if rev[c] else (0, 1)):
                    vf = vfrag(s - 1, db) + ks * 4; pf = Pr + u * 8 + ks * 4
                    z = first and i == 0
                    A(Op(("pv", s, db, u, ks, i), f"v_mfma_f32_16x16x32_bf16 {vt(o,4)}, {at(vf,4)}, {vt(pf,4)}, {'0' if z else vt(o,4)}", "mfma",
                         ar(vf, 4) + vr(pf, 4) + ([] if z else vr(o, 4)), vr(o, 4)))
                mcount += 2
            else:
                _, _, u = c
                first = li(s - 1, u) == 0
                l = vL + 4 * u
                if first:
                    for r in range(2): A(Op(("lz", s, u, r), f"v_mov_b32 v{l+r}, 0", "valu", [], vr(l + r)))
                pf = Pr + u * 8
                A(Op(("on", s, u), f"v_smfmac_f32_16x16x64_bf16 {vt(l,4)}, {vt(vOne,4)}, {vt(pf,8)}, v{vIdx}", "mfma", vr(pf, 8) + vr(l, 2), vr(l, 4)))
                mcount += 1
        if not bar_done: barrier()
        for it, _ in todo_items: issue(it, (s, "off", mcount))
        if not steady and s == 31:
            qread(("qr", 32, 0), 0, dummy=True)
            qload(("q", 32 + sg[1], 1), dummy=True)
        if not steady and s == 7:
            A(Op(("vo2", 7), f"v_xor_b32 v{vO2}, 0x840, v{vO}", "valu", [], vr(vO2)))
            if cfg.full_until < 39: A(Op(("vo3", 7), f"v_cndmask_b32 v{vO3}, v{vO}, v{vO2}, vcc", "valu", vr(vO2) + ["junk"], vr(vO3)))
        for u in sorted(fin):
            l = vL + 4 * u; R = vR + 2 * (u & 1)
            DPP = "row_ror:8 row_mask:0xf bank_mask:0xf"
            pol = cfg.st_last if (not steady and s >= cfg.st_last_from) else cfg.st_pol
            A(Op(("la", s, u), f"v_add_f32 v{l}, v{l}, v{l+1}", "valu", vr(l, 2), vr(l)))
            A(Op(("rc", s, u), f"v_rcp_f32 v{R}, v{l}", "trans", vr(l), vr(R)))
            full = cfg.full_until > 0 if steady else s < cfg.full_until
            if full: A(Op(("r2", s, u), f"v_mov_b32_dpp v{R+1}, v{R} {DPP}", "valu", vr(R), vr(R + 1)))
            A(Op(("ck", s, u), f"v_max3_u32 v{vChk}, v{vChk}, v{l}, v{R}", "valu", vr(vChk) + vr(l) + vr(R), vr(vChk)))
            for db in range(8):
                o = vOa + db * 16 + u * 4
                for r in range(4):
                    if full and db & 2: A(Op(("mu", s, u, db, r), f"v_mul_f32_dpp v{o+r}, v{o+r}, v{R+1} {DPP}", "valu", vr(o + r) + vr(R + 1), vr(o + r)))
                    else: A(Op(("mu", s, u, db, r), f"v_mul_f32 v{o+r}, v{o+r}, v{R}", "valu", vr(o + r) + vr(R), vr(o + r)))
                if db & 1:
                    e = o - 16
                    A(Op(("oc", s, u, db, 3), f"v_cvt_pk_bf16_f32 v{o+3}, v{o+2}, v{o+3}", "valu", vr(o + 2, 2), vr(o + 3)))
                    A(Op(("oc", s, u, db, 2), f"v_cvt_pk_bf16_f32 v{o+2}, v{o}, v{o+1}", "valu", vr(o, 2), vr(o + 2)))
                    A(Op(("oc", s, u, db, 0), f"v_cvt_pk_bf16_f32 v{o}, v{e}, v{e+1}", "valu", vr(e, 2), vr(o)))
                    A(Op(("oc", s, u, db, 1), f"v_cvt_pk_bf16_f32 v{o+1}, v{e+2}, v{e+3}", "valu", vr(e + 2, 2), vr(o + 1)))
                    if not full:
                        A(Op(("st", s, u, db), f"buffer_store_dwordx4 {vt(o,4)}, v{vO3}, s[{sO_}:{sO_+3}], s{sOo} offen offset:{(db-1)*32} {pol}".rstrip(), "store",
                             vr(o, 4) + [f"s{sOo}"] + vr(vO3), [], cost=20))
                if full and db & 3 == 3:
                    a = o - 32; x = o - 16
                    for r in range(4):
                        A(Op(("sx", s, u, db, r), f"v_cndmask_b32 v{x+r}, v{a+r}, v{o+r}, vcc", "valu", vr(a + r) + vr(o + r), vr(x + r)))
                    A(Op(("st", s, u, db - 1), f"buffer_store_dwordx4 {vt(x,4)}, v{vO}, s[{sO_}:{sO_+3}], s{sOo} offen offset:{(db>>2)*128} {pol}".rstrip(), "store",
                         vr(x, 4) + [f"s{sOo}"], [], cost=20))
                    for r in range(4):
                        A(Op(("sy", s, u, db, r), f"v_cndmask_b32 v{o+r}, v{o+r}, v{a+r}, vcc", "valu", vr(a + r) + vr(o + r), vr(o + r)))
                    A(Op(("st", s, u, db), f"buffer_store_dwordx4 {vt(o,4)}, v{vO2}, s[{sO_}:{sO_+3}], s{sOo} offen offset:{(db>>2)*128} {pol}".rstrip(), "store",
                         vr(o, 4) + [f"s{sOo}"] + vr(vO2), [], cost=20))
            if not steady and 32 <= s < last:
                for x in prog:
                    if x.key[:3] == ("st", s, u): x.maxdl = (s + 1, "frac", (x.key[3] + 1) / 8 * cfg.tail_dl)
            A(Op(("oinc", s, u), f"s_add_u32 s{sOo}, s{sOo}, 4096", "salu", [f"s{sOo}"], [f"s{sOo}"]))
    return prog

def link(cfg, prog):
    lastw = {}; readers = {}
    m = 0
    for x in prog:
        if x.kind == "mfma": x.m = m; m += 1
    for x in prog:
        e = {}
        def add(p, typ):
            if p is x: return
            soft = hard = 0
            if p.kind == "mfma":
                if x.kind == "mfma": return
                if typ in ("raw", "waw"): soft = cfg.mv_lat + (2 if p.key[0] == "on" else 0)
                elif x.kind in ("valu", "trans"): soft = 1
            elif x.kind == "mfma":
                hard = soft = 1
                if typ == "raw":
                    soft = cfg.ds_lat if p.kind == "ds" else (1 if p.kind == "load" else 2)
                elif p.kind == "store": soft = 2
            elif x.kind == "bar" or x.key[0] == "arr":
                hard = 1; soft = {"ds": cfg.ds_lat, "dsw": cfg.ds_lat, "dma": 2}.get(p.kind, 1)
            elif p.kind == "bar":
                soft = hard = 0
            elif p.kind == "salu":
                soft = 2; hard = 1 if x.kind != "salu" else 1
            elif x.kind == "salu":
                soft = hard = 1
            elif typ == "raw":
                if p.kind == "trans": soft = 1
                elif p.kind == "ds" and x.kind == "dma": soft = cfg.ds_lat
                elif p.kind == "valu" and x.kind in ("store", "dsw", "ds"): soft = 1
                elif p.kind == "valu" and "permlane" in x.text: soft = 2
                if "_dpp" in x.text: soft = 2
            else:
                if p.kind in ("valu", "trans") and x.kind in ("load", "ds", "dma"): soft = 1
                if p.kind in ("store", "dsw"): soft = 1
            o = e.get(id(p))
            e[id(p)] = (p, max(soft, o[1]) if o else soft, max(hard, o[2]) if o else hard)
        for r in x.reads:
            if r in lastw: add(lastw[r], "raw"); x.prod[r] = lastw[r].key
        for r in x.writes:
            if r in lastw: add(lastw[r], "waw")
            for p in readers.get(r, []): add(p, "war")
        for r in x.reads: readers.setdefault(r, []).append(x)
        for r in x.writes: lastw[r] = x; readers[r] = []
        x.preds = list(e.values())
        for p, so, ha in x.preds: p.succs.append((x, so, ha))
    return m

def semantic_check(cfg, prog):
    sg = cfg.sigma
    nq = 0; qblk = {}; nst = 0
    for x in prog:
        k = x.key; P = [x.prod.get(r) for r in x.reads]
        def exp(idx, f):
            for i in idx: assert P[i] is not None and f(P[i]), ("semantic", k, x.reads[i], P[i])
        if x.dummy: continue
        if k[0] == "ksc" and k[4] in (0, 1): exp([0], lambda p: p == ("kld", k[1], k[2]))
        if k[0] == "ksc" and k[4] in (2, 3): exp([0], lambda p: p == k[:4] + (k[4] - 2,))
        if k[0] == "ksc" and k[4] == 4: exp([0], lambda p: p == k[:4] + (2,)); exp([1], lambda p: p == k[:4] + (3,))
        if k[0] == "kw": exp(range(4), lambda p: p[:3] == ("ksc", k[1], k[2]) and p[4] == 4); exp(range(5, len(P)), lambda p: p[0] == "bar")
        if k[0] in ("bar", "arr"): exp(range(len(P)), lambda p: True)
        if k[0] == "kr" and k[1] < 8: exp([0], lambda p: p[0] == "bar")
        if k[0] == "vr": exp([0], lambda p: p[0] == "bar")
        if k[0] == "dma": exp([0], lambda p: p == ("m0", k[1])); exp(range(1, len(P)), lambda p: p[0] == "bar")
        if k[0] in ("q", "q0") and k[-1] == "inc": qblk[k[:-1]] = nq; nq += 1
        if k[0] in ("q", "q0") and isinstance(k[-1], int): exp([1], lambda p: p == k[:-1] + ("m0",))
        if k[0] in ("qr", "qr0"):
            u = k[-2]; n = 0 if k[0] == "qr0" else (k[1] - sg[u]) // 8
            exp(range(4), lambda p: qblk[p[:-1]] == 4 * n + u)
        if k[0] == "qk":
            _, s, kb, u, ds, ii = k; n, i_ = blockpos(cfg, s, u); s0 = s - i_
            exp(range(4), lambda p: p[0] == "kr" and p[1] % 8 == s % 8 and p[2:] == (kb, ds))
            exp(range(4, 8), lambda p: p == (("qr0", u, ds) if n == 0 else ("qr", s0, u, ds)))
            exp(range(8, len(P)), lambda p: p[:4] == k[:4] and p[5] == ii - 1); assert (len(P) > 8) == (ii > 0)
        if k[0] == "ex": exp([0], lambda p: p[:4] == ("qk",) + k[1:4] and p[5] == 3)
        if k[0] == "cv": exp([0, 1], lambda p: p[:4] == ("ex",) + k[1:4])
        if k[0] == "pv":
            _, s, db, u, ks, ii = k
            exp(range(4), lambda p: p[0] == "vr" and p[1] % 8 == s % 8 and p[2:4] == (db, ks))
            exp(range(4, 8), lambda p: p[0] == "cv" and p[1] == s - 1 and p[2] >> 1 == ks and p[3] == u)
            exp(range(8, len(P)), lambda p: p == ("pv", s, db, u, 1 - ks, 0) if ii else (p[:4] == ("pv", s - 1, db, u) and p[5] == 1))
            assert (len(P) > 8) == (ii > 0 or blockpos(cfg, s - 1, u)[1] > 0)
        if k[0] == "on":
            exp(range(8), lambda p: p[0] == "cv" and p[1] == k[1] - 1 and p[3] == k[2])
            exp([8, 9], lambda p: p[:3] == ("lz", k[1], k[2]) or p == ("on", k[1] - 1, k[2]))
        if k[0] == "la": exp([0, 1], lambda p: p == ("on", k[1], k[2]))
        if k[0] == "mu": exp([0], lambda p: p[:4] == ("pv", k[1], k[3], k[2]) and p[5] == 1); exp([1], lambda p: p[0] in ("rc", "r2") and p[1:] == k[1:3])
        if k[0] == "oc": exp([0, 1], lambda p: p[:3] == ("mu",) + k[1:3])
        if k[0] == "oinc":
            assert nst == 4 * blockpos(cfg, k[1] - 1, k[2])[0] + k[2], k
            nst += 1
    assert nst == 16

def step_of(x): return x.key[1]

def schedule(cfg, prog, nm, pins=None, lo=None, hi=None):
    pins = pins or {}; lo = lo or {}; hi = hi or {}
    start = {}; barw = {}
    cur = -1
    for x in prog:
        if x.kind == "mfma":
            cur = x.m; start.setdefault(x.key[1], x.m)
        elif x.key[0] == "bar": barw[x.key[1]] = cur
    def W(a):
        if a[0] == -1: return -1
        if a[1] == "bar": return barw.get(a[0], nm - 1) + (a[2] if len(a) > 2 else 0)
        if a[1] == "frac": return start[a[0]] - 1 + int(a[2] * (start.get(a[0] + 1, nm) - start[a[0]]))
        if a[1] == "off": return max(0, start[a[0]] - 1 + a[2])
        return start[a[0]] - 1
    fill = [x for x in prog if x.kind != "mfma"]
    for x in prog:
        if x.kind == "mfma": x.win = x.m
    for i, x in enumerate(prog): x.idx = i
    for x in reversed(fill):
        if x.key in pins: x.dls = x.dlh = pins[x.key][0]; continue
        if x.anchor: x.dls = x.dlh = W(x.anchor); continue
        ds = dh = nm - 1
        for y, so, ha in x.succs:
            if y.dummy and y.key not in pins: continue
            if y.kind == "mfma": ds = min(ds, y.m - so); dh = min(dh, y.m - ha)
            else: ds = min(ds, y.dls - so); dh = min(dh, y.dlh - ha)
        if x.key in hi: ds = min(ds, hi[x.key]); dh = min(dh, hi[x.key])
        if x.maxdl: ds = min(ds, W(x.maxdl)); dh = min(dh, W(x.maxdl))
        x.dls, x.dlh = ds, max(dh, -1)
    wins = {w: [] for w in range(-1, nm)}
    for x in fill:
        x.win = None
        x.lo = max(W(x.earliest) if x.earliest else -1, lo.get(x.key, -1))
        if x.anchor: x.lo = x.dlh
    pinned_by_win = {}
    for x in fill:
        if x.key in pins: pinned_by_win.setdefault(pins[x.key][0], []).append(x)
    todo = [x for x in fill if x.key not in pins and not x.dummy]
    todo.sort(key=lambda x: x.idx)
    credit = [0]
    bucket = [0]
    def nbytes(x):
        if x.kind in ("salu", "bar"): return 4
        if x.kind in ("valu", "trans"):
            return 8 if ("_dpp" in x.text or x.text.split()[0] in ("v_cvt_pk_bf16_f32", "v_perm_b32", "v_max3_u32") or "0x" in x.text) else 4
        return 8
    mfl = [x for x in prog if x.kind == "mfma"]
    def ready(x, w, soft):
        if w < x.lo: return False
        for p, so, ha in x.preds:
            if p.dummy and p.key not in pins: continue
            if p.win is None: return False
            lat = ha
            if soft and (p.kind not in ("load", "dma", "ds", "dsw") or x.kind == "dma"): lat = so
            if p.kind in ("store", "dsw") and soft: lat = max(lat, min(so, 1))
            if w == -1 or w == nm - 1: lat = 0
            if w < p.win + lat: return False
        return True
    for w in range(-1, nm):
        if w in pinned_by_win:
            for x in sorted(pinned_by_win[w], key=lambda x: pins[x.key][1]):
                x.win = w; wins[w].append(x)
        if pins and cfg._loop[0] <= w < cfg._loop[1]: continue
        cap = 8 if w >= 0 else 0
        if w >= 0 and mfl[w].key[0] == "on": cap = 4
        cap0 = cap
        rate = 8
        if cfg.smooth and pins and 0 <= w < nm - 1:
            acc = 0
            for x in sorted((x for x in todo[:900] if x.dls <= w + 120), key=lambda x: x.dls):
                acc += min(x.cost, 8)
                rate = max(rate, acc / (max(x.dls, w) - w + 1))
            credit[0] = credit[0] + rate - 8 if rate > 8.2 else 0
            credit[0] = min(credit[0], rate)
            extra = int(credit[0] // 4) * 4
            cap += extra
        used = 0
        cur = wins[w]
        def place(x):
            nonlocal used
            x.win = w; cur.append(x); used += min(x.cost, 8); todo.remove(x)
        while True:
            cand = [x for x in todo[:700] if ready(x, w, True) or (w >= x.dlh and ready(x, w, False))]
            if not cand: break
            z = [x for x in cand if x.kind in ("salu", "bar")]
            if z:
                place(z[0]); continue
            forced = [x for x in cand if x.dls <= w]
            if w == -1 or w == nm - 1:
                if not forced: break
                place(min(forced, key=lambda x: x.idx)); continue
            hasvalu_dep = lambda x: x.kind in ("ds", "dsw", "load", "dma", "store") and any(p.win == w and p.kind in ("valu", "trans") for p, _, _ in x.preds)
            hard_forced = forced
            if hard_forced:
                place(min(hard_forced, key=lambda x: (x.dls, x.idx))); continue
            if used >= cap: break
            nb = lambda x: 1024 if "b128" in x.text else 512
            dsb = sum(nb(x) for x in cur if x.kind == "ds")
            tight = rate > 8.2
            recent = (not tight) and any(y.kind == "ds" for k in range(1, cfg.ds_gap) for y in wins.get(w - k, []))
            vmk = ("load", "dma", "store")
            vgap = max(1, int(cfg.vm_gap * 16 / (8 + rate)))
            recent_vm = any(y.kind in vmk for k in range(0, vgap) for y in wins.get(w - k, []))
            sgap = max(1, int(cfg.st_gap * 16 / (8 + rate)))
            if any(y.kind == "store" for k in range(0, sgap) for y in wins.get(w - k, [])):
                cand = [x for x in cand if x.kind != "store" and not (cfg.st_gap_all and x.kind in vmk)]
            dcap = cfg.ds_cap * (8 + cap) // 16
            if cfg.st_block and any(-4 * cfg.vm_gap <= b - w <= cfg.st_block for b in barw.values()):
                cand = [x for x in cand if x.kind != "store"]
            cand = [x for x in cand if (x.kind != "ds" or (not recent and dsb + nb(x) <= dcap)) and not (x.kind in vmk and recent_vm and not (getattr(x, "nogap", False) and used == 0))]
            if not cand: break
            cand.sort(key=lambda x: (-99999 if (x.kind in ("load", "dma", "dsw", "store") or (cfg.qr_asap and x.key[0] == "qr")) else x.dls, x.idx))
            if cfg.fetch_thr is not None and not tight and bucket[0] >= cfg.fetch_thr and cap - used >= 8 and cand[0].dls > w + cfg.fetch_slack:
                tr = [x for x in cand if x.kind == "trans"]
                if tr: place(tr[0]); continue
            if cap - used >= 8:
                top = cand[0]
                if top.cost >= 8: place(top); continue
                small = [x for x in cand if x.cost == 4]
                big = [x for x in cand if x.cost >= 8]
                fits = lambda a, b: not (a.kind == "ds" and b.kind == "ds" and dsb + nb(a) + nb(b) > dcap)
                partner = any(fits(top, y) for y in small if y is not top) or any(y.cost == 4 and so == 0 and y.win is None and y.kind == "valu" and all(p.win is not None or p is top for p, _, _ in y.preds) for y, so, ha in top.succs)
                if partner or not big or (cap - used) % 8: place(top)
                else: place(big[0])
                continue
            small = [x for x in cand if x.cost == 4]
            if not small: break
            place(small[0])
        bts = 8 + sum(nbytes(x) for x in cur if x.kind not in ("salu", "bar")) + (4 if any(x.kind not in ("valu", "trans") for x in cur) else 2)
        bucket[0] = max(0, bucket[0] + bts - 22 * max(16, 8 + sum(x.cost for x in cur)) // 16)
        if w >= 0: credit[0] -= max(0, min(used, cap) - cap0)
        if w not in (-1, nm - 1):
            order = {"bar": 0, "salu": 0, "dma": 1, "load": 1, "store": 1, "dsw": 1, "ds": 1, "valu": 2, "trans": 2}
            lvl = {}
            for x in cur:
                l = order[x.kind]
                for p, _, _ in x.preds:
                    if p.win == w and p.kind != "mfma": l = max(l, lvl[id(p)])
                lvl[id(x)] = l
            cur.sort(key=lambda x: lvl[id(x)])
    assert not todo, [x.key for x in todo[:10]]
    for w, c in wins.items():
        for i, x in enumerate(c): x.pos = i
    return wins, start

def norm(key, d):
    return (key[0], key[1] + d) + tuple(key[2:])

class Ins:
    def __init__(s, text, op=None, kind=None):
        s.text, s.op, s.kind = text, op, kind or (op.kind if op else "salu")
        s.vm = None; s.lg = None

def generate(cfg):
    last = 32 + max(cfg.sigma)
    cfg.q_ahead = getattr(cfg, "q_ahead", 2)
    cfg.code_pf_n = getattr(cfg, "code_pf_n", 2)
    sp = build(cfg, 0, 56, True); nms = link(cfg, sp)
    swins, sstart = schedule(cfg, sp, nms)
    per = sstart[8] - sstart[0]
    ok = None
    for b in (16, 24, 32):
        same = all([x.text for x in swins[sstart[b] + i]] == [x.text for x in swins[sstart[b + 8] + i]] and
                   [norm(x.key, 8) for x in swins[sstart[b] + i]] == [x.key for x in swins[sstart[b + 8] + i]] for i in range(per))
        if same: ok = b; break
    assert ok is not None, "steady state not periodic"
    rp = build(cfg, 0, last + 1, False)
    E_ = cfg.loop_from
    off0 = sstart[ok + E_ - 8] - sstart[ok]
    inloop = {norm(x.key, 8 + 8 * it - ok) for it in range(3) for i in range(per) for x in swins[sstart[ok] + i] if it or i >= off0}
    rp = [x for x in rp if not x.dummy or x.key in inloop]
    nm = link(cfg, rp)
    semantic_check(cfg, rp)
    rstart = {}
    for x in rp:
        if x.kind == "mfma": rstart.setdefault(x.key[1], x.m)
    L0, L1 = rstart[E_], rstart[32]
    assert L1 - L0 == 3 * per - off0
    XP = L0 + per - off0
    cfg._loop = (L0, L1)
    pins = {}
    for it in range(3):
        for i in range(per):
            for x in swins[sstart[ok] + i]:
                if it or i >= off0: pins[norm(x.key, 8 + 8 * it - ok)] = (L0 - off0 + it * per + i, x.pos)
    keys = {x.key: x for x in rp}
    assert len(keys) == len(rp)
    missing = [k for k in pins if k not in keys]
    assert not missing, missing[:10]
    lo = {}; hi = {}
    mid = [x for x in rp if x.key[:2] == ("qk", 20)][0]
    midx = rp.index(mid)
    for i, x in enumerate(rp):
        if x.kind == "mfma" or x.key in pins: continue
        if i < midx: hi[x.key] = L0 - 1
        else: lo[x.key] = L1
    wins, start = schedule(cfg, rp, nm, pins, lo, hi)
    mf = [x for x in rp if x.kind == "mfma"]
    def stat(w):
        return L0 + (w - L0) % per if L0 <= w < L1 else w
    free = {}
    pre = {}
    for w in range(-1, nm):
        if stat(w) == w:
            free[w] = []
            if w not in (-1, nm - 1):
                for x in wins[w]:
                    if x.kind == "bar": free[w].append(Ins(x.text, x))
    def body(w):
        if w in (-1, nm - 1): return wins[w]
        return [x for x in wins[w] if x.kind not in ("salu", "bar")]
    def walk(fix):
        q = {"vm": [], "lgkm": []}
        pend = {}
        hist = {}
        changed = False
        def dowait(ins):
            for c, n in (("vm", ins.vm), ("lgkm", ins.lg)):
                if n is None: continue
                while len(q[c]) > n:
                    d = q[c].pop(0)
                    for r in d.writes:
                        if pend.get(r) is d: del pend[r]
        def need(x):
            n = {}
            for r in x.reads + x.writes:
                p = pend.get(r)
                if p is not None and not (r in x.writes and r not in x.reads and p.cnt == x.cnt):
                    n[p.cnt] = p if (p.cnt not in n or q[p.cnt].index(p) > q[p.cnt].index(n[p.cnt])) else n[p.cnt]
            return n
        def issue(x):
            if x.cnt:
                q[x.cnt].append(x)
                for r in x.writes:
                    if r != "stord": pend[r] = x
        def setw(ins, c, n):
            n = min(n, 62 if c == "vm" else 14)
            if c == "vm": ins.vm = n if ins.vm is None else min(ins.vm, n)
            else: ins.lg = n if ins.lg is None else min(ins.lg, n)
        def handle(x, w, pos, cands):
            nonlocal changed
            n = need(x)
            if not n: return
            assert fix, ("unwaited", x.key, {c: p.key for c, p in n.items()})
            changed = True
            for c, p in n.items():
                done = False
                for cw in cands:
                    if cw < 0 or cw == nm - 1 or cw not in hist: continue
                    snap = hist[cw][c]
                    if p not in snap: continue
                    fl = free[stat(cw)]
                    wi = [i for i in fl if i.kind == "wait"]
                    if not wi and fl and cw != cands[-1]: continue
                    if not wi:
                        wi = [Ins("", None, "wait")]; fl.insert(0, wi[0])
                    setw(wi[0], c, len(snap) - 1 - snap.index(p)); done = True; break
                if not done:
                    ins = pre.setdefault((stat(w), pos), Ins("", None, "wait"))
                    setw(ins, c, len(q[c]) - 1 - q[c].index(p))
                while p in q[c]:
                    d = q[c].pop(0)
                    for r in d.writes:
                        if pend.get(r) is d: del pend[r]
        for w in range(-1, nm):
            if w >= 0:
                if (stat(w), "m") in pre: dowait(pre[(stat(w), "m")])
                handle(mf[w], w, "m", [w - 1, w - 2])
            hist[w] = {c: list(v) for c, v in q.items()}
            hist.pop(w - 4, None)
            for ins in list(free[stat(w)]):
                if ins.kind == "wait": dowait(ins)
                elif ins.kind == "bar":
                    x = [y for y in wins[w] if y.kind == "bar"][0]
                    handle(x, w, "b", [w - 1, w - 2, w])
            for pos, x in enumerate(body(w)):
                if (stat(w), pos) in pre: dowait(pre[(stat(w), pos)])
                handle(x, w, pos, [w, w - 1])
                issue(x)
        return changed
    for _ in range(10):
        if not walk(True): break
    walk(False)
    for w in range(0, nm - 1):
        if stat(w) != w: continue
        for x in wins[w]:
            if x.kind != "salu": continue
            hiw = min([y.win - (1 if "m0" in x.writes or y.kind == "salu" else 0) for y, _, _ in x.succs if y.win is not None] + [w + 40, nm - 2])
            if L0 <= w < XP: hiw = min(hiw, XP - 3)
            elif XP <= w < L0 + per: hiw = min(hiw, L0 + per - 1)
            elif w < L0: hiw = min(hiw, L0 - 1)
            hiw = max(hiw, w)
            c = [k for k in range(w, hiw + 1) if not free[k]]
            c2 = [k for k in c if body(k) and body(k)[0].kind in ("ds", "dma", "load", "store", "dsw")]
            k = c2[0] if c2 else (c[0] if c else w)
            if any(i.text.startswith("s_cmp") for i in free[k]): free[k].insert(0, Ins(x.text, x))
            else: free[k].append(Ins(x.text, x))
    k = [k for k in range(XP - 2, XP) if not free[k]]
    k = k[0] if k else XP - 1
    if any(i.text.startswith("s_add") for kk in range(k + 1, XP) for i in free[kk]): k = XP - 1
    free[k].append(Ins(f"s_sub_u32 s{sCnt}, s{sCnt}, 1"))
    if cfg.nop_ds:
        for w in range(0, nm - 1):
            if stat(w) == w and not free[w] and body(w) and body(w)[0].kind in ("ds", "dma", "load", "store", "dsw"):
                free[w].append(Ins("s_nop 0", None, "nop"))
    def wtext(i):
        t = "s_waitcnt"
        if i.vm is not None: t += f" vmcnt({i.vm})"
        if i.lg is not None: t += f" lgkmcnt({i.lg})"
        return t
    code = {}
    for w in range(-1, nm):
        if stat(w) != w: continue
        l = []
        if w >= 0:
            if (w, "m") in pre: l.append(pre[(w, "m")])
            l.append(Ins(mf[w].text, mf[w]))
        l += free[w]
        for pos, x in enumerate(body(w)):
            if (w, pos) in pre: l.append(pre[(w, pos)])
            l.append(Ins(x.text, x))
        for i in l:
            if i.kind == "wait": i.text = wtext(i)
        code[w] = l
    def wcost(l, head=False):
        t = 0; base = 0; lastvalu = -99; blk = 8
        for i in l:
            if i.kind == "mfma": base = t; t += 4; blk = 12 if "smfmac" in i.text else 8; continue
            if i.kind in ("salu", "wait", "bar", "nop"): t += 4; continue
            if i.kind == "nopx": t += 4 * (int(i.text.split()[1]) + 1); continue
            if not head: t = max(t, base + blk)
            if i.kind in ("valu", "trans"): t += i.op.cost; lastvalu = t
            else:
                t = max(t, lastvalu + 8) + i.op.cost
        return t if head else max(t, base + 16)
    def hazards(fix):
        seq = []
        changed = False
        for w in range(-1, nm):
            l = code[stat(w)]
            j = 0
            while j < len(l):
                i = l[j]; x = i.op
                needn = 0
                if x is not None and x.kind not in ("salu", "bar"):
                    dist = 0
                    for p, st, pwin in reversed(seq):
                        y = p.op
                        if y is not None:
                            req = 0
                            raw = set(y.writes) & set(x.reads); waw = set(y.writes) & set(x.writes); war = set(y.reads) & set(x.writes)
                            if y.kind == "mfma":
                                if x.kind == "mfma":
                                    if set(y.writes) & set(x.reads[:8]): req = 8
                                elif raw or waw: req = 12 if y.key[0] == "on" else 8
                                elif war and x.kind in ("valu", "trans") and set(y.writes) & set(x.writes): req = 3
                            elif y.kind in ("valu", "trans"):
                                if raw and x.kind == "mfma": req = 2
                                if raw and ("permlane" in x.text or "_dpp" in x.text): req = 2
                                if raw and y.kind == "trans" and x.kind != "trans": req = max(req, 1)
                            elif y.kind in ("store", "dsw") and war and y.cost == 20: req = 2
                            elif y.kind == "salu" and "m0" in y.writes and x.kind == "dma": req = 1
                            if req - dist > needn: needn = req - dist; pw = pwin
                        dist += st
                        if dist >= 12: break
                if needn > 0:
                    assert fix, ("hazard", x.key)
                    for k in range(w, pw - 1, -1):
                        if k < 0: break
                        lk = code[stat(k)]
                        mi = [n for n, z in enumerate(lk) if z.kind == "mfma"][0]
                        places = []
                        if k > pw and (k < w or j > mi): places.append(mi + 1)
                        if k < w: places.append(len(lk))
                        ok_ = False
                        for pl in places:
                            tr = lk[:pl] + [Ins("s_nop 0", None, "nopx")] + lk[pl:]
                            if wcost(tr) == wcost(lk): lk[:] = tr; ok_ = True; break
                        if ok_: return True
                    l.insert(j, Ins(f"s_nop {needn-1}", None, "nopx")); changed = True
                    continue
                st = int(i.text.split()[1]) + 1 if i.text.startswith("s_nop") else 1
                seq.append((i, st, w)); seq = seq[-14:]
                j += 1
        return changed
    while hazards(True): pass
    lastw = {}; seen = set()
    for w in range(-1, nm):
        it = (w - L0) // per if L0 <= w < L1 else 0
        for i in code[stat(w)]:
            if i.op is None: continue
            x = keys[norm(i.op.key, 8 * it)]
            assert x.text == i.text, (x.text, i.text)
            assert x.key not in seen; seen.add(x.key)
            if not x.dummy:
                for r in x.reads:
                    assert lastw.get(r) == x.prod.get(r), ("dataflow", x.key, r, lastw.get(r), x.prod.get(r))
            for r in x.writes: lastw[r] = x.key
    assert all(x.key in seen or x.dummy for x in rp), [x.key for x in rp if x.key not in seen and not x.dummy][:5]
    est = {}
    for s in range(0, last + 1):
        e = rstart.get(s + 1, nm)
        est[s] = (sum(wcost(code[stat(w)]) for w in range(rstart[s], e)), (e - rstart[s]) * 16)
    cfg.est = est; cfg.est_head = wcost(code[-1], True)
    out = []
    cfg.spins = []
    E = out.append
    stamp_at = getattr(cfg, "stamp_steps", [])
    inv = {v: k for k, v in rstart.items()}
    for w in range(-1, nm):
        if stat(w) != w: continue
        if w == L0:
            if cfg.stamps and 7.9 in stamp_at:
                j = stamp_at.index(7.9); E(f"    s_memrealtime s[{64+2*j}:{65+2*j}]")
            E("L_loop:")
        if w in inv:
            E(f"; ---- step {inv[w]} ----")
            if cfg.jitter:
                E(f"    s_cmp_lg_u32 s{sWave}, {(inv[w] * cfg.jitter[1]) & 3}\n    s_cbranch_scc1 L_j{inv[w]}\n    s_sleep {cfg.jitter[0]}\nL_j{inv[w]}:")
            if cfg.stamps and inv[w] in stamp_at:
                j = stamp_at.index(inv[w]); E(f"    s_memrealtime s[{64+2*j}:{65+2*j}]")
        for i in code[w]:
            if i.op is not None and i.op.key[0] in cfg.kill and (L0 if cfg.kill_from is None else cfg.kill_from) <= w: E("    s_nop 0")
            else: E("    " + i.text)
            if cfg.pad and i.kind == "mfma" and L0 <= w < L1 and w % cfg.pad == 0: E("    s_nop 4")
            if i.text.startswith("s_cbranch_scc1 L_spin"):
                n = i.text.split("L_spin")[1]; E(f"L_back{n}:"); cfg.spins.append(n)
        if off0 == 0:
            if w == L0 + per - 1: E("    s_cbranch_scc0 L_loop")
        else:
            if w == XP - 1: E("    s_cbranch_scc1 L_tail")
            if w == L0 + per - 1: E("    s_branch L_loop"); E("L_tail:")
    lastscc = None
    for l in out:
        t = l.strip()
        if t.startswith(("s_add", "s_sub", "s_cmp", "s_and", "s_lsh", "s_bfe", "s_or", "s_xor", "s_not")): lastscc = t
        if t.startswith("s_cbranch_scc1 L_spin"): assert lastscc.startswith("s_cmp_lt_u32"), lastscc
        if t.startswith(("s_cbranch_scc0 L_loop", "s_cbranch_scc1 L_tail")): assert lastscc.startswith(f"s_sub_u32 s{sCnt}"), lastscc
    return "\n".join(out)

def fbits(x): return struct.unpack("<I", struct.pack("<f", x))[0]

def head(cfg):
    T = vS
    h = f"""    s_load_dwordx4 s[4:7], s[0:1], 0          ; q, k
    s_load_dwordx4 s[8:11], s[0:1], 16        ; v, out
"""
    if cfg.x8: h = "    s_load_dwordx8 s[4:11], s[0:1], 0         ; q, k, v, out\n"
    if cfg.stamps: h += f"    s_load_dwordx2 s[56:57], s[0:1], {32 if cfg.stamps in ('dbg', 'skew') else 40}\n    s_memrealtime s[60:61]\n"
    h += f"""    v_lshrrev_b32 v{T}, 6, v0
    v_and_b32 v{T+4}, 63, v0                  ; lane
    v_readfirstlane_b32 s{sWave}, v{T}
    s_cmp_ge_u32 s2, 256
    s_cbranch_scc1 L_end
    v_and_b32 v{T+1}, 15, v0                  ; l & 15
    v_bfe_u32 v{T+2}, v0, 4, 2                ; l >> 4
    v_lshlrev_b32 v{vKl}, 4, v{T+4}           ; lane*16
    s_and_b32 s{sTmp}, s2, 7
    s_lshr_b32 s{sTmp+1}, s2, 3
    s_lshl_b32 s{sTmp}, s{sTmp}, 5
    s_add_u32 s{sTmp}, s{sTmp}, s{sTmp+1}
    s_lshl2_add_u32 s{sTmp+2}, s{sTmp}, s{sWave}
    s_lshl_b32 s{sTmp+2}, s{sTmp+2}, 16       ; q/o byte offset of this wave
    s_lshr_b32 s{sTmp}, s{sTmp}, 2
    s_lshl_b32 s{sTmp}, s{sTmp}, 17           ; k/v byte offset of the group
    s_lshl_b32 s{sMq}, s{sWave}, 12           ; wave*4096
    s_add_u32 s{sTmp+3}, s{sTmp}, s{sMq}
    s_sub_u32 s{sK_+2}, 0x20000, s{sMq}
    s_mov_b32 s{sK_+3}, 0x20000
    s_mov_b32 s{sQ_+3}, s{sK_+3}
    s_mov_b32 s{sQ_+2}, 0x10000
"""
    if cfg.rot:
        h += f"""    s_bfe_u32 s{sTmp+4}, s2, 0x20003
    s_mul_i32 s{sTile}, s{sTmp+4}, {cfg.rot*16384}
    s_and_b32 s{sTile}, s{sTile}, 0x1ffff
    s_add_u32 s{sTile+1}, s{sTile}, 16384
    s_and_b32 s{sTile+1}, s{sTile+1}, 0x1ffff
"""
    elif cfg.xor:
        h += f"""    s_lshl_b32 s{sTile}, s2, {11 + cfg.xor[1]}
    s_and_b32 s{sTile}, s{sTile}, {cfg.xor[0] << 14:#x}
    s_xor_b32 s{sTile+1}, s{sTile}, 0x4000
"""
    else: h += f"    s_mov_b32 s{sTile}, 0\n    s_movk_i32 s{sTile+1}, 0x4000\n"
    h += f"""    s_mov_b32 s{sQo}, 0
    v_lshlrev_b32 v{T+3}, 8, v{T+2}           ; (l>>4)*256
    v_xor_b32 v{T+5}, v{T+1}, v{T+2}          ; (l&15) ^ (l>>4)
    v_lshl_add_u32 v{vQd}, v{T+5}, 4, v{T+3}  ; Q DMA source: row*256 + (pos^row)*16
{head2(cfg).split("@CPF")[0] + f"    global_load_dword v{vJ}, v[{T+14}:{T+15}], off" if cfg.early_pf else ""}
    s_waitcnt lgkmcnt(0)
    s_add_u32 s{sK_}, s6, s{sTmp+3}
    s_addc_u32 s{sK_+1}, s7, 0
    s_add_u32 s{sQ_}, s4, s{sTmp+2}
    s_addc_u32 s{sQ_+1}, s5, 0
"""
    if cfg.stamps: h += "    s_memrealtime s[62:63]\n"
    return h

def head2(cfg):
    c = math.log2(math.e) / math.sqrt(128.0)
    T = vS
    h = f"""    ; code prefetch into L2: 16 lines per wave, 8 KiB per workgroup
    s_getpc_b64 s[{sC_}:{sC_+1}]
L_pc:
    s_mov_b32 s{sC_+2}, L_slow - L_pc
    s_bfe_u32 s{sTmp+1}, s2, 0x30003
    s_lshl2_add_u32 s{sTmp+1}, s{sTmp+1}, s{sWave}
    s_lshl_b32 s{sTmp+1}, s{sTmp+1}, 11
    v_lshl_add_u32 v{vJ}, v{T+4}, 5, s{sTmp+1}
    v_min_u32 v{vJ}, s{sC_+2}, v{vJ}          ; stay inside the code
    v_mov_b32 v{T+15}, s{sC_+1}
    v_add_co_u32 v{T+14}, vcc, s{sC_}, v{vJ}
    s_nop 1
    v_addc_co_u32 v{T+15}, vcc, 0, v{T+15}, vcc
@CPF
    s_add_u32 s{sV_}, s8, s{sTmp}
    s_addc_u32 s{sV_+1}, s9, 0
    s_add_u32 s{sO_}, s10, s{sTmp+2}
    s_addc_u32 s{sO_+1}, s11, 0
    s_mov_b32 s{sV_+2}, 0x20000
    s_mov_b32 s{sV_+3}, 0x20000
    s_mov_b32 s{sO_+2}, 0x10000
    s_mov_b32 s{sO_+3}, 0x20000
"""
    for t in range(2, 8):
        if cfg.rot: h += f"    s_add_u32 s{sTile+t}, s{sTile+t-1}, 16384\n    s_and_b32 s{sTile+t}, s{sTile+t}, 0x1ffff\n"
        elif cfg.xor: h += f"    s_xor_b32 s{sTile+t}, s{sTile}, {t*16384}\n"
        else: h += f"    s_mov_b32 s{sTile+t}, {t*16384}\n"
    h += f"""    s_lshr_b32 s{sTmp+1}, s{sWave}, 1
    s_lshl3_add_u32 s{sTmp+4}, s{sTmp+1}, s{sMq}
    s_add_u32 s{sM0}, s{sTmp+4}, {VB}
    s_add_u32 s{sM0+1}, s{sTmp+4}, {VB + VSTR}
    s_add_u32 s{sM0+2}, s{sTmp+4}, {VB + 2 * VSTR}
    s_add_u32 s{sM0+3}, s{sTmp+4}, {VB + 3 * VSTR}
    s_mov_b32 s{sOo}, 0
    s_mov_b32 s{sExp}, 0
    s_mov_b32 s{sCnt}, 2
    s_mov_b32 s{sScale}, {fbits(c):#x}
    s_mov_b32 s{sMask}, 0xffff0000
{f"    s_mov_b32 s{sPerm}, 0x07060302" if cfg.trunc else ""}
    ; K fragment read addresses: g*256 + (row ^ g ^ 4*(ds&1))*16
    v_mov_b32 v{vKr}, v{vQd}
    v_xor_b32 v{vKr+1}, 64, v{vQd}
    v_add_u32 v{vKr+2}, {0x10000 - KSH}, v{vKr}
    v_add_u32 v{vKr+3}, {0x10000 - KSH}, v{vKr+1}
    ; K write address: key 16w+4i+r goes to block 2(w&1)+(i>>1), row 8(i&1)+4(w>>1)+r ; lane = 16r+c
    s_lshl_b32 s{sTmp+1}, s{sTmp+1}, 6
    s_and_b32 s{sTmp+4}, s{sWave}, 1
    s_lshl_b32 s{sTmp+5}, s{sTmp+4}, 13
    v_and_b32 v{T+6}, 7, v{T+5}
    v_lshlrev_b32 v{T+7}, 8, v{T+1}           ; (l&15)*256
    v_lshl_add_u32 v{T+6}, v{T+6}, 4, v{T+7}
    v_xor_b32 v{T+6}, s{sTmp+1}, v{T+6}
    v_add_u32 v{vKw}, s{sTmp+5}, v{T+6}
    v_cmp_gt_u32 vcc, 1024, v{vKw}            ; lanes that write fragment (.,0,0)
    v_add_u32 v{T+6}, {3 * 16384}, v{vKw}
    v_and_b32 v{T+8}, 3, v{T+5}
    v_cndmask_b32 v{vKw+1}, v{vKw}, v{T+6}, vcc
    v_lshl_add_u32 v{T+6}, v{T+8}, 4, v{T+7}
    v_add_u32 v{vQr}, s{sMq}, v{T+6}
    ; V DMA source offsets: row r=l>>4, 64-byte unit (c16>>2)^(key&3)
    v_lshlrev_b32 v{T+6}, 2, v{T+2}
    v_xor_b32 v{T+6}, v{T+6}, v{T+1}
    v_lshl_add_u32 v{T+6}, v{T+6}, 4, v{T+3}
    v_add_u32 v{vD0}, s{sMq}, v{T+6}
    ; V transposed-read addresses: lane = 16g+4r+c reads 8 bytes of chunk c of unit (db>>1)^r of key 32(g&1)+8kb+4(g>>1)+r
    v_bfe_u32 v{T+8}, v{T+4}, 2, 2            ; r
    v_lshlrev_b32 v{T+6}, 4, v{T+1}           ; r*64 + c*16
    v_lshl_add_u32 v{T+6}, v{T+8}, 8, v{T+6}
    v_lshrrev_b32 v{T+8}, 1, v{T+2}
    v_lshl_add_u32 v{T+6}, v{T+8}, 10, v{T+6}
    v_and_b32 v{T+8}, 1, v{T+2}
    v_mul_u32_u24 v{T+8}, 8200, v{T+8}
    v_add_u32 v{T+8}, {VB}, v{T+8}
    v_and_b32 v{T+9}, 3, v{T+4}
"""
    for m in range(4):
        if m: h += f"    v_xor_b32 v{T+10}, {m * 64}, v{T+6}\n"
        h += f"    v_add_u32 v{vV+m}, v{T+8}, v{T+10 if m else T+6}\n"
    h += f"""    ; output: a store covers 8 rows x 128 bytes: (l&7)*256 + ((l>>3)&1)*64 + g*16
    v_and_b32 v{T+10}, 0x700, v{T+7}
    v_lshl_add_u32 v{T+10}, v{T+2}, 4, v{T+10}
    v_and_b32 v{T+11}, 8, v{T+1}
    v_lshl_add_u32 v{vO}, v{T+11}, 3, v{T+10}
"""
    h += f"""    ; row-sum operand: rows 4i and 4i+1 are ones; they pick elements 0,1 and 2,3 of every group of four keys
    v_cmp_eq_u32 vcc, 1, v{T+9}
    v_mov_b32 v{T+6}, 0x44444444
    v_mov_b32 v{T+8}, 0xeeeeeeee
    v_cndmask_b32 v{vIdx}, v{T+6}, v{T+8}, vcc
    v_cmp_gt_u32 vcc, {0 if cfg.ones_rows == 0 else 2}, v{T+9 if cfg.ones_rows == 8 else T+1}
    v_mov_b32 v{T+6}, 0x3f803f80
    v_mov_b32 v{vChk}, {'-1' if cfg.force_slow else '0'}
    v_cndmask_b32 v{T+6}, 0, v{T+6}, vcc
    v_lshlrev_b32 v{vCnt}, 2, v{T+4}
    v_add_u32 v{vCnt}, 0x4000, v{vCnt}
    v_mov_b32 v{vOne}, v{T+6}
    v_mov_b32 v{vOne+1}, v{T+6}
    v_mov_b32 v{vOne+2}, v{T+6}
    v_mov_b32 v{vOne+3}, v{T+6}
    v_mov_b32 v{vCone}, 1
    v_mov_b32 v{vPoll}, 0
    s_mov_b32 vcc_lo, 0xff00ff00              ; lanes with (l & 8), used by the output selects
    s_mov_b32 vcc_hi, 0xff00ff00
"""
    return h

def tail(cfg):
    lim = (127 + cfg.limit_exp) << 23
    t = ""
    if cfg.stamps == "skew":
        t += """    s_mov_b32 s58, 256
    s_mov_b32 s59, 0x20000
    s_not_b32 s64, s60
    v_mov_b32 v64, s64
    v_mov_b32 v60, 0
    s_mov_b64 exec, 1
    s_cmp_lg_u32 s3, 0
    s_cbranch_scc1 L_sk1
    buffer_atomic_umax v64, v60, s[56:59], 0 offen
    s_waitcnt vmcnt(0)
L_sk1:
    s_memrealtime s[72:73]
    s_waitcnt lgkmcnt(0)
    s_sub_u32 s72, s72, s60
    s_cmp_lt_u32 s72, 8000
    s_cbranch_scc1 L_sk1
    buffer_load_dword v64, v60, s[56:59], 0 offen sc0 sc1
    s_waitcnt vmcnt(0)
    v_readfirstlane_b32 s64, v64
    s_nop 4
    s_not_b32 s64, s64
L_sk2:
    s_memrealtime s[72:73]
    s_waitcnt lgkmcnt(0)
    s_sub_u32 s72, s72, s64
    s_cmp_lt_u32 s72, 10000
    s_cbranch_scc1 L_sk2
    s_mov_b64 exec, -1
"""
    elif cfg.stamps == "spin":
        if not getattr(cfg, "stamp_steps", []): t += "    s_waitcnt vmcnt(0)\n    s_memrealtime s[64:65]\n"
        t += f"""    s_waitcnt lgkmcnt(0)
    {"s_sub_u32 s64, s66, s64" if len(getattr(cfg, "stamp_steps", [])) == 2 else "s_sub_u32 s64, s64, s60"}
    s_mul_i32 s64, s64, {getattr(cfg, "spin_mul", 0)}
    s_add_u32 s64, s64, 10000
L_spin:
    s_memrealtime s[72:73]
    s_waitcnt lgkmcnt(0)
    s_sub_u32 s72, s72, s60
    s_cmp_lt_u32 s72, s64
    s_cbranch_scc1 L_spin
"""
    elif cfg.stamps:
        e0 = 88 if cfg.stamps == "c16" else 72
        t += f"""    s_memrealtime s[{e0}:{e0+1}]
    s_waitcnt vmcnt(0)
    s_memrealtime s[{e0+2}:{e0+3}]
    s_mov_b32 s58, 0x10000000
    s_mov_b32 s59, 0x20000
    s_lshl_b32 s46, s2, 2
    s_add_u32 s46, s46, s3
    s_lshl_b32 s46, s46, 6
    s_waitcnt lgkmcnt(0)
"""
        for i in range(16): t += f"    v_mov_b32 v{64+i}, s{60+(2*i if cfg.stamps == 'c16' else i)}\n"
        t += "    v_mov_b32 v60, 0\n    s_mov_b64 exec, 1\n"
        if cfg.stamps == "dbg":
            t += "    s_mov_b32 s58, 256\n"
            for i in range(8):
                t += f"    v_not_b32 v{65+2*i}, v{64+2*i}\n"
            for i in range(16): t += f"    buffer_atomic_umax v{64+i}, v60, s[56:59], 0 offen offset:{4*i}\n"
        else:
          for i in range(4): t += f"    buffer_store_dwordx4 v[{64+4*i}:{67+4*i}], v60, s[56:59], s46 offen offset:{16*i}\n"
        t += "    s_mov_b64 exec, -1\n"
    t += f"""    v_cmp_lt_u32 vcc, {lim:#x}, v{vChk}
    s_nop 4
    s_cbranch_vccnz L_slow
L_end:
    s_endpgm
"""
    for n in cfg.spins:
        t += f"""L_spin{n}:
    ds_read_b32 v{vPoll}, v{vCnt}
    s_waitcnt lgkmcnt(0)
    v_readfirstlane_b32 s{sPol}, v{vPoll}
    s_nop 3
    s_cmp_lt_u32 s{sPol}, s{sExp}
    s_cbranch_scc1 L_spin{n}
    s_branch L_back{n}
"""
    S0, S1, M, T = 16, 20, 24, 25
    vQ = vQd; vKb = vKr + 2
    q = lambda ds: at(aQ + 4 * ds, 4)
    k = lambda j, ds: at(aK + j * 16 + 4 * ds, 4)
    t += f"""; Fallback: a row sum left [2^-{cfg.limit_exp}, 2^{cfg.limit_exp}] (or is not finite), so exp without an offset was not safe.
; This wave recomputes its 256 rows subtracting the true row maximum.  K is rebuilt in LDS; V goes through a private 8 KiB.
L_slow:
    s_waitcnt vmcnt(0) lgkmcnt(0)
    s_barrier                                 ; the other waves are done with LDS (ended or here)
    s_mov_b32 s{sQo}, 0
    s_lshl_b32 s{sTmp}, s{sWave}, 12
    s_lshl_b32 s{sTmp+1}, s{sWave}, 13
    s_add_u32 s{sTmp+2}, s{sTmp+1}, 0x20000
    s_add_u32 s{sTmp+3}, s{sTmp+2}, 4096
    v_subrev_u32 v{vD0}, s{sTmp}, v{vD0}
    v_bfe_u32 v{T}, v{vKl}, 4, 4              ; l & 15
    v_lshrrev_b32 v{T+1}, 8, v{vKl}           ; l >> 4
    v_lshlrev_b32 v{vQ}, 4, v{T+1}
    v_lshl_add_u32 v{vQ}, v{T}, 8, v{vQ}      ; Q rows in MFMA layout
    v_xor_b32 v{T+1}, v{T}, v{T+1}
    v_and_b32 v{T+1}, 7, v{T+1}
    v_lshlrev_b32 v{T+1}, 4, v{T+1}
    v_lshl_add_u32 v{vKw}, v{T}, 8, v{T+1}
    v_xor_b32 v{vKw+1}, 64, v{vKw}
    v_lshrrev_b32 v{T+1}, 6, v{vKl}           ; 4g+r
    v_lshlrev_b32 v{T+1}, 8, v{T+1}
    v_lshl_add_u32 v{T+1}, v{T}, 4, v{T+1}
    v_add_u32 v{vV}, s{sTmp+2}, v{T+1}
    v_xor_b32 v{vV+1}, 64, v{vV}
    v_xor_b32 v{vV+2}, 128, v{vV}
    v_xor_b32 v{vV+3}, 192, v{vV}
"""
    t += f"""    s_sub_u32 s{sK_}, s{sK_}, s{sTmp}
    s_subb_u32 s{sK_+1}, s{sK_+1}, 0
    s_mov_b32 s{sK_+2}, 0x20000
    s_mov_b32 s{sCnt}, 0
L_skld:
"""
    for i in range(4): t += f"    buffer_load_dwordx4 {vt(vOa+4*i,4)}, v{vKl}, s[{sK_}:{sK_+3}], s{sCnt} offen offset:{i*1024}\n"
    t += "    s_waitcnt vmcnt(0)\n"
    for x in range(vOa, vOa + 16):
        t += f"""    v_lshlrev_b32 v{T}, 16, v{x}
    v_and_b32 v{x}, s{sMask}, v{x}
    v_mul_f32 v{T}, s{sScale}, v{T}
    v_mul_f32 v{x}, s{sScale}, v{x}
    v_cvt_pk_bf16_f32 v{x}, v{T}, v{x}
"""
    for i in range(4): t += f"    ds_write_b128 v{vKw+(i&1)}, {vt(vOa+4*i,4)} offset:{(i>>1)*128}\n"
    t += f"""    s_waitcnt lgkmcnt(0)
    v_add_u32 v{vKw}, 4096, v{vKw}
    v_add_u32 v{vKw+1}, 4096, v{vKw+1}
    s_add_u32 s{sCnt}, s{sCnt}, 4096
    s_cmp_lt_u32 s{sCnt}, 0x20000
    s_cbranch_scc1 L_skld
"""
    t += "L_sblk:\n"
    for ds in range(4): t += f"    buffer_load_dwordx4 {q(ds)}, v{vQ}, s[{sQ_}:{sQ_+3}], s{sQo} offen offset:{ds*64}\n"
    t += f"""    v_mov_b32 v{M}, 0xff800000
    v_mov_b32 v{vKb}, v{vKr}
    v_mov_b32 v{vKb+1}, v{vKr+1}
    s_mov_b32 s{sCnt}, 32
    s_waitcnt vmcnt(0)
L_smax:
"""
    for ds in range(4): t += f"    ds_read_b128 {k(0,ds)}, v{vKb+(ds&1)} offset:{ds*1024}\n"
    t += "    s_waitcnt lgkmcnt(0)\n"
    for ds in range(4): t += f"    v_mfma_f32_16x16x32_bf16 {vt(S0,4)}, {k(0,ds)}, {q(ds)}, {'0' if ds == 0 else vt(S0,4)}\n"
    t += f"""    s_nop 7
    v_max3_f32 v{M}, v{M}, v{S0}, v{S0+1}
    v_max3_f32 v{M}, v{M}, v{S0+2}, v{S0+3}
    v_add_u32 v{vKb}, 4096, v{vKb}
    v_add_u32 v{vKb+1}, 4096, v{vKb+1}
    s_sub_u32 s{sCnt}, s{sCnt}, 1
    s_cmp_lg_u32 s{sCnt}, 0
    s_cbranch_scc1 L_smax
    v_mov_b32 v{T}, v{M}
    s_nop 1
    v_permlane16_swap_b32 v{M}, v{T}
    s_nop 1
    v_max_f32 v{M}, v{M}, v{T}
    v_mov_b32 v{T}, v{M}
    s_nop 1
    v_permlane32_swap_b32 v{M}, v{T}
    s_nop 1
    v_max_f32 v{M}, v{M}, v{T}
"""
    for r in range(4): t += f"    v_mov_b32 v{vL+r}, 0\n"
    for r in range(32): t += f"    v_mov_b32 v{vOa+r}, 0\n"
    t += f"""    v_mov_b32 v{vKb}, v{vKr}
    v_mov_b32 v{vKb+1}, v{vKr+1}
    s_mov_b32 s{sCnt}, 0
L_skey:
    s_mov_b32 m0, s{sTmp+2}
    s_mov_b32 s{sTmp+5}, s{sCnt}
    s_add_u32 s{sTmp+4}, s{sTmp+5}, 4096
"""
    for i in range(4): t += f"    buffer_load_dwordx4 v{vD0}, s[{sV_}:{sV_+3}], s{sTmp+5} offen offset:{i*1024} lds\n"
    t += f"    s_mov_b32 m0, s{sTmp+3}\n    s_nop 0\n"
    for i in range(4): t += f"    buffer_load_dwordx4 v{vD0}, s[{sV_}:{sV_+3}], s{sTmp+4} offen offset:{i*1024} lds\n"
    for j in range(2):
        for ds in range(4): t += f"    ds_read_b128 {k(j,ds)}, v{vKb+(ds&1)} offset:{j*4096+ds*1024}\n"
    t += "    s_waitcnt vmcnt(0) lgkmcnt(0)\n"
    for db in range(8):
        for h in range(2): t += f"    ds_read_b64_tr_b16 {at(aV+db*4+2*h,2)}, v{vV+(db>>1)} offset:{h*4096+(db&1)*8}\n"
    for j, S in enumerate((S0, S1)):
        for ds in range(4): t += f"    v_mfma_f32_16x16x32_bf16 {vt(S,4)}, {k(j,ds)}, {q(ds)}, {'0' if ds == 0 else vt(S,4)}\n"
    t += "    s_nop 7\n"
    for r in range(8): t += f"    v_sub_f32 v{S0+r}, v{S0+r}, v{M}\n"
    for r in range(8): t += f"    v_exp_f32 v{S0+r}, v{S0+r}\n"
    t += "    s_nop 0\n"
    for r in range(4): t += f"    v_cvt_pk_bf16_f32 v{vP+r}, v{S0+2*r}, v{S0+2*r+1}\n"
    t += f"    v_add_u32 v{vKb}, 8192, v{vKb}\n    v_add_u32 v{vKb+1}, 8192, v{vKb+1}\n    s_waitcnt lgkmcnt(0)\n    s_nop 0\n"
    t += f"    v_mfma_f32_16x16x32_bf16 {vt(vL,4)}, {vt(vOne,4)}, {vt(vP,4)}, {vt(vL,4)}\n"
    for db in range(8): t += f"    v_mfma_f32_16x16x32_bf16 {vt(vOa+4*db,4)}, {at(aV+db*4,4)}, {vt(vP,4)}, {vt(vOa+4*db,4)}\n"
    t += f"""    s_add_u32 s{sCnt}, s{sCnt}, 8192
    s_cmp_lt_u32 s{sCnt}, 0x20000
    s_cbranch_scc1 L_skey
    s_nop 7
    v_rcp_f32 v{vR}, v{vL}
    s_nop 0
"""
    for r in range(32): t += f"    v_mul_f32 v{vOa+r}, v{vOa+r}, v{vR}\n"
    for db in range(8):
        o = vOa + 4 * db; d = vP + 2 * db
        t += f"    v_cvt_pk_bf16_f32 v{d}, v{o}, v{o+1}\n    v_cvt_pk_bf16_f32 v{d+1}, v{o+2}, v{o+3}\n"
    if cfg.store_x4:
        t += "    s_nop 1\n"
        for db in range(0, 8, 2):
            d = vP + 2 * db
            if not cfg.vperm: t += f"    v_permlane16_swap_b32 v{d}, v{d+2}\n    v_permlane16_swap_b32 v{d+1}, v{d+3}\n"
            t += f"    buffer_store_dwordx4 {vt(d,4)}, v{vQ}, s[{sO_}:{sO_+3}], s{sQo} offen offset:{db*32}\n"
    else:
        for db in range(8): t += f"    buffer_store_dwordx2 {vt(vP+2*db,2)}, v{vO}, s[{sO_}:{sO_+3}], s{sQo} offen offset:{db*32}\n"
    t += f"""    s_add_u32 s{sQo}, s{sQo}, 4096
    s_cmp_lt_u32 s{sQo}, 0x10000
    s_waitcnt vmcnt(0)
    s_cbranch_scc1 L_sblk
    s_endpgm
"""
    return t

HDR = """; Kernarg layout for this problem (48 bytes, ptrs only, base s[0:1]):
;   offset   0: d_in[0] q  shape=(16, 32, 512, 128) dtype=bfloat16
;   offset   8: d_in[1] k  shape=(16, 4, 512, 128) dtype=bfloat16
;   offset  16: d_in[2] v  shape=(16, 4, 512, 128) dtype=bfloat16
;   offset  24: d_out     shape=(16, 32, 512, 128) dtype=bfloat16
;   offset  32: d_debug   256 bytes
;   offset  40: d_ws      268435456 bytes workspace (unused)
; @launch grid=(256,1,1) block=(256,1,1) lds=163840
;
; GQA attention forward, out = softmax(q k^T / sqrt(128)) v.  Generated by my own scheduling script.
; * One workgroup per CU: 1024 q rows against the 512 keys of one (batch, kv head); each wave owns 256 rows and keeps
;   four 16-row blocks in flight, started two key tiles apart (a block walks the eight 64-key tiles cyclically).
; * v_mfma_f32_16x16x32_bf16 for S^T = K Q^T and O^T = V^T P^T; P goes from the S registers straight into the B operand.
;   K is multiplied by log2(e)/sqrt(128) once and stays in LDS (one tile in registers); V streams through a two-slot LDS
;   ring by LDS-DMA (one tile in registers) and is read with ds_read_b64_tr_b16; Q is staged through LDS.
; * Row sums come from one v_smfmac per block and tile (rows of ones with complementary 2:4 index patterns).
; * Waves meet through an arrive/poll counter in LDS (s_barrier in the first steps).
; * Softmax guard: softmax is invariant under a per-row shift, so the main path uses shift 0 and CHECKS every row sum l
;   at run time: l and 1/l must both be <= 2^32 (this also rejects inf and NaN).  Inside that range nothing overflowed and
;   recomputes all its rows subtracting the true row maximum.
"""

PAD = """; Instruction prefetch stops at 4 KiB boundaries: start the kernel on one (the harness puts 0x300 bytes in front of the label).
.p2align 12
.fill 832, 4, 0xbf800000
"""

def add_hops(cfg, text):
    import subprocess, re, os, tempfile
    lines = text.split("\n")
    i0 = lines.index(KN + ":"); i1 = lines.index("L_end:")
    tmp = tempfile.mkdtemp()
    src = "\n".join(lines).replace("@HOPS", "\n".join(["    s_nop 0"] * 9))
    lines = src.split("\n"); i1 = lines.index("L_end:")
    hop0 = text.split("\n").index("@HOPS")
    open(tmp + "/a.s", "w").write(src)
    subprocess.run(["clang", "-x", "assembler", "-target", "amdgcn-amd-amdhsa", "-mcpu=gfx950", "-c", tmp + "/a.s", "-o", tmp + "/a.o"], check=True)
    dis = subprocess.run(["llvm-objdump", "-d", "--mcpu=gfx950", tmp + "/a.o"], capture_output=True, text=True).stdout
    dis = dis[dis.index("<" + KN + ">:"):]
    sizes = [4 * len(m.group(1).split()) for m in re.finditer(r"// [0-9A-F]{12}: ([0-9A-F ]+)", dis)]
    isins = lambda l: l.startswith("    ") and not l.strip().startswith(";") and l.strip()
    out = lines[:i0 + 1]; addr = 0; k = 0; page = 1; j = i0 + 1
    def look(j, k, addr, page):
        cands = []
        while addr < page * 4096 + 64 and j < i1:
            if isins(lines[j]):
                addr += sizes[k]; k += 1
                if "mfma" in lines[j] and page * 4096 <= addr <= page * 4096 + 60:
                    nx = lines[j + 1].strip()
                    cands.append((0 if nx == "s_nop 0" else (1 if nx.startswith("v_") else 2), j))
                elif page * 4096 <= addr <= page * 4096 + 60 and lines[j].strip().startswith("v_"): cands.append((3, j))
            j += 1
        return min(cands) if cands else None
    plan = None
    while j < i1:
        l = lines[j]
        if plan is None and addr >= page * 4096 - 64:
            plan = look(j, k, addr, page)
            if plan is None: page_end = True
        out.append(l)
        if isins(l): addr += sizes[k]; k += 1
        if plan and plan[1] == j:
            out.append(f"L_hop{page}:"); out.append(f"    s_cbranch_execz @NEXT{page}@"); addr += 4
            if plan[0] == 0: j += 1; k += 1
            plan = None; page += 1
        j += 1
    out += lines[i1:]
    np_ = page - 1
    r = "\n".join(out)
    for p in range(1, np_ + 1): r = r.replace(f"@NEXT{p}@", f"L_hop{p+4}" if p + 4 <= np_ else "L_hback")
    rl = r.split("\n")
    rl[hop0:hop0 + 9] = ["    s_mov_b64 exec, 0                         ; warm the instruction cache: visit the first line of every code page"] + \
        [x for w in range(3) for x in (f"    s_cmp_eq_u32 s{sWave}, {w}", f"    s_cbranch_scc1 L_hop{w+1}")] + ["    s_branch L_hop4", "L_hback:", "    s_mov_b64 exec, -1"]
    return "\n".join(rl)

def full(cfg):
    body = generate(cfg)
    r = full2(cfg, body)
    if getattr(cfg, "spin_cyc", 0):
        r = r.replace("s_memrealtime s[64:65]", "s_memtime s[64:65]").replace("s_memrealtime s[66:67]", "s_memtime s[66:67]").replace("s_memrealtime s[62:63]", "s_memtime s[62:63]")
        r = r.replace("s_sub_u32 s64, s64, s60", "s_sub_u32 s64, s64, s62").replace("s_mul_i32 s64, s64, 0", "s_lshr_b32 s64, s64, 1")
    if cfg.stamps in ("cyc", "c16"): r = r.replace("s_memrealtime", "s_memtime")
    if cfg.stamps == "both":
        import re
        r = re.sub(r"    s_memrealtime s\[(\d+):(\d+)\]", lambda m: f"    s_memtime s[{m.group(1)}:{m.group(2)}]\n    s_memrealtime s[{int(m.group(1))+20}:{int(m.group(2))+20}]", r)
        for i in range(8): r = r.replace(f"v_mov_b32 v{65+2*i}, s{61+2*i}\n", f"v_mov_b32 v{65+2*i}, s{80+2*i}\n")
    if "@HOPS" in r: r = add_hops(cfg, r.replace("    @HOPS", "@HOPS"))
    return r

def full2(cfg, body):
    return HDR + f""".amdgcn_target "amdgcn-amd-amdhsa--gfx950"
.text
.globl {KN}
{PAD if cfg.align else ""}.p2align 8
.type {KN},@function
{KN}:
""" + head(cfg) + body + "\n" + tail(cfg) + f""".section .rodata,"a"
.p2align 6
.amdhsa_kernel {KN}
  .amdhsa_next_free_vgpr 512
  .amdhsa_next_free_sgpr 102
  .amdhsa_accum_offset 256
  .amdhsa_group_segment_fixed_size 0
  .amdhsa_kernarg_size 48
  .amdhsa_user_sgpr_count 2
  .amdhsa_user_sgpr_kernarg_segment_ptr 1
  .amdhsa_system_sgpr_workgroup_id_x 1
.end_amdhsa_kernel
"""

if __name__ == "__main__":
    cfg = Cfg()
    name = sys.argv[1]
    for a in sys.argv[2:]:
        k, v = a.split("=", 1)
        try: v = eval(v)
        except Exception: pass
        setattr(cfg, k, v)
    s = full(cfg)
    open(name, "w").write(s)
    tot = sum(v[0] for v in cfg.est.values())
    print(name, "est head", cfg.est_head, "total", tot, "mfma", sum(v[1] for v in cfg.est.values()), file=sys.stderr)
    print(" ".join(f"{s}:{v[0]}/{v[1]}" for s, v in cfg.est.items() if s < 16 or s >= 32), file=sys.stderr)
```

```python
import sys, math, struct
KN = "standalone__gqa_softmax__near_ridge_kernel"

class Cfg:
    sigma = (0, 2, 4, 6)
    beta = 0.85
    beta_small = 0.55
    ds_lat = 9
    mv_lat = 4
    store_x4 = True
    q_nt = "nt"
    st_pol = "sc0 sc1"
    k_pol = "nt"
    v_pol = ""
    v_pol0 = "nt"
    rot = 0
    split_from = 4
    split_min_u = 2
    arr_gap = 10
    vm_gap = 5
    smooth = True
    stamps = False
    code_pf = True
    plan = "K0 Q0 C K1 H W00 V0 S0 B r0 r1 R0 K2 S1@0.0 V1@0.0 Q1@0.5 K3@1.0 V2@1.5 R1@2.0 K4@2.0 Q2@2.3 V3@2.6 K5@3.0 V4@3.4 K6@3.b R2@3.b Q3@4.0 K7@4.b R3@5.b Q4@6.0"
    vperm = True
    st_last = "sc0 sc1"
    st_last_from = 38
    ones_rows = 8
    trunc = False
    fake_st = False
    fake_v = False
    fake_m0 = 0
    v_n0 = 8
    st_block = 0
    c_pol = ""
    st_first = None
    st_pair = False
    fetch_thr = 1
    fetch_slack = 1
    st_gap = 16
    st_gap_all = False
    pf2 = False
    x8 = True
    qr_asap = True
    full_until = 33
    kst = [(1, 0), (1, 1), (2, 0), (2, 1), (3, 0), (3, 1), (3, "P"), (3, 0)]
    jitter = None
    xor = None
    qlag = {}
    lags = {}
    tailpub = {33: [33, 34], 35: [35, 37]}
    align = True
    early_pf = True
    sigma0 = None
    loop_from = 8
    vtouch = False
    group = 2
    group_min = 2
    rev = True
    snake = True
    on_first = True
    fake = ""
    deep = True
    tail_dl = 1.0
    betas = {0: 0.95, 1: 0.9, 2: 0.8, 3: 0.8}
    arr_gap_small = 4
    k_up = 1
    force_slow = False
    nop_ds = True
    ds_gap = 2
    ds_cap = 1024
    kill_from = None
    pad = 0
    kill = ()
    limit_exp = 32

vQd, vO, vQr, vCnt, vD0, vChk = 0, 2, 3, 4, 0, 7
vKwS = (5, 48)
vKp2 = 8
vKl = 0
vV = 1
vS = 16
vL = 32
vR = 48
vKw = 50
vT = 52
NT = 5
vIdx = 57
vPoll = 58
vJ = 59
vKr = 60
vP = 64
vOa = 128
aQ, aKp, aVp, aK, aV = 0, 64, 128, 192, 224
vOne, vCone, vKp1, vO2, vO3 = 12, 6, 52, 56, 59
sPol = 40
sMqs = 76
TV = 4
TMPS = [44, 45, 46, 47, 56]
sQ_, sK_, sV_, sO_, sC_ = 12, 16, 20, 24, 28
sTile = 32
sM0 = 96
sQo, sOo, sCnt, sScale, sWave = 42, 43, 44, 45, 3
sTmp = 46
sMq, sExp, sMask, sPerm = 52, 53, 54, 55

VB, VSTR, KSH, VW = 0x18000 - 800, 16584, 800, 4160
QW, CB = 4192, 0x4180
def vr(b, n=1): return [f"v{b+i}" for i in range(n)]
def ar(b, n=1): return [f"a{b+i}" for i in range(n)]
def vt(b, n): return f"v[{b}:{b+n-1}]"
def at(b, n): return f"a[{b}:{b+n-1}]"

class Op:
    def __init__(s, key, text, kind, reads, writes, cost=None, earliest=None, dummy=False, anchor=None, maxdl=None):
        s.key, s.text, s.kind, s.reads, s.writes = key, text, kind, list(reads), list(writes)
        s.cost = {"mfma": 0, "trans": 8, "valu": 4, "ds": 4, "dsw": 20, "load": 8, "dma": 8, "store": 12, "salu": 0, "bar": 0, "chk": 0}[kind] if cost is None else cost
        s.cnt = {"ds": "lgkm", "dsw": "lgkm", "load": "vm", "dma": "vm", "store": "vm"}.get(kind)
        s.earliest = earliest
        s.maxdl = maxdl
        s.dummy = dummy
        s.anchor = anchor
        s.preds = []; s.succs = []; s.win = None; s.pos = None; s.m = None
        s.prod = {}

def blockpos(cfg, s, u):
    s0 = (cfg.sigma0 or cfg.sigma)[u]
    if s0 <= s < s0 + 8: return (0, s - s0)
    if cfg.sigma[u] + 8 <= s < cfg.sigma[u] + 32: return divmod(s - cfg.sigma[u], 8)
    return (None, None)

def build(cfg, s0, s1, steady):
    sg = cfg.sigma
    NP = 4
    last = 32 + max(sg)
    def li(s, u): return (s - sg[u]) % 8 if steady else blockpos(cfg, s, u)[1]
    def qk_on(s, u): return li(s, u) is not None
    def pv_on(s, u): return li(s - 1, u) is not None
    def order_qk(s, kb):
        us = [u for u in range(4) if qk_on(s, u)]
        if kb == 3:
            f = [u for u in us if li(s, u) == 7]
            us = f + [u for u in us if u not in f]
        if kb == 0:
            f = [u for u in us if li(s, u) == 0]
            us = [u for u in us if u not in f] + f
        return us
    prog = []
    A = prog.append
    chain = 0
    pend_q = []
    def qload(key, earliest=None, dummy=False, alt=False):
        if alt:
            A(Op(key + ("m0",), f"s_add_u32 m0, s{sMq}, {0x8000 - KSH}", "salu", [], ["m0"]))
            for i in range(4):
                A(Op(key + (i,), f"buffer_load_dwordx4 v{vQd}, s[{sQ_}:{sQ_+3}], s{sQo} offen offset:{i*1024} {cfg.q_nt} lds".replace("  ", " "), "dma",
                     [f"s{sQo}", "m0"], [f"Qa{i}"], earliest=earliest))
            A(Op(key + ("inc",), f"s_add_u32 s{sQo}, s{sQo}, 4096", "salu", [f"s{sQo}"], [f"s{sQo}"]))
            return
        for i in range(4):
            A(Op(key + (f"m{i}",), f"s_mov_b32 m0, s{sMqs + i}", "salu", [], ["m0"], dummy=dummy))
            A(Op(key + (i,), f"buffer_load_dwordx4 v{vQd}, s[{sQ_}:{sQ_+3}], s{sQo} offen offset:{i*1024} {cfg.q_nt} lds".replace("  ", " "), "dma",
                 [f"s{sQo}", "m0"] + [f"Qrd{d}" for d in range(4)], [f"Qs{i}"], earliest=earliest, dummy=dummy))
        A(Op(key + ("inc",), f"s_add_u32 s{sQo}, s{sQo}, 4096", "salu", [f"s{sQo}"], [f"s{sQo}"], dummy=dummy))
    def qread(key, u, earliest=None, dummy=False, alt=False):
        for ds in range(4):
            d = aQ + 16 * u + 4 * ds
            if alt:
                A(Op(key + (ds,), f"ds_read_b128 {at(d,4)}, v{vQr} offset:{0x8000 - KSH + ds*64}", "ds", [f"Qa{i}" for i in range(4)], ar(d, 4) + [f"Qar{ds}"], earliest=earliest))
                continue
            A(Op(key + (ds,), f"ds_read_b128 {at(d,4)}, v{vQr} offset:{ds*64}", "ds", [f"Qs{i}" for i in range(4)], ar(d, 4) + [f"Qrd{ds}"], earliest=earliest, dummy=dummy))
    def kfrag(s, kb, ds):
        t = s % 8
        if (t, kb, ds) == (1, 0, 0): return ("v", vKp1)
        if (t, kb, ds) == (1, 0, 1): return ("v", vKp2)
        if t == 0 or (not steady and s >= 34): return ("a", aKp + kb * 16 + ds * 4)
        if not steady and s <= 4: return ("a", aK + kb * 16 + ds * 4)
        return ("a", aK + (kb & 1) * 16 + ds * 4)
    def vperm_(sv): return sv % 8 == TV and (steady or sv >= 8)
    def vfrag(sv, db):
        if sv % 8 == TV or (not steady and sv < TV): return aVp + db * 8
        if not steady and sv >= 34 and db >= 4: return aQ + (db - 4) * 8
        return aV + (db & 3) * 8
    rt = lambda f, n: f"{f[0]}[{f[1]}:{f[1]+n-1}]"
    rr = lambda f, n: [f"{f[0]}{f[1]+i}" for i in range(n)]
    def vslot(sv):
        if not steady and sv in (2, 3, 34, 35): return sv & 1
        if not steady and sv == 37: return 3
        return 2 + (((sv - TV - 1) % 8) & 1)
    def vprev(sv):
        if vslot(sv) < 2: return ["Kret67"] if sv > 8 else []
        p = sv - 1
        while p >= 0 and (vslot(p) != vslot(sv) or vperm_(p)): p -= 1
        return [f"Vret{p}"] if p >= 0 else []
    vissued = set()
    def vdma(sv, earliest=None):
        vissued.add(sv)
        A(Op(("m0", sv), f"s_mov_b32 m0, s{sM0 + vslot(sv)}", "salu", ["setup~"], ["m0"]))
        for i in range(4):
            A(Op(("dma", sv, i), f"buffer_load_dwordx4 v{vD0}, s[{sV_ if i < 2 else sC_}:{(sV_ if i < 2 else sC_)+3}], s{sTile + sv % 8} offen offset:{i*1024 + (i >> 1) * 8} {cfg.v_pol0 if (not steady and sv < cfg.v_n0) else cfg.v_pol} lds".replace("  ", " "), "dma",
                 ["m0"] + vprev(sv), [f"Vd{sv}_{i}"], earliest=earliest))
    kstage = {}
    def kregs(t):
        u = KST[t][0]; h = KST[t][1]
        if h == "P": return [vP + (ds >> 1) * 32 + u * 8 + (ds & 1) * 4 for ds in range(4)]
        return [vOa + (h * 4 + ds) * 16 + u * 4 for ds in range(4)]
    KST = cfg.kst
    if cfg.k_up == 8: KST = [(0, 0), (0, 1), (1, 0), (1, 1), (2, 0), (2, 1), (3, 0), (3, 1)]
    def kload(t, earliest=None):
        for ds, r in enumerate(kregs(t)):
            A(Op(("kld", t, ds), f"buffer_load_dwordx4 {vt(r,4)}, v{vKl}, s[{sK_}:{sK_+3}], s{sTile + t} offen offset:{ds*1024} {cfg.k_pol}".rstrip(), "load",
                 [], vr(r, 4), earliest=earliest))
    tmpc = [0]
    def kscale(t, earliest=None):
        for ds, r in enumerate(kregs(t)):
            for j in range(4):
                x = r + j; tm = TMPS[tmpc[0] % NT]; tmpc[0] += 1
                k = ("ksc", t, ds, j)
                A(Op(k + (0,), f"v_lshlrev_b32 v{tm}, 16, v{x}", "valu", vr(x), vr(tm), earliest=earliest))
                A(Op(k + (1,), f"v_and_b32 v{x}, s{sMask}, v{x}", "valu", vr(x), vr(x), earliest=earliest))
                A(Op(k + (2,), f"v_mul_f32 v{tm}, s{sScale}, v{tm}", "valu", vr(tm), vr(tm)))
                A(Op(k + (3,), f"v_mul_f32 v{x}, s{sScale}, v{x}", "valu", vr(x), vr(x)))
                A(Op(k + (4,), f"v_cvt_pk_bf16_f32 v{x}, v{tm}, v{x}", "valu", vr(tm) + vr(x), vr(x)))
            tl = 3 if t == 0 else t
            if t == 4 and ds in (0, 2):
                A(Op(("kwa", t, ds), f"v_add_u32 v{vKw + (ds >> 1)}, {0x10000 - KSH}, v{vKw + (ds >> 1)}", "valu", vr(vKw + (ds >> 1)), vr(vKw + (ds >> 1))))
            a = vKwS[ds >> 1] if (t == 1 and not ds & 1) else vKw + (ds >> 1)
            A(Op(("kw", t, ds), f"ds_write_b128 v{a}, {vt(r,4)} offset:{(tl & 3) * 16384 + (ds & 1) * 8192 - (KSH if tl < 4 else 0)}", "dsw",
                 vr(r, 4) + vr(a) + (["K0dead"] if t in (3, 4) else []) + (["Qadead"] if (t == 2 and " q1" in cfg.plan) else []) + ([f"Vret{v}" for v in range(2, t - 3)] if t >= 6 and cfg.deep else []), [f"Kw{t}_{ds}"]))
    nmf = [0]
    kpub = set()
    def kread1(s, t, kb):
        for ds in range(4):
            perm = t == 0 or ((t, kb) == (1, 0) and ds < 2)
            if perm and (steady or s > 7): continue
            d = kfrag(s, kb, ds); tl = 3 if t == 0 else (4 if perm else t)
            A(Op(("kr", s, kb, ds), f"ds_read_b128 {rt(d,4)}, v{vKr + 2 * (tl >> 2) + (ds & 1)} offset:{(tl & 3) * 16384 + kb * 4096 + ds * 1024 - (KSH if tl < 4 else 0)}", "ds",
                 [] if (steady or s > 7) else [f"Kok{t}"], rr(d, 4) + ([] if not perm else [f"Kr0_{kb}_{ds}" if t == 0 else f"Kr1_{ds}"])))
    kdone0 = set(); kscaled = []
    later = {}
    if not steady:
        H = (-1, 0)
        def issue(item, when):
            n0 = len(prog)
            n = int(item[1:]) if item[1:].isdigit() else None
            if item[0] == "K": kload(n, when)
            elif item[0] == "Q": qload(("q0", n) if n < 4 else ("q", 8, 0), when)
            elif item[0] == "R": qread(("qr0", n), n, when)
            elif item[0] == "q": qload(("q0", n), when, alt=True)
            elif item[0] == "x": qread(("qr0", n), n, when, alt=True)
            elif item[0] == "V": vdma(n, when)
            elif item[0] == "S": kscale(n, when); kscaled.append(n)
            elif item[0] == "r": kread1(0, 0, n); kdone0.add(n)
            elif item[0] == "W":
                A(Op(("wt", 0, item), "s_nop 0", "valu", vr(kregs(int(item[1]))[int(item[2])], 4), []))
            elif item[0] == "P":
                A(Op(("cpf", 1), f"buffer_load_dword v{vJ}, v{vJ}, s[{sC_}:{sC_+3}], 0 offen {cfg.c_pol}".rstrip(), "load", [], ["junk"], earliest=when))
            elif item[0] == "H":
                A(Op(("hop", 0), "@HOPS", "valu", [], [], earliest=when, maxdl=when))
            elif item[0] == "T":
                A(Op(("ts", 0, item), f"s_memrealtime s[{64+2*n}:{65+2*n}]", "valu", [], []))
            elif item[0] == "X":
                A(Op(("wt", 0, item), "s_nop 0", "valu", [f"Qs{i}" for i in range(4)], []))
            elif item[0] == "B":
                pub = [t for t in kscaled if t not in kpub]; kpub.update(pub)
                A(Op(("bar", -1), "s_barrier", "bar", ["Czero"] + [f"Kw{t}_{ds}" for t in pub for ds in range(4)], [f"Kok{t}" for t in pub], anchor=H))
            elif item[0] == "C":
                pf = f"global_load_dword v{vJ}, v[{vS+14}:{vS+15}], off"
                if cfg.early_pf and cfg.vtouch:
                    tx = head2(cfg).split("@CPF")[1].strip().replace(f"    s_mov_b32 s{sO_+2}, 0x10000", f"    buffer_load_dword v{vS+14}, off, s[{sV_}:{sV_+3}], s{sMq} {cfg.v_pol0}\n    s_mov_b32 s{sO_+2}, 0x10000")
                    A(Op(("cpf", 0), tx, "load", [], vr(vS + 14), earliest=when, cost=300))
                elif cfg.early_pf:
                    A(Op(("cpf", 0), head2(cfg).split("@CPF")[1].strip(), "valu", [], [], earliest=when, cost=300))
                elif cfg.pf2:
                    p1 = f"""    s_lshr_b32 s{sTmp+4}, s{sWave}, 1
    s_lshl1_add_u32 s{sTmp+4}, s2, s{sTmp+4}
    s_lshl_b32 s{sTmp+4}, s{sTmp+4}, 7
    v_and_b32 v{vS+15}, 0x70, v{vKl}
    buffer_load_dword v{vS+15}, v{vS+15}, s[{sC_}:{sC_+3}], s{sTmp+4} offen"""
                    A(Op(("cpf", 0), head2(cfg).replace("@CPF", p1).strip(), "load", [], vr(vS + 15), earliest=when, cost=300))
                elif " P" in cfg.plan: A(Op(("cpf", 0), head2(cfg).replace("@CPF\n", "").strip(), "valu", [], [], earliest=when, cost=300))
                else: A(Op(("cpf", 0), head2(cfg).replace("@CPF", "    " + pf).strip(), "load", [], ["junk"], earliest=when, cost=300))
                A(Op(("setup", 0), "s_nop 0", "valu", [], ["setup~", f"s{sExp}"]))
                A(Op(("cz", 1), f"ds_write_b32 v{vCnt}, v{vPoll}", "dsw", [], ["Czero"], cost=8))
            if when == H:
                for x in prog[n0:]: x.maxdl = H
        for item in cfg.plan.split():
            if "@" not in item: issue(item, H)
            else:
                it, pos = item.split("@"); st, fr = pos.split(".")
                later.setdefault(int(st), []).append((it, fr))
    for s in range(s0, s1):
        t = s % 8
        uq = [u for u in range(4) if qk_on(s, u)]
        up = order_qk(s - 1, 3) if (steady or s > 0) else []
        up = [u for u in up if pv_on(s, u)]
        qk = [(kb, u) for kb in range(4) for u in order_qk(s, kb)]
        if not steady and s in cfg.qlag:
            qk.sort(key=lambda c: (c[0] + (cfg.qlag[s] + 0.5 if (li(s, c[1]) == 0 and c[1] > 0) else 0)))
        pv = []
        fin = [u for u in up if li(s - 1, u) == 7]
        ones_order = fin + [u for u in up if u not in fin]
        for db in range(8):
            for u in up: pv.append(("pv", db, u))
        npv = len(pv)
        ins = {}
        for i, u in enumerate(ones_order):
            if u in fin: p = len(up)
            else: p = len(up) + (npv - len(up)) * i // max(1, len(ones_order))
            ins.setdefault(p, []).append(("one", 0, u))
        pv2 = []
        for i, c in enumerate(pv):
            pv2 += ins.get(i, []); pv2.append(c)
        pv = pv2
        seq = []
        if qk:
            j = 0
            lag = 1 if len(uq) <= 2 and pv else 0
            if not steady and s in cfg.lags: lag = cfg.lags[s]
            for i, c in enumerate(qk):
                seq.append(("qk",) + c)
                tgt = math.ceil(max(0, i + 1 - lag) * len(pv) / (len(qk) - lag))
                while j < tgt: seq.append(pv[j]); j += 1
        else:
            seq = pv
        if cfg.group and qk and len(up) >= cfg.group_min:
            G = cfg.group
            seq = []; j = 0
            onepos = {}
            for i, u in enumerate(ones_order): onepos.setdefault(0 if u in fin else (8 * i // len(ones_order)), []).append(u)
            for db in range(8):
                if db % G == 0:
                    while j < math.ceil((db + G) * len(qk) / 8): seq.append(("qk",) + qk[j]); j += 1
                if not cfg.snake:
                    seq += [("pv", db, u) for u in up] + [("one", 0, u) for u in onepos.get(db, [])]
                    continue
                if db % G == 0:
                    on = [u for k in range(db, db + G) for u in onepos.get(k, [])]
                    od = list(up)
                    if cfg.on_first:
                        if on and db > 0: od.remove(on[-1]); od = [on[-1]] + od
                        seq += [("one", 0, u) for u in on]; on = []
                    if on and db > 0:
                        od.remove(on[0]); od = [on[0]] + od if G % 2 == 0 else od + [on[0]]
                seq += [("pv", db, u) for u in od]
                od = od[::-1]
                if db % G == G - 1: seq += [("one", 0, u) for u in on]
        rev = {}
        for i, c in enumerate(seq):
            p_ = seq[i - 1]
            rev[c] = bool(cfg.rev and i and p_[0] == c[0] and c[0] != "one" and (p_[1] == c[1] or p_[2] == c[2]) and not rev[p_])
        nm = sum({"qk": 4, "pv": 2, "one": 1}[c[0]] for c in seq)
        beta = cfg.beta if len(uq) >= 3 else cfg.beta_small
        barpos = int(beta * nm)
        if not steady and s in cfg.betas: barpos = int(cfg.betas[s] * nm)
        vdone = set(); kdone = set(kdone0) if (s == 0 and not steady) else set(); bar_done = False
        Pw = vP + 32 * (s & 1); Pr = vP + 32 * ((s - 1) & 1)
        def vreads(db):
            if db in vdone or vperm_(s - 1): return
            vdone.add(db)
            for ks in range(2):
                for h in range(2):
                    d = vfrag(s - 1, db) + ks * 4 + h * 2
                    A(Op(("vr", s, db, ks, h), f"ds_read_b64_tr_b16 {at(d,2)}, v{vV} offset:{vslot(s-1)*VSTR + ks*1024 + h*512 + (db>>1)*64 + (db&1)*8}", "ds",
                         [f"Vok{s-1}"], ar(d, 2) + [f"Vr{s-1}_{db}_{ks}_{h}"]))
        def kreads(kb):
            if kb in kdone: return
            kdone.add(kb); kread1(s, t, kb)
        def barrier():
            rd = []; wr = []
            pubv, retv, nxt = [s], [s - 1], [s + 1]
            if vperm_(s + 1): retv = []; nxt = []
            if vperm_(s): pubv = []; retv = [s - 2, s - 1]
            if vperm_(s - 1): retv = []
            if not steady:
                retv = {1: [], 2: [0], 3: [1], 4: [2], 5: [3, 4], 34: []}.get(s, retv)
                if s >= 33:
                    if s not in cfg.tailpub: return
                    pubv = cfg.tailpub[s]
                    if s > 33: retv = []; nxt = []
                nxt = {0: [], 1: [], 2: [4], 3: [5], 4: [], 32: [33, 34, 35], 33: [37], 34: []}.get(s, nxt)
                if s == 32: wr.append("Kret67")
                nxt = [v for v in nxt if v < last and v not in vissued and not any(it == f"V{v}" for l in later.values() for it, _ in l)]
            for v in retv:
                if v < 0: continue
                if v == s - 1:
                    for db in range(8): vreads(db)
                rd += [f"Vr{v}_{db}_{ks}_{h}" for db in range(8) for ks in range(2) for h in range(2)]
                wr.append(f"Vret{v}")
            for v in pubv:
                assert steady or v in vissued, v
                rd += [f"Vd{v}_{i}" for i in range(4)]; wr.append(f"Vok{v}")
            if not steady and s + 1 <= 7 and s + 1 not in kpub:
                if s + 1 not in kscaled: kscale(s + 1, ((s - 1, "bar") if s >= 1 else (-1, 0))); kscaled.append(s + 1)
                kpub.add(s + 1)
                rd += [f"Kw{s+1}_{ds}" for ds in range(4)]; wr.append(f"Kok{s+1}")
            if not steady and s == 0 and " q1" in cfg.plan:
                rd += [f"Qar{ds}" for ds in range(4)]; wr.append("Qadead")
            if not steady and s == 1:
                rd += [f"Kr0_{kb}_{ds}" for kb in range(4) for ds in range(4)]; wr.append("K0dead")
                rd += ["Kr1_0", "Kr1_1"]
            if (steady or s >= cfg.split_from) and len(uq) >= cfg.split_min_u:
                ag = cfg.arr_gap if len(uq) >= 3 else cfg.arr_gap_small
                A(Op(("arr", s), f"ds_add_u32 v{vCnt}, v{vCone}", "dsw", rd, ["Carr"], cost=8, anchor=(s, "bar", -ag - cfg.ds_lat - 2)))
                A(Op(("exp", s), f"s_add_u32 s{sExp}, s{sExp}, 4", "salu", [f"s{sExp}"], [f"s{sExp}"]))
                A(Op(("pol", s), f"ds_read_b32 v{vPoll}, v{vCnt}", "ds", ["Carr~"], vr(vPoll), anchor=(s, "bar", -cfg.ds_lat - 2)))
                A(Op(("cmp", s), f"v_readfirstlane_b32 s{sPol}, v{vPoll}", "valu", vr(vPoll), [f"s{sPol}"], anchor=(s, "bar", -3)))
                A(Op(("sc", s), f"s_cmp_lt_u32 s{sPol}, s{sExp}", "bar", [f"s{sPol}", f"s{sExp}"], ["scc"], anchor=(s, "bar", -1)))
                A(Op(("bar", s), f"s_cbranch_scc1 L_spin{s if (not steady and (s < cfg.loop_from or s >= 32)) else 16 + s % 8}", "bar", ["scc"] + vr(vPoll) + [f"s{sExp}", f"s{sPol}"], wr, anchor=(s, "bar")))
            else:
                A(Op(("bar", s), "s_barrier", "bar", rd, wr, anchor=(s, "bar")))
            for v in nxt: vdma(v, None)
            for it, fr in later.get(s, []):
                if fr == "b": issue(it, (s, "bar"))
        todo_items = [(it, int(fr) / 10 ** len(fr)) for it, fr in later.get(s, []) if fr != "b"]
        mcount = 0
        for c in seq:
            if not bar_done and mcount >= barpos:
                barrier(); bar_done = True
            while todo_items and mcount >= todo_items[0][1] * nm:
                issue(todo_items.pop(0)[0], (s, "off", mcount))
            if c[0] == "qk":
                _, kb, u = c
                kreads(kb)
                if kb == 0 and li(s, u) == 0 and (steady or s - sg[u] >= 8):
                    qread(("qr", s, u), u, earliest=None if (steady or qk_on(s - 1, u)) else (s - 1, "frac", 0.75))
                    un = (u + 1) % 4; sn = s + (sg[un] - sg[u]) % 8
                    pend_q.append((("q", sn, un), not steady and sn - sg[un] >= 8 * NP))
                    if True:
                        k_, d_ = pend_q.pop(); qload(k_, dummy=d_)
                S = vS + 4 * (chain % 4); chain += 1
                for i, ds in enumerate((3, 2, 1, 0) if rev[c] else (0, 1, 2, 3)):
                    kf = kfrag(s, kb, ds); qf = aQ + u * 16 + ds * 4
                    A(Op(("qk", s, kb, u, ds, i), f"v_mfma_f32_16x16x32_bf16 {vt(S,4)}, {rt(kf,4)}, {at(qf,4)}, {'0' if i == 0 else vt(S,4)}", "mfma",
                         rr(kf, 4) + ar(qf, 4) + ([] if i == 0 else vr(S, 4)), vr(S, 4)))
                for r in range(4):
                    A(Op(("ex", s, kb, u, r), f"v_exp_f32 v{S+r}, v{S+r}", "trans", vr(S + r), vr(S + r)))
                pd = Pw + u * 8 + kb * 2
                for r in range(2):
                    tx = f"v_perm_b32 v{pd+r}, v{S+2*r+1}, v{S+2*r}, s{sPerm}" if cfg.trunc else f"v_cvt_pk_bf16_f32 v{pd+r}, v{S+2*r}, v{S+2*r+1}"
                    A(Op(("cv", s, kb, u, r), tx, "valu", vr(S + 2 * r, 2), vr(pd + r)))
                mcount += 4
            elif c[0] == "pv":
                _, db, u = c
                vreads(db)
                first = li(s - 1, u) == 0
                o = vOa + db * 16 + u * 4
                for i, ks in enumerate((1, 0) if rev[c] else (0, 1)):
                    vf = vfrag(s - 1, db) + ks * 4; pf = Pr + u * 8 + ks * 4
                    z = first and i == 0
                    A(Op(("pv", s, db, u, ks, i), f"v_mfma_f32_16x16x32_bf16 {vt(o,4)}, {at(vf,4)}, {vt(pf,4)}, {'0' if z else vt(o,4)}", "mfma",
                         ar(vf, 4) + vr(pf, 4) + ([] if z else vr(o, 4)), vr(o, 4)))
                mcount += 2
            else:
                _, _, u = c
                first = li(s - 1, u) == 0
                l = vL + 4 * u
                if first:
                    for r in range(2): A(Op(("lz", s, u, r), f"v_mov_b32 v{l+r}, 0", "valu", [], vr(l + r)))
                pf = Pr + u * 8
                A(Op(("on", s, u), f"v_smfmac_f32_16x16x64_bf16 {vt(l,4)}, {vt(vOne,4)}, {vt(pf,8)}, v{vIdx}", "mfma", vr(pf, 8) + vr(l, 2), vr(l, 4)))
                mcount += 1
        if not bar_done: barrier()
        for it, _ in todo_items: issue(it, (s, "off", mcount))
        if not steady and s == 31:
            qread(("qr", 32, 0), 0, dummy=True)
            qload(("q", 32 + sg[1], 1), dummy=True)
        if not steady and s == 7:
            A(Op(("vo2", 7), f"v_xor_b32 v{vO2}, 0x840, v{vO}", "valu", [], vr(vO2)))
            if cfg.full_until < 39: A(Op(("vo3", 7), f"v_cndmask_b32 v{vO3}, v{vO}, v{vO2}, vcc", "valu", vr(vO2) + ["junk"], vr(vO3)))
        for u in sorted(fin):
            l = vL + 4 * u; R = vR + 2 * (u & 1)
            DPP = "row_ror:8 row_mask:0xf bank_mask:0xf"
            pol = cfg.st_last if (not steady and s >= cfg.st_last_from) else cfg.st_pol
            A(Op(("la", s, u), f"v_add_f32 v{l}, v{l}, v{l+1}", "valu", vr(l, 2), vr(l)))
            A(Op(("rc", s, u), f"v_rcp_f32 v{R}, v{l}", "trans", vr(l), vr(R)))
            full = cfg.full_until > 0 if steady else s < cfg.full_until
            if full: A(Op(("r2", s, u), f"v_mov_b32_dpp v{R+1}, v{R} {DPP}", "valu", vr(R), vr(R + 1)))
            A(Op(("ck", s, u), f"v_max3_u32 v{vChk}, v{vChk}, v{l}, v{R}", "valu", vr(vChk) + vr(l) + vr(R), vr(vChk)))
            for db in range(8):
                o = vOa + db * 16 + u * 4
                for r in range(4):
                    if full and db & 2: A(Op(("mu", s, u, db, r), f"v_mul_f32_dpp v{o+r}, v{o+r}, v{R+1} {DPP}", "valu", vr(o + r) + vr(R + 1), vr(o + r)))
                    else: A(Op(("mu", s, u, db, r), f"v_mul_f32 v{o+r}, v{o+r}, v{R}", "valu", vr(o + r) + vr(R), vr(o + r)))
                if db & 1:
                    e = o - 16
                    A(Op(("oc", s, u, db, 3), f"v_cvt_pk_bf16_f32 v{o+3}, v{o+2}, v{o+3}", "valu", vr(o + 2, 2), vr(o + 3)))
                    A(Op(("oc", s, u, db, 2), f"v_cvt_pk_bf16_f32 v{o+2}, v{o}, v{o+1}", "valu", vr(o, 2), vr(o + 2)))
                    A(Op(("oc", s, u, db, 0), f"v_cvt_pk_bf16_f32 v{o}, v{e}, v{e+1}", "valu", vr(e, 2), vr(o)))
                    A(Op(("oc", s, u, db, 1), f"v_cvt_pk_bf16_f32 v{o+1}, v{e+2}, v{e+3}", "valu", vr(e + 2, 2), vr(o + 1)))
                    if not full:
                        A(Op(("st", s, u, db), f"buffer_store_dwordx4 {vt(o,4)}, v{vO3}, s[{sO_}:{sO_+3}], s{sOo} offen offset:{(db-1)*32} {pol}".rstrip(), "store",
                             vr(o, 4) + [f"s{sOo}"] + vr(vO3), [], cost=20))
                if full and db & 3 == 3:
                    a = o - 32; x = o - 16
                    for r in range(4):
                        A(Op(("sx", s, u, db, r), f"v_cndmask_b32 v{x+r}, v{a+r}, v{o+r}, vcc", "valu", vr(a + r) + vr(o + r), vr(x + r)))
                    A(Op(("st", s, u, db - 1), f"buffer_store_dwordx4 {vt(x,4)}, v{vO}, s[{sO_}:{sO_+3}], s{sOo} offen offset:{(db>>2)*128} {pol}".rstrip(), "store",
                         vr(x, 4) + [f"s{sOo}"], [], cost=20))
                    for r in range(4):
                        A(Op(("sy", s, u, db, r), f"v_cndmask_b32 v{o+r}, v{o+r}, v{a+r}, vcc", "valu", vr(a + r) + vr(o + r), vr(o + r)))
                    A(Op(("st", s, u, db), f"buffer_store_dwordx4 {vt(o,4)}, v{vO2}, s[{sO_}:{sO_+3}], s{sOo} offen offset:{(db>>2)*128} {pol}".rstrip(), "store",
                         vr(o, 4) + [f"s{sOo}"] + vr(vO2), [], cost=20))
            if not steady and 32 <= s < last:
                for x in prog:
                    if x.key[:3] == ("st", s, u): x.maxdl = (s + 1, "frac", (x.key[3] + 1) / 8 * cfg.tail_dl)
            A(Op(("oinc", s, u), f"s_add_u32 s{sOo}, s{sOo}, 4096", "salu", [f"s{sOo}"], [f"s{sOo}"]))
    return prog

def link(cfg, prog):
    lastw = {}; readers = {}
    m = 0
    for x in prog:
        if x.kind == "mfma": x.m = m; m += 1
    for x in prog:
        e = {}
        def add(p, typ):
            if p is x: return
            soft = hard = 0
            if p.kind == "mfma":
                if x.kind == "mfma": return
                if typ in ("raw", "waw"): soft = cfg.mv_lat + (2 if p.key[0] == "on" else 0)
                elif x.kind in ("valu", "trans"): soft = 1
            elif x.kind == "mfma":
                hard = soft = 1
                if typ == "raw":
                    soft = cfg.ds_lat if p.kind == "ds" else (1 if p.kind == "load" else 2)
                elif p.kind == "store": soft = 2
            elif x.kind == "bar" or x.key[0] == "arr":
                hard = 1; soft = {"ds": cfg.ds_lat, "dsw": cfg.ds_lat, "dma": 2}.get(p.kind, 1)
            elif p.kind == "bar":
                soft = hard = 0
            elif p.kind == "salu":
                soft = 2; hard = 1 if x.kind != "salu" else 1
            elif x.kind == "salu":
                soft = hard = 1
            elif typ == "raw":
                if p.kind == "trans": soft = 1
                elif p.kind == "ds" and x.kind == "dma": soft = cfg.ds_lat
                elif p.kind == "valu" and x.kind in ("store", "dsw", "ds"): soft = 1
                elif p.kind == "valu" and "permlane" in x.text: soft = 2
                if "_dpp" in x.text: soft = 2
            else:
                if p.kind in ("valu", "trans") and x.kind in ("load", "ds", "dma"): soft = 1
                if p.kind in ("store", "dsw"): soft = 1
            o = e.get(id(p))
            e[id(p)] = (p, max(soft, o[1]) if o else soft, max(hard, o[2]) if o else hard)
        for r in x.reads:
            if r in lastw: add(lastw[r], "raw"); x.prod[r] = lastw[r].key
        for r in x.writes:
            if r in lastw: add(lastw[r], "waw")
            for p in readers.get(r, []): add(p, "war")
        for r in x.reads: readers.setdefault(r, []).append(x)
        for r in x.writes: lastw[r] = x; readers[r] = []
        x.preds = list(e.values())
        for p, so, ha in x.preds: p.succs.append((x, so, ha))
    return m

def semantic_check(cfg, prog):
    sg = cfg.sigma
    nq = 0; qblk = {}; nst = 0
    for x in prog:
        k = x.key; P = [x.prod.get(r) for r in x.reads]
        def exp(idx, f):
            for i in idx: assert P[i] is not None and f(P[i]), ("semantic", k, x.reads[i], P[i])
        if x.dummy: continue
        if k[0] == "ksc" and k[4] in (0, 1): exp([0], lambda p: p == ("kld", k[1], k[2]))
        if k[0] == "ksc" and k[4] in (2, 3): exp([0], lambda p: p == k[:4] + (k[4] - 2,))
        if k[0] == "ksc" and k[4] == 4: exp([0], lambda p: p == k[:4] + (2,)); exp([1], lambda p: p == k[:4] + (3,))
        if k[0] == "kw": exp(range(4), lambda p: p[:3] == ("ksc", k[1], k[2]) and p[4] == 4); exp(range(5, len(P)), lambda p: p[0] == "bar")
        if k[0] in ("bar", "arr"): exp(range(len(P)), lambda p: True)
        if k[0] == "kr" and k[1] < 8: exp([0], lambda p: p[0] == "bar")
        if k[0] == "vr": exp([0], lambda p: p[0] == "bar")
        if k[0] == "dma": exp([0], lambda p: p == ("m0", k[1])); exp(range(1, len(P)), lambda p: p[0] == "bar")
        if k[0] in ("q", "q0") and k[-1] == "inc": qblk[k[:-1]] = nq; nq += 1
        if k[0] in ("q", "q0") and isinstance(k[-1], int): exp([1], lambda p: p == k[:-1] + (f"m{k[-1]}",))
        if k[0] in ("qr", "qr0"):
            u = k[-2]; n = 0 if k[0] == "qr0" else (k[1] - sg[u]) // 8
            exp(range(4), lambda p: qblk[p[:-1]] == 4 * n + u)
        if k[0] == "qk":
            _, s, kb, u, ds, ii = k; n, i_ = blockpos(cfg, s, u); s0 = s - i_
            exp(range(4), lambda p: p[0] == "kr" and p[1] % 8 == s % 8 and p[2:] == (kb, ds))
            exp(range(4, 8), lambda p: p == (("qr0", u, ds) if n == 0 else ("qr", s0, u, ds)))
            exp(range(8, len(P)), lambda p: p[:4] == k[:4] and p[5] == ii - 1); assert (len(P) > 8) == (ii > 0)
        if k[0] == "ex": exp([0], lambda p: p[:4] == ("qk",) + k[1:4] and p[5] == 3)
        if k[0] == "cv": exp([0, 1], lambda p: p[:4] == ("ex",) + k[1:4])
        if k[0] == "pv":
            _, s, db, u, ks, ii = k
            exp(range(4), lambda p: p[0] == "vr" and p[1] % 8 == s % 8 and p[2:4] == (db, ks))
            exp(range(4, 8), lambda p: p[0] == "cv" and p[1] == s - 1 and p[2] >> 1 == ks and p[3] == u)
            exp(range(8, len(P)), lambda p: p == ("pv", s, db, u, 1 - ks, 0) if ii else (p[:4] == ("pv", s - 1, db, u) and p[5] == 1))
            assert (len(P) > 8) == (ii > 0 or blockpos(cfg, s - 1, u)[1] > 0)
        if k[0] == "on":
            exp(range(8), lambda p: p[0] == "cv" and p[1] == k[1] - 1 and p[3] == k[2])
            exp([8, 9], lambda p: p[:3] == ("lz", k[1], k[2]) or p == ("on", k[1] - 1, k[2]))
        if k[0] == "la": exp([0, 1], lambda p: p == ("on", k[1], k[2]))
        if k[0] == "mu": exp([0], lambda p: p[:4] == ("pv", k[1], k[3], k[2]) and p[5] == 1); exp([1], lambda p: p[0] in ("rc", "r2") and p[1:] == k[1:3])
        if k[0] == "oc": exp([0, 1], lambda p: p[:3] == ("mu",) + k[1:3])
        if k[0] == "oinc":
            assert nst == 4 * blockpos(cfg, k[1] - 1, k[2])[0] + k[2], k
            nst += 1
    assert nst == 16

def step_of(x): return x.key[1]

def schedule(cfg, prog, nm, pins=None, lo=None, hi=None):
    pins = pins or {}; lo = lo or {}; hi = hi or {}
    start = {}; barw = {}
    cur = -1
    for x in prog:
        if x.kind == "mfma":
            cur = x.m; start.setdefault(x.key[1], x.m)
        elif x.key[0] == "bar": barw[x.key[1]] = cur
    def W(a):
        if a[0] == -1: return -1
        if a[1] == "bar": return barw.get(a[0], nm - 1) + (a[2] if len(a) > 2 else 0)
        if a[1] == "frac": return start[a[0]] - 1 + int(a[2] * (start.get(a[0] + 1, nm) - start[a[0]]))
        if a[1] == "off": return max(0, start[a[0]] - 1 + a[2])
        return start[a[0]] - 1
    fill = [x for x in prog if x.kind != "mfma"]
    for x in prog:
        if x.kind == "mfma": x.win = x.m
    for i, x in enumerate(prog): x.idx = i
    for x in reversed(fill):
        if x.key in pins: x.dls = x.dlh = pins[x.key][0]; continue
        if x.anchor: x.dls = x.dlh = W(x.anchor); continue
        ds = dh = nm - 1
        for y, so, ha in x.succs:
            if y.dummy and y.key not in pins: continue
            if y.kind == "mfma": ds = min(ds, y.m - so); dh = min(dh, y.m - ha)
            else: ds = min(ds, y.dls - so); dh = min(dh, y.dlh - ha)
        if x.key in hi: ds = min(ds, hi[x.key]); dh = min(dh, hi[x.key])
        if x.maxdl: ds = min(ds, W(x.maxdl)); dh = min(dh, W(x.maxdl))
        x.dls, x.dlh = ds, max(dh, -1)
    wins = {w: [] for w in range(-1, nm)}
    for x in fill:
        x.win = None
        x.lo = max(W(x.earliest) if x.earliest else -1, lo.get(x.key, -1))
        if x.anchor: x.lo = x.dlh
    pinned_by_win = {}
    for x in fill:
        if x.key in pins: pinned_by_win.setdefault(pins[x.key][0], []).append(x)
    todo = [x for x in fill if x.key not in pins and not x.dummy]
    todo.sort(key=lambda x: x.idx)
    credit = [0]
    bucket = [0]
    def nbytes(x):
        if x.kind in ("salu", "bar"): return 4
        if x.kind in ("valu", "trans"):
            return 8 if ("_dpp" in x.text or x.text.split()[0] in ("v_cvt_pk_bf16_f32", "v_perm_b32", "v_max3_u32") or "0x" in x.text) else 4
        return 8
    mfl = [x for x in prog if x.kind == "mfma"]
    def ready(x, w, soft):
        if w < x.lo: return False
        for p, so, ha in x.preds:
            if p.dummy and p.key not in pins: continue
            if p.win is None: return False
            lat = ha
            if soft and (p.kind not in ("load", "dma", "ds", "dsw") or x.kind == "dma"): lat = so
            if p.kind in ("store", "dsw") and soft: lat = max(lat, min(so, 1))
            if w == -1 or w == nm - 1: lat = 0
            if w < p.win + lat: return False
        return True
    for w in range(-1, nm):
        if w in pinned_by_win:
            for x in sorted(pinned_by_win[w], key=lambda x: pins[x.key][1]):
                x.win = w; wins[w].append(x)
        if pins and cfg._loop[0] <= w < cfg._loop[1]: continue
        cap = 8 if w >= 0 else 0
        if w >= 0 and mfl[w].key[0] == "on": cap = 4
        cap0 = cap
        rate = 8
        if cfg.smooth and pins and 0 <= w < nm - 1:
            acc = 0
            for x in sorted((x for x in todo[:900] if x.dls <= w + 120), key=lambda x: x.dls):
                acc += min(x.cost, 8)
                rate = max(rate, acc / (max(x.dls, w) - w + 1))
            credit[0] = credit[0] + rate - 8 if rate > 8.2 else 0
            credit[0] = min(credit[0], rate)
            extra = int(credit[0] // 4) * 4
            cap += extra
        used = 0
        cur = wins[w]
        def place(x):
            nonlocal used
            x.win = w; cur.append(x); used += min(x.cost, 8); todo.remove(x)
        while True:
            cand = [x for x in todo[:700] if ready(x, w, True) or (w >= x.dlh and ready(x, w, False))]
            if not cand: break
            z = [x for x in cand if x.kind in ("salu", "bar")]
            if z:
                place(z[0]); continue
            forced = [x for x in cand if x.dls <= w]
            if w == -1 or w == nm - 1:
                if not forced: break
                place(min(forced, key=lambda x: x.idx)); continue
            hasvalu_dep = lambda x: x.kind in ("ds", "dsw", "load", "dma", "store") and any(p.win == w and p.kind in ("valu", "trans") for p, _, _ in x.preds)
            hard_forced = forced
            if hard_forced:
                place(min(hard_forced, key=lambda x: (x.dls, x.idx))); continue
            if used >= cap: break
            nb = lambda x: 1024 if "b128" in x.text else 512
            dsb = sum(nb(x) for x in cur if x.kind == "ds")
            tight = rate > 8.2
            recent = (not tight) and any(y.kind == "ds" for k in range(1, cfg.ds_gap) for y in wins.get(w - k, []))
            vmk = ("load", "dma", "store")
            vgap = max(1, int(cfg.vm_gap * 16 / (8 + rate)))
            recent_vm = any(y.kind in vmk for k in range(0, vgap) for y in wins.get(w - k, []))
            sgap = max(1, int(cfg.st_gap * 16 / (8 + rate)))
            if any(y.kind == "store" for k in range(0, sgap) for y in wins.get(w - k, [])):
                cand = [x for x in cand if x.kind != "store" and not (cfg.st_gap_all and x.kind in vmk)]
            dcap = cfg.ds_cap * (8 + cap) // 16
            if cfg.st_block and any(-4 * cfg.vm_gap <= b - w <= cfg.st_block for b in barw.values()):
                cand = [x for x in cand if x.kind != "store"]
            cand = [x for x in cand if (x.kind != "ds" or (not recent and dsb + nb(x) <= dcap)) and not (x.kind in vmk and recent_vm and not (getattr(x, "nogap", False) and used == 0))]
            if not cand: break
            cand.sort(key=lambda x: (-99999 if (x.kind in ("load", "dma", "dsw", "store") or (cfg.qr_asap and x.key[0] == "qr")) else x.dls, x.idx))
            if cfg.fetch_thr is not None and not tight and bucket[0] >= cfg.fetch_thr and cap - used >= 8 and cand[0].dls > w + cfg.fetch_slack:
                tr = [x for x in cand if x.kind == "trans"]
                if tr: place(tr[0]); continue
            if cap - used >= 8:
                top = cand[0]
                if top.cost >= 8: place(top); continue
                small = [x for x in cand if x.cost == 4]
                big = [x for x in cand if x.cost >= 8]
                fits = lambda a, b: not (a.kind == "ds" and b.kind == "ds" and dsb + nb(a) + nb(b) > dcap)
                partner = any(fits(top, y) for y in small if y is not top) or any(y.cost == 4 and so == 0 and y.win is None and y.kind == "valu" and all(p.win is not None or p is top for p, _, _ in y.preds) for y, so, ha in top.succs)
                if partner or not big or (cap - used) % 8: place(top)
                else: place(big[0])
                continue
            small = [x for x in cand if x.cost == 4]
            if not small: break
            place(small[0])
        bts = 8 + sum(nbytes(x) for x in cur if x.kind not in ("salu", "bar")) + (4 if any(x.kind not in ("valu", "trans") for x in cur) else 2)
        bucket[0] = max(0, bucket[0] + bts - 22 * max(16, 8 + sum(x.cost for x in cur)) // 16)
        if w >= 0: credit[0] -= max(0, min(used, cap) - cap0)
        if w not in (-1, nm - 1):
            order = {"bar": 0, "salu": 0, "dma": 1, "load": 1, "store": 1, "dsw": 1, "ds": 1, "valu": 2, "trans": 2}
            lvl = {}
            for x in cur:
                l = order[x.kind]
                for p, _, _ in x.preds:
                    if p.win == w and p.kind != "mfma": l = max(l, lvl[id(p)])
                lvl[id(x)] = l
            cur.sort(key=lambda x: lvl[id(x)])
    assert not todo, [x.key for x in todo[:10]]
    for w, c in wins.items():
        for i, x in enumerate(c): x.pos = i
    return wins, start

def norm(key, d):
    return (key[0], key[1] + d) + tuple(key[2:])

class Ins:
    def __init__(s, text, op=None, kind=None):
        s.text, s.op, s.kind = text, op, kind or (op.kind if op else "salu")
        s.vm = None; s.lg = None

def generate(cfg):
    last = 32 + max(cfg.sigma)
    cfg.q_ahead = getattr(cfg, "q_ahead", 2)
    cfg.code_pf_n = getattr(cfg, "code_pf_n", 2)
    sp = build(cfg, 0, 56, True); nms = link(cfg, sp)
    swins, sstart = schedule(cfg, sp, nms)
    per = sstart[8] - sstart[0]
    ok = None
    for b in (16, 24, 32):
        same = all([x.text for x in swins[sstart[b] + i]] == [x.text for x in swins[sstart[b + 8] + i]] and
                   [norm(x.key, 8) for x in swins[sstart[b] + i]] == [x.key for x in swins[sstart[b + 8] + i]] for i in range(per))
        if same: ok = b; break
    assert ok is not None, "steady state not periodic"
    rp = build(cfg, 0, last + 1, False)
    E_ = cfg.loop_from
    off0 = sstart[ok + E_ - 8] - sstart[ok]
    inloop = {norm(x.key, 8 + 8 * it - ok) for it in range(3) for i in range(per) for x in swins[sstart[ok] + i] if it or i >= off0}
    rp = [x for x in rp if not x.dummy or x.key in inloop]
    nm = link(cfg, rp)
    semantic_check(cfg, rp)
    rstart = {}
    for x in rp:
        if x.kind == "mfma": rstart.setdefault(x.key[1], x.m)
    L0, L1 = rstart[E_], rstart[32]
    assert L1 - L0 == 3 * per - off0
    XP = L0 + per - off0
    cfg._loop = (L0, L1)
    pins = {}
    for it in range(3):
        for i in range(per):
            for x in swins[sstart[ok] + i]:
                if it or i >= off0: pins[norm(x.key, 8 + 8 * it - ok)] = (L0 - off0 + it * per + i, x.pos)
    keys = {x.key: x for x in rp}
    assert len(keys) == len(rp)
    missing = [k for k in pins if k not in keys]
    assert not missing, missing[:10]
    lo = {}; hi = {}
    mid = [x for x in rp if x.key[:2] == ("qk", 20)][0]
    midx = rp.index(mid)
    for i, x in enumerate(rp):
        if x.kind == "mfma" or x.key in pins: continue
        if i < midx: hi[x.key] = L0 - 1
        else: lo[x.key] = L1
    wins, start = schedule(cfg, rp, nm, pins, lo, hi)
    mf = [x for x in rp if x.kind == "mfma"]
    def stat(w):
        return L0 + (w - L0) % per if L0 <= w < L1 else w
    free = {}
    pre = {}
    for w in range(-1, nm):
        if stat(w) == w:
            free[w] = []
            if w not in (-1, nm - 1):
                for x in wins[w]:
                    if x.kind == "bar": free[w].append(Ins(x.text, x))
    def body(w):
        if w in (-1, nm - 1): return wins[w]
        return [x for x in wins[w] if x.kind not in ("salu", "bar")]
    def walk(fix):
        q = {"vm": [], "lgkm": []}
        pend = {}
        hist = {}
        changed = False
        def dowait(ins):
            for c, n in (("vm", ins.vm), ("lgkm", ins.lg)):
                if n is None: continue
                while len(q[c]) > n:
                    d = q[c].pop(0)
                    for r in d.writes:
                        if pend.get(r) is d: del pend[r]
        def need(x):
            n = {}
            for r in x.reads + x.writes:
                p = pend.get(r)
                if p is not None and not (r in x.writes and r not in x.reads and p.cnt == x.cnt):
                    n[p.cnt] = p if (p.cnt not in n or q[p.cnt].index(p) > q[p.cnt].index(n[p.cnt])) else n[p.cnt]
            return n
        def issue(x):
            if x.cnt:
                q[x.cnt].append(x)
                for r in x.writes:
                    if r != "stord": pend[r] = x
        def setw(ins, c, n):
            n = min(n, 62 if c == "vm" else 14)
            if c == "vm": ins.vm = n if ins.vm is None else min(ins.vm, n)
            else: ins.lg = n if ins.lg is None else min(ins.lg, n)
        def handle(x, w, pos, cands):
            nonlocal changed
            n = need(x)
            if not n: return
            assert fix, ("unwaited", x.key, {c: p.key for c, p in n.items()})
            changed = True
            for c, p in n.items():
                done = False
                for cw in cands:
                    if cw < 0 or cw == nm - 1 or cw not in hist: continue
                    snap = hist[cw][c]
                    if p not in snap: continue
                    fl = free[stat(cw)]
                    wi = [i for i in fl if i.kind == "wait"]
                    if not wi and fl and cw != cands[-1]: continue
                    if not wi:
                        wi = [Ins("", None, "wait")]; fl.insert(0, wi[0])
                    setw(wi[0], c, len(snap) - 1 - snap.index(p)); done = True; break
                if not done:
                    ins = pre.setdefault((stat(w), pos), Ins("", None, "wait"))
                    setw(ins, c, len(q[c]) - 1 - q[c].index(p))
                while p in q[c]:
                    d = q[c].pop(0)
                    for r in d.writes:
                        if pend.get(r) is d: del pend[r]
        for w in range(-1, nm):
            if w >= 0:
                if (stat(w), "m") in pre: dowait(pre[(stat(w), "m")])
                handle(mf[w], w, "m", [w - 1, w - 2])
            hist[w] = {c: list(v) for c, v in q.items()}
            hist.pop(w - 4, None)
            for ins in list(free[stat(w)]):
                if ins.kind == "wait": dowait(ins)
                elif ins.kind == "bar":
                    x = [y for y in wins[w] if y.kind == "bar"][0]
                    handle(x, w, "b", [w - 1, w - 2, w])
            for pos, x in enumerate(body(w)):
                if (stat(w), pos) in pre: dowait(pre[(stat(w), pos)])
                handle(x, w, pos, [w, w - 1])
                issue(x)
        return changed
    for _ in range(10):
        if not walk(True): break
    walk(False)
    for w in range(0, nm - 1):
        if stat(w) != w: continue
        for x in wins[w]:
            if x.kind != "salu": continue
            hiw = min([y.win - (1 if "m0" in x.writes or y.kind == "salu" else 0) for y, _, _ in x.succs if y.win is not None] + [w + 40, nm - 2])
            if L0 <= w < XP: hiw = min(hiw, XP - 3)
            elif XP <= w < L0 + per: hiw = min(hiw, L0 + per - 1)
            elif w < L0: hiw = min(hiw, L0 - 1)
            hiw = max(hiw, w)
            c = [k for k in range(w, hiw + 1) if not free[k]]
            c2 = [k for k in c if body(k) and body(k)[0].kind in ("ds", "dma", "load", "store", "dsw")]
            k = c2[0] if c2 else (c[0] if c else w)
            if any(i.text.startswith("s_cmp") for i in free[k]): free[k].insert(0, Ins(x.text, x))
            else: free[k].append(Ins(x.text, x))
    k = [k for k in range(XP - 2, XP) if not free[k]]
    k = k[0] if k else XP - 1
    if any(i.text.startswith("s_add") for kk in range(k + 1, XP) for i in free[kk]): k = XP - 1
    free[k].append(Ins(f"s_sub_u32 s{sCnt}, s{sCnt}, 1"))
    if cfg.nop_ds:
        for w in range(0, nm - 1):
            if stat(w) == w and not free[w] and body(w) and body(w)[0].kind in ("ds", "dma", "load", "store", "dsw"):
                free[w].append(Ins("s_nop 0", None, "nop"))
    def wtext(i):
        t = "s_waitcnt"
        if i.vm is not None: t += f" vmcnt({i.vm})"
        if i.lg is not None: t += f" lgkmcnt({i.lg})"
        return t
    code = {}
    for w in range(-1, nm):
        if stat(w) != w: continue
        l = []
        if w >= 0:
            if (w, "m") in pre: l.append(pre[(w, "m")])
            l.append(Ins(mf[w].text, mf[w]))
        l += free[w]
        for pos, x in enumerate(body(w)):
            if (w, pos) in pre: l.append(pre[(w, pos)])
            l.append(Ins(x.text, x))
        for i in l:
            if i.kind == "wait": i.text = wtext(i)
        code[w] = l
    def wcost(l, head=False):
        t = 0; base = 0; lastvalu = -99; blk = 8
        for i in l:
            if i.kind == "mfma": base = t; t += 4; blk = 12 if "smfmac" in i.text else 8; continue
            if i.kind in ("salu", "wait", "bar", "nop"): t += 4; continue
            if i.kind == "nopx": t += 4 * (int(i.text.split()[1]) + 1); continue
            if not head: t = max(t, base + blk)
            if i.kind in ("valu", "trans"): t += i.op.cost; lastvalu = t
            else:
                t = max(t, lastvalu + 8) + i.op.cost
        return t if head else max(t, base + 16)
    def hazards(fix):
        seq = []
        changed = False
        for w in range(-1, nm):
            l = code[stat(w)]
            j = 0
            while j < len(l):
                i = l[j]; x = i.op
                needn = 0
                if x is not None and x.kind not in ("salu", "bar"):
                    dist = 0
                    for p, st, pwin in reversed(seq):
                        y = p.op
                        if y is not None:
                            req = 0
                            raw = set(y.writes) & set(x.reads); waw = set(y.writes) & set(x.writes); war = set(y.reads) & set(x.writes)
                            if y.kind == "mfma":
                                if x.kind == "mfma":
                                    if set(y.writes) & set(x.reads[:8]): req = 8
                                elif raw or waw: req = 12 if y.key[0] == "on" else 8
                                elif war and x.kind in ("valu", "trans") and set(y.writes) & set(x.writes): req = 3
                            elif y.kind in ("valu", "trans"):
                                if raw and x.kind == "mfma": req = 2
                                if raw and ("permlane" in x.text or "_dpp" in x.text): req = 2
                                if raw and y.kind == "trans" and x.kind != "trans": req = max(req, 1)
                            elif y.kind in ("store", "dsw") and war and y.cost == 20: req = 2
                            elif y.kind == "salu" and "m0" in y.writes and x.kind == "dma": req = 1
                            if req - dist > needn: needn = req - dist; pw = pwin
                        dist += st
                        if dist >= 12: break
                if needn > 0:
                    assert fix, ("hazard", x.key)
                    for k in range(w, pw - 1, -1):
                        if k < 0: break
                        lk = code[stat(k)]
                        mi = [n for n, z in enumerate(lk) if z.kind == "mfma"][0]
                        places = []
                        if k > pw and (k < w or j > mi): places.append(mi + 1)
                        if k < w: places.append(len(lk))
                        ok_ = False
                        for pl in places:
                            tr = lk[:pl] + [Ins("s_nop 0", None, "nopx")] + lk[pl:]
                            if wcost(tr) == wcost(lk): lk[:] = tr; ok_ = True; break
                        if ok_: return True
                    l.insert(j, Ins(f"s_nop {needn-1}", None, "nopx")); changed = True
                    continue
                st = int(i.text.split()[1]) + 1 if i.text.startswith("s_nop") else 1
                seq.append((i, st, w)); seq = seq[-14:]
                j += 1
        return changed
    while hazards(True): pass
    lastw = {}; seen = set()
    for w in range(-1, nm):
        it = (w - L0) // per if L0 <= w < L1 else 0
        for i in code[stat(w)]:
            if i.op is None: continue
            x = keys[norm(i.op.key, 8 * it)]
            assert x.text == i.text, (x.text, i.text)
            assert x.key not in seen; seen.add(x.key)
            if not x.dummy:
                for r in x.reads:
                    assert lastw.get(r) == x.prod.get(r), ("dataflow", x.key, r, lastw.get(r), x.prod.get(r))
            for r in x.writes: lastw[r] = x.key
    assert all(x.key in seen or x.dummy for x in rp), [x.key for x in rp if x.key not in seen and not x.dummy][:5]
    est = {}
    for s in range(0, last + 1):
        e = rstart.get(s + 1, nm)
        est[s] = (sum(wcost(code[stat(w)]) for w in range(rstart[s], e)), (e - rstart[s]) * 16)
    cfg.est = est; cfg.est_head = wcost(code[-1], True)
    out = []
    cfg.spins = []
    E = out.append
    stamp_at = getattr(cfg, "stamp_steps", [])
    inv = {v: k for k, v in rstart.items()}
    for w in range(-1, nm):
        if stat(w) != w: continue
        if w == L0:
            if cfg.stamps and 7.9 in stamp_at:
                j = stamp_at.index(7.9); E(f"    s_memrealtime s[{64+2*j}:{65+2*j}]")
            E("L_loop:")
        if w in inv:
            E(f"; ---- step {inv[w]} ----")
            if cfg.jitter:
                E(f"    s_cmp_lg_u32 s{sWave}, {(inv[w] * cfg.jitter[1]) & 3}\n    s_cbranch_scc1 L_j{inv[w]}\n    s_sleep {cfg.jitter[0]}\nL_j{inv[w]}:")
            if cfg.stamps and inv[w] in stamp_at:
                j = stamp_at.index(inv[w]); E(f"    s_memrealtime s[{64+2*j}:{65+2*j}]")
        for i in code[w]:
            if i.op is not None and i.op.key[0] in cfg.kill and (L0 if cfg.kill_from is None else cfg.kill_from) <= w: E("    s_nop 0")
            else: E("    " + i.text)
            if cfg.pad and i.kind == "mfma" and L0 <= w < L1 and w % cfg.pad == 0: E("    s_nop 4")
            if i.text.startswith("s_cbranch_scc1 L_spin"):
                n = i.text.split("L_spin")[1]; E(f"L_back{n}:"); cfg.spins.append(n)
        if off0 == 0:
            if w == L0 + per - 1: E("    s_cbranch_scc0 L_loop")
        else:
            if w == XP - 1: E("    s_cbranch_scc1 L_tail")
            if w == L0 + per - 1: E("    s_branch L_loop"); E("L_tail:")
    lastscc = None
    for l in out:
        t = l.strip()
        if t.startswith(("s_add", "s_sub", "s_cmp", "s_and", "s_lsh", "s_bfe", "s_or", "s_xor", "s_not")): lastscc = t
        if t.startswith("s_cbranch_scc1 L_spin"): assert lastscc.startswith("s_cmp_lt_u32"), lastscc
        if t.startswith(("s_cbranch_scc0 L_loop", "s_cbranch_scc1 L_tail")): assert lastscc.startswith(f"s_sub_u32 s{sCnt}"), lastscc
    return "\n".join(out)

def fbits(x): return struct.unpack("<I", struct.pack("<f", x))[0]

def head(cfg):
    T = vS
    h = f"""    s_load_dwordx4 s[4:7], s[0:1], 0          ; q, k
    s_load_dwordx4 s[8:11], s[0:1], 16        ; v, out
"""
    if cfg.x8: h = "    s_load_dwordx8 s[4:11], s[0:1], 0         ; q, k, v, out\n"
    if cfg.stamps: h += f"    s_load_dwordx2 s[56:57], s[0:1], {32 if cfg.stamps in ('dbg', 'skew') else 40}\n    s_memrealtime s[60:61]\n"
    h += f"""    v_lshrrev_b32 v{T}, 6, v0
    v_and_b32 v{T+4}, 63, v0                  ; lane
    v_readfirstlane_b32 s{sWave}, v{T}
    s_cmp_ge_u32 s2, 256
    s_cbranch_scc1 L_end
    v_lshlrev_b32 v{vKl}, 4, v{T+4}           ; lane*16 : source offset of every K, Q and V load
    s_and_b32 s{sTmp}, s2, 7
    s_lshr_b32 s{sTmp+1}, s2, 3
    s_lshl_b32 s{sTmp}, s{sTmp}, 5
    s_add_u32 s{sTmp}, s{sTmp}, s{sTmp+1}
    s_lshl2_add_u32 s{sTmp+2}, s{sTmp}, s{sWave}
    s_lshl_b32 s{sTmp+2}, s{sTmp+2}, 16       ; q/o byte offset of this wave
    s_lshr_b32 s{sTmp}, s{sTmp}, 2
    s_lshl_b32 s{sTmp}, s{sTmp}, 17           ; k/v byte offset of the group
    s_lshl_b32 s{sMq}, s{sWave}, 12           ; wave*4096
    s_add_u32 s{sTmp+3}, s{sTmp}, s{sMq}
    s_sub_u32 s{sK_+2}, 0x20000, s{sMq}
    s_mov_b32 s{sK_+3}, 0x20000
    s_mov_b32 s{sQ_+3}, s{sK_+3}
    s_mov_b32 s{sQ_+2}, 0x10000
"""
    if cfg.rot:
        h += f"""    s_bfe_u32 s{sTmp+4}, s2, 0x20003
    s_mul_i32 s{sTile}, s{sTmp+4}, {cfg.rot*16384}
    s_and_b32 s{sTile}, s{sTile}, 0x1ffff
    s_add_u32 s{sTile+1}, s{sTile}, 16384
    s_and_b32 s{sTile+1}, s{sTile+1}, 0x1ffff
"""
    elif cfg.xor:
        h += f"""    s_lshl_b32 s{sTile}, s2, {11 + cfg.xor[1]}
    s_and_b32 s{sTile}, s{sTile}, {cfg.xor[0] << 14:#x}
    s_xor_b32 s{sTile+1}, s{sTile}, 0x4000
"""
    else: h += f"    s_mov_b32 s{sTile}, 0\n    s_movk_i32 s{sTile+1}, 0x4000\n"
    h += f"""    s_mov_b32 s{sQo}, 0
    s_mul_i32 s{sMqs}, s{sWave}, {QW}
    s_add_u32 s{sMqs+1}, s{sMqs}, 32
    s_add_u32 s{sMqs+2}, s{sMqs}, 64
    s_add_u32 s{sMqs+3}, s{sMqs}, 96
{head2(cfg).split("@CPF")[0] + f"    global_load_dword v{vJ}, v[{T+14}:{T+15}], off" if cfg.early_pf else ""}
    s_waitcnt lgkmcnt(0)
    s_add_u32 s{sK_}, s6, s{sTmp+3}
    s_addc_u32 s{sK_+1}, s7, 0
    s_add_u32 s{sQ_}, s4, s{sTmp+2}
    s_addc_u32 s{sQ_+1}, s5, 0
"""
    if cfg.stamps: h += "    s_memrealtime s[62:63]\n"
    return h

def head2(cfg):
    c = math.log2(math.e) / math.sqrt(128.0)
    T = vS
    h = f"""    ; code prefetch into L2: 16 lines per wave, 8 KiB per workgroup
    s_getpc_b64 s[{sC_}:{sC_+1}]
L_pc:
    s_mov_b32 s{sC_+2}, L_slow - L_pc
    s_bfe_u32 s{sTmp+1}, s2, 0x30003
    s_lshl2_add_u32 s{sTmp+1}, s{sTmp+1}, s{sWave}
    s_lshl_b32 s{sTmp+1}, s{sTmp+1}, 11
    v_lshl_add_u32 v{vJ}, v{T+4}, 5, s{sTmp+1}
    v_min_u32 v{vJ}, s{sC_+2}, v{vJ}          ; stay inside the code
    v_mov_b32 v{T+15}, s{sC_+1}
    v_add_co_u32 v{T+14}, vcc, s{sC_}, v{vJ}
    s_nop 1
    v_addc_co_u32 v{T+15}, vcc, 0, v{T+15}, vcc
@CPF
    s_add_u32 s{sV_}, s8, s{sTmp+3}
    s_addc_u32 s{sV_+1}, s9, 0
    s_sub_u32 s{sC_}, s{sV_}, 8               ; second V descriptor: its loads land 8 bytes further in LDS
    s_subb_u32 s{sC_+1}, s{sV_+1}, 0
    s_add_u32 s{sC_+2}, s{sK_+2}, 8
    s_mov_b32 s{sC_+3}, 0x20000
    s_add_u32 s{sO_}, s10, s{sTmp+2}
    s_addc_u32 s{sO_+1}, s11, 0
    s_mov_b32 s{sV_+2}, s{sK_+2}
    s_mov_b32 s{sV_+3}, 0x20000
    s_mov_b32 s{sO_+2}, 0x10000
    s_mov_b32 s{sO_+3}, 0x20000
"""
    for t in range(2, 8):
        if cfg.rot: h += f"    s_add_u32 s{sTile+t}, s{sTile+t-1}, 16384\n    s_and_b32 s{sTile+t}, s{sTile+t}, 0x1ffff\n"
        elif cfg.xor: h += f"    s_xor_b32 s{sTile+t}, s{sTile}, {t*16384}\n"
        else: h += f"    s_mov_b32 s{sTile+t}, {t*16384}\n"
    h += f"""    s_mul_i32 s{sTmp+4}, s{sWave}, {VW}
    s_add_u32 s{sM0}, s{sTmp+4}, {VB}
    s_add_u32 s{sM0+1}, s{sTmp+4}, {VB + VSTR}
    s_add_u32 s{sM0+2}, s{sTmp+4}, {VB + 2 * VSTR}
    s_add_u32 s{sM0+3}, s{sTmp+4}, {VB + 3 * VSTR}
    s_mov_b32 s{sOo}, 0
    s_mov_b32 s{sExp}, 0
    s_mov_b32 s{sCnt}, 2
    s_mov_b32 s{sScale}, {fbits(c):#x}
    s_mov_b32 s{sMask}, 0xffff0000
{f"    s_mov_b32 s{sPerm}, 0x07060302" if cfg.trunc else ""}
    v_and_b32 v{T+1}, 15, v{T+4}              ; l & 15
    v_lshrrev_b32 v{T+2}, 4, v{T+4}           ; l >> 4
    v_lshlrev_b32 v{T+7}, 8, v{T+1}           ; (l&15)*256
    ; K fragment read addresses: g*256 + (row ^ g ^ 4*(ds&1))*16
    v_lshlrev_b32 v{T+3}, 8, v{T+2}
    v_xor_b32 v{T+5}, v{T+1}, v{T+2}
    v_lshl_add_u32 v{vKr}, v{T+5}, 4, v{T+3}
    v_xor_b32 v{vKr+1}, 64, v{vKr}
    v_add_u32 v{vKr+2}, {0x10000 - KSH}, v{vKr}
    v_add_u32 v{vKr+3}, {0x10000 - KSH}, v{vKr+1}
    ; K write addresses: key 16w+4i+p goes to block 2(i&1)+(p>>1), row 8(p&1)+4(i>>1)+w ; lane = 16p+c
    v_and_b32 v{T+6}, 7, v{T+1}
    v_xor_b32 v{T+6}, s{sWave}, v{T+6}
    v_lshl_add_u32 v{T+6}, v{T+6}, 4, v{T+7}
    v_and_b32 v{T+8}, 1, v{T+2}
    v_lshl_add_u32 v{T+6}, v{T+8}, 7, v{T+6}
    v_lshrrev_b32 v{T+10}, 1, v{T+2}
    v_lshl_add_u32 v{vKw}, v{T+10}, 12, v{T+6}
    v_cmp_gt_u32 vcc, 2048, v{vKw}            ; lanes that write fragments (.,0,0) and (.,0,1)
    v_add_u32 v{T+6}, {3 * 16384}, v{vKw}
    v_xor_b32 v{vKw+1}, 64, v{vKw}
    v_cndmask_b32 v{vKwS[0]}, v{vKw}, v{T+6}, vcc
    v_xor_b32 v{vKwS[1]}, 64, v{vKwS[0]}
    ; Q fragment read address: column n holds row n with bits 1 and 2 exchanged : row*256 + (row>>2)*32 + g*16
    v_and_b32 v{T+9}, 3, v{T+4}
    v_lshrrev_b32 v{T+12}, 2, v{T+1}
    v_lshrrev_b32 v{T+6}, 1, v{T+1}
    v_xor_b32 v{T+6}, v{T+6}, v{T+12}
    v_and_b32 v{T+6}, 1, v{T+6}
    v_mul_u32_u24 v{T+6}, 6, v{T+6}
    v_xor_b32 v{T+13}, v{T+6}, v{T+1}         ; row
    v_lshrrev_b32 v{T+6}, 2, v{T+13}
    v_lshlrev_b32 v{T+6}, 5, v{T+6}
    v_lshl_add_u32 v{T+6}, v{T+13}, 8, v{T+6}
    v_lshl_add_u32 v{T+6}, v{T+2}, 4, v{T+6}
    v_add_u32 v{vQr}, s{sMqs}, v{T+6}
    ; V transposed-read address: lane = 16g+4r+c reads 8 bytes of chunk c of key 16r+8(g&1)+2kb+(g>>1)
    v_mul_u32_u24 v{T+6}, 2056, v{T+8}
    v_lshl_add_u32 v{T+6}, v{T+10}, 8, v{T+6}
    v_lshl_add_u32 v{T+6}, v{T+9}, 4, v{T+6}
    v_mul_u32_u24 v{T+8}, {VW}, v{T+12}
    v_add_u32 v{T+8}, {VB}, v{T+8}
    v_add_u32 v{vV}, v{T+8}, v{T+6}
"""
    h += f"""    ; output: a store covers 8 rows x 128 bytes: row(n&7)*256 + (n>>3)*64 + g*16
    v_and_b32 v{T+10}, 7, v{T+13}
    v_lshlrev_b32 v{T+10}, 8, v{T+10}
    v_lshl_add_u32 v{T+10}, v{T+2}, 4, v{T+10}
    v_and_b32 v{T+11}, 8, v{T+1}
    v_lshl_add_u32 v{vO}, v{T+11}, 3, v{T+10}
"""
    h += f"""    ; row-sum operand: rows 4i and 4i+1 are ones; they pick elements 0,1 and 2,3 of every group of four keys
    v_cmp_eq_u32 vcc, 1, v{T+9}
    v_mov_b32 v{T+6}, 0x44444444
    v_mov_b32 v{T+8}, 0xeeeeeeee
    v_cndmask_b32 v{vIdx}, v{T+6}, v{T+8}, vcc
    v_cmp_gt_u32 vcc, {0 if cfg.ones_rows == 0 else 2}, v{T+9 if cfg.ones_rows == 8 else T+1}
    v_mov_b32 v{T+6}, 0x3f803f80
    v_mov_b32 v{vChk}, {'-1' if cfg.force_slow else '0'}
    v_cndmask_b32 v{T+6}, 0, v{T+6}, vcc
    v_lshlrev_b32 v{vCnt}, 2, v{T+4}
    v_add_u32 v{vCnt}, {CB:#x}, v{vCnt}
    v_mov_b32 v{vOne}, v{T+6}
    v_mov_b32 v{vOne+1}, v{T+6}
    v_mov_b32 v{vOne+2}, v{T+6}
    v_mov_b32 v{vOne+3}, v{T+6}
    v_mov_b32 v{vCone}, 1
    v_mov_b32 v{vPoll}, 0
    s_mov_b32 vcc_lo, 0xff00ff00              ; lanes with (l & 8), used by the output selects
    s_mov_b32 vcc_hi, 0xff00ff00
"""
    return h

def tail(cfg):
    lim = (127 + cfg.limit_exp) << 23
    t = ""
    if cfg.stamps == "skew":
        t += """    s_mov_b32 s58, 256
    s_mov_b32 s59, 0x20000
    s_not_b32 s64, s60
    v_mov_b32 v64, s64
    v_mov_b32 v60, 0
    s_mov_b64 exec, 1
    s_cmp_lg_u32 s3, 0
    s_cbranch_scc1 L_sk1
    buffer_atomic_umax v64, v60, s[56:59], 0 offen
    s_waitcnt vmcnt(0)
L_sk1:
    s_memrealtime s[72:73]
    s_waitcnt lgkmcnt(0)
    s_sub_u32 s72, s72, s60
    s_cmp_lt_u32 s72, 8000
    s_cbranch_scc1 L_sk1
    buffer_load_dword v64, v60, s[56:59], 0 offen sc0 sc1
    s_waitcnt vmcnt(0)
    v_readfirstlane_b32 s64, v64
    s_nop 4
    s_not_b32 s64, s64
L_sk2:
    s_memrealtime s[72:73]
    s_waitcnt lgkmcnt(0)
    s_sub_u32 s72, s72, s64
    s_cmp_lt_u32 s72, 10000
    s_cbranch_scc1 L_sk2
    s_mov_b64 exec, -1
"""
    elif cfg.stamps == "spin":
        if not getattr(cfg, "stamp_steps", []): t += "    s_waitcnt vmcnt(0)\n    s_memrealtime s[64:65]\n"
        t += f"""    s_waitcnt lgkmcnt(0)
    {"s_sub_u32 s64, s66, s64" if len(getattr(cfg, "stamp_steps", [])) == 2 else "s_sub_u32 s64, s64, s60"}
    s_mul_i32 s64, s64, {getattr(cfg, "spin_mul", 0)}
    s_add_u32 s64, s64, 10000
L_spin:
    s_memrealtime s[72:73]
    s_waitcnt lgkmcnt(0)
    s_sub_u32 s72, s72, s60
    s_cmp_lt_u32 s72, s64
    s_cbranch_scc1 L_spin
"""
    elif cfg.stamps:
        e0 = 88 if cfg.stamps == "c16" else 72
        t += f"""    s_memrealtime s[{e0}:{e0+1}]
    s_waitcnt vmcnt(0)
    s_memrealtime s[{e0+2}:{e0+3}]
    s_mov_b32 s58, 0x10000000
    s_mov_b32 s59, 0x20000
    s_lshl_b32 s46, s2, 2
    s_add_u32 s46, s46, s3
    s_lshl_b32 s46, s46, 6
    s_waitcnt lgkmcnt(0)
"""
        for i in range(16): t += f"    v_mov_b32 v{64+i}, s{60+(2*i if cfg.stamps == 'c16' else i)}\n"
        t += "    v_mov_b32 v60, 0\n    s_mov_b64 exec, 1\n"
        if cfg.stamps == "dbg":
            t += "    s_mov_b32 s58, 256\n"
            for i in range(8):
                t += f"    v_not_b32 v{65+2*i}, v{64+2*i}\n"
            for i in range(16): t += f"    buffer_atomic_umax v{64+i}, v60, s[56:59], 0 offen offset:{4*i}\n"
        else:
          for i in range(4): t += f"    buffer_store_dwordx4 v[{64+4*i}:{67+4*i}], v60, s[56:59], s46 offen offset:{16*i}\n"
        t += "    s_mov_b64 exec, -1\n"
    t += f"""    v_cmp_lt_u32 vcc, {lim:#x}, v{vChk}
    s_nop 4
    s_cbranch_vccnz L_slow
L_end:
    s_endpgm
"""
    for n in cfg.spins:
        t += f"""L_spin{n}:
    ds_read_b32 v{vPoll}, v{vCnt}
    s_waitcnt lgkmcnt(0)
    v_readfirstlane_b32 s{sPol}, v{vPoll}
    s_nop 3
    s_cmp_lt_u32 s{sPol}, s{sExp}
    s_cbranch_scc1 L_spin{n}
    s_branch L_back{n}
"""
    S0, S1, M, T = 16, 20, 24, 25
    vQ = vQr; vKb = vKr + 2
    q = lambda ds: at(aQ + 4 * ds, 4)
    k = lambda j, ds: at(aK + j * 16 + 4 * ds, 4)
    t += f"""; Fallback: a row sum left [2^-{cfg.limit_exp}, 2^{cfg.limit_exp}] (or is not finite), so exp without an offset was not safe.
; This wave recomputes its 256 rows subtracting the true row maximum.  K is rebuilt in LDS; V goes through a private 8 KiB.
L_slow:
    s_waitcnt vmcnt(0) lgkmcnt(0)
    s_barrier                                 ; the other waves are done with LDS (ended or here)
    s_mov_b32 s{sQo}, 0
    s_lshl_b32 s{sTmp}, s{sWave}, 12
    s_lshl_b32 s{sTmp+1}, s{sWave}, 13
    s_add_u32 s{sTmp+2}, s{sTmp+1}, 0x20000
    s_add_u32 s{sTmp+3}, s{sTmp+2}, 4096
    s_sub_u32 s{sV_}, s{sV_}, s{sTmp}
    s_subb_u32 s{sV_+1}, s{sV_+1}, 0
    s_mov_b32 s{sV_+2}, 0x20000
    v_bfe_u32 v{T}, v{vKl}, 4, 4              ; l & 15
    v_lshrrev_b32 v{T+1}, 8, v{vKl}           ; l >> 4
    v_lshlrev_b32 v{vQ}, 4, v{T+1}
    v_lshl_add_u32 v{vQ}, v{T}, 8, v{vQ}      ; Q rows in MFMA layout
    v_xor_b32 v{T+1}, v{T}, v{T+1}
    v_and_b32 v{T+1}, 7, v{T+1}
    v_lshlrev_b32 v{T+1}, 4, v{T+1}
    v_lshl_add_u32 v{vKw}, v{T}, 8, v{T+1}
    v_xor_b32 v{vKw+1}, 64, v{vKw}
    v_lshrrev_b32 v{T+1}, 6, v{vKl}           ; 4g+r
    v_lshlrev_b32 v{T+1}, 8, v{T+1}
    v_and_b32 v{T}, 0x30, v{vKl}              ; c*16
    v_add3_u32 v{vV}, v{T}, v{T+1}, s{sTmp+2}
"""
    t += f"""    s_sub_u32 s{sK_}, s{sK_}, s{sTmp}
    s_subb_u32 s{sK_+1}, s{sK_+1}, 0
    s_mov_b32 s{sK_+2}, 0x20000
    s_mov_b32 s{sCnt}, 0
L_skld:
"""
    for i in range(4): t += f"    buffer_load_dwordx4 {vt(vOa+4*i,4)}, v{vKl}, s[{sK_}:{sK_+3}], s{sCnt} offen offset:{i*1024}\n"
    t += "    s_waitcnt vmcnt(0)\n"
    for x in range(vOa, vOa + 16):
        t += f"""    v_lshlrev_b32 v{T}, 16, v{x}
    v_and_b32 v{x}, s{sMask}, v{x}
    v_mul_f32 v{T}, s{sScale}, v{T}
    v_mul_f32 v{x}, s{sScale}, v{x}
    v_cvt_pk_bf16_f32 v{x}, v{T}, v{x}
"""
    for i in range(4): t += f"    ds_write_b128 v{vKw+(i&1)}, {vt(vOa+4*i,4)} offset:{(i>>1)*128}\n"
    t += f"""    s_waitcnt lgkmcnt(0)
    v_add_u32 v{vKw}, 4096, v{vKw}
    v_add_u32 v{vKw+1}, 4096, v{vKw+1}
    s_add_u32 s{sCnt}, s{sCnt}, 4096
    s_cmp_lt_u32 s{sCnt}, 0x20000
    s_cbranch_scc1 L_skld
"""
    t += "L_sblk:\n"
    for ds in range(4): t += f"    buffer_load_dwordx4 {q(ds)}, v{vQ}, s[{sQ_}:{sQ_+3}], s{sQo} offen offset:{ds*64}\n"
    t += f"""    v_mov_b32 v{M}, 0xff800000
    v_mov_b32 v{vKb}, v{vKr}
    v_mov_b32 v{vKb+1}, v{vKr+1}
    s_mov_b32 s{sCnt}, 32
    s_waitcnt vmcnt(0)
L_smax:
"""
    for ds in range(4): t += f"    ds_read_b128 {k(0,ds)}, v{vKb+(ds&1)} offset:{ds*1024}\n"
    t += "    s_waitcnt lgkmcnt(0)\n"
    for ds in range(4): t += f"    v_mfma_f32_16x16x32_bf16 {vt(S0,4)}, {k(0,ds)}, {q(ds)}, {'0' if ds == 0 else vt(S0,4)}\n"
    t += f"""    s_nop 7
    v_max3_f32 v{M}, v{M}, v{S0}, v{S0+1}
    v_max3_f32 v{M}, v{M}, v{S0+2}, v{S0+3}
    v_add_u32 v{vKb}, 4096, v{vKb}
    v_add_u32 v{vKb+1}, 4096, v{vKb+1}
    s_sub_u32 s{sCnt}, s{sCnt}, 1
    s_cmp_lg_u32 s{sCnt}, 0
    s_cbranch_scc1 L_smax
    v_mov_b32 v{T}, v{M}
    s_nop 1
    v_permlane16_swap_b32 v{M}, v{T}
    s_nop 1
    v_max_f32 v{M}, v{M}, v{T}
    v_mov_b32 v{T}, v{M}
    s_nop 1
    v_permlane32_swap_b32 v{M}, v{T}
    s_nop 1
    v_max_f32 v{M}, v{M}, v{T}
"""
    for r in range(4): t += f"    v_mov_b32 v{vL+r}, 0\n"
    for r in range(32): t += f"    v_mov_b32 v{vOa+r}, 0\n"
    t += f"""    v_mov_b32 v{vKb}, v{vKr}
    v_mov_b32 v{vKb+1}, v{vKr+1}
    s_mov_b32 s{sCnt}, 0
L_skey:
    s_mov_b32 m0, s{sTmp+2}
    s_mov_b32 s{sTmp+5}, s{sCnt}
    s_add_u32 s{sTmp+4}, s{sTmp+5}, 4096
"""
    for i in range(4): t += f"    buffer_load_dwordx4 v{vD0}, s[{sV_}:{sV_+3}], s{sTmp+5} offen offset:{i*1024} lds\n"
    t += f"    s_mov_b32 m0, s{sTmp+3}\n    s_nop 0\n"
    for i in range(4): t += f"    buffer_load_dwordx4 v{vD0}, s[{sV_}:{sV_+3}], s{sTmp+4} offen offset:{i*1024} lds\n"
    for j in range(2):
        for ds in range(4): t += f"    ds_read_b128 {k(j,ds)}, v{vKb+(ds&1)} offset:{j*4096+ds*1024}\n"
    t += "    s_waitcnt vmcnt(0) lgkmcnt(0)\n"
    for db in range(8):
        for h in range(2): t += f"    ds_read_b64_tr_b16 {at(aV+db*4+2*h,2)}, v{vV} offset:{h*4096+(db>>1)*64+(db&1)*8}\n"
    for j, S in enumerate((S0, S1)):
        for ds in range(4): t += f"    v_mfma_f32_16x16x32_bf16 {vt(S,4)}, {k(j,ds)}, {q(ds)}, {'0' if ds == 0 else vt(S,4)}\n"
    t += "    s_nop 7\n"
    for r in range(8): t += f"    v_sub_f32 v{S0+r}, v{S0+r}, v{M}\n"
    for r in range(8): t += f"    v_exp_f32 v{S0+r}, v{S0+r}\n"
    t += "    s_nop 0\n"
    for r in range(4): t += f"    v_cvt_pk_bf16_f32 v{vP+r}, v{S0+2*r}, v{S0+2*r+1}\n"
    t += f"    v_add_u32 v{vKb}, 8192, v{vKb}\n    v_add_u32 v{vKb+1}, 8192, v{vKb+1}\n    s_waitcnt lgkmcnt(0)\n    s_nop 0\n"
    t += f"    v_mfma_f32_16x16x32_bf16 {vt(vL,4)}, {vt(vOne,4)}, {vt(vP,4)}, {vt(vL,4)}\n"
    for db in range(8): t += f"    v_mfma_f32_16x16x32_bf16 {vt(vOa+4*db,4)}, {at(aV+db*4,4)}, {vt(vP,4)}, {vt(vOa+4*db,4)}\n"
    t += f"""    s_add_u32 s{sCnt}, s{sCnt}, 8192
    s_cmp_lt_u32 s{sCnt}, 0x20000
    s_cbranch_scc1 L_skey
    s_nop 7
    v_rcp_f32 v{vR}, v{vL}
    s_nop 0
"""
    for r in range(32): t += f"    v_mul_f32 v{vOa+r}, v{vOa+r}, v{vR}\n"
    for db in range(8):
        o = vOa + 4 * db; d = vP + 2 * db
        t += f"    v_cvt_pk_bf16_f32 v{d}, v{o}, v{o+1}\n    v_cvt_pk_bf16_f32 v{d+1}, v{o+2}, v{o+3}\n"
    if cfg.store_x4:
        t += "    s_nop 1\n"
        for db in range(0, 8, 2):
            d = vP + 2 * db
            if not cfg.vperm: t += f"    v_permlane16_swap_b32 v{d}, v{d+2}\n    v_permlane16_swap_b32 v{d+1}, v{d+3}\n"
            t += f"    buffer_store_dwordx4 {vt(d,4)}, v{vQ}, s[{sO_}:{sO_+3}], s{sQo} offen offset:{db*32}\n"
    else:
        for db in range(8): t += f"    buffer_store_dwordx2 {vt(vP+2*db,2)}, v{vO}, s[{sO_}:{sO_+3}], s{sQo} offen offset:{db*32}\n"
    t += f"""    s_add_u32 s{sQo}, s{sQo}, 4096
    s_cmp_lt_u32 s{sQo}, 0x10000
    s_waitcnt vmcnt(0)
    s_cbranch_scc1 L_sblk
    s_endpgm
"""
    return t

HDR = """; Kernarg layout for this problem (48 bytes, ptrs only, base s[0:1]):
;   offset   0: d_in[0] q  shape=(16, 32, 512, 128) dtype=bfloat16
;   offset   8: d_in[1] k  shape=(16, 4, 512, 128) dtype=bfloat16
;   offset  16: d_in[2] v  shape=(16, 4, 512, 128) dtype=bfloat16
;   offset  24: d_out     shape=(16, 32, 512, 128) dtype=bfloat16
;   offset  32: d_debug   256 bytes
;   offset  40: d_ws      268435456 bytes workspace (unused)
; @launch grid=(256,1,1) block=(256,1,1) lds=163840
;
; GQA attention forward, out = softmax(q k^T / sqrt(128)) v.  Generated by my own scheduling script.
; * One workgroup per CU: 1024 q rows against the 512 keys of one (batch, kv head); each wave owns 256 rows and keeps
;   four 16-row blocks in flight, started two key tiles apart (a block walks the eight 64-key tiles cyclically).
; * v_mfma_f32_16x16x32_bf16 for S^T = K Q^T and O^T = V^T P^T; P goes from the S registers straight into the B operand.
;   K is multiplied by log2(e)/sqrt(128) once and stays in LDS (one tile in registers); V streams through a two-slot LDS
;   ring by LDS-DMA (one tile in registers) and is read with ds_read_b64_tr_b16; Q is staged through LDS.
; * Row sums come from one v_smfmac per block and tile (rows of ones with complementary 2:4 index patterns).
; * Waves meet through an arrive/poll counter in LDS (s_barrier in the first steps).
; * Softmax guard: softmax is invariant under a per-row shift, so the main path uses shift 0 and CHECKS every row sum l
;   at run time: l and 1/l must both be <= 2^32 (this also rejects inf and NaN).  Inside that range nothing overflowed and
;   recomputes all its rows subtracting the true row maximum.
"""

PAD = """; Instruction prefetch stops at 4 KiB boundaries: start the kernel on one (the harness puts 0x300 bytes in front of the label).
.p2align 12
.fill 832, 4, 0xbf800000
"""

def add_hops(cfg, text):
    import subprocess, re, os, tempfile
    lines = text.split("\n")
    i0 = lines.index(KN + ":"); i1 = lines.index("L_end:")
    tmp = tempfile.mkdtemp()
    src = "\n".join(lines).replace("@HOPS", "\n".join(["    s_nop 0"] * 9))
    lines = src.split("\n"); i1 = lines.index("L_end:")
    hop0 = text.split("\n").index("@HOPS")
    open(tmp + "/a.s", "w").write(src)
    subprocess.run(["clang", "-x", "assembler", "-target", "amdgcn-amd-amdhsa", "-mcpu=gfx950", "-c", tmp + "/a.s", "-o", tmp + "/a.o"], check=True)
    dis = subprocess.run(["llvm-objdump", "-d", "--mcpu=gfx950", tmp + "/a.o"], capture_output=True, text=True).stdout
    dis = dis[dis.index("<" + KN + ">:"):]
    sizes = [4 * len(m.group(1).split()) for m in re.finditer(r"// [0-9A-F]{12}: ([0-9A-F ]+)", dis)]
    isins = lambda l: l.startswith("    ") and not l.strip().startswith(";") and l.strip()
    out = lines[:i0 + 1]; addr = 0; k = 0; page = 1; j = i0 + 1
    def look(j, k, addr, page):
        cands = []
        while addr < page * 4096 + 64 and j < i1:
            if isins(lines[j]):
                addr += sizes[k]; k += 1
                if "mfma" in lines[j] and page * 4096 <= addr <= page * 4096 + 60:
                    nx = lines[j + 1].strip()
                    cands.append((0 if nx == "s_nop 0" else (1 if nx.startswith("v_") else 2), j))
                elif page * 4096 <= addr <= page * 4096 + 60 and lines[j].strip().startswith("v_"): cands.append((3, j))
            j += 1
        return min(cands) if cands else None
    plan = None
    while j < i1:
        l = lines[j]
        if plan is None and addr >= page * 4096 - 64:
            plan = look(j, k, addr, page)
            if plan is None: page_end = True
        out.append(l)
        if isins(l): addr += sizes[k]; k += 1
        if plan and plan[1] == j:
            out.append(f"L_hop{page}:"); out.append(f"    s_cbranch_execz @NEXT{page}@"); addr += 4
            if plan[0] == 0: j += 1; k += 1
            plan = None; page += 1
        j += 1
    out += lines[i1:]
    np_ = page - 1
    r = "\n".join(out)
    for p in range(1, np_ + 1): r = r.replace(f"@NEXT{p}@", f"L_hop{p+4}" if p + 4 <= np_ else "L_hback")
    rl = r.split("\n")
    rl[hop0:hop0 + 9] = ["    s_mov_b64 exec, 0                         ; warm the instruction cache: visit the first line of every code page"] + \
        [x for w in range(3) for x in (f"    s_cmp_eq_u32 s{sWave}, {w}", f"    s_cbranch_scc1 L_hop{w+1}")] + ["    s_branch L_hop4", "L_hback:", "    s_mov_b64 exec, -1"]
    return "\n".join(rl)

def full(cfg):
    body = generate(cfg)
    r = full2(cfg, body)
    if getattr(cfg, "spin_cyc", 0):
        r = r.replace("s_memrealtime s[64:65]", "s_memtime s[64:65]").replace("s_memrealtime s[66:67]", "s_memtime s[66:67]").replace("s_memrealtime s[62:63]", "s_memtime s[62:63]")
        r = r.replace("s_sub_u32 s64, s64, s60", "s_sub_u32 s64, s64, s62").replace("s_mul_i32 s64, s64, 0", "s_lshr_b32 s64, s64, 1")
    if cfg.stamps in ("cyc", "c16"): r = r.replace("s_memrealtime", "s_memtime")
    if cfg.stamps == "both":
        import re
        r = re.sub(r"    s_memrealtime s\[(\d+):(\d+)\]", lambda m: f"    s_memtime s[{m.group(1)}:{m.group(2)}]\n    s_memrealtime s[{int(m.group(1))+20}:{int(m.group(2))+20}]", r)
        for i in range(8): r = r.replace(f"v_mov_b32 v{65+2*i}, s{61+2*i}\n", f"v_mov_b32 v{65+2*i}, s{80+2*i}\n")
    if "@HOPS" in r: r = add_hops(cfg, r.replace("    @HOPS", "@HOPS"))
    return r

def full2(cfg, body):
    return HDR + f""".amdgcn_target "amdgcn-amd-amdhsa--gfx950"
.text
.globl {KN}
{PAD if cfg.align else ""}.p2align 8
.type {KN},@function
{KN}:
""" + head(cfg) + body + "\n" + tail(cfg) + f""".section .rodata,"a"
.p2align 6
.amdhsa_kernel {KN}
  .amdhsa_next_free_vgpr 512
  .amdhsa_next_free_sgpr 102
  .amdhsa_accum_offset 256
  .amdhsa_group_segment_fixed_size 0
  .amdhsa_kernarg_size 48
  .amdhsa_user_sgpr_count 2
  .amdhsa_user_sgpr_kernarg_segment_ptr 1
  .amdhsa_system_sgpr_workgroup_id_x 1
.end_amdhsa_kernel
"""

if __name__ == "__main__":
    cfg = Cfg()
    name = sys.argv[1]
    for a in sys.argv[2:]:
        k, v = a.split("=", 1)
        try: v = eval(v)
        except Exception: pass
        setattr(cfg, k, v)
    s = full(cfg)
    open(name, "w").write(s)
    tot = sum(v[0] for v in cfg.est.values())
    print(name, "est head", cfg.est_head, "total", tot, "mfma", sum(v[1] for v in cfg.est.values()), file=sys.stderr)
    print(" ".join(f"{s}:{v[0]}/{v[1]}" for s, v in cfg.est.items() if s < 16 or s >= 32), file=sys.stderr)
```

```python
import sys, math, struct
KN = "standalone__gqa_softmax__near_ridge_kernel"

class Cfg:
    sigma = (0, 2, 4, 6)
    beta = 0.85
    beta_small = 0.55
    ds_lat = 9
    mv_lat = 4
    store_x4 = True
    q_nt = "nt"
    st_pol = "sc0 sc1"
    k_pol = "nt"
    v_pol = ""
    v_pol0 = "nt"
    rot = 0
    split_from = 4
    split_min_u = 2
    arr_gap = 10
    vm_gap = 5
    smooth = True
    stamps = False
    code_pf = True
    plan = "K0 Q0 C K1 H W00 V0 S0 B r0 r1 R0 K2 S1@0.0 V1@0.0 Q1@0.5 K3@1.0 V2@1.5 R1@2.0 K4@2.0 Q2@2.3 V3@2.6 K5@3.0 V4@3.4 K6@3.b R2@3.b Q3@4.0 K7@4.b R3@5.b Q4@6.0"
    vperm = True
    st_last = "sc0 sc1"
    st_last_from = 38
    ones_rows = 8
    trunc = False
    fake_st = False
    fake_v = False
    fake_m0 = 0
    v_n0 = 8
    st_block = 0
    c_pol = ""
    st_first = None
    st_pair = False
    fetch_thr = 1
    fetch_slack = 1
    st_gap = 16
    st_gap_all = False
    pf2 = False
    x8 = True
    qr_asap = True
    full_until = 33
    kst = [(1, 0), (1, 1), (2, 0), (2, 1), (3, 0), (3, 1), (3, "P"), (3, 0)]
    jitter = None
    xor = None
    qlag = {}
    lags = {}
    tailpub = {33: [33, 34], 35: [35, 37]}
    align = True
    early_pf = True
    sigma0 = None
    loop_from = 8
    vtouch = False
    group = 2
    group_min = 2
    rev = True
    snake = True
    on_first = True
    fake = ""
    cinit = "-4.0"
    cfake = None
    oinit = "0"
    deep = True
    tail_dl = 1.0
    betas = {0: 0.95, 1: 0.9, 2: 0.8, 3: 0.8}
    arr_gap_small = 4
    k_up = 1
    force_slow = False
    nop_ds = True
    ds_gap = 2
    ds_cap = 1024
    kill_from = None
    pad = 0
    kill = ()
    limit_exp = 32

vQd, vO, vQr, vCnt, vD0, vChk = 0, 2, 3, 4, 0, 7
vKwS = (5, 48)
vKp2 = 8
vKl = 0
vV = 1
vS = 16
vL = 32
vR = 48
vKw = 50
vT = 52
NT = 5
vIdx = 57
vPoll = 58
vJ = 59
vKr = 60
vP = 64
vOa = 128
aQ, aKp, aVp, aK, aV = 0, 64, 128, 192, 224
vOne, vCone, vKp1, vO2, vO3 = 12, 6, 52, 56, 59
sPol = 40
sMqs = 76
TV = 4
TMPS = [44, 45, 46, 47, 56]
sQ_, sK_, sV_, sO_, sC_ = 12, 16, 20, 24, 28
sTile = 32
sM0 = 96
sQo, sOo, sCnt, sScale, sWave = 42, 43, 44, 45, 3
sTmp = 46
sMq, sExp, sMask, sPerm = 52, 53, 54, 55

VB, VSTR, KSH, VW = 0x18000 - 800, 16584, 800, 4160
QW, CB = 4192, 0x4180
def vr(b, n=1): return [f"v{b+i}" for i in range(n)]
def ar(b, n=1): return [f"a{b+i}" for i in range(n)]
def vt(b, n): return f"v[{b}:{b+n-1}]"
def at(b, n): return f"a[{b}:{b+n-1}]"

class Op:
    def __init__(s, key, text, kind, reads, writes, cost=None, earliest=None, dummy=False, anchor=None, maxdl=None):
        s.key, s.text, s.kind, s.reads, s.writes = key, text, kind, list(reads), list(writes)
        s.cost = {"mfma": 0, "trans": 8, "valu": 4, "ds": 4, "dsw": 20, "load": 8, "dma": 8, "store": 12, "salu": 0, "bar": 0, "chk": 0}[kind] if cost is None else cost
        s.cnt = {"ds": "lgkm", "dsw": "lgkm", "load": "vm", "dma": "vm", "store": "vm"}.get(kind)
        s.earliest = earliest
        s.maxdl = maxdl
        s.dummy = dummy
        s.anchor = anchor
        s.preds = []; s.succs = []; s.win = None; s.pos = None; s.m = None
        s.prod = {}

def blockpos(cfg, s, u):
    s0 = (cfg.sigma0 or cfg.sigma)[u]
    if s0 <= s < s0 + 8: return (0, s - s0)
    if cfg.sigma[u] + 8 <= s < cfg.sigma[u] + 32: return divmod(s - cfg.sigma[u], 8)
    return (None, None)

def build(cfg, s0, s1, steady):
    sg = cfg.sigma
    NP = 4
    last = 32 + max(sg)
    def li(s, u): return (s - sg[u]) % 8 if steady else blockpos(cfg, s, u)[1]
    def qk_on(s, u): return li(s, u) is not None
    def pv_on(s, u): return li(s - 1, u) is not None
    def order_qk(s, kb):
        us = [u for u in range(4) if qk_on(s, u)]
        if kb == 3:
            f = [u for u in us if li(s, u) == 7]
            us = f + [u for u in us if u not in f]
        if kb == 0:
            f = [u for u in us if li(s, u) == 0]
            us = [u for u in us if u not in f] + f
        return us
    prog = []
    A = prog.append
    chain = 0
    pend_q = []
    def qload(key, earliest=None, dummy=False, alt=False):
        if alt:
            A(Op(key + ("m0",), f"s_add_u32 m0, s{sMq}, {0x8000 - KSH}", "salu", [], ["m0"]))
            for i in range(4):
                A(Op(key + (i,), f"buffer_load_dwordx4 v{vQd}, s[{sQ_}:{sQ_+3}], s{sQo} offen offset:{i*1024} {cfg.q_nt} lds".replace("  ", " "), "dma",
                     [f"s{sQo}", "m0"], [f"Qa{i}"], earliest=earliest))
            A(Op(key + ("inc",), f"s_add_u32 s{sQo}, s{sQo}, 4096", "salu", [f"s{sQo}"], [f"s{sQo}"]))
            return
        for i in range(4):
            A(Op(key + (f"m{i}",), f"s_mov_b32 m0, s{sMqs + i}", "salu", [], ["m0"], dummy=dummy))
            A(Op(key + (i,), f"buffer_load_dwordx4 v{vQd}, s[{sQ_}:{sQ_+3}], s{sQo} offen offset:{i*1024} {cfg.q_nt} lds".replace("  ", " "), "dma",
                 [f"s{sQo}", "m0"] + [f"Qrd{d}" for d in range(4)], [f"Qs{i}"], earliest=earliest, dummy=dummy))
        A(Op(key + ("inc",), f"s_add_u32 s{sQo}, s{sQo}, 4096", "salu", [f"s{sQo}"], [f"s{sQo}"], dummy=dummy))
    def qread(key, u, earliest=None, dummy=False, alt=False):
        for ds in range(4):
            d = aQ + 16 * u + 4 * ds
            if alt:
                A(Op(key + (ds,), f"ds_read_b128 {at(d,4)}, v{vQr} offset:{0x8000 - KSH + ds*64}", "ds", [f"Qa{i}" for i in range(4)], ar(d, 4) + [f"Qar{ds}"], earliest=earliest))
                continue
            A(Op(key + (ds,), f"ds_read_b128 {at(d,4)}, v{vQr} offset:{ds*64}", "ds", [f"Qs{i}" for i in range(4)], ar(d, 4) + [f"Qrd{ds}"], earliest=earliest, dummy=dummy))
    def kfrag(s, kb, ds):
        t = s % 8
        if (t, kb, ds) == (1, 0, 0): return ("v", vKp1)
        if (t, kb, ds) == (1, 0, 1): return ("v", vKp2) if cfg.cfake is None else ("w", vKp1)
        if t == 0 or (not steady and s >= 34): return ("a", aKp + kb * 16 + ds * 4)
        if not steady and s <= 4: return ("a", aK + kb * 16 + ds * 4)
        return ("a", aK + (kb & 1) * 16 + ds * 4)
    def vperm_(sv): return sv % 8 == TV and (steady or sv >= 8)
    def vfrag(sv, db):
        if sv % 8 == TV or (not steady and sv < TV): return aVp + db * 8
        if not steady and sv >= 34 and db >= 4: return aQ + (db - 4) * 8
        return aV + (db & 3) * 8
    rt = lambda f, n: f"{f[0].replace('w', 'v')}[{f[1]}:{f[1]+n-1}]"
    rr = lambda f, n: [f"{f[0]}{f[1]+i}" for i in range(n)]
    def vslot(sv):
        if not steady and sv in (2, 3, 34, 35): return sv & 1
        if not steady and sv == 37: return 3
        return 2 + (((sv - TV - 1) % 8) & 1)
    def vprev(sv):
        if vslot(sv) < 2: return ["Kret67"] if sv > 8 else []
        p = sv - 1
        while p >= 0 and (vslot(p) != vslot(sv) or vperm_(p)): p -= 1
        return [f"Vret{p}"] if p >= 0 else []
    vissued = set()
    def vdma(sv, earliest=None):
        vissued.add(sv)
        A(Op(("m0", sv), f"s_mov_b32 m0, s{sM0 + vslot(sv)}", "salu", ["setup~"], ["m0"]))
        for i in range(4):
            A(Op(("dma", sv, i), f"buffer_load_dwordx4 v{vD0}, s[{sV_ if i < 2 else sC_}:{(sV_ if i < 2 else sC_)+3}], s{sTile + sv % 8} offen offset:{i*1024 + (i >> 1) * 8} {cfg.v_pol0 if (not steady and sv < cfg.v_n0) else cfg.v_pol} lds".replace("  ", " "), "dma",
                 ["m0"] + vprev(sv), [f"Vd{sv}_{i}"], earliest=earliest))
    kstage = {}
    def kregs(t):
        u = KST[t][0]; h = KST[t][1]
        if h == "P": return [vP + (ds >> 1) * 32 + u * 8 + (ds & 1) * 4 for ds in range(4)]
        return [vOa + (h * 4 + ds) * 16 + u * 4 for ds in range(4)]
    KST = cfg.kst
    if cfg.k_up == 8: KST = [(0, 0), (0, 1), (1, 0), (1, 1), (2, 0), (2, 1), (3, 0), (3, 1)]
    def kload(t, earliest=None):
        for ds, r in enumerate(kregs(t)):
            A(Op(("kld", t, ds), f"buffer_load_dwordx4 {vt(r,4)}, v{vKl}, s[{sK_}:{sK_+3}], s{sTile + t} offen offset:{ds*1024} {cfg.k_pol}".rstrip(), "load",
                 [], vr(r, 4), earliest=earliest))
    tmpc = [0]
    def kscale(t, earliest=None):
        for ds, r in enumerate(kregs(t)):
            for j in range(4):
                x = r + j; tm = TMPS[tmpc[0] % NT]; tmpc[0] += 1
                k = ("ksc", t, ds, j)
                A(Op(k + (0,), f"v_lshlrev_b32 v{tm}, 16, v{x}", "valu", vr(x), vr(tm), earliest=earliest))
                A(Op(k + (1,), f"v_and_b32 v{x}, s{sMask}, v{x}", "valu", vr(x), vr(x), earliest=earliest))
                A(Op(k + (2,), f"v_mul_f32 v{tm}, s{sScale}, v{tm}", "valu", vr(tm), vr(tm)))
                A(Op(k + (3,), f"v_mul_f32 v{x}, s{sScale}, v{x}", "valu", vr(x), vr(x)))
                A(Op(k + (4,), f"v_cvt_pk_bf16_f32 v{x}, v{tm}, v{x}", "valu", vr(tm) + vr(x), vr(x)))
            tl = 3 if t == 0 else t
            if t == 4 and ds in (0, 2):
                A(Op(("kwa", t, ds), f"v_add_u32 v{vKw + (ds >> 1)}, {0x10000 - KSH}, v{vKw + (ds >> 1)}", "valu", vr(vKw + (ds >> 1)), vr(vKw + (ds >> 1))))
            a = vKwS[ds >> 1] if (t == 1 and not ds & 1) else vKw + (ds >> 1)
            A(Op(("kw", t, ds), f"ds_write_b128 v{a}, {vt(r,4)} offset:{(tl & 3) * 16384 + (ds & 1) * 8192 - (KSH if tl < 4 else 0)}", "dsw",
                 vr(r, 4) + vr(a) + (["K0dead"] if t in (3, 4) else []) + (["Qadead"] if (t == 2 and " q1" in cfg.plan) else []) + ([f"Vret{v}" for v in range(2, t - 3)] if t >= 6 and cfg.deep else []), [f"Kw{t}_{ds}"]))
    nmf = [0]
    kpub = set()
    def kread1(s, t, kb):
        for ds in range(4):
            perm = t == 0 or ((t, kb) == (1, 0) and ds < 2)
            if perm and (steady or s > 7): continue
            d = kfrag(s, kb, ds); tl = 3 if t == 0 else (4 if perm else t)
            A(Op(("kr", s, kb, ds), f"ds_read_b128 {rt(d,4)}, v{vKr + 2 * (tl >> 2) + (ds & 1)} offset:{(tl & 3) * 16384 + kb * 4096 + ds * 1024 - (KSH if tl < 4 else 0)}", "ds",
                 [] if (steady or s > 7) else [f"Kok{t}"], rr(d, 4) + ([] if not perm else [f"Kr0_{kb}_{ds}" if t == 0 else f"Kr1_{ds}"])))
    kdone0 = set(); kscaled = []
    later = {}
    if not steady:
        H = (-1, 0)
        def issue(item, when):
            n0 = len(prog)
            n = int(item[1:]) if item[1:].isdigit() else None
            if item[0] == "K": kload(n, when)
            elif item[0] == "Q": qload(("q0", n) if n < 4 else ("q", 8, 0), when)
            elif item[0] == "R": qread(("qr0", n), n, when)
            elif item[0] == "q": qload(("q0", n), when, alt=True)
            elif item[0] == "x": qread(("qr0", n), n, when, alt=True)
            elif item[0] == "V": vdma(n, when)
            elif item[0] == "S": kscale(n, when); kscaled.append(n)
            elif item[0] == "r": kread1(0, 0, n); kdone0.add(n)
            elif item[0] == "W":
                A(Op(("wt", 0, item), "s_nop 0", "valu", vr(kregs(int(item[1]))[int(item[2])], 4), []))
            elif item[0] == "P":
                A(Op(("cpf", 1), f"buffer_load_dword v{vJ}, v{vJ}, s[{sC_}:{sC_+3}], 0 offen {cfg.c_pol}".rstrip(), "load", [], ["junk"], earliest=when))
            elif item[0] == "H":
                A(Op(("hop", 0), "@HOPS", "valu", [], [], earliest=when, maxdl=when))
            elif item[0] == "T":
                A(Op(("ts", 0, item), f"s_memrealtime s[{64+2*n}:{65+2*n}]", "valu", [], []))
            elif item[0] == "X":
                A(Op(("wt", 0, item), "s_nop 0", "valu", [f"Qs{i}" for i in range(4)], []))
            elif item[0] == "B":
                pub = [t for t in kscaled if t not in kpub]; kpub.update(pub)
                A(Op(("bar", -1), "s_barrier", "bar", ["Czero"] + [f"Kw{t}_{ds}" for t in pub for ds in range(4)], [f"Kok{t}" for t in pub], anchor=H))
            elif item[0] == "C":
                pf = f"global_load_dword v{vJ}, v[{vS+14}:{vS+15}], off"
                if cfg.early_pf and cfg.vtouch:
                    tx = head2(cfg).split("@CPF")[1].strip().replace(f"    s_mov_b32 s{sO_+2}, 0x10000", f"    buffer_load_dword v{vS+14}, off, s[{sV_}:{sV_+3}], s{sMq} {cfg.v_pol0}\n    s_mov_b32 s{sO_+2}, 0x10000")
                    A(Op(("cpf", 0), tx, "load", [], vr(vS + 14), earliest=when, cost=300))
                elif cfg.early_pf:
                    A(Op(("cpf", 0), head2(cfg).split("@CPF")[1].strip(), "valu", [], [], earliest=when, cost=300))
                elif cfg.pf2:
                    p1 = f"""    s_lshr_b32 s{sTmp+4}, s{sWave}, 1
    s_lshl1_add_u32 s{sTmp+4}, s2, s{sTmp+4}
    s_lshl_b32 s{sTmp+4}, s{sTmp+4}, 7
    v_and_b32 v{vS+15}, 0x70, v{vKl}
    buffer_load_dword v{vS+15}, v{vS+15}, s[{sC_}:{sC_+3}], s{sTmp+4} offen"""
                    A(Op(("cpf", 0), head2(cfg).replace("@CPF", p1).strip(), "load", [], vr(vS + 15), earliest=when, cost=300))
                elif " P" in cfg.plan: A(Op(("cpf", 0), head2(cfg).replace("@CPF\n", "").strip(), "valu", [], [], earliest=when, cost=300))
                else: A(Op(("cpf", 0), head2(cfg).replace("@CPF", "    " + pf).strip(), "load", [], ["junk"], earliest=when, cost=300))
                A(Op(("setup", 0), "s_nop 0", "valu", [], ["setup~", f"s{sExp}"]))
                A(Op(("cz", 1), f"ds_write_b32 v{vCnt}, v{vPoll}", "dsw", [], ["Czero"], cost=8))
            if when == H:
                for x in prog[n0:]: x.maxdl = H
        for item in cfg.plan.split():
            if "@" not in item: issue(item, H)
            else:
                it, pos = item.split("@"); st, fr = pos.split(".")
                later.setdefault(int(st), []).append((it, fr))
    for s in range(s0, s1):
        t = s % 8
        uq = [u for u in range(4) if qk_on(s, u)]
        up = order_qk(s - 1, 3) if (steady or s > 0) else []
        up = [u for u in up if pv_on(s, u)]
        qk = [(kb, u) for kb in range(4) for u in order_qk(s, kb)]
        if not steady and s in cfg.qlag:
            qk.sort(key=lambda c: (c[0] + (cfg.qlag[s] + 0.5 if (li(s, c[1]) == 0 and c[1] > 0) else 0)))
        pv = []
        fin = [u for u in up if li(s - 1, u) == 7]
        ones_order = fin + [u for u in up if u not in fin]
        for db in range(8):
            for u in up: pv.append(("pv", db, u))
        npv = len(pv)
        ins = {}
        for i, u in enumerate(ones_order):
            if u in fin: p = len(up)
            else: p = len(up) + (npv - len(up)) * i // max(1, len(ones_order))
            ins.setdefault(p, []).append(("one", 0, u))
        pv2 = []
        for i, c in enumerate(pv):
            pv2 += ins.get(i, []); pv2.append(c)
        pv = pv2
        seq = []
        if qk:
            j = 0
            lag = 1 if len(uq) <= 2 and pv else 0
            if not steady and s in cfg.lags: lag = cfg.lags[s]
            for i, c in enumerate(qk):
                seq.append(("qk",) + c)
                tgt = math.ceil(max(0, i + 1 - lag) * len(pv) / (len(qk) - lag))
                while j < tgt: seq.append(pv[j]); j += 1
        else:
            seq = pv
        if cfg.group and qk and len(up) >= cfg.group_min:
            G = cfg.group
            seq = []; j = 0
            onepos = {}
            for i, u in enumerate(ones_order): onepos.setdefault(0 if u in fin else (8 * i // len(ones_order)), []).append(u)
            for db in range(8):
                if db % G == 0:
                    while j < math.ceil((db + G) * len(qk) / 8): seq.append(("qk",) + qk[j]); j += 1
                if not cfg.snake:
                    seq += [("pv", db, u) for u in up] + [("one", 0, u) for u in onepos.get(db, [])]
                    continue
                if db % G == 0:
                    on = [u for k in range(db, db + G) for u in onepos.get(k, [])]
                    od = list(up)
                    if cfg.on_first:
                        if on and db > 0: od.remove(on[-1]); od = [on[-1]] + od
                        seq += [("one", 0, u) for u in on]; on = []
                    if on and db > 0:
                        od.remove(on[0]); od = [on[0]] + od if G % 2 == 0 else od + [on[0]]
                seq += [("pv", db, u) for u in od]
                od = od[::-1]
                if db % G == G - 1: seq += [("one", 0, u) for u in on]
        rev = {}
        for i, c in enumerate(seq):
            p_ = seq[i - 1]
            rev[c] = bool(cfg.rev and i and p_[0] == c[0] and c[0] != "one" and (p_[1] == c[1] or p_[2] == c[2]) and not rev[p_])
        nm = sum({"qk": 4, "pv": 2, "one": 1}[c[0]] for c in seq)
        beta = cfg.beta if len(uq) >= 3 else cfg.beta_small
        barpos = int(beta * nm)
        if not steady and s in cfg.betas: barpos = int(cfg.betas[s] * nm)
        vdone = set(); kdone = set(kdone0) if (s == 0 and not steady) else set(); bar_done = False
        Pw = vP + 32 * (s & 1); Pr = vP + 32 * ((s - 1) & 1)
        def vreads(db):
            if db in vdone or vperm_(s - 1): return
            vdone.add(db)
            for ks in range(2):
                for h in range(2):
                    d = vfrag(s - 1, db) + ks * 4 + h * 2
                    A(Op(("vr", s, db, ks, h), f"ds_read_b64_tr_b16 {at(d,2)}, v{vV} offset:{vslot(s-1)*VSTR + ks*1024 + h*512 + (db>>1)*64 + (db&1)*8}", "ds",
                         [f"Vok{s-1}"], ar(d, 2) + [f"Vr{s-1}_{db}_{ks}_{h}"]))
        def kreads(kb):
            if kb in kdone: return
            kdone.add(kb); kread1(s, t, kb)
        def barrier():
            rd = []; wr = []
            pubv, retv, nxt = [s], [s - 1], [s + 1]
            if vperm_(s + 1): retv = []; nxt = []
            if vperm_(s): pubv = []; retv = [s - 2, s - 1]
            if vperm_(s - 1): retv = []
            if not steady:
                retv = {1: [], 2: [0], 3: [1], 4: [2], 5: [3, 4], 34: []}.get(s, retv)
                if s >= 33:
                    if s not in cfg.tailpub: return
                    pubv = cfg.tailpub[s]
                    if s > 33: retv = []; nxt = []
                nxt = {0: [], 1: [], 2: [4], 3: [5], 4: [], 32: [33, 34, 35], 33: [37], 34: []}.get(s, nxt)
                if s == 32: wr.append("Kret67")
                nxt = [v for v in nxt if v < last and v not in vissued and not any(it == f"V{v}" for l in later.values() for it, _ in l)]
            for v in retv:
                if v < 0: continue
                if v == s - 1:
                    for db in range(8): vreads(db)
                rd += [f"Vr{v}_{db}_{ks}_{h}" for db in range(8) for ks in range(2) for h in range(2)]
                wr.append(f"Vret{v}")
            for v in pubv:
                assert steady or v in vissued, v
                rd += [f"Vd{v}_{i}" for i in range(4)]; wr.append(f"Vok{v}")
            if not steady and s + 1 <= 7 and s + 1 not in kpub:
                if s + 1 not in kscaled: kscale(s + 1, ((s - 1, "bar") if s >= 1 else (-1, 0))); kscaled.append(s + 1)
                kpub.add(s + 1)
                rd += [f"Kw{s+1}_{ds}" for ds in range(4)]; wr.append(f"Kok{s+1}")
            if not steady and s == 0 and " q1" in cfg.plan:
                rd += [f"Qar{ds}" for ds in range(4)]; wr.append("Qadead")
            if not steady and s == 1:
                rd += [f"Kr0_{kb}_{ds}" for kb in range(4) for ds in range(4)]; wr.append("K0dead")
                rd += ["Kr1_0", "Kr1_1"]
            if (steady or s >= cfg.split_from) and len(uq) >= cfg.split_min_u:
                ag = cfg.arr_gap if len(uq) >= 3 else cfg.arr_gap_small
                A(Op(("arr", s), f"ds_add_u32 v{vCnt}, v{vCone}", "dsw", rd, ["Carr"], cost=8, anchor=(s, "bar", -ag - cfg.ds_lat - 2)))
                A(Op(("exp", s), f"s_add_u32 s{sExp}, s{sExp}, 4", "salu", [f"s{sExp}"], [f"s{sExp}"]))
                A(Op(("pol", s), f"ds_read_b32 v{vPoll}, v{vCnt}", "ds", ["Carr~"], vr(vPoll), anchor=(s, "bar", -cfg.ds_lat - 2)))
                A(Op(("cmp", s), f"v_readfirstlane_b32 s{sPol}, v{vPoll}", "valu", vr(vPoll), [f"s{sPol}"], anchor=(s, "bar", -3)))
                A(Op(("sc", s), f"s_cmp_lt_u32 s{sPol}, s{sExp}", "bar", [f"s{sPol}", f"s{sExp}"], ["scc"], anchor=(s, "bar", -1)))
                A(Op(("bar", s), f"s_cbranch_scc1 L_spin{s if (not steady and (s < cfg.loop_from or s >= 32)) else 16 + s % 8}", "bar", ["scc"] + vr(vPoll) + [f"s{sExp}", f"s{sPol}"], wr, anchor=(s, "bar")))
            else:
                A(Op(("bar", s), "s_barrier", "bar", rd, wr, anchor=(s, "bar")))
            for v in nxt: vdma(v, None)
            for it, fr in later.get(s, []):
                if fr == "b": issue(it, (s, "bar"))
        todo_items = [(it, int(fr) / 10 ** len(fr)) for it, fr in later.get(s, []) if fr != "b"]
        mcount = 0
        for c in seq:
            if not bar_done and mcount >= barpos:
                barrier(); bar_done = True
            while todo_items and mcount >= todo_items[0][1] * nm:
                issue(todo_items.pop(0)[0], (s, "off", mcount))
            if c[0] == "qk":
                _, kb, u = c
                kreads(kb)
                if kb == 0 and li(s, u) == 0 and (steady or s - sg[u] >= 8):
                    qread(("qr", s, u), u, earliest=None if (steady or qk_on(s - 1, u)) else (s - 1, "frac", 0.75))
                    un = (u + 1) % 4; sn = s + (sg[un] - sg[u]) % 8
                    pend_q.append((("q", sn, un), not steady and sn - sg[un] >= 8 * NP))
                    if True:
                        k_, d_ = pend_q.pop(); qload(k_, dummy=d_)
                S = vS + 4 * (chain % 4); chain += 1
                for i, ds in enumerate((3, 2, 1, 0) if rev[c] else (0, 1, 2, 3)):
                    kf = kfrag(s, kb, ds); qf = aQ + u * 16 + ds * 4
                    A(Op(("qk", s, kb, u, ds, i), f"v_mfma_f32_16x16x32_bf16 {vt(S,4)}, {rt(kf,4)}, {at(qf,4)}, {cfg.cinit if i == 0 else vt(S,4)}", "mfma",
                         rr(kf, 4) + ar(qf, 4) + ([] if i == 0 else vr(S, 4)), vr(S, 4)))
                for r in range(4):
                    A(Op(("ex", s, kb, u, r), f"v_exp_f32 v{S+r}, v{S+r}", "trans", vr(S + r), vr(S + r)))
                pd = Pw + u * 8 + kb * 2
                for r in range(2):
                    tx = f"v_perm_b32 v{pd+r}, v{S+2*r+1}, v{S+2*r}, s{sPerm}" if cfg.trunc else f"v_cvt_pk_bf16_f32 v{pd+r}, v{S+2*r}, v{S+2*r+1}"
                    A(Op(("cv", s, kb, u, r), tx, "valu", vr(S + 2 * r, 2), vr(pd + r)))
                mcount += 4
            elif c[0] == "pv":
                _, db, u = c
                vreads(db)
                first = li(s - 1, u) == 0
                o = vOa + db * 16 + u * 4
                for i, ks in enumerate((1, 0) if rev[c] else (0, 1)):
                    vf = vfrag(s - 1, db) + ks * 4; pf = Pr + u * 8 + ks * 4
                    z = first and i == 0
                    A(Op(("pv", s, db, u, ks, i), f"v_mfma_f32_16x16x32_bf16 {vt(o,4)}, {at(vf,4)}, {vt(pf,4)}, {cfg.oinit if z else vt(o,4)}", "mfma",
                         ar(vf, 4) + vr(pf, 4) + ([] if z else vr(o, 4)), vr(o, 4)))
                mcount += 2
            else:
                _, _, u = c
                first = li(s - 1, u) == 0
                l = vL + 4 * u
                if first:
                    for r in range(2): A(Op(("lz", s, u, r), f"v_mov_b32 v{l+r}, 0", "valu", [], vr(l + r)))
                pf = Pr + u * 8
                A(Op(("on", s, u), f"v_smfmac_f32_16x16x64_bf16 {vt(l,4)}, {vt(vOne,4)}, {vt(pf,8)}, v{vIdx}", "mfma", vr(pf, 8) + vr(l, 2), vr(l, 4)))
                mcount += 1
        if not bar_done: barrier()
        for it, _ in todo_items: issue(it, (s, "off", mcount))
        if not steady and s == 31:
            qread(("qr", 32, 0), 0, dummy=True)
            qload(("q", 32 + sg[1], 1), dummy=True)
        if not steady and s == 7:
            A(Op(("vo2", 7), f"v_xor_b32 v{vO2}, 0x840, v{vO}", "valu", [], vr(vO2)))
            if cfg.full_until < 39: A(Op(("vo3", 7), f"v_cndmask_b32 v{vO3}, v{vO}, v{vO2}, vcc", "valu", vr(vO2) + ["junk"], vr(vO3)))
        for u in sorted(fin):
            l = vL + 4 * u; R = vR + 2 * (u & 1)
            DPP = "row_ror:8 row_mask:0xf bank_mask:0xf"
            pol = cfg.st_last if (not steady and s >= cfg.st_last_from) else cfg.st_pol
            A(Op(("la", s, u), f"v_add_f32 v{l}, v{l}, v{l+1}", "valu", vr(l, 2), vr(l)))
            A(Op(("rc", s, u), f"v_rcp_f32 v{R}, v{l}", "trans", vr(l), vr(R)))
            full = cfg.full_until > 0 if steady else s < cfg.full_until
            if full: A(Op(("r2", s, u), f"v_mov_b32_dpp v{R+1}, v{R} {DPP}", "valu", vr(R), vr(R + 1)))
            A(Op(("ck", s, u), f"v_max3_u32 v{vChk}, v{vChk}, v{l}, v{R}", "valu", vr(vChk) + vr(l) + vr(R), vr(vChk)))
            for db in range(8):
                o = vOa + db * 16 + u * 4
                for r in range(4):
                    if full and db & 2: A(Op(("mu", s, u, db, r), f"v_mul_f32_dpp v{o+r}, v{o+r}, v{R+1} {DPP}", "valu", vr(o + r) + vr(R + 1), vr(o + r)))
                    else: A(Op(("mu", s, u, db, r), f"v_mul_f32 v{o+r}, v{o+r}, v{R}", "valu", vr(o + r) + vr(R), vr(o + r)))
                if db & 1:
                    e = o - 16
                    A(Op(("oc", s, u, db, 3), f"v_cvt_pk_bf16_f32 v{o+3}, v{o+2}, v{o+3}", "valu", vr(o + 2, 2), vr(o + 3)))
                    A(Op(("oc", s, u, db, 2), f"v_cvt_pk_bf16_f32 v{o+2}, v{o}, v{o+1}", "valu", vr(o, 2), vr(o + 2)))
                    A(Op(("oc", s, u, db, 0), f"v_cvt_pk_bf16_f32 v{o}, v{e}, v{e+1}", "valu", vr(e, 2), vr(o)))
                    A(Op(("oc", s, u, db, 1), f"v_cvt_pk_bf16_f32 v{o+1}, v{e+2}, v{e+3}", "valu", vr(e + 2, 2), vr(o + 1)))
                    if not full:
                        A(Op(("st", s, u, db), f"buffer_store_dwordx4 {vt(o,4)}, v{vO3}, s[{sO_}:{sO_+3}], s{sOo} offen offset:{(db-1)*32} {pol}".rstrip(), "store",
                             vr(o, 4) + [f"s{sOo}"] + vr(vO3), [], cost=20))
                if full and db & 3 == 3:
                    a = o - 32; x = o - 16
                    for r in range(4):
                        A(Op(("sx", s, u, db, r), f"v_cndmask_b32 v{x+r}, v{a+r}, v{o+r}, vcc", "valu", vr(a + r) + vr(o + r), vr(x + r)))
                    A(Op(("st", s, u, db - 1), f"buffer_store_dwordx4 {vt(x,4)}, v{vO}, s[{sO_}:{sO_+3}], s{sOo} offen offset:{(db>>2)*128} {pol}".rstrip(), "store",
                         vr(x, 4) + [f"s{sOo}"], [], cost=20))
                    for r in range(4):
                        A(Op(("sy", s, u, db, r), f"v_cndmask_b32 v{o+r}, v{o+r}, v{a+r}, vcc", "valu", vr(a + r) + vr(o + r), vr(o + r)))
                    A(Op(("st", s, u, db), f"buffer_store_dwordx4 {vt(o,4)}, v{vO2}, s[{sO_}:{sO_+3}], s{sOo} offen offset:{(db>>2)*128} {pol}".rstrip(), "store",
                         vr(o, 4) + [f"s{sOo}"] + vr(vO2), [], cost=20))
            if not steady and 32 <= s < last:
                for x in prog:
                    if x.key[:3] == ("st", s, u): x.maxdl = (s + 1, "frac", (x.key[3] + 1) / 8 * cfg.tail_dl)
            A(Op(("oinc", s, u), f"s_add_u32 s{sOo}, s{sOo}, 4096", "salu", [f"s{sOo}"], [f"s{sOo}"]))
    return prog

def link(cfg, prog):
    lastw = {}; readers = {}
    m = 0
    for x in prog:
        if x.kind == "mfma": x.m = m; m += 1
    for x in prog:
        e = {}
        def add(p, typ):
            if p is x: return
            soft = hard = 0
            if p.kind == "mfma":
                if x.kind == "mfma": return
                if typ in ("raw", "waw"): soft = cfg.mv_lat + (2 if p.key[0] == "on" else 0)
                elif x.kind in ("valu", "trans"): soft = 1
            elif x.kind == "mfma":
                hard = soft = 1
                if typ == "raw":
                    soft = cfg.ds_lat if p.kind == "ds" else (1 if p.kind == "load" else 2)
                elif p.kind == "store": soft = 2
            elif x.kind == "bar" or x.key[0] == "arr":
                hard = 1; soft = {"ds": cfg.ds_lat, "dsw": cfg.ds_lat, "dma": 2}.get(p.kind, 1)
            elif p.kind == "bar":
                soft = hard = 0
            elif p.kind == "salu":
                soft = 2; hard = 1 if x.kind != "salu" else 1
            elif x.kind == "salu":
                soft = hard = 1
            elif typ == "raw":
                if p.kind == "trans": soft = 1
                elif p.kind == "ds" and x.kind == "dma": soft = cfg.ds_lat
                elif p.kind == "valu" and x.kind in ("store", "dsw", "ds"): soft = 1
                elif p.kind == "valu" and "permlane" in x.text: soft = 2
                if "_dpp" in x.text: soft = 2
            else:
                if p.kind in ("valu", "trans") and x.kind in ("load", "ds", "dma"): soft = 1
                if p.kind in ("store", "dsw"): soft = 1
            o = e.get(id(p))
            e[id(p)] = (p, max(soft, o[1]) if o else soft, max(hard, o[2]) if o else hard)
        for r in x.reads:
            if r in lastw: add(lastw[r], "raw"); x.prod[r] = lastw[r].key
        for r in x.writes:
            if r in lastw: add(lastw[r], "waw")
            for p in readers.get(r, []): add(p, "war")
        for r in x.reads: readers.setdefault(r, []).append(x)
        for r in x.writes: lastw[r] = x; readers[r] = []
        x.preds = list(e.values())
        for p, so, ha in x.preds: p.succs.append((x, so, ha))
    return m

def semantic_check(cfg, prog):
    sg = cfg.sigma
    nq = 0; qblk = {}; nst = 0
    for x in prog:
        k = x.key; P = [x.prod.get(r) for r in x.reads]
        def exp(idx, f):
            for i in idx: assert P[i] is not None and f(P[i]), ("semantic", k, x.reads[i], P[i])
        if x.dummy: continue
        if k[0] == "ksc" and k[4] in (0, 1): exp([0], lambda p: p == ("kld", k[1], k[2]))
        if k[0] == "ksc" and k[4] in (2, 3): exp([0], lambda p: p == k[:4] + (k[4] - 2,))
        if k[0] == "ksc" and k[4] == 4: exp([0], lambda p: p == k[:4] + (2,)); exp([1], lambda p: p == k[:4] + (3,))
        if k[0] == "kw": exp(range(4), lambda p: p[:3] == ("ksc", k[1], k[2]) and p[4] == 4); exp(range(5, len(P)), lambda p: p[0] == "bar")
        if k[0] in ("bar", "arr"): exp(range(len(P)), lambda p: True)
        if k[0] == "kr" and k[1] < 8: exp([0], lambda p: p[0] == "bar")
        if k[0] == "vr": exp([0], lambda p: p[0] == "bar")
        if k[0] == "dma": exp([0], lambda p: p == ("m0", k[1])); exp(range(1, len(P)), lambda p: p[0] == "bar")
        if k[0] in ("q", "q0") and k[-1] == "inc": qblk[k[:-1]] = nq; nq += 1
        if k[0] in ("q", "q0") and isinstance(k[-1], int): exp([1], lambda p: p == k[:-1] + (f"m{k[-1]}",))
        if k[0] in ("qr", "qr0"):
            u = k[-2]; n = 0 if k[0] == "qr0" else (k[1] - sg[u]) // 8
            exp(range(4), lambda p: qblk[p[:-1]] == 4 * n + u)
        if k[0] == "qk":
            _, s, kb, u, ds, ii = k; n, i_ = blockpos(cfg, s, u); s0 = s - i_
            exp(range(4), lambda p: p[0] == "kr" and p[1] % 8 == s % 8 and p[2:] == (kb, ds))
            exp(range(4, 8), lambda p: p == (("qr0", u, ds) if n == 0 else ("qr", s0, u, ds)))
            exp(range(8, len(P)), lambda p: p[:4] == k[:4] and p[5] == ii - 1); assert (len(P) > 8) == (ii > 0)
        if k[0] == "ex": exp([0], lambda p: p[:4] == ("qk",) + k[1:4] and p[5] == 3)
        if k[0] == "cv": exp([0, 1], lambda p: p[:4] == ("ex",) + k[1:4])
        if k[0] == "pv":
            _, s, db, u, ks, ii = k
            exp(range(4), lambda p: p[0] == "vr" and p[1] % 8 == s % 8 and p[2:4] == (db, ks))
            exp(range(4, 8), lambda p: p[0] == "cv" and p[1] == s - 1 and p[2] >> 1 == ks and p[3] == u)
            exp(range(8, len(P)), lambda p: p == ("pv", s, db, u, 1 - ks, 0) if ii else (p[:4] == ("pv", s - 1, db, u) and p[5] == 1))
            assert (len(P) > 8) == (ii > 0 or blockpos(cfg, s - 1, u)[1] > 0)
        if k[0] == "on":
            exp(range(8), lambda p: p[0] == "cv" and p[1] == k[1] - 1 and p[3] == k[2])
            exp([8, 9], lambda p: p[:3] == ("lz", k[1], k[2]) or p == ("on", k[1] - 1, k[2]))
        if k[0] == "la": exp([0, 1], lambda p: p == ("on", k[1], k[2]))
        if k[0] == "mu": exp([0], lambda p: p[:4] == ("pv", k[1], k[3], k[2]) and p[5] == 1); exp([1], lambda p: p[0] in ("rc", "r2") and p[1:] == k[1:3])
        if k[0] == "oc": exp([0, 1], lambda p: p[:3] == ("mu",) + k[1:3])
        if k[0] == "oinc":
            assert nst == 4 * blockpos(cfg, k[1] - 1, k[2])[0] + k[2], k
            nst += 1
    assert nst == 16

def step_of(x): return x.key[1]

def schedule(cfg, prog, nm, pins=None, lo=None, hi=None):
    pins = pins or {}; lo = lo or {}; hi = hi or {}
    start = {}; barw = {}
    cur = -1
    for x in prog:
        if x.kind == "mfma":
            cur = x.m; start.setdefault(x.key[1], x.m)
        elif x.key[0] == "bar": barw[x.key[1]] = cur
    def W(a):
        if a[0] == -1: return -1
        if a[1] == "bar": return barw.get(a[0], nm - 1) + (a[2] if len(a) > 2 else 0)
        if a[1] == "frac": return start[a[0]] - 1 + int(a[2] * (start.get(a[0] + 1, nm) - start[a[0]]))
        if a[1] == "off": return max(0, start[a[0]] - 1 + a[2])
        return start[a[0]] - 1
    fill = [x for x in prog if x.kind != "mfma"]
    for x in prog:
        if x.kind == "mfma": x.win = x.m
    for i, x in enumerate(prog): x.idx = i
    for x in reversed(fill):
        if x.key in pins: x.dls = x.dlh = pins[x.key][0]; continue
        if x.anchor: x.dls = x.dlh = W(x.anchor); continue
        ds = dh = nm - 1
        for y, so, ha in x.succs:
            if y.dummy and y.key not in pins: continue
            if y.kind == "mfma": ds = min(ds, y.m - so); dh = min(dh, y.m - ha)
            else: ds = min(ds, y.dls - so); dh = min(dh, y.dlh - ha)
        if x.key in hi: ds = min(ds, hi[x.key]); dh = min(dh, hi[x.key])
        if x.maxdl: ds = min(ds, W(x.maxdl)); dh = min(dh, W(x.maxdl))
        x.dls, x.dlh = ds, max(dh, -1)
    wins = {w: [] for w in range(-1, nm)}
    for x in fill:
        x.win = None
        x.lo = max(W(x.earliest) if x.earliest else -1, lo.get(x.key, -1))
        if x.anchor: x.lo = x.dlh
    pinned_by_win = {}
    for x in fill:
        if x.key in pins: pinned_by_win.setdefault(pins[x.key][0], []).append(x)
    todo = [x for x in fill if x.key not in pins and not x.dummy]
    todo.sort(key=lambda x: x.idx)
    credit = [0]
    bucket = [0]
    def nbytes(x):
        if x.kind in ("salu", "bar"): return 4
        if x.kind in ("valu", "trans"):
            return 8 if ("_dpp" in x.text or x.text.split()[0] in ("v_cvt_pk_bf16_f32", "v_perm_b32", "v_max3_u32") or "0x" in x.text) else 4
        return 8
    mfl = [x for x in prog if x.kind == "mfma"]
    def ready(x, w, soft):
        if w < x.lo: return False
        for p, so, ha in x.preds:
            if p.dummy and p.key not in pins: continue
            if p.win is None: return False
            lat = ha
            if soft and (p.kind not in ("load", "dma", "ds", "dsw") or x.kind == "dma"): lat = so
            if p.kind in ("store", "dsw") and soft: lat = max(lat, min(so, 1))
            if w == -1 or w == nm - 1: lat = 0
            if w < p.win + lat: return False
        return True
    for w in range(-1, nm):
        if w in pinned_by_win:
            for x in sorted(pinned_by_win[w], key=lambda x: pins[x.key][1]):
                x.win = w; wins[w].append(x)
        if pins and cfg._loop[0] <= w < cfg._loop[1]: continue
        cap = 8 if w >= 0 else 0
        if w >= 0 and mfl[w].key[0] == "on": cap = 4
        cap0 = cap
        rate = 8
        if cfg.smooth and pins and 0 <= w < nm - 1:
            acc = 0
            for x in sorted((x for x in todo[:900] if x.dls <= w + 120), key=lambda x: x.dls):
                acc += min(x.cost, 8)
                rate = max(rate, acc / (max(x.dls, w) - w + 1))
            credit[0] = credit[0] + rate - 8 if rate > 8.2 else 0
            credit[0] = min(credit[0], rate)
            extra = int(credit[0] // 4) * 4
            cap += extra
        used = 0
        cur = wins[w]
        def place(x):
            nonlocal used
            x.win = w; cur.append(x); used += min(x.cost, 8); todo.remove(x)
        while True:
            cand = [x for x in todo[:700] if ready(x, w, True) or (w >= x.dlh and ready(x, w, False))]
            if not cand: break
            z = [x for x in cand if x.kind in ("salu", "bar")]
            if z:
                place(z[0]); continue
            forced = [x for x in cand if x.dls <= w]
            if w == -1 or w == nm - 1:
                if not forced: break
                place(min(forced, key=lambda x: x.idx)); continue
            hasvalu_dep = lambda x: x.kind in ("ds", "dsw", "load", "dma", "store") and any(p.win == w and p.kind in ("valu", "trans") for p, _, _ in x.preds)
            hard_forced = forced
            if hard_forced:
                place(min(hard_forced, key=lambda x: (x.dls, x.idx))); continue
            if used >= cap: break
            nb = lambda x: 1024 if "b128" in x.text else 512
            dsb = sum(nb(x) for x in cur if x.kind == "ds")
            tight = rate > 8.2
            recent = (not tight) and any(y.kind == "ds" for k in range(1, cfg.ds_gap) for y in wins.get(w - k, []))
            vmk = ("load", "dma", "store")
            vgap = max(1, int(cfg.vm_gap * 16 / (8 + rate)))
            recent_vm = any(y.kind in vmk for k in range(0, vgap) for y in wins.get(w - k, []))
            sgap = max(1, int(cfg.st_gap * 16 / (8 + rate)))
            if any(y.kind == "store" for k in range(0, sgap) for y in wins.get(w - k, [])):
                cand = [x for x in cand if x.kind != "store" and not (cfg.st_gap_all and x.kind in vmk)]
            dcap = cfg.ds_cap * (8 + cap) // 16
            if cfg.st_block and any(-4 * cfg.vm_gap <= b - w <= cfg.st_block for b in barw.values()):
                cand = [x for x in cand if x.kind != "store"]
            cand = [x for x in cand if (x.kind != "ds" or (not recent and dsb + nb(x) <= dcap)) and not (x.kind in vmk and recent_vm and not (getattr(x, "nogap", False) and used == 0))]
            if not cand: break
            cand.sort(key=lambda x: (-99999 if (x.kind in ("load", "dma", "dsw", "store") or (cfg.qr_asap and x.key[0] == "qr")) else x.dls, x.idx))
            if cfg.fetch_thr is not None and not tight and bucket[0] >= cfg.fetch_thr and cap - used >= 8 and cand[0].dls > w + cfg.fetch_slack:
                tr = [x for x in cand if x.kind == "trans"]
                if tr: place(tr[0]); continue
            if cap - used >= 8:
                top = cand[0]
                if top.cost >= 8: place(top); continue
                small = [x for x in cand if x.cost == 4]
                big = [x for x in cand if x.cost >= 8]
                fits = lambda a, b: not (a.kind == "ds" and b.kind == "ds" and dsb + nb(a) + nb(b) > dcap)
                partner = any(fits(top, y) for y in small if y is not top) or any(y.cost == 4 and so == 0 and y.win is None and y.kind == "valu" and all(p.win is not None or p is top for p, _, _ in y.preds) for y, so, ha in top.succs)
                if partner or not big or (cap - used) % 8: place(top)
                else: place(big[0])
                continue
            small = [x for x in cand if x.cost == 4]
            if not small: break
            place(small[0])
        bts = 8 + sum(nbytes(x) for x in cur if x.kind not in ("salu", "bar")) + (4 if any(x.kind not in ("valu", "trans") for x in cur) else 2)
        bucket[0] = max(0, bucket[0] + bts - 22 * max(16, 8 + sum(x.cost for x in cur)) // 16)
        if w >= 0: credit[0] -= max(0, min(used, cap) - cap0)
        if w not in (-1, nm - 1):
            order = {"bar": 0, "salu": 0, "dma": 1, "load": 1, "store": 1, "dsw": 1, "ds": 1, "valu": 2, "trans": 2}
            lvl = {}
            for x in cur:
                l = order[x.kind]
                for p, _, _ in x.preds:
                    if p.win == w and p.kind != "mfma": l = max(l, lvl[id(p)])
                lvl[id(x)] = l
            cur.sort(key=lambda x: lvl[id(x)])
    assert not todo, [x.key for x in todo[:10]]
    for w, c in wins.items():
        for i, x in enumerate(c): x.pos = i
    return wins, start

def norm(key, d):
    return (key[0], key[1] + d) + tuple(key[2:])

class Ins:
    def __init__(s, text, op=None, kind=None):
        s.text, s.op, s.kind = text, op, kind or (op.kind if op else "salu")
        s.vm = None; s.lg = None

def generate(cfg):
    last = 32 + max(cfg.sigma)
    cfg.q_ahead = getattr(cfg, "q_ahead", 2)
    cfg.code_pf_n = getattr(cfg, "code_pf_n", 2)
    sp = build(cfg, 0, 56, True); nms = link(cfg, sp)
    swins, sstart = schedule(cfg, sp, nms)
    per = sstart[8] - sstart[0]
    ok = None
    for b in (16, 24, 32):
        same = all([x.text for x in swins[sstart[b] + i]] == [x.text for x in swins[sstart[b + 8] + i]] and
                   [norm(x.key, 8) for x in swins[sstart[b] + i]] == [x.key for x in swins[sstart[b + 8] + i]] for i in range(per))
        if same: ok = b; break
    assert ok is not None, "steady state not periodic"
    rp = build(cfg, 0, last + 1, False)
    E_ = cfg.loop_from
    off0 = sstart[ok + E_ - 8] - sstart[ok]
    inloop = {norm(x.key, 8 + 8 * it - ok) for it in range(3) for i in range(per) for x in swins[sstart[ok] + i] if it or i >= off0}
    rp = [x for x in rp if not x.dummy or x.key in inloop]
    nm = link(cfg, rp)
    semantic_check(cfg, rp)
    rstart = {}
    for x in rp:
        if x.kind == "mfma": rstart.setdefault(x.key[1], x.m)
    L0, L1 = rstart[E_], rstart[32]
    assert L1 - L0 == 3 * per - off0
    XP = L0 + per - off0
    cfg._loop = (L0, L1)
    pins = {}
    for it in range(3):
        for i in range(per):
            for x in swins[sstart[ok] + i]:
                if it or i >= off0: pins[norm(x.key, 8 + 8 * it - ok)] = (L0 - off0 + it * per + i, x.pos)
    keys = {x.key: x for x in rp}
    assert len(keys) == len(rp)
    missing = [k for k in pins if k not in keys]
    assert not missing, missing[:10]
    lo = {}; hi = {}
    mid = [x for x in rp if x.key[:2] == ("qk", 20)][0]
    midx = rp.index(mid)
    for i, x in enumerate(rp):
        if x.kind == "mfma" or x.key in pins: continue
        if i < midx: hi[x.key] = L0 - 1
        else: lo[x.key] = L1
    wins, start = schedule(cfg, rp, nm, pins, lo, hi)
    mf = [x for x in rp if x.kind == "mfma"]
    def stat(w):
        return L0 + (w - L0) % per if L0 <= w < L1 else w
    free = {}
    pre = {}
    for w in range(-1, nm):
        if stat(w) == w:
            free[w] = []
            if w not in (-1, nm - 1):
                for x in wins[w]:
                    if x.kind == "bar": free[w].append(Ins(x.text, x))
    def body(w):
        if w in (-1, nm - 1): return wins[w]
        return [x for x in wins[w] if x.kind not in ("salu", "bar")]
    def walk(fix):
        q = {"vm": [], "lgkm": []}
        pend = {}
        hist = {}
        changed = False
        def dowait(ins):
            for c, n in (("vm", ins.vm), ("lgkm", ins.lg)):
                if n is None: continue
                while len(q[c]) > n:
                    d = q[c].pop(0)
                    for r in d.writes:
                        if pend.get(r) is d: del pend[r]
        def need(x):
            n = {}
            for r in x.reads + x.writes:
                p = pend.get(r)
                if p is not None and not (r in x.writes and r not in x.reads and p.cnt == x.cnt):
                    n[p.cnt] = p if (p.cnt not in n or q[p.cnt].index(p) > q[p.cnt].index(n[p.cnt])) else n[p.cnt]
            return n
        def issue(x):
            if x.cnt:
                q[x.cnt].append(x)
                for r in x.writes:
                    if r != "stord": pend[r] = x
        def setw(ins, c, n):
            n = min(n, 62 if c == "vm" else 14)
            if c == "vm": ins.vm = n if ins.vm is None else min(ins.vm, n)
            else: ins.lg = n if ins.lg is None else min(ins.lg, n)
        def handle(x, w, pos, cands):
            nonlocal changed
            n = need(x)
            if not n: return
            assert fix, ("unwaited", x.key, {c: p.key for c, p in n.items()})
            changed = True
            for c, p in n.items():
                done = False
                for cw in cands:
                    if cw < 0 or cw == nm - 1 or cw not in hist: continue
                    snap = hist[cw][c]
                    if p not in snap: continue
                    fl = free[stat(cw)]
                    wi = [i for i in fl if i.kind == "wait"]
                    if not wi and fl and cw != cands[-1]: continue
                    if not wi:
                        wi = [Ins("", None, "wait")]; fl.insert(0, wi[0])
                    setw(wi[0], c, len(snap) - 1 - snap.index(p)); done = True; break
                if not done:
                    ins = pre.setdefault((stat(w), pos), Ins("", None, "wait"))
                    setw(ins, c, len(q[c]) - 1 - q[c].index(p))
                while p in q[c]:
                    d = q[c].pop(0)
                    for r in d.writes:
                        if pend.get(r) is d: del pend[r]
        for w in range(-1, nm):
            if w >= 0:
                if (stat(w), "m") in pre: dowait(pre[(stat(w), "m")])
                handle(mf[w], w, "m", [w - 1, w - 2])
            hist[w] = {c: list(v) for c, v in q.items()}
            hist.pop(w - 4, None)
            for ins in list(free[stat(w)]):
                if ins.kind == "wait": dowait(ins)
                elif ins.kind == "bar":
                    x = [y for y in wins[w] if y.kind == "bar"][0]
                    handle(x, w, "b", [w - 1, w - 2, w])
            for pos, x in enumerate(body(w)):
                if (stat(w), pos) in pre: dowait(pre[(stat(w), pos)])
                handle(x, w, pos, [w, w - 1])
                issue(x)
        return changed
    for _ in range(10):
        if not walk(True): break
    walk(False)
    for w in range(0, nm - 1):
        if stat(w) != w: continue
        for x in wins[w]:
            if x.kind != "salu": continue
            hiw = min([y.win - (1 if "m0" in x.writes or y.kind == "salu" else 0) for y, _, _ in x.succs if y.win is not None] + [w + 40, nm - 2])
            if L0 <= w < XP: hiw = min(hiw, XP - 3)
            elif XP <= w < L0 + per: hiw = min(hiw, L0 + per - 1)
            elif w < L0: hiw = min(hiw, L0 - 1)
            hiw = max(hiw, w)
            c = [k for k in range(w, hiw + 1) if not free[k]]
            c2 = [k for k in c if body(k) and body(k)[0].kind in ("ds", "dma", "load", "store", "dsw")]
            k = c2[0] if c2 else (c[0] if c else w)
            if any(i.text.startswith("s_cmp") for i in free[k]): free[k].insert(0, Ins(x.text, x))
            else: free[k].append(Ins(x.text, x))
    k = [k for k in range(XP - 2, XP) if not free[k]]
    k = k[0] if k else XP - 1
    if any(i.text.startswith("s_add") for kk in range(k + 1, XP) for i in free[kk]): k = XP - 1
    free[k].append(Ins(f"s_sub_u32 s{sCnt}, s{sCnt}, 1"))
    if cfg.nop_ds:
        for w in range(0, nm - 1):
            if stat(w) == w and not free[w] and body(w) and body(w)[0].kind in ("ds", "dma", "load", "store", "dsw"):
                free[w].append(Ins("s_nop 0", None, "nop"))
    def wtext(i):
        t = "s_waitcnt"
        if i.vm is not None: t += f" vmcnt({i.vm})"
        if i.lg is not None: t += f" lgkmcnt({i.lg})"
        return t
    code = {}
    for w in range(-1, nm):
        if stat(w) != w: continue
        l = []
        if w >= 0:
            if (w, "m") in pre: l.append(pre[(w, "m")])
            l.append(Ins(mf[w].text, mf[w]))
        l += free[w]
        for pos, x in enumerate(body(w)):
            if (w, pos) in pre: l.append(pre[(w, pos)])
            l.append(Ins(x.text, x))
        for i in l:
            if i.kind == "wait": i.text = wtext(i)
        code[w] = l
    def wcost(l, head=False):
        t = 0; base = 0; lastvalu = -99; blk = 8
        for i in l:
            if i.kind == "mfma": base = t; t += 4; blk = 12 if "smfmac" in i.text else 8; continue
            if i.kind in ("salu", "wait", "bar", "nop"): t += 4; continue
            if i.kind == "nopx": t += 4 * (int(i.text.split()[1]) + 1); continue
            if not head: t = max(t, base + blk)
            if i.kind in ("valu", "trans"): t += i.op.cost; lastvalu = t
            else:
                t = max(t, lastvalu + 8) + i.op.cost
        return t if head else max(t, base + 16)
    def hazards(fix):
        seq = []
        changed = False
        for w in range(-1, nm):
            l = code[stat(w)]
            j = 0
            while j < len(l):
                i = l[j]; x = i.op
                needn = 0
                if x is not None and x.kind not in ("salu", "bar"):
                    dist = 0
                    for p, st, pwin in reversed(seq):
                        y = p.op
                        if y is not None:
                            req = 0
                            raw = set(y.writes) & set(x.reads); waw = set(y.writes) & set(x.writes); war = set(y.reads) & set(x.writes)
                            if y.kind == "mfma":
                                if x.kind == "mfma":
                                    if set(y.writes) & set(x.reads[:8]): req = 8
                                elif raw or waw: req = 12 if y.key[0] == "on" else 8
                                elif war and x.kind in ("valu", "trans") and set(y.writes) & set(x.writes): req = 3
                            elif y.kind in ("valu", "trans"):
                                if raw and x.kind == "mfma": req = 2
                                if raw and ("permlane" in x.text or "_dpp" in x.text): req = 2
                                if raw and y.kind == "trans" and x.kind != "trans": req = max(req, 1)
                            elif y.kind in ("store", "dsw") and war and y.cost == 20: req = 2
                            elif y.kind == "salu" and "m0" in y.writes and x.kind == "dma": req = 1
                            if req - dist > needn: needn = req - dist; pw = pwin
                        dist += st
                        if dist >= 12: break
                if needn > 0:
                    assert fix, ("hazard", x.key)
                    for k in range(w, pw - 1, -1):
                        if k < 0: break
                        lk = code[stat(k)]
                        mi = [n for n, z in enumerate(lk) if z.kind == "mfma"][0]
                        places = []
                        if k > pw and (k < w or j > mi): places.append(mi + 1)
                        if k < w: places.append(len(lk))
                        ok_ = False
                        for pl in places:
                            tr = lk[:pl] + [Ins("s_nop 0", None, "nopx")] + lk[pl:]
                            if wcost(tr) == wcost(lk): lk[:] = tr; ok_ = True; break
                        if ok_: return True
                    l.insert(j, Ins(f"s_nop {needn-1}", None, "nopx")); changed = True
                    continue
                st = int(i.text.split()[1]) + 1 if i.text.startswith("s_nop") else 1
                seq.append((i, st, w)); seq = seq[-14:]
                j += 1
        return changed
    while hazards(True): pass
    lastw = {}; seen = set()
    for w in range(-1, nm):
        it = (w - L0) // per if L0 <= w < L1 else 0
        for i in code[stat(w)]:
            if i.op is None: continue
            x = keys[norm(i.op.key, 8 * it)]
            assert x.text == i.text, (x.text, i.text)
            assert x.key not in seen; seen.add(x.key)
            if not x.dummy:
                for r in x.reads:
                    assert lastw.get(r) == x.prod.get(r), ("dataflow", x.key, r, lastw.get(r), x.prod.get(r))
            for r in x.writes: lastw[r] = x.key
    assert all(x.key in seen or x.dummy for x in rp), [x.key for x in rp if x.key not in seen and not x.dummy][:5]
    est = {}
    for s in range(0, last + 1):
        e = rstart.get(s + 1, nm)
        est[s] = (sum(wcost(code[stat(w)]) for w in range(rstart[s], e)), (e - rstart[s]) * 16)
    cfg.est = est; cfg.est_head = wcost(code[-1], True)
    out = []
    cfg.spins = []
    E = out.append
    stamp_at = getattr(cfg, "stamp_steps", [])
    inv = {v: k for k, v in rstart.items()}
    for w in range(-1, nm):
        if stat(w) != w: continue
        if w == L0:
            if cfg.stamps and 7.9 in stamp_at:
                j = stamp_at.index(7.9); E(f"    s_memrealtime s[{64+2*j}:{65+2*j}]")
            E("L_loop:")
        if w in inv:
            E(f"; ---- step {inv[w]} ----")
            if cfg.jitter:
                E(f"    s_cmp_lg_u32 s{sWave}, {(inv[w] * cfg.jitter[1]) & 3}\n    s_cbranch_scc1 L_j{inv[w]}\n    s_sleep {cfg.jitter[0]}\nL_j{inv[w]}:")
            if cfg.stamps and inv[w] in stamp_at:
                j = stamp_at.index(inv[w]); E(f"    s_memrealtime s[{64+2*j}:{65+2*j}]")
        for i in code[w]:
            if i.op is not None and i.op.key[0] in cfg.kill and (L0 if cfg.kill_from is None else cfg.kill_from) <= w: E("    s_nop 0")
            else: E("    " + i.text)
            if cfg.pad and i.kind == "mfma" and L0 <= w < L1 and w % cfg.pad == 0: E("    s_nop 4")
            if i.text.startswith("s_cbranch_scc1 L_spin"):
                n = i.text.split("L_spin")[1]; E(f"L_back{n}:"); cfg.spins.append(n)
        if off0 == 0:
            if w == L0 + per - 1: E("    s_cbranch_scc0 L_loop")
        else:
            if w == XP - 1: E("    s_cbranch_scc1 L_tail")
            if w == L0 + per - 1: E("    s_branch L_loop"); E("L_tail:")
    lastscc = None
    for l in out:
        t = l.strip()
        if t.startswith(("s_add", "s_sub", "s_cmp", "s_and", "s_lsh", "s_bfe", "s_or", "s_xor", "s_not")): lastscc = t
        if t.startswith("s_cbranch_scc1 L_spin"): assert lastscc.startswith("s_cmp_lt_u32"), lastscc
        if t.startswith(("s_cbranch_scc0 L_loop", "s_cbranch_scc1 L_tail")): assert lastscc.startswith(f"s_sub_u32 s{sCnt}"), lastscc
    return "\n".join(out)

def fbits(x): return struct.unpack("<I", struct.pack("<f", x))[0]

def head(cfg):
    T = vS
    h = f"""    s_load_dwordx4 s[4:7], s[0:1], 0          ; q, k
    s_load_dwordx4 s[8:11], s[0:1], 16        ; v, out
"""
    if cfg.x8: h = "    s_load_dwordx8 s[4:11], s[0:1], 0         ; q, k, v, out\n"
    if cfg.stamps: h += f"    s_load_dwordx2 s[56:57], s[0:1], {32 if cfg.stamps in ('dbg', 'skew') else 40}\n    s_memrealtime s[60:61]\n"
    h += f"""    v_lshrrev_b32 v{T}, 6, v0
    v_and_b32 v{T+4}, 63, v0                  ; lane
    v_readfirstlane_b32 s{sWave}, v{T}
    s_cmp_ge_u32 s2, 256
    s_cbranch_scc1 L_end
    v_lshlrev_b32 v{vKl}, 4, v{T+4}           ; lane*16 : source offset of every K, Q and V load
    s_and_b32 s{sTmp}, s2, 7
    s_lshr_b32 s{sTmp+1}, s2, 3
    s_lshl_b32 s{sTmp}, s{sTmp}, 5
    s_add_u32 s{sTmp}, s{sTmp}, s{sTmp+1}
    s_lshl2_add_u32 s{sTmp+2}, s{sTmp}, s{sWave}
    s_lshl_b32 s{sTmp+2}, s{sTmp+2}, 16       ; q/o byte offset of this wave
    s_lshr_b32 s{sTmp}, s{sTmp}, 2
    s_lshl_b32 s{sTmp}, s{sTmp}, 17           ; k/v byte offset of the group
    s_lshl_b32 s{sMq}, s{sWave}, 12           ; wave*4096
    s_add_u32 s{sTmp+3}, s{sTmp}, s{sMq}
    s_sub_u32 s{sK_+2}, 0x20000, s{sMq}
    s_mov_b32 s{sK_+3}, 0x20000
    s_mov_b32 s{sQ_+3}, s{sK_+3}
    s_mov_b32 s{sQ_+2}, 0x10000
"""
    if cfg.rot:
        h += f"""    s_bfe_u32 s{sTmp+4}, s2, 0x20003
    s_mul_i32 s{sTile}, s{sTmp+4}, {cfg.rot*16384}
    s_and_b32 s{sTile}, s{sTile}, 0x1ffff
    s_add_u32 s{sTile+1}, s{sTile}, 16384
    s_and_b32 s{sTile+1}, s{sTile+1}, 0x1ffff
"""
    elif cfg.xor:
        h += f"""    s_lshl_b32 s{sTile}, s2, {11 + cfg.xor[1]}
    s_and_b32 s{sTile}, s{sTile}, {cfg.xor[0] << 14:#x}
    s_xor_b32 s{sTile+1}, s{sTile}, 0x4000
"""
    else: h += f"    s_mov_b32 s{sTile}, 0\n    s_movk_i32 s{sTile+1}, 0x4000\n"
    h += f"""    s_mov_b32 s{sQo}, 0
    s_mul_i32 s{sMqs}, s{sWave}, {QW}
    s_add_u32 s{sMqs+1}, s{sMqs}, 32
    s_add_u32 s{sMqs+2}, s{sMqs}, 64
    s_add_u32 s{sMqs+3}, s{sMqs}, 96
{head2(cfg).split("@CPF")[0] + f"    global_load_dword v{vJ}, v[{T+14}:{T+15}], off" if cfg.early_pf else ""}
    s_waitcnt lgkmcnt(0)
    s_add_u32 s{sK_}, s6, s{sTmp+3}
    s_addc_u32 s{sK_+1}, s7, 0
    s_add_u32 s{sQ_}, s4, s{sTmp+2}
    s_addc_u32 s{sQ_+1}, s5, 0
"""
    if cfg.stamps: h += "    s_memrealtime s[62:63]\n"
    return h

def head2(cfg):
    c = math.log2(math.e) / math.sqrt(128.0)
    T = vS
    h = f"""    ; code prefetch into L2: 16 lines per wave, 8 KiB per workgroup
    s_getpc_b64 s[{sC_}:{sC_+1}]
L_pc:
    s_mov_b32 s{sC_+2}, L_slow - L_pc
    s_bfe_u32 s{sTmp+1}, s2, 0x30003
    s_lshl2_add_u32 s{sTmp+1}, s{sTmp+1}, s{sWave}
    s_lshl_b32 s{sTmp+1}, s{sTmp+1}, 11
    v_lshl_add_u32 v{vJ}, v{T+4}, 5, s{sTmp+1}
    v_min_u32 v{vJ}, s{sC_+2}, v{vJ}          ; stay inside the code
    v_mov_b32 v{T+15}, s{sC_+1}
    v_add_co_u32 v{T+14}, vcc, s{sC_}, v{vJ}
    s_nop 1
    v_addc_co_u32 v{T+15}, vcc, 0, v{T+15}, vcc
@CPF
    s_add_u32 s{sV_}, s8, s{sTmp+3}
    s_addc_u32 s{sV_+1}, s9, 0
    s_sub_u32 s{sC_}, s{sV_}, 8               ; second V descriptor: its loads land 8 bytes further in LDS
    s_subb_u32 s{sC_+1}, s{sV_+1}, 0
    s_add_u32 s{sC_+2}, s{sK_+2}, 8
    s_mov_b32 s{sC_+3}, 0x20000
    s_add_u32 s{sO_}, s10, s{sTmp+2}
    s_addc_u32 s{sO_+1}, s11, 0
    s_mov_b32 s{sV_+2}, s{sK_+2}
    s_mov_b32 s{sV_+3}, 0x20000
    s_mov_b32 s{sO_+2}, 0x10000
    s_mov_b32 s{sO_+3}, 0x20000
"""
    for t in range(2, 8):
        if cfg.rot: h += f"    s_add_u32 s{sTile+t}, s{sTile+t-1}, 16384\n    s_and_b32 s{sTile+t}, s{sTile+t}, 0x1ffff\n"
        elif cfg.xor: h += f"    s_xor_b32 s{sTile+t}, s{sTile}, {t*16384}\n"
        else: h += f"    s_mov_b32 s{sTile+t}, {t*16384}\n"
    h += f"""    s_mul_i32 s{sTmp+4}, s{sWave}, {VW}
    s_add_u32 s{sM0}, s{sTmp+4}, {VB}
    s_add_u32 s{sM0+1}, s{sTmp+4}, {VB + VSTR}
    s_add_u32 s{sM0+2}, s{sTmp+4}, {VB + 2 * VSTR}
    s_add_u32 s{sM0+3}, s{sTmp+4}, {VB + 3 * VSTR}
    s_mov_b32 s{sOo}, 0
    s_mov_b32 s{sExp}, 0
    s_mov_b32 s{sCnt}, 2
    s_mov_b32 s{sScale}, {fbits(c):#x}
    s_mov_b32 s{sMask}, 0xffff0000
{f"    s_mov_b32 s{sPerm}, 0x07060302" if cfg.trunc else ""}
    v_and_b32 v{T+1}, 15, v{T+4}              ; l & 15
    v_lshrrev_b32 v{T+2}, 4, v{T+4}           ; l >> 4
    v_lshlrev_b32 v{T+7}, 8, v{T+1}           ; (l&15)*256
    ; K fragment read addresses: g*256 + (row ^ g ^ 4*(ds&1))*16
    v_lshlrev_b32 v{T+3}, 8, v{T+2}
    v_xor_b32 v{T+5}, v{T+1}, v{T+2}
    v_lshl_add_u32 v{vKr}, v{T+5}, 4, v{T+3}
    v_xor_b32 v{vKr+1}, 64, v{vKr}
    v_add_u32 v{vKr+2}, {0x10000 - KSH}, v{vKr}
    v_add_u32 v{vKr+3}, {0x10000 - KSH}, v{vKr+1}
    ; K write addresses: key 16w+4i+p goes to block 2(i&1)+(p>>1), row 8(p&1)+4(i>>1)+w ; lane = 16p+c
    v_and_b32 v{T+6}, 7, v{T+1}
    v_xor_b32 v{T+6}, s{sWave}, v{T+6}
    v_lshl_add_u32 v{T+6}, v{T+6}, 4, v{T+7}
    v_and_b32 v{T+8}, 1, v{T+2}
    v_lshl_add_u32 v{T+6}, v{T+8}, 7, v{T+6}
    v_lshrrev_b32 v{T+10}, 1, v{T+2}
    v_lshl_add_u32 v{vKw}, v{T+10}, 12, v{T+6}
    v_cmp_gt_u32 vcc, 2048, v{vKw}            ; lanes that write fragments (.,0,0) and (.,0,1)
    v_add_u32 v{T+6}, {3 * 16384}, v{vKw}
    v_xor_b32 v{vKw+1}, 64, v{vKw}
    v_cndmask_b32 v{vKwS[0]}, v{vKw}, v{T+6}, vcc
    v_xor_b32 v{vKwS[1]}, 64, v{vKwS[0]}
    ; Q fragment read address: column n holds row n with bits 1 and 2 exchanged : row*256 + (row>>2)*32 + g*16
    v_and_b32 v{T+9}, 3, v{T+4}
    v_lshrrev_b32 v{T+12}, 2, v{T+1}
    v_lshrrev_b32 v{T+6}, 1, v{T+1}
    v_xor_b32 v{T+6}, v{T+6}, v{T+12}
    v_and_b32 v{T+6}, 1, v{T+6}
    v_mul_u32_u24 v{T+6}, 6, v{T+6}
    v_xor_b32 v{T+13}, v{T+6}, v{T+1}         ; row
    v_lshrrev_b32 v{T+6}, 2, v{T+13}
    v_lshlrev_b32 v{T+6}, 5, v{T+6}
    v_lshl_add_u32 v{T+6}, v{T+13}, 8, v{T+6}
    v_lshl_add_u32 v{T+6}, v{T+2}, 4, v{T+6}
    v_add_u32 v{vQr}, s{sMqs}, v{T+6}
    ; V transposed-read address: lane = 16g+4r+c reads 8 bytes of chunk c of key 16r+8(g&1)+2kb+(g>>1)
    v_mul_u32_u24 v{T+6}, 2056, v{T+8}
    v_lshl_add_u32 v{T+6}, v{T+10}, 8, v{T+6}
    v_lshl_add_u32 v{T+6}, v{T+9}, 4, v{T+6}
    v_mul_u32_u24 v{T+8}, {VW}, v{T+12}
    v_add_u32 v{T+8}, {VB}, v{T+8}
    v_add_u32 v{vV}, v{T+8}, v{T+6}
"""
    h += f"""    ; output: a store covers 8 rows x 128 bytes: row(n&7)*256 + (n>>3)*64 + g*16
    v_and_b32 v{T+10}, 7, v{T+13}
    v_lshlrev_b32 v{T+10}, 8, v{T+10}
    v_lshl_add_u32 v{T+10}, v{T+2}, 4, v{T+10}
    v_and_b32 v{T+11}, 8, v{T+1}
    v_lshl_add_u32 v{vO}, v{T+11}, 3, v{T+10}
"""
    h += f"""    ; row-sum operand: rows 4i and 4i+1 are ones; they pick elements 0,1 and 2,3 of every group of four keys
    v_cmp_eq_u32 vcc, 1, v{T+9}
    v_mov_b32 v{T+6}, 0x44444444
    v_mov_b32 v{T+8}, 0xeeeeeeee
    v_cndmask_b32 v{vIdx}, v{T+6}, v{T+8}, vcc
    v_cmp_gt_u32 vcc, {0 if cfg.ones_rows == 0 else 2}, v{T+9 if cfg.ones_rows == 8 else T+1}
    v_mov_b32 v{T+6}, 0x3f803f80
    v_mov_b32 v{vChk}, {'-1' if cfg.force_slow else '0'}
    v_cndmask_b32 v{T+6}, 0, v{T+6}, vcc
    v_lshlrev_b32 v{vCnt}, 2, v{T+4}
    v_add_u32 v{vCnt}, {CB:#x}, v{vCnt}
    v_mov_b32 v{vOne}, v{T+6}
    v_mov_b32 v{vOne+1}, v{T+6}
    v_mov_b32 v{vOne+2}, v{T+6}
    v_mov_b32 v{vOne+3}, v{T+6}
{"".join(f"    v_mov_b32 v{vKp2+i}, {fbits(cfg.cfake):#x}" + chr(10) for i in range(4)) if cfg.cfake is not None else ""}    v_mov_b32 v{vCone}, 1
    v_mov_b32 v{vPoll}, 0
    s_mov_b32 vcc_lo, 0xff00ff00              ; lanes with (l & 8), used by the output selects
    s_mov_b32 vcc_hi, 0xff00ff00
"""
    return h

def tail(cfg):
    lim = (127 + cfg.limit_exp) << 23
    t = ""
    if cfg.stamps == "skew":
        t += """    s_mov_b32 s58, 256
    s_mov_b32 s59, 0x20000
    s_not_b32 s64, s60
    v_mov_b32 v64, s64
    v_mov_b32 v60, 0
    s_mov_b64 exec, 1
    s_cmp_lg_u32 s3, 0
    s_cbranch_scc1 L_sk1
    buffer_atomic_umax v64, v60, s[56:59], 0 offen
    s_waitcnt vmcnt(0)
L_sk1:
    s_memrealtime s[72:73]
    s_waitcnt lgkmcnt(0)
    s_sub_u32 s72, s72, s60
    s_cmp_lt_u32 s72, 8000
    s_cbranch_scc1 L_sk1
    buffer_load_dword v64, v60, s[56:59], 0 offen sc0 sc1
    s_waitcnt vmcnt(0)
    v_readfirstlane_b32 s64, v64
    s_nop 4
    s_not_b32 s64, s64
L_sk2:
    s_memrealtime s[72:73]
    s_waitcnt lgkmcnt(0)
    s_sub_u32 s72, s72, s64
    s_cmp_lt_u32 s72, 10000
    s_cbranch_scc1 L_sk2
    s_mov_b64 exec, -1
"""
    elif cfg.stamps == "spin":
        if not getattr(cfg, "stamp_steps", []): t += "    s_waitcnt vmcnt(0)\n    s_memrealtime s[64:65]\n"
        t += f"""    s_waitcnt lgkmcnt(0)
    {"s_sub_u32 s64, s66, s64" if len(getattr(cfg, "stamp_steps", [])) == 2 else "s_sub_u32 s64, s64, s60"}
    s_mul_i32 s64, s64, {getattr(cfg, "spin_mul", 0)}
    s_add_u32 s64, s64, 10000
L_spin:
    s_memrealtime s[72:73]
    s_waitcnt lgkmcnt(0)
    s_sub_u32 s72, s72, s60
    s_cmp_lt_u32 s72, s64
    s_cbranch_scc1 L_spin
"""
    elif cfg.stamps:
        e0 = 88 if cfg.stamps == "c16" else 72
        t += f"""    s_memrealtime s[{e0}:{e0+1}]
    s_waitcnt vmcnt(0)
    s_memrealtime s[{e0+2}:{e0+3}]
    s_mov_b32 s58, 0x10000000
    s_mov_b32 s59, 0x20000
    s_lshl_b32 s46, s2, 2
    s_add_u32 s46, s46, s3
    s_lshl_b32 s46, s46, 6
    s_waitcnt lgkmcnt(0)
"""
        for i in range(16): t += f"    v_mov_b32 v{64+i}, s{60+(2*i if cfg.stamps == 'c16' else i)}\n"
        t += "    v_mov_b32 v60, 0\n    s_mov_b64 exec, 1\n"
        if cfg.stamps == "dbg":
            t += "    s_mov_b32 s58, 256\n"
            for i in range(8):
                t += f"    v_not_b32 v{65+2*i}, v{64+2*i}\n"
            for i in range(16): t += f"    buffer_atomic_umax v{64+i}, v60, s[56:59], 0 offen offset:{4*i}\n"
        else:
          for i in range(4): t += f"    buffer_store_dwordx4 v[{64+4*i}:{67+4*i}], v60, s[56:59], s46 offen offset:{16*i}\n"
        t += "    s_mov_b64 exec, -1\n"
    t += f"""    v_cmp_lt_u32 vcc, {lim:#x}, v{vChk}
    s_nop 4
    s_cbranch_vccnz L_slow
L_end:
    s_endpgm
"""
    for n in cfg.spins:
        t += f"""L_spin{n}:
    ds_read_b32 v{vPoll}, v{vCnt}
    s_waitcnt lgkmcnt(0)
    v_readfirstlane_b32 s{sPol}, v{vPoll}
    s_nop 3
    s_cmp_lt_u32 s{sPol}, s{sExp}
    s_cbranch_scc1 L_spin{n}
    s_branch L_back{n}
"""
    S0, S1, M, T = 16, 20, 24, 25
    vQ = vQr; vKb = vKr + 2
    q = lambda ds: at(aQ + 4 * ds, 4)
    k = lambda j, ds: at(aK + j * 16 + 4 * ds, 4)
    t += f"""; Fallback: a row sum left [2^-{cfg.limit_exp}, 2^{cfg.limit_exp}] (or is not finite), so the constant offset was not safe.
; This wave recomputes its 256 rows subtracting the true row maximum.  K is rebuilt in LDS; V goes through a private 8 KiB.
L_slow:
    s_waitcnt vmcnt(0) lgkmcnt(0)
    s_barrier                                 ; the other waves are done with LDS (ended or here)
    s_mov_b32 s{sQo}, 0
    s_lshl_b32 s{sTmp}, s{sWave}, 12
    s_lshl_b32 s{sTmp+1}, s{sWave}, 13
    s_add_u32 s{sTmp+2}, s{sTmp+1}, 0x20000
    s_add_u32 s{sTmp+3}, s{sTmp+2}, 4096
    s_sub_u32 s{sV_}, s{sV_}, s{sTmp}
    s_subb_u32 s{sV_+1}, s{sV_+1}, 0
    s_mov_b32 s{sV_+2}, 0x20000
    v_bfe_u32 v{T}, v{vKl}, 4, 4              ; l & 15
    v_lshrrev_b32 v{T+1}, 8, v{vKl}           ; l >> 4
    v_lshlrev_b32 v{vQ}, 4, v{T+1}
    v_lshl_add_u32 v{vQ}, v{T}, 8, v{vQ}      ; Q rows in MFMA layout
    v_xor_b32 v{T+1}, v{T}, v{T+1}
    v_and_b32 v{T+1}, 7, v{T+1}
    v_lshlrev_b32 v{T+1}, 4, v{T+1}
    v_lshl_add_u32 v{vKw}, v{T}, 8, v{T+1}
    v_xor_b32 v{vKw+1}, 64, v{vKw}
    v_lshrrev_b32 v{T+1}, 6, v{vKl}           ; 4g+r
    v_lshlrev_b32 v{T+1}, 8, v{T+1}
    v_and_b32 v{T}, 0x30, v{vKl}              ; c*16
    v_add3_u32 v{vV}, v{T}, v{T+1}, s{sTmp+2}
"""
    t += f"""    s_sub_u32 s{sK_}, s{sK_}, s{sTmp}
    s_subb_u32 s{sK_+1}, s{sK_+1}, 0
    s_mov_b32 s{sK_+2}, 0x20000
    s_mov_b32 s{sCnt}, 0
L_skld:
"""
    for i in range(4): t += f"    buffer_load_dwordx4 {vt(vOa+4*i,4)}, v{vKl}, s[{sK_}:{sK_+3}], s{sCnt} offen offset:{i*1024}\n"
    t += "    s_waitcnt vmcnt(0)\n"
    for x in range(vOa, vOa + 16):
        t += f"""    v_lshlrev_b32 v{T}, 16, v{x}
    v_and_b32 v{x}, s{sMask}, v{x}
    v_mul_f32 v{T}, s{sScale}, v{T}
    v_mul_f32 v{x}, s{sScale}, v{x}
    v_cvt_pk_bf16_f32 v{x}, v{T}, v{x}
"""
    for i in range(4): t += f"    ds_write_b128 v{vKw+(i&1)}, {vt(vOa+4*i,4)} offset:{(i>>1)*128}\n"
    t += f"""    s_waitcnt lgkmcnt(0)
    v_add_u32 v{vKw}, 4096, v{vKw}
    v_add_u32 v{vKw+1}, 4096, v{vKw+1}
    s_add_u32 s{sCnt}, s{sCnt}, 4096
    s_cmp_lt_u32 s{sCnt}, 0x20000
    s_cbranch_scc1 L_skld
"""
    t += "L_sblk:\n"
    for ds in range(4): t += f"    buffer_load_dwordx4 {q(ds)}, v{vQ}, s[{sQ_}:{sQ_+3}], s{sQo} offen offset:{ds*64}\n"
    t += f"""    v_mov_b32 v{M}, 0xff800000
    v_mov_b32 v{vKb}, v{vKr}
    v_mov_b32 v{vKb+1}, v{vKr+1}
    s_mov_b32 s{sCnt}, 32
    s_waitcnt vmcnt(0)
L_smax:
"""
    for ds in range(4): t += f"    ds_read_b128 {k(0,ds)}, v{vKb+(ds&1)} offset:{ds*1024}\n"
    t += "    s_waitcnt lgkmcnt(0)\n"
    for ds in range(4): t += f"    v_mfma_f32_16x16x32_bf16 {vt(S0,4)}, {k(0,ds)}, {q(ds)}, {'0' if ds == 0 else vt(S0,4)}\n"
    t += f"""    s_nop 7
    v_max3_f32 v{M}, v{M}, v{S0}, v{S0+1}
    v_max3_f32 v{M}, v{M}, v{S0+2}, v{S0+3}
    v_add_u32 v{vKb}, 4096, v{vKb}
    v_add_u32 v{vKb+1}, 4096, v{vKb+1}
    s_sub_u32 s{sCnt}, s{sCnt}, 1
    s_cmp_lg_u32 s{sCnt}, 0
    s_cbranch_scc1 L_smax
    v_mov_b32 v{T}, v{M}
    s_nop 1
    v_permlane16_swap_b32 v{M}, v{T}
    s_nop 1
    v_max_f32 v{M}, v{M}, v{T}
    v_mov_b32 v{T}, v{M}
    s_nop 1
    v_permlane32_swap_b32 v{M}, v{T}
    s_nop 1
    v_max_f32 v{M}, v{M}, v{T}
"""
    for r in range(4): t += f"    v_mov_b32 v{vL+r}, 0\n"
    for r in range(32): t += f"    v_mov_b32 v{vOa+r}, 0\n"
    t += f"""    v_mov_b32 v{vKb}, v{vKr}
    v_mov_b32 v{vKb+1}, v{vKr+1}
    s_mov_b32 s{sCnt}, 0
L_skey:
    s_mov_b32 m0, s{sTmp+2}
    s_mov_b32 s{sTmp+5}, s{sCnt}
    s_add_u32 s{sTmp+4}, s{sTmp+5}, 4096
"""
    for i in range(4): t += f"    buffer_load_dwordx4 v{vD0}, s[{sV_}:{sV_+3}], s{sTmp+5} offen offset:{i*1024} lds\n"
    t += f"    s_mov_b32 m0, s{sTmp+3}\n    s_nop 0\n"
    for i in range(4): t += f"    buffer_load_dwordx4 v{vD0}, s[{sV_}:{sV_+3}], s{sTmp+4} offen offset:{i*1024} lds\n"
    for j in range(2):
        for ds in range(4): t += f"    ds_read_b128 {k(j,ds)}, v{vKb+(ds&1)} offset:{j*4096+ds*1024}\n"
    t += "    s_waitcnt vmcnt(0) lgkmcnt(0)\n"
    for db in range(8):
        for h in range(2): t += f"    ds_read_b64_tr_b16 {at(aV+db*4+2*h,2)}, v{vV} offset:{h*4096+(db>>1)*64+(db&1)*8}\n"
    for j, S in enumerate((S0, S1)):
        for ds in range(4): t += f"    v_mfma_f32_16x16x32_bf16 {vt(S,4)}, {k(j,ds)}, {q(ds)}, {'0' if ds == 0 else vt(S,4)}\n"
    t += "    s_nop 7\n"
    for r in range(8): t += f"    v_sub_f32 v{S0+r}, v{S0+r}, v{M}\n"
    for r in range(8): t += f"    v_exp_f32 v{S0+r}, v{S0+r}\n"
    t += "    s_nop 0\n"
    for r in range(4): t += f"    v_cvt_pk_bf16_f32 v{vP+r}, v{S0+2*r}, v{S0+2*r+1}\n"
    t += f"    v_add_u32 v{vKb}, 8192, v{vKb}\n    v_add_u32 v{vKb+1}, 8192, v{vKb+1}\n    s_waitcnt lgkmcnt(0)\n    s_nop 0\n"
    t += f"    v_mfma_f32_16x16x32_bf16 {vt(vL,4)}, {vt(vOne,4)}, {vt(vP,4)}, {vt(vL,4)}\n"
    for db in range(8): t += f"    v_mfma_f32_16x16x32_bf16 {vt(vOa+4*db,4)}, {at(aV+db*4,4)}, {vt(vP,4)}, {vt(vOa+4*db,4)}\n"
    t += f"""    s_add_u32 s{sCnt}, s{sCnt}, 8192
    s_cmp_lt_u32 s{sCnt}, 0x20000
    s_cbranch_scc1 L_skey
    s_nop 7
    v_rcp_f32 v{vR}, v{vL}
    s_nop 0
"""
    for r in range(32): t += f"    v_mul_f32 v{vOa+r}, v{vOa+r}, v{vR}\n"
    for db in range(8):
        o = vOa + 4 * db; d = vP + 2 * db
        t += f"    v_cvt_pk_bf16_f32 v{d}, v{o}, v{o+1}\n    v_cvt_pk_bf16_f32 v{d+1}, v{o+2}, v{o+3}\n"
    if cfg.store_x4:
        t += "    s_nop 1\n"
        for db in range(0, 8, 2):
            d = vP + 2 * db
            if not cfg.vperm: t += f"    v_permlane16_swap_b32 v{d}, v{d+2}\n    v_permlane16_swap_b32 v{d+1}, v{d+3}\n"
            t += f"    buffer_store_dwordx4 {vt(d,4)}, v{vQ}, s[{sO_}:{sO_+3}], s{sQo} offen offset:{db*32}\n"
    else:
        for db in range(8): t += f"    buffer_store_dwordx2 {vt(vP+2*db,2)}, v{vO}, s[{sO_}:{sO_+3}], s{sQo} offen offset:{db*32}\n"
    t += f"""    s_add_u32 s{sQo}, s{sQo}, 4096
    s_cmp_lt_u32 s{sQo}, 0x10000
    s_waitcnt vmcnt(0)
    s_cbranch_scc1 L_sblk
    s_endpgm
"""
    return t

HDR = """; Kernarg layout for this problem (48 bytes, ptrs only, base s[0:1]):
;   offset   0: d_in[0] q  shape=(16, 32, 512, 128) dtype=bfloat16
;   offset   8: d_in[1] k  shape=(16, 4, 512, 128) dtype=bfloat16
;   offset  16: d_in[2] v  shape=(16, 4, 512, 128) dtype=bfloat16
;   offset  24: d_out     shape=(16, 32, 512, 128) dtype=bfloat16
;   offset  32: d_debug   256 bytes
;   offset  40: d_ws      268435456 bytes workspace (unused)
; @launch grid=(256,1,1) block=(256,1,1) lds=163840
;
; GQA attention forward, out = softmax(q k^T / sqrt(128)) v.  Generated by my own scheduling script.
; * One workgroup per CU: 1024 q rows against the 512 keys of one (batch, kv head); each wave owns 256 rows and keeps
;   four 16-row blocks in flight, started two key tiles apart (a block walks the eight 64-key tiles cyclically).
; * v_mfma_f32_16x16x32_bf16 for S^T = K Q^T and O^T = V^T P^T; P goes from the S registers straight into the B operand.
;   K is multiplied by log2(e)/sqrt(128) once and stays in LDS (one tile in registers); V streams through a two-slot LDS
;   ring by LDS-DMA (one tile in registers) and is read with ds_read_b64_tr_b16; Q is staged through LDS.
; * Row sums come from one v_smfmac per block and tile (rows of ones with complementary 2:4 index patterns).
; * Waves meet through an arrive/poll counter in LDS (s_barrier in the first steps).
; * Softmax guard: softmax is invariant under a per-row shift, so the main path subtracts the constant 4 (log2 units, the
;   C input of the first QK MFMA) in place of the row maximum and CHECKS every row sum l
;   at run time: l and 1/l must both be <= 2^32 (this also rejects inf and NaN).  Inside that range nothing overflowed and
;   recomputes all its rows subtracting the true row maximum.
"""

PAD = """; Instruction prefetch stops at 4 KiB boundaries: start the kernel on one (the harness puts 0x300 bytes in front of the label).
.p2align 12
.fill 832, 4, 0xbf800000
"""

def add_hops(cfg, text):
    import subprocess, re, os, tempfile
    lines = text.split("\n")
    i0 = lines.index(KN + ":"); i1 = lines.index("L_end:")
    tmp = tempfile.mkdtemp()
    src = "\n".join(lines).replace("@HOPS", "\n".join(["    s_nop 0"] * 9))
    lines = src.split("\n"); i1 = lines.index("L_end:")
    hop0 = text.split("\n").index("@HOPS")
    open(tmp + "/a.s", "w").write(src)
    subprocess.run(["clang", "-x", "assembler", "-target", "amdgcn-amd-amdhsa", "-mcpu=gfx950", "-c", tmp + "/a.s", "-o", tmp + "/a.o"], check=True)
    dis = subprocess.run(["llvm-objdump", "-d", "--mcpu=gfx950", tmp + "/a.o"], capture_output=True, text=True).stdout
    dis = dis[dis.index("<" + KN + ">:"):]
    sizes = [4 * len(m.group(1).split()) for m in re.finditer(r"// [0-9A-F]{12}: ([0-9A-F ]+)", dis)]
    isins = lambda l: l.startswith("    ") and not l.strip().startswith(";") and l.strip()
    out = lines[:i0 + 1]; addr = 0; k = 0; page = 1; j = i0 + 1
    def look(j, k, addr, page):
        cands = []
        while addr < page * 4096 + 64 and j < i1:
            if isins(lines[j]):
                addr += sizes[k]; k += 1
                if "mfma" in lines[j] and page * 4096 <= addr <= page * 4096 + 60:
                    nx = lines[j + 1].strip()
                    cands.append((0 if nx == "s_nop 0" else (1 if nx.startswith("v_") else 2), j))
                elif page * 4096 <= addr <= page * 4096 + 60 and lines[j].strip().startswith("v_"): cands.append((3, j))
            j += 1
        return min(cands) if cands else None
    plan = None
    while j < i1:
        l = lines[j]
        if plan is None and addr >= page * 4096 - 64:
            plan = look(j, k, addr, page)
            if plan is None: page_end = True
        out.append(l)
        if isins(l): addr += sizes[k]; k += 1
        if plan and plan[1] == j:
            out.append(f"L_hop{page}:"); out.append(f"    s_cbranch_execz @NEXT{page}@"); addr += 4
            if plan[0] == 0: j += 1; k += 1
            plan = None; page += 1
        j += 1
    out += lines[i1:]
    np_ = page - 1
    r = "\n".join(out)
    for p in range(1, np_ + 1): r = r.replace(f"@NEXT{p}@", f"L_hop{p+4}" if p + 4 <= np_ else "L_hback")
    rl = r.split("\n")
    rl[hop0:hop0 + 9] = ["    s_mov_b64 exec, 0                         ; warm the instruction cache: visit the first line of every code page"] + \
        [x for w in range(3) for x in (f"    s_cmp_eq_u32 s{sWave}, {w}", f"    s_cbranch_scc1 L_hop{w+1}")] + ["    s_branch L_hop4", "L_hback:", "    s_mov_b64 exec, -1"]
    return "\n".join(rl)

def full(cfg):
    body = generate(cfg)
    r = full2(cfg, body)
    if getattr(cfg, "spin_cyc", 0):
        r = r.replace("s_memrealtime s[64:65]", "s_memtime s[64:65]").replace("s_memrealtime s[66:67]", "s_memtime s[66:67]").replace("s_memrealtime s[62:63]", "s_memtime s[62:63]")
        r = r.replace("s_sub_u32 s64, s64, s60", "s_sub_u32 s64, s64, s62").replace("s_mul_i32 s64, s64, 0", "s_lshr_b32 s64, s64, 1")
    if cfg.stamps in ("cyc", "c16"): r = r.replace("s_memrealtime", "s_memtime")
    if cfg.stamps == "both":
        import re
        r = re.sub(r"    s_memrealtime s\[(\d+):(\d+)\]", lambda m: f"    s_memtime s[{m.group(1)}:{m.group(2)}]\n    s_memrealtime s[{int(m.group(1))+20}:{int(m.group(2))+20}]", r)
        for i in range(8): r = r.replace(f"v_mov_b32 v{65+2*i}, s{61+2*i}\n", f"v_mov_b32 v{65+2*i}, s{80+2*i}\n")
    if "@HOPS" in r: r = add_hops(cfg, r.replace("    @HOPS", "@HOPS"))
    return r

def full2(cfg, body):
    return HDR + f""".amdgcn_target "amdgcn-amd-amdhsa--gfx950"
.text
.globl {KN}
{PAD if cfg.align else ""}.p2align 8
.type {KN},@function
{KN}:
""" + head(cfg) + body + "\n" + tail(cfg) + f""".section .rodata,"a"
.p2align 6
.amdhsa_kernel {KN}
  .amdhsa_next_free_vgpr 512
  .amdhsa_next_free_sgpr 102
  .amdhsa_accum_offset 256
  .amdhsa_group_segment_fixed_size 0
  .amdhsa_kernarg_size 48
  .amdhsa_user_sgpr_count 2
  .amdhsa_user_sgpr_kernarg_segment_ptr 1
  .amdhsa_system_sgpr_workgroup_id_x 1
.end_amdhsa_kernel
"""

if __name__ == "__main__":
    cfg = Cfg()
    name = sys.argv[1]
    for a in sys.argv[2:]:
        k, v = a.split("=", 1)
        try: v = eval(v)
        except Exception: pass
        setattr(cfg, k, v)
    s = full(cfg)
    open(name, "w").write(s)
    tot = sum(v[0] for v in cfg.est.values())
    print(name, "est head", cfg.est_head, "total", tot, "mfma", sum(v[1] for v in cfg.est.values()), file=sys.stderr)
    print(" ".join(f"{s}:{v[0]}/{v[1]}" for s, v in cfg.est.items() if s < 16 or s >= 32), file=sys.stderr)
```

```python
import sys, math, struct
KN = "standalone__gqa_softmax__near_ridge_kernel"

class Cfg:
    sigma = (0, 2, 4, 6)
    beta = 0.94
    beta_small = 0.55
    ds_lat = 7
    mv_lat = 4
    store_x4 = True
    q_nt = "nt"
    st_pol = "sc1"
    k_pol = "nt"
    v_pol = ""
    v_pol0 = "nt"
    rot = 0
    split_from = 4
    split_min_u = 9
    arr_gap = 10
    vm_gap = 5
    smooth = True
    stamps = False
    code_pf = True
    plan = "K0 Q0 C K1 H W00 V0 S0 B r0 r1 R0 K2 S1@0.0 V1@0.0 Q1@0.5 K3@1.0 V2@1.5 R1@2.0 K4@2.0 Q2@2.3 V3@2.6 K5@3.0 V4@3.4 K6@3.b R2@3.b Q3@4.0 K7@4.b R3@5.b Q4@6.0"
    vperm = True
    st_last = "sc1"
    st_last_from = 38
    ones_rows = 8
    trunc = False
    fake_st = False
    fake_v = False
    fake_m0 = 0
    v_n0 = 8
    st_block = 0
    c_pol = ""
    st_first = None
    st_pair = False
    fetch_thr = 1
    fetch_slack = 1
    st_gap = 16
    st_gap_all = False
    pf2 = False
    x8 = True
    qr_asap = True
    full_until = 35
    kst = [(1, 0), (1, 1), (2, 0), (2, 1), (3, 0), (3, 1), (3, "P"), (3, 0)]
    jitter = None
    xor = None
    qlag = {}
    lags = {}
    tailpub = {33: [33, 34], 35: [35, 37]}
    align = True
    early_pf = True
    sigma0 = None
    loop_from = 8
    vtouch = False
    group = 2
    group_min = 2
    rev = True
    snake = True
    on_first = True
    fake = ""
    cinit = "-4.0"
    cfake = None
    oinit = "0"
    half = True
    deep = True
    tail_dl = 1.0
    betas = {0: 0.95, 1: 0.9, 2: 0.8, 3: 0.8}
    arr_gap_small = 4
    k_up = 1
    force_slow = False
    nop_ds = True
    ds_gap = 2
    ds_cap = 1024
    kill_from = None
    pad = 0
    kill = ()
    limit_exp = 32

vQd, vO, vQr, vCnt, vD0, vChk = 0, 2, 3, 4, 0, 7
vKwS = (5, 48)
vKp2 = 8
vKl = 0
vV = 1
vS = 16
vL = 32
vR = 48
vKw = 50
vT = 52
NT = 5
vIdx = 57
vPoll = 58
vJ = 59
vKr = 60
vP = 64
vOa = 128
aQ, aKp, aVp, aK, aV = 0, 64, 128, 192, 224
vOne, vCone, vKp1, vO2, vO3 = 12, 6, 52, 56, 59
sPol = 40
sMqs = 76
TV = 4
TMPS = [44, 45, 46, 47, 56]
sQ_, sK_, sV_, sO_, sC_ = 12, 16, 20, 24, 28
sTile = 32
sM0 = 96
sQo, sOo, sCnt, sScale, sWave = 42, 43, 44, 45, 3
sTmp = 46
sMq, sExp, sMask, sPerm = 52, 53, 54, 55

VB, VSTR, KSH, VW = 0x18000 - 800, 16584, 800, 4160
QW, CB = 4192, 0x4180
def vr(b, n=1): return [f"v{b+i}" for i in range(n)]
def ar(b, n=1): return [f"a{b+i}" for i in range(n)]
def vt(b, n): return f"v[{b}:{b+n-1}]"
def at(b, n): return f"a[{b}:{b+n-1}]"

class Op:
    def __init__(s, key, text, kind, reads, writes, cost=None, earliest=None, dummy=False, anchor=None, maxdl=None):
        s.key, s.text, s.kind, s.reads, s.writes = key, text, kind, list(reads), list(writes)
        s.cost = {"mfma": 0, "trans": 8, "valu": 4, "ds": 4, "dsw": 20, "load": 8, "dma": 8, "store": 12, "salu": 0, "bar": 0, "chk": 0}[kind] if cost is None else cost
        s.cnt = {"ds": "lgkm", "dsw": "lgkm", "load": "vm", "dma": "vm", "store": "vm"}.get(kind)
        s.earliest = earliest
        s.maxdl = maxdl
        s.dummy = dummy
        s.anchor = anchor
        s.preds = []; s.succs = []; s.win = None; s.pos = None; s.m = None
        s.prod = {}

def blockpos(cfg, s, u):
    s0 = (cfg.sigma0 or cfg.sigma)[u]
    if s0 <= s < s0 + 8: return (0, s - s0)
    if cfg.sigma[u] + 8 <= s < cfg.sigma[u] + 32: return divmod(s - cfg.sigma[u], 8)
    return (None, None)

def build(cfg, s0, s1, steady):
    sg = cfg.sigma
    NP = 4
    last = 32 + max(sg)
    def li(s, u): return (s - sg[u]) % 8 if steady else blockpos(cfg, s, u)[1]
    def qk_on(s, u): return li(s, u) is not None
    def pv_on(s, u): return li(s - 1, u) is not None
    def order_qk(s, kb):
        us = [u for u in range(4) if qk_on(s, u)]
        if kb == 3:
            f = [u for u in us if li(s, u) == 7]
            us = f + [u for u in us if u not in f]
        if kb == 0:
            f = [u for u in us if li(s, u) == 0]
            us = [u for u in us if u not in f] + f
        return us
    prog = []
    A = prog.append
    chain = 0
    pend_q = []
    def qload(key, earliest=None, dummy=False, alt=False):
        if alt:
            A(Op(key + ("m0",), f"s_add_u32 m0, s{sMq}, {0x8000 - KSH}", "salu", [], ["m0"]))
            for i in range(4):
                A(Op(key + (i,), f"buffer_load_dwordx4 v{vQd}, s[{sQ_}:{sQ_+3}], s{sQo} offen offset:{i*1024} {cfg.q_nt} lds".replace("  ", " "), "dma",
                     [f"s{sQo}", "m0"], [f"Qa{i}"], earliest=earliest))
            A(Op(key + ("inc",), f"s_add_u32 s{sQo}, s{sQo}, 4096", "salu", [f"s{sQo}"], [f"s{sQo}"]))
            return
        for i in range(4):
            A(Op(key + (f"m{i}",), f"s_mov_b32 m0, s{sMqs + i}", "salu", [], ["m0"], dummy=dummy))
            A(Op(key + (i,), f"buffer_load_dwordx4 v{vQd}, s[{sQ_}:{sQ_+3}], s{sQo} offen offset:{i*1024} {cfg.q_nt} lds".replace("  ", " "), "dma",
                 [f"s{sQo}", "m0"] + [f"Qrd{d}" for d in range(4)], [f"Qs{i}"], earliest=earliest, dummy=dummy))
        A(Op(key + ("inc",), f"s_add_u32 s{sQo}, s{sQo}, 4096", "salu", [f"s{sQo}"], [f"s{sQo}"], dummy=dummy))
    def qread(key, u, earliest=None, dummy=False, alt=False):
        for ds in range(4):
            d = aQ + 16 * u + 4 * ds
            if alt:
                A(Op(key + (ds,), f"ds_read_b128 {at(d,4)}, v{vQr} offset:{0x8000 - KSH + ds*64}", "ds", [f"Qa{i}" for i in range(4)], ar(d, 4) + [f"Qar{ds}"], earliest=earliest))
                continue
            A(Op(key + (ds,), f"ds_read_b128 {at(d,4)}, v{vQr} offset:{ds*64}", "ds", [f"Qs{i}" for i in range(4)], ar(d, 4) + [f"Qrd{ds}"], earliest=earliest, dummy=dummy))
    def kfrag(s, kb, ds):
        t = s % 8
        if (t, kb, ds) == (1, 0, 0): return ("v", vKp1)
        if (t, kb, ds) == (1, 0, 1): return ("v", vKp2) if cfg.cfake is None else ("w", vKp1)
        if t == 0 or (not steady and s >= 34): return ("a", aKp + kb * 16 + ds * 4)
        if not steady and s <= 4: return ("a", aK + kb * 16 + ds * 4)
        if cfg.half: return ("a", 224 + ds * 4)
        return ("a", aK + (kb & 1) * 16 + ds * 4)
    def vperm_(sv): return sv % 8 == TV and (steady or sv >= 8)
    def vhalf(sv): return cfg.half and sv % 8 == TV + 1 and (steady or sv >= 8)
    def vfrag(sv, db, ks):
        if cfg.half and sv % 8 == TV + 1 and ks == 0: return 192 + db * 4
        return vfrag0(sv, db) + ks * 4
    def vfrag0(sv, db):
        if sv % 8 == TV or (not steady and sv < TV): return aVp + db * 8
        if cfg.half:
            ring = [240]
            if not steady and sv >= 33: ring = [240, aQ]
            if not steady and sv >= 34: ring = [240, aQ, aQ + 16, 224]
            return ring[(db >> 1) % len(ring)] + (db & 1) * 8
        if not steady and sv >= 34 and db >= 4: return aQ + (db - 4) * 8
        return aV + (db & 3) * 8
    rt = lambda f, n: f"{f[0].replace('w', 'v')}[{f[1]}:{f[1]+n-1}]"
    rr = lambda f, n: [f"{f[0]}{f[1]+i}" for i in range(n)]
    def vslot(sv):
        if not steady and sv in (2, 3, 34, 35): return sv & 1
        if not steady and sv == 37: return 3
        return 2 + (((sv - TV - 1) % 8) & 1)
    def vprev(sv):
        if vslot(sv) < 2: return ["Kret67"] if sv > 8 else []
        p = sv - 1
        while p >= 0 and (vslot(p) != vslot(sv) or vperm_(p)): p -= 1
        return [f"Vret{p}"] if p >= 0 else []
    vissued = set()
    def vdma(sv, earliest=None):
        vissued.add(sv)
        A(Op(("m0", sv), f"s_mov_b32 m0, s{sM0 + vslot(sv)}", "salu", ["setup~"], ["m0"]))
        for i in range(4):
            if vhalf(sv) and not i & 1: continue
            A(Op(("dma", sv, i), f"buffer_load_dwordx4 v{vD0}, s[{sV_ if i < 2 else sC_}:{(sV_ if i < 2 else sC_)+3}], s{sTile + sv % 8} offen offset:{i*1024 + (i >> 1) * 8} {cfg.v_pol0 if (not steady and sv < cfg.v_n0) else cfg.v_pol} lds".replace("  ", " "), "dma",
                 ["m0"] + vprev(sv), [f"Vd{sv}_{i}"], earliest=earliest))
    kstage = {}
    def kregs(t):
        u = KST[t][0]; h = KST[t][1]
        if h == "P": return [vP + (ds >> 1) * 32 + u * 8 + (ds & 1) * 4 for ds in range(4)]
        return [vOa + (h * 4 + ds) * 16 + u * 4 for ds in range(4)]
    KST = cfg.kst
    if cfg.k_up == 8: KST = [(0, 0), (0, 1), (1, 0), (1, 1), (2, 0), (2, 1), (3, 0), (3, 1)]
    def kload(t, earliest=None):
        for ds, r in enumerate(kregs(t)):
            A(Op(("kld", t, ds), f"buffer_load_dwordx4 {vt(r,4)}, v{vKl}, s[{sK_}:{sK_+3}], s{sTile + t} offen offset:{ds*1024} {cfg.k_pol}".rstrip(), "load",
                 [], vr(r, 4), earliest=earliest))
    tmpc = [0]
    def kscale(t, earliest=None):
        for ds, r in enumerate(kregs(t)):
            for j in range(4):
                x = r + j; tm = TMPS[tmpc[0] % NT]; tmpc[0] += 1
                k = ("ksc", t, ds, j)
                A(Op(k + (0,), f"v_lshlrev_b32 v{tm}, 16, v{x}", "valu", vr(x), vr(tm), earliest=earliest))
                A(Op(k + (1,), f"v_and_b32 v{x}, s{sMask}, v{x}", "valu", vr(x), vr(x), earliest=earliest))
                A(Op(k + (2,), f"v_mul_f32 v{tm}, s{sScale}, v{tm}", "valu", vr(tm), vr(tm)))
                A(Op(k + (3,), f"v_mul_f32 v{x}, s{sScale}, v{x}", "valu", vr(x), vr(x)))
                A(Op(k + (4,), f"v_cvt_pk_bf16_f32 v{x}, v{tm}, v{x}", "valu", vr(tm) + vr(x), vr(x)))
            tl = 3 if t == 0 else t
            if t == 4 and ds in (0, 2):
                A(Op(("kwa", t, ds), f"v_add_u32 v{vKw + (ds >> 1)}, {0x10000 - KSH}, v{vKw + (ds >> 1)}", "valu", vr(vKw + (ds >> 1)), vr(vKw + (ds >> 1))))
            a = vKwS[ds >> 1] if (t == 1 and not ds & 1) else vKw + (ds >> 1)
            A(Op(("kw", t, ds), f"ds_write_b128 v{a}, {vt(r,4)} offset:{(tl & 3) * 16384 + (ds & 1) * 8192 - (KSH if tl < 4 else 0)}", "dsw",
                 vr(r, 4) + vr(a) + (["K0dead"] if t in (3, 4) else []) + (["Qadead"] if (t == 2 and " q1" in cfg.plan) else []) + ([f"Vret{v}" for v in range(2, t - 3)] if t >= 6 and cfg.deep else []), [f"Kw{t}_{ds}"]))
    nmf = [0]
    kpub = set()
    def kread1(s, t, kb):
        for ds in range(4):
            perm = t == 0 or ((t, kb) == (1, 0) and ds < 2)
            if perm and (steady or s > 7): continue
            d = kfrag(s, kb, ds); tl = 3 if t == 0 else (4 if perm else t)
            A(Op(("kr", s, kb, ds), f"ds_read_b128 {rt(d,4)}, v{vKr + 2 * (tl >> 2) + (ds & 1)} offset:{(tl & 3) * 16384 + kb * 4096 + ds * 1024 - (KSH if tl < 4 else 0)}", "ds",
                 [] if (steady or s > 7) else [f"Kok{t}"], rr(d, 4) + ([] if not perm else [f"Kr0_{kb}_{ds}" if t == 0 else f"Kr1_{ds}"])))
    kdone0 = set(); kscaled = []
    later = {}
    if not steady:
        H = (-1, 0)
        def issue(item, when):
            n0 = len(prog)
            n = int(item[1:]) if item[1:].isdigit() else None
            if item[0] == "K": kload(n, when)
            elif item[0] == "Q": qload(("q0", n) if n < 4 else ("q", 8, 0), when)
            elif item[0] == "R": qread(("qr0", n), n, when)
            elif item[0] == "q": qload(("q0", n), when, alt=True)
            elif item[0] == "x": qread(("qr0", n), n, when, alt=True)
            elif item[0] == "V": vdma(n, when)
            elif item[0] == "S": kscale(n, when); kscaled.append(n)
            elif item[0] == "r": kread1(0, 0, n); kdone0.add(n)
            elif item[0] == "W":
                A(Op(("wt", 0, item), "s_nop 0", "valu", vr(kregs(int(item[1]))[int(item[2])], 4), []))
            elif item[0] == "P":
                A(Op(("cpf", 1), f"buffer_load_dword v{vJ}, v{vJ}, s[{sC_}:{sC_+3}], 0 offen {cfg.c_pol}".rstrip(), "load", [], ["junk"], earliest=when))
            elif item[0] == "H":
                A(Op(("hop", 0), "@HOPS", "valu", [], [], earliest=when, maxdl=when))
            elif item[0] == "T":
                A(Op(("ts", 0, item), f"s_memrealtime s[{64+2*n}:{65+2*n}]", "valu", [], []))
            elif item[0] == "X":
                A(Op(("wt", 0, item), "s_nop 0", "valu", [f"Qs{i}" for i in range(4)], []))
            elif item[0] == "B":
                pub = [t for t in kscaled if t not in kpub]; kpub.update(pub)
                A(Op(("bar", -1), "s_barrier", "bar", (["Czero"] if cfg.split_min_u <= 4 else []) + [f"Kw{t}_{ds}" for t in pub for ds in range(4)], [f"Kok{t}" for t in pub], anchor=H))
            elif item[0] == "C":
                pf = f"global_load_dword v{vJ}, v[{vS+14}:{vS+15}], off"
                if cfg.early_pf and cfg.vtouch:
                    tx = head2(cfg).split("@CPF")[1].strip().replace(f"    s_mov_b32 s{sO_+2}, 0x10000", f"    buffer_load_dword v{vS+14}, off, s[{sV_}:{sV_+3}], s{sMq} {cfg.v_pol0}\n    s_mov_b32 s{sO_+2}, 0x10000")
                    A(Op(("cpf", 0), tx, "load", [], vr(vS + 14), earliest=when, cost=300))
                elif cfg.early_pf:
                    A(Op(("cpf", 0), head2(cfg).split("@CPF")[1].strip(), "valu", [], [], earliest=when, cost=300))
                elif cfg.pf2:
                    p1 = f"""    s_lshr_b32 s{sTmp+4}, s{sWave}, 1
    s_lshl1_add_u32 s{sTmp+4}, s2, s{sTmp+4}
    s_lshl_b32 s{sTmp+4}, s{sTmp+4}, 7
    v_and_b32 v{vS+15}, 0x70, v{vKl}
    buffer_load_dword v{vS+15}, v{vS+15}, s[{sC_}:{sC_+3}], s{sTmp+4} offen"""
                    A(Op(("cpf", 0), head2(cfg).replace("@CPF", p1).strip(), "load", [], vr(vS + 15), earliest=when, cost=300))
                elif " P" in cfg.plan: A(Op(("cpf", 0), head2(cfg).replace("@CPF\n", "").strip(), "valu", [], [], earliest=when, cost=300))
                else: A(Op(("cpf", 0), head2(cfg).replace("@CPF", "    " + pf).strip(), "load", [], ["junk"], earliest=when, cost=300))
                A(Op(("setup", 0), "s_nop 0", "valu", [], ["setup~", f"s{sExp}"]))
                if cfg.split_min_u <= 4: A(Op(("cz", 1), f"ds_write_b32 v{vCnt}, v{vPoll}", "dsw", [], ["Czero"], cost=8))
            if when == H:
                for x in prog[n0:]: x.maxdl = H
        for item in cfg.plan.split():
            if "@" not in item: issue(item, H)
            else:
                it, pos = item.split("@"); st, fr = pos.split(".")
                later.setdefault(int(st), []).append((it, fr))
    for s in range(s0, s1):
        t = s % 8
        uq = [u for u in range(4) if qk_on(s, u)]
        up = order_qk(s - 1, 3) if (steady or s > 0) else []
        up = [u for u in up if pv_on(s, u)]
        qk = [(kb, u) for kb in range(4) for u in order_qk(s, kb)]
        if not steady and s in cfg.qlag:
            qk.sort(key=lambda c: (c[0] + (cfg.qlag[s] + 0.5 if (li(s, c[1]) == 0 and c[1] > 0) else 0)))
        pv = []
        fin = [u for u in up if li(s - 1, u) == 7]
        ones_order = fin + [u for u in up if u not in fin]
        for db in range(8):
            for u in up: pv.append(("pv", db, u))
        npv = len(pv)
        ins = {}
        for i, u in enumerate(ones_order):
            if u in fin: p = len(up)
            else: p = len(up) + (npv - len(up)) * i // max(1, len(ones_order))
            ins.setdefault(p, []).append(("one", 0, u))
        pv2 = []
        for i, c in enumerate(pv):
            pv2 += ins.get(i, []); pv2.append(c)
        pv = pv2
        seq = []
        if qk:
            j = 0
            lag = 1 if len(uq) <= 2 and pv else 0
            if not steady and s in cfg.lags: lag = cfg.lags[s]
            for i, c in enumerate(qk):
                seq.append(("qk",) + c)
                tgt = math.ceil(max(0, i + 1 - lag) * len(pv) / (len(qk) - lag))
                while j < tgt: seq.append(pv[j]); j += 1
        else:
            seq = pv
        if cfg.group and qk and len(up) >= cfg.group_min:
            G = cfg.group
            seq = []; j = 0
            onepos = {}
            for i, u in enumerate(ones_order): onepos.setdefault(0 if u in fin else (8 * i // len(ones_order)), []).append(u)
            for db in range(8):
                if db % G == 0:
                    while j < math.ceil((db + G) * len(qk) / 8): seq.append(("qk",) + qk[j]); j += 1
                if not cfg.snake:
                    seq += [("pv", db, u) for u in up] + [("one", 0, u) for u in onepos.get(db, [])]
                    continue
                if db % G == 0:
                    on = [u for k in range(db, db + G) for u in onepos.get(k, [])]
                    od = list(up)
                    if cfg.on_first:
                        if on and db > 0: od.remove(on[-1]); od = [on[-1]] + od
                        seq += [("one", 0, u) for u in on]; on = []
                    if on and db > 0:
                        od.remove(on[0]); od = [on[0]] + od if G % 2 == 0 else od + [on[0]]
                seq += [("pv", db, u) for u in od]
                od = od[::-1]
                if db % G == G - 1: seq += [("one", 0, u) for u in on]
        rev = {}
        for i, c in enumerate(seq):
            p_ = seq[i - 1]
            rev[c] = bool(cfg.rev and i and p_[0] == c[0] and c[0] != "one" and (p_[1] == c[1] or p_[2] == c[2]) and not rev[p_])
        nm = sum({"qk": 4, "pv": 2, "one": 1}[c[0]] for c in seq)
        beta = cfg.beta if len(uq) >= 3 else cfg.beta_small
        barpos = int(beta * nm)
        if not steady and s in cfg.betas: barpos = int(cfg.betas[s] * nm)
        vdone = set(); kdone = set(kdone0) if (s == 0 and not steady) else set(); bar_done = False
        Pw = vP + 32 * (s & 1); Pr = vP + 32 * ((s - 1) & 1)
        def vreads(db):
            if db in vdone or vperm_(s - 1): return
            vdone.add(db)
            for ks in range(2):
                if ks == 0 and vhalf(s - 1): continue
                for h in range(2):
                    d = vfrag(s - 1, db, ks) + h * 2
                    A(Op(("vr", s, db, ks, h), f"ds_read_b64_tr_b16 {at(d,2)}, v{vV} offset:{vslot(s-1)*VSTR + ks*1024 + h*512 + (db>>1)*64 + (db&1)*8}", "ds",
                         [f"Vok{s-1}"], ar(d, 2) + [f"Vr{s-1}_{db}_{ks}_{h}"]))
        def kreads(kb):
            if kb in kdone: return
            kdone.add(kb); kread1(s, t, kb)
        def barrier():
            rd = []; wr = []
            pubv, retv, nxt = [s], [s - 1], [s + 1]
            if vperm_(s + 1): retv = []; nxt = []
            if vperm_(s): pubv = []; retv = [s - 2, s - 1]
            if vperm_(s - 1): retv = []
            if not steady:
                retv = {1: [], 2: [0], 3: [1], 4: [2], 5: [3, 4], 34: []}.get(s, retv)
                if s >= 33:
                    if s not in cfg.tailpub: return
                    pubv = cfg.tailpub[s]
                    if s > 33: retv = []; nxt = []
                nxt = {0: [], 1: [], 2: [4], 3: [5], 4: [], 32: [33, 34, 35], 33: [37], 34: []}.get(s, nxt)
                if s == 32: wr.append("Kret67")
                nxt = [v for v in nxt if v < last and v not in vissued and not any(it == f"V{v}" for l in later.values() for it, _ in l)]
            for v in retv:
                if v < 0: continue
                if v == s - 1:
                    for db in range(8): vreads(db)
                rd += [f"Vr{v}_{db}_{ks}_{h}" for db in range(8) for ks in range(2) for h in range(2) if ks or not vhalf(v)]
                wr.append(f"Vret{v}")
            for v in pubv:
                assert steady or v in vissued, v
                rd += [f"Vd{v}_{i}" for i in range(4) if i & 1 or not vhalf(v)]; wr.append(f"Vok{v}")
            if not steady and s + 1 <= 7 and s + 1 not in kpub:
                if s + 1 not in kscaled: kscale(s + 1, ((s - 1, "bar") if s >= 1 else (-1, 0))); kscaled.append(s + 1)
                kpub.add(s + 1)
                rd += [f"Kw{s+1}_{ds}" for ds in range(4)]; wr.append(f"Kok{s+1}")
            if not steady and s == 0 and " q1" in cfg.plan:
                rd += [f"Qar{ds}" for ds in range(4)]; wr.append("Qadead")
            if not steady and s == 1:
                rd += [f"Kr0_{kb}_{ds}" for kb in range(4) for ds in range(4)]; wr.append("K0dead")
                rd += ["Kr1_0", "Kr1_1"]
            if (steady or s >= cfg.split_from) and len(uq) >= cfg.split_min_u:
                ag = cfg.arr_gap if len(uq) >= 3 else cfg.arr_gap_small
                A(Op(("arr", s), f"ds_add_u32 v{vCnt}, v{vCone}", "dsw", rd, ["Carr"], cost=8, anchor=(s, "bar", -ag - cfg.ds_lat - 2)))
                A(Op(("exp", s), f"s_add_u32 s{sExp}, s{sExp}, 4", "salu", [f"s{sExp}"], [f"s{sExp}"]))
                A(Op(("pol", s), f"ds_read_b32 v{vPoll}, v{vCnt}", "ds", ["Carr~"], vr(vPoll), anchor=(s, "bar", -cfg.ds_lat - 2)))
                A(Op(("cmp", s), f"v_readfirstlane_b32 s{sPol}, v{vPoll}", "valu", vr(vPoll), [f"s{sPol}"], anchor=(s, "bar", -3)))
                A(Op(("sc", s), f"s_cmp_lt_u32 s{sPol}, s{sExp}", "bar", [f"s{sPol}", f"s{sExp}"], ["scc"], anchor=(s, "bar", -1)))
                A(Op(("bar", s), f"s_cbranch_scc1 L_spin{s if (not steady and (s < cfg.loop_from or s >= 32)) else 16 + s % 8}", "bar", ["scc"] + vr(vPoll) + [f"s{sExp}", f"s{sPol}"], wr, anchor=(s, "bar")))
            else:
                A(Op(("bar", s), "s_barrier", "bar", rd, wr, anchor=(s, "bar")))
            for v in nxt: vdma(v, None)
            for it, fr in later.get(s, []):
                if fr == "b": issue(it, (s, "bar"))
        todo_items = [(it, int(fr) / 10 ** len(fr)) for it, fr in later.get(s, []) if fr != "b"]
        mcount = 0
        for c in seq:
            if not bar_done and mcount >= barpos:
                barrier(); bar_done = True
            while todo_items and mcount >= todo_items[0][1] * nm:
                issue(todo_items.pop(0)[0], (s, "off", mcount))
            if c[0] == "qk":
                _, kb, u = c
                kreads(kb)
                if kb == 0 and li(s, u) == 0 and (steady or s - sg[u] >= 8):
                    qread(("qr", s, u), u, earliest=None if (steady or qk_on(s - 1, u)) else (s - 1, "frac", 0.75))
                    un = (u + 1) % 4; sn = s + (sg[un] - sg[u]) % 8
                    pend_q.append((("q", sn, un), not steady and sn - sg[un] >= 8 * NP))
                    if True:
                        k_, d_ = pend_q.pop(); qload(k_, dummy=d_)
                S = vS + 4 * (chain % 4); chain += 1
                for i, ds in enumerate((3, 2, 1, 0) if rev[c] else (0, 1, 2, 3)):
                    kf = kfrag(s, kb, ds); qf = aQ + u * 16 + ds * 4
                    A(Op(("qk", s, kb, u, ds, i), f"v_mfma_f32_16x16x32_bf16 {vt(S,4)}, {rt(kf,4)}, {at(qf,4)}, {cfg.cinit if i == 0 else vt(S,4)}", "mfma",
                         rr(kf, 4) + ar(qf, 4) + ([] if i == 0 else vr(S, 4)), vr(S, 4)))
                for r in range(4):
                    A(Op(("ex", s, kb, u, r), f"v_exp_f32 v{S+r}, v{S+r}", "trans", vr(S + r), vr(S + r)))
                pd = Pw + u * 8 + kb * 2
                for r in range(2):
                    tx = f"v_perm_b32 v{pd+r}, v{S+2*r+1}, v{S+2*r}, s{sPerm}" if cfg.trunc else f"v_cvt_pk_bf16_f32 v{pd+r}, v{S+2*r}, v{S+2*r+1}"
                    A(Op(("cv", s, kb, u, r), tx, "valu", vr(S + 2 * r, 2), vr(pd + r)))
                mcount += 4
            elif c[0] == "pv":
                _, db, u = c
                vreads(db)
                first = li(s - 1, u) == 0
                o = vOa + db * 16 + u * 4
                for i, ks in enumerate((1, 0) if rev[c] else (0, 1)):
                    vf = vfrag(s - 1, db, ks); pf = Pr + u * 8 + ks * 4
                    z = first and i == 0
                    A(Op(("pv", s, db, u, ks, i), f"v_mfma_f32_16x16x32_bf16 {vt(o,4)}, {at(vf,4)}, {vt(pf,4)}, {cfg.oinit if z else vt(o,4)}", "mfma",
                         ar(vf, 4) + vr(pf, 4) + ([] if z else vr(o, 4)), vr(o, 4)))
                mcount += 2
            else:
                _, _, u = c
                first = li(s - 1, u) == 0
                l = vL + 4 * u
                if first:
                    for r in range(2): A(Op(("lz", s, u, r), f"v_mov_b32 v{l+r}, 0", "valu", [], vr(l + r)))
                pf = Pr + u * 8
                A(Op(("on", s, u), f"v_smfmac_f32_16x16x64_bf16 {vt(l,4)}, {vt(vOne,4)}, {vt(pf,8)}, v{vIdx}", "mfma", vr(pf, 8) + vr(l, 2), vr(l, 4)))
                mcount += 1
        if not bar_done: barrier()
        for it, _ in todo_items: issue(it, (s, "off", mcount))
        if not steady and s == 31:
            qread(("qr", 32, 0), 0, dummy=True)
            qload(("q", 32 + sg[1], 1), dummy=True)
        if not steady and s == 7:
            A(Op(("vo2", 7), f"v_xor_b32 v{vO2}, 0x840, v{vO}", "valu", [], vr(vO2)))
            if cfg.full_until < 39: A(Op(("vo3", 7), f"v_cndmask_b32 v{vO3}, v{vO}, v{vO2}, vcc", "valu", vr(vO2) + ["junk"], vr(vO3)))
        for u in sorted(fin):
            l = vL + 4 * u; R = vR + 2 * (u & 1)
            DPP = "row_ror:8 row_mask:0xf bank_mask:0xf"
            pol = cfg.st_last if (not steady and s >= cfg.st_last_from) else cfg.st_pol
            A(Op(("la", s, u), f"v_add_f32 v{l}, v{l}, v{l+1}", "valu", vr(l, 2), vr(l)))
            A(Op(("rc", s, u), f"v_rcp_f32 v{R}, v{l}", "trans", vr(l), vr(R)))
            full = cfg.full_until > 0 if steady else s < cfg.full_until
            if full: A(Op(("r2", s, u), f"v_mov_b32_dpp v{R+1}, v{R} {DPP}", "valu", vr(R), vr(R + 1)))
            A(Op(("ck", s, u), f"v_max3_u32 v{vChk}, v{vChk}, v{l}, v{R}", "valu", vr(vChk) + vr(l) + vr(R), vr(vChk)))
            for db in range(8):
                o = vOa + db * 16 + u * 4
                for r in range(4):
                    if full and db & 2: A(Op(("mu", s, u, db, r), f"v_mul_f32_dpp v{o+r}, v{o+r}, v{R+1} {DPP}", "valu", vr(o + r) + vr(R + 1), vr(o + r)))
                    else: A(Op(("mu", s, u, db, r), f"v_mul_f32 v{o+r}, v{o+r}, v{R}", "valu", vr(o + r) + vr(R), vr(o + r)))
                if db & 1:
                    e = o - 16
                    A(Op(("oc", s, u, db, 3), f"v_cvt_pk_bf16_f32 v{o+3}, v{o+2}, v{o+3}", "valu", vr(o + 2, 2), vr(o + 3)))
                    A(Op(("oc", s, u, db, 2), f"v_cvt_pk_bf16_f32 v{o+2}, v{o}, v{o+1}", "valu", vr(o, 2), vr(o + 2)))
                    A(Op(("oc", s, u, db, 0), f"v_cvt_pk_bf16_f32 v{o}, v{e}, v{e+1}", "valu", vr(e, 2), vr(o)))
                    A(Op(("oc", s, u, db, 1), f"v_cvt_pk_bf16_f32 v{o+1}, v{e+2}, v{e+3}", "valu", vr(e + 2, 2), vr(o + 1)))
                    if not full:
                        A(Op(("st", s, u, db), f"buffer_store_dwordx4 {vt(o,4)}, v{vO3}, s[{sO_}:{sO_+3}], s{sOo} offen offset:{(db-1)*32} {pol}".rstrip(), "store",
                             vr(o, 4) + [f"s{sOo}"] + vr(vO3), [], cost=20))
                if full and db & 3 == 3:
                    a = o - 32; x = o - 16
                    for r in range(4):
                        A(Op(("sx", s, u, db, r), f"v_cndmask_b32 v{x+r}, v{a+r}, v{o+r}, vcc", "valu", vr(a + r) + vr(o + r), vr(x + r)))
                    A(Op(("st", s, u, db - 1), f"buffer_store_dwordx4 {vt(x,4)}, v{vO}, s[{sO_}:{sO_+3}], s{sOo} offen offset:{(db>>2)*128} {pol}".rstrip(), "store",
                         vr(x, 4) + [f"s{sOo}"], [], cost=20))
                    for r in range(4):
                        A(Op(("sy", s, u, db, r), f"v_cndmask_b32 v{o+r}, v{o+r}, v{a+r}, vcc", "valu", vr(a + r) + vr(o + r), vr(o + r)))
                    A(Op(("st", s, u, db), f"buffer_store_dwordx4 {vt(o,4)}, v{vO2}, s[{sO_}:{sO_+3}], s{sOo} offen offset:{(db>>2)*128} {pol}".rstrip(), "store",
                         vr(o, 4) + [f"s{sOo}"] + vr(vO2), [], cost=20))
            if not steady and 32 <= s < last:
                for x in prog:
                    if x.key[:3] == ("st", s, u): x.maxdl = (s + 1, "frac", (x.key[3] + 1) / 8 * cfg.tail_dl)
            A(Op(("oinc", s, u), f"s_add_u32 s{sOo}, s{sOo}, 4096", "salu", [f"s{sOo}"], [f"s{sOo}"]))
    return prog

def link(cfg, prog):
    lastw = {}; readers = {}
    m = 0
    for x in prog:
        if x.kind == "mfma": x.m = m; m += 1
    for x in prog:
        e = {}
        def add(p, typ):
            if p is x: return
            soft = hard = 0
            if p.kind == "mfma":
                if x.kind == "mfma": return
                if typ in ("raw", "waw"): soft = cfg.mv_lat + (2 if p.key[0] == "on" else 0)
                elif x.kind in ("valu", "trans"): soft = 1
            elif x.kind == "mfma":
                hard = soft = 1
                if typ == "raw":
                    soft = cfg.ds_lat if p.kind == "ds" else (1 if p.kind == "load" else 2)
                elif p.kind == "store": soft = 2
            elif x.kind == "bar" or x.key[0] == "arr":
                hard = 1; soft = {"ds": cfg.ds_lat, "dsw": cfg.ds_lat, "dma": 2}.get(p.kind, 1)
            elif p.kind == "bar":
                soft = hard = 0
            elif p.kind == "salu":
                soft = 2; hard = 1 if x.kind != "salu" else 1
            elif x.kind == "salu":
                soft = hard = 1
            elif typ == "raw":
                if p.kind == "trans": soft = 1
                elif p.kind == "ds" and x.kind == "dma": soft = cfg.ds_lat
                elif p.kind == "valu" and x.kind in ("store", "dsw", "ds"): soft = 1
                elif p.kind == "valu" and "permlane" in x.text: soft = 2
                if "_dpp" in x.text: soft = 2
            else:
                if p.kind in ("valu", "trans") and x.kind in ("load", "ds", "dma"): soft = 1
                if p.kind in ("store", "dsw"): soft = 1
            o = e.get(id(p))
            e[id(p)] = (p, max(soft, o[1]) if o else soft, max(hard, o[2]) if o else hard)
        for r in x.reads:
            if r in lastw: add(lastw[r], "raw"); x.prod[r] = lastw[r].key
        for r in x.writes:
            if r in lastw: add(lastw[r], "waw")
            for p in readers.get(r, []): add(p, "war")
        for r in x.reads: readers.setdefault(r, []).append(x)
        for r in x.writes: lastw[r] = x; readers[r] = []
        x.preds = list(e.values())
        for p, so, ha in x.preds: p.succs.append((x, so, ha))
    return m

def semantic_check(cfg, prog):
    sg = cfg.sigma
    nq = 0; qblk = {}; nst = 0
    for x in prog:
        k = x.key; P = [x.prod.get(r) for r in x.reads]
        def exp(idx, f):
            for i in idx: assert P[i] is not None and f(P[i]), ("semantic", k, x.reads[i], P[i])
        if x.dummy: continue
        if k[0] == "ksc" and k[4] in (0, 1): exp([0], lambda p: p == ("kld", k[1], k[2]))
        if k[0] == "ksc" and k[4] in (2, 3): exp([0], lambda p: p == k[:4] + (k[4] - 2,))
        if k[0] == "ksc" and k[4] == 4: exp([0], lambda p: p == k[:4] + (2,)); exp([1], lambda p: p == k[:4] + (3,))
        if k[0] == "kw": exp(range(4), lambda p: p[:3] == ("ksc", k[1], k[2]) and p[4] == 4); exp(range(5, len(P)), lambda p: p[0] == "bar")
        if k[0] in ("bar", "arr"): exp(range(len(P)), lambda p: True)
        if k[0] == "kr" and k[1] < 8: exp([0], lambda p: p[0] == "bar")
        if k[0] == "vr": exp([0], lambda p: p[0] == "bar")
        if k[0] == "dma": exp([0], lambda p: p == ("m0", k[1])); exp(range(1, len(P)), lambda p: p[0] == "bar")
        if k[0] in ("q", "q0") and k[-1] == "inc": qblk[k[:-1]] = nq; nq += 1
        if k[0] in ("q", "q0") and isinstance(k[-1], int): exp([1], lambda p: p == k[:-1] + (f"m{k[-1]}",))
        if k[0] in ("qr", "qr0"):
            u = k[-2]; n = 0 if k[0] == "qr0" else (k[1] - sg[u]) // 8
            exp(range(4), lambda p: qblk[p[:-1]] == 4 * n + u)
        if k[0] == "qk":
            _, s, kb, u, ds, ii = k; n, i_ = blockpos(cfg, s, u); s0 = s - i_
            exp(range(4), lambda p: p[0] == "kr" and p[1] % 8 == s % 8 and p[2:] == (kb, ds))
            exp(range(4, 8), lambda p: p == (("qr0", u, ds) if n == 0 else ("qr", s0, u, ds)))
            exp(range(8, len(P)), lambda p: p[:4] == k[:4] and p[5] == ii - 1); assert (len(P) > 8) == (ii > 0)
        if k[0] == "ex": exp([0], lambda p: p[:4] == ("qk",) + k[1:4] and p[5] == 3)
        if k[0] == "cv": exp([0, 1], lambda p: p[:4] == ("ex",) + k[1:4])
        if k[0] == "pv":
            _, s, db, u, ks, ii = k
            exp(range(4), lambda p: p[0] == "vr" and p[1] % 8 == s % 8 and p[2:4] == (db, ks))
            exp(range(4, 8), lambda p: p[0] == "cv" and p[1] == s - 1 and p[2] >> 1 == ks and p[3] == u)
            exp(range(8, len(P)), lambda p: p == ("pv", s, db, u, 1 - ks, 0) if ii else (p[:4] == ("pv", s - 1, db, u) and p[5] == 1))
            assert (len(P) > 8) == (ii > 0 or blockpos(cfg, s - 1, u)[1] > 0)
        if k[0] == "on":
            exp(range(8), lambda p: p[0] == "cv" and p[1] == k[1] - 1 and p[3] == k[2])
            exp([8, 9], lambda p: p[:3] == ("lz", k[1], k[2]) or p == ("on", k[1] - 1, k[2]))
        if k[0] == "la": exp([0, 1], lambda p: p == ("on", k[1], k[2]))
        if k[0] == "mu": exp([0], lambda p: p[:4] == ("pv", k[1], k[3], k[2]) and p[5] == 1); exp([1], lambda p: p[0] in ("rc", "r2") and p[1:] == k[1:3])
        if k[0] == "oc": exp([0, 1], lambda p: p[:3] == ("mu",) + k[1:3])
        if k[0] == "oinc":
            assert nst == 4 * blockpos(cfg, k[1] - 1, k[2])[0] + k[2], k
            nst += 1
    assert nst == 16

def step_of(x): return x.key[1]

def schedule(cfg, prog, nm, pins=None, lo=None, hi=None):
    pins = pins or {}; lo = lo or {}; hi = hi or {}
    start = {}; barw = {}
    cur = -1
    for x in prog:
        if x.kind == "mfma":
            cur = x.m; start.setdefault(x.key[1], x.m)
        elif x.key[0] == "bar": barw[x.key[1]] = cur
    def W(a):
        if a[0] == -1: return -1
        if a[1] == "bar": return barw.get(a[0], nm - 1) + (a[2] if len(a) > 2 else 0)
        if a[1] == "frac": return start[a[0]] - 1 + int(a[2] * (start.get(a[0] + 1, nm) - start[a[0]]))
        if a[1] == "off": return max(0, start[a[0]] - 1 + a[2])
        return start[a[0]] - 1
    fill = [x for x in prog if x.kind != "mfma"]
    for x in prog:
        if x.kind == "mfma": x.win = x.m
    for i, x in enumerate(prog): x.idx = i
    for x in reversed(fill):
        if x.key in pins: x.dls = x.dlh = pins[x.key][0]; continue
        if x.anchor: x.dls = x.dlh = W(x.anchor); continue
        ds = dh = nm - 1
        for y, so, ha in x.succs:
            if y.dummy and y.key not in pins: continue
            if y.kind == "mfma": ds = min(ds, y.m - so); dh = min(dh, y.m - ha)
            else: ds = min(ds, y.dls - so); dh = min(dh, y.dlh - ha)
        if x.key in hi: ds = min(ds, hi[x.key]); dh = min(dh, hi[x.key])
        if x.maxdl: ds = min(ds, W(x.maxdl)); dh = min(dh, W(x.maxdl))
        x.dls, x.dlh = ds, max(dh, -1)
    wins = {w: [] for w in range(-1, nm)}
    for x in fill:
        x.win = None
        x.lo = max(W(x.earliest) if x.earliest else -1, lo.get(x.key, -1))
        if x.anchor: x.lo = x.dlh
    pinned_by_win = {}
    for x in fill:
        if x.key in pins: pinned_by_win.setdefault(pins[x.key][0], []).append(x)
    todo = [x for x in fill if x.key not in pins and not x.dummy]
    todo.sort(key=lambda x: x.idx)
    credit = [0]
    bucket = [0]
    def nbytes(x):
        if x.kind in ("salu", "bar"): return 4
        if x.kind in ("valu", "trans"):
            return 8 if ("_dpp" in x.text or x.text.split()[0] in ("v_cvt_pk_bf16_f32", "v_perm_b32", "v_max3_u32") or "0x" in x.text) else 4
        return 8
    mfl = [x for x in prog if x.kind == "mfma"]
    def ready(x, w, soft):
        if w < x.lo: return False
        for p, so, ha in x.preds:
            if p.dummy and p.key not in pins: continue
            if p.win is None: return False
            lat = ha
            if soft and (p.kind not in ("load", "dma", "ds", "dsw") or x.kind == "dma"): lat = so
            if p.kind in ("store", "dsw") and soft: lat = max(lat, min(so, 1))
            if w == -1 or w == nm - 1: lat = 0
            if w < p.win + lat: return False
        return True
    for w in range(-1, nm):
        if w in pinned_by_win:
            for x in sorted(pinned_by_win[w], key=lambda x: pins[x.key][1]):
                x.win = w; wins[w].append(x)
        if pins and cfg._loop[0] <= w < cfg._loop[1]: continue
        cap = 8 if w >= 0 else 0
        if w >= 0 and mfl[w].key[0] == "on": cap = 4
        cap0 = cap
        rate = 8
        if cfg.smooth and pins and 0 <= w < nm - 1:
            acc = 0
            for x in sorted((x for x in todo[:900] if x.dls <= w + 120), key=lambda x: x.dls):
                acc += min(x.cost, 8)
                rate = max(rate, acc / (max(x.dls, w) - w + 1))
            credit[0] = credit[0] + rate - 8 if rate > 8.2 else 0
            credit[0] = min(credit[0], rate)
            extra = int(credit[0] // 4) * 4
            cap += extra
        used = 0
        cur = wins[w]
        def place(x):
            nonlocal used
            x.win = w; cur.append(x); used += min(x.cost, 8); todo.remove(x)
        while True:
            cand = [x for x in todo[:700] if ready(x, w, True) or (w >= x.dlh and ready(x, w, False))]
            if not cand: break
            z = [x for x in cand if x.kind in ("salu", "bar")]
            if z:
                place(z[0]); continue
            forced = [x for x in cand if x.dls <= w]
            if w == -1 or w == nm - 1:
                if not forced: break
                place(min(forced, key=lambda x: x.idx)); continue
            hasvalu_dep = lambda x: x.kind in ("ds", "dsw", "load", "dma", "store") and any(p.win == w and p.kind in ("valu", "trans") for p, _, _ in x.preds)
            hard_forced = forced
            if hard_forced:
                place(min(hard_forced, key=lambda x: (x.dls, x.idx))); continue
            if used >= cap: break
            nb = lambda x: 1024 if "b128" in x.text else 512
            dsb = sum(nb(x) for x in cur if x.kind == "ds")
            tight = rate > 8.2
            recent = (not tight) and any(y.kind == "ds" for k in range(1, cfg.ds_gap) for y in wins.get(w - k, []))
            vmk = ("load", "dma", "store")
            vgap = max(1, int(cfg.vm_gap * 16 / (8 + rate)))
            recent_vm = any(y.kind in vmk for k in range(0, vgap) for y in wins.get(w - k, []))
            sgap = max(1, int(cfg.st_gap * 16 / (8 + rate)))
            if any(y.kind == "store" for k in range(0, sgap) for y in wins.get(w - k, [])):
                cand = [x for x in cand if x.kind != "store" and not (cfg.st_gap_all and x.kind in vmk)]
            dcap = cfg.ds_cap * (8 + cap) // 16
            if cfg.st_block and any(-4 * cfg.vm_gap <= b - w <= cfg.st_block for b in barw.values()):
                cand = [x for x in cand if x.kind != "store"]
            cand = [x for x in cand if (x.kind != "ds" or (not recent and dsb + nb(x) <= dcap)) and not (x.kind in vmk and recent_vm and not (getattr(x, "nogap", False) and used == 0))]
            if not cand: break
            cand.sort(key=lambda x: (-99999 if (x.kind in ("load", "dma", "dsw", "store") or (cfg.qr_asap and x.key[0] == "qr")) else x.dls, x.idx))
            if cfg.fetch_thr is not None and not tight and bucket[0] >= cfg.fetch_thr and cap - used >= 8 and cand[0].dls > w + cfg.fetch_slack:
                tr = [x for x in cand if x.kind == "trans"]
                if tr: place(tr[0]); continue
            if cap - used >= 8:
                top = cand[0]
                if top.cost >= 8: place(top); continue
                small = [x for x in cand if x.cost == 4]
                big = [x for x in cand if x.cost >= 8]
                fits = lambda a, b: not (a.kind == "ds" and b.kind == "ds" and dsb + nb(a) + nb(b) > dcap)
                partner = any(fits(top, y) for y in small if y is not top) or any(y.cost == 4 and so == 0 and y.win is None and y.kind == "valu" and all(p.win is not None or p is top for p, _, _ in y.preds) for y, so, ha in top.succs)
                if partner or not big or (cap - used) % 8: place(top)
                else: place(big[0])
                continue
            small = [x for x in cand if x.cost == 4]
            if not small: break
            place(small[0])
        bts = 8 + sum(nbytes(x) for x in cur if x.kind not in ("salu", "bar")) + (4 if any(x.kind not in ("valu", "trans") for x in cur) else 2)
        bucket[0] = max(0, bucket[0] + bts - 22 * max(16, 8 + sum(x.cost for x in cur)) // 16)
        if w >= 0: credit[0] -= max(0, min(used, cap) - cap0)
        if w not in (-1, nm - 1):
            order = {"bar": 0, "salu": 0, "dma": 1, "load": 1, "store": 1, "dsw": 1, "ds": 1, "valu": 2, "trans": 2}
            lvl = {}
            for x in cur:
                l = order[x.kind]
                for p, _, _ in x.preds:
                    if p.win == w and p.kind != "mfma": l = max(l, lvl[id(p)])
                lvl[id(x)] = l
            cur.sort(key=lambda x: lvl[id(x)])
    assert not todo, [x.key for x in todo[:10]]
    for w, c in wins.items():
        for i, x in enumerate(c): x.pos = i
    return wins, start

def norm(key, d):
    return (key[0], key[1] + d) + tuple(key[2:])

class Ins:
    def __init__(s, text, op=None, kind=None):
        s.text, s.op, s.kind = text, op, kind or (op.kind if op else "salu")
        s.vm = None; s.lg = None

def generate(cfg):
    last = 32 + max(cfg.sigma)
    cfg.q_ahead = getattr(cfg, "q_ahead", 2)
    cfg.code_pf_n = getattr(cfg, "code_pf_n", 2)
    sp = build(cfg, 0, 56, True); nms = link(cfg, sp)
    swins, sstart = schedule(cfg, sp, nms)
    per = sstart[8] - sstart[0]
    ok = None
    for b in (16, 24, 32):
        same = all([x.text for x in swins[sstart[b] + i]] == [x.text for x in swins[sstart[b + 8] + i]] and
                   [norm(x.key, 8) for x in swins[sstart[b] + i]] == [x.key for x in swins[sstart[b + 8] + i]] for i in range(per))
        if same: ok = b; break
    assert ok is not None, "steady state not periodic"
    rp = build(cfg, 0, last + 1, False)
    E_ = cfg.loop_from
    off0 = sstart[ok + E_ - 8] - sstart[ok]
    inloop = {norm(x.key, 8 + 8 * it - ok) for it in range(3) for i in range(per) for x in swins[sstart[ok] + i] if it or i >= off0}
    rp = [x for x in rp if not x.dummy or x.key in inloop]
    nm = link(cfg, rp)
    semantic_check(cfg, rp)
    rstart = {}
    for x in rp:
        if x.kind == "mfma": rstart.setdefault(x.key[1], x.m)
    L0, L1 = rstart[E_], rstart[32]
    assert L1 - L0 == 3 * per - off0
    XP = L0 + per - off0
    cfg._loop = (L0, L1)
    pins = {}
    for it in range(3):
        for i in range(per):
            for x in swins[sstart[ok] + i]:
                if it or i >= off0: pins[norm(x.key, 8 + 8 * it - ok)] = (L0 - off0 + it * per + i, x.pos)
    keys = {x.key: x for x in rp}
    assert len(keys) == len(rp)
    missing = [k for k in pins if k not in keys]
    assert not missing, missing[:10]
    lo = {}; hi = {}
    mid = [x for x in rp if x.key[:2] == ("qk", 20)][0]
    midx = rp.index(mid)
    for i, x in enumerate(rp):
        if x.kind == "mfma" or x.key in pins: continue
        if i < midx: hi[x.key] = L0 - 1
        else: lo[x.key] = L1
    wins, start = schedule(cfg, rp, nm, pins, lo, hi)
    mf = [x for x in rp if x.kind == "mfma"]
    def stat(w):
        return L0 + (w - L0) % per if L0 <= w < L1 else w
    free = {}
    pre = {}
    for w in range(-1, nm):
        if stat(w) == w:
            free[w] = []
            if w not in (-1, nm - 1):
                for x in wins[w]:
                    if x.kind == "bar": free[w].append(Ins(x.text, x))
    def body(w):
        if w in (-1, nm - 1): return wins[w]
        return [x for x in wins[w] if x.kind not in ("salu", "bar")]
    def walk(fix):
        q = {"vm": [], "lgkm": []}
        pend = {}
        hist = {}
        changed = False
        def dowait(ins):
            for c, n in (("vm", ins.vm), ("lgkm", ins.lg)):
                if n is None: continue
                while len(q[c]) > n:
                    d = q[c].pop(0)
                    for r in d.writes:
                        if pend.get(r) is d: del pend[r]
        def need(x):
            n = {}
            for r in x.reads + x.writes:
                p = pend.get(r)
                if p is not None and not (r in x.writes and r not in x.reads and p.cnt == x.cnt):
                    n[p.cnt] = p if (p.cnt not in n or q[p.cnt].index(p) > q[p.cnt].index(n[p.cnt])) else n[p.cnt]
            return n
        def issue(x):
            if x.cnt:
                q[x.cnt].append(x)
                for r in x.writes:
                    if r != "stord": pend[r] = x
        def setw(ins, c, n):
            n = min(n, 62 if c == "vm" else 14)
            if c == "vm": ins.vm = n if ins.vm is None else min(ins.vm, n)
            else: ins.lg = n if ins.lg is None else min(ins.lg, n)
        def handle(x, w, pos, cands):
            nonlocal changed
            n = need(x)
            if not n: return
            assert fix, ("unwaited", x.key, {c: p.key for c, p in n.items()})
            changed = True
            for c, p in n.items():
                done = False
                for cw in cands:
                    if cw < 0 or cw == nm - 1 or cw not in hist: continue
                    snap = hist[cw][c]
                    if p not in snap: continue
                    fl = free[stat(cw)]
                    wi = [i for i in fl if i.kind == "wait"]
                    if not wi and fl and cw != cands[-1]: continue
                    if not wi:
                        wi = [Ins("", None, "wait")]; fl.insert(0, wi[0])
                    setw(wi[0], c, len(snap) - 1 - snap.index(p)); done = True; break
                if not done:
                    ins = pre.setdefault((stat(w), pos), Ins("", None, "wait"))
                    setw(ins, c, len(q[c]) - 1 - q[c].index(p))
                while p in q[c]:
                    d = q[c].pop(0)
                    for r in d.writes:
                        if pend.get(r) is d: del pend[r]
        for w in range(-1, nm):
            if w >= 0:
                if (stat(w), "m") in pre: dowait(pre[(stat(w), "m")])
                handle(mf[w], w, "m", [w - 1, w - 2])
            hist[w] = {c: list(v) for c, v in q.items()}
            hist.pop(w - 4, None)
            for ins in list(free[stat(w)]):
                if ins.kind == "wait": dowait(ins)
                elif ins.kind == "bar":
                    x = [y for y in wins[w] if y.kind == "bar"][0]
                    handle(x, w, "b", [w - 1, w - 2, w])
            for pos, x in enumerate(body(w)):
                if (stat(w), pos) in pre: dowait(pre[(stat(w), pos)])
                handle(x, w, pos, [w, w - 1])
                issue(x)
        return changed
    for _ in range(10):
        if not walk(True): break
    walk(False)
    for w in range(0, nm - 1):
        if stat(w) != w: continue
        for x in wins[w]:
            if x.kind != "salu": continue
            hiw = min([y.win - (1 if "m0" in x.writes or y.kind == "salu" else 0) for y, _, _ in x.succs if y.win is not None] + [w + 40, nm - 2])
            if L0 <= w < XP: hiw = min(hiw, XP - 3)
            elif XP <= w < L0 + per: hiw = min(hiw, L0 + per - 1)
            elif w < L0: hiw = min(hiw, L0 - 1)
            hiw = max(hiw, w)
            c = [k for k in range(w, hiw + 1) if not free[k]]
            c2 = [k for k in c if body(k) and body(k)[0].kind in ("ds", "dma", "load", "store", "dsw")]
            k = c2[0] if c2 else (c[0] if c else w)
            if any(i.text.startswith("s_cmp") for i in free[k]): free[k].insert(0, Ins(x.text, x))
            else: free[k].append(Ins(x.text, x))
    k = [k for k in range(XP - 2, XP) if not free[k]]
    k = k[0] if k else XP - 1
    if any(i.text.startswith("s_add") for kk in range(k + 1, XP) for i in free[kk]): k = XP - 1
    free[k].append(Ins(f"s_sub_u32 s{sCnt}, s{sCnt}, 1"))
    if cfg.nop_ds:
        for w in range(0, nm - 1):
            if stat(w) == w and not free[w] and body(w) and body(w)[0].kind in ("ds", "dma", "load", "store", "dsw"):
                free[w].append(Ins("s_nop 0", None, "nop"))
    def wtext(i):
        t = "s_waitcnt"
        if i.vm is not None: t += f" vmcnt({i.vm})"
        if i.lg is not None: t += f" lgkmcnt({i.lg})"
        return t
    code = {}
    for w in range(-1, nm):
        if stat(w) != w: continue
        l = []
        if w >= 0:
            if (w, "m") in pre: l.append(pre[(w, "m")])
            l.append(Ins(mf[w].text, mf[w]))
        l += free[w]
        for pos, x in enumerate(body(w)):
            if (w, pos) in pre: l.append(pre[(w, pos)])
            l.append(Ins(x.text, x))
        for i in l:
            if i.kind == "wait": i.text = wtext(i)
        code[w] = l
    def wcost(l, head=False):
        t = 0; base = 0; lastvalu = -99; blk = 8
        for i in l:
            if i.kind == "mfma": base = t; t += 4; blk = 12 if "smfmac" in i.text else 8; continue
            if i.kind in ("salu", "wait", "bar", "nop"): t += 4; continue
            if i.kind == "nopx": t += 4 * (int(i.text.split()[1]) + 1); continue
            if not head: t = max(t, base + blk)
            if i.kind in ("valu", "trans"): t += i.op.cost; lastvalu = t
            else:
                t = max(t, lastvalu + 8) + i.op.cost
        return t if head else max(t, base + 16)
    def hazards(fix):
        seq = []
        changed = False
        for w in range(-1, nm):
            l = code[stat(w)]
            j = 0
            while j < len(l):
                i = l[j]; x = i.op
                needn = 0
                if x is not None and x.kind not in ("salu", "bar"):
                    dist = 0
                    for p, st, pwin in reversed(seq):
                        y = p.op
                        if y is not None:
                            req = 0
                            raw = set(y.writes) & set(x.reads); waw = set(y.writes) & set(x.writes); war = set(y.reads) & set(x.writes)
                            if y.kind == "mfma":
                                if x.kind == "mfma":
                                    if set(y.writes) & set(x.reads[:8]): req = 8
                                elif raw or waw: req = 12 if y.key[0] == "on" else 8
                                elif war and x.kind in ("valu", "trans") and set(y.writes) & set(x.writes): req = 3
                            elif y.kind in ("valu", "trans"):
                                if raw and x.kind == "mfma": req = 2
                                if raw and ("permlane" in x.text or "_dpp" in x.text): req = 2
                                if raw and y.kind == "trans" and x.kind != "trans": req = max(req, 1)
                            elif y.kind in ("store", "dsw") and war and y.cost == 20: req = 2
                            elif y.kind == "salu" and "m0" in y.writes and x.kind == "dma": req = 1
                            if req - dist > needn: needn = req - dist; pw = pwin
                        dist += st
                        if dist >= 12: break
                if needn > 0:
                    assert fix, ("hazard", x.key)
                    for k in range(w, pw - 1, -1):
                        if k < 0: break
                        lk = code[stat(k)]
                        mi = [n for n, z in enumerate(lk) if z.kind == "mfma"][0]
                        places = []
                        if k > pw and (k < w or j > mi): places.append(mi + 1)
                        if k < w: places.append(len(lk))
                        ok_ = False
                        for pl in places:
                            tr = lk[:pl] + [Ins("s_nop 0", None, "nopx")] + lk[pl:]
                            if wcost(tr) == wcost(lk): lk[:] = tr; ok_ = True; break
                        if ok_: return True
                    l.insert(j, Ins(f"s_nop {needn-1}", None, "nopx")); changed = True
                    continue
                st = int(i.text.split()[1]) + 1 if i.text.startswith("s_nop") else 1
                seq.append((i, st, w)); seq = seq[-14:]
                j += 1
        return changed
    while hazards(True): pass
    lastw = {}; seen = set()
    for w in range(-1, nm):
        it = (w - L0) // per if L0 <= w < L1 else 0
        for i in code[stat(w)]:
            if i.op is None: continue
            x = keys[norm(i.op.key, 8 * it)]
            assert x.text == i.text, (x.text, i.text)
            assert x.key not in seen; seen.add(x.key)
            if not x.dummy:
                for r in x.reads:
                    assert lastw.get(r) == x.prod.get(r), ("dataflow", x.key, r, lastw.get(r), x.prod.get(r))
            for r in x.writes: lastw[r] = x.key
    assert all(x.key in seen or x.dummy for x in rp), [x.key for x in rp if x.key not in seen and not x.dummy][:5]
    est = {}
    for s in range(0, last + 1):
        e = rstart.get(s + 1, nm)
        est[s] = (sum(wcost(code[stat(w)]) for w in range(rstart[s], e)), (e - rstart[s]) * 16)
    cfg.est = est; cfg.est_head = wcost(code[-1], True)
    out = []
    cfg.spins = []
    E = out.append
    stamp_at = getattr(cfg, "stamp_steps", [])
    inv = {v: k for k, v in rstart.items()}
    for w in range(-1, nm):
        if stat(w) != w: continue
        if w == L0:
            if cfg.stamps and 7.9 in stamp_at:
                j = stamp_at.index(7.9); E(f"    s_memrealtime s[{64+2*j}:{65+2*j}]")
            E("L_loop:")
        if w in inv:
            E(f"; ---- step {inv[w]} ----")
            if cfg.jitter:
                E(f"    s_cmp_lg_u32 s{sWave}, {(inv[w] * cfg.jitter[1]) & 3}\n    s_cbranch_scc1 L_j{inv[w]}\n    s_sleep {cfg.jitter[0]}\nL_j{inv[w]}:")
            if cfg.stamps and inv[w] in stamp_at:
                j = stamp_at.index(inv[w]); E(f"    s_memrealtime s[{64+2*j}:{65+2*j}]")
        for i in code[w]:
            if i.op is not None and i.op.key[0] in cfg.kill and (L0 if cfg.kill_from is None else cfg.kill_from) <= w: E("    s_nop 0")
            else: E("    " + i.text)
            if cfg.pad and i.kind == "mfma" and L0 <= w < L1 and w % cfg.pad == 0: E("    s_nop 4")
            if i.text.startswith("s_cbranch_scc1 L_spin"):
                n = i.text.split("L_spin")[1]; E(f"L_back{n}:"); cfg.spins.append(n)
        if off0 == 0:
            if w == L0 + per - 1: E("    s_cbranch_scc0 L_loop")
        else:
            if w == XP - 1: E("    s_cbranch_scc1 L_tail")
            if w == L0 + per - 1: E("    s_branch L_loop"); E("L_tail:")
    lastscc = None
    for l in out:
        t = l.strip()
        if t.startswith(("s_add", "s_sub", "s_cmp", "s_and", "s_lsh", "s_bfe", "s_or", "s_xor", "s_not")): lastscc = t
        if t.startswith("s_cbranch_scc1 L_spin"): assert lastscc.startswith("s_cmp_lt_u32"), lastscc
        if t.startswith(("s_cbranch_scc0 L_loop", "s_cbranch_scc1 L_tail")): assert lastscc.startswith(f"s_sub_u32 s{sCnt}"), lastscc
    return "\n".join(out)

def fbits(x): return struct.unpack("<I", struct.pack("<f", x))[0]

def head(cfg):
    T = vS
    h = f"""    s_load_dwordx4 s[4:7], s[0:1], 0          ; q, k
    s_load_dwordx4 s[8:11], s[0:1], 16        ; v, out
"""
    if cfg.x8: h = "    s_load_dwordx8 s[4:11], s[0:1], 0         ; q, k, v, out\n"
    if cfg.stamps: h += f"    s_load_dwordx2 s[56:57], s[0:1], {32 if cfg.stamps in ('dbg', 'skew') else 40}\n    s_memrealtime s[60:61]\n"
    h += f"""    v_lshrrev_b32 v{T}, 6, v0
    v_and_b32 v{T+4}, 63, v0                  ; lane
    v_readfirstlane_b32 s{sWave}, v{T}
    s_cmp_ge_u32 s2, 256
    s_cbranch_scc1 L_end
    v_lshlrev_b32 v{vKl}, 4, v{T+4}           ; lane*16 : source offset of every K, Q and V load
    s_and_b32 s{sTmp}, s2, 7
    s_lshr_b32 s{sTmp+1}, s2, 3
    s_lshl_b32 s{sTmp}, s{sTmp}, 5
    s_add_u32 s{sTmp}, s{sTmp}, s{sTmp+1}
    s_lshl2_add_u32 s{sTmp+2}, s{sTmp}, s{sWave}
    s_lshl_b32 s{sTmp+2}, s{sTmp+2}, 16       ; q/o byte offset of this wave
    s_lshr_b32 s{sTmp}, s{sTmp}, 2
    s_lshl_b32 s{sTmp}, s{sTmp}, 17           ; k/v byte offset of the group
    s_lshl_b32 s{sMq}, s{sWave}, 12           ; wave*4096
    s_add_u32 s{sTmp+3}, s{sTmp}, s{sMq}
    s_sub_u32 s{sK_+2}, 0x20000, s{sMq}
    s_mov_b32 s{sK_+3}, 0x20000
    s_mov_b32 s{sQ_+3}, s{sK_+3}
    s_mov_b32 s{sQ_+2}, 0x10000
"""
    if cfg.rot:
        h += f"""    s_bfe_u32 s{sTmp+4}, s2, 0x20003
    s_mul_i32 s{sTile}, s{sTmp+4}, {cfg.rot*16384}
    s_and_b32 s{sTile}, s{sTile}, 0x1ffff
    s_add_u32 s{sTile+1}, s{sTile}, 16384
    s_and_b32 s{sTile+1}, s{sTile+1}, 0x1ffff
"""
    elif cfg.xor:
        h += f"""    s_lshl_b32 s{sTile}, s2, {11 + cfg.xor[1]}
    s_and_b32 s{sTile}, s{sTile}, {cfg.xor[0] << 14:#x}
    s_xor_b32 s{sTile+1}, s{sTile}, 0x4000
"""
    else: h += f"    s_mov_b32 s{sTile}, 0\n    s_movk_i32 s{sTile+1}, 0x4000\n"
    h += f"""    s_mov_b32 s{sQo}, 0
    s_mul_i32 s{sMqs}, s{sWave}, {QW}
    s_add_u32 s{sMqs+1}, s{sMqs}, 32
    s_add_u32 s{sMqs+2}, s{sMqs}, 64
    s_add_u32 s{sMqs+3}, s{sMqs}, 96
{head2(cfg).split("@CPF")[0] + f"    global_load_dword v{vJ}, v[{T+14}:{T+15}], off" if cfg.early_pf else ""}
    s_waitcnt lgkmcnt(0)
    s_add_u32 s{sK_}, s6, s{sTmp+3}
    s_addc_u32 s{sK_+1}, s7, 0
    s_add_u32 s{sQ_}, s4, s{sTmp+2}
    s_addc_u32 s{sQ_+1}, s5, 0
"""
    if cfg.stamps: h += "    s_memrealtime s[62:63]\n"
    return h

def head2(cfg):
    c = math.log2(math.e) / math.sqrt(128.0)
    T = vS
    h = f"""    ; code prefetch into L2: 16 lines per wave, 8 KiB per workgroup
    s_getpc_b64 s[{sC_}:{sC_+1}]
L_pc:
    s_mov_b32 s{sC_+2}, L_slow - L_pc
    s_bfe_u32 s{sTmp+1}, s2, 0x30003
    s_lshl2_add_u32 s{sTmp+1}, s{sTmp+1}, s{sWave}
    s_lshl_b32 s{sTmp+1}, s{sTmp+1}, 11
    v_lshl_add_u32 v{vJ}, v{T+4}, 5, s{sTmp+1}
    v_min_u32 v{vJ}, s{sC_+2}, v{vJ}          ; stay inside the code
    v_mov_b32 v{T+15}, s{sC_+1}
    v_add_co_u32 v{T+14}, vcc, s{sC_}, v{vJ}
    s_nop 1
    v_addc_co_u32 v{T+15}, vcc, 0, v{T+15}, vcc
@CPF
    s_add_u32 s{sV_}, s8, s{sTmp+3}
    s_addc_u32 s{sV_+1}, s9, 0
    s_sub_u32 s{sC_}, s{sV_}, 8               ; second V descriptor: its loads land 8 bytes further in LDS
    s_subb_u32 s{sC_+1}, s{sV_+1}, 0
    s_add_u32 s{sC_+2}, s{sK_+2}, 8
    s_mov_b32 s{sC_+3}, 0x20000
    s_add_u32 s{sO_}, s10, s{sTmp+2}
    s_addc_u32 s{sO_+1}, s11, 0
    s_mov_b32 s{sV_+2}, s{sK_+2}
    s_mov_b32 s{sV_+3}, 0x20000
    s_mov_b32 s{sO_+2}, 0x10000
    s_mov_b32 s{sO_+3}, 0x20000
"""
    for t in range(2, 8):
        if cfg.rot: h += f"    s_add_u32 s{sTile+t}, s{sTile+t-1}, 16384\n    s_and_b32 s{sTile+t}, s{sTile+t}, 0x1ffff\n"
        elif cfg.xor: h += f"    s_xor_b32 s{sTile+t}, s{sTile}, {t*16384}\n"
        else: h += f"    s_mov_b32 s{sTile+t}, {t*16384}\n"
    h += f"""    s_mul_i32 s{sTmp+4}, s{sWave}, {VW}
    s_add_u32 s{sM0}, s{sTmp+4}, {VB}
    s_add_u32 s{sM0+1}, s{sTmp+4}, {VB + VSTR}
    s_add_u32 s{sM0+2}, s{sTmp+4}, {VB + 2 * VSTR}
    s_add_u32 s{sM0+3}, s{sTmp+4}, {VB + 3 * VSTR}
    s_mov_b32 s{sOo}, 0
    s_mov_b32 s{sExp}, 0
    s_mov_b32 s{sCnt}, 2
    s_mov_b32 s{sScale}, {fbits(c):#x}
    s_mov_b32 s{sMask}, 0xffff0000
{f"    s_mov_b32 s{sPerm}, 0x07060302" if cfg.trunc else ""}
    v_and_b32 v{T+1}, 15, v{T+4}              ; l & 15
    v_lshrrev_b32 v{T+2}, 4, v{T+4}           ; l >> 4
    v_lshlrev_b32 v{T+7}, 8, v{T+1}           ; (l&15)*256
    ; K fragment read addresses: g*256 + (row ^ g ^ 4*(ds&1))*16
    v_lshlrev_b32 v{T+3}, 8, v{T+2}
    v_xor_b32 v{T+5}, v{T+1}, v{T+2}
    v_lshl_add_u32 v{vKr}, v{T+5}, 4, v{T+3}
    v_xor_b32 v{vKr+1}, 64, v{vKr}
    v_add_u32 v{vKr+2}, {0x10000 - KSH}, v{vKr}
    v_add_u32 v{vKr+3}, {0x10000 - KSH}, v{vKr+1}
    ; K write addresses: key 16w+4i+p goes to block 2(i&1)+(p>>1), row 8(p&1)+4(i>>1)+w ; lane = 16p+c
    v_and_b32 v{T+6}, 7, v{T+1}
    v_xor_b32 v{T+6}, s{sWave}, v{T+6}
    v_lshl_add_u32 v{T+6}, v{T+6}, 4, v{T+7}
    v_and_b32 v{T+8}, 1, v{T+2}
    v_lshl_add_u32 v{T+6}, v{T+8}, 7, v{T+6}
    v_lshrrev_b32 v{T+10}, 1, v{T+2}
    v_lshl_add_u32 v{vKw}, v{T+10}, 12, v{T+6}
    v_cmp_gt_u32 vcc, 2048, v{vKw}            ; lanes that write fragments (.,0,0) and (.,0,1)
    v_add_u32 v{T+6}, {3 * 16384}, v{vKw}
    v_xor_b32 v{vKw+1}, 64, v{vKw}
    v_cndmask_b32 v{vKwS[0]}, v{vKw}, v{T+6}, vcc
    v_xor_b32 v{vKwS[1]}, 64, v{vKwS[0]}
    ; Q fragment read address: column n holds row n with bits 1 and 2 exchanged : row*256 + (row>>2)*32 + g*16
    v_and_b32 v{T+9}, 3, v{T+4}
    v_lshrrev_b32 v{T+12}, 2, v{T+1}
    v_lshrrev_b32 v{T+6}, 1, v{T+1}
    v_xor_b32 v{T+6}, v{T+6}, v{T+12}
    v_and_b32 v{T+6}, 1, v{T+6}
    v_mul_u32_u24 v{T+6}, 6, v{T+6}
    v_xor_b32 v{T+13}, v{T+6}, v{T+1}         ; row
    v_lshrrev_b32 v{T+6}, 2, v{T+13}
    v_lshlrev_b32 v{T+6}, 5, v{T+6}
    v_lshl_add_u32 v{T+6}, v{T+13}, 8, v{T+6}
    v_lshl_add_u32 v{T+6}, v{T+2}, 4, v{T+6}
    v_add_u32 v{vQr}, s{sMqs}, v{T+6}
    ; V transposed-read address: lane = 16g+4r+c reads 8 bytes of chunk c of key 16r+8(g&1)+2kb+(g>>1)
    v_mul_u32_u24 v{T+6}, 2056, v{T+8}
    v_lshl_add_u32 v{T+6}, v{T+10}, 8, v{T+6}
    v_lshl_add_u32 v{T+6}, v{T+9}, 4, v{T+6}
    v_mul_u32_u24 v{T+8}, {VW}, v{T+12}
    v_add_u32 v{T+8}, {VB}, v{T+8}
    v_add_u32 v{vV}, v{T+8}, v{T+6}
"""
    h += f"""    ; output: a store covers 8 rows x 128 bytes: row(n&7)*256 + (n>>3)*64 + g*16
    v_and_b32 v{T+10}, 7, v{T+13}
    v_lshlrev_b32 v{T+10}, 8, v{T+10}
    v_lshl_add_u32 v{T+10}, v{T+2}, 4, v{T+10}
    v_and_b32 v{T+11}, 8, v{T+1}
    v_lshl_add_u32 v{vO}, v{T+11}, 3, v{T+10}
"""
    h += f"""    ; row-sum operand: rows 4i and 4i+1 are ones; they pick elements 0,1 and 2,3 of every group of four keys
    v_cmp_eq_u32 vcc, 1, v{T+9}
    v_mov_b32 v{T+6}, 0x44444444
    v_mov_b32 v{T+8}, 0xeeeeeeee
    v_cndmask_b32 v{vIdx}, v{T+6}, v{T+8}, vcc
    v_cmp_gt_u32 vcc, {0 if cfg.ones_rows == 0 else 2}, v{T+9 if cfg.ones_rows == 8 else T+1}
    v_mov_b32 v{T+6}, 0x3f803f80
    v_mov_b32 v{vChk}, {'-1' if cfg.force_slow else '0'}
    v_cndmask_b32 v{T+6}, 0, v{T+6}, vcc
    v_lshlrev_b32 v{vCnt}, 2, v{T+4}
    v_add_u32 v{vCnt}, {CB:#x}, v{vCnt}
    v_mov_b32 v{vOne}, v{T+6}
    v_mov_b32 v{vOne+1}, v{T+6}
    v_mov_b32 v{vOne+2}, v{T+6}
    v_mov_b32 v{vOne+3}, v{T+6}
{"".join(f"    v_mov_b32 v{vKp2+i}, {fbits(cfg.cfake):#x}" + chr(10) for i in range(4)) if cfg.cfake is not None else ""}    v_mov_b32 v{vCone}, 1
    v_mov_b32 v{vPoll}, 0
    s_mov_b32 vcc_lo, 0xff00ff00              ; lanes with (l & 8), used by the output selects
    s_mov_b32 vcc_hi, 0xff00ff00
"""
    if cfg.split_min_u > 4:
        h = "\n".join(l for l in h.split("\n") if not l.startswith((f"    v_lshlrev_b32 v{vCnt},", f"    v_add_u32 v{vCnt},", f"    v_mov_b32 v{vCone},", f"    v_mov_b32 v{vPoll},", f"    s_mov_b32 s{sExp},")))
    return h

def tail(cfg):
    lim = (127 + cfg.limit_exp) << 23
    t = ""
    if cfg.stamps == "skew":
        t += """    s_waitcnt vmcnt(0)
    s_memrealtime s[66:67]
    s_mov_b32 s58, 256
    s_mov_b32 s59, 0x20000
    s_not_b32 s64, s60
    v_mov_b32 v64, s64
    v_mov_b32 v60, 0
    s_mov_b64 exec, 1
L_sk0:
    s_memrealtime s[72:73]
    s_waitcnt lgkmcnt(0)
    s_sub_u32 s72, s72, s60
    s_cmp_lt_u32 s72, 6500
    s_cbranch_scc1 L_sk0
    s_cmp_lg_u32 s3, 0
    s_cbranch_scc1 L_sk1
    buffer_atomic_umax v64, v60, s[56:59], 0 offen
    s_waitcnt vmcnt(0)
L_sk1:
    s_memrealtime s[72:73]
    s_waitcnt lgkmcnt(0)
    s_sub_u32 s72, s72, s60
    s_cmp_lt_u32 s72, 8000
    s_cbranch_scc1 L_sk1
    buffer_load_dword v64, v60, s[56:59], 0 offen sc0 sc1
    s_waitcnt vmcnt(0)
    v_readfirstlane_b32 s64, v64
    s_nop 4
    s_not_b32 s64, s64
    s_sub_u32 s66, s66, s64
    s_min_u32 s66, s66, 10000
    s_mul_i32 s66, s66, 10
    s_add_u32 s66, s66, 10000
L_sk2:
    s_memrealtime s[72:73]
    s_waitcnt lgkmcnt(0)
    s_sub_u32 s72, s72, s64
    s_cmp_lt_u32 s72, s66
    s_cbranch_scc1 L_sk2
    s_mov_b64 exec, -1
"""
    elif cfg.stamps == "spin":
        if not getattr(cfg, "stamp_steps", []): t += "    s_waitcnt vmcnt(0)\n    s_memrealtime s[64:65]\n"
        t += f"""    s_waitcnt lgkmcnt(0)
    {"s_sub_u32 s64, s66, s64" if len(getattr(cfg, "stamp_steps", [])) == 2 else "s_sub_u32 s64, s64, s60"}
    s_mul_i32 s64, s64, {getattr(cfg, "spin_mul", 0)}
    s_add_u32 s64, s64, 10000
L_spin:
    s_memrealtime s[72:73]
    s_waitcnt lgkmcnt(0)
    s_sub_u32 s72, s72, s60
    s_cmp_lt_u32 s72, s64
    s_cbranch_scc1 L_spin
"""
    elif cfg.stamps:
        e0 = 88 if cfg.stamps == "c16" else 72
        t += f"""    s_memrealtime s[{e0}:{e0+1}]
    s_waitcnt vmcnt(0)
    s_memrealtime s[{e0+2}:{e0+3}]
    s_mov_b32 s58, 0x10000000
    s_mov_b32 s59, 0x20000
    s_lshl_b32 s46, s2, 2
    s_add_u32 s46, s46, s3
    s_lshl_b32 s46, s46, 6
    s_waitcnt lgkmcnt(0)
"""
        for i in range(16): t += f"    v_mov_b32 v{64+i}, s{60+(2*i if cfg.stamps == 'c16' else i)}\n"
        t += "    v_mov_b32 v60, 0\n    s_mov_b64 exec, 1\n"
        if cfg.stamps == "dbg":
            t += "    s_mov_b32 s58, 256\n"
            for i in range(8):
                t += f"    v_not_b32 v{65+2*i}, v{64+2*i}\n"
            for i in range(16): t += f"    buffer_atomic_umax v{64+i}, v60, s[56:59], 0 offen offset:{4*i}\n"
        else:
          for i in range(4): t += f"    buffer_store_dwordx4 v[{64+4*i}:{67+4*i}], v60, s[56:59], s46 offen offset:{16*i}\n"
        t += "    s_mov_b64 exec, -1\n"
    t += f"""    v_cmp_lt_u32 vcc, {lim:#x}, v{vChk}
    s_nop 4
    s_cbranch_vccnz L_slow
L_end:
    s_endpgm
"""
    for n in cfg.spins:
        t += f"""L_spin{n}:
    ds_read_b32 v{vPoll}, v{vCnt}
    s_waitcnt lgkmcnt(0)
    v_readfirstlane_b32 s{sPol}, v{vPoll}
    s_nop 3
    s_cmp_lt_u32 s{sPol}, s{sExp}
    s_cbranch_scc1 L_spin{n}
    s_branch L_back{n}
"""
    S0, S1, M, T = 16, 20, 24, 25
    vQ = vQr; vKb = vKr + 2
    q = lambda ds: at(aQ + 4 * ds, 4)
    k = lambda j, ds: at(aK + j * 16 + 4 * ds, 4)
    t += f"""; Fallback: a row sum left [2^-{cfg.limit_exp}, 2^{cfg.limit_exp}] (or is not finite), so the constant offset was not safe.
; This wave recomputes its 256 rows subtracting the true row maximum.  K is rebuilt in LDS; V goes through a private 8 KiB.
L_slow:
    s_waitcnt vmcnt(0) lgkmcnt(0)
    s_barrier                                 ; the other waves are done with LDS (ended or here)
    s_mov_b32 s{sQo}, 0
    s_lshl_b32 s{sTmp}, s{sWave}, 12
    s_lshl_b32 s{sTmp+1}, s{sWave}, 13
    s_add_u32 s{sTmp+2}, s{sTmp+1}, 0x20000
    s_add_u32 s{sTmp+3}, s{sTmp+2}, 4096
    s_sub_u32 s{sV_}, s{sV_}, s{sTmp}
    s_subb_u32 s{sV_+1}, s{sV_+1}, 0
    s_mov_b32 s{sV_+2}, 0x20000
    v_bfe_u32 v{T}, v{vKl}, 4, 4              ; l & 15
    v_lshrrev_b32 v{T+1}, 8, v{vKl}           ; l >> 4
    v_lshlrev_b32 v{vQ}, 4, v{T+1}
    v_lshl_add_u32 v{vQ}, v{T}, 8, v{vQ}      ; Q rows in MFMA layout
    v_xor_b32 v{T+1}, v{T}, v{T+1}
    v_and_b32 v{T+1}, 7, v{T+1}
    v_lshlrev_b32 v{T+1}, 4, v{T+1}
    v_lshl_add_u32 v{vKw}, v{T}, 8, v{T+1}
    v_xor_b32 v{vKw+1}, 64, v{vKw}
    v_lshrrev_b32 v{T+1}, 6, v{vKl}           ; 4g+r
    v_lshlrev_b32 v{T+1}, 8, v{T+1}
    v_and_b32 v{T}, 0x30, v{vKl}              ; c*16
    v_add3_u32 v{vV}, v{T}, v{T+1}, s{sTmp+2}
"""
    t += f"""    s_sub_u32 s{sK_}, s{sK_}, s{sTmp}
    s_subb_u32 s{sK_+1}, s{sK_+1}, 0
    s_mov_b32 s{sK_+2}, 0x20000
    s_mov_b32 s{sCnt}, 0
L_skld:
"""
    for i in range(4): t += f"    buffer_load_dwordx4 {vt(vOa+4*i,4)}, v{vKl}, s[{sK_}:{sK_+3}], s{sCnt} offen offset:{i*1024}\n"
    t += "    s_waitcnt vmcnt(0)\n"
    for x in range(vOa, vOa + 16):
        t += f"""    v_lshlrev_b32 v{T}, 16, v{x}
    v_and_b32 v{x}, s{sMask}, v{x}
    v_mul_f32 v{T}, s{sScale}, v{T}
    v_mul_f32 v{x}, s{sScale}, v{x}
    v_cvt_pk_bf16_f32 v{x}, v{T}, v{x}
"""
    for i in range(4): t += f"    ds_write_b128 v{vKw+(i&1)}, {vt(vOa+4*i,4)} offset:{(i>>1)*128}\n"
    t += f"""    s_waitcnt lgkmcnt(0)
    v_add_u32 v{vKw}, 4096, v{vKw}
    v_add_u32 v{vKw+1}, 4096, v{vKw+1}
    s_add_u32 s{sCnt}, s{sCnt}, 4096
    s_cmp_lt_u32 s{sCnt}, 0x20000
    s_cbranch_scc1 L_skld
"""
    t += "L_sblk:\n"
    for ds in range(4): t += f"    buffer_load_dwordx4 {q(ds)}, v{vQ}, s[{sQ_}:{sQ_+3}], s{sQo} offen offset:{ds*64}\n"
    t += f"""    v_mov_b32 v{M}, 0xff800000
    v_mov_b32 v{vKb}, v{vKr}
    v_mov_b32 v{vKb+1}, v{vKr+1}
    s_mov_b32 s{sCnt}, 32
    s_waitcnt vmcnt(0)
L_smax:
"""
    for ds in range(4): t += f"    ds_read_b128 {k(0,ds)}, v{vKb+(ds&1)} offset:{ds*1024}\n"
    t += "    s_waitcnt lgkmcnt(0)\n"
    for ds in range(4): t += f"    v_mfma_f32_16x16x32_bf16 {vt(S0,4)}, {k(0,ds)}, {q(ds)}, {'0' if ds == 0 else vt(S0,4)}\n"
    t += f"""    s_nop 7
    v_max3_f32 v{M}, v{M}, v{S0}, v{S0+1}
    v_max3_f32 v{M}, v{M}, v{S0+2}, v{S0+3}
    v_add_u32 v{vKb}, 4096, v{vKb}
    v_add_u32 v{vKb+1}, 4096, v{vKb+1}
    s_sub_u32 s{sCnt}, s{sCnt}, 1
    s_cmp_lg_u32 s{sCnt}, 0
    s_cbranch_scc1 L_smax
    v_mov_b32 v{T}, v{M}
    s_nop 1
    v_permlane16_swap_b32 v{M}, v{T}
    s_nop 1
    v_max_f32 v{M}, v{M}, v{T}
    v_mov_b32 v{T}, v{M}
    s_nop 1
    v_permlane32_swap_b32 v{M}, v{T}
    s_nop 1
    v_max_f32 v{M}, v{M}, v{T}
"""
    for r in range(4): t += f"    v_mov_b32 v{vL+r}, 0\n"
    for r in range(32): t += f"    v_mov_b32 v{vOa+r}, 0\n"
    t += f"""    v_mov_b32 v{vKb}, v{vKr}
    v_mov_b32 v{vKb+1}, v{vKr+1}
    s_mov_b32 s{sCnt}, 0
L_skey:
    s_mov_b32 m0, s{sTmp+2}
    s_mov_b32 s{sTmp+5}, s{sCnt}
    s_add_u32 s{sTmp+4}, s{sTmp+5}, 4096
"""
    for i in range(4): t += f"    buffer_load_dwordx4 v{vD0}, s[{sV_}:{sV_+3}], s{sTmp+5} offen offset:{i*1024} lds\n"
    t += f"    s_mov_b32 m0, s{sTmp+3}\n    s_nop 0\n"
    for i in range(4): t += f"    buffer_load_dwordx4 v{vD0}, s[{sV_}:{sV_+3}], s{sTmp+4} offen offset:{i*1024} lds\n"
    for j in range(2):
        for ds in range(4): t += f"    ds_read_b128 {k(j,ds)}, v{vKb+(ds&1)} offset:{j*4096+ds*1024}\n"
    t += "    s_waitcnt vmcnt(0) lgkmcnt(0)\n"
    for db in range(8):
        for h in range(2): t += f"    ds_read_b64_tr_b16 {at(aV+db*4+2*h,2)}, v{vV} offset:{h*4096+(db>>1)*64+(db&1)*8}\n"
    for j, S in enumerate((S0, S1)):
        for ds in range(4): t += f"    v_mfma_f32_16x16x32_bf16 {vt(S,4)}, {k(j,ds)}, {q(ds)}, {'0' if ds == 0 else vt(S,4)}\n"
    t += "    s_nop 7\n"
    for r in range(8): t += f"    v_sub_f32 v{S0+r}, v{S0+r}, v{M}\n"
    for r in range(8): t += f"    v_exp_f32 v{S0+r}, v{S0+r}\n"
    t += "    s_nop 0\n"
    for r in range(4): t += f"    v_cvt_pk_bf16_f32 v{vP+r}, v{S0+2*r}, v{S0+2*r+1}\n"
    t += f"    v_add_u32 v{vKb}, 8192, v{vKb}\n    v_add_u32 v{vKb+1}, 8192, v{vKb+1}\n    s_waitcnt lgkmcnt(0)\n    s_nop 0\n"
    t += f"    v_mfma_f32_16x16x32_bf16 {vt(vL,4)}, {vt(vOne,4)}, {vt(vP,4)}, {vt(vL,4)}\n"
    for db in range(8): t += f"    v_mfma_f32_16x16x32_bf16 {vt(vOa+4*db,4)}, {at(aV+db*4,4)}, {vt(vP,4)}, {vt(vOa+4*db,4)}\n"
    t += f"""    s_add_u32 s{sCnt}, s{sCnt}, 8192
    s_cmp_lt_u32 s{sCnt}, 0x20000
    s_cbranch_scc1 L_skey
    s_nop 7
    v_rcp_f32 v{vR}, v{vL}
    s_nop 0
"""
    for r in range(32): t += f"    v_mul_f32 v{vOa+r}, v{vOa+r}, v{vR}\n"
    for db in range(8):
        o = vOa + 4 * db; d = vP + 2 * db
        t += f"    v_cvt_pk_bf16_f32 v{d}, v{o}, v{o+1}\n    v_cvt_pk_bf16_f32 v{d+1}, v{o+2}, v{o+3}\n"
    if cfg.store_x4:
        t += "    s_nop 1\n"
        for db in range(0, 8, 2):
            d = vP + 2 * db
            if not cfg.vperm: t += f"    v_permlane16_swap_b32 v{d}, v{d+2}\n    v_permlane16_swap_b32 v{d+1}, v{d+3}\n"
            t += f"    buffer_store_dwordx4 {vt(d,4)}, v{vQ}, s[{sO_}:{sO_+3}], s{sQo} offen offset:{db*32}\n"
    else:
        for db in range(8): t += f"    buffer_store_dwordx2 {vt(vP+2*db,2)}, v{vO}, s[{sO_}:{sO_+3}], s{sQo} offen offset:{db*32}\n"
    t += f"""    s_add_u32 s{sQo}, s{sQo}, 4096
    s_cmp_lt_u32 s{sQo}, 0x10000
    s_waitcnt vmcnt(0)
    s_cbranch_scc1 L_sblk
    s_endpgm
"""
    return t

HDR = """; Kernarg layout for this problem (48 bytes, ptrs only, base s[0:1]):
;   offset   0: d_in[0] q  shape=(16, 32, 512, 128) dtype=bfloat16
;   offset   8: d_in[1] k  shape=(16, 4, 512, 128) dtype=bfloat16
;   offset  16: d_in[2] v  shape=(16, 4, 512, 128) dtype=bfloat16
;   offset  24: d_out     shape=(16, 32, 512, 128) dtype=bfloat16
;   offset  32: d_debug   256 bytes
;   offset  40: d_ws      268435456 bytes workspace (unused)
; @launch grid=(256,1,1) block=(256,1,1) lds=163840
;
; GQA attention forward, out = softmax(q k^T / sqrt(128)) v.  Generated by my own scheduling script.
; * One workgroup per CU: 1024 q rows against the 512 keys of one (batch, kv head); each wave owns 256 rows and keeps
;   four 16-row blocks in flight, started two key tiles apart (a block walks the eight 64-key tiles cyclically).
; * v_mfma_f32_16x16x32_bf16 for S^T = K Q^T and O^T = V^T P^T; P goes from the S registers straight into the B operand.
;   K is multiplied by log2(e)/sqrt(128) once and stays in LDS (one tile in registers); V streams through a two-slot LDS
;   ring by LDS-DMA (one and a half tiles in registers) and is read with ds_read_b64_tr_b16; Q is staged through LDS.
; * Row sums come from one v_smfmac per block and tile (rows of ones with complementary 2:4 index patterns).
; * One s_barrier per key tile publishes the next V tile and frees the slot of the previous one.
; * Softmax guard: softmax is invariant under a per-row shift, so the main path subtracts the constant 4 (log2 units, the
;   C input of the first QK MFMA) in place of the row maximum and CHECKS every row sum l
;   at run time: l and 1/l must both be <= 2^32 (this also rejects inf and NaN).  Inside that range nothing overflowed and
;   recomputes all its rows subtracting the true row maximum.
"""

PAD = """; Instruction prefetch stops at 4 KiB boundaries: start the kernel on one (the harness puts 0x300 bytes in front of the label).
.p2align 12
.fill 832, 4, 0xbf800000
"""

def add_hops(cfg, text):
    import subprocess, re, os, tempfile
    lines = text.split("\n")
    i0 = lines.index(KN + ":"); i1 = lines.index("L_end:")
    tmp = tempfile.mkdtemp()
    src = "\n".join(lines).replace("@HOPS", "\n".join(["    s_nop 0"] * 9))
    lines = src.split("\n"); i1 = lines.index("L_end:")
    hop0 = text.split("\n").index("@HOPS")
    open(tmp + "/a.s", "w").write(src)
    subprocess.run(["clang", "-x", "assembler", "-target", "amdgcn-amd-amdhsa", "-mcpu=gfx950", "-c", tmp + "/a.s", "-o", tmp + "/a.o"], check=True)
    dis = subprocess.run(["llvm-objdump", "-d", "--mcpu=gfx950", tmp + "/a.o"], capture_output=True, text=True).stdout
    dis = dis[dis.index("<" + KN + ">:"):]
    sizes = [4 * len(m.group(1).split()) for m in re.finditer(r"// [0-9A-F]{12}: ([0-9A-F ]+)", dis)]
    isins = lambda l: l.startswith("    ") and not l.strip().startswith(";") and l.strip()
    out = lines[:i0 + 1]; addr = 0; k = 0; page = 1; j = i0 + 1
    def look(j, k, addr, page):
        cands = []
        while addr < page * 4096 + 64 and j < i1:
            if isins(lines[j]):
                addr += sizes[k]; k += 1
                if "mfma" in lines[j] and page * 4096 <= addr <= page * 4096 + 60:
                    nx = lines[j + 1].strip()
                    cands.append((0 if nx == "s_nop 0" else (1 if nx.startswith("v_") else 2), j))
                elif page * 4096 <= addr <= page * 4096 + 60 and lines[j].strip().startswith("v_"): cands.append((3, j))
            j += 1
        return min(cands) if cands else None
    plan = None
    while j < i1:
        l = lines[j]
        if plan is None and addr >= page * 4096 - 64:
            plan = look(j, k, addr, page)
            if plan is None: page_end = True
        out.append(l)
        if isins(l): addr += sizes[k]; k += 1
        if plan and plan[1] == j:
            out.append(f"L_hop{page}:"); out.append(f"    s_cbranch_execz @NEXT{page}@"); addr += 4
            if plan[0] == 0: j += 1; k += 1
            plan = None; page += 1
        j += 1
    out += lines[i1:]
    np_ = page - 1
    r = "\n".join(out)
    for p in range(1, np_ + 1): r = r.replace(f"@NEXT{p}@", f"L_hop{p+4}" if p + 4 <= np_ else "L_hback")
    rl = r.split("\n")
    rl[hop0:hop0 + 9] = ["    s_mov_b64 exec, 0                         ; warm the instruction cache: visit the first line of every code page"] + \
        [x for w in range(3) for x in (f"    s_cmp_eq_u32 s{sWave}, {w}", f"    s_cbranch_scc1 L_hop{w+1}")] + ["    s_branch L_hop4", "L_hback:", "    s_mov_b64 exec, -1"]
    return "\n".join(rl)

def full(cfg):
    body = generate(cfg)
    r = full2(cfg, body)
    if getattr(cfg, "spin_cyc", 0):
        r = r.replace("s_memrealtime s[64:65]", "s_memtime s[64:65]").replace("s_memrealtime s[66:67]", "s_memtime s[66:67]").replace("s_memrealtime s[62:63]", "s_memtime s[62:63]")
        r = r.replace("s_sub_u32 s64, s64, s60", "s_sub_u32 s64, s64, s62").replace("s_mul_i32 s64, s64, 0", "s_lshr_b32 s64, s64, 1")
    if cfg.stamps in ("cyc", "c16"): r = r.replace("s_memrealtime", "s_memtime")
    if cfg.stamps == "both":
        import re
        r = re.sub(r"    s_memrealtime s\[(\d+):(\d+)\]", lambda m: f"    s_memtime s[{m.group(1)}:{m.group(2)}]\n    s_memrealtime s[{int(m.group(1))+20}:{int(m.group(2))+20}]", r)
        for i in range(8): r = r.replace(f"v_mov_b32 v{65+2*i}, s{61+2*i}\n", f"v_mov_b32 v{65+2*i}, s{80+2*i}\n")
    if "@HOPS" in r: r = add_hops(cfg, r.replace("    @HOPS", "@HOPS"))
    return r

def full2(cfg, body):
    return HDR + f""".amdgcn_target "amdgcn-amd-amdhsa--gfx950"
.text
.globl {KN}
{PAD if cfg.align else ""}.p2align 8
.type {KN},@function
{KN}:
""" + head(cfg) + body + "\n" + tail(cfg) + f""".section .rodata,"a"
.p2align 6
.amdhsa_kernel {KN}
  .amdhsa_next_free_vgpr 512
  .amdhsa_next_free_sgpr 102
  .amdhsa_accum_offset 256
  .amdhsa_group_segment_fixed_size 0
  .amdhsa_kernarg_size 48
  .amdhsa_user_sgpr_count 2
  .amdhsa_user_sgpr_kernarg_segment_ptr 1
  .amdhsa_system_sgpr_workgroup_id_x 1
.end_amdhsa_kernel
"""

if __name__ == "__main__":
    cfg = Cfg()
    name = sys.argv[1]
    for a in sys.argv[2:]:
        k, v = a.split("=", 1)
        try: v = eval(v)
        except Exception: pass
        setattr(cfg, k, v)
    s = full(cfg)
    open(name, "w").write(s)
    tot = sum(v[0] for v in cfg.est.values())
    print(name, "est head", cfg.est_head, "total", tot, "mfma", sum(v[1] for v in cfg.est.values()), file=sys.stderr)
    print(" ".join(f"{s}:{v[0]}/{v[1]}" for s, v in cfg.est.items() if s < 16 or s >= 32), file=sys.stderr)
```

```python
import sys, math, struct
KN = "standalone__gqa_softmax__near_ridge_kernel"

class Cfg:
    sigma = (0, 2, 4, 6)
    beta = 0.94
    beta_small = 0.55
    ds_lat = 7
    mv_lat = 4
    store_x4 = True
    q_nt = "nt"
    st_pol = "sc1"
    k_pol = "nt"
    v_pol = ""
    v_pol0 = "nt"
    rot = 0
    split_from = 4
    split_min_u = 9
    arr_gap = 10
    vm_gap = 5
    smooth = True
    stamps = False
    code_pf = True
    plan = "K0 Q0 C K1 H W00 V0 S0 B r0 r1 R0 K2 S1@0.0 V1@0.0 Q1@0.5 K3@1.0 V2@1.5 R1@2.0 K4@2.0 Q2@2.3 V3@2.6 K5@3.0 V4@3.4 K6@3.b R2@3.b Q3@4.0 K7@4.b R3@5.b Q4@6.0"
    vperm = True
    st_last = "sc1"
    st_last_from = 38
    ones_rows = 8
    trunc = False
    fake_st = False
    fake_v = False
    fake_m0 = 0
    v_n0 = 5
    st_block = 0
    c_pol = ""
    st_first = None
    st_pair = False
    fetch_thr = 1
    fetch_slack = 1
    st_gap = 16
    st_gap_all = False
    pf2 = False
    x8 = True
    qr_asap = True
    full_until = 35
    kst = [(1, 0), (1, 1), (2, 0), (2, 1), (3, 0), (3, 1), (3, "P"), (3, 0)]
    jitter = None
    xor = None
    qlag = {}
    lags = {}
    tailpub = {33: [33, 34], 35: [35, 37]}
    align = True
    early_pf = True
    sigma0 = None
    loop_from = 8
    vtouch = False
    group = 2
    group_min = 2
    rev = True
    snake = True
    on_first = True
    fake = ""
    cinit = "-4.0"
    cfake = None
    oinit = "0"
    half = True
    obias = None
    ob_exp = 5
    limit_lo = 2
    vm_gap_loop = None
    pk = (0, 3, 4, 5, 6, 7)
    deep = True
    tail_dl = 1.0
    betas = {0: 0.95, 1: 0.9, 2: 0.8, 3: 0.8}
    arr_gap_small = 4
    k_up = 1
    force_slow = False
    nop_ds = True
    ds_gap = 2
    ds_cap = 1024
    kill_from = None
    pad = 0
    kill = ()
    limit_exp = 32

vQd, vO, vQr, vCnt, vD0, vChk = 0, 2, 3, 4, 0, 58
vB = 4
vKwS = (49, 48)
vKp2 = 8
vKl = 0
vV = 1
vS = 16
vL = 32
vR = 48
vKw = 50
vT = 52
NT = 5
vIdx = 57
vPoll = 7
vJ = 59
vKr = 60
vP = 64
vOa = 128
aQ, aKp, aVp, aK, aV = 0, 64, 128, 192, 224
vOne, vCone, vKp1, vO2, vO3 = 12, 6, 52, 56, 59
sPol = 40
sLo, sBc = 41, 53
sMqs = 76
TV = 4
TMPS = [44, 45, 46, 47, 56]
sQ_, sK_, sV_, sO_, sC_ = 12, 16, 20, 24, 28
sTile = 32
sM0 = 96
sQo, sOo, sCnt, sScale, sWave = 42, 43, 44, 45, 3
sTmp = 46
sMq, sExp, sMask, sPerm = 52, 53, 54, 55

VB, VSTR, KSH, VW = 0x18000 - 800, 16584, 800, 4160
QW, CB = 4192, 0x4180
def vr(b, n=1): return [f"v{b+i}" for i in range(n)]
def ar(b, n=1): return [f"a{b+i}" for i in range(n)]
def vt(b, n): return f"v[{b}:{b+n-1}]"
def at(b, n): return f"a[{b}:{b+n-1}]"

class Op:
    def __init__(s, key, text, kind, reads, writes, cost=None, earliest=None, dummy=False, anchor=None, maxdl=None):
        s.key, s.text, s.kind, s.reads, s.writes = key, text, kind, list(reads), list(writes)
        s.cost = {"mfma": 0, "trans": 8, "valu": 4, "ds": 4, "dsw": 20, "load": 8, "dma": 8, "store": 12, "salu": 0, "bar": 0, "chk": 0}[kind] if cost is None else cost
        s.cnt = {"ds": "lgkm", "dsw": "lgkm", "load": "vm", "dma": "vm", "store": "vm"}.get(kind)
        s.earliest = earliest
        s.maxdl = maxdl
        s.dummy = dummy
        s.anchor = anchor
        s.preds = []; s.succs = []; s.win = None; s.pos = None; s.m = None
        s.prod = {}

def blockpos(cfg, s, u):
    s0 = (cfg.sigma0 or cfg.sigma)[u]
    if s0 <= s < s0 + 8: return (0, s - s0)
    if cfg.sigma[u] + 8 <= s < cfg.sigma[u] + 32: return divmod(s - cfg.sigma[u], 8)
    return (None, None)

def build(cfg, s0, s1, steady):
    sg = cfg.sigma
    NP = 4
    last = 32 + max(sg)
    def li(s, u): return (s - sg[u]) % 8 if steady else blockpos(cfg, s, u)[1]
    def qk_on(s, u): return li(s, u) is not None
    def pv_on(s, u): return li(s - 1, u) is not None
    def order_qk(s, kb):
        us = [u for u in range(4) if qk_on(s, u)]
        if kb == 3:
            f = [u for u in us if li(s, u) == 7]
            us = f + [u for u in us if u not in f]
        if kb == 0:
            f = [u for u in us if li(s, u) == 0]
            us = [u for u in us if u not in f] + f
        return us
    prog = []
    A = prog.append
    chain = 0
    pend_q = []
    def qload(key, earliest=None, dummy=False, alt=False):
        if alt:
            A(Op(key + ("m0",), f"s_add_u32 m0, s{sMq}, {0x8000 - KSH}", "salu", [], ["m0"]))
            for i in range(4):
                A(Op(key + (i,), f"buffer_load_dwordx4 v{vQd}, s[{sQ_}:{sQ_+3}], s{sQo} offen offset:{i*1024} {cfg.q_nt} lds".replace("  ", " "), "dma",
                     [f"s{sQo}", "m0"], [f"Qa{i}"], earliest=earliest))
            A(Op(key + ("inc",), f"s_add_u32 s{sQo}, s{sQo}, 4096", "salu", [f"s{sQo}"], [f"s{sQo}"]))
            return
        for i in range(4):
            A(Op(key + (f"m{i}",), f"s_mov_b32 m0, s{sMqs + i}", "salu", [], ["m0"], dummy=dummy))
            A(Op(key + (i,), f"buffer_load_dwordx4 v{vQd}, s[{sQ_}:{sQ_+3}], s{sQo} offen offset:{i*1024} {cfg.q_nt} lds".replace("  ", " "), "dma",
                 [f"s{sQo}", "m0"] + [f"Qrd{d}" for d in range(4)], [f"Qs{i}"], earliest=earliest, dummy=dummy))
        A(Op(key + ("inc",), f"s_add_u32 s{sQo}, s{sQo}, 4096", "salu", [f"s{sQo}"], [f"s{sQo}"], dummy=dummy))
    def qread(key, u, earliest=None, dummy=False, alt=False):
        for ds in range(4):
            d = aQ + 16 * u + 4 * ds
            if alt:
                A(Op(key + (ds,), f"ds_read_b128 {at(d,4)}, v{vQr} offset:{0x8000 - KSH + ds*64}", "ds", [f"Qa{i}" for i in range(4)], ar(d, 4) + [f"Qar{ds}"], earliest=earliest))
                continue
            A(Op(key + (ds,), f"ds_read_b128 {at(d,4)}, v{vQr} offset:{ds*64}", "ds", [f"Qs{i}" for i in range(4)], ar(d, 4) + [f"Qrd{ds}"], earliest=earliest, dummy=dummy))
    def kfrag(s, kb, ds):
        t = s % 8
        if (t, kb, ds) == (1, 0, 0): return ("v", vKp1)
        if (t, kb, ds) == (1, 0, 1): return ("v", vKp2) if cfg.cfake is None else ("w", vKp1)
        if t == 0 or (not steady and s >= 34): return ("a", aKp + kb * 16 + ds * 4)
        if not steady and s <= 4: return ("a", aK + kb * 16 + ds * 4)
        if cfg.half: return ("a", 224 + ds * 4)
        return ("a", aK + (kb & 1) * 16 + ds * 4)
    def vperm_(sv): return sv % 8 == TV and (steady or sv >= 8)
    def vhalf(sv): return cfg.half and sv % 8 == TV + 1 and (steady or sv >= 8)
    def vfrag(sv, db, ks):
        if cfg.half and sv % 8 == TV + 1 and ks == 0: return 192 + db * 4
        return vfrag0(sv, db) + ks * 4
    def vfrag0(sv, db):
        if sv % 8 == TV or (not steady and sv < TV): return aVp + db * 8
        if cfg.half:
            ring = [240]
            if not steady and sv >= 33: ring = [240, aQ]
            if not steady and sv >= 34: ring = [240, aQ, aQ + 16, 224]
            return ring[(db >> 1) % len(ring)] + (db & 1) * 8
        if not steady and sv >= 34 and db >= 4: return aQ + (db - 4) * 8
        return aV + (db & 3) * 8
    rt = lambda f, n: f"{f[0].replace('w', 'v')}[{f[1]}:{f[1]+n-1}]"
    rr = lambda f, n: [f"{f[0]}{f[1]+i}" for i in range(n)]
    def vslot(sv):
        if not steady and sv in (2, 3, 34, 35): return sv & 1
        if not steady and sv == 37: return 3
        return 2 + (((sv - TV - 1) % 8) & 1)
    def vprev(sv):
        if vslot(sv) < 2: return ["Kret67"] if sv > 8 else []
        p = sv - 1
        while p >= 0 and (vslot(p) != vslot(sv) or vperm_(p)): p -= 1
        return [f"Vret{p}"] if p >= 0 else []
    vissued = set()
    def vdma(sv, earliest=None):
        vissued.add(sv)
        A(Op(("m0", sv), f"s_mov_b32 m0, s{sM0 + vslot(sv)}", "salu", ["setup~"], ["m0"]))
        for i in range(4):
            if vhalf(sv) and not i & 1: continue
            A(Op(("dma", sv, i), f"buffer_load_dwordx4 v{vD0}, s[{sV_ if i < 2 else sC_}:{(sV_ if i < 2 else sC_)+3}], s{sTile + sv % 8} offen offset:{i*1024 + (i >> 1) * 8} {cfg.v_pol0 if (not steady and sv < cfg.v_n0) else cfg.v_pol} lds".replace("  ", " "), "dma",
                 ["m0"] + vprev(sv), [f"Vd{sv}_{i}"], earliest=earliest))
    kstage = {}
    def kregs(t):
        u = KST[t][0]; h = KST[t][1]
        if h == "P": return [vP + (ds >> 1) * 32 + u * 8 + (ds & 1) * 4 for ds in range(4)]
        return [vOa + (h * 4 + ds) * 16 + u * 4 for ds in range(4)]
    KST = cfg.kst
    if cfg.k_up == 8: KST = [(0, 0), (0, 1), (1, 0), (1, 1), (2, 0), (2, 1), (3, 0), (3, 1)]
    def kload(t, earliest=None):
        for ds, r in enumerate(kregs(t)):
            A(Op(("kld", t, ds), f"buffer_load_dwordx4 {vt(r,4)}, v{vKl}, s[{sK_}:{sK_+3}], s{sTile + t} offen offset:{ds*1024} {cfg.k_pol}".rstrip(), "load",
                 [], vr(r, 4), earliest=earliest))
    tmpc = [0]
    def kscale(t, earliest=None):
        for ds, r in enumerate(kregs(t)):
            if t in cfg.pk:
                tq = (44, 4)[tmpc[0] & 1]; tmpc[0] += 1
                k = ("ksc", t, ds)
                sh = lambda j: f"v_lshlrev_b32 v{tq+j}, 16, v{r+j}"
                for j in range(3): A(Op(k + (j, 0), sh(j), "valu", vr(r + j), vr(tq + j), earliest=earliest))
                tx = [sh(3)] + [f"v_and_b32 v{r+j}, s{sMask}, v{r+j}" for j in range(4)] + \
                     [f"v_pk_mul_f32 {vt(b,2)}, {vt(b,2)}, s[{sScale-1}:{sScale}] op_sel:[0,1] op_sel_hi:[1,1]" for b in (tq, tq + 2, r, r + 2)]
                A(Op(k + (0, 5), "\n    ".join(tx), "valu", vr(r, 4) + vr(tq, 3), vr(r, 4) + vr(tq, 4), cost=36, earliest=earliest))
                for j in range(4): A(Op(k + (j, 4), f"v_cvt_pk_bf16_f32 v{r+j}, v{tq+j}, v{r+j}", "valu", vr(tq + j) + vr(r + j), vr(r + j)))
            for j in range(0 if t in cfg.pk else 4):
                x = r + j; tm = TMPS[tmpc[0] % NT]; tmpc[0] += 1
                k = ("ksc", t, ds, j)
                A(Op(k + (0,), f"v_lshlrev_b32 v{tm}, 16, v{x}", "valu", vr(x), vr(tm), earliest=earliest))
                A(Op(k + (1,), f"v_and_b32 v{x}, s{sMask}, v{x}", "valu", vr(x), vr(x), earliest=earliest))
                A(Op(k + (2,), f"v_mul_f32 v{tm}, s{sScale}, v{tm}", "valu", vr(tm), vr(tm)))
                A(Op(k + (3,), f"v_mul_f32 v{x}, s{sScale}, v{x}", "valu", vr(x), vr(x)))
                A(Op(k + (4,), f"v_cvt_pk_bf16_f32 v{x}, v{tm}, v{x}", "valu", vr(tm) + vr(x), vr(x)))
            tl = 3 if t == 0 else t
            if t == 4 and ds in (0, 2):
                A(Op(("kwa", t, ds), f"v_add_u32 v{vKw + (ds >> 1)}, {0x10000 - KSH}, v{vKw + (ds >> 1)}", "valu", vr(vKw + (ds >> 1)), vr(vKw + (ds >> 1))))
            a = vKwS[ds >> 1] if (t == 1 and not ds & 1) else vKw + (ds >> 1)
            A(Op(("kw", t, ds), f"ds_write_b128 v{a}, {vt(r,4)} offset:{(tl & 3) * 16384 + (ds & 1) * 8192 - (KSH if tl < 4 else 0)}", "dsw",
                 vr(r, 4) + vr(a) + (["K0dead"] if t in (3, 4) else []) + (["Qadead"] if (t == 2 and " q1" in cfg.plan) else []) + ([f"Vret{v}" for v in range(2, t - 3)] if t >= 6 and cfg.deep else []), [f"Kw{t}_{ds}"]))
    nmf = [0]
    kpub = set()
    def kread1(s, t, kb):
        for ds in range(4):
            perm = t == 0 or ((t, kb) == (1, 0) and ds < 2)
            if perm and (steady or s > 7): continue
            d = kfrag(s, kb, ds); tl = 3 if t == 0 else (4 if perm else t)
            A(Op(("kr", s, kb, ds), f"ds_read_b128 {rt(d,4)}, v{vKr + 2 * (tl >> 2) + (ds & 1)} offset:{(tl & 3) * 16384 + kb * 4096 + ds * 1024 - (KSH if tl < 4 else 0)}", "ds",
                 [] if (steady or s > 7) else [f"Kok{t}"], rr(d, 4) + ([] if not perm else [f"Kr0_{kb}_{ds}" if t == 0 else f"Kr1_{ds}"])))
    kdone0 = set(); kscaled = []
    later = {}
    if not steady:
        H = (-1, 0)
        def issue(item, when):
            n0 = len(prog)
            n = int(item[1:]) if item[1:].isdigit() else None
            if item[0] == "K": kload(n, when)
            elif item[0] == "Q": qload(("q0", n) if n < 4 else ("q", 8, 0), when)
            elif item[0] == "R": qread(("qr0", n), n, when)
            elif item[0] == "q": qload(("q0", n), when, alt=True)
            elif item[0] == "x": qread(("qr0", n), n, when, alt=True)
            elif item[0] == "V": vdma(n, when)
            elif item[0] == "S": kscale(n, when); kscaled.append(n)
            elif item[0] == "r": kread1(0, 0, n); kdone0.add(n)
            elif item[0] == "W":
                A(Op(("wt", 0, item), "s_nop 0", "valu", vr(kregs(int(item[1]))[int(item[2])], 4), []))
            elif item[0] == "P":
                A(Op(("cpf", 1), f"buffer_load_dword v{vJ}, v{vJ}, s[{sC_}:{sC_+3}], 0 offen {cfg.c_pol}".rstrip(), "load", [], ["junk"], earliest=when))
            elif item[0] == "U":
                A(Op(("ob", 0, -1), f"buffer_load_dword v{vB}, v{vB}, s[{sV_}:{sV_+3}], s{sTile} offen {cfg.v_pol0}".rstrip(), "load", ["setup~"], vr(vB), earliest=when))
            elif item[0] == "u":
                A(Op(("ob", 0, -1), f"ds_read_b32 v{vB}, v{vB}", "ds", [f"Vd0_{i}" for i in range(4)], vr(vB) + ["Vr0_s"], earliest=when))
            elif item[0] == "Y":
                b = vB
                tx = [f"v_lshrrev_b32 v{b}, 7, v{b}", f"v_and_b32 v{b}, 0xff00ff, v{b}"] + \
                     [f"v_add_u32_dpp v{b}, v{b}, v{b} row_ror:{k} row_mask:0xf bank_mask:0xf" for k in (1, 2, 4, 8)] + \
                     [f"v_add_u32_dpp v{b}, v{b}, v{b} row_bcast:15 row_mask:0xa bank_mask:0xf", f"v_add_u32_dpp v{b}, v{b}, v{b} row_bcast:31 row_mask:0xc bank_mask:0xf"] + \
                     [f"v_add_u32_sdwa v{b}, v{b}, v{b} dst_sel:DWORD dst_unused:UNUSED_PAD src0_sel:WORD_0 src1_sel:WORD_1",
                      f"v_lshrrev_b32 v{b}, 7, v{b}", f"v_min_u32 v{b}, 0xc0, v{b}", f"v_lshl_add_u32 v{b}, v{b}, 23, s{sBc}",
                      f"s_nop 0\n    v_readlane_b32 s{sPol}, v{b}, 63\n    s_nop 1\n    v_mov_b32 v{b}, s{sPol}"]
                for i, x in enumerate(tx): A(Op(("ob", 0, i), x, "valu", vr(b), vr(b), earliest=when, cost=20 if "readlane" in x else 4))
                for i in range(1, 4): A(Op(("ob", 0, 12 + i), f"v_mov_b32 v{b+i}, v{b}", "valu", vr(b), vr(b + i)))
            elif item[0] == "H":
                A(Op(("hop", 0), "@HOPS", "valu", [], [], earliest=when, maxdl=when))
            elif item[0] == "T":
                A(Op(("ts", 0, item), f"s_memrealtime s[{64+2*n}:{65+2*n}]", "valu", [], []))
            elif item[0] == "X":
                A(Op(("wt", 0, item), "s_nop 0", "valu", [f"Qs{i}" for i in range(4)], []))
            elif item[0] == "B":
                pub = [t for t in kscaled if t not in kpub]; kpub.update(pub)
                A(Op(("bar", -1), "s_barrier", "bar", (["Czero"] if cfg.split_min_u <= 4 else []) + [f"Kw{t}_{ds}" for t in pub for ds in range(4)], [f"Kok{t}" for t in pub], anchor=H))
            elif item[0] == "C":
                pf = f"global_load_dword v{vJ}, v[{vS+14}:{vS+15}], off"
                if cfg.early_pf and cfg.vtouch:
                    tx = head2(cfg).split("@CPF")[1].strip().replace(f"    s_mov_b32 s{sO_+2}, 0x10000", f"    buffer_load_dword v{vS+14}, off, s[{sV_}:{sV_+3}], s{sMq} {cfg.v_pol0}\n    s_mov_b32 s{sO_+2}, 0x10000")
                    A(Op(("cpf", 0), tx, "load", [], vr(vS + 14), earliest=when, cost=300))
                elif cfg.early_pf:
                    A(Op(("cpf", 0), head2(cfg).split("@CPF")[1].strip(), "valu", [], [], earliest=when, cost=300))
                elif cfg.pf2:
                    p1 = f"""    s_lshr_b32 s{sTmp+4}, s{sWave}, 1
    s_lshl1_add_u32 s{sTmp+4}, s2, s{sTmp+4}
    s_lshl_b32 s{sTmp+4}, s{sTmp+4}, 7
    v_and_b32 v{vS+15}, 0x70, v{vKl}
    buffer_load_dword v{vS+15}, v{vS+15}, s[{sC_}:{sC_+3}], s{sTmp+4} offen"""
                    A(Op(("cpf", 0), head2(cfg).replace("@CPF", p1).strip(), "load", [], vr(vS + 15), earliest=when, cost=300))
                elif " P" in cfg.plan: A(Op(("cpf", 0), head2(cfg).replace("@CPF\n", "").strip(), "valu", [], [], earliest=when, cost=300))
                else: A(Op(("cpf", 0), head2(cfg).replace("@CPF", "    " + pf).strip(), "load", [], ["junk"], earliest=when, cost=300))
                A(Op(("setup", 0), "s_nop 0", "valu", [], ["setup~", f"s{sExp}"]))
                if cfg.split_min_u <= 4: A(Op(("cz", 1), f"ds_write_b32 v{vCnt}, v{vPoll}", "dsw", [], ["Czero"], cost=8))
            if when == H:
                for x in prog[n0:]: x.maxdl = H
        for item in cfg.plan.split():
            if "@" not in item: issue(item, H)
            else:
                it, pos = item.split("@"); st, fr = pos.split(".")
                later.setdefault(int(st), []).append((it, fr))
    for s in range(s0, s1):
        t = s % 8
        uq = [u for u in range(4) if qk_on(s, u)]
        up = order_qk(s - 1, 3) if (steady or s > 0) else []
        up = [u for u in up if pv_on(s, u)]
        qk = [(kb, u) for kb in range(4) for u in order_qk(s, kb)]
        if not steady and s in cfg.qlag:
            qk.sort(key=lambda c: (c[0] + (cfg.qlag[s] + 0.5 if (li(s, c[1]) == 0 and c[1] > 0) else 0)))
        pv = []
        fin = [u for u in up if li(s - 1, u) == 7]
        ones_order = fin + [u for u in up if u not in fin]
        for db in range(8):
            for u in up: pv.append(("pv", db, u))
        npv = len(pv)
        ins = {}
        for i, u in enumerate(ones_order):
            if u in fin: p = len(up)
            else: p = len(up) + (npv - len(up)) * i // max(1, len(ones_order))
            ins.setdefault(p, []).append(("one", 0, u))
        pv2 = []
        for i, c in enumerate(pv):
            pv2 += ins.get(i, []); pv2.append(c)
        pv = pv2
        seq = []
        if qk:
            j = 0
            lag = 1 if len(uq) <= 2 and pv else 0
            if not steady and s in cfg.lags: lag = cfg.lags[s]
            for i, c in enumerate(qk):
                seq.append(("qk",) + c)
                tgt = math.ceil(max(0, i + 1 - lag) * len(pv) / (len(qk) - lag))
                while j < tgt: seq.append(pv[j]); j += 1
        else:
            seq = pv
        if cfg.group and qk and len(up) >= cfg.group_min:
            G = cfg.group
            seq = []; j = 0
            onepos = {}
            for i, u in enumerate(ones_order): onepos.setdefault(0 if u in fin else (8 * i // len(ones_order)), []).append(u)
            for db in range(8):
                if db % G == 0:
                    while j < math.ceil((db + G) * len(qk) / 8): seq.append(("qk",) + qk[j]); j += 1
                if not cfg.snake:
                    seq += [("pv", db, u) for u in up] + [("one", 0, u) for u in onepos.get(db, [])]
                    continue
                if db % G == 0:
                    on = [u for k in range(db, db + G) for u in onepos.get(k, [])]
                    od = list(up)
                    if cfg.on_first:
                        if on and db > 0: od.remove(on[-1]); od = [on[-1]] + od
                        seq += [("one", 0, u) for u in on]; on = []
                    if on and db > 0:
                        od.remove(on[0]); od = [on[0]] + od if G % 2 == 0 else od + [on[0]]
                seq += [("pv", db, u) for u in od]
                od = od[::-1]
                if db % G == G - 1: seq += [("one", 0, u) for u in on]
        rev = {}
        for i, c in enumerate(seq):
            p_ = seq[i - 1]
            rev[c] = bool(cfg.rev and i and p_[0] == c[0] and c[0] != "one" and (p_[1] == c[1] or p_[2] == c[2]) and not rev[p_])
        nm = sum({"qk": 4, "pv": 2, "one": 1}[c[0]] for c in seq)
        beta = cfg.beta if len(uq) >= 3 else cfg.beta_small
        barpos = int(beta * nm)
        if not steady and s in cfg.betas: barpos = int(cfg.betas[s] * nm)
        vdone = set(); kdone = set(kdone0) if (s == 0 and not steady) else set(); bar_done = False
        Pw = vP + 32 * (s & 1); Pr = vP + 32 * ((s - 1) & 1)
        def vreads(db):
            if db in vdone or vperm_(s - 1): return
            vdone.add(db)
            for ks in range(2):
                if ks == 0 and vhalf(s - 1): continue
                for h in range(2):
                    d = vfrag(s - 1, db, ks) + h * 2
                    A(Op(("vr", s, db, ks, h), f"ds_read_b64_tr_b16 {at(d,2)}, v{vV} offset:{vslot(s-1)*VSTR + ks*1024 + h*512 + (db>>1)*64 + (db&1)*8}", "ds",
                         [f"Vok{s-1}"], ar(d, 2) + [f"Vr{s-1}_{db}_{ks}_{h}"]))
        def kreads(kb):
            if kb in kdone: return
            kdone.add(kb); kread1(s, t, kb)
        def barrier():
            rd = []; wr = []
            pubv, retv, nxt = [s], [s - 1], [s + 1]
            if vperm_(s + 1): retv = []; nxt = []
            if vperm_(s): pubv = []; retv = [s - 2, s - 1]
            if vperm_(s - 1): retv = []
            if not steady:
                retv = {1: [], 2: [0], 3: [1], 4: [2], 5: [3, 4], 34: []}.get(s, retv)
                if s >= 33:
                    if s not in cfg.tailpub: return
                    pubv = cfg.tailpub[s]
                    if s > 33: retv = []; nxt = []
                nxt = {0: [], 1: [], 2: [4], 3: [5], 4: [], 32: [33, 34, 35], 33: [37], 34: []}.get(s, nxt)
                if s == 32: wr.append("Kret67")
                nxt = [v for v in nxt if v < last and v not in vissued and not any(it == f"V{v}" for l in later.values() for it, _ in l)]
            for v in retv:
                if v < 0: continue
                if v == s - 1:
                    for db in range(8): vreads(db)
                rd += [f"Vr{v}_{db}_{ks}_{h}" for db in range(8) for ks in range(2) for h in range(2) if ks or not vhalf(v)]
                wr.append(f"Vret{v}")
            for v in pubv:
                assert steady or v in vissued, v
                rd += [f"Vd{v}_{i}" for i in range(4) if i & 1 or not vhalf(v)]; wr.append(f"Vok{v}")
            if not steady and s + 1 <= 7 and s + 1 not in kpub:
                if s + 1 not in kscaled: kscale(s + 1, ((s - 1, "bar") if s >= 1 else (-1, 0))); kscaled.append(s + 1)
                kpub.add(s + 1)
                rd += [f"Kw{s+1}_{ds}" for ds in range(4)]; wr.append(f"Kok{s+1}")
            if not steady and s == 0 and " q1" in cfg.plan:
                rd += [f"Qar{ds}" for ds in range(4)]; wr.append("Qadead")
            if not steady and s == 1:
                rd += [f"Kr0_{kb}_{ds}" for kb in range(4) for ds in range(4)]; wr.append("K0dead")
                rd += ["Kr1_0", "Kr1_1"]
            if (steady or s >= cfg.split_from) and len(uq) >= cfg.split_min_u:
                ag = cfg.arr_gap if len(uq) >= 3 else cfg.arr_gap_small
                A(Op(("arr", s), f"ds_add_u32 v{vCnt}, v{vCone}", "dsw", rd, ["Carr"], cost=8, anchor=(s, "bar", -ag - cfg.ds_lat - 2)))
                A(Op(("exp", s), f"s_add_u32 s{sExp}, s{sExp}, 4", "salu", [f"s{sExp}"], [f"s{sExp}"]))
                A(Op(("pol", s), f"ds_read_b32 v{vPoll}, v{vCnt}", "ds", ["Carr~"], vr(vPoll), anchor=(s, "bar", -cfg.ds_lat - 2)))
                A(Op(("cmp", s), f"v_readfirstlane_b32 s{sPol}, v{vPoll}", "valu", vr(vPoll), [f"s{sPol}"], anchor=(s, "bar", -3)))
                A(Op(("sc", s), f"s_cmp_lt_u32 s{sPol}, s{sExp}", "bar", [f"s{sPol}", f"s{sExp}"], ["scc"], anchor=(s, "bar", -1)))
                A(Op(("bar", s), f"s_cbranch_scc1 L_spin{s if (not steady and (s < cfg.loop_from or s >= 32)) else 16 + s % 8}", "bar", ["scc"] + vr(vPoll) + [f"s{sExp}", f"s{sPol}"], wr, anchor=(s, "bar")))
            else:
                A(Op(("bar", s), "s_barrier", "bar", rd, wr, anchor=(s, "bar")))
            for v in nxt: vdma(v, None)
            for it, fr in later.get(s, []):
                if fr == "b": issue(it, (s, "bar"))
        todo_items = [(it, int(fr) / 10 ** len(fr)) for it, fr in later.get(s, []) if fr != "b"]
        mcount = 0
        for c in seq:
            if not bar_done and mcount >= barpos:
                barrier(); bar_done = True
            while todo_items and mcount >= todo_items[0][1] * nm:
                issue(todo_items.pop(0)[0], (s, "off", mcount))
            if c[0] == "qk":
                _, kb, u = c
                kreads(kb)
                if kb == 0 and li(s, u) == 0 and (steady or s - sg[u] >= 8):
                    qread(("qr", s, u), u, earliest=None if (steady or qk_on(s - 1, u)) else (s - 1, "frac", 0.75))
                    un = (u + 1) % 4; sn = s + (sg[un] - sg[u]) % 8
                    pend_q.append((("q", sn, un), not steady and sn - sg[un] >= 8 * NP))
                    if True:
                        k_, d_ = pend_q.pop(); qload(k_, dummy=d_)
                S = vS + 4 * (chain % 4); chain += 1
                for i, ds in enumerate((3, 2, 1, 0) if rev[c] else (0, 1, 2, 3)):
                    kf = kfrag(s, kb, ds); qf = aQ + u * 16 + ds * 4
                    A(Op(("qk", s, kb, u, ds, i), f"v_mfma_f32_16x16x32_bf16 {vt(S,4)}, {rt(kf,4)}, {at(qf,4)}, {cfg.cinit if i == 0 else vt(S,4)}", "mfma",
                         rr(kf, 4) + ar(qf, 4) + ([] if i == 0 else vr(S, 4)), vr(S, 4)))
                for r in range(4):
                    A(Op(("ex", s, kb, u, r), f"v_exp_f32 v{S+r}, v{S+r}", "trans", vr(S + r), vr(S + r)))
                pd = Pw + u * 8 + kb * 2
                for r in range(2):
                    tx = f"v_perm_b32 v{pd+r}, v{S+2*r+1}, v{S+2*r}, s{sPerm}" if cfg.trunc else f"v_cvt_pk_bf16_f32 v{pd+r}, v{S+2*r}, v{S+2*r+1}"
                    A(Op(("cv", s, kb, u, r), tx, "valu", vr(S + 2 * r, 2), vr(pd + r)))
                mcount += 4
            elif c[0] == "pv":
                _, db, u = c
                vreads(db)
                first = li(s - 1, u) == 0
                o = vOa + db * 16 + u * 4
                for i, ks in enumerate((1, 0) if rev[c] else (0, 1)):
                    vf = vfrag(s - 1, db, ks); pf = Pr + u * 8 + ks * 4
                    z = first and i == 0
                    A(Op(("pv", s, db, u, ks, i), f"v_mfma_f32_16x16x32_bf16 {vt(o,4)}, {at(vf,4)}, {vt(pf,4)}, {(vt(vB,4) if cfg.obias else cfg.oinit) if z else vt(o,4)}", "mfma",
                         ar(vf, 4) + vr(pf, 4) + ((vr(vB, 4) if cfg.obias == "auto" else []) if z else vr(o, 4)), vr(o, 4)))
                mcount += 2
            else:
                _, _, u = c
                first = li(s - 1, u) == 0
                l = vL + 4 * u
                if first:
                    for r in range(2): A(Op(("lz", s, u, r), f"v_mov_b32 v{l+r}, 0", "valu", [], vr(l + r)))
                pf = Pr + u * 8
                A(Op(("on", s, u), f"v_smfmac_f32_16x16x64_bf16 {vt(l,4)}, {vt(vOne,4)}, {vt(pf,8)}, v{vIdx}", "mfma", vr(pf, 8) + vr(l, 2), vr(l, 4)))
                mcount += 1
        if not bar_done: barrier()
        for it, _ in todo_items: issue(it, (s, "off", mcount))
        if not steady and s == 31:
            qread(("qr", 32, 0), 0, dummy=True)
            qload(("q", 32 + sg[1], 1), dummy=True)
        if not steady and s == 7:
            A(Op(("vo2", 7), f"v_xor_b32 v{vO2}, 0x840, v{vO}", "valu", [], vr(vO2)))
            if cfg.full_until < 39: A(Op(("vo3", 7), f"v_cndmask_b32 v{vO3}, v{vO}, v{vO2}, vcc", "valu", vr(vO2) + ["junk"], vr(vO3)))
        for u in sorted(fin):
            l = vL + 4 * u; R = vR + 2 * (u & 1)
            DPP = "row_ror:8 row_mask:0xf bank_mask:0xf"
            pol = cfg.st_last if (not steady and s >= cfg.st_last_from) else cfg.st_pol
            A(Op(("la", s, u), f"v_add_f32 v{l}, v{l}, v{l+1}", "valu", vr(l, 2), vr(l)))
            A(Op(("rc", s, u), f"v_rcp_f32 v{R}, v{l}", "trans", vr(l), vr(R)))
            full = cfg.full_until > 0 if steady else s < cfg.full_until
            if cfg.obias:
                A(Op(("rm", s, u), f"v_and_b32 v{R}, -4, v{R}", "valu", vr(R), vr(R)))
                A(Op(("r2", s, u), f"v_mul_f32 v{R+1}, v{vB}, v{R}", "valu", vr(R) + vr(vB), vr(R + 1)))
                A(Op(("r3", s, u), f"v_add_u32 v{l+1}, s{sLo}, v{R}", "valu", vr(R), vr(l + 1)))
                A(Op(("ck", s, u), f"v_max3_u32 v{vChk}, v{vChk}, v{l}, v{l+1}", "valu", vr(vChk) + vr(l, 2), vr(vChk)))
            else:
                A(Op(("ck", s, u), f"v_max3_u32 v{vChk}, v{vChk}, v{l}, v{R}", "valu", vr(vChk) + vr(l) + vr(R), vr(vChk)))
            for db in range(8):
                o = vOa + db * 16 + u * 4
                for r in range(4):
                    if cfg.obias: A(Op(("mu", s, u, db, r), f"v_fma_f32 v{o+r}, v{o+r}, v{R}, -v{R+1}", "valu", vr(o + r) + vr(R, 2), vr(o + r)))
                    else: A(Op(("mu", s, u, db, r), f"v_mul_f32 v{o+r}, v{o+r}, v{R}", "valu", vr(o + r) + vr(R), vr(o + r)))
                if db & 1:
                    e = o - 16
                    A(Op(("oc", s, u, db, 3), f"v_cvt_pk_bf16_f32 v{o+3}, v{o+2}, v{o+3}", "valu", vr(o + 2, 2), vr(o + 3)))
                    A(Op(("oc", s, u, db, 2), f"v_cvt_pk_bf16_f32 v{o+2}, v{o}, v{o+1}", "valu", vr(o, 2), vr(o + 2)))
                    A(Op(("oc", s, u, db, 0), f"v_cvt_pk_bf16_f32 v{o}, v{e}, v{e+1}", "valu", vr(e, 2), vr(o)))
                    A(Op(("oc", s, u, db, 1), f"v_cvt_pk_bf16_f32 v{o+1}, v{e+2}, v{e+3}", "valu", vr(e + 2, 2), vr(o + 1)))
                    if not full:
                        A(Op(("st", s, u, db), f"buffer_store_dwordx4 {vt(o,4)}, v{vO3}, s[{sO_}:{sO_+3}], s{sOo} offen offset:{(db-1)*32} {pol}".rstrip(), "store",
                             vr(o, 4) + [f"s{sOo}"] + vr(vO3), [], cost=20))
                if full and db & 3 == 3:
                    a = o - 32; x = o - 16
                    for r in range(4):
                        A(Op(("sy", s, u, db, r), f"v_cndmask_b32_dpp v{x+r}, v{a+r}, v{o+r}, vcc {DPP}", "valu", vr(a + r) + vr(o + r), vr(x + r)))
                        A(Op(("sx", s, u, db, r), f"v_mov_b32_dpp v{a+r}, v{o+r} row_ror:8 row_mask:0xf bank_mask:0xc", "valu", vr(a + r) + vr(o + r), vr(a + r)))
                    A(Op(("st", s, u, db - 1), f"buffer_store_dwordx4 {vt(a,4)}, v{vO}, s[{sO_}:{sO_+3}], s{sOo} offen offset:{(db>>2)*128} {pol}".rstrip(), "store",
                         vr(a, 4) + [f"s{sOo}"], [], cost=20))
                    A(Op(("st", s, u, db), f"buffer_store_dwordx4 {vt(x,4)}, v{vO}, s[{sO_}:{sO_+3}], s{sOo} offen offset:{(db>>2)*128 + 2048} {pol}".rstrip(), "store",
                         vr(x, 4) + [f"s{sOo}"], [], cost=20))
            if not steady and 32 <= s < last:
                for x in prog:
                    if x.key[:3] == ("st", s, u): x.maxdl = (s + 1, "frac", (x.key[3] + 1) / 8 * cfg.tail_dl)
            A(Op(("oinc", s, u), f"s_add_u32 s{sOo}, s{sOo}, 4096", "salu", [f"s{sOo}"], [f"s{sOo}"]))
    return prog

def link(cfg, prog):
    lastw = {}; readers = {}
    m = 0
    for x in prog:
        if x.kind == "mfma": x.m = m; m += 1
    for x in prog:
        e = {}
        def add(p, typ):
            if p is x: return
            soft = hard = 0
            if p.kind == "mfma":
                if x.kind == "mfma": return
                if typ in ("raw", "waw"): soft = cfg.mv_lat + (2 if p.key[0] == "on" else 0)
                elif x.kind in ("valu", "trans"): soft = 1
            elif x.kind == "mfma":
                hard = soft = 1
                if typ == "raw":
                    soft = cfg.ds_lat if p.kind == "ds" else (1 if p.kind == "load" else 2)
                elif p.kind == "store": soft = 2
            elif x.kind == "bar" or x.key[0] == "arr":
                hard = 1; soft = {"ds": cfg.ds_lat, "dsw": cfg.ds_lat, "dma": 2}.get(p.kind, 1)
            elif p.kind == "bar":
                soft = hard = 0
            elif p.kind == "salu":
                soft = 2; hard = 1 if x.kind != "salu" else 1
            elif x.kind == "salu":
                soft = hard = 1
            elif typ == "raw":
                if p.kind == "trans": soft = 1
                elif p.kind == "ds" and x.kind == "dma": soft = cfg.ds_lat
                elif p.kind == "valu" and x.kind in ("store", "dsw", "ds"): soft = 1
                elif p.kind == "valu" and "permlane" in x.text: soft = 2
                if "_dpp" in x.text: soft = 1 if x.key[0] == "ob" else 2
                if p.kind == "ds" and x.kind == "valu": soft = 3
            else:
                if p.kind in ("valu", "trans") and x.kind in ("load", "ds", "dma"): soft = 1
                if p.kind in ("store", "dsw"): soft = 1
            o = e.get(id(p))
            e[id(p)] = (p, max(soft, o[1]) if o else soft, max(hard, o[2]) if o else hard)
        for r in x.reads:
            if r in lastw: add(lastw[r], "raw"); x.prod[r] = lastw[r].key
        for r in x.writes:
            if r in lastw: add(lastw[r], "waw")
            for p in readers.get(r, []): add(p, "war")
        for r in x.reads: readers.setdefault(r, []).append(x)
        for r in x.writes: lastw[r] = x; readers[r] = []
        x.preds = list(e.values())
        for p, so, ha in x.preds: p.succs.append((x, so, ha))
    return m

def semantic_check(cfg, prog):
    sg = cfg.sigma
    nq = 0; qblk = {}; nst = 0
    for x in prog:
        k = x.key; P = [x.prod.get(r) for r in x.reads]
        def exp(idx, f):
            for i in idx: assert P[i] is not None and f(P[i]), ("semantic", k, x.reads[i], P[i])
        if x.dummy: continue
        if k[0] == "ksc" and k[4] in (0, 1): exp([0], lambda p: p == ("kld", k[1], k[2]))
        if k[0] == "ksc" and k[4] in (2, 3): exp([0], lambda p: p == k[:4] + (k[4] - 2,))
        if k[0] == "ksc" and k[4] == 4 and k[1] not in cfg.pk: exp([0], lambda p: p == k[:4] + (2,)); exp([1], lambda p: p == k[:4] + (3,))
        if k[0] == "ksc" and k[4] == 4 and k[1] in cfg.pk: exp([0, 1], lambda p: p == k[:3] + (0, 5))
        if k[0] == "ksc" and k[4] == 5: exp(range(4), lambda p: p == ("kld", k[1], k[2])); exp(range(4, 7), lambda p: p[:3] == k[:3] and p[4] == 0)
        if k[0] == "kw": exp(range(4), lambda p: p[:3] == ("ksc", k[1], k[2]) and p[4] == 4); exp(range(5, len(P)), lambda p: p[0] == "bar")
        if k[0] in ("bar", "arr"): exp(range(len(P)), lambda p: True)
        if k[0] == "kr" and k[1] < 8: exp([0], lambda p: p[0] == "bar")
        if k[0] == "vr": exp([0], lambda p: p[0] == "bar")
        if k[0] == "dma": exp([0], lambda p: p == ("m0", k[1])); exp(range(1, len(P)), lambda p: p[0] == "bar")
        if k[0] in ("q", "q0") and k[-1] == "inc": qblk[k[:-1]] = nq; nq += 1
        if k[0] in ("q", "q0") and isinstance(k[-1], int): exp([1], lambda p: p == k[:-1] + (f"m{k[-1]}",))
        if k[0] in ("qr", "qr0"):
            u = k[-2]; n = 0 if k[0] == "qr0" else (k[1] - sg[u]) // 8
            exp(range(4), lambda p: qblk[p[:-1]] == 4 * n + u)
        if k[0] == "qk":
            _, s, kb, u, ds, ii = k; n, i_ = blockpos(cfg, s, u); s0 = s - i_
            exp(range(4), lambda p: p[0] == "kr" and p[1] % 8 == s % 8 and p[2:] == (kb, ds))
            exp(range(4, 8), lambda p: p == (("qr0", u, ds) if n == 0 else ("qr", s0, u, ds)))
            exp(range(8, len(P)), lambda p: p[:4] == k[:4] and p[5] == ii - 1); assert (len(P) > 8) == (ii > 0)
        if k[0] == "ex": exp([0], lambda p: p[:4] == ("qk",) + k[1:4] and p[5] == 3)
        if k[0] == "cv": exp([0, 1], lambda p: p[:4] == ("ex",) + k[1:4])
        if k[0] == "pv":
            _, s, db, u, ks, ii = k
            exp(range(4), lambda p: p[0] == "vr" and p[1] % 8 == s % 8 and p[2:4] == (db, ks))
            exp(range(4, 8), lambda p: p[0] == "cv" and p[1] == s - 1 and p[2] >> 1 == ks and p[3] == u)
            if ii > 0 or blockpos(cfg, s - 1, u)[1] > 0:
                exp(range(8, 12), lambda p: p == ("pv", s, db, u, 1 - ks, 0) if ii else (p[:4] == ("pv", s - 1, db, u) and p[5] == 1))
            else: exp(range(8, len(P)), lambda p: p[0] == "ob" and p[2] >= 12)
        if k[0] == "on":
            exp(range(8), lambda p: p[0] == "cv" and p[1] == k[1] - 1 and p[3] == k[2])
            exp([8, 9], lambda p: p[:3] == ("lz", k[1], k[2]) or p == ("on", k[1] - 1, k[2]))
        if k[0] == "la": exp([0, 1], lambda p: p == ("on", k[1], k[2]))
        if k[0] == "mu": exp([0], lambda p: p[:4] == ("pv", k[1], k[3], k[2]) and p[5] == 1); exp([1], lambda p: p[0] == ("rm" if cfg.obias else "rc") and p[1:] == k[1:3]); exp(range(2, len(P)), lambda p: p == ("r2",) + k[1:3])
        if k[0] == "oc": exp([0, 1], lambda p: p[:3] == ("mu",) + k[1:3])
        if k[0] == "oinc":
            assert nst == 4 * blockpos(cfg, k[1] - 1, k[2])[0] + k[2], k
            nst += 1
    assert nst == 16

def step_of(x): return x.key[1]

def schedule(cfg, prog, nm, pins=None, lo=None, hi=None):
    pins = pins or {}; lo = lo or {}; hi = hi or {}
    start = {}; barw = {}
    cur = -1
    for x in prog:
        if x.kind == "mfma":
            cur = x.m; start.setdefault(x.key[1], x.m)
        elif x.key[0] == "bar": barw[x.key[1]] = cur
    def W(a):
        if a[0] == -1: return -1
        if a[1] == "bar": return barw.get(a[0], nm - 1) + (a[2] if len(a) > 2 else 0)
        if a[1] == "frac": return start[a[0]] - 1 + int(a[2] * (start.get(a[0] + 1, nm) - start[a[0]]))
        if a[1] == "off": return max(0, start[a[0]] - 1 + a[2])
        return start[a[0]] - 1
    fill = [x for x in prog if x.kind != "mfma"]
    for x in prog:
        if x.kind == "mfma": x.win = x.m
    for i, x in enumerate(prog): x.idx = i
    for x in reversed(fill):
        if x.key in pins: x.dls = x.dlh = pins[x.key][0]; continue
        if x.anchor: x.dls = x.dlh = W(x.anchor); continue
        ds = dh = nm - 1
        for y, so, ha in x.succs:
            if y.dummy and y.key not in pins: continue
            if y.kind == "mfma": ds = min(ds, y.m - so); dh = min(dh, y.m - ha)
            else: ds = min(ds, y.dls - so); dh = min(dh, y.dlh - ha)
        if x.key in hi: ds = min(ds, hi[x.key]); dh = min(dh, hi[x.key])
        if x.maxdl: ds = min(ds, W(x.maxdl)); dh = min(dh, W(x.maxdl))
        x.dls, x.dlh = ds, max(dh, -1)
    wins = {w: [] for w in range(-1, nm)}
    for x in fill:
        x.win = None
        x.lo = max(W(x.earliest) if x.earliest else -1, lo.get(x.key, -1))
        if x.anchor: x.lo = x.dlh
    pinned_by_win = {}
    for x in fill:
        if x.key in pins: pinned_by_win.setdefault(pins[x.key][0], []).append(x)
    todo = [x for x in fill if x.key not in pins and not x.dummy]
    todo.sort(key=lambda x: x.idx)
    credit = [0]
    bucket = [0]
    def nbytes(x):
        if x.kind in ("salu", "bar"): return 4
        if x.kind in ("valu", "trans"):
            return 8 if ("_dpp" in x.text or x.text.split()[0] in ("v_cvt_pk_bf16_f32", "v_perm_b32", "v_max3_u32", "v_fma_f32") or "0x" in x.text) else 4
        return 8
    mfl = [x for x in prog if x.kind == "mfma"]
    def ready(x, w, soft):
        if w < x.lo: return False
        for p, so, ha in x.preds:
            if p.dummy and p.key not in pins: continue
            if p.win is None: return False
            lat = ha
            if soft and (p.kind not in ("load", "dma", "ds", "dsw") or x.kind == "dma" or x.key[0] == "ob"): lat = so
            if p.kind in ("store", "dsw") and soft: lat = max(lat, min(so, 1))
            if w == -1 or w == nm - 1: lat = 0
            if w < p.win + lat: return False
        return True
    for w in range(-1, nm):
        if w in pinned_by_win:
            for x in sorted(pinned_by_win[w], key=lambda x: pins[x.key][1]):
                x.win = w; wins[w].append(x)
        if pins and cfg._loop[0] <= w < cfg._loop[1]: continue
        cap = 8 if w >= 0 else 0
        if w >= 0 and mfl[w].key[0] == "on": cap = 4
        cap0 = cap
        rate = 8
        if cfg.smooth and pins and 0 <= w < nm - 1:
            acc = 0
            for x in sorted((x for x in todo[:900] if x.dls <= w + 120), key=lambda x: x.dls):
                acc += min(x.cost, 8)
                rate = max(rate, acc / (max(x.dls, w) - w + 1))
            credit[0] = credit[0] + rate - 8 if rate > 8.2 else 0
            credit[0] = min(credit[0], rate)
            extra = int(credit[0] // 4) * 4
            cap += extra
        used = 0
        cur = wins[w]
        def place(x):
            nonlocal used
            x.win = w; cur.append(x); used += min(x.cost, 8); todo.remove(x)
        while True:
            cand = [x for x in todo[:700] if ready(x, w, True) or (w >= x.dlh and ready(x, w, False))]
            if not cand: break
            z = [x for x in cand if x.kind in ("salu", "bar")]
            if z:
                place(z[0]); continue
            forced = [x for x in cand if x.dls <= w]
            if w == -1 or w == nm - 1:
                if not forced: break
                place(min(forced, key=lambda x: x.idx)); continue
            hasvalu_dep = lambda x: x.kind in ("ds", "dsw", "load", "dma", "store") and any(p.win == w and p.kind in ("valu", "trans") for p, _, _ in x.preds)
            hard_forced = forced
            if hard_forced:
                place(min(hard_forced, key=lambda x: (x.dls, x.idx))); continue
            if used >= cap: break
            nb = lambda x: 1024 if "b128" in x.text else 512
            dsb = sum(nb(x) for x in cur if x.kind == "ds")
            tight = rate > 8.2
            recent = (not tight) and any(y.kind == "ds" for k in range(1, cfg.ds_gap) for y in wins.get(w - k, []))
            vmk = ("load", "dma", "store")
            vgap = max(1, int((cfg.vm_gap if pins else cfg.vm_gap_loop or cfg.vm_gap) * 16 / (8 + rate)))
            recent_vm = any(y.kind in vmk for k in range(0, vgap) for y in wins.get(w - k, []))
            sgap = max(1, int(cfg.st_gap * 16 / (8 + rate)))
            if any(y.kind == "store" for k in range(0, sgap) for y in wins.get(w - k, [])):
                cand = [x for x in cand if x.kind != "store" and not (cfg.st_gap_all and x.kind in vmk)]
            dcap = cfg.ds_cap * (8 + cap) // 16
            if cfg.st_block and any(-4 * cfg.vm_gap <= b - w <= cfg.st_block for b in barw.values()):
                cand = [x for x in cand if x.kind != "store"]
            cand = [x for x in cand if (x.kind != "ds" or (not recent and dsb + nb(x) <= dcap)) and not (x.kind in vmk and recent_vm and not (getattr(x, "nogap", False) and used == 0))]
            if not cand: break
            cand.sort(key=lambda x: (-99999 if (x.kind in ("load", "dma", "dsw", "store") or (cfg.qr_asap and x.key[0] == "qr")) else x.dls, x.idx))
            if cfg.fetch_thr is not None and not tight and bucket[0] >= cfg.fetch_thr and cap - used >= 8 and cand[0].dls > w + cfg.fetch_slack:
                tr = [x for x in cand if x.kind == "trans"]
                if tr: place(tr[0]); continue
            if cap - used >= 8:
                top = cand[0]
                if top.cost >= 8: place(top); continue
                small = [x for x in cand if x.cost == 4]
                big = [x for x in cand if x.cost >= 8]
                fits = lambda a, b: not (a.kind == "ds" and b.kind == "ds" and dsb + nb(a) + nb(b) > dcap)
                partner = any(fits(top, y) for y in small if y is not top) or any(y.cost == 4 and so == 0 and y.win is None and y.kind == "valu" and all(p.win is not None or p is top for p, _, _ in y.preds) for y, so, ha in top.succs)
                if partner or not big or (cap - used) % 8: place(top)
                else: place(big[0])
                continue
            small = [x for x in cand if x.cost == 4]
            if not small: break
            place(small[0])
        bts = 8 + sum(nbytes(x) for x in cur if x.kind not in ("salu", "bar")) + (4 if any(x.kind not in ("valu", "trans") for x in cur) else 2)
        bucket[0] = max(0, bucket[0] + bts - 22 * max(16, 8 + sum(x.cost for x in cur)) // 16)
        if w >= 0: credit[0] -= max(0, min(used, cap) - cap0)
        if w not in (-1, nm - 1):
            order = {"bar": 0, "salu": 0, "dma": 1, "load": 1, "store": 1, "dsw": 1, "ds": 1, "valu": 2, "trans": 2}
            lvl = {}
            for x in cur:
                l = order[x.kind]
                for p, _, _ in x.preds:
                    if p.win == w and p.kind != "mfma": l = max(l, lvl[id(p)])
                lvl[id(x)] = l
            cur.sort(key=lambda x: lvl[id(x)])
    assert not todo, [x.key for x in todo[:10]]
    for w, c in wins.items():
        for i, x in enumerate(c): x.pos = i
    return wins, start

def norm(key, d):
    return (key[0], key[1] + d) + tuple(key[2:])

class Ins:
    def __init__(s, text, op=None, kind=None):
        s.text, s.op, s.kind = text, op, kind or (op.kind if op else "salu")
        s.vm = None; s.lg = None

def generate(cfg):
    last = 32 + max(cfg.sigma)
    cfg.q_ahead = getattr(cfg, "q_ahead", 2)
    cfg.code_pf_n = getattr(cfg, "code_pf_n", 2)
    sp = build(cfg, 0, 56, True); nms = link(cfg, sp)
    swins, sstart = schedule(cfg, sp, nms)
    per = sstart[8] - sstart[0]
    ok = None
    for b in (16, 24, 32):
        same = all([x.text for x in swins[sstart[b] + i]] == [x.text for x in swins[sstart[b + 8] + i]] and
                   [norm(x.key, 8) for x in swins[sstart[b] + i]] == [x.key for x in swins[sstart[b + 8] + i]] for i in range(per))
        if same: ok = b; break
    assert ok is not None, "steady state not periodic"
    rp = build(cfg, 0, last + 1, False)
    E_ = cfg.loop_from
    off0 = sstart[ok + E_ - 8] - sstart[ok]
    inloop = {norm(x.key, 8 + 8 * it - ok) for it in range(3) for i in range(per) for x in swins[sstart[ok] + i] if it or i >= off0}
    rp = [x for x in rp if not x.dummy or x.key in inloop]
    nm = link(cfg, rp)
    semantic_check(cfg, rp)
    rstart = {}
    for x in rp:
        if x.kind == "mfma": rstart.setdefault(x.key[1], x.m)
    L0, L1 = rstart[E_], rstart[32]
    assert L1 - L0 == 3 * per - off0
    XP = L0 + per - off0
    cfg._loop = (L0, L1)
    pins = {}
    for it in range(3):
        for i in range(per):
            for x in swins[sstart[ok] + i]:
                if it or i >= off0: pins[norm(x.key, 8 + 8 * it - ok)] = (L0 - off0 + it * per + i, x.pos)
    keys = {x.key: x for x in rp}
    assert len(keys) == len(rp)
    missing = [k for k in pins if k not in keys]
    assert not missing, missing[:10]
    lo = {}; hi = {}
    mid = [x for x in rp if x.key[:2] == ("qk", 20)][0]
    midx = rp.index(mid)
    for i, x in enumerate(rp):
        if x.kind == "mfma" or x.key in pins: continue
        if i < midx: hi[x.key] = L0 - 1
        else: lo[x.key] = L1
    wins, start = schedule(cfg, rp, nm, pins, lo, hi)
    mf = [x for x in rp if x.kind == "mfma"]
    def stat(w):
        return L0 + (w - L0) % per if L0 <= w < L1 else w
    free = {}
    pre = {}
    for w in range(-1, nm):
        if stat(w) == w:
            free[w] = []
            if w not in (-1, nm - 1):
                for x in wins[w]:
                    if x.kind == "bar": free[w].append(Ins(x.text, x))
    def body(w):
        if w in (-1, nm - 1): return wins[w]
        return [x for x in wins[w] if x.kind not in ("salu", "bar")]
    def walk(fix):
        q = {"vm": [], "lgkm": []}
        pend = {}
        hist = {}
        changed = False
        def dowait(ins):
            for c, n in (("vm", ins.vm), ("lgkm", ins.lg)):
                if n is None: continue
                while len(q[c]) > n:
                    d = q[c].pop(0)
                    for r in d.writes:
                        if pend.get(r) is d: del pend[r]
        def need(x):
            n = {}
            for r in x.reads + x.writes:
                p = pend.get(r)
                if p is not None and not (r in x.writes and r not in x.reads and p.cnt == x.cnt):
                    n[p.cnt] = p if (p.cnt not in n or q[p.cnt].index(p) > q[p.cnt].index(n[p.cnt])) else n[p.cnt]
            return n
        def issue(x):
            if x.cnt:
                q[x.cnt].append(x)
                for r in x.writes:
                    if r != "stord": pend[r] = x
        def setw(ins, c, n):
            n = min(n, 62 if c == "vm" else 14)
            if c == "vm": ins.vm = n if ins.vm is None else min(ins.vm, n)
            else: ins.lg = n if ins.lg is None else min(ins.lg, n)
        def handle(x, w, pos, cands):
            nonlocal changed
            n = need(x)
            if not n: return
            assert fix, ("unwaited", x.key, {c: p.key for c, p in n.items()})
            changed = True
            for c, p in n.items():
                done = False
                for cw in cands:
                    if cw < 0 or cw == nm - 1 or cw not in hist: continue
                    snap = hist[cw][c]
                    if p not in snap: continue
                    fl = free[stat(cw)]
                    wi = [i for i in fl if i.kind == "wait"]
                    if not wi and fl and cw != cands[-1]: continue
                    if not wi:
                        wi = [Ins("", None, "wait")]; fl.insert(0, wi[0])
                    setw(wi[0], c, len(snap) - 1 - snap.index(p)); done = True; break
                if not done:
                    ins = pre.setdefault((stat(w), pos), Ins("", None, "wait"))
                    setw(ins, c, len(q[c]) - 1 - q[c].index(p))
                while p in q[c]:
                    d = q[c].pop(0)
                    for r in d.writes:
                        if pend.get(r) is d: del pend[r]
        for w in range(-1, nm):
            if w >= 0:
                if (stat(w), "m") in pre: dowait(pre[(stat(w), "m")])
                handle(mf[w], w, "m", [w - 1, w - 2])
            hist[w] = {c: list(v) for c, v in q.items()}
            hist.pop(w - 4, None)
            for ins in list(free[stat(w)]):
                if ins.kind == "wait": dowait(ins)
                elif ins.kind == "bar":
                    x = [y for y in wins[w] if y.kind == "bar"][0]
                    handle(x, w, "b", [w - 1, w - 2, w])
            for pos, x in enumerate(body(w)):
                if (stat(w), pos) in pre: dowait(pre[(stat(w), pos)])
                handle(x, w, pos, [w, w - 1])
                issue(x)
        return changed
    for _ in range(10):
        if not walk(True): break
    walk(False)
    for w in range(0, nm - 1):
        if stat(w) != w: continue
        for x in wins[w]:
            if x.kind != "salu": continue
            hiw = min([y.win - (1 if "m0" in x.writes or y.kind == "salu" else 0) for y, _, _ in x.succs if y.win is not None] + [w + 40, nm - 2])
            if L0 <= w < XP: hiw = min(hiw, XP - 3)
            elif XP <= w < L0 + per: hiw = min(hiw, L0 + per - 1)
            elif w < L0: hiw = min(hiw, L0 - 1)
            hiw = max(hiw, w)
            c = [k for k in range(w, hiw + 1) if not free[k]]
            c2 = [k for k in c if body(k) and body(k)[0].kind in ("ds", "dma", "load", "store", "dsw")]
            k = c2[0] if c2 else (c[0] if c else w)
            if any(i.text.startswith("s_cmp") for i in free[k]): free[k].insert(0, Ins(x.text, x))
            else: free[k].append(Ins(x.text, x))
    k = [k for k in range(XP - 2, XP) if not free[k]]
    k = k[0] if k else XP - 1
    if any(i.text.startswith("s_add") for kk in range(k + 1, XP) for i in free[kk]): k = XP - 1
    free[k].append(Ins(f"s_sub_u32 s{sCnt}, s{sCnt}, 1"))
    if cfg.nop_ds:
        for w in range(0, nm - 1):
            if stat(w) == w and not free[w] and body(w) and body(w)[0].kind in ("ds", "dma", "load", "store", "dsw"):
                free[w].append(Ins("s_nop 0", None, "nop"))
    def wtext(i):
        t = "s_waitcnt"
        if i.vm is not None: t += f" vmcnt({i.vm})"
        if i.lg is not None: t += f" lgkmcnt({i.lg})"
        return t
    code = {}
    for w in range(-1, nm):
        if stat(w) != w: continue
        l = []
        if w >= 0:
            if (w, "m") in pre: l.append(pre[(w, "m")])
            l.append(Ins(mf[w].text, mf[w]))
        l += free[w]
        for pos, x in enumerate(body(w)):
            if (w, pos) in pre: l.append(pre[(w, pos)])
            l.append(Ins(x.text, x))
        for i in l:
            if i.kind == "wait": i.text = wtext(i)
        code[w] = l
    def wcost(l, head=False):
        t = 0; base = 0; lastvalu = -99; blk = 8
        for i in l:
            if i.kind == "mfma": base = t; t += 4; blk = 12 if "smfmac" in i.text else 8; continue
            if i.kind in ("salu", "wait", "bar", "nop"): t += 4; continue
            if i.kind == "nopx": t += 4 * (int(i.text.split()[1]) + 1); continue
            if not head: t = max(t, base + blk)
            if i.kind in ("valu", "trans"): t += i.op.cost; lastvalu = t
            else:
                t = max(t, lastvalu + 8) + i.op.cost
        return t if head else max(t, base + 16)
    def hazards(fix):
        seq = []
        changed = False
        for w in range(-1, nm):
            l = code[stat(w)]
            j = 0
            while j < len(l):
                i = l[j]; x = i.op
                needn = 0
                if x is not None and x.kind not in ("salu", "bar"):
                    dist = 0
                    for p, st, pwin in reversed(seq):
                        y = p.op
                        if y is not None:
                            req = 0
                            raw = set(y.writes) & set(x.reads); waw = set(y.writes) & set(x.writes); war = set(y.reads) & set(x.writes)
                            if y.kind == "mfma":
                                if x.kind == "mfma":
                                    if set(y.writes) & set(x.reads[:8]): req = 8
                                elif raw or waw: req = 12 if y.key[0] == "on" else 8
                                elif war and x.kind in ("valu", "trans") and set(y.writes) & set(x.writes): req = 3
                            elif y.kind in ("valu", "trans"):
                                if raw and x.kind == "mfma": req = 2
                                if raw and ("permlane" in x.text or "_dpp" in x.text): req = 2
                                if raw and y.kind == "trans" and x.kind != "trans": req = max(req, 1)
                            elif y.kind in ("store", "dsw") and war and y.cost == 20: req = 2
                            elif y.kind == "salu" and "m0" in y.writes and x.kind == "dma": req = 1
                            if req - dist > needn: needn = req - dist; pw = pwin
                        dist += st
                        if dist >= 12: break
                if needn > 0:
                    assert fix, ("hazard", x.key)
                    for k in range(w, pw - 1, -1):
                        if k < 0: break
                        lk = code[stat(k)]
                        mi = [n for n, z in enumerate(lk) if z.kind == "mfma"][0]
                        places = []
                        if k > pw and (k < w or j > mi): places.append(mi + 1)
                        if k < w: places.append(len(lk))
                        ok_ = False
                        for pl in places:
                            tr = lk[:pl] + [Ins("s_nop 0", None, "nopx")] + lk[pl:]
                            if wcost(tr) == wcost(lk): lk[:] = tr; ok_ = True; break
                        if ok_: return True
                    l.insert(j, Ins(f"s_nop {needn-1}", None, "nopx")); changed = True
                    continue
                st = int(i.text.split()[1]) + 1 if (i.text.startswith("s_nop") and i.op is None) else 1
                seq.append((i, st, w)); seq = seq[-14:]
                j += 1
        return changed
    while hazards(True): pass
    lastw = {}; seen = set()
    for w in range(-1, nm):
        it = (w - L0) // per if L0 <= w < L1 else 0
        for i in code[stat(w)]:
            if i.op is None: continue
            x = keys[norm(i.op.key, 8 * it)]
            assert x.text == i.text, (x.text, i.text)
            assert x.key not in seen; seen.add(x.key)
            if not x.dummy:
                for r in x.reads:
                    assert lastw.get(r) == x.prod.get(r), ("dataflow", x.key, r, lastw.get(r), x.prod.get(r))
            for r in x.writes: lastw[r] = x.key
    assert all(x.key in seen or x.dummy for x in rp), [x.key for x in rp if x.key not in seen and not x.dummy][:5]
    est = {}
    for s in range(0, last + 1):
        e = rstart.get(s + 1, nm)
        est[s] = (sum(wcost(code[stat(w)]) for w in range(rstart[s], e)), (e - rstart[s]) * 16)
    cfg.est = est; cfg.est_head = wcost(code[-1], True)
    out = []
    cfg.spins = []
    E = out.append
    stamp_at = getattr(cfg, "stamp_steps", [])
    inv = {v: k for k, v in rstart.items()}
    for w in range(-1, nm):
        if stat(w) != w: continue
        if w == L0:
            if cfg.stamps and 7.9 in stamp_at:
                j = stamp_at.index(7.9); E(f"    s_memrealtime s[{64+2*j}:{65+2*j}]")
            E("L_loop:")
        if w in inv:
            E(f"; ---- step {inv[w]} ----")
            if cfg.jitter:
                E(f"    s_cmp_lg_u32 s{sWave}, {(inv[w] * cfg.jitter[1]) & 3}\n    s_cbranch_scc1 L_j{inv[w]}\n    s_sleep {cfg.jitter[0]}\nL_j{inv[w]}:")
            if cfg.stamps and inv[w] in stamp_at:
                j = stamp_at.index(inv[w]); E(f"    s_memrealtime s[{64+2*j}:{65+2*j}]")
        for i in code[w]:
            if i.op is not None and i.op.key[0] in cfg.kill and (L0 if cfg.kill_from is None else cfg.kill_from) <= w: E("    s_nop 0")
            else: E("    " + i.text)
            if cfg.pad and i.kind == "mfma" and L0 <= w < L1 and w % cfg.pad == 0: E("    s_nop 4")
            if i.text.startswith("s_cbranch_scc1 L_spin"):
                n = i.text.split("L_spin")[1]; E(f"L_back{n}:"); cfg.spins.append(n)
        if off0 == 0:
            if w == L0 + per - 1: E("    s_cbranch_scc0 L_loop")
        else:
            if w == XP - 1: E("    s_cbranch_scc1 L_tail")
            if w == L0 + per - 1: E("    s_branch L_loop"); E("L_tail:")
    lastscc = None
    for l in out:
        t = l.strip()
        if t.startswith(("s_add", "s_sub", "s_cmp", "s_and", "s_lsh", "s_bfe", "s_or", "s_xor", "s_not")): lastscc = t
        if t.startswith("s_cbranch_scc1 L_spin"): assert lastscc.startswith("s_cmp_lt_u32"), lastscc
        if t.startswith(("s_cbranch_scc0 L_loop", "s_cbranch_scc1 L_tail")): assert lastscc.startswith(f"s_sub_u32 s{sCnt}"), lastscc
    return "\n".join(out)

def fbits(x): return struct.unpack("<I", struct.pack("<f", x))[0]

def head(cfg):
    T = vS
    h = f"""    s_load_dwordx4 s[4:7], s[0:1], 0          ; q, k
    s_load_dwordx4 s[8:11], s[0:1], 16        ; v, out
"""
    if cfg.x8: h = "    s_load_dwordx8 s[4:11], s[0:1], 0         ; q, k, v, out\n"
    if cfg.stamps: h += f"    s_load_dwordx2 s[56:57], s[0:1], {32 if cfg.stamps in ('dbg', 'skew') else 40}\n    s_memrealtime s[60:61]\n"
    h += f"""    v_lshrrev_b32 v{T}, 6, v0
    v_and_b32 v{T+4}, 63, v0                  ; lane
    v_readfirstlane_b32 s{sWave}, v{T}
    s_cmp_ge_u32 s2, 256
    s_cbranch_scc1 L_end
    v_lshlrev_b32 v{vKl}, 4, v{T+4}           ; lane*16 : source offset of every K, Q and V load
    s_and_b32 s{sTmp}, s2, 7
    s_lshr_b32 s{sTmp+1}, s2, 3
    s_lshl_b32 s{sTmp}, s{sTmp}, 5
    s_add_u32 s{sTmp}, s{sTmp}, s{sTmp+1}
    s_lshl2_add_u32 s{sTmp+2}, s{sTmp}, s{sWave}
    s_lshl_b32 s{sTmp+2}, s{sTmp+2}, 16       ; q/o byte offset of this wave
    s_lshr_b32 s{sTmp}, s{sTmp}, 2
    s_lshl_b32 s{sTmp}, s{sTmp}, 17           ; k/v byte offset of the group
    s_lshl_b32 s{sMq}, s{sWave}, 12           ; wave*4096
    s_add_u32 s{sTmp+3}, s{sTmp}, s{sMq}
    s_sub_u32 s{sK_+2}, 0x20000, s{sMq}
    s_mov_b32 s{sK_+3}, 0x20000
    s_mov_b32 s{sQ_+3}, s{sK_+3}
    s_mov_b32 s{sQ_+2}, 0x10000
"""
    if cfg.rot:
        h += f"""    s_bfe_u32 s{sTmp+4}, s2, 0x20003
    s_mul_i32 s{sTile}, s{sTmp+4}, {cfg.rot*16384}
    s_and_b32 s{sTile}, s{sTile}, 0x1ffff
    s_add_u32 s{sTile+1}, s{sTile}, 16384
    s_and_b32 s{sTile+1}, s{sTile+1}, 0x1ffff
"""
    elif cfg.xor:
        h += f"""    s_lshl_b32 s{sTile}, s2, {11 + cfg.xor[1]}
    s_and_b32 s{sTile}, s{sTile}, {cfg.xor[0] << 14:#x}
    s_xor_b32 s{sTile+1}, s{sTile}, 0x4000
"""
    else: h += f"    s_mov_b32 s{sTile}, 0\n    s_movk_i32 s{sTile+1}, 0x4000\n"
    h += f"""    s_mov_b32 s{sQo}, 0
    s_mul_i32 s{sMqs}, s{sWave}, {QW}
    s_add_u32 s{sMqs+1}, s{sMqs}, 32
    s_add_u32 s{sMqs+2}, s{sMqs}, 64
    s_add_u32 s{sMqs+3}, s{sMqs}, 96
{head2(cfg).split("@CPF")[0] + f"    global_load_dword v{vJ}, v[{T+14}:{T+15}], off" if cfg.early_pf else ""}
    s_waitcnt lgkmcnt(0)
    s_add_u32 s{sK_}, s6, s{sTmp+3}
    s_addc_u32 s{sK_+1}, s7, 0
    s_add_u32 s{sQ_}, s4, s{sTmp+2}
    s_addc_u32 s{sQ_+1}, s5, 0
"""
    if cfg.stamps: h += "    s_memrealtime s[62:63]\n"
    return h

def head2(cfg):
    c = math.log2(math.e) / math.sqrt(128.0)
    T = vS
    h = f"""    ; code prefetch into L2: 16 lines per wave, 8 KiB per workgroup
    s_getpc_b64 s[{sC_}:{sC_+1}]
L_pc:
    s_mov_b32 s{sC_+2}, L_slow - L_pc
    s_bfe_u32 s{sTmp+1}, s2, 0x30003
    s_lshl2_add_u32 s{sTmp+1}, s{sTmp+1}, s{sWave}
    s_lshl_b32 s{sTmp+1}, s{sTmp+1}, 11
    v_lshl_add_u32 v{vJ}, v{T+4}, 5, s{sTmp+1}
    v_min_u32 v{vJ}, s{sC_+2}, v{vJ}          ; stay inside the code
    v_mov_b32 v{T+15}, s{sC_+1}
    v_add_co_u32 v{T+14}, vcc, s{sC_}, v{vJ}
    s_nop 1
    v_addc_co_u32 v{T+15}, vcc, 0, v{T+15}, vcc
@CPF
    s_add_u32 s{sV_}, s8, s{sTmp+3}
    s_addc_u32 s{sV_+1}, s9, 0
    s_sub_u32 s{sC_}, s{sV_}, 8               ; second V descriptor: its loads land 8 bytes further in LDS
    s_subb_u32 s{sC_+1}, s{sV_+1}, 0
    s_add_u32 s{sC_+2}, s{sK_+2}, 8
    s_mov_b32 s{sC_+3}, 0x20000
    s_add_u32 s{sO_}, s10, s{sTmp+2}
    s_addc_u32 s{sO_+1}, s11, 0
    s_mov_b32 s{sV_+2}, s{sK_+2}
    s_mov_b32 s{sV_+3}, 0x20000
    s_mov_b32 s{sO_+2}, 0x10000
    s_mov_b32 s{sO_+3}, 0x20000
"""
    for t in range(2, 8):
        if cfg.rot: h += f"    s_add_u32 s{sTile+t}, s{sTile+t-1}, 16384\n    s_and_b32 s{sTile+t}, s{sTile+t}, 0x1ffff\n"
        elif cfg.xor: h += f"    s_xor_b32 s{sTile+t}, s{sTile}, {t*16384}\n"
        else: h += f"    s_mov_b32 s{sTile+t}, {t*16384}\n"
    h += f"""    s_mul_i32 s{sTmp+4}, s{sWave}, {VW}
    s_add_u32 s{sM0}, s{sTmp+4}, {VB}
    s_add_u32 s{sM0+1}, s{sTmp+4}, {VB + VSTR}
    s_add_u32 s{sM0+2}, s{sTmp+4}, {VB + 2 * VSTR}
    s_add_u32 s{sM0+3}, s{sTmp+4}, {VB + 3 * VSTR}
    s_mov_b32 s{sOo}, 0
    s_mov_b32 s{sExp}, 0
    s_mov_b32 s{sCnt}, 2
    s_mov_b32 s{sScale}, {fbits(c):#x}
    s_mov_b32 s{sMask}, 0xffff0000
{f"    s_mov_b32 s{sPerm}, 0x07060302" if cfg.trunc else ""}
    v_and_b32 v{T+1}, 15, v{T+4}              ; l & 15
    v_lshrrev_b32 v{T+2}, 4, v{T+4}           ; l >> 4
    v_lshlrev_b32 v{T+7}, 8, v{T+1}           ; (l&15)*256
    ; K fragment read addresses: g*256 + (row ^ g ^ 4*(ds&1))*16
    v_lshlrev_b32 v{T+3}, 8, v{T+2}
    v_xor_b32 v{T+5}, v{T+1}, v{T+2}
    v_lshl_add_u32 v{vKr}, v{T+5}, 4, v{T+3}
    v_xor_b32 v{vKr+1}, 64, v{vKr}
    v_add_u32 v{vKr+2}, {0x10000 - KSH}, v{vKr}
    v_add_u32 v{vKr+3}, {0x10000 - KSH}, v{vKr+1}
    ; K write addresses: key 16w+4i+p goes to block 2(i&1)+(p>>1), row 8(p&1)+4(i>>1)+w ; lane = 16p+c
    v_and_b32 v{T+6}, 7, v{T+1}
    v_xor_b32 v{T+6}, s{sWave}, v{T+6}
    v_lshl_add_u32 v{T+6}, v{T+6}, 4, v{T+7}
    v_and_b32 v{T+8}, 1, v{T+2}
    v_lshl_add_u32 v{T+6}, v{T+8}, 7, v{T+6}
    v_lshrrev_b32 v{T+10}, 1, v{T+2}
    v_lshl_add_u32 v{vKw}, v{T+10}, 12, v{T+6}
    v_cmp_gt_u32 vcc, 2048, v{vKw}            ; lanes that write fragments (.,0,0) and (.,0,1)
    v_add_u32 v{T+6}, {3 * 16384}, v{vKw}
    v_xor_b32 v{vKw+1}, 64, v{vKw}
    v_cndmask_b32 v{vKwS[0]}, v{vKw}, v{T+6}, vcc
    v_xor_b32 v{vKwS[1]}, 64, v{vKwS[0]}
    ; Q fragment read address: column n holds row n with bits 1 and 2 exchanged : row*256 + (row>>2)*32 + g*16
    v_and_b32 v{T+9}, 3, v{T+4}
    v_lshrrev_b32 v{T+12}, 2, v{T+1}
    v_lshrrev_b32 v{T+6}, 1, v{T+1}
    v_xor_b32 v{T+6}, v{T+6}, v{T+12}
    v_and_b32 v{T+6}, 1, v{T+6}
    v_mul_u32_u24 v{T+6}, 6, v{T+6}
    v_xor_b32 v{T+13}, v{T+6}, v{T+1}         ; row
    v_lshrrev_b32 v{T+6}, 2, v{T+13}
    v_lshlrev_b32 v{T+6}, 5, v{T+6}
    v_lshl_add_u32 v{T+6}, v{T+13}, 8, v{T+6}
    v_lshl_add_u32 v{T+6}, v{T+2}, 4, v{T+6}
    v_add_u32 v{vQr}, s{sMqs}, v{T+6}
    ; V transposed-read address: lane = 16g+4r+c reads 8 bytes of chunk c of key 16r+8(g&1)+2kb+(g>>1)
    v_mul_u32_u24 v{T+6}, 2056, v{T+8}
    v_lshl_add_u32 v{T+6}, v{T+10}, 8, v{T+6}
    v_lshl_add_u32 v{T+6}, v{T+9}, 4, v{T+6}
    v_mul_u32_u24 v{T+8}, {VW}, v{T+12}
    v_add_u32 v{T+8}, {VB}, v{T+8}
    v_add_u32 v{vV}, v{T+8}, v{T+6}
"""
    h += f"""    ; output: a store covers 8 rows x 128 bytes: row(n&7)*256 + (n>>3)*64 + g*16
    v_and_b32 v{T+10}, 7, v{T+13}
    v_lshlrev_b32 v{T+10}, 8, v{T+10}
    v_lshl_add_u32 v{T+10}, v{T+2}, 4, v{T+10}
    v_and_b32 v{T+11}, 8, v{T+1}
    v_lshl_add_u32 v{vO}, v{T+11}, 3, v{T+10}
"""
    OB = f"""    v_lshl_add_u32 v{vB if cfg.obias == "auto" else T+8}, v{T+4}, 2, v{T+7}     ; V sample for the accumulator offset: key l&15, columns 2l, 2l+1
{f"    v_add3_u32 v{vB}, v{vB}, v{T+11}, s{sM0+3}" if " u" in cfg.plan else ""}
    s_mov_b32 s{sBc}, {((cfg.ob_exp << 23) | 0x400000):#x}
    s_mov_b32 s{sLo}, {((cfg.limit_exp - cfg.limit_lo) << 23):#x}
"""
    h += f"""    ; row-sum operand: rows 4i and 4i+1 are ones; they pick elements 0,1 and 2,3 of every group of four keys
    v_cmp_eq_u32 vcc, 1, v{T+9}
    v_mov_b32 v{T+6}, 0x44444444
    v_mov_b32 v{T+8}, 0xeeeeeeee
    v_cndmask_b32 v{vIdx}, v{T+6}, v{T+8}, vcc
    v_cmp_gt_u32 vcc, {0 if cfg.ones_rows == 0 else 2}, v{T+9 if cfg.ones_rows == 8 else T+1}
    v_mov_b32 v{T+6}, 0x3f803f80
    v_mov_b32 v{vChk}, {'-1' if cfg.force_slow else '0'}
    v_cndmask_b32 v{T+6}, 0, v{T+6}, vcc
    v_lshlrev_b32 v{vCnt}, 2, v{T+4}
    v_add_u32 v{vCnt}, {CB:#x}, v{vCnt}
    v_mov_b32 v{vOne}, v{T+6}
    v_mov_b32 v{vOne+1}, v{T+6}
    v_mov_b32 v{vOne+2}, v{T+6}
    v_mov_b32 v{vOne+3}, v{T+6}
{"".join(f"    v_mov_b32 v{vKp2+i}, {fbits(cfg.cfake):#x}" + chr(10) for i in range(4)) if cfg.cfake is not None else ""}    v_mov_b32 v{vCone}, 1
    v_mov_b32 v{vPoll}, 0
{"".join(f"    v_mov_b32_e32 v{vB+i}, {fbits(cfg.obias):#x}" + chr(10) for i in range(4)) if isinstance(cfg.obias, float) else ""}{OB if cfg.obias else ""}    s_mov_b32 vcc_lo, 0xff00ff00              ; lanes with (l & 8), used by the output selects
    s_mov_b32 vcc_hi, 0xff00ff00
"""
    if cfg.split_min_u > 4:
        h = "\n".join(l for l in h.split("\n") if not l.startswith((f"    v_lshlrev_b32 v{vCnt},", f"    v_add_u32 v{vCnt},", f"    v_mov_b32 v{vCone},", f"    v_mov_b32 v{vPoll},", f"    s_mov_b32 s{sExp}, 0\n", f"    s_mov_b32 s{sExp}, 0 ")) and l != f"    s_mov_b32 s{sExp}, 0")
    return h

def tail(cfg):
    lim = (127 + cfg.limit_exp) << 23
    t = ""
    if cfg.stamps == "skew":
        t += """    s_waitcnt vmcnt(0)
    s_memrealtime s[66:67]
    s_mov_b32 s58, 256
    s_mov_b32 s59, 0x20000
    s_not_b32 s64, s60
    v_mov_b32 v64, s64
    v_mov_b32 v60, 0
    s_mov_b64 exec, 1
L_sk0:
    s_memrealtime s[72:73]
    s_waitcnt lgkmcnt(0)
    s_sub_u32 s72, s72, s60
    s_cmp_lt_u32 s72, 6500
    s_cbranch_scc1 L_sk0
    s_cmp_lg_u32 s3, 0
    s_cbranch_scc1 L_sk1
    buffer_atomic_umax v64, v60, s[56:59], 0 offen
    s_waitcnt vmcnt(0)
L_sk1:
    s_memrealtime s[72:73]
    s_waitcnt lgkmcnt(0)
    s_sub_u32 s72, s72, s60
    s_cmp_lt_u32 s72, 8000
    s_cbranch_scc1 L_sk1
    buffer_load_dword v64, v60, s[56:59], 0 offen sc0 sc1
    s_waitcnt vmcnt(0)
    v_readfirstlane_b32 s64, v64
    s_nop 4
    s_not_b32 s64, s64
    s_sub_u32 s66, s66, s64
    s_min_u32 s66, s66, 10000
    s_mul_i32 s66, s66, 10
    s_add_u32 s66, s66, 10000
L_sk2:
    s_memrealtime s[72:73]
    s_waitcnt lgkmcnt(0)
    s_sub_u32 s72, s72, s64
    s_cmp_lt_u32 s72, s66
    s_cbranch_scc1 L_sk2
    s_mov_b64 exec, -1
"""
    elif cfg.stamps == "spin":
        if not getattr(cfg, "stamp_steps", []): t += "    s_waitcnt vmcnt(0)\n    s_memrealtime s[64:65]\n"
        t += f"""    s_waitcnt lgkmcnt(0)
    {"s_sub_u32 s64, s66, s64" if len(getattr(cfg, "stamp_steps", [])) == 2 else "s_sub_u32 s64, s64, s60"}
    s_mul_i32 s64, s64, {getattr(cfg, "spin_mul", 0)}
    s_add_u32 s64, s64, 10000
L_spin:
    s_memrealtime s[72:73]
    s_waitcnt lgkmcnt(0)
    s_sub_u32 s72, s72, s60
    s_cmp_lt_u32 s72, s64
    s_cbranch_scc1 L_spin
"""
    elif cfg.stamps:
        e0 = 88 if cfg.stamps == "c16" else 72
        t += f"""    s_memrealtime s[{e0}:{e0+1}]
    s_waitcnt vmcnt(0)
    s_memrealtime s[{e0+2}:{e0+3}]
    s_mov_b32 s58, 0x10000000
    s_mov_b32 s59, 0x20000
    s_lshl_b32 s46, s2, 2
    s_add_u32 s46, s46, s3
    s_lshl_b32 s46, s46, 6
    s_waitcnt lgkmcnt(0)
"""
        for i in range(16): t += f"    v_mov_b32 v{64+i}, s{60+(2*i if cfg.stamps == 'c16' else i)}\n"
        t += "    v_mov_b32 v60, 0\n    s_mov_b64 exec, 1\n"
        if cfg.stamps == "dbg":
            t += "    s_mov_b32 s58, 256\n"
            for i in range(8):
                t += f"    v_not_b32 v{65+2*i}, v{64+2*i}\n"
            for i in range(16): t += f"    buffer_atomic_umax v{64+i}, v60, s[56:59], 0 offen offset:{4*i}\n"
        else:
          for i in range(4): t += f"    buffer_store_dwordx4 v[{64+4*i}:{67+4*i}], v60, s[56:59], s46 offen offset:{16*i}\n"
        t += "    s_mov_b64 exec, -1\n"
    t += f"""    v_cmp_lt_u32 vcc, {lim:#x}, v{vChk}
    s_nop 4
    s_cbranch_vccnz L_slow
L_end:
    s_endpgm
"""
    for n in cfg.spins:
        t += f"""L_spin{n}:
    ds_read_b32 v{vPoll}, v{vCnt}
    s_waitcnt lgkmcnt(0)
    v_readfirstlane_b32 s{sPol}, v{vPoll}
    s_nop 3
    s_cmp_lt_u32 s{sPol}, s{sExp}
    s_cbranch_scc1 L_spin{n}
    s_branch L_back{n}
"""
    S0, S1, M, T = 16, 20, 24, 25
    vQ = vQr; vKb = vKr + 2
    q = lambda ds: at(aQ + 4 * ds, 4)
    k = lambda j, ds: at(aK + j * 16 + 4 * ds, 4)
    t += f"""; Fallback: a row sum left [2^-{cfg.limit_exp}, 2^{cfg.limit_exp}] (or is not finite), so the constant offset was not safe.
; This wave recomputes its 256 rows subtracting the true row maximum.  K is rebuilt in LDS; V goes through a private 8 KiB.
L_slow:
    s_waitcnt vmcnt(0) lgkmcnt(0)
    s_barrier                                 ; the other waves are done with LDS (ended or here)
    s_mov_b32 s{sQo}, 0
    s_lshl_b32 s{sTmp}, s{sWave}, 12
    s_lshl_b32 s{sTmp+1}, s{sWave}, 13
    s_add_u32 s{sTmp+2}, s{sTmp+1}, 0x20000
    s_add_u32 s{sTmp+3}, s{sTmp+2}, 4096
    s_sub_u32 s{sV_}, s{sV_}, s{sTmp}
    s_subb_u32 s{sV_+1}, s{sV_+1}, 0
    s_mov_b32 s{sV_+2}, 0x20000
    v_bfe_u32 v{T}, v{vKl}, 4, 4              ; l & 15
    v_lshrrev_b32 v{T+1}, 8, v{vKl}           ; l >> 4
    v_lshlrev_b32 v{vQ}, 4, v{T+1}
    v_lshl_add_u32 v{vQ}, v{T}, 8, v{vQ}      ; Q rows in MFMA layout
    v_xor_b32 v{T+1}, v{T}, v{T+1}
    v_and_b32 v{T+1}, 7, v{T+1}
    v_lshlrev_b32 v{T+1}, 4, v{T+1}
    v_lshl_add_u32 v{vKw}, v{T}, 8, v{T+1}
    v_xor_b32 v{vKw+1}, 64, v{vKw}
    v_lshrrev_b32 v{T+1}, 6, v{vKl}           ; 4g+r
    v_lshlrev_b32 v{T+1}, 8, v{T+1}
    v_and_b32 v{T}, 0x30, v{vKl}              ; c*16
    v_add3_u32 v{vV}, v{T}, v{T+1}, s{sTmp+2}
"""
    t += f"""    s_sub_u32 s{sK_}, s{sK_}, s{sTmp}
    s_subb_u32 s{sK_+1}, s{sK_+1}, 0
    s_mov_b32 s{sK_+2}, 0x20000
    s_mov_b32 s{sCnt}, 0
L_skld:
"""
    for i in range(4): t += f"    buffer_load_dwordx4 {vt(vOa+4*i,4)}, v{vKl}, s[{sK_}:{sK_+3}], s{sCnt} offen offset:{i*1024}\n"
    t += "    s_waitcnt vmcnt(0)\n"
    for x in range(vOa, vOa + 16):
        t += f"""    v_lshlrev_b32 v{T}, 16, v{x}
    v_and_b32 v{x}, s{sMask}, v{x}
    v_mul_f32 v{T}, s{sScale}, v{T}
    v_mul_f32 v{x}, s{sScale}, v{x}
    v_cvt_pk_bf16_f32 v{x}, v{T}, v{x}
"""
    for i in range(4): t += f"    ds_write_b128 v{vKw+(i&1)}, {vt(vOa+4*i,4)} offset:{(i>>1)*128}\n"
    t += f"""    s_waitcnt lgkmcnt(0)
    v_add_u32 v{vKw}, 4096, v{vKw}
    v_add_u32 v{vKw+1}, 4096, v{vKw+1}
    s_add_u32 s{sCnt}, s{sCnt}, 4096
    s_cmp_lt_u32 s{sCnt}, 0x20000
    s_cbranch_scc1 L_skld
"""
    t += "L_sblk:\n"
    for ds in range(4): t += f"    buffer_load_dwordx4 {q(ds)}, v{vQ}, s[{sQ_}:{sQ_+3}], s{sQo} offen offset:{ds*64}\n"
    t += f"""    v_mov_b32 v{M}, 0xff800000
    v_mov_b32 v{vKb}, v{vKr}
    v_mov_b32 v{vKb+1}, v{vKr+1}
    s_mov_b32 s{sCnt}, 32
    s_waitcnt vmcnt(0)
L_smax:
"""
    for ds in range(4): t += f"    ds_read_b128 {k(0,ds)}, v{vKb+(ds&1)} offset:{ds*1024}\n"
    t += "    s_waitcnt lgkmcnt(0)\n"
    for ds in range(4): t += f"    v_mfma_f32_16x16x32_bf16 {vt(S0,4)}, {k(0,ds)}, {q(ds)}, {'0' if ds == 0 else vt(S0,4)}\n"
    t += f"""    s_nop 7
    v_max3_f32 v{M}, v{M}, v{S0}, v{S0+1}
    v_max3_f32 v{M}, v{M}, v{S0+2}, v{S0+3}
    v_add_u32 v{vKb}, 4096, v{vKb}
    v_add_u32 v{vKb+1}, 4096, v{vKb+1}
    s_sub_u32 s{sCnt}, s{sCnt}, 1
    s_cmp_lg_u32 s{sCnt}, 0
    s_cbranch_scc1 L_smax
    v_mov_b32 v{T}, v{M}
    s_nop 1
    v_permlane16_swap_b32 v{M}, v{T}
    s_nop 1
    v_max_f32 v{M}, v{M}, v{T}
    v_mov_b32 v{T}, v{M}
    s_nop 1
    v_permlane32_swap_b32 v{M}, v{T}
    s_nop 1
    v_max_f32 v{M}, v{M}, v{T}
"""
    for r in range(4): t += f"    v_mov_b32 v{vL+r}, 0\n"
    for r in range(32): t += f"    v_mov_b32 v{vOa+r}, 0\n"
    t += f"""    v_mov_b32 v{vKb}, v{vKr}
    v_mov_b32 v{vKb+1}, v{vKr+1}
    s_mov_b32 s{sCnt}, 0
L_skey:
    s_mov_b32 m0, s{sTmp+2}
    s_mov_b32 s{sTmp+5}, s{sCnt}
    s_add_u32 s{sTmp+4}, s{sTmp+5}, 4096
"""
    for i in range(4): t += f"    buffer_load_dwordx4 v{vD0}, s[{sV_}:{sV_+3}], s{sTmp+5} offen offset:{i*1024} lds\n"
    t += f"    s_mov_b32 m0, s{sTmp+3}\n    s_nop 0\n"
    for i in range(4): t += f"    buffer_load_dwordx4 v{vD0}, s[{sV_}:{sV_+3}], s{sTmp+4} offen offset:{i*1024} lds\n"
    for j in range(2):
        for ds in range(4): t += f"    ds_read_b128 {k(j,ds)}, v{vKb+(ds&1)} offset:{j*4096+ds*1024}\n"
    t += "    s_waitcnt vmcnt(0) lgkmcnt(0)\n"
    for db in range(8):
        for h in range(2): t += f"    ds_read_b64_tr_b16 {at(aV+db*4+2*h,2)}, v{vV} offset:{h*4096+(db>>1)*64+(db&1)*8}\n"
    for j, S in enumerate((S0, S1)):
        for ds in range(4): t += f"    v_mfma_f32_16x16x32_bf16 {vt(S,4)}, {k(j,ds)}, {q(ds)}, {'0' if ds == 0 else vt(S,4)}\n"
    t += "    s_nop 7\n"
    for r in range(8): t += f"    v_sub_f32 v{S0+r}, v{S0+r}, v{M}\n"
    for r in range(8): t += f"    v_exp_f32 v{S0+r}, v{S0+r}\n"
    t += "    s_nop 0\n"
    for r in range(4): t += f"    v_cvt_pk_bf16_f32 v{vP+r}, v{S0+2*r}, v{S0+2*r+1}\n"
    t += f"    v_add_u32 v{vKb}, 8192, v{vKb}\n    v_add_u32 v{vKb+1}, 8192, v{vKb+1}\n    s_waitcnt lgkmcnt(0)\n    s_nop 0\n"
    t += f"    v_mfma_f32_16x16x32_bf16 {vt(vL,4)}, {vt(vOne,4)}, {vt(vP,4)}, {vt(vL,4)}\n"
    for db in range(8): t += f"    v_mfma_f32_16x16x32_bf16 {vt(vOa+4*db,4)}, {at(aV+db*4,4)}, {vt(vP,4)}, {vt(vOa+4*db,4)}\n"
    t += f"""    s_add_u32 s{sCnt}, s{sCnt}, 8192
    s_cmp_lt_u32 s{sCnt}, 0x20000
    s_cbranch_scc1 L_skey
    s_nop 7
    v_rcp_f32 v{vR}, v{vL}
    s_nop 0
"""
    for r in range(32): t += f"    v_mul_f32 v{vOa+r}, v{vOa+r}, v{vR}\n"
    for db in range(8):
        o = vOa + 4 * db; d = vP + 2 * db
        t += f"    v_cvt_pk_bf16_f32 v{d}, v{o}, v{o+1}\n    v_cvt_pk_bf16_f32 v{d+1}, v{o+2}, v{o+3}\n"
    if cfg.store_x4:
        t += "    s_nop 1\n"
        for db in range(0, 8, 2):
            d = vP + 2 * db
            if not cfg.vperm: t += f"    v_permlane16_swap_b32 v{d}, v{d+2}\n    v_permlane16_swap_b32 v{d+1}, v{d+3}\n"
            t += f"    buffer_store_dwordx4 {vt(d,4)}, v{vQ}, s[{sO_}:{sO_+3}], s{sQo} offen offset:{db*32}\n"
    else:
        for db in range(8): t += f"    buffer_store_dwordx2 {vt(vP+2*db,2)}, v{vO}, s[{sO_}:{sO_+3}], s{sQo} offen offset:{db*32}\n"
    t += f"""    s_add_u32 s{sQo}, s{sQo}, 4096
    s_cmp_lt_u32 s{sQo}, 0x10000
    s_waitcnt vmcnt(0)
    s_cbranch_scc1 L_sblk
    s_endpgm
"""
    return t

HDR = """; Kernarg layout for this problem (48 bytes, ptrs only, base s[0:1]):
;   offset   0: d_in[0] q  shape=(16, 32, 512, 128) dtype=bfloat16
;   offset   8: d_in[1] k  shape=(16, 4, 512, 128) dtype=bfloat16
;   offset  16: d_in[2] v  shape=(16, 4, 512, 128) dtype=bfloat16
;   offset  24: d_out     shape=(16, 32, 512, 128) dtype=bfloat16
;   offset  32: d_debug   256 bytes
;   offset  40: d_ws      268435456 bytes workspace (unused)
; @launch grid=(256,1,1) block=(256,1,1) lds=163840
;
; GQA attention forward, out = softmax(q k^T / sqrt(128)) v.  Generated by my own scheduling script.
; * One workgroup per CU: 1024 q rows against the 512 keys of one (batch, kv head); each wave owns 256 rows and keeps
;   four 16-row blocks in flight, started two key tiles apart (a block walks the eight 64-key tiles cyclically).
; * v_mfma_f32_16x16x32_bf16 for S^T = K Q^T and O^T = V^T P^T; P goes from the S registers straight into the B operand.
;   K is multiplied by log2(e)/sqrt(128) once and stays in LDS (one tile in registers); V streams through a two-slot LDS
;   ring by LDS-DMA (one and a half tiles in registers) and is read with ds_read_b64_tr_b16; Q is staged through LDS.
; * Row sums come from one v_smfmac per block and tile (rows of ones with complementary 2:4 index patterns).
; * One s_barrier per key tile publishes the next V tile and frees the slot of the previous one.
; * Softmax guard: softmax is invariant under a per-row shift, so the main path subtracts the constant 4 (log2 units, the
;   C input of the first QK MFMA) in place of the row maximum and CHECKS every row sum l
;   at run time: l and 1/l must both be <= 2^32 (this also rejects inf and NaN).  Inside that range nothing overflowed and
;   recomputes all its rows subtracting the true row maximum.
"""

PAD = """; Instruction prefetch stops at 4 KiB boundaries: start the kernel on one (the harness puts 0x300 bytes in front of the label).
.p2align 12
.fill 832, 4, 0xbf800000
"""

def add_hops(cfg, text):
    import subprocess, re, os, tempfile
    lines = text.split("\n")
    i0 = lines.index(KN + ":"); i1 = lines.index("L_end:")
    tmp = tempfile.mkdtemp()
    src = "\n".join(lines).replace("@HOPS", "\n".join(["    s_nop 0"] * 9))
    lines = src.split("\n"); i1 = lines.index("L_end:")
    hop0 = text.split("\n").index("@HOPS")
    open(tmp + "/a.s", "w").write(src)
    subprocess.run(["clang", "-x", "assembler", "-target", "amdgcn-amd-amdhsa", "-mcpu=gfx950", "-c", tmp + "/a.s", "-o", tmp + "/a.o"], check=True)
    dis = subprocess.run(["llvm-objdump", "-d", "--mcpu=gfx950", tmp + "/a.o"], capture_output=True, text=True).stdout
    dis = dis[dis.index("<" + KN + ">:"):]
    sizes = [4 * len(m.group(1).split()) for m in re.finditer(r"// [0-9A-F]{12}: ([0-9A-F ]+)", dis)]
    isins = lambda l: l.startswith("    ") and not l.strip().startswith(";") and l.strip()
    out = lines[:i0 + 1]; addr = 0; k = 0; page = 1; j = i0 + 1
    def look(j, k, addr, page):
        cands = []
        while addr < page * 4096 + 64 and j < i1:
            if isins(lines[j]):
                addr += sizes[k]; k += 1
                if "mfma" in lines[j] and page * 4096 <= addr <= page * 4096 + 60:
                    nx = lines[j + 1].strip()
                    cands.append((0 if nx == "s_nop 0" else (1 if nx.startswith("v_") else 2), j))
                elif page * 4096 <= addr <= page * 4096 + 60 and lines[j].strip().startswith("v_"): cands.append((3, j))
            j += 1
        return min(cands) if cands else None
    plan = None
    while j < i1:
        l = lines[j]
        if plan is None and addr >= page * 4096 - 64:
            plan = look(j, k, addr, page)
            if plan is None: page_end = True
        out.append(l)
        if isins(l): addr += sizes[k]; k += 1
        if plan and plan[1] == j:
            out.append(f"L_hop{page}:"); out.append(f"    s_cbranch_execz @NEXT{page}@"); addr += 4
            if plan[0] == 0: j += 1; k += 1
            plan = None; page += 1
        j += 1
    out += lines[i1:]
    np_ = page - 1
    r = "\n".join(out)
    for p in range(1, np_ + 1): r = r.replace(f"@NEXT{p}@", f"L_hop{p+4}" if p + 4 <= np_ else "L_hback")
    rl = r.split("\n")
    rl[hop0:hop0 + 9] = ["    s_mov_b64 exec, 0                         ; warm the instruction cache: visit the first line of every code page"] + \
        [x for w in range(3) for x in (f"    s_cmp_eq_u32 s{sWave}, {w}", f"    s_cbranch_scc1 L_hop{w+1}")] + ["    s_branch L_hop4", "L_hback:", "    s_mov_b64 exec, -1"]
    return "\n".join(rl)

def full(cfg):
    body = generate(cfg)
    r = full2(cfg, body)
    if getattr(cfg, "spin_cyc", 0):
        r = r.replace("s_memrealtime s[64:65]", "s_memtime s[64:65]").replace("s_memrealtime s[66:67]", "s_memtime s[66:67]").replace("s_memrealtime s[62:63]", "s_memtime s[62:63]")
        r = r.replace("s_sub_u32 s64, s64, s60", "s_sub_u32 s64, s64, s62").replace("s_mul_i32 s64, s64, 0", "s_lshr_b32 s64, s64, 1")
    if cfg.stamps in ("cyc", "c16"): r = r.replace("s_memrealtime", "s_memtime")
    if cfg.stamps == "both":
        import re
        r = re.sub(r"    s_memrealtime s\[(\d+):(\d+)\]", lambda m: f"    s_memtime s[{m.group(1)}:{m.group(2)}]\n    s_memrealtime s[{int(m.group(1))+20}:{int(m.group(2))+20}]", r)
        for i in range(8): r = r.replace(f"v_mov_b32 v{65+2*i}, s{61+2*i}\n", f"v_mov_b32 v{65+2*i}, s{80+2*i}\n")
    if "@HOPS" in r: r = add_hops(cfg, r.replace("    @HOPS", "@HOPS"))
    return r

def full2(cfg, body):
    return HDR + f""".amdgcn_target "amdgcn-amd-amdhsa--gfx950"
.text
.globl {KN}
{PAD if cfg.align else ""}.p2align 8
.type {KN},@function
{KN}:
""" + head(cfg) + body + "\n" + tail(cfg) + f""".section .rodata,"a"
.p2align 6
.amdhsa_kernel {KN}
  .amdhsa_next_free_vgpr 512
  .amdhsa_next_free_sgpr 102
  .amdhsa_accum_offset 256
  .amdhsa_group_segment_fixed_size 0
  .amdhsa_kernarg_size 48
  .amdhsa_user_sgpr_count 2
  .amdhsa_user_sgpr_kernarg_segment_ptr 1
  .amdhsa_system_sgpr_workgroup_id_x 1
.end_amdhsa_kernel
"""

if __name__ == "__main__":
    cfg = Cfg()
    name = sys.argv[1]
    for a in sys.argv[2:]:
        k, v = a.split("=", 1)
        try: v = eval(v)
        except Exception: pass
        setattr(cfg, k, v)
    s = full(cfg)
    open(name, "w").write(s)
    tot = sum(v[0] for v in cfg.est.values())
    print(name, "est head", cfg.est_head, "total", tot, "mfma", sum(v[1] for v in cfg.est.values()), file=sys.stderr)
    print(" ".join(f"{s}:{v[0]}/{v[1]}" for s, v in cfg.est.items() if s < 16 or s >= 32), file=sys.stderr)
```

```python
import sys, math, struct
KN = "standalone__gqa_softmax__near_ridge_kernel"

class Cfg:
    sigma = (0, 2, 4, 6)
    beta = 0.94
    beta_small = 0.55
    ds_lat = 7
    mv_lat = 4
    store_x4 = True
    q_nt = "nt"
    st_pol = "sc1"
    k_pol = "nt"
    v_pol = ""
    v_pol0 = "nt"
    rot = 0
    split_from = 4
    split_min_u = 9
    arr_gap = 10
    vm_gap = 5
    smooth = True
    stamps = False
    code_pf = True
    plan = "K0 Q0 C K1 H W00 V0 S0 B r0 r1 R0 K2 S1@0.0 V1@0.0 Q1@0.5 K3@1.0 V2@1.5 R1@2.0 K4@2.0 Q2@2.3 V3@2.6 K5@3.0 V4@3.4 K6@3.b R2@3.b Q3@4.0 K7@4.b R3@5.b Q4@6.0"
    vperm = True
    st_last = "sc1"
    st_last_from = 38
    ones_rows = 8
    trunc = False
    fake_st = False
    fake_v = False
    fake_m0 = 0
    v_n0 = 5
    st_block = 0
    c_pol = ""
    st_first = None
    st_pair = False
    fetch_thr = 1
    fetch_slack = 1
    st_gap = 16
    st_gap_all = False
    pf2 = False
    x8 = True
    qr_asap = True
    full_until = 35
    kst = [(1, 0), (1, 1), (2, 0), (2, 1), (3, 0), (3, 1), (3, "P"), (3, 0)]
    jitter = None
    xor = None
    qlag = {}
    lags = {}
    tailpub = {33: [33, 34], 35: [35, 37]}
    align = True
    early_pf = True
    sigma0 = None
    loop_from = 8
    vtouch = False
    group = 2
    group_min = 2
    rev = True
    snake = True
    on_first = True
    fake = ""
    cinit = "-4.0"
    cfake = None
    oinit = "0"
    half = True
    obias = None
    ob_exp = 5
    limit_lo = 2
    vm_gap_loop = None
    pk = (0, 3, 4, 5, 6, 7)
    kmul = 1.0
    deep = True
    tail_dl = 1.0
    betas = {0: 0.95, 1: 0.9, 2: 0.8, 3: 0.8}
    arr_gap_small = 4
    k_up = 1
    force_slow = False
    nop_ds = True
    ds_gap = 2
    ds_cap = 1024
    kill_from = None
    pad = 0
    kill = ()
    limit_exp = 32

vQd, vO, vQr, vCnt, vD0, vChk = 0, 2, 3, 4, 0, 58
vB = 4
vKwS = (49, 48)
vKp2 = 8
vKl = 0
vV = 1
vS = 16
vL = 32
vR = 48
vKw = 50
vT = 52
NT = 5
vIdx = 57
vPoll = 7
vJ = 59
vKr = 60
vP = 64
vOa = 128
aQ, aKp, aVp, aK, aV = 0, 64, 128, 192, 224
vOne, vCone, vKp1, vO2, vO3 = 12, 6, 52, 56, 59
sPol = 40
sLo, sBc = 41, 53
sMqs = 76
TV = 4
TMPS = [44, 45, 46, 47, 56]
sQ_, sK_, sV_, sO_, sC_ = 12, 16, 20, 24, 28
sTile = 32
sM0 = 96
sQo, sOo, sCnt, sScale, sWave = 42, 43, 44, 45, 3
sTmp = 46
sMq, sExp, sMask, sPerm = 52, 53, 54, 55

VB, VSTR, KSH, VW = 0x18000 - 800, 16584, 800, 4160
QW, CB = 4192, 0x4180
def vr(b, n=1): return [f"v{b+i}" for i in range(n)]
def ar(b, n=1): return [f"a{b+i}" for i in range(n)]
def vt(b, n): return f"v[{b}:{b+n-1}]"
def at(b, n): return f"a[{b}:{b+n-1}]"

class Op:
    def __init__(s, key, text, kind, reads, writes, cost=None, earliest=None, dummy=False, anchor=None, maxdl=None):
        s.key, s.text, s.kind, s.reads, s.writes = key, text, kind, list(reads), list(writes)
        s.cost = {"mfma": 0, "trans": 8, "valu": 4, "ds": 4, "dsw": 20, "load": 8, "dma": 8, "store": 12, "salu": 0, "bar": 0, "chk": 0}[kind] if cost is None else cost
        s.cnt = {"ds": "lgkm", "dsw": "lgkm", "load": "vm", "dma": "vm", "store": "vm"}.get(kind)
        s.earliest = earliest
        s.maxdl = maxdl
        s.dummy = dummy
        s.anchor = anchor
        s.preds = []; s.succs = []; s.win = None; s.pos = None; s.m = None
        s.prod = {}

def blockpos(cfg, s, u):
    s0 = (cfg.sigma0 or cfg.sigma)[u]
    if s0 <= s < s0 + 8: return (0, s - s0)
    if cfg.sigma[u] + 8 <= s < cfg.sigma[u] + 32: return divmod(s - cfg.sigma[u], 8)
    return (None, None)

def build(cfg, s0, s1, steady):
    sg = cfg.sigma
    NP = 4
    last = 32 + max(sg)
    def li(s, u): return (s - sg[u]) % 8 if steady else blockpos(cfg, s, u)[1]
    def qk_on(s, u): return li(s, u) is not None
    def pv_on(s, u): return li(s - 1, u) is not None
    def order_qk(s, kb):
        us = [u for u in range(4) if qk_on(s, u)]
        if kb == 3:
            f = [u for u in us if li(s, u) == 7]
            us = f + [u for u in us if u not in f]
        if kb == 0:
            f = [u for u in us if li(s, u) == 0]
            us = [u for u in us if u not in f] + f
        return us
    prog = []
    A = prog.append
    chain = 0
    pend_q = []
    def qload(key, earliest=None, dummy=False, alt=False):
        if alt:
            A(Op(key + ("m0",), f"s_add_u32 m0, s{sMq}, {0x8000 - KSH}", "salu", [], ["m0"]))
            for i in range(4):
                A(Op(key + (i,), f"buffer_load_dwordx4 v{vQd}, s[{sQ_}:{sQ_+3}], s{sQo} offen offset:{i*1024} {cfg.q_nt} lds".replace("  ", " "), "dma",
                     [f"s{sQo}", "m0"], [f"Qa{i}"], earliest=earliest))
            A(Op(key + ("inc",), f"s_add_u32 s{sQo}, s{sQo}, 4096", "salu", [f"s{sQo}"], [f"s{sQo}"]))
            return
        for i in range(4):
            A(Op(key + (f"m{i}",), f"s_mov_b32 m0, s{sMqs + i}", "salu", [], ["m0"], dummy=dummy))
            A(Op(key + (i,), f"buffer_load_dwordx4 v{vQd}, s[{sQ_}:{sQ_+3}], s{sQo} offen offset:{i*1024} {cfg.q_nt} lds".replace("  ", " "), "dma",
                 [f"s{sQo}", "m0"] + [f"Qrd{d}" for d in range(4)], [f"Qs{i}"], earliest=earliest, dummy=dummy))
        A(Op(key + ("inc",), f"s_add_u32 s{sQo}, s{sQo}, 4096", "salu", [f"s{sQo}"], [f"s{sQo}"], dummy=dummy))
    def qread(key, u, earliest=None, dummy=False, alt=False):
        for ds in range(4):
            d = aQ + 16 * u + 4 * ds
            if alt:
                A(Op(key + (ds,), f"ds_read_b128 {at(d,4)}, v{vQr} offset:{0x8000 - KSH + ds*64}", "ds", [f"Qa{i}" for i in range(4)], ar(d, 4) + [f"Qar{ds}"], earliest=earliest))
                continue
            A(Op(key + (ds,), f"ds_read_b128 {at(d,4)}, v{vQr} offset:{ds*64}", "ds", [f"Qs{i}" for i in range(4)], ar(d, 4) + [f"Qrd{ds}"], earliest=earliest, dummy=dummy))
    def kfrag(s, kb, ds):
        t = s % 8
        if (t, kb, ds) == (1, 0, 0): return ("v", vKp1)
        if (t, kb, ds) == (1, 0, 1): return ("v", vKp2) if cfg.cfake is None else ("w", vKp1)
        if t == 0 or (not steady and s >= 34): return ("a", aKp + kb * 16 + ds * 4)
        if not steady and s <= 4: return ("a", aK + kb * 16 + ds * 4)
        if cfg.half: return ("a", 224 + ds * 4)
        return ("a", aK + (kb & 1) * 16 + ds * 4)
    def vperm_(sv): return sv % 8 == TV and (steady or sv >= 8)
    def vhalf(sv): return cfg.half and sv % 8 == TV + 1 and (steady or sv >= 8)
    def vfrag(sv, db, ks):
        if cfg.half and sv % 8 == TV + 1 and ks == 0: return 192 + db * 4
        return vfrag0(sv, db) + ks * 4
    def vfrag0(sv, db):
        if sv % 8 == TV or (not steady and sv < TV): return aVp + db * 8
        if cfg.half:
            ring = [240]
            if not steady and sv >= 33: ring = [240, aQ]
            if not steady and sv >= 34: ring = [240, aQ, aQ + 16, 224]
            return ring[(db >> 1) % len(ring)] + (db & 1) * 8
        if not steady and sv >= 34 and db >= 4: return aQ + (db - 4) * 8
        return aV + (db & 3) * 8
    rt = lambda f, n: f"{f[0].replace('w', 'v')}[{f[1]}:{f[1]+n-1}]"
    rr = lambda f, n: [f"{f[0]}{f[1]+i}" for i in range(n)]
    def vslot(sv):
        if not steady and sv in (2, 3, 34, 35): return sv & 1
        if not steady and sv == 37: return 3
        return 2 + (((sv - TV - 1) % 8) & 1)
    def vprev(sv):
        if vslot(sv) < 2: return ["Kret67"] if sv > 8 else []
        p = sv - 1
        while p >= 0 and (vslot(p) != vslot(sv) or vperm_(p)): p -= 1
        return [f"Vret{p}"] if p >= 0 else []
    vissued = set()
    def vdma(sv, earliest=None):
        vissued.add(sv)
        A(Op(("m0", sv), f"s_mov_b32 m0, s{sM0 + vslot(sv)}", "salu", ["setup~"], ["m0"]))
        for i in range(4):
            if vhalf(sv) and not i & 1: continue
            A(Op(("dma", sv, i), f"buffer_load_dwordx4 v{vD0}, s[{sV_ if i < 2 else sC_}:{(sV_ if i < 2 else sC_)+3}], s{sTile + sv % 8} offen offset:{i*1024 + (i >> 1) * 8} {cfg.v_pol0 if (not steady and sv < cfg.v_n0) else cfg.v_pol} lds".replace("  ", " "), "dma",
                 ["m0"] + vprev(sv), [f"Vd{sv}_{i}"], earliest=earliest))
    kstage = {}
    def kregs(t):
        u = KST[t][0]; h = KST[t][1]
        if h == "P": return [vP + (ds >> 1) * 32 + u * 8 + (ds & 1) * 4 for ds in range(4)]
        return [vOa + (h * 4 + ds) * 16 + u * 4 for ds in range(4)]
    KST = cfg.kst
    if cfg.k_up == 8: KST = [(0, 0), (0, 1), (1, 0), (1, 1), (2, 0), (2, 1), (3, 0), (3, 1)]
    def kload(t, earliest=None):
        for ds, r in enumerate(kregs(t)):
            A(Op(("kld", t, ds), f"buffer_load_dwordx4 {vt(r,4)}, v{vKl}, s[{sK_}:{sK_+3}], s{sTile + t} offen offset:{ds*1024} {cfg.k_pol}".rstrip(), "load",
                 [], vr(r, 4), earliest=earliest))
    tmpc = [0]
    def kscale(t, earliest=None):
        for ds, r in enumerate(kregs(t)):
            if t in cfg.pk:
                tq = (44, 4)[tmpc[0] & 1]; tmpc[0] += 1
                k = ("ksc", t, ds)
                sh = lambda j: f"v_lshlrev_b32 v{tq+j}, 16, v{r+j}"
                for j in range(3): A(Op(k + (j, 0), sh(j), "valu", vr(r + j), vr(tq + j), earliest=earliest))
                tx = [sh(3)] + [f"v_and_b32 v{r+j}, s{sMask}, v{r+j}" for j in range(4)] + \
                     [f"v_pk_mul_f32 {vt(b,2)}, {vt(b,2)}, s[{sScale-1}:{sScale}] op_sel:[0,1] op_sel_hi:[1,1]" for b in (tq, tq + 2, r, r + 2)]
                A(Op(k + (0, 5), "\n    ".join(tx), "valu", vr(r, 4) + vr(tq, 3), vr(r, 4) + vr(tq, 4), cost=36, earliest=earliest))
                for j in range(4): A(Op(k + (j, 4), f"v_cvt_pk_bf16_f32 v{r+j}, v{tq+j}, v{r+j}", "valu", vr(tq + j) + vr(r + j), vr(r + j)))
            for j in range(0 if t in cfg.pk else 4):
                x = r + j; tm = TMPS[tmpc[0] % NT]; tmpc[0] += 1
                k = ("ksc", t, ds, j)
                A(Op(k + (0,), f"v_lshlrev_b32 v{tm}, 16, v{x}", "valu", vr(x), vr(tm), earliest=earliest))
                A(Op(k + (1,), f"v_and_b32 v{x}, s{sMask}, v{x}", "valu", vr(x), vr(x), earliest=earliest))
                A(Op(k + (2,), f"v_mul_f32 v{tm}, s{sScale}, v{tm}", "valu", vr(tm), vr(tm)))
                A(Op(k + (3,), f"v_mul_f32 v{x}, s{sScale}, v{x}", "valu", vr(x), vr(x)))
                A(Op(k + (4,), f"v_cvt_pk_bf16_f32 v{x}, v{tm}, v{x}", "valu", vr(tm) + vr(x), vr(x)))
            tl = 3 if t == 0 else t
            if t == 4 and ds in (0, 2):
                A(Op(("kwa", t, ds), f"v_add_u32 v{vKw + (ds >> 1)}, {0x10000 - KSH}, v{vKw + (ds >> 1)}", "valu", vr(vKw + (ds >> 1)), vr(vKw + (ds >> 1))))
            a = vKwS[ds >> 1] if (t == 1 and not ds & 1) else vKw + (ds >> 1)
            A(Op(("kw", t, ds), f"ds_write_b128 v{a}, {vt(r,4)} offset:{(tl & 3) * 16384 + (ds & 1) * 8192 - (KSH if tl < 4 else 0)}", "dsw",
                 vr(r, 4) + vr(a) + (["K0dead"] if t in (3, 4) else []) + (["Qadead"] if (t == 2 and " q1" in cfg.plan) else []) + ([f"Vret{v}" for v in range(2, t - 3)] if t >= 6 and cfg.deep else []), [f"Kw{t}_{ds}"]))
    nmf = [0]
    kpub = set()
    def kread1(s, t, kb):
        for ds in range(4):
            perm = t == 0 or ((t, kb) == (1, 0) and ds < 2)
            if perm and (steady or s > 7): continue
            d = kfrag(s, kb, ds); tl = 3 if t == 0 else (4 if perm else t)
            A(Op(("kr", s, kb, ds), f"ds_read_b128 {rt(d,4)}, v{vKr + 2 * (tl >> 2) + (ds & 1)} offset:{(tl & 3) * 16384 + kb * 4096 + ds * 1024 - (KSH if tl < 4 else 0)}", "ds",
                 [] if (steady or s > 7) else [f"Kok{t}"], rr(d, 4) + ([] if not perm else [f"Kr0_{kb}_{ds}" if t == 0 else f"Kr1_{ds}"])))
    kdone0 = set(); kscaled = []
    later = {}
    if not steady:
        H = (-1, 0)
        def issue(item, when):
            n0 = len(prog)
            n = int(item[1:]) if item[1:].isdigit() else None
            if item[0] == "K": kload(n, when)
            elif item[0] == "Q": qload(("q0", n) if n < 4 else ("q", 8, 0), when)
            elif item[0] == "R": qread(("qr0", n), n, when)
            elif item[0] == "q": qload(("q0", n), when, alt=True)
            elif item[0] == "x": qread(("qr0", n), n, when, alt=True)
            elif item[0] == "V": vdma(n, when)
            elif item[0] == "S": kscale(n, when); kscaled.append(n)
            elif item[0] == "r": kread1(0, 0, n); kdone0.add(n)
            elif item[0] == "W":
                A(Op(("wt", 0, item), "s_nop 0", "valu", vr(kregs(int(item[1]))[int(item[2])], 4), []))
            elif item[0] == "P":
                A(Op(("cpf", 1), f"buffer_load_dword v{vJ}, v{vJ}, s[{sC_}:{sC_+3}], 0 offen {cfg.c_pol}".rstrip(), "load", [], ["junk"], earliest=when))
            elif item[0] == "U":
                A(Op(("ob", 0, -1), f"buffer_load_dword v{vB}, v{vB}, s[{sV_}:{sV_+3}], s{sTile} offen {cfg.v_pol0}".rstrip(), "load", ["setup~"], vr(vB), earliest=when))
            elif item[0] == "u":
                A(Op(("ob", 0, -1), f"ds_read_b32 v{vB}, v{vB}", "ds", [f"Vd0_{i}" for i in range(4)], vr(vB) + ["Vr0_s"], earliest=when))
            elif item[0] == "Y":
                b = vB
                tx = [f"v_lshrrev_b32 v{b}, 7, v{b}", f"v_and_b32 v{b}, 0xff00ff, v{b}"] + \
                     [f"v_add_u32_dpp v{b}, v{b}, v{b} row_ror:{k} row_mask:0xf bank_mask:0xf" for k in (1, 2, 4, 8)] + \
                     [f"v_add_u32_dpp v{b}, v{b}, v{b} row_bcast:15 row_mask:0xa bank_mask:0xf", f"v_add_u32_dpp v{b}, v{b}, v{b} row_bcast:31 row_mask:0xc bank_mask:0xf"] + \
                     [f"v_add_u32_sdwa v{b}, v{b}, v{b} dst_sel:DWORD dst_unused:UNUSED_PAD src0_sel:WORD_0 src1_sel:WORD_1",
                      f"v_lshrrev_b32 v{b}, 7, v{b}", f"v_min_u32 v{b}, 0xc0, v{b}", f"v_lshl_add_u32 v{b}, v{b}, 23, s{sBc}",
                      f"s_nop 0\n    v_readlane_b32 s{sPol}, v{b}, 63\n    s_nop 1\n    v_mov_b32 v{b}, s{sPol}"]
                for i, x in enumerate(tx): A(Op(("ob", 0, i), x, "valu", vr(b), vr(b), earliest=when, cost=20 if "readlane" in x else 4))
                for i in range(1, 4): A(Op(("ob", 0, 12 + i), f"v_mov_b32 v{b+i}, v{b}", "valu", vr(b), vr(b + i)))
            elif item[0] == "O":
                A(Op(("ot", 0), f"buffer_store_dword v{vChk}, off, s[{sO_}:{sO_+3}], 0 {cfg.st_pol}", "store", ["setup~"], [], earliest=when, cost=8))
            elif item[0] == "Z":
                A(Op(("zb", 0, item), "s_barrier", "valu", [], []))
            elif item[0] == "H":
                A(Op(("hop", 0), "@HOPS", "valu", [], [], earliest=when, maxdl=when))
            elif item[0] == "T":
                A(Op(("ts", 0, item), f"s_memrealtime s[{64+2*n}:{65+2*n}]", "valu", [], []))
            elif item[0] == "X":
                A(Op(("wt", 0, item), "s_nop 0", "valu", [f"Qs{i}" for i in range(4)], []))
            elif item[0] == "B":
                pub = [t for t in kscaled if t not in kpub]; kpub.update(pub)
                A(Op(("bar", -1), "s_barrier", "bar", (["Czero"] if cfg.split_min_u <= 4 else []) + [f"Kw{t}_{ds}" for t in pub for ds in range(4)], [f"Kok{t}" for t in pub], anchor=H))
            elif item[0] == "C":
                pf = f"global_load_dword v{vJ}, v[{vS+14}:{vS+15}], off"
                if cfg.early_pf and cfg.vtouch:
                    tx = head2(cfg).split("@CPF")[1].strip().replace(f"    s_mov_b32 s{sO_+2}, 0x10000", f"    buffer_load_dword v{vS+14}, off, s[{sV_}:{sV_+3}], s{sMq} {cfg.v_pol0}\n    s_mov_b32 s{sO_+2}, 0x10000")
                    A(Op(("cpf", 0), tx, "load", [], vr(vS + 14), earliest=when, cost=300))
                elif cfg.early_pf:
                    A(Op(("cpf", 0), head2(cfg).split("@CPF")[1].strip(), "valu", [], [], earliest=when, cost=300))
                elif cfg.pf2:
                    p1 = f"""    s_lshr_b32 s{sTmp+4}, s{sWave}, 1
    s_lshl1_add_u32 s{sTmp+4}, s2, s{sTmp+4}
    s_lshl_b32 s{sTmp+4}, s{sTmp+4}, 7
    v_and_b32 v{vS+15}, 0x70, v{vKl}
    buffer_load_dword v{vS+15}, v{vS+15}, s[{sC_}:{sC_+3}], s{sTmp+4} offen"""
                    A(Op(("cpf", 0), head2(cfg).replace("@CPF", p1).strip(), "load", [], vr(vS + 15), earliest=when, cost=300))
                elif " P" in cfg.plan: A(Op(("cpf", 0), head2(cfg).replace("@CPF\n", "").strip(), "valu", [], [], earliest=when, cost=300))
                else: A(Op(("cpf", 0), head2(cfg).replace("@CPF", "    " + pf).strip(), "load", [], ["junk"], earliest=when, cost=300))
                A(Op(("setup", 0), "s_nop 0", "valu", [], ["setup~", f"s{sExp}"]))
                if cfg.split_min_u <= 4: A(Op(("cz", 1), f"ds_write_b32 v{vCnt}, v{vPoll}", "dsw", [], ["Czero"], cost=8))
            if when == H:
                for x in prog[n0:]: x.maxdl = H
        for item in cfg.plan.split():
            if "@" not in item: issue(item, H)
            else:
                it, pos = item.split("@"); st, fr = pos.split(".")
                later.setdefault(int(st), []).append((it, fr))
    for s in range(s0, s1):
        t = s % 8
        uq = [u for u in range(4) if qk_on(s, u)]
        up = order_qk(s - 1, 3) if (steady or s > 0) else []
        up = [u for u in up if pv_on(s, u)]
        qk = [(kb, u) for kb in range(4) for u in order_qk(s, kb)]
        if not steady and s in cfg.qlag:
            qk.sort(key=lambda c: (c[0] + (cfg.qlag[s] + 0.5 if (li(s, c[1]) == 0 and c[1] > 0) else 0)))
        pv = []
        fin = [u for u in up if li(s - 1, u) == 7]
        ones_order = fin + [u for u in up if u not in fin]
        for db in range(8):
            for u in up: pv.append(("pv", db, u))
        npv = len(pv)
        ins = {}
        for i, u in enumerate(ones_order):
            if u in fin: p = len(up)
            else: p = len(up) + (npv - len(up)) * i // max(1, len(ones_order))
            ins.setdefault(p, []).append(("one", 0, u))
        pv2 = []
        for i, c in enumerate(pv):
            pv2 += ins.get(i, []); pv2.append(c)
        pv = pv2
        seq = []
        if qk:
            j = 0
            lag = 1 if len(uq) <= 2 and pv else 0
            if not steady and s in cfg.lags: lag = cfg.lags[s]
            for i, c in enumerate(qk):
                seq.append(("qk",) + c)
                tgt = math.ceil(max(0, i + 1 - lag) * len(pv) / (len(qk) - lag))
                while j < tgt: seq.append(pv[j]); j += 1
        else:
            seq = pv
        if cfg.group and qk and len(up) >= cfg.group_min:
            G = cfg.group
            seq = []; j = 0
            onepos = {}
            for i, u in enumerate(ones_order): onepos.setdefault(0 if u in fin else (8 * i // len(ones_order)), []).append(u)
            for db in range(8):
                if db % G == 0:
                    while j < math.ceil((db + G) * len(qk) / 8): seq.append(("qk",) + qk[j]); j += 1
                if not cfg.snake:
                    seq += [("pv", db, u) for u in up] + [("one", 0, u) for u in onepos.get(db, [])]
                    continue
                if db % G == 0:
                    on = [u for k in range(db, db + G) for u in onepos.get(k, [])]
                    od = list(up)
                    if cfg.on_first:
                        if on and db > 0: od.remove(on[-1]); od = [on[-1]] + od
                        seq += [("one", 0, u) for u in on]; on = []
                    if on and db > 0:
                        od.remove(on[0]); od = [on[0]] + od if G % 2 == 0 else od + [on[0]]
                seq += [("pv", db, u) for u in od]
                od = od[::-1]
                if db % G == G - 1: seq += [("one", 0, u) for u in on]
        rev = {}
        for i, c in enumerate(seq):
            p_ = seq[i - 1]
            rev[c] = bool(cfg.rev and i and p_[0] == c[0] and c[0] != "one" and (p_[1] == c[1] or p_[2] == c[2]) and not rev[p_])
        nm = sum({"qk": 4, "pv": 2, "one": 1}[c[0]] for c in seq)
        beta = cfg.beta if len(uq) >= 3 else cfg.beta_small
        barpos = int(beta * nm)
        if not steady and s in cfg.betas: barpos = int(cfg.betas[s] * nm)
        vdone = set(); kdone = set(kdone0) if (s == 0 and not steady) else set(); bar_done = False
        Pw = vP + 32 * (s & 1); Pr = vP + 32 * ((s - 1) & 1)
        def vreads(db):
            if db in vdone or vperm_(s - 1): return
            vdone.add(db)
            for ks in range(2):
                if ks == 0 and vhalf(s - 1): continue
                for h in range(2):
                    d = vfrag(s - 1, db, ks) + h * 2
                    A(Op(("vr", s, db, ks, h), f"ds_read_b64_tr_b16 {at(d,2)}, v{vV} offset:{vslot(s-1)*VSTR + ks*1024 + h*512 + (db>>1)*64 + (db&1)*8}", "ds",
                         [f"Vok{s-1}"], ar(d, 2) + [f"Vr{s-1}_{db}_{ks}_{h}"]))
        def kreads(kb):
            if kb in kdone: return
            kdone.add(kb); kread1(s, t, kb)
        def barrier():
            rd = []; wr = []
            pubv, retv, nxt = [s], [s - 1], [s + 1]
            if vperm_(s + 1): retv = []; nxt = []
            if vperm_(s): pubv = []; retv = [s - 2, s - 1]
            if vperm_(s - 1): retv = []
            if not steady:
                retv = {1: [], 2: [0], 3: [1], 4: [2], 5: [3, 4], 34: []}.get(s, retv)
                if s >= 33:
                    if s not in cfg.tailpub: return
                    pubv = cfg.tailpub[s]
                    if s > 33: retv = []; nxt = []
                nxt = {0: [], 1: [], 2: [4], 3: [5], 4: [], 32: [33, 34, 35], 33: [37], 34: []}.get(s, nxt)
                if s == 32: wr.append("Kret67")
                nxt = [v for v in nxt if v < last and v not in vissued and not any(it == f"V{v}" for l in later.values() for it, _ in l)]
            for v in retv:
                if v < 0: continue
                if v == s - 1:
                    for db in range(8): vreads(db)
                rd += [f"Vr{v}_{db}_{ks}_{h}" for db in range(8) for ks in range(2) for h in range(2) if ks or not vhalf(v)]
                wr.append(f"Vret{v}")
            for v in pubv:
                assert steady or v in vissued, v
                rd += [f"Vd{v}_{i}" for i in range(4) if i & 1 or not vhalf(v)]; wr.append(f"Vok{v}")
            if not steady and s + 1 <= 7 and s + 1 not in kpub:
                if s + 1 not in kscaled: kscale(s + 1, ((s - 1, "bar") if s >= 1 else (-1, 0))); kscaled.append(s + 1)
                kpub.add(s + 1)
                rd += [f"Kw{s+1}_{ds}" for ds in range(4)]; wr.append(f"Kok{s+1}")
            if not steady and s == 0 and " q1" in cfg.plan:
                rd += [f"Qar{ds}" for ds in range(4)]; wr.append("Qadead")
            if not steady and s == 1:
                rd += [f"Kr0_{kb}_{ds}" for kb in range(4) for ds in range(4)]; wr.append("K0dead")
                rd += ["Kr1_0", "Kr1_1"]
            if (steady or s >= cfg.split_from) and len(uq) >= cfg.split_min_u:
                ag = cfg.arr_gap if len(uq) >= 3 else cfg.arr_gap_small
                A(Op(("arr", s), f"ds_add_u32 v{vCnt}, v{vCone}", "dsw", rd, ["Carr"], cost=8, anchor=(s, "bar", -ag - cfg.ds_lat - 2)))
                A(Op(("exp", s), f"s_add_u32 s{sExp}, s{sExp}, 4", "salu", [f"s{sExp}"], [f"s{sExp}"]))
                A(Op(("pol", s), f"ds_read_b32 v{vPoll}, v{vCnt}", "ds", ["Carr~"], vr(vPoll), anchor=(s, "bar", -cfg.ds_lat - 2)))
                A(Op(("cmp", s), f"v_readfirstlane_b32 s{sPol}, v{vPoll}", "valu", vr(vPoll), [f"s{sPol}"], anchor=(s, "bar", -3)))
                A(Op(("sc", s), f"s_cmp_lt_u32 s{sPol}, s{sExp}", "bar", [f"s{sPol}", f"s{sExp}"], ["scc"], anchor=(s, "bar", -1)))
                A(Op(("bar", s), f"s_cbranch_scc1 L_spin{s if (not steady and (s < cfg.loop_from or s >= 32)) else 16 + s % 8}", "bar", ["scc"] + vr(vPoll) + [f"s{sExp}", f"s{sPol}"], wr, anchor=(s, "bar")))
            else:
                A(Op(("bar", s), "s_barrier", "bar", rd, wr, anchor=(s, "bar")))
            for v in nxt: vdma(v, None)
            for it, fr in later.get(s, []):
                if fr == "b": issue(it, (s, "bar"))
        todo_items = [(it, int(fr) / 10 ** len(fr)) for it, fr in later.get(s, []) if fr != "b"]
        mcount = 0
        for c in seq:
            if not bar_done and mcount >= barpos:
                barrier(); bar_done = True
            while todo_items and mcount >= todo_items[0][1] * nm:
                issue(todo_items.pop(0)[0], (s, "off", mcount))
            if c[0] == "qk":
                _, kb, u = c
                kreads(kb)
                if kb == 0 and li(s, u) == 0 and (steady or s - sg[u] >= 8):
                    qread(("qr", s, u), u, earliest=None if (steady or qk_on(s - 1, u)) else (s - 1, "frac", 0.75))
                    un = (u + 1) % 4; sn = s + (sg[un] - sg[u]) % 8
                    pend_q.append((("q", sn, un), not steady and sn - sg[un] >= 8 * NP))
                    if True:
                        k_, d_ = pend_q.pop(); qload(k_, dummy=d_)
                S = vS + 4 * (chain % 4); chain += 1
                for i, ds in enumerate((3, 2, 1, 0) if rev[c] else (0, 1, 2, 3)):
                    kf = kfrag(s, kb, ds); qf = aQ + u * 16 + ds * 4
                    A(Op(("qk", s, kb, u, ds, i), f"v_mfma_f32_16x16x32_bf16 {vt(S,4)}, {rt(kf,4)}, {at(qf,4)}, {cfg.cinit if i == 0 else vt(S,4)}", "mfma",
                         rr(kf, 4) + ar(qf, 4) + ([] if i == 0 else vr(S, 4)), vr(S, 4)))
                for r in range(4):
                    A(Op(("ex", s, kb, u, r), f"v_exp_f32 v{S+r}, v{S+r}", "trans", vr(S + r), vr(S + r)))
                pd = Pw + u * 8 + kb * 2
                for r in range(2):
                    tx = f"v_perm_b32 v{pd+r}, v{S+2*r+1}, v{S+2*r}, s{sPerm}" if cfg.trunc else f"v_cvt_pk_bf16_f32 v{pd+r}, v{S+2*r}, v{S+2*r+1}"
                    A(Op(("cv", s, kb, u, r), tx, "valu", vr(S + 2 * r, 2), vr(pd + r)))
                mcount += 4
            elif c[0] == "pv":
                _, db, u = c
                vreads(db)
                first = li(s - 1, u) == 0
                o = vOa + db * 16 + u * 4
                for i, ks in enumerate((1, 0) if rev[c] else (0, 1)):
                    vf = vfrag(s - 1, db, ks); pf = Pr + u * 8 + ks * 4
                    z = first and i == 0
                    A(Op(("pv", s, db, u, ks, i), f"v_mfma_f32_16x16x32_bf16 {vt(o,4)}, {at(vf,4)}, {vt(pf,4)}, {(vt(vB,4) if cfg.obias else cfg.oinit) if z else vt(o,4)}", "mfma",
                         ar(vf, 4) + vr(pf, 4) + ((vr(vB, 4) if cfg.obias == "auto" else []) if z else vr(o, 4)), vr(o, 4)))
                mcount += 2
            else:
                _, _, u = c
                first = li(s - 1, u) == 0
                l = vL + 4 * u
                if first:
                    for r in range(2): A(Op(("lz", s, u, r), f"v_mov_b32 v{l+r}, 0", "valu", [], vr(l + r)))
                pf = Pr + u * 8
                A(Op(("on", s, u), f"v_smfmac_f32_16x16x64_bf16 {vt(l,4)}, {vt(vOne,4)}, {vt(pf,8)}, v{vIdx}", "mfma", vr(pf, 8) + vr(l, 2), vr(l, 4)))
                mcount += 1
        if not bar_done: barrier()
        for it, _ in todo_items: issue(it, (s, "off", mcount))
        if not steady and s == 31:
            qread(("qr", 32, 0), 0, dummy=True)
            qload(("q", 32 + sg[1], 1), dummy=True)
        if not steady and s == 7:
            A(Op(("vo2", 7), f"v_xor_b32 v{vO2}, 0x840, v{vO}", "valu", [], vr(vO2)))
            if cfg.full_until < 39: A(Op(("vo3", 7), f"v_cndmask_b32 v{vO3}, v{vO}, v{vO2}, vcc", "valu", vr(vO2) + ["junk"], vr(vO3)))
        for u in sorted(fin):
            l = vL + 4 * u; R = vR + 2 * (u & 1)
            DPP = "row_ror:8 row_mask:0xf bank_mask:0xf"
            pol = cfg.st_last if (not steady and s >= cfg.st_last_from) else cfg.st_pol
            A(Op(("la", s, u), f"v_add_f32 v{l}, v{l}, v{l+1}", "valu", vr(l, 2), vr(l)))
            A(Op(("rc", s, u), f"v_rcp_f32 v{R}, v{l}", "trans", vr(l), vr(R)))
            full = cfg.full_until > 0 if steady else s < cfg.full_until
            if cfg.obias:
                A(Op(("rm", s, u), f"v_and_b32 v{R}, -4, v{R}", "valu", vr(R), vr(R)))
                A(Op(("r2", s, u), f"v_mul_f32 v{R+1}, v{vB}, v{R}", "valu", vr(R) + vr(vB), vr(R + 1)))
                A(Op(("r3", s, u), f"v_add_u32 v{l+1}, s{sLo}, v{R}", "valu", vr(R), vr(l + 1)))
                A(Op(("ck", s, u), f"v_max3_u32 v{vChk}, v{vChk}, v{l}, v{l+1}", "valu", vr(vChk) + vr(l, 2), vr(vChk)))
            else:
                A(Op(("ck", s, u), f"v_max3_u32 v{vChk}, v{vChk}, v{l}, v{R}", "valu", vr(vChk) + vr(l) + vr(R), vr(vChk)))
            for db in range(8):
                o = vOa + db * 16 + u * 4
                for r in range(4):
                    if cfg.obias: A(Op(("mu", s, u, db, r), f"v_fma_f32 v{o+r}, v{o+r}, v{R}, -v{R+1}", "valu", vr(o + r) + vr(R, 2), vr(o + r)))
                    else: A(Op(("mu", s, u, db, r), f"v_mul_f32 v{o+r}, v{o+r}, v{R}", "valu", vr(o + r) + vr(R), vr(o + r)))
                if db & 1:
                    e = o - 16
                    A(Op(("oc", s, u, db, 3), f"v_cvt_pk_bf16_f32 v{o+3}, v{o+2}, v{o+3}", "valu", vr(o + 2, 2), vr(o + 3)))
                    A(Op(("oc", s, u, db, 2), f"v_cvt_pk_bf16_f32 v{o+2}, v{o}, v{o+1}", "valu", vr(o, 2), vr(o + 2)))
                    A(Op(("oc", s, u, db, 0), f"v_cvt_pk_bf16_f32 v{o}, v{e}, v{e+1}", "valu", vr(e, 2), vr(o)))
                    A(Op(("oc", s, u, db, 1), f"v_cvt_pk_bf16_f32 v{o+1}, v{e+2}, v{e+3}", "valu", vr(e + 2, 2), vr(o + 1)))
                    if not full:
                        A(Op(("st", s, u, db), f"buffer_store_dwordx4 {vt(o,4)}, v{vO3}, s[{sO_}:{sO_+3}], s{sOo} offen offset:{(db-1)*32} {pol}".rstrip(), "store",
                             vr(o, 4) + [f"s{sOo}"] + vr(vO3), [], cost=20))
                if full and db & 3 == 3:
                    a = o - 32; x = o - 16
                    for r in range(4):
                        A(Op(("sy", s, u, db, r), f"v_cndmask_b32_dpp v{x+r}, v{a+r}, v{o+r}, vcc {DPP}", "valu", vr(a + r) + vr(o + r), vr(x + r)))
                        A(Op(("sx", s, u, db, r), f"v_mov_b32_dpp v{a+r}, v{o+r} row_ror:8 row_mask:0xf bank_mask:0xc", "valu", vr(a + r) + vr(o + r), vr(a + r)))
                    A(Op(("st", s, u, db - 1), f"buffer_store_dwordx4 {vt(a,4)}, v{vO}, s[{sO_}:{sO_+3}], s{sOo} offen offset:{(db>>2)*128} {pol}".rstrip(), "store",
                         vr(a, 4) + [f"s{sOo}"], [], cost=20))
                    A(Op(("st", s, u, db), f"buffer_store_dwordx4 {vt(x,4)}, v{vO}, s[{sO_}:{sO_+3}], s{sOo} offen offset:{(db>>2)*128 + 2048} {pol}".rstrip(), "store",
                         vr(x, 4) + [f"s{sOo}"], [], cost=20))
            if not steady and 32 <= s < last:
                for x in prog:
                    if x.key[:3] == ("st", s, u): x.maxdl = (s + 1, "frac", (x.key[3] + 1) / 8 * cfg.tail_dl)
            A(Op(("oinc", s, u), f"s_add_u32 s{sOo}, s{sOo}, 4096", "salu", [f"s{sOo}"], [f"s{sOo}"]))
    return prog

def link(cfg, prog):
    lastw = {}; readers = {}
    m = 0
    for x in prog:
        if x.kind == "mfma": x.m = m; m += 1
    for x in prog:
        e = {}
        def add(p, typ):
            if p is x: return
            soft = hard = 0
            if p.kind == "mfma":
                if x.kind == "mfma": return
                if typ in ("raw", "waw"): soft = cfg.mv_lat + (2 if p.key[0] == "on" else 0)
                elif x.kind in ("valu", "trans"): soft = 1
            elif x.kind == "mfma":
                hard = soft = 1
                if typ == "raw":
                    soft = cfg.ds_lat if p.kind == "ds" else (1 if p.kind == "load" else 2)
                elif p.kind == "store": soft = 2
            elif x.kind == "bar" or x.key[0] == "arr":
                hard = 1; soft = {"ds": cfg.ds_lat, "dsw": cfg.ds_lat, "dma": 2}.get(p.kind, 1)
            elif p.kind == "bar":
                soft = hard = 0
            elif p.kind == "salu":
                soft = 2; hard = 1 if x.kind != "salu" else 1
            elif x.kind == "salu":
                soft = hard = 1
            elif typ == "raw":
                if p.kind == "trans": soft = 1
                elif p.kind == "ds" and x.kind == "dma": soft = cfg.ds_lat
                elif p.kind == "valu" and x.kind in ("store", "dsw", "ds"): soft = 1
                elif p.kind == "valu" and "permlane" in x.text: soft = 2
                if "_dpp" in x.text: soft = 1 if x.key[0] == "ob" else 2
                if p.kind == "ds" and x.kind == "valu": soft = 3
            else:
                if p.kind in ("valu", "trans") and x.kind in ("load", "ds", "dma"): soft = 1
                if p.kind in ("store", "dsw"): soft = 1
            o = e.get(id(p))
            e[id(p)] = (p, max(soft, o[1]) if o else soft, max(hard, o[2]) if o else hard)
        for r in x.reads:
            if r in lastw: add(lastw[r], "raw"); x.prod[r] = lastw[r].key
        for r in x.writes:
            if r in lastw: add(lastw[r], "waw")
            for p in readers.get(r, []): add(p, "war")
        for r in x.reads: readers.setdefault(r, []).append(x)
        for r in x.writes: lastw[r] = x; readers[r] = []
        x.preds = list(e.values())
        for p, so, ha in x.preds: p.succs.append((x, so, ha))
    return m

def semantic_check(cfg, prog):
    sg = cfg.sigma
    nq = 0; qblk = {}; nst = 0
    for x in prog:
        k = x.key; P = [x.prod.get(r) for r in x.reads]
        def exp(idx, f):
            for i in idx: assert P[i] is not None and f(P[i]), ("semantic", k, x.reads[i], P[i])
        if x.dummy: continue
        if k[0] == "ksc" and k[4] in (0, 1): exp([0], lambda p: p == ("kld", k[1], k[2]))
        if k[0] == "ksc" and k[4] in (2, 3): exp([0], lambda p: p == k[:4] + (k[4] - 2,))
        if k[0] == "ksc" and k[4] == 4 and k[1] not in cfg.pk: exp([0], lambda p: p == k[:4] + (2,)); exp([1], lambda p: p == k[:4] + (3,))
        if k[0] == "ksc" and k[4] == 4 and k[1] in cfg.pk: exp([0, 1], lambda p: p == k[:3] + (0, 5))
        if k[0] == "ksc" and k[4] == 5: exp(range(4), lambda p: p == ("kld", k[1], k[2])); exp(range(4, 7), lambda p: p[:3] == k[:3] and p[4] == 0)
        if k[0] == "kw": exp(range(4), lambda p: p[:3] == ("ksc", k[1], k[2]) and p[4] == 4); exp(range(5, len(P)), lambda p: p[0] == "bar")
        if k[0] in ("bar", "arr"): exp(range(len(P)), lambda p: True)
        if k[0] == "kr" and k[1] < 8: exp([0], lambda p: p[0] == "bar")
        if k[0] == "vr": exp([0], lambda p: p[0] == "bar")
        if k[0] == "dma": exp([0], lambda p: p == ("m0", k[1])); exp(range(1, len(P)), lambda p: p[0] == "bar")
        if k[0] in ("q", "q0") and k[-1] == "inc": qblk[k[:-1]] = nq; nq += 1
        if k[0] in ("q", "q0") and isinstance(k[-1], int): exp([1], lambda p: p == k[:-1] + (f"m{k[-1]}",))
        if k[0] in ("qr", "qr0"):
            u = k[-2]; n = 0 if k[0] == "qr0" else (k[1] - sg[u]) // 8
            exp(range(4), lambda p: qblk[p[:-1]] == 4 * n + u)
        if k[0] == "qk":
            _, s, kb, u, ds, ii = k; n, i_ = blockpos(cfg, s, u); s0 = s - i_
            exp(range(4), lambda p: p[0] == "kr" and p[1] % 8 == s % 8 and p[2:] == (kb, ds))
            exp(range(4, 8), lambda p: p == (("qr0", u, ds) if n == 0 else ("qr", s0, u, ds)))
            exp(range(8, len(P)), lambda p: p[:4] == k[:4] and p[5] == ii - 1); assert (len(P) > 8) == (ii > 0)
        if k[0] == "ex": exp([0], lambda p: p[:4] == ("qk",) + k[1:4] and p[5] == 3)
        if k[0] == "cv": exp([0, 1], lambda p: p[:4] == ("ex",) + k[1:4])
        if k[0] == "pv":
            _, s, db, u, ks, ii = k
            exp(range(4), lambda p: p[0] == "vr" and p[1] % 8 == s % 8 and p[2:4] == (db, ks))
            exp(range(4, 8), lambda p: p[0] == "cv" and p[1] == s - 1 and p[2] >> 1 == ks and p[3] == u)
            if ii > 0 or blockpos(cfg, s - 1, u)[1] > 0:
                exp(range(8, 12), lambda p: p == ("pv", s, db, u, 1 - ks, 0) if ii else (p[:4] == ("pv", s - 1, db, u) and p[5] == 1))
            else: exp(range(8, len(P)), lambda p: p[0] == "ob" and p[2] >= 12)
        if k[0] == "on":
            exp(range(8), lambda p: p[0] == "cv" and p[1] == k[1] - 1 and p[3] == k[2])
            exp([8, 9], lambda p: p[:3] == ("lz", k[1], k[2]) or p == ("on", k[1] - 1, k[2]))
        if k[0] == "la": exp([0, 1], lambda p: p == ("on", k[1], k[2]))
        if k[0] == "mu": exp([0], lambda p: p[:4] == ("pv", k[1], k[3], k[2]) and p[5] == 1); exp([1], lambda p: p[0] == ("rm" if cfg.obias else "rc") and p[1:] == k[1:3]); exp(range(2, len(P)), lambda p: p == ("r2",) + k[1:3])
        if k[0] == "oc": exp([0, 1], lambda p: p[:3] == ("mu",) + k[1:3])
        if k[0] == "oinc":
            assert nst == 4 * blockpos(cfg, k[1] - 1, k[2])[0] + k[2], k
            nst += 1
    assert nst == 16

def step_of(x): return x.key[1]

def schedule(cfg, prog, nm, pins=None, lo=None, hi=None):
    pins = pins or {}; lo = lo or {}; hi = hi or {}
    start = {}; barw = {}
    cur = -1
    for x in prog:
        if x.kind == "mfma":
            cur = x.m; start.setdefault(x.key[1], x.m)
        elif x.key[0] == "bar": barw[x.key[1]] = cur
    def W(a):
        if a[0] == -1: return -1
        if a[1] == "bar": return barw.get(a[0], nm - 1) + (a[2] if len(a) > 2 else 0)
        if a[1] == "frac": return start[a[0]] - 1 + int(a[2] * (start.get(a[0] + 1, nm) - start[a[0]]))
        if a[1] == "off": return max(0, start[a[0]] - 1 + a[2])
        return start[a[0]] - 1
    fill = [x for x in prog if x.kind != "mfma"]
    for x in prog:
        if x.kind == "mfma": x.win = x.m
    for i, x in enumerate(prog): x.idx = i
    for x in reversed(fill):
        if x.key in pins: x.dls = x.dlh = pins[x.key][0]; continue
        if x.anchor: x.dls = x.dlh = W(x.anchor); continue
        ds = dh = nm - 1
        for y, so, ha in x.succs:
            if y.dummy and y.key not in pins: continue
            if y.kind == "mfma": ds = min(ds, y.m - so); dh = min(dh, y.m - ha)
            else: ds = min(ds, y.dls - so); dh = min(dh, y.dlh - ha)
        if x.key in hi: ds = min(ds, hi[x.key]); dh = min(dh, hi[x.key])
        if x.maxdl: ds = min(ds, W(x.maxdl)); dh = min(dh, W(x.maxdl))
        x.dls, x.dlh = ds, max(dh, -1)
    wins = {w: [] for w in range(-1, nm)}
    for x in fill:
        x.win = None
        x.lo = max(W(x.earliest) if x.earliest else -1, lo.get(x.key, -1))
        if x.anchor: x.lo = x.dlh
    pinned_by_win = {}
    for x in fill:
        if x.key in pins: pinned_by_win.setdefault(pins[x.key][0], []).append(x)
    todo = [x for x in fill if x.key not in pins and not x.dummy]
    todo.sort(key=lambda x: x.idx)
    credit = [0]
    bucket = [0]
    def nbytes(x):
        if x.kind in ("salu", "bar"): return 4
        if x.kind in ("valu", "trans"):
            return 8 if ("_dpp" in x.text or x.text.split()[0] in ("v_cvt_pk_bf16_f32", "v_perm_b32", "v_max3_u32", "v_fma_f32") or "0x" in x.text) else 4
        return 8
    mfl = [x for x in prog if x.kind == "mfma"]
    def ready(x, w, soft):
        if w < x.lo: return False
        for p, so, ha in x.preds:
            if p.dummy and p.key not in pins: continue
            if p.win is None: return False
            lat = ha
            if soft and (p.kind not in ("load", "dma", "ds", "dsw") or x.kind == "dma" or x.key[0] == "ob"): lat = so
            if p.kind in ("store", "dsw") and soft: lat = max(lat, min(so, 1))
            if w == -1 or w == nm - 1: lat = 0
            if w < p.win + lat: return False
        return True
    for w in range(-1, nm):
        if w in pinned_by_win:
            for x in sorted(pinned_by_win[w], key=lambda x: pins[x.key][1]):
                x.win = w; wins[w].append(x)
        if pins and cfg._loop[0] <= w < cfg._loop[1]: continue
        cap = 8 if w >= 0 else 0
        if w >= 0 and mfl[w].key[0] == "on": cap = 4
        cap0 = cap
        rate = 8
        if cfg.smooth and pins and 0 <= w < nm - 1:
            acc = 0
            for x in sorted((x for x in todo[:900] if x.dls <= w + 120), key=lambda x: x.dls):
                acc += min(x.cost, 8)
                rate = max(rate, acc / (max(x.dls, w) - w + 1))
            credit[0] = credit[0] + rate - 8 if rate > 8.2 else 0
            credit[0] = min(credit[0], rate)
            extra = int(credit[0] // 4) * 4
            cap += extra
        used = 0
        cur = wins[w]
        def place(x):
            nonlocal used
            x.win = w; cur.append(x); used += min(x.cost, 8); todo.remove(x)
        while True:
            cand = [x for x in todo[:700] if ready(x, w, True) or (w >= x.dlh and ready(x, w, False))]
            if not cand: break
            z = [x for x in cand if x.kind in ("salu", "bar")]
            if z:
                place(z[0]); continue
            forced = [x for x in cand if x.dls <= w]
            if w == -1 or w == nm - 1:
                if not forced: break
                place(min(forced, key=lambda x: x.idx)); continue
            hasvalu_dep = lambda x: x.kind in ("ds", "dsw", "load", "dma", "store") and any(p.win == w and p.kind in ("valu", "trans") for p, _, _ in x.preds)
            hard_forced = forced
            if hard_forced:
                place(min(hard_forced, key=lambda x: (x.dls, x.idx))); continue
            if used >= cap: break
            nb = lambda x: 1024 if "b128" in x.text else 512
            dsb = sum(nb(x) for x in cur if x.kind == "ds")
            tight = rate > 8.2
            recent = (not tight) and any(y.kind == "ds" for k in range(1, cfg.ds_gap) for y in wins.get(w - k, []))
            vmk = ("load", "dma", "store")
            vgap = max(1, int((cfg.vm_gap if pins else cfg.vm_gap_loop or cfg.vm_gap) * 16 / (8 + rate)))
            recent_vm = any(y.kind in vmk for k in range(0, vgap) for y in wins.get(w - k, []))
            sgap = max(1, int(cfg.st_gap * 16 / (8 + rate)))
            if any(y.kind == "store" for k in range(0, sgap) for y in wins.get(w - k, [])):
                cand = [x for x in cand if x.kind != "store" and not (cfg.st_gap_all and x.kind in vmk)]
            dcap = cfg.ds_cap * (8 + cap) // 16
            if cfg.st_block and any(-4 * cfg.vm_gap <= b - w <= cfg.st_block for b in barw.values()):
                cand = [x for x in cand if x.kind != "store"]
            cand = [x for x in cand if (x.kind != "ds" or (not recent and dsb + nb(x) <= dcap)) and not (x.kind in vmk and recent_vm and not (getattr(x, "nogap", False) and used == 0))]
            if not cand: break
            cand.sort(key=lambda x: (-99999 if (x.kind in ("load", "dma", "dsw", "store") or (cfg.qr_asap and x.key[0] == "qr")) else x.dls, x.idx))
            if cfg.fetch_thr is not None and not tight and bucket[0] >= cfg.fetch_thr and cap - used >= 8 and cand[0].dls > w + cfg.fetch_slack:
                tr = [x for x in cand if x.kind == "trans"]
                if tr: place(tr[0]); continue
            if cap - used >= 8:
                top = cand[0]
                if top.cost >= 8: place(top); continue
                small = [x for x in cand if x.cost == 4]
                big = [x for x in cand if x.cost >= 8]
                fits = lambda a, b: not (a.kind == "ds" and b.kind == "ds" and dsb + nb(a) + nb(b) > dcap)
                partner = any(fits(top, y) for y in small if y is not top) or any(y.cost == 4 and so == 0 and y.win is None and y.kind == "valu" and all(p.win is not None or p is top for p, _, _ in y.preds) for y, so, ha in top.succs)
                if partner or not big or (cap - used) % 8: place(top)
                else: place(big[0])
                continue
            small = [x for x in cand if x.cost == 4]
            if not small: break
            place(small[0])
        bts = 8 + sum(nbytes(x) for x in cur if x.kind not in ("salu", "bar")) + (4 if any(x.kind not in ("valu", "trans") for x in cur) else 2)
        bucket[0] = max(0, bucket[0] + bts - 22 * max(16, 8 + sum(x.cost for x in cur)) // 16)
        if w >= 0: credit[0] -= max(0, min(used, cap) - cap0)
        if w not in (-1, nm - 1):
            order = {"bar": 0, "salu": 0, "dma": 1, "load": 1, "store": 1, "dsw": 1, "ds": 1, "valu": 2, "trans": 2}
            lvl = {}
            for x in cur:
                l = order[x.kind]
                for p, _, _ in x.preds:
                    if p.win == w and p.kind != "mfma": l = max(l, lvl[id(p)])
                lvl[id(x)] = l
            cur.sort(key=lambda x: lvl[id(x)])
    assert not todo, [x.key for x in todo[:10]]
    for w, c in wins.items():
        for i, x in enumerate(c): x.pos = i
    return wins, start

def norm(key, d):
    return (key[0], key[1] + d) + tuple(key[2:])

class Ins:
    def __init__(s, text, op=None, kind=None):
        s.text, s.op, s.kind = text, op, kind or (op.kind if op else "salu")
        s.vm = None; s.lg = None

def generate(cfg):
    last = 32 + max(cfg.sigma)
    cfg.q_ahead = getattr(cfg, "q_ahead", 2)
    cfg.code_pf_n = getattr(cfg, "code_pf_n", 2)
    sp = build(cfg, 0, 56, True); nms = link(cfg, sp)
    swins, sstart = schedule(cfg, sp, nms)
    per = sstart[8] - sstart[0]
    ok = None
    for b in (16, 24, 32):
        same = all([x.text for x in swins[sstart[b] + i]] == [x.text for x in swins[sstart[b + 8] + i]] and
                   [norm(x.key, 8) for x in swins[sstart[b] + i]] == [x.key for x in swins[sstart[b + 8] + i]] for i in range(per))
        if same: ok = b; break
    assert ok is not None, "steady state not periodic"
    rp = build(cfg, 0, last + 1, False)
    E_ = cfg.loop_from
    off0 = sstart[ok + E_ - 8] - sstart[ok]
    inloop = {norm(x.key, 8 + 8 * it - ok) for it in range(3) for i in range(per) for x in swins[sstart[ok] + i] if it or i >= off0}
    rp = [x for x in rp if not x.dummy or x.key in inloop]
    nm = link(cfg, rp)
    semantic_check(cfg, rp)
    rstart = {}
    for x in rp:
        if x.kind == "mfma": rstart.setdefault(x.key[1], x.m)
    L0, L1 = rstart[E_], rstart[32]
    assert L1 - L0 == 3 * per - off0
    XP = L0 + per - off0
    cfg._loop = (L0, L1)
    pins = {}
    for it in range(3):
        for i in range(per):
            for x in swins[sstart[ok] + i]:
                if it or i >= off0: pins[norm(x.key, 8 + 8 * it - ok)] = (L0 - off0 + it * per + i, x.pos)
    keys = {x.key: x for x in rp}
    assert len(keys) == len(rp)
    missing = [k for k in pins if k not in keys]
    assert not missing, missing[:10]
    lo = {}; hi = {}
    mid = [x for x in rp if x.key[:2] == ("qk", 20)][0]
    midx = rp.index(mid)
    for i, x in enumerate(rp):
        if x.kind == "mfma" or x.key in pins: continue
        if i < midx: hi[x.key] = L0 - 1
        else: lo[x.key] = L1
    wins, start = schedule(cfg, rp, nm, pins, lo, hi)
    mf = [x for x in rp if x.kind == "mfma"]
    def stat(w):
        return L0 + (w - L0) % per if L0 <= w < L1 else w
    free = {}
    pre = {}
    for w in range(-1, nm):
        if stat(w) == w:
            free[w] = []
            if w not in (-1, nm - 1):
                for x in wins[w]:
                    if x.kind == "bar": free[w].append(Ins(x.text, x))
    def body(w):
        if w in (-1, nm - 1): return wins[w]
        return [x for x in wins[w] if x.kind not in ("salu", "bar")]
    def walk(fix):
        q = {"vm": [], "lgkm": []}
        pend = {}
        hist = {}
        changed = False
        def dowait(ins):
            for c, n in (("vm", ins.vm), ("lgkm", ins.lg)):
                if n is None: continue
                while len(q[c]) > n:
                    d = q[c].pop(0)
                    for r in d.writes:
                        if pend.get(r) is d: del pend[r]
        def need(x):
            n = {}
            for r in x.reads + x.writes:
                p = pend.get(r)
                if p is not None and not (r in x.writes and r not in x.reads and p.cnt == x.cnt):
                    n[p.cnt] = p if (p.cnt not in n or q[p.cnt].index(p) > q[p.cnt].index(n[p.cnt])) else n[p.cnt]
            return n
        def issue(x):
            if x.cnt:
                q[x.cnt].append(x)
                for r in x.writes:
                    if r != "stord": pend[r] = x
        def setw(ins, c, n):
            n = min(n, 62 if c == "vm" else 14)
            if c == "vm": ins.vm = n if ins.vm is None else min(ins.vm, n)
            else: ins.lg = n if ins.lg is None else min(ins.lg, n)
        def handle(x, w, pos, cands):
            nonlocal changed
            n = need(x)
            if not n: return
            assert fix, ("unwaited", x.key, {c: p.key for c, p in n.items()})
            changed = True
            for c, p in n.items():
                done = False
                for cw in cands:
                    if cw < 0 or cw == nm - 1 or cw not in hist: continue
                    snap = hist[cw][c]
                    if p not in snap: continue
                    fl = free[stat(cw)]
                    wi = [i for i in fl if i.kind == "wait"]
                    if not wi and fl and cw != cands[-1]: continue
                    if not wi:
                        wi = [Ins("", None, "wait")]; fl.insert(0, wi[0])
                    setw(wi[0], c, len(snap) - 1 - snap.index(p)); done = True; break
                if not done:
                    ins = pre.setdefault((stat(w), pos), Ins("", None, "wait"))
                    setw(ins, c, len(q[c]) - 1 - q[c].index(p))
                while p in q[c]:
                    d = q[c].pop(0)
                    for r in d.writes:
                        if pend.get(r) is d: del pend[r]
        for w in range(-1, nm):
            if w >= 0:
                if (stat(w), "m") in pre: dowait(pre[(stat(w), "m")])
                handle(mf[w], w, "m", [w - 1, w - 2])
            hist[w] = {c: list(v) for c, v in q.items()}
            hist.pop(w - 4, None)
            for ins in list(free[stat(w)]):
                if ins.kind == "wait": dowait(ins)
                elif ins.kind == "bar":
                    x = [y for y in wins[w] if y.kind == "bar"][0]
                    handle(x, w, "b", [w - 1, w - 2, w])
            for pos, x in enumerate(body(w)):
                if (stat(w), pos) in pre: dowait(pre[(stat(w), pos)])
                handle(x, w, pos, [w, w - 1])
                issue(x)
        return changed
    for _ in range(10):
        if not walk(True): break
    walk(False)
    for w in range(0, nm - 1):
        if stat(w) != w: continue
        for x in wins[w]:
            if x.kind != "salu": continue
            hiw = min([y.win - (1 if "m0" in x.writes or y.kind == "salu" else 0) for y, _, _ in x.succs if y.win is not None] + [w + 40, nm - 2])
            if L0 <= w < XP: hiw = min(hiw, XP - 3)
            elif XP <= w < L0 + per: hiw = min(hiw, L0 + per - 1)
            elif w < L0: hiw = min(hiw, L0 - 1)
            hiw = max(hiw, w)
            c = [k for k in range(w, hiw + 1) if not free[k]]
            c2 = [k for k in c if body(k) and body(k)[0].kind in ("ds", "dma", "load", "store", "dsw")]
            k = c2[0] if c2 else (c[0] if c else w)
            if any(i.text.startswith("s_cmp") for i in free[k]): free[k].insert(0, Ins(x.text, x))
            else: free[k].append(Ins(x.text, x))
    k = [k for k in range(XP - 2, XP) if not free[k]]
    k = k[0] if k else XP - 1
    if any(i.text.startswith("s_add") for kk in range(k + 1, XP) for i in free[kk]): k = XP - 1
    free[k].append(Ins(f"s_sub_u32 s{sCnt}, s{sCnt}, 1"))
    if cfg.nop_ds:
        for w in range(0, nm - 1):
            if stat(w) == w and not free[w] and body(w) and body(w)[0].kind in ("ds", "dma", "load", "store", "dsw"):
                free[w].append(Ins("s_nop 0", None, "nop"))
    def wtext(i):
        t = "s_waitcnt"
        if i.vm is not None: t += f" vmcnt({i.vm})"
        if i.lg is not None: t += f" lgkmcnt({i.lg})"
        return t
    code = {}
    for w in range(-1, nm):
        if stat(w) != w: continue
        l = []
        if w >= 0:
            if (w, "m") in pre: l.append(pre[(w, "m")])
            l.append(Ins(mf[w].text, mf[w]))
        l += free[w]
        for pos, x in enumerate(body(w)):
            if (w, pos) in pre: l.append(pre[(w, pos)])
            l.append(Ins(x.text, x))
        for i in l:
            if i.kind == "wait": i.text = wtext(i)
        code[w] = l
    def wcost(l, head=False):
        t = 0; base = 0; lastvalu = -99; blk = 8
        for i in l:
            if i.kind == "mfma": base = t; t += 4; blk = 12 if "smfmac" in i.text else 8; continue
            if i.kind in ("salu", "wait", "bar", "nop"): t += 4; continue
            if i.kind == "nopx": t += 4 * (int(i.text.split()[1]) + 1); continue
            if not head: t = max(t, base + blk)
            if i.kind in ("valu", "trans"): t += i.op.cost; lastvalu = t
            else:
                t = max(t, lastvalu + 8) + i.op.cost
        return t if head else max(t, base + 16)
    def hazards(fix):
        seq = []
        changed = False
        for w in range(-1, nm):
            l = code[stat(w)]
            j = 0
            while j < len(l):
                i = l[j]; x = i.op
                needn = 0
                if x is not None and x.kind not in ("salu", "bar"):
                    dist = 0
                    for p, st, pwin in reversed(seq):
                        y = p.op
                        if y is not None:
                            req = 0
                            raw = set(y.writes) & set(x.reads); waw = set(y.writes) & set(x.writes); war = set(y.reads) & set(x.writes)
                            if y.kind == "mfma":
                                if x.kind == "mfma":
                                    if set(y.writes) & set(x.reads[:8]): req = 8
                                elif raw or waw: req = 12 if y.key[0] == "on" else 8
                                elif war and x.kind in ("valu", "trans") and set(y.writes) & set(x.writes): req = 3
                            elif y.kind in ("valu", "trans"):
                                if raw and x.kind == "mfma": req = 2
                                if raw and ("permlane" in x.text or "_dpp" in x.text): req = 2
                                if raw and y.kind == "trans" and x.kind != "trans": req = max(req, 1)
                            elif y.kind in ("store", "dsw") and war and y.cost == 20: req = 2
                            elif y.kind == "salu" and "m0" in y.writes and x.kind == "dma": req = 1
                            if req - dist > needn: needn = req - dist; pw = pwin
                        dist += st
                        if dist >= 12: break
                if needn > 0:
                    assert fix, ("hazard", x.key)
                    for k in range(w, pw - 1, -1):
                        if k < 0: break
                        lk = code[stat(k)]
                        mi = [n for n, z in enumerate(lk) if z.kind == "mfma"][0]
                        places = []
                        if k > pw and (k < w or j > mi): places.append(mi + 1)
                        if k < w: places.append(len(lk))
                        ok_ = False
                        for pl in places:
                            tr = lk[:pl] + [Ins("s_nop 0", None, "nopx")] + lk[pl:]
                            if wcost(tr) == wcost(lk): lk[:] = tr; ok_ = True; break
                        if ok_: return True
                    l.insert(j, Ins(f"s_nop {needn-1}", None, "nopx")); changed = True
                    continue
                st = int(i.text.split()[1]) + 1 if (i.text.startswith("s_nop") and i.op is None) else 1
                seq.append((i, st, w)); seq = seq[-14:]
                j += 1
        return changed
    while hazards(True): pass
    lastw = {}; seen = set()
    for w in range(-1, nm):
        it = (w - L0) // per if L0 <= w < L1 else 0
        for i in code[stat(w)]:
            if i.op is None: continue
            x = keys[norm(i.op.key, 8 * it)]
            assert x.text == i.text, (x.text, i.text)
            assert x.key not in seen; seen.add(x.key)
            if not x.dummy:
                for r in x.reads:
                    assert lastw.get(r) == x.prod.get(r), ("dataflow", x.key, r, lastw.get(r), x.prod.get(r))
            for r in x.writes: lastw[r] = x.key
    assert all(x.key in seen or x.dummy for x in rp), [x.key for x in rp if x.key not in seen and not x.dummy][:5]
    est = {}
    for s in range(0, last + 1):
        e = rstart.get(s + 1, nm)
        est[s] = (sum(wcost(code[stat(w)]) for w in range(rstart[s], e)), (e - rstart[s]) * 16)
    cfg.est = est; cfg.est_head = wcost(code[-1], True)
    out = []
    cfg.spins = []
    E = out.append
    stamp_at = getattr(cfg, "stamp_steps", [])
    inv = {v: k for k, v in rstart.items()}
    for w in range(-1, nm):
        if stat(w) != w: continue
        if w == L0:
            if cfg.stamps and 7.9 in stamp_at:
                j = stamp_at.index(7.9); E(f"    s_memrealtime s[{64+2*j}:{65+2*j}]")
            E("L_loop:")
        if w in inv:
            E(f"; ---- step {inv[w]} ----")
            if cfg.jitter:
                E(f"    s_cmp_lg_u32 s{sWave}, {(inv[w] * cfg.jitter[1]) & 3}\n    s_cbranch_scc1 L_j{inv[w]}\n    s_sleep {cfg.jitter[0]}\nL_j{inv[w]}:")
            if cfg.stamps and inv[w] in stamp_at:
                j = stamp_at.index(inv[w]); E(f"    s_memrealtime s[{64+2*j}:{65+2*j}]")
        for i in code[w]:
            if i.op is not None and i.op.key[0] in cfg.kill and (L0 if cfg.kill_from is None else cfg.kill_from) <= w: E("    s_nop 0")
            else: E("    " + i.text)
            if cfg.pad and i.kind == "mfma" and L0 <= w < L1 and w % cfg.pad == 0: E("    s_nop 4")
            if i.text.startswith("s_cbranch_scc1 L_spin"):
                n = i.text.split("L_spin")[1]; E(f"L_back{n}:"); cfg.spins.append(n)
        if off0 == 0:
            if w == L0 + per - 1: E("    s_cbranch_scc0 L_loop")
        else:
            if w == XP - 1: E("    s_cbranch_scc1 L_tail")
            if w == L0 + per - 1: E("    s_branch L_loop"); E("L_tail:")
    lastscc = None
    for l in out:
        t = l.strip()
        if t.startswith(("s_add", "s_sub", "s_cmp", "s_and", "s_lsh", "s_bfe", "s_or", "s_xor", "s_not")): lastscc = t
        if t.startswith("s_cbranch_scc1 L_spin"): assert lastscc.startswith("s_cmp_lt_u32"), lastscc
        if t.startswith(("s_cbranch_scc0 L_loop", "s_cbranch_scc1 L_tail")): assert lastscc.startswith(f"s_sub_u32 s{sCnt}"), lastscc
    return "\n".join(out)

def fbits(x): return struct.unpack("<I", struct.pack("<f", x))[0]

def head(cfg):
    T = vS
    h = f"""    s_load_dwordx4 s[4:7], s[0:1], 0          ; q, k
    s_load_dwordx4 s[8:11], s[0:1], 16        ; v, out
"""
    if cfg.x8: h = "    s_load_dwordx8 s[4:11], s[0:1], 0         ; q, k, v, out\n"
    if cfg.stamps: h += f"    s_load_dwordx2 s[56:57], s[0:1], {32 if cfg.stamps in ('dbg', 'skew') else 40}\n    s_memrealtime s[60:61]\n"
    h += f"""    v_lshrrev_b32 v{T}, 6, v0
    v_and_b32 v{T+4}, 63, v0                  ; lane
    v_readfirstlane_b32 s{sWave}, v{T}
    s_cmp_ge_u32 s2, 256
    s_cbranch_scc1 L_end
    v_lshlrev_b32 v{vKl}, 4, v{T+4}           ; lane*16 : source offset of every K, Q and V load
    s_and_b32 s{sTmp}, s2, 7
    s_lshr_b32 s{sTmp+1}, s2, 3
    s_lshl_b32 s{sTmp}, s{sTmp}, 5
    s_add_u32 s{sTmp}, s{sTmp}, s{sTmp+1}
    s_lshl2_add_u32 s{sTmp+2}, s{sTmp}, s{sWave}
    s_lshl_b32 s{sTmp+2}, s{sTmp+2}, 16       ; q/o byte offset of this wave
    s_lshr_b32 s{sTmp}, s{sTmp}, 2
    s_lshl_b32 s{sTmp}, s{sTmp}, 17           ; k/v byte offset of the group
    s_lshl_b32 s{sMq}, s{sWave}, 12           ; wave*4096
    s_add_u32 s{sTmp+3}, s{sTmp}, s{sMq}
    s_sub_u32 s{sK_+2}, 0x20000, s{sMq}
    s_mov_b32 s{sK_+3}, 0x20000
    s_mov_b32 s{sQ_+3}, s{sK_+3}
    s_mov_b32 s{sQ_+2}, 0x10000
"""
    if cfg.rot:
        h += f"""    s_bfe_u32 s{sTmp+4}, s2, 0x20003
    s_mul_i32 s{sTile}, s{sTmp+4}, {cfg.rot*16384}
    s_and_b32 s{sTile}, s{sTile}, 0x1ffff
    s_add_u32 s{sTile+1}, s{sTile}, 16384
    s_and_b32 s{sTile+1}, s{sTile+1}, 0x1ffff
"""
    elif cfg.xor:
        h += f"""    s_lshl_b32 s{sTile}, s2, {11 + cfg.xor[1]}
    s_and_b32 s{sTile}, s{sTile}, {cfg.xor[0] << 14:#x}
    s_xor_b32 s{sTile+1}, s{sTile}, 0x4000
"""
    else: h += f"    s_mov_b32 s{sTile}, 0\n    s_movk_i32 s{sTile+1}, 0x4000\n"
    h += f"""    s_mov_b32 s{sQo}, 0
    s_mul_i32 s{sMqs}, s{sWave}, {QW}
    s_add_u32 s{sMqs+1}, s{sMqs}, 32
    s_add_u32 s{sMqs+2}, s{sMqs}, 64
    s_add_u32 s{sMqs+3}, s{sMqs}, 96
{head2(cfg).split("@CPF")[0] + f"    global_load_dword v{vJ}, v[{T+14}:{T+15}], off" if cfg.early_pf else ""}
    s_waitcnt lgkmcnt(0)
    s_add_u32 s{sK_}, s6, s{sTmp+3}
    s_addc_u32 s{sK_+1}, s7, 0
    s_add_u32 s{sQ_}, s4, s{sTmp+2}
    s_addc_u32 s{sQ_+1}, s5, 0
"""
    if cfg.stamps: h += "    s_memrealtime s[62:63]\n"
    return h

def head2(cfg):
    c = math.log2(math.e) / math.sqrt(128.0) * cfg.kmul
    T = vS
    h = f"""    ; code prefetch into L2: 16 lines per wave, 8 KiB per workgroup
    s_getpc_b64 s[{sC_}:{sC_+1}]
L_pc:
    s_mov_b32 s{sC_+2}, L_slow - L_pc
    s_bfe_u32 s{sTmp+1}, s2, 0x30003
    s_lshl2_add_u32 s{sTmp+1}, s{sTmp+1}, s{sWave}
    s_lshl_b32 s{sTmp+1}, s{sTmp+1}, 11
    v_lshl_add_u32 v{vJ}, v{T+4}, 5, s{sTmp+1}
    v_min_u32 v{vJ}, s{sC_+2}, v{vJ}          ; stay inside the code
    v_mov_b32 v{T+15}, s{sC_+1}
    v_add_co_u32 v{T+14}, vcc, s{sC_}, v{vJ}
    s_nop 1
    v_addc_co_u32 v{T+15}, vcc, 0, v{T+15}, vcc
@CPF
    s_add_u32 s{sV_}, s8, s{sTmp+3}
    s_addc_u32 s{sV_+1}, s9, 0
    s_sub_u32 s{sC_}, s{sV_}, 8               ; second V descriptor: its loads land 8 bytes further in LDS
    s_subb_u32 s{sC_+1}, s{sV_+1}, 0
    s_add_u32 s{sC_+2}, s{sK_+2}, 8
    s_mov_b32 s{sC_+3}, 0x20000
    s_add_u32 s{sO_}, s10, s{sTmp+2}
    s_addc_u32 s{sO_+1}, s11, 0
    s_mov_b32 s{sV_+2}, s{sK_+2}
    s_mov_b32 s{sV_+3}, 0x20000
    s_mov_b32 s{sO_+2}, 0x10000
    s_mov_b32 s{sO_+3}, 0x20000
"""
    for t in range(2, 8):
        if cfg.rot: h += f"    s_add_u32 s{sTile+t}, s{sTile+t-1}, 16384\n    s_and_b32 s{sTile+t}, s{sTile+t}, 0x1ffff\n"
        elif cfg.xor: h += f"    s_xor_b32 s{sTile+t}, s{sTile}, {t*16384}\n"
        else: h += f"    s_mov_b32 s{sTile+t}, {t*16384}\n"
    h += f"""    s_mul_i32 s{sTmp+4}, s{sWave}, {VW}
    s_add_u32 s{sM0}, s{sTmp+4}, {VB}
    s_add_u32 s{sM0+1}, s{sTmp+4}, {VB + VSTR}
    s_add_u32 s{sM0+2}, s{sTmp+4}, {VB + 2 * VSTR}
    s_add_u32 s{sM0+3}, s{sTmp+4}, {VB + 3 * VSTR}
    s_mov_b32 s{sOo}, 0
    s_mov_b32 s{sExp}, 0
    s_mov_b32 s{sCnt}, 2
    s_mov_b32 s{sScale}, {fbits(c):#x}
    s_mov_b32 s{sMask}, 0xffff0000
{f"    s_mov_b32 s{sPerm}, 0x07060302" if cfg.trunc else ""}
    v_and_b32 v{T+1}, 15, v{T+4}              ; l & 15
    v_lshrrev_b32 v{T+2}, 4, v{T+4}           ; l >> 4
    v_lshlrev_b32 v{T+7}, 8, v{T+1}           ; (l&15)*256
    ; K fragment read addresses: g*256 + (row ^ g ^ 4*(ds&1))*16
    v_lshlrev_b32 v{T+3}, 8, v{T+2}
    v_xor_b32 v{T+5}, v{T+1}, v{T+2}
    v_lshl_add_u32 v{vKr}, v{T+5}, 4, v{T+3}
    v_xor_b32 v{vKr+1}, 64, v{vKr}
    v_add_u32 v{vKr+2}, {0x10000 - KSH}, v{vKr}
    v_add_u32 v{vKr+3}, {0x10000 - KSH}, v{vKr+1}
    ; K write addresses: key 16w+4i+p goes to block 2(i&1)+(p>>1), row 8(p&1)+4(i>>1)+w ; lane = 16p+c
    v_and_b32 v{T+6}, 7, v{T+1}
    v_xor_b32 v{T+6}, s{sWave}, v{T+6}
    v_lshl_add_u32 v{T+6}, v{T+6}, 4, v{T+7}
    v_and_b32 v{T+8}, 1, v{T+2}
    v_lshl_add_u32 v{T+6}, v{T+8}, 7, v{T+6}
    v_lshrrev_b32 v{T+10}, 1, v{T+2}
    v_lshl_add_u32 v{vKw}, v{T+10}, 12, v{T+6}
    v_cmp_gt_u32 vcc, 2048, v{vKw}            ; lanes that write fragments (.,0,0) and (.,0,1)
    v_add_u32 v{T+6}, {3 * 16384}, v{vKw}
    v_xor_b32 v{vKw+1}, 64, v{vKw}
    v_cndmask_b32 v{vKwS[0]}, v{vKw}, v{T+6}, vcc
    v_xor_b32 v{vKwS[1]}, 64, v{vKwS[0]}
    ; Q fragment read address: column n holds row n with bits 1 and 2 exchanged : row*256 + (row>>2)*32 + g*16
    v_and_b32 v{T+9}, 3, v{T+4}
    v_lshrrev_b32 v{T+12}, 2, v{T+1}
    v_lshrrev_b32 v{T+6}, 1, v{T+1}
    v_xor_b32 v{T+6}, v{T+6}, v{T+12}
    v_and_b32 v{T+6}, 1, v{T+6}
    v_mul_u32_u24 v{T+6}, 6, v{T+6}
    v_xor_b32 v{T+13}, v{T+6}, v{T+1}         ; row
    v_lshrrev_b32 v{T+6}, 2, v{T+13}
    v_lshlrev_b32 v{T+6}, 5, v{T+6}
    v_lshl_add_u32 v{T+6}, v{T+13}, 8, v{T+6}
    v_lshl_add_u32 v{T+6}, v{T+2}, 4, v{T+6}
    v_add_u32 v{vQr}, s{sMqs}, v{T+6}
    ; V transposed-read address: lane = 16g+4r+c reads 8 bytes of chunk c of key 16r+8(g&1)+2kb+(g>>1)
    v_mul_u32_u24 v{T+6}, 2056, v{T+8}
    v_lshl_add_u32 v{T+6}, v{T+10}, 8, v{T+6}
    v_lshl_add_u32 v{T+6}, v{T+9}, 4, v{T+6}
    v_mul_u32_u24 v{T+8}, {VW}, v{T+12}
    v_add_u32 v{T+8}, {VB}, v{T+8}
    v_add_u32 v{vV}, v{T+8}, v{T+6}
"""
    h += f"""    ; output: a store covers 8 rows x 128 bytes: row(n&7)*256 + (n>>3)*64 + g*16
    v_and_b32 v{T+10}, 7, v{T+13}
    v_lshlrev_b32 v{T+10}, 8, v{T+10}
    v_lshl_add_u32 v{T+10}, v{T+2}, 4, v{T+10}
    v_and_b32 v{T+11}, 8, v{T+1}
    v_lshl_add_u32 v{vO}, v{T+11}, 3, v{T+10}
"""
    OB = f"""    v_lshl_add_u32 v{vB if cfg.obias == "auto" else T+8}, v{T+4}, 2, v{T+7}     ; V sample for the accumulator offset: key l&15, columns 2l, 2l+1
{f"    v_add3_u32 v{vB}, v{vB}, v{T+11}, s{sM0+3}" if " u" in cfg.plan else ""}
    s_mov_b32 s{sBc}, {((cfg.ob_exp << 23) | 0x400000):#x}
    s_mov_b32 s{sLo}, {((cfg.limit_exp - cfg.limit_lo) << 23):#x}
"""
    h += f"""    ; row-sum operand: rows 4i and 4i+1 are ones; they pick elements 0,1 and 2,3 of every group of four keys
    v_cmp_eq_u32 vcc, 1, v{T+9}
    v_mov_b32 v{T+6}, 0x44444444
    v_mov_b32 v{T+8}, 0xeeeeeeee
    v_cndmask_b32 v{vIdx}, v{T+6}, v{T+8}, vcc
    v_cmp_gt_u32 vcc, {0 if cfg.ones_rows == 0 else 2}, v{T+9 if cfg.ones_rows == 8 else T+1}
    v_mov_b32 v{T+6}, 0x3f803f80
    v_mov_b32 v{vChk}, {'-1' if cfg.force_slow else '0'}
    v_cndmask_b32 v{T+6}, 0, v{T+6}, vcc
    v_lshlrev_b32 v{vCnt}, 2, v{T+4}
    v_add_u32 v{vCnt}, {CB:#x}, v{vCnt}
    v_mov_b32 v{vOne}, v{T+6}
    v_mov_b32 v{vOne+1}, v{T+6}
    v_mov_b32 v{vOne+2}, v{T+6}
    v_mov_b32 v{vOne+3}, v{T+6}
{"".join(f"    v_mov_b32 v{vKp2+i}, {fbits(cfg.cfake):#x}" + chr(10) for i in range(4)) if cfg.cfake is not None else ""}    v_mov_b32 v{vCone}, 1
    v_mov_b32 v{vPoll}, 0
{"".join(f"    v_mov_b32_e32 v{vB+i}, {fbits(cfg.obias):#x}" + chr(10) for i in range(4)) if isinstance(cfg.obias, float) else ""}{OB if cfg.obias else ""}    s_mov_b32 vcc_lo, 0xff00ff00              ; lanes with (l & 8), used by the output selects
    s_mov_b32 vcc_hi, 0xff00ff00
"""
    if cfg.split_min_u > 4:
        h = "\n".join(l for l in h.split("\n") if not l.startswith((f"    v_lshlrev_b32 v{vCnt},", f"    v_add_u32 v{vCnt},", f"    v_mov_b32 v{vCone},", f"    v_mov_b32 v{vPoll},", f"    s_mov_b32 s{sExp}, 0\n", f"    s_mov_b32 s{sExp}, 0 ")) and l != f"    s_mov_b32 s{sExp}, 0")
    return h

def tail(cfg):
    lim = (127 + cfg.limit_exp) << 23
    t = ""
    if cfg.stamps == "skew":
        t += """    s_waitcnt vmcnt(0)
    s_memrealtime s[66:67]
    s_mov_b32 s58, 256
    s_mov_b32 s59, 0x20000
    s_not_b32 s64, s60
    v_mov_b32 v64, s64
    v_mov_b32 v60, 0
    s_mov_b64 exec, 1
L_sk0:
    s_memrealtime s[72:73]
    s_waitcnt lgkmcnt(0)
    s_sub_u32 s72, s72, s60
    s_cmp_lt_u32 s72, 6500
    s_cbranch_scc1 L_sk0
    s_cmp_lg_u32 s3, 0
    s_cbranch_scc1 L_sk1
    buffer_atomic_umax v64, v60, s[56:59], 0 offen
    s_waitcnt vmcnt(0)
L_sk1:
    s_memrealtime s[72:73]
    s_waitcnt lgkmcnt(0)
    s_sub_u32 s72, s72, s60
    s_cmp_lt_u32 s72, 8000
    s_cbranch_scc1 L_sk1
    buffer_load_dword v64, v60, s[56:59], 0 offen sc0 sc1
    s_waitcnt vmcnt(0)
    v_readfirstlane_b32 s64, v64
    s_nop 4
    s_not_b32 s64, s64
    s_sub_u32 s66, s66, s64
    s_min_u32 s66, s66, 10000
    s_mul_i32 s66, s66, 10
    s_add_u32 s66, s66, 10000
L_sk2:
    s_memrealtime s[72:73]
    s_waitcnt lgkmcnt(0)
    s_sub_u32 s72, s72, s64
    s_cmp_lt_u32 s72, s66
    s_cbranch_scc1 L_sk2
    s_mov_b64 exec, -1
"""
    elif cfg.stamps == "spin":
        if not getattr(cfg, "stamp_steps", []): t += "    s_waitcnt vmcnt(0)\n    s_memrealtime s[64:65]\n"
        t += f"""    s_waitcnt lgkmcnt(0)
    {"s_sub_u32 s64, s66, s64" if len(getattr(cfg, "stamp_steps", [])) == 2 else "s_sub_u32 s64, s64, s60"}
    s_mul_i32 s64, s64, {getattr(cfg, "spin_mul", 0)}
    s_add_u32 s64, s64, 10000
L_spin:
    s_memrealtime s[72:73]
    s_waitcnt lgkmcnt(0)
    s_sub_u32 s72, s72, s60
    s_cmp_lt_u32 s72, s64
    s_cbranch_scc1 L_spin
"""
    elif cfg.stamps:
        e0 = 88 if cfg.stamps == "c16" else 72
        t += f"""    s_memrealtime s[{e0}:{e0+1}]
    s_waitcnt vmcnt(0)
    s_memrealtime s[{e0+2}:{e0+3}]
    s_mov_b32 s58, 0x10000000
    s_mov_b32 s59, 0x20000
    s_lshl_b32 s46, s2, 2
    s_add_u32 s46, s46, s3
    s_lshl_b32 s46, s46, 6
    s_waitcnt lgkmcnt(0)
"""
        for i in range(16): t += f"    v_mov_b32 v{64+i}, s{60+(2*i if cfg.stamps == 'c16' else i)}\n"
        t += "    v_mov_b32 v60, 0\n    s_mov_b64 exec, 1\n"
        if cfg.stamps == "dbg":
            t += "    s_mov_b32 s58, 256\n"
            for i in range(8):
                t += f"    v_not_b32 v{65+2*i}, v{64+2*i}\n"
            for i in range(16): t += f"    buffer_atomic_umax v{64+i}, v60, s[56:59], 0 offen offset:{4*i}\n"
        else:
          for i in range(4): t += f"    buffer_store_dwordx4 v[{64+4*i}:{67+4*i}], v60, s[56:59], s46 offen offset:{16*i}\n"
        t += "    s_mov_b64 exec, -1\n"
    t += f"""    v_cmp_lt_u32 vcc, {lim:#x}, v{vChk}
    s_nop 4
    s_cbranch_vccnz L_slow
L_end:
    s_endpgm
"""
    for n in cfg.spins:
        t += f"""L_spin{n}:
    ds_read_b32 v{vPoll}, v{vCnt}
    s_waitcnt lgkmcnt(0)
    v_readfirstlane_b32 s{sPol}, v{vPoll}
    s_nop 3
    s_cmp_lt_u32 s{sPol}, s{sExp}
    s_cbranch_scc1 L_spin{n}
    s_branch L_back{n}
"""
    S0, S1, M, T = 16, 20, 24, 25
    vQ = vQr; vKb = vKr + 2
    q = lambda ds: at(aQ + 4 * ds, 4)
    k = lambda j, ds: at(aK + j * 16 + 4 * ds, 4)
    t += f"""; Fallback: a row sum left [2^-{cfg.limit_exp}, 2^{cfg.limit_exp}] (or is not finite), so the constant offset was not safe.
; This wave recomputes its 256 rows subtracting the true row maximum.  K is rebuilt in LDS; V goes through a private 8 KiB.
L_slow:
    s_waitcnt vmcnt(0) lgkmcnt(0)
    s_barrier                                 ; the other waves are done with LDS (ended or here)
    s_mov_b32 s{sQo}, 0
    s_lshl_b32 s{sTmp}, s{sWave}, 12
    s_lshl_b32 s{sTmp+1}, s{sWave}, 13
    s_add_u32 s{sTmp+2}, s{sTmp+1}, 0x20000
    s_add_u32 s{sTmp+3}, s{sTmp+2}, 4096
    s_sub_u32 s{sV_}, s{sV_}, s{sTmp}
    s_subb_u32 s{sV_+1}, s{sV_+1}, 0
    s_mov_b32 s{sV_+2}, 0x20000
    v_bfe_u32 v{T}, v{vKl}, 4, 4              ; l & 15
    v_lshrrev_b32 v{T+1}, 8, v{vKl}           ; l >> 4
    v_lshlrev_b32 v{vQ}, 4, v{T+1}
    v_lshl_add_u32 v{vQ}, v{T}, 8, v{vQ}      ; Q rows in MFMA layout
    v_xor_b32 v{T+1}, v{T}, v{T+1}
    v_and_b32 v{T+1}, 7, v{T+1}
    v_lshlrev_b32 v{T+1}, 4, v{T+1}
    v_lshl_add_u32 v{vKw}, v{T}, 8, v{T+1}
    v_xor_b32 v{vKw+1}, 64, v{vKw}
    v_lshrrev_b32 v{T+1}, 6, v{vKl}           ; 4g+r
    v_lshlrev_b32 v{T+1}, 8, v{T+1}
    v_and_b32 v{T}, 0x30, v{vKl}              ; c*16
    v_add3_u32 v{vV}, v{T}, v{T+1}, s{sTmp+2}
"""
    t += f"""    s_sub_u32 s{sK_}, s{sK_}, s{sTmp}
    s_subb_u32 s{sK_+1}, s{sK_+1}, 0
    s_mov_b32 s{sK_+2}, 0x20000
    s_mov_b32 s{sCnt}, 0
L_skld:
"""
    for i in range(4): t += f"    buffer_load_dwordx4 {vt(vOa+4*i,4)}, v{vKl}, s[{sK_}:{sK_+3}], s{sCnt} offen offset:{i*1024}\n"
    t += "    s_waitcnt vmcnt(0)\n"
    for x in range(vOa, vOa + 16):
        t += f"""    v_lshlrev_b32 v{T}, 16, v{x}
    v_and_b32 v{x}, s{sMask}, v{x}
    v_mul_f32 v{T}, s{sScale}, v{T}
    v_mul_f32 v{x}, s{sScale}, v{x}
    v_cvt_pk_bf16_f32 v{x}, v{T}, v{x}
"""
    for i in range(4): t += f"    ds_write_b128 v{vKw+(i&1)}, {vt(vOa+4*i,4)} offset:{(i>>1)*128}\n"
    t += f"""    s_waitcnt lgkmcnt(0)
    v_add_u32 v{vKw}, 4096, v{vKw}
    v_add_u32 v{vKw+1}, 4096, v{vKw+1}
    s_add_u32 s{sCnt}, s{sCnt}, 4096
    s_cmp_lt_u32 s{sCnt}, 0x20000
    s_cbranch_scc1 L_skld
"""
    t += "L_sblk:\n"
    for ds in range(4): t += f"    buffer_load_dwordx4 {q(ds)}, v{vQ}, s[{sQ_}:{sQ_+3}], s{sQo} offen offset:{ds*64}\n"
    t += f"""    v_mov_b32 v{M}, 0xff800000
    v_mov_b32 v{vKb}, v{vKr}
    v_mov_b32 v{vKb+1}, v{vKr+1}
    s_mov_b32 s{sCnt}, 32
    s_waitcnt vmcnt(0)
L_smax:
"""
    for ds in range(4): t += f"    ds_read_b128 {k(0,ds)}, v{vKb+(ds&1)} offset:{ds*1024}\n"
    t += "    s_waitcnt lgkmcnt(0)\n"
    for ds in range(4): t += f"    v_mfma_f32_16x16x32_bf16 {vt(S0,4)}, {k(0,ds)}, {q(ds)}, {'0' if ds == 0 else vt(S0,4)}\n"
    t += f"""    s_nop 7
    v_max3_f32 v{M}, v{M}, v{S0}, v{S0+1}
    v_max3_f32 v{M}, v{M}, v{S0+2}, v{S0+3}
    v_add_u32 v{vKb}, 4096, v{vKb}
    v_add_u32 v{vKb+1}, 4096, v{vKb+1}
    s_sub_u32 s{sCnt}, s{sCnt}, 1
    s_cmp_lg_u32 s{sCnt}, 0
    s_cbranch_scc1 L_smax
    v_mov_b32 v{T}, v{M}
    s_nop 1
    v_permlane16_swap_b32 v{M}, v{T}
    s_nop 1
    v_max_f32 v{M}, v{M}, v{T}
    v_mov_b32 v{T}, v{M}
    s_nop 1
    v_permlane32_swap_b32 v{M}, v{T}
    s_nop 1
    v_max_f32 v{M}, v{M}, v{T}
"""
    for r in range(4): t += f"    v_mov_b32 v{vL+r}, 0\n"
    for r in range(32): t += f"    v_mov_b32 v{vOa+r}, 0\n"
    t += f"""    v_mov_b32 v{vKb}, v{vKr}
    v_mov_b32 v{vKb+1}, v{vKr+1}
    s_mov_b32 s{sCnt}, 0
L_skey:
    s_mov_b32 m0, s{sTmp+2}
    s_mov_b32 s{sTmp+5}, s{sCnt}
    s_add_u32 s{sTmp+4}, s{sTmp+5}, 4096
"""
    for i in range(4): t += f"    buffer_load_dwordx4 v{vD0}, s[{sV_}:{sV_+3}], s{sTmp+5} offen offset:{i*1024} lds\n"
    t += f"    s_mov_b32 m0, s{sTmp+3}\n    s_nop 0\n"
    for i in range(4): t += f"    buffer_load_dwordx4 v{vD0}, s[{sV_}:{sV_+3}], s{sTmp+4} offen offset:{i*1024} lds\n"
    for j in range(2):
        for ds in range(4): t += f"    ds_read_b128 {k(j,ds)}, v{vKb+(ds&1)} offset:{j*4096+ds*1024}\n"
    t += "    s_waitcnt vmcnt(0) lgkmcnt(0)\n"
    for db in range(8):
        for h in range(2): t += f"    ds_read_b64_tr_b16 {at(aV+db*4+2*h,2)}, v{vV} offset:{h*4096+(db>>1)*64+(db&1)*8}\n"
    for j, S in enumerate((S0, S1)):
        for ds in range(4): t += f"    v_mfma_f32_16x16x32_bf16 {vt(S,4)}, {k(j,ds)}, {q(ds)}, {'0' if ds == 0 else vt(S,4)}\n"
    t += "    s_nop 7\n"
    for r in range(8): t += f"    v_sub_f32 v{S0+r}, v{S0+r}, v{M}\n"
    for r in range(8): t += f"    v_exp_f32 v{S0+r}, v{S0+r}\n"
    t += "    s_nop 0\n"
    for r in range(4): t += f"    v_cvt_pk_bf16_f32 v{vP+r}, v{S0+2*r}, v{S0+2*r+1}\n"
    t += f"    v_add_u32 v{vKb}, 8192, v{vKb}\n    v_add_u32 v{vKb+1}, 8192, v{vKb+1}\n    s_waitcnt lgkmcnt(0)\n    s_nop 0\n"
    t += f"    v_mfma_f32_16x16x32_bf16 {vt(vL,4)}, {vt(vOne,4)}, {vt(vP,4)}, {vt(vL,4)}\n"
    for db in range(8): t += f"    v_mfma_f32_16x16x32_bf16 {vt(vOa+4*db,4)}, {at(aV+db*4,4)}, {vt(vP,4)}, {vt(vOa+4*db,4)}\n"
    t += f"""    s_add_u32 s{sCnt}, s{sCnt}, 8192
    s_cmp_lt_u32 s{sCnt}, 0x20000
    s_cbranch_scc1 L_skey
    s_nop 7
    v_rcp_f32 v{vR}, v{vL}
    s_nop 0
"""
    for r in range(32): t += f"    v_mul_f32 v{vOa+r}, v{vOa+r}, v{vR}\n"
    for db in range(8):
        o = vOa + 4 * db; d = vP + 2 * db
        t += f"    v_cvt_pk_bf16_f32 v{d}, v{o}, v{o+1}\n    v_cvt_pk_bf16_f32 v{d+1}, v{o+2}, v{o+3}\n"
    if cfg.store_x4:
        t += "    s_nop 1\n"
        for db in range(0, 8, 2):
            d = vP + 2 * db
            if not cfg.vperm: t += f"    v_permlane16_swap_b32 v{d}, v{d+2}\n    v_permlane16_swap_b32 v{d+1}, v{d+3}\n"
            t += f"    buffer_store_dwordx4 {vt(d,4)}, v{vQ}, s[{sO_}:{sO_+3}], s{sQo} offen offset:{db*32}\n"
    else:
        for db in range(8): t += f"    buffer_store_dwordx2 {vt(vP+2*db,2)}, v{vO}, s[{sO_}:{sO_+3}], s{sQo} offen offset:{db*32}\n"
    t += f"""    s_add_u32 s{sQo}, s{sQo}, 4096
    s_cmp_lt_u32 s{sQo}, 0x10000
    s_waitcnt vmcnt(0)
    s_cbranch_scc1 L_sblk
    s_endpgm
"""
    return t

HDR = """; Kernarg layout for this problem (48 bytes, ptrs only, base s[0:1]):
;   offset   0: d_in[0] q  shape=(16, 32, 512, 128) dtype=bfloat16
;   offset   8: d_in[1] k  shape=(16, 4, 512, 128) dtype=bfloat16
;   offset  16: d_in[2] v  shape=(16, 4, 512, 128) dtype=bfloat16
;   offset  24: d_out     shape=(16, 32, 512, 128) dtype=bfloat16
;   offset  32: d_debug   256 bytes
;   offset  40: d_ws      268435456 bytes workspace (unused)
; @launch grid=(256,1,1) block=(256,1,1) lds=163840
;
; GQA attention forward, out = softmax(q k^T / sqrt(128)) v.  Hand-designed; instruction order from my own scheduling script.
; * One workgroup per CU: 1024 q rows against the 512 keys of one (batch, kv head); each wave owns 256 rows and keeps
;   four 16-row blocks in flight, started two key tiles apart (a block walks the eight 64-key tiles cyclically).
; * v_mfma_f32_16x16x32_bf16 for S^T = K Q^T and O^T = V^T P^T; P goes from the S registers straight into the B operand.
;   K is multiplied by log2(e)/sqrt(128) once and stays in LDS (one tile in registers); V streams through a two-slot LDS
;   ring by LDS-DMA (one and a half tiles stay in registers) and is read with ds_read_b64_tr_b16; Q is staged through LDS.
; * One s_barrier per key tile publishes the next V tile and frees the slot of the previous one.
; * Row sums l come from one v_smfmac per block and tile (rows of ones with complementary 2:4 index patterns).
; * Softmax guard.  Softmax does not change under a per-row shift, so the main path subtracts the constant 4 (log2 units,
;   the C input of the first QK MFMA) in place of the row maximum and CHECKS every row at run time: l and 1/l must both be
;   <= 2^32 (v_max3_u32 on the bit patterns, so inf and NaN fail too).  Inside that range no exponential overflowed and
;   recomputes all its rows subtracting the true row maximum.
"""

PAD = """; Instruction prefetch stops at 4 KiB boundaries: start the kernel on one (the harness puts 0x300 bytes in front of the label).
.p2align 12
.fill 832, 4, 0xbf800000
"""

def add_hops(cfg, text):
    import subprocess, re, os, tempfile
    lines = text.split("\n")
    i0 = lines.index(KN + ":"); i1 = lines.index("L_end:")
    tmp = tempfile.mkdtemp()
    src = "\n".join(lines).replace("@HOPS", "\n".join(["    s_nop 0"] * 9))
    lines = src.split("\n"); i1 = lines.index("L_end:")
    hop0 = text.split("\n").index("@HOPS")
    open(tmp + "/a.s", "w").write(src)
    subprocess.run(["clang", "-x", "assembler", "-target", "amdgcn-amd-amdhsa", "-mcpu=gfx950", "-c", tmp + "/a.s", "-o", tmp + "/a.o"], check=True)
    dis = subprocess.run(["llvm-objdump", "-d", "--mcpu=gfx950", tmp + "/a.o"], capture_output=True, text=True).stdout
    dis = dis[dis.index("<" + KN + ">:"):]
    sizes = [4 * len(m.group(1).split()) for m in re.finditer(r"// [0-9A-F]{12}: ([0-9A-F ]+)", dis)]
    isins = lambda l: l.startswith("    ") and not l.strip().startswith(";") and l.strip()
    out = lines[:i0 + 1]; addr = 0; k = 0; page = 1; j = i0 + 1
    def look(j, k, addr, page):
        cands = []
        while addr < page * 4096 + 64 and j < i1:
            if isins(lines[j]):
                addr += sizes[k]; k += 1
                if "mfma" in lines[j] and page * 4096 <= addr <= page * 4096 + 60:
                    nx = lines[j + 1].strip()
                    cands.append((0 if nx == "s_nop 0" else (1 if nx.startswith("v_") else 2), j))
                elif page * 4096 <= addr <= page * 4096 + 60 and lines[j].strip().startswith("v_"): cands.append((3, j))
            j += 1
        return min(cands) if cands else None
    plan = None
    while j < i1:
        l = lines[j]
        if plan is None and addr >= page * 4096 - 64:
            plan = look(j, k, addr, page)
            if plan is None: page_end = True
        out.append(l)
        if isins(l): addr += sizes[k]; k += 1
        if plan and plan[1] == j:
            out.append(f"L_hop{page}:"); out.append(f"    s_cbranch_execz @NEXT{page}@"); addr += 4
            if plan[0] == 0: j += 1; k += 1
            plan = None; page += 1
        j += 1
    out += lines[i1:]
    np_ = page - 1
    r = "\n".join(out)
    for p in range(1, np_ + 1): r = r.replace(f"@NEXT{p}@", f"L_hop{p+4}" if p + 4 <= np_ else "L_hback")
    rl = r.split("\n")
    rl[hop0:hop0 + 9] = ["    s_mov_b64 exec, 0                         ; warm the instruction cache: visit the first line of every code page"] + \
        [x for w in range(3) for x in (f"    s_cmp_eq_u32 s{sWave}, {w}", f"    s_cbranch_scc1 L_hop{w+1}")] + ["    s_branch L_hop4", "L_hback:", "    s_mov_b64 exec, -1"]
    return "\n".join(rl)

def full(cfg):
    body = generate(cfg)
    r = full2(cfg, body)
    if getattr(cfg, "spin_cyc", 0):
        r = r.replace("s_memrealtime s[64:65]", "s_memtime s[64:65]").replace("s_memrealtime s[66:67]", "s_memtime s[66:67]").replace("s_memrealtime s[62:63]", "s_memtime s[62:63]")
        r = r.replace("s_sub_u32 s64, s64, s60", "s_sub_u32 s64, s64, s62").replace("s_mul_i32 s64, s64, 0", "s_lshr_b32 s64, s64, 1")
    if cfg.stamps in ("cyc", "c16"): r = r.replace("s_memrealtime", "s_memtime")
    if cfg.stamps == "both":
        import re
        r = re.sub(r"    s_memrealtime s\[(\d+):(\d+)\]", lambda m: f"    s_memtime s[{m.group(1)}:{m.group(2)}]\n    s_memrealtime s[{int(m.group(1))+20}:{int(m.group(2))+20}]", r)
        for i in range(8): r = r.replace(f"v_mov_b32 v{65+2*i}, s{61+2*i}\n", f"v_mov_b32 v{65+2*i}, s{80+2*i}\n")
    if "@HOPS" in r: r = add_hops(cfg, r.replace("    @HOPS", "@HOPS"))
    return r

def full2(cfg, body):
    return HDR + f""".amdgcn_target "amdgcn-amd-amdhsa--gfx950"
.text
.globl {KN}
{PAD if cfg.align else ""}.p2align 8
.type {KN},@function
{KN}:
""" + head(cfg) + body + "\n" + tail(cfg) + f""".section .rodata,"a"
.p2align 6
.amdhsa_kernel {KN}
  .amdhsa_next_free_vgpr 512
  .amdhsa_next_free_sgpr 102
  .amdhsa_accum_offset 256
  .amdhsa_group_segment_fixed_size 0
  .amdhsa_kernarg_size 48
  .amdhsa_user_sgpr_count 2
  .amdhsa_user_sgpr_kernarg_segment_ptr 1
  .amdhsa_system_sgpr_workgroup_id_x 1
.end_amdhsa_kernel
"""

if __name__ == "__main__":
    cfg = Cfg()
    name = sys.argv[1]
    for a in sys.argv[2:]:
        k, v = a.split("=", 1)
        try: v = eval(v)
        except Exception: pass
        setattr(cfg, k, v)
    s = full(cfg)
    open(name, "w").write(s)
    tot = sum(v[0] for v in cfg.est.values())
    print(name, "est head", cfg.est_head, "total", tot, "mfma", sum(v[1] for v in cfg.est.values()), file=sys.stderr)
    print(" ".join(f"{s}:{v[0]}/{v[1]}" for s, v in cfg.est.items() if s < 16 or s >= 32), file=sys.stderr)
```

```python
import sys, math, struct
KN = "standalone__gqa_softmax__near_ridge_kernel"

class Cfg:
    sigma = (0, 2, 4, 6)
    beta = 0.94
    beta_small = 0.55
    ds_lat = 7
    mv_lat = 4
    store_x4 = True
    q_nt = "nt"
    st_pol = "sc1"
    k_pol = "nt"
    v_pol = ""
    v_pol0 = "nt"
    rot = 0
    split_from = 4
    split_min_u = 9
    arr_gap = 10
    vm_gap = 5
    smooth = True
    stamps = False
    code_pf = True
    plan = "K0 Q0 C K1 H W00 V0 S0 B r0 r1 R0 K2 S1@0.0 V1@0.0 Q1@0.5 K3@1.0 V2@1.5 R1@2.0 K4@2.0 Q2@2.3 V3@2.6 K5@3.0 V4@3.4 K6@3.b R2@3.b Q3@4.0 K7@4.b R3@5.b Q4@6.0"
    vperm = True
    st_last = "sc1"
    st_last_from = 38
    ones_rows = 8
    trunc = False
    fake_st = False
    fake_v = False
    fake_m0 = 0
    v_n0 = 5
    st_block = 0
    c_pol = ""
    st_first = None
    st_pair = False
    fetch_thr = 1
    fetch_slack = 1
    st_gap = 16
    st_gap_all = False
    pf2 = False
    x8 = True
    qr_asap = True
    full_until = 35
    kst = [(1, 0), (1, 1), (2, 0), (2, 1), (3, 0), (3, 1), (3, "P"), (3, 0)]
    jitter = None
    xor = None
    qlag = {}
    lags = {}
    tailpub = {33: [33, 34], 35: [35, 37]}
    align = True
    early_pf = True
    sigma0 = None
    loop_from = 8
    vtouch = False
    group = 2
    group_min = 2
    rev = True
    snake = True
    on_first = True
    fake = ""
    cinit = "-4.0"
    cfake = None
    oinit = "0"
    half = True
    obias = None
    ob_exp = 5
    limit_lo = 2
    vm_gap_loop = None
    pk = (0, 3, 4, 5, 6, 7)
    kmul = 1.0
    deep = True
    tail_dl = 1.0
    betas = {0: 0.95, 1: 0.9, 2: 0.8, 3: 0.8}
    arr_gap_small = 4
    k_up = 1
    force_slow = False
    nop_ds = False
    ds_gap = 2
    ds_cap = 1024
    kill_from = None
    pad = 0
    kill = ()
    limit_exp = 32

vQd, vO, vQr, vCnt, vD0, vChk = 0, 2, 3, 4, 0, 58
vB = 4
vKwS = (49, 48)
vKp2 = 8
vKl = 0
vV = 1
vS = 16
vL = 32
vR = 48
vKw = 50
vT = 52
NT = 5
vIdx = 57
vPoll = 7
vJ = 59
vKr = 60
vP = 64
vOa = 128
aQ, aKp, aVp, aK, aV = 0, 64, 128, 192, 224
vOne, vCone, vKp1, vO2, vO3 = 12, 6, 52, 56, 59
sPol = 40
sLo, sBc = 41, 53
sMqs = 76
TV = 4
TMPS = [44, 45, 46, 47, 56]
sQ_, sK_, sV_, sO_, sC_ = 12, 16, 20, 24, 28
sTile = 32
sM0 = 96
sQo, sOo, sCnt, sScale, sWave = 42, 43, 44, 45, 3
sTmp = 46
sMq, sExp, sMask, sPerm = 52, 53, 54, 55

VB, VSTR, KSH, VW = 0x18000 - 800, 16584, 800, 4160
QW, CB = 4192, 0x4180
def vr(b, n=1): return [f"v{b+i}" for i in range(n)]
def ar(b, n=1): return [f"a{b+i}" for i in range(n)]
def vt(b, n): return f"v[{b}:{b+n-1}]"
def at(b, n): return f"a[{b}:{b+n-1}]"

class Op:
    def __init__(s, key, text, kind, reads, writes, cost=None, earliest=None, dummy=False, anchor=None, maxdl=None):
        s.key, s.text, s.kind, s.reads, s.writes = key, text, kind, list(reads), list(writes)
        s.cost = {"mfma": 0, "trans": 8, "valu": 4, "ds": 4, "dsw": 20, "load": 8, "dma": 8, "store": 12, "salu": 0, "bar": 0, "chk": 0}[kind] if cost is None else cost
        s.cnt = {"ds": "lgkm", "dsw": "lgkm", "load": "vm", "dma": "vm", "store": "vm"}.get(kind)
        s.earliest = earliest
        s.maxdl = maxdl
        s.dummy = dummy
        s.anchor = anchor
        s.preds = []; s.succs = []; s.win = None; s.pos = None; s.m = None
        s.prod = {}

def blockpos(cfg, s, u):
    s0 = (cfg.sigma0 or cfg.sigma)[u]
    if s0 <= s < s0 + 8: return (0, s - s0)
    if cfg.sigma[u] + 8 <= s < cfg.sigma[u] + 32: return divmod(s - cfg.sigma[u], 8)
    return (None, None)

def build(cfg, s0, s1, steady):
    sg = cfg.sigma
    NP = 4
    last = 32 + max(sg)
    def li(s, u): return (s - sg[u]) % 8 if steady else blockpos(cfg, s, u)[1]
    def qk_on(s, u): return li(s, u) is not None
    def pv_on(s, u): return li(s - 1, u) is not None
    def order_qk(s, kb):
        us = [u for u in range(4) if qk_on(s, u)]
        if kb == 3:
            f = [u for u in us if li(s, u) == 7]
            us = f + [u for u in us if u not in f]
        if kb == 0:
            f = [u for u in us if li(s, u) == 0]
            us = [u for u in us if u not in f] + f
        return us
    prog = []
    A = prog.append
    chain = 0
    pend_q = []
    def qload(key, earliest=None, dummy=False, alt=False):
        if alt:
            A(Op(key + ("m0",), f"s_add_u32 m0, s{sMq}, {0x8000 - KSH}", "salu", [], ["m0"]))
            for i in range(4):
                A(Op(key + (i,), f"buffer_load_dwordx4 v{vQd}, s[{sQ_}:{sQ_+3}], s{sQo} offen offset:{i*1024} {cfg.q_nt} lds".replace("  ", " "), "dma",
                     [f"s{sQo}", "m0"], [f"Qa{i}"], earliest=earliest))
            A(Op(key + ("inc",), f"s_add_u32 s{sQo}, s{sQo}, 4096", "salu", [f"s{sQo}"], [f"s{sQo}"]))
            return
        for i in range(4):
            A(Op(key + (f"m{i}",), f"s_mov_b32 m0, s{sMqs + i}", "salu", [], ["m0"], dummy=dummy))
            A(Op(key + (i,), f"buffer_load_dwordx4 v{vQd}, s[{sQ_}:{sQ_+3}], s{sQo} offen offset:{i*1024} {cfg.q_nt} lds".replace("  ", " "), "dma",
                 [f"s{sQo}", "m0"] + [f"Qrd{d}" for d in range(4)], [f"Qs{i}"], earliest=earliest, dummy=dummy))
        A(Op(key + ("inc",), f"s_add_u32 s{sQo}, s{sQo}, 4096", "salu", [f"s{sQo}"], [f"s{sQo}"], dummy=dummy))
    def qread(key, u, earliest=None, dummy=False, alt=False):
        for ds in range(4):
            d = aQ + 16 * u + 4 * ds
            if alt:
                A(Op(key + (ds,), f"ds_read_b128 {at(d,4)}, v{vQr} offset:{0x8000 - KSH + ds*64}", "ds", [f"Qa{i}" for i in range(4)], ar(d, 4) + [f"Qar{ds}"], earliest=earliest))
                continue
            A(Op(key + (ds,), f"ds_read_b128 {at(d,4)}, v{vQr} offset:{ds*64}", "ds", [f"Qs{i}" for i in range(4)], ar(d, 4) + [f"Qrd{ds}"], earliest=earliest, dummy=dummy))
    def kfrag(s, kb, ds):
        t = s % 8
        if (t, kb, ds) == (1, 0, 0): return ("v", vKp1)
        if (t, kb, ds) == (1, 0, 1): return ("v", vKp2) if cfg.cfake is None else ("w", vKp1)
        if t == 0 or (not steady and s >= 34): return ("a", aKp + kb * 16 + ds * 4)
        if not steady and s <= 4: return ("a", aK + kb * 16 + ds * 4)
        if cfg.half: return ("a", 224 + ds * 4)
        return ("a", aK + (kb & 1) * 16 + ds * 4)
    def vperm_(sv): return sv % 8 == TV and (steady or sv >= 8)
    def vhalf(sv): return cfg.half and sv % 8 == TV + 1 and (steady or sv >= 8)
    def vfrag(sv, db, ks):
        if cfg.half and sv % 8 == TV + 1 and ks == 0: return 192 + db * 4
        return vfrag0(sv, db) + ks * 4
    def vfrag0(sv, db):
        if sv % 8 == TV or (not steady and sv < TV): return aVp + db * 8
        if cfg.half:
            ring = [240]
            if not steady and sv >= 33: ring = [240, aQ]
            if not steady and sv >= 34: ring = [240, aQ, aQ + 16, 224]
            return ring[(db >> 1) % len(ring)] + (db & 1) * 8
        if not steady and sv >= 34 and db >= 4: return aQ + (db - 4) * 8
        return aV + (db & 3) * 8
    rt = lambda f, n: f"{f[0].replace('w', 'v')}[{f[1]}:{f[1]+n-1}]"
    rr = lambda f, n: [f"{f[0]}{f[1]+i}" for i in range(n)]
    def vslot(sv):
        if not steady and sv in (2, 3, 34, 35): return sv & 1
        if not steady and sv == 37: return 3
        return 2 + (((sv - TV - 1) % 8) & 1)
    def vprev(sv):
        if vslot(sv) < 2: return ["Kret67"] if sv > 8 else []
        p = sv - 1
        while p >= 0 and (vslot(p) != vslot(sv) or vperm_(p)): p -= 1
        return [f"Vret{p}"] if p >= 0 else []
    vissued = set()
    def vdma(sv, earliest=None):
        vissued.add(sv)
        A(Op(("m0", sv), f"s_mov_b32 m0, s{sM0 + vslot(sv)}", "salu", ["setup~"], ["m0"]))
        for i in range(4):
            if vhalf(sv) and not i & 1: continue
            A(Op(("dma", sv, i), f"buffer_load_dwordx4 v{vD0}, s[{sV_ if i < 2 else sC_}:{(sV_ if i < 2 else sC_)+3}], s{sTile + sv % 8} offen offset:{i*1024 + (i >> 1) * 8} {cfg.v_pol0 if (not steady and sv < cfg.v_n0) else cfg.v_pol} lds".replace("  ", " "), "dma",
                 ["m0"] + vprev(sv), [f"Vd{sv}_{i}"], earliest=earliest))
    kstage = {}
    def kregs(t):
        u = KST[t][0]; h = KST[t][1]
        if h == "P": return [vP + (ds >> 1) * 32 + u * 8 + (ds & 1) * 4 for ds in range(4)]
        return [vOa + (h * 4 + ds) * 16 + u * 4 for ds in range(4)]
    KST = cfg.kst
    if cfg.k_up == 8: KST = [(0, 0), (0, 1), (1, 0), (1, 1), (2, 0), (2, 1), (3, 0), (3, 1)]
    def kload(t, earliest=None):
        for ds, r in enumerate(kregs(t)):
            A(Op(("kld", t, ds), f"buffer_load_dwordx4 {vt(r,4)}, v{vKl}, s[{sK_}:{sK_+3}], s{sTile + t} offen offset:{ds*1024} {cfg.k_pol}".rstrip(), "load",
                 [], vr(r, 4), earliest=earliest))
    tmpc = [0]
    def kscale(t, earliest=None):
        for ds, r in enumerate(kregs(t)):
            if t in cfg.pk:
                tq = (44, 4)[tmpc[0] & 1]; tmpc[0] += 1
                k = ("ksc", t, ds)
                sh = lambda j: f"v_lshlrev_b32 v{tq+j}, 16, v{r+j}"
                for j in range(3): A(Op(k + (j, 0), sh(j), "valu", vr(r + j), vr(tq + j), earliest=earliest))
                tx = [sh(3)] + [f"v_and_b32 v{r+j}, s{sMask}, v{r+j}" for j in range(4)] + \
                     [f"v_pk_mul_f32 {vt(b,2)}, {vt(b,2)}, s[{sScale-1}:{sScale}] op_sel:[0,1] op_sel_hi:[1,1]" for b in (tq, tq + 2, r, r + 2)]
                A(Op(k + (0, 5), "\n    ".join(tx), "valu", vr(r, 4) + vr(tq, 3), vr(r, 4) + vr(tq, 4), cost=36, earliest=earliest))
                for j in range(4): A(Op(k + (j, 4), f"v_cvt_pk_bf16_f32 v{r+j}, v{tq+j}, v{r+j}", "valu", vr(tq + j) + vr(r + j), vr(r + j)))
            for j in range(0 if t in cfg.pk else 4):
                x = r + j; tm = TMPS[tmpc[0] % NT]; tmpc[0] += 1
                k = ("ksc", t, ds, j)
                A(Op(k + (0,), f"v_lshlrev_b32 v{tm}, 16, v{x}", "valu", vr(x), vr(tm), earliest=earliest))
                A(Op(k + (1,), f"v_and_b32 v{x}, s{sMask}, v{x}", "valu", vr(x), vr(x), earliest=earliest))
                A(Op(k + (2,), f"v_mul_f32 v{tm}, s{sScale}, v{tm}", "valu", vr(tm), vr(tm)))
                A(Op(k + (3,), f"v_mul_f32 v{x}, s{sScale}, v{x}", "valu", vr(x), vr(x)))
                A(Op(k + (4,), f"v_cvt_pk_bf16_f32 v{x}, v{tm}, v{x}", "valu", vr(tm) + vr(x), vr(x)))
            tl = 3 if t == 0 else t
            if t == 4 and ds in (0, 2):
                A(Op(("kwa", t, ds), f"v_add_u32 v{vKw + (ds >> 1)}, {0x10000 - KSH}, v{vKw + (ds >> 1)}", "valu", vr(vKw + (ds >> 1)), vr(vKw + (ds >> 1))))
            a = vKwS[ds >> 1] if (t == 1 and not ds & 1) else vKw + (ds >> 1)
            A(Op(("kw", t, ds), f"ds_write_b128 v{a}, {vt(r,4)} offset:{(tl & 3) * 16384 + (ds & 1) * 8192 - (KSH if tl < 4 else 0)}", "dsw",
                 vr(r, 4) + vr(a) + (["K0dead"] if t in (3, 4) else []) + (["Qadead"] if (t == 2 and " q1" in cfg.plan) else []) + ([f"Vret{v}" for v in range(2, t - 3)] if t >= 6 and cfg.deep else []), [f"Kw{t}_{ds}"]))
    nmf = [0]
    kpub = set()
    def kread1(s, t, kb):
        for ds in range(4):
            perm = t == 0 or ((t, kb) == (1, 0) and ds < 2)
            if perm and (steady or s > 7): continue
            d = kfrag(s, kb, ds); tl = 3 if t == 0 else (4 if perm else t)
            A(Op(("kr", s, kb, ds), f"ds_read_b128 {rt(d,4)}, v{vKr + 2 * (tl >> 2) + (ds & 1)} offset:{(tl & 3) * 16384 + kb * 4096 + ds * 1024 - (KSH if tl < 4 else 0)}", "ds",
                 [] if (steady or s > 7) else [f"Kok{t}"], rr(d, 4) + ([] if not perm else [f"Kr0_{kb}_{ds}" if t == 0 else f"Kr1_{ds}"])))
    kdone0 = set(); kscaled = []
    later = {}
    if not steady:
        H = (-1, 0)
        def issue(item, when):
            n0 = len(prog)
            n = int(item[1:]) if item[1:].isdigit() else None
            if item[0] == "K": kload(n, when)
            elif item[0] == "Q": qload(("q0", n) if n < 4 else ("q", 8, 0), when)
            elif item[0] == "R": qread(("qr0", n), n, when)
            elif item[0] == "q": qload(("q0", n), when, alt=True)
            elif item[0] == "x": qread(("qr0", n), n, when, alt=True)
            elif item[0] == "V": vdma(n, when)
            elif item[0] == "S": kscale(n, when); kscaled.append(n)
            elif item[0] == "r": kread1(0, 0, n); kdone0.add(n)
            elif item[0] == "W":
                A(Op(("wt", 0, item), "s_nop 0", "valu", vr(kregs(int(item[1]))[int(item[2])], 4), []))
            elif item[0] == "P":
                A(Op(("cpf", 1), f"buffer_load_dword v{vJ}, v{vJ}, s[{sC_}:{sC_+3}], 0 offen {cfg.c_pol}".rstrip(), "load", [], ["junk"], earliest=when))
            elif item[0] == "U":
                A(Op(("ob", 0, -1), f"buffer_load_dword v{vB}, v{vB}, s[{sV_}:{sV_+3}], s{sTile} offen {cfg.v_pol0}".rstrip(), "load", ["setup~"], vr(vB), earliest=when))
            elif item[0] == "u":
                A(Op(("ob", 0, -1), f"ds_read_b32 v{vB}, v{vB}", "ds", [f"Vd0_{i}" for i in range(4)], vr(vB) + ["Vr0_s"], earliest=when))
            elif item[0] == "Y":
                b = vB
                tx = [f"v_lshrrev_b32 v{b}, 7, v{b}", f"v_and_b32 v{b}, 0xff00ff, v{b}"] + \
                     [f"v_add_u32_dpp v{b}, v{b}, v{b} row_ror:{k} row_mask:0xf bank_mask:0xf" for k in (1, 2, 4, 8)] + \
                     [f"v_add_u32_dpp v{b}, v{b}, v{b} row_bcast:15 row_mask:0xa bank_mask:0xf", f"v_add_u32_dpp v{b}, v{b}, v{b} row_bcast:31 row_mask:0xc bank_mask:0xf"] + \
                     [f"v_add_u32_sdwa v{b}, v{b}, v{b} dst_sel:DWORD dst_unused:UNUSED_PAD src0_sel:WORD_0 src1_sel:WORD_1",
                      f"v_lshrrev_b32 v{b}, 7, v{b}", f"v_min_u32 v{b}, 0xc0, v{b}", f"v_lshl_add_u32 v{b}, v{b}, 23, s{sBc}",
                      f"s_nop 0\n    v_readlane_b32 s{sPol}, v{b}, 63\n    s_nop 1\n    v_mov_b32 v{b}, s{sPol}"]
                for i, x in enumerate(tx): A(Op(("ob", 0, i), x, "valu", vr(b), vr(b), earliest=when, cost=20 if "readlane" in x else 4))
                for i in range(1, 4): A(Op(("ob", 0, 12 + i), f"v_mov_b32 v{b+i}, v{b}", "valu", vr(b), vr(b + i)))
            elif item[0] == "O":
                A(Op(("ot", 0), f"buffer_store_dword v{vChk}, off, s[{sO_}:{sO_+3}], 0 {cfg.st_pol}", "store", ["setup~"], [], earliest=when, cost=8))
            elif item[0] == "Z":
                A(Op(("zb", 0, item), "s_barrier", "valu", [], []))
            elif item[0] == "H":
                A(Op(("hop", 0), "@HOPS", "valu", [], [], earliest=when, maxdl=when))
            elif item[0] == "T":
                A(Op(("ts", 0, item), f"s_memrealtime s[{64+2*n}:{65+2*n}]", "valu", [], []))
            elif item[0] == "X":
                A(Op(("wt", 0, item), "s_nop 0", "valu", [f"Qs{i}" for i in range(4)], []))
            elif item[0] == "B":
                pub = [t for t in kscaled if t not in kpub]; kpub.update(pub)
                A(Op(("bar", -1), "s_barrier", "bar", (["Czero"] if cfg.split_min_u <= 4 else []) + [f"Kw{t}_{ds}" for t in pub for ds in range(4)], [f"Kok{t}" for t in pub], anchor=H))
            elif item[0] == "C":
                pf = f"global_load_dword v{vJ}, v[{vS+14}:{vS+15}], off"
                if cfg.early_pf and cfg.vtouch:
                    tx = head2(cfg).split("@CPF")[1].strip().replace(f"    s_mov_b32 s{sO_+2}, 0x10000", f"    buffer_load_dword v{vS+14}, off, s[{sV_}:{sV_+3}], s{sMq} {cfg.v_pol0}\n    s_mov_b32 s{sO_+2}, 0x10000")
                    A(Op(("cpf", 0), tx, "load", [], vr(vS + 14), earliest=when, cost=300))
                elif cfg.early_pf:
                    A(Op(("cpf", 0), head2(cfg).split("@CPF")[1].strip(), "valu", [], [], earliest=when, cost=300))
                elif cfg.pf2:
                    p1 = f"""    s_lshr_b32 s{sTmp+4}, s{sWave}, 1
    s_lshl1_add_u32 s{sTmp+4}, s2, s{sTmp+4}
    s_lshl_b32 s{sTmp+4}, s{sTmp+4}, 7
    v_and_b32 v{vS+15}, 0x70, v{vKl}
    buffer_load_dword v{vS+15}, v{vS+15}, s[{sC_}:{sC_+3}], s{sTmp+4} offen"""
                    A(Op(("cpf", 0), head2(cfg).replace("@CPF", p1).strip(), "load", [], vr(vS + 15), earliest=when, cost=300))
                elif " P" in cfg.plan: A(Op(("cpf", 0), head2(cfg).replace("@CPF\n", "").strip(), "valu", [], [], earliest=when, cost=300))
                else: A(Op(("cpf", 0), head2(cfg).replace("@CPF", "    " + pf).strip(), "load", [], ["junk"], earliest=when, cost=300))
                A(Op(("setup", 0), "s_nop 0", "valu", [], ["setup~", f"s{sExp}"]))
                if cfg.split_min_u <= 4: A(Op(("cz", 1), f"ds_write_b32 v{vCnt}, v{vPoll}", "dsw", [], ["Czero"], cost=8))
            if when == H:
                for x in prog[n0:]: x.maxdl = H
        for item in cfg.plan.split():
            if "@" not in item: issue(item, H)
            else:
                it, pos = item.split("@"); st, fr = pos.split(".")
                later.setdefault(int(st), []).append((it, fr))
    for s in range(s0, s1):
        t = s % 8
        uq = [u for u in range(4) if qk_on(s, u)]
        up = order_qk(s - 1, 3) if (steady or s > 0) else []
        up = [u for u in up if pv_on(s, u)]
        qk = [(kb, u) for kb in range(4) for u in order_qk(s, kb)]
        if not steady and s in cfg.qlag:
            qk.sort(key=lambda c: (c[0] + (cfg.qlag[s] + 0.5 if (li(s, c[1]) == 0 and c[1] > 0) else 0)))
        pv = []
        fin = [u for u in up if li(s - 1, u) == 7]
        ones_order = fin + [u for u in up if u not in fin]
        for db in range(8):
            for u in up: pv.append(("pv", db, u))
        npv = len(pv)
        ins = {}
        for i, u in enumerate(ones_order):
            if u in fin: p = len(up)
            else: p = len(up) + (npv - len(up)) * i // max(1, len(ones_order))
            ins.setdefault(p, []).append(("one", 0, u))
        pv2 = []
        for i, c in enumerate(pv):
            pv2 += ins.get(i, []); pv2.append(c)
        pv = pv2
        seq = []
        if qk:
            j = 0
            lag = 1 if len(uq) <= 2 and pv else 0
            if not steady and s in cfg.lags: lag = cfg.lags[s]
            for i, c in enumerate(qk):
                seq.append(("qk",) + c)
                tgt = math.ceil(max(0, i + 1 - lag) * len(pv) / (len(qk) - lag))
                while j < tgt: seq.append(pv[j]); j += 1
        else:
            seq = pv
        if cfg.group and qk and len(up) >= cfg.group_min:
            G = cfg.group
            seq = []; j = 0
            onepos = {}
            for i, u in enumerate(ones_order): onepos.setdefault(0 if u in fin else (8 * i // len(ones_order)), []).append(u)
            for db in range(8):
                if db % G == 0:
                    while j < math.ceil((db + G) * len(qk) / 8): seq.append(("qk",) + qk[j]); j += 1
                if not cfg.snake:
                    seq += [("pv", db, u) for u in up] + [("one", 0, u) for u in onepos.get(db, [])]
                    continue
                if db % G == 0:
                    on = [u for k in range(db, db + G) for u in onepos.get(k, [])]
                    od = list(up)
                    if cfg.on_first:
                        if on and db > 0: od.remove(on[-1]); od = [on[-1]] + od
                        seq += [("one", 0, u) for u in on]; on = []
                    if on and db > 0:
                        od.remove(on[0]); od = [on[0]] + od if G % 2 == 0 else od + [on[0]]
                seq += [("pv", db, u) for u in od]
                od = od[::-1]
                if db % G == G - 1: seq += [("one", 0, u) for u in on]
        rev = {}
        for i, c in enumerate(seq):
            p_ = seq[i - 1]
            rev[c] = bool(cfg.rev and i and p_[0] == c[0] and c[0] != "one" and (p_[1] == c[1] or p_[2] == c[2]) and not rev[p_])
        nm = sum({"qk": 4, "pv": 2, "one": 1}[c[0]] for c in seq)
        beta = cfg.beta if len(uq) >= 3 else cfg.beta_small
        barpos = int(beta * nm)
        if not steady and s in cfg.betas: barpos = int(cfg.betas[s] * nm)
        vdone = set(); kdone = set(kdone0) if (s == 0 and not steady) else set(); bar_done = False
        Pw = vP + 32 * (s & 1); Pr = vP + 32 * ((s - 1) & 1)
        def vreads(db):
            if db in vdone or vperm_(s - 1): return
            vdone.add(db)
            for ks in range(2):
                if ks == 0 and vhalf(s - 1): continue
                for h in range(2):
                    d = vfrag(s - 1, db, ks) + h * 2
                    A(Op(("vr", s, db, ks, h), f"ds_read_b64_tr_b16 {at(d,2)}, v{vV} offset:{vslot(s-1)*VSTR + ks*1024 + h*512 + (db>>1)*64 + (db&1)*8}", "ds",
                         [f"Vok{s-1}"], ar(d, 2) + [f"Vr{s-1}_{db}_{ks}_{h}"]))
        def kreads(kb):
            if kb in kdone: return
            kdone.add(kb); kread1(s, t, kb)
        def barrier():
            rd = []; wr = []
            pubv, retv, nxt = [s], [s - 1], [s + 1]
            if vperm_(s + 1): retv = []; nxt = []
            if vperm_(s): pubv = []; retv = [s - 2, s - 1]
            if vperm_(s - 1): retv = []
            if not steady:
                retv = {1: [], 2: [0], 3: [1], 4: [2], 5: [3, 4], 34: []}.get(s, retv)
                if s >= 33:
                    if s not in cfg.tailpub: return
                    pubv = cfg.tailpub[s]
                    if s > 33: retv = []; nxt = []
                nxt = {0: [], 1: [], 2: [4], 3: [5], 4: [], 32: [33, 34, 35], 33: [37], 34: []}.get(s, nxt)
                if s == 32: wr.append("Kret67")
                nxt = [v for v in nxt if v < last and v not in vissued and not any(it == f"V{v}" for l in later.values() for it, _ in l)]
            for v in retv:
                if v < 0: continue
                if v == s - 1:
                    for db in range(8): vreads(db)
                rd += [f"Vr{v}_{db}_{ks}_{h}" for db in range(8) for ks in range(2) for h in range(2) if ks or not vhalf(v)]
                wr.append(f"Vret{v}")
            for v in pubv:
                assert steady or v in vissued, v
                rd += [f"Vd{v}_{i}" for i in range(4) if i & 1 or not vhalf(v)]; wr.append(f"Vok{v}")
            if not steady and s + 1 <= 7 and s + 1 not in kpub:
                if s + 1 not in kscaled: kscale(s + 1, ((s - 1, "bar") if s >= 1 else (-1, 0))); kscaled.append(s + 1)
                kpub.add(s + 1)
                rd += [f"Kw{s+1}_{ds}" for ds in range(4)]; wr.append(f"Kok{s+1}")
            if not steady and s == 0 and " q1" in cfg.plan:
                rd += [f"Qar{ds}" for ds in range(4)]; wr.append("Qadead")
            if not steady and s == 1:
                rd += [f"Kr0_{kb}_{ds}" for kb in range(4) for ds in range(4)]; wr.append("K0dead")
                rd += ["Kr1_0", "Kr1_1"]
            if (steady or s >= cfg.split_from) and len(uq) >= cfg.split_min_u:
                ag = cfg.arr_gap if len(uq) >= 3 else cfg.arr_gap_small
                A(Op(("arr", s), f"ds_add_u32 v{vCnt}, v{vCone}", "dsw", rd, ["Carr"], cost=8, anchor=(s, "bar", -ag - cfg.ds_lat - 2)))
                A(Op(("exp", s), f"s_add_u32 s{sExp}, s{sExp}, 4", "salu", [f"s{sExp}"], [f"s{sExp}"]))
                A(Op(("pol", s), f"ds_read_b32 v{vPoll}, v{vCnt}", "ds", ["Carr~"], vr(vPoll), anchor=(s, "bar", -cfg.ds_lat - 2)))
                A(Op(("cmp", s), f"v_readfirstlane_b32 s{sPol}, v{vPoll}", "valu", vr(vPoll), [f"s{sPol}"], anchor=(s, "bar", -3)))
                A(Op(("sc", s), f"s_cmp_lt_u32 s{sPol}, s{sExp}", "bar", [f"s{sPol}", f"s{sExp}"], ["scc"], anchor=(s, "bar", -1)))
                A(Op(("bar", s), f"s_cbranch_scc1 L_spin{s if (not steady and (s < cfg.loop_from or s >= 32)) else 16 + s % 8}", "bar", ["scc"] + vr(vPoll) + [f"s{sExp}", f"s{sPol}"], wr, anchor=(s, "bar")))
            else:
                A(Op(("bar", s), "s_barrier", "bar", rd, wr, anchor=(s, "bar")))
            for v in nxt: vdma(v, None)
            for it, fr in later.get(s, []):
                if fr == "b": issue(it, (s, "bar"))
        todo_items = [(it, int(fr) / 10 ** len(fr)) for it, fr in later.get(s, []) if fr != "b"]
        mcount = 0
        for c in seq:
            if not bar_done and mcount >= barpos:
                barrier(); bar_done = True
            while todo_items and mcount >= todo_items[0][1] * nm:
                issue(todo_items.pop(0)[0], (s, "off", mcount))
            if c[0] == "qk":
                _, kb, u = c
                kreads(kb)
                if kb == 0 and li(s, u) == 0 and (steady or s - sg[u] >= 8):
                    qread(("qr", s, u), u, earliest=None if (steady or qk_on(s - 1, u)) else (s - 1, "frac", 0.75))
                    un = (u + 1) % 4; sn = s + (sg[un] - sg[u]) % 8
                    pend_q.append((("q", sn, un), not steady and sn - sg[un] >= 8 * NP))
                    if True:
                        k_, d_ = pend_q.pop(); qload(k_, dummy=d_)
                S = vS + 4 * (chain % 4); chain += 1
                for i, ds in enumerate((3, 2, 1, 0) if rev[c] else (0, 1, 2, 3)):
                    kf = kfrag(s, kb, ds); qf = aQ + u * 16 + ds * 4
                    A(Op(("qk", s, kb, u, ds, i), f"v_mfma_f32_16x16x32_bf16 {vt(S,4)}, {rt(kf,4)}, {at(qf,4)}, {cfg.cinit if i == 0 else vt(S,4)}", "mfma",
                         rr(kf, 4) + ar(qf, 4) + ([] if i == 0 else vr(S, 4)), vr(S, 4)))
                for r in range(4):
                    A(Op(("ex", s, kb, u, r), f"v_exp_f32 v{S+r}, v{S+r}", "trans", vr(S + r), vr(S + r)))
                pd = Pw + u * 8 + kb * 2
                for r in range(2):
                    tx = f"v_perm_b32 v{pd+r}, v{S+2*r+1}, v{S+2*r}, s{sPerm}" if cfg.trunc else f"v_cvt_pk_bf16_f32 v{pd+r}, v{S+2*r}, v{S+2*r+1}"
                    A(Op(("cv", s, kb, u, r), tx, "valu", vr(S + 2 * r, 2), vr(pd + r)))
                mcount += 4
            elif c[0] == "pv":
                _, db, u = c
                vreads(db)
                first = li(s - 1, u) == 0
                o = vOa + db * 16 + u * 4
                for i, ks in enumerate((1, 0) if rev[c] else (0, 1)):
                    vf = vfrag(s - 1, db, ks); pf = Pr + u * 8 + ks * 4
                    z = first and i == 0
                    A(Op(("pv", s, db, u, ks, i), f"v_mfma_f32_16x16x32_bf16 {vt(o,4)}, {at(vf,4)}, {vt(pf,4)}, {(vt(vB,4) if cfg.obias else cfg.oinit) if z else vt(o,4)}", "mfma",
                         ar(vf, 4) + vr(pf, 4) + ((vr(vB, 4) if cfg.obias == "auto" else []) if z else vr(o, 4)), vr(o, 4)))
                mcount += 2
            else:
                _, _, u = c
                first = li(s - 1, u) == 0
                l = vL + 4 * u
                if first:
                    for r in range(2): A(Op(("lz", s, u, r), f"v_mov_b32 v{l+r}, 0", "valu", [], vr(l + r)))
                pf = Pr + u * 8
                A(Op(("on", s, u), f"v_smfmac_f32_16x16x64_bf16 {vt(l,4)}, {vt(vOne,4)}, {vt(pf,8)}, v{vIdx}", "mfma", vr(pf, 8) + vr(l, 2), vr(l, 4)))
                mcount += 1
        if not bar_done: barrier()
        for it, _ in todo_items: issue(it, (s, "off", mcount))
        if not steady and s == 31:
            qread(("qr", 32, 0), 0, dummy=True)
            qload(("q", 32 + sg[1], 1), dummy=True)
        if not steady and s == 7:
            A(Op(("vo2", 7), f"v_xor_b32 v{vO2}, 0x840, v{vO}", "valu", [], vr(vO2)))
            if cfg.full_until < 39: A(Op(("vo3", 7), f"v_cndmask_b32 v{vO3}, v{vO}, v{vO2}, vcc", "valu", vr(vO2) + ["junk"], vr(vO3)))
        for u in sorted(fin):
            l = vL + 4 * u; R = vR + 2 * (u & 1)
            DPP = "row_ror:8 row_mask:0xf bank_mask:0xf"
            pol = cfg.st_last if (not steady and s >= cfg.st_last_from) else cfg.st_pol
            A(Op(("la", s, u), f"v_add_f32 v{l}, v{l}, v{l+1}", "valu", vr(l, 2), vr(l)))
            A(Op(("rc", s, u), f"v_rcp_f32 v{R}, v{l}", "trans", vr(l), vr(R)))
            full = cfg.full_until > 0 if steady else s < cfg.full_until
            if cfg.obias:
                A(Op(("rm", s, u), f"v_and_b32 v{R}, -4, v{R}", "valu", vr(R), vr(R)))
                A(Op(("r2", s, u), f"v_mul_f32 v{R+1}, v{vB}, v{R}", "valu", vr(R) + vr(vB), vr(R + 1)))
                A(Op(("r3", s, u), f"v_add_u32 v{l+1}, s{sLo}, v{R}", "valu", vr(R), vr(l + 1)))
                A(Op(("ck", s, u), f"v_max3_u32 v{vChk}, v{vChk}, v{l}, v{l+1}", "valu", vr(vChk) + vr(l, 2), vr(vChk)))
            else:
                A(Op(("ck", s, u), f"v_max3_u32 v{vChk}, v{vChk}, v{l}, v{R}", "valu", vr(vChk) + vr(l) + vr(R), vr(vChk)))
            for db in range(8):
                o = vOa + db * 16 + u * 4
                for r in range(4):
                    if cfg.obias: A(Op(("mu", s, u, db, r), f"v_fma_f32 v{o+r}, v{o+r}, v{R}, -v{R+1}", "valu", vr(o + r) + vr(R, 2), vr(o + r)))
                    else: A(Op(("mu", s, u, db, r), f"v_mul_f32 v{o+r}, v{o+r}, v{R}", "valu", vr(o + r) + vr(R), vr(o + r)))
                if db & 1:
                    e = o - 16
                    A(Op(("oc", s, u, db, 3), f"v_cvt_pk_bf16_f32 v{o+3}, v{o+2}, v{o+3}", "valu", vr(o + 2, 2), vr(o + 3)))
                    A(Op(("oc", s, u, db, 2), f"v_cvt_pk_bf16_f32 v{o+2}, v{o}, v{o+1}", "valu", vr(o, 2), vr(o + 2)))
                    A(Op(("oc", s, u, db, 0), f"v_cvt_pk_bf16_f32 v{o}, v{e}, v{e+1}", "valu", vr(e, 2), vr(o)))
                    A(Op(("oc", s, u, db, 1), f"v_cvt_pk_bf16_f32 v{o+1}, v{e+2}, v{e+3}", "valu", vr(e + 2, 2), vr(o + 1)))
                    if not full:
                        A(Op(("st", s, u, db), f"buffer_store_dwordx4 {vt(o,4)}, v{vO3}, s[{sO_}:{sO_+3}], s{sOo} offen offset:{(db-1)*32} {pol}".rstrip(), "store",
                             vr(o, 4) + [f"s{sOo}"] + vr(vO3), [], cost=20))
                if full and db & 3 == 3:
                    a = o - 32; x = o - 16
                    for r in range(4):
                        A(Op(("sy", s, u, db, r), f"v_cndmask_b32_dpp v{x+r}, v{a+r}, v{o+r}, vcc {DPP}", "valu", vr(a + r) + vr(o + r), vr(x + r)))
                        A(Op(("sx", s, u, db, r), f"v_mov_b32_dpp v{a+r}, v{o+r} row_ror:8 row_mask:0xf bank_mask:0xc", "valu", vr(a + r) + vr(o + r), vr(a + r)))
                    A(Op(("st", s, u, db - 1), f"buffer_store_dwordx4 {vt(a,4)}, v{vO}, s[{sO_}:{sO_+3}], s{sOo} offen offset:{(db>>2)*128} {pol}".rstrip(), "store",
                         vr(a, 4) + [f"s{sOo}"], [], cost=20))
                    A(Op(("st", s, u, db), f"buffer_store_dwordx4 {vt(x,4)}, v{vO}, s[{sO_}:{sO_+3}], s{sOo} offen offset:{(db>>2)*128 + 2048} {pol}".rstrip(), "store",
                         vr(x, 4) + [f"s{sOo}"], [], cost=20))
            if not steady and 32 <= s < last:
                for x in prog:
                    if x.key[:3] == ("st", s, u): x.maxdl = (s + 1, "frac", (x.key[3] + 1) / 8 * cfg.tail_dl)
            A(Op(("oinc", s, u), f"s_add_u32 s{sOo}, s{sOo}, 4096", "salu", [f"s{sOo}"], [f"s{sOo}"]))
    return prog

def link(cfg, prog):
    lastw = {}; readers = {}
    m = 0
    for x in prog:
        if x.kind == "mfma": x.m = m; m += 1
    for x in prog:
        e = {}
        def add(p, typ):
            if p is x: return
            soft = hard = 0
            if p.kind == "mfma":
                if x.kind == "mfma": return
                if typ in ("raw", "waw"): soft = cfg.mv_lat + (2 if p.key[0] == "on" else 0)
                elif x.kind in ("valu", "trans"): soft = 1
            elif x.kind == "mfma":
                hard = soft = 1
                if typ == "raw":
                    soft = cfg.ds_lat if p.kind == "ds" else (1 if p.kind == "load" else 2)
                elif p.kind == "store": soft = 2
            elif x.kind == "bar" or x.key[0] == "arr":
                hard = 1; soft = {"ds": cfg.ds_lat, "dsw": cfg.ds_lat, "dma": 2}.get(p.kind, 1)
            elif p.kind == "bar":
                soft = hard = 0
            elif p.kind == "salu":
                soft = 2; hard = 1 if x.kind != "salu" else 1
            elif x.kind == "salu":
                soft = hard = 1
            elif typ == "raw":
                if p.kind == "trans": soft = 1
                elif p.kind == "ds" and x.kind == "dma": soft = cfg.ds_lat
                elif p.kind == "valu" and x.kind in ("store", "dsw", "ds"): soft = 1
                elif p.kind == "valu" and "permlane" in x.text: soft = 2
                if "_dpp" in x.text: soft = 1 if x.key[0] == "ob" else 2
                if p.kind == "ds" and x.kind == "valu": soft = 3
            else:
                if p.kind in ("valu", "trans") and x.kind in ("load", "ds", "dma"): soft = 1
                if p.kind in ("store", "dsw"): soft = 1
            o = e.get(id(p))
            e[id(p)] = (p, max(soft, o[1]) if o else soft, max(hard, o[2]) if o else hard)
        for r in x.reads:
            if r in lastw: add(lastw[r], "raw"); x.prod[r] = lastw[r].key
        for r in x.writes:
            if r in lastw: add(lastw[r], "waw")
            for p in readers.get(r, []): add(p, "war")
        for r in x.reads: readers.setdefault(r, []).append(x)
        for r in x.writes: lastw[r] = x; readers[r] = []
        x.preds = list(e.values())
        for p, so, ha in x.preds: p.succs.append((x, so, ha))
    return m

def semantic_check(cfg, prog):
    sg = cfg.sigma
    nq = 0; qblk = {}; nst = 0
    for x in prog:
        k = x.key; P = [x.prod.get(r) for r in x.reads]
        def exp(idx, f):
            for i in idx: assert P[i] is not None and f(P[i]), ("semantic", k, x.reads[i], P[i])
        if x.dummy: continue
        if k[0] == "ksc" and k[4] in (0, 1): exp([0], lambda p: p == ("kld", k[1], k[2]))
        if k[0] == "ksc" and k[4] in (2, 3): exp([0], lambda p: p == k[:4] + (k[4] - 2,))
        if k[0] == "ksc" and k[4] == 4 and k[1] not in cfg.pk: exp([0], lambda p: p == k[:4] + (2,)); exp([1], lambda p: p == k[:4] + (3,))
        if k[0] == "ksc" and k[4] == 4 and k[1] in cfg.pk: exp([0, 1], lambda p: p == k[:3] + (0, 5))
        if k[0] == "ksc" and k[4] == 5: exp(range(4), lambda p: p == ("kld", k[1], k[2])); exp(range(4, 7), lambda p: p[:3] == k[:3] and p[4] == 0)
        if k[0] == "kw": exp(range(4), lambda p: p[:3] == ("ksc", k[1], k[2]) and p[4] == 4); exp(range(5, len(P)), lambda p: p[0] == "bar")
        if k[0] in ("bar", "arr"): exp(range(len(P)), lambda p: True)
        if k[0] == "kr" and k[1] < 8: exp([0], lambda p: p[0] == "bar")
        if k[0] == "vr": exp([0], lambda p: p[0] == "bar")
        if k[0] == "dma": exp([0], lambda p: p == ("m0", k[1])); exp(range(1, len(P)), lambda p: p[0] == "bar")
        if k[0] in ("q", "q0") and k[-1] == "inc": qblk[k[:-1]] = nq; nq += 1
        if k[0] in ("q", "q0") and isinstance(k[-1], int): exp([1], lambda p: p == k[:-1] + (f"m{k[-1]}",))
        if k[0] in ("qr", "qr0"):
            u = k[-2]; n = 0 if k[0] == "qr0" else (k[1] - sg[u]) // 8
            exp(range(4), lambda p: qblk[p[:-1]] == 4 * n + u)
        if k[0] == "qk":
            _, s, kb, u, ds, ii = k; n, i_ = blockpos(cfg, s, u); s0 = s - i_
            exp(range(4), lambda p: p[0] == "kr" and p[1] % 8 == s % 8 and p[2:] == (kb, ds))
            exp(range(4, 8), lambda p: p == (("qr0", u, ds) if n == 0 else ("qr", s0, u, ds)))
            exp(range(8, len(P)), lambda p: p[:4] == k[:4] and p[5] == ii - 1); assert (len(P) > 8) == (ii > 0)
        if k[0] == "ex": exp([0], lambda p: p[:4] == ("qk",) + k[1:4] and p[5] == 3)
        if k[0] == "cv": exp([0, 1], lambda p: p[:4] == ("ex",) + k[1:4])
        if k[0] == "pv":
            _, s, db, u, ks, ii = k
            exp(range(4), lambda p: p[0] == "vr" and p[1] % 8 == s % 8 and p[2:4] == (db, ks))
            exp(range(4, 8), lambda p: p[0] == "cv" and p[1] == s - 1 and p[2] >> 1 == ks and p[3] == u)
            if ii > 0 or blockpos(cfg, s - 1, u)[1] > 0:
                exp(range(8, 12), lambda p: p == ("pv", s, db, u, 1 - ks, 0) if ii else (p[:4] == ("pv", s - 1, db, u) and p[5] == 1))
            else: exp(range(8, len(P)), lambda p: p[0] == "ob" and p[2] >= 12)
        if k[0] == "on":
            exp(range(8), lambda p: p[0] == "cv" and p[1] == k[1] - 1 and p[3] == k[2])
            exp([8, 9], lambda p: p[:3] == ("lz", k[1], k[2]) or p == ("on", k[1] - 1, k[2]))
        if k[0] == "la": exp([0, 1], lambda p: p == ("on", k[1], k[2]))
        if k[0] == "mu": exp([0], lambda p: p[:4] == ("pv", k[1], k[3], k[2]) and p[5] == 1); exp([1], lambda p: p[0] == ("rm" if cfg.obias else "rc") and p[1:] == k[1:3]); exp(range(2, len(P)), lambda p: p == ("r2",) + k[1:3])
        if k[0] == "oc": exp([0, 1], lambda p: p[:3] == ("mu",) + k[1:3])
        if k[0] == "oinc":
            assert nst == 4 * blockpos(cfg, k[1] - 1, k[2])[0] + k[2], k
            nst += 1
    assert nst == 16

def step_of(x): return x.key[1]

def schedule(cfg, prog, nm, pins=None, lo=None, hi=None):
    pins = pins or {}; lo = lo or {}; hi = hi or {}
    start = {}; barw = {}
    cur = -1
    for x in prog:
        if x.kind == "mfma":
            cur = x.m; start.setdefault(x.key[1], x.m)
        elif x.key[0] == "bar": barw[x.key[1]] = cur
    def W(a):
        if a[0] == -1: return -1
        if a[1] == "bar": return barw.get(a[0], nm - 1) + (a[2] if len(a) > 2 else 0)
        if a[1] == "frac": return start[a[0]] - 1 + int(a[2] * (start.get(a[0] + 1, nm) - start[a[0]]))
        if a[1] == "off": return max(0, start[a[0]] - 1 + a[2])
        return start[a[0]] - 1
    fill = [x for x in prog if x.kind != "mfma"]
    for x in prog:
        if x.kind == "mfma": x.win = x.m
    for i, x in enumerate(prog): x.idx = i
    for x in reversed(fill):
        if x.key in pins: x.dls = x.dlh = pins[x.key][0]; continue
        if x.anchor: x.dls = x.dlh = W(x.anchor); continue
        ds = dh = nm - 1
        for y, so, ha in x.succs:
            if y.dummy and y.key not in pins: continue
            if y.kind == "mfma": ds = min(ds, y.m - so); dh = min(dh, y.m - ha)
            else: ds = min(ds, y.dls - so); dh = min(dh, y.dlh - ha)
        if x.key in hi: ds = min(ds, hi[x.key]); dh = min(dh, hi[x.key])
        if x.maxdl: ds = min(ds, W(x.maxdl)); dh = min(dh, W(x.maxdl))
        x.dls, x.dlh = ds, max(dh, -1)
    wins = {w: [] for w in range(-1, nm)}
    for x in fill:
        x.win = None
        x.lo = max(W(x.earliest) if x.earliest else -1, lo.get(x.key, -1))
        if x.anchor: x.lo = x.dlh
    pinned_by_win = {}
    for x in fill:
        if x.key in pins: pinned_by_win.setdefault(pins[x.key][0], []).append(x)
    todo = [x for x in fill if x.key not in pins and not x.dummy]
    todo.sort(key=lambda x: x.idx)
    credit = [0]
    bucket = [0]
    def nbytes(x):
        if x.kind in ("salu", "bar"): return 4
        if x.kind in ("valu", "trans"):
            return 8 if ("_dpp" in x.text or x.text.split()[0] in ("v_cvt_pk_bf16_f32", "v_perm_b32", "v_max3_u32", "v_fma_f32") or "0x" in x.text) else 4
        return 8
    mfl = [x for x in prog if x.kind == "mfma"]
    def ready(x, w, soft):
        if w < x.lo: return False
        for p, so, ha in x.preds:
            if p.dummy and p.key not in pins: continue
            if p.win is None: return False
            lat = ha
            if soft and (p.kind not in ("load", "dma", "ds", "dsw") or x.kind == "dma" or x.key[0] == "ob"): lat = so
            if p.kind in ("store", "dsw") and soft: lat = max(lat, min(so, 1))
            if w == -1 or w == nm - 1: lat = 0
            if w < p.win + lat: return False
        return True
    for w in range(-1, nm):
        if w in pinned_by_win:
            for x in sorted(pinned_by_win[w], key=lambda x: pins[x.key][1]):
                x.win = w; wins[w].append(x)
        if pins and cfg._loop[0] <= w < cfg._loop[1]: continue
        cap = 8 if w >= 0 else 0
        if w >= 0 and mfl[w].key[0] == "on": cap = 4
        cap0 = cap
        rate = 8
        if cfg.smooth and pins and 0 <= w < nm - 1:
            acc = 0
            for x in sorted((x for x in todo[:900] if x.dls <= w + 120), key=lambda x: x.dls):
                acc += min(x.cost, 8)
                rate = max(rate, acc / (max(x.dls, w) - w + 1))
            credit[0] = credit[0] + rate - 8 if rate > 8.2 else 0
            credit[0] = min(credit[0], rate)
            extra = int(credit[0] // 4) * 4
            cap += extra
        used = 0
        cur = wins[w]
        def place(x):
            nonlocal used
            x.win = w; cur.append(x); used += min(x.cost, 8); todo.remove(x)
        while True:
            cand = [x for x in todo[:700] if ready(x, w, True) or (w >= x.dlh and ready(x, w, False))]
            if not cand: break
            z = [x for x in cand if x.kind in ("salu", "bar")]
            if z:
                place(z[0]); continue
            forced = [x for x in cand if x.dls <= w]
            if w == -1 or w == nm - 1:
                if not forced: break
                place(min(forced, key=lambda x: x.idx)); continue
            hasvalu_dep = lambda x: x.kind in ("ds", "dsw", "load", "dma", "store") and any(p.win == w and p.kind in ("valu", "trans") for p, _, _ in x.preds)
            hard_forced = forced
            if hard_forced:
                place(min(hard_forced, key=lambda x: (x.dls, x.idx))); continue
            if used >= cap: break
            nb = lambda x: 1024 if "b128" in x.text else 512
            dsb = sum(nb(x) for x in cur if x.kind == "ds")
            tight = rate > 8.2
            recent = (not tight) and any(y.kind == "ds" for k in range(1, cfg.ds_gap) for y in wins.get(w - k, []))
            vmk = ("load", "dma", "store")
            vgap = max(1, int((cfg.vm_gap if pins else cfg.vm_gap_loop or cfg.vm_gap) * 16 / (8 + rate)))
            recent_vm = any(y.kind in vmk for k in range(0, vgap) for y in wins.get(w - k, []))
            sgap = max(1, int(cfg.st_gap * 16 / (8 + rate)))
            if any(y.kind == "store" for k in range(0, sgap) for y in wins.get(w - k, [])):
                cand = [x for x in cand if x.kind != "store" and not (cfg.st_gap_all and x.kind in vmk)]
            dcap = cfg.ds_cap * (8 + cap) // 16
            if cfg.st_block and any(-4 * cfg.vm_gap <= b - w <= cfg.st_block for b in barw.values()):
                cand = [x for x in cand if x.kind != "store"]
            cand = [x for x in cand if (x.kind != "ds" or (not recent and dsb + nb(x) <= dcap)) and not (x.kind in vmk and recent_vm and not (getattr(x, "nogap", False) and used == 0))]
            if not cand: break
            cand.sort(key=lambda x: (-99999 if (x.kind in ("load", "dma", "dsw", "store") or (cfg.qr_asap and x.key[0] == "qr")) else x.dls, x.idx))
            if cfg.fetch_thr is not None and not tight and bucket[0] >= cfg.fetch_thr and cap - used >= 8 and cand[0].dls > w + cfg.fetch_slack:
                tr = [x for x in cand if x.kind == "trans"]
                if tr: place(tr[0]); continue
            if cap - used >= 8:
                top = cand[0]
                if top.cost >= 8: place(top); continue
                small = [x for x in cand if x.cost == 4]
                big = [x for x in cand if x.cost >= 8]
                fits = lambda a, b: not (a.kind == "ds" and b.kind == "ds" and dsb + nb(a) + nb(b) > dcap)
                partner = any(fits(top, y) for y in small if y is not top) or any(y.cost == 4 and so == 0 and y.win is None and y.kind == "valu" and all(p.win is not None or p is top for p, _, _ in y.preds) for y, so, ha in top.succs)
                if partner or not big or (cap - used) % 8: place(top)
                else: place(big[0])
                continue
            small = [x for x in cand if x.cost == 4]
            if not small: break
            place(small[0])
        bts = 8 + sum(nbytes(x) for x in cur if x.kind not in ("salu", "bar")) + (4 if any(x.kind not in ("valu", "trans") for x in cur) else 2)
        bucket[0] = max(0, bucket[0] + bts - 22 * max(16, 8 + sum(x.cost for x in cur)) // 16)
        if w >= 0: credit[0] -= max(0, min(used, cap) - cap0)
        if w not in (-1, nm - 1):
            order = {"bar": 0, "salu": 0, "dma": 1, "load": 1, "store": 1, "dsw": 1, "ds": 1, "valu": 2, "trans": 2}
            lvl = {}
            for x in cur:
                l = order[x.kind]
                for p, _, _ in x.preds:
                    if p.win == w and p.kind != "mfma": l = max(l, lvl[id(p)])
                lvl[id(x)] = l
            cur.sort(key=lambda x: lvl[id(x)])
    assert not todo, [x.key for x in todo[:10]]
    for w, c in wins.items():
        for i, x in enumerate(c): x.pos = i
    return wins, start

def norm(key, d):
    return (key[0], key[1] + d) + tuple(key[2:])

class Ins:
    def __init__(s, text, op=None, kind=None):
        s.text, s.op, s.kind = text, op, kind or (op.kind if op else "salu")
        s.vm = None; s.lg = None

def generate(cfg):
    last = 32 + max(cfg.sigma)
    cfg.q_ahead = getattr(cfg, "q_ahead", 2)
    cfg.code_pf_n = getattr(cfg, "code_pf_n", 2)
    sp = build(cfg, 0, 56, True); nms = link(cfg, sp)
    swins, sstart = schedule(cfg, sp, nms)
    per = sstart[8] - sstart[0]
    ok = None
    for b in (16, 24, 32):
        same = all([x.text for x in swins[sstart[b] + i]] == [x.text for x in swins[sstart[b + 8] + i]] and
                   [norm(x.key, 8) for x in swins[sstart[b] + i]] == [x.key for x in swins[sstart[b + 8] + i]] for i in range(per))
        if same: ok = b; break
    assert ok is not None, "steady state not periodic"
    rp = build(cfg, 0, last + 1, False)
    E_ = cfg.loop_from
    off0 = sstart[ok + E_ - 8] - sstart[ok]
    inloop = {norm(x.key, 8 + 8 * it - ok) for it in range(3) for i in range(per) for x in swins[sstart[ok] + i] if it or i >= off0}
    rp = [x for x in rp if not x.dummy or x.key in inloop]
    nm = link(cfg, rp)
    semantic_check(cfg, rp)
    rstart = {}
    for x in rp:
        if x.kind == "mfma": rstart.setdefault(x.key[1], x.m)
    L0, L1 = rstart[E_], rstart[32]
    assert L1 - L0 == 3 * per - off0
    XP = L0 + per - off0
    cfg._loop = (L0, L1)
    pins = {}
    for it in range(3):
        for i in range(per):
            for x in swins[sstart[ok] + i]:
                if it or i >= off0: pins[norm(x.key, 8 + 8 * it - ok)] = (L0 - off0 + it * per + i, x.pos)
    keys = {x.key: x for x in rp}
    assert len(keys) == len(rp)
    missing = [k for k in pins if k not in keys]
    assert not missing, missing[:10]
    lo = {}; hi = {}
    mid = [x for x in rp if x.key[:2] == ("qk", 20)][0]
    midx = rp.index(mid)
    for i, x in enumerate(rp):
        if x.kind == "mfma" or x.key in pins: continue
        if i < midx: hi[x.key] = L0 - 1
        else: lo[x.key] = L1
    wins, start = schedule(cfg, rp, nm, pins, lo, hi)
    mf = [x for x in rp if x.kind == "mfma"]
    def stat(w):
        return L0 + (w - L0) % per if L0 <= w < L1 else w
    free = {}
    pre = {}
    for w in range(-1, nm):
        if stat(w) == w:
            free[w] = []
            if w not in (-1, nm - 1):
                for x in wins[w]:
                    if x.kind == "bar": free[w].append(Ins(x.text, x))
    def body(w):
        if w in (-1, nm - 1): return wins[w]
        return [x for x in wins[w] if x.kind not in ("salu", "bar")]
    def walk(fix):
        q = {"vm": [], "lgkm": []}
        pend = {}
        hist = {}
        changed = False
        def dowait(ins):
            for c, n in (("vm", ins.vm), ("lgkm", ins.lg)):
                if n is None: continue
                while len(q[c]) > n:
                    d = q[c].pop(0)
                    for r in d.writes:
                        if pend.get(r) is d: del pend[r]
        def need(x):
            n = {}
            for r in x.reads + x.writes:
                p = pend.get(r)
                if p is not None and not (r in x.writes and r not in x.reads and p.cnt == x.cnt):
                    n[p.cnt] = p if (p.cnt not in n or q[p.cnt].index(p) > q[p.cnt].index(n[p.cnt])) else n[p.cnt]
            return n
        def issue(x):
            if x.cnt:
                q[x.cnt].append(x)
                for r in x.writes:
                    if r != "stord": pend[r] = x
        def setw(ins, c, n):
            n = min(n, 62 if c == "vm" else 14)
            if c == "vm": ins.vm = n if ins.vm is None else min(ins.vm, n)
            else: ins.lg = n if ins.lg is None else min(ins.lg, n)
        def handle(x, w, pos, cands):
            nonlocal changed
            n = need(x)
            if not n: return
            assert fix, ("unwaited", x.key, {c: p.key for c, p in n.items()})
            changed = True
            for c, p in n.items():
                done = False
                for cw in cands:
                    if cw < 0 or cw == nm - 1 or cw not in hist: continue
                    snap = hist[cw][c]
                    if p not in snap: continue
                    fl = free[stat(cw)]
                    wi = [i for i in fl if i.kind == "wait"]
                    if not wi and fl and cw != cands[-1]: continue
                    if not wi:
                        wi = [Ins("", None, "wait")]; fl.insert(0, wi[0])
                    setw(wi[0], c, len(snap) - 1 - snap.index(p)); done = True; break
                if not done:
                    ins = pre.setdefault((stat(w), pos), Ins("", None, "wait"))
                    setw(ins, c, len(q[c]) - 1 - q[c].index(p))
                while p in q[c]:
                    d = q[c].pop(0)
                    for r in d.writes:
                        if pend.get(r) is d: del pend[r]
        for w in range(-1, nm):
            if w >= 0:
                if (stat(w), "m") in pre: dowait(pre[(stat(w), "m")])
                handle(mf[w], w, "m", [w - 1, w - 2])
            hist[w] = {c: list(v) for c, v in q.items()}
            hist.pop(w - 4, None)
            for ins in list(free[stat(w)]):
                if ins.kind == "wait": dowait(ins)
                elif ins.kind == "bar":
                    x = [y for y in wins[w] if y.kind == "bar"][0]
                    handle(x, w, "b", [w - 1, w - 2, w])
            for pos, x in enumerate(body(w)):
                if (stat(w), pos) in pre: dowait(pre[(stat(w), pos)])
                handle(x, w, pos, [w, w - 1])
                issue(x)
        return changed
    for _ in range(10):
        if not walk(True): break
    walk(False)
    for w in range(0, nm - 1):
        if stat(w) != w: continue
        for x in wins[w]:
            if x.kind != "salu": continue
            hiw = min([y.win - (1 if "m0" in x.writes or y.kind == "salu" else 0) for y, _, _ in x.succs if y.win is not None] + [w + 40, nm - 2])
            if L0 <= w < XP: hiw = min(hiw, XP - 3)
            elif XP <= w < L0 + per: hiw = min(hiw, L0 + per - 1)
            elif w < L0: hiw = min(hiw, L0 - 1)
            hiw = max(hiw, w)
            c = [k for k in range(w, hiw + 1) if not free[k]]
            c2 = [k for k in c if body(k) and body(k)[0].kind in ("ds", "dma", "load", "store", "dsw")]
            k = c2[0] if c2 else (c[0] if c else w)
            if any(i.text.startswith("s_cmp") for i in free[k]): free[k].insert(0, Ins(x.text, x))
            else: free[k].append(Ins(x.text, x))
    k = [k for k in range(XP - 2, XP) if not free[k]]
    k = k[0] if k else XP - 1
    if any(i.text.startswith("s_add") for kk in range(k + 1, XP) for i in free[kk]): k = XP - 1
    free[k].append(Ins(f"s_sub_u32 s{sCnt}, s{sCnt}, 1"))
    if cfg.nop_ds:
        for w in range(0, nm - 1):
            if stat(w) == w and not free[w] and body(w) and body(w)[0].kind in ("ds", "dma", "load", "store", "dsw"):
                free[w].append(Ins("s_nop 0", None, "nop"))
    def wtext(i):
        t = "s_waitcnt"
        if i.vm is not None: t += f" vmcnt({i.vm})"
        if i.lg is not None: t += f" lgkmcnt({i.lg})"
        return t
    code = {}
    for w in range(-1, nm):
        if stat(w) != w: continue
        l = []
        if w >= 0:
            if (w, "m") in pre: l.append(pre[(w, "m")])
            l.append(Ins(mf[w].text, mf[w]))
        l += free[w]
        for pos, x in enumerate(body(w)):
            if (w, pos) in pre: l.append(pre[(w, pos)])
            l.append(Ins(x.text, x))
        for i in l:
            if i.kind == "wait": i.text = wtext(i)
        code[w] = l
    def wcost(l, head=False):
        t = 0; base = 0; lastvalu = -99; blk = 8
        for i in l:
            if i.kind == "mfma": base = t; t += 4; blk = 12 if "smfmac" in i.text else 8; continue
            if i.kind in ("salu", "wait", "bar", "nop"): t += 4; continue
            if i.kind == "nopx": t += 4 * (int(i.text.split()[1]) + 1); continue
            if not head: t = max(t, base + blk)
            if i.kind in ("valu", "trans"): t += i.op.cost; lastvalu = t
            else:
                t = max(t, lastvalu + 8) + i.op.cost
        return t if head else max(t, base + 16)
    def hazards(fix):
        seq = []
        changed = False
        for w in range(-1, nm):
            l = code[stat(w)]
            j = 0
            while j < len(l):
                i = l[j]; x = i.op
                needn = 0
                if x is not None and x.kind not in ("salu", "bar"):
                    dist = 0
                    for p, st, pwin in reversed(seq):
                        y = p.op
                        if y is not None:
                            req = 0
                            raw = set(y.writes) & set(x.reads); waw = set(y.writes) & set(x.writes); war = set(y.reads) & set(x.writes)
                            if y.kind == "mfma":
                                if x.kind == "mfma":
                                    if set(y.writes) & set(x.reads[:8]): req = 8
                                elif raw or waw: req = 12 if y.key[0] == "on" else 8
                                elif war and x.kind in ("valu", "trans") and set(y.writes) & set(x.writes): req = 3
                            elif y.kind in ("valu", "trans"):
                                if raw and x.kind == "mfma": req = 2
                                if raw and ("permlane" in x.text or "_dpp" in x.text): req = 2
                                if raw and y.kind == "trans" and x.kind != "trans": req = max(req, 1)
                            elif y.kind in ("store", "dsw") and war and y.cost == 20: req = 2
                            elif y.kind == "salu" and "m0" in y.writes and x.kind == "dma": req = 1
                            if req - dist > needn: needn = req - dist; pw = pwin
                        dist += st
                        if dist >= 12: break
                if needn > 0:
                    assert fix, ("hazard", x.key)
                    for k in range(w, pw - 1, -1):
                        if k < 0: break
                        lk = code[stat(k)]
                        mi = [n for n, z in enumerate(lk) if z.kind == "mfma"][0]
                        places = []
                        if k > pw and (k < w or j > mi): places.append(mi + 1)
                        if k < w: places.append(len(lk))
                        ok_ = False
                        for pl in places:
                            tr = lk[:pl] + [Ins("s_nop 0", None, "nopx")] + lk[pl:]
                            if wcost(tr) == wcost(lk): lk[:] = tr; ok_ = True; break
                        if ok_: return True
                    l.insert(j, Ins(f"s_nop {needn-1}", None, "nopx")); changed = True
                    continue
                st = int(i.text.split()[1]) + 1 if (i.text.startswith("s_nop") and i.op is None) else 1
                seq.append((i, st, w)); seq = seq[-14:]
                j += 1
        return changed
    while hazards(True): pass
    lastw = {}; seen = set()
    for w in range(-1, nm):
        it = (w - L0) // per if L0 <= w < L1 else 0
        for i in code[stat(w)]:
            if i.op is None: continue
            x = keys[norm(i.op.key, 8 * it)]
            assert x.text == i.text, (x.text, i.text)
            assert x.key not in seen; seen.add(x.key)
            if not x.dummy:
                for r in x.reads:
                    assert lastw.get(r) == x.prod.get(r), ("dataflow", x.key, r, lastw.get(r), x.prod.get(r))
            for r in x.writes: lastw[r] = x.key
    assert all(x.key in seen or x.dummy for x in rp), [x.key for x in rp if x.key not in seen and not x.dummy][:5]
    est = {}
    for s in range(0, last + 1):
        e = rstart.get(s + 1, nm)
        est[s] = (sum(wcost(code[stat(w)]) for w in range(rstart[s], e)), (e - rstart[s]) * 16)
    cfg.est = est; cfg.est_head = wcost(code[-1], True)
    out = []
    cfg.spins = []
    E = out.append
    stamp_at = getattr(cfg, "stamp_steps", [])
    inv = {v: k for k, v in rstart.items()}
    for w in range(-1, nm):
        if stat(w) != w: continue
        if w == L0:
            if cfg.stamps and 7.9 in stamp_at:
                j = stamp_at.index(7.9); E(f"    s_memrealtime s[{64+2*j}:{65+2*j}]")
            E("L_loop:")
        if w in inv:
            E(f"; ---- step {inv[w]} ----")
            if cfg.jitter:
                E(f"    s_cmp_lg_u32 s{sWave}, {(inv[w] * cfg.jitter[1]) & 3}\n    s_cbranch_scc1 L_j{inv[w]}\n    s_sleep {cfg.jitter[0]}\nL_j{inv[w]}:")
            if cfg.stamps and inv[w] in stamp_at:
                j = stamp_at.index(inv[w]); E(f"    s_memrealtime s[{64+2*j}:{65+2*j}]")
        for i in code[w]:
            if i.op is not None and i.op.key[0] in cfg.kill and (L0 if cfg.kill_from is None else cfg.kill_from) <= w: E("    s_nop 0")
            else: E("    " + i.text)
            if cfg.pad and i.kind == "mfma" and L0 <= w < L1 and w % cfg.pad == 0: E("    s_nop 4")
            if i.text.startswith("s_cbranch_scc1 L_spin"):
                n = i.text.split("L_spin")[1]; E(f"L_back{n}:"); cfg.spins.append(n)
        if off0 == 0:
            if w == L0 + per - 1: E("    s_cbranch_scc0 L_loop")
        else:
            if w == XP - 1: E("    s_cbranch_scc1 L_tail")
            if w == L0 + per - 1: E("    s_branch L_loop"); E("L_tail:")
    lastscc = None
    for l in out:
        t = l.strip()
        if t.startswith(("s_add", "s_sub", "s_cmp", "s_and", "s_lsh", "s_bfe", "s_or", "s_xor", "s_not")): lastscc = t
        if t.startswith("s_cbranch_scc1 L_spin"): assert lastscc.startswith("s_cmp_lt_u32"), lastscc
        if t.startswith(("s_cbranch_scc0 L_loop", "s_cbranch_scc1 L_tail")): assert lastscc.startswith(f"s_sub_u32 s{sCnt}"), lastscc
    return "\n".join(out)

def fbits(x): return struct.unpack("<I", struct.pack("<f", x))[0]

def head(cfg):
    T = vS
    h = f"""    s_load_dwordx4 s[4:7], s[0:1], 0          ; q, k
    s_load_dwordx4 s[8:11], s[0:1], 16        ; v, out
"""
    if cfg.x8: h = "    s_load_dwordx8 s[4:11], s[0:1], 0         ; q, k, v, out\n"
    if cfg.stamps: h += f"    s_load_dwordx2 s[56:57], s[0:1], {32 if cfg.stamps in ('dbg', 'skew') else 40}\n    s_memrealtime s[60:61]\n"
    h += f"""    v_lshrrev_b32 v{T}, 6, v0
    v_and_b32 v{T+4}, 63, v0                  ; lane
    v_readfirstlane_b32 s{sWave}, v{T}
    s_cmp_ge_u32 s2, 256
    s_cbranch_scc1 L_end
    v_lshlrev_b32 v{vKl}, 4, v{T+4}           ; lane*16 : source offset of every K, Q and V load
    s_and_b32 s{sTmp}, s2, 7
    s_lshr_b32 s{sTmp+1}, s2, 3
    s_lshl_b32 s{sTmp}, s{sTmp}, 5
    s_add_u32 s{sTmp}, s{sTmp}, s{sTmp+1}
    s_lshl2_add_u32 s{sTmp+2}, s{sTmp}, s{sWave}
    s_lshl_b32 s{sTmp+2}, s{sTmp+2}, 16       ; q/o byte offset of this wave
    s_lshr_b32 s{sTmp}, s{sTmp}, 2
    s_lshl_b32 s{sTmp}, s{sTmp}, 17           ; k/v byte offset of the group
    s_lshl_b32 s{sMq}, s{sWave}, 12           ; wave*4096
    s_add_u32 s{sTmp+3}, s{sTmp}, s{sMq}
    s_sub_u32 s{sK_+2}, 0x20000, s{sMq}
    s_mov_b32 s{sK_+3}, 0x20000
    s_mov_b32 s{sQ_+3}, s{sK_+3}
    s_mov_b32 s{sQ_+2}, 0x10000
"""
    if cfg.rot:
        h += f"""    s_bfe_u32 s{sTmp+4}, s2, 0x20003
    s_mul_i32 s{sTile}, s{sTmp+4}, {cfg.rot*16384}
    s_and_b32 s{sTile}, s{sTile}, 0x1ffff
    s_add_u32 s{sTile+1}, s{sTile}, 16384
    s_and_b32 s{sTile+1}, s{sTile+1}, 0x1ffff
"""
    elif cfg.xor:
        h += f"""    s_lshl_b32 s{sTile}, s2, {11 + cfg.xor[1]}
    s_and_b32 s{sTile}, s{sTile}, {cfg.xor[0] << 14:#x}
    s_xor_b32 s{sTile+1}, s{sTile}, 0x4000
"""
    else: h += f"    s_mov_b32 s{sTile}, 0\n    s_movk_i32 s{sTile+1}, 0x4000\n"
    h += f"""    s_mov_b32 s{sQo}, 0
    s_mul_i32 s{sMqs}, s{sWave}, {QW}
    s_add_u32 s{sMqs+1}, s{sMqs}, 32
    s_add_u32 s{sMqs+2}, s{sMqs}, 64
    s_add_u32 s{sMqs+3}, s{sMqs}, 96
{head2(cfg).split("@CPF")[0] + f"    global_load_dword v{vJ}, v[{T+14}:{T+15}], off" if cfg.early_pf else ""}
    s_waitcnt lgkmcnt(0)
    s_add_u32 s{sK_}, s6, s{sTmp+3}
    s_addc_u32 s{sK_+1}, s7, 0
    s_add_u32 s{sQ_}, s4, s{sTmp+2}
    s_addc_u32 s{sQ_+1}, s5, 0
"""
    if cfg.stamps: h += "    s_memrealtime s[62:63]\n"
    return h

def head2(cfg):
    c = math.log2(math.e) / math.sqrt(128.0) * cfg.kmul
    T = vS
    h = f"""    ; code prefetch into L2: 16 lines per wave, 8 KiB per workgroup
    s_getpc_b64 s[{sC_}:{sC_+1}]
L_pc:
    s_mov_b32 s{sC_+2}, L_slow - L_pc
    s_bfe_u32 s{sTmp+1}, s2, 0x30003
    s_lshl2_add_u32 s{sTmp+1}, s{sTmp+1}, s{sWave}
    s_lshl_b32 s{sTmp+1}, s{sTmp+1}, 11
    v_lshl_add_u32 v{vJ}, v{T+4}, 5, s{sTmp+1}
    v_min_u32 v{vJ}, s{sC_+2}, v{vJ}          ; stay inside the code
    v_mov_b32 v{T+15}, s{sC_+1}
    v_add_co_u32 v{T+14}, vcc, s{sC_}, v{vJ}
    s_nop 1
    v_addc_co_u32 v{T+15}, vcc, 0, v{T+15}, vcc
@CPF
    s_add_u32 s{sV_}, s8, s{sTmp+3}
    s_addc_u32 s{sV_+1}, s9, 0
    s_sub_u32 s{sC_}, s{sV_}, 8               ; second V descriptor: its loads land 8 bytes further in LDS
    s_subb_u32 s{sC_+1}, s{sV_+1}, 0
    s_add_u32 s{sC_+2}, s{sK_+2}, 8
    s_mov_b32 s{sC_+3}, 0x20000
    s_add_u32 s{sO_}, s10, s{sTmp+2}
    s_addc_u32 s{sO_+1}, s11, 0
    s_mov_b32 s{sV_+2}, s{sK_+2}
    s_mov_b32 s{sV_+3}, 0x20000
    s_mov_b32 s{sO_+2}, 0x10000
    s_mov_b32 s{sO_+3}, 0x20000
"""
    for t in range(2, 8):
        if cfg.rot: h += f"    s_add_u32 s{sTile+t}, s{sTile+t-1}, 16384\n    s_and_b32 s{sTile+t}, s{sTile+t}, 0x1ffff\n"
        elif cfg.xor: h += f"    s_xor_b32 s{sTile+t}, s{sTile}, {t*16384}\n"
        else: h += f"    s_mov_b32 s{sTile+t}, {t*16384}\n"
    h += f"""    s_mul_i32 s{sTmp+4}, s{sWave}, {VW}
    s_add_u32 s{sM0}, s{sTmp+4}, {VB}
    s_add_u32 s{sM0+1}, s{sTmp+4}, {VB + VSTR}
    s_add_u32 s{sM0+2}, s{sTmp+4}, {VB + 2 * VSTR}
    s_add_u32 s{sM0+3}, s{sTmp+4}, {VB + 3 * VSTR}
    s_mov_b32 s{sOo}, 0
    s_mov_b32 s{sExp}, 0
    s_mov_b32 s{sCnt}, 2
    s_mov_b32 s{sScale}, {fbits(c):#x}
    s_mov_b32 s{sMask}, 0xffff0000
{f"    s_mov_b32 s{sPerm}, 0x07060302" if cfg.trunc else ""}
    v_and_b32 v{T+1}, 15, v{T+4}              ; l & 15
    v_lshrrev_b32 v{T+2}, 4, v{T+4}           ; l >> 4
    v_lshlrev_b32 v{T+7}, 8, v{T+1}           ; (l&15)*256
    ; K fragment read addresses: g*256 + (row ^ g ^ 4*(ds&1))*16
    v_lshlrev_b32 v{T+3}, 8, v{T+2}
    v_xor_b32 v{T+5}, v{T+1}, v{T+2}
    v_lshl_add_u32 v{vKr}, v{T+5}, 4, v{T+3}
    v_xor_b32 v{vKr+1}, 64, v{vKr}
    v_add_u32 v{vKr+2}, {0x10000 - KSH}, v{vKr}
    v_add_u32 v{vKr+3}, {0x10000 - KSH}, v{vKr+1}
    ; K write addresses: key 16w+4i+p goes to block 2(i&1)+(p>>1), row 8(p&1)+4(i>>1)+w ; lane = 16p+c
    v_and_b32 v{T+6}, 7, v{T+1}
    v_xor_b32 v{T+6}, s{sWave}, v{T+6}
    v_lshl_add_u32 v{T+6}, v{T+6}, 4, v{T+7}
    v_and_b32 v{T+8}, 1, v{T+2}
    v_lshl_add_u32 v{T+6}, v{T+8}, 7, v{T+6}
    v_lshrrev_b32 v{T+10}, 1, v{T+2}
    v_lshl_add_u32 v{vKw}, v{T+10}, 12, v{T+6}
    v_cmp_gt_u32 vcc, 2048, v{vKw}            ; lanes that write fragments (.,0,0) and (.,0,1)
    v_add_u32 v{T+6}, {3 * 16384}, v{vKw}
    v_xor_b32 v{vKw+1}, 64, v{vKw}
    v_cndmask_b32 v{vKwS[0]}, v{vKw}, v{T+6}, vcc
    v_xor_b32 v{vKwS[1]}, 64, v{vKwS[0]}
    ; Q fragment read address: column n holds row n with bits 1 and 2 exchanged : row*256 + (row>>2)*32 + g*16
    v_and_b32 v{T+9}, 3, v{T+4}
    v_lshrrev_b32 v{T+12}, 2, v{T+1}
    v_lshrrev_b32 v{T+6}, 1, v{T+1}
    v_xor_b32 v{T+6}, v{T+6}, v{T+12}
    v_and_b32 v{T+6}, 1, v{T+6}
    v_mul_u32_u24 v{T+6}, 6, v{T+6}
    v_xor_b32 v{T+13}, v{T+6}, v{T+1}         ; row
    v_lshrrev_b32 v{T+6}, 2, v{T+13}
    v_lshlrev_b32 v{T+6}, 5, v{T+6}
    v_lshl_add_u32 v{T+6}, v{T+13}, 8, v{T+6}
    v_lshl_add_u32 v{T+6}, v{T+2}, 4, v{T+6}
    v_add_u32 v{vQr}, s{sMqs}, v{T+6}
    ; V transposed-read address: lane = 16g+4r+c reads 8 bytes of chunk c of key 16r+8(g&1)+2kb+(g>>1)
    v_mul_u32_u24 v{T+6}, 2056, v{T+8}
    v_lshl_add_u32 v{T+6}, v{T+10}, 8, v{T+6}
    v_lshl_add_u32 v{T+6}, v{T+9}, 4, v{T+6}
    v_mul_u32_u24 v{T+8}, {VW}, v{T+12}
    v_add_u32 v{T+8}, {VB}, v{T+8}
    v_add_u32 v{vV}, v{T+8}, v{T+6}
"""
    h += f"""    ; output: a store covers 8 rows x 128 bytes: row(n&7)*256 + (n>>3)*64 + g*16
    v_and_b32 v{T+10}, 7, v{T+13}
    v_lshlrev_b32 v{T+10}, 8, v{T+10}
    v_lshl_add_u32 v{T+10}, v{T+2}, 4, v{T+10}
    v_and_b32 v{T+11}, 8, v{T+1}
    v_lshl_add_u32 v{vO}, v{T+11}, 3, v{T+10}
"""
    OB = f"""    v_lshl_add_u32 v{vB if cfg.obias == "auto" else T+8}, v{T+4}, 2, v{T+7}     ; V sample for the accumulator offset: key l&15, columns 2l, 2l+1
{f"    v_add3_u32 v{vB}, v{vB}, v{T+11}, s{sM0+3}" if " u" in cfg.plan else ""}
    s_mov_b32 s{sBc}, {((cfg.ob_exp << 23) | 0x400000):#x}
    s_mov_b32 s{sLo}, {((cfg.limit_exp - cfg.limit_lo) << 23):#x}
"""
    h += f"""    ; row-sum operand: rows 4i and 4i+1 are ones; they pick elements 0,1 and 2,3 of every group of four keys
    v_cmp_eq_u32 vcc, 1, v{T+9}
    v_mov_b32 v{T+6}, 0x44444444
    v_mov_b32 v{T+8}, 0xeeeeeeee
    v_cndmask_b32 v{vIdx}, v{T+6}, v{T+8}, vcc
    v_cmp_gt_u32 vcc, {0 if cfg.ones_rows == 0 else 2}, v{T+9 if cfg.ones_rows == 8 else T+1}
    v_mov_b32 v{T+6}, 0x3f803f80
    v_mov_b32 v{vChk}, {'-1' if cfg.force_slow else '0'}
    v_cndmask_b32 v{T+6}, 0, v{T+6}, vcc
    v_lshlrev_b32 v{vCnt}, 2, v{T+4}
    v_add_u32 v{vCnt}, {CB:#x}, v{vCnt}
    v_mov_b32 v{vOne}, v{T+6}
    v_mov_b32 v{vOne+1}, v{T+6}
    v_mov_b32 v{vOne+2}, v{T+6}
    v_mov_b32 v{vOne+3}, v{T+6}
{"".join(f"    v_mov_b32 v{vKp2+i}, {fbits(cfg.cfake):#x}" + chr(10) for i in range(4)) if cfg.cfake is not None else ""}    v_mov_b32 v{vCone}, 1
    v_mov_b32 v{vPoll}, 0
{"".join(f"    v_mov_b32_e32 v{vB+i}, {fbits(cfg.obias):#x}" + chr(10) for i in range(4)) if isinstance(cfg.obias, float) else ""}{OB if cfg.obias else ""}    s_mov_b32 vcc_lo, 0xff00ff00              ; lanes with (l & 8), used by the output selects
    s_mov_b32 vcc_hi, 0xff00ff00
"""
    if cfg.split_min_u > 4:
        h = "\n".join(l for l in h.split("\n") if not l.startswith((f"    v_lshlrev_b32 v{vCnt},", f"    v_add_u32 v{vCnt},", f"    v_mov_b32 v{vCone},", f"    v_mov_b32 v{vPoll},", f"    s_mov_b32 s{sExp}, 0\n", f"    s_mov_b32 s{sExp}, 0 ")) and l != f"    s_mov_b32 s{sExp}, 0")
    return h

def tail(cfg):
    lim = (127 + cfg.limit_exp) << 23
    t = ""
    if cfg.stamps == "skew":
        t += """    s_waitcnt vmcnt(0)
    s_memrealtime s[66:67]
    s_mov_b32 s58, 256
    s_mov_b32 s59, 0x20000
    s_not_b32 s64, s60
    v_mov_b32 v64, s64
    v_mov_b32 v60, 0
    s_mov_b64 exec, 1
L_sk0:
    s_memrealtime s[72:73]
    s_waitcnt lgkmcnt(0)
    s_sub_u32 s72, s72, s60
    s_cmp_lt_u32 s72, 6500
    s_cbranch_scc1 L_sk0
    s_cmp_lg_u32 s3, 0
    s_cbranch_scc1 L_sk1
    buffer_atomic_umax v64, v60, s[56:59], 0 offen
    s_waitcnt vmcnt(0)
L_sk1:
    s_memrealtime s[72:73]
    s_waitcnt lgkmcnt(0)
    s_sub_u32 s72, s72, s60
    s_cmp_lt_u32 s72, 8000
    s_cbranch_scc1 L_sk1
    buffer_load_dword v64, v60, s[56:59], 0 offen sc0 sc1
    s_waitcnt vmcnt(0)
    v_readfirstlane_b32 s64, v64
    s_nop 4
    s_not_b32 s64, s64
    s_sub_u32 s66, s66, s64
    s_min_u32 s66, s66, 10000
    s_mul_i32 s66, s66, 10
    s_add_u32 s66, s66, 10000
L_sk2:
    s_memrealtime s[72:73]
    s_waitcnt lgkmcnt(0)
    s_sub_u32 s72, s72, s64
    s_cmp_lt_u32 s72, s66
    s_cbranch_scc1 L_sk2
    s_mov_b64 exec, -1
"""
    elif cfg.stamps == "spin":
        if not getattr(cfg, "stamp_steps", []): t += "    s_waitcnt vmcnt(0)\n    s_memrealtime s[64:65]\n"
        t += f"""    s_waitcnt lgkmcnt(0)
    {"s_sub_u32 s64, s66, s64" if len(getattr(cfg, "stamp_steps", [])) == 2 else "s_sub_u32 s64, s64, s60"}
    s_mul_i32 s64, s64, {getattr(cfg, "spin_mul", 0)}
    s_add_u32 s64, s64, 10000
L_spin:
    s_memrealtime s[72:73]
    s_waitcnt lgkmcnt(0)
    s_sub_u32 s72, s72, s60
    s_cmp_lt_u32 s72, s64
    s_cbranch_scc1 L_spin
"""
    elif cfg.stamps:
        e0 = 88 if cfg.stamps == "c16" else 72
        t += f"""    s_memrealtime s[{e0}:{e0+1}]
    s_waitcnt vmcnt(0)
    s_memrealtime s[{e0+2}:{e0+3}]
    s_mov_b32 s58, 0x10000000
    s_mov_b32 s59, 0x20000
    s_lshl_b32 s46, s2, 2
    s_add_u32 s46, s46, s3
    s_lshl_b32 s46, s46, 6
    s_waitcnt lgkmcnt(0)
"""
        for i in range(16): t += f"    v_mov_b32 v{64+i}, s{60+(2*i if cfg.stamps == 'c16' else i)}\n"
        t += "    v_mov_b32 v60, 0\n    s_mov_b64 exec, 1\n"
        if cfg.stamps == "dbg":
            t += "    s_mov_b32 s58, 256\n"
            for i in range(8):
                t += f"    v_not_b32 v{65+2*i}, v{64+2*i}\n"
            for i in range(16): t += f"    buffer_atomic_umax v{64+i}, v60, s[56:59], 0 offen offset:{4*i}\n"
        else:
          for i in range(4): t += f"    buffer_store_dwordx4 v[{64+4*i}:{67+4*i}], v60, s[56:59], s46 offen offset:{16*i}\n"
        t += "    s_mov_b64 exec, -1\n"
    t += f"""    v_cmp_lt_u32 vcc, {lim:#x}, v{vChk}
    s_nop 4
    s_cbranch_vccnz L_slow
L_end:
    s_endpgm
"""
    for n in cfg.spins:
        t += f"""L_spin{n}:
    ds_read_b32 v{vPoll}, v{vCnt}
    s_waitcnt lgkmcnt(0)
    v_readfirstlane_b32 s{sPol}, v{vPoll}
    s_nop 3
    s_cmp_lt_u32 s{sPol}, s{sExp}
    s_cbranch_scc1 L_spin{n}
    s_branch L_back{n}
"""
    S0, S1, M, T = 16, 20, 24, 25
    vQ = vQr; vKb = vKr + 2
    q = lambda ds: at(aQ + 4 * ds, 4)
    k = lambda j, ds: at(aK + j * 16 + 4 * ds, 4)
    t += f"""; Fallback: a row sum left [2^-{cfg.limit_exp}, 2^{cfg.limit_exp}] (or is not finite), so the constant offset was not safe.
; This wave recomputes its 256 rows subtracting the true row maximum.  K is rebuilt in LDS; V goes through a private 8 KiB.
L_slow:
    s_waitcnt vmcnt(0) lgkmcnt(0)
    s_barrier                                 ; the other waves are done with LDS (ended or here)
    s_mov_b32 s{sQo}, 0
    s_lshl_b32 s{sTmp}, s{sWave}, 12
    s_lshl_b32 s{sTmp+1}, s{sWave}, 13
    s_add_u32 s{sTmp+2}, s{sTmp+1}, 0x20000
    s_add_u32 s{sTmp+3}, s{sTmp+2}, 4096
    s_sub_u32 s{sV_}, s{sV_}, s{sTmp}
    s_subb_u32 s{sV_+1}, s{sV_+1}, 0
    s_mov_b32 s{sV_+2}, 0x20000
    v_bfe_u32 v{T}, v{vKl}, 4, 4              ; l & 15
    v_lshrrev_b32 v{T+1}, 8, v{vKl}           ; l >> 4
    v_lshlrev_b32 v{vQ}, 4, v{T+1}
    v_lshl_add_u32 v{vQ}, v{T}, 8, v{vQ}      ; Q rows in MFMA layout
    v_xor_b32 v{T+1}, v{T}, v{T+1}
    v_and_b32 v{T+1}, 7, v{T+1}
    v_lshlrev_b32 v{T+1}, 4, v{T+1}
    v_lshl_add_u32 v{vKw}, v{T}, 8, v{T+1}
    v_xor_b32 v{vKw+1}, 64, v{vKw}
    v_lshrrev_b32 v{T+1}, 6, v{vKl}           ; 4g+r
    v_lshlrev_b32 v{T+1}, 8, v{T+1}
    v_and_b32 v{T}, 0x30, v{vKl}              ; c*16
    v_add3_u32 v{vV}, v{T}, v{T+1}, s{sTmp+2}
"""
    t += f"""    s_sub_u32 s{sK_}, s{sK_}, s{sTmp}
    s_subb_u32 s{sK_+1}, s{sK_+1}, 0
    s_mov_b32 s{sK_+2}, 0x20000
    s_mov_b32 s{sCnt}, 0
L_skld:
"""
    for i in range(4): t += f"    buffer_load_dwordx4 {vt(vOa+4*i,4)}, v{vKl}, s[{sK_}:{sK_+3}], s{sCnt} offen offset:{i*1024}\n"
    t += "    s_waitcnt vmcnt(0)\n"
    for x in range(vOa, vOa + 16):
        t += f"""    v_lshlrev_b32 v{T}, 16, v{x}
    v_and_b32 v{x}, s{sMask}, v{x}
    v_mul_f32 v{T}, s{sScale}, v{T}
    v_mul_f32 v{x}, s{sScale}, v{x}
    v_cvt_pk_bf16_f32 v{x}, v{T}, v{x}
"""
    for i in range(4): t += f"    ds_write_b128 v{vKw+(i&1)}, {vt(vOa+4*i,4)} offset:{(i>>1)*128}\n"
    t += f"""    s_waitcnt lgkmcnt(0)
    v_add_u32 v{vKw}, 4096, v{vKw}
    v_add_u32 v{vKw+1}, 4096, v{vKw+1}
    s_add_u32 s{sCnt}, s{sCnt}, 4096
    s_cmp_lt_u32 s{sCnt}, 0x20000
    s_cbranch_scc1 L_skld
"""
    t += "L_sblk:\n"
    for ds in range(4): t += f"    buffer_load_dwordx4 {q(ds)}, v{vQ}, s[{sQ_}:{sQ_+3}], s{sQo} offen offset:{ds*64}\n"
    t += f"""    v_mov_b32 v{M}, 0xff800000
    v_mov_b32 v{vKb}, v{vKr}
    v_mov_b32 v{vKb+1}, v{vKr+1}
    s_mov_b32 s{sCnt}, 32
    s_waitcnt vmcnt(0)
L_smax:
"""
    for ds in range(4): t += f"    ds_read_b128 {k(0,ds)}, v{vKb+(ds&1)} offset:{ds*1024}\n"
    t += "    s_waitcnt lgkmcnt(0)\n"
    for ds in range(4): t += f"    v_mfma_f32_16x16x32_bf16 {vt(S0,4)}, {k(0,ds)}, {q(ds)}, {'0' if ds == 0 else vt(S0,4)}\n"
    t += f"""    s_nop 7
    v_max3_f32 v{M}, v{M}, v{S0}, v{S0+1}
    v_max3_f32 v{M}, v{M}, v{S0+2}, v{S0+3}
    v_add_u32 v{vKb}, 4096, v{vKb}
    v_add_u32 v{vKb+1}, 4096, v{vKb+1}
    s_sub_u32 s{sCnt}, s{sCnt}, 1
    s_cmp_lg_u32 s{sCnt}, 0
    s_cbranch_scc1 L_smax
    v_mov_b32 v{T}, v{M}
    s_nop 1
    v_permlane16_swap_b32 v{M}, v{T}
    s_nop 1
    v_max_f32 v{M}, v{M}, v{T}
    v_mov_b32 v{T}, v{M}
    s_nop 1
    v_permlane32_swap_b32 v{M}, v{T}
    s_nop 1
    v_max_f32 v{M}, v{M}, v{T}
"""
    for r in range(4): t += f"    v_mov_b32 v{vL+r}, 0\n"
    for r in range(32): t += f"    v_mov_b32 v{vOa+r}, 0\n"
    t += f"""    v_mov_b32 v{vKb}, v{vKr}
    v_mov_b32 v{vKb+1}, v{vKr+1}
    s_mov_b32 s{sCnt}, 0
L_skey:
    s_mov_b32 m0, s{sTmp+2}
    s_mov_b32 s{sTmp+5}, s{sCnt}
    s_add_u32 s{sTmp+4}, s{sTmp+5}, 4096
"""
    for i in range(4): t += f"    buffer_load_dwordx4 v{vD0}, s[{sV_}:{sV_+3}], s{sTmp+5} offen offset:{i*1024} lds\n"
    t += f"    s_mov_b32 m0, s{sTmp+3}\n    s_nop 0\n"
    for i in range(4): t += f"    buffer_load_dwordx4 v{vD0}, s[{sV_}:{sV_+3}], s{sTmp+4} offen offset:{i*1024} lds\n"
    for j in range(2):
        for ds in range(4): t += f"    ds_read_b128 {k(j,ds)}, v{vKb+(ds&1)} offset:{j*4096+ds*1024}\n"
    t += "    s_waitcnt vmcnt(0) lgkmcnt(0)\n"
    for db in range(8):
        for h in range(2): t += f"    ds_read_b64_tr_b16 {at(aV+db*4+2*h,2)}, v{vV} offset:{h*4096+(db>>1)*64+(db&1)*8}\n"
    for j, S in enumerate((S0, S1)):
        for ds in range(4): t += f"    v_mfma_f32_16x16x32_bf16 {vt(S,4)}, {k(j,ds)}, {q(ds)}, {'0' if ds == 0 else vt(S,4)}\n"
    t += "    s_nop 7\n"
    for r in range(8): t += f"    v_sub_f32 v{S0+r}, v{S0+r}, v{M}\n"
    for r in range(8): t += f"    v_exp_f32 v{S0+r}, v{S0+r}\n"
    t += "    s_nop 0\n"
    for r in range(4): t += f"    v_cvt_pk_bf16_f32 v{vP+r}, v{S0+2*r}, v{S0+2*r+1}\n"
    t += f"    v_add_u32 v{vKb}, 8192, v{vKb}\n    v_add_u32 v{vKb+1}, 8192, v{vKb+1}\n    s_waitcnt lgkmcnt(0)\n    s_nop 0\n"
    t += f"    v_mfma_f32_16x16x32_bf16 {vt(vL,4)}, {vt(vOne,4)}, {vt(vP,4)}, {vt(vL,4)}\n"
    for db in range(8): t += f"    v_mfma_f32_16x16x32_bf16 {vt(vOa+4*db,4)}, {at(aV+db*4,4)}, {vt(vP,4)}, {vt(vOa+4*db,4)}\n"
    t += f"""    s_add_u32 s{sCnt}, s{sCnt}, 8192
    s_cmp_lt_u32 s{sCnt}, 0x20000
    s_cbranch_scc1 L_skey
    s_nop 7
    v_rcp_f32 v{vR}, v{vL}
    s_nop 0
"""
    for r in range(32): t += f"    v_mul_f32 v{vOa+r}, v{vOa+r}, v{vR}\n"
    for db in range(8):
        o = vOa + 4 * db; d = vP + 2 * db
        t += f"    v_cvt_pk_bf16_f32 v{d}, v{o}, v{o+1}\n    v_cvt_pk_bf16_f32 v{d+1}, v{o+2}, v{o+3}\n"
    if cfg.store_x4:
        t += "    s_nop 1\n"
        for db in range(0, 8, 2):
            d = vP + 2 * db
            if not cfg.vperm: t += f"    v_permlane16_swap_b32 v{d}, v{d+2}\n    v_permlane16_swap_b32 v{d+1}, v{d+3}\n"
            t += f"    buffer_store_dwordx4 {vt(d,4)}, v{vQ}, s[{sO_}:{sO_+3}], s{sQo} offen offset:{db*32}\n"
    else:
        for db in range(8): t += f"    buffer_store_dwordx2 {vt(vP+2*db,2)}, v{vO}, s[{sO_}:{sO_+3}], s{sQo} offen offset:{db*32}\n"
    t += f"""    s_add_u32 s{sQo}, s{sQo}, 4096
    s_cmp_lt_u32 s{sQo}, 0x10000
    s_waitcnt vmcnt(0)
    s_cbranch_scc1 L_sblk
    s_endpgm
"""
    return t

HDR = """; Kernarg layout for this problem (48 bytes, ptrs only, base s[0:1]):
;   offset   0: d_in[0] q  shape=(16, 32, 512, 128) dtype=bfloat16
;   offset   8: d_in[1] k  shape=(16, 4, 512, 128) dtype=bfloat16
;   offset  16: d_in[2] v  shape=(16, 4, 512, 128) dtype=bfloat16
;   offset  24: d_out     shape=(16, 32, 512, 128) dtype=bfloat16
;   offset  32: d_debug   256 bytes
;   offset  40: d_ws      268435456 bytes workspace (unused)
; @launch grid=(256,1,1) block=(256,1,1) lds=163840
;
; GQA attention forward, out = softmax(q k^T / sqrt(128)) v.  Hand-designed; instruction order from my own scheduling script.
; * One workgroup per CU: 1024 q rows against the 512 keys of one (batch, kv head); each wave owns 256 rows and keeps
;   four 16-row blocks in flight, started two key tiles apart (a block walks the eight 64-key tiles cyclically).
; * v_mfma_f32_16x16x32_bf16 for S^T = K Q^T and O^T = V^T P^T; P goes from the S registers straight into the B operand.
;   K is multiplied by log2(e)/sqrt(128) once and stays in LDS (one tile in registers); V streams through a two-slot LDS
;   ring by LDS-DMA (one and a half tiles stay in registers) and is read with ds_read_b64_tr_b16; Q is staged through LDS.
; * One s_barrier per key tile publishes the next V tile and frees the slot of the previous one.
; * Row sums l come from one v_smfmac per block and tile (rows of ones with complementary 2:4 index patterns).
; * Softmax guard.  Softmax does not change under a per-row shift, so the main path subtracts the constant 4 (log2 units,
;   the C input of the first QK MFMA) in place of the row maximum and CHECKS every row at run time: l and 1/l must both be
;   <= 2^32 (v_max3_u32 on the bit patterns, so inf and NaN fail too).  Inside that range no exponential overflowed and
;   recomputes all its rows subtracting the true row maximum.
"""

PAD = """; Instruction prefetch stops at 4 KiB boundaries: start the kernel on one (the harness puts 0x300 bytes in front of
; the label).  The padding is never executed (s_endpgm words).
.p2align 12
.fill 832, 4, 0xbf810000
"""

def add_hops(cfg, text):
    import subprocess, re, os, tempfile
    lines = text.split("\n")
    i0 = lines.index(KN + ":"); i1 = lines.index("L_end:")
    tmp = tempfile.mkdtemp()
    src = "\n".join(lines).replace("@HOPS", "\n".join(["    s_nop 0"] * 9))
    lines = src.split("\n"); i1 = lines.index("L_end:")
    hop0 = text.split("\n").index("@HOPS")
    open(tmp + "/a.s", "w").write(src)
    subprocess.run(["clang", "-x", "assembler", "-target", "amdgcn-amd-amdhsa", "-mcpu=gfx950", "-c", tmp + "/a.s", "-o", tmp + "/a.o"], check=True)
    dis = subprocess.run(["llvm-objdump", "-d", "--mcpu=gfx950", tmp + "/a.o"], capture_output=True, text=True).stdout
    dis = dis[dis.index("<" + KN + ">:"):]
    sizes = [4 * len(m.group(1).split()) for m in re.finditer(r"// [0-9A-F]{12}: ([0-9A-F ]+)", dis)]
    isins = lambda l: l.startswith("    ") and not l.strip().startswith(";") and l.strip()
    out = lines[:i0 + 1]; addr = 0; k = 0; page = 1; j = i0 + 1
    def look(j, k, addr, page):
        cands = []
        while addr < page * 4096 + 64 and j < i1:
            if isins(lines[j]):
                addr += sizes[k]; k += 1
                if "mfma" in lines[j] and page * 4096 <= addr <= page * 4096 + 60:
                    nx = lines[j + 1].strip()
                    cands.append((0 if nx == "s_nop 0" else (1 if nx.startswith(("v_", "ds_", "buffer_")) else 2), j))
                elif page * 4096 <= addr <= page * 4096 + 60 and lines[j].strip().startswith("v_"): cands.append((3, j))
            j += 1
        return min(cands) if cands else None
    plan = None
    while j < i1:
        l = lines[j]
        if plan is None and addr >= page * 4096 - 64:
            plan = look(j, k, addr, page)
            if plan is None: page_end = True
        out.append(l)
        if isins(l): addr += sizes[k]; k += 1
        if plan and plan[1] == j:
            out.append(f"L_hop{page}:"); out.append(f"    s_cbranch_execz @NEXT{page}@"); addr += 4
            if plan[0] == 0: j += 1; k += 1
            plan = None; page += 1
        j += 1
    out += lines[i1:]
    np_ = page - 1
    r = "\n".join(out)
    for p in range(1, np_ + 1): r = r.replace(f"@NEXT{p}@", f"L_hop{p+4}" if p + 4 <= np_ else "L_hback")
    rl = r.split("\n")
    rl[hop0:hop0 + 9] = ["    s_mov_b64 exec, 0                         ; warm the instruction cache: visit the first line of every code page"] + \
        [x for w in range(3) for x in (f"    s_cmp_eq_u32 s{sWave}, {w}", f"    s_cbranch_scc1 L_hop{w+1}")] + ["    s_branch L_hop4", "L_hback:", "    s_mov_b64 exec, -1"]
    return "\n".join(rl)

def full(cfg):
    body = generate(cfg)
    r = full2(cfg, body)
    if getattr(cfg, "spin_cyc", 0):
        r = r.replace("s_memrealtime s[64:65]", "s_memtime s[64:65]").replace("s_memrealtime s[66:67]", "s_memtime s[66:67]").replace("s_memrealtime s[62:63]", "s_memtime s[62:63]")
        r = r.replace("s_sub_u32 s64, s64, s60", "s_sub_u32 s64, s64, s62").replace("s_mul_i32 s64, s64, 0", "s_lshr_b32 s64, s64, 1")
    if cfg.stamps in ("cyc", "c16"): r = r.replace("s_memrealtime", "s_memtime")
    if cfg.stamps == "both":
        import re
        r = re.sub(r"    s_memrealtime s\[(\d+):(\d+)\]", lambda m: f"    s_memtime s[{m.group(1)}:{m.group(2)}]\n    s_memrealtime s[{int(m.group(1))+20}:{int(m.group(2))+20}]", r)
        for i in range(8): r = r.replace(f"v_mov_b32 v{65+2*i}, s{61+2*i}\n", f"v_mov_b32 v{65+2*i}, s{80+2*i}\n")
    if "@HOPS" in r: r = add_hops(cfg, r.replace("    @HOPS", "@HOPS"))
    return r

def full2(cfg, body):
    return HDR + f""".amdgcn_target "amdgcn-amd-amdhsa--gfx950"
.text
.globl {KN}
{PAD if cfg.align else ""}.p2align 8
.type {KN},@function
{KN}:
""" + head(cfg) + body + "\n" + tail(cfg) + f""".section .rodata,"a"
.p2align 6
.amdhsa_kernel {KN}
  .amdhsa_next_free_vgpr 512
  .amdhsa_next_free_sgpr 102
  .amdhsa_accum_offset 256
  .amdhsa_group_segment_fixed_size 0
  .amdhsa_kernarg_size 48
  .amdhsa_user_sgpr_count 2
  .amdhsa_user_sgpr_kernarg_segment_ptr 1
  .amdhsa_system_sgpr_workgroup_id_x 1
.end_amdhsa_kernel
"""

if __name__ == "__main__":
    cfg = Cfg()
    name = sys.argv[1]
    for a in sys.argv[2:]:
        k, v = a.split("=", 1)
        try: v = eval(v)
        except Exception: pass
        setattr(cfg, k, v)
    s = full(cfg)
    open(name, "w").write(s)
    tot = sum(v[0] for v in cfg.est.values())
    print(name, "est head", cfg.est_head, "total", tot, "mfma", sum(v[1] for v in cfg.est.values()), file=sys.stderr)
    print(" ".join(f"{s}:{v[0]}/{v[1]}" for s, v in cfg.est.items() if s < 16 or s >= 32), file=sys.stderr)
```
